```python
import torch

def _softmax(x, axis=-1):
    return torch.softmax(x, dim=axis)
def _gelu(x):
    return torch.nn.functional.gelu(x, approximate="tanh")
def _silu(x):
    return torch.nn.functional.silu(x)
def _sigmoid(x):
    return torch.sigmoid(x)
def _layernorm(x, axis=-1, eps=1e-5):
    m = x.mean(dim=axis, keepdim=True)
    v = x.var(dim=axis, keepdim=True, unbiased=False)
    return (x - m) / torch.sqrt(v + eps)
def _scatter_add(tgt, idx, src, axis=0):
    return tgt.clone().index_add_(axis, idx, src)
def _segment_sum(src, seg, n):
    out = torch.zeros((n,) + src.shape[1:], dtype=src.dtype)
    return out.index_add_(0, seg, src)
def _pad(x, pw):
    flat = tuple(v for pair in reversed(pw) for v in pair)
    return torch.nn.functional.pad(x, flat)

kernel_name = 'sequential_preLN__mha_block__glu_gated_geglu__prompt'

def setup_inputs():

    _w = (lambda a: (lambda t: t.to(torch.bfloat16) if t.is_floating_point() else t)(torch.as_tensor(a)))
    def _A_setup():
        B, S, D, H = 1, 2048, 1024, 32
        return {
            "x": _w((lambda *s: torch.randn(*s, dtype=torch.bfloat16) * 0.05)(B, S, D)),
            "wqkv": _w((lambda *s: torch.randn(*s, dtype=torch.bfloat16) * 0.05)(D, 3 * D)),
            "wo": _w((lambda *s: torch.randn(*s, dtype=torch.bfloat16) * 0.05)(D, D)),
        }
    _A_in = _A_setup()

    def _B_setup():
        B, S, Dm, Df = 1, 2048, 1024, 3584
        return {
            "x": _w((lambda *s: torch.randn(*s, dtype=torch.bfloat16) * 0.05)(B, S, Dm)),
            "w_gate": _w((lambda *s: torch.randn(*s, dtype=torch.bfloat16) * 0.8)(Dm, Df) * (Dm ** -0.5)),
            "w_up": _w((lambda *s: torch.randn(*s, dtype=torch.bfloat16) * 0.8)(Dm, Df) * (Dm ** -0.5)),
            "w_down": _w((lambda *s: torch.randn(*s, dtype=torch.bfloat16) * 0.8)(Df, Dm) * (Df ** -0.5)),
        }
    _B_in = _B_setup()

    return {
        "A_x": _A_in["x"],
        "A_wqkv": _A_in["wqkv"],
        "A_wo": _A_in["wo"],
        "B_x": _B_in["x"],
        "B_w_gate": _B_in["w_gate"],
        "B_w_up": _B_in["w_up"],
        "B_w_down": _B_in["w_down"],
    }

def reference(A_x, A_wqkv, A_wo, B_x, B_w_gate, B_w_up, B_w_down):
    def _A_ref(x, wqkv, wo):
        B, S, D = x.shape
        H = 32
        Dh = D // H
        qkv = (lambda x, *d: x.permute(*d))((x @ wqkv).reshape(B, S, 3, H, Dh), 2, 0, 3, 1, 4)
        q, k, v = qkv[0], qkv[1], qkv[2]
        scores = torch.einsum("bhqd,bhkd->bhqk", q, k) * (Dh ** -0.5)
        p = _softmax(scores, axis=-1)
        o = torch.einsum("bhqk,bhkd->bhqd", p, v)
        return (lambda x, *d: x.permute(*d))(o, 0, 2, 1, 3).reshape(B, S, D) @ wo

    def _B_ref(x, w_gate, w_up, w_down):
        g = torch.einsum("bsd,df->bsf", x, w_gate)
        u = torch.einsum("bsd,df->bsf", x, w_up)
        h = _gelu(g) * u
        return torch.einsum("bsf,fd->bsd", h, w_down)

    x = A_x
    h = x + _A_ref(_layernorm(x, axis=-1), A_wqkv, A_wo)
    h2 = h + _B_ref(_layernorm(h, axis=-1), B_w_gate, B_w_up, B_w_down)
    return h2
```

```python
import hz
HEADER = open('sequential_preLN__mha_block__glu_gated_geglu__prompt.s.ref').read().split('\n') if False else None

class K:
    def __init__(self, name, nvgpr=256, accum=256, total=None, nsgpr=102):
        self.name = name
        self.lines = []
        self.accum = accum
        self.total = total if total is not None else nvgpr
        self.nsgpr = nsgpr
        self._lab = 0
    def __call__(self, s, *a):
        for l in s.split('\n'):
            l = l.strip()
            if l:
                self.lines.append('  ' + l if not l.endswith(':') else l)
    def label(self, base):
        self._lab += 1
        return f"L_{self.name}_{base}_{self._lab}"
    def text(self):
        o = [f".globl {self.name}", ".p2align 8", f".type {self.name},@function", f"{self.name}:"]
        o += hz.fix(self.lines)
        return '\n'.join(o)
    def desc(self):
        o = [".p2align 6", f".amdhsa_kernel {self.name}",
             f"  .amdhsa_next_free_vgpr {self.total}",
             f"  .amdhsa_next_free_sgpr {self.nsgpr}",
             f"  .amdhsa_accum_offset {self.accum}",
             "  .amdhsa_group_segment_fixed_size 0",
             "  .amdhsa_kernarg_size 80",
             "  .amdhsa_user_sgpr_count 2",
             "  .amdhsa_user_sgpr_kernarg_segment_ptr 1",
             "  .amdhsa_system_sgpr_workgroup_id_x 1",
             ".end_amdhsa_kernel"]
        return '\n'.join(o)

def srd(k, d, base, nbytes, off=None):
    if off:
        k(f"s_add_u32 s{d}, s{base}, {hex(off)}")
        k(f"s_addc_u32 s{d+1}, s{base+1}, 0")
    else:
        k(f"s_mov_b32 s{d}, s{base}")
        k(f"s_mov_b32 s{d+1}, s{base+1}")
    k(f"s_mov_b32 s{d+2}, {hex(nbytes)}")
    k(f"s_mov_b32 s{d+3}, 0x20000")

def module(header_lines, launches, kernels):
    o = list(header_lines)
    for (nm, g, b, lds) in launches:
        o.append(f"; @launch kernel={nm} grid=({g},1,1) block=({b},1,1) lds={lds}")
    o.append('.amdgcn_target "amdgcn-amd-amdhsa--gfx950"')
    o.append('.text')
    for k in kernels:
        o.append(k.text())
    o.append('.section .rodata,"a"')
    for k in kernels:
        o.append(k.desc())
    return '\n'.join(o) + '\n'

def vr(a, n=1):
    return f"v{a}" if n == 1 else f"v[{a}:{a+n-1}]"
def ar(a, n=1):
    return f"a{a}" if n == 1 else f"a[{a}:{a+n-1}]"
def sr(a, n=1):
    return f"s{a}" if n == 1 else f"s[{a}:{a+n-1}]"

import os
STAMP = bool(int(os.environ.get("STAMP", "0")))
WS_TS = 0x2800000
def stamp(k, i):
    if not STAMP: return
    k(f"s_memrealtime s[{76}:{77}]")
    k(f"s_memtime s[{78}:{79}]")
    k("s_waitcnt lgkmcnt(0)")
    k(f"s_mov_b32 s{80+2*i}, s76")
    k(f"s_mov_b32 s{81+2*i}, s78")
def stamp_out(k, kidx, srdws, vt=(250, 251), nst=8):
    if not STAMP: return
    k("s_lshl_b32 s76, s2, 3"); k("s_add_u32 s76, s76, s20"); k("s_lshl_b32 s76, s76, 6")
    k(f"s_add_u32 s76, s76, {WS_TS + kidx*0x40000}")
    k(f"v_mov_b32 v{vt[1]}, 0")
    for i in range(2 * nst):
        k(f"v_mov_b32 v{vt[0]}, s{80+i}")
        k(f"buffer_store_dword v{vt[0]}, v{vt[1]}, s[{srdws}:{srdws+3}], s76 offen offset:{4*i}")
        k("s_nop 1")
    k("s_waitcnt vmcnt(0)")
```

```python
S, D, H, DH, DF = 2048, 1024, 32, 32, 3584
WS_XN = 0x0000000
WS_Q  = 0x0400000
WS_K  = 0x0800000
WS_VT = 0x0C00000
WS_O  = 0x1000000
WS_H  = 0x1400000
WS_HM = 0x1800000
WS_ST = 0x2600000
WS_CS = 0x2700000
WS_SIZE = 0x10000000
KA_X, KA_WQKV, KA_WO, KA_BX, KA_WG, KA_WU, KA_WD, KA_OUT, KA_DBG, KA_WS = [8*i for i in range(10)]
MB4 = 4 << 20
```

```python
import re
_R1 = re.compile(r'^(-?\|?)([vas])(\d+)\|?$')
_RR = re.compile(r'^(-?\|?)([vas])\[(\d+):(\d+)\]\|?$')
TRANS = ('v_exp_f32', 'v_log_f32', 'v_rcp_f32', 'v_rsq_f32', 'v_sqrt_f32', 'v_sin_f32', 'v_cos_f32', 'v_rcp_iflag_f32')
def regset(tok):
    tok = tok.strip()
    m = _R1.match(tok)
    if m: return {(m.group(2), int(m.group(3)))}
    m = _RR.match(tok)
    if m: return {(m.group(2), i) for i in range(int(m.group(3)), int(m.group(4)) + 1)}
    if tok == 'vcc': return {('s', 'vcc')}
    if tok == 'm0': return {('s', 'm0')}
    if tok == 'exec': return {('s', 'exec')}
    return set()
class I:
    __slots__ = ('text', 'op', 'kind', 'w', 'r', 'passes', 'C', 'AB', 'D', 'trans', 'dpp', 'nop', 'lds', 'store_data', 'opsel', 'perm', 'rdlane', 'target', 'lanesel')
    def __init__(s, text):
        s.text = text
        t = text.split(';')[0].strip()
        s.kind = None; s.w = set(); s.r = set(); s.passes = 0; s.C = s.AB = s.D = None
        s.trans = s.dpp = s.lds = s.opsel = s.perm = s.rdlane = False; s.nop = 0; s.store_data = set(); s.target = None; s.lanesel = set()
        if not t or t.startswith('.') or t.endswith(':'):
            s.kind = 'label' if t.endswith(':') else 'none'; s.op = t; return
        parts = t.split(None, 1)
        op = parts[0]; s.op = op
        rest = parts[1] if len(parts) > 1 else ''
        ops = [o.strip() for o in re.split(r',(?![^\[]*\])', rest)] if rest else []
        mods = ''
        if ops:
            last = ops[-1].split(None, 1)
            if len(last) > 1: ops[-1] = last[0]; mods = last[1]
        base = re.sub(r'_(e32|e64|dpp|sdwa)$', '', op)
        if op.startswith('v_mfma'):
            s.kind = 'mfma'
            s.D = regset(ops[0]); s.AB = regset(ops[1]) | regset(ops[2]); s.C = regset(ops[3])
            s.w = set(s.D); s.r = s.AB | s.C
            s.passes = 8 if '32x32x16' in op else 4 if '16x16x32' in op else 16
        elif op.startswith('v_'):
            s.kind = 'valu'
            s.trans = base in TRANS
            s.dpp = any(x in mods for x in ('row_', 'quad_perm', 'wave_', 'row_bcast')) or op.endswith('_dpp')
            s.opsel = 'dst_sel' in mods or ('op_sel' in mods and not op.startswith('v_pk') and not op.startswith('v_dot'))
            if 'permlane' in base:
                s.perm = True
                s.w = regset(ops[0]) | (regset(ops[1]) if 'swap' in base else set())
                s.r = set().union(*[regset(o) for o in ops])
            elif base.startswith('v_cmp'):
                s.w = regset(ops[0]); s.r = set().union(*[regset(o) for o in ops[1:]])
            elif base in ('v_readfirstlane_b32', 'v_readlane_b32'):
                s.rdlane = True
                s.w = regset(ops[0]); s.r = regset(ops[1])
                if len(ops) > 2: s.lanesel = regset(ops[2]); s.r |= s.lanesel
            else:
                s.w = regset(ops[0])
                s.r = set().union(*[regset(o) for o in ops[1:]]) if len(ops) > 1 else set()
                if base in ('v_fmac_f32', 'v_mac_f32', 'v_dot2c_f32_bf16', 'v_dot2c_f32_f16', 'v_pk_fmac_f16', 'v_writelane_b32') or s.dpp:
                    s.r |= s.w
                if base.startswith('v_cndmask') and len(ops) == 3: s.r.add(('s', 'vcc'))
                if base in ('v_add_co_u32', 'v_sub_co_u32', 'v_addc_co_u32', 'v_subb_co_u32'):
                    s.w |= regset(ops[1])
        elif op.startswith('ds_'):
            s.kind = 'ds'
            if op.startswith('ds_read') or op.startswith('ds_bpermute') or op.startswith('ds_swizzle') or op.startswith('ds_permute'):
                s.w = regset(ops[0]); s.r = set().union(*[regset(o) for o in ops[1:]])
            else:
                s.r = set().union(*[regset(o) for o in ops])
        elif op.startswith('buffer_') or op.startswith('global_'):
            s.kind = 'vmem'
            s.lds = bool(re.search(r'\blds\b', mods))
            if 'load' in op and not s.lds:
                s.w = regset(ops[0]); s.r = set().union(*[regset(o) for o in ops[1:]])
            else:
                s.r = set().union(*[regset(o) for o in ops]) if ops else set()
                if 'store' in op and ('x3' in op or 'x4' in op): s.store_data = regset(ops[0])
                if 'atomic' in op and re.search(r'\b(glc|sc0)\b', mods): s.w = regset(ops[0])
        elif op.startswith('s_'):
            s.kind = 'salu'
            if op == 's_nop': s.nop = int(ops[0], 0) + 1
            if op.startswith('s_cbranch') or op == 's_branch': s.target = ops[0]
            if op.startswith('s_load') or op.startswith('s_memtime') or op.startswith('s_memrealtime'):
                s.kind = 'smem'; s.w = regset(ops[0])
            elif not (op.startswith('s_cmp') or op.startswith('s_cbranch') or op in ('s_branch', 's_waitcnt', 's_nop', 's_barrier', 's_endpgm', 's_setprio', 's_sleep', 's_bitcmp0_b32', 's_bitcmp1_b32')):
                if ops: s.w = regset(ops[0])
                if 'saveexec' in op: s.w.add(('s', 'exec'))
                s.r = set().union(*[regset(o) for o in ops[1:]]) if len(ops) > 1 else set()
        else:
            raise ValueError('unknown instr: ' + text)
    @property
    def states(s):
        if s.kind in ('label', 'none'): return 0
        return s.nop if s.nop else 1
def isv(x): return x[0] in 'va'
def need(P, C):
    n = 0
    if P.kind == 'valu':
        wv = {x for x in P.w if isv(x)}
        ws = {x for x in P.w if not isv(x)}
        if wv:
            if P.op.startswith('v_dot'):
                if C.kind == 'valu' and C.op == P.op:
                    ab = set()
                    m = [o.strip() for o in C.text.split(None, 1)[1].split(',')]
                    for o in m[1:3]: ab |= regset(o)
                    if wv & ab: n = max(n, 3)
                elif C.kind in ('valu', 'ds', 'vmem', 'mfma') and wv & (C.r | C.w): n = max(n, 3)
            if C.kind == 'valu':
                if C.rdlane and wv & C.r: n = max(n, 1)
                if C.perm and wv & (C.r | C.w): n = max(n, 2)
                if C.dpp and wv & C.r: n = max(n, 2)
                if P.trans and not C.trans and wv & C.r: n = max(n, 1)
                if P.opsel and wv & (C.r | C.w): n = max(n, 1)
            if C.kind == 'mfma' and wv & C.r: n = max(n, 2)
        if ws:
            if C.kind == 'valu' and ws & C.r: n = max(n, 4 if (ws & C.lanesel) else 2)
            if C.kind == 'vmem' and ws & C.r: n = max(n, 5)
            if ('s', 'exec') in ws:
                if C.kind == 'mfma': n = max(n, 4)
                if C.kind == 'valu' and C.dpp: n = max(n, 5)
    elif P.kind == 'salu':
        if ('s', 'm0') in P.w and ((C.kind == 'vmem' and C.lds) or (C.kind == 'ds' and 'addtid' in C.op)): n = max(n, 1)
    elif P.kind == 'vmem':
        if P.store_data and (P.store_data & C.w): n = max(n, 2 if C.kind in ('valu', 'mfma') else 1)
    elif P.kind == 'mfma':
        big = {4: 8, 8: 12, 16: 20}[P.passes]
        if C.kind == 'mfma':
            if P.D & C.AB: n = max(n, big)
            if P.D & C.C and not (P.D == C.C and P.passes == C.passes): n = max(n, big - 2)
            if P.D & C.D and not (P.D == C.D and P.passes == C.passes) : n = max(n, big - 2)
        elif C.kind == 'valu':
            if P.D & (C.r | C.w): n = max(n, big)
            if P.C & C.w: n = max(n, {4: 3, 8: 7, 16: 15}[P.passes])
        elif C.kind in ('ds', 'vmem'):
            if P.D & (C.r | C.w): n = max(n, big)
    return n
WIN = 22
def _check_seq(seq, insert):
    out = []
    nins = 0
    for C in seq:
        if C.kind in ('label', 'none'):
            out.append(C); continue
        d = 0; req = 0
        for P in reversed(out):
            if P.kind in ('label', 'none'): continue
            k = need(P, C) - d
            if k > req: req = k
            d += P.states
            if d >= WIN: break
        if req > 0:
            if not insert: return (C, req)
            nins += 1
            while req > 0:
                q = min(req, 16)
                out.append(I(f'  s_nop {q-1}'))
                req -= q
        out.append(C)
    return out if insert else None
def fix(lines):
    seq = [I(l) for l in lines]
    out = _check_seq(seq, True)
    labels = {x.op[:-1]: i for i, x in enumerate(out) if x.kind == 'label'}
    for i, x in enumerate(out):
        if x.target and x.target in labels:
            j = labels[x.target]
            pre = out[max(0, i - 40):i + 1]
            post = out[j:j + 40]
            p2 = []
            for y in post:
                p2.append(y)
                if y.op in ('s_branch', 's_endpgm'): break
            n0 = len(pre)
            outp = list(pre)
            for C in p2:
                if C.kind in ('label', 'none'): outp.append(C); continue
                d = 0
                for P in reversed(outp):
                    if P.kind in ('label', 'none'): continue
                    if need(P, C) - d > 0:
                        raise RuntimeError(f'hazard across branch {x.text.strip()}: {P.text.strip()} -> {C.text.strip()} need {need(P,C)} have {d}')
                    d += P.states
                    if d >= WIN: break
                outp.append(C)
    return [x.text for x in out]
```

```python
import sys, importlib
sys.path.insert(0, "gen")
from asmlib import *
from common import *
REF = 'sequential_preLN__mha_block__glu_gated_geglu__prompt.s.ref'
def header():
    o = []
    for l in open(REF).read().split('\n'):
        if l.startswith('; @launch') or not l.startswith(';'): break
        o.append(l)
    return o
def build(parts, path):
    ks, ls = [], []
    for p in parts:
        k, l = p
        if k not in ks: ks.append(k)
        ls.append(l)
    txt = module(header(), ls, ks)
    open(path, 'w').write(txt)
    return txt
if __name__ == "__main__":
    names = sys.argv[2:]
    parts = []
    for n in names:
        mod, _, fn = n.partition(':')
        m = importlib.import_module(mod)
        parts.append(getattr(m, fn or mod)())
    build(parts, sys.argv[1])
    print("wrote", sys.argv[1])
```

```python
S, D, H, DH, DF = 2048, 1024, 32, 32, 3584
WS_XN = 0x0000000
WS_Q  = 0x0400000
WS_K  = 0x0800000
WS_VT = 0x0C00000
WS_O  = 0x1000000
WS_H  = 0x1400000
WS_HM = 0x1800000
WS_ST = 0x2600000
WS_CS = 0x2700000
WS_ST1 = 0x2740000
WS_CS1 = 0x2780000
WS_CNT = 0x27C0000
WS_RM = 0x27D0000
WS_MX = 0x27E0000
WS_SIZE = 0x10000000
KA_X, KA_WQKV, KA_WO, KA_BX, KA_WG, KA_WU, KA_WD, KA_OUT, KA_DBG, KA_WS = [8*i for i in range(10)]
MB4 = 4 << 20
```

```python
from asmlib import K, srd
from common import *
import os, struct, math
STAMP = bool(int(os.environ.get("STAMP", "0")))
UPTO = int(os.environ.get("UPTO", "5"))
NAME = "sequential_preLN__mha_block__glu_gated_geglu__prompt_kernel"
WS_TS = 0x2800000
SC = " sc1"
LDS_BYTES = 163840
pX, pWQKV, pWO, pBX, pWG, pWU, pWD, pOUT, pDBG, pWS = [64 + 2 * i for i in range(10)]
C2, C3, C4, C5 = 0, 16, 24, 32
SPIN_LIMIT = 0x40000
def f2h(x): return hex(struct.unpack('<I', struct.pack('<f', x))[0])

class G(K):
    def __init__(s, *a, **kw):
        super().__init__(*a, **kw); s.nl = 0; s.nst = 0; s.stnames = []
    def lab(s, base):
        s.nl += 1; return f"L_{base}_{s.nl}"
    def stamp(s, nm):
        if not STAMP: return
        i = s.nst; s.nst += 1; s.stnames.append(nm)
        s("s_memrealtime s[84:85]"); s("s_memtime s[86:87]"); s("s_waitcnt lgkmcnt(0)")
        s(f"v_writelane_b32 v255, s84, {i}"); s(f"v_writelane_b32 v254, s86, {i}")
    def stamp_at(s, i):
        if not STAMP: return
        s("s_memrealtime s[84:85]"); s("s_memtime s[86:87]"); s("s_waitcnt lgkmcnt(0)")
        s(f"v_writelane_b32 v255, s84, {i}"); s(f"v_writelane_b32 v254, s86, {i}")
    def stamp_out(s):
        if not STAMP: return
        s("s_lshl_b32 s84, s2, 3"); s("s_add_u32 s84, s84, s20"); s("s_lshl_b32 s84, s84, 9")
        s(f"s_add_u32 s84, s84, {WS_TS}")
        s("v_lshlrev_b32 v253, 2, v1")
        s("buffer_store_dword v255, v253, s[12:15], s84 offen")
        s("buffer_store_dword v254, v253, s[12:15], s84 offen offset:256")
        s("s_waitcnt vmcnt(0)")

class VM:
    def __init__(s): s.q = []
    def issue(s, tag, n=1): s.q += [tag] * n
    def cnt(s, tags):
        last = -1
        for i, t in enumerate(s.q):
            if t in tags: last = i
        return len(s.q) - 1 - last if last >= 0 else None

def periods(k, name, texts, cnt_sgpr):
    i = 0; n = len(texts)
    while i < n:
        j = i
        while j + 1 < n and texts[j + 1] == texts[i]: j += 1
        rep = j - i + 1
        if rep > 1:
            l = k.lab(name)
            k(f"s_mov_b32 s{cnt_sgpr}, 0")
            k(f"{l}:")
            for x in texts[i]: k(x)
            k(f"s_add_u32 s{cnt_sgpr}, s{cnt_sgpr}, 1")
            k(f"s_cmp_lt_u32 s{cnt_sgpr}, {rep}")
            k(f"s_cbranch_scc1 {l}")
        else:
            for x in texts[i]: k(x)
        i = j + 1

def signal(k, sline, vt=(14, 15)):
    k("s_waitcnt vmcnt(0)")
    k("s_barrier")
    l = k.lab("nosig")
    k("s_cmp_lg_u32 s20, 0"); k(f"s_cbranch_scc1 {l}")
    k("s_mov_b64 exec, 1")
    k(f"v_mov_b32 v{vt[0]}, 1"); k(f"v_mov_b32 v{vt[1]}, 0")
    k(f"buffer_atomic_add v{vt[0]}, v{vt[1]}, s[12:15], s{sline} offen sc1")
    k("s_mov_b64 exec, -1")
    k(f"{l}:")

def wait(k, sline, target, vt=(14, 15)):
    done = k.lab("wdone"); spin = k.lab("wspin")
    k("s_cmp_lg_u32 s20, 0"); k(f"s_cbranch_scc1 {done}")
    k(f"v_mov_b32 v{vt[1]}, 0")
    k("s_mov_b32 s28, 0")
    k(f"{spin}:")
    k(f"buffer_load_dword v{vt[0]}, v{vt[1]}, s[12:15], s{sline} offen sc1")
    k("s_add_u32 s28, s28, 1")
    k("s_waitcnt vmcnt(0)")
    k(f"v_readfirstlane_b32 s29, v{vt[0]}")
    k(f"s_cmp_eq_u32 s29, {target}"); k(f"s_cbranch_scc1 {done}")
    k(f"s_cmp_gt_u32 s28, {SPIN_LIMIT}"); k(f"s_cbranch_scc1 {done}")
    k("s_sleep 1")
    k(f"s_branch {spin}")
    k(f"{done}:")
    k("s_barrier")

def wdma_lane(k, vdst, rowbytes, t):
    k(f"v_lshrrev_b32 v{t}, 3, v1"); k(f"v_and_b32 v{t+1}, 7, v1")
    k(f"v_lshrrev_b32 v{t+2}, 2, v{t}"); k(f"v_and_b32 v{t+3}, 3, v{t}")
    k(f"v_lshl_add_u32 v{t+2}, v{t+2}, 3, v{t+3}")
    k(f"v_mul_u32_u24 v{t+2}, {rowbytes}, v{t+2}")
    k(f"v_lshrrev_b32 v{t+3}, 1, v{t+1}"); k(f"v_lshrrev_b32 v{t}, 1, v{t}")
    k(f"v_xor_b32 v{t+3}, v{t+3}, v{t}")
    k(f"v_and_b32 v{t+1}, 1, v{t+1}")
    k(f"v_lshl_add_u32 v{t+3}, v{t+3}, 1, v{t+1}")
    k(f"v_lshl_add_u32 v{vdst}, v{t+3}, 4, v{t+2}")

def phase1(k):
    NS = 4; SLOT = 40960; BOFF = 24576
    ACC = 64
    vA = [2, 3]; vW = [10, 11, 12]; vX = [13, 4]; vL16 = 5; vZ = 6; vP = 7
    A = [16, 28]; B = [40, 112]
    VB = 128; DC = 144; D1 = 156; D2 = 160; ONE = 164; PL = 168
    RMR = 192
    acc = lambda m, j: ACC + (m * 4 + j) * 4
    k("s_and_b32 s21, s2, 7"); k("s_lshr_b32 s22, s2, 3")
    k("s_and_b32 s23, s21, 1"); k("s_lshl_b32 s23, s23, 3"); k("s_and_b32 s24, s22, 7"); k("s_add_u32 s23, s23, s24")
    k("s_lshr_b32 s24, s21, 1"); k("s_lshl_b32 s24, s24, 2"); k("s_lshr_b32 s25, s22, 3"); k("s_add_u32 s24, s24, s25")
    k("s_and_b32 s25, s20, 1")
    k("s_lshr_b32 s26, s20, 1")
    wdma_lane(k, vW[0], 6144, 14)
    k(f"v_add_u32 v{vW[1]}, 2048, v{vW[0]}")
    k(f"v_add_u32 v{vW[2]}, 4096, v{vW[0]}")
    k("v_lshrrev_b32 v14, 3, v1"); k("v_and_b32 v15, 7, v1")
    k("v_lshrrev_b32 v17, 4, v1")
    k("v_xor_b32 v17, v17, v15")
    k("v_lshlrev_b32 v17, 4, v17")
    k(f"v_lshl_add_u32 v{vX[0]}, v14, 11, v17")
    k(f"v_xor_b32 v{vX[1]}, 64, v{vX[0]}")
    k(f"v_add_u32 v{vX[1]}, {16384 - 1024}, v{vX[1]}")
    k(f"v_lshlrev_b32 v{vL16}, 4, v1")
    k("s_lshr_b32 s27, s20, 2"); k("s_lshl_b32 s27, s27, 5")
    k("s_bfe_u32 s28, s20, 0x10001"); k("s_lshl_b32 s28, s28, 4"); k("s_add_u32 s27, s27, s28")
    k("s_lshl_b32 s28, s25, 2"); k("s_add_u32 s27, s27, s28")
    k("s_mul_i32 s48, s27, 6144"); k("s_lshl_b32 s28, s24, 7"); k("s_add_u32 s48, s48, s28")
    k(f"s_add_u32 s46, s48, {16*64*6144}")
    k("s_lshl_b32 s49, s23, 3"); k("s_add_u32 s49, s49, s20"); k("s_lshl_b32 s49, s49, 15")
    k("s_add_u32 s27, s23, s24"); k("s_and_b32 s27, s27, 15")
    k(f"s_mul_i32 s28, s27, {64*6144}"); k("s_add_u32 s30, s48, s28")
    k("s_lshl_b32 s28, s27, 7"); k("s_add_u32 s31, s49, s28")
    k("s_lshl_b32 s32, s20, 10")
    k("s_lshl_b32 s33, s20, 11"); k(f"s_add_u32 s33, s33, {BOFF}")
    k("s_waitcnt lgkmcnt(0)")
    srd(k, 8, pWQKV, D * 3 * D * 2)
    srd(k, 12, pWS, WS_SIZE)
    srd(k, 16, pX, MB4)
    def dma(slot):
        o = []
        for m in range(3):
            o.append([f"s_add_u32 m0, s32, {slot*SLOT + m*8192}", f"buffer_load_dwordx4 v{vW[m]}, s[8:11], s30 offen lds"])
        o.append([f"s_add_u32 m0, s33, {slot*SLOT}", f"buffer_load_dwordx4 v{vX[0]}, s[16:19], s31 offen lds"])
        o.append([f"buffer_load_dwordx4 v{vX[1]}, s[16:19], s31 offen offset:1024 lds"])
        return o
    adv = [f"s_add_u32 s30, s30, {64*6144}", "s_add_u32 s31, s31, 128", "s_cmp_eq_u32 s30, s46", "s_cselect_b32 s30, s48, s30", "s_cselect_b32 s31, s49, s31"]
    for s in range(NS):
        for d in dma(s):
            for l in d: k(l)
        for l in adv: k(l)
    srd(k, 84, pWO, D * D * 2)
    k("v_lshlrev_b32 v14, 4, v0"); k("s_lshl_b32 s27, s2, 13")
    k(f"buffer_load_dwordx4 v[{RMR}:{RMR+3}], v14, s[84:87], s27 offen")
    l0 = k.lab("noinit")
    k("s_cmp_lg_u32 s2, 0"); k(f"s_cbranch_scc1 {l0}")
    for r in range(4): k(f"v_mov_b32 v{PL+r}, 0")
    k(f"s_mov_b32 s27, {WS_CNT}")
    k(f"buffer_store_dwordx4 v[{PL}:{PL+3}], v14, s[12:15], s27 offen{SC}")
    k(f"{l0}:")
    srd(k, 60, pDBG, 256)
    k("v_lshrrev_b32 v14, 4, v1")
    k("v_bfe_u32 v15, v1, 2, 2")
    k("v_lshrrev_b32 v16, 1, v14"); k("v_and_b32 v17, 1, v14")
    k("v_lshlrev_b32 v16, 4, v16"); k("v_lshl_add_u32 v16, v17, 2, v16"); k("v_add_u32 v16, v16, v15")
    k("v_lshlrev_b32 v16, 7, v16")
    k("v_lshrrev_b32 v18, 1, v15"); k("v_lshl_add_u32 v18, v17, 1, v18")
    k("v_xor_b32 v18, s26, v18")
    k("v_lshl_add_u32 v16, v18, 5, v16")
    k("v_and_b32 v18, 3, v1")
    k(f"v_lshl_add_u32 v{vA[0]}, v18, 3, v16")
    k(f"v_add_u32 v{vA[1]}, {2*SLOT}, v{vA[0]}")
    for i in range(1, 4): k(f"v_cmp_eq_u32 s[{48+2*i}:{49+2*i}], {i}, v18")
    k("v_cmp_eq_u32 s[56:57], v14, v15")
    k("v_and_b32 v15, 15, v1")
    k("v_cmp_eq_u32 s[58:59], 0, v15")
    k("v_lshrrev_b32 v16, 1, v15"); k("v_xor_b32 v16, v16, v14"); k("v_lshlrev_b32 v16, 4, v16")
    k("v_lshl_add_u32 v16, v15, 7, v16")
    k("s_cmp_eq_u32 s25, 0")
    k("s_cselect_b32 s58, s58, 0"); k("s_cselect_b32 s59, s59, 0")
    k("s_lshl_b32 s28, s25, 13"); k(f"s_add_u32 s28, s28, {BOFF}")
    for jj in range(4):
        k(f"s_xor_b32 s27, s26, {jj}"); k("s_lshl_b32 s27, s27, 11"); k("s_add_u32 s27, s27, s28")
        k(f"v_add_u32 v{VB+jj}, s27, v16")
        k(f"v_xor_b32 v{VB+4+jj}, 64, v{VB+jj}")
        k(f"v_add_u32 v{VB+8+jj}, {2*SLOT}, v{VB+jj}")
        k(f"v_add_u32 v{VB+12+jj}, {2*SLOT}, v{VB+4+jj}")
    k(f"v_mov_b32 v{vZ}, 0")
    k("v_lshlrev_b32 v8, 3, v15")
    k("s_lshl_b32 s42, s23, 3"); k("s_lshl_b32 s27, s25, 2"); k("s_add_u32 s42, s42, s27"); k("s_add_u32 s42, s42, s26")
    k("s_lshl_b32 s42, s42, 7"); k("s_lshl_b32 s27, s24, 14"); k("s_add_u32 s42, s42, s27"); k(f"s_add_u32 s42, s42, {WS_ST1}")
    k("v_lshlrev_b32 v9, 4, v14")
    k("s_lshl_b32 s43, s24, 4"); k("s_add_u32 s43, s43, s23"); k("s_mul_i32 s43, s43, 768")
    k("s_lshl_b32 s27, s26, 6"); k("s_add_u32 s43, s43, s27"); k(f"s_add_u32 s43, s43, {WS_CS1}")
    k("v_and_b32 v196, 1, v1"); k("v_lshlrev_b32 v196, 7, v196")
    for r in range(ACC, ACC + 48): k(f"v_mov_b32 v{r}, 0")
    for r in range(DC, DC + 20): k(f"v_mov_b32 v{r}, 0")
    for r in range(4): k(f"v_mov_b32 v{ONE+r}, 0x3f803f80")
    def reads(buf, slot, kb):
        o = []
        pr = slot >> 1; so = (slot & 1) * SLOT
        def rA(m):
            return [f"ds_read_b64_tr_b16 v[{A[buf]+4*m+2*t}:{A[buf]+4*m+2*t+1}], v{vA[pr]} offset:{so + m*8192 + kb*4096 + t*1024}" for t in range(2)]
        def rB(j):
            return [f"ds_read_b128 v[{B[buf]+4*j}:{B[buf]+4*j+3}], v{VB + pr*8 + kb*4 + j} offset:{so}"]
        o += rA(0)
        for j in range(4): o += rB(j)
        o += rA(1) + rA(2)
        return o
    def side(buf):
        o = []
        fb = f"v[{B[buf]}:{B[buf]+3}]"; on = f"v[{ONE}:{ONE+3}]"
        for m in range(3):
            o.append(f"v_mfma_f32_16x16x32_bf16 v[{DC+4*m}:{DC+4*m+3}], v[{A[buf]+4*m}:{A[buf]+4*m+3}], {on}, v[{DC+4*m}:{DC+4*m+3}]")
        o.append(f"v_mfma_f32_16x16x32_bf16 v[{D1}:{D1+3}], {on}, {fb}, v[{D1}:{D1+3}]")
        o.append(f"v_mfma_f32_16x16x32_bf16 v[{D2}:{D2+3}], {fb}, {fb}, v[{D2}:{D2+3}]")
        return o
    def once(lines):
        l = k.lab("once")
        k("s_cmp_lg_u32 s34, 0"); k(f"s_cbranch_scc1 {l}")
        for x in lines: k(x)
        k(f"{l}:")
    def publish():
        o = [f"v_cndmask_b32 v{D2}, v{D2}, v{D2+1}, s[50:51]", f"v_cndmask_b32 v{D2}, v{D2}, v{D2+2}, s[52:53]", f"v_cndmask_b32 v{D2}, v{D2}, v{D2+3}, s[54:55]",
             f"v_mov_b32 v{D1+1}, v{D2}",
             "s_mov_b64 exec, s[56:57]",
             f"buffer_store_dwordx2 v[{D1}:{D1+1}], v8, s[12:15], s42 offen{SC}",
             "s_mov_b64 exec, s[58:59]"]
        for m in range(3):
            o.append(f"buffer_store_dwordx4 v[{DC+4*m}:{DC+4*m+3}], v9, s[12:15], s43 offen offset:{256*m}{SC}")
        o.append("s_mov_b64 exec, -1")
        return o
    def sig1():
        l = k.lab("nosig1")
        return ["s_cmp_lg_u32 s20, 0", f"s_cbranch_scc1 {l}", "s_mov_b64 exec, 1", "v_mov_b32 v14, 1",
                "s_and_b32 s27, s2, 1", "s_lshl_b32 s27, s27, 7",
                f"buffer_atomic_add v14, v{vZ}, s[60:63], s27 offen sc1", "s_mov_b64 exec, -1", f"{l}:"]
    k(f"s_waitcnt vmcnt({5*(NS-1)+1})")
    k("s_barrier")
    k.stamp("p1_go")
    for l in reads(0, 0, 0): k(l)
    def step(tile, kb, do_dma, vm, last, first=False, pre=None):
        cur = kb; nxt = kb ^ 1
        if kb == 0:
            k("s_waitcnt lgkmcnt(0)")
            rd = reads(nxt, tile, 1); dm = []
        else:
            if last:
                k("s_waitcnt lgkmcnt(0)"); rd = []
            else:
                k(f"s_waitcnt vmcnt({vm}) lgkmcnt(0)")
                k("s_barrier")
                rd = reads(nxt, (tile + 1) % NS, 0)
            dm = dma(tile) if do_dma else []
        if pre: pre()
        mf = []
        for m in range(3):
            for j in range(4):
                a = acc(m, j); fa = f"v[{A[cur]+4*m}:{A[cur]+4*m+3}]"; fb = f"v[{B[cur]+4*j}:{B[cur]+4*j+3}]"
                if m == 2: fa, fb = fb, fa
                mf.append(f"v_mfma_f32_16x16x32_bf16 v[{a}:{a+3}], {fa}, {fb}, v[{a}:{a+3}]")
        gaps = [[] for _ in mf]
        for q, r in enumerate(rd): gaps[q].append(r)
        pos = [1, 3, 5, 7, 9]
        for q, d in enumerate(dm):
            if len(d) == 2:
                gaps[pos[q] - 1].append(d[0]); gaps[pos[q]].append(d[1])
            else:
                gaps[pos[q]].append(d[0])
        if dm: gaps[10] += adv
        for g, mm in enumerate(mf):
            k(mm)
            for l in gaps[g]: k(l)
        if first: once(side(cur))
    NT = 16
    k("s_mov_b32 s34, 0")
    lp = k.lab("p1loop")
    k(f"{lp}:")
    for t in range(NS):
        step(t, 0, False, 0, False, first=(t == 0))
        if t == 1: once(publish())
        step(t, 1, True, 5 * (NS - 2), False, first=(t == 0))
        if t == 3: once(sig1())
    k("s_add_u32 s34, s34, 1")
    k(f"s_cmp_lt_u32 s34, {NT // NS - 1}")
    k(f"s_cbranch_scc1 {lp}")
    def partial_loads():
        rdy = k.lab("p1rdy"); spin = k.lab("p1spin"); nocs = k.lab("p1nocs")
        k(f"v_cmp_eq_u32 vcc, 128, v{vP}")
        k("s_cmp_eq_u64 vcc, -1")
        k(f"s_cbranch_scc1 {rdy}")
        k("s_mov_b32 s28, 0")
        k(f"{spin}:")
        k("s_add_u32 s28, s28, 1")
        k(f"s_cmp_gt_u32 s28, {SPIN_LIMIT}")
        k(f"s_cbranch_scc1 {rdy}")
        k("s_sleep 2")
        k(f"buffer_load_dword v{vP}, v196, s[60:63], 0 offen sc1")
        k("s_waitcnt vmcnt(0)")
        k(f"v_cmp_eq_u32 vcc, 128, v{vP}")
        k("s_cmp_eq_u64 vcc, -1")
        k(f"s_cbranch_scc0 {spin}")
        k(f"{rdy}:")
        k("v_and_b32 v14, 3, v0"); k("v_lshlrev_b32 v14, 16, v14")
        k("v_lshrrev_b32 v15, 2, v0"); k("v_lshl_add_u32 v14, v15, 3, v14")
        k("s_lshl_b32 s27, s23, 10"); k(f"s_add_u32 s27, s27, {WS_ST1}")
        for i in range(4):
            k(f"buffer_load_dwordx2 v[{PL+2*i}:{PL+2*i+1}], v14, s[12:15], s27 offen{SC}")
            if i < 3: k("s_add_u32 s27, s27, 16384")
        k("s_cmp_ge_u32 s20, 3")
        k(f"s_cbranch_scc1 {nocs}")
        k("v_lshlrev_b32 v14, 2, v0")
        k(f"s_mul_i32 s27, s24, {16*768}"); k(f"s_add_u32 s27, s27, {WS_CS1}")
        for i in range(16):
            k(f"buffer_load_dword v{PL+8+i}, v14, s[12:15], s27 offen offset:{(i % 4) * 768}{SC}")
            if i % 4 == 3 and i < 15: k(f"s_add_u32 s27, s27, {4*768}")
        k(f"{nocs}:")
    for t in range(NS):
        step(t, 0, False, 0, False)
        if t == 0: k(f"buffer_load_dword v{vP}, v196, s[60:63], 0 offen sc1")
        vm = 5 * max(NS - 2 - t, 0) + (1 if t < 2 else 0)
        step(t, 1, False, vm, t == NS - 1, pre=partial_loads if t == 2 else None)
    k.stamp("p1_loop")
    k("v_mov_b32 v14, 0")
    for r in range(4): k(f"v_dot2c_f32_bf16 v14, v{RMR+r}, v{ONE}")
    for ro in (8, 4, 2, 1): k(f"v_add_f32_dpp v14, v14, v14 row_ror:{ro} row_mask:0xf bank_mask:0xf")
    for sw in ("v_permlane16_swap_b32", "v_permlane32_swap_b32"):
        k("v_mov_b32 v15, v14"); k(f"{sw} v14, v15"); k("v_add_f32 v14, v14, v15")
    k("s_lshl_b32 s27, s20, 2"); k("s_add_u32 s27, s27, 2048"); k("v_mov_b32 v15, s27")
    k("ds_write_b32 v15, v14")
    k("s_waitcnt vmcnt(0)")
    k(f"v_add_f32 v{PL}, v{PL}, v{PL+2}"); k(f"v_add_f32 v{PL+1}, v{PL+1}, v{PL+3}")
    k(f"v_add_f32 v{PL+4}, v{PL+4}, v{PL+6}"); k(f"v_add_f32 v{PL+5}, v{PL+5}, v{PL+7}")
    k(f"v_add_f32 v{PL}, v{PL}, v{PL+4}"); k(f"v_add_f32 v{PL+1}, v{PL+1}, v{PL+5}")
    for qp in ("[1,0,3,2]", "[2,3,0,1]"):
        k(f"v_add_f32_dpp v{PL}, v{PL}, v{PL} quad_perm:{qp} row_mask:0xf bank_mask:0xf")
        k(f"v_add_f32_dpp v{PL+1}, v{PL+1}, v{PL+1} quad_perm:{qp} row_mask:0xf bank_mask:0xf")
    k(f"v_mul_f32 v{PL}, 0x3a800000, v{PL}")
    k(f"v_mul_f32 v{PL+1}, 0x3a800000, v{PL+1}")
    k("v_lshrrev_b32 v16, 2, v0"); k("v_lshlrev_b32 v16, 2, v16")
    lm = k.lab("nomx")
    k("s_cmp_lg_u32 s24, 0"); k(f"s_cbranch_scc1 {lm}")
    k("s_lshl_b32 s27, s23, 9"); k(f"s_add_u32 s27, s27, {WS_MX}")
    k(f"buffer_store_dword v{PL}, v16, s[12:15], s27 offen{SC}")
    k(f"{lm}:")
    k(f"v_fma_f32 v{PL+1}, -v{PL}, v{PL}, v{PL+1}")
    k(f"v_max_f32 v{PL+1}, 0, v{PL+1}")
    k(f"v_add_f32 v{PL+1}, 0x3727c5ac, v{PL+1}")
    k(f"v_rsq_f32 v{PL+1}, v{PL+1}")
    k(f"v_mul_f32 v{PL+2}, v{PL}, v{PL+1}")
    k(f"v_sub_f32 v{PL+2}, 0, v{PL+2}")
    k(f"ds_write_b32 v16, v{PL+1}")
    k(f"ds_write_b32 v16, v{PL+2} offset:512")
    l2 = k.lab("nocs2")
    k("s_cmp_ge_u32 s20, 3")
    k(f"s_cbranch_scc1 {l2}")
    for st in (8, 4, 2, 1):
        for i in range(st): k(f"v_add_f32 v{PL+8+i}, v{PL+8+i}, v{PL+8+i+st}")
    k("v_lshlrev_b32 v16, 2, v0")
    k(f"ds_write_b32 v16, v{PL+8} offset:1024")
    k(f"{l2}:")
    k("v_and_b32 v15, 15, v1")
    k("s_lshl_b32 s27, s25, 8"); k("s_lshl_b32 s28, s26, 6"); k("s_add_u32 s28, s28, s27")
    k("v_lshlrev_b32 v16, 2, v15")
    k("v_add_u32 v17, s28, v16")
    k("v_lshrrev_b32 v14, 4, v1")
    k("v_lshlrev_b32 v19, 4, v14")
    k("v_add_u32 v20, s28, v19")
    k("s_lshl_b32 s29, s26, 6"); k("s_add_u32 s29, s29, 1024")
    k("v_add_u32 v19, s29, v19")
    k("v_add_u32 v18, s29, v16")
    for jj in range(1, 4):
        k(f"v_xor_b32 v{20+jj}, {jj<<6}, v20")
        k(f"v_xor_b32 v{23+jj}, {jj<<6}, v17")
    k("s_lshl_b32 s27, s23, 2"); k("s_lshl_b32 s28, s25, 1"); k("s_add_u32 s27, s27, s28")
    k("s_lshl_b32 s27, s27, 16")
    k("s_lshl_b32 s28, s24, 12"); k("s_add_u32 s27, s27, s28")
    k("s_lshl_b32 s28, s26, 10"); k("s_add_u32 s27, s27, s28")
    k("s_lshr_b32 s42, s26, 1")
    k("s_lshl_b32 s28, s42, 16"); k("s_add_u32 s35, s27, s28")
    k("s_xor_b32 s28, s28, 0x10000"); k("s_add_u32 s37, s27, s28")
    k(f"s_add_u32 s36, s35, {WS_K}"); k(f"s_add_u32 s38, s37, {WS_K}")
    k(f"s_add_u32 s35, s35, {WS_Q}"); k(f"s_add_u32 s37, s37, {WS_Q}")
    k("s_lshl_b32 s27, s24, 1"); k("s_add_u32 s27, s27, s42")
    k("s_lshl_b32 s27, s27, 7")
    k("s_lshl_b32 s28, s23, 3"); k("s_add_u32 s27, s27, s28")
    k("s_lshl_b32 s28, s25, 2"); k("s_add_u32 s27, s27, s28")
    k("s_lshl_b32 s27, s27, 10")
    k("s_and_b32 s43, s26, 1")
    k("s_lshl_b32 s28, s43, 8"); k("s_add_u32 s27, s27, s28")
    k(f"s_add_u32 s27, s27, {WS_VT}")
    k("s_lshl_b32 s28, s42, 11"); k("s_add_u32 s39, s27, s28")
    k("s_xor_b32 s28, s28, 2048"); k("s_add_u32 s40, s27, s28")
    k("v_lshrrev_b32 v27, 5, v1"); k("v_xor_b32 v27, s43, v27"); k("v_lshlrev_b32 v27, 10, v27")
    k("v_bfe_u32 v28, v1, 4, 1"); k("v_lshl_add_u32 v27, v28, 9, v27")
    k("v_lshl_add_u32 v14, v15, 4, v27")
    k("s_lshl_b32 s28, s43, 8")
    k(f"v_xor_b32 v{vL16}, s28, v{vL16}")
    k("s_waitcnt lgkmcnt(0)")
    k("s_barrier")
    SQ = 28; CQ = 36
    k(f"ds_read2_b32 v[{SQ}:{SQ+1}], v17 offset0:0 offset1:128")
    for jj in range(1, 4): k(f"ds_read2_b32 v[{SQ+2*jj}:{SQ+2*jj+1}], v{23+jj} offset0:0 offset1:128")
    k(f"ds_read_b128 v[{CQ}:{CQ+3}], v19")
    k(f"ds_read_b128 v[{CQ+4}:{CQ+7}], v19 offset:256")
    k("ds_read_b32 v152, v18 offset:512")
    VS = [112, 120, 128, 136]
    for jj in range(4):
        k(f"ds_read_b128 v[{VS[jj]}:{VS[jj]+3}], v{20+jj}")
        k(f"ds_read_b128 v[{VS[jj]+4}:{VS[jj]+7}], v{20+jj} offset:512")
    l7 = k.lab("norm")
    k("s_cmp_lg_u32 s20, 7"); k(f"s_cbranch_scc1 {l7}")
    k(f"ds_read_b128 v[{PL}:{PL+3}], v{vZ} offset:2048")
    k(f"ds_read_b128 v[{PL+4}:{PL+7}], v{vZ} offset:2064")
    k("s_waitcnt lgkmcnt(0)")
    for r in range(4):
        k(f"v_add_f32 v{PL+2*r}, v{PL+2*r}, v{PL+2*r+1}")
        k(f"v_mul_f32 v{PL+2*r}, 0x3a800000, v{PL+2*r}")
    k(f"v_cvt_pk_bf16_f32 v{PL+8}, v{PL}, v{PL+2}")
    k(f"v_cvt_pk_bf16_f32 v{PL+9}, v{PL+4}, v{PL+6}")
    k("s_lshl_b32 s27, s2, 3"); k(f"s_add_u32 s27, s27, {WS_RM}")
    k("s_mov_b64 exec, 1")
    k(f"buffer_store_dwordx2 v[{PL+8}:{PL+9}], v{vZ}, s[12:15], s27 offen{SC}")
    k("s_mov_b64 exec, -1")
    k(f"{l7}:")
    k("s_mov_b32 s44, 0x3e8293ee")
    k("s_waitcnt lgkmcnt(9)")
    QS = 52
    for jj in range(4):
        k(f"v_mul_f32 v{QS+2*jj}, s44, v{SQ+2*jj}")
        k(f"v_mul_f32 v{QS+2*jj+1}, s44, v{SQ+2*jj+1}")
    TP = [16, 20, 24, 44, 48, 60]
    TM = 144
    ti = 0
    for m in range(3):
        if m == 2: k("s_waitcnt lgkmcnt(0)")
        for p in range(2):
            t = TP[ti]; ti += 1
            for jj2 in range(2):
                jj = 2 * p + jj2
                a = acc(m, jj)
                for h in range(2):
                    tm = TM + 2 * ((jj2 * 2 + h) & 3)
                    if m < 2:
                        st = (QS if m == 0 else SQ) + 2 * jj
                        cs = CQ + 4 * m + 2 * h
                        k(f"v_pk_mul_f32 v[{tm}:{tm+1}], v[{cs}:{cs+1}], v[{st}:{st+1}] op_sel:[0,1] op_sel_hi:[1,1]")
                        k(f"v_pk_fma_f32 v[{a+2*h}:{a+2*h+1}], v[{a+2*h}:{a+2*h+1}], v[{st}:{st+1}], v[{tm}:{tm+1}] op_sel:[0,0,0] op_sel_hi:[1,0,1]")
                    else:
                        rs = VS[jj] + 2 * h; nm = VS[jj] + 4 + 2 * h
                        k(f"v_pk_mul_f32 v[{tm}:{tm+1}], v[{nm}:{nm+1}], v[152:153] op_sel:[0,0] op_sel_hi:[1,0]")
                        k(f"v_pk_fma_f32 v[{a+2*h}:{a+2*h+1}], v[{a+2*h}:{a+2*h+1}], v[{rs}:{rs+1}], v[{tm}:{tm+1}]")
                k(f"v_cvt_pk_bf16_f32 v{t+2*jj2}, v{a}, v{a+1}")
                k(f"v_cvt_pk_bf16_f32 v{t+2*jj2+1}, v{a+2}, v{a+3}")
            sw = "v_permlane16_swap_b32" if m < 2 else "v_permlane32_swap_b32"
            k(f"{sw} v{t}, v{t+2}")
            k(f"{sw} v{t+1}, v{t+3}")
            so = [[35, 37], [36, 38], [39, 40]][m][p]
            k(f"buffer_store_dwordx4 v[{t}:{t+3}], v{vL16 if m < 2 else 14}, s[12:15], s{so} offen{SC}")
    k.stamp("p1_epi")
    k("s_lshl_b32 s27, s24, 7"); k(f"s_add_u32 s27, s27, {WS_CNT + C2*128}")
    signal(k, 27, vt=(30, 31))
    k.stamp("p1_sig")

W3BASE = 98304
vW3 = [200, 201]
def coords35(k, stb, scb, st):
    k("s_and_b32 s21, s2, 7"); k("s_lshr_b32 s22, s2, 3")
    k(f"s_and_b32 s{stb}, s21, 3"); k(f"s_lshl_b32 s{stb}, s{stb}, 2"); k(f"s_and_b32 s{st}, s22, 3"); k(f"s_add_u32 s{stb}, s{stb}, s{st}")
    k(f"s_lshr_b32 s{scb}, s21, 2"); k(f"s_lshl_b32 s{scb}, s{scb}, 3"); k(f"s_lshr_b32 s{st}, s22, 2"); k(f"s_add_u32 s{scb}, s{scb}, s{st}")
def w35_setup(k, vW, base, t):
    coords35(k, 27, 29, 28)
    wdma_lane(k, vW[0], 2048, t)
    k(f"v_add_u32 v{vW[1]}, 8192, v{vW[0]}")
    k("s_lshr_b32 s27, s20, 1"); k("s_lshl_b32 s27, s27, 5"); k("s_and_b32 s28, s20, 1"); k("s_lshl_b32 s28, s28, 4")
    k("s_add_u32 s27, s27, s28"); k("s_lshl_b32 s50, s27, 11"); k("s_lshl_b32 s28, s29, 7"); k("s_add_u32 s50, s50, s28")
    k("s_lshl_b32 s51, s20, 11")
    if base: k(f"s_add_u32 s51, s51, {base}")
def w35_dma(vW, srdw, slot):
    return [[f"s_add_u32 m0, s51, {slot*16384}", f"buffer_load_dwordx4 v{vW[0]}, s[{srdw}:{srdw+3}], s50 offen lds"],
            [f"s_add_u32 m0, s51, {slot*16384+1024}", f"buffer_load_dwordx4 v{vW[1]}, s[{srdw}:{srdw+3}], s50 offen lds"]]
W35ADV = f"s_add_u32 s50, s50, {128*2048}"

def phase2(k):
    STG = 32768
    vL16, vCur, vNxt, vTmp = 2, 3, 4, 5
    QA, QB = 8, 16
    KF = [24, 32]; VF = [40, 48]
    SA, SB = 56, 72
    PA, PB = 88, 96
    OA, OB = 104, 120
    LA, LB = 136, 140
    NA, NB = 144, 160
    ONE = 176
    T0 = 180
    w35_setup(k, vW3, W3BASE, 180)
    srd(k, 8, pWO, D * D * 2)
    k("s_and_b32 s21, s2, 7"); k("s_lshl_b32 s21, s21, 2"); k("s_lshr_b32 s22, s2, 6"); k("s_add_u32 s21, s21, s22")
    k("s_bfe_u32 s22, s2, 0x30003")
    k("s_and_b32 s23, s20, 3")
    k("s_lshr_b32 s24, s20, 2")
    k(f"v_lshlrev_b32 v{vL16}, 4, v1")
    k("s_lshl_b32 s30, s24, 5"); k("s_add_u32 s30, s30, s23"); k("s_lshl_b32 s30, s30, 16")
    k("s_lshl_b32 s25, s21, 11"); k("s_add_u32 s30, s30, s25"); k(f"s_add_u32 s30, s30, {WS_K}")
    k("s_lshl_b32 s31, s21, 7"); k("s_lshl_b32 s25, s24, 6"); k("s_add_u32 s31, s31, s25")
    k("s_lshl_b32 s25, s23, 1"); k("s_add_u32 s31, s31, s25"); k("s_lshl_b32 s31, s31, 10"); k(f"s_add_u32 s31, s31, {WS_VT}")
    k("s_lshl_b32 s32, s24, 14"); k("s_lshl_b32 s25, s23, 11"); k("s_add_u32 s32, s32, s25")
    k("s_lshl_b32 s33, s22, 3"); k("s_lshl_b32 s25, s23, 1"); k("s_add_u32 s33, s33, s25"); k("s_lshl_b32 s33, s33, 16")
    k("s_lshl_b32 s25, s21, 11"); k("s_add_u32 s33, s33, s25")
    k(f"s_add_u32 s45, s33, {WS_O}")
    k(f"s_add_u32 s33, s33, {WS_Q}")
    k("s_add_u32 s34, s33, 65536")
    k(f"v_lshrrev_b32 v{vTmp}, 2, v1"); k(f"v_lshrrev_b32 v{T0}, 4, v1"); k(f"v_xor_b32 v{vTmp}, v{vTmp}, v{T0}")
    k(f"v_and_b32 v{vTmp}, 1, v{vTmp}"); k(f"v_cmp_eq_u32 vcc, 0, v{vTmp}")
    k(f"v_mov_b32 v{T0}, 0x3f803f80")
    k(f"v_cndmask_b32 v{ONE}, 0, v{T0}, vcc")
    for r in range(1, 4): k(f"v_mov_b32 v{ONE+r}, v{ONE}")
    for r in range(32): k(f"v_mov_b32 v{NA+r}, 0")
    k("s_mov_b32 s46, 0")
    k("s_lshl_b32 s25, s24, 14")
    k(f"v_add_u32 v{vTmp}, s25, v{vL16}")
    k("s_lshr_b32 s27, s21, 1"); k("s_lshl_b32 s27, s27, 7"); k(f"s_add_u32 s27, s27, {WS_CNT + C2*128}")
    wait(k, 27, 16, vt=(T0, T0 + 1))
    k.stamp("p2_wait")
    for kk in range(2):
        k(f"buffer_load_dwordx4 v[{QA+4*kk}:{QA+4*kk+3}], v{vL16}, s[12:15], s33 offen offset:{1024*kk}{SC}")
        k(f"buffer_load_dwordx4 v[{QB+4*kk}:{QB+4*kk+3}], v{vL16}, s[12:15], s34 offen offset:{1024*kk}{SC}")
    def dma_stage():
        k("s_add_u32 m0, s42, s32")
        k(f"buffer_load_dwordx4 v{vL16}, s[12:15], s40 offen{SC} lds")
        k(f"buffer_load_dwordx4 v{vL16}, s[12:15], s40 offen offset:1024{SC} lds")
        k("s_add_u32 m0, m0, 8192")
        k(f"buffer_load_dwordx4 v{vL16}, s[12:15], s41 offen{SC} lds")
        k(f"buffer_load_dwordx4 v{vL16}, s[12:15], s41 offen offset:1024{SC} lds")
        k(f"s_add_u32 s40, s40, {4*65536}")
        k("s_add_u32 s41, s41, 8192")
    lmain = k.lab("p2main"); lloop = k.lab("p2loop"); lfin = k.lab("p2fin"); lfb = k.lab("p2fb"); lend = k.lab("p2end")
    k(f"{lmain}:")
    k("s_mov_b32 s40, s30"); k("s_mov_b32 s41, s31")
    k("s_mov_b32 s42, 0"); dma_stage()
    k(f"s_mov_b32 s42, {STG}"); dma_stage()
    k(f"s_mov_b32 s42, {2*STG}")
    k(f"v_mov_b32 v{vCur}, v{vTmp}")
    k(f"v_add_u32 v{vNxt}, {STG}, v{vTmp}")
    k(f"s_mov_b32 s43, {STG}")
    for r in range(16): k(f"v_mov_b32 v{OA+r}, 0"); k(f"v_mov_b32 v{OB+r}, 0")
    for r in range(4): k(f"v_mov_b32 v{LA+r}, 0"); k(f"v_mov_b32 v{LB+r}, 0")
    for r in range(8): k(f"v_mov_b32 v{PB+r}, 0"); k(f"v_mov_b32 v{VF[1]+r}, 0")
    lnp = k.lab("p2nopf"); lj = k.lab("p2pfj")
    k("s_cmp_lg_u32 s46, 0"); k(f"s_cbranch_scc1 {lnp}")
    for t in range(4):
        for d in w35_dma(vW3, 8, t):
            for l in d: k(l)
        k(W35ADV)
    k("s_waitcnt vmcnt(12)")
    k(f"s_branch {lj}")
    k(f"{lnp}:")
    k("s_waitcnt vmcnt(4)")
    k(f"{lj}:")
    k("s_barrier")
    k.stamp("p2_go")
    for kk in range(2):
        k(f"ds_read_b128 v[{KF[0]+4*kk}:{KF[0]+4*kk+3}], v{vCur} offset:{1024*kk}")
    k("s_waitcnt lgkmcnt(0)")
    def qk(Sx, Qx, Nx, kf):
        return [f"v_mfma_f32_32x32x16_bf16 v[{Sx}:{Sx+15}], v[{kf}:{kf+3}], v[{Qx}:{Qx+3}], v[{Nx}:{Nx+15}]",
                f"v_mfma_f32_32x32x16_bf16 v[{Sx}:{Sx+15}], v[{kf+4}:{kf+7}], v[{Qx+4}:{Qx+7}], v[{Sx}:{Sx+15}]"]
    def pv(Ox, Px, Lx, vf):
        return [f"v_mfma_f32_32x32x16_bf16 v[{Ox}:{Ox+15}], v[{vf}:{vf+3}], v[{Px}:{Px+3}], v[{Ox}:{Ox+15}]",
                f"v_mfma_f32_32x32x16_bf16 v[{Ox}:{Ox+15}], v[{vf+4}:{vf+7}], v[{Px+4}:{Px+7}], v[{Ox}:{Ox+15}]",
                f"v_mfma_f32_16x16x32_bf16 v[{Lx}:{Lx+3}], v[{ONE}:{ONE+3}], v[{Px}:{Px+3}], v[{Lx}:{Lx+3}]",
                f"v_mfma_f32_16x16x32_bf16 v[{Lx}:{Lx+3}], v[{ONE}:{ONE+3}], v[{Px+4}:{Px+7}], v[{Lx}:{Lx+3}]"]
    def expv(Sx, Px):
        o = []
        for g in range(4):
            o += [f"v_exp_f32 v{Sx+4*g+r}, v{Sx+4*g+r}" for r in range(4)]
            o += [f"v_cvt_pk_bf16_f32 v{Px+2*g}, v{Sx+4*g}, v{Sx+4*g+1}", f"v_cvt_pk_bf16_f32 v{Px+2*g+1}, v{Sx+4*g+2}, v{Sx+4*g+3}"]
        return o
    def phase(mf, va, extra):
        for i in range(6):
            k(mf[i])
            for (p, l) in extra:
                if p == i: k(l)
            for l in va[4*i:4*i+4]: k(l)
    for l in qk(SA, QA, NA, KF[0]): k(l)
    k("s_mov_b32 s44, 0")
    k(f"{lloop}:")
    for i in range(4):
        cb = i & 1; nb = cb ^ 1
        ex = []
        if i == 3:
            lnd = k.lab("nodma")
            k("s_waitcnt vmcnt(0)")
            k("s_barrier")
            k("s_cmp_ge_u32 s44, 6")
            k(f"s_cbranch_scc1 {lnd}")
            dma_stage()
            k(f"s_add_u32 s42, s42, {STG}")
            k(f"s_cmp_eq_u32 s42, {3*STG}")
            k("s_cselect_b32 s42, 0, s42")
            k(f"{lnd}:")
        for kk in range(2):
            if i < 3: ex.append((kk, f"ds_read_b128 v[{KF[nb]+4*kk}:{KF[nb]+4*kk+3}], v{vCur} offset:{(i+1)*2048 + 1024*kk}"))
            else:     ex.append((kk, f"ds_read_b128 v[{KF[nb]+4*kk}:{KF[nb]+4*kk+3}], v{vNxt} offset:{1024*kk}"))
        for mm in range(2):
            ex.append((2 + mm, f"ds_read_b128 v[{VF[cb]+4*mm}:{VF[cb]+4*mm+3}], v{vCur} offset:{8192 + i*2048 + 1024*mm}"))
        phase(qk(SB, QB, NB, KF[cb]) + pv(OB, PB, LB, VF[nb]), expv(SA, PA), ex)
        k("s_waitcnt lgkmcnt(0)")
        ex = []
        if i == 3:
            ex = [(0, f"v_mov_b32 v{vCur}, v{vNxt}"), (1, f"s_add_u32 s43, s43, {STG}"), (1, f"s_cmp_eq_u32 s43, {3*STG}"),
                  (2, "s_cselect_b32 s43, 0, s43"), (3, f"v_add_u32 v{vNxt}, s43, v{vTmp}")]
        phase(qk(SA, QA, NA, KF[nb]) + pv(OA, PA, LA, VF[cb]), expv(SB, PB), ex)
    k("s_add_u32 s44, s44, 1")
    k("s_cmp_lt_u32 s44, 8")
    k(f"s_cbranch_scc1 {lloop}")
    for l in pv(OB, PB, LB, VF[1]): k(l)
    k.stamp("p2_loop")
    k("s_nop 7"); k("s_nop 3")
    lns = k.lab("nosw")
    k("s_cmp_eq_u32 s24, 0")
    k(f"s_cbranch_scc1 {lns}")
    for r in range(16): k(f"v_swap_b32 v{OA+r}, v{OB+r}")
    k(f"v_swap_b32 v{LA}, v{LB}")
    k(f"{lns}:")
    k("s_barrier")
    k("s_mul_i32 s25, s20, 5120")
    k(f"v_add_u32 v{T0}, s25, v{vL16}")
    k(f"v_lshlrev_b32 v{T0+1}, 2, v1"); k(f"v_add_u32 v{T0+1}, s25, v{T0+1}")
    for i in range(4): k(f"ds_write_b128 v{T0}, v[{OB+4*i}:{OB+4*i+3}] offset:{1024*i}")
    k(f"ds_write_b32 v{T0+1}, v{LB} offset:4096")
    k("s_xor_b32 s26, s20, 4"); k("s_mul_i32 s25, s26, 5120")
    k(f"v_add_u32 v{T0}, s25, v{vL16}")
    k(f"v_lshlrev_b32 v{T0+1}, 2, v1"); k(f"v_add_u32 v{T0+1}, s25, v{T0+1}")
    k("s_waitcnt lgkmcnt(0)")
    k("s_barrier")
    for i in range(4): k(f"ds_read_b128 v[{OB+4*i}:{OB+4*i+3}], v{T0} offset:{1024*i}")
    k(f"ds_read_b32 v{LB}, v{T0+1} offset:4096")
    k("s_waitcnt lgkmcnt(0)")
    k(f"v_add_f32 v{LA}, v{LA}, v{LB}")
    for r in range(16): k(f"v_add_f32 v{OA+r}, v{OA+r}, v{OB+r}")
    k("s_cmp_lg_u32 s46, 0")
    k(f"s_cbranch_scc1 {lfin}")
    k(f"v_mov_b32 v{T0+2}, v{LA}")
    for r in range(16): k(f"v_fma_f32 v{T0+2}, v{OA+r}, 0, v{T0+2}")
    k(f"v_mov_b32 v{T0+3}, 0x71800000")
    k(f"v_cmp_le_f32 vcc, 1.0, v{T0+2}")
    k(f"v_cmp_le_f32 s[48:49], v{T0+2}, v{T0+3}")
    k("s_and_b64 vcc, vcc, s[48:49]")
    k("s_cmp_eq_u64 vcc, -1")
    k("s_cselect_b32 s47, 0, 1")
    k(f"v_mov_b32 v{T0+2}, s47")
    k(f"s_lshl_b32 s25, s20, 2"); k(f"v_mov_b32 v{T0+3}, s25")
    k(f"ds_write_b32 v{T0+3}, v{T0+2} offset:45056")
    k("s_waitcnt lgkmcnt(0)")
    k("s_barrier")
    k(f"v_mov_b32 v{T0+3}, 0")
    k(f"ds_read_b128 v[{T0+4}:{T0+7}], v{T0+3} offset:45056")
    k(f"ds_read_b128 v[{T0+8}:{T0+11}], v{T0+3} offset:45072")
    k("s_waitcnt lgkmcnt(0)")
    k(f"v_or3_b32 v{T0+4}, v{T0+4}, v{T0+5}, v{T0+6}")
    k(f"v_or3_b32 v{T0+8}, v{T0+8}, v{T0+9}, v{T0+10}")
    k(f"v_or3_b32 v{T0+4}, v{T0+4}, v{T0+7}, v{T0+11}")
    k(f"v_or_b32 v{T0+4}, v{T0+4}, v{T0+8}")
    k(f"v_readfirstlane_b32 s47, v{T0+4}")
    k("s_cmp_lg_u32 s47, 0")
    k(f"s_cbranch_scc1 {lfb}")
    k(f"{lfin}:")
    k(f"v_rcp_f32 v{LA}, v{LA}")
    for g in range(4):
        for r in range(4): k(f"v_mul_f32 v{OA+4*g+r}, v{OA+4*g+r}, v{LA}")
        k(f"v_cvt_pk_bf16_f32 v{SA+2*g}, v{OA+4*g}, v{OA+4*g+1}")
        k(f"v_cvt_pk_bf16_f32 v{SA+2*g+1}, v{OA+4*g+2}, v{OA+4*g+3}")
    k("s_lshl_b32 s25, s24, 16"); k("s_add_u32 s45, s45, s25")
    for p in range(2):
        k(f"v_permlane32_swap_b32 v{SA+4*p}, v{SA+4*p+2}")
        k(f"v_permlane32_swap_b32 v{SA+4*p+1}, v{SA+4*p+3}")
        k(f"buffer_store_dwordx4 v[{SA+4*p}:{SA+4*p+3}], v{vL16}, s[12:15], s45 offen offset:{1024*p}{SC}")
    k(f"s_branch {lend}")
    k(f"{lfb}:")
    k("s_mov_b32 s46, 1")
    k("s_barrier")
    MA, MB = T0 + 2, T0 + 3
    k(f"v_mov_b32 v{MA}, 0xff800000"); k(f"v_mov_b32 v{MB}, 0xff800000")
    k("s_lshl_b32 s40, s24, 21"); k("s_lshl_b32 s25, s21, 11"); k("s_add_u32 s40, s40, s25"); k(f"s_add_u32 s40, s40, {WS_K}")
    k("s_mov_b32 s44, 0")
    lfl = k.lab("p2fbl")
    k(f"{lfl}:")
    for kk in range(2):
        k(f"buffer_load_dwordx4 v[{KF[0]+4*kk}:{KF[0]+4*kk+3}], v{vL16}, s[12:15], s40 offen offset:{1024*kk}{SC}")
    k("s_waitcnt vmcnt(0)")
    for (Sx, Qx) in ((SA, QA), (SB, QB)):
        k(f"v_mfma_f32_32x32x16_bf16 v[{Sx}:{Sx+15}], v[{KF[0]}:{KF[0]+3}], v[{Qx}:{Qx+3}], 0")
        k(f"v_mfma_f32_32x32x16_bf16 v[{Sx}:{Sx+15}], v[{KF[0]+4}:{KF[0]+7}], v[{Qx+4}:{Qx+7}], v[{Sx}:{Sx+15}]")
    for (Sx, Mx) in ((SA, MA), (SB, MB)):
        for r in range(0, 16, 2): k(f"v_max3_f32 v{Mx}, v{Mx}, v{Sx+r}, v{Sx+r+1}")
    k("s_add_u32 s40, s40, 65536")
    k("s_add_u32 s44, s44, 1")
    k("s_cmp_lt_u32 s44, 32")
    k(f"s_cbranch_scc1 {lfl}")
    for Mx in (MA, MB):
        k(f"v_mov_b32 v{T0+4}, v{Mx}")
        k(f"v_permlane32_swap_b32 v{Mx}, v{T0+4}")
        k(f"v_max_f32 v{Mx}, v{Mx}, v{T0+4}")
    k("s_lshl_b32 s25, s20, 9")
    k(f"v_lshlrev_b32 v{T0+4}, 3, v1"); k(f"v_add_u32 v{T0+5}, s25, v{T0+4}")
    k(f"ds_write_b64 v{T0+5}, v[{MA}:{MB}]")
    k("s_xor_b32 s26, s20, 4"); k("s_lshl_b32 s25, s26, 9")
    k(f"v_add_u32 v{T0+5}, s25, v{T0+4}")
    k("s_waitcnt lgkmcnt(0)")
    k("s_barrier")
    k(f"ds_read_b64 v[{T0+6}:{T0+7}], v{T0+5}")
    k("s_waitcnt lgkmcnt(0)")
    k(f"v_max_f32 v{MA}, v{MA}, v{T0+6}")
    k(f"v_max_f32 v{MB}, v{MB}, v{T0+7}")
    for r in range(16):
        k(f"v_sub_f32 v{NA+r}, 0, v{MA}")
        k(f"v_sub_f32 v{NB+r}, 0, v{MB}")
    k("s_barrier")
    k(f"s_branch {lmain}")
    k(f"{lend}:")
    k.stamp("p2_epi")
    k("s_lshl_b32 s27, s22, 7"); k(f"s_add_u32 s27, s27, {WS_CNT + C3*128}")
    signal(k, 27, vt=(T0, T0 + 1))
    k.stamp("p2_sig")

SLOT4 = 30720; UOFF = 7168; BOFF4 = 14336
RMOFF = 75776; XMOFF = 83968; HKOFF = 147456
vPW = 202
vW5 = [240, 241]
NPF5 = 3
NS5 = int(os.environ.get("NS5", "5")); R3 = int(os.environ.get("R3", "4")); R5 = int(os.environ.get("R5", "6"))
def w4_piece_lane(k, vdst, vidx, t):
    k(f"v_mul_u32_u24 v{t}, 4682, v{vidx}"); k(f"v_lshrrev_b32 v{t}, 16, v{t}")
    k(f"v_mul_u32_u24 v{t+1}, 14, v{t}"); k(f"v_sub_u32 v{t+1}, v{vidx}, v{t+1}")
    k(f"v_and_b32 v{t+2}, 0x33, v{t}")
    k(f"v_bfe_u32 v{vidx}, v{t}, 2, 1"); k(f"v_lshl_add_u32 v{t+2}, v{vidx}, 3, v{t+2}")
    k(f"v_bfe_u32 v{vidx}, v{t}, 3, 1"); k(f"v_lshl_add_u32 v{t+2}, v{vidx}, 2, v{t+2}")
    k(f"v_mul_u32_u24 v{t+2}, 7168, v{t+2}")
    k(f"v_lshl_add_u32 v{vdst}, v{t+1}, 4, v{t+2}")
def coords4(k, stb, scb, st):
    k("s_and_b32 s21, s2, 7"); k("s_lshr_b32 s22, s2, 3")
    k(f"s_and_b32 s{stb}, s21, 1"); k(f"s_lshl_b32 s{stb}, s{stb}, 2"); k(f"s_and_b32 s{st}, s22, 3"); k(f"s_add_u32 s{stb}, s{stb}, s{st}")
    k(f"s_lshr_b32 s{scb}, s21, 1"); k(f"s_lshl_b32 s{scb}, s{scb}, 3"); k(f"s_lshr_b32 s{st}, s22, 2"); k(f"s_add_u32 s{scb}, s{scb}, s{st}")
def pf4_setup(k, t):
    coords4(k, 27, 29, 28)
    k("s_mul_i32 s40, s29, 224")
    k("s_min_u32 s27, s20, 6"); k("s_lshl_b32 s42, s27, 10"); k("s_lshl_b32 s27, s27, 6")
    k(f"v_add_u32 v{t+3}, s27, v1")
    w4_piece_lane(k, vPW, t + 3, t)
    srd(k, 52, pWG, D * DF * 2); srd(k, 56, pWU, D * DF * 2)
def pf4(tile):
    o = []
    for m in range(2):
        g = []
        if m == 0: g.append(f"s_add_u32 s41, s40, {tile*32*7168}")
        g += [f"s_add_u32 m0, s42, {tile*SLOT4 + m*UOFF}", f"buffer_load_dwordx4 v{vPW}, s[{52+4*m}:{55+4*m}], s41 offen lds"]
        o.append(g)
    return o

def phase35(k, kind):
    wo = kind == "wo"
    KD = D if wo else DF
    NT = KD // 128
    NS = 4 if wo else NS5
    R = R3 if wo else R5
    WSB = WS_O if wo else WS_HM
    T32B = KD * 64
    base = W3BASE if wo else 0
    vW = vW3 if wo else vW5
    SW = 8 if wo else 60
    vA = [2, 3, 4, 5]; vBj = [6, 7]; vR = 10; vO = 11; vT = 12; vRM = 8; vHK = 9
    RES = 16; A = [24, 40]; ACC = 56; ACM = 88; RMF = [96, 100]; BR = 104
    MX = 15
    acc = lambda i, j: ACC + (j * 4 + i) * 4
    pre = "p3" if wo else "p5"
    coords35(k, 23, 24, 25)
    k("s_and_b32 s25, s20, 3")
    k("s_lshr_b32 s26, s20, 2")
    k("s_lshl_b32 s31, s23, 2"); k("s_add_u32 s31, s31, s25"); k(f"s_mul_i32 s31, s31, {T32B}")
    k("s_lshl_b32 s28, s26, 12"); k("s_add_u32 s31, s31, s28"); k(f"s_add_u32 s31, s31, {WSB}")
    k(f"v_lshrrev_b32 v{vT}, 4, v1"); k(f"v_and_b32 v{vT+1}, 15, v1")
    k(f"v_lshlrev_b32 v{vT+2}, 4, v{vT+1}"); k(f"v_lshl_add_u32 v{vT+2}, v{vT}, 9, v{vT+2}")
    k("s_lshl_b32 s28, s26, 8")
    k(f"v_add_u32 v{vBj[0]}, s28, v{vT+2}")
    k(f"v_xor_b32 v{vBj[1]}, 256, v{vBj[0]}")
    k(f"v_and_b32 v{vT+2}, 1, v{vT}"); k(f"v_lshlrev_b32 v{vT+2}, 1, v{vT+2}"); k(f"v_lshrrev_b32 v{vT+3}, 1, v{vT}")
    k(f"v_add_u32 v{vT+2}, v{vT+2}, v{vT+3}")
    rm = vR if wo else vO
    k(f"v_lshlrev_b32 v{rm}, 11, v{vT+1}"); k(f"v_lshl_add_u32 v{rm}, v{vT+2}, 4, v{rm}")
    k("s_lshl_b32 s33, s23, 2"); k("s_add_u32 s33, s33, s25"); k("s_lshl_b32 s33, s33, 1"); k("s_add_u32 s33, s33, s26")
    k("s_lshl_b32 s35, s33, 4")
    k("s_lshl_b32 s33, s33, 15"); k("s_lshl_b32 s28, s24, 7"); k("s_add_u32 s33, s33, s28")
    if wo:
        k(f"v_lshlrev_b32 v{vO}, 9, v{vT+2}"); k(f"v_lshl_add_u32 v{vO}, v{vT+1}, 4, v{vO}")
        k("s_lshl_b32 s34, s23, 2"); k("s_add_u32 s34, s34, s25"); k("s_lshl_b32 s34, s34, 16")
        k("s_lshl_b32 s28, s24, 12"); k("s_add_u32 s34, s34, s28"); k("s_lshl_b32 s28, s26, 8"); k("s_add_u32 s34, s34, s28")
        k(f"s_add_u32 s34, s34, {WS_H}")
        k("s_lshl_b32 s28, s20, 10"); k(f"s_add_u32 s28, s28, {RMOFF}")
        k(f"v_lshl_add_u32 v{vRM}, v{vT}, 4, s28")
    k("s_lshl_b32 s28, s20, 11"); k(f"s_add_u32 s28, s28, {HKOFF}")
    k(f"v_lshl_add_u32 v{vHK}, v1, 4, s28")
    k(f"v_bfe_u32 v{vT+1}, v1, 2, 2")
    k(f"v_lshrrev_b32 v{vT+2}, 1, v{vT}"); k(f"v_and_b32 v{vT+3}, 1, v{vT}")
    k(f"v_lshlrev_b32 v{vT+2}, 4, v{vT+2}"); k(f"v_lshl_add_u32 v{vT+2}, v{vT+3}, 2, v{vT+2}")
    k(f"v_add_u32 v{vT+2}, v{vT+2}, v{vT+1}"); k(f"v_lshlrev_b32 v{vT+2}, 7, v{vT+2}")
    k(f"v_lshrrev_b32 v{vT+1}, 1, v{vT+1}"); k(f"v_lshl_add_u32 v{vT+1}, v{vT+3}, 1, v{vT+1}")
    k(f"v_and_b32 v{vT+3}, 3, v1"); k(f"v_lshl_add_u32 v{vT+2}, v{vT+3}, 3, v{vT+2}")
    k("s_lshl_b32 s28, s26, 13")
    if base: k(f"s_add_u32 s28, s28, {base}")
    k(f"v_add_u32 v{vT+2}, s28, v{vT+2}")
    for i in range(4):
        k(f"v_xor_b32 v{vT+3}, {i}, v{vT+1}")
        k(f"v_lshl_add_u32 v{vA[i]}, v{vT+3}, 5, v{vT+2}")
    hiA = NS * 16384 > 65536
    vA2 = [204, 205, 206, 207]
    if hiA:
        for i in range(4): k(f"v_add_u32 v{vA2[i]}, 65536, v{vA[i]}")
    srd(k, 16, pX if wo else pOUT, MB4)
    for r in range(ACC, ACC + (40 if wo else 32)): k(f"v_mov_b32 v{r}, 0")
    if wo:
        pf4_setup(k, vT)
        k(f"v_lshrrev_b32 v{vT}, 3, v1"); k(f"v_and_b32 v{vT+1}, 7, v1"); k(f"v_lshlrev_b32 v{vT+1}, 4, v{vT+1}")
        k(f"v_lshl_add_u32 v{vT+1}, v{vT}, 8, v{vT+1}"); k("s_lshl_b32 s28, s26, 7"); k(f"v_add_u32 v{vT+1}, s28, v{vT+1}")
        k(f"v_and_b32 v{vT+2}, 15, v1"); k(f"v_lshlrev_b32 v{vT+2}, 2, v{vT+2}")
    vm = VM()
    if not wo:
        for t in range(NPF5, NS):
            for d in w35_dma(vW, SW, t):
                for l in d: k(l)
            k(W35ADV); vm.issue(("W", t), 2)
    k("s_lshr_b32 s27, s23, 1"); k("s_lshl_b32 s27, s27, 7"); k(f"s_add_u32 s27, s27, {WS_CNT + (C3 if wo else C5)*128}")
    wait(k, 27, 32, vt=(RES, RES + 1))
    k.stamp(pre + "_wait")
    NSTEP = 2 * NT
    def bld(s):
        b = BR + (s % R) * 8
        return [f"buffer_load_dwordx4 v[{b+4*j}:{b+4*j+3}], v{vBj[j]}, s[12:15], s31 offen{SC}" for j in range(2)]
    def badv(s): return f"s_add_u32 s31, s31, {2048 if s % 2 == 0 else 6144}"
    if wo:
        k("s_lshl_b32 s28, s20, 10"); k(f"s_add_u32 m0, s28, {RMOFF}")
        k(f"s_mov_b32 s28, {WS_RM}")
        k(f"buffer_load_dwordx4 v{vT+1}, s[12:15], s28 offen{SC} lds"); vm.issue("RM")
    for s in range(R):
        for l in bld(s): k(l); vm.issue(("B", s))
        k(badv(s))
    if wo:
        for p in range(2):
            k(f"buffer_load_dwordx4 v[{RES+4*p}:{RES+4*p+3}], v{vR}, s[16:19], s33 offen offset:{64*p}"); vm.issue("res")
        k("s_lshl_b32 s28, s35, 2"); k(f"s_add_u32 s28, s28, {WS_MX}")
        k(f"buffer_load_dword v{MX}, v{vT+2}, s[12:15], s28 offen{SC}"); vm.issue("res")
    def areads(s, buf):
        t = s // 2; sl = t % NS
        va = vA if sl < 4 else vA2
        o = [f"ds_read_b64_tr_b16 v[{A[buf]+4*i+2*tt}:{A[buf]+4*i+2*tt+1}], v{va[i]} offset:{(sl & 3)*16384 + (s&1)*4096 + tt*1024}"
             for i in range(4) for tt in range(2)]
        return o
    def rmread(s, buf): return f"ds_read_b128 v[{RMF[buf]}:{RMF[buf]+3}], v{vRM} offset:{(s >> 1)*128 + (s & 1)*64}"
    for l in areads(0, 0): k(l)
    if wo:
        k(f"s_waitcnt vmcnt({vm.cnt({'RM'})})")
        k(rmread(0, 0))
    k.stamp(pre + "_go")
    texts = []
    for per in range((NT + NS - 1) // NS):
        o = []
        for s in range(per * 2 * NS, min((per + 1) * 2 * NS, NSTEP)):
            t = s // 2; cur = s & 1; nxt = cur ^ 1
            need = {("B", s)}
            if s & 1 and t + 1 < NT: need.add(("W", t + 1))
            n = vm.cnt(need)
            o.append(f"s_waitcnt vmcnt({min(n, 63)}) lgkmcnt(0)")
            rd = []; dm = []
            if s & 1:
                if t + 1 < NT:
                    o.append("s_barrier"); rd = areads(s + 1, nxt)
                if t + NS < NT: dm = w35_dma(vW, SW, t % NS)
            else:
                rd = areads(s + 1, nxt)
            if wo and s + 1 < NSTEP: rd = rd + [rmread(s + 1, nxt)]
            mf = []
            b = BR + (s % R) * 8
            for i in range(4):
                for j in range(2):
                    a = acc(i, j)
                    mf.append(f"v_mfma_f32_16x16x32_bf16 v[{a}:{a+3}], v[{A[cur]+4*i}:{A[cur]+4*i+3}], v[{b+4*j}:{b+4*j+3}], v[{a}:{a+3}]")
            if wo:
                for j in range(2):
                    a = ACM + 4 * j
                    mf.append(f"v_mfma_f32_16x16x32_bf16 v[{a}:{a+3}], v[{RMF[cur]}:{RMF[cur]+3}], v[{b+4*j}:{b+4*j+3}], v[{a}:{a+3}]")
            gaps = [[] for _ in mf]
            for q, r in enumerate(rd): gaps[min(q, len(mf) - 1)].append(r)
            if dm:
                gaps[0].append(dm[0][0]); gaps[1].append(dm[0][1]); gaps[2].append(dm[1][0]); gaps[3].append(dm[1][1]); gaps[4].append(W35ADV)
                vm.issue(("W", t + NS), 2)
            if s + R < NSTEP:
                gaps[len(mf) - 1] += bld(s + R) + [badv(s + R)]
                vm.issue(("B", s + R), 2)
            if wo and s == NSTEP - R:
                q = 0
                for tl in range(3):
                    for g in pf4(tl):
                        gaps[min(q, len(mf) - 1)] += g; q += 1
                        vm.issue("PF")
            for g, mm in enumerate(mf):
                o.append(mm); o += gaps[g]
        texts.append(o)
    periods(k, pre + "loop", texts, 36)
    k.stamp(pre + "_loop")
    if wo:
        k("s_and_b32 s27, s20, 3"); k("s_lshl_b32 s27, s27, 12"); k(f"s_mul_i32 s28, s26, {SLOT4}"); k("s_add_u32 s27, s27, s28"); k(f"s_add_u32 s27, s27, {BOFF4}")
        k(f"v_lshlrev_b32 v{vT}, 4, v1"); k(f"v_add_u32 v{vT+1}, s27, v{vT}")
        k("s_and_b32 s27, s20, 3"); k("s_lshl_b32 s27, s27, 12"); k("s_xor_b32 s28, s26, 1"); k(f"s_mul_i32 s28, s28, {SLOT4}"); k("s_add_u32 s27, s27, s28"); k(f"s_add_u32 s27, s27, {BOFF4}")
        k(f"v_add_u32 v{vT+2}, s27, v{vT}")
        k("s_lshl_b32 s27, s20, 8"); k(f"s_add_u32 s27, s27, {XMOFF}")
        k(f"v_lshl_add_u32 v{vRM}, v1, 2, s27")
        k(f"ds_write_b32 v{vRM}, v{ACM+4}")
        k(f"v_xor_b32 v{vRM}, 1024, v{vRM}")
    else:
        XCH = 98304
        k("s_lshl_b32 s27, s20, 12"); k(f"s_add_u32 s27, s27, {XCH}")
        k(f"v_lshlrev_b32 v{vT}, 4, v1"); k(f"v_add_u32 v{vT+1}, s27, v{vT}")
        k("s_lshl_b32 s27, s20, 12"); k("s_xor_b32 s27, s27, 16384"); k(f"s_add_u32 s27, s27, {XCH}"); k(f"v_add_u32 v{vT+2}, s27, v{vT}")
    for i in range(4): k(f"ds_write_b128 v{vT+1}, v[{acc(i,1)}:{acc(i,1)+3}] offset:{1024*i}")
    k("s_waitcnt lgkmcnt(0)")
    k("s_barrier")
    for i in range(4): k(f"ds_read_b128 v[{acc(i,1)}:{acc(i,1)+3}], v{vT+2} offset:{1024*i}")
    if wo:
        k(f"ds_read_b32 v{ACM+4}, v{vRM}")
        for g in pf4(3):
            for l in g: k(l)
    else:
        for p in range(2): k(f"ds_read_b128 v[{RES+4*p}:{RES+4*p+3}], v{vHK} offset:{1024*p}")
    k("s_waitcnt lgkmcnt(0)")
    def padd(d, a, b, bc=False):
        if wo:
            k(f"v_add_f32 v{d}, v{a}, v{b}"); k(f"v_add_f32 v{d+1}, v{a+1}, v{b if bc else b+1}")
        else: k(f"v_pk_add_f32 v[{d}:{d+1}], v[{a}:{a+1}], v[{b}:{b+1}]")
    for i in range(4):
        for r in range(0, 4, 2): padd(acc(i,0)+r, acc(i,0)+r, acc(i,1)+r)
    for p in range(2):
        for r in range(4): k(f"v_permlane16_swap_b32 v{acc(2*p,0)+r}, v{acc(2*p+1,0)+r}")
    U = A[0]
    k(f"v_mov_b32 v{vT+3 if not wo else vT}, 0xffff0000")
    vMask = vT + 3 if not wo else vT
    if wo:
        k("s_waitcnt vmcnt(8)")
        k(f"v_add_f32 v{ACM}, v{ACM}, v{ACM+4}")
        k(f"v_add_f32 v{ACM}, v{ACM}, v{MX}")
        k(f"v_sub_f32 v{ACM}, 0, v{ACM}")
    for p in range(2):
        for q in range(4):
            a = acc(2 * p, 0) + 2 * q
            k(f"v_lshlrev_b32 v{U+2*q}, 16, v{RES+4*p+q}")
            k(f"v_and_b32 v{U+2*q+1}, v{vMask}, v{RES+4*p+q}")
        for q in range(4):
            a = acc(2 * p, 0) + 2 * q
            padd(a, a, U+2*q)
        for q in range(4):
            a = acc(2 * p, 0) + 2 * q
            k(f"v_cvt_pk_bf16_f32 v{RES+4*p+q}, v{a}, v{a+1}")
        if wo:
            k(f"ds_write_b128 v{vHK}, v[{RES+4*p}:{RES+4*p+3}] offset:{1024*p}")
            HC = U + 8 + 4 * p
            for q in range(4):
                a = acc(2 * p, 0) + 2 * q
                padd(a, a, ACM, True)
            for q in range(4):
                a = acc(2 * p, 0) + 2 * q
                k(f"v_cvt_pk_bf16_f32 v{HC+q}, v{a}, v{a+1}")
            k(f"buffer_store_dwordx4 v[{HC}:{HC+3}], v{vO}, s[12:15], s34 offen offset:{2048*p}{SC}")
        else:
            k(f"buffer_store_dwordx4 v[{RES+4*p}:{RES+4*p+3}], v{vO}, s[16:19], s33 offen offset:{64*p}{OUTSC}")
    if wo:
        s1 = U
        a0 = acc(0, 0)
        for r in range(4): k(f"v_mul_f32 v{s1+r}, v{a0+r}, v{a0+r}")
        for r in range(4, 16): k(f"v_fma_f32 v{s1+(r&3)}, v{a0+r}, v{a0+r}, v{s1+(r&3)}")
        k(f"v_add_f32 v{s1}, v{s1}, v{s1+1}"); k(f"v_add_f32 v{s1+2}, v{s1+2}, v{s1+3}"); k(f"v_add_f32 v{s1}, v{s1}, v{s1+2}")
        for sw in ("v_permlane16_swap_b32", "v_permlane32_swap_b32"):
            k(f"v_mov_b32 v{s1+2}, v{s1}"); k(f"{sw} v{s1}, v{s1+2}"); k(f"v_add_f32 v{s1}, v{s1}, v{s1+2}")
        k(f"v_and_b32 v{vT}, 15, v1"); k(f"v_lshlrev_b32 v{vT}, 2, v{vT}")
        k("s_lshl_b32 s27, s35, 2"); k("s_lshl_b32 s28, s24, 13"); k("s_add_u32 s27, s27, s28"); k(f"s_add_u32 s27, s27, {WS_ST}")
        k("s_mov_b64 exec, 0xffff")
        k(f"buffer_store_dword v{s1}, v{vT}, s[12:15], s27 offen{SC}")
        k("s_mov_b64 exec, -1")
        k.stamp(pre + "_epi")
        k("s_lshr_b32 s27, s23, 1"); k("s_lshl_b32 s27, s27, 7"); k(f"s_add_u32 s27, s27, {WS_CNT + C4*128}")
        k("s_waitcnt lgkmcnt(0)")
        signal(k, 27, vt=(RES, RES + 1))
        k.stamp(pre + "_sig")
    else:
        k.stamp(pre + "_epi")
OUTSC = os.environ.get("OUTSC", "")

KC = 2 * math.sqrt(2 / math.pi) * math.log2(math.e)
X4 = os.environ.get("X4", "").split(",")
def phase4(k):
    NS = 4; SLOT = SLOT4; UOFF = 7168; BOFF = BOFF4; STATS = NS * SLOT
    vA = [2, 3]; vB = [4, 5]; vD = [6, 7, 8, 9, 10]; vL16 = 11; vT = 12
    A = [16, 48]; B = [80, 96]; ACC = 112; SV = 242
    acc = lambda fi, m, j: ACC + ((fi * 2 + m) * 4 + j) * 4
    w35_setup(k, vW5, 0, vT)
    srd(k, 60, pWD, DF * D * 2)
    coords4(k, 23, 24, 25)
    k("s_and_b32 s25, s20, 3")
    k("s_lshr_b32 s26, s20, 2")
    k(f"v_lshlrev_b32 v{vL16}, 4, v1")
    k(f"v_lshrrev_b32 v{vT}, 4, v1")
    k(f"v_bfe_u32 v{vT+1}, v1, 2, 2")
    k(f"v_lshrrev_b32 v{vT+2}, 1, v{vT}"); k(f"v_and_b32 v{vT+3}, 1, v{vT}")
    k(f"v_lshlrev_b32 v{vT+2}, 4, v{vT+2}"); k(f"v_lshl_add_u32 v{vT+2}, v{vT+3}, 2, v{vT+2}"); k(f"v_add_u32 v{vT+2}, v{vT+2}, v{vT+1}")
    k(f"v_mul_u32_u24 v{vT+2}, 224, v{vT+2}")
    k(f"v_and_b32 v{vT+3}, 3, v1"); k(f"v_lshl_add_u32 v{vT+2}, v{vT+3}, 3, v{vT+2}")
    k("s_lshl_b32 s27, s26, 7")
    k(f"v_add_u32 v{vA[0]}, s27, v{vT+2}"); k(f"v_add_u32 v{vA[1]}, {2*SLOT}, v{vA[0]}")
    k(f"v_and_b32 v{vT+1}, 15, v1"); k(f"v_lshlrev_b32 v{vT+1}, 4, v{vT+1}"); k(f"v_lshl_add_u32 v{vT+1}, v{vT}, 9, v{vT+1}")
    k("s_lshl_b32 s27, s25, 12"); k(f"s_add_u32 s27, s27, {BOFF}")
    k(f"v_add_u32 v{vB[0]}, s27, v{vT+1}"); k(f"v_add_u32 v{vB[1]}, {2*SLOT}, v{vB[0]}")
    k("s_lshl_b32 s31, s23, 19"); k(f"s_add_u32 s31, s31, {WS_H}")
    k("s_mul_i32 s30, s24, 224"); k(f"s_add_u32 s30, s30, {NS*32*7168}")
    for r in range(ACC, ACC + 128): k(f"v_mov_b32 v{r}, 0")
    k(f"v_and_b32 v{vT}, 1, v0"); k(f"v_lshlrev_b32 v{vT}, 16, v{vT}")
    k(f"v_lshrrev_b32 v{vT+1}, 1, v0"); k(f"v_lshl_add_u32 v{SV+8}, v{vT+1}, 2, v{vT}")
    k(f"v_lshlrev_b32 v{SV+9}, 4, v{vT+1}"); k(f"v_add_u32 v{SV+9}, {STATS}, v{SV+9}")
    k("s_lshl_b32 s37, s23, 10"); k(f"s_add_u32 s37, s37, {WS_ST}")
    k("s_bitcmp1_b32 s25, 1")
    k(f"s_cselect_b32 s4, s{pWU}, s{pWG}"); k(f"s_cselect_b32 s5, s{pWU+1}, s{pWG+1}")
    srd(k, 8, 4, D * DF * 2)
    lsb = k.lab("p4setB"); lsd = k.lab("p4setD")
    k("s_cmp_eq_u32 s26, 0")
    k(f"s_cbranch_scc0 {lsb}")
    for n in range(3):
        k("s_mul_i32 s27, s20, 3"); k(f"s_add_u32 s27, s27, {n}")
        k("s_lshr_b32 s28, s27, 1"); k("s_lshl_b32 s28, s28, 16"); k("s_and_b32 s29, s27, 1"); k("s_lshl_b32 s29, s29, 10"); k("s_add_u32 s28, s28, s29")
        k(f"v_add_u32 v{vD[n]}, s28, v{vL16}")
    k(f"s_mul_i32 s32, s20, 3072"); k(f"s_add_u32 s32, s32, {BOFF}")
    k(f"s_branch {lsd}")
    k(f"{lsb}:")
    k("s_and_b32 s27, s25, 1"); k("s_lshl_b32 s27, s27, 8")
    for q in range(4):
        k(f"v_add_u32 v{vT+3}, {64*q}, v1"); k(f"v_add_u32 v{vT+3}, s27, v{vT+3}")
        w4_piece_lane(k, vD[q], vT + 3, vT)
    k("s_add_u32 s27, s25, 12")
    k("s_lshr_b32 s28, s27, 1"); k("s_lshl_b32 s28, s28, 16"); k("s_and_b32 s29, s27, 1"); k("s_lshl_b32 s29, s29, 10"); k("s_add_u32 s28, s28, s29")
    k(f"v_add_u32 v{vD[4]}, s28, v{vL16}")
    k("s_lshl_b32 s33, s27, 10"); k(f"s_add_u32 s33, s33, {BOFF}")
    k("s_lshr_b32 s32, s25, 1"); k(f"s_mul_i32 s32, s32, {UOFF}"); k("s_and_b32 s27, s25, 1"); k("s_lshl_b32 s27, s27, 12"); k("s_add_u32 s32, s32, s27")
    k(f"{lsd}:")
    k("s_lshl_b32 s27, s23, 3"); k("s_lshl_b32 s28, s25, 1"); k("s_add_u32 s27, s27, s28"); k("s_mul_i32 s27, s27, 448")
    k("s_mul_i32 s28, s24, 14"); k("s_add_u32 s27, s27, s28"); k("s_lshl_b32 s28, s26, 3"); k("s_add_u32 s27, s27, s28")
    k("s_lshl_b32 s27, s27, 9"); k(f"s_add_u32 s34, s27, {WS_HM}"); k(f"s_add_u32 s35, s34, {448*512}")
    k("s_lshl_b32 s27, s23, 7"); k(f"s_add_u32 s27, s27, {WS_CNT + C4*128}")
    wait(k, 27, 32, vt=(vT, vT + 1))
    k.stamp("p4_wait")
    def dma_act(var, slot):
        if var == "A":
            return [[f"s_add_u32 m0, s32, {slot*SLOT + n*1024}", f"buffer_load_dwordx4 v{vD[n]}, s[12:15], s31 offen{SC} lds"] for n in range(3)]
        return [[f"s_add_u32 m0, s33, {slot*SLOT}", f"buffer_load_dwordx4 v{vD[4]}, s[12:15], s31 offen{SC} lds"]]
    def dma_w(var, slot):
        if var == "A": return []
        return [[f"s_add_u32 m0, s32, {slot*SLOT + q*1024}", f"buffer_load_dwordx4 v{vD[q]}, s[8:11], s30 offen lds"] for q in range(4 if var == "B0" else 3)]
    advA = "s_add_u32 s31, s31, 2048"; advW = f"s_add_u32 s30, s30, {32*7168}"
    def stats_calc():
        o = []
        for i in (0, 2, 4, 6): o.append(f"v_add_f32 v{SV+i}, v{SV+i}, v{SV+i+1}")
        o += [f"v_add_f32 v{SV}, v{SV}, v{SV+2}", f"v_add_f32 v{SV+4}, v{SV+4}, v{SV+6}", f"v_add_f32 v{SV}, v{SV}, v{SV+4}",
              "s_nop 1",
              f"v_add_f32_dpp v{SV}, v{SV}, v{SV} quad_perm:[1,0,3,2] row_mask:0xf bank_mask:0xf",
              f"v_mov_b32 v{SV+3}, 0x3a800000", f"v_mov_b32 v{SV+5}, 0x3727c5ac",
              f"v_fma_f32 v{SV+2}, v{SV}, v{SV+3}, v{SV+5}",
              f"v_rsq_f32 v{SV+4}, v{SV+2}",
              f"v_mov_b32 v{SV+3}, 0",
              f"v_mul_f32 v{SV+1}, {f2h(-KC)}, v{SV+4}",
              f"v_mul_f32 v{SV+5}, v{SV+4}, v{SV+4}",
              f"v_mul_f32 v{SV}, {f2h(0.044715)}, v{SV+1}",
              f"v_mul_f32 v{SV}, v{SV}, v{SV+5}",
              f"ds_write_b128 v{SV+9}, v[{SV}:{SV+3}]"]
        return o
    st_idx = {}
    def vstamp(nm):
        if nm in st_idx: k.stamp_at(st_idx[nm])
        else:
            st_idx[nm] = k.nst; k.stamp(nm)
    ljoin = k.lab("p4join")
    def body(var):
        nf = 4 if var == "A" else 3
        vm = VM()
        for s in range(NS):
            for d in dma_act(var, s):
                for l in d: k(l)
                vm.issue(("D", s))
            k(advA)
        k("s_mov_b32 s28, s37")
        for i in range(8):
            k(f"buffer_load_dword v{SV+i}, v{SV+8}, s[12:15], s28 offen{SC}"); vm.issue("ST")
            if i < 7: k("s_add_u32 s28, s28, 8192")
        def reads(buf, slot):
            base = slot >> 1; so = (slot & 1) * SLOT
            o = []
            def rA(fi, m):
                i = fi * 2 + m
                return [f"ds_read_b64_tr_b16 v[{A[buf]+4*i+2*t}:{A[buf]+4*i+2*t+1}], v{vA[base]} offset:{so + m*UOFF + t*8*224 + fi*32}" for t in range(2)]
            o += rA(0, 0)
            for j in range(4): o.append(f"ds_read_b128 v[{B[buf]+4*j}:{B[buf]+4*j+3}], v{vB[base]} offset:{so + (j>>1)*2048 + (j&1)*256}")
            for i in range(1, 2 * nf): o += rA(i >> 1, i & 1)
            return o
        k(f"s_waitcnt vmcnt({vm.cnt({('D', 0)})})")
        k("s_barrier")
        vstamp("p4_go")
        for l in reads(0, 0): k(l)
        NT = 32
        texts = []
        pf5 = {28: [0], 29: [1, 2]}
        for per in range(NT // NS):
            o = []
            for t in range(per * NS, (per + 1) * NS):
                slot = t % NS; cur = t & 1; nxt = cur ^ 1
                rd = []; dm = []; ex = []
                if t + 1 < NT:
                    need = {("D", t + 1)}
                    if t == 3: need.add("ST")
                    o.append(f"s_waitcnt vmcnt({vm.cnt(need)}) lgkmcnt(0)")
                    o.append("s_barrier")
                    rd = reads(nxt, (t + 1) % NS)
                else:
                    o.append("s_waitcnt lgkmcnt(0)")
                tail = []
                if t + NS < NT:
                    dm = dma_w(var, slot) + dma_act(var, slot)
                    vm.issue(("D", t + NS), len(dm))
                    tail = [advA, advW]
                for tl in pf5.get(t, []):
                    if tl < NS5:
                        dm += [list(x) for x in w35_dma(vW5, 60, tl)]
                        dm[-1].append(W35ADV)
                        vm.issue("PF5", 2)
                if t == 3: ex = stats_calc()
                mf = []
                for i in range(2 * nf):
                    for j in range(4):
                        a = acc(i >> 1, i & 1, j)
                        mf.append(f"v_mfma_f32_16x16x32_bf16 v[{a}:{a+3}], v[{A[cur]+4*i}:{A[cur]+4*i+3}], v[{B[cur]+4*j}:{B[cur]+4*j+3}], v[{a}:{a+3}]")
                n = len(mf)
                gaps = [[] for _ in mf]
                for q, r in enumerate(rd): gaps[q].append(r)
                if dm:
                    stp = (n - 3) // len(dm)
                    for q, d in enumerate(dm):
                        g = 1 + stp * q
                        gaps[g].append(d[0]); gaps[g + 1] += d[1:]
                    gaps[n - 1] += tail
                for q, l in enumerate(ex): gaps[min(4 + q, n - 1)].append(l)
                for g, mm in enumerate(mf):
                    o.append(mm); o += gaps[g]
            texts.append(o)
        periods(k, f"p4{var}", texts, 36)
        vstamp("p4_loop")
        ST = 16; TT = 32
        k(f"v_and_b32 v{vT}, 15, v1"); k(f"v_lshlrev_b32 v{vT}, 4, v{vT}")
        k("s_lshl_b32 s27, s25, 10"); k(f"s_add_u32 s27, s27, {STATS}"); k(f"v_add_u32 v{vT}, s27, v{vT}")
        for j in range(4): k(f"ds_read_b128 v[{ST+4*j}:{ST+4*j+3}], v{vT} offset:{256*j}")
        k("s_waitcnt vmcnt(0) lgkmcnt(0)")
        if "drain" in X4: k("s_waitcnt vmcnt(0)"); k("s_barrier")
        if "drain0" in X4: k("s_waitcnt vmcnt(0)")
        if "bar" in X4: k("s_barrier")
        if "adrain" in X4 and var == "A": k("s_waitcnt vmcnt(0)")
        if "bdrain" in X4 and var != "A": k("s_waitcnt vmcnt(0)")
        nopk = ("anopk" in X4 and var == "A") or ("bnopk" in X4 and var != "A")
        def pk(op, d, a, b, c=None, sel=None):
            if not nopk:
                x = f"v_pk_{op}_f32 v[{d}:{d+1}], v[{a}:{a+1}], v[{b}:{b+1}]"
                if c is not None: x += f", v[{c}:{c+1}] " + sel
                k(x); return
            for h in range(2):
                if c is None: k(f"v_mul_f32 v{d+h}, v{a+h}, v{b+h}")
                elif sel.startswith("op_sel:[0,0,1]"): k(f"v_fma_f32 v{d+h}, v{a+h}, v{b}, v{b+1}")
                else: k(f"v_fma_f32 v{d+h}, v{a+h}, v{b}, v{b}")
        for fi in range(nf):
            for p in range(2):
                gi = fi * 2 + p
                PK = TT + 16 + 4 * (gi & 3)
                T = TT + 8 * (gi & 1)
                prs = [(2 * p + jj, h) for jj in range(2) for h in range(2)]
                P = lambda r: f"v[{r}:{r+1}]"
                for q, (j, h) in enumerate(prs):
                    g = acc(fi, 0, j) + 2 * h
                    pk("mul", T+2*q, g, g)
                for q, (j, h) in enumerate(prs):
                    c = ST + 4 * j
                    pk("fma", T+2*q, T+2*q, c, c, "op_sel:[0,0,1] op_sel_hi:[1,0,1]")
                for q, (j, h) in enumerate(prs):
                    g = acc(fi, 0, j) + 2 * h
                    pk("mul", T+2*q, T+2*q, g)
                for q, (j, h) in enumerate(prs):
                    g = acc(fi, 0, j) + 2 * h; u = acc(fi, 1, j) + 2 * h
                    k(f"v_exp_f32 v{T+2*q}, v{T+2*q}"); k(f"v_exp_f32 v{T+2*q+1}, v{T+2*q+1}")
                    pk("mul", u, u, g)
                for q, (j, h) in enumerate(prs):
                    c = ST + 4 * j + 2
                    pk("fma", T+2*q, T+2*q, c, c, "op_sel:[0,0,0] op_sel_hi:[1,0,0]")
                for q, (j, h) in enumerate(prs):
                    k(f"v_rcp_f32 v{T+2*q}, v{T+2*q}"); k(f"v_rcp_f32 v{T+2*q+1}, v{T+2*q+1}")
                for q, (j, h) in enumerate(prs):
                    u = acc(fi, 1, j) + 2 * h
                    pk("mul", u, u, T+2*q)
                for q, (j, h) in enumerate(prs):
                    u = acc(fi, 1, j) + 2 * h
                    k(f"v_cvt_pk_bf16_f32 v{PK+q}, v{u}, v{u+1}")
                k(f"v_permlane16_swap_b32 v{PK}, v{PK+2}")
                k(f"v_permlane16_swap_b32 v{PK+1}, v{PK+3}")
                k(f"buffer_store_dwordx4 v[{PK}:{PK+3}], v{vL16}, s[12:15], s{34+p} offen offset:{1024*fi}{SC}")
        vstamp("p4_epi")
        if var != "B1": k(f"s_branch {ljoin}")
    lB = k.lab("p4B"); lB1 = k.lab("p4B1")
    k("s_cmp_eq_u32 s26, 0")
    k(f"s_cbranch_scc0 {lB}")
    body("A")
    k(f"{lB}:")
    k("s_bitcmp1_b32 s25, 0")
    k(f"s_cbranch_scc1 {lB1}")
    body("B0")
    k(f"{lB1}:")
    body("B1")
    k(f"{ljoin}:")
    k("s_lshl_b32 s27, s23, 7"); k(f"s_add_u32 s27, s27, {WS_CNT + C5*128}")
    signal(k, 27, vt=(vT, vT + 1))
    k.stamp("p4_sig")

def mk():
    k = G(NAME, nvgpr=256, accum=256, total=256)
    lend = "L_end"
    k("s_cmp_ge_u32 s2, 256")
    k(f"s_cbranch_scc1 {lend}")
    if os.environ.get("SCR"):
        k("s_and_b32 s3, s2, 7"); k("s_lshl_b32 s3, s3, 5"); k("s_lshr_b32 s2, s2, 3"); k("s_or_b32 s2, s2, s3")
    k("s_load_dwordx16 s[64:79], s[0:1], 0")
    k("s_load_dwordx4 s[80:83], s[0:1], 64")
    k("v_and_b32 v1, 63, v0")
    k("v_lshrrev_b32 v2, 6, v0")
    k("s_nop 0")
    k("v_readfirstlane_b32 s20, v2")
    k.stamp("start")
    ldone = "L_done"
    phs = [phase1, phase2, lambda k: phase35(k, "wo"), phase4, lambda k: phase35(k, "down")]
    for i, ph in enumerate(phs[:UPTO]): ph(k)
    k.stamp("end")
    k.stamp_out()
    k("s_waitcnt vmcnt(0)")
    k(f"{lend}:")
    k("s_endpgm")
    return k, ("mk", 256, 512, LDS_BYTES)

if __name__ == "__main__":
    import sys
    sys.path.insert(0, "gen")
    from build import header
    k, _ = mk()
    o = header()
    o.append(f"; @launch grid=(256,1,1) block=(512,1,1) lds={LDS_BYTES}")
    if STAMP: o.append("; stamps: " + " ".join(k.stnames))
    o.append('.amdgcn_target "amdgcn-amd-amdhsa--gfx950"')
    o.append('.text')
    o.append(k.text())
    o.append('.section .rodata,"a"')
    o.append(k.desc())
    open(sys.argv[1], "w").write("\n".join(o) + "\n")
    print("wrote", sys.argv[1], "instrs", sum(1 for l in k.lines if l.startswith("  ")))
```

```python
from asmlib import K, srd
from common import *
import os, struct, math
STAMP = bool(int(os.environ.get("STAMP", "0")))
UPTO = int(os.environ.get("UPTO", "5"))
NAME = "sequential_preLN__mha_block__glu_gated_geglu__prompt_kernel"
WS_TS = 0x2800000
SC = " sc1"
LDS_BYTES = 163840
pX, pWQKV, pWO, pBX, pWG, pWU, pWD, pOUT, pDBG, pWS = [64 + 2 * i for i in range(10)]
C2, C3, C4, C5 = 0, 16, 24, 32
SPIN_LIMIT = 0x40000
PFW = int(os.environ.get("PFW", "1")); PFI = int(os.environ.get("PFI", "0"))
def f2h(x): return hex(struct.unpack('<I', struct.pack('<f', x))[0])

class G(K):
    def __init__(s, *a, **kw):
        super().__init__(*a, **kw); s.nl = 0; s.nst = 0; s.stnames = []
    def lab(s, base):
        s.nl += 1; return f"L_{base}_{s.nl}"
    def stamp(s, nm):
        if not STAMP: return
        i = s.nst; s.nst += 1; s.stnames.append(nm)
        s("s_memrealtime s[84:85]"); s("s_memtime s[86:87]"); s("s_waitcnt lgkmcnt(0)")
        s(f"v_writelane_b32 v255, s84, {i}"); s(f"v_writelane_b32 v254, s86, {i}")
    def stamp_at(s, i):
        if not STAMP: return
        s("s_memrealtime s[84:85]"); s("s_memtime s[86:87]"); s("s_waitcnt lgkmcnt(0)")
        s(f"v_writelane_b32 v255, s84, {i}"); s(f"v_writelane_b32 v254, s86, {i}")
    def stamp_out(s):
        if not STAMP: return
        s("s_lshl_b32 s84, s2, 3"); s("s_add_u32 s84, s84, s20"); s("s_lshl_b32 s84, s84, 9")
        s(f"s_add_u32 s84, s84, {WS_TS}")
        s("v_lshlrev_b32 v253, 2, v1")
        s("buffer_store_dword v255, v253, s[12:15], s84 offen")
        s("buffer_store_dword v254, v253, s[12:15], s84 offen offset:256")
        s("s_waitcnt vmcnt(0)")

class VM:
    def __init__(s): s.q = []
    def issue(s, tag, n=1): s.q += [tag] * n
    def cnt(s, tags):
        last = -1
        for i, t in enumerate(s.q):
            if t in tags: last = i
        return len(s.q) - 1 - last if last >= 0 else None

def periods(k, name, texts, cnt_sgpr):
    i = 0; n = len(texts)
    while i < n:
        j = i
        while j + 1 < n and texts[j + 1] == texts[i]: j += 1
        rep = j - i + 1
        if rep > 1:
            l = k.lab(name)
            k(f"s_mov_b32 s{cnt_sgpr}, 0")
            k(f"{l}:")
            for x in texts[i]: k(x)
            k(f"s_add_u32 s{cnt_sgpr}, s{cnt_sgpr}, 1")
            k(f"s_cmp_lt_u32 s{cnt_sgpr}, {rep}")
            k(f"s_cbranch_scc1 {l}")
        else:
            for x in texts[i]: k(x)
        i = j + 1

def signal(k, sline, vt=(14, 15)):
    k("s_waitcnt vmcnt(0)")
    k("s_barrier")
    l = k.lab("nosig")
    k("s_cmp_lg_u32 s20, 0"); k(f"s_cbranch_scc1 {l}")
    k("s_mov_b64 exec, 1")
    k(f"v_mov_b32 v{vt[0]}, 1"); k(f"v_mov_b32 v{vt[1]}, 0")
    k(f"buffer_atomic_add v{vt[0]}, v{vt[1]}, s[12:15], s{sline} offen sc1")
    k("s_mov_b64 exec, -1")
    k(f"{l}:")

def wait(k, sline, target, vt=(14, 15)):
    done = k.lab("wdone"); spin = k.lab("wspin")
    k("s_cmp_lg_u32 s20, 0"); k(f"s_cbranch_scc1 {done}")
    k(f"v_mov_b32 v{vt[1]}, 0")
    k("s_mov_b32 s28, 0")
    k(f"{spin}:")
    k(f"buffer_load_dword v{vt[0]}, v{vt[1]}, s[12:15], s{sline} offen sc1")
    k("s_add_u32 s28, s28, 1")
    k("s_waitcnt vmcnt(0)")
    k(f"v_readfirstlane_b32 s29, v{vt[0]}")
    k(f"s_cmp_eq_u32 s29, {target}"); k(f"s_cbranch_scc1 {done}")
    k(f"s_cmp_gt_u32 s28, {SPIN_LIMIT}"); k(f"s_cbranch_scc1 {done}")
    k("s_sleep 1")
    k(f"s_branch {spin}")
    k(f"{done}:")
    k("s_barrier")

def wdma_lane(k, vdst, rowbytes, t):
    k(f"v_lshrrev_b32 v{t}, 3, v1"); k(f"v_and_b32 v{t+1}, 7, v1")
    k(f"v_lshrrev_b32 v{t+2}, 2, v{t}"); k(f"v_and_b32 v{t+3}, 3, v{t}")
    k(f"v_lshl_add_u32 v{t+2}, v{t+2}, 3, v{t+3}")
    k(f"v_mul_u32_u24 v{t+2}, {rowbytes}, v{t+2}")
    k(f"v_lshrrev_b32 v{t+3}, 1, v{t+1}"); k(f"v_lshrrev_b32 v{t}, 1, v{t}")
    k(f"v_xor_b32 v{t+3}, v{t+3}, v{t}")
    k(f"v_and_b32 v{t+1}, 1, v{t+1}")
    k(f"v_lshl_add_u32 v{t+3}, v{t+3}, 1, v{t+1}")
    k(f"v_lshl_add_u32 v{vdst}, v{t+3}, 4, v{t+2}")

def phase1(k):
    NS = 4; SLOT = 40960; BOFF = 24576
    ACC = 64
    vA = [2, 3]; vW = [10, 11, 12]; vX = [13, 4]; vL16 = 5; vZ = 6; vP = 7
    A = [16, 28]; B = [40, 112]
    VB = 128; DC = 144; D1 = 156; D2 = 160; ONE = 164; PL = 168
    RMR = 192
    acc = lambda m, j: ACC + (m * 4 + j) * 4
    k("s_and_b32 s21, s2, 7"); k("s_lshr_b32 s22, s2, 3")
    k("s_and_b32 s23, s21, 1"); k("s_lshl_b32 s23, s23, 3"); k("s_and_b32 s24, s22, 7"); k("s_add_u32 s23, s23, s24")
    k("s_lshr_b32 s24, s21, 1"); k("s_lshl_b32 s24, s24, 2"); k("s_lshr_b32 s25, s22, 3"); k("s_add_u32 s24, s24, s25")
    k("s_and_b32 s25, s20, 1")
    k("s_lshr_b32 s26, s20, 1")
    wdma_lane(k, vW[0], 6144, 14)
    k(f"v_add_u32 v{vW[1]}, 2048, v{vW[0]}")
    k(f"v_add_u32 v{vW[2]}, 4096, v{vW[0]}")
    k("v_lshrrev_b32 v14, 3, v1"); k("v_and_b32 v15, 7, v1")
    k("v_lshrrev_b32 v17, 4, v1")
    k("v_xor_b32 v17, v17, v15")
    k("v_lshlrev_b32 v17, 4, v17")
    k(f"v_lshl_add_u32 v{vX[0]}, v14, 11, v17")
    k(f"v_xor_b32 v{vX[1]}, 64, v{vX[0]}")
    k(f"v_add_u32 v{vX[1]}, {16384 - 1024}, v{vX[1]}")
    k(f"v_lshlrev_b32 v{vL16}, 4, v1")
    k("s_lshr_b32 s27, s20, 2"); k("s_lshl_b32 s27, s27, 5")
    k("s_bfe_u32 s28, s20, 0x10001"); k("s_lshl_b32 s28, s28, 4"); k("s_add_u32 s27, s27, s28")
    k("s_lshl_b32 s28, s25, 2"); k("s_add_u32 s27, s27, s28")
    k("s_mul_i32 s48, s27, 6144"); k("s_lshl_b32 s28, s24, 7"); k("s_add_u32 s48, s48, s28")
    k(f"s_add_u32 s46, s48, {16*64*6144}")
    k("s_lshl_b32 s49, s23, 3"); k("s_add_u32 s49, s49, s20"); k("s_lshl_b32 s49, s49, 15")
    k("s_add_u32 s27, s23, s24"); k("s_and_b32 s27, s27, 15")
    k(f"s_mul_i32 s28, s27, {64*6144}"); k("s_add_u32 s30, s48, s28")
    k("s_lshl_b32 s28, s27, 7"); k("s_add_u32 s31, s49, s28")
    k("s_lshl_b32 s32, s20, 10")
    k("s_lshl_b32 s33, s20, 11"); k(f"s_add_u32 s33, s33, {BOFF}")
    k("s_waitcnt lgkmcnt(0)")
    srd(k, 8, pWQKV, D * 3 * D * 2)
    srd(k, 12, pWS, WS_SIZE)
    srd(k, 16, pX, MB4)
    def dma(slot):
        o = []
        for m in range(3):
            o.append([f"s_add_u32 m0, s32, {slot*SLOT + m*8192}", f"buffer_load_dwordx4 v{vW[m]}, s[8:11], s30 offen lds"])
        o.append([f"s_add_u32 m0, s33, {slot*SLOT}", f"buffer_load_dwordx4 v{vX[0]}, s[16:19], s31 offen lds"])
        o.append([f"buffer_load_dwordx4 v{vX[1]}, s[16:19], s31 offen offset:1024 lds"])
        return o
    adv = [f"s_add_u32 s30, s30, {64*6144}", "s_add_u32 s31, s31, 128", "s_cmp_eq_u32 s30, s46", "s_cselect_b32 s30, s48, s30", "s_cselect_b32 s31, s49, s31"]
    for s in range(NS):
        for d in dma(s):
            for l in d: k(l)
        for l in adv: k(l)
    srd(k, 84, pWO, D * D * 2)
    k("v_lshlrev_b32 v14, 4, v0"); k("s_lshl_b32 s27, s2, 13")
    k(f"buffer_load_dwordx4 v[{RMR}:{RMR+3}], v14, s[84:87], s27 offen")
    l0 = k.lab("noinit")
    k("s_cmp_lg_u32 s2, 0"); k(f"s_cbranch_scc1 {l0}")
    for r in range(4): k(f"v_mov_b32 v{PL+r}, 0")
    k(f"s_mov_b32 s27, {WS_CNT}")
    k(f"buffer_store_dwordx4 v[{PL}:{PL+3}], v14, s[12:15], s27 offen{SC}")
    k(f"{l0}:")
    srd(k, 60, pDBG, 256)
    k("v_lshrrev_b32 v14, 4, v1")
    k("v_bfe_u32 v15, v1, 2, 2")
    k("v_lshrrev_b32 v16, 1, v14"); k("v_and_b32 v17, 1, v14")
    k("v_lshlrev_b32 v16, 4, v16"); k("v_lshl_add_u32 v16, v17, 2, v16"); k("v_add_u32 v16, v16, v15")
    k("v_lshlrev_b32 v16, 7, v16")
    k("v_lshrrev_b32 v18, 1, v15"); k("v_lshl_add_u32 v18, v17, 1, v18")
    k("v_xor_b32 v18, s26, v18")
    k("v_lshl_add_u32 v16, v18, 5, v16")
    k("v_and_b32 v18, 3, v1")
    k(f"v_lshl_add_u32 v{vA[0]}, v18, 3, v16")
    k(f"v_add_u32 v{vA[1]}, {2*SLOT}, v{vA[0]}")
    for i in range(1, 4): k(f"v_cmp_eq_u32 s[{48+2*i}:{49+2*i}], {i}, v18")
    k("v_cmp_eq_u32 s[56:57], v14, v15")
    k("v_and_b32 v15, 15, v1")
    k("v_cmp_eq_u32 s[58:59], 0, v15")
    k("v_lshrrev_b32 v16, 1, v15"); k("v_xor_b32 v16, v16, v14"); k("v_lshlrev_b32 v16, 4, v16")
    k("v_lshl_add_u32 v16, v15, 7, v16")
    k("s_cmp_eq_u32 s25, 0")
    k("s_cselect_b32 s58, s58, 0"); k("s_cselect_b32 s59, s59, 0")
    k("s_lshl_b32 s28, s25, 13"); k(f"s_add_u32 s28, s28, {BOFF}")
    for jj in range(4):
        k(f"s_xor_b32 s27, s26, {jj}"); k("s_lshl_b32 s27, s27, 11"); k("s_add_u32 s27, s27, s28")
        k(f"v_add_u32 v{VB+jj}, s27, v16")
        k(f"v_xor_b32 v{VB+4+jj}, 64, v{VB+jj}")
        k(f"v_add_u32 v{VB+8+jj}, {2*SLOT}, v{VB+jj}")
        k(f"v_add_u32 v{VB+12+jj}, {2*SLOT}, v{VB+4+jj}")
    k(f"v_mov_b32 v{vZ}, 0")
    k("v_lshlrev_b32 v8, 3, v15")
    k("s_lshl_b32 s42, s23, 3"); k("s_lshl_b32 s27, s25, 2"); k("s_add_u32 s42, s42, s27"); k("s_add_u32 s42, s42, s26")
    k("s_lshl_b32 s42, s42, 7"); k("s_lshl_b32 s27, s24, 14"); k("s_add_u32 s42, s42, s27"); k(f"s_add_u32 s42, s42, {WS_ST1}")
    k("v_lshlrev_b32 v9, 4, v14")
    k("s_lshl_b32 s43, s24, 4"); k("s_add_u32 s43, s43, s23"); k("s_mul_i32 s43, s43, 768")
    k("s_lshl_b32 s27, s26, 6"); k("s_add_u32 s43, s43, s27"); k(f"s_add_u32 s43, s43, {WS_CS1}")
    k("v_and_b32 v196, 1, v1"); k("v_lshlrev_b32 v196, 7, v196")
    for r in range(ACC, ACC + 48): k(f"v_mov_b32 v{r}, 0")
    for r in range(DC, DC + 20): k(f"v_mov_b32 v{r}, 0")
    for r in range(4): k(f"v_mov_b32 v{ONE+r}, 0x3f803f80")
    def reads(buf, slot, kb):
        o = []
        pr = slot >> 1; so = (slot & 1) * SLOT
        def rA(m):
            return [f"ds_read_b64_tr_b16 v[{A[buf]+4*m+2*t}:{A[buf]+4*m+2*t+1}], v{vA[pr]} offset:{so + m*8192 + kb*4096 + t*1024}" for t in range(2)]
        def rB(j):
            return [f"ds_read_b128 v[{B[buf]+4*j}:{B[buf]+4*j+3}], v{VB + pr*8 + kb*4 + j} offset:{so}"]
        o += rA(0)
        for j in range(4): o += rB(j)
        o += rA(1) + rA(2)
        return o
    def side(buf):
        o = []
        fb = f"v[{B[buf]}:{B[buf]+3}]"; on = f"v[{ONE}:{ONE+3}]"
        for m in range(3):
            o.append(f"v_mfma_f32_16x16x32_bf16 v[{DC+4*m}:{DC+4*m+3}], v[{A[buf]+4*m}:{A[buf]+4*m+3}], {on}, v[{DC+4*m}:{DC+4*m+3}]")
        o.append(f"v_mfma_f32_16x16x32_bf16 v[{D1}:{D1+3}], {on}, {fb}, v[{D1}:{D1+3}]")
        o.append(f"v_mfma_f32_16x16x32_bf16 v[{D2}:{D2+3}], {fb}, {fb}, v[{D2}:{D2+3}]")
        return o
    def once(lines):
        l = k.lab("once")
        k("s_cmp_lg_u32 s34, 0"); k(f"s_cbranch_scc1 {l}")
        for x in lines: k(x)
        k(f"{l}:")
    def publish():
        o = [f"v_cndmask_b32 v{D2}, v{D2}, v{D2+1}, s[50:51]", f"v_cndmask_b32 v{D2}, v{D2}, v{D2+2}, s[52:53]", f"v_cndmask_b32 v{D2}, v{D2}, v{D2+3}, s[54:55]",
             f"v_mov_b32 v{D1+1}, v{D2}",
             "s_mov_b64 exec, s[56:57]",
             f"buffer_store_dwordx2 v[{D1}:{D1+1}], v8, s[12:15], s42 offen{SC}",
             "s_mov_b64 exec, s[58:59]"]
        for m in range(3):
            o.append(f"buffer_store_dwordx4 v[{DC+4*m}:{DC+4*m+3}], v9, s[12:15], s43 offen offset:{256*m}{SC}")
        o.append("s_mov_b64 exec, -1")
        return o
    def sig1():
        l = k.lab("nosig1")
        return ["s_cmp_lg_u32 s20, 0", f"s_cbranch_scc1 {l}", "s_mov_b64 exec, 1", "v_mov_b32 v14, 1",
                "s_and_b32 s27, s2, 1", "s_lshl_b32 s27, s27, 7",
                f"buffer_atomic_add v14, v{vZ}, s[60:63], s27 offen sc1", "s_mov_b64 exec, -1", f"{l}:"]
    k(f"s_waitcnt vmcnt({5*(NS-1)+1})")
    k("s_barrier")
    k.stamp("p1_go")
    for l in reads(0, 0, 0): k(l)
    def step(tile, kb, do_dma, vm, last, first=False, pre=None):
        cur = kb; nxt = kb ^ 1
        if kb == 0:
            k("s_waitcnt lgkmcnt(0)")
            rd = reads(nxt, tile, 1); dm = []
        else:
            if last:
                k("s_waitcnt lgkmcnt(0)"); rd = []
            else:
                k(f"s_waitcnt vmcnt({vm}) lgkmcnt(0)")
                k("s_barrier")
                rd = reads(nxt, (tile + 1) % NS, 0)
            dm = dma(tile) if do_dma else []
        if pre: pre()
        mf = []
        for m in range(3):
            for j in range(4):
                a = acc(m, j); fa = f"v[{A[cur]+4*m}:{A[cur]+4*m+3}]"; fb = f"v[{B[cur]+4*j}:{B[cur]+4*j+3}]"
                if m == 2: fa, fb = fb, fa
                mf.append(f"v_mfma_f32_16x16x32_bf16 v[{a}:{a+3}], {fa}, {fb}, v[{a}:{a+3}]")
        gaps = [[] for _ in mf]
        for q, r in enumerate(rd): gaps[q].append(r)
        pos = [1, 3, 5, 7, 9]
        for q, d in enumerate(dm):
            if len(d) == 2:
                gaps[pos[q] - 1].append(d[0]); gaps[pos[q]].append(d[1])
            else:
                gaps[pos[q]].append(d[0])
        if dm: gaps[10] += adv
        for g, mm in enumerate(mf):
            k(mm)
            for l in gaps[g]: k(l)
        if first: once(side(cur))
    NT = 16
    k("s_mov_b32 s34, 0")
    lp = k.lab("p1loop")
    k(f"{lp}:")
    for t in range(NS):
        step(t, 0, False, 0, False, first=(t == 0))
        if t == 1: once(publish())
        step(t, 1, True, 5 * (NS - 2), False, first=(t == 0))
        if t == 3: once(sig1())
    k("s_add_u32 s34, s34, 1")
    k(f"s_cmp_lt_u32 s34, {NT // NS - 1}")
    k(f"s_cbranch_scc1 {lp}")
    def partial_loads():
        rdy = k.lab("p1rdy"); spin = k.lab("p1spin"); nocs = k.lab("p1nocs")
        k(f"v_cmp_eq_u32 vcc, 128, v{vP}")
        k("s_cmp_eq_u64 vcc, -1")
        k(f"s_cbranch_scc1 {rdy}")
        k("s_mov_b32 s28, 0")
        k(f"{spin}:")
        k("s_add_u32 s28, s28, 1")
        k(f"s_cmp_gt_u32 s28, {SPIN_LIMIT}")
        k(f"s_cbranch_scc1 {rdy}")
        k("s_sleep 2")
        k(f"buffer_load_dword v{vP}, v196, s[60:63], 0 offen sc1")
        k("s_waitcnt vmcnt(0)")
        k(f"v_cmp_eq_u32 vcc, 128, v{vP}")
        k("s_cmp_eq_u64 vcc, -1")
        k(f"s_cbranch_scc0 {spin}")
        k(f"{rdy}:")
        k("v_and_b32 v14, 3, v0"); k("v_lshlrev_b32 v14, 16, v14")
        k("v_lshrrev_b32 v15, 2, v0"); k("v_lshl_add_u32 v14, v15, 3, v14")
        k("s_lshl_b32 s27, s23, 10"); k(f"s_add_u32 s27, s27, {WS_ST1}")
        for i in range(4):
            k(f"buffer_load_dwordx2 v[{PL+2*i}:{PL+2*i+1}], v14, s[12:15], s27 offen{SC}")
            if i < 3: k("s_add_u32 s27, s27, 16384")
        k("s_cmp_ge_u32 s20, 3")
        k(f"s_cbranch_scc1 {nocs}")
        k("v_lshlrev_b32 v14, 2, v0")
        k(f"s_mul_i32 s27, s24, {16*768}"); k(f"s_add_u32 s27, s27, {WS_CS1}")
        for i in range(16):
            k(f"buffer_load_dword v{PL+8+i}, v14, s[12:15], s27 offen offset:{(i % 4) * 768}{SC}")
            if i % 4 == 3 and i < 15: k(f"s_add_u32 s27, s27, {4*768}")
        k(f"{nocs}:")
    for t in range(NS):
        step(t, 0, False, 0, False)
        if t == 0: k(f"buffer_load_dword v{vP}, v196, s[60:63], 0 offen sc1")
        vm = 5 * max(NS - 2 - t, 0) + (1 if t < 2 else 0)
        step(t, 1, False, vm, t == NS - 1, pre=partial_loads if t == 2 else None)
    k.stamp("p1_loop")
    k("v_mov_b32 v14, 0")
    for r in range(4): k(f"v_dot2c_f32_bf16 v14, v{RMR+r}, v{ONE}")
    for ro in (8, 4, 2, 1): k(f"v_add_f32_dpp v14, v14, v14 row_ror:{ro} row_mask:0xf bank_mask:0xf")
    for sw in ("v_permlane16_swap_b32", "v_permlane32_swap_b32"):
        k("v_mov_b32 v15, v14"); k(f"{sw} v14, v15"); k("v_add_f32 v14, v14, v15")
    k("s_lshl_b32 s27, s20, 2"); k("s_add_u32 s27, s27, 2048"); k("v_mov_b32 v15, s27")
    k("ds_write_b32 v15, v14")
    k("s_waitcnt vmcnt(0)")
    k(f"v_add_f32 v{PL}, v{PL}, v{PL+2}"); k(f"v_add_f32 v{PL+1}, v{PL+1}, v{PL+3}")
    k(f"v_add_f32 v{PL+4}, v{PL+4}, v{PL+6}"); k(f"v_add_f32 v{PL+5}, v{PL+5}, v{PL+7}")
    k(f"v_add_f32 v{PL}, v{PL}, v{PL+4}"); k(f"v_add_f32 v{PL+1}, v{PL+1}, v{PL+5}")
    for qp in ("[1,0,3,2]", "[2,3,0,1]"):
        k(f"v_add_f32_dpp v{PL}, v{PL}, v{PL} quad_perm:{qp} row_mask:0xf bank_mask:0xf")
        k(f"v_add_f32_dpp v{PL+1}, v{PL+1}, v{PL+1} quad_perm:{qp} row_mask:0xf bank_mask:0xf")
    k(f"v_mul_f32 v{PL}, 0x3a800000, v{PL}")
    k(f"v_mul_f32 v{PL+1}, 0x3a800000, v{PL+1}")
    k("v_lshrrev_b32 v16, 2, v0"); k("v_lshlrev_b32 v16, 2, v16")
    lm = k.lab("nomx")
    k("s_cmp_lg_u32 s24, 0"); k(f"s_cbranch_scc1 {lm}")
    k("s_lshl_b32 s27, s23, 9"); k(f"s_add_u32 s27, s27, {WS_MX}")
    k(f"buffer_store_dword v{PL}, v16, s[12:15], s27 offen{SC}")
    k(f"{lm}:")
    k(f"v_fma_f32 v{PL+1}, -v{PL}, v{PL}, v{PL+1}")
    k(f"v_max_f32 v{PL+1}, 0, v{PL+1}")
    k(f"v_add_f32 v{PL+1}, 0x3727c5ac, v{PL+1}")
    k(f"v_rsq_f32 v{PL+1}, v{PL+1}")
    k(f"v_mul_f32 v{PL+2}, v{PL}, v{PL+1}")
    k(f"v_sub_f32 v{PL+2}, 0, v{PL+2}")
    k(f"ds_write_b32 v16, v{PL+1}")
    k(f"ds_write_b32 v16, v{PL+2} offset:512")
    l2 = k.lab("nocs2")
    k("s_cmp_ge_u32 s20, 3")
    k(f"s_cbranch_scc1 {l2}")
    for st in (8, 4, 2, 1):
        for i in range(st): k(f"v_add_f32 v{PL+8+i}, v{PL+8+i}, v{PL+8+i+st}")
    k("v_lshlrev_b32 v16, 2, v0")
    k(f"ds_write_b32 v16, v{PL+8} offset:1024")
    k(f"{l2}:")
    k("v_and_b32 v15, 15, v1")
    k("s_lshl_b32 s27, s25, 8"); k("s_lshl_b32 s28, s26, 6"); k("s_add_u32 s28, s28, s27")
    k("v_lshlrev_b32 v16, 2, v15")
    k("v_add_u32 v17, s28, v16")
    k("v_lshrrev_b32 v14, 4, v1")
    k("v_lshlrev_b32 v19, 4, v14")
    k("v_add_u32 v20, s28, v19")
    k("s_lshl_b32 s29, s26, 6"); k("s_add_u32 s29, s29, 1024")
    k("v_add_u32 v19, s29, v19")
    k("v_add_u32 v18, s29, v16")
    for jj in range(1, 4):
        k(f"v_xor_b32 v{20+jj}, {jj<<6}, v20")
        k(f"v_xor_b32 v{23+jj}, {jj<<6}, v17")
    k("s_lshl_b32 s27, s23, 2"); k("s_lshl_b32 s28, s25, 1"); k("s_add_u32 s27, s27, s28")
    k("s_lshl_b32 s27, s27, 16")
    k("s_lshl_b32 s28, s24, 12"); k("s_add_u32 s27, s27, s28")
    k("s_lshl_b32 s28, s26, 10"); k("s_add_u32 s27, s27, s28")
    k("s_lshr_b32 s42, s26, 1")
    k("s_lshl_b32 s28, s42, 16"); k("s_add_u32 s35, s27, s28")
    k("s_xor_b32 s28, s28, 0x10000"); k("s_add_u32 s37, s27, s28")
    k(f"s_add_u32 s36, s35, {WS_K}"); k(f"s_add_u32 s38, s37, {WS_K}")
    k(f"s_add_u32 s35, s35, {WS_Q}"); k(f"s_add_u32 s37, s37, {WS_Q}")
    k("s_lshl_b32 s27, s24, 1"); k("s_add_u32 s27, s27, s42")
    k("s_lshl_b32 s27, s27, 7")
    k("s_lshl_b32 s28, s23, 3"); k("s_add_u32 s27, s27, s28")
    k("s_lshl_b32 s28, s25, 2"); k("s_add_u32 s27, s27, s28")
    k("s_lshl_b32 s27, s27, 10")
    k("s_and_b32 s43, s26, 1")
    k("s_lshl_b32 s28, s43, 8"); k("s_add_u32 s27, s27, s28")
    k(f"s_add_u32 s27, s27, {WS_VT}")
    k("s_lshl_b32 s28, s42, 11"); k("s_add_u32 s39, s27, s28")
    k("s_xor_b32 s28, s28, 2048"); k("s_add_u32 s40, s27, s28")
    k("v_lshrrev_b32 v27, 5, v1"); k("v_xor_b32 v27, s43, v27"); k("v_lshlrev_b32 v27, 10, v27")
    k("v_bfe_u32 v28, v1, 4, 1"); k("v_lshl_add_u32 v27, v28, 9, v27")
    k("v_lshl_add_u32 v14, v15, 4, v27")
    k("s_lshl_b32 s28, s43, 8")
    k(f"v_xor_b32 v{vL16}, s28, v{vL16}")
    k("s_waitcnt lgkmcnt(0)")
    k("s_barrier")
    SQ = 28; CQ = 36
    k(f"ds_read2_b32 v[{SQ}:{SQ+1}], v17 offset0:0 offset1:128")
    for jj in range(1, 4): k(f"ds_read2_b32 v[{SQ+2*jj}:{SQ+2*jj+1}], v{23+jj} offset0:0 offset1:128")
    k(f"ds_read_b128 v[{CQ}:{CQ+3}], v19")
    k(f"ds_read_b128 v[{CQ+4}:{CQ+7}], v19 offset:256")
    k("ds_read_b32 v152, v18 offset:512")
    VS = [112, 120, 128, 136]
    for jj in range(4):
        k(f"ds_read_b128 v[{VS[jj]}:{VS[jj]+3}], v{20+jj}")
        k(f"ds_read_b128 v[{VS[jj]+4}:{VS[jj]+7}], v{20+jj} offset:512")
    l7 = k.lab("norm")
    k("s_cmp_lg_u32 s20, 7"); k(f"s_cbranch_scc1 {l7}")
    k(f"ds_read_b128 v[{PL}:{PL+3}], v{vZ} offset:2048")
    k(f"ds_read_b128 v[{PL+4}:{PL+7}], v{vZ} offset:2064")
    k("s_waitcnt lgkmcnt(0)")
    for r in range(4):
        k(f"v_add_f32 v{PL+2*r}, v{PL+2*r}, v{PL+2*r+1}")
        k(f"v_mul_f32 v{PL+2*r}, 0x3a800000, v{PL+2*r}")
    k(f"v_cvt_pk_bf16_f32 v{PL+8}, v{PL}, v{PL+2}")
    k(f"v_cvt_pk_bf16_f32 v{PL+9}, v{PL+4}, v{PL+6}")
    k("s_lshl_b32 s27, s2, 3"); k(f"s_add_u32 s27, s27, {WS_RM}")
    k("s_mov_b64 exec, 1")
    k(f"buffer_store_dwordx2 v[{PL+8}:{PL+9}], v{vZ}, s[12:15], s27 offen{SC}")
    k("s_mov_b64 exec, -1")
    k(f"{l7}:")
    k("s_mov_b32 s44, 0x3e8293ee")
    k("s_waitcnt lgkmcnt(9)")
    QS = 52
    for jj in range(4):
        k(f"v_mul_f32 v{QS+2*jj}, s44, v{SQ+2*jj}")
        k(f"v_mul_f32 v{QS+2*jj+1}, s44, v{SQ+2*jj+1}")
    TP = [16, 20, 24, 44, 48, 60]
    TM = 144
    ti = 0
    for m in range(3):
        if m == 2: k("s_waitcnt lgkmcnt(0)")
        for p in range(2):
            t = TP[ti]; ti += 1
            for jj2 in range(2):
                jj = 2 * p + jj2
                a = acc(m, jj)
                for h in range(2):
                    tm = TM + 2 * ((jj2 * 2 + h) & 3)
                    if m < 2:
                        st = (QS if m == 0 else SQ) + 2 * jj
                        cs = CQ + 4 * m + 2 * h
                        k(f"v_pk_mul_f32 v[{tm}:{tm+1}], v[{cs}:{cs+1}], v[{st}:{st+1}] op_sel:[0,1] op_sel_hi:[1,1]")
                        k(f"v_pk_fma_f32 v[{a+2*h}:{a+2*h+1}], v[{a+2*h}:{a+2*h+1}], v[{st}:{st+1}], v[{tm}:{tm+1}] op_sel:[0,0,0] op_sel_hi:[1,0,1]")
                    else:
                        rs = VS[jj] + 2 * h; nm = VS[jj] + 4 + 2 * h
                        k(f"v_pk_mul_f32 v[{tm}:{tm+1}], v[{nm}:{nm+1}], v[152:153] op_sel:[0,0] op_sel_hi:[1,0]")
                        k(f"v_pk_fma_f32 v[{a+2*h}:{a+2*h+1}], v[{a+2*h}:{a+2*h+1}], v[{rs}:{rs+1}], v[{tm}:{tm+1}]")
                k(f"v_cvt_pk_bf16_f32 v{t+2*jj2}, v{a}, v{a+1}")
                k(f"v_cvt_pk_bf16_f32 v{t+2*jj2+1}, v{a+2}, v{a+3}")
            sw = "v_permlane16_swap_b32" if m < 2 else "v_permlane32_swap_b32"
            k(f"{sw} v{t}, v{t+2}")
            k(f"{sw} v{t+1}, v{t+3}")
            so = [[35, 37], [36, 38], [39, 40]][m][p]
            k(f"buffer_store_dwordx4 v[{t}:{t+3}], v{vL16 if m < 2 else 14}, s[12:15], s{so} offen{SC}")
    k.stamp("p1_epi")
    k("s_lshl_b32 s27, s24, 7"); k(f"s_add_u32 s27, s27, {WS_CNT + C2*128}")
    signal(k, 27, vt=(30, 31))
    k.stamp("p1_sig")

W3BASE = 98304
vW3 = [200, 201]
def coords35(k, stb, scb, st):
    k("s_and_b32 s21, s2, 7"); k("s_lshr_b32 s22, s2, 3")
    k(f"s_and_b32 s{stb}, s21, 3"); k(f"s_lshl_b32 s{stb}, s{stb}, 2"); k(f"s_and_b32 s{st}, s22, 3"); k(f"s_add_u32 s{stb}, s{stb}, s{st}")
    k(f"s_lshr_b32 s{scb}, s21, 2"); k(f"s_lshl_b32 s{scb}, s{scb}, 3"); k(f"s_lshr_b32 s{st}, s22, 2"); k(f"s_add_u32 s{scb}, s{scb}, s{st}")
def w35_setup(k, vW, base, t):
    coords35(k, 27, 29, 28)
    wdma_lane(k, vW[0], 2048, t)
    k(f"v_add_u32 v{vW[1]}, 8192, v{vW[0]}")
    k("s_lshr_b32 s27, s20, 1"); k("s_lshl_b32 s27, s27, 5"); k("s_and_b32 s28, s20, 1"); k("s_lshl_b32 s28, s28, 4")
    k("s_add_u32 s27, s27, s28"); k("s_lshl_b32 s50, s27, 11"); k("s_lshl_b32 s28, s29, 7"); k("s_add_u32 s50, s50, s28")
    k("s_lshl_b32 s51, s20, 11")
    if base: k(f"s_add_u32 s51, s51, {base}")
def w35_dma(vW, srdw, slot):
    return [[f"s_add_u32 m0, s51, {slot*16384}", f"buffer_load_dwordx4 v{vW[0]}, s[{srdw}:{srdw+3}], s50 offen lds"],
            [f"s_add_u32 m0, s51, {slot*16384+1024}", f"buffer_load_dwordx4 v{vW[1]}, s[{srdw}:{srdw+3}], s50 offen lds"]]
W35ADV = f"s_add_u32 s50, s50, {128*2048}"

def phase2(k):
    STG = 32768
    vL16, vCur, vNxt, vTmp = 2, 3, 4, 5
    QA, QB = 8, 16
    KF = [24, 32]; VF = [40, 48]
    SA, SB = 56, 72
    PA, PB = 88, 96
    OA, OB = 104, 120
    LA, LB = 136, 140
    NA, NB = 144, 160
    ONE = 176
    T0 = 180
    w35_setup(k, vW3, W3BASE, 180)
    srd(k, 8, pWO, D * D * 2)
    k("s_and_b32 s21, s2, 7"); k("s_lshl_b32 s21, s21, 2"); k("s_lshr_b32 s22, s2, 6"); k("s_add_u32 s21, s21, s22")
    k("s_bfe_u32 s22, s2, 0x30003")
    k("s_and_b32 s23, s20, 3")
    k("s_lshr_b32 s24, s20, 2")
    k(f"v_lshlrev_b32 v{vL16}, 4, v1")
    k("s_lshl_b32 s30, s24, 5"); k("s_add_u32 s30, s30, s23"); k("s_lshl_b32 s30, s30, 16")
    k("s_lshl_b32 s25, s21, 11"); k("s_add_u32 s30, s30, s25"); k(f"s_add_u32 s30, s30, {WS_K}")
    k("s_lshl_b32 s31, s21, 7"); k("s_lshl_b32 s25, s24, 6"); k("s_add_u32 s31, s31, s25")
    k("s_lshl_b32 s25, s23, 1"); k("s_add_u32 s31, s31, s25"); k("s_lshl_b32 s31, s31, 10"); k(f"s_add_u32 s31, s31, {WS_VT}")
    k("s_lshl_b32 s32, s24, 14"); k("s_lshl_b32 s25, s23, 11"); k("s_add_u32 s32, s32, s25")
    k("s_lshl_b32 s33, s22, 3"); k("s_lshl_b32 s25, s23, 1"); k("s_add_u32 s33, s33, s25"); k("s_lshl_b32 s33, s33, 16")
    k("s_lshl_b32 s25, s21, 11"); k("s_add_u32 s33, s33, s25")
    k(f"s_add_u32 s45, s33, {WS_O}")
    k(f"s_add_u32 s33, s33, {WS_Q}")
    k("s_add_u32 s34, s33, 65536")
    k(f"v_lshrrev_b32 v{vTmp}, 2, v1"); k(f"v_lshrrev_b32 v{T0}, 4, v1"); k(f"v_xor_b32 v{vTmp}, v{vTmp}, v{T0}")
    k(f"v_and_b32 v{vTmp}, 1, v{vTmp}"); k(f"v_cmp_eq_u32 vcc, 0, v{vTmp}")
    k(f"v_mov_b32 v{T0}, 0x3f803f80")
    k(f"v_cndmask_b32 v{ONE}, 0, v{T0}, vcc")
    for r in range(1, 4): k(f"v_mov_b32 v{ONE+r}, v{ONE}")
    for r in range(32): k(f"v_mov_b32 v{NA+r}, 0")
    k("s_mov_b32 s46, 0")
    k("s_lshl_b32 s25, s24, 14")
    k(f"v_add_u32 v{vTmp}, s25, v{vL16}")
    if PFW:
        k("s_lshl_b32 s25, s2, 3"); k("s_add_u32 s25, s25, s20")
        k("s_mul_i32 s26, s25, 3584")
        k(f"v_lshlrev_b32 v198, 6, v1"); k("v_add_u32 v198, s26, v198")
        srd(k, 88, pWO, D * D * 2)
        k(f"s_mov_b64 s[92:93], s[{pWG}:{pWG+1}]"); k(f"s_mov_b64 s[94:95], s[{pWU}:{pWU+1}]"); k(f"s_mov_b64 s[96:97], s[{pWD}:{pWD+1}]")
    k("s_lshr_b32 s27, s21, 1"); k("s_lshl_b32 s27, s27, 7"); k(f"s_add_u32 s27, s27, {WS_CNT + C2*128}")
    wait(k, 27, 16, vt=(T0, T0 + 1))
    k.stamp("p2_wait")
    for kk in range(2):
        k(f"buffer_load_dwordx4 v[{QA+4*kk}:{QA+4*kk+3}], v{vL16}, s[12:15], s33 offen offset:{1024*kk}{SC}")
        k(f"buffer_load_dwordx4 v[{QB+4*kk}:{QB+4*kk+3}], v{vL16}, s[12:15], s34 offen offset:{1024*kk}{SC}")
    def dma_stage():
        k("s_add_u32 m0, s42, s32")
        k(f"buffer_load_dwordx4 v{vL16}, s[12:15], s40 offen{SC} lds")
        k(f"buffer_load_dwordx4 v{vL16}, s[12:15], s40 offen offset:1024{SC} lds")
        k("s_add_u32 m0, m0, 8192")
        k(f"buffer_load_dwordx4 v{vL16}, s[12:15], s41 offen{SC} lds")
        k(f"buffer_load_dwordx4 v{vL16}, s[12:15], s41 offen offset:1024{SC} lds")
        k(f"s_add_u32 s40, s40, {4*65536}")
        k("s_add_u32 s41, s41, 8192")
    lmain = k.lab("p2main"); lloop = k.lab("p2loop"); lfin = k.lab("p2fin"); lfb = k.lab("p2fb"); lend = k.lab("p2end")
    k(f"{lmain}:")
    k("s_mov_b32 s40, s30"); k("s_mov_b32 s41, s31")
    k("s_mov_b32 s42, 0"); dma_stage()
    k(f"s_mov_b32 s42, {STG}"); dma_stage()
    k(f"s_mov_b32 s42, {2*STG}")
    k(f"v_mov_b32 v{vCur}, v{vTmp}")
    k(f"v_add_u32 v{vNxt}, {STG}, v{vTmp}")
    k(f"s_mov_b32 s43, {STG}")
    for r in range(16): k(f"v_mov_b32 v{OA+r}, 0"); k(f"v_mov_b32 v{OB+r}, 0")
    for r in range(4): k(f"v_mov_b32 v{LA+r}, 0"); k(f"v_mov_b32 v{LB+r}, 0")
    for r in range(8): k(f"v_mov_b32 v{PB+r}, 0"); k(f"v_mov_b32 v{VF[1]+r}, 0")
    lnp = k.lab("p2nopf"); lj = k.lab("p2pfj")
    k("s_cmp_lg_u32 s46, 0"); k(f"s_cbranch_scc1 {lnp}")
    for t in range(4):
        for d in w35_dma(vW3, 8, t):
            for l in d: k(l)
        k(W35ADV)
    k("s_waitcnt vmcnt(12)")
    k(f"s_branch {lj}")
    k(f"{lnp}:")
    k("s_waitcnt vmcnt(4)")
    k(f"{lj}:")
    k("s_barrier")
    k.stamp("p2_go")
    for kk in range(2):
        k(f"ds_read_b128 v[{KF[0]+4*kk}:{KF[0]+4*kk+3}], v{vCur} offset:{1024*kk}")
    k("s_waitcnt lgkmcnt(0)")
    def qk(Sx, Qx, Nx, kf):
        return [f"v_mfma_f32_32x32x16_bf16 v[{Sx}:{Sx+15}], v[{kf}:{kf+3}], v[{Qx}:{Qx+3}], v[{Nx}:{Nx+15}]",
                f"v_mfma_f32_32x32x16_bf16 v[{Sx}:{Sx+15}], v[{kf+4}:{kf+7}], v[{Qx+4}:{Qx+7}], v[{Sx}:{Sx+15}]"]
    def pv(Ox, Px, Lx, vf):
        return [f"v_mfma_f32_32x32x16_bf16 v[{Ox}:{Ox+15}], v[{vf}:{vf+3}], v[{Px}:{Px+3}], v[{Ox}:{Ox+15}]",
                f"v_mfma_f32_32x32x16_bf16 v[{Ox}:{Ox+15}], v[{vf+4}:{vf+7}], v[{Px+4}:{Px+7}], v[{Ox}:{Ox+15}]",
                f"v_mfma_f32_16x16x32_bf16 v[{Lx}:{Lx+3}], v[{ONE}:{ONE+3}], v[{Px}:{Px+3}], v[{Lx}:{Lx+3}]",
                f"v_mfma_f32_16x16x32_bf16 v[{Lx}:{Lx+3}], v[{ONE}:{ONE+3}], v[{Px+4}:{Px+7}], v[{Lx}:{Lx+3}]"]
    def expv(Sx, Px):
        o = []
        for g in range(4):
            o += [f"v_exp_f32 v{Sx+4*g+r}, v{Sx+4*g+r}" for r in range(4)]
            o += [f"v_cvt_pk_bf16_f32 v{Px+2*g}, v{Sx+4*g}, v{Sx+4*g+1}", f"v_cvt_pk_bf16_f32 v{Px+2*g+1}, v{Sx+4*g+2}, v{Sx+4*g+3}"]
        return o
    def phase(mf, va, extra):
        for i in range(6):
            k(mf[i])
            for (p, l) in extra:
                if p == i: k(l)
            for l in va[4*i:4*i+4]: k(l)
    for l in qk(SA, QA, NA, KF[0]): k(l)
    k("s_mov_b32 s44, 0")
    k(f"{lloop}:")
    for i in range(4):
        cb = i & 1; nb = cb ^ 1
        ex = []
        if i == 3:
            lnd = k.lab("nodma")
            k("s_waitcnt vmcnt(0)")
            k("s_barrier")
            k("s_cmp_ge_u32 s44, 6")
            k(f"s_cbranch_scc1 {lnd}")
            dma_stage()
            k(f"s_add_u32 s42, s42, {STG}")
            k(f"s_cmp_eq_u32 s42, {3*STG}")
            k("s_cselect_b32 s42, 0, s42")
            k(f"{lnd}:")
        if i == PFI and PFW:
            ex += [(4, "buffer_load_dword v199, v198, s[88:91], 0 offen"),
                   (5, "s_mov_b64 s[88:89], s[92:93]"), (5, "s_mov_b64 s[92:93], s[94:95]"), (5, "s_mov_b64 s[94:95], s[96:97]"),
                   (5, "s_cmp_lt_u32 s44, 3"), (5, f"s_cselect_b32 s90, {hex(D*DF*2)}, 0")]
        for kk in range(2):
            if i < 3: ex.append((kk, f"ds_read_b128 v[{KF[nb]+4*kk}:{KF[nb]+4*kk+3}], v{vCur} offset:{(i+1)*2048 + 1024*kk}"))
            else:     ex.append((kk, f"ds_read_b128 v[{KF[nb]+4*kk}:{KF[nb]+4*kk+3}], v{vNxt} offset:{1024*kk}"))
        for mm in range(2):
            ex.append((2 + mm, f"ds_read_b128 v[{VF[cb]+4*mm}:{VF[cb]+4*mm+3}], v{vCur} offset:{8192 + i*2048 + 1024*mm}"))
        phase(qk(SB, QB, NB, KF[cb]) + pv(OB, PB, LB, VF[nb]), expv(SA, PA), ex)
        k("s_waitcnt lgkmcnt(0)")
        ex = []
        if i == 3:
            ex = [(0, f"v_mov_b32 v{vCur}, v{vNxt}"), (1, f"s_add_u32 s43, s43, {STG}"), (1, f"s_cmp_eq_u32 s43, {3*STG}"),
                  (2, "s_cselect_b32 s43, 0, s43"), (3, f"v_add_u32 v{vNxt}, s43, v{vTmp}")]
        phase(qk(SA, QA, NA, KF[nb]) + pv(OA, PA, LA, VF[cb]), expv(SB, PB), ex)
    k("s_add_u32 s44, s44, 1")
    k("s_cmp_lt_u32 s44, 8")
    k(f"s_cbranch_scc1 {lloop}")
    for l in pv(OB, PB, LB, VF[1]): k(l)
    k.stamp("p2_loop")
    k("s_nop 7"); k("s_nop 3")
    lns = k.lab("nosw")
    k("s_cmp_eq_u32 s24, 0")
    k(f"s_cbranch_scc1 {lns}")
    for r in range(16): k(f"v_swap_b32 v{OA+r}, v{OB+r}")
    k(f"v_swap_b32 v{LA}, v{LB}")
    k(f"{lns}:")
    k("s_barrier")
    k("s_mul_i32 s25, s20, 5120")
    k(f"v_add_u32 v{T0}, s25, v{vL16}")
    k(f"v_lshlrev_b32 v{T0+1}, 2, v1"); k(f"v_add_u32 v{T0+1}, s25, v{T0+1}")
    for i in range(4): k(f"ds_write_b128 v{T0}, v[{OB+4*i}:{OB+4*i+3}] offset:{1024*i}")
    k(f"ds_write_b32 v{T0+1}, v{LB} offset:4096")
    k("s_xor_b32 s26, s20, 4"); k("s_mul_i32 s25, s26, 5120")
    k(f"v_add_u32 v{T0}, s25, v{vL16}")
    k(f"v_lshlrev_b32 v{T0+1}, 2, v1"); k(f"v_add_u32 v{T0+1}, s25, v{T0+1}")
    k("s_waitcnt lgkmcnt(0)")
    k("s_barrier")
    for i in range(4): k(f"ds_read_b128 v[{OB+4*i}:{OB+4*i+3}], v{T0} offset:{1024*i}")
    k(f"ds_read_b32 v{LB}, v{T0+1} offset:4096")
    k("s_waitcnt lgkmcnt(0)")
    k(f"v_add_f32 v{LA}, v{LA}, v{LB}")
    for r in range(16): k(f"v_add_f32 v{OA+r}, v{OA+r}, v{OB+r}")
    k("s_cmp_lg_u32 s46, 0")
    k(f"s_cbranch_scc1 {lfin}")
    k(f"v_mov_b32 v{T0+2}, v{LA}")
    for r in range(16): k(f"v_fma_f32 v{T0+2}, v{OA+r}, 0, v{T0+2}")
    k(f"v_mov_b32 v{T0+3}, 0x71800000")
    k(f"v_cmp_le_f32 vcc, 1.0, v{T0+2}")
    k(f"v_cmp_le_f32 s[48:49], v{T0+2}, v{T0+3}")
    k("s_and_b64 vcc, vcc, s[48:49]")
    k("s_cmp_eq_u64 vcc, -1")
    k("s_cselect_b32 s47, 0, 1")
    k(f"v_mov_b32 v{T0+2}, s47")
    k(f"s_lshl_b32 s25, s20, 2"); k(f"v_mov_b32 v{T0+3}, s25")
    k(f"ds_write_b32 v{T0+3}, v{T0+2} offset:45056")
    k("s_waitcnt lgkmcnt(0)")
    k("s_barrier")
    k(f"v_mov_b32 v{T0+3}, 0")
    k(f"ds_read_b128 v[{T0+4}:{T0+7}], v{T0+3} offset:45056")
    k(f"ds_read_b128 v[{T0+8}:{T0+11}], v{T0+3} offset:45072")
    k("s_waitcnt lgkmcnt(0)")
    k(f"v_or3_b32 v{T0+4}, v{T0+4}, v{T0+5}, v{T0+6}")
    k(f"v_or3_b32 v{T0+8}, v{T0+8}, v{T0+9}, v{T0+10}")
    k(f"v_or3_b32 v{T0+4}, v{T0+4}, v{T0+7}, v{T0+11}")
    k(f"v_or_b32 v{T0+4}, v{T0+4}, v{T0+8}")
    k(f"v_readfirstlane_b32 s47, v{T0+4}")
    k("s_cmp_lg_u32 s47, 0")
    k(f"s_cbranch_scc1 {lfb}")
    k(f"{lfin}:")
    k(f"v_rcp_f32 v{LA}, v{LA}")
    for g in range(4):
        for r in range(4): k(f"v_mul_f32 v{OA+4*g+r}, v{OA+4*g+r}, v{LA}")
        k(f"v_cvt_pk_bf16_f32 v{SA+2*g}, v{OA+4*g}, v{OA+4*g+1}")
        k(f"v_cvt_pk_bf16_f32 v{SA+2*g+1}, v{OA+4*g+2}, v{OA+4*g+3}")
    k("s_lshl_b32 s25, s24, 16"); k("s_add_u32 s45, s45, s25")
    for p in range(2):
        k(f"v_permlane32_swap_b32 v{SA+4*p}, v{SA+4*p+2}")
        k(f"v_permlane32_swap_b32 v{SA+4*p+1}, v{SA+4*p+3}")
        k(f"buffer_store_dwordx4 v[{SA+4*p}:{SA+4*p+3}], v{vL16}, s[12:15], s45 offen offset:{1024*p}{SC}")
    k(f"s_branch {lend}")
    k(f"{lfb}:")
    k("s_mov_b32 s46, 1")
    k("s_barrier")
    MA, MB = T0 + 2, T0 + 3
    k(f"v_mov_b32 v{MA}, 0xff800000"); k(f"v_mov_b32 v{MB}, 0xff800000")
    k("s_lshl_b32 s40, s24, 21"); k("s_lshl_b32 s25, s21, 11"); k("s_add_u32 s40, s40, s25"); k(f"s_add_u32 s40, s40, {WS_K}")
    k("s_mov_b32 s44, 0")
    lfl = k.lab("p2fbl")
    k(f"{lfl}:")
    for kk in range(2):
        k(f"buffer_load_dwordx4 v[{KF[0]+4*kk}:{KF[0]+4*kk+3}], v{vL16}, s[12:15], s40 offen offset:{1024*kk}{SC}")
    k("s_waitcnt vmcnt(0)")
    for (Sx, Qx) in ((SA, QA), (SB, QB)):
        k(f"v_mfma_f32_32x32x16_bf16 v[{Sx}:{Sx+15}], v[{KF[0]}:{KF[0]+3}], v[{Qx}:{Qx+3}], 0")
        k(f"v_mfma_f32_32x32x16_bf16 v[{Sx}:{Sx+15}], v[{KF[0]+4}:{KF[0]+7}], v[{Qx+4}:{Qx+7}], v[{Sx}:{Sx+15}]")
    for (Sx, Mx) in ((SA, MA), (SB, MB)):
        for r in range(0, 16, 2): k(f"v_max3_f32 v{Mx}, v{Mx}, v{Sx+r}, v{Sx+r+1}")
    k("s_add_u32 s40, s40, 65536")
    k("s_add_u32 s44, s44, 1")
    k("s_cmp_lt_u32 s44, 32")
    k(f"s_cbranch_scc1 {lfl}")
    for Mx in (MA, MB):
        k(f"v_mov_b32 v{T0+4}, v{Mx}")
        k(f"v_permlane32_swap_b32 v{Mx}, v{T0+4}")
        k(f"v_max_f32 v{Mx}, v{Mx}, v{T0+4}")
    k("s_lshl_b32 s25, s20, 9")
    k(f"v_lshlrev_b32 v{T0+4}, 3, v1"); k(f"v_add_u32 v{T0+5}, s25, v{T0+4}")
    k(f"ds_write_b64 v{T0+5}, v[{MA}:{MB}]")
    k("s_xor_b32 s26, s20, 4"); k("s_lshl_b32 s25, s26, 9")
    k(f"v_add_u32 v{T0+5}, s25, v{T0+4}")
    k("s_waitcnt lgkmcnt(0)")
    k("s_barrier")
    k(f"ds_read_b64 v[{T0+6}:{T0+7}], v{T0+5}")
    k("s_waitcnt lgkmcnt(0)")
    k(f"v_max_f32 v{MA}, v{MA}, v{T0+6}")
    k(f"v_max_f32 v{MB}, v{MB}, v{T0+7}")
    for r in range(16):
        k(f"v_sub_f32 v{NA+r}, 0, v{MA}")
        k(f"v_sub_f32 v{NB+r}, 0, v{MB}")
    k("s_barrier")
    k(f"s_branch {lmain}")
    k(f"{lend}:")
    k.stamp("p2_epi")
    k("s_lshl_b32 s27, s22, 7"); k(f"s_add_u32 s27, s27, {WS_CNT + C3*128}")
    signal(k, 27, vt=(T0, T0 + 1))
    k.stamp("p2_sig")

SLOT4 = 30720; UOFF = 7168; BOFF4 = 14336
RMOFF = 75776; XMOFF = 83968; HKOFF = 147456
vPW = 202
vW5 = [240, 241]
NPF5 = 3
NS5 = int(os.environ.get("NS5", "5")); R3 = int(os.environ.get("R3", "4")); R5 = int(os.environ.get("R5", "6"))
def w4_piece_lane(k, vdst, vidx, t):
    k(f"v_mul_u32_u24 v{t}, 4682, v{vidx}"); k(f"v_lshrrev_b32 v{t}, 16, v{t}")
    k(f"v_mul_u32_u24 v{t+1}, 14, v{t}"); k(f"v_sub_u32 v{t+1}, v{vidx}, v{t+1}")
    k(f"v_and_b32 v{t+2}, 0x33, v{t}")
    k(f"v_bfe_u32 v{vidx}, v{t}, 2, 1"); k(f"v_lshl_add_u32 v{t+2}, v{vidx}, 3, v{t+2}")
    k(f"v_bfe_u32 v{vidx}, v{t}, 3, 1"); k(f"v_lshl_add_u32 v{t+2}, v{vidx}, 2, v{t+2}")
    k(f"v_mul_u32_u24 v{t+2}, 7168, v{t+2}")
    k(f"v_lshl_add_u32 v{vdst}, v{t+1}, 4, v{t+2}")
def coords4(k, stb, scb, st):
    k("s_and_b32 s21, s2, 7"); k("s_lshr_b32 s22, s2, 3")
    k(f"s_and_b32 s{stb}, s21, 1"); k(f"s_lshl_b32 s{stb}, s{stb}, 2"); k(f"s_and_b32 s{st}, s22, 3"); k(f"s_add_u32 s{stb}, s{stb}, s{st}")
    k(f"s_lshr_b32 s{scb}, s21, 1"); k(f"s_lshl_b32 s{scb}, s{scb}, 3"); k(f"s_lshr_b32 s{st}, s22, 2"); k(f"s_add_u32 s{scb}, s{scb}, s{st}")
def pf4_setup(k, t):
    coords4(k, 27, 29, 28)
    k("s_mul_i32 s40, s29, 224")
    k("s_min_u32 s27, s20, 6"); k("s_lshl_b32 s42, s27, 10"); k("s_lshl_b32 s27, s27, 6")
    k(f"v_add_u32 v{t+3}, s27, v1")
    w4_piece_lane(k, vPW, t + 3, t)
    srd(k, 52, pWG, D * DF * 2); srd(k, 56, pWU, D * DF * 2)
def pf4(tile):
    o = []
    for m in range(2):
        g = []
        if m == 0: g.append(f"s_add_u32 s41, s40, {tile*32*7168}")
        g += [f"s_add_u32 m0, s42, {tile*SLOT4 + m*UOFF}", f"buffer_load_dwordx4 v{vPW}, s[{52+4*m}:{55+4*m}], s41 offen lds"]
        o.append(g)
    return o

def phase35(k, kind):
    wo = kind == "wo"
    KD = D if wo else DF
    NT = KD // 128
    NS = 4 if wo else NS5
    R = R3 if wo else R5
    WSB = WS_O if wo else WS_HM
    T32B = KD * 64
    base = W3BASE if wo else 0
    vW = vW3 if wo else vW5
    SW = 8 if wo else 60
    vA = [2, 3, 4, 5]; vBj = [6, 7]; vR = 10; vO = 11; vT = 12; vRM = 8; vHK = 9
    RES = 16; A = [24, 40]; ACC = 56; ACM = 88; RMF = [96, 100]; BR = 104
    MX = 15
    acc = lambda i, j: ACC + (j * 4 + i) * 4
    pre = "p3" if wo else "p5"
    coords35(k, 23, 24, 25)
    k("s_and_b32 s25, s20, 3")
    k("s_lshr_b32 s26, s20, 2")
    k("s_lshl_b32 s31, s23, 2"); k("s_add_u32 s31, s31, s25"); k(f"s_mul_i32 s31, s31, {T32B}")
    k("s_lshl_b32 s28, s26, 12"); k("s_add_u32 s31, s31, s28"); k(f"s_add_u32 s31, s31, {WSB}")
    k(f"v_lshrrev_b32 v{vT}, 4, v1"); k(f"v_and_b32 v{vT+1}, 15, v1")
    k(f"v_lshlrev_b32 v{vT+2}, 4, v{vT+1}"); k(f"v_lshl_add_u32 v{vT+2}, v{vT}, 9, v{vT+2}")
    k("s_lshl_b32 s28, s26, 8")
    k(f"v_add_u32 v{vBj[0]}, s28, v{vT+2}")
    k(f"v_xor_b32 v{vBj[1]}, 256, v{vBj[0]}")
    k(f"v_and_b32 v{vT+2}, 1, v{vT}"); k(f"v_lshlrev_b32 v{vT+2}, 1, v{vT+2}"); k(f"v_lshrrev_b32 v{vT+3}, 1, v{vT}")
    k(f"v_add_u32 v{vT+2}, v{vT+2}, v{vT+3}")
    rm = vR if wo else vO
    k(f"v_lshlrev_b32 v{rm}, 11, v{vT+1}"); k(f"v_lshl_add_u32 v{rm}, v{vT+2}, 4, v{rm}")
    k("s_lshl_b32 s33, s23, 2"); k("s_add_u32 s33, s33, s25"); k("s_lshl_b32 s33, s33, 1"); k("s_add_u32 s33, s33, s26")
    k("s_lshl_b32 s35, s33, 4")
    k("s_lshl_b32 s33, s33, 15"); k("s_lshl_b32 s28, s24, 7"); k("s_add_u32 s33, s33, s28")
    if wo:
        k(f"v_lshlrev_b32 v{vO}, 9, v{vT+2}"); k(f"v_lshl_add_u32 v{vO}, v{vT+1}, 4, v{vO}")
        k("s_lshl_b32 s34, s23, 2"); k("s_add_u32 s34, s34, s25"); k("s_lshl_b32 s34, s34, 16")
        k("s_lshl_b32 s28, s24, 12"); k("s_add_u32 s34, s34, s28"); k("s_lshl_b32 s28, s26, 8"); k("s_add_u32 s34, s34, s28")
        k(f"s_add_u32 s34, s34, {WS_H}")
        k("s_lshl_b32 s28, s20, 10"); k(f"s_add_u32 s28, s28, {RMOFF}")
        k(f"v_lshl_add_u32 v{vRM}, v{vT}, 4, s28")
    k("s_lshl_b32 s28, s20, 11"); k(f"s_add_u32 s28, s28, {HKOFF}")
    k(f"v_lshl_add_u32 v{vHK}, v1, 4, s28")
    k(f"v_bfe_u32 v{vT+1}, v1, 2, 2")
    k(f"v_lshrrev_b32 v{vT+2}, 1, v{vT}"); k(f"v_and_b32 v{vT+3}, 1, v{vT}")
    k(f"v_lshlrev_b32 v{vT+2}, 4, v{vT+2}"); k(f"v_lshl_add_u32 v{vT+2}, v{vT+3}, 2, v{vT+2}")
    k(f"v_add_u32 v{vT+2}, v{vT+2}, v{vT+1}"); k(f"v_lshlrev_b32 v{vT+2}, 7, v{vT+2}")
    k(f"v_lshrrev_b32 v{vT+1}, 1, v{vT+1}"); k(f"v_lshl_add_u32 v{vT+1}, v{vT+3}, 1, v{vT+1}")
    k(f"v_and_b32 v{vT+3}, 3, v1"); k(f"v_lshl_add_u32 v{vT+2}, v{vT+3}, 3, v{vT+2}")
    k("s_lshl_b32 s28, s26, 13")
    if base: k(f"s_add_u32 s28, s28, {base}")
    k(f"v_add_u32 v{vT+2}, s28, v{vT+2}")
    for i in range(4):
        k(f"v_xor_b32 v{vT+3}, {i}, v{vT+1}")
        k(f"v_lshl_add_u32 v{vA[i]}, v{vT+3}, 5, v{vT+2}")
    hiA = NS * 16384 > 65536
    vA2 = [204, 205, 206, 207]
    if hiA:
        for i in range(4): k(f"v_add_u32 v{vA2[i]}, 65536, v{vA[i]}")
    srd(k, 16, pX if wo else pOUT, MB4)
    for r in range(ACC, ACC + (40 if wo else 32)): k(f"v_mov_b32 v{r}, 0")
    if wo:
        pf4_setup(k, vT)
        k(f"v_lshrrev_b32 v{vT}, 3, v1"); k(f"v_and_b32 v{vT+1}, 7, v1"); k(f"v_lshlrev_b32 v{vT+1}, 4, v{vT+1}")
        k(f"v_lshl_add_u32 v{vT+1}, v{vT}, 8, v{vT+1}"); k("s_lshl_b32 s28, s26, 7"); k(f"v_add_u32 v{vT+1}, s28, v{vT+1}")
        k(f"v_and_b32 v{vT+2}, 15, v1"); k(f"v_lshlrev_b32 v{vT+2}, 2, v{vT+2}")
    vm = VM()
    if not wo:
        for t in range(NPF5, NS):
            for d in w35_dma(vW, SW, t):
                for l in d: k(l)
            k(W35ADV); vm.issue(("W", t), 2)
    k("s_lshr_b32 s27, s23, 1"); k("s_lshl_b32 s27, s27, 7"); k(f"s_add_u32 s27, s27, {WS_CNT + (C3 if wo else C5)*128}")
    wait(k, 27, 32, vt=(RES, RES + 1))
    k.stamp(pre + "_wait")
    NSTEP = 2 * NT
    def bld(s):
        b = BR + (s % R) * 8
        return [f"buffer_load_dwordx4 v[{b+4*j}:{b+4*j+3}], v{vBj[j]}, s[12:15], s31 offen{SC}" for j in range(2)]
    def badv(s): return f"s_add_u32 s31, s31, {2048 if s % 2 == 0 else 6144}"
    if wo:
        k("s_lshl_b32 s28, s20, 10"); k(f"s_add_u32 m0, s28, {RMOFF}")
        k(f"s_mov_b32 s28, {WS_RM}")
        k(f"buffer_load_dwordx4 v{vT+1}, s[12:15], s28 offen{SC} lds"); vm.issue("RM")
    for s in range(R):
        for l in bld(s): k(l); vm.issue(("B", s))
        k(badv(s))
    if wo:
        for p in range(2):
            k(f"buffer_load_dwordx4 v[{RES+4*p}:{RES+4*p+3}], v{vR}, s[16:19], s33 offen offset:{64*p}"); vm.issue("res")
        k("s_lshl_b32 s28, s35, 2"); k(f"s_add_u32 s28, s28, {WS_MX}")
        k(f"buffer_load_dword v{MX}, v{vT+2}, s[12:15], s28 offen{SC}"); vm.issue("res")
    def areads(s, buf):
        t = s // 2; sl = t % NS
        va = vA if sl < 4 else vA2
        o = [f"ds_read_b64_tr_b16 v[{A[buf]+4*i+2*tt}:{A[buf]+4*i+2*tt+1}], v{va[i]} offset:{(sl & 3)*16384 + (s&1)*4096 + tt*1024}"
             for i in range(4) for tt in range(2)]
        return o
    def rmread(s, buf): return f"ds_read_b128 v[{RMF[buf]}:{RMF[buf]+3}], v{vRM} offset:{(s >> 1)*128 + (s & 1)*64}"
    for l in areads(0, 0): k(l)
    if wo:
        k(f"s_waitcnt vmcnt({vm.cnt({'RM'})})")
        k(rmread(0, 0))
    k.stamp(pre + "_go")
    texts = []
    for per in range((NT + NS - 1) // NS):
        o = []
        for s in range(per * 2 * NS, min((per + 1) * 2 * NS, NSTEP)):
            t = s // 2; cur = s & 1; nxt = cur ^ 1
            need = {("B", s)}
            if s & 1 and t + 1 < NT: need.add(("W", t + 1))
            n = vm.cnt(need)
            o.append(f"s_waitcnt vmcnt({min(n, 63)}) lgkmcnt(0)")
            rd = []; dm = []
            if s & 1:
                if t + 1 < NT:
                    o.append("s_barrier"); rd = areads(s + 1, nxt)
                if t + NS < NT: dm = w35_dma(vW, SW, t % NS)
            else:
                rd = areads(s + 1, nxt)
            if wo and s + 1 < NSTEP: rd = rd + [rmread(s + 1, nxt)]
            mf = []
            b = BR + (s % R) * 8
            for i in range(4):
                for j in range(2):
                    a = acc(i, j)
                    mf.append(f"v_mfma_f32_16x16x32_bf16 v[{a}:{a+3}], v[{A[cur]+4*i}:{A[cur]+4*i+3}], v[{b+4*j}:{b+4*j+3}], v[{a}:{a+3}]")
            if wo:
                for j in range(2):
                    a = ACM + 4 * j
                    mf.append(f"v_mfma_f32_16x16x32_bf16 v[{a}:{a+3}], v[{RMF[cur]}:{RMF[cur]+3}], v[{b+4*j}:{b+4*j+3}], v[{a}:{a+3}]")
            gaps = [[] for _ in mf]
            for q, r in enumerate(rd): gaps[min(q, len(mf) - 1)].append(r)
            if dm:
                gaps[0].append(dm[0][0]); gaps[1].append(dm[0][1]); gaps[2].append(dm[1][0]); gaps[3].append(dm[1][1]); gaps[4].append(W35ADV)
                vm.issue(("W", t + NS), 2)
            if s + R < NSTEP:
                gaps[len(mf) - 1] += bld(s + R) + [badv(s + R)]
                vm.issue(("B", s + R), 2)
            if wo and s == NSTEP - R:
                q = 0
                for tl in range(3):
                    for g in pf4(tl):
                        gaps[min(q, len(mf) - 1)] += g; q += 1
                        vm.issue("PF")
            for g, mm in enumerate(mf):
                o.append(mm); o += gaps[g]
        texts.append(o)
    periods(k, pre + "loop", texts, 36)
    k.stamp(pre + "_loop")
    if wo:
        k("s_and_b32 s27, s20, 3"); k("s_lshl_b32 s27, s27, 12"); k(f"s_mul_i32 s28, s26, {SLOT4}"); k("s_add_u32 s27, s27, s28"); k(f"s_add_u32 s27, s27, {BOFF4}")
        k(f"v_lshlrev_b32 v{vT}, 4, v1"); k(f"v_add_u32 v{vT+1}, s27, v{vT}")
        k("s_and_b32 s27, s20, 3"); k("s_lshl_b32 s27, s27, 12"); k("s_xor_b32 s28, s26, 1"); k(f"s_mul_i32 s28, s28, {SLOT4}"); k("s_add_u32 s27, s27, s28"); k(f"s_add_u32 s27, s27, {BOFF4}")
        k(f"v_add_u32 v{vT+2}, s27, v{vT}")
        k("s_lshl_b32 s27, s20, 8"); k(f"s_add_u32 s27, s27, {XMOFF}")
        k(f"v_lshl_add_u32 v{vRM}, v1, 2, s27")
        k(f"ds_write_b32 v{vRM}, v{ACM+4}")
        k(f"v_xor_b32 v{vRM}, 1024, v{vRM}")
    else:
        XCH = 98304
        k("s_lshl_b32 s27, s20, 12"); k(f"s_add_u32 s27, s27, {XCH}")
        k(f"v_lshlrev_b32 v{vT}, 4, v1"); k(f"v_add_u32 v{vT+1}, s27, v{vT}")
        k("s_lshl_b32 s27, s20, 12"); k("s_xor_b32 s27, s27, 16384"); k(f"s_add_u32 s27, s27, {XCH}"); k(f"v_add_u32 v{vT+2}, s27, v{vT}")
    for i in range(4): k(f"ds_write_b128 v{vT+1}, v[{acc(i,1)}:{acc(i,1)+3}] offset:{1024*i}")
    k("s_waitcnt lgkmcnt(0)")
    k("s_barrier")
    for i in range(4): k(f"ds_read_b128 v[{acc(i,1)}:{acc(i,1)+3}], v{vT+2} offset:{1024*i}")
    if wo:
        k(f"ds_read_b32 v{ACM+4}, v{vRM}")
        for g in pf4(3):
            for l in g: k(l)
    else:
        for p in range(2): k(f"ds_read_b128 v[{RES+4*p}:{RES+4*p+3}], v{vHK} offset:{1024*p}")
    k("s_waitcnt lgkmcnt(0)")
    def padd(d, a, b, bc=False):
        if wo:
            k(f"v_add_f32 v{d}, v{a}, v{b}"); k(f"v_add_f32 v{d+1}, v{a+1}, v{b if bc else b+1}")
        else: k(f"v_pk_add_f32 v[{d}:{d+1}], v[{a}:{a+1}], v[{b}:{b+1}]")
    for i in range(4):
        for r in range(0, 4, 2): padd(acc(i,0)+r, acc(i,0)+r, acc(i,1)+r)
    for p in range(2):
        for r in range(4): k(f"v_permlane16_swap_b32 v{acc(2*p,0)+r}, v{acc(2*p+1,0)+r}")
    U = A[0]
    k(f"v_mov_b32 v{vT+3 if not wo else vT}, 0xffff0000")
    vMask = vT + 3 if not wo else vT
    if wo:
        k("s_waitcnt vmcnt(8)")
        k(f"v_add_f32 v{ACM}, v{ACM}, v{ACM+4}")
        k(f"v_add_f32 v{ACM}, v{ACM}, v{MX}")
        k(f"v_sub_f32 v{ACM}, 0, v{ACM}")
    for p in range(2):
        for q in range(4):
            a = acc(2 * p, 0) + 2 * q
            k(f"v_lshlrev_b32 v{U+2*q}, 16, v{RES+4*p+q}")
            k(f"v_and_b32 v{U+2*q+1}, v{vMask}, v{RES+4*p+q}")
        for q in range(4):
            a = acc(2 * p, 0) + 2 * q
            padd(a, a, U+2*q)
        for q in range(4):
            a = acc(2 * p, 0) + 2 * q
            k(f"v_cvt_pk_bf16_f32 v{RES+4*p+q}, v{a}, v{a+1}")
        if wo:
            k(f"ds_write_b128 v{vHK}, v[{RES+4*p}:{RES+4*p+3}] offset:{1024*p}")
            HC = U + 8 + 4 * p
            for q in range(4):
                a = acc(2 * p, 0) + 2 * q
                padd(a, a, ACM, True)
            for q in range(4):
                a = acc(2 * p, 0) + 2 * q
                k(f"v_cvt_pk_bf16_f32 v{HC+q}, v{a}, v{a+1}")
            k(f"buffer_store_dwordx4 v[{HC}:{HC+3}], v{vO}, s[12:15], s34 offen offset:{2048*p}{SC}")
        else:
            k(f"buffer_store_dwordx4 v[{RES+4*p}:{RES+4*p+3}], v{vO}, s[16:19], s33 offen offset:{64*p}{OUTSC}")
    if wo:
        s1 = U
        a0 = acc(0, 0)
        for r in range(4): k(f"v_mul_f32 v{s1+r}, v{a0+r}, v{a0+r}")
        for r in range(4, 16): k(f"v_fma_f32 v{s1+(r&3)}, v{a0+r}, v{a0+r}, v{s1+(r&3)}")
        k(f"v_add_f32 v{s1}, v{s1}, v{s1+1}"); k(f"v_add_f32 v{s1+2}, v{s1+2}, v{s1+3}"); k(f"v_add_f32 v{s1}, v{s1}, v{s1+2}")
        for sw in ("v_permlane16_swap_b32", "v_permlane32_swap_b32"):
            k(f"v_mov_b32 v{s1+2}, v{s1}"); k(f"{sw} v{s1}, v{s1+2}"); k(f"v_add_f32 v{s1}, v{s1}, v{s1+2}")
        k(f"v_and_b32 v{vT}, 15, v1"); k(f"v_lshlrev_b32 v{vT}, 2, v{vT}")
        k("s_lshl_b32 s27, s35, 2"); k("s_lshl_b32 s28, s24, 13"); k("s_add_u32 s27, s27, s28"); k(f"s_add_u32 s27, s27, {WS_ST}")
        k("s_mov_b64 exec, 0xffff")
        k(f"buffer_store_dword v{s1}, v{vT}, s[12:15], s27 offen{SC}")
        k("s_mov_b64 exec, -1")
        k.stamp(pre + "_epi")
        k("s_lshr_b32 s27, s23, 1"); k("s_lshl_b32 s27, s27, 7"); k(f"s_add_u32 s27, s27, {WS_CNT + C4*128}")
        k("s_waitcnt lgkmcnt(0)")
        signal(k, 27, vt=(RES, RES + 1))
        k.stamp(pre + "_sig")
    else:
        k.stamp(pre + "_epi")
OUTSC = os.environ.get("OUTSC", "")

KC = 2 * math.sqrt(2 / math.pi) * math.log2(math.e)
X4 = os.environ.get("X4", "").split(",")
def phase4(k):
    NS = 4; SLOT = SLOT4; UOFF = 7168; BOFF = BOFF4; STATS = NS * SLOT
    vA = [2, 3]; vB = [4, 5]; vD = [6, 7, 8, 9, 10]; vL16 = 11; vT = 12
    A = [16, 48]; B = [80, 96]; ACC = 112; SV = 242
    acc = lambda fi, m, j: ACC + ((fi * 2 + m) * 4 + j) * 4
    w35_setup(k, vW5, 0, vT)
    srd(k, 60, pWD, DF * D * 2)
    coords4(k, 23, 24, 25)
    k("s_and_b32 s25, s20, 3")
    k("s_lshr_b32 s26, s20, 2")
    k(f"v_lshlrev_b32 v{vL16}, 4, v1")
    k(f"v_lshrrev_b32 v{vT}, 4, v1")
    k(f"v_bfe_u32 v{vT+1}, v1, 2, 2")
    k(f"v_lshrrev_b32 v{vT+2}, 1, v{vT}"); k(f"v_and_b32 v{vT+3}, 1, v{vT}")
    k(f"v_lshlrev_b32 v{vT+2}, 4, v{vT+2}"); k(f"v_lshl_add_u32 v{vT+2}, v{vT+3}, 2, v{vT+2}"); k(f"v_add_u32 v{vT+2}, v{vT+2}, v{vT+1}")
    k(f"v_mul_u32_u24 v{vT+2}, 224, v{vT+2}")
    k(f"v_and_b32 v{vT+3}, 3, v1"); k(f"v_lshl_add_u32 v{vT+2}, v{vT+3}, 3, v{vT+2}")
    k("s_lshl_b32 s27, s26, 7")
    k(f"v_add_u32 v{vA[0]}, s27, v{vT+2}"); k(f"v_add_u32 v{vA[1]}, {2*SLOT}, v{vA[0]}")
    k(f"v_and_b32 v{vT+1}, 15, v1"); k(f"v_lshlrev_b32 v{vT+1}, 4, v{vT+1}"); k(f"v_lshl_add_u32 v{vT+1}, v{vT}, 9, v{vT+1}")
    k("s_lshl_b32 s27, s25, 12"); k(f"s_add_u32 s27, s27, {BOFF}")
    k(f"v_add_u32 v{vB[0]}, s27, v{vT+1}"); k(f"v_add_u32 v{vB[1]}, {2*SLOT}, v{vB[0]}")
    k("s_lshl_b32 s31, s23, 19"); k(f"s_add_u32 s31, s31, {WS_H}")
    k("s_mul_i32 s30, s24, 224"); k(f"s_add_u32 s30, s30, {NS*32*7168}")
    for r in range(ACC, ACC + 128): k(f"v_mov_b32 v{r}, 0")
    k(f"v_and_b32 v{vT}, 1, v0"); k(f"v_lshlrev_b32 v{vT}, 16, v{vT}")
    k(f"v_lshrrev_b32 v{vT+1}, 1, v0"); k(f"v_lshl_add_u32 v{SV+8}, v{vT+1}, 2, v{vT}")
    k(f"v_lshlrev_b32 v{SV+9}, 4, v{vT+1}"); k(f"v_add_u32 v{SV+9}, {STATS}, v{SV+9}")
    k("s_lshl_b32 s37, s23, 10"); k(f"s_add_u32 s37, s37, {WS_ST}")
    k("s_bitcmp1_b32 s25, 1")
    k(f"s_cselect_b32 s4, s{pWU}, s{pWG}"); k(f"s_cselect_b32 s5, s{pWU+1}, s{pWG+1}")
    srd(k, 8, 4, D * DF * 2)
    lsb = k.lab("p4setB"); lsd = k.lab("p4setD")
    k("s_cmp_eq_u32 s26, 0")
    k(f"s_cbranch_scc0 {lsb}")
    for n in range(3):
        k("s_mul_i32 s27, s20, 3"); k(f"s_add_u32 s27, s27, {n}")
        k("s_lshr_b32 s28, s27, 1"); k("s_lshl_b32 s28, s28, 16"); k("s_and_b32 s29, s27, 1"); k("s_lshl_b32 s29, s29, 10"); k("s_add_u32 s28, s28, s29")
        k(f"v_add_u32 v{vD[n]}, s28, v{vL16}")
    k(f"s_mul_i32 s32, s20, 3072"); k(f"s_add_u32 s32, s32, {BOFF}")
    k(f"s_branch {lsd}")
    k(f"{lsb}:")
    k("s_and_b32 s27, s25, 1"); k("s_lshl_b32 s27, s27, 8")
    for q in range(4):
        k(f"v_add_u32 v{vT+3}, {64*q}, v1"); k(f"v_add_u32 v{vT+3}, s27, v{vT+3}")
        w4_piece_lane(k, vD[q], vT + 3, vT)
    k("s_add_u32 s27, s25, 12")
    k("s_lshr_b32 s28, s27, 1"); k("s_lshl_b32 s28, s28, 16"); k("s_and_b32 s29, s27, 1"); k("s_lshl_b32 s29, s29, 10"); k("s_add_u32 s28, s28, s29")
    k(f"v_add_u32 v{vD[4]}, s28, v{vL16}")
    k("s_lshl_b32 s33, s27, 10"); k(f"s_add_u32 s33, s33, {BOFF}")
    k("s_lshr_b32 s32, s25, 1"); k(f"s_mul_i32 s32, s32, {UOFF}"); k("s_and_b32 s27, s25, 1"); k("s_lshl_b32 s27, s27, 12"); k("s_add_u32 s32, s32, s27")
    k(f"{lsd}:")
    k("s_lshl_b32 s27, s23, 3"); k("s_lshl_b32 s28, s25, 1"); k("s_add_u32 s27, s27, s28"); k("s_mul_i32 s27, s27, 448")
    k("s_mul_i32 s28, s24, 14"); k("s_add_u32 s27, s27, s28"); k("s_lshl_b32 s28, s26, 3"); k("s_add_u32 s27, s27, s28")
    k("s_lshl_b32 s27, s27, 9"); k(f"s_add_u32 s34, s27, {WS_HM}"); k(f"s_add_u32 s35, s34, {448*512}")
    k("s_lshl_b32 s27, s23, 7"); k(f"s_add_u32 s27, s27, {WS_CNT + C4*128}")
    wait(k, 27, 32, vt=(vT, vT + 1))
    k.stamp("p4_wait")
    def dma_act(var, slot):
        if var == "A":
            return [[f"s_add_u32 m0, s32, {slot*SLOT + n*1024}", f"buffer_load_dwordx4 v{vD[n]}, s[12:15], s31 offen{SC} lds"] for n in range(3)]
        return [[f"s_add_u32 m0, s33, {slot*SLOT}", f"buffer_load_dwordx4 v{vD[4]}, s[12:15], s31 offen{SC} lds"]]
    def dma_w(var, slot):
        if var == "A": return []
        return [[f"s_add_u32 m0, s32, {slot*SLOT + q*1024}", f"buffer_load_dwordx4 v{vD[q]}, s[8:11], s30 offen lds"] for q in range(4 if var == "B0" else 3)]
    advA = "s_add_u32 s31, s31, 2048"; advW = f"s_add_u32 s30, s30, {32*7168}"
    def stats_calc():
        o = []
        for i in (0, 2, 4, 6): o.append(f"v_add_f32 v{SV+i}, v{SV+i}, v{SV+i+1}")
        o += [f"v_add_f32 v{SV}, v{SV}, v{SV+2}", f"v_add_f32 v{SV+4}, v{SV+4}, v{SV+6}", f"v_add_f32 v{SV}, v{SV}, v{SV+4}",
              "s_nop 1",
              f"v_add_f32_dpp v{SV}, v{SV}, v{SV} quad_perm:[1,0,3,2] row_mask:0xf bank_mask:0xf",
              f"v_mov_b32 v{SV+3}, 0x3a800000", f"v_mov_b32 v{SV+5}, 0x3727c5ac",
              f"v_fma_f32 v{SV+2}, v{SV}, v{SV+3}, v{SV+5}",
              f"v_rsq_f32 v{SV+4}, v{SV+2}",
              f"v_mov_b32 v{SV+3}, 0",
              f"v_mul_f32 v{SV+1}, {f2h(-KC)}, v{SV+4}",
              f"v_mul_f32 v{SV+5}, v{SV+4}, v{SV+4}",
              f"v_mul_f32 v{SV}, {f2h(0.044715)}, v{SV+1}",
              f"v_mul_f32 v{SV}, v{SV}, v{SV+5}",
              f"ds_write_b128 v{SV+9}, v[{SV}:{SV+3}]"]
        return o
    st_idx = {}
    def vstamp(nm):
        if nm in st_idx: k.stamp_at(st_idx[nm])
        else:
            st_idx[nm] = k.nst; k.stamp(nm)
    ljoin = k.lab("p4join")
    def body(var):
        nf = 4 if var == "A" else 3
        vm = VM()
        for s in range(NS):
            for d in dma_act(var, s):
                for l in d: k(l)
                vm.issue(("D", s))
            k(advA)
        k("s_mov_b32 s28, s37")
        for i in range(8):
            k(f"buffer_load_dword v{SV+i}, v{SV+8}, s[12:15], s28 offen{SC}"); vm.issue("ST")
            if i < 7: k("s_add_u32 s28, s28, 8192")
        def reads(buf, slot):
            base = slot >> 1; so = (slot & 1) * SLOT
            o = []
            def rA(fi, m):
                i = fi * 2 + m
                return [f"ds_read_b64_tr_b16 v[{A[buf]+4*i+2*t}:{A[buf]+4*i+2*t+1}], v{vA[base]} offset:{so + m*UOFF + t*8*224 + fi*32}" for t in range(2)]
            o += rA(0, 0)
            for j in range(4): o.append(f"ds_read_b128 v[{B[buf]+4*j}:{B[buf]+4*j+3}], v{vB[base]} offset:{so + (j>>1)*2048 + (j&1)*256}")
            for i in range(1, 2 * nf): o += rA(i >> 1, i & 1)
            return o
        k(f"s_waitcnt vmcnt({vm.cnt({('D', 0)})})")
        k("s_barrier")
        vstamp("p4_go")
        for l in reads(0, 0): k(l)
        NT = 32
        texts = []
        pf5 = {28: [0], 29: [1, 2]}
        for per in range(NT // NS):
            o = []
            for t in range(per * NS, (per + 1) * NS):
                slot = t % NS; cur = t & 1; nxt = cur ^ 1
                rd = []; dm = []; ex = []
                if t + 1 < NT:
                    need = {("D", t + 1)}
                    if t == 3: need.add("ST")
                    o.append(f"s_waitcnt vmcnt({vm.cnt(need)}) lgkmcnt(0)")
                    o.append("s_barrier")
                    rd = reads(nxt, (t + 1) % NS)
                else:
                    o.append("s_waitcnt lgkmcnt(0)")
                tail = []
                if t + NS < NT:
                    dm = dma_w(var, slot) + dma_act(var, slot)
                    vm.issue(("D", t + NS), len(dm))
                    tail = [advA, advW]
                for tl in pf5.get(t, []):
                    if tl < NS5:
                        dm += [list(x) for x in w35_dma(vW5, 60, tl)]
                        dm[-1].append(W35ADV)
                        vm.issue("PF5", 2)
                if t == 3: ex = stats_calc()
                mf = []
                for i in range(2 * nf):
                    for j in range(4):
                        a = acc(i >> 1, i & 1, j)
                        mf.append(f"v_mfma_f32_16x16x32_bf16 v[{a}:{a+3}], v[{A[cur]+4*i}:{A[cur]+4*i+3}], v[{B[cur]+4*j}:{B[cur]+4*j+3}], v[{a}:{a+3}]")
                n = len(mf)
                gaps = [[] for _ in mf]
                for q, r in enumerate(rd): gaps[q].append(r)
                if dm:
                    stp = (n - 3) // len(dm)
                    for q, d in enumerate(dm):
                        g = 1 + stp * q
                        gaps[g].append(d[0]); gaps[g + 1] += d[1:]
                    gaps[n - 1] += tail
                for q, l in enumerate(ex): gaps[min(4 + q, n - 1)].append(l)
                for g, mm in enumerate(mf):
                    o.append(mm); o += gaps[g]
            texts.append(o)
        periods(k, f"p4{var}", texts, 36)
        vstamp("p4_loop")
        ST = 16; TT = 32
        k(f"v_and_b32 v{vT}, 15, v1"); k(f"v_lshlrev_b32 v{vT}, 4, v{vT}")
        k("s_lshl_b32 s27, s25, 10"); k(f"s_add_u32 s27, s27, {STATS}"); k(f"v_add_u32 v{vT}, s27, v{vT}")
        for j in range(4): k(f"ds_read_b128 v[{ST+4*j}:{ST+4*j+3}], v{vT} offset:{256*j}")
        k("s_waitcnt vmcnt(0) lgkmcnt(0)")
        if "drain" in X4: k("s_waitcnt vmcnt(0)"); k("s_barrier")
        if "drain0" in X4: k("s_waitcnt vmcnt(0)")
        if "bar" in X4: k("s_barrier")
        if "adrain" in X4 and var == "A": k("s_waitcnt vmcnt(0)")
        if "bdrain" in X4 and var != "A": k("s_waitcnt vmcnt(0)")
        nopk = ("anopk" in X4 and var == "A") or ("bnopk" in X4 and var != "A")
        def pk(op, d, a, b, c=None, sel=None):
            if not nopk:
                x = f"v_pk_{op}_f32 v[{d}:{d+1}], v[{a}:{a+1}], v[{b}:{b+1}]"
                if c is not None: x += f", v[{c}:{c+1}] " + sel
                k(x); return
            for h in range(2):
                if c is None: k(f"v_mul_f32 v{d+h}, v{a+h}, v{b+h}")
                elif sel.startswith("op_sel:[0,0,1]"): k(f"v_fma_f32 v{d+h}, v{a+h}, v{b}, v{b+1}")
                else: k(f"v_fma_f32 v{d+h}, v{a+h}, v{b}, v{b}")
        for fi in range(nf):
            for p in range(2):
                gi = fi * 2 + p
                PK = TT + 16 + 4 * (gi & 3)
                T = TT + 8 * (gi & 1)
                prs = [(2 * p + jj, h) for jj in range(2) for h in range(2)]
                P = lambda r: f"v[{r}:{r+1}]"
                for q, (j, h) in enumerate(prs):
                    g = acc(fi, 0, j) + 2 * h
                    pk("mul", T+2*q, g, g)
                for q, (j, h) in enumerate(prs):
                    c = ST + 4 * j
                    pk("fma", T+2*q, T+2*q, c, c, "op_sel:[0,0,1] op_sel_hi:[1,0,1]")
                for q, (j, h) in enumerate(prs):
                    g = acc(fi, 0, j) + 2 * h
                    pk("mul", T+2*q, T+2*q, g)
                for q, (j, h) in enumerate(prs):
                    g = acc(fi, 0, j) + 2 * h; u = acc(fi, 1, j) + 2 * h
                    k(f"v_exp_f32 v{T+2*q}, v{T+2*q}"); k(f"v_exp_f32 v{T+2*q+1}, v{T+2*q+1}")
                    pk("mul", u, u, g)
                for q, (j, h) in enumerate(prs):
                    c = ST + 4 * j + 2
                    pk("fma", T+2*q, T+2*q, c, c, "op_sel:[0,0,0] op_sel_hi:[1,0,0]")
                for q, (j, h) in enumerate(prs):
                    k(f"v_rcp_f32 v{T+2*q}, v{T+2*q}"); k(f"v_rcp_f32 v{T+2*q+1}, v{T+2*q+1}")
                for q, (j, h) in enumerate(prs):
                    u = acc(fi, 1, j) + 2 * h
                    pk("mul", u, u, T+2*q)
                for q, (j, h) in enumerate(prs):
                    u = acc(fi, 1, j) + 2 * h
                    k(f"v_cvt_pk_bf16_f32 v{PK+q}, v{u}, v{u+1}")
                k(f"v_permlane16_swap_b32 v{PK}, v{PK+2}")
                k(f"v_permlane16_swap_b32 v{PK+1}, v{PK+3}")
                k(f"buffer_store_dwordx4 v[{PK}:{PK+3}], v{vL16}, s[12:15], s{34+p} offen offset:{1024*fi}{SC}")
        vstamp("p4_epi")
        if var != "B1": k(f"s_branch {ljoin}")
    lB = k.lab("p4B"); lB1 = k.lab("p4B1")
    k("s_cmp_eq_u32 s26, 0")
    k(f"s_cbranch_scc0 {lB}")
    body("A")
    k(f"{lB}:")
    k("s_bitcmp1_b32 s25, 0")
    k(f"s_cbranch_scc1 {lB1}")
    body("B0")
    k(f"{lB1}:")
    body("B1")
    k(f"{ljoin}:")
    k("s_lshl_b32 s27, s23, 7"); k(f"s_add_u32 s27, s27, {WS_CNT + C5*128}")
    signal(k, 27, vt=(vT, vT + 1))
    k.stamp("p4_sig")

def mk():
    k = G(NAME, nvgpr=256, accum=256, total=256)
    lend = "L_end"
    k("s_cmp_ge_u32 s2, 256")
    k(f"s_cbranch_scc1 {lend}")
    if os.environ.get("SCR"):
        k("s_and_b32 s3, s2, 7"); k("s_lshl_b32 s3, s3, 5"); k("s_lshr_b32 s2, s2, 3"); k("s_or_b32 s2, s2, s3")
    k("s_load_dwordx16 s[64:79], s[0:1], 0")
    k("s_load_dwordx4 s[80:83], s[0:1], 64")
    k("v_and_b32 v1, 63, v0")
    k("v_lshrrev_b32 v2, 6, v0")
    k("s_nop 0")
    k("v_readfirstlane_b32 s20, v2")
    k.stamp("start")
    ldone = "L_done"
    phs = [phase1, phase2, lambda k: phase35(k, "wo"), phase4, lambda k: phase35(k, "down")]
    for i, ph in enumerate(phs[:UPTO]): ph(k)
    k.stamp("end")
    k.stamp_out()
    k("s_waitcnt vmcnt(0)")
    k(f"{lend}:")
    k("s_endpgm")
    return k, ("mk", 256, 512, LDS_BYTES)

if __name__ == "__main__":
    import sys
    sys.path.insert(0, "gen")
    from build import header
    k, _ = mk()
    o = header()
    o.append(f"; @launch grid=(256,1,1) block=(512,1,1) lds={LDS_BYTES}")
    if STAMP: o.append("; stamps: " + " ".join(k.stnames))
    o.append('.amdgcn_target "amdgcn-amd-amdhsa--gfx950"')
    o.append('.text')
    o.append(k.text())
    o.append('.section .rodata,"a"')
    o.append(k.desc())
    open(sys.argv[1], "w").write("\n".join(o) + "\n")
    print("wrote", sys.argv[1], "instrs", sum(1 for l in k.lines if l.startswith("  ")))
```

```python
from asmlib import K, srd
from common import *
import os, struct, math
STAMP = bool(int(os.environ.get("STAMP", "0")))
UPTO = int(os.environ.get("UPTO", "5"))
NAME = "sequential_preLN__mha_block__glu_gated_geglu__prompt_kernel"
WS_TS = 0x2800000
SC = " sc1"
LDS_BYTES = 163840
pX, pWQKV, pWO, pBX, pWG, pWU, pWD, pOUT, pDBG, pWS = [64 + 2 * i for i in range(10)]
C2, C3, C4, C5 = 0, 16, 24, 32
SPIN_LIMIT = 0x40000
RAMP = int(os.environ.get("RAMP", "1"))
PFW = int(os.environ.get("PFW", "1")); PFI = int(os.environ.get("PFI", "0"))
def f2h(x): return hex(struct.unpack('<I', struct.pack('<f', x))[0])

class G(K):
    def __init__(s, *a, **kw):
        super().__init__(*a, **kw); s.nl = 0; s.nst = 0; s.stnames = []
    def lab(s, base):
        s.nl += 1; return f"L_{base}_{s.nl}"
    def stamp(s, nm):
        if not STAMP: return
        i = s.nst; s.nst += 1; s.stnames.append(nm)
        s("s_memrealtime s[84:85]"); s("s_memtime s[86:87]"); s("s_waitcnt lgkmcnt(0)")
        s(f"v_writelane_b32 v255, s84, {i}"); s(f"v_writelane_b32 v254, s86, {i}")
    def stamp_at(s, i):
        if not STAMP: return
        s("s_memrealtime s[84:85]"); s("s_memtime s[86:87]"); s("s_waitcnt lgkmcnt(0)")
        s(f"v_writelane_b32 v255, s84, {i}"); s(f"v_writelane_b32 v254, s86, {i}")
    def stamp_out(s):
        if not STAMP: return
        s("s_lshl_b32 s84, s2, 3"); s("s_add_u32 s84, s84, s20"); s("s_lshl_b32 s84, s84, 9")
        s(f"s_add_u32 s84, s84, {WS_TS}")
        s("v_lshlrev_b32 v253, 2, v1")
        s("buffer_store_dword v255, v253, s[12:15], s84 offen")
        s("buffer_store_dword v254, v253, s[12:15], s84 offen offset:256")
        s("s_waitcnt vmcnt(0)")

class VM:
    def __init__(s): s.q = []; s.c = []
    def issue(s, tag, n=1, certain=True): s.q += [tag] * n; s.c += [certain] * n
    def cnt(s, tags):
        last = -1
        for i, t in enumerate(s.q):
            if t in tags: last = i
        return sum(1 for c in s.c[last + 1:] if c) if last >= 0 else None

def periods(k, name, texts, cnt_sgpr):
    i = 0; n = len(texts)
    while i < n:
        j = i
        while j + 1 < n and texts[j + 1] == texts[i]: j += 1
        rep = j - i + 1
        if rep > 1:
            l = k.lab(name)
            k(f"s_mov_b32 s{cnt_sgpr}, 0")
            k(f"{l}:")
            for x in texts[i]: k(x)
            k(f"s_add_u32 s{cnt_sgpr}, s{cnt_sgpr}, 1")
            k(f"s_cmp_lt_u32 s{cnt_sgpr}, {rep}")
            k(f"s_cbranch_scc1 {l}")
        else:
            for x in texts[i]: k(x)
        i = j + 1

def signal(k, sline, vt=(14, 15)):
    k("s_waitcnt vmcnt(0)")
    k("s_barrier")
    l = k.lab("nosig")
    k("s_cmp_lg_u32 s20, 0"); k(f"s_cbranch_scc1 {l}")
    k("s_mov_b64 exec, 1")
    k(f"v_mov_b32 v{vt[0]}, 1"); k(f"v_mov_b32 v{vt[1]}, 0")
    k(f"buffer_atomic_add v{vt[0]}, v{vt[1]}, s[12:15], s{sline} offen sc1")
    k("s_mov_b64 exec, -1")
    k(f"{l}:")

def wait(k, sline, target, vt=(14, 15)):
    done = k.lab("wdone"); spin = k.lab("wspin")
    k("s_cmp_lg_u32 s20, 0"); k(f"s_cbranch_scc1 {done}")
    k(f"v_mov_b32 v{vt[1]}, 0")
    k("s_mov_b32 s28, 0")
    k(f"{spin}:")
    k(f"buffer_load_dword v{vt[0]}, v{vt[1]}, s[12:15], s{sline} offen sc1")
    k("s_add_u32 s28, s28, 1")
    k("s_waitcnt vmcnt(0)")
    k(f"v_readfirstlane_b32 s29, v{vt[0]}")
    k(f"s_cmp_eq_u32 s29, {target}"); k(f"s_cbranch_scc1 {done}")
    k(f"s_cmp_gt_u32 s28, {SPIN_LIMIT}"); k(f"s_cbranch_scc1 {done}")
    k("s_sleep 1")
    k(f"s_branch {spin}")
    k(f"{done}:")
    k("s_barrier")

def wdma_lane(k, vdst, rowbytes, t):
    k(f"v_lshrrev_b32 v{t}, 3, v1"); k(f"v_and_b32 v{t+1}, 7, v1")
    k(f"v_lshrrev_b32 v{t+2}, 2, v{t}"); k(f"v_and_b32 v{t+3}, 3, v{t}")
    k(f"v_lshl_add_u32 v{t+2}, v{t+2}, 3, v{t+3}")
    k(f"v_mul_u32_u24 v{t+2}, {rowbytes}, v{t+2}")
    k(f"v_lshrrev_b32 v{t+3}, 1, v{t+1}"); k(f"v_lshrrev_b32 v{t}, 1, v{t}")
    k(f"v_xor_b32 v{t+3}, v{t+3}, v{t}")
    k(f"v_and_b32 v{t+1}, 1, v{t+1}")
    k(f"v_lshl_add_u32 v{t+3}, v{t+3}, 1, v{t+1}")
    k(f"v_lshl_add_u32 v{vdst}, v{t+3}, 4, v{t+2}")

def phase1(k):
    NS = 4; SLOT = 40960; BOFF = 24576
    ACC = 64
    vA = [2, 3]; vW = [10, 11, 12]; vX = [13, 4]; vL16 = 5; vZ = 6; vP = 7
    A = [16, 28]; B = [40, 112]
    VB = 128; DC = 144; D1 = 156; D2 = 160; ONE = 164; PL = 168
    RMR = 192
    acc = lambda m, j: ACC + (m * 4 + j) * 4
    k("s_and_b32 s21, s2, 7"); k("s_lshr_b32 s22, s2, 3")
    k("s_and_b32 s23, s21, 1"); k("s_lshl_b32 s23, s23, 3"); k("s_and_b32 s24, s22, 7"); k("s_add_u32 s23, s23, s24")
    k("s_lshr_b32 s24, s21, 1"); k("s_lshl_b32 s24, s24, 2"); k("s_lshr_b32 s25, s22, 3"); k("s_add_u32 s24, s24, s25")
    k("s_and_b32 s25, s20, 1")
    k("s_lshr_b32 s26, s20, 1")
    wdma_lane(k, vW[0], 6144, 14)
    k(f"v_add_u32 v{vW[1]}, 2048, v{vW[0]}")
    k(f"v_add_u32 v{vW[2]}, 4096, v{vW[0]}")
    k("v_lshrrev_b32 v14, 3, v1"); k("v_and_b32 v15, 7, v1")
    k("v_lshrrev_b32 v17, 4, v1")
    k("v_xor_b32 v17, v17, v15")
    k("v_lshlrev_b32 v17, 4, v17")
    k(f"v_lshl_add_u32 v{vX[0]}, v14, 11, v17")
    k(f"v_xor_b32 v{vX[1]}, 64, v{vX[0]}")
    k(f"v_add_u32 v{vX[1]}, {16384 - 1024}, v{vX[1]}")
    k(f"v_lshlrev_b32 v{vL16}, 4, v1")
    k("s_lshr_b32 s27, s20, 2"); k("s_lshl_b32 s27, s27, 5")
    k("s_bfe_u32 s28, s20, 0x10001"); k("s_lshl_b32 s28, s28, 4"); k("s_add_u32 s27, s27, s28")
    k("s_lshl_b32 s28, s25, 2"); k("s_add_u32 s27, s27, s28")
    k("s_mul_i32 s48, s27, 6144"); k("s_lshl_b32 s28, s24, 7"); k("s_add_u32 s48, s48, s28")
    k(f"s_add_u32 s46, s48, {16*64*6144}")
    k("s_lshl_b32 s49, s23, 3"); k("s_add_u32 s49, s49, s20"); k("s_lshl_b32 s49, s49, 15")
    k("s_add_u32 s27, s23, s24"); k("s_and_b32 s27, s27, 15")
    k(f"s_mul_i32 s28, s27, {64*6144}"); k("s_add_u32 s30, s48, s28")
    k("s_lshl_b32 s28, s27, 7"); k("s_add_u32 s31, s49, s28")
    k("s_lshl_b32 s32, s20, 10")
    k("s_lshl_b32 s33, s20, 11"); k(f"s_add_u32 s33, s33, {BOFF}")
    k.stamp("p1_pre")
    k("s_waitcnt lgkmcnt(0)")
    k.stamp("p1_ka")
    srd(k, 8, pWQKV, D * 3 * D * 2)
    srd(k, 12, pWS, WS_SIZE)
    srd(k, 16, pX, MB4)
    def dma(slot):
        o = []
        for m in range(3):
            o.append([f"s_add_u32 m0, s32, {slot*SLOT + m*8192}", f"buffer_load_dwordx4 v{vW[m]}, s[8:11], s30 offen lds"])
        o.append([f"s_add_u32 m0, s33, {slot*SLOT}", f"buffer_load_dwordx4 v{vX[0]}, s[16:19], s31 offen lds"])
        o.append([f"buffer_load_dwordx4 v{vX[1]}, s[16:19], s31 offen offset:1024 lds"])
        return o
    adv = [f"s_add_u32 s30, s30, {64*6144}", "s_add_u32 s31, s31, 128", "s_cmp_eq_u32 s30, s46", "s_cselect_b32 s30, s48, s30", "s_cselect_b32 s31, s49, s31"]
    vm = VM()
    def issue_stage(st):
        for d in dma(st % NS):
            for l in d: k(l)
        for l in adv: k(l)
        vm.issue(("S", st), 5)
    NPRO = 2 if RAMP else NS
    issue_stage(0)
    if not RAMP:
        for st in range(1, NS): issue_stage(st)
    k.stamp("p1_dma")
    srd(k, 88, pWO, D * D * 2)
    k("v_lshlrev_b32 v197, 4, v0")
    k("v_mov_b32 v14, v197")
    l0 = k.lab("noinit")
    k("s_cmp_lg_u32 s2, 0"); k(f"s_cbranch_scc1 {l0}")
    for r in range(4): k(f"v_mov_b32 v{PL+r}, 0")
    k(f"s_mov_b32 s27, {WS_CNT}")
    k(f"buffer_store_dwordx4 v[{PL}:{PL+3}], v14, s[12:15], s27 offen{SC}")
    k(f"{l0}:")
    srd(k, 60, pDBG, 256)
    k("v_lshrrev_b32 v14, 4, v1")
    k("v_bfe_u32 v15, v1, 2, 2")
    k("v_lshrrev_b32 v16, 1, v14"); k("v_and_b32 v17, 1, v14")
    k("v_lshlrev_b32 v16, 4, v16"); k("v_lshl_add_u32 v16, v17, 2, v16"); k("v_add_u32 v16, v16, v15")
    k("v_lshlrev_b32 v16, 7, v16")
    k("v_lshrrev_b32 v18, 1, v15"); k("v_lshl_add_u32 v18, v17, 1, v18")
    k("v_xor_b32 v18, s26, v18")
    k("v_lshl_add_u32 v16, v18, 5, v16")
    k("v_and_b32 v18, 3, v1")
    k(f"v_lshl_add_u32 v{vA[0]}, v18, 3, v16")
    k(f"v_add_u32 v{vA[1]}, {2*SLOT}, v{vA[0]}")
    for i in range(1, 4): k(f"v_cmp_eq_u32 s[{48+2*i}:{49+2*i}], {i}, v18")
    if RAMP:
        k("s_barrier")
        issue_stage(1)
    k("v_cmp_eq_u32 s[56:57], v14, v15")
    k("v_and_b32 v15, 15, v1")
    k("v_cmp_eq_u32 s[58:59], 0, v15")
    k("v_lshrrev_b32 v16, 1, v15"); k("v_xor_b32 v16, v16, v14"); k("v_lshlrev_b32 v16, 4, v16")
    k("v_lshl_add_u32 v16, v15, 7, v16")
    k("s_cmp_eq_u32 s25, 0")
    k("s_cselect_b32 s58, s58, 0"); k("s_cselect_b32 s59, s59, 0")
    k("s_lshl_b32 s28, s25, 13"); k(f"s_add_u32 s28, s28, {BOFF}")
    for jj in range(4):
        k(f"s_xor_b32 s27, s26, {jj}"); k("s_lshl_b32 s27, s27, 11"); k("s_add_u32 s27, s27, s28")
        k(f"v_add_u32 v{VB+jj}, s27, v16")
        k(f"v_xor_b32 v{VB+4+jj}, 64, v{VB+jj}")
        k(f"v_add_u32 v{VB+8+jj}, {2*SLOT}, v{VB+jj}")
        k(f"v_add_u32 v{VB+12+jj}, {2*SLOT}, v{VB+4+jj}")
    k(f"v_mov_b32 v{vZ}, 0")
    k("v_lshlrev_b32 v8, 3, v15")
    k("s_lshl_b32 s42, s23, 3"); k("s_lshl_b32 s27, s25, 2"); k("s_add_u32 s42, s42, s27"); k("s_add_u32 s42, s42, s26")
    k("s_lshl_b32 s42, s42, 7"); k("s_lshl_b32 s27, s24, 14"); k("s_add_u32 s42, s42, s27"); k(f"s_add_u32 s42, s42, {WS_ST1}")
    k("v_lshlrev_b32 v9, 4, v14")
    k("s_lshl_b32 s43, s24, 4"); k("s_add_u32 s43, s43, s23"); k("s_mul_i32 s43, s43, 768")
    k("s_lshl_b32 s27, s26, 6"); k("s_add_u32 s43, s43, s27"); k(f"s_add_u32 s43, s43, {WS_CS1}")
    k("v_and_b32 v196, 1, v1"); k("v_lshlrev_b32 v196, 7, v196")
    for r in range(ACC, ACC + 48): k(f"v_mov_b32 v{r}, 0")
    for r in range(DC, DC + 20): k(f"v_mov_b32 v{r}, 0")
    for r in range(4): k(f"v_mov_b32 v{ONE+r}, 0x3f803f80")
    def reads(buf, slot, kb):
        o = []
        pr = slot >> 1; so = (slot & 1) * SLOT
        def rA(m):
            return [f"ds_read_b64_tr_b16 v[{A[buf]+4*m+2*t}:{A[buf]+4*m+2*t+1}], v{vA[pr]} offset:{so + m*8192 + kb*4096 + t*1024}" for t in range(2)]
        def rB(j):
            return [f"ds_read_b128 v[{B[buf]+4*j}:{B[buf]+4*j+3}], v{VB + pr*8 + kb*4 + j} offset:{so}"]
        o += rA(0)
        for j in range(4): o += rB(j)
        o += rA(1) + rA(2)
        return o
    def side(buf):
        o = []
        fb = f"v[{B[buf]}:{B[buf]+3}]"; on = f"v[{ONE}:{ONE+3}]"
        for m in range(3):
            o.append(f"v_mfma_f32_16x16x32_bf16 v[{DC+4*m}:{DC+4*m+3}], v[{A[buf]+4*m}:{A[buf]+4*m+3}], {on}, v[{DC+4*m}:{DC+4*m+3}]")
        o.append(f"v_mfma_f32_16x16x32_bf16 v[{D1}:{D1+3}], {on}, {fb}, v[{D1}:{D1+3}]")
        o.append(f"v_mfma_f32_16x16x32_bf16 v[{D2}:{D2+3}], {fb}, {fb}, v[{D2}:{D2+3}]")
        return o
    def once(lines):
        l = k.lab("once")
        k("s_cmp_lg_u32 s34, 0"); k(f"s_cbranch_scc1 {l}")
        for x in lines: k(x)
        k(f"{l}:")
    def publish():
        o = [f"v_cndmask_b32 v{D2}, v{D2}, v{D2+1}, s[50:51]", f"v_cndmask_b32 v{D2}, v{D2}, v{D2+2}, s[52:53]", f"v_cndmask_b32 v{D2}, v{D2}, v{D2+3}, s[54:55]",
             f"v_mov_b32 v{D1+1}, v{D2}",
             "s_mov_b64 exec, s[56:57]",
             f"buffer_store_dwordx2 v[{D1}:{D1+1}], v8, s[12:15], s42 offen{SC}",
             "s_mov_b64 exec, s[58:59]"]
        for m in range(3):
            o.append(f"buffer_store_dwordx4 v[{DC+4*m}:{DC+4*m+3}], v9, s[12:15], s43 offen offset:{256*m}{SC}")
        o.append("s_mov_b64 exec, -1")
        return o
    def sig1():
        l = k.lab("nosig1")
        return ["s_cmp_lg_u32 s20, 0", f"s_cbranch_scc1 {l}", "s_mov_b64 exec, 1", "v_mov_b32 v14, 1",
                "s_and_b32 s27, s2, 1", "s_lshl_b32 s27, s27, 7",
                f"buffer_atomic_add v14, v{vZ}, s[60:63], s27 offen sc1", "s_mov_b64 exec, -1", f"{l}:"]
    k.stamp("p1_set")
    k(f"s_waitcnt vmcnt({vm.cnt({('S', 0)})})")
    k.stamp("p1_w0")
    k("s_barrier")
    k.stamp("p1_go")
    for l in reads(0, 0, 0): k(l)
    NT = 16
    def sched(t, kb):
        if RAMP and t < 2: return [2, 3, 4, 5][2 * t + kb]
        if kb == 1 and t + NS < NT: return t + NS
        return None
    def step(o, t, kb, side_here=False, pre=None, post=None, extra_need=()):
        cur = kb; nxt = kb ^ 1; last = t == NT - 1
        if kb == 0:
            o.append("s_waitcnt lgkmcnt(0)")
            rd = reads(nxt, t % NS, 1)
        elif last:
            o.append("s_waitcnt lgkmcnt(0)"); rd = []
        else:
            o.append(f"s_waitcnt vmcnt({vm.cnt({('S', t + 1)} | set(extra_need))}) lgkmcnt(0)")
            o.append("s_barrier")
            rd = reads(nxt, (t + 1) % NS, 0)
        st = sched(t, kb)
        dm = dma(st % NS) if st is not None else []
        if pre: pre(o)
        if st is not None: vm.issue(("S", st), 5)
        mf = []
        for m in range(3):
            for j in range(4):
                a = acc(m, j); fa = f"v[{A[cur]+4*m}:{A[cur]+4*m+3}]"; fb = f"v[{B[cur]+4*j}:{B[cur]+4*j+3}]"
                if m == 2: fa, fb = fb, fa
                mf.append(f"v_mfma_f32_16x16x32_bf16 v[{a}:{a+3}], {fa}, {fb}, v[{a}:{a+3}]")
        gaps = [[] for _ in mf]
        for q, r in enumerate(rd): gaps[q].append(r)
        pos = [1, 3, 5, 7, 9]
        for q, d in enumerate(dm):
            if len(d) == 2:
                gaps[pos[q] - 1].append(d[0]); gaps[pos[q]].append(d[1])
            else:
                gaps[pos[q]].append(d[0])
        if dm: gaps[10] += adv
        for g, mm in enumerate(mf):
            o.append(mm); o += gaps[g]
        if side_here: o += side(cur)
        if post: post(o)
    texts = []
    for per in range(3):
        o = []
        for t in range(per * 4, per * 4 + 4):
            step(o, t, 0, side_here=(t == 0))
            if t == 1:
                o += publish(); vm.issue("PUB", 4, certain=False)
            step(o, t, 1, side_here=(t == 0), extra_need=("PUB",) if t == 3 else ())
            if t == 3: o += sig1(); vm.issue("SIG", 1, certain=False)
        texts.append(o)
    periods(k, "p1loop", texts, 34)
    def partial_loads():
        rdy = k.lab("p1rdy"); spin = k.lab("p1spin"); nocs = k.lab("p1nocs")
        k(f"v_cmp_eq_u32 vcc, 128, v{vP}")
        k("s_cmp_eq_u64 vcc, -1")
        k(f"s_cbranch_scc1 {rdy}")
        k("s_mov_b32 s28, 0")
        k(f"{spin}:")
        k("s_add_u32 s28, s28, 1")
        k(f"s_cmp_gt_u32 s28, {SPIN_LIMIT}")
        k(f"s_cbranch_scc1 {rdy}")
        k("s_sleep 2")
        k(f"buffer_load_dword v{vP}, v196, s[60:63], 0 offen sc1")
        k("s_waitcnt vmcnt(0)")
        k(f"v_cmp_eq_u32 vcc, 128, v{vP}")
        k("s_cmp_eq_u64 vcc, -1")
        k(f"s_cbranch_scc0 {spin}")
        k(f"{rdy}:")
        k("v_and_b32 v14, 3, v0"); k("v_lshlrev_b32 v14, 16, v14")
        k("v_lshrrev_b32 v15, 2, v0"); k("v_lshl_add_u32 v14, v15, 3, v14")
        k("s_lshl_b32 s27, s23, 10"); k(f"s_add_u32 s27, s27, {WS_ST1}")
        for i in range(4):
            k(f"buffer_load_dwordx2 v[{PL+2*i}:{PL+2*i+1}], v14, s[12:15], s27 offen{SC}")
            if i < 3: k("s_add_u32 s27, s27, 16384")
        k("s_cmp_ge_u32 s20, 3")
        k(f"s_cbranch_scc1 {nocs}")
        k("v_lshlrev_b32 v14, 2, v0")
        k(f"s_mul_i32 s27, s24, {16*768}"); k(f"s_add_u32 s27, s27, {WS_CS1}")
        for i in range(16):
            k(f"buffer_load_dword v{PL+8+i}, v14, s[12:15], s27 offen offset:{(i % 4) * 768}{SC}")
            if i % 4 == 3 and i < 15: k(f"s_add_u32 s27, s27, {4*768}")
        k(f"{nocs}:")
    class _O:
        def append(self, x): k(x)
        def __iadd__(self, xs):
            for x in xs: k(x)
            return self
    o = _O()
    for t in range(12, 16):
        step(o, t, 0)
        if t == 12:
            k(f"buffer_load_dword v{vP}, v196, s[60:63], 0 offen sc1"); vm.issue("VP")
            k("s_lshl_b32 s27, s2, 13")
            k(f"buffer_load_dwordx4 v[{RMR}:{RMR+3}], v197, s[88:91], s27 offen"); vm.issue("RMR")
        step(o, t, 1, pre=(lambda o: partial_loads()) if t == 14 else None, extra_need=("VP", "RMR") if t == 14 else ())
    k.stamp("p1_loop")
    k("v_mov_b32 v14, 0")
    for r in range(4): k(f"v_dot2c_f32_bf16 v14, v{RMR+r}, v{ONE}")
    for ro in (8, 4, 2, 1): k(f"v_add_f32_dpp v14, v14, v14 row_ror:{ro} row_mask:0xf bank_mask:0xf")
    for sw in ("v_permlane16_swap_b32", "v_permlane32_swap_b32"):
        k("v_mov_b32 v15, v14"); k(f"{sw} v14, v15"); k("v_add_f32 v14, v14, v15")
    k("s_lshl_b32 s27, s20, 2"); k("s_add_u32 s27, s27, 2048"); k("v_mov_b32 v15, s27")
    k("ds_write_b32 v15, v14")
    k("s_waitcnt vmcnt(0)")
    k(f"v_add_f32 v{PL}, v{PL}, v{PL+2}"); k(f"v_add_f32 v{PL+1}, v{PL+1}, v{PL+3}")
    k(f"v_add_f32 v{PL+4}, v{PL+4}, v{PL+6}"); k(f"v_add_f32 v{PL+5}, v{PL+5}, v{PL+7}")
    k(f"v_add_f32 v{PL}, v{PL}, v{PL+4}"); k(f"v_add_f32 v{PL+1}, v{PL+1}, v{PL+5}")
    for qp in ("[1,0,3,2]", "[2,3,0,1]"):
        k(f"v_add_f32_dpp v{PL}, v{PL}, v{PL} quad_perm:{qp} row_mask:0xf bank_mask:0xf")
        k(f"v_add_f32_dpp v{PL+1}, v{PL+1}, v{PL+1} quad_perm:{qp} row_mask:0xf bank_mask:0xf")
    k(f"v_mul_f32 v{PL}, 0x3a800000, v{PL}")
    k(f"v_mul_f32 v{PL+1}, 0x3a800000, v{PL+1}")
    k("v_lshrrev_b32 v16, 2, v0"); k("v_lshlrev_b32 v16, 2, v16")
    lm = k.lab("nomx")
    k("s_cmp_lg_u32 s24, 0"); k(f"s_cbranch_scc1 {lm}")
    k("s_lshl_b32 s27, s23, 9"); k(f"s_add_u32 s27, s27, {WS_MX}")
    k(f"buffer_store_dword v{PL}, v16, s[12:15], s27 offen{SC}")
    k(f"{lm}:")
    k(f"v_fma_f32 v{PL+1}, -v{PL}, v{PL}, v{PL+1}")
    k(f"v_max_f32 v{PL+1}, 0, v{PL+1}")
    k(f"v_add_f32 v{PL+1}, 0x3727c5ac, v{PL+1}")
    k(f"v_rsq_f32 v{PL+1}, v{PL+1}")
    k(f"v_mul_f32 v{PL+2}, v{PL}, v{PL+1}")
    k(f"v_sub_f32 v{PL+2}, 0, v{PL+2}")
    k(f"ds_write_b32 v16, v{PL+1}")
    k(f"ds_write_b32 v16, v{PL+2} offset:512")
    l2 = k.lab("nocs2")
    k("s_cmp_ge_u32 s20, 3")
    k(f"s_cbranch_scc1 {l2}")
    for st in (8, 4, 2, 1):
        for i in range(st): k(f"v_add_f32 v{PL+8+i}, v{PL+8+i}, v{PL+8+i+st}")
    k("v_lshlrev_b32 v16, 2, v0")
    k(f"ds_write_b32 v16, v{PL+8} offset:1024")
    k(f"{l2}:")
    k("v_and_b32 v15, 15, v1")
    k("s_lshl_b32 s27, s25, 8"); k("s_lshl_b32 s28, s26, 6"); k("s_add_u32 s28, s28, s27")
    k("v_lshlrev_b32 v16, 2, v15")
    k("v_add_u32 v17, s28, v16")
    k("v_lshrrev_b32 v14, 4, v1")
    k("v_lshlrev_b32 v19, 4, v14")
    k("v_add_u32 v20, s28, v19")
    k("s_lshl_b32 s29, s26, 6"); k("s_add_u32 s29, s29, 1024")
    k("v_add_u32 v19, s29, v19")
    k("v_add_u32 v18, s29, v16")
    for jj in range(1, 4):
        k(f"v_xor_b32 v{20+jj}, {jj<<6}, v20")
        k(f"v_xor_b32 v{23+jj}, {jj<<6}, v17")
    k("s_lshl_b32 s27, s23, 2"); k("s_lshl_b32 s28, s25, 1"); k("s_add_u32 s27, s27, s28")
    k("s_lshl_b32 s27, s27, 16")
    k("s_lshl_b32 s28, s24, 12"); k("s_add_u32 s27, s27, s28")
    k("s_lshl_b32 s28, s26, 10"); k("s_add_u32 s27, s27, s28")
    k("s_lshr_b32 s42, s26, 1")
    k("s_lshl_b32 s28, s42, 16"); k("s_add_u32 s35, s27, s28")
    k("s_xor_b32 s28, s28, 0x10000"); k("s_add_u32 s37, s27, s28")
    k(f"s_add_u32 s36, s35, {WS_K}"); k(f"s_add_u32 s38, s37, {WS_K}")
    k(f"s_add_u32 s35, s35, {WS_Q}"); k(f"s_add_u32 s37, s37, {WS_Q}")
    k("s_lshl_b32 s27, s24, 1"); k("s_add_u32 s27, s27, s42")
    k("s_lshl_b32 s27, s27, 7")
    k("s_lshl_b32 s28, s23, 3"); k("s_add_u32 s27, s27, s28")
    k("s_lshl_b32 s28, s25, 2"); k("s_add_u32 s27, s27, s28")
    k("s_lshl_b32 s27, s27, 10")
    k("s_and_b32 s43, s26, 1")
    k("s_lshl_b32 s28, s43, 8"); k("s_add_u32 s27, s27, s28")
    k(f"s_add_u32 s27, s27, {WS_VT}")
    k("s_lshl_b32 s28, s42, 11"); k("s_add_u32 s39, s27, s28")
    k("s_xor_b32 s28, s28, 2048"); k("s_add_u32 s40, s27, s28")
    k("v_lshrrev_b32 v27, 5, v1"); k("v_xor_b32 v27, s43, v27"); k("v_lshlrev_b32 v27, 10, v27")
    k("v_bfe_u32 v28, v1, 4, 1"); k("v_lshl_add_u32 v27, v28, 9, v27")
    k("v_lshl_add_u32 v14, v15, 4, v27")
    k("s_lshl_b32 s28, s43, 8")
    k(f"v_xor_b32 v{vL16}, s28, v{vL16}")
    k("s_waitcnt lgkmcnt(0)")
    k("s_barrier")
    SQ = 28; CQ = 36
    k(f"ds_read2_b32 v[{SQ}:{SQ+1}], v17 offset0:0 offset1:128")
    for jj in range(1, 4): k(f"ds_read2_b32 v[{SQ+2*jj}:{SQ+2*jj+1}], v{23+jj} offset0:0 offset1:128")
    k(f"ds_read_b128 v[{CQ}:{CQ+3}], v19")
    k(f"ds_read_b128 v[{CQ+4}:{CQ+7}], v19 offset:256")
    k("ds_read_b32 v152, v18 offset:512")
    VS = [112, 120, 128, 136]
    for jj in range(4):
        k(f"ds_read_b128 v[{VS[jj]}:{VS[jj]+3}], v{20+jj}")
        k(f"ds_read_b128 v[{VS[jj]+4}:{VS[jj]+7}], v{20+jj} offset:512")
    l7 = k.lab("norm")
    k("s_cmp_lg_u32 s20, 7"); k(f"s_cbranch_scc1 {l7}")
    k(f"ds_read_b128 v[{PL}:{PL+3}], v{vZ} offset:2048")
    k(f"ds_read_b128 v[{PL+4}:{PL+7}], v{vZ} offset:2064")
    k("s_waitcnt lgkmcnt(0)")
    for r in range(4):
        k(f"v_add_f32 v{PL+2*r}, v{PL+2*r}, v{PL+2*r+1}")
        k(f"v_mul_f32 v{PL+2*r}, 0x3a800000, v{PL+2*r}")
    k(f"v_cvt_pk_bf16_f32 v{PL+8}, v{PL}, v{PL+2}")
    k(f"v_cvt_pk_bf16_f32 v{PL+9}, v{PL+4}, v{PL+6}")
    k("s_lshl_b32 s27, s2, 3"); k(f"s_add_u32 s27, s27, {WS_RM}")
    k("s_mov_b64 exec, 1")
    k(f"buffer_store_dwordx2 v[{PL+8}:{PL+9}], v{vZ}, s[12:15], s27 offen{SC}")
    k("s_mov_b64 exec, -1")
    k(f"{l7}:")
    k("s_mov_b32 s44, 0x3e8293ee")
    k("s_waitcnt lgkmcnt(9)")
    QS = 52
    for jj in range(4):
        k(f"v_mul_f32 v{QS+2*jj}, s44, v{SQ+2*jj}")
        k(f"v_mul_f32 v{QS+2*jj+1}, s44, v{SQ+2*jj+1}")
    TP = [16, 20, 24, 44, 48, 60]
    TM = 144
    ti = 0
    for m in range(3):
        if m == 2: k("s_waitcnt lgkmcnt(0)")
        for p in range(2):
            t = TP[ti]; ti += 1
            for jj2 in range(2):
                jj = 2 * p + jj2
                a = acc(m, jj)
                for h in range(2):
                    tm = TM + 2 * ((jj2 * 2 + h) & 3)
                    if m < 2:
                        st = (QS if m == 0 else SQ) + 2 * jj
                        cs = CQ + 4 * m + 2 * h
                        k(f"v_pk_mul_f32 v[{tm}:{tm+1}], v[{cs}:{cs+1}], v[{st}:{st+1}] op_sel:[0,1] op_sel_hi:[1,1]")
                        k(f"v_pk_fma_f32 v[{a+2*h}:{a+2*h+1}], v[{a+2*h}:{a+2*h+1}], v[{st}:{st+1}], v[{tm}:{tm+1}] op_sel:[0,0,0] op_sel_hi:[1,0,1]")
                    else:
                        rs = VS[jj] + 2 * h; nm = VS[jj] + 4 + 2 * h
                        k(f"v_pk_mul_f32 v[{tm}:{tm+1}], v[{nm}:{nm+1}], v[152:153] op_sel:[0,0] op_sel_hi:[1,0]")
                        k(f"v_pk_fma_f32 v[{a+2*h}:{a+2*h+1}], v[{a+2*h}:{a+2*h+1}], v[{rs}:{rs+1}], v[{tm}:{tm+1}]")
                k(f"v_cvt_pk_bf16_f32 v{t+2*jj2}, v{a}, v{a+1}")
                k(f"v_cvt_pk_bf16_f32 v{t+2*jj2+1}, v{a+2}, v{a+3}")
            sw = "v_permlane16_swap_b32" if m < 2 else "v_permlane32_swap_b32"
            k(f"{sw} v{t}, v{t+2}")
            k(f"{sw} v{t+1}, v{t+3}")
            so = [[35, 37], [36, 38], [39, 40]][m][p]
            k(f"buffer_store_dwordx4 v[{t}:{t+3}], v{vL16 if m < 2 else 14}, s[12:15], s{so} offen{SC}")
    k.stamp("p1_epi")
    k("s_lshl_b32 s27, s24, 7"); k(f"s_add_u32 s27, s27, {WS_CNT + C2*128}")
    signal(k, 27, vt=(30, 31))
    k.stamp("p1_sig")

W3BASE = 98304
vW3 = [200, 201]
def coords35(k, stb, scb, st):
    k("s_and_b32 s21, s2, 7"); k("s_lshr_b32 s22, s2, 3")
    k(f"s_and_b32 s{stb}, s21, 3"); k(f"s_lshl_b32 s{stb}, s{stb}, 2"); k(f"s_and_b32 s{st}, s22, 3"); k(f"s_add_u32 s{stb}, s{stb}, s{st}")
    k(f"s_lshr_b32 s{scb}, s21, 2"); k(f"s_lshl_b32 s{scb}, s{scb}, 3"); k(f"s_lshr_b32 s{st}, s22, 2"); k(f"s_add_u32 s{scb}, s{scb}, s{st}")
def w35_setup(k, vW, base, t):
    coords35(k, 27, 29, 28)
    wdma_lane(k, vW[0], 2048, t)
    k(f"v_add_u32 v{vW[1]}, 8192, v{vW[0]}")
    k("s_lshr_b32 s27, s20, 1"); k("s_lshl_b32 s27, s27, 5"); k("s_and_b32 s28, s20, 1"); k("s_lshl_b32 s28, s28, 4")
    k("s_add_u32 s27, s27, s28"); k("s_lshl_b32 s50, s27, 11"); k("s_lshl_b32 s28, s29, 7"); k("s_add_u32 s50, s50, s28")
    k("s_lshl_b32 s51, s20, 11")
    if base: k(f"s_add_u32 s51, s51, {base}")
def w35_dma(vW, srdw, slot):
    return [[f"s_add_u32 m0, s51, {slot*16384}", f"buffer_load_dwordx4 v{vW[0]}, s[{srdw}:{srdw+3}], s50 offen lds"],
            [f"s_add_u32 m0, s51, {slot*16384+1024}", f"buffer_load_dwordx4 v{vW[1]}, s[{srdw}:{srdw+3}], s50 offen lds"]]
W35ADV = f"s_add_u32 s50, s50, {128*2048}"

def phase2(k):
    STG = 32768
    vL16, vCur, vNxt, vTmp = 2, 3, 4, 5
    QA, QB = 8, 16
    KF = [24, 32]; VF = [40, 48]
    SA, SB = 56, 72
    PA, PB = 88, 96
    OA, OB = 104, 120
    LA, LB = 136, 140
    NA, NB = 144, 160
    ONE = 176
    T0 = 180
    w35_setup(k, vW3, W3BASE, 180)
    srd(k, 8, pWO, D * D * 2)
    k("s_and_b32 s21, s2, 7"); k("s_lshl_b32 s21, s21, 2"); k("s_lshr_b32 s22, s2, 6"); k("s_add_u32 s21, s21, s22")
    k("s_bfe_u32 s22, s2, 0x30003")
    k("s_and_b32 s23, s20, 3")
    k("s_lshr_b32 s24, s20, 2")
    k(f"v_lshlrev_b32 v{vL16}, 4, v1")
    k("s_lshl_b32 s30, s24, 5"); k("s_add_u32 s30, s30, s23"); k("s_lshl_b32 s30, s30, 16")
    k("s_lshl_b32 s25, s21, 11"); k("s_add_u32 s30, s30, s25"); k(f"s_add_u32 s30, s30, {WS_K}")
    k("s_lshl_b32 s31, s21, 7"); k("s_lshl_b32 s25, s24, 6"); k("s_add_u32 s31, s31, s25")
    k("s_lshl_b32 s25, s23, 1"); k("s_add_u32 s31, s31, s25"); k("s_lshl_b32 s31, s31, 10"); k(f"s_add_u32 s31, s31, {WS_VT}")
    k("s_lshl_b32 s32, s24, 14"); k("s_lshl_b32 s25, s23, 11"); k("s_add_u32 s32, s32, s25")
    k("s_lshl_b32 s33, s22, 3"); k("s_lshl_b32 s25, s23, 1"); k("s_add_u32 s33, s33, s25"); k("s_lshl_b32 s33, s33, 16")
    k("s_lshl_b32 s25, s21, 11"); k("s_add_u32 s33, s33, s25")
    k(f"s_add_u32 s45, s33, {WS_O}")
    k(f"s_add_u32 s33, s33, {WS_Q}")
    k("s_add_u32 s34, s33, 65536")
    k(f"v_lshrrev_b32 v{vTmp}, 2, v1"); k(f"v_lshrrev_b32 v{T0}, 4, v1"); k(f"v_xor_b32 v{vTmp}, v{vTmp}, v{T0}")
    k(f"v_and_b32 v{vTmp}, 1, v{vTmp}"); k(f"v_cmp_eq_u32 vcc, 0, v{vTmp}")
    k(f"v_mov_b32 v{T0}, 0x3f803f80")
    k(f"v_cndmask_b32 v{ONE}, 0, v{T0}, vcc")
    for r in range(1, 4): k(f"v_mov_b32 v{ONE+r}, v{ONE}")
    for r in range(32): k(f"v_mov_b32 v{NA+r}, 0")
    k("s_mov_b32 s46, 0")
    k("s_lshl_b32 s25, s24, 14")
    k(f"v_add_u32 v{vTmp}, s25, v{vL16}")
    if PFW:
        k("s_lshl_b32 s25, s2, 3"); k("s_add_u32 s25, s25, s20")
        k("s_mul_i32 s26, s25, 3584")
        k(f"v_lshlrev_b32 v198, 6, v1"); k("v_add_u32 v198, s26, v198")
        srd(k, 88, pWO, D * D * 2)
        k(f"s_mov_b64 s[92:93], s[{pWG}:{pWG+1}]"); k(f"s_mov_b64 s[94:95], s[{pWU}:{pWU+1}]"); k(f"s_mov_b64 s[96:97], s[{pWD}:{pWD+1}]")
    k("s_lshr_b32 s27, s21, 1"); k("s_lshl_b32 s27, s27, 7"); k(f"s_add_u32 s27, s27, {WS_CNT + C2*128}")
    wait(k, 27, 16, vt=(T0, T0 + 1))
    k.stamp("p2_wait")
    for kk in range(2):
        k(f"buffer_load_dwordx4 v[{QA+4*kk}:{QA+4*kk+3}], v{vL16}, s[12:15], s33 offen offset:{1024*kk}{SC}")
        k(f"buffer_load_dwordx4 v[{QB+4*kk}:{QB+4*kk+3}], v{vL16}, s[12:15], s34 offen offset:{1024*kk}{SC}")
    def dma_stage():
        k("s_add_u32 m0, s42, s32")
        k(f"buffer_load_dwordx4 v{vL16}, s[12:15], s40 offen{SC} lds")
        k(f"buffer_load_dwordx4 v{vL16}, s[12:15], s40 offen offset:1024{SC} lds")
        k("s_add_u32 m0, m0, 8192")
        k(f"buffer_load_dwordx4 v{vL16}, s[12:15], s41 offen{SC} lds")
        k(f"buffer_load_dwordx4 v{vL16}, s[12:15], s41 offen offset:1024{SC} lds")
        k(f"s_add_u32 s40, s40, {4*65536}")
        k("s_add_u32 s41, s41, 8192")
    lmain = k.lab("p2main"); lloop = k.lab("p2loop"); lfin = k.lab("p2fin"); lfb = k.lab("p2fb"); lend = k.lab("p2end")
    k(f"{lmain}:")
    k("s_mov_b32 s40, s30"); k("s_mov_b32 s41, s31")
    k("s_mov_b32 s42, 0"); dma_stage()
    k(f"s_mov_b32 s42, {STG}"); dma_stage()
    k(f"s_mov_b32 s42, {2*STG}")
    k(f"v_mov_b32 v{vCur}, v{vTmp}")
    k(f"v_add_u32 v{vNxt}, {STG}, v{vTmp}")
    k(f"s_mov_b32 s43, {STG}")
    for r in range(16): k(f"v_mov_b32 v{OA+r}, 0"); k(f"v_mov_b32 v{OB+r}, 0")
    for r in range(4): k(f"v_mov_b32 v{LA+r}, 0"); k(f"v_mov_b32 v{LB+r}, 0")
    for r in range(8): k(f"v_mov_b32 v{PB+r}, 0"); k(f"v_mov_b32 v{VF[1]+r}, 0")
    lnp = k.lab("p2nopf"); lj = k.lab("p2pfj")
    k("s_cmp_lg_u32 s46, 0"); k(f"s_cbranch_scc1 {lnp}")
    for t in range(4):
        for d in w35_dma(vW3, 8, t):
            for l in d: k(l)
        k(W35ADV)
    k("s_waitcnt vmcnt(12)")
    k(f"s_branch {lj}")
    k(f"{lnp}:")
    k("s_waitcnt vmcnt(4)")
    k(f"{lj}:")
    k("s_barrier")
    k.stamp("p2_go")
    for kk in range(2):
        k(f"ds_read_b128 v[{KF[0]+4*kk}:{KF[0]+4*kk+3}], v{vCur} offset:{1024*kk}")
    k("s_waitcnt lgkmcnt(0)")
    def qk(Sx, Qx, Nx, kf):
        return [f"v_mfma_f32_32x32x16_bf16 v[{Sx}:{Sx+15}], v[{kf}:{kf+3}], v[{Qx}:{Qx+3}], v[{Nx}:{Nx+15}]",
                f"v_mfma_f32_32x32x16_bf16 v[{Sx}:{Sx+15}], v[{kf+4}:{kf+7}], v[{Qx+4}:{Qx+7}], v[{Sx}:{Sx+15}]"]
    def pv(Ox, Px, Lx, vf):
        return [f"v_mfma_f32_32x32x16_bf16 v[{Ox}:{Ox+15}], v[{vf}:{vf+3}], v[{Px}:{Px+3}], v[{Ox}:{Ox+15}]",
                f"v_mfma_f32_32x32x16_bf16 v[{Ox}:{Ox+15}], v[{vf+4}:{vf+7}], v[{Px+4}:{Px+7}], v[{Ox}:{Ox+15}]",
                f"v_mfma_f32_16x16x32_bf16 v[{Lx}:{Lx+3}], v[{ONE}:{ONE+3}], v[{Px}:{Px+3}], v[{Lx}:{Lx+3}]",
                f"v_mfma_f32_16x16x32_bf16 v[{Lx}:{Lx+3}], v[{ONE}:{ONE+3}], v[{Px+4}:{Px+7}], v[{Lx}:{Lx+3}]"]
    def expv(Sx, Px):
        o = []
        for g in range(4):
            o += [f"v_exp_f32 v{Sx+4*g+r}, v{Sx+4*g+r}" for r in range(4)]
            o += [f"v_cvt_pk_bf16_f32 v{Px+2*g}, v{Sx+4*g}, v{Sx+4*g+1}", f"v_cvt_pk_bf16_f32 v{Px+2*g+1}, v{Sx+4*g+2}, v{Sx+4*g+3}"]
        return o
    def phase(mf, va, extra):
        for i in range(6):
            k(mf[i])
            for (p, l) in extra:
                if p == i: k(l)
            for l in va[4*i:4*i+4]: k(l)
    for l in qk(SA, QA, NA, KF[0]): k(l)
    k("s_mov_b32 s44, 0")
    k(f"{lloop}:")
    for i in range(4):
        cb = i & 1; nb = cb ^ 1
        ex = []
        if i == 3:
            lnd = k.lab("nodma")
            k(f"s_waitcnt vmcnt({1 if PFW and PFI < 3 else 0})")
            k("s_barrier")
            k("s_cmp_ge_u32 s44, 6")
            k(f"s_cbranch_scc1 {lnd}")
            dma_stage()
            k(f"s_add_u32 s42, s42, {STG}")
            k(f"s_cmp_eq_u32 s42, {3*STG}")
            k("s_cselect_b32 s42, 0, s42")
            k(f"{lnd}:")
        if i == PFI and PFW:
            ex += [(4, "buffer_load_dword v199, v198, s[88:91], 0 offen"),
                   (5, "s_mov_b64 s[88:89], s[92:93]"), (5, "s_mov_b64 s[92:93], s[94:95]"), (5, "s_mov_b64 s[94:95], s[96:97]"),
                   (5, "s_cmp_lt_u32 s44, 3"), (5, f"s_cselect_b32 s90, {hex(D*DF*2)}, 0")]
        for kk in range(2):
            if i < 3: ex.append((kk, f"ds_read_b128 v[{KF[nb]+4*kk}:{KF[nb]+4*kk+3}], v{vCur} offset:{(i+1)*2048 + 1024*kk}"))
            else:     ex.append((kk, f"ds_read_b128 v[{KF[nb]+4*kk}:{KF[nb]+4*kk+3}], v{vNxt} offset:{1024*kk}"))
        for mm in range(2):
            ex.append((2 + mm, f"ds_read_b128 v[{VF[cb]+4*mm}:{VF[cb]+4*mm+3}], v{vCur} offset:{8192 + i*2048 + 1024*mm}"))
        phase(qk(SB, QB, NB, KF[cb]) + pv(OB, PB, LB, VF[nb]), expv(SA, PA), ex)
        k("s_waitcnt lgkmcnt(0)")
        ex = []
        if i == 3:
            ex = [(0, f"v_mov_b32 v{vCur}, v{vNxt}"), (1, f"s_add_u32 s43, s43, {STG}"), (1, f"s_cmp_eq_u32 s43, {3*STG}"),
                  (2, "s_cselect_b32 s43, 0, s43"), (3, f"v_add_u32 v{vNxt}, s43, v{vTmp}")]
        phase(qk(SA, QA, NA, KF[nb]) + pv(OA, PA, LA, VF[cb]), expv(SB, PB), ex)
    k("s_add_u32 s44, s44, 1")
    k("s_cmp_lt_u32 s44, 8")
    k(f"s_cbranch_scc1 {lloop}")
    for l in pv(OB, PB, LB, VF[1]): k(l)
    k.stamp("p2_loop")
    k("s_nop 7"); k("s_nop 3")
    lns = k.lab("nosw")
    k("s_cmp_eq_u32 s24, 0")
    k(f"s_cbranch_scc1 {lns}")
    for r in range(16): k(f"v_swap_b32 v{OA+r}, v{OB+r}")
    k(f"v_swap_b32 v{LA}, v{LB}")
    k(f"{lns}:")
    k("s_barrier")
    k("s_mul_i32 s25, s20, 5120")
    k(f"v_add_u32 v{T0}, s25, v{vL16}")
    k(f"v_lshlrev_b32 v{T0+1}, 2, v1"); k(f"v_add_u32 v{T0+1}, s25, v{T0+1}")
    for i in range(4): k(f"ds_write_b128 v{T0}, v[{OB+4*i}:{OB+4*i+3}] offset:{1024*i}")
    k(f"ds_write_b32 v{T0+1}, v{LB} offset:4096")
    k("s_xor_b32 s26, s20, 4"); k("s_mul_i32 s25, s26, 5120")
    k(f"v_add_u32 v{T0}, s25, v{vL16}")
    k(f"v_lshlrev_b32 v{T0+1}, 2, v1"); k(f"v_add_u32 v{T0+1}, s25, v{T0+1}")
    k("s_waitcnt lgkmcnt(0)")
    k("s_barrier")
    for i in range(4): k(f"ds_read_b128 v[{OB+4*i}:{OB+4*i+3}], v{T0} offset:{1024*i}")
    k(f"ds_read_b32 v{LB}, v{T0+1} offset:4096")
    k("s_waitcnt lgkmcnt(0)")
    k(f"v_add_f32 v{LA}, v{LA}, v{LB}")
    for r in range(16): k(f"v_add_f32 v{OA+r}, v{OA+r}, v{OB+r}")
    k("s_cmp_lg_u32 s46, 0")
    k(f"s_cbranch_scc1 {lfin}")
    k(f"v_mov_b32 v{T0+2}, v{LA}")
    for r in range(16): k(f"v_fma_f32 v{T0+2}, v{OA+r}, 0, v{T0+2}")
    k(f"v_mov_b32 v{T0+3}, 0x71800000")
    k(f"v_cmp_le_f32 vcc, 1.0, v{T0+2}")
    k(f"v_cmp_le_f32 s[48:49], v{T0+2}, v{T0+3}")
    k("s_and_b64 vcc, vcc, s[48:49]")
    k("s_cmp_eq_u64 vcc, -1")
    k("s_cselect_b32 s47, 0, 1")
    k(f"v_mov_b32 v{T0+2}, s47")
    k(f"s_lshl_b32 s25, s20, 2"); k(f"v_mov_b32 v{T0+3}, s25")
    k(f"ds_write_b32 v{T0+3}, v{T0+2} offset:45056")
    k("s_waitcnt lgkmcnt(0)")
    k("s_barrier")
    k(f"v_mov_b32 v{T0+3}, 0")
    k(f"ds_read_b128 v[{T0+4}:{T0+7}], v{T0+3} offset:45056")
    k(f"ds_read_b128 v[{T0+8}:{T0+11}], v{T0+3} offset:45072")
    k("s_waitcnt lgkmcnt(0)")
    k(f"v_or3_b32 v{T0+4}, v{T0+4}, v{T0+5}, v{T0+6}")
    k(f"v_or3_b32 v{T0+8}, v{T0+8}, v{T0+9}, v{T0+10}")
    k(f"v_or3_b32 v{T0+4}, v{T0+4}, v{T0+7}, v{T0+11}")
    k(f"v_or_b32 v{T0+4}, v{T0+4}, v{T0+8}")
    k(f"v_readfirstlane_b32 s47, v{T0+4}")
    k("s_cmp_lg_u32 s47, 0")
    k(f"s_cbranch_scc1 {lfb}")
    k(f"{lfin}:")
    k(f"v_rcp_f32 v{LA}, v{LA}")
    for g in range(4):
        for r in range(4): k(f"v_mul_f32 v{OA+4*g+r}, v{OA+4*g+r}, v{LA}")
        k(f"v_cvt_pk_bf16_f32 v{SA+2*g}, v{OA+4*g}, v{OA+4*g+1}")
        k(f"v_cvt_pk_bf16_f32 v{SA+2*g+1}, v{OA+4*g+2}, v{OA+4*g+3}")
    k("s_lshl_b32 s25, s24, 16"); k("s_add_u32 s45, s45, s25")
    for p in range(2):
        k(f"v_permlane32_swap_b32 v{SA+4*p}, v{SA+4*p+2}")
        k(f"v_permlane32_swap_b32 v{SA+4*p+1}, v{SA+4*p+3}")
        k(f"buffer_store_dwordx4 v[{SA+4*p}:{SA+4*p+3}], v{vL16}, s[12:15], s45 offen offset:{1024*p}{SC}")
    k(f"s_branch {lend}")
    k(f"{lfb}:")
    k("s_mov_b32 s46, 1")
    k("s_barrier")
    MA, MB = T0 + 2, T0 + 3
    k(f"v_mov_b32 v{MA}, 0xff800000"); k(f"v_mov_b32 v{MB}, 0xff800000")
    k("s_lshl_b32 s40, s24, 21"); k("s_lshl_b32 s25, s21, 11"); k("s_add_u32 s40, s40, s25"); k(f"s_add_u32 s40, s40, {WS_K}")
    k("s_mov_b32 s44, 0")
    lfl = k.lab("p2fbl")
    k(f"{lfl}:")
    for kk in range(2):
        k(f"buffer_load_dwordx4 v[{KF[0]+4*kk}:{KF[0]+4*kk+3}], v{vL16}, s[12:15], s40 offen offset:{1024*kk}{SC}")
    k("s_waitcnt vmcnt(0)")
    for (Sx, Qx) in ((SA, QA), (SB, QB)):
        k(f"v_mfma_f32_32x32x16_bf16 v[{Sx}:{Sx+15}], v[{KF[0]}:{KF[0]+3}], v[{Qx}:{Qx+3}], 0")
        k(f"v_mfma_f32_32x32x16_bf16 v[{Sx}:{Sx+15}], v[{KF[0]+4}:{KF[0]+7}], v[{Qx+4}:{Qx+7}], v[{Sx}:{Sx+15}]")
    for (Sx, Mx) in ((SA, MA), (SB, MB)):
        for r in range(0, 16, 2): k(f"v_max3_f32 v{Mx}, v{Mx}, v{Sx+r}, v{Sx+r+1}")
    k("s_add_u32 s40, s40, 65536")
    k("s_add_u32 s44, s44, 1")
    k("s_cmp_lt_u32 s44, 32")
    k(f"s_cbranch_scc1 {lfl}")
    for Mx in (MA, MB):
        k(f"v_mov_b32 v{T0+4}, v{Mx}")
        k(f"v_permlane32_swap_b32 v{Mx}, v{T0+4}")
        k(f"v_max_f32 v{Mx}, v{Mx}, v{T0+4}")
    k("s_lshl_b32 s25, s20, 9")
    k(f"v_lshlrev_b32 v{T0+4}, 3, v1"); k(f"v_add_u32 v{T0+5}, s25, v{T0+4}")
    k(f"ds_write_b64 v{T0+5}, v[{MA}:{MB}]")
    k("s_xor_b32 s26, s20, 4"); k("s_lshl_b32 s25, s26, 9")
    k(f"v_add_u32 v{T0+5}, s25, v{T0+4}")
    k("s_waitcnt lgkmcnt(0)")
    k("s_barrier")
    k(f"ds_read_b64 v[{T0+6}:{T0+7}], v{T0+5}")
    k("s_waitcnt lgkmcnt(0)")
    k(f"v_max_f32 v{MA}, v{MA}, v{T0+6}")
    k(f"v_max_f32 v{MB}, v{MB}, v{T0+7}")
    for r in range(16):
        k(f"v_sub_f32 v{NA+r}, 0, v{MA}")
        k(f"v_sub_f32 v{NB+r}, 0, v{MB}")
    k("s_barrier")
    k(f"s_branch {lmain}")
    k(f"{lend}:")
    k.stamp("p2_epi")
    k("s_lshl_b32 s27, s22, 7"); k(f"s_add_u32 s27, s27, {WS_CNT + C3*128}")
    signal(k, 27, vt=(T0, T0 + 1))
    k.stamp("p2_sig")

SLOT4 = 30720; UOFF = 7168; BOFF4 = 14336
RMOFF = 75776; XMOFF = 83968; HKOFF = 147456
vPW = 202
vW5 = [240, 241]
NPF5 = 3
NS5 = int(os.environ.get("NS5", "5")); R3 = int(os.environ.get("R3", "4")); R5 = int(os.environ.get("R5", "6"))
def w4_piece_lane(k, vdst, vidx, t):
    k(f"v_mul_u32_u24 v{t}, 4682, v{vidx}"); k(f"v_lshrrev_b32 v{t}, 16, v{t}")
    k(f"v_mul_u32_u24 v{t+1}, 14, v{t}"); k(f"v_sub_u32 v{t+1}, v{vidx}, v{t+1}")
    k(f"v_and_b32 v{t+2}, 0x33, v{t}")
    k(f"v_bfe_u32 v{vidx}, v{t}, 2, 1"); k(f"v_lshl_add_u32 v{t+2}, v{vidx}, 3, v{t+2}")
    k(f"v_bfe_u32 v{vidx}, v{t}, 3, 1"); k(f"v_lshl_add_u32 v{t+2}, v{vidx}, 2, v{t+2}")
    k(f"v_mul_u32_u24 v{t+2}, 7168, v{t+2}")
    k(f"v_lshl_add_u32 v{vdst}, v{t+1}, 4, v{t+2}")
def coords4(k, stb, scb, st):
    k("s_and_b32 s21, s2, 7"); k("s_lshr_b32 s22, s2, 3")
    k(f"s_and_b32 s{stb}, s21, 1"); k(f"s_lshl_b32 s{stb}, s{stb}, 2"); k(f"s_and_b32 s{st}, s22, 3"); k(f"s_add_u32 s{stb}, s{stb}, s{st}")
    k(f"s_lshr_b32 s{scb}, s21, 1"); k(f"s_lshl_b32 s{scb}, s{scb}, 3"); k(f"s_lshr_b32 s{st}, s22, 2"); k(f"s_add_u32 s{scb}, s{scb}, s{st}")
def pf4_setup(k, t):
    coords4(k, 27, 29, 28)
    k("s_mul_i32 s40, s29, 224")
    k("s_min_u32 s27, s20, 6"); k("s_lshl_b32 s42, s27, 10"); k("s_lshl_b32 s27, s27, 6")
    k(f"v_add_u32 v{t+3}, s27, v1")
    w4_piece_lane(k, vPW, t + 3, t)
    srd(k, 52, pWG, D * DF * 2); srd(k, 56, pWU, D * DF * 2)
def pf4(tile):
    o = []
    for m in range(2):
        g = []
        if m == 0: g.append(f"s_add_u32 s41, s40, {tile*32*7168}")
        g += [f"s_add_u32 m0, s42, {tile*SLOT4 + m*UOFF}", f"buffer_load_dwordx4 v{vPW}, s[{52+4*m}:{55+4*m}], s41 offen lds"]
        o.append(g)
    return o

def phase35(k, kind):
    wo = kind == "wo"
    KD = D if wo else DF
    NT = KD // 128
    NS = 4 if wo else NS5
    R = R3 if wo else R5
    WSB = WS_O if wo else WS_HM
    T32B = KD * 64
    base = W3BASE if wo else 0
    vW = vW3 if wo else vW5
    SW = 8 if wo else 60
    vA = [2, 3, 4, 5]; vBj = [6, 7]; vR = 10; vO = 11; vT = 12; vRM = 8; vHK = 9
    RES = 16; A = [24, 40]; ACC = 56; ACM = 88; RMF = [96, 100]; BR = 104
    MX = 15
    acc = lambda i, j: ACC + (j * 4 + i) * 4
    pre = "p3" if wo else "p5"
    coords35(k, 23, 24, 25)
    k("s_and_b32 s25, s20, 3")
    k("s_lshr_b32 s26, s20, 2")
    k("s_lshl_b32 s31, s23, 2"); k("s_add_u32 s31, s31, s25"); k(f"s_mul_i32 s31, s31, {T32B}")
    k("s_lshl_b32 s28, s26, 12"); k("s_add_u32 s31, s31, s28"); k(f"s_add_u32 s31, s31, {WSB}")
    k(f"v_lshrrev_b32 v{vT}, 4, v1"); k(f"v_and_b32 v{vT+1}, 15, v1")
    k(f"v_lshlrev_b32 v{vT+2}, 4, v{vT+1}"); k(f"v_lshl_add_u32 v{vT+2}, v{vT}, 9, v{vT+2}")
    k("s_lshl_b32 s28, s26, 8")
    k(f"v_add_u32 v{vBj[0]}, s28, v{vT+2}")
    k(f"v_xor_b32 v{vBj[1]}, 256, v{vBj[0]}")
    k(f"v_and_b32 v{vT+2}, 1, v{vT}"); k(f"v_lshlrev_b32 v{vT+2}, 1, v{vT+2}"); k(f"v_lshrrev_b32 v{vT+3}, 1, v{vT}")
    k(f"v_add_u32 v{vT+2}, v{vT+2}, v{vT+3}")
    rm = vR if wo else vO
    k(f"v_lshlrev_b32 v{rm}, 11, v{vT+1}"); k(f"v_lshl_add_u32 v{rm}, v{vT+2}, 4, v{rm}")
    k("s_lshl_b32 s33, s23, 2"); k("s_add_u32 s33, s33, s25"); k("s_lshl_b32 s33, s33, 1"); k("s_add_u32 s33, s33, s26")
    k("s_lshl_b32 s35, s33, 4")
    k("s_lshl_b32 s33, s33, 15"); k("s_lshl_b32 s28, s24, 7"); k("s_add_u32 s33, s33, s28")
    if wo:
        k(f"v_lshlrev_b32 v{vO}, 9, v{vT+2}"); k(f"v_lshl_add_u32 v{vO}, v{vT+1}, 4, v{vO}")
        k("s_lshl_b32 s34, s23, 2"); k("s_add_u32 s34, s34, s25"); k("s_lshl_b32 s34, s34, 16")
        k("s_lshl_b32 s28, s24, 12"); k("s_add_u32 s34, s34, s28"); k("s_lshl_b32 s28, s26, 8"); k("s_add_u32 s34, s34, s28")
        k(f"s_add_u32 s34, s34, {WS_H}")
        k("s_lshl_b32 s28, s20, 10"); k(f"s_add_u32 s28, s28, {RMOFF}")
        k(f"v_lshl_add_u32 v{vRM}, v{vT}, 4, s28")
    k("s_lshl_b32 s28, s20, 11"); k(f"s_add_u32 s28, s28, {HKOFF}")
    k(f"v_lshl_add_u32 v{vHK}, v1, 4, s28")
    k(f"v_bfe_u32 v{vT+1}, v1, 2, 2")
    k(f"v_lshrrev_b32 v{vT+2}, 1, v{vT}"); k(f"v_and_b32 v{vT+3}, 1, v{vT}")
    k(f"v_lshlrev_b32 v{vT+2}, 4, v{vT+2}"); k(f"v_lshl_add_u32 v{vT+2}, v{vT+3}, 2, v{vT+2}")
    k(f"v_add_u32 v{vT+2}, v{vT+2}, v{vT+1}"); k(f"v_lshlrev_b32 v{vT+2}, 7, v{vT+2}")
    k(f"v_lshrrev_b32 v{vT+1}, 1, v{vT+1}"); k(f"v_lshl_add_u32 v{vT+1}, v{vT+3}, 1, v{vT+1}")
    k(f"v_and_b32 v{vT+3}, 3, v1"); k(f"v_lshl_add_u32 v{vT+2}, v{vT+3}, 3, v{vT+2}")
    k("s_lshl_b32 s28, s26, 13")
    if base: k(f"s_add_u32 s28, s28, {base}")
    k(f"v_add_u32 v{vT+2}, s28, v{vT+2}")
    for i in range(4):
        k(f"v_xor_b32 v{vT+3}, {i}, v{vT+1}")
        k(f"v_lshl_add_u32 v{vA[i]}, v{vT+3}, 5, v{vT+2}")
    hiA = NS * 16384 > 65536
    vA2 = [204, 205, 206, 207]
    if hiA:
        for i in range(4): k(f"v_add_u32 v{vA2[i]}, 65536, v{vA[i]}")
    srd(k, 16, pX if wo else pOUT, MB4)
    for r in range(ACC, ACC + (40 if wo else 32)): k(f"v_mov_b32 v{r}, 0")
    if wo:
        pf4_setup(k, vT)
        k(f"v_lshrrev_b32 v{vT}, 3, v1"); k(f"v_and_b32 v{vT+1}, 7, v1"); k(f"v_lshlrev_b32 v{vT+1}, 4, v{vT+1}")
        k(f"v_lshl_add_u32 v{vT+1}, v{vT}, 8, v{vT+1}"); k("s_lshl_b32 s28, s26, 7"); k(f"v_add_u32 v{vT+1}, s28, v{vT+1}")
        k(f"v_and_b32 v{vT+2}, 15, v1"); k(f"v_lshlrev_b32 v{vT+2}, 2, v{vT+2}")
    vm = VM()
    if not wo:
        for t in range(NPF5, NS):
            for d in w35_dma(vW, SW, t):
                for l in d: k(l)
            k(W35ADV); vm.issue(("W", t), 2)
    k("s_lshr_b32 s27, s23, 1"); k("s_lshl_b32 s27, s27, 7"); k(f"s_add_u32 s27, s27, {WS_CNT + (C3 if wo else C5)*128}")
    wait(k, 27, 32, vt=(RES, RES + 1))
    k.stamp(pre + "_wait")
    NSTEP = 2 * NT
    def bld(s):
        b = BR + (s % R) * 8
        return [f"buffer_load_dwordx4 v[{b+4*j}:{b+4*j+3}], v{vBj[j]}, s[12:15], s31 offen{SC}" for j in range(2)]
    def badv(s): return f"s_add_u32 s31, s31, {2048 if s % 2 == 0 else 6144}"
    if wo:
        k("s_lshl_b32 s28, s20, 10"); k(f"s_add_u32 m0, s28, {RMOFF}")
        k(f"s_mov_b32 s28, {WS_RM}")
        k(f"buffer_load_dwordx4 v{vT+1}, s[12:15], s28 offen{SC} lds"); vm.issue("RM")
    for s in range(R):
        for l in bld(s): k(l); vm.issue(("B", s))
        k(badv(s))
    if wo:
        for p in range(2):
            k(f"buffer_load_dwordx4 v[{RES+4*p}:{RES+4*p+3}], v{vR}, s[16:19], s33 offen offset:{64*p}"); vm.issue("res")
        k("s_lshl_b32 s28, s35, 2"); k(f"s_add_u32 s28, s28, {WS_MX}")
        k(f"buffer_load_dword v{MX}, v{vT+2}, s[12:15], s28 offen{SC}"); vm.issue("res")
    def areads(s, buf):
        t = s // 2; sl = t % NS
        va = vA if sl < 4 else vA2
        o = [f"ds_read_b64_tr_b16 v[{A[buf]+4*i+2*tt}:{A[buf]+4*i+2*tt+1}], v{va[i]} offset:{(sl & 3)*16384 + (s&1)*4096 + tt*1024}"
             for i in range(4) for tt in range(2)]
        return o
    def rmread(s, buf): return f"ds_read_b128 v[{RMF[buf]}:{RMF[buf]+3}], v{vRM} offset:{(s >> 1)*128 + (s & 1)*64}"
    for l in areads(0, 0): k(l)
    if wo:
        k(f"s_waitcnt vmcnt({vm.cnt({'RM'})})")
        k(rmread(0, 0))
    k.stamp(pre + "_go")
    texts = []
    for per in range((NT + NS - 1) // NS):
        o = []
        for s in range(per * 2 * NS, min((per + 1) * 2 * NS, NSTEP)):
            t = s // 2; cur = s & 1; nxt = cur ^ 1
            need = {("B", s)}
            if s & 1 and t + 1 < NT: need.add(("W", t + 1))
            n = vm.cnt(need)
            o.append(f"s_waitcnt vmcnt({min(n, 63)}) lgkmcnt(0)")
            rd = []; dm = []
            if s & 1:
                if t + 1 < NT:
                    o.append("s_barrier"); rd = areads(s + 1, nxt)
                if t + NS < NT: dm = w35_dma(vW, SW, t % NS)
            else:
                rd = areads(s + 1, nxt)
            if wo and s + 1 < NSTEP: rd = rd + [rmread(s + 1, nxt)]
            mf = []
            b = BR + (s % R) * 8
            for i in range(4):
                for j in range(2):
                    a = acc(i, j)
                    mf.append(f"v_mfma_f32_16x16x32_bf16 v[{a}:{a+3}], v[{A[cur]+4*i}:{A[cur]+4*i+3}], v[{b+4*j}:{b+4*j+3}], v[{a}:{a+3}]")
            if wo:
                for j in range(2):
                    a = ACM + 4 * j
                    mf.append(f"v_mfma_f32_16x16x32_bf16 v[{a}:{a+3}], v[{RMF[cur]}:{RMF[cur]+3}], v[{b+4*j}:{b+4*j+3}], v[{a}:{a+3}]")
            gaps = [[] for _ in mf]
            for q, r in enumerate(rd): gaps[min(q, len(mf) - 1)].append(r)
            if dm:
                gaps[0].append(dm[0][0]); gaps[1].append(dm[0][1]); gaps[2].append(dm[1][0]); gaps[3].append(dm[1][1]); gaps[4].append(W35ADV)
                vm.issue(("W", t + NS), 2)
            if s + R < NSTEP:
                gaps[len(mf) - 1] += bld(s + R) + [badv(s + R)]
                vm.issue(("B", s + R), 2)
            if wo and s == NSTEP - R:
                q = 0
                for tl in range(3):
                    for g in pf4(tl):
                        gaps[min(q, len(mf) - 1)] += g; q += 1
                        vm.issue("PF")
            for g, mm in enumerate(mf):
                o.append(mm); o += gaps[g]
        texts.append(o)
    periods(k, pre + "loop", texts, 36)
    k.stamp(pre + "_loop")
    if wo:
        k("s_and_b32 s27, s20, 3"); k("s_lshl_b32 s27, s27, 12"); k(f"s_mul_i32 s28, s26, {SLOT4}"); k("s_add_u32 s27, s27, s28"); k(f"s_add_u32 s27, s27, {BOFF4}")
        k(f"v_lshlrev_b32 v{vT}, 4, v1"); k(f"v_add_u32 v{vT+1}, s27, v{vT}")
        k("s_and_b32 s27, s20, 3"); k("s_lshl_b32 s27, s27, 12"); k("s_xor_b32 s28, s26, 1"); k(f"s_mul_i32 s28, s28, {SLOT4}"); k("s_add_u32 s27, s27, s28"); k(f"s_add_u32 s27, s27, {BOFF4}")
        k(f"v_add_u32 v{vT+2}, s27, v{vT}")
        k("s_lshl_b32 s27, s20, 8"); k(f"s_add_u32 s27, s27, {XMOFF}")
        k(f"v_lshl_add_u32 v{vRM}, v1, 2, s27")
        k(f"ds_write_b32 v{vRM}, v{ACM+4}")
        k(f"v_xor_b32 v{vRM}, 1024, v{vRM}")
    else:
        XCH = 98304
        k("s_lshl_b32 s27, s20, 12"); k(f"s_add_u32 s27, s27, {XCH}")
        k(f"v_lshlrev_b32 v{vT}, 4, v1"); k(f"v_add_u32 v{vT+1}, s27, v{vT}")
        k("s_lshl_b32 s27, s20, 12"); k("s_xor_b32 s27, s27, 16384"); k(f"s_add_u32 s27, s27, {XCH}"); k(f"v_add_u32 v{vT+2}, s27, v{vT}")
    for i in range(4): k(f"ds_write_b128 v{vT+1}, v[{acc(i,1)}:{acc(i,1)+3}] offset:{1024*i}")
    k("s_waitcnt lgkmcnt(0)")
    k("s_barrier")
    for i in range(4): k(f"ds_read_b128 v[{acc(i,1)}:{acc(i,1)+3}], v{vT+2} offset:{1024*i}")
    if wo:
        k(f"ds_read_b32 v{ACM+4}, v{vRM}")
        for g in pf4(3):
            for l in g: k(l)
    else:
        for p in range(2): k(f"ds_read_b128 v[{RES+4*p}:{RES+4*p+3}], v{vHK} offset:{1024*p}")
    k("s_waitcnt lgkmcnt(0)")
    def padd(d, a, b, bc=False):
        if wo:
            k(f"v_add_f32 v{d}, v{a}, v{b}"); k(f"v_add_f32 v{d+1}, v{a+1}, v{b if bc else b+1}")
        else: k(f"v_pk_add_f32 v[{d}:{d+1}], v[{a}:{a+1}], v[{b}:{b+1}]")
    for i in range(4):
        for r in range(0, 4, 2): padd(acc(i,0)+r, acc(i,0)+r, acc(i,1)+r)
    for p in range(2):
        for r in range(4): k(f"v_permlane16_swap_b32 v{acc(2*p,0)+r}, v{acc(2*p+1,0)+r}")
    U = A[0]
    k(f"v_mov_b32 v{vT+3 if not wo else vT}, 0xffff0000")
    vMask = vT + 3 if not wo else vT
    if wo:
        k("s_waitcnt vmcnt(8)")
        k(f"v_add_f32 v{ACM}, v{ACM}, v{ACM+4}")
        k(f"v_add_f32 v{ACM}, v{ACM}, v{MX}")
        k(f"v_sub_f32 v{ACM}, 0, v{ACM}")
    for p in range(2):
        for q in range(4):
            a = acc(2 * p, 0) + 2 * q
            k(f"v_lshlrev_b32 v{U+2*q}, 16, v{RES+4*p+q}")
            k(f"v_and_b32 v{U+2*q+1}, v{vMask}, v{RES+4*p+q}")
        for q in range(4):
            a = acc(2 * p, 0) + 2 * q
            padd(a, a, U+2*q)
        for q in range(4):
            a = acc(2 * p, 0) + 2 * q
            k(f"v_cvt_pk_bf16_f32 v{RES+4*p+q}, v{a}, v{a+1}")
        if wo:
            k(f"ds_write_b128 v{vHK}, v[{RES+4*p}:{RES+4*p+3}] offset:{1024*p}")
            HC = U + 8 + 4 * p
            for q in range(4):
                a = acc(2 * p, 0) + 2 * q
                padd(a, a, ACM, True)
            for q in range(4):
                a = acc(2 * p, 0) + 2 * q
                k(f"v_cvt_pk_bf16_f32 v{HC+q}, v{a}, v{a+1}")
            k(f"buffer_store_dwordx4 v[{HC}:{HC+3}], v{vO}, s[12:15], s34 offen offset:{2048*p}{SC}")
        else:
            k(f"buffer_store_dwordx4 v[{RES+4*p}:{RES+4*p+3}], v{vO}, s[16:19], s33 offen offset:{64*p}{OUTSC}")
    if wo:
        s1 = U
        a0 = acc(0, 0)
        for r in range(4): k(f"v_mul_f32 v{s1+r}, v{a0+r}, v{a0+r}")
        for r in range(4, 16): k(f"v_fma_f32 v{s1+(r&3)}, v{a0+r}, v{a0+r}, v{s1+(r&3)}")
        k(f"v_add_f32 v{s1}, v{s1}, v{s1+1}"); k(f"v_add_f32 v{s1+2}, v{s1+2}, v{s1+3}"); k(f"v_add_f32 v{s1}, v{s1}, v{s1+2}")
        for sw in ("v_permlane16_swap_b32", "v_permlane32_swap_b32"):
            k(f"v_mov_b32 v{s1+2}, v{s1}"); k(f"{sw} v{s1}, v{s1+2}"); k(f"v_add_f32 v{s1}, v{s1}, v{s1+2}")
        k(f"v_and_b32 v{vT}, 15, v1"); k(f"v_lshlrev_b32 v{vT}, 2, v{vT}")
        k("s_lshl_b32 s27, s35, 2"); k("s_lshl_b32 s28, s24, 13"); k("s_add_u32 s27, s27, s28"); k(f"s_add_u32 s27, s27, {WS_ST}")
        k("s_mov_b64 exec, 0xffff")
        k(f"buffer_store_dword v{s1}, v{vT}, s[12:15], s27 offen{SC}")
        k("s_mov_b64 exec, -1")
        k.stamp(pre + "_epi")
        k("s_lshr_b32 s27, s23, 1"); k("s_lshl_b32 s27, s27, 7"); k(f"s_add_u32 s27, s27, {WS_CNT + C4*128}")
        k("s_waitcnt lgkmcnt(0)")
        signal(k, 27, vt=(RES, RES + 1))
        k.stamp(pre + "_sig")
    else:
        k.stamp(pre + "_epi")
OUTSC = os.environ.get("OUTSC", "")

KC = 2 * math.sqrt(2 / math.pi) * math.log2(math.e)
X4 = os.environ.get("X4", "").split(",")
def phase4(k):
    NS = 4; SLOT = SLOT4; UOFF = 7168; BOFF = BOFF4; STATS = NS * SLOT
    vA = [2, 3]; vB = [4, 5]; vD = [6, 7, 8, 9, 10]; vL16 = 11; vT = 12
    A = [16, 48]; B = [80, 96]; ACC = 112; SV = 242
    acc = lambda fi, m, j: ACC + ((fi * 2 + m) * 4 + j) * 4
    w35_setup(k, vW5, 0, vT)
    srd(k, 60, pWD, DF * D * 2)
    coords4(k, 23, 24, 25)
    k("s_and_b32 s25, s20, 3")
    k("s_lshr_b32 s26, s20, 2")
    k(f"v_lshlrev_b32 v{vL16}, 4, v1")
    k(f"v_lshrrev_b32 v{vT}, 4, v1")
    k(f"v_bfe_u32 v{vT+1}, v1, 2, 2")
    k(f"v_lshrrev_b32 v{vT+2}, 1, v{vT}"); k(f"v_and_b32 v{vT+3}, 1, v{vT}")
    k(f"v_lshlrev_b32 v{vT+2}, 4, v{vT+2}"); k(f"v_lshl_add_u32 v{vT+2}, v{vT+3}, 2, v{vT+2}"); k(f"v_add_u32 v{vT+2}, v{vT+2}, v{vT+1}")
    k(f"v_mul_u32_u24 v{vT+2}, 224, v{vT+2}")
    k(f"v_and_b32 v{vT+3}, 3, v1"); k(f"v_lshl_add_u32 v{vT+2}, v{vT+3}, 3, v{vT+2}")
    k("s_lshl_b32 s27, s26, 7")
    k(f"v_add_u32 v{vA[0]}, s27, v{vT+2}"); k(f"v_add_u32 v{vA[1]}, {2*SLOT}, v{vA[0]}")
    k(f"v_and_b32 v{vT+1}, 15, v1"); k(f"v_lshlrev_b32 v{vT+1}, 4, v{vT+1}"); k(f"v_lshl_add_u32 v{vT+1}, v{vT}, 9, v{vT+1}")
    k("s_lshl_b32 s27, s25, 12"); k(f"s_add_u32 s27, s27, {BOFF}")
    k(f"v_add_u32 v{vB[0]}, s27, v{vT+1}"); k(f"v_add_u32 v{vB[1]}, {2*SLOT}, v{vB[0]}")
    k("s_lshl_b32 s31, s23, 19"); k(f"s_add_u32 s31, s31, {WS_H}")
    k("s_mul_i32 s30, s24, 224"); k(f"s_add_u32 s30, s30, {NS*32*7168}")
    for r in range(ACC, ACC + 128): k(f"v_mov_b32 v{r}, 0")
    k(f"v_and_b32 v{vT}, 1, v0"); k(f"v_lshlrev_b32 v{vT}, 16, v{vT}")
    k(f"v_lshrrev_b32 v{vT+1}, 1, v0"); k(f"v_lshl_add_u32 v{SV+8}, v{vT+1}, 2, v{vT}")
    k(f"v_lshlrev_b32 v{SV+9}, 4, v{vT+1}"); k(f"v_add_u32 v{SV+9}, {STATS}, v{SV+9}")
    k("s_lshl_b32 s37, s23, 10"); k(f"s_add_u32 s37, s37, {WS_ST}")
    k("s_bitcmp1_b32 s25, 1")
    k(f"s_cselect_b32 s4, s{pWU}, s{pWG}"); k(f"s_cselect_b32 s5, s{pWU+1}, s{pWG+1}")
    srd(k, 8, 4, D * DF * 2)
    lsb = k.lab("p4setB"); lsd = k.lab("p4setD")
    k("s_cmp_eq_u32 s26, 0")
    k(f"s_cbranch_scc0 {lsb}")
    for n in range(3):
        k("s_mul_i32 s27, s20, 3"); k(f"s_add_u32 s27, s27, {n}")
        k("s_lshr_b32 s28, s27, 1"); k("s_lshl_b32 s28, s28, 16"); k("s_and_b32 s29, s27, 1"); k("s_lshl_b32 s29, s29, 10"); k("s_add_u32 s28, s28, s29")
        k(f"v_add_u32 v{vD[n]}, s28, v{vL16}")
    k(f"s_mul_i32 s32, s20, 3072"); k(f"s_add_u32 s32, s32, {BOFF}")
    k(f"s_branch {lsd}")
    k(f"{lsb}:")
    k("s_and_b32 s27, s25, 1"); k("s_lshl_b32 s27, s27, 8")
    for q in range(4):
        k(f"v_add_u32 v{vT+3}, {64*q}, v1"); k(f"v_add_u32 v{vT+3}, s27, v{vT+3}")
        w4_piece_lane(k, vD[q], vT + 3, vT)
    k("s_add_u32 s27, s25, 12")
    k("s_lshr_b32 s28, s27, 1"); k("s_lshl_b32 s28, s28, 16"); k("s_and_b32 s29, s27, 1"); k("s_lshl_b32 s29, s29, 10"); k("s_add_u32 s28, s28, s29")
    k(f"v_add_u32 v{vD[4]}, s28, v{vL16}")
    k("s_lshl_b32 s33, s27, 10"); k(f"s_add_u32 s33, s33, {BOFF}")
    k("s_lshr_b32 s32, s25, 1"); k(f"s_mul_i32 s32, s32, {UOFF}"); k("s_and_b32 s27, s25, 1"); k("s_lshl_b32 s27, s27, 12"); k("s_add_u32 s32, s32, s27")
    k(f"{lsd}:")
    k("s_lshl_b32 s27, s23, 3"); k("s_lshl_b32 s28, s25, 1"); k("s_add_u32 s27, s27, s28"); k("s_mul_i32 s27, s27, 448")
    k("s_mul_i32 s28, s24, 14"); k("s_add_u32 s27, s27, s28"); k("s_lshl_b32 s28, s26, 3"); k("s_add_u32 s27, s27, s28")
    k("s_lshl_b32 s27, s27, 9"); k(f"s_add_u32 s34, s27, {WS_HM}"); k(f"s_add_u32 s35, s34, {448*512}")
    k("s_lshl_b32 s27, s23, 7"); k(f"s_add_u32 s27, s27, {WS_CNT + C4*128}")
    wait(k, 27, 32, vt=(vT, vT + 1))
    k.stamp("p4_wait")
    def dma_act(var, slot):
        if var == "A":
            return [[f"s_add_u32 m0, s32, {slot*SLOT + n*1024}", f"buffer_load_dwordx4 v{vD[n]}, s[12:15], s31 offen{SC} lds"] for n in range(3)]
        return [[f"s_add_u32 m0, s33, {slot*SLOT}", f"buffer_load_dwordx4 v{vD[4]}, s[12:15], s31 offen{SC} lds"]]
    def dma_w(var, slot):
        if var == "A": return []
        return [[f"s_add_u32 m0, s32, {slot*SLOT + q*1024}", f"buffer_load_dwordx4 v{vD[q]}, s[8:11], s30 offen lds"] for q in range(4 if var == "B0" else 3)]
    advA = "s_add_u32 s31, s31, 2048"; advW = f"s_add_u32 s30, s30, {32*7168}"
    def stats_calc():
        o = []
        for i in (0, 2, 4, 6): o.append(f"v_add_f32 v{SV+i}, v{SV+i}, v{SV+i+1}")
        o += [f"v_add_f32 v{SV}, v{SV}, v{SV+2}", f"v_add_f32 v{SV+4}, v{SV+4}, v{SV+6}", f"v_add_f32 v{SV}, v{SV}, v{SV+4}",
              "s_nop 1",
              f"v_add_f32_dpp v{SV}, v{SV}, v{SV} quad_perm:[1,0,3,2] row_mask:0xf bank_mask:0xf",
              f"v_mov_b32 v{SV+3}, 0x3a800000", f"v_mov_b32 v{SV+5}, 0x3727c5ac",
              f"v_fma_f32 v{SV+2}, v{SV}, v{SV+3}, v{SV+5}",
              f"v_rsq_f32 v{SV+4}, v{SV+2}",
              f"v_mov_b32 v{SV+3}, 0",
              f"v_mul_f32 v{SV+1}, {f2h(-KC)}, v{SV+4}",
              f"v_mul_f32 v{SV+5}, v{SV+4}, v{SV+4}",
              f"v_mul_f32 v{SV}, {f2h(0.044715)}, v{SV+1}",
              f"v_mul_f32 v{SV}, v{SV}, v{SV+5}",
              f"ds_write_b128 v{SV+9}, v[{SV}:{SV+3}]"]
        return o
    st_idx = {}
    def vstamp(nm):
        if nm in st_idx: k.stamp_at(st_idx[nm])
        else:
            st_idx[nm] = k.nst; k.stamp(nm)
    ljoin = k.lab("p4join")
    def body(var):
        nf = 4 if var == "A" else 3
        vm = VM()
        for s in range(NS):
            for d in dma_act(var, s):
                for l in d: k(l)
                vm.issue(("D", s))
            k(advA)
        k("s_mov_b32 s28, s37")
        for i in range(8):
            k(f"buffer_load_dword v{SV+i}, v{SV+8}, s[12:15], s28 offen{SC}"); vm.issue("ST")
            if i < 7: k("s_add_u32 s28, s28, 8192")
        def reads(buf, slot):
            base = slot >> 1; so = (slot & 1) * SLOT
            o = []
            def rA(fi, m):
                i = fi * 2 + m
                return [f"ds_read_b64_tr_b16 v[{A[buf]+4*i+2*t}:{A[buf]+4*i+2*t+1}], v{vA[base]} offset:{so + m*UOFF + t*8*224 + fi*32}" for t in range(2)]
            o += rA(0, 0)
            for j in range(4): o.append(f"ds_read_b128 v[{B[buf]+4*j}:{B[buf]+4*j+3}], v{vB[base]} offset:{so + (j>>1)*2048 + (j&1)*256}")
            for i in range(1, 2 * nf): o += rA(i >> 1, i & 1)
            return o
        k(f"s_waitcnt vmcnt({vm.cnt({('D', 0)})})")
        k("s_barrier")
        vstamp("p4_go")
        for l in reads(0, 0): k(l)
        NT = 32
        texts = []
        pf5 = {28: [0], 29: [1, 2]}
        for per in range(NT // NS):
            o = []
            for t in range(per * NS, (per + 1) * NS):
                slot = t % NS; cur = t & 1; nxt = cur ^ 1
                rd = []; dm = []; ex = []
                if t + 1 < NT:
                    need = {("D", t + 1)}
                    if t == 3: need.add("ST")
                    o.append(f"s_waitcnt vmcnt({vm.cnt(need)}) lgkmcnt(0)")
                    o.append("s_barrier")
                    rd = reads(nxt, (t + 1) % NS)
                else:
                    o.append("s_waitcnt lgkmcnt(0)")
                tail = []
                if t + NS < NT:
                    dm = dma_w(var, slot) + dma_act(var, slot)
                    vm.issue(("D", t + NS), len(dm))
                    tail = [advA, advW]
                for tl in pf5.get(t, []):
                    if tl < NS5:
                        dm += [list(x) for x in w35_dma(vW5, 60, tl)]
                        dm[-1].append(W35ADV)
                        vm.issue("PF5", 2)
                if t == 3: ex = stats_calc()
                mf = []
                for i in range(2 * nf):
                    for j in range(4):
                        a = acc(i >> 1, i & 1, j)
                        mf.append(f"v_mfma_f32_16x16x32_bf16 v[{a}:{a+3}], v[{A[cur]+4*i}:{A[cur]+4*i+3}], v[{B[cur]+4*j}:{B[cur]+4*j+3}], v[{a}:{a+3}]")
                n = len(mf)
                gaps = [[] for _ in mf]
                for q, r in enumerate(rd): gaps[q].append(r)
                if dm:
                    stp = (n - 3) // len(dm)
                    for q, d in enumerate(dm):
                        g = 1 + stp * q
                        gaps[g].append(d[0]); gaps[g + 1] += d[1:]
                    gaps[n - 1] += tail
                for q, l in enumerate(ex): gaps[min(4 + q, n - 1)].append(l)
                for g, mm in enumerate(mf):
                    o.append(mm); o += gaps[g]
            texts.append(o)
        periods(k, f"p4{var}", texts, 36)
        vstamp("p4_loop")
        ST = 16; TT = 32
        k(f"v_and_b32 v{vT}, 15, v1"); k(f"v_lshlrev_b32 v{vT}, 4, v{vT}")
        k("s_lshl_b32 s27, s25, 10"); k(f"s_add_u32 s27, s27, {STATS}"); k(f"v_add_u32 v{vT}, s27, v{vT}")
        for j in range(4): k(f"ds_read_b128 v[{ST+4*j}:{ST+4*j+3}], v{vT} offset:{256*j}")
        k("s_waitcnt vmcnt(0) lgkmcnt(0)")
        if "drain" in X4: k("s_waitcnt vmcnt(0)"); k("s_barrier")
        if "drain0" in X4: k("s_waitcnt vmcnt(0)")
        if "bar" in X4: k("s_barrier")
        if "adrain" in X4 and var == "A": k("s_waitcnt vmcnt(0)")
        if "bdrain" in X4 and var != "A": k("s_waitcnt vmcnt(0)")
        nopk = ("anopk" in X4 and var == "A") or ("bnopk" in X4 and var != "A")
        def pk(op, d, a, b, c=None, sel=None):
            if not nopk:
                x = f"v_pk_{op}_f32 v[{d}:{d+1}], v[{a}:{a+1}], v[{b}:{b+1}]"
                if c is not None: x += f", v[{c}:{c+1}] " + sel
                k(x); return
            for h in range(2):
                if c is None: k(f"v_mul_f32 v{d+h}, v{a+h}, v{b+h}")
                elif sel.startswith("op_sel:[0,0,1]"): k(f"v_fma_f32 v{d+h}, v{a+h}, v{b}, v{b+1}")
                else: k(f"v_fma_f32 v{d+h}, v{a+h}, v{b}, v{b}")
        for fi in range(nf):
            for p in range(2):
                gi = fi * 2 + p
                PK = TT + 16 + 4 * (gi & 3)
                T = TT + 8 * (gi & 1)
                prs = [(2 * p + jj, h) for jj in range(2) for h in range(2)]
                P = lambda r: f"v[{r}:{r+1}]"
                for q, (j, h) in enumerate(prs):
                    g = acc(fi, 0, j) + 2 * h
                    pk("mul", T+2*q, g, g)
                for q, (j, h) in enumerate(prs):
                    c = ST + 4 * j
                    pk("fma", T+2*q, T+2*q, c, c, "op_sel:[0,0,1] op_sel_hi:[1,0,1]")
                for q, (j, h) in enumerate(prs):
                    g = acc(fi, 0, j) + 2 * h
                    pk("mul", T+2*q, T+2*q, g)
                for q, (j, h) in enumerate(prs):
                    g = acc(fi, 0, j) + 2 * h; u = acc(fi, 1, j) + 2 * h
                    k(f"v_exp_f32 v{T+2*q}, v{T+2*q}"); k(f"v_exp_f32 v{T+2*q+1}, v{T+2*q+1}")
                    pk("mul", u, u, g)
                for q, (j, h) in enumerate(prs):
                    c = ST + 4 * j + 2
                    pk("fma", T+2*q, T+2*q, c, c, "op_sel:[0,0,0] op_sel_hi:[1,0,0]")
                for q, (j, h) in enumerate(prs):
                    k(f"v_rcp_f32 v{T+2*q}, v{T+2*q}"); k(f"v_rcp_f32 v{T+2*q+1}, v{T+2*q+1}")
                for q, (j, h) in enumerate(prs):
                    u = acc(fi, 1, j) + 2 * h
                    pk("mul", u, u, T+2*q)
                for q, (j, h) in enumerate(prs):
                    u = acc(fi, 1, j) + 2 * h
                    k(f"v_cvt_pk_bf16_f32 v{PK+q}, v{u}, v{u+1}")
                k(f"v_permlane16_swap_b32 v{PK}, v{PK+2}")
                k(f"v_permlane16_swap_b32 v{PK+1}, v{PK+3}")
                k(f"buffer_store_dwordx4 v[{PK}:{PK+3}], v{vL16}, s[12:15], s{34+p} offen offset:{1024*fi}{SC}")
        vstamp("p4_epi")
        if var != "B1": k(f"s_branch {ljoin}")
    lB = k.lab("p4B"); lB1 = k.lab("p4B1")
    k("s_cmp_eq_u32 s26, 0")
    k(f"s_cbranch_scc0 {lB}")
    body("A")
    k(f"{lB}:")
    k("s_bitcmp1_b32 s25, 0")
    k(f"s_cbranch_scc1 {lB1}")
    body("B0")
    k(f"{lB1}:")
    body("B1")
    k(f"{ljoin}:")
    k("s_lshl_b32 s27, s23, 7"); k(f"s_add_u32 s27, s27, {WS_CNT + C5*128}")
    signal(k, 27, vt=(vT, vT + 1))
    k.stamp("p4_sig")

def mk():
    k = G(NAME, nvgpr=256, accum=256, total=256)
    lend = "L_end"
    k("s_cmp_ge_u32 s2, 256")
    k(f"s_cbranch_scc1 {lend}")
    if os.environ.get("SCR"):
        k("s_and_b32 s3, s2, 7"); k("s_lshl_b32 s3, s3, 5"); k("s_lshr_b32 s2, s2, 3"); k("s_or_b32 s2, s2, s3")
    k("s_load_dwordx16 s[64:79], s[0:1], 0")
    k("s_load_dwordx4 s[80:83], s[0:1], 64")
    k("v_and_b32 v1, 63, v0")
    k("v_lshrrev_b32 v2, 6, v0")
    k("s_nop 0")
    k("v_readfirstlane_b32 s20, v2")
    k.stamp("start")
    ldone = "L_done"
    phs = [phase1, phase2, lambda k: phase35(k, "wo"), phase4, lambda k: phase35(k, "down")]
    for i, ph in enumerate(phs[:UPTO]): ph(k)
    k.stamp("end")
    k.stamp_out()
    k("s_waitcnt vmcnt(0)")
    k(f"{lend}:")
    k("s_endpgm")
    return k, ("mk", 256, 512, LDS_BYTES)

if __name__ == "__main__":
    import sys
    sys.path.insert(0, "gen")
    from build import header
    k, _ = mk()
    o = header()
    o.append(f"; @launch grid=(256,1,1) block=(512,1,1) lds={LDS_BYTES}")
    if STAMP: o.append("; stamps: " + " ".join(k.stnames))
    o.append('.amdgcn_target "amdgcn-amd-amdhsa--gfx950"')
    o.append('.text')
    o.append(k.text())
    o.append('.section .rodata,"a"')
    o.append(k.desc())
    open(sys.argv[1], "w").write("\n".join(o) + "\n")
    print("wrote", sys.argv[1], "instrs", sum(1 for l in k.lines if l.startswith("  ")))
```

```python
from asmlib import K, srd
from common import *
import os, struct, math
STAMP = bool(int(os.environ.get("STAMP", "0")))
UPTO = int(os.environ.get("UPTO", "5"))
NAME = "sequential_preLN__mha_block__glu_gated_geglu__prompt_kernel"
WS_TS = 0x2800000
SC = " sc1"
LDS_BYTES = 163840
pX, pWQKV, pWO, pBX, pWG, pWU, pWD, pOUT, pDBG, pWS = [64 + 2 * i for i in range(10)]
C2, C3, C4, C5 = 0, 16, 24, 32
SPIN_LIMIT = 0x40000
RAMP = int(os.environ.get("RAMP", "1"))
PFW = int(os.environ.get("PFW", "1")); PFI = int(os.environ.get("PFI", "0"))
def f2h(x): return hex(struct.unpack('<I', struct.pack('<f', x))[0])

class G(K):
    def __init__(s, *a, **kw):
        super().__init__(*a, **kw); s.nl = 0; s.nst = 0; s.stnames = []
    def lab(s, base):
        s.nl += 1; return f"L_{base}_{s.nl}"
    def stamp(s, nm):
        if not STAMP: return
        i = s.nst; s.nst += 1; s.stnames.append(nm)
        s("s_memrealtime s[84:85]"); s("s_memtime s[86:87]"); s("s_waitcnt lgkmcnt(0)")
        s(f"v_writelane_b32 v255, s84, {i}"); s(f"v_writelane_b32 v254, s86, {i}")
    def stamp_at(s, i):
        if not STAMP: return
        s("s_memrealtime s[84:85]"); s("s_memtime s[86:87]"); s("s_waitcnt lgkmcnt(0)")
        s(f"v_writelane_b32 v255, s84, {i}"); s(f"v_writelane_b32 v254, s86, {i}")
    def stamp_out(s):
        if not STAMP: return
        s("s_lshl_b32 s84, s2, 3"); s("s_add_u32 s84, s84, s20"); s("s_lshl_b32 s84, s84, 9")
        s(f"s_add_u32 s84, s84, {WS_TS}")
        s("v_lshlrev_b32 v253, 2, v1")
        s("buffer_store_dword v255, v253, s[12:15], s84 offen")
        s("buffer_store_dword v254, v253, s[12:15], s84 offen offset:256")
        s("s_waitcnt vmcnt(0)")

class VM:
    def __init__(s): s.q = []; s.c = []
    def issue(s, tag, n=1, certain=True): s.q += [tag] * n; s.c += [certain] * n
    def cnt(s, tags):
        last = -1
        for i, t in enumerate(s.q):
            if t in tags: last = i
        return sum(1 for c in s.c[last + 1:] if c) if last >= 0 else None

def periods(k, name, texts, cnt_sgpr):
    i = 0; n = len(texts)
    while i < n:
        j = i
        while j + 1 < n and texts[j + 1] == texts[i]: j += 1
        rep = j - i + 1
        if rep > 1:
            l = k.lab(name)
            k(f"s_mov_b32 s{cnt_sgpr}, 0")
            k(f"{l}:")
            for x in texts[i]: k(x)
            k(f"s_add_u32 s{cnt_sgpr}, s{cnt_sgpr}, 1")
            k(f"s_cmp_lt_u32 s{cnt_sgpr}, {rep}")
            k(f"s_cbranch_scc1 {l}")
        else:
            for x in texts[i]: k(x)
        i = j + 1

def signal(k, sline, vt=(14, 15)):
    k("s_waitcnt vmcnt(0)")
    k("s_barrier")
    l = k.lab("nosig")
    k("s_cmp_lg_u32 s20, 0"); k(f"s_cbranch_scc1 {l}")
    k("s_mov_b64 exec, 1")
    k(f"v_mov_b32 v{vt[0]}, 1"); k(f"v_mov_b32 v{vt[1]}, 0")
    k(f"buffer_atomic_add v{vt[0]}, v{vt[1]}, s[12:15], s{sline} offen sc1")
    k("s_mov_b64 exec, -1")
    k(f"{l}:")

PD = int(os.environ.get("PD", "1")); PSL = int(os.environ.get("PSL", "6"))
def wait(k, sline, target, vt=(14, 15), pr=None):
    done = k.lab("wdone"); spin = k.lab("wspin")
    k("s_cmp_lg_u32 s20, 0"); k(f"s_cbranch_scc1 {done}")
    k(f"v_mov_b32 v{vt[1]}, 0")
    k("s_mov_b32 s28, 0")
    if PD == 1 or pr is None:
        k(f"{spin}:")
        k(f"buffer_load_dword v{vt[0]}, v{vt[1]}, s[12:15], s{sline} offen sc1")
        k("s_add_u32 s28, s28, 1")
        k("s_waitcnt vmcnt(0)")
        k(f"v_readfirstlane_b32 s29, v{vt[0]}")
        k(f"s_cmp_eq_u32 s29, {target}"); k(f"s_cbranch_scc1 {done}")
        k(f"s_cmp_gt_u32 s28, {SPIN_LIMIT}"); k(f"s_cbranch_scc1 {done}")
        k("s_sleep 1")
        k(f"s_branch {spin}")
    else:
        ld = lambda i: k(f"buffer_load_dword v{pr+i}, v{vt[1]}, s[12:15], s{sline} offen sc1")
        for i in range(PD):
            ld(i)
            if i < PD - 1: k(f"s_sleep {PSL}")
        k(f"{spin}:")
        for i in range(PD):
            k(f"s_waitcnt vmcnt({PD-1})")
            k(f"v_readfirstlane_b32 s29, v{pr+i}")
            k(f"s_cmp_eq_u32 s29, {target}"); k(f"s_cbranch_scc1 {done}")
            ld(i)
        k("s_add_u32 s28, s28, 1")
        k(f"s_cmp_gt_u32 s28, {SPIN_LIMIT}"); k(f"s_cbranch_scc0 {spin}")
    k(f"{done}:")
    k("s_barrier")

def wait_multi(k, sline, target, n, vt):
    done = k.lab("wdone"); spin = k.lab("wspin"); dx = k.lab("wdx")
    k("s_cmp_lg_u32 s20, 0"); k(f"s_cbranch_scc1 {done}")
    k(f"s_mov_b64 exec, {hex((1 << n) - 1)}")
    k("s_mov_b32 s28, 0")
    k(f"{spin}:")
    k(f"buffer_load_dword v{vt[0]}, v{vt[1]}, s[12:15], s{sline} offen sc1")
    k("s_add_u32 s28, s28, 1")
    k("s_waitcnt vmcnt(0)")
    k(f"v_cmp_ne_u32 vcc, {target}, v{vt[0]}")
    k("s_cmp_eq_u64 vcc, 0"); k(f"s_cbranch_scc1 {dx}")
    k(f"s_cmp_gt_u32 s28, {SPIN_LIMIT}"); k(f"s_cbranch_scc1 {dx}")
    k("s_sleep 1")
    k(f"s_branch {spin}")
    k(f"{dx}:")
    k("s_mov_b64 exec, -1")
    k(f"{done}:")
    k("s_barrier")

def wdma_lane(k, vdst, rowbytes, t):
    k(f"v_lshrrev_b32 v{t}, 3, v1"); k(f"v_and_b32 v{t+1}, 7, v1")
    k(f"v_lshrrev_b32 v{t+2}, 2, v{t}"); k(f"v_and_b32 v{t+3}, 3, v{t}")
    k(f"v_lshl_add_u32 v{t+2}, v{t+2}, 3, v{t+3}")
    k(f"v_mul_u32_u24 v{t+2}, {rowbytes}, v{t+2}")
    k(f"v_lshrrev_b32 v{t+3}, 1, v{t+1}"); k(f"v_lshrrev_b32 v{t}, 1, v{t}")
    k(f"v_xor_b32 v{t+3}, v{t+3}, v{t}")
    k(f"v_and_b32 v{t+1}, 1, v{t+1}")
    k(f"v_lshl_add_u32 v{t+3}, v{t+3}, 1, v{t+1}")
    k(f"v_lshl_add_u32 v{vdst}, v{t+3}, 4, v{t+2}")

def phase1(k):
    NS = 4; SLOT = 40960; BOFF = 24576
    ACC = 64
    vA = [2, 3]; vW = [10, 11, 12]; vX = [13, 4]; vL16 = 5; vZ = 6; vP = 7
    A = [16, 28]; B = [40, 112]
    VB = 128; DC = 144; D1 = 156; D2 = 160; ONE = 164; PL = 168
    RMR = 192
    acc = lambda m, j: ACC + (m * 4 + j) * 4
    k("s_and_b32 s21, s2, 7"); k("s_lshr_b32 s22, s2, 3")
    k("s_and_b32 s23, s21, 1"); k("s_lshl_b32 s23, s23, 3"); k("s_and_b32 s24, s22, 7"); k("s_add_u32 s23, s23, s24")
    k("s_lshr_b32 s24, s21, 1"); k("s_lshl_b32 s24, s24, 2"); k("s_lshr_b32 s25, s22, 3"); k("s_add_u32 s24, s24, s25")
    k("s_and_b32 s25, s20, 1")
    k("s_lshr_b32 s26, s20, 1")
    wdma_lane(k, vW[0], 6144, 14)
    k(f"v_add_u32 v{vW[1]}, 2048, v{vW[0]}")
    k(f"v_add_u32 v{vW[2]}, 4096, v{vW[0]}")
    k("v_lshrrev_b32 v14, 3, v1"); k("v_and_b32 v15, 7, v1")
    k("v_lshrrev_b32 v17, 4, v1")
    k("v_xor_b32 v17, v17, v15")
    k("v_lshlrev_b32 v17, 4, v17")
    k(f"v_lshl_add_u32 v{vX[0]}, v14, 11, v17")
    k(f"v_xor_b32 v{vX[1]}, 64, v{vX[0]}")
    k(f"v_add_u32 v{vX[1]}, {16384 - 1024}, v{vX[1]}")
    k(f"v_lshlrev_b32 v{vL16}, 4, v1")
    k("s_lshr_b32 s27, s20, 2"); k("s_lshl_b32 s27, s27, 5")
    k("s_bfe_u32 s28, s20, 0x10001"); k("s_lshl_b32 s28, s28, 4"); k("s_add_u32 s27, s27, s28")
    k("s_lshl_b32 s28, s25, 2"); k("s_add_u32 s27, s27, s28")
    k("s_mul_i32 s48, s27, 6144"); k("s_lshl_b32 s28, s24, 7"); k("s_add_u32 s48, s48, s28")
    k(f"s_add_u32 s46, s48, {16*64*6144}")
    k("s_lshl_b32 s49, s23, 3"); k("s_add_u32 s49, s49, s20"); k("s_lshl_b32 s49, s49, 15")
    k("s_add_u32 s27, s23, s24"); k("s_and_b32 s27, s27, 15")
    k(f"s_mul_i32 s28, s27, {64*6144}"); k("s_add_u32 s30, s48, s28")
    k("s_lshl_b32 s28, s27, 7"); k("s_add_u32 s31, s49, s28")
    k("s_lshl_b32 s32, s20, 10")
    k("s_lshl_b32 s33, s20, 11"); k(f"s_add_u32 s33, s33, {BOFF}")
    k.stamp("p1_pre")
    k("s_waitcnt lgkmcnt(0)")
    k.stamp("p1_ka")
    srd(k, 8, pWQKV, D * 3 * D * 2)
    srd(k, 12, pWS, WS_SIZE)
    srd(k, 16, pX, MB4)
    def dma(slot):
        o = []
        for m in range(3):
            o.append([f"s_add_u32 m0, s32, {slot*SLOT + m*8192}", f"buffer_load_dwordx4 v{vW[m]}, s[8:11], s30 offen lds"])
        o.append([f"s_add_u32 m0, s33, {slot*SLOT}", f"buffer_load_dwordx4 v{vX[0]}, s[16:19], s31 offen lds"])
        o.append([f"buffer_load_dwordx4 v{vX[1]}, s[16:19], s31 offen offset:1024 lds"])
        return o
    adv = [f"s_add_u32 s30, s30, {64*6144}", "s_add_u32 s31, s31, 128", "s_cmp_eq_u32 s30, s46", "s_cselect_b32 s30, s48, s30", "s_cselect_b32 s31, s49, s31"]
    vm = VM()
    def issue_stage(st):
        for d in dma(st % NS):
            for l in d: k(l)
        for l in adv: k(l)
        vm.issue(("S", st), 5)
    NPRO = 2 if RAMP else NS
    issue_stage(0)
    if not RAMP:
        for st in range(1, NS): issue_stage(st)
    k.stamp("p1_dma")
    srd(k, 88, pWO, D * D * 2)
    k("v_lshlrev_b32 v197, 4, v0")
    k("v_mov_b32 v14, v197")
    l0 = k.lab("noinit")
    k("s_cmp_lg_u32 s2, 0"); k(f"s_cbranch_scc1 {l0}")
    for r in range(4): k(f"v_mov_b32 v{PL+r}, 0")
    k(f"s_mov_b32 s27, {WS_CNT}")
    k(f"buffer_store_dwordx4 v[{PL}:{PL+3}], v14, s[12:15], s27 offen{SC}")
    k(f"{l0}:")
    srd(k, 60, pDBG, 256)
    k("v_lshrrev_b32 v14, 4, v1")
    k("v_bfe_u32 v15, v1, 2, 2")
    k("v_lshrrev_b32 v16, 1, v14"); k("v_and_b32 v17, 1, v14")
    k("v_lshlrev_b32 v16, 4, v16"); k("v_lshl_add_u32 v16, v17, 2, v16"); k("v_add_u32 v16, v16, v15")
    k("v_lshlrev_b32 v16, 7, v16")
    k("v_lshrrev_b32 v18, 1, v15"); k("v_lshl_add_u32 v18, v17, 1, v18")
    k("v_xor_b32 v18, s26, v18")
    k("v_lshl_add_u32 v16, v18, 5, v16")
    k("v_and_b32 v18, 3, v1")
    k(f"v_lshl_add_u32 v{vA[0]}, v18, 3, v16")
    k(f"v_add_u32 v{vA[1]}, {2*SLOT}, v{vA[0]}")
    for i in range(1, 4): k(f"v_cmp_eq_u32 s[{48+2*i}:{49+2*i}], {i}, v18")
    if RAMP:
        k("s_barrier")
        issue_stage(1)
    k("v_cmp_eq_u32 s[56:57], v14, v15")
    k("v_and_b32 v15, 15, v1")
    k("v_cmp_eq_u32 s[58:59], 0, v15")
    k("v_lshrrev_b32 v16, 1, v15"); k("v_xor_b32 v16, v16, v14"); k("v_lshlrev_b32 v16, 4, v16")
    k("v_lshl_add_u32 v16, v15, 7, v16")
    k("s_cmp_eq_u32 s25, 0")
    k("s_cselect_b32 s58, s58, 0"); k("s_cselect_b32 s59, s59, 0")
    k("s_lshl_b32 s28, s25, 13"); k(f"s_add_u32 s28, s28, {BOFF}")
    for jj in range(4):
        k(f"s_xor_b32 s27, s26, {jj}"); k("s_lshl_b32 s27, s27, 11"); k("s_add_u32 s27, s27, s28")
        k(f"v_add_u32 v{VB+jj}, s27, v16")
        k(f"v_xor_b32 v{VB+4+jj}, 64, v{VB+jj}")
        k(f"v_add_u32 v{VB+8+jj}, {2*SLOT}, v{VB+jj}")
        k(f"v_add_u32 v{VB+12+jj}, {2*SLOT}, v{VB+4+jj}")
    k(f"v_mov_b32 v{vZ}, 0")
    k("v_lshlrev_b32 v8, 3, v15")
    k("s_lshl_b32 s42, s23, 3"); k("s_lshl_b32 s27, s25, 2"); k("s_add_u32 s42, s42, s27"); k("s_add_u32 s42, s42, s26")
    k("s_lshl_b32 s42, s42, 7"); k("s_lshl_b32 s27, s24, 14"); k("s_add_u32 s42, s42, s27"); k(f"s_add_u32 s42, s42, {WS_ST1}")
    k("v_lshlrev_b32 v9, 4, v14")
    k("s_lshl_b32 s43, s24, 4"); k("s_add_u32 s43, s43, s23"); k("s_mul_i32 s43, s43, 768")
    k("s_lshl_b32 s27, s26, 6"); k("s_add_u32 s43, s43, s27"); k(f"s_add_u32 s43, s43, {WS_CS1}")
    k("v_and_b32 v196, 1, v1"); k("v_lshlrev_b32 v196, 7, v196")
    for r in range(ACC, ACC + 48): k(f"v_mov_b32 v{r}, 0")
    for r in range(DC, DC + 20): k(f"v_mov_b32 v{r}, 0")
    for r in range(4): k(f"v_mov_b32 v{ONE+r}, 0x3f803f80")
    def reads(buf, slot, kb):
        o = []
        pr = slot >> 1; so = (slot & 1) * SLOT
        def rA(m):
            return [f"ds_read_b64_tr_b16 v[{A[buf]+4*m+2*t}:{A[buf]+4*m+2*t+1}], v{vA[pr]} offset:{so + m*8192 + kb*4096 + t*1024}" for t in range(2)]
        def rB(j):
            return [f"ds_read_b128 v[{B[buf]+4*j}:{B[buf]+4*j+3}], v{VB + pr*8 + kb*4 + j} offset:{so}"]
        o += rA(0)
        for j in range(4): o += rB(j)
        o += rA(1) + rA(2)
        return o
    def side(buf):
        o = []
        fb = f"v[{B[buf]}:{B[buf]+3}]"; on = f"v[{ONE}:{ONE+3}]"
        for m in range(3):
            o.append(f"v_mfma_f32_16x16x32_bf16 v[{DC+4*m}:{DC+4*m+3}], v[{A[buf]+4*m}:{A[buf]+4*m+3}], {on}, v[{DC+4*m}:{DC+4*m+3}]")
        o.append(f"v_mfma_f32_16x16x32_bf16 v[{D1}:{D1+3}], {on}, {fb}, v[{D1}:{D1+3}]")
        o.append(f"v_mfma_f32_16x16x32_bf16 v[{D2}:{D2+3}], {fb}, {fb}, v[{D2}:{D2+3}]")
        return o
    def once(lines):
        l = k.lab("once")
        k("s_cmp_lg_u32 s34, 0"); k(f"s_cbranch_scc1 {l}")
        for x in lines: k(x)
        k(f"{l}:")
    def publish():
        o = [f"v_cndmask_b32 v{D2}, v{D2}, v{D2+1}, s[50:51]", f"v_cndmask_b32 v{D2}, v{D2}, v{D2+2}, s[52:53]", f"v_cndmask_b32 v{D2}, v{D2}, v{D2+3}, s[54:55]",
             f"v_mov_b32 v{D1+1}, v{D2}",
             "s_mov_b64 exec, s[56:57]",
             f"buffer_store_dwordx2 v[{D1}:{D1+1}], v8, s[12:15], s42 offen{SC}",
             "s_mov_b64 exec, s[58:59]"]
        for m in range(3):
            o.append(f"buffer_store_dwordx4 v[{DC+4*m}:{DC+4*m+3}], v9, s[12:15], s43 offen offset:{256*m}{SC}")
        o.append("s_mov_b64 exec, -1")
        return o
    def sig1():
        l = k.lab("nosig1")
        return ["s_cmp_lg_u32 s20, 0", f"s_cbranch_scc1 {l}", "s_mov_b64 exec, 1", "v_mov_b32 v14, 1",
                "s_and_b32 s27, s2, 1", "s_lshl_b32 s27, s27, 7",
                f"buffer_atomic_add v14, v{vZ}, s[60:63], s27 offen sc1", "s_mov_b64 exec, -1", f"{l}:"]
    k.stamp("p1_set")
    k(f"s_waitcnt vmcnt({vm.cnt({('S', 0)})})")
    k.stamp("p1_w0")
    k("s_barrier")
    k.stamp("p1_go")
    for l in reads(0, 0, 0): k(l)
    NT = 16
    def sched(t, kb):
        if RAMP and t < 2: return [2, 3, 4, 5][2 * t + kb]
        if kb == 1 and t + NS < NT: return t + NS
        return None
    def step(o, t, kb, side_here=False, pre=None, post=None, extra_need=()):
        cur = kb; nxt = kb ^ 1; last = t == NT - 1
        if kb == 0:
            o.append("s_waitcnt lgkmcnt(0)")
            rd = reads(nxt, t % NS, 1)
        elif last:
            o.append("s_waitcnt lgkmcnt(0)"); rd = []
        else:
            o.append(f"s_waitcnt vmcnt({vm.cnt({('S', t + 1)} | set(extra_need))}) lgkmcnt(0)")
            o.append("s_barrier")
            rd = reads(nxt, (t + 1) % NS, 0)
        st = sched(t, kb)
        dm = dma(st % NS) if st is not None else []
        if pre: pre(o)
        if st is not None: vm.issue(("S", st), 5)
        mf = []
        for m in range(3):
            for j in range(4):
                a = acc(m, j); fa = f"v[{A[cur]+4*m}:{A[cur]+4*m+3}]"; fb = f"v[{B[cur]+4*j}:{B[cur]+4*j+3}]"
                if m == 2: fa, fb = fb, fa
                mf.append(f"v_mfma_f32_16x16x32_bf16 v[{a}:{a+3}], {fa}, {fb}, v[{a}:{a+3}]")
        gaps = [[] for _ in mf]
        for q, r in enumerate(rd): gaps[q].append(r)
        pos = [1, 3, 5, 7, 9]
        for q, d in enumerate(dm):
            if len(d) == 2:
                gaps[pos[q] - 1].append(d[0]); gaps[pos[q]].append(d[1])
            else:
                gaps[pos[q]].append(d[0])
        if dm: gaps[10] += adv
        for g, mm in enumerate(mf):
            o.append(mm); o += gaps[g]
        if side_here: o += side(cur)
        if post: post(o)
    texts = []
    for per in range(3):
        o = []
        for t in range(per * 4, per * 4 + 4):
            step(o, t, 0, side_here=(t == 0))
            if t == 1:
                o += publish(); vm.issue("PUB", 4, certain=False)
            step(o, t, 1, side_here=(t == 0), extra_need=("PUB",) if t == 3 else ())
            if t == 3: o += sig1(); vm.issue("SIG", 1, certain=False)
        texts.append(o)
    periods(k, "p1loop", texts, 34)
    def partial_loads():
        rdy = k.lab("p1rdy"); spin = k.lab("p1spin"); nocs = k.lab("p1nocs")
        k(f"v_cmp_eq_u32 vcc, 128, v{vP}")
        k("s_cmp_eq_u64 vcc, -1")
        k(f"s_cbranch_scc1 {rdy}")
        k("s_mov_b32 s28, 0")
        k(f"{spin}:")
        k("s_add_u32 s28, s28, 1")
        k(f"s_cmp_gt_u32 s28, {SPIN_LIMIT}")
        k(f"s_cbranch_scc1 {rdy}")
        k("s_sleep 2")
        k(f"buffer_load_dword v{vP}, v196, s[60:63], 0 offen sc1")
        k("s_waitcnt vmcnt(0)")
        k(f"v_cmp_eq_u32 vcc, 128, v{vP}")
        k("s_cmp_eq_u64 vcc, -1")
        k(f"s_cbranch_scc0 {spin}")
        k(f"{rdy}:")
        k("v_and_b32 v14, 3, v0"); k("v_lshlrev_b32 v14, 16, v14")
        k("v_lshrrev_b32 v15, 2, v0"); k("v_lshl_add_u32 v14, v15, 3, v14")
        k("s_lshl_b32 s27, s23, 10"); k(f"s_add_u32 s27, s27, {WS_ST1}")
        for i in range(4):
            k(f"buffer_load_dwordx2 v[{PL+2*i}:{PL+2*i+1}], v14, s[12:15], s27 offen{SC}")
            if i < 3: k("s_add_u32 s27, s27, 16384")
        k("s_cmp_ge_u32 s20, 3")
        k(f"s_cbranch_scc1 {nocs}")
        k("v_lshlrev_b32 v14, 2, v0")
        k(f"s_mul_i32 s27, s24, {16*768}"); k(f"s_add_u32 s27, s27, {WS_CS1}")
        for i in range(16):
            k(f"buffer_load_dword v{PL+8+i}, v14, s[12:15], s27 offen offset:{(i % 4) * 768}{SC}")
            if i % 4 == 3 and i < 15: k(f"s_add_u32 s27, s27, {4*768}")
        k(f"{nocs}:")
    class _O:
        def append(self, x): k(x)
        def __iadd__(self, xs):
            for x in xs: k(x)
            return self
    o = _O()
    for t in range(12, 16):
        step(o, t, 0)
        if t == 12:
            k(f"buffer_load_dword v{vP}, v196, s[60:63], 0 offen sc1"); vm.issue("VP")
            k("s_lshl_b32 s27, s2, 13")
            k(f"buffer_load_dwordx4 v[{RMR}:{RMR+3}], v197, s[88:91], s27 offen"); vm.issue("RMR")
        step(o, t, 1, pre=(lambda o: partial_loads()) if t == 14 else None, extra_need=("VP", "RMR") if t == 14 else ())
    k.stamp("p1_loop")
    k("v_mov_b32 v14, 0")
    for r in range(4): k(f"v_dot2c_f32_bf16 v14, v{RMR+r}, v{ONE}")
    for ro in (8, 4, 2, 1): k(f"v_add_f32_dpp v14, v14, v14 row_ror:{ro} row_mask:0xf bank_mask:0xf")
    for sw in ("v_permlane16_swap_b32", "v_permlane32_swap_b32"):
        k("v_mov_b32 v15, v14"); k(f"{sw} v14, v15"); k("v_add_f32 v14, v14, v15")
    k("s_lshl_b32 s27, s20, 2"); k("s_add_u32 s27, s27, 2048"); k("v_mov_b32 v15, s27")
    k("ds_write_b32 v15, v14")
    k("s_waitcnt vmcnt(0)")
    k(f"v_add_f32 v{PL}, v{PL}, v{PL+2}"); k(f"v_add_f32 v{PL+1}, v{PL+1}, v{PL+3}")
    k(f"v_add_f32 v{PL+4}, v{PL+4}, v{PL+6}"); k(f"v_add_f32 v{PL+5}, v{PL+5}, v{PL+7}")
    k(f"v_add_f32 v{PL}, v{PL}, v{PL+4}"); k(f"v_add_f32 v{PL+1}, v{PL+1}, v{PL+5}")
    for qp in ("[1,0,3,2]", "[2,3,0,1]"):
        k(f"v_add_f32_dpp v{PL}, v{PL}, v{PL} quad_perm:{qp} row_mask:0xf bank_mask:0xf")
        k(f"v_add_f32_dpp v{PL+1}, v{PL+1}, v{PL+1} quad_perm:{qp} row_mask:0xf bank_mask:0xf")
    k(f"v_mul_f32 v{PL}, 0x3a800000, v{PL}")
    k(f"v_mul_f32 v{PL+1}, 0x3a800000, v{PL+1}")
    k("v_lshrrev_b32 v16, 2, v0"); k("v_lshlrev_b32 v16, 2, v16")
    lm = k.lab("nomx")
    k("s_cmp_lg_u32 s24, 0"); k(f"s_cbranch_scc1 {lm}")
    k("s_lshl_b32 s27, s23, 9"); k(f"s_add_u32 s27, s27, {WS_MX}")
    k(f"buffer_store_dword v{PL}, v16, s[12:15], s27 offen{SC}")
    k(f"{lm}:")
    k(f"v_fma_f32 v{PL+1}, -v{PL}, v{PL}, v{PL+1}")
    k(f"v_max_f32 v{PL+1}, 0, v{PL+1}")
    k(f"v_add_f32 v{PL+1}, 0x3727c5ac, v{PL+1}")
    k(f"v_rsq_f32 v{PL+1}, v{PL+1}")
    k(f"v_mul_f32 v{PL+2}, v{PL}, v{PL+1}")
    k(f"v_sub_f32 v{PL+2}, 0, v{PL+2}")
    k(f"ds_write_b32 v16, v{PL+1}")
    k(f"ds_write_b32 v16, v{PL+2} offset:512")
    l2 = k.lab("nocs2")
    k("s_cmp_ge_u32 s20, 3")
    k(f"s_cbranch_scc1 {l2}")
    for st in (8, 4, 2, 1):
        for i in range(st): k(f"v_add_f32 v{PL+8+i}, v{PL+8+i}, v{PL+8+i+st}")
    k("v_lshlrev_b32 v16, 2, v0")
    k(f"ds_write_b32 v16, v{PL+8} offset:1024")
    k(f"{l2}:")
    k("v_and_b32 v15, 15, v1")
    k("s_lshl_b32 s27, s25, 8"); k("s_lshl_b32 s28, s26, 6"); k("s_add_u32 s28, s28, s27")
    k("v_lshlrev_b32 v16, 2, v15")
    k("v_add_u32 v17, s28, v16")
    k("v_lshrrev_b32 v14, 4, v1")
    k("v_lshlrev_b32 v19, 4, v14")
    k("v_add_u32 v20, s28, v19")
    k("s_lshl_b32 s29, s26, 6"); k("s_add_u32 s29, s29, 1024")
    k("v_add_u32 v19, s29, v19")
    k("v_add_u32 v18, s29, v16")
    for jj in range(1, 4):
        k(f"v_xor_b32 v{20+jj}, {jj<<6}, v20")
        k(f"v_xor_b32 v{23+jj}, {jj<<6}, v17")
    k("s_lshl_b32 s27, s23, 2"); k("s_lshl_b32 s28, s25, 1"); k("s_add_u32 s27, s27, s28")
    k("s_lshl_b32 s27, s27, 16")
    k("s_lshl_b32 s28, s24, 12"); k("s_add_u32 s27, s27, s28")
    k("s_lshl_b32 s28, s26, 10"); k("s_add_u32 s27, s27, s28")
    k("s_lshr_b32 s42, s26, 1")
    k("s_lshl_b32 s28, s42, 16"); k("s_add_u32 s35, s27, s28")
    k("s_xor_b32 s28, s28, 0x10000"); k("s_add_u32 s37, s27, s28")
    k(f"s_add_u32 s36, s35, {WS_K}"); k(f"s_add_u32 s38, s37, {WS_K}")
    k(f"s_add_u32 s35, s35, {WS_Q}"); k(f"s_add_u32 s37, s37, {WS_Q}")
    k("s_lshl_b32 s27, s24, 1"); k("s_add_u32 s27, s27, s42")
    k("s_lshl_b32 s27, s27, 7")
    k("s_lshl_b32 s28, s23, 3"); k("s_add_u32 s27, s27, s28")
    k("s_lshl_b32 s28, s25, 2"); k("s_add_u32 s27, s27, s28")
    k("s_lshl_b32 s27, s27, 10")
    k("s_and_b32 s43, s26, 1")
    k("s_lshl_b32 s28, s43, 8"); k("s_add_u32 s27, s27, s28")
    k(f"s_add_u32 s27, s27, {WS_VT}")
    k("s_lshl_b32 s28, s42, 11"); k("s_add_u32 s39, s27, s28")
    k("s_xor_b32 s28, s28, 2048"); k("s_add_u32 s40, s27, s28")
    k("v_lshrrev_b32 v27, 5, v1"); k("v_xor_b32 v27, s43, v27"); k("v_lshlrev_b32 v27, 10, v27")
    k("v_bfe_u32 v28, v1, 4, 1"); k("v_lshl_add_u32 v27, v28, 9, v27")
    k("v_lshl_add_u32 v14, v15, 4, v27")
    k("s_lshl_b32 s28, s43, 8")
    k(f"v_xor_b32 v{vL16}, s28, v{vL16}")
    k("s_waitcnt lgkmcnt(0)")
    k("s_barrier")
    SQ = 28; CQ = 36
    k(f"ds_read2_b32 v[{SQ}:{SQ+1}], v17 offset0:0 offset1:128")
    for jj in range(1, 4): k(f"ds_read2_b32 v[{SQ+2*jj}:{SQ+2*jj+1}], v{23+jj} offset0:0 offset1:128")
    k(f"ds_read_b128 v[{CQ}:{CQ+3}], v19")
    k(f"ds_read_b128 v[{CQ+4}:{CQ+7}], v19 offset:256")
    k("ds_read_b32 v152, v18 offset:512")
    VS = [112, 120, 128, 136]
    for jj in range(4):
        k(f"ds_read_b128 v[{VS[jj]}:{VS[jj]+3}], v{20+jj}")
        k(f"ds_read_b128 v[{VS[jj]+4}:{VS[jj]+7}], v{20+jj} offset:512")
    l7 = k.lab("norm")
    k("s_cmp_lg_u32 s20, 7"); k(f"s_cbranch_scc1 {l7}")
    k(f"ds_read_b128 v[{PL}:{PL+3}], v{vZ} offset:2048")
    k(f"ds_read_b128 v[{PL+4}:{PL+7}], v{vZ} offset:2064")
    k("s_waitcnt lgkmcnt(0)")
    for r in range(4):
        k(f"v_add_f32 v{PL+2*r}, v{PL+2*r}, v{PL+2*r+1}")
        k(f"v_mul_f32 v{PL+2*r}, 0x3a800000, v{PL+2*r}")
    k(f"v_cvt_pk_bf16_f32 v{PL+8}, v{PL}, v{PL+2}")
    k(f"v_cvt_pk_bf16_f32 v{PL+9}, v{PL+4}, v{PL+6}")
    k("s_lshl_b32 s27, s2, 3"); k(f"s_add_u32 s27, s27, {WS_RM}")
    k("s_mov_b64 exec, 1")
    k(f"buffer_store_dwordx2 v[{PL+8}:{PL+9}], v{vZ}, s[12:15], s27 offen{SC}")
    k("s_mov_b64 exec, -1")
    k(f"{l7}:")
    k("s_mov_b32 s44, 0x3e8293ee")
    k("s_waitcnt lgkmcnt(9)")
    QS = 52
    for jj in range(4):
        k(f"v_mul_f32 v{QS+2*jj}, s44, v{SQ+2*jj}")
        k(f"v_mul_f32 v{QS+2*jj+1}, s44, v{SQ+2*jj+1}")
    TP = [16, 20, 24, 44, 48, 60]
    TM = 144
    ti = 0
    for m in range(3):
        if m == 2: k("s_waitcnt lgkmcnt(0)")
        for p in range(2):
            t = TP[ti]; ti += 1
            for jj2 in range(2):
                jj = 2 * p + jj2
                a = acc(m, jj)
                for h in range(2):
                    tm = TM + 2 * ((jj2 * 2 + h) & 3)
                    if m < 2:
                        st = (QS if m == 0 else SQ) + 2 * jj
                        cs = CQ + 4 * m + 2 * h
                        k(f"v_pk_mul_f32 v[{tm}:{tm+1}], v[{cs}:{cs+1}], v[{st}:{st+1}] op_sel:[0,1] op_sel_hi:[1,1]")
                        k(f"v_pk_fma_f32 v[{a+2*h}:{a+2*h+1}], v[{a+2*h}:{a+2*h+1}], v[{st}:{st+1}], v[{tm}:{tm+1}] op_sel:[0,0,0] op_sel_hi:[1,0,1]")
                    else:
                        rs = VS[jj] + 2 * h; nm = VS[jj] + 4 + 2 * h
                        k(f"v_pk_mul_f32 v[{tm}:{tm+1}], v[{nm}:{nm+1}], v[152:153] op_sel:[0,0] op_sel_hi:[1,0]")
                        k(f"v_pk_fma_f32 v[{a+2*h}:{a+2*h+1}], v[{a+2*h}:{a+2*h+1}], v[{rs}:{rs+1}], v[{tm}:{tm+1}]")
                k(f"v_cvt_pk_bf16_f32 v{t+2*jj2}, v{a}, v{a+1}")
                k(f"v_cvt_pk_bf16_f32 v{t+2*jj2+1}, v{a+2}, v{a+3}")
            sw = "v_permlane16_swap_b32" if m < 2 else "v_permlane32_swap_b32"
            k(f"{sw} v{t}, v{t+2}")
            k(f"{sw} v{t+1}, v{t+3}")
            so = [[35, 37], [36, 38], [39, 40]][m][p]
            k(f"buffer_store_dwordx4 v[{t}:{t+3}], v{vL16 if m < 2 else 14}, s[12:15], s{so} offen{SC}")
    k.stamp("p1_epi")
    k("s_lshl_b32 s27, s24, 7"); k(f"s_add_u32 s27, s27, {WS_CNT + C2*128}")
    signal(k, 27, vt=(30, 31))
    k.stamp("p1_sig")

W3BASE = 98304
vW3 = [200, 201]
C35 = int(os.environ.get("C35", "0"))
def coords35(k, stb, scb, st):
    k("s_and_b32 s21, s2, 7"); k("s_lshr_b32 s22, s2, 3")
    if C35 == 0:
        k(f"s_and_b32 s{stb}, s21, 3"); k(f"s_lshl_b32 s{stb}, s{stb}, 2"); k(f"s_and_b32 s{st}, s22, 3"); k(f"s_add_u32 s{stb}, s{stb}, s{st}")
        k(f"s_lshr_b32 s{scb}, s21, 2"); k(f"s_lshl_b32 s{scb}, s{scb}, 3"); k(f"s_lshr_b32 s{st}, s22, 2"); k(f"s_add_u32 s{scb}, s{scb}, s{st}")
    elif C35 == 2:
        k(f"s_lshl_b32 s{stb}, s21, 1"); k(f"s_lshr_b32 s{st}, s22, 4"); k(f"s_add_u32 s{stb}, s{stb}, s{st}")
        k(f"s_and_b32 s{scb}, s22, 15")
    elif C35 == 3:
        k(f"s_and_b32 s{stb}, s21, 1"); k(f"s_lshl_b32 s{stb}, s{stb}, 3"); k(f"s_lshr_b32 s{st}, s22, 2"); k(f"s_add_u32 s{stb}, s{stb}, s{st}")
        k(f"s_lshr_b32 s{scb}, s21, 1"); k(f"s_lshl_b32 s{scb}, s{scb}, 2"); k(f"s_and_b32 s{st}, s22, 3"); k(f"s_add_u32 s{scb}, s{scb}, s{st}")
    elif C35 == 4:
        k(f"s_and_b32 s{stb}, s21, 3"); k(f"s_lshl_b32 s{stb}, s{stb}, 2"); k(f"s_lshr_b32 s{st}, s22, 3"); k(f"s_add_u32 s{stb}, s{stb}, s{st}")
        k(f"s_lshr_b32 s{scb}, s21, 2"); k(f"s_and_b32 s{st}, s22, 7"); k(f"s_lshl_b32 s{st}, s{st}, 1"); k(f"s_add_u32 s{scb}, s{scb}, s{st}")
    else:
        k(f"s_and_b32 s{stb}, s21, 3"); k(f"s_lshl_b32 s{stb}, s{stb}, 2"); k(f"s_lshr_b32 s{st}, s22, 3"); k(f"s_add_u32 s{stb}, s{stb}, s{st}")
        k(f"s_lshr_b32 s{scb}, s21, 2"); k(f"s_lshl_b32 s{scb}, s{scb}, 3"); k(f"s_and_b32 s{st}, s22, 7"); k(f"s_add_u32 s{scb}, s{scb}, s{st}")
WT3 = int(os.environ.get("WT3", "0")); WT5 = int(os.environ.get("WT5", "0"))
WDT = int(os.environ.get("WDT", "0"))
WS_WDT = 0x3000000
WDA = int(os.environ.get("WDA", "3")); WDP = int(os.environ.get("WDP", "4"))
def w35_setup(k, vW, base, t, tiled=0):
    coords35(k, 27, 29, 28)
    rb = 128 if tiled else 2048
    wdma_lane(k, vW[0], rb, t)
    k(f"v_add_u32 v{vW[1]}, {4*rb}, v{vW[0]}")
    k("s_lshr_b32 s27, s20, 1"); k("s_lshl_b32 s27, s27, 5"); k("s_and_b32 s28, s20, 1"); k("s_lshl_b32 s28, s28, 4")
    k("s_add_u32 s27, s27, s28")
    if tiled:
        k("s_lshl_b32 s50, s27, 7"); k(f"s_mul_i32 s28, s29, {tiled*128}"); k("s_add_u32 s50, s50, s28")
        if WDT and base == 0: k(f"s_add_u32 s50, s50, {WS_WDT}")
    else:
        k("s_lshl_b32 s50, s27, 11"); k("s_lshl_b32 s28, s29, 7"); k("s_add_u32 s50, s50, s28")
        if os.environ.get("WOFF64") and base == 0: k("s_add_u32 s50, s50, 64")
    k("s_lshl_b32 s51, s20, 11")
    if base: k(f"s_add_u32 s51, s51, {base}")
def w35_dma(vW, srdw, slot):
    sc = SC if srdw == 12 else ""
    return [[f"s_add_u32 m0, s51, {slot*16384}", f"buffer_load_dwordx4 v{vW[0]}, s[{srdw}:{srdw+3}], s50 offen{sc} lds"],
            [f"s_add_u32 m0, s51, {slot*16384+1024}", f"buffer_load_dwordx4 v{vW[1]}, s[{srdw}:{srdw+3}], s50 offen{sc} lds"]]
W3ADV = f"s_add_u32 s50, s50, {128*(128 if WT3 else 2048)}"
W5ADV = f"s_add_u32 s50, s50, {128*(128 if WT5 or WDT else 2048)}"
SW5 = 12 if WDT else 60

WOPF = int(os.environ.get("WOPF", "0"))
OT = int(os.environ.get("OT", "0"))
def phase2(k):
    STG = 32768
    vL16, vCur, vNxt, vTmp = 2, 3, 4, 5
    QA, QB = 8, 16
    KF = [24, 32]; VF = [40, 48]
    SA, SB = 56, 72
    PA, PB = 88, 96
    OA, OB = 104, 120
    LA, LB = 136, 140
    NA, NB = 144, 160
    ONE = 176
    T0 = 180
    w35_setup(k, vW3, W3BASE, 180, D if WT3 else 0)
    srd(k, 8, pBX if WT3 else pWO, D * D * 2)
    k("s_and_b32 s21, s2, 7"); k("s_lshl_b32 s21, s21, 2"); k("s_lshr_b32 s22, s2, 6"); k("s_add_u32 s21, s21, s22")
    k("s_bfe_u32 s22, s2, 0x30003")
    k("s_and_b32 s23, s20, 3")
    k("s_lshr_b32 s24, s20, 2")
    k(f"v_lshlrev_b32 v{vL16}, 4, v1")
    k("s_lshl_b32 s30, s24, 5"); k("s_add_u32 s30, s30, s23"); k("s_lshl_b32 s30, s30, 16")
    k("s_lshl_b32 s25, s21, 11"); k("s_add_u32 s30, s30, s25"); k(f"s_add_u32 s30, s30, {WS_K}")
    k("s_lshl_b32 s31, s21, 7"); k("s_lshl_b32 s25, s24, 6"); k("s_add_u32 s31, s31, s25")
    k("s_lshl_b32 s25, s23, 1"); k("s_add_u32 s31, s31, s25"); k("s_lshl_b32 s31, s31, 10"); k(f"s_add_u32 s31, s31, {WS_VT}")
    k("s_lshl_b32 s32, s24, 14"); k("s_lshl_b32 s25, s23, 11"); k("s_add_u32 s32, s32, s25")
    k("s_lshl_b32 s33, s22, 3"); k("s_lshl_b32 s25, s23, 1"); k("s_add_u32 s33, s33, s25"); k("s_lshl_b32 s33, s33, 16")
    k("s_lshl_b32 s25, s21, 11"); k("s_add_u32 s33, s33, s25")
    k(f"s_add_u32 s45, s33, {WS_O}")
    k(f"s_add_u32 s33, s33, {WS_Q}")
    k("s_add_u32 s34, s33, 65536")
    k(f"v_lshrrev_b32 v{vTmp}, 2, v1"); k(f"v_lshrrev_b32 v{T0}, 4, v1"); k(f"v_xor_b32 v{vTmp}, v{vTmp}, v{T0}")
    k(f"v_and_b32 v{vTmp}, 1, v{vTmp}"); k(f"v_cmp_eq_u32 vcc, 0, v{vTmp}")
    k(f"v_mov_b32 v{T0}, 0x3f803f80")
    k(f"v_cndmask_b32 v{ONE}, 0, v{T0}, vcc")
    for r in range(1, 4): k(f"v_mov_b32 v{ONE+r}, v{ONE}")
    for r in range(32): k(f"v_mov_b32 v{NA+r}, 0")
    k("s_mov_b32 s46, 0")
    k("s_lshl_b32 s25, s24, 14")
    k(f"v_add_u32 v{vTmp}, s25, v{vL16}")
    if PFW:
        k("s_lshl_b32 s25, s2, 3"); k("s_add_u32 s25, s25, s20")
        k("s_mul_i32 s26, s25, 3584")
        k(f"v_lshlrev_b32 v198, 6, v1"); k("v_add_u32 v198, s26, v198")
        srd(k, 88, pWO, D * D * 2)
        k(f"s_mov_b64 s[92:93], s[{pWG}:{pWG+1}]"); k(f"s_mov_b64 s[94:95], s[{pWU}:{pWU+1}]"); k(f"s_mov_b64 s[96:97], s[{pWD}:{pWD+1}]")
    WDR, vWDS = 208, 224
    if WDT:
        srd(k, 60, pWD, DF * D * 2)
        k(f"v_lshrrev_b32 v{vWDS}, 3, v1"); k(f"s_mov_b32 s26, {DF*128}"); k(f"v_mul_lo_u32 v{vWDS}, v{vWDS}, s26")
        k(f"v_and_b32 v{vWDS+1}, 7, v1"); k(f"v_lshl_add_u32 v{vWDS}, v{vWDS+1}, 4, v{vWDS}")
        k("s_mul_i32 s98, s2, 14"); k("s_lshl_b32 s26, s20, 1"); k("s_add_u32 s98, s98, s26"); k("s_lshl_b32 s98, s98, 7")
        k(f"s_add_u32 s98, s98, {WS_WDT - 256}"); k(f"s_add_u32 s99, s98, {8*DF*128}")
        k("s_mul_i32 s100, s2, 28672"); k("s_lshl_b32 s26, s20, 12"); k("s_add_u32 s100, s100, s26"); k("s_sub_u32 s100, s100, 4096")
        k("s_cmp_eq_u32 s20, 0"); k(f"s_cselect_b32 s101, 99, {WDA}")
        if WDT == 3: k(f"s_cselect_b32 s101, 99, {hex((-WDA - 1) & 0xffffffff)}")
        if WDT >= 2:
            assert WDA % 2 == 1
            k(f"s_sub_u32 s98, s98, {128 * ((WDA + 1) // 2)}"); k(f"s_mov_b32 s99, {8*DF*128}"); k(f"s_sub_u32 s100, s100, {1024*WDA}")
    k("s_lshr_b32 s27, s21, 1"); k("s_lshl_b32 s27, s27, 7"); k(f"s_add_u32 s27, s27, {WS_CNT + C2*128}")
    wait(k, 27, 16, vt=(T0, T0 + 1), pr=KF[0])
    k.stamp("p2_wait")
    for kk in range(2):
        k(f"buffer_load_dwordx4 v[{QA+4*kk}:{QA+4*kk+3}], v{vL16}, s[12:15], s33 offen offset:{1024*kk}{SC}")
        k(f"buffer_load_dwordx4 v[{QB+4*kk}:{QB+4*kk+3}], v{vL16}, s[12:15], s34 offen offset:{1024*kk}{SC}")
    def dma_stage():
        k("s_add_u32 m0, s42, s32")
        k(f"buffer_load_dwordx4 v{vL16}, s[12:15], s40 offen{SC} lds")
        k(f"buffer_load_dwordx4 v{vL16}, s[12:15], s40 offen offset:1024{SC} lds")
        k("s_add_u32 m0, m0, 8192")
        k(f"buffer_load_dwordx4 v{vL16}, s[12:15], s41 offen{SC} lds")
        k(f"buffer_load_dwordx4 v{vL16}, s[12:15], s41 offen offset:1024{SC} lds")
        k(f"s_add_u32 s40, s40, {4*65536}")
        k("s_add_u32 s41, s41, 8192")
    lmain = k.lab("p2main"); lloop = k.lab("p2loop"); lfin = k.lab("p2fin"); lfb = k.lab("p2fb"); lend = k.lab("p2end")
    k(f"{lmain}:")
    k("s_mov_b32 s40, s30"); k("s_mov_b32 s41, s31")
    k("s_mov_b32 s42, 0"); dma_stage()
    k(f"s_mov_b32 s42, {STG}"); dma_stage()
    k(f"s_mov_b32 s42, {2*STG}")
    k(f"v_mov_b32 v{vCur}, v{vTmp}")
    k(f"v_add_u32 v{vNxt}, {STG}, v{vTmp}")
    k(f"s_mov_b32 s43, {STG}")
    for r in range(16): k(f"v_mov_b32 v{OA+r}, 0"); k(f"v_mov_b32 v{OB+r}, 0")
    for r in range(4): k(f"v_mov_b32 v{LA+r}, 0"); k(f"v_mov_b32 v{LB+r}, 0")
    for r in range(8): k(f"v_mov_b32 v{PB+r}, 0"); k(f"v_mov_b32 v{VF[1]+r}, 0")
    def wo_ring():
        lnp = k.lab("p2nopf")
        k("s_cmp_lg_u32 s46, 0"); k(f"s_cbranch_scc1 {lnp}")
        for t in range(4):
            for d in w35_dma(vW3, 8, t):
                for l in d: k(l)
            k(W3ADV)
        k(f"{lnp}:")
    if WOPF == 0:
        lnp = k.lab("p2nopf"); lj = k.lab("p2pfj")
        k("s_cmp_lg_u32 s46, 0"); k(f"s_cbranch_scc1 {lnp}")
        for t in range(4):
            for d in w35_dma(vW3, 8, t):
                for l in d: k(l)
            k(W3ADV)
        k("s_waitcnt vmcnt(12)")
        k(f"s_branch {lj}")
        k(f"{lnp}:")
        k("s_waitcnt vmcnt(4)")
        k(f"{lj}:")
    else:
        k("s_waitcnt vmcnt(4)")
    k("s_barrier")
    k.stamp("p2_go")
    if WOPF == 1: wo_ring()
    for kk in range(2):
        k(f"ds_read_b128 v[{KF[0]+4*kk}:{KF[0]+4*kk+3}], v{vCur} offset:{1024*kk}")
    k("s_waitcnt lgkmcnt(0)")
    def qk(Sx, Qx, Nx, kf):
        return [f"v_mfma_f32_32x32x16_bf16 v[{Sx}:{Sx+15}], v[{kf}:{kf+3}], v[{Qx}:{Qx+3}], v[{Nx}:{Nx+15}]",
                f"v_mfma_f32_32x32x16_bf16 v[{Sx}:{Sx+15}], v[{kf+4}:{kf+7}], v[{Qx+4}:{Qx+7}], v[{Sx}:{Sx+15}]"]
    def pv(Ox, Px, Lx, vf):
        return [f"v_mfma_f32_32x32x16_bf16 v[{Ox}:{Ox+15}], v[{vf}:{vf+3}], v[{Px}:{Px+3}], v[{Ox}:{Ox+15}]",
                f"v_mfma_f32_32x32x16_bf16 v[{Ox}:{Ox+15}], v[{vf+4}:{vf+7}], v[{Px+4}:{Px+7}], v[{Ox}:{Ox+15}]",
                f"v_mfma_f32_16x16x32_bf16 v[{Lx}:{Lx+3}], v[{ONE}:{ONE+3}], v[{Px}:{Px+3}], v[{Lx}:{Lx+3}]",
                f"v_mfma_f32_16x16x32_bf16 v[{Lx}:{Lx+3}], v[{ONE}:{ONE+3}], v[{Px+4}:{Px+7}], v[{Lx}:{Lx+3}]"]
    def expv(Sx, Px):
        o = []
        for g in range(4):
            o += [f"v_exp_f32 v{Sx+4*g+r}, v{Sx+4*g+r}" for r in range(4)]
            o += [f"v_cvt_pk_bf16_f32 v{Px+2*g}, v{Sx+4*g}, v{Sx+4*g+1}", f"v_cvt_pk_bf16_f32 v{Px+2*g+1}, v{Sx+4*g+2}, v{Sx+4*g+3}"]
        return o
    def phase(mf, va, extra):
        for i in range(6):
            k(mf[i])
            for (p, l) in extra:
                if p == i: k(l)
            for l in va[4*i:4*i+4]: k(l)
    for l in qk(SA, QA, NA, KF[0]): k(l)
    k("s_mov_b32 s44, 0")
    k(f"{lloop}:")
    for i in range(4):
        cb = i & 1; nb = cb ^ 1
        ex = []
        if i == 3:
            lnd = k.lab("nodma")
            k(f"s_waitcnt vmcnt({1 if PFW and PFI < 3 else 0})")
            k("s_barrier")
            k("s_cmp_ge_u32 s44, 6")
            k(f"s_cbranch_scc1 {lnd}")
            dma_stage()
            k(f"s_add_u32 s42, s42, {STG}")
            k(f"s_cmp_eq_u32 s42, {3*STG}")
            k("s_cselect_b32 s42, 0, s42")
            k(f"{lnd}:")
            if WDT == 1:
                lw = k.lab("nowd"); ls = k.lab("wdst")
                k("s_sub_u32 s27, s44, s101"); k("s_cmp_lt_u32 s27, 2"); k(f"s_cbranch_scc0 {lw}")
                k("s_cmp_eq_u32 s27, 1"); k(f"s_cbranch_scc1 {ls}")
                for q in range(4):
                    k(f"buffer_load_dwordx4 v[{WDR+4*q}:{WDR+4*q+3}], v{vL16}, s[60:63], s100 offen offset:{1024*q}")
                k(f"s_branch {lw}")
                k(f"{ls}:")
                for q in range(4):
                    k(f"buffer_store_dwordx4 v[{WDR+4*q}:{WDR+4*q+3}], v{vWDS}, s[12:15], s{98 + (q & 1)} offen offset:{128*(q>>1)}{SC}")
                k(f"{lw}:")
            if WDT == 2:
                k("s_sub_u32 s27, s44, s101"); k("s_sub_u32 s27, s27, 1")
                k("s_cmp_lt_u32 s27, 4"); k("s_cselect_b64 exec, -1, 0")
                k(f"buffer_store_dwordx4 v[{WDR}:{WDR+3}], v{vWDS}, s[12:15], s98 offen{SC}")
                k("s_add_u32 s27, s27, 1")
                k("s_cmp_lt_u32 s27, 4"); k("s_cselect_b64 exec, -1, 0")
                k(f"buffer_load_dwordx4 v[{WDR}:{WDR+3}], v{vL16}, s[60:63], s100 offen")
                k("s_mov_b64 exec, -1")
                k("s_add_u32 s98, s98, s99"); k("s_sub_u32 s99, 128, s99"); k("s_add_u32 s100, s100, 1024")
        if i == PFI and PFW:
            ex += [(4, "buffer_load_dword v199, v198, s[88:91], 0 offen"),
                   (5, "s_mov_b64 s[88:89], s[92:93]"), (5, "s_mov_b64 s[92:93], s[94:95]"), (5, "s_mov_b64 s[94:95], s[96:97]"),
                   (5, f"s_cmp_lt_u32 s44, {2 if WDT else 3}"), (5, f"s_cselect_b32 s90, {hex(D*DF*2)}, 0")]
        for kk in range(2):
            if i < 3: ex.append((kk, f"ds_read_b128 v[{KF[nb]+4*kk}:{KF[nb]+4*kk+3}], v{vCur} offset:{(i+1)*2048 + 1024*kk}"))
            else:     ex.append((kk, f"ds_read_b128 v[{KF[nb]+4*kk}:{KF[nb]+4*kk+3}], v{vNxt} offset:{1024*kk}"))
        for mm in range(2):
            ex.append((2 + mm, f"ds_read_b128 v[{VF[cb]+4*mm}:{VF[cb]+4*mm+3}], v{vCur} offset:{8192 + i*2048 + 1024*mm}"))
        phase(qk(SB, QB, NB, KF[cb]) + pv(OB, PB, LB, VF[nb]), expv(SA, PA), ex)
        k("s_waitcnt lgkmcnt(0)")
        ex = []
        if i == 3:
            ex = [(0, f"v_mov_b32 v{vCur}, v{vNxt}"), (1, f"s_add_u32 s43, s43, {STG}"), (1, f"s_cmp_eq_u32 s43, {3*STG}"),
                  (2, "s_cselect_b32 s43, 0, s43"), (3, f"v_add_u32 v{vNxt}, s43, v{vTmp}")]
            if WDT == 3:
                p = WDP
                ex += [(p, x) for x in ("s_cmp_lt_u32 s101, 4", "s_cselect_b64 exec, -1, 0",
                       f"buffer_store_dwordx4 v[{WDR}:{WDR+3}], v{vWDS}, s[12:15], s98 offen{SC}",
                       "s_add_u32 s101, s101, 1", "s_cmp_lt_u32 s101, 4", "s_cselect_b64 exec, -1, 0",
                       f"buffer_load_dwordx4 v[{WDR}:{WDR+3}], v{vL16}, s[60:63], s100 offen", "s_mov_b64 exec, -1")]
                ex += [(5, x) for x in ("s_add_u32 s98, s98, s99", "s_sub_u32 s99, 128, s99", "s_add_u32 s100, s100, 1024")]
        phase(qk(SA, QA, NA, KF[nb]) + pv(OA, PA, LA, VF[cb]), expv(SB, PB), ex)
    k("s_add_u32 s44, s44, 1")
    k("s_cmp_lt_u32 s44, 8")
    k(f"s_cbranch_scc1 {lloop}")
    for l in pv(OB, PB, LB, VF[1]): k(l)
    k.stamp("p2_loop")
    if WOPF == 2: wo_ring()
    k("s_nop 7"); k("s_nop 3")
    lns = k.lab("nosw")
    k("s_cmp_eq_u32 s24, 0")
    k(f"s_cbranch_scc1 {lns}")
    for r in range(16): k(f"v_swap_b32 v{OA+r}, v{OB+r}")
    k(f"v_swap_b32 v{LA}, v{LB}")
    k(f"{lns}:")
    k("s_barrier")
    k("s_mul_i32 s25, s20, 5120")
    k(f"v_add_u32 v{T0}, s25, v{vL16}")
    k(f"v_lshlrev_b32 v{T0+1}, 2, v1"); k(f"v_add_u32 v{T0+1}, s25, v{T0+1}")
    for i in range(4): k(f"ds_write_b128 v{T0}, v[{OB+4*i}:{OB+4*i+3}] offset:{1024*i}")
    k(f"ds_write_b32 v{T0+1}, v{LB} offset:4096")
    k("s_xor_b32 s26, s20, 4"); k("s_mul_i32 s25, s26, 5120")
    k(f"v_add_u32 v{T0}, s25, v{vL16}")
    k(f"v_lshlrev_b32 v{T0+1}, 2, v1"); k(f"v_add_u32 v{T0+1}, s25, v{T0+1}")
    k("s_waitcnt lgkmcnt(0)")
    k("s_barrier")
    for i in range(4): k(f"ds_read_b128 v[{OB+4*i}:{OB+4*i+3}], v{T0} offset:{1024*i}")
    k(f"ds_read_b32 v{LB}, v{T0+1} offset:4096")
    k("s_waitcnt lgkmcnt(0)")
    k(f"v_add_f32 v{LA}, v{LA}, v{LB}")
    for r in range(16): k(f"v_add_f32 v{OA+r}, v{OA+r}, v{OB+r}")
    k("s_cmp_lg_u32 s46, 0")
    k(f"s_cbranch_scc1 {lfin}")
    k(f"v_mov_b32 v{T0+2}, v{LA}")
    for r in range(16): k(f"v_fma_f32 v{T0+2}, v{OA+r}, 0, v{T0+2}")
    k(f"v_mov_b32 v{T0+3}, 0x71800000")
    k(f"v_cmp_le_f32 vcc, 1.0, v{T0+2}")
    k(f"v_cmp_le_f32 s[48:49], v{T0+2}, v{T0+3}")
    k("s_and_b64 vcc, vcc, s[48:49]")
    k("s_cmp_eq_u64 vcc, -1")
    k("s_cselect_b32 s47, 0, 1")
    k(f"v_mov_b32 v{T0+2}, s47")
    k(f"s_lshl_b32 s25, s20, 2"); k(f"v_mov_b32 v{T0+3}, s25")
    k(f"ds_write_b32 v{T0+3}, v{T0+2} offset:45056")
    k("s_waitcnt lgkmcnt(0)")
    k("s_barrier")
    k(f"v_mov_b32 v{T0+3}, 0")
    k(f"ds_read_b128 v[{T0+4}:{T0+7}], v{T0+3} offset:45056")
    k(f"ds_read_b128 v[{T0+8}:{T0+11}], v{T0+3} offset:45072")
    k("s_waitcnt lgkmcnt(0)")
    k(f"v_or3_b32 v{T0+4}, v{T0+4}, v{T0+5}, v{T0+6}")
    k(f"v_or3_b32 v{T0+8}, v{T0+8}, v{T0+9}, v{T0+10}")
    k(f"v_or3_b32 v{T0+4}, v{T0+4}, v{T0+7}, v{T0+11}")
    k(f"v_or_b32 v{T0+4}, v{T0+4}, v{T0+8}")
    k(f"v_readfirstlane_b32 s47, v{T0+4}")
    k("s_cmp_lg_u32 s47, 0")
    k(f"s_cbranch_scc1 {lfb}")
    k(f"{lfin}:")
    k(f"v_rcp_f32 v{LA}, v{LA}")
    for g in range(4):
        for r in range(4): k(f"v_mul_f32 v{OA+4*g+r}, v{OA+4*g+r}, v{LA}")
        k(f"v_cvt_pk_bf16_f32 v{SA+2*g}, v{OA+4*g}, v{OA+4*g+1}")
        k(f"v_cvt_pk_bf16_f32 v{SA+2*g+1}, v{OA+4*g+2}, v{OA+4*g+3}")
    k("s_lshl_b32 s25, s24, 16"); k("s_add_u32 s45, s45, s25")
    for p in range(2):
        k(f"v_permlane32_swap_b32 v{SA+4*p}, v{SA+4*p+2}")
        k(f"v_permlane32_swap_b32 v{SA+4*p+1}, v{SA+4*p+3}")
        k(f"buffer_store_dwordx4 v[{SA+4*p}:{SA+4*p+3}], v{vL16}, s[12:15], s45 offen offset:{1024*p}{SC}")
    k(f"s_branch {lend}")
    k(f"{lfb}:")
    k("s_mov_b32 s46, 1")
    if WDT: k("s_mov_b32 s101, 99")
    k("s_barrier")
    MA, MB = T0 + 2, T0 + 3
    k(f"v_mov_b32 v{MA}, 0xff800000"); k(f"v_mov_b32 v{MB}, 0xff800000")
    k("s_lshl_b32 s40, s24, 21"); k("s_lshl_b32 s25, s21, 11"); k("s_add_u32 s40, s40, s25"); k(f"s_add_u32 s40, s40, {WS_K}")
    k("s_mov_b32 s44, 0")
    lfl = k.lab("p2fbl")
    k(f"{lfl}:")
    for kk in range(2):
        k(f"buffer_load_dwordx4 v[{KF[0]+4*kk}:{KF[0]+4*kk+3}], v{vL16}, s[12:15], s40 offen offset:{1024*kk}{SC}")
    k("s_waitcnt vmcnt(0)")
    for (Sx, Qx) in ((SA, QA), (SB, QB)):
        k(f"v_mfma_f32_32x32x16_bf16 v[{Sx}:{Sx+15}], v[{KF[0]}:{KF[0]+3}], v[{Qx}:{Qx+3}], 0")
        k(f"v_mfma_f32_32x32x16_bf16 v[{Sx}:{Sx+15}], v[{KF[0]+4}:{KF[0]+7}], v[{Qx+4}:{Qx+7}], v[{Sx}:{Sx+15}]")
    for (Sx, Mx) in ((SA, MA), (SB, MB)):
        for r in range(0, 16, 2): k(f"v_max3_f32 v{Mx}, v{Mx}, v{Sx+r}, v{Sx+r+1}")
    k("s_add_u32 s40, s40, 65536")
    k("s_add_u32 s44, s44, 1")
    k("s_cmp_lt_u32 s44, 32")
    k(f"s_cbranch_scc1 {lfl}")
    for Mx in (MA, MB):
        k(f"v_mov_b32 v{T0+4}, v{Mx}")
        k(f"v_permlane32_swap_b32 v{Mx}, v{T0+4}")
        k(f"v_max_f32 v{Mx}, v{Mx}, v{T0+4}")
    k("s_lshl_b32 s25, s20, 9")
    k(f"v_lshlrev_b32 v{T0+4}, 3, v1"); k(f"v_add_u32 v{T0+5}, s25, v{T0+4}")
    k(f"ds_write_b64 v{T0+5}, v[{MA}:{MB}]")
    k("s_xor_b32 s26, s20, 4"); k("s_lshl_b32 s25, s26, 9")
    k(f"v_add_u32 v{T0+5}, s25, v{T0+4}")
    k("s_waitcnt lgkmcnt(0)")
    k("s_barrier")
    k(f"ds_read_b64 v[{T0+6}:{T0+7}], v{T0+5}")
    k("s_waitcnt lgkmcnt(0)")
    k(f"v_max_f32 v{MA}, v{MA}, v{T0+6}")
    k(f"v_max_f32 v{MB}, v{MB}, v{T0+7}")
    for r in range(16):
        k(f"v_sub_f32 v{NA+r}, 0, v{MA}")
        k(f"v_sub_f32 v{NB+r}, 0, v{MB}")
    k("s_barrier")
    k(f"s_branch {lmain}")
    k(f"{lend}:")
    k.stamp("p2_epi")
    k("s_lshl_b32 s27, s22, 7"); k(f"s_add_u32 s27, s27, {WS_CNT + C3*128}")
    signal(k, 27, vt=(T0, T0 + 1))
    k.stamp("p2_sig")

SLOT4 = 30720; UOFF = 7168; BOFF4 = 14336
RMOFF = 75776; XMOFF = 83968; HKOFF = 147456
vPW = 202
vW5 = [240, 241]
NPF5 = 3
NS5 = int(os.environ.get("NS5", "5")); R3 = int(os.environ.get("R3", "4")); R5 = int(os.environ.get("R5", "6"))
def w4_piece_lane(k, vdst, vidx, t):
    k(f"v_mul_u32_u24 v{t}, 4682, v{vidx}"); k(f"v_lshrrev_b32 v{t}, 16, v{t}")
    k(f"v_mul_u32_u24 v{t+1}, 14, v{t}"); k(f"v_sub_u32 v{t+1}, v{vidx}, v{t+1}")
    k(f"v_and_b32 v{t+2}, 0x33, v{t}")
    k(f"v_bfe_u32 v{vidx}, v{t}, 2, 1"); k(f"v_lshl_add_u32 v{t+2}, v{vidx}, 3, v{t+2}")
    k(f"v_bfe_u32 v{vidx}, v{t}, 3, 1"); k(f"v_lshl_add_u32 v{t+2}, v{vidx}, 2, v{t+2}")
    k(f"v_mul_u32_u24 v{t+2}, 7168, v{t+2}")
    k(f"v_lshl_add_u32 v{vdst}, v{t+1}, 4, v{t+2}")
def coords4(k, stb, scb, st):
    k("s_and_b32 s21, s2, 7"); k("s_lshr_b32 s22, s2, 3")
    k(f"s_and_b32 s{stb}, s21, 1"); k(f"s_lshl_b32 s{stb}, s{stb}, 2"); k(f"s_and_b32 s{st}, s22, 3"); k(f"s_add_u32 s{stb}, s{stb}, s{st}")
    k(f"s_lshr_b32 s{scb}, s21, 1"); k(f"s_lshl_b32 s{scb}, s{scb}, 3"); k(f"s_lshr_b32 s{st}, s22, 2"); k(f"s_add_u32 s{scb}, s{scb}, s{st}")
def pf4_setup(k, t):
    coords4(k, 27, 29, 28)
    k("s_mul_i32 s40, s29, 224")
    k("s_min_u32 s27, s20, 6"); k("s_lshl_b32 s42, s27, 10"); k("s_lshl_b32 s27, s27, 6")
    k(f"v_add_u32 v{t+3}, s27, v1")
    w4_piece_lane(k, vPW, t + 3, t)
    srd(k, 52, pWG, D * DF * 2); srd(k, 56, pWU, D * DF * 2)
def pf4(tile):
    o = []
    for m in range(2):
        g = []
        if m == 0: g.append(f"s_add_u32 s41, s40, {tile*32*7168}")
        g += [f"s_add_u32 m0, s42, {tile*SLOT4 + m*UOFF}", f"buffer_load_dwordx4 v{vPW}, s[{52+4*m}:{55+4*m}], s41 offen lds"]
        o.append(g)
    return o

def phase35(k, kind):
    wo = kind == "wo"
    KD = D if wo else DF
    NT = KD // 128
    NS = 4 if wo else NS5
    R = R3 if wo else R5
    WSB = WS_O if wo else WS_HM
    T32B = KD * 64
    base = W3BASE if wo else 0
    vW = vW3 if wo else vW5
    WADV = W3ADV if wo else W5ADV
    SW = 8 if wo else SW5
    vA = [2, 3, 4, 5]; vBj = [6, 7]; vR = 10; vO = 11; vT = 12; vRM = 8; vHK = 9
    RES = 16; A = [24, 40]; ACC = 56; ACM = 88; RMF = [96, 100]; BR = 104
    MX = 15
    acc = lambda i, j: ACC + (j * 4 + i) * 4
    pre = "p3" if wo else "p5"
    coords35(k, 23, 24, 25)
    k("s_and_b32 s25, s20, 3")
    k("s_lshr_b32 s26, s20, 2")
    k("s_lshl_b32 s31, s23, 2"); k("s_add_u32 s31, s31, s25"); k(f"s_mul_i32 s31, s31, {T32B}")
    k("s_lshl_b32 s28, s26, 12"); k("s_add_u32 s31, s31, s28"); k(f"s_add_u32 s31, s31, {WSB}")
    k(f"v_lshrrev_b32 v{vT}, 4, v1"); k(f"v_and_b32 v{vT+1}, 15, v1")
    k(f"v_lshlrev_b32 v{vT+2}, 4, v{vT+1}"); k(f"v_lshl_add_u32 v{vT+2}, v{vT}, 9, v{vT+2}")
    k("s_lshl_b32 s28, s26, 8")
    k(f"v_add_u32 v{vBj[0]}, s28, v{vT+2}")
    k(f"v_xor_b32 v{vBj[1]}, 256, v{vBj[0]}")
    k(f"v_and_b32 v{vT+2}, 1, v{vT}"); k(f"v_lshlrev_b32 v{vT+2}, 1, v{vT+2}"); k(f"v_lshrrev_b32 v{vT+3}, 1, v{vT}")
    k(f"v_add_u32 v{vT+2}, v{vT+2}, v{vT+3}")
    rm = vR if wo else vO
    k(f"v_lshlrev_b32 v{rm}, 11, v{vT+1}"); k(f"v_lshl_add_u32 v{rm}, v{vT+2}, 4, v{rm}")
    k("s_lshl_b32 s33, s23, 2"); k("s_add_u32 s33, s33, s25"); k("s_lshl_b32 s33, s33, 1"); k("s_add_u32 s33, s33, s26")
    k("s_lshl_b32 s35, s33, 4")
    k("s_lshl_b32 s33, s33, 15"); k("s_lshl_b32 s28, s24, 7"); k("s_add_u32 s33, s33, s28")
    if wo:
        k(f"v_lshlrev_b32 v{vO}, 9, v{vT+2}"); k(f"v_lshl_add_u32 v{vO}, v{vT+1}, 4, v{vO}")
        k("s_lshl_b32 s34, s23, 2"); k("s_add_u32 s34, s34, s25"); k("s_lshl_b32 s34, s34, 16")
        k("s_lshl_b32 s28, s24, 12"); k("s_add_u32 s34, s34, s28"); k("s_lshl_b32 s28, s26, 8"); k("s_add_u32 s34, s34, s28")
        k(f"s_add_u32 s34, s34, {WS_H}")
        k("s_lshl_b32 s28, s20, 10"); k(f"s_add_u32 s28, s28, {RMOFF}")
        k(f"v_lshl_add_u32 v{vRM}, v{vT}, 4, s28")
    k("s_lshl_b32 s28, s20, 11"); k(f"s_add_u32 s28, s28, {HKOFF}")
    k(f"v_lshl_add_u32 v{vHK}, v1, 4, s28")
    k(f"v_bfe_u32 v{vT+1}, v1, 2, 2")
    k(f"v_lshrrev_b32 v{vT+2}, 1, v{vT}"); k(f"v_and_b32 v{vT+3}, 1, v{vT}")
    k(f"v_lshlrev_b32 v{vT+2}, 4, v{vT+2}"); k(f"v_lshl_add_u32 v{vT+2}, v{vT+3}, 2, v{vT+2}")
    k(f"v_add_u32 v{vT+2}, v{vT+2}, v{vT+1}"); k(f"v_lshlrev_b32 v{vT+2}, 7, v{vT+2}")
    k(f"v_lshrrev_b32 v{vT+1}, 1, v{vT+1}"); k(f"v_lshl_add_u32 v{vT+1}, v{vT+3}, 1, v{vT+1}")
    k(f"v_and_b32 v{vT+3}, 3, v1"); k(f"v_lshl_add_u32 v{vT+2}, v{vT+3}, 3, v{vT+2}")
    k("s_lshl_b32 s28, s26, 13")
    if base: k(f"s_add_u32 s28, s28, {base}")
    k(f"v_add_u32 v{vT+2}, s28, v{vT+2}")
    for i in range(4):
        k(f"v_xor_b32 v{vT+3}, {i}, v{vT+1}")
        k(f"v_lshl_add_u32 v{vA[i]}, v{vT+3}, 5, v{vT+2}")
    hiA = NS * 16384 > 65536
    vA2 = [204, 205, 206, 207]
    if hiA:
        for i in range(4): k(f"v_add_u32 v{vA2[i]}, 65536, v{vA[i]}")
    srd(k, 16, pX if wo else pOUT, MB4)
    if not wo and OT == 1:
        k(f"buffer_load_dword v{RES}, v{vO}, s[16:19], s33 offen")
    for r in range(ACC, ACC + (40 if wo else 32)): k(f"v_mov_b32 v{r}, 0")
    if wo:
        pf4_setup(k, vT)
        k(f"v_lshrrev_b32 v{vT}, 3, v1"); k(f"v_and_b32 v{vT+1}, 7, v1"); k(f"v_lshlrev_b32 v{vT+1}, 4, v{vT+1}")
        k(f"v_lshl_add_u32 v{vT+1}, v{vT}, 8, v{vT+1}"); k("s_lshl_b32 s28, s26, 7"); k(f"v_add_u32 v{vT+1}, s28, v{vT+1}")
        k(f"v_and_b32 v{vT+2}, 15, v1"); k(f"v_lshlrev_b32 v{vT+2}, 2, v{vT+2}")
    vm = VM()
    if not wo:
        for t in range(NPF5, NS):
            for d in w35_dma(vW, SW, t):
                for l in d: k(l)
            k(WADV); vm.issue(("W", t), 2)
    k("s_lshr_b32 s27, s23, 1"); k("s_lshl_b32 s27, s27, 7"); k(f"s_add_u32 s27, s27, {WS_CNT + (C3 if wo else C5)*128}")
    wait(k, 27, 32, vt=(RES, RES + 1), pr=A[1])
    k.stamp(pre + "_wait")
    NSTEP = 2 * NT
    def bld(s):
        b = BR + (s % R) * 8
        return [f"buffer_load_dwordx4 v[{b+4*j}:{b+4*j+3}], v{vBj[j]}, s[12:15], s31 offen{SC}" for j in range(2)]
    def badv(s): return f"s_add_u32 s31, s31, {2048 if s % 2 == 0 else 6144}"
    if wo:
        k("s_lshl_b32 s28, s20, 10"); k(f"s_add_u32 m0, s28, {RMOFF}")
        k(f"s_mov_b32 s28, {WS_RM}")
        k(f"buffer_load_dwordx4 v{vT+1}, s[12:15], s28 offen{SC} lds"); vm.issue("RM")
    for s in range(R):
        for l in bld(s): k(l); vm.issue(("B", s))
        k(badv(s))
    if wo:
        for p in range(2):
            k(f"buffer_load_dwordx4 v[{RES+4*p}:{RES+4*p+3}], v{vR}, s[16:19], s33 offen offset:{64*p}"); vm.issue("res")
        k("s_lshl_b32 s28, s35, 2"); k(f"s_add_u32 s28, s28, {WS_MX}")
        k(f"buffer_load_dword v{MX}, v{vT+2}, s[12:15], s28 offen{SC}"); vm.issue("res")
    def areads(s, buf):
        t = s // 2; sl = t % NS
        va = vA if sl < 4 else vA2
        o = [f"ds_read_b64_tr_b16 v[{A[buf]+4*i+2*tt}:{A[buf]+4*i+2*tt+1}], v{va[i]} offset:{(sl & 3)*16384 + (s&1)*4096 + tt*1024}"
             for i in range(4) for tt in range(2)]
        return o
    def rmread(s, buf): return f"ds_read_b128 v[{RMF[buf]}:{RMF[buf]+3}], v{vRM} offset:{(s >> 1)*128 + (s & 1)*64}"
    for l in areads(0, 0): k(l)
    if wo:
        k(f"s_waitcnt vmcnt({vm.cnt({'RM'})})")
        k(rmread(0, 0))
    k.stamp(pre + "_go")
    texts = []
    for per in range((NT + NS - 1) // NS):
        o = []
        for s in range(per * 2 * NS, min((per + 1) * 2 * NS, NSTEP)):
            t = s // 2; cur = s & 1; nxt = cur ^ 1
            need = {("B", s)}
            if s & 1 and t + 1 < NT: need.add(("W", t + 1))
            n = vm.cnt(need)
            o.append(f"s_waitcnt vmcnt({min(n, 63)}) lgkmcnt(0)")
            rd = []; dm = []
            if s & 1:
                if t + 1 < NT:
                    o.append("s_barrier"); rd = areads(s + 1, nxt)
                if t + NS < NT: dm = w35_dma(vW, SW, t % NS)
            else:
                rd = areads(s + 1, nxt)
            if wo and s + 1 < NSTEP: rd = rd + [rmread(s + 1, nxt)]
            mf = []
            b = BR + (s % R) * 8
            for i in range(4):
                for j in range(2):
                    a = acc(i, j)
                    mf.append(f"v_mfma_f32_16x16x32_bf16 v[{a}:{a+3}], v[{A[cur]+4*i}:{A[cur]+4*i+3}], v[{b+4*j}:{b+4*j+3}], v[{a}:{a+3}]")
            if wo:
                for j in range(2):
                    a = ACM + 4 * j
                    mf.append(f"v_mfma_f32_16x16x32_bf16 v[{a}:{a+3}], v[{RMF[cur]}:{RMF[cur]+3}], v[{b+4*j}:{b+4*j+3}], v[{a}:{a+3}]")
            gaps = [[] for _ in mf]
            for q, r in enumerate(rd): gaps[min(q, len(mf) - 1)].append(r)
            if dm:
                gaps[0].append(dm[0][0]); gaps[1].append(dm[0][1]); gaps[2].append(dm[1][0]); gaps[3].append(dm[1][1]); gaps[4].append(WADV)
                vm.issue(("W", t + NS), 2)
            if s + R < NSTEP:
                gaps[len(mf) - 1] += bld(s + R) + [badv(s + R)]
                vm.issue(("B", s + R), 2)
            if wo and s == NSTEP - R:
                q = 0
                for tl in range(3):
                    for g in pf4(tl):
                        gaps[min(q, len(mf) - 1)] += g; q += 1
                        vm.issue("PF")
            for g, mm in enumerate(mf):
                o.append(mm); o += gaps[g]
        texts.append(o)
    periods(k, pre + "loop", texts, 36)
    k.stamp(pre + "_loop")
    if wo:
        k("s_and_b32 s27, s20, 3"); k("s_lshl_b32 s27, s27, 12"); k(f"s_mul_i32 s28, s26, {SLOT4}"); k("s_add_u32 s27, s27, s28"); k(f"s_add_u32 s27, s27, {BOFF4}")
        k(f"v_lshlrev_b32 v{vT}, 4, v1"); k(f"v_add_u32 v{vT+1}, s27, v{vT}")
        k("s_and_b32 s27, s20, 3"); k("s_lshl_b32 s27, s27, 12"); k("s_xor_b32 s28, s26, 1"); k(f"s_mul_i32 s28, s28, {SLOT4}"); k("s_add_u32 s27, s27, s28"); k(f"s_add_u32 s27, s27, {BOFF4}")
        k(f"v_add_u32 v{vT+2}, s27, v{vT}")
        k("s_lshl_b32 s27, s20, 8"); k(f"s_add_u32 s27, s27, {XMOFF}")
        k(f"v_lshl_add_u32 v{vRM}, v1, 2, s27")
        k(f"ds_write_b32 v{vRM}, v{ACM+4}")
        k(f"v_xor_b32 v{vRM}, 1024, v{vRM}")
    else:
        XCH = 98304
        k("s_lshl_b32 s27, s20, 12"); k(f"s_add_u32 s27, s27, {XCH}")
        k(f"v_lshlrev_b32 v{vT}, 4, v1"); k(f"v_add_u32 v{vT+1}, s27, v{vT}")
        k("s_lshl_b32 s27, s20, 12"); k("s_xor_b32 s27, s27, 16384"); k(f"s_add_u32 s27, s27, {XCH}"); k(f"v_add_u32 v{vT+2}, s27, v{vT}")
    for i in range(4): k(f"ds_write_b128 v{vT+1}, v[{acc(i,1)}:{acc(i,1)+3}] offset:{1024*i}")
    k("s_waitcnt lgkmcnt(0)")
    k("s_barrier")
    for i in range(4): k(f"ds_read_b128 v[{acc(i,1)}:{acc(i,1)+3}], v{vT+2} offset:{1024*i}")
    if wo:
        k(f"ds_read_b32 v{ACM+4}, v{vRM}")
        for g in pf4(3):
            for l in g: k(l)
    else:
        for p in range(2): k(f"ds_read_b128 v[{RES+4*p}:{RES+4*p+3}], v{vHK} offset:{1024*p}")
    k("s_waitcnt lgkmcnt(0)")
    def padd(d, a, b, bc=False):
        if wo:
            k(f"v_add_f32 v{d}, v{a}, v{b}"); k(f"v_add_f32 v{d+1}, v{a+1}, v{b if bc else b+1}")
        else: k(f"v_pk_add_f32 v[{d}:{d+1}], v[{a}:{a+1}], v[{b}:{b+1}]")
    for i in range(4):
        for r in range(0, 4, 2): padd(acc(i,0)+r, acc(i,0)+r, acc(i,1)+r)
    for p in range(2):
        for r in range(4): k(f"v_permlane16_swap_b32 v{acc(2*p,0)+r}, v{acc(2*p+1,0)+r}")
    U = A[0]
    k(f"v_mov_b32 v{vT+3 if not wo else vT}, 0xffff0000")
    vMask = vT + 3 if not wo else vT
    if wo:
        k("s_waitcnt vmcnt(8)")
        k(f"v_add_f32 v{ACM}, v{ACM}, v{ACM+4}")
        k(f"v_add_f32 v{ACM}, v{ACM}, v{MX}")
        k(f"v_sub_f32 v{ACM}, 0, v{ACM}")
    for p in range(2):
        for q in range(4):
            a = acc(2 * p, 0) + 2 * q
            k(f"v_lshlrev_b32 v{U+2*q}, 16, v{RES+4*p+q}")
            k(f"v_and_b32 v{U+2*q+1}, v{vMask}, v{RES+4*p+q}")
        for q in range(4):
            a = acc(2 * p, 0) + 2 * q
            padd(a, a, U+2*q)
        for q in range(4):
            a = acc(2 * p, 0) + 2 * q
            k(f"v_cvt_pk_bf16_f32 v{RES+4*p+q}, v{a}, v{a+1}")
        if wo:
            k(f"ds_write_b128 v{vHK}, v[{RES+4*p}:{RES+4*p+3}] offset:{1024*p}")
            HC = U + 8 + 4 * p
            for q in range(4):
                a = acc(2 * p, 0) + 2 * q
                padd(a, a, ACM, True)
            for q in range(4):
                a = acc(2 * p, 0) + 2 * q
                k(f"v_cvt_pk_bf16_f32 v{HC+q}, v{a}, v{a+1}")
            k(f"buffer_store_dwordx4 v[{HC}:{HC+3}], v{vO}, s[12:15], s34 offen offset:{2048*p}{SC}")
        else:
            k(f"buffer_store_dwordx4 v[{RES+4*p}:{RES+4*p+3}], v{vO}, s[16:19], s33 offen offset:{64*p}{OUTSC}")
    if wo:
        s1 = U
        a0 = acc(0, 0)
        for r in range(4): k(f"v_mul_f32 v{s1+r}, v{a0+r}, v{a0+r}")
        for r in range(4, 16): k(f"v_fma_f32 v{s1+(r&3)}, v{a0+r}, v{a0+r}, v{s1+(r&3)}")
        k(f"v_add_f32 v{s1}, v{s1}, v{s1+1}"); k(f"v_add_f32 v{s1+2}, v{s1+2}, v{s1+3}"); k(f"v_add_f32 v{s1}, v{s1}, v{s1+2}")
        for sw in ("v_permlane16_swap_b32", "v_permlane32_swap_b32"):
            k(f"v_mov_b32 v{s1+2}, v{s1}"); k(f"{sw} v{s1}, v{s1+2}"); k(f"v_add_f32 v{s1}, v{s1}, v{s1+2}")
        k(f"v_and_b32 v{vT}, 15, v1"); k(f"v_lshlrev_b32 v{vT}, 2, v{vT}")
        k("s_lshl_b32 s27, s35, 2"); k("s_lshl_b32 s28, s24, 13"); k("s_add_u32 s27, s27, s28"); k(f"s_add_u32 s27, s27, {WS_ST}")
        k("s_mov_b64 exec, 0xffff")
        k(f"buffer_store_dword v{s1}, v{vT}, s[12:15], s27 offen{SC}")
        k("s_mov_b64 exec, -1")
        k.stamp(pre + "_epi")
        k("s_lshr_b32 s27, s23, 1"); k("s_lshl_b32 s27, s27, 7"); k(f"s_add_u32 s27, s27, {WS_CNT + C4*128}")
        k("s_waitcnt lgkmcnt(0)")
        signal(k, 27, vt=(RES, RES + 1))
        k.stamp(pre + "_sig")
    else:
        k.stamp(pre + "_epi")
OUTSC = os.environ.get("OUTSC", "")

KC = 2 * math.sqrt(2 / math.pi) * math.log2(math.e)
X4 = os.environ.get("X4", "").split(",")
def phase4(k):
    NS = 4; SLOT = SLOT4; UOFF = 7168; BOFF = BOFF4; STATS = NS * SLOT
    vA = [2, 3]; vB = [4, 5]; vD = [6, 7, 8, 9, 10]; vL16 = 11; vT = 12
    A = [16, 48]; B = [80, 96]; ACC = 112; SV = 242
    acc = lambda fi, m, j: ACC + ((fi * 2 + m) * 4 + j) * 4
    w35_setup(k, vW5, 0, vT, DF if WT5 or WDT else 0)
    if not WDT: srd(k, 60, pWD, DF * D * 2)
    coords4(k, 23, 24, 25)
    k("s_and_b32 s25, s20, 3")
    k("s_lshr_b32 s26, s20, 2")
    k(f"v_lshlrev_b32 v{vL16}, 4, v1")
    k(f"v_lshrrev_b32 v{vT}, 4, v1")
    k(f"v_bfe_u32 v{vT+1}, v1, 2, 2")
    k(f"v_lshrrev_b32 v{vT+2}, 1, v{vT}"); k(f"v_and_b32 v{vT+3}, 1, v{vT}")
    k(f"v_lshlrev_b32 v{vT+2}, 4, v{vT+2}"); k(f"v_lshl_add_u32 v{vT+2}, v{vT+3}, 2, v{vT+2}"); k(f"v_add_u32 v{vT+2}, v{vT+2}, v{vT+1}")
    k(f"v_mul_u32_u24 v{vT+2}, 224, v{vT+2}")
    k(f"v_and_b32 v{vT+3}, 3, v1"); k(f"v_lshl_add_u32 v{vT+2}, v{vT+3}, 3, v{vT+2}")
    k("s_lshl_b32 s27, s26, 7")
    k(f"v_add_u32 v{vA[0]}, s27, v{vT+2}"); k(f"v_add_u32 v{vA[1]}, {2*SLOT}, v{vA[0]}")
    k(f"v_and_b32 v{vT+1}, 15, v1"); k(f"v_lshlrev_b32 v{vT+1}, 4, v{vT+1}"); k(f"v_lshl_add_u32 v{vT+1}, v{vT}, 9, v{vT+1}")
    k("s_lshl_b32 s27, s25, 12"); k(f"s_add_u32 s27, s27, {BOFF}")
    k(f"v_add_u32 v{vB[0]}, s27, v{vT+1}"); k(f"v_add_u32 v{vB[1]}, {2*SLOT}, v{vB[0]}")
    k("s_lshl_b32 s31, s23, 19"); k(f"s_add_u32 s31, s31, {WS_H}")
    k("s_mul_i32 s30, s24, 224"); k(f"s_add_u32 s30, s30, {NS*32*7168}")
    for r in range(ACC, ACC + 128): k(f"v_mov_b32 v{r}, 0")
    k(f"v_and_b32 v{vT}, 1, v0"); k(f"v_lshlrev_b32 v{vT}, 16, v{vT}")
    k(f"v_lshrrev_b32 v{vT+1}, 1, v0"); k(f"v_lshl_add_u32 v{SV+8}, v{vT+1}, 2, v{vT}")
    k(f"v_lshlrev_b32 v{SV+9}, 4, v{vT+1}"); k(f"v_add_u32 v{SV+9}, {STATS}, v{SV+9}")
    k("s_lshl_b32 s37, s23, 10"); k(f"s_add_u32 s37, s37, {WS_ST}")
    k("s_bitcmp1_b32 s25, 1")
    k(f"s_cselect_b32 s4, s{pWU}, s{pWG}"); k(f"s_cselect_b32 s5, s{pWU+1}, s{pWG+1}")
    srd(k, 8, 4, D * DF * 2)
    lsb = k.lab("p4setB"); lsd = k.lab("p4setD")
    k("s_cmp_eq_u32 s26, 0")
    k(f"s_cbranch_scc0 {lsb}")
    for n in range(3):
        k("s_mul_i32 s27, s20, 3"); k(f"s_add_u32 s27, s27, {n}")
        k("s_lshr_b32 s28, s27, 1"); k("s_lshl_b32 s28, s28, 16"); k("s_and_b32 s29, s27, 1"); k("s_lshl_b32 s29, s29, 10"); k("s_add_u32 s28, s28, s29")
        k(f"v_add_u32 v{vD[n]}, s28, v{vL16}")
    k(f"s_mul_i32 s32, s20, 3072"); k(f"s_add_u32 s32, s32, {BOFF}")
    k(f"s_branch {lsd}")
    k(f"{lsb}:")
    k("s_and_b32 s27, s25, 1"); k("s_lshl_b32 s27, s27, 8")
    for q in range(4):
        k(f"v_add_u32 v{vT+3}, {64*q}, v1"); k(f"v_add_u32 v{vT+3}, s27, v{vT+3}")
        w4_piece_lane(k, vD[q], vT + 3, vT)
    k("s_add_u32 s27, s25, 12")
    k("s_lshr_b32 s28, s27, 1"); k("s_lshl_b32 s28, s28, 16"); k("s_and_b32 s29, s27, 1"); k("s_lshl_b32 s29, s29, 10"); k("s_add_u32 s28, s28, s29")
    k(f"v_add_u32 v{vD[4]}, s28, v{vL16}")
    k("s_lshl_b32 s33, s27, 10"); k(f"s_add_u32 s33, s33, {BOFF}")
    k("s_lshr_b32 s32, s25, 1"); k(f"s_mul_i32 s32, s32, {UOFF}"); k("s_and_b32 s27, s25, 1"); k("s_lshl_b32 s27, s27, 12"); k("s_add_u32 s32, s32, s27")
    k(f"{lsd}:")
    k("s_lshl_b32 s27, s23, 3"); k("s_lshl_b32 s28, s25, 1"); k("s_add_u32 s27, s27, s28"); k("s_mul_i32 s27, s27, 448")
    k("s_mul_i32 s28, s24, 14"); k("s_add_u32 s27, s27, s28"); k("s_lshl_b32 s28, s26, 3"); k("s_add_u32 s27, s27, s28")
    k("s_lshl_b32 s27, s27, 9"); k(f"s_add_u32 s34, s27, {WS_HM}"); k(f"s_add_u32 s35, s34, {448*512}")
    if WDT:
        k(f"v_add_u32 v{vT+1}, {C3 - 1}, v1"); k(f"v_lshlrev_b32 v{vT+1}, 7, v{vT+1}")
        k("s_lshl_b32 s27, s23, 7"); k(f"s_add_u32 s27, s27, {C4*128}")
        k("s_nop 0")
        k(f"v_writelane_b32 v{vT+1}, s27, 0")
        k(f"s_mov_b32 s27, {WS_CNT}")
        wait_multi(k, 27, 32, 9, vt=(vT, vT + 1))
    else:
        k("s_lshl_b32 s27, s23, 7"); k(f"s_add_u32 s27, s27, {WS_CNT + C4*128}")
        wait(k, 27, 32, vt=(vT, vT + 1), pr=A[1])
    k.stamp("p4_wait")
    def dma_act(var, slot):
        if var == "A":
            return [[f"s_add_u32 m0, s32, {slot*SLOT + n*1024}", f"buffer_load_dwordx4 v{vD[n]}, s[12:15], s31 offen{SC} lds"] for n in range(3)]
        return [[f"s_add_u32 m0, s33, {slot*SLOT}", f"buffer_load_dwordx4 v{vD[4]}, s[12:15], s31 offen{SC} lds"]]
    def dma_w(var, slot):
        if var == "A": return []
        return [[f"s_add_u32 m0, s32, {slot*SLOT + q*1024}", f"buffer_load_dwordx4 v{vD[q]}, s[8:11], s30 offen lds"] for q in range(4 if var == "B0" else 3)]
    advA = "s_add_u32 s31, s31, 2048"; advW = f"s_add_u32 s30, s30, {32*7168}"
    def stats_calc():
        o = []
        for i in (0, 2, 4, 6): o.append(f"v_add_f32 v{SV+i}, v{SV+i}, v{SV+i+1}")
        o += [f"v_add_f32 v{SV}, v{SV}, v{SV+2}", f"v_add_f32 v{SV+4}, v{SV+4}, v{SV+6}", f"v_add_f32 v{SV}, v{SV}, v{SV+4}",
              "s_nop 1",
              f"v_add_f32_dpp v{SV}, v{SV}, v{SV} quad_perm:[1,0,3,2] row_mask:0xf bank_mask:0xf",
              f"v_mov_b32 v{SV+3}, 0x3a800000", f"v_mov_b32 v{SV+5}, 0x3727c5ac",
              f"v_fma_f32 v{SV+2}, v{SV}, v{SV+3}, v{SV+5}",
              f"v_rsq_f32 v{SV+4}, v{SV+2}",
              f"v_mov_b32 v{SV+3}, 0",
              f"v_mul_f32 v{SV+1}, {f2h(-KC)}, v{SV+4}",
              f"v_mul_f32 v{SV+5}, v{SV+4}, v{SV+4}",
              f"v_mul_f32 v{SV}, {f2h(0.044715)}, v{SV+1}",
              f"v_mul_f32 v{SV}, v{SV}, v{SV+5}",
              f"ds_write_b128 v{SV+9}, v[{SV}:{SV+3}]"]
        return o
    st_idx = {}
    def vstamp(nm):
        if nm in st_idx: k.stamp_at(st_idx[nm])
        else:
            st_idx[nm] = k.nst; k.stamp(nm)
    ljoin = k.lab("p4join")
    def body(var):
        nf = 4 if var == "A" else 3
        vm = VM()
        for s in range(NS):
            for d in dma_act(var, s):
                for l in d: k(l)
                vm.issue(("D", s))
            k(advA)
        k("s_mov_b32 s28, s37")
        for i in range(8):
            k(f"buffer_load_dword v{SV+i}, v{SV+8}, s[12:15], s28 offen{SC}"); vm.issue("ST")
            if i < 7: k("s_add_u32 s28, s28, 8192")
        def reads(buf, slot):
            base = slot >> 1; so = (slot & 1) * SLOT
            o = []
            def rA(fi, m):
                i = fi * 2 + m
                return [f"ds_read_b64_tr_b16 v[{A[buf]+4*i+2*t}:{A[buf]+4*i+2*t+1}], v{vA[base]} offset:{so + m*UOFF + t*8*224 + fi*32}" for t in range(2)]
            o += rA(0, 0)
            for j in range(4): o.append(f"ds_read_b128 v[{B[buf]+4*j}:{B[buf]+4*j+3}], v{vB[base]} offset:{so + (j>>1)*2048 + (j&1)*256}")
            for i in range(1, 2 * nf): o += rA(i >> 1, i & 1)
            return o
        k(f"s_waitcnt vmcnt({vm.cnt({('D', 0)})})")
        k("s_barrier")
        vstamp("p4_go")
        for l in reads(0, 0): k(l)
        NT = 32
        texts = []
        pf5 = {28: [0], 29: [1, 2]}
        for per in range(NT // NS):
            o = []
            for t in range(per * NS, (per + 1) * NS):
                slot = t % NS; cur = t & 1; nxt = cur ^ 1
                rd = []; dm = []; ex = []
                if t + 1 < NT:
                    need = {("D", t + 1)}
                    if t == 3: need.add("ST")
                    o.append(f"s_waitcnt vmcnt({vm.cnt(need)}) lgkmcnt(0)")
                    o.append("s_barrier")
                    rd = reads(nxt, (t + 1) % NS)
                else:
                    o.append("s_waitcnt lgkmcnt(0)")
                tail = []
                if t + NS < NT:
                    dm = dma_w(var, slot) + dma_act(var, slot)
                    vm.issue(("D", t + NS), len(dm))
                    tail = [advA, advW]
                for tl in pf5.get(t, []):
                    if tl < NS5:
                        dm += [list(x) for x in w35_dma(vW5, SW5, tl)]
                        dm[-1].append(W5ADV)
                        vm.issue("PF5", 2)
                if t == 3: ex = stats_calc()
                mf = []
                for i in range(2 * nf):
                    for j in range(4):
                        a = acc(i >> 1, i & 1, j)
                        mf.append(f"v_mfma_f32_16x16x32_bf16 v[{a}:{a+3}], v[{A[cur]+4*i}:{A[cur]+4*i+3}], v[{B[cur]+4*j}:{B[cur]+4*j+3}], v[{a}:{a+3}]")
                n = len(mf)
                gaps = [[] for _ in mf]
                for q, r in enumerate(rd): gaps[q].append(r)
                if dm:
                    stp = (n - 3) // len(dm)
                    for q, d in enumerate(dm):
                        g = 1 + stp * q
                        gaps[g].append(d[0]); gaps[g + 1] += d[1:]
                    gaps[n - 1] += tail
                for q, l in enumerate(ex): gaps[min(4 + q, n - 1)].append(l)
                for g, mm in enumerate(mf):
                    o.append(mm); o += gaps[g]
            texts.append(o)
        periods(k, f"p4{var}", texts, 36)
        vstamp("p4_loop")
        ST = 16; TT = 32
        k(f"v_and_b32 v{vT}, 15, v1"); k(f"v_lshlrev_b32 v{vT}, 4, v{vT}")
        k("s_lshl_b32 s27, s25, 10"); k(f"s_add_u32 s27, s27, {STATS}"); k(f"v_add_u32 v{vT}, s27, v{vT}")
        for j in range(4): k(f"ds_read_b128 v[{ST+4*j}:{ST+4*j+3}], v{vT} offset:{256*j}")
        k("s_waitcnt vmcnt(0) lgkmcnt(0)")
        if "drain" in X4: k("s_waitcnt vmcnt(0)"); k("s_barrier")
        if "drain0" in X4: k("s_waitcnt vmcnt(0)")
        if "bar" in X4: k("s_barrier")
        if "adrain" in X4 and var == "A": k("s_waitcnt vmcnt(0)")
        if "bdrain" in X4 and var != "A": k("s_waitcnt vmcnt(0)")
        nopk = ("anopk" in X4 and var == "A") or ("bnopk" in X4 and var != "A")
        def pk(op, d, a, b, c=None, sel=None):
            if not nopk:
                x = f"v_pk_{op}_f32 v[{d}:{d+1}], v[{a}:{a+1}], v[{b}:{b+1}]"
                if c is not None: x += f", v[{c}:{c+1}] " + sel
                k(x); return
            for h in range(2):
                if c is None: k(f"v_mul_f32 v{d+h}, v{a+h}, v{b+h}")
                elif sel.startswith("op_sel:[0,0,1]"): k(f"v_fma_f32 v{d+h}, v{a+h}, v{b}, v{b+1}")
                else: k(f"v_fma_f32 v{d+h}, v{a+h}, v{b}, v{b}")
        for fi in range(nf):
            for p in range(2):
                gi = fi * 2 + p
                PK = TT + 16 + 4 * (gi & 3)
                T = TT + 8 * (gi & 1)
                prs = [(2 * p + jj, h) for jj in range(2) for h in range(2)]
                P = lambda r: f"v[{r}:{r+1}]"
                for q, (j, h) in enumerate(prs):
                    g = acc(fi, 0, j) + 2 * h
                    pk("mul", T+2*q, g, g)
                for q, (j, h) in enumerate(prs):
                    c = ST + 4 * j
                    pk("fma", T+2*q, T+2*q, c, c, "op_sel:[0,0,1] op_sel_hi:[1,0,1]")
                for q, (j, h) in enumerate(prs):
                    g = acc(fi, 0, j) + 2 * h
                    pk("mul", T+2*q, T+2*q, g)
                for q, (j, h) in enumerate(prs):
                    g = acc(fi, 0, j) + 2 * h; u = acc(fi, 1, j) + 2 * h
                    k(f"v_exp_f32 v{T+2*q}, v{T+2*q}"); k(f"v_exp_f32 v{T+2*q+1}, v{T+2*q+1}")
                    pk("mul", u, u, g)
                for q, (j, h) in enumerate(prs):
                    c = ST + 4 * j + 2
                    pk("fma", T+2*q, T+2*q, c, c, "op_sel:[0,0,0] op_sel_hi:[1,0,0]")
                for q, (j, h) in enumerate(prs):
                    k(f"v_rcp_f32 v{T+2*q}, v{T+2*q}"); k(f"v_rcp_f32 v{T+2*q+1}, v{T+2*q+1}")
                for q, (j, h) in enumerate(prs):
                    u = acc(fi, 1, j) + 2 * h
                    pk("mul", u, u, T+2*q)
                for q, (j, h) in enumerate(prs):
                    u = acc(fi, 1, j) + 2 * h
                    k(f"v_cvt_pk_bf16_f32 v{PK+q}, v{u}, v{u+1}")
                k(f"v_permlane16_swap_b32 v{PK}, v{PK+2}")
                k(f"v_permlane16_swap_b32 v{PK+1}, v{PK+3}")
                k(f"buffer_store_dwordx4 v[{PK}:{PK+3}], v{vL16}, s[12:15], s{34+p} offen offset:{1024*fi}{SC}")
        vstamp("p4_epi")
        if var != "B1": k(f"s_branch {ljoin}")
    lB = k.lab("p4B"); lB1 = k.lab("p4B1")
    k("s_cmp_eq_u32 s26, 0")
    k(f"s_cbranch_scc0 {lB}")
    body("A")
    k(f"{lB}:")
    k("s_bitcmp1_b32 s25, 0")
    k(f"s_cbranch_scc1 {lB1}")
    body("B0")
    k(f"{lB1}:")
    body("B1")
    k(f"{ljoin}:")
    k("s_lshl_b32 s27, s23, 7"); k(f"s_add_u32 s27, s27, {WS_CNT + C5*128}")
    signal(k, 27, vt=(vT, vT + 1))
    k.stamp("p4_sig")

def mk():
    k = G(NAME, nvgpr=256, accum=256, total=256)
    lend = "L_end"
    k("s_cmp_ge_u32 s2, 256")
    k(f"s_cbranch_scc1 {lend}")
    if os.environ.get("SCR"):
        k("s_and_b32 s3, s2, 7"); k("s_lshl_b32 s3, s3, 5"); k("s_lshr_b32 s2, s2, 3"); k("s_or_b32 s2, s2, s3")
    k("s_load_dwordx16 s[64:79], s[0:1], 0")
    k("s_load_dwordx4 s[80:83], s[0:1], 64")
    k("v_and_b32 v1, 63, v0")
    k("v_lshrrev_b32 v2, 6, v0")
    k("s_nop 0")
    k("v_readfirstlane_b32 s20, v2")
    k.stamp("start")
    ldone = "L_done"
    phs = [phase1, phase2, lambda k: phase35(k, "wo"), phase4, lambda k: phase35(k, "down")]
    for i, ph in enumerate(phs[:UPTO]): ph(k)
    if os.environ.get("ENDW"): k("s_waitcnt vmcnt(0)")
    k.stamp("end")
    k.stamp_out()
    k("s_waitcnt vmcnt(0)")
    k(f"{lend}:")
    k("s_endpgm")
    return k, ("mk", 256, 512, LDS_BYTES)

if __name__ == "__main__":
    import sys
    sys.path.insert(0, "gen")
    from build import header
    k, _ = mk()
    o = header()
    o.append(f"; @launch grid=(256,1,1) block=(512,1,1) lds={LDS_BYTES}")
    if STAMP: o.append("; stamps: " + " ".join(k.stnames))
    o.append('.amdgcn_target "amdgcn-amd-amdhsa--gfx950"')
    o.append('.text')
    o.append(k.text())
    o.append('.section .rodata,"a"')
    o.append(k.desc())
    open(sys.argv[1], "w").write("\n".join(o) + "\n")
    print("wrote", sys.argv[1], "instrs", sum(1 for l in k.lines if l.startswith("  ")))
```

```python
from asmlib import K, srd
from common import *
import os, struct, math
STAMP = bool(int(os.environ.get("STAMP", "0")))
UPTO = int(os.environ.get("UPTO", "5"))
NAME = "sequential_preLN__mha_block__glu_gated_geglu__prompt_kernel"
WS_TS = 0x2800000
SC = " sc1"
LDS_BYTES = 163840
pX, pWQKV, pWO, pBX, pWG, pWU, pWD, pOUT, pDBG, pWS = [64 + 2 * i for i in range(10)]
C2, C3, C4, C5 = 0, 16, 24, 32
SPIN_LIMIT = 0x40000
RAMP = int(os.environ.get("RAMP", "1"))
QKS = int(os.environ.get("QKS", "0"))
PFW = int(os.environ.get("PFW", "1")); PFI = int(os.environ.get("PFI", "0"))
def f2h(x): return hex(struct.unpack('<I', struct.pack('<f', x))[0])

class G(K):
    def __init__(s, *a, **kw):
        super().__init__(*a, **kw); s.nl = 0; s.nst = 0; s.stnames = []
    def lab(s, base):
        s.nl += 1; return f"L_{base}_{s.nl}"
    def stamp(s, nm):
        if not STAMP: return
        i = s.nst; s.nst += 1; s.stnames.append(nm)
        s("s_memrealtime s[84:85]"); s("s_memtime s[86:87]"); s("s_waitcnt lgkmcnt(0)")
        s(f"v_writelane_b32 v255, s84, {i}"); s(f"v_writelane_b32 v254, s86, {i}")
    def stamp_at(s, i):
        if not STAMP: return
        s("s_memrealtime s[84:85]"); s("s_memtime s[86:87]"); s("s_waitcnt lgkmcnt(0)")
        s(f"v_writelane_b32 v255, s84, {i}"); s(f"v_writelane_b32 v254, s86, {i}")
    def stamp_out(s):
        if not STAMP: return
        s("s_lshl_b32 s84, s2, 3"); s("s_add_u32 s84, s84, s20"); s("s_lshl_b32 s84, s84, 9")
        s(f"s_add_u32 s84, s84, {WS_TS}")
        s("v_lshlrev_b32 v253, 2, v1")
        s("buffer_store_dword v255, v253, s[12:15], s84 offen")
        s("buffer_store_dword v254, v253, s[12:15], s84 offen offset:256")
        s("s_waitcnt vmcnt(0)")

class VM:
    def __init__(s): s.q = []; s.c = []
    def issue(s, tag, n=1, certain=True): s.q += [tag] * n; s.c += [certain] * n
    def cnt(s, tags):
        last = -1
        for i, t in enumerate(s.q):
            if t in tags: last = i
        return sum(1 for c in s.c[last + 1:] if c) if last >= 0 else None

def periods(k, name, texts, cnt_sgpr):
    i = 0; n = len(texts)
    while i < n:
        j = i
        while j + 1 < n and texts[j + 1] == texts[i]: j += 1
        rep = j - i + 1
        if rep > 1:
            l = k.lab(name)
            k(f"s_mov_b32 s{cnt_sgpr}, 0")
            k(f"{l}:")
            for x in texts[i]: k(x)
            k(f"s_add_u32 s{cnt_sgpr}, s{cnt_sgpr}, 1")
            k(f"s_cmp_lt_u32 s{cnt_sgpr}, {rep}")
            k(f"s_cbranch_scc1 {l}")
        else:
            for x in texts[i]: k(x)
        i = j + 1

def signal(k, sline, vt=(14, 15)):
    k("s_waitcnt vmcnt(0)")
    k("s_barrier")
    l = k.lab("nosig")
    k("s_cmp_lg_u32 s20, 0"); k(f"s_cbranch_scc1 {l}")
    k("s_mov_b64 exec, 1")
    k(f"v_mov_b32 v{vt[0]}, 1"); k(f"v_mov_b32 v{vt[1]}, 0")
    k(f"buffer_atomic_add v{vt[0]}, v{vt[1]}, s[12:15], s{sline} offen sc1")
    k("s_mov_b64 exec, -1")
    k(f"{l}:")

PD = int(os.environ.get("PD", "1")); PSL = int(os.environ.get("PSL", "6"))
def wait(k, sline, target, vt=(14, 15), pr=None):
    done = k.lab("wdone"); spin = k.lab("wspin")
    k("s_cmp_lg_u32 s20, 0"); k(f"s_cbranch_scc1 {done}")
    k(f"v_mov_b32 v{vt[1]}, 0")
    k("s_mov_b32 s28, 0")
    if PD == 1 or pr is None:
        k(f"{spin}:")
        k(f"buffer_load_dword v{vt[0]}, v{vt[1]}, s[12:15], s{sline} offen sc1")
        k("s_add_u32 s28, s28, 1")
        k("s_waitcnt vmcnt(0)")
        k(f"v_readfirstlane_b32 s29, v{vt[0]}")
        k(f"s_cmp_eq_u32 s29, {target}"); k(f"s_cbranch_scc1 {done}")
        k(f"s_cmp_gt_u32 s28, {SPIN_LIMIT}"); k(f"s_cbranch_scc1 {done}")
        k("s_sleep 1")
        k(f"s_branch {spin}")
    else:
        ld = lambda i: k(f"buffer_load_dword v{pr+i}, v{vt[1]}, s[12:15], s{sline} offen sc1")
        for i in range(PD):
            ld(i)
            if i < PD - 1: k(f"s_sleep {PSL}")
        k(f"{spin}:")
        for i in range(PD):
            k(f"s_waitcnt vmcnt({PD-1})")
            k(f"v_readfirstlane_b32 s29, v{pr+i}")
            k(f"s_cmp_eq_u32 s29, {target}"); k(f"s_cbranch_scc1 {done}")
            ld(i)
        k("s_add_u32 s28, s28, 1")
        k(f"s_cmp_gt_u32 s28, {SPIN_LIMIT}"); k(f"s_cbranch_scc0 {spin}")
    k(f"{done}:")
    k("s_barrier")

def wait_multi(k, sline, target, n, vt):
    done = k.lab("wdone"); spin = k.lab("wspin"); dx = k.lab("wdx")
    k("s_cmp_lg_u32 s20, 0"); k(f"s_cbranch_scc1 {done}")
    k(f"s_mov_b64 exec, {hex((1 << n) - 1)}")
    k("s_mov_b32 s28, 0")
    k(f"{spin}:")
    k(f"buffer_load_dword v{vt[0]}, v{vt[1]}, s[12:15], s{sline} offen sc1")
    k("s_add_u32 s28, s28, 1")
    k("s_waitcnt vmcnt(0)")
    k(f"v_cmp_ne_u32 vcc, {target}, v{vt[0]}")
    k("s_cmp_eq_u64 vcc, 0"); k(f"s_cbranch_scc1 {dx}")
    k(f"s_cmp_gt_u32 s28, {SPIN_LIMIT}"); k(f"s_cbranch_scc1 {dx}")
    k("s_sleep 1")
    k(f"s_branch {spin}")
    k(f"{dx}:")
    k("s_mov_b64 exec, -1")
    k(f"{done}:")
    k("s_barrier")

def wdma_lane(k, vdst, rowbytes, t):
    k(f"v_lshrrev_b32 v{t}, 3, v1"); k(f"v_and_b32 v{t+1}, 7, v1")
    k(f"v_lshrrev_b32 v{t+2}, 2, v{t}"); k(f"v_and_b32 v{t+3}, 3, v{t}")
    k(f"v_lshl_add_u32 v{t+2}, v{t+2}, 3, v{t+3}")
    k(f"v_mul_u32_u24 v{t+2}, {rowbytes}, v{t+2}")
    k(f"v_lshrrev_b32 v{t+3}, 1, v{t+1}"); k(f"v_lshrrev_b32 v{t}, 1, v{t}")
    k(f"v_xor_b32 v{t+3}, v{t+3}, v{t}")
    k(f"v_and_b32 v{t+1}, 1, v{t+1}")
    k(f"v_lshl_add_u32 v{t+3}, v{t+3}, 1, v{t+1}")
    k(f"v_lshl_add_u32 v{vdst}, v{t+3}, 4, v{t+2}")

def phase1(k):
    NS = 4; SLOT = 40960; BOFF = 24576
    ACC = 64
    vA = [2, 3]; vW = [10, 11, 12]; vX = [13, 4]; vL16 = 5; vZ = 6; vP = 7
    A = [16, 28]; B = [40, 112]
    VB = 128; DC = 144; D1 = 156; D2 = 160; ONE = 164; PL = 168
    RMR = 192
    acc = lambda m, j: ACC + (m * 4 + j) * 4
    k("s_and_b32 s21, s2, 7"); k("s_lshr_b32 s22, s2, 3")
    k("s_and_b32 s23, s21, 1"); k("s_lshl_b32 s23, s23, 3"); k("s_and_b32 s24, s22, 7"); k("s_add_u32 s23, s23, s24")
    k("s_lshr_b32 s24, s21, 1"); k("s_lshl_b32 s24, s24, 2"); k("s_lshr_b32 s25, s22, 3"); k("s_add_u32 s24, s24, s25")
    k("s_and_b32 s25, s20, 1")
    k("s_lshr_b32 s26, s20, 1")
    wdma_lane(k, vW[0], 6144, 14)
    if QKS:
        for m in (1, 2):
            k(f"s_add_u32 s27, s24, {m*QKS}"); k("s_and_b32 s27, s27, 15"); k("s_sub_u32 s27, s27, s24")
            k("s_lshl_b32 s27, s27, 7"); k(f"s_add_u32 s27, s27, {2048*m}")
            k(f"v_add_u32 v{vW[m]}, s27, v{vW[0]}")
    else:
        k(f"v_add_u32 v{vW[1]}, 2048, v{vW[0]}")
        k(f"v_add_u32 v{vW[2]}, 4096, v{vW[0]}")
    k("v_lshrrev_b32 v14, 3, v1"); k("v_and_b32 v15, 7, v1")
    k("v_lshrrev_b32 v17, 4, v1")
    k("v_xor_b32 v17, v17, v15")
    k("v_lshlrev_b32 v17, 4, v17")
    k(f"v_lshl_add_u32 v{vX[0]}, v14, 11, v17")
    k(f"v_xor_b32 v{vX[1]}, 64, v{vX[0]}")
    k(f"v_add_u32 v{vX[1]}, {16384 - 1024}, v{vX[1]}")
    k(f"v_lshlrev_b32 v{vL16}, 4, v1")
    k("s_lshr_b32 s27, s20, 2"); k("s_lshl_b32 s27, s27, 5")
    k("s_bfe_u32 s28, s20, 0x10001"); k("s_lshl_b32 s28, s28, 4"); k("s_add_u32 s27, s27, s28")
    k("s_lshl_b32 s28, s25, 2"); k("s_add_u32 s27, s27, s28")
    k("s_mul_i32 s48, s27, 6144"); k("s_lshl_b32 s28, s24, 7"); k("s_add_u32 s48, s48, s28")
    k(f"s_add_u32 s46, s48, {16*64*6144}")
    k("s_lshl_b32 s49, s23, 3"); k("s_add_u32 s49, s49, s20"); k("s_lshl_b32 s49, s49, 15")
    k("s_add_u32 s27, s23, s24"); k("s_and_b32 s27, s27, 15")
    k(f"s_mul_i32 s28, s27, {64*6144}"); k("s_add_u32 s30, s48, s28")
    k("s_lshl_b32 s28, s27, 7"); k("s_add_u32 s31, s49, s28")
    k("s_lshl_b32 s32, s20, 10")
    k("s_lshl_b32 s33, s20, 11"); k(f"s_add_u32 s33, s33, {BOFF}")
    k.stamp("p1_pre")
    k("s_waitcnt lgkmcnt(0)")
    k.stamp("p1_ka")
    srd(k, 8, pWQKV, D * 3 * D * 2)
    srd(k, 12, pWS, WS_SIZE)
    srd(k, 16, pX, MB4)
    def dma(slot):
        o = []
        for m in range(3):
            o.append([f"s_add_u32 m0, s32, {slot*SLOT + m*8192}", f"buffer_load_dwordx4 v{vW[m]}, s[8:11], s30 offen lds"])
        o.append([f"s_add_u32 m0, s33, {slot*SLOT}", f"buffer_load_dwordx4 v{vX[0]}, s[16:19], s31 offen lds"])
        o.append([f"buffer_load_dwordx4 v{vX[1]}, s[16:19], s31 offen offset:1024 lds"])
        return o
    adv = [f"s_add_u32 s30, s30, {64*6144}", "s_add_u32 s31, s31, 128", "s_cmp_eq_u32 s30, s46", "s_cselect_b32 s30, s48, s30", "s_cselect_b32 s31, s49, s31"]
    vm = VM()
    def issue_stage(st):
        for d in dma(st % NS):
            for l in d: k(l)
        for l in adv: k(l)
        vm.issue(("S", st), 5)
    NPRO = 2 if RAMP else NS
    issue_stage(0)
    if not RAMP:
        for st in range(1, NS): issue_stage(st)
    k.stamp("p1_dma")
    srd(k, 88, pWO, D * D * 2)
    k("v_lshlrev_b32 v197, 4, v0")
    k("v_mov_b32 v14, v197")
    l0 = k.lab("noinit")
    k("s_cmp_lg_u32 s2, 0"); k(f"s_cbranch_scc1 {l0}")
    for r in range(4): k(f"v_mov_b32 v{PL+r}, 0")
    k(f"s_mov_b32 s27, {WS_CNT}")
    k(f"buffer_store_dwordx4 v[{PL}:{PL+3}], v14, s[12:15], s27 offen{SC}")
    k(f"{l0}:")
    srd(k, 60, pDBG, 256)
    k("v_lshrrev_b32 v14, 4, v1")
    k("v_bfe_u32 v15, v1, 2, 2")
    k("v_lshrrev_b32 v16, 1, v14"); k("v_and_b32 v17, 1, v14")
    k("v_lshlrev_b32 v16, 4, v16"); k("v_lshl_add_u32 v16, v17, 2, v16"); k("v_add_u32 v16, v16, v15")
    k("v_lshlrev_b32 v16, 7, v16")
    k("v_lshrrev_b32 v18, 1, v15"); k("v_lshl_add_u32 v18, v17, 1, v18")
    k("v_xor_b32 v18, s26, v18")
    k("v_lshl_add_u32 v16, v18, 5, v16")
    k("v_and_b32 v18, 3, v1")
    k(f"v_lshl_add_u32 v{vA[0]}, v18, 3, v16")
    k(f"v_add_u32 v{vA[1]}, {2*SLOT}, v{vA[0]}")
    for i in range(1, 4): k(f"v_cmp_eq_u32 s[{48+2*i}:{49+2*i}], {i}, v18")
    if RAMP:
        k("s_barrier")
        issue_stage(1)
    k("v_cmp_eq_u32 s[56:57], v14, v15")
    k("v_and_b32 v15, 15, v1")
    k("v_cmp_eq_u32 s[58:59], 0, v15")
    k("v_lshrrev_b32 v16, 1, v15"); k("v_xor_b32 v16, v16, v14"); k("v_lshlrev_b32 v16, 4, v16")
    k("v_lshl_add_u32 v16, v15, 7, v16")
    k("s_cmp_eq_u32 s25, 0")
    k("s_cselect_b32 s58, s58, 0"); k("s_cselect_b32 s59, s59, 0")
    k("s_lshl_b32 s28, s25, 13"); k(f"s_add_u32 s28, s28, {BOFF}")
    for jj in range(4):
        k(f"s_xor_b32 s27, s26, {jj}"); k("s_lshl_b32 s27, s27, 11"); k("s_add_u32 s27, s27, s28")
        k(f"v_add_u32 v{VB+jj}, s27, v16")
        k(f"v_xor_b32 v{VB+4+jj}, 64, v{VB+jj}")
        k(f"v_add_u32 v{VB+8+jj}, {2*SLOT}, v{VB+jj}")
        k(f"v_add_u32 v{VB+12+jj}, {2*SLOT}, v{VB+4+jj}")
    k(f"v_mov_b32 v{vZ}, 0")
    k("v_lshlrev_b32 v8, 3, v15")
    k("s_lshl_b32 s42, s23, 3"); k("s_lshl_b32 s27, s25, 2"); k("s_add_u32 s42, s42, s27"); k("s_add_u32 s42, s42, s26")
    k("s_lshl_b32 s42, s42, 7"); k("s_lshl_b32 s27, s24, 14"); k("s_add_u32 s42, s42, s27"); k(f"s_add_u32 s42, s42, {WS_ST1}")
    k("v_lshlrev_b32 v9, 4, v14")
    k("s_lshl_b32 s43, s24, 4"); k("s_add_u32 s43, s43, s23"); k("s_mul_i32 s43, s43, 768")
    k("s_lshl_b32 s27, s26, 6"); k("s_add_u32 s43, s43, s27"); k(f"s_add_u32 s43, s43, {WS_CS1}")
    k("v_and_b32 v196, 1, v1"); k("v_lshlrev_b32 v196, 7, v196")
    for r in range(ACC, ACC + 48): k(f"v_mov_b32 v{r}, 0")
    for r in range(DC, DC + 20): k(f"v_mov_b32 v{r}, 0")
    for r in range(4): k(f"v_mov_b32 v{ONE+r}, 0x3f803f80")
    def reads(buf, slot, kb):
        o = []
        pr = slot >> 1; so = (slot & 1) * SLOT
        def rA(m):
            return [f"ds_read_b64_tr_b16 v[{A[buf]+4*m+2*t}:{A[buf]+4*m+2*t+1}], v{vA[pr]} offset:{so + m*8192 + kb*4096 + t*1024}" for t in range(2)]
        def rB(j):
            return [f"ds_read_b128 v[{B[buf]+4*j}:{B[buf]+4*j+3}], v{VB + pr*8 + kb*4 + j} offset:{so}"]
        o += rA(0)
        for j in range(4): o += rB(j)
        o += rA(1) + rA(2)
        return o
    def side(buf):
        o = []
        fb = f"v[{B[buf]}:{B[buf]+3}]"; on = f"v[{ONE}:{ONE+3}]"
        for m in range(3):
            o.append(f"v_mfma_f32_16x16x32_bf16 v[{DC+4*m}:{DC+4*m+3}], v[{A[buf]+4*m}:{A[buf]+4*m+3}], {on}, v[{DC+4*m}:{DC+4*m+3}]")
        o.append(f"v_mfma_f32_16x16x32_bf16 v[{D1}:{D1+3}], {on}, {fb}, v[{D1}:{D1+3}]")
        o.append(f"v_mfma_f32_16x16x32_bf16 v[{D2}:{D2+3}], {fb}, {fb}, v[{D2}:{D2+3}]")
        return o
    def once(lines):
        l = k.lab("once")
        k("s_cmp_lg_u32 s34, 0"); k(f"s_cbranch_scc1 {l}")
        for x in lines: k(x)
        k(f"{l}:")
    def publish():
        o = [f"v_cndmask_b32 v{D2}, v{D2}, v{D2+1}, s[50:51]", f"v_cndmask_b32 v{D2}, v{D2}, v{D2+2}, s[52:53]", f"v_cndmask_b32 v{D2}, v{D2}, v{D2+3}, s[54:55]",
             f"v_mov_b32 v{D1+1}, v{D2}",
             "s_mov_b64 exec, s[56:57]",
             f"buffer_store_dwordx2 v[{D1}:{D1+1}], v8, s[12:15], s42 offen{SC}",
             "s_mov_b64 exec, s[58:59]"]
        for m in range(3):
            o.append(f"buffer_store_dwordx4 v[{DC+4*m}:{DC+4*m+3}], v9, s[12:15], s43 offen offset:{256*m}{SC}")
        o.append("s_mov_b64 exec, -1")
        return o
    def sig1():
        l = k.lab("nosig1")
        return ["s_cmp_lg_u32 s20, 0", f"s_cbranch_scc1 {l}", "s_mov_b64 exec, 1", "v_mov_b32 v14, 1",
                "s_and_b32 s27, s2, 1", "s_lshl_b32 s27, s27, 7",
                f"buffer_atomic_add v14, v{vZ}, s[60:63], s27 offen sc1", "s_mov_b64 exec, -1", f"{l}:"]
    k.stamp("p1_set")
    k(f"s_waitcnt vmcnt({vm.cnt({('S', 0)})})")
    k.stamp("p1_w0")
    k("s_barrier")
    k.stamp("p1_go")
    for l in reads(0, 0, 0): k(l)
    NT = 16
    def sched(t, kb):
        if RAMP and t < 2: return [2, 3, 4, 5][2 * t + kb]
        if kb == 1 and t + NS < NT: return t + NS
        return None
    def step(o, t, kb, side_here=False, pre=None, post=None, extra_need=()):
        cur = kb; nxt = kb ^ 1; last = t == NT - 1
        if kb == 0:
            o.append("s_waitcnt lgkmcnt(0)")
            rd = reads(nxt, t % NS, 1)
        elif last:
            o.append("s_waitcnt lgkmcnt(0)"); rd = []
        else:
            o.append(f"s_waitcnt vmcnt({vm.cnt({('S', t + 1)} | set(extra_need))}) lgkmcnt(0)")
            o.append("s_barrier")
            rd = reads(nxt, (t + 1) % NS, 0)
        st = sched(t, kb)
        dm = dma(st % NS) if st is not None else []
        if pre: pre(o)
        if st is not None: vm.issue(("S", st), 5)
        mf = []
        for m in range(3):
            for j in range(4):
                a = acc(m, j); fa = f"v[{A[cur]+4*m}:{A[cur]+4*m+3}]"; fb = f"v[{B[cur]+4*j}:{B[cur]+4*j+3}]"
                if m == 2: fa, fb = fb, fa
                mf.append(f"v_mfma_f32_16x16x32_bf16 v[{a}:{a+3}], {fa}, {fb}, v[{a}:{a+3}]")
        gaps = [[] for _ in mf]
        for q, r in enumerate(rd): gaps[q].append(r)
        pos = [1, 3, 5, 7, 9]
        for q, d in enumerate(dm):
            if len(d) == 2:
                gaps[pos[q] - 1].append(d[0]); gaps[pos[q]].append(d[1])
            else:
                gaps[pos[q]].append(d[0])
        if dm: gaps[10] += adv
        for g, mm in enumerate(mf):
            o.append(mm); o += gaps[g]
        if side_here: o += side(cur)
        if post: post(o)
    texts = []
    for per in range(3):
        o = []
        for t in range(per * 4, per * 4 + 4):
            step(o, t, 0, side_here=(t == 0))
            if t == 1:
                o += publish(); vm.issue("PUB", 4, certain=False)
            step(o, t, 1, side_here=(t == 0), extra_need=("PUB",) if t == 3 else ())
            if t == 3: o += sig1(); vm.issue("SIG", 1, certain=False)
        texts.append(o)
    periods(k, "p1loop", texts, 34)
    def partial_loads():
        rdy = k.lab("p1rdy"); spin = k.lab("p1spin"); nocs = k.lab("p1nocs")
        k(f"v_cmp_eq_u32 vcc, 128, v{vP}")
        k("s_cmp_eq_u64 vcc, -1")
        k(f"s_cbranch_scc1 {rdy}")
        k("s_mov_b32 s28, 0")
        k(f"{spin}:")
        k("s_add_u32 s28, s28, 1")
        k(f"s_cmp_gt_u32 s28, {SPIN_LIMIT}")
        k(f"s_cbranch_scc1 {rdy}")
        k("s_sleep 2")
        k(f"buffer_load_dword v{vP}, v196, s[60:63], 0 offen sc1")
        k("s_waitcnt vmcnt(0)")
        k(f"v_cmp_eq_u32 vcc, 128, v{vP}")
        k("s_cmp_eq_u64 vcc, -1")
        k(f"s_cbranch_scc0 {spin}")
        k(f"{rdy}:")
        k("v_and_b32 v14, 3, v0"); k("v_lshlrev_b32 v14, 16, v14")
        k("v_lshrrev_b32 v15, 2, v0"); k("v_lshl_add_u32 v14, v15, 3, v14")
        k("s_lshl_b32 s27, s23, 10"); k(f"s_add_u32 s27, s27, {WS_ST1}")
        for i in range(4):
            k(f"buffer_load_dwordx2 v[{PL+2*i}:{PL+2*i+1}], v14, s[12:15], s27 offen{SC}")
            if i < 3: k("s_add_u32 s27, s27, 16384")
        k("s_cmp_ge_u32 s20, 3")
        k(f"s_cbranch_scc1 {nocs}")
        k("v_lshlrev_b32 v14, 2, v0")
        k(f"s_mul_i32 s27, s24, {16*768}"); k(f"s_add_u32 s27, s27, {WS_CS1}")
        for i in range(16):
            k(f"buffer_load_dword v{PL+8+i}, v14, s[12:15], s27 offen offset:{(i % 4) * 768}{SC}")
            if i % 4 == 3 and i < 15: k(f"s_add_u32 s27, s27, {4*768}")
        k(f"{nocs}:")
    class _O:
        def append(self, x): k(x)
        def __iadd__(self, xs):
            for x in xs: k(x)
            return self
    o = _O()
    for t in range(12, 16):
        step(o, t, 0)
        if t == 12:
            k(f"buffer_load_dword v{vP}, v196, s[60:63], 0 offen sc1"); vm.issue("VP")
            k("s_lshl_b32 s27, s2, 13")
            k(f"buffer_load_dwordx4 v[{RMR}:{RMR+3}], v197, s[88:91], s27 offen"); vm.issue("RMR")
        step(o, t, 1, pre=(lambda o: partial_loads()) if t == 14 else None, extra_need=("VP", "RMR") if t == 14 else ())
    k.stamp("p1_loop")
    k("v_mov_b32 v14, 0")
    for r in range(4): k(f"v_dot2c_f32_bf16 v14, v{RMR+r}, v{ONE}")
    for ro in (8, 4, 2, 1): k(f"v_add_f32_dpp v14, v14, v14 row_ror:{ro} row_mask:0xf bank_mask:0xf")
    for sw in ("v_permlane16_swap_b32", "v_permlane32_swap_b32"):
        k("v_mov_b32 v15, v14"); k(f"{sw} v14, v15"); k("v_add_f32 v14, v14, v15")
    k("s_lshl_b32 s27, s20, 2"); k("s_add_u32 s27, s27, 2048"); k("v_mov_b32 v15, s27")
    k("ds_write_b32 v15, v14")
    k("s_waitcnt vmcnt(0)")
    k(f"v_add_f32 v{PL}, v{PL}, v{PL+2}"); k(f"v_add_f32 v{PL+1}, v{PL+1}, v{PL+3}")
    k(f"v_add_f32 v{PL+4}, v{PL+4}, v{PL+6}"); k(f"v_add_f32 v{PL+5}, v{PL+5}, v{PL+7}")
    k(f"v_add_f32 v{PL}, v{PL}, v{PL+4}"); k(f"v_add_f32 v{PL+1}, v{PL+1}, v{PL+5}")
    for qp in ("[1,0,3,2]", "[2,3,0,1]"):
        k(f"v_add_f32_dpp v{PL}, v{PL}, v{PL} quad_perm:{qp} row_mask:0xf bank_mask:0xf")
        k(f"v_add_f32_dpp v{PL+1}, v{PL+1}, v{PL+1} quad_perm:{qp} row_mask:0xf bank_mask:0xf")
    k(f"v_mul_f32 v{PL}, 0x3a800000, v{PL}")
    k(f"v_mul_f32 v{PL+1}, 0x3a800000, v{PL+1}")
    k("v_lshrrev_b32 v16, 2, v0"); k("v_lshlrev_b32 v16, 2, v16")
    lm = k.lab("nomx")
    k("s_cmp_lg_u32 s24, 0"); k(f"s_cbranch_scc1 {lm}")
    k("s_lshl_b32 s27, s23, 9"); k(f"s_add_u32 s27, s27, {WS_MX}")
    k(f"buffer_store_dword v{PL}, v16, s[12:15], s27 offen{SC}")
    k(f"{lm}:")
    k(f"v_fma_f32 v{PL+1}, -v{PL}, v{PL}, v{PL+1}")
    k(f"v_max_f32 v{PL+1}, 0, v{PL+1}")
    k(f"v_add_f32 v{PL+1}, 0x3727c5ac, v{PL+1}")
    k(f"v_rsq_f32 v{PL+1}, v{PL+1}")
    k(f"v_mul_f32 v{PL+2}, v{PL}, v{PL+1}")
    k(f"v_sub_f32 v{PL+2}, 0, v{PL+2}")
    k(f"ds_write_b32 v16, v{PL+1}")
    k(f"ds_write_b32 v16, v{PL+2} offset:512")
    l2 = k.lab("nocs2")
    k("s_cmp_ge_u32 s20, 3")
    k(f"s_cbranch_scc1 {l2}")
    for st in (8, 4, 2, 1):
        for i in range(st): k(f"v_add_f32 v{PL+8+i}, v{PL+8+i}, v{PL+8+i+st}")
    k("v_lshlrev_b32 v16, 2, v0")
    k(f"ds_write_b32 v16, v{PL+8} offset:1024")
    k(f"{l2}:")
    k("v_and_b32 v15, 15, v1")
    k("s_lshl_b32 s27, s25, 8"); k("s_lshl_b32 s28, s26, 6"); k("s_add_u32 s28, s28, s27")
    k("v_lshlrev_b32 v16, 2, v15")
    k("v_add_u32 v17, s28, v16")
    k("v_lshrrev_b32 v14, 4, v1")
    k("v_lshlrev_b32 v19, 4, v14")
    k("v_add_u32 v20, s28, v19")
    k("s_lshl_b32 s29, s26, 6"); k("s_add_u32 s29, s29, 1024")
    k("v_add_u32 v19, s29, v19")
    k("v_add_u32 v18, s29, v16")
    for jj in range(1, 4):
        k(f"v_xor_b32 v{20+jj}, {jj<<6}, v20")
        k(f"v_xor_b32 v{23+jj}, {jj<<6}, v17")
    k("s_lshl_b32 s27, s23, 2"); k("s_lshl_b32 s28, s25, 1"); k("s_add_u32 s27, s27, s28")
    k("s_lshl_b32 s27, s27, 16")
    k("s_lshl_b32 s28, s24, 12"); k("s_add_u32 s27, s27, s28")
    k("s_lshl_b32 s28, s26, 10"); k("s_add_u32 s27, s27, s28")
    k("s_lshr_b32 s42, s26, 1")
    k("s_lshl_b32 s28, s42, 16"); k("s_add_u32 s35, s27, s28")
    k("s_xor_b32 s28, s28, 0x10000"); k("s_add_u32 s37, s27, s28")
    k(f"s_add_u32 s36, s35, {WS_K}"); k(f"s_add_u32 s38, s37, {WS_K}")
    k(f"s_add_u32 s35, s35, {WS_Q}"); k(f"s_add_u32 s37, s37, {WS_Q}")
    if QKS:
        k(f"s_add_u32 s27, s24, {QKS}"); k("s_and_b32 s27, s27, 15"); k("s_sub_u32 s27, s27, s24"); k("s_lshl_b32 s27, s27, 12")
        k("s_add_u32 s36, s36, s27"); k("s_add_u32 s38, s38, s27")
        k(f"s_add_u32 s27, s24, {2*QKS}"); k("s_and_b32 s27, s27, 15"); k("s_lshl_b32 s27, s27, 1")
    else:
        k("s_lshl_b32 s27, s24, 1")
    k("s_add_u32 s27, s27, s42")
    k("s_lshl_b32 s27, s27, 7")
    k("s_lshl_b32 s28, s23, 3"); k("s_add_u32 s27, s27, s28")
    k("s_lshl_b32 s28, s25, 2"); k("s_add_u32 s27, s27, s28")
    k("s_lshl_b32 s27, s27, 10")
    k("s_and_b32 s43, s26, 1")
    k("s_lshl_b32 s28, s43, 8"); k("s_add_u32 s27, s27, s28")
    k(f"s_add_u32 s27, s27, {WS_VT}")
    k("s_lshl_b32 s28, s42, 11"); k("s_add_u32 s39, s27, s28")
    k("s_xor_b32 s28, s28, 2048"); k("s_add_u32 s40, s27, s28")
    k("v_lshrrev_b32 v27, 5, v1"); k("v_xor_b32 v27, s43, v27"); k("v_lshlrev_b32 v27, 10, v27")
    k("v_bfe_u32 v28, v1, 4, 1"); k("v_lshl_add_u32 v27, v28, 9, v27")
    k("v_lshl_add_u32 v14, v15, 4, v27")
    k("s_lshl_b32 s28, s43, 8")
    k(f"v_xor_b32 v{vL16}, s28, v{vL16}")
    k("s_waitcnt lgkmcnt(0)")
    k("s_barrier")
    SQ = 28; CQ = 36
    k(f"ds_read2_b32 v[{SQ}:{SQ+1}], v17 offset0:0 offset1:128")
    for jj in range(1, 4): k(f"ds_read2_b32 v[{SQ+2*jj}:{SQ+2*jj+1}], v{23+jj} offset0:0 offset1:128")
    k(f"ds_read_b128 v[{CQ}:{CQ+3}], v19")
    k(f"ds_read_b128 v[{CQ+4}:{CQ+7}], v19 offset:256")
    k("ds_read_b32 v152, v18 offset:512")
    VS = [112, 120, 128, 136]
    for jj in range(4):
        k(f"ds_read_b128 v[{VS[jj]}:{VS[jj]+3}], v{20+jj}")
        k(f"ds_read_b128 v[{VS[jj]+4}:{VS[jj]+7}], v{20+jj} offset:512")
    l7 = k.lab("norm")
    k("s_cmp_lg_u32 s20, 7"); k(f"s_cbranch_scc1 {l7}")
    k(f"ds_read_b128 v[{PL}:{PL+3}], v{vZ} offset:2048")
    k(f"ds_read_b128 v[{PL+4}:{PL+7}], v{vZ} offset:2064")
    k("s_waitcnt lgkmcnt(0)")
    for r in range(4):
        k(f"v_add_f32 v{PL+2*r}, v{PL+2*r}, v{PL+2*r+1}")
        k(f"v_mul_f32 v{PL+2*r}, 0x3a800000, v{PL+2*r}")
    k(f"v_cvt_pk_bf16_f32 v{PL+8}, v{PL}, v{PL+2}")
    k(f"v_cvt_pk_bf16_f32 v{PL+9}, v{PL+4}, v{PL+6}")
    k("s_lshl_b32 s27, s2, 3"); k(f"s_add_u32 s27, s27, {WS_RM}")
    k("s_mov_b64 exec, 1")
    k(f"buffer_store_dwordx2 v[{PL+8}:{PL+9}], v{vZ}, s[12:15], s27 offen{SC}")
    k("s_mov_b64 exec, -1")
    k(f"{l7}:")
    k("s_mov_b32 s44, 0x3e8293ee")
    k("s_waitcnt lgkmcnt(9)")
    QS = 52
    for jj in range(4):
        k(f"v_mul_f32 v{QS+2*jj}, s44, v{SQ+2*jj}")
        k(f"v_mul_f32 v{QS+2*jj+1}, s44, v{SQ+2*jj+1}")
    TP = [16, 20, 24, 44, 48, 60]
    TM = 144
    ti = 0
    for m in range(3):
        if m == 2: k("s_waitcnt lgkmcnt(0)")
        for p in range(2):
            t = TP[ti]; ti += 1
            for jj2 in range(2):
                jj = 2 * p + jj2
                a = acc(m, jj)
                for h in range(2):
                    tm = TM + 2 * ((jj2 * 2 + h) & 3)
                    if m < 2:
                        st = (QS if m == 0 else SQ) + 2 * jj
                        cs = CQ + 4 * m + 2 * h
                        k(f"v_pk_mul_f32 v[{tm}:{tm+1}], v[{cs}:{cs+1}], v[{st}:{st+1}] op_sel:[0,1] op_sel_hi:[1,1]")
                        k(f"v_pk_fma_f32 v[{a+2*h}:{a+2*h+1}], v[{a+2*h}:{a+2*h+1}], v[{st}:{st+1}], v[{tm}:{tm+1}] op_sel:[0,0,0] op_sel_hi:[1,0,1]")
                    else:
                        rs = VS[jj] + 2 * h; nm = VS[jj] + 4 + 2 * h
                        k(f"v_pk_mul_f32 v[{tm}:{tm+1}], v[{nm}:{nm+1}], v[152:153] op_sel:[0,0] op_sel_hi:[1,0]")
                        k(f"v_pk_fma_f32 v[{a+2*h}:{a+2*h+1}], v[{a+2*h}:{a+2*h+1}], v[{rs}:{rs+1}], v[{tm}:{tm+1}]")
                k(f"v_cvt_pk_bf16_f32 v{t+2*jj2}, v{a}, v{a+1}")
                k(f"v_cvt_pk_bf16_f32 v{t+2*jj2+1}, v{a+2}, v{a+3}")
            sw = "v_permlane16_swap_b32" if m < 2 else "v_permlane32_swap_b32"
            k(f"{sw} v{t}, v{t+2}")
            k(f"{sw} v{t+1}, v{t+3}")
            so = [[35, 37], [36, 38], [39, 40]][m][p]
            k(f"buffer_store_dwordx4 v[{t}:{t+3}], v{vL16 if m < 2 else 14}, s[12:15], s{so} offen{SC}")
    k.stamp("p1_epi")
    k("s_lshl_b32 s27, s24, 7"); k(f"s_add_u32 s27, s27, {WS_CNT + C2*128}")
    signal(k, 27, vt=(30, 31))
    k.stamp("p1_sig")

W3BASE = 98304
vW3 = [200, 201]
C35 = int(os.environ.get("C35", "0"))
def coords35(k, stb, scb, st):
    k("s_and_b32 s21, s2, 7"); k("s_lshr_b32 s22, s2, 3")
    if C35 == 0:
        k(f"s_and_b32 s{stb}, s21, 3"); k(f"s_lshl_b32 s{stb}, s{stb}, 2"); k(f"s_and_b32 s{st}, s22, 3"); k(f"s_add_u32 s{stb}, s{stb}, s{st}")
        k(f"s_lshr_b32 s{scb}, s21, 2"); k(f"s_lshl_b32 s{scb}, s{scb}, 3"); k(f"s_lshr_b32 s{st}, s22, 2"); k(f"s_add_u32 s{scb}, s{scb}, s{st}")
    elif C35 == 2:
        k(f"s_lshl_b32 s{stb}, s21, 1"); k(f"s_lshr_b32 s{st}, s22, 4"); k(f"s_add_u32 s{stb}, s{stb}, s{st}")
        k(f"s_and_b32 s{scb}, s22, 15")
    elif C35 == 3:
        k(f"s_and_b32 s{stb}, s21, 1"); k(f"s_lshl_b32 s{stb}, s{stb}, 3"); k(f"s_lshr_b32 s{st}, s22, 2"); k(f"s_add_u32 s{stb}, s{stb}, s{st}")
        k(f"s_lshr_b32 s{scb}, s21, 1"); k(f"s_lshl_b32 s{scb}, s{scb}, 2"); k(f"s_and_b32 s{st}, s22, 3"); k(f"s_add_u32 s{scb}, s{scb}, s{st}")
    elif C35 == 4:
        k(f"s_and_b32 s{stb}, s21, 3"); k(f"s_lshl_b32 s{stb}, s{stb}, 2"); k(f"s_lshr_b32 s{st}, s22, 3"); k(f"s_add_u32 s{stb}, s{stb}, s{st}")
        k(f"s_lshr_b32 s{scb}, s21, 2"); k(f"s_and_b32 s{st}, s22, 7"); k(f"s_lshl_b32 s{st}, s{st}, 1"); k(f"s_add_u32 s{scb}, s{scb}, s{st}")
    else:
        k(f"s_and_b32 s{stb}, s21, 3"); k(f"s_lshl_b32 s{stb}, s{stb}, 2"); k(f"s_lshr_b32 s{st}, s22, 3"); k(f"s_add_u32 s{stb}, s{stb}, s{st}")
        k(f"s_lshr_b32 s{scb}, s21, 2"); k(f"s_lshl_b32 s{scb}, s{scb}, 3"); k(f"s_and_b32 s{st}, s22, 7"); k(f"s_add_u32 s{scb}, s{scb}, s{st}")
WT3 = int(os.environ.get("WT3", "0")); WT5 = int(os.environ.get("WT5", "0"))
WDT = int(os.environ.get("WDT", "3"))
WS_WDT = 0x3000000
WDA = int(os.environ.get("WDA", "3")); WDP = int(os.environ.get("WDP", "4"))
def w35_setup(k, vW, base, t, tiled=0):
    coords35(k, 27, 29, 28)
    rb = 128 if tiled else 2048
    wdma_lane(k, vW[0], rb, t)
    k(f"v_add_u32 v{vW[1]}, {4*rb}, v{vW[0]}")
    k("s_lshr_b32 s27, s20, 1"); k("s_lshl_b32 s27, s27, 5"); k("s_and_b32 s28, s20, 1"); k("s_lshl_b32 s28, s28, 4")
    k("s_add_u32 s27, s27, s28")
    if tiled:
        k("s_lshl_b32 s50, s27, 7"); k(f"s_mul_i32 s28, s29, {tiled*128}"); k("s_add_u32 s50, s50, s28")
        if WDT and base == 0: k(f"s_add_u32 s50, s50, {WS_WDT}")
    else:
        k("s_lshl_b32 s50, s27, 11"); k("s_lshl_b32 s28, s29, 7"); k("s_add_u32 s50, s50, s28")
        if os.environ.get("WOFF64") and base == 0: k("s_add_u32 s50, s50, 64")
    k("s_lshl_b32 s51, s20, 11")
    if base: k(f"s_add_u32 s51, s51, {base}")
def w35_dma(vW, srdw, slot):
    sc = SC if srdw == 12 else ""
    return [[f"s_add_u32 m0, s51, {slot*16384}", f"buffer_load_dwordx4 v{vW[0]}, s[{srdw}:{srdw+3}], s50 offen{sc} lds"],
            [f"s_add_u32 m0, s51, {slot*16384+1024}", f"buffer_load_dwordx4 v{vW[1]}, s[{srdw}:{srdw+3}], s50 offen{sc} lds"]]
W3ADV = f"s_add_u32 s50, s50, {128*(128 if WT3 else 2048)}"
W5ADV = f"s_add_u32 s50, s50, {128*(128 if WT5 or WDT else 2048)}"
SW5 = 12 if WDT else 60

WOPF = int(os.environ.get("WOPF", "0"))
OT = int(os.environ.get("OT", "0"))
def phase2(k):
    STG = 32768
    vL16, vCur, vNxt, vTmp = 2, 3, 4, 5
    QA, QB = 8, 16
    KF = [24, 32]; VF = [40, 48]
    SA, SB = 56, 72
    PA, PB = 88, 96
    OA, OB = 104, 120
    LA, LB = 136, 140
    NA, NB = 144, 160
    ONE = 176
    T0 = 180
    w35_setup(k, vW3, W3BASE, 180, D if WT3 else 0)
    srd(k, 8, pBX if WT3 else pWO, D * D * 2)
    k("s_and_b32 s21, s2, 7"); k("s_lshl_b32 s21, s21, 2"); k("s_lshr_b32 s22, s2, 6"); k("s_add_u32 s21, s21, s22")
    k("s_bfe_u32 s22, s2, 0x30003")
    k("s_and_b32 s23, s20, 3")
    k("s_lshr_b32 s24, s20, 2")
    k(f"v_lshlrev_b32 v{vL16}, 4, v1")
    k("s_lshl_b32 s30, s24, 5"); k("s_add_u32 s30, s30, s23"); k("s_lshl_b32 s30, s30, 16")
    k("s_lshl_b32 s25, s21, 11"); k("s_add_u32 s30, s30, s25"); k(f"s_add_u32 s30, s30, {WS_K}")
    k("s_lshl_b32 s31, s21, 7"); k("s_lshl_b32 s25, s24, 6"); k("s_add_u32 s31, s31, s25")
    k("s_lshl_b32 s25, s23, 1"); k("s_add_u32 s31, s31, s25"); k("s_lshl_b32 s31, s31, 10"); k(f"s_add_u32 s31, s31, {WS_VT}")
    k("s_lshl_b32 s32, s24, 14"); k("s_lshl_b32 s25, s23, 11"); k("s_add_u32 s32, s32, s25")
    k("s_lshl_b32 s33, s22, 3"); k("s_lshl_b32 s25, s23, 1"); k("s_add_u32 s33, s33, s25"); k("s_lshl_b32 s33, s33, 16")
    k("s_lshl_b32 s25, s21, 11"); k("s_add_u32 s33, s33, s25")
    k(f"s_add_u32 s45, s33, {WS_O}")
    k(f"s_add_u32 s33, s33, {WS_Q}")
    k("s_add_u32 s34, s33, 65536")
    k(f"v_lshrrev_b32 v{vTmp}, 2, v1"); k(f"v_lshrrev_b32 v{T0}, 4, v1"); k(f"v_xor_b32 v{vTmp}, v{vTmp}, v{T0}")
    k(f"v_and_b32 v{vTmp}, 1, v{vTmp}"); k(f"v_cmp_eq_u32 vcc, 0, v{vTmp}")
    k(f"v_mov_b32 v{T0}, 0x3f803f80")
    k(f"v_cndmask_b32 v{ONE}, 0, v{T0}, vcc")
    for r in range(1, 4): k(f"v_mov_b32 v{ONE+r}, v{ONE}")
    for r in range(32): k(f"v_mov_b32 v{NA+r}, 0")
    k("s_mov_b32 s46, 0")
    k("s_lshl_b32 s25, s24, 14")
    k(f"v_add_u32 v{vTmp}, s25, v{vL16}")
    if PFW:
        k("s_lshl_b32 s25, s2, 3"); k("s_add_u32 s25, s25, s20")
        k("s_mul_i32 s26, s25, 3584")
        k(f"v_lshlrev_b32 v198, 6, v1"); k("v_add_u32 v198, s26, v198")
        srd(k, 88, pWO, D * D * 2)
        k(f"s_mov_b64 s[92:93], s[{pWG}:{pWG+1}]"); k(f"s_mov_b64 s[94:95], s[{pWU}:{pWU+1}]"); k(f"s_mov_b64 s[96:97], s[{pWD}:{pWD+1}]")
    WDR, vWDS = 208, 224
    if WDT:
        srd(k, 60, pWD, DF * D * 2)
        k(f"v_lshrrev_b32 v{vWDS}, 3, v1"); k(f"s_mov_b32 s26, {DF*128}"); k(f"v_mul_lo_u32 v{vWDS}, v{vWDS}, s26")
        k(f"v_and_b32 v{vWDS+1}, 7, v1"); k(f"v_lshl_add_u32 v{vWDS}, v{vWDS+1}, 4, v{vWDS}")
        k("s_mul_i32 s98, s2, 14"); k("s_lshl_b32 s26, s20, 1"); k("s_add_u32 s98, s98, s26"); k("s_lshl_b32 s98, s98, 7")
        k(f"s_add_u32 s98, s98, {WS_WDT - 256}"); k(f"s_add_u32 s99, s98, {8*DF*128}")
        k("s_mul_i32 s100, s2, 28672"); k("s_lshl_b32 s26, s20, 12"); k("s_add_u32 s100, s100, s26"); k("s_sub_u32 s100, s100, 4096")
        k("s_cmp_eq_u32 s20, 0"); k(f"s_cselect_b32 s101, 99, {WDA}")
        if WDT == 3: k(f"s_cselect_b32 s101, 99, {hex((-WDA - 1) & 0xffffffff)}")
        if WDT >= 2:
            assert WDA % 2 == 1
            k(f"s_sub_u32 s98, s98, {128 * ((WDA + 1) // 2)}"); k(f"s_mov_b32 s99, {8*DF*128}"); k(f"s_sub_u32 s100, s100, {1024*WDA}")
    if QKS:
        k(f"v_mul_u32_u24 v{T0+1}, {QKS}, v1"); k("s_lshr_b32 s27, s21, 1"); k(f"v_sub_u32 v{T0+1}, s27, v{T0+1}")
        k(f"v_and_b32 v{T0+1}, 15, v{T0+1}"); k(f"v_lshlrev_b32 v{T0+1}, 7, v{T0+1}")
        k(f"s_mov_b32 s27, {WS_CNT + C2*128}")
        wait_multi(k, 27, 16, 3, vt=(T0, T0 + 1))
    else:
        k("s_lshr_b32 s27, s21, 1"); k("s_lshl_b32 s27, s27, 7"); k(f"s_add_u32 s27, s27, {WS_CNT + C2*128}")
        wait(k, 27, 16, vt=(T0, T0 + 1), pr=KF[0])
    k.stamp("p2_wait")
    for kk in range(2):
        k(f"buffer_load_dwordx4 v[{QA+4*kk}:{QA+4*kk+3}], v{vL16}, s[12:15], s33 offen offset:{1024*kk}{SC}")
        k(f"buffer_load_dwordx4 v[{QB+4*kk}:{QB+4*kk+3}], v{vL16}, s[12:15], s34 offen offset:{1024*kk}{SC}")
    def dma_stage():
        k("s_add_u32 m0, s42, s32")
        k(f"buffer_load_dwordx4 v{vL16}, s[12:15], s40 offen{SC} lds")
        k(f"buffer_load_dwordx4 v{vL16}, s[12:15], s40 offen offset:1024{SC} lds")
        k("s_add_u32 m0, m0, 8192")
        k(f"buffer_load_dwordx4 v{vL16}, s[12:15], s41 offen{SC} lds")
        k(f"buffer_load_dwordx4 v{vL16}, s[12:15], s41 offen offset:1024{SC} lds")
        k(f"s_add_u32 s40, s40, {4*65536}")
        k("s_add_u32 s41, s41, 8192")
    lmain = k.lab("p2main"); lloop = k.lab("p2loop"); lfin = k.lab("p2fin"); lfb = k.lab("p2fb"); lend = k.lab("p2end")
    k(f"{lmain}:")
    k("s_mov_b32 s40, s30"); k("s_mov_b32 s41, s31")
    k("s_mov_b32 s42, 0"); dma_stage()
    k(f"s_mov_b32 s42, {STG}"); dma_stage()
    k(f"s_mov_b32 s42, {2*STG}")
    k(f"v_mov_b32 v{vCur}, v{vTmp}")
    k(f"v_add_u32 v{vNxt}, {STG}, v{vTmp}")
    k(f"s_mov_b32 s43, {STG}")
    for r in range(16): k(f"v_mov_b32 v{OA+r}, 0"); k(f"v_mov_b32 v{OB+r}, 0")
    for r in range(4): k(f"v_mov_b32 v{LA+r}, 0"); k(f"v_mov_b32 v{LB+r}, 0")
    for r in range(8): k(f"v_mov_b32 v{PB+r}, 0"); k(f"v_mov_b32 v{VF[1]+r}, 0")
    def wo_ring():
        lnp = k.lab("p2nopf")
        k("s_cmp_lg_u32 s46, 0"); k(f"s_cbranch_scc1 {lnp}")
        for t in range(4):
            for d in w35_dma(vW3, 8, t):
                for l in d: k(l)
            k(W3ADV)
        k(f"{lnp}:")
    if WOPF == 0:
        lnp = k.lab("p2nopf"); lj = k.lab("p2pfj")
        k("s_cmp_lg_u32 s46, 0"); k(f"s_cbranch_scc1 {lnp}")
        for t in range(4):
            for d in w35_dma(vW3, 8, t):
                for l in d: k(l)
            k(W3ADV)
        k("s_waitcnt vmcnt(12)")
        k(f"s_branch {lj}")
        k(f"{lnp}:")
        k("s_waitcnt vmcnt(4)")
        k(f"{lj}:")
    else:
        k("s_waitcnt vmcnt(4)")
    k("s_barrier")
    k.stamp("p2_go")
    if WOPF == 1: wo_ring()
    for kk in range(2):
        k(f"ds_read_b128 v[{KF[0]+4*kk}:{KF[0]+4*kk+3}], v{vCur} offset:{1024*kk}")
    k("s_waitcnt lgkmcnt(0)")
    def qk(Sx, Qx, Nx, kf):
        return [f"v_mfma_f32_32x32x16_bf16 v[{Sx}:{Sx+15}], v[{kf}:{kf+3}], v[{Qx}:{Qx+3}], v[{Nx}:{Nx+15}]",
                f"v_mfma_f32_32x32x16_bf16 v[{Sx}:{Sx+15}], v[{kf+4}:{kf+7}], v[{Qx+4}:{Qx+7}], v[{Sx}:{Sx+15}]"]
    def pv(Ox, Px, Lx, vf):
        return [f"v_mfma_f32_32x32x16_bf16 v[{Ox}:{Ox+15}], v[{vf}:{vf+3}], v[{Px}:{Px+3}], v[{Ox}:{Ox+15}]",
                f"v_mfma_f32_32x32x16_bf16 v[{Ox}:{Ox+15}], v[{vf+4}:{vf+7}], v[{Px+4}:{Px+7}], v[{Ox}:{Ox+15}]",
                f"v_mfma_f32_16x16x32_bf16 v[{Lx}:{Lx+3}], v[{ONE}:{ONE+3}], v[{Px}:{Px+3}], v[{Lx}:{Lx+3}]",
                f"v_mfma_f32_16x16x32_bf16 v[{Lx}:{Lx+3}], v[{ONE}:{ONE+3}], v[{Px+4}:{Px+7}], v[{Lx}:{Lx+3}]"]
    def expv(Sx, Px):
        o = []
        for g in range(4):
            o += [f"v_exp_f32 v{Sx+4*g+r}, v{Sx+4*g+r}" for r in range(4)]
            o += [f"v_cvt_pk_bf16_f32 v{Px+2*g}, v{Sx+4*g}, v{Sx+4*g+1}", f"v_cvt_pk_bf16_f32 v{Px+2*g+1}, v{Sx+4*g+2}, v{Sx+4*g+3}"]
        return o
    def phase(mf, va, extra):
        for i in range(6):
            k(mf[i])
            for (p, l) in extra:
                if p == i: k(l)
            for l in va[4*i:4*i+4]: k(l)
    for l in qk(SA, QA, NA, KF[0]): k(l)
    k("s_mov_b32 s44, 0")
    k(f"{lloop}:")
    for i in range(4):
        cb = i & 1; nb = cb ^ 1
        ex = []
        if i == 3:
            lnd = k.lab("nodma")
            k(f"s_waitcnt vmcnt({1 if PFW and PFI < 3 else 0})")
            k("s_barrier")
            k("s_cmp_ge_u32 s44, 6")
            k(f"s_cbranch_scc1 {lnd}")
            dma_stage()
            k(f"s_add_u32 s42, s42, {STG}")
            k(f"s_cmp_eq_u32 s42, {3*STG}")
            k("s_cselect_b32 s42, 0, s42")
            k(f"{lnd}:")
            if WDT == 1:
                lw = k.lab("nowd"); ls = k.lab("wdst")
                k("s_sub_u32 s27, s44, s101"); k("s_cmp_lt_u32 s27, 2"); k(f"s_cbranch_scc0 {lw}")
                k("s_cmp_eq_u32 s27, 1"); k(f"s_cbranch_scc1 {ls}")
                for q in range(4):
                    k(f"buffer_load_dwordx4 v[{WDR+4*q}:{WDR+4*q+3}], v{vL16}, s[60:63], s100 offen offset:{1024*q}")
                k(f"s_branch {lw}")
                k(f"{ls}:")
                for q in range(4):
                    k(f"buffer_store_dwordx4 v[{WDR+4*q}:{WDR+4*q+3}], v{vWDS}, s[12:15], s{98 + (q & 1)} offen offset:{128*(q>>1)}{SC}")
                k(f"{lw}:")
            if WDT == 2:
                k("s_sub_u32 s27, s44, s101"); k("s_sub_u32 s27, s27, 1")
                k("s_cmp_lt_u32 s27, 4"); k("s_cselect_b64 exec, -1, 0")
                k(f"buffer_store_dwordx4 v[{WDR}:{WDR+3}], v{vWDS}, s[12:15], s98 offen{SC}")
                k("s_add_u32 s27, s27, 1")
                k("s_cmp_lt_u32 s27, 4"); k("s_cselect_b64 exec, -1, 0")
                k(f"buffer_load_dwordx4 v[{WDR}:{WDR+3}], v{vL16}, s[60:63], s100 offen")
                k("s_mov_b64 exec, -1")
                k("s_add_u32 s98, s98, s99"); k("s_sub_u32 s99, 128, s99"); k("s_add_u32 s100, s100, 1024")
        if i == PFI and PFW:
            ex += [(4, "buffer_load_dword v199, v198, s[88:91], 0 offen"),
                   (5, "s_mov_b64 s[88:89], s[92:93]"), (5, "s_mov_b64 s[92:93], s[94:95]"), (5, "s_mov_b64 s[94:95], s[96:97]"),
                   (5, f"s_cmp_lt_u32 s44, {2 if WDT else 3}"), (5, f"s_cselect_b32 s90, {hex(D*DF*2)}, 0")]
        for kk in range(2):
            if i < 3: ex.append((kk, f"ds_read_b128 v[{KF[nb]+4*kk}:{KF[nb]+4*kk+3}], v{vCur} offset:{(i+1)*2048 + 1024*kk}"))
            else:     ex.append((kk, f"ds_read_b128 v[{KF[nb]+4*kk}:{KF[nb]+4*kk+3}], v{vNxt} offset:{1024*kk}"))
        for mm in range(2):
            ex.append((2 + mm, f"ds_read_b128 v[{VF[cb]+4*mm}:{VF[cb]+4*mm+3}], v{vCur} offset:{8192 + i*2048 + 1024*mm}"))
        phase(qk(SB, QB, NB, KF[cb]) + pv(OB, PB, LB, VF[nb]), expv(SA, PA), ex)
        k("s_waitcnt lgkmcnt(0)")
        ex = []
        if i == 3:
            ex = [(0, f"v_mov_b32 v{vCur}, v{vNxt}"), (1, f"s_add_u32 s43, s43, {STG}"), (1, f"s_cmp_eq_u32 s43, {3*STG}"),
                  (2, "s_cselect_b32 s43, 0, s43"), (3, f"v_add_u32 v{vNxt}, s43, v{vTmp}")]
            if WDT == 3:
                p = WDP
                ex += [(p, x) for x in ("s_cmp_lt_u32 s101, 4", "s_cselect_b64 exec, -1, 0",
                       f"buffer_store_dwordx4 v[{WDR}:{WDR+3}], v{vWDS}, s[12:15], s98 offen{SC}",
                       "s_add_u32 s101, s101, 1", "s_cmp_lt_u32 s101, 4", "s_cselect_b64 exec, -1, 0",
                       f"buffer_load_dwordx4 v[{WDR}:{WDR+3}], v{vL16}, s[60:63], s100 offen", "s_mov_b64 exec, -1")]
                ex += [(5, x) for x in ("s_add_u32 s98, s98, s99", "s_sub_u32 s99, 128, s99", "s_add_u32 s100, s100, 1024")]
        phase(qk(SA, QA, NA, KF[nb]) + pv(OA, PA, LA, VF[cb]), expv(SB, PB), ex)
    k("s_add_u32 s44, s44, 1")
    k("s_cmp_lt_u32 s44, 8")
    k(f"s_cbranch_scc1 {lloop}")
    for l in pv(OB, PB, LB, VF[1]): k(l)
    k.stamp("p2_loop")
    if WOPF == 2: wo_ring()
    k("s_nop 7"); k("s_nop 3")
    lns = k.lab("nosw")
    k("s_cmp_eq_u32 s24, 0")
    k(f"s_cbranch_scc1 {lns}")
    for r in range(16): k(f"v_swap_b32 v{OA+r}, v{OB+r}")
    k(f"v_swap_b32 v{LA}, v{LB}")
    k(f"{lns}:")
    k("s_barrier")
    k("s_mul_i32 s25, s20, 5120")
    k(f"v_add_u32 v{T0}, s25, v{vL16}")
    k(f"v_lshlrev_b32 v{T0+1}, 2, v1"); k(f"v_add_u32 v{T0+1}, s25, v{T0+1}")
    for i in range(4): k(f"ds_write_b128 v{T0}, v[{OB+4*i}:{OB+4*i+3}] offset:{1024*i}")
    k(f"ds_write_b32 v{T0+1}, v{LB} offset:4096")
    k("s_xor_b32 s26, s20, 4"); k("s_mul_i32 s25, s26, 5120")
    k(f"v_add_u32 v{T0}, s25, v{vL16}")
    k(f"v_lshlrev_b32 v{T0+1}, 2, v1"); k(f"v_add_u32 v{T0+1}, s25, v{T0+1}")
    k("s_waitcnt lgkmcnt(0)")
    k("s_barrier")
    for i in range(4): k(f"ds_read_b128 v[{OB+4*i}:{OB+4*i+3}], v{T0} offset:{1024*i}")
    k(f"ds_read_b32 v{LB}, v{T0+1} offset:4096")
    k("s_waitcnt lgkmcnt(0)")
    k(f"v_add_f32 v{LA}, v{LA}, v{LB}")
    for r in range(16): k(f"v_add_f32 v{OA+r}, v{OA+r}, v{OB+r}")
    k("s_cmp_lg_u32 s46, 0")
    k(f"s_cbranch_scc1 {lfin}")
    k(f"v_mov_b32 v{T0+2}, v{LA}")
    for r in range(16): k(f"v_fma_f32 v{T0+2}, v{OA+r}, 0, v{T0+2}")
    k(f"v_mov_b32 v{T0+3}, 0x71800000")
    k(f"v_cmp_le_f32 vcc, 1.0, v{T0+2}")
    k(f"v_cmp_le_f32 s[48:49], v{T0+2}, v{T0+3}")
    k("s_and_b64 vcc, vcc, s[48:49]")
    k("s_cmp_eq_u64 vcc, -1")
    k("s_cselect_b32 s47, 0, 1")
    k(f"v_mov_b32 v{T0+2}, s47")
    k(f"s_lshl_b32 s25, s20, 2"); k(f"v_mov_b32 v{T0+3}, s25")
    k(f"ds_write_b32 v{T0+3}, v{T0+2} offset:45056")
    k("s_waitcnt lgkmcnt(0)")
    k("s_barrier")
    k(f"v_mov_b32 v{T0+3}, 0")
    k(f"ds_read_b128 v[{T0+4}:{T0+7}], v{T0+3} offset:45056")
    k(f"ds_read_b128 v[{T0+8}:{T0+11}], v{T0+3} offset:45072")
    k("s_waitcnt lgkmcnt(0)")
    k(f"v_or3_b32 v{T0+4}, v{T0+4}, v{T0+5}, v{T0+6}")
    k(f"v_or3_b32 v{T0+8}, v{T0+8}, v{T0+9}, v{T0+10}")
    k(f"v_or3_b32 v{T0+4}, v{T0+4}, v{T0+7}, v{T0+11}")
    k(f"v_or_b32 v{T0+4}, v{T0+4}, v{T0+8}")
    k(f"v_readfirstlane_b32 s47, v{T0+4}")
    k("s_cmp_lg_u32 s47, 0")
    k(f"s_cbranch_scc1 {lfb}")
    k(f"{lfin}:")
    k(f"v_rcp_f32 v{LA}, v{LA}")
    for g in range(4):
        for r in range(4): k(f"v_mul_f32 v{OA+4*g+r}, v{OA+4*g+r}, v{LA}")
        k(f"v_cvt_pk_bf16_f32 v{SA+2*g}, v{OA+4*g}, v{OA+4*g+1}")
        k(f"v_cvt_pk_bf16_f32 v{SA+2*g+1}, v{OA+4*g+2}, v{OA+4*g+3}")
    k("s_lshl_b32 s25, s24, 16"); k("s_add_u32 s45, s45, s25")
    for p in range(2):
        k(f"v_permlane32_swap_b32 v{SA+4*p}, v{SA+4*p+2}")
        k(f"v_permlane32_swap_b32 v{SA+4*p+1}, v{SA+4*p+3}")
        k(f"buffer_store_dwordx4 v[{SA+4*p}:{SA+4*p+3}], v{vL16}, s[12:15], s45 offen offset:{1024*p}{SC}")
    k(f"s_branch {lend}")
    k(f"{lfb}:")
    k("s_mov_b32 s46, 1")
    if WDT: k("s_mov_b32 s101, 99")
    k("s_barrier")
    MA, MB = T0 + 2, T0 + 3
    k(f"v_mov_b32 v{MA}, 0xff800000"); k(f"v_mov_b32 v{MB}, 0xff800000")
    k("s_lshl_b32 s40, s24, 21"); k("s_lshl_b32 s25, s21, 11"); k("s_add_u32 s40, s40, s25"); k(f"s_add_u32 s40, s40, {WS_K}")
    k("s_mov_b32 s44, 0")
    lfl = k.lab("p2fbl")
    k(f"{lfl}:")
    for kk in range(2):
        k(f"buffer_load_dwordx4 v[{KF[0]+4*kk}:{KF[0]+4*kk+3}], v{vL16}, s[12:15], s40 offen offset:{1024*kk}{SC}")
    k("s_waitcnt vmcnt(0)")
    for (Sx, Qx) in ((SA, QA), (SB, QB)):
        k(f"v_mfma_f32_32x32x16_bf16 v[{Sx}:{Sx+15}], v[{KF[0]}:{KF[0]+3}], v[{Qx}:{Qx+3}], 0")
        k(f"v_mfma_f32_32x32x16_bf16 v[{Sx}:{Sx+15}], v[{KF[0]+4}:{KF[0]+7}], v[{Qx+4}:{Qx+7}], v[{Sx}:{Sx+15}]")
    for (Sx, Mx) in ((SA, MA), (SB, MB)):
        for r in range(0, 16, 2): k(f"v_max3_f32 v{Mx}, v{Mx}, v{Sx+r}, v{Sx+r+1}")
    k("s_add_u32 s40, s40, 65536")
    k("s_add_u32 s44, s44, 1")
    k("s_cmp_lt_u32 s44, 32")
    k(f"s_cbranch_scc1 {lfl}")
    for Mx in (MA, MB):
        k(f"v_mov_b32 v{T0+4}, v{Mx}")
        k(f"v_permlane32_swap_b32 v{Mx}, v{T0+4}")
        k(f"v_max_f32 v{Mx}, v{Mx}, v{T0+4}")
    k("s_lshl_b32 s25, s20, 9")
    k(f"v_lshlrev_b32 v{T0+4}, 3, v1"); k(f"v_add_u32 v{T0+5}, s25, v{T0+4}")
    k(f"ds_write_b64 v{T0+5}, v[{MA}:{MB}]")
    k("s_xor_b32 s26, s20, 4"); k("s_lshl_b32 s25, s26, 9")
    k(f"v_add_u32 v{T0+5}, s25, v{T0+4}")
    k("s_waitcnt lgkmcnt(0)")
    k("s_barrier")
    k(f"ds_read_b64 v[{T0+6}:{T0+7}], v{T0+5}")
    k("s_waitcnt lgkmcnt(0)")
    k(f"v_max_f32 v{MA}, v{MA}, v{T0+6}")
    k(f"v_max_f32 v{MB}, v{MB}, v{T0+7}")
    for r in range(16):
        k(f"v_sub_f32 v{NA+r}, 0, v{MA}")
        k(f"v_sub_f32 v{NB+r}, 0, v{MB}")
    k("s_barrier")
    k(f"s_branch {lmain}")
    k(f"{lend}:")
    k.stamp("p2_epi")
    k("s_lshl_b32 s27, s22, 7"); k(f"s_add_u32 s27, s27, {WS_CNT + C3*128}")
    signal(k, 27, vt=(T0, T0 + 1))
    k.stamp("p2_sig")

SLOT4 = 30720; UOFF = 7168; BOFF4 = 14336
RMOFF = 75776; XMOFF = 83968; HKOFF = 147456
vPW = 202
vW5 = [240, 241]
NPF5 = int(os.environ.get("NPF5", "3"))
NS5 = int(os.environ.get("NS5", "5")); R3 = int(os.environ.get("R3", "4")); R5 = int(os.environ.get("R5", "6"))
def w4_piece_lane(k, vdst, vidx, t):
    k(f"v_mul_u32_u24 v{t}, 4682, v{vidx}"); k(f"v_lshrrev_b32 v{t}, 16, v{t}")
    k(f"v_mul_u32_u24 v{t+1}, 14, v{t}"); k(f"v_sub_u32 v{t+1}, v{vidx}, v{t+1}")
    k(f"v_and_b32 v{t+2}, 0x33, v{t}")
    k(f"v_bfe_u32 v{vidx}, v{t}, 2, 1"); k(f"v_lshl_add_u32 v{t+2}, v{vidx}, 3, v{t+2}")
    k(f"v_bfe_u32 v{vidx}, v{t}, 3, 1"); k(f"v_lshl_add_u32 v{t+2}, v{vidx}, 2, v{t+2}")
    k(f"v_mul_u32_u24 v{t+2}, 7168, v{t+2}")
    k(f"v_lshl_add_u32 v{vdst}, v{t+1}, 4, v{t+2}")
def coords4(k, stb, scb, st):
    k("s_and_b32 s21, s2, 7"); k("s_lshr_b32 s22, s2, 3")
    k(f"s_and_b32 s{stb}, s21, 1"); k(f"s_lshl_b32 s{stb}, s{stb}, 2"); k(f"s_and_b32 s{st}, s22, 3"); k(f"s_add_u32 s{stb}, s{stb}, s{st}")
    k(f"s_lshr_b32 s{scb}, s21, 1"); k(f"s_lshl_b32 s{scb}, s{scb}, 3"); k(f"s_lshr_b32 s{st}, s22, 2"); k(f"s_add_u32 s{scb}, s{scb}, s{st}")
def pf4_setup(k, t):
    coords4(k, 27, 29, 28)
    k("s_mul_i32 s40, s29, 224")
    k("s_min_u32 s27, s20, 6"); k("s_lshl_b32 s42, s27, 10"); k("s_lshl_b32 s27, s27, 6")
    k(f"v_add_u32 v{t+3}, s27, v1")
    w4_piece_lane(k, vPW, t + 3, t)
    srd(k, 52, pWG, D * DF * 2); srd(k, 56, pWU, D * DF * 2)
def pf4(tile):
    o = []
    for m in range(2):
        g = []
        if m == 0: g.append(f"s_add_u32 s41, s40, {tile*32*7168}")
        g += [f"s_add_u32 m0, s42, {tile*SLOT4 + m*UOFF}", f"buffer_load_dwordx4 v{vPW}, s[{52+4*m}:{55+4*m}], s41 offen lds"]
        o.append(g)
    return o

def phase35(k, kind):
    wo = kind == "wo"
    KD = D if wo else DF
    NT = KD // 128
    NS = 4 if wo else NS5
    R = R3 if wo else R5
    WSB = WS_O if wo else WS_HM
    T32B = KD * 64
    base = W3BASE if wo else 0
    vW = vW3 if wo else vW5
    WADV = W3ADV if wo else W5ADV
    SW = 8 if wo else SW5
    vA = [2, 3, 4, 5]; vBj = [6, 7]; vR = 10; vO = 11; vT = 12; vRM = 8; vHK = 9
    RES = 16; A = [24, 40]; ACC = 56; ACM = 88; RMF = [96, 100]; BR = 104
    MX = 15
    acc = lambda i, j: ACC + (j * 4 + i) * 4
    pre = "p3" if wo else "p5"
    coords35(k, 23, 24, 25)
    k("s_and_b32 s25, s20, 3")
    k("s_lshr_b32 s26, s20, 2")
    k("s_lshl_b32 s31, s23, 2"); k("s_add_u32 s31, s31, s25"); k(f"s_mul_i32 s31, s31, {T32B}")
    k("s_lshl_b32 s28, s26, 12"); k("s_add_u32 s31, s31, s28"); k(f"s_add_u32 s31, s31, {WSB}")
    k(f"v_lshrrev_b32 v{vT}, 4, v1"); k(f"v_and_b32 v{vT+1}, 15, v1")
    k(f"v_lshlrev_b32 v{vT+2}, 4, v{vT+1}"); k(f"v_lshl_add_u32 v{vT+2}, v{vT}, 9, v{vT+2}")
    k("s_lshl_b32 s28, s26, 8")
    k(f"v_add_u32 v{vBj[0]}, s28, v{vT+2}")
    k(f"v_xor_b32 v{vBj[1]}, 256, v{vBj[0]}")
    k(f"v_and_b32 v{vT+2}, 1, v{vT}"); k(f"v_lshlrev_b32 v{vT+2}, 1, v{vT+2}"); k(f"v_lshrrev_b32 v{vT+3}, 1, v{vT}")
    k(f"v_add_u32 v{vT+2}, v{vT+2}, v{vT+3}")
    rm = vR if wo else vO
    k(f"v_lshlrev_b32 v{rm}, 11, v{vT+1}"); k(f"v_lshl_add_u32 v{rm}, v{vT+2}, 4, v{rm}")
    k("s_lshl_b32 s33, s23, 2"); k("s_add_u32 s33, s33, s25"); k("s_lshl_b32 s33, s33, 1"); k("s_add_u32 s33, s33, s26")
    k("s_lshl_b32 s35, s33, 4")
    k("s_lshl_b32 s33, s33, 15"); k("s_lshl_b32 s28, s24, 7"); k("s_add_u32 s33, s33, s28")
    if wo:
        k(f"v_lshlrev_b32 v{vO}, 9, v{vT+2}"); k(f"v_lshl_add_u32 v{vO}, v{vT+1}, 4, v{vO}")
        k("s_lshl_b32 s34, s23, 2"); k("s_add_u32 s34, s34, s25"); k("s_lshl_b32 s34, s34, 16")
        k("s_lshl_b32 s28, s24, 12"); k("s_add_u32 s34, s34, s28"); k("s_lshl_b32 s28, s26, 8"); k("s_add_u32 s34, s34, s28")
        k(f"s_add_u32 s34, s34, {WS_H}")
        k("s_lshl_b32 s28, s20, 10"); k(f"s_add_u32 s28, s28, {RMOFF}")
        k(f"v_lshl_add_u32 v{vRM}, v{vT}, 4, s28")
    k("s_lshl_b32 s28, s20, 11"); k(f"s_add_u32 s28, s28, {HKOFF}")
    k(f"v_lshl_add_u32 v{vHK}, v1, 4, s28")
    k(f"v_bfe_u32 v{vT+1}, v1, 2, 2")
    k(f"v_lshrrev_b32 v{vT+2}, 1, v{vT}"); k(f"v_and_b32 v{vT+3}, 1, v{vT}")
    k(f"v_lshlrev_b32 v{vT+2}, 4, v{vT+2}"); k(f"v_lshl_add_u32 v{vT+2}, v{vT+3}, 2, v{vT+2}")
    k(f"v_add_u32 v{vT+2}, v{vT+2}, v{vT+1}"); k(f"v_lshlrev_b32 v{vT+2}, 7, v{vT+2}")
    k(f"v_lshrrev_b32 v{vT+1}, 1, v{vT+1}"); k(f"v_lshl_add_u32 v{vT+1}, v{vT+3}, 1, v{vT+1}")
    k(f"v_and_b32 v{vT+3}, 3, v1"); k(f"v_lshl_add_u32 v{vT+2}, v{vT+3}, 3, v{vT+2}")
    k("s_lshl_b32 s28, s26, 13")
    if base: k(f"s_add_u32 s28, s28, {base}")
    k(f"v_add_u32 v{vT+2}, s28, v{vT+2}")
    for i in range(4):
        k(f"v_xor_b32 v{vT+3}, {i}, v{vT+1}")
        k(f"v_lshl_add_u32 v{vA[i]}, v{vT+3}, 5, v{vT+2}")
    hiA = NS * 16384 > 65536
    vA2 = [204, 205, 206, 207]
    if hiA:
        for i in range(4): k(f"v_add_u32 v{vA2[i]}, 65536, v{vA[i]}")
    srd(k, 16, pX if wo else pOUT, MB4)
    if not wo and OT == 1:
        k(f"buffer_load_dword v{RES}, v{vO}, s[16:19], s33 offen")
    for r in range(ACC, ACC + (40 if wo else 32)): k(f"v_mov_b32 v{r}, 0")
    if wo:
        pf4_setup(k, vT)
        k(f"v_lshrrev_b32 v{vT}, 3, v1"); k(f"v_and_b32 v{vT+1}, 7, v1"); k(f"v_lshlrev_b32 v{vT+1}, 4, v{vT+1}")
        k(f"v_lshl_add_u32 v{vT+1}, v{vT}, 8, v{vT+1}"); k("s_lshl_b32 s28, s26, 7"); k(f"v_add_u32 v{vT+1}, s28, v{vT+1}")
        k(f"v_and_b32 v{vT+2}, 15, v1"); k(f"v_lshlrev_b32 v{vT+2}, 2, v{vT+2}")
    vm = VM()
    if not wo:
        for t in range(NPF5, NS):
            for d in w35_dma(vW, SW, t):
                for l in d: k(l)
            k(WADV); vm.issue(("W", t), 2)
    k("s_lshr_b32 s27, s23, 1"); k("s_lshl_b32 s27, s27, 7"); k(f"s_add_u32 s27, s27, {WS_CNT + (C3 if wo else C5)*128}")
    wait(k, 27, 32, vt=(RES, RES + 1), pr=A[1])
    k.stamp(pre + "_wait")
    NSTEP = 2 * NT
    def bld(s):
        b = BR + (s % R) * 8
        return [f"buffer_load_dwordx4 v[{b+4*j}:{b+4*j+3}], v{vBj[j]}, s[12:15], s31 offen{SC}" for j in range(2)]
    def badv(s): return f"s_add_u32 s31, s31, {2048 if s % 2 == 0 else 6144}"
    if wo:
        k("s_lshl_b32 s28, s20, 10"); k(f"s_add_u32 m0, s28, {RMOFF}")
        k(f"s_mov_b32 s28, {WS_RM}")
        k(f"buffer_load_dwordx4 v{vT+1}, s[12:15], s28 offen{SC} lds"); vm.issue("RM")
    for s in range(R):
        for l in bld(s): k(l); vm.issue(("B", s))
        k(badv(s))
    if wo:
        for p in range(2):
            k(f"buffer_load_dwordx4 v[{RES+4*p}:{RES+4*p+3}], v{vR}, s[16:19], s33 offen offset:{64*p}"); vm.issue("res")
        k("s_lshl_b32 s28, s35, 2"); k(f"s_add_u32 s28, s28, {WS_MX}")
        k(f"buffer_load_dword v{MX}, v{vT+2}, s[12:15], s28 offen{SC}"); vm.issue("res")
    def areads(s, buf):
        t = s // 2; sl = t % NS
        va = vA if sl < 4 else vA2
        o = [f"ds_read_b64_tr_b16 v[{A[buf]+4*i+2*tt}:{A[buf]+4*i+2*tt+1}], v{va[i]} offset:{(sl & 3)*16384 + (s&1)*4096 + tt*1024}"
             for i in range(4) for tt in range(2)]
        return o
    def rmread(s, buf): return f"ds_read_b128 v[{RMF[buf]}:{RMF[buf]+3}], v{vRM} offset:{(s >> 1)*128 + (s & 1)*64}"
    for l in areads(0, 0): k(l)
    if wo:
        k(f"s_waitcnt vmcnt({vm.cnt({'RM'})})")
        k(rmread(0, 0))
    k.stamp(pre + "_go")
    texts = []
    for per in range((NT + NS - 1) // NS):
        o = []
        for s in range(per * 2 * NS, min((per + 1) * 2 * NS, NSTEP)):
            t = s // 2; cur = s & 1; nxt = cur ^ 1
            need = {("B", s)}
            if s & 1 and t + 1 < NT: need.add(("W", t + 1))
            n = vm.cnt(need)
            o.append(f"s_waitcnt vmcnt({min(n, 63)}) lgkmcnt(0)")
            rd = []; dm = []
            if s & 1:
                if t + 1 < NT:
                    o.append("s_barrier"); rd = areads(s + 1, nxt)
                if t + NS < NT: dm = w35_dma(vW, SW, t % NS)
            else:
                rd = areads(s + 1, nxt)
            if wo and s + 1 < NSTEP: rd = rd + [rmread(s + 1, nxt)]
            mf = []
            b = BR + (s % R) * 8
            for i in range(4):
                for j in range(2):
                    a = acc(i, j)
                    mf.append(f"v_mfma_f32_16x16x32_bf16 v[{a}:{a+3}], v[{A[cur]+4*i}:{A[cur]+4*i+3}], v[{b+4*j}:{b+4*j+3}], v[{a}:{a+3}]")
            if wo:
                for j in range(2):
                    a = ACM + 4 * j
                    mf.append(f"v_mfma_f32_16x16x32_bf16 v[{a}:{a+3}], v[{RMF[cur]}:{RMF[cur]+3}], v[{b+4*j}:{b+4*j+3}], v[{a}:{a+3}]")
            gaps = [[] for _ in mf]
            for q, r in enumerate(rd): gaps[min(q, len(mf) - 1)].append(r)
            if dm:
                gaps[0].append(dm[0][0]); gaps[1].append(dm[0][1]); gaps[2].append(dm[1][0]); gaps[3].append(dm[1][1]); gaps[4].append(WADV)
                vm.issue(("W", t + NS), 2)
            if s + R < NSTEP:
                gaps[len(mf) - 1] += bld(s + R) + [badv(s + R)]
                vm.issue(("B", s + R), 2)
            if wo and s == NSTEP - R:
                q = 0
                for tl in range(3):
                    for g in pf4(tl):
                        gaps[min(q, len(mf) - 1)] += g; q += 1
                        vm.issue("PF")
            for g, mm in enumerate(mf):
                o.append(mm); o += gaps[g]
        texts.append(o)
    periods(k, pre + "loop", texts, 36)
    k.stamp(pre + "_loop")
    if wo:
        k("s_and_b32 s27, s20, 3"); k("s_lshl_b32 s27, s27, 12"); k(f"s_mul_i32 s28, s26, {SLOT4}"); k("s_add_u32 s27, s27, s28"); k(f"s_add_u32 s27, s27, {BOFF4}")
        k(f"v_lshlrev_b32 v{vT}, 4, v1"); k(f"v_add_u32 v{vT+1}, s27, v{vT}")
        k("s_and_b32 s27, s20, 3"); k("s_lshl_b32 s27, s27, 12"); k("s_xor_b32 s28, s26, 1"); k(f"s_mul_i32 s28, s28, {SLOT4}"); k("s_add_u32 s27, s27, s28"); k(f"s_add_u32 s27, s27, {BOFF4}")
        k(f"v_add_u32 v{vT+2}, s27, v{vT}")
        k("s_lshl_b32 s27, s20, 8"); k(f"s_add_u32 s27, s27, {XMOFF}")
        k(f"v_lshl_add_u32 v{vRM}, v1, 2, s27")
        k(f"ds_write_b32 v{vRM}, v{ACM+4}")
        k(f"v_xor_b32 v{vRM}, 1024, v{vRM}")
    else:
        XCH = 98304
        k("s_lshl_b32 s27, s20, 12"); k(f"s_add_u32 s27, s27, {XCH}")
        k(f"v_lshlrev_b32 v{vT}, 4, v1"); k(f"v_add_u32 v{vT+1}, s27, v{vT}")
        k("s_lshl_b32 s27, s20, 12"); k("s_xor_b32 s27, s27, 16384"); k(f"s_add_u32 s27, s27, {XCH}"); k(f"v_add_u32 v{vT+2}, s27, v{vT}")
    for i in range(4): k(f"ds_write_b128 v{vT+1}, v[{acc(i,1)}:{acc(i,1)+3}] offset:{1024*i}")
    k("s_waitcnt lgkmcnt(0)")
    k("s_barrier")
    for i in range(4): k(f"ds_read_b128 v[{acc(i,1)}:{acc(i,1)+3}], v{vT+2} offset:{1024*i}")
    if wo:
        k(f"ds_read_b32 v{ACM+4}, v{vRM}")
        for g in pf4(3):
            for l in g: k(l)
    else:
        for p in range(2): k(f"ds_read_b128 v[{RES+4*p}:{RES+4*p+3}], v{vHK} offset:{1024*p}")
    k("s_waitcnt lgkmcnt(0)")
    def padd(d, a, b, bc=False):
        if wo:
            k(f"v_add_f32 v{d}, v{a}, v{b}"); k(f"v_add_f32 v{d+1}, v{a+1}, v{b if bc else b+1}")
        else: k(f"v_pk_add_f32 v[{d}:{d+1}], v[{a}:{a+1}], v[{b}:{b+1}]")
    for i in range(4):
        for r in range(0, 4, 2): padd(acc(i,0)+r, acc(i,0)+r, acc(i,1)+r)
    for p in range(2):
        for r in range(4): k(f"v_permlane16_swap_b32 v{acc(2*p,0)+r}, v{acc(2*p+1,0)+r}")
    U = A[0]
    k(f"v_mov_b32 v{vT+3 if not wo else vT}, 0xffff0000")
    vMask = vT + 3 if not wo else vT
    if wo:
        k("s_waitcnt vmcnt(8)")
        k(f"v_add_f32 v{ACM}, v{ACM}, v{ACM+4}")
        k(f"v_add_f32 v{ACM}, v{ACM}, v{MX}")
        k(f"v_sub_f32 v{ACM}, 0, v{ACM}")
    for p in range(2):
        for q in range(4):
            a = acc(2 * p, 0) + 2 * q
            k(f"v_lshlrev_b32 v{U+2*q}, 16, v{RES+4*p+q}")
            k(f"v_and_b32 v{U+2*q+1}, v{vMask}, v{RES+4*p+q}")
        for q in range(4):
            a = acc(2 * p, 0) + 2 * q
            padd(a, a, U+2*q)
        for q in range(4):
            a = acc(2 * p, 0) + 2 * q
            k(f"v_cvt_pk_bf16_f32 v{RES+4*p+q}, v{a}, v{a+1}")
        if wo:
            k(f"ds_write_b128 v{vHK}, v[{RES+4*p}:{RES+4*p+3}] offset:{1024*p}")
            HC = U + 8 + 4 * p
            for q in range(4):
                a = acc(2 * p, 0) + 2 * q
                padd(a, a, ACM, True)
            for q in range(4):
                a = acc(2 * p, 0) + 2 * q
                k(f"v_cvt_pk_bf16_f32 v{HC+q}, v{a}, v{a+1}")
            k(f"buffer_store_dwordx4 v[{HC}:{HC+3}], v{vO}, s[12:15], s34 offen offset:{2048*p}{SC}")
        else:
            k(f"buffer_store_dwordx4 v[{RES+4*p}:{RES+4*p+3}], v{vO}, s[16:19], s33 offen offset:{64*p}{OUTSC}")
    if wo:
        s1 = U
        a0 = acc(0, 0)
        for r in range(4): k(f"v_mul_f32 v{s1+r}, v{a0+r}, v{a0+r}")
        for r in range(4, 16): k(f"v_fma_f32 v{s1+(r&3)}, v{a0+r}, v{a0+r}, v{s1+(r&3)}")
        k(f"v_add_f32 v{s1}, v{s1}, v{s1+1}"); k(f"v_add_f32 v{s1+2}, v{s1+2}, v{s1+3}"); k(f"v_add_f32 v{s1}, v{s1}, v{s1+2}")
        for sw in ("v_permlane16_swap_b32", "v_permlane32_swap_b32"):
            k(f"v_mov_b32 v{s1+2}, v{s1}"); k(f"{sw} v{s1}, v{s1+2}"); k(f"v_add_f32 v{s1}, v{s1}, v{s1+2}")
        k(f"v_and_b32 v{vT}, 15, v1"); k(f"v_lshlrev_b32 v{vT}, 2, v{vT}")
        k("s_lshl_b32 s27, s35, 2"); k("s_lshl_b32 s28, s24, 13"); k("s_add_u32 s27, s27, s28"); k(f"s_add_u32 s27, s27, {WS_ST}")
        k("s_mov_b64 exec, 0xffff")
        k(f"buffer_store_dword v{s1}, v{vT}, s[12:15], s27 offen{SC}")
        k("s_mov_b64 exec, -1")
        k.stamp(pre + "_epi")
        k("s_lshr_b32 s27, s23, 1"); k("s_lshl_b32 s27, s27, 7"); k(f"s_add_u32 s27, s27, {WS_CNT + C4*128}")
        k("s_waitcnt lgkmcnt(0)")
        signal(k, 27, vt=(RES, RES + 1))
        k.stamp(pre + "_sig")
    else:
        k.stamp(pre + "_epi")
OUTSC = os.environ.get("OUTSC", "")

KC = 2 * math.sqrt(2 / math.pi) * math.log2(math.e)
X4 = os.environ.get("X4", "").split(",")
T4 = int(os.environ.get("T4", "0")); T4S = int(os.environ.get("T4S", "29")); T4P = int(os.environ.get("T4P", "2"))
def phase4(k):
    NS = 4; SLOT = SLOT4; UOFF = 7168; BOFF = BOFF4; STATS = NS * SLOT
    vA = [2, 3]; vB = [4, 5]; vD = [6, 7, 8, 9, 10]; vL16 = 11; vT = 12
    A = [16, 48]; B = [80, 96]; ACC = 112; SV = 242
    acc = lambda fi, m, j: ACC + ((fi * 2 + m) * 4 + j) * 4
    w35_setup(k, vW5, 0, vT, DF if WT5 or WDT else 0)
    if not WDT: srd(k, 60, pWD, DF * D * 2)
    coords4(k, 23, 24, 25)
    k("s_and_b32 s25, s20, 3")
    k("s_lshr_b32 s26, s20, 2")
    k(f"v_lshlrev_b32 v{vL16}, 4, v1")
    k(f"v_lshrrev_b32 v{vT}, 4, v1")
    k(f"v_bfe_u32 v{vT+1}, v1, 2, 2")
    k(f"v_lshrrev_b32 v{vT+2}, 1, v{vT}"); k(f"v_and_b32 v{vT+3}, 1, v{vT}")
    k(f"v_lshlrev_b32 v{vT+2}, 4, v{vT+2}"); k(f"v_lshl_add_u32 v{vT+2}, v{vT+3}, 2, v{vT+2}"); k(f"v_add_u32 v{vT+2}, v{vT+2}, v{vT+1}")
    k(f"v_mul_u32_u24 v{vT+2}, 224, v{vT+2}")
    k(f"v_and_b32 v{vT+3}, 3, v1"); k(f"v_lshl_add_u32 v{vT+2}, v{vT+3}, 3, v{vT+2}")
    k("s_lshl_b32 s27, s26, 7")
    k(f"v_add_u32 v{vA[0]}, s27, v{vT+2}"); k(f"v_add_u32 v{vA[1]}, {2*SLOT}, v{vA[0]}")
    k(f"v_and_b32 v{vT+1}, 15, v1"); k(f"v_lshlrev_b32 v{vT+1}, 4, v{vT+1}"); k(f"v_lshl_add_u32 v{vT+1}, v{vT}, 9, v{vT+1}")
    k("s_lshl_b32 s27, s25, 12"); k(f"s_add_u32 s27, s27, {BOFF}")
    k(f"v_add_u32 v{vB[0]}, s27, v{vT+1}"); k(f"v_add_u32 v{vB[1]}, {2*SLOT}, v{vB[0]}")
    k("s_lshl_b32 s31, s23, 19"); k(f"s_add_u32 s31, s31, {WS_H}")
    k("s_mul_i32 s30, s24, 224"); k(f"s_add_u32 s30, s30, {NS*32*7168}")
    for r in range(ACC, ACC + 128): k(f"v_mov_b32 v{r}, 0")
    k(f"v_and_b32 v{vT}, 1, v0"); k(f"v_lshlrev_b32 v{vT}, 16, v{vT}")
    k(f"v_lshrrev_b32 v{vT+1}, 1, v0"); k(f"v_lshl_add_u32 v{SV+8}, v{vT+1}, 2, v{vT}")
    k(f"v_lshlrev_b32 v{SV+9}, 4, v{vT+1}"); k(f"v_add_u32 v{SV+9}, {STATS}, v{SV+9}")
    k("s_lshl_b32 s37, s23, 10"); k(f"s_add_u32 s37, s37, {WS_ST}")
    k("s_bitcmp1_b32 s25, 1")
    k(f"s_cselect_b32 s4, s{pWU}, s{pWG}"); k(f"s_cselect_b32 s5, s{pWU+1}, s{pWG+1}")
    srd(k, 8, 4, D * DF * 2)
    lsb = k.lab("p4setB"); lsd = k.lab("p4setD")
    k("s_cmp_eq_u32 s26, 0")
    k(f"s_cbranch_scc0 {lsb}")
    for n in range(3):
        k("s_mul_i32 s27, s20, 3"); k(f"s_add_u32 s27, s27, {n}")
        k("s_lshr_b32 s28, s27, 1"); k("s_lshl_b32 s28, s28, 16"); k("s_and_b32 s29, s27, 1"); k("s_lshl_b32 s29, s29, 10"); k("s_add_u32 s28, s28, s29")
        k(f"v_add_u32 v{vD[n]}, s28, v{vL16}")
    k(f"s_mul_i32 s32, s20, 3072"); k(f"s_add_u32 s32, s32, {BOFF}")
    k(f"s_branch {lsd}")
    k(f"{lsb}:")
    k("s_and_b32 s27, s25, 1"); k("s_lshl_b32 s27, s27, 8")
    for q in range(4):
        k(f"v_add_u32 v{vT+3}, {64*q}, v1"); k(f"v_add_u32 v{vT+3}, s27, v{vT+3}")
        w4_piece_lane(k, vD[q], vT + 3, vT)
    k("s_add_u32 s27, s25, 12")
    k("s_lshr_b32 s28, s27, 1"); k("s_lshl_b32 s28, s28, 16"); k("s_and_b32 s29, s27, 1"); k("s_lshl_b32 s29, s29, 10"); k("s_add_u32 s28, s28, s29")
    k(f"v_add_u32 v{vD[4]}, s28, v{vL16}")
    k("s_lshl_b32 s33, s27, 10"); k(f"s_add_u32 s33, s33, {BOFF}")
    k("s_lshr_b32 s32, s25, 1"); k(f"s_mul_i32 s32, s32, {UOFF}"); k("s_and_b32 s27, s25, 1"); k("s_lshl_b32 s27, s27, 12"); k("s_add_u32 s32, s32, s27")
    k(f"{lsd}:")
    k("s_lshl_b32 s27, s23, 3"); k("s_lshl_b32 s28, s25, 1"); k("s_add_u32 s27, s27, s28"); k("s_mul_i32 s27, s27, 448")
    k("s_mul_i32 s28, s24, 14"); k("s_add_u32 s27, s27, s28"); k("s_lshl_b32 s28, s26, 3"); k("s_add_u32 s27, s27, s28")
    k("s_lshl_b32 s27, s27, 9"); k(f"s_add_u32 s34, s27, {WS_HM}"); k(f"s_add_u32 s35, s34, {448*512}")
    if WDT:
        k(f"v_add_u32 v{vT+1}, {C3 - 1}, v1"); k(f"v_lshlrev_b32 v{vT+1}, 7, v{vT+1}")
        k("s_lshl_b32 s27, s23, 7"); k(f"s_add_u32 s27, s27, {C4*128}")
        k("s_nop 0")
        k(f"v_writelane_b32 v{vT+1}, s27, 0")
        k(f"s_mov_b32 s27, {WS_CNT}")
        wait_multi(k, 27, 32, 9, vt=(vT, vT + 1))
    else:
        k("s_lshl_b32 s27, s23, 7"); k(f"s_add_u32 s27, s27, {WS_CNT + C4*128}")
        wait(k, 27, 32, vt=(vT, vT + 1), pr=A[1])
    k.stamp("p4_wait")
    def dma_act(var, slot):
        if var == "A":
            return [[f"s_add_u32 m0, s32, {slot*SLOT + n*1024}", f"buffer_load_dwordx4 v{vD[n]}, s[12:15], s31 offen{SC} lds"] for n in range(3)]
        return [[f"s_add_u32 m0, s33, {slot*SLOT}", f"buffer_load_dwordx4 v{vD[4]}, s[12:15], s31 offen{SC} lds"]]
    def dma_w(var, slot):
        if var == "A": return []
        return [[f"s_add_u32 m0, s32, {slot*SLOT + q*1024}", f"buffer_load_dwordx4 v{vD[q]}, s[8:11], s30 offen lds"] for q in range(4 if var == "B0" else 3)]
    advA = "s_add_u32 s31, s31, 2048"; advW = f"s_add_u32 s30, s30, {32*7168}"
    def stats_calc():
        o = []
        for i in (0, 2, 4, 6): o.append(f"v_add_f32 v{SV+i}, v{SV+i}, v{SV+i+1}")
        o += [f"v_add_f32 v{SV}, v{SV}, v{SV+2}", f"v_add_f32 v{SV+4}, v{SV+4}, v{SV+6}", f"v_add_f32 v{SV}, v{SV}, v{SV+4}",
              "s_nop 1",
              f"v_add_f32_dpp v{SV}, v{SV}, v{SV} quad_perm:[1,0,3,2] row_mask:0xf bank_mask:0xf",
              f"v_mov_b32 v{SV+3}, 0x3a800000", f"v_mov_b32 v{SV+5}, 0x3727c5ac",
              f"v_fma_f32 v{SV+2}, v{SV}, v{SV+3}, v{SV+5}",
              f"v_rsq_f32 v{SV+4}, v{SV+2}",
              f"v_mov_b32 v{SV+3}, 0",
              f"v_mul_f32 v{SV+1}, {f2h(-KC)}, v{SV+4}",
              f"v_mul_f32 v{SV+5}, v{SV+4}, v{SV+4}",
              f"v_mul_f32 v{SV}, {f2h(0.044715)}, v{SV+1}",
              f"v_mul_f32 v{SV}, v{SV}, v{SV+5}",
              f"ds_write_b128 v{SV+9}, v[{SV}:{SV+3}]"]
        return o
    st_idx = {}
    def vstamp(nm):
        if nm in st_idx: k.stamp_at(st_idx[nm])
        else:
            st_idx[nm] = k.nst; k.stamp(nm)
    ljoin = k.lab("p4join")
    def body(var):
        nf = 4 if var == "A" else 3
        first = (var != "A") if T4 == 1 else (var == "A")
        vm = VM()
        for s in range(NS):
            for d in dma_act(var, s):
                for l in d: k(l)
                vm.issue(("D", s))
            k(advA)
        k("s_mov_b32 s28, s37")
        for i in range(8):
            k(f"buffer_load_dword v{SV+i}, v{SV+8}, s[12:15], s28 offen{SC}"); vm.issue("ST")
            if i < 7: k("s_add_u32 s28, s28, 8192")
        def reads(buf, slot):
            base = slot >> 1; so = (slot & 1) * SLOT
            o = []
            def rA(fi, m):
                i = fi * 2 + m
                return [f"ds_read_b64_tr_b16 v[{A[buf]+4*i+2*t}:{A[buf]+4*i+2*t+1}], v{vA[base]} offset:{so + m*UOFF + t*8*224 + fi*32}" for t in range(2)]
            o += rA(0, 0)
            for j in range(4): o.append(f"ds_read_b128 v[{B[buf]+4*j}:{B[buf]+4*j+3}], v{vB[base]} offset:{so + (j>>1)*2048 + (j&1)*256}")
            for i in range(1, 2 * nf): o += rA(i >> 1, i & 1)
            return o
        k(f"s_waitcnt vmcnt({vm.cnt({('D', 0)})})")
        k("s_barrier")
        vstamp("p4_go")
        for l in reads(0, 0): k(l)
        NT = 32
        texts = []
        pf5 = {3: {28: [0], 29: [1, 2]}, 1: {28: [0]}, 0: {}}[NPF5]
        for per in range(NT // NS):
            o = []
            for t in range(per * NS, (per + 1) * NS):
                slot = t % NS; cur = t & 1; nxt = cur ^ 1
                rd = []; dm = []; ex = []
                if T4 and t > T4S and t + 1 < NT:
                    o.append("s_waitcnt lgkmcnt(0)")
                    rd = reads(nxt, (t + 1) % NS)
                elif t + 1 < NT:
                    need = {("D", t + 1)}
                    if T4 and t == T4S: need |= {("D", x) for x in range(t + 1, NT)}
                    if t == 3: need.add("ST")
                    o.append(f"s_waitcnt vmcnt({vm.cnt(need)}) lgkmcnt(0)")
                    o.append("s_barrier")
                    if T4 and t == T4S and first: o.append(f"s_setprio {T4P}")
                    rd = reads(nxt, (t + 1) % NS)
                else:
                    o.append("s_waitcnt lgkmcnt(0)")
                tail = []
                if t + NS < NT:
                    dm = dma_w(var, slot) + dma_act(var, slot)
                    vm.issue(("D", t + NS), len(dm))
                    tail = [advA, advW]
                for tl in pf5.get(t, []):
                    if tl < NS5 and not T4:
                        dm += [list(x) for x in w35_dma(vW5, SW5, tl)]
                        dm[-1].append(W5ADV)
                        vm.issue("PF5", 2)
                    elif tl < NS5 and first:
                        tail = tail + [W5ADV]
                    elif tl < NS5:
                        assert WDT or WT5
                        sg = "add" if var == "A" else "sub"
                        own = [list(x) for x in w35_dma(vW5, SW5, tl)]
                        oth = [[x[0].replace("s51", "s7"), x[1].replace("s50", "s6")] for x in w35_dma(vW5, SW5, tl)]
                        oth[0] = [f"s_{sg}_u32 s6, s50, 8192", f"s_{sg}_u32 s7, s51, 8192"] + oth[0]
                        oth[0] = [oth[0][:3], oth[0][3]]
                        oth[-1].append(W5ADV)
                        dm += own + oth
                        vm.issue("PF5", 4)
                if t == 3: ex = stats_calc()
                mf = []
                for i in range(2 * nf):
                    for j in range(4):
                        a = acc(i >> 1, i & 1, j)
                        mf.append(f"v_mfma_f32_16x16x32_bf16 v[{a}:{a+3}], v[{A[cur]+4*i}:{A[cur]+4*i+3}], v[{B[cur]+4*j}:{B[cur]+4*j+3}], v[{a}:{a+3}]")
                n = len(mf)
                gaps = [[] for _ in mf]
                for q, r in enumerate(rd): gaps[q].append(r)
                if dm:
                    stp = (n - 3) // len(dm)
                    for q, d in enumerate(dm):
                        g = 1 + stp * q
                        if isinstance(d[0], list): gaps[g] += d[0]
                        else: gaps[g].append(d[0])
                        gaps[g + 1] += d[1:]
                    gaps[n - 1] += tail
                elif tail: gaps[n - 1] += tail
                for q, l in enumerate(ex): gaps[min(4 + q, n - 1)].append(l)
                for g, mm in enumerate(mf):
                    o.append(mm); o += gaps[g]
            texts.append(o)
        periods(k, f"p4{var}", texts, 36)
        vstamp("p4_loop")
        ST = 16; TT = 32
        k(f"v_and_b32 v{vT}, 15, v1"); k(f"v_lshlrev_b32 v{vT}, 4, v{vT}")
        k("s_lshl_b32 s27, s25, 10"); k(f"s_add_u32 s27, s27, {STATS}"); k(f"v_add_u32 v{vT}, s27, v{vT}")
        for j in range(4): k(f"ds_read_b128 v[{ST+4*j}:{ST+4*j+3}], v{vT} offset:{256*j}")
        k("s_waitcnt vmcnt(0) lgkmcnt(0)")
        if "drain" in X4: k("s_waitcnt vmcnt(0)"); k("s_barrier")
        if "drain0" in X4: k("s_waitcnt vmcnt(0)")
        if "bar" in X4: k("s_barrier")
        if "adrain" in X4 and var == "A": k("s_waitcnt vmcnt(0)")
        if "bdrain" in X4 and var != "A": k("s_waitcnt vmcnt(0)")
        nopk = ("anopk" in X4 and var == "A") or ("bnopk" in X4 and var != "A")
        def pk(op, d, a, b, c=None, sel=None):
            if not nopk:
                x = f"v_pk_{op}_f32 v[{d}:{d+1}], v[{a}:{a+1}], v[{b}:{b+1}]"
                if c is not None: x += f", v[{c}:{c+1}] " + sel
                k(x); return
            for h in range(2):
                if c is None: k(f"v_mul_f32 v{d+h}, v{a+h}, v{b+h}")
                elif sel.startswith("op_sel:[0,0,1]"): k(f"v_fma_f32 v{d+h}, v{a+h}, v{b}, v{b+1}")
                else: k(f"v_fma_f32 v{d+h}, v{a+h}, v{b}, v{b}")
        for fi in range(nf):
            for p in range(2):
                gi = fi * 2 + p
                PK = TT + 16 + 4 * (gi & 3)
                T = TT + 8 * (gi & 1)
                prs = [(2 * p + jj, h) for jj in range(2) for h in range(2)]
                P = lambda r: f"v[{r}:{r+1}]"
                for q, (j, h) in enumerate(prs):
                    g = acc(fi, 0, j) + 2 * h
                    pk("mul", T+2*q, g, g)
                for q, (j, h) in enumerate(prs):
                    c = ST + 4 * j
                    pk("fma", T+2*q, T+2*q, c, c, "op_sel:[0,0,1] op_sel_hi:[1,0,1]")
                for q, (j, h) in enumerate(prs):
                    g = acc(fi, 0, j) + 2 * h
                    pk("mul", T+2*q, T+2*q, g)
                for q, (j, h) in enumerate(prs):
                    g = acc(fi, 0, j) + 2 * h; u = acc(fi, 1, j) + 2 * h
                    k(f"v_exp_f32 v{T+2*q}, v{T+2*q}"); k(f"v_exp_f32 v{T+2*q+1}, v{T+2*q+1}")
                    pk("mul", u, u, g)
                for q, (j, h) in enumerate(prs):
                    c = ST + 4 * j + 2
                    pk("fma", T+2*q, T+2*q, c, c, "op_sel:[0,0,0] op_sel_hi:[1,0,0]")
                for q, (j, h) in enumerate(prs):
                    k(f"v_rcp_f32 v{T+2*q}, v{T+2*q}"); k(f"v_rcp_f32 v{T+2*q+1}, v{T+2*q+1}")
                for q, (j, h) in enumerate(prs):
                    u = acc(fi, 1, j) + 2 * h
                    pk("mul", u, u, T+2*q)
                for q, (j, h) in enumerate(prs):
                    u = acc(fi, 1, j) + 2 * h
                    k(f"v_cvt_pk_bf16_f32 v{PK+q}, v{u}, v{u+1}")
                k(f"v_permlane16_swap_b32 v{PK}, v{PK+2}")
                k(f"v_permlane16_swap_b32 v{PK+1}, v{PK+3}")
                k(f"buffer_store_dwordx4 v[{PK}:{PK+3}], v{vL16}, s[12:15], s{34+p} offen offset:{1024*fi}{SC}")
        if T4 and first: k("s_setprio 0")
        vstamp("p4_epi")
        if var != "B1": k(f"s_branch {ljoin}")
    lB = k.lab("p4B"); lB1 = k.lab("p4B1")
    k("s_cmp_eq_u32 s26, 0")
    k(f"s_cbranch_scc0 {lB}")
    body("A")
    k(f"{lB}:")
    k("s_bitcmp1_b32 s25, 0")
    k(f"s_cbranch_scc1 {lB1}")
    body("B0")
    k(f"{lB1}:")
    body("B1")
    k(f"{ljoin}:")
    k("s_lshl_b32 s27, s23, 7"); k(f"s_add_u32 s27, s27, {WS_CNT + C5*128}")
    signal(k, 27, vt=(vT, vT + 1))
    k.stamp("p4_sig")

def mk():
    k = G(NAME, nvgpr=256, accum=256, total=256)
    lend = "L_end"
    k("s_cmp_ge_u32 s2, 256")
    k(f"s_cbranch_scc1 {lend}")
    if os.environ.get("SCR"):
        k("s_and_b32 s3, s2, 7"); k("s_lshl_b32 s3, s3, 5"); k("s_lshr_b32 s2, s2, 3"); k("s_or_b32 s2, s2, s3")
    k("s_load_dwordx16 s[64:79], s[0:1], 0")
    k("s_load_dwordx4 s[80:83], s[0:1], 64")
    k("v_and_b32 v1, 63, v0")
    k("v_lshrrev_b32 v2, 6, v0")
    k("s_nop 0")
    k("v_readfirstlane_b32 s20, v2")
    k.stamp("start")
    ldone = "L_done"
    phs = [phase1, phase2, lambda k: phase35(k, "wo"), phase4, lambda k: phase35(k, "down")]
    for i, ph in enumerate(phs[:UPTO]): ph(k)
    if os.environ.get("ENDW"): k("s_waitcnt vmcnt(0)")
    k.stamp("end")
    k.stamp_out()
    k("s_waitcnt vmcnt(0)")
    k(f"{lend}:")
    k("s_endpgm")
    return k, ("mk", 256, 512, LDS_BYTES)

if __name__ == "__main__":
    import sys
    sys.path.insert(0, "gen")
    from build import header
    k, _ = mk()
    o = header()
    o.append(f"; @launch grid=(256,1,1) block=(512,1,1) lds={LDS_BYTES}")
    if STAMP: o.append("; stamps: " + " ".join(k.stnames))
    o.append('.amdgcn_target "amdgcn-amd-amdhsa--gfx950"')
    o.append('.text')
    o.append(k.text())
    o.append('.section .rodata,"a"')
    o.append(k.desc())
    open(sys.argv[1], "w").write("\n".join(o) + "\n")
    print("wrote", sys.argv[1], "instrs", sum(1 for l in k.lines if l.startswith("  ")))
```

```python
from asmlib import K, srd
from common import *
import os, struct, math
STAMP = bool(int(os.environ.get("STAMP", "0")))
UPTO = int(os.environ.get("UPTO", "5"))
NAME = "sequential_preLN__mha_block__glu_gated_geglu__prompt_kernel"
WS_TS = 0x2800000
SC = " sc1"
LDS_BYTES = 163840
pX, pWQKV, pWO, pBX, pWG, pWU, pWD, pOUT, pDBG, pWS = [64 + 2 * i for i in range(10)]
C2, C3, C4, C5 = 0, 16, 24, 32
SPIN_LIMIT = 0x40000
RAMP = int(os.environ.get("RAMP", "1"))
QKS = int(os.environ.get("QKS", "0"))
PFW = int(os.environ.get("PFW", "1")); PFI = int(os.environ.get("PFI", "0"))
def f2h(x): return hex(struct.unpack('<I', struct.pack('<f', x))[0])

class G(K):
    def __init__(s, *a, **kw):
        super().__init__(*a, **kw); s.nl = 0; s.nst = 0; s.stnames = []
    def lab(s, base):
        s.nl += 1; return f"L_{base}_{s.nl}"
    def stamp(s, nm):
        if not STAMP: return
        i = s.nst; s.nst += 1; s.stnames.append(nm)
        s("s_memrealtime s[84:85]"); s("s_memtime s[86:87]"); s("s_waitcnt lgkmcnt(0)")
        s(f"v_writelane_b32 v255, s84, {i}"); s(f"v_writelane_b32 v254, s86, {i}")
    def stamp_at(s, i):
        if not STAMP: return
        s("s_memrealtime s[84:85]"); s("s_memtime s[86:87]"); s("s_waitcnt lgkmcnt(0)")
        s(f"v_writelane_b32 v255, s84, {i}"); s(f"v_writelane_b32 v254, s86, {i}")
    def stamp_out(s):
        if not STAMP: return
        s("s_lshl_b32 s84, s2, 3"); s("s_add_u32 s84, s84, s20"); s("s_lshl_b32 s84, s84, 9")
        s(f"s_add_u32 s84, s84, {WS_TS}")
        s("v_lshlrev_b32 v253, 2, v1")
        s("buffer_store_dword v255, v253, s[12:15], s84 offen")
        s("buffer_store_dword v254, v253, s[12:15], s84 offen offset:256")
        s("s_waitcnt vmcnt(0)")

class VM:
    def __init__(s): s.q = []; s.c = []
    def issue(s, tag, n=1, certain=True): s.q += [tag] * n; s.c += [certain] * n
    def cnt(s, tags):
        last = -1
        for i, t in enumerate(s.q):
            if t in tags: last = i
        return sum(1 for c in s.c[last + 1:] if c) if last >= 0 else None

def periods(k, name, texts, cnt_sgpr):
    i = 0; n = len(texts)
    while i < n:
        j = i
        while j + 1 < n and texts[j + 1] == texts[i]: j += 1
        rep = j - i + 1
        if rep > 1:
            l = k.lab(name)
            k(f"s_mov_b32 s{cnt_sgpr}, 0")
            k(f"{l}:")
            for x in texts[i]: k(x)
            k(f"s_add_u32 s{cnt_sgpr}, s{cnt_sgpr}, 1")
            k(f"s_cmp_lt_u32 s{cnt_sgpr}, {rep}")
            k(f"s_cbranch_scc1 {l}")
        else:
            for x in texts[i]: k(x)
        i = j + 1

def signal(k, sline, vt=(14, 15)):
    k("s_waitcnt vmcnt(0)")
    k("s_barrier")
    l = k.lab("nosig")
    k("s_cmp_lg_u32 s20, 0"); k(f"s_cbranch_scc1 {l}")
    k("s_mov_b64 exec, 1")
    k(f"v_mov_b32 v{vt[0]}, 1"); k(f"v_mov_b32 v{vt[1]}, 0")
    k(f"buffer_atomic_add v{vt[0]}, v{vt[1]}, s[12:15], s{sline} offen sc1")
    k("s_mov_b64 exec, -1")
    k(f"{l}:")

PD = int(os.environ.get("PD", "1")); PSL = int(os.environ.get("PSL", "6"))
def wait(k, sline, target, vt=(14, 15), pr=None):
    done = k.lab("wdone"); spin = k.lab("wspin")
    k("s_cmp_lg_u32 s20, 0"); k(f"s_cbranch_scc1 {done}")
    k(f"v_mov_b32 v{vt[1]}, 0")
    k("s_mov_b32 s28, 0")
    if PD == 1 or pr is None:
        k(f"{spin}:")
        k(f"buffer_load_dword v{vt[0]}, v{vt[1]}, s[12:15], s{sline} offen sc1")
        k("s_add_u32 s28, s28, 1")
        k("s_waitcnt vmcnt(0)")
        k(f"v_readfirstlane_b32 s29, v{vt[0]}")
        k(f"s_cmp_eq_u32 s29, {target}"); k(f"s_cbranch_scc1 {done}")
        k(f"s_cmp_gt_u32 s28, {SPIN_LIMIT}"); k(f"s_cbranch_scc1 {done}")
        k("s_sleep 1")
        k(f"s_branch {spin}")
    else:
        ld = lambda i: k(f"buffer_load_dword v{pr+i}, v{vt[1]}, s[12:15], s{sline} offen sc1")
        for i in range(PD):
            ld(i)
            if i < PD - 1: k(f"s_sleep {PSL}")
        k(f"{spin}:")
        for i in range(PD):
            k(f"s_waitcnt vmcnt({PD-1})")
            k(f"v_readfirstlane_b32 s29, v{pr+i}")
            k(f"s_cmp_eq_u32 s29, {target}"); k(f"s_cbranch_scc1 {done}")
            ld(i)
        k("s_add_u32 s28, s28, 1")
        k(f"s_cmp_gt_u32 s28, {SPIN_LIMIT}"); k(f"s_cbranch_scc0 {spin}")
    k(f"{done}:")
    k("s_barrier")

def wait_multi(k, sline, target, n, vt):
    done = k.lab("wdone"); spin = k.lab("wspin"); dx = k.lab("wdx")
    k("s_cmp_lg_u32 s20, 0"); k(f"s_cbranch_scc1 {done}")
    k(f"s_mov_b64 exec, {hex((1 << n) - 1)}")
    k("s_mov_b32 s28, 0")
    k(f"{spin}:")
    k(f"buffer_load_dword v{vt[0]}, v{vt[1]}, s[12:15], s{sline} offen sc1")
    k("s_add_u32 s28, s28, 1")
    k("s_waitcnt vmcnt(0)")
    k(f"v_cmp_ne_u32 vcc, {target}, v{vt[0]}")
    k("s_cmp_eq_u64 vcc, 0"); k(f"s_cbranch_scc1 {dx}")
    k(f"s_cmp_gt_u32 s28, {SPIN_LIMIT}"); k(f"s_cbranch_scc1 {dx}")
    k("s_sleep 1")
    k(f"s_branch {spin}")
    k(f"{dx}:")
    k("s_mov_b64 exec, -1")
    k(f"{done}:")
    k("s_barrier")

def wdma_lane(k, vdst, rowbytes, t):
    k(f"v_lshrrev_b32 v{t}, 3, v1"); k(f"v_and_b32 v{t+1}, 7, v1")
    k(f"v_lshrrev_b32 v{t+2}, 2, v{t}"); k(f"v_and_b32 v{t+3}, 3, v{t}")
    k(f"v_lshl_add_u32 v{t+2}, v{t+2}, 3, v{t+3}")
    k(f"v_mul_u32_u24 v{t+2}, {rowbytes}, v{t+2}")
    k(f"v_lshrrev_b32 v{t+3}, 1, v{t+1}"); k(f"v_lshrrev_b32 v{t}, 1, v{t}")
    k(f"v_xor_b32 v{t+3}, v{t+3}, v{t}")
    k(f"v_and_b32 v{t+1}, 1, v{t+1}")
    k(f"v_lshl_add_u32 v{t+3}, v{t+3}, 1, v{t+1}")
    k(f"v_lshl_add_u32 v{vdst}, v{t+3}, 4, v{t+2}")

def phase1(k):
    NS = 4; SLOT = 40960; BOFF = 24576
    ACC = 64
    vA = [2, 3]; vW = [10, 11, 12]; vX = [13, 4]; vL16 = 5; vZ = 6; vP = 7
    A = [16, 28]; B = [40, 112]
    VB = 128; DC = 144; D1 = 156; D2 = 160; ONE = 164; PL = 168
    RMR = 192
    acc = lambda m, j: ACC + (m * 4 + j) * 4
    k("s_and_b32 s21, s2, 7"); k("s_lshr_b32 s22, s2, 3")
    k("s_and_b32 s23, s21, 1"); k("s_lshl_b32 s23, s23, 3"); k("s_and_b32 s24, s22, 7"); k("s_add_u32 s23, s23, s24")
    k("s_lshr_b32 s24, s21, 1"); k("s_lshl_b32 s24, s24, 2"); k("s_lshr_b32 s25, s22, 3"); k("s_add_u32 s24, s24, s25")
    k("s_and_b32 s25, s20, 1")
    k("s_lshr_b32 s26, s20, 1")
    wdma_lane(k, vW[0], 6144, 14)
    if QKS:
        for m in (1, 2):
            k(f"s_add_u32 s27, s24, {m*QKS}"); k("s_and_b32 s27, s27, 15"); k("s_sub_u32 s27, s27, s24")
            k("s_lshl_b32 s27, s27, 7"); k(f"s_add_u32 s27, s27, {2048*m}")
            k(f"v_add_u32 v{vW[m]}, s27, v{vW[0]}")
    else:
        k(f"v_add_u32 v{vW[1]}, 2048, v{vW[0]}")
        k(f"v_add_u32 v{vW[2]}, 4096, v{vW[0]}")
    k("v_lshrrev_b32 v14, 3, v1"); k("v_and_b32 v15, 7, v1")
    k("v_lshrrev_b32 v17, 4, v1")
    k("v_xor_b32 v17, v17, v15")
    k("v_lshlrev_b32 v17, 4, v17")
    k(f"v_lshl_add_u32 v{vX[0]}, v14, 11, v17")
    k(f"v_xor_b32 v{vX[1]}, 64, v{vX[0]}")
    k(f"v_add_u32 v{vX[1]}, {16384 - 1024}, v{vX[1]}")
    k(f"v_lshlrev_b32 v{vL16}, 4, v1")
    k("s_lshr_b32 s27, s20, 2"); k("s_lshl_b32 s27, s27, 5")
    k("s_bfe_u32 s28, s20, 0x10001"); k("s_lshl_b32 s28, s28, 4"); k("s_add_u32 s27, s27, s28")
    k("s_lshl_b32 s28, s25, 2"); k("s_add_u32 s27, s27, s28")
    k("s_mul_i32 s48, s27, 6144"); k("s_lshl_b32 s28, s24, 7"); k("s_add_u32 s48, s48, s28")
    k(f"s_add_u32 s46, s48, {16*64*6144}")
    k("s_lshl_b32 s49, s23, 3"); k("s_add_u32 s49, s49, s20"); k("s_lshl_b32 s49, s49, 15")
    k("s_add_u32 s27, s23, s24"); k("s_and_b32 s27, s27, 15")
    k(f"s_mul_i32 s28, s27, {64*6144}"); k("s_add_u32 s30, s48, s28")
    k("s_lshl_b32 s28, s27, 7"); k("s_add_u32 s31, s49, s28")
    k("s_lshl_b32 s32, s20, 10")
    k("s_lshl_b32 s33, s20, 11"); k(f"s_add_u32 s33, s33, {BOFF}")
    k.stamp("p1_pre")
    k("s_waitcnt lgkmcnt(0)")
    k.stamp("p1_ka")
    srd(k, 8, pWQKV, D * 3 * D * 2)
    srd(k, 12, pWS, WS_SIZE)
    srd(k, 16, pX, MB4)
    def dma(slot):
        o = []
        for m in range(3):
            o.append([f"s_add_u32 m0, s32, {slot*SLOT + m*8192}", f"buffer_load_dwordx4 v{vW[m]}, s[8:11], s30 offen lds"])
        o.append([f"s_add_u32 m0, s33, {slot*SLOT}", f"buffer_load_dwordx4 v{vX[0]}, s[16:19], s31 offen lds"])
        o.append([f"buffer_load_dwordx4 v{vX[1]}, s[16:19], s31 offen offset:1024 lds"])
        return o
    adv = [f"s_add_u32 s30, s30, {64*6144}", "s_add_u32 s31, s31, 128", "s_cmp_eq_u32 s30, s46", "s_cselect_b32 s30, s48, s30", "s_cselect_b32 s31, s49, s31"]
    vm = VM()
    def issue_stage(st):
        for d in dma(st % NS):
            for l in d: k(l)
        for l in adv: k(l)
        vm.issue(("S", st), 5)
    NPRO = 2 if RAMP else NS
    issue_stage(0)
    if not RAMP:
        for st in range(1, NS): issue_stage(st)
    k.stamp("p1_dma")
    srd(k, 88, pWO, D * D * 2)
    k("v_lshlrev_b32 v197, 4, v0")
    k("v_mov_b32 v14, v197")
    l0 = k.lab("noinit")
    k("s_cmp_lg_u32 s2, 0"); k(f"s_cbranch_scc1 {l0}")
    for r in range(4): k(f"v_mov_b32 v{PL+r}, 0")
    k(f"s_mov_b32 s27, {WS_CNT}")
    k(f"buffer_store_dwordx4 v[{PL}:{PL+3}], v14, s[12:15], s27 offen{SC}")
    k(f"{l0}:")
    srd(k, 60, pDBG, 256)
    k("v_lshrrev_b32 v14, 4, v1")
    k("v_bfe_u32 v15, v1, 2, 2")
    k("v_lshrrev_b32 v16, 1, v14"); k("v_and_b32 v17, 1, v14")
    k("v_lshlrev_b32 v16, 4, v16"); k("v_lshl_add_u32 v16, v17, 2, v16"); k("v_add_u32 v16, v16, v15")
    k("v_lshlrev_b32 v16, 7, v16")
    k("v_lshrrev_b32 v18, 1, v15"); k("v_lshl_add_u32 v18, v17, 1, v18")
    k("v_xor_b32 v18, s26, v18")
    k("v_lshl_add_u32 v16, v18, 5, v16")
    k("v_and_b32 v18, 3, v1")
    k(f"v_lshl_add_u32 v{vA[0]}, v18, 3, v16")
    k(f"v_add_u32 v{vA[1]}, {2*SLOT}, v{vA[0]}")
    for i in range(1, 4): k(f"v_cmp_eq_u32 s[{48+2*i}:{49+2*i}], {i}, v18")
    if RAMP:
        k("s_barrier")
        issue_stage(1)
    k("v_cmp_eq_u32 s[56:57], v14, v15")
    k("v_and_b32 v15, 15, v1")
    k("v_cmp_eq_u32 s[58:59], 0, v15")
    k("v_lshrrev_b32 v16, 1, v15"); k("v_xor_b32 v16, v16, v14"); k("v_lshlrev_b32 v16, 4, v16")
    k("v_lshl_add_u32 v16, v15, 7, v16")
    k("s_cmp_eq_u32 s25, 0")
    k("s_cselect_b32 s58, s58, 0"); k("s_cselect_b32 s59, s59, 0")
    k("s_lshl_b32 s28, s25, 13"); k(f"s_add_u32 s28, s28, {BOFF}")
    for jj in range(4):
        k(f"s_xor_b32 s27, s26, {jj}"); k("s_lshl_b32 s27, s27, 11"); k("s_add_u32 s27, s27, s28")
        k(f"v_add_u32 v{VB+jj}, s27, v16")
        k(f"v_xor_b32 v{VB+4+jj}, 64, v{VB+jj}")
        k(f"v_add_u32 v{VB+8+jj}, {2*SLOT}, v{VB+jj}")
        k(f"v_add_u32 v{VB+12+jj}, {2*SLOT}, v{VB+4+jj}")
    k(f"v_mov_b32 v{vZ}, 0")
    k("v_lshlrev_b32 v8, 3, v15")
    k("s_lshl_b32 s42, s23, 3"); k("s_lshl_b32 s27, s25, 2"); k("s_add_u32 s42, s42, s27"); k("s_add_u32 s42, s42, s26")
    k("s_lshl_b32 s42, s42, 7"); k("s_lshl_b32 s27, s24, 14"); k("s_add_u32 s42, s42, s27"); k(f"s_add_u32 s42, s42, {WS_ST1}")
    k("v_lshlrev_b32 v9, 4, v14")
    k("s_lshl_b32 s43, s24, 4"); k("s_add_u32 s43, s43, s23"); k("s_mul_i32 s43, s43, 768")
    k("s_lshl_b32 s27, s26, 6"); k("s_add_u32 s43, s43, s27"); k(f"s_add_u32 s43, s43, {WS_CS1}")
    k("v_and_b32 v196, 1, v1"); k("v_lshlrev_b32 v196, 7, v196")
    for r in range(ACC, ACC + 48): k(f"v_mov_b32 v{r}, 0")
    for r in range(DC, DC + 20): k(f"v_mov_b32 v{r}, 0")
    for r in range(4): k(f"v_mov_b32 v{ONE+r}, 0x3f803f80")
    def reads(buf, slot, kb):
        o = []
        pr = slot >> 1; so = (slot & 1) * SLOT
        def rA(m):
            return [f"ds_read_b64_tr_b16 v[{A[buf]+4*m+2*t}:{A[buf]+4*m+2*t+1}], v{vA[pr]} offset:{so + m*8192 + kb*4096 + t*1024}" for t in range(2)]
        def rB(j):
            return [f"ds_read_b128 v[{B[buf]+4*j}:{B[buf]+4*j+3}], v{VB + pr*8 + kb*4 + j} offset:{so}"]
        o += rA(0)
        for j in range(4): o += rB(j)
        o += rA(1) + rA(2)
        return o
    def side(buf):
        o = []
        fb = f"v[{B[buf]}:{B[buf]+3}]"; on = f"v[{ONE}:{ONE+3}]"
        for m in range(3):
            o.append(f"v_mfma_f32_16x16x32_bf16 v[{DC+4*m}:{DC+4*m+3}], v[{A[buf]+4*m}:{A[buf]+4*m+3}], {on}, v[{DC+4*m}:{DC+4*m+3}]")
        o.append(f"v_mfma_f32_16x16x32_bf16 v[{D1}:{D1+3}], {on}, {fb}, v[{D1}:{D1+3}]")
        o.append(f"v_mfma_f32_16x16x32_bf16 v[{D2}:{D2+3}], {fb}, {fb}, v[{D2}:{D2+3}]")
        return o
    def once(lines):
        l = k.lab("once")
        k("s_cmp_lg_u32 s34, 0"); k(f"s_cbranch_scc1 {l}")
        for x in lines: k(x)
        k(f"{l}:")
    def publish():
        o = [f"v_cndmask_b32 v{D2}, v{D2}, v{D2+1}, s[50:51]", f"v_cndmask_b32 v{D2}, v{D2}, v{D2+2}, s[52:53]", f"v_cndmask_b32 v{D2}, v{D2}, v{D2+3}, s[54:55]",
             f"v_mov_b32 v{D1+1}, v{D2}",
             "s_mov_b64 exec, s[56:57]",
             f"buffer_store_dwordx2 v[{D1}:{D1+1}], v8, s[12:15], s42 offen{SC}",
             "s_mov_b64 exec, s[58:59]"]
        for m in range(3):
            o.append(f"buffer_store_dwordx4 v[{DC+4*m}:{DC+4*m+3}], v9, s[12:15], s43 offen offset:{256*m}{SC}")
        o.append("s_mov_b64 exec, -1")
        return o
    def sig1():
        l = k.lab("nosig1")
        return ["s_cmp_lg_u32 s20, 0", f"s_cbranch_scc1 {l}", "s_mov_b64 exec, 1", "v_mov_b32 v14, 1",
                "s_and_b32 s27, s2, 1", "s_lshl_b32 s27, s27, 7",
                f"buffer_atomic_add v14, v{vZ}, s[60:63], s27 offen sc1", "s_mov_b64 exec, -1", f"{l}:"]
    k.stamp("p1_set")
    k(f"s_waitcnt vmcnt({vm.cnt({('S', 0)})})")
    k.stamp("p1_w0")
    k("s_barrier")
    k.stamp("p1_go")
    for l in reads(0, 0, 0): k(l)
    NT = 16
    def sched(t, kb):
        if RAMP and t < 2: return [2, 3, 4, 5][2 * t + kb]
        if kb == 1 and t + NS < NT: return t + NS
        return None
    def step(o, t, kb, side_here=False, pre=None, post=None, extra_need=()):
        cur = kb; nxt = kb ^ 1; last = t == NT - 1
        if kb == 0:
            o.append("s_waitcnt lgkmcnt(0)")
            rd = reads(nxt, t % NS, 1)
        elif last:
            o.append("s_waitcnt lgkmcnt(0)"); rd = []
        else:
            o.append(f"s_waitcnt vmcnt({vm.cnt({('S', t + 1)} | set(extra_need))}) lgkmcnt(0)")
            o.append("s_barrier")
            rd = reads(nxt, (t + 1) % NS, 0)
        st = sched(t, kb)
        dm = dma(st % NS) if st is not None else []
        if pre: pre(o)
        if st is not None: vm.issue(("S", st), 5)
        mf = []
        for m in range(3):
            for j in range(4):
                a = acc(m, j); fa = f"v[{A[cur]+4*m}:{A[cur]+4*m+3}]"; fb = f"v[{B[cur]+4*j}:{B[cur]+4*j+3}]"
                if m == 2: fa, fb = fb, fa
                mf.append(f"v_mfma_f32_16x16x32_bf16 v[{a}:{a+3}], {fa}, {fb}, v[{a}:{a+3}]")
        gaps = [[] for _ in mf]
        for q, r in enumerate(rd): gaps[q].append(r)
        pos = [1, 3, 5, 7, 9]
        for q, d in enumerate(dm):
            if len(d) == 2:
                gaps[pos[q] - 1].append(d[0]); gaps[pos[q]].append(d[1])
            else:
                gaps[pos[q]].append(d[0])
        if dm: gaps[10] += adv
        for g, mm in enumerate(mf):
            o.append(mm); o += gaps[g]
        if side_here: o += side(cur)
        if post: post(o)
    texts = []
    for per in range(3):
        o = []
        for t in range(per * 4, per * 4 + 4):
            step(o, t, 0, side_here=(t == 0))
            if t == 1:
                o += publish(); vm.issue("PUB", 4, certain=False)
            step(o, t, 1, side_here=(t == 0), extra_need=("PUB",) if t == 3 else ())
            if t == 3: o += sig1(); vm.issue("SIG", 1, certain=False)
        texts.append(o)
    periods(k, "p1loop", texts, 34)
    def partial_loads():
        rdy = k.lab("p1rdy"); spin = k.lab("p1spin"); nocs = k.lab("p1nocs")
        k(f"v_cmp_eq_u32 vcc, 128, v{vP}")
        k("s_cmp_eq_u64 vcc, -1")
        k(f"s_cbranch_scc1 {rdy}")
        k("s_mov_b32 s28, 0")
        k(f"{spin}:")
        k("s_add_u32 s28, s28, 1")
        k(f"s_cmp_gt_u32 s28, {SPIN_LIMIT}")
        k(f"s_cbranch_scc1 {rdy}")
        k("s_sleep 2")
        k(f"buffer_load_dword v{vP}, v196, s[60:63], 0 offen sc1")
        k("s_waitcnt vmcnt(0)")
        k(f"v_cmp_eq_u32 vcc, 128, v{vP}")
        k("s_cmp_eq_u64 vcc, -1")
        k(f"s_cbranch_scc0 {spin}")
        k(f"{rdy}:")
        k("v_and_b32 v14, 3, v0"); k("v_lshlrev_b32 v14, 16, v14")
        k("v_lshrrev_b32 v15, 2, v0"); k("v_lshl_add_u32 v14, v15, 3, v14")
        k("s_lshl_b32 s27, s23, 10"); k(f"s_add_u32 s27, s27, {WS_ST1}")
        for i in range(4):
            k(f"buffer_load_dwordx2 v[{PL+2*i}:{PL+2*i+1}], v14, s[12:15], s27 offen{SC}")
            if i < 3: k("s_add_u32 s27, s27, 16384")
        k("s_cmp_ge_u32 s20, 3")
        k(f"s_cbranch_scc1 {nocs}")
        k("v_lshlrev_b32 v14, 2, v0")
        k(f"s_mul_i32 s27, s24, {16*768}"); k(f"s_add_u32 s27, s27, {WS_CS1}")
        for i in range(16):
            k(f"buffer_load_dword v{PL+8+i}, v14, s[12:15], s27 offen offset:{(i % 4) * 768}{SC}")
            if i % 4 == 3 and i < 15: k(f"s_add_u32 s27, s27, {4*768}")
        k(f"{nocs}:")
    class _O:
        def append(self, x): k(x)
        def __iadd__(self, xs):
            for x in xs: k(x)
            return self
    o = _O()
    for t in range(12, 16):
        step(o, t, 0)
        if t == 12:
            k(f"buffer_load_dword v{vP}, v196, s[60:63], 0 offen sc1"); vm.issue("VP")
            k("s_lshl_b32 s27, s2, 13")
            k(f"buffer_load_dwordx4 v[{RMR}:{RMR+3}], v197, s[88:91], s27 offen"); vm.issue("RMR")
        step(o, t, 1, pre=(lambda o: partial_loads()) if t == 14 else None, extra_need=("VP", "RMR") if t == 14 else ())
    k.stamp("p1_loop")
    k("v_mov_b32 v14, 0")
    for r in range(4): k(f"v_dot2c_f32_bf16 v14, v{RMR+r}, v{ONE}")
    for ro in (8, 4, 2, 1): k(f"v_add_f32_dpp v14, v14, v14 row_ror:{ro} row_mask:0xf bank_mask:0xf")
    for sw in ("v_permlane16_swap_b32", "v_permlane32_swap_b32"):
        k("v_mov_b32 v15, v14"); k(f"{sw} v14, v15"); k("v_add_f32 v14, v14, v15")
    k("s_lshl_b32 s27, s20, 2"); k("s_add_u32 s27, s27, 2048"); k("v_mov_b32 v15, s27")
    k("ds_write_b32 v15, v14")
    k("s_waitcnt vmcnt(0)")
    k(f"v_add_f32 v{PL}, v{PL}, v{PL+2}"); k(f"v_add_f32 v{PL+1}, v{PL+1}, v{PL+3}")
    k(f"v_add_f32 v{PL+4}, v{PL+4}, v{PL+6}"); k(f"v_add_f32 v{PL+5}, v{PL+5}, v{PL+7}")
    k(f"v_add_f32 v{PL}, v{PL}, v{PL+4}"); k(f"v_add_f32 v{PL+1}, v{PL+1}, v{PL+5}")
    for qp in ("[1,0,3,2]", "[2,3,0,1]"):
        k(f"v_add_f32_dpp v{PL}, v{PL}, v{PL} quad_perm:{qp} row_mask:0xf bank_mask:0xf")
        k(f"v_add_f32_dpp v{PL+1}, v{PL+1}, v{PL+1} quad_perm:{qp} row_mask:0xf bank_mask:0xf")
    k(f"v_mul_f32 v{PL}, 0x3a800000, v{PL}")
    k(f"v_mul_f32 v{PL+1}, 0x3a800000, v{PL+1}")
    k("v_lshrrev_b32 v16, 2, v0"); k("v_lshlrev_b32 v16, 2, v16")
    lm = k.lab("nomx")
    k("s_cmp_lg_u32 s24, 0"); k(f"s_cbranch_scc1 {lm}")
    k("s_lshl_b32 s27, s23, 9"); k(f"s_add_u32 s27, s27, {WS_MX}")
    k(f"buffer_store_dword v{PL}, v16, s[12:15], s27 offen{SC}")
    k(f"{lm}:")
    k(f"v_fma_f32 v{PL+1}, -v{PL}, v{PL}, v{PL+1}")
    k(f"v_max_f32 v{PL+1}, 0, v{PL+1}")
    k(f"v_add_f32 v{PL+1}, 0x3727c5ac, v{PL+1}")
    k(f"v_rsq_f32 v{PL+1}, v{PL+1}")
    k(f"v_mul_f32 v{PL+2}, v{PL}, v{PL+1}")
    k(f"v_sub_f32 v{PL+2}, 0, v{PL+2}")
    k(f"ds_write_b32 v16, v{PL+1}")
    k(f"ds_write_b32 v16, v{PL+2} offset:512")
    l2 = k.lab("nocs2")
    k("s_cmp_ge_u32 s20, 3")
    k(f"s_cbranch_scc1 {l2}")
    for st in (8, 4, 2, 1):
        for i in range(st): k(f"v_add_f32 v{PL+8+i}, v{PL+8+i}, v{PL+8+i+st}")
    k("v_lshlrev_b32 v16, 2, v0")
    k(f"ds_write_b32 v16, v{PL+8} offset:1024")
    k(f"{l2}:")
    k("v_and_b32 v15, 15, v1")
    k("s_lshl_b32 s27, s25, 8"); k("s_lshl_b32 s28, s26, 6"); k("s_add_u32 s28, s28, s27")
    k("v_lshlrev_b32 v16, 2, v15")
    k("v_add_u32 v17, s28, v16")
    k("v_lshrrev_b32 v14, 4, v1")
    k("v_lshlrev_b32 v19, 4, v14")
    k("v_add_u32 v20, s28, v19")
    k("s_lshl_b32 s29, s26, 6"); k("s_add_u32 s29, s29, 1024")
    k("v_add_u32 v19, s29, v19")
    k("v_add_u32 v18, s29, v16")
    for jj in range(1, 4):
        k(f"v_xor_b32 v{20+jj}, {jj<<6}, v20")
        k(f"v_xor_b32 v{23+jj}, {jj<<6}, v17")
    k("s_lshl_b32 s27, s23, 2"); k("s_lshl_b32 s28, s25, 1"); k("s_add_u32 s27, s27, s28")
    k("s_lshl_b32 s27, s27, 16")
    k("s_lshl_b32 s28, s24, 12"); k("s_add_u32 s27, s27, s28")
    k("s_lshl_b32 s28, s26, 10"); k("s_add_u32 s27, s27, s28")
    k("s_lshr_b32 s42, s26, 1")
    k("s_lshl_b32 s28, s42, 16"); k("s_add_u32 s35, s27, s28")
    k("s_xor_b32 s28, s28, 0x10000"); k("s_add_u32 s37, s27, s28")
    k(f"s_add_u32 s36, s35, {WS_K}"); k(f"s_add_u32 s38, s37, {WS_K}")
    k(f"s_add_u32 s35, s35, {WS_Q}"); k(f"s_add_u32 s37, s37, {WS_Q}")
    if QKS:
        k(f"s_add_u32 s27, s24, {QKS}"); k("s_and_b32 s27, s27, 15"); k("s_sub_u32 s27, s27, s24"); k("s_lshl_b32 s27, s27, 12")
        k("s_add_u32 s36, s36, s27"); k("s_add_u32 s38, s38, s27")
        k(f"s_add_u32 s27, s24, {2*QKS}"); k("s_and_b32 s27, s27, 15"); k("s_lshl_b32 s27, s27, 1")
    else:
        k("s_lshl_b32 s27, s24, 1")
    k("s_add_u32 s27, s27, s42")
    k("s_lshl_b32 s27, s27, 7")
    k("s_lshl_b32 s28, s23, 3"); k("s_add_u32 s27, s27, s28")
    k("s_lshl_b32 s28, s25, 2"); k("s_add_u32 s27, s27, s28")
    k("s_lshl_b32 s27, s27, 10")
    k("s_and_b32 s43, s26, 1")
    k("s_lshl_b32 s28, s43, 8"); k("s_add_u32 s27, s27, s28")
    k(f"s_add_u32 s27, s27, {WS_VT}")
    k("s_lshl_b32 s28, s42, 11"); k("s_add_u32 s39, s27, s28")
    k("s_xor_b32 s28, s28, 2048"); k("s_add_u32 s40, s27, s28")
    k("v_lshrrev_b32 v27, 5, v1"); k("v_xor_b32 v27, s43, v27"); k("v_lshlrev_b32 v27, 10, v27")
    k("v_bfe_u32 v28, v1, 4, 1"); k("v_lshl_add_u32 v27, v28, 9, v27")
    k("v_lshl_add_u32 v14, v15, 4, v27")
    k("s_lshl_b32 s28, s43, 8")
    k(f"v_xor_b32 v{vL16}, s28, v{vL16}")
    k("s_waitcnt lgkmcnt(0)")
    k("s_barrier")
    SQ = 28; CQ = 36
    k(f"ds_read2_b32 v[{SQ}:{SQ+1}], v17 offset0:0 offset1:128")
    for jj in range(1, 4): k(f"ds_read2_b32 v[{SQ+2*jj}:{SQ+2*jj+1}], v{23+jj} offset0:0 offset1:128")
    k(f"ds_read_b128 v[{CQ}:{CQ+3}], v19")
    k(f"ds_read_b128 v[{CQ+4}:{CQ+7}], v19 offset:256")
    k("ds_read_b32 v152, v18 offset:512")
    VS = [112, 120, 128, 136]
    for jj in range(4):
        k(f"ds_read_b128 v[{VS[jj]}:{VS[jj]+3}], v{20+jj}")
        k(f"ds_read_b128 v[{VS[jj]+4}:{VS[jj]+7}], v{20+jj} offset:512")
    l7 = k.lab("norm")
    k("s_cmp_lg_u32 s20, 7"); k(f"s_cbranch_scc1 {l7}")
    k(f"ds_read_b128 v[{PL}:{PL+3}], v{vZ} offset:2048")
    k(f"ds_read_b128 v[{PL+4}:{PL+7}], v{vZ} offset:2064")
    k("s_waitcnt lgkmcnt(0)")
    for r in range(4):
        k(f"v_add_f32 v{PL+2*r}, v{PL+2*r}, v{PL+2*r+1}")
        k(f"v_mul_f32 v{PL+2*r}, 0x3a800000, v{PL+2*r}")
    k(f"v_cvt_pk_bf16_f32 v{PL+8}, v{PL}, v{PL+2}")
    k(f"v_cvt_pk_bf16_f32 v{PL+9}, v{PL+4}, v{PL+6}")
    k("s_lshl_b32 s27, s2, 3"); k(f"s_add_u32 s27, s27, {WS_RM}")
    k("s_mov_b64 exec, 1")
    k(f"buffer_store_dwordx2 v[{PL+8}:{PL+9}], v{vZ}, s[12:15], s27 offen{SC}")
    k("s_mov_b64 exec, -1")
    k(f"{l7}:")
    k("s_mov_b32 s44, 0x3e8293ee")
    k("s_waitcnt lgkmcnt(9)")
    QS = 52
    for jj in range(4):
        k(f"v_mul_f32 v{QS+2*jj}, s44, v{SQ+2*jj}")
        k(f"v_mul_f32 v{QS+2*jj+1}, s44, v{SQ+2*jj+1}")
    TP = [16, 20, 24, 44, 48, 60]
    TM = 144
    ti = 0
    for m in range(3):
        if m == 2: k("s_waitcnt lgkmcnt(0)")
        for p in range(2):
            t = TP[ti]; ti += 1
            for jj2 in range(2):
                jj = 2 * p + jj2
                a = acc(m, jj)
                for h in range(2):
                    tm = TM + 2 * ((jj2 * 2 + h) & 3)
                    if m < 2:
                        st = (QS if m == 0 else SQ) + 2 * jj
                        cs = CQ + 4 * m + 2 * h
                        k(f"v_pk_mul_f32 v[{tm}:{tm+1}], v[{cs}:{cs+1}], v[{st}:{st+1}] op_sel:[0,1] op_sel_hi:[1,1]")
                        k(f"v_pk_fma_f32 v[{a+2*h}:{a+2*h+1}], v[{a+2*h}:{a+2*h+1}], v[{st}:{st+1}], v[{tm}:{tm+1}] op_sel:[0,0,0] op_sel_hi:[1,0,1]")
                    else:
                        rs = VS[jj] + 2 * h; nm = VS[jj] + 4 + 2 * h
                        k(f"v_pk_mul_f32 v[{tm}:{tm+1}], v[{nm}:{nm+1}], v[152:153] op_sel:[0,0] op_sel_hi:[1,0]")
                        k(f"v_pk_fma_f32 v[{a+2*h}:{a+2*h+1}], v[{a+2*h}:{a+2*h+1}], v[{rs}:{rs+1}], v[{tm}:{tm+1}]")
                k(f"v_cvt_pk_bf16_f32 v{t+2*jj2}, v{a}, v{a+1}")
                k(f"v_cvt_pk_bf16_f32 v{t+2*jj2+1}, v{a+2}, v{a+3}")
            sw = "v_permlane16_swap_b32" if m < 2 else "v_permlane32_swap_b32"
            k(f"{sw} v{t}, v{t+2}")
            k(f"{sw} v{t+1}, v{t+3}")
            so = [[35, 37], [36, 38], [39, 40]][m][p]
            k(f"buffer_store_dwordx4 v[{t}:{t+3}], v{vL16 if m < 2 else 14}, s[12:15], s{so} offen{SC}")
    k.stamp("p1_epi")
    k("s_lshl_b32 s27, s24, 7"); k(f"s_add_u32 s27, s27, {WS_CNT + C2*128}")
    signal(k, 27, vt=(30, 31))
    k.stamp("p1_sig")

W3BASE = 98304
vW3 = [200, 201]
C35 = int(os.environ.get("C35", "0"))
def coords35(k, stb, scb, st):
    k("s_and_b32 s21, s2, 7"); k("s_lshr_b32 s22, s2, 3")
    if C35 == 0:
        k(f"s_and_b32 s{stb}, s21, 3"); k(f"s_lshl_b32 s{stb}, s{stb}, 2"); k(f"s_and_b32 s{st}, s22, 3"); k(f"s_add_u32 s{stb}, s{stb}, s{st}")
        k(f"s_lshr_b32 s{scb}, s21, 2"); k(f"s_lshl_b32 s{scb}, s{scb}, 3"); k(f"s_lshr_b32 s{st}, s22, 2"); k(f"s_add_u32 s{scb}, s{scb}, s{st}")
    elif C35 == 2:
        k(f"s_lshl_b32 s{stb}, s21, 1"); k(f"s_lshr_b32 s{st}, s22, 4"); k(f"s_add_u32 s{stb}, s{stb}, s{st}")
        k(f"s_and_b32 s{scb}, s22, 15")
    elif C35 == 3:
        k(f"s_and_b32 s{stb}, s21, 1"); k(f"s_lshl_b32 s{stb}, s{stb}, 3"); k(f"s_lshr_b32 s{st}, s22, 2"); k(f"s_add_u32 s{stb}, s{stb}, s{st}")
        k(f"s_lshr_b32 s{scb}, s21, 1"); k(f"s_lshl_b32 s{scb}, s{scb}, 2"); k(f"s_and_b32 s{st}, s22, 3"); k(f"s_add_u32 s{scb}, s{scb}, s{st}")
    elif C35 == 4:
        k(f"s_and_b32 s{stb}, s21, 3"); k(f"s_lshl_b32 s{stb}, s{stb}, 2"); k(f"s_lshr_b32 s{st}, s22, 3"); k(f"s_add_u32 s{stb}, s{stb}, s{st}")
        k(f"s_lshr_b32 s{scb}, s21, 2"); k(f"s_and_b32 s{st}, s22, 7"); k(f"s_lshl_b32 s{st}, s{st}, 1"); k(f"s_add_u32 s{scb}, s{scb}, s{st}")
    else:
        k(f"s_and_b32 s{stb}, s21, 3"); k(f"s_lshl_b32 s{stb}, s{stb}, 2"); k(f"s_lshr_b32 s{st}, s22, 3"); k(f"s_add_u32 s{stb}, s{stb}, s{st}")
        k(f"s_lshr_b32 s{scb}, s21, 2"); k(f"s_lshl_b32 s{scb}, s{scb}, 3"); k(f"s_and_b32 s{st}, s22, 7"); k(f"s_add_u32 s{scb}, s{scb}, s{st}")
WT3 = int(os.environ.get("WT3", "0")); WT5 = int(os.environ.get("WT5", "0"))
WDT = int(os.environ.get("WDT", "3"))
WS_WDT = 0x3000000
WDA = int(os.environ.get("WDA", "3")); WDP = int(os.environ.get("WDP", "4"))
def w35_setup(k, vW, base, t, tiled=0):
    coords35(k, 27, 29, 28)
    rb = 128 if tiled else 2048
    wdma_lane(k, vW[0], rb, t)
    k(f"v_add_u32 v{vW[1]}, {4*rb}, v{vW[0]}")
    k("s_lshr_b32 s27, s20, 1"); k("s_lshl_b32 s27, s27, 5"); k("s_and_b32 s28, s20, 1"); k("s_lshl_b32 s28, s28, 4")
    k("s_add_u32 s27, s27, s28")
    if tiled:
        k("s_lshl_b32 s50, s27, 7"); k(f"s_mul_i32 s28, s29, {tiled*128}"); k("s_add_u32 s50, s50, s28")
        if WDT and base == 0: k(f"s_add_u32 s50, s50, {WS_WDT}")
    else:
        k("s_lshl_b32 s50, s27, 11"); k("s_lshl_b32 s28, s29, 7"); k("s_add_u32 s50, s50, s28")
        if os.environ.get("WOFF64") and base == 0: k("s_add_u32 s50, s50, 64")
    k("s_lshl_b32 s51, s20, 11")
    if base: k(f"s_add_u32 s51, s51, {base}")
def w35_dma(vW, srdw, slot):
    sc = SC if srdw == 12 else ""
    return [[f"s_add_u32 m0, s51, {slot*16384}", f"buffer_load_dwordx4 v{vW[0]}, s[{srdw}:{srdw+3}], s50 offen{sc} lds"],
            [f"s_add_u32 m0, s51, {slot*16384+1024}", f"buffer_load_dwordx4 v{vW[1]}, s[{srdw}:{srdw+3}], s50 offen{sc} lds"]]
W3ADV = f"s_add_u32 s50, s50, {128*(128 if WT3 else 2048)}"
W5ADV = f"s_add_u32 s50, s50, {128*(128 if WT5 or WDT else 2048)}"
SW5 = 12 if WDT else 60

WOPF = int(os.environ.get("WOPF", "0"))
OT = int(os.environ.get("OT", "0"))
def phase2(k):
    STG = 32768
    vL16, vCur, vNxt, vTmp = 2, 3, 4, 5
    QA, QB = 8, 16
    KF = [24, 32]; VF = [40, 48]
    SA, SB = 56, 72
    PA, PB = 88, 96
    OA, OB = 104, 120
    LA, LB = 136, 140
    NA, NB = 144, 160
    ONE = 176
    T0 = 180
    w35_setup(k, vW3, W3BASE, 180, D if WT3 else 0)
    srd(k, 8, pBX if WT3 else pWO, D * D * 2)
    k("s_and_b32 s21, s2, 7"); k("s_lshl_b32 s21, s21, 2"); k("s_lshr_b32 s22, s2, 6"); k("s_add_u32 s21, s21, s22")
    k("s_bfe_u32 s22, s2, 0x30003")
    k("s_and_b32 s23, s20, 3")
    k("s_lshr_b32 s24, s20, 2")
    k(f"v_lshlrev_b32 v{vL16}, 4, v1")
    k("s_lshl_b32 s30, s24, 5"); k("s_add_u32 s30, s30, s23"); k("s_lshl_b32 s30, s30, 16")
    k("s_lshl_b32 s25, s21, 11"); k("s_add_u32 s30, s30, s25"); k(f"s_add_u32 s30, s30, {WS_K}")
    k("s_lshl_b32 s31, s21, 7"); k("s_lshl_b32 s25, s24, 6"); k("s_add_u32 s31, s31, s25")
    k("s_lshl_b32 s25, s23, 1"); k("s_add_u32 s31, s31, s25"); k("s_lshl_b32 s31, s31, 10"); k(f"s_add_u32 s31, s31, {WS_VT}")
    k("s_lshl_b32 s32, s24, 14"); k("s_lshl_b32 s25, s23, 11"); k("s_add_u32 s32, s32, s25")
    k("s_lshl_b32 s33, s22, 3"); k("s_lshl_b32 s25, s23, 1"); k("s_add_u32 s33, s33, s25"); k("s_lshl_b32 s33, s33, 16")
    k("s_lshl_b32 s25, s21, 11"); k("s_add_u32 s33, s33, s25")
    k(f"s_add_u32 s45, s33, {WS_O}")
    k(f"s_add_u32 s33, s33, {WS_Q}")
    k("s_add_u32 s34, s33, 65536")
    k(f"v_lshrrev_b32 v{vTmp}, 2, v1"); k(f"v_lshrrev_b32 v{T0}, 4, v1"); k(f"v_xor_b32 v{vTmp}, v{vTmp}, v{T0}")
    k(f"v_and_b32 v{vTmp}, 1, v{vTmp}"); k(f"v_cmp_eq_u32 vcc, 0, v{vTmp}")
    k(f"v_mov_b32 v{T0}, 0x3f803f80")
    k(f"v_cndmask_b32 v{ONE}, 0, v{T0}, vcc")
    for r in range(1, 4): k(f"v_mov_b32 v{ONE+r}, v{ONE}")
    for r in range(32): k(f"v_mov_b32 v{NA+r}, 0")
    k("s_mov_b32 s46, 0")
    k("s_lshl_b32 s25, s24, 14")
    k(f"v_add_u32 v{vTmp}, s25, v{vL16}")
    if PFW:
        k("s_lshl_b32 s25, s2, 3"); k("s_add_u32 s25, s25, s20")
        k("s_mul_i32 s26, s25, 3584")
        k(f"v_lshlrev_b32 v198, 6, v1"); k("v_add_u32 v198, s26, v198")
        srd(k, 88, pWO, D * D * 2)
        k(f"s_mov_b64 s[92:93], s[{pWG}:{pWG+1}]"); k(f"s_mov_b64 s[94:95], s[{pWU}:{pWU+1}]"); k(f"s_mov_b64 s[96:97], s[{pWD}:{pWD+1}]")
    WDR, vWDS = 208, 224
    if WDT:
        srd(k, 60, pWD, DF * D * 2)
        k(f"v_lshrrev_b32 v{vWDS}, 3, v1"); k(f"s_mov_b32 s26, {DF*128}"); k(f"v_mul_lo_u32 v{vWDS}, v{vWDS}, s26")
        k(f"v_and_b32 v{vWDS+1}, 7, v1"); k(f"v_lshl_add_u32 v{vWDS}, v{vWDS+1}, 4, v{vWDS}")
        k("s_mul_i32 s98, s2, 14"); k("s_lshl_b32 s26, s20, 1"); k("s_add_u32 s98, s98, s26"); k("s_lshl_b32 s98, s98, 7")
        k(f"s_add_u32 s98, s98, {WS_WDT - 256}"); k(f"s_add_u32 s99, s98, {8*DF*128}")
        k("s_mul_i32 s100, s2, 28672"); k("s_lshl_b32 s26, s20, 12"); k("s_add_u32 s100, s100, s26"); k("s_sub_u32 s100, s100, 4096")
        k("s_cmp_eq_u32 s20, 0"); k(f"s_cselect_b32 s101, 99, {WDA}")
        if WDT == 3: k(f"s_cselect_b32 s101, 99, {hex((-WDA - 1) & 0xffffffff)}")
        if WDT >= 2:
            assert WDA % 2 == 1
            k(f"s_sub_u32 s98, s98, {128 * ((WDA + 1) // 2)}"); k(f"s_mov_b32 s99, {8*DF*128}"); k(f"s_sub_u32 s100, s100, {1024*WDA}")
    if QKS:
        k(f"v_mul_u32_u24 v{T0+1}, {QKS}, v1"); k("s_lshr_b32 s27, s21, 1"); k(f"v_sub_u32 v{T0+1}, s27, v{T0+1}")
        k(f"v_and_b32 v{T0+1}, 15, v{T0+1}"); k(f"v_lshlrev_b32 v{T0+1}, 7, v{T0+1}")
        k(f"s_mov_b32 s27, {WS_CNT + C2*128}")
        wait_multi(k, 27, 16, 3, vt=(T0, T0 + 1))
    else:
        k("s_lshr_b32 s27, s21, 1"); k("s_lshl_b32 s27, s27, 7"); k(f"s_add_u32 s27, s27, {WS_CNT + C2*128}")
        wait(k, 27, 16, vt=(T0, T0 + 1), pr=KF[0])
    k.stamp("p2_wait")
    for kk in range(2):
        k(f"buffer_load_dwordx4 v[{QA+4*kk}:{QA+4*kk+3}], v{vL16}, s[12:15], s33 offen offset:{1024*kk}{SC}")
        k(f"buffer_load_dwordx4 v[{QB+4*kk}:{QB+4*kk+3}], v{vL16}, s[12:15], s34 offen offset:{1024*kk}{SC}")
    def dma_stage():
        k("s_add_u32 m0, s42, s32")
        k(f"buffer_load_dwordx4 v{vL16}, s[12:15], s40 offen{SC} lds")
        k(f"buffer_load_dwordx4 v{vL16}, s[12:15], s40 offen offset:1024{SC} lds")
        k("s_add_u32 m0, m0, 8192")
        k(f"buffer_load_dwordx4 v{vL16}, s[12:15], s41 offen{SC} lds")
        k(f"buffer_load_dwordx4 v{vL16}, s[12:15], s41 offen offset:1024{SC} lds")
        k(f"s_add_u32 s40, s40, {4*65536}")
        k("s_add_u32 s41, s41, 8192")
    lmain = k.lab("p2main"); lloop = k.lab("p2loop"); lfin = k.lab("p2fin"); lfb = k.lab("p2fb"); lend = k.lab("p2end")
    k(f"{lmain}:")
    k("s_mov_b32 s40, s30"); k("s_mov_b32 s41, s31")
    k("s_mov_b32 s42, 0"); dma_stage()
    k(f"s_mov_b32 s42, {STG}"); dma_stage()
    k(f"s_mov_b32 s42, {2*STG}")
    k(f"v_mov_b32 v{vCur}, v{vTmp}")
    k(f"v_add_u32 v{vNxt}, {STG}, v{vTmp}")
    k(f"s_mov_b32 s43, {STG}")
    for r in range(16): k(f"v_mov_b32 v{OA+r}, 0"); k(f"v_mov_b32 v{OB+r}, 0")
    for r in range(4): k(f"v_mov_b32 v{LA+r}, 0"); k(f"v_mov_b32 v{LB+r}, 0")
    for r in range(8): k(f"v_mov_b32 v{PB+r}, 0"); k(f"v_mov_b32 v{VF[1]+r}, 0")
    def wo_ring():
        lnp = k.lab("p2nopf")
        k("s_cmp_lg_u32 s46, 0"); k(f"s_cbranch_scc1 {lnp}")
        for t in range(4):
            for d in w35_dma(vW3, 8, t):
                for l in d: k(l)
            k(W3ADV)
        k(f"{lnp}:")
    if WOPF == 0:
        lnp = k.lab("p2nopf"); lj = k.lab("p2pfj")
        k("s_cmp_lg_u32 s46, 0"); k(f"s_cbranch_scc1 {lnp}")
        for t in range(4):
            for d in w35_dma(vW3, 8, t):
                for l in d: k(l)
            k(W3ADV)
        k("s_waitcnt vmcnt(12)")
        k(f"s_branch {lj}")
        k(f"{lnp}:")
        k("s_waitcnt vmcnt(4)")
        k(f"{lj}:")
    else:
        k("s_waitcnt vmcnt(4)")
    k("s_barrier")
    k.stamp("p2_go")
    if WOPF == 1: wo_ring()
    for kk in range(2):
        k(f"ds_read_b128 v[{KF[0]+4*kk}:{KF[0]+4*kk+3}], v{vCur} offset:{1024*kk}")
    k("s_waitcnt lgkmcnt(0)")
    def qk(Sx, Qx, Nx, kf):
        return [f"v_mfma_f32_32x32x16_bf16 v[{Sx}:{Sx+15}], v[{kf}:{kf+3}], v[{Qx}:{Qx+3}], v[{Nx}:{Nx+15}]",
                f"v_mfma_f32_32x32x16_bf16 v[{Sx}:{Sx+15}], v[{kf+4}:{kf+7}], v[{Qx+4}:{Qx+7}], v[{Sx}:{Sx+15}]"]
    def pv(Ox, Px, Lx, vf):
        return [f"v_mfma_f32_32x32x16_bf16 v[{Ox}:{Ox+15}], v[{vf}:{vf+3}], v[{Px}:{Px+3}], v[{Ox}:{Ox+15}]",
                f"v_mfma_f32_32x32x16_bf16 v[{Ox}:{Ox+15}], v[{vf+4}:{vf+7}], v[{Px+4}:{Px+7}], v[{Ox}:{Ox+15}]",
                f"v_mfma_f32_16x16x32_bf16 v[{Lx}:{Lx+3}], v[{ONE}:{ONE+3}], v[{Px}:{Px+3}], v[{Lx}:{Lx+3}]",
                f"v_mfma_f32_16x16x32_bf16 v[{Lx}:{Lx+3}], v[{ONE}:{ONE+3}], v[{Px+4}:{Px+7}], v[{Lx}:{Lx+3}]"]
    def expv(Sx, Px):
        o = []
        for g in range(4):
            o += [f"v_exp_f32 v{Sx+4*g+r}, v{Sx+4*g+r}" for r in range(4)]
            o += [f"v_cvt_pk_bf16_f32 v{Px+2*g}, v{Sx+4*g}, v{Sx+4*g+1}", f"v_cvt_pk_bf16_f32 v{Px+2*g+1}, v{Sx+4*g+2}, v{Sx+4*g+3}"]
        return o
    def phase(mf, va, extra):
        for i in range(6):
            k(mf[i])
            for (p, l) in extra:
                if p == i: k(l)
            for l in va[4*i:4*i+4]: k(l)
    for l in qk(SA, QA, NA, KF[0]): k(l)
    k("s_mov_b32 s44, 0")
    k(f"{lloop}:")
    for i in range(4):
        cb = i & 1; nb = cb ^ 1
        ex = []
        if i == 3:
            lnd = k.lab("nodma")
            k(f"s_waitcnt vmcnt({1 if PFW and PFI < 3 else 0})")
            k("s_barrier")
            k("s_cmp_ge_u32 s44, 6")
            k(f"s_cbranch_scc1 {lnd}")
            dma_stage()
            k(f"s_add_u32 s42, s42, {STG}")
            k(f"s_cmp_eq_u32 s42, {3*STG}")
            k("s_cselect_b32 s42, 0, s42")
            k(f"{lnd}:")
            if WDT == 1:
                lw = k.lab("nowd"); ls = k.lab("wdst")
                k("s_sub_u32 s27, s44, s101"); k("s_cmp_lt_u32 s27, 2"); k(f"s_cbranch_scc0 {lw}")
                k("s_cmp_eq_u32 s27, 1"); k(f"s_cbranch_scc1 {ls}")
                for q in range(4):
                    k(f"buffer_load_dwordx4 v[{WDR+4*q}:{WDR+4*q+3}], v{vL16}, s[60:63], s100 offen offset:{1024*q}")
                k(f"s_branch {lw}")
                k(f"{ls}:")
                for q in range(4):
                    k(f"buffer_store_dwordx4 v[{WDR+4*q}:{WDR+4*q+3}], v{vWDS}, s[12:15], s{98 + (q & 1)} offen offset:{128*(q>>1)}{SC}")
                k(f"{lw}:")
            if WDT == 2:
                k("s_sub_u32 s27, s44, s101"); k("s_sub_u32 s27, s27, 1")
                k("s_cmp_lt_u32 s27, 4"); k("s_cselect_b64 exec, -1, 0")
                k(f"buffer_store_dwordx4 v[{WDR}:{WDR+3}], v{vWDS}, s[12:15], s98 offen{SC}")
                k("s_add_u32 s27, s27, 1")
                k("s_cmp_lt_u32 s27, 4"); k("s_cselect_b64 exec, -1, 0")
                k(f"buffer_load_dwordx4 v[{WDR}:{WDR+3}], v{vL16}, s[60:63], s100 offen")
                k("s_mov_b64 exec, -1")
                k("s_add_u32 s98, s98, s99"); k("s_sub_u32 s99, 128, s99"); k("s_add_u32 s100, s100, 1024")
        if i == PFI and PFW:
            ex += [(4, "buffer_load_dword v199, v198, s[88:91], 0 offen"),
                   (5, "s_mov_b64 s[88:89], s[92:93]"), (5, "s_mov_b64 s[92:93], s[94:95]"), (5, "s_mov_b64 s[94:95], s[96:97]"),
                   (5, f"s_cmp_lt_u32 s44, {2 if WDT else 3}"), (5, f"s_cselect_b32 s90, {hex(D*DF*2)}, 0")]
        for kk in range(2):
            if i < 3: ex.append((kk, f"ds_read_b128 v[{KF[nb]+4*kk}:{KF[nb]+4*kk+3}], v{vCur} offset:{(i+1)*2048 + 1024*kk}"))
            else:     ex.append((kk, f"ds_read_b128 v[{KF[nb]+4*kk}:{KF[nb]+4*kk+3}], v{vNxt} offset:{1024*kk}"))
        for mm in range(2):
            ex.append((2 + mm, f"ds_read_b128 v[{VF[cb]+4*mm}:{VF[cb]+4*mm+3}], v{vCur} offset:{8192 + i*2048 + 1024*mm}"))
        phase(qk(SB, QB, NB, KF[cb]) + pv(OB, PB, LB, VF[nb]), expv(SA, PA), ex)
        k("s_waitcnt lgkmcnt(0)")
        ex = []
        if i == 3:
            ex = [(0, f"v_mov_b32 v{vCur}, v{vNxt}"), (1, f"s_add_u32 s43, s43, {STG}"), (1, f"s_cmp_eq_u32 s43, {3*STG}"),
                  (2, "s_cselect_b32 s43, 0, s43"), (3, f"v_add_u32 v{vNxt}, s43, v{vTmp}")]
            if WDT == 3:
                p = WDP
                ex += [(p, x) for x in ("s_cmp_lt_u32 s101, 4", "s_cselect_b64 exec, -1, 0",
                       f"buffer_store_dwordx4 v[{WDR}:{WDR+3}], v{vWDS}, s[12:15], s98 offen{SC}",
                       "s_add_u32 s101, s101, 1", "s_cmp_lt_u32 s101, 4", "s_cselect_b64 exec, -1, 0",
                       f"buffer_load_dwordx4 v[{WDR}:{WDR+3}], v{vL16}, s[60:63], s100 offen", "s_mov_b64 exec, -1")]
                ex += [(5, x) for x in ("s_add_u32 s98, s98, s99", "s_sub_u32 s99, 128, s99", "s_add_u32 s100, s100, 1024")]
        phase(qk(SA, QA, NA, KF[nb]) + pv(OA, PA, LA, VF[cb]), expv(SB, PB), ex)
    k("s_add_u32 s44, s44, 1")
    k("s_cmp_lt_u32 s44, 8")
    k(f"s_cbranch_scc1 {lloop}")
    for l in pv(OB, PB, LB, VF[1]): k(l)
    k.stamp("p2_loop")
    if WOPF == 2: wo_ring()
    k("s_nop 7"); k("s_nop 3")
    lns = k.lab("nosw")
    k("s_cmp_eq_u32 s24, 0")
    k(f"s_cbranch_scc1 {lns}")
    for r in range(16): k(f"v_swap_b32 v{OA+r}, v{OB+r}")
    k(f"v_swap_b32 v{LA}, v{LB}")
    k(f"{lns}:")
    k("s_barrier")
    k("s_mul_i32 s25, s20, 5120")
    k(f"v_add_u32 v{T0}, s25, v{vL16}")
    k(f"v_lshlrev_b32 v{T0+1}, 2, v1"); k(f"v_add_u32 v{T0+1}, s25, v{T0+1}")
    for i in range(4): k(f"ds_write_b128 v{T0}, v[{OB+4*i}:{OB+4*i+3}] offset:{1024*i}")
    k(f"ds_write_b32 v{T0+1}, v{LB} offset:4096")
    k("s_xor_b32 s26, s20, 4"); k("s_mul_i32 s25, s26, 5120")
    k(f"v_add_u32 v{T0}, s25, v{vL16}")
    k(f"v_lshlrev_b32 v{T0+1}, 2, v1"); k(f"v_add_u32 v{T0+1}, s25, v{T0+1}")
    k("s_waitcnt lgkmcnt(0)")
    k("s_barrier")
    for i in range(4): k(f"ds_read_b128 v[{OB+4*i}:{OB+4*i+3}], v{T0} offset:{1024*i}")
    k(f"ds_read_b32 v{LB}, v{T0+1} offset:4096")
    k("s_waitcnt lgkmcnt(0)")
    k(f"v_add_f32 v{LA}, v{LA}, v{LB}")
    for r in range(16): k(f"v_add_f32 v{OA+r}, v{OA+r}, v{OB+r}")
    k("s_cmp_lg_u32 s46, 0")
    k(f"s_cbranch_scc1 {lfin}")
    k(f"v_mov_b32 v{T0+2}, v{LA}")
    for r in range(16): k(f"v_fma_f32 v{T0+2}, v{OA+r}, 0, v{T0+2}")
    k(f"v_mov_b32 v{T0+3}, 0x71800000")
    k(f"v_cmp_le_f32 vcc, 1.0, v{T0+2}")
    k(f"v_cmp_le_f32 s[48:49], v{T0+2}, v{T0+3}")
    k("s_and_b64 vcc, vcc, s[48:49]")
    k("s_cmp_eq_u64 vcc, -1")
    k("s_cselect_b32 s47, 0, 1")
    k(f"v_mov_b32 v{T0+2}, s47")
    k(f"s_lshl_b32 s25, s20, 2"); k(f"v_mov_b32 v{T0+3}, s25")
    k(f"ds_write_b32 v{T0+3}, v{T0+2} offset:45056")
    k("s_waitcnt lgkmcnt(0)")
    k("s_barrier")
    k(f"v_mov_b32 v{T0+3}, 0")
    k(f"ds_read_b128 v[{T0+4}:{T0+7}], v{T0+3} offset:45056")
    k(f"ds_read_b128 v[{T0+8}:{T0+11}], v{T0+3} offset:45072")
    k("s_waitcnt lgkmcnt(0)")
    k(f"v_or3_b32 v{T0+4}, v{T0+4}, v{T0+5}, v{T0+6}")
    k(f"v_or3_b32 v{T0+8}, v{T0+8}, v{T0+9}, v{T0+10}")
    k(f"v_or3_b32 v{T0+4}, v{T0+4}, v{T0+7}, v{T0+11}")
    k(f"v_or_b32 v{T0+4}, v{T0+4}, v{T0+8}")
    k(f"v_readfirstlane_b32 s47, v{T0+4}")
    k("s_cmp_lg_u32 s47, 0")
    k(f"s_cbranch_scc1 {lfb}")
    k(f"{lfin}:")
    k(f"v_rcp_f32 v{LA}, v{LA}")
    for g in range(4):
        for r in range(4): k(f"v_mul_f32 v{OA+4*g+r}, v{OA+4*g+r}, v{LA}")
        k(f"v_cvt_pk_bf16_f32 v{SA+2*g}, v{OA+4*g}, v{OA+4*g+1}")
        k(f"v_cvt_pk_bf16_f32 v{SA+2*g+1}, v{OA+4*g+2}, v{OA+4*g+3}")
    k("s_lshl_b32 s25, s24, 16"); k("s_add_u32 s45, s45, s25")
    for p in range(2):
        k(f"v_permlane32_swap_b32 v{SA+4*p}, v{SA+4*p+2}")
        k(f"v_permlane32_swap_b32 v{SA+4*p+1}, v{SA+4*p+3}")
        k(f"buffer_store_dwordx4 v[{SA+4*p}:{SA+4*p+3}], v{vL16}, s[12:15], s45 offen offset:{1024*p}{SC}")
    k(f"s_branch {lend}")
    k(f"{lfb}:")
    k("s_mov_b32 s46, 1")
    if WDT: k("s_mov_b32 s101, 99")
    k("s_barrier")
    MA, MB = T0 + 2, T0 + 3
    k(f"v_mov_b32 v{MA}, 0xff800000"); k(f"v_mov_b32 v{MB}, 0xff800000")
    k("s_lshl_b32 s40, s24, 21"); k("s_lshl_b32 s25, s21, 11"); k("s_add_u32 s40, s40, s25"); k(f"s_add_u32 s40, s40, {WS_K}")
    k("s_mov_b32 s44, 0")
    lfl = k.lab("p2fbl")
    k(f"{lfl}:")
    for kk in range(2):
        k(f"buffer_load_dwordx4 v[{KF[0]+4*kk}:{KF[0]+4*kk+3}], v{vL16}, s[12:15], s40 offen offset:{1024*kk}{SC}")
    k("s_waitcnt vmcnt(0)")
    for (Sx, Qx) in ((SA, QA), (SB, QB)):
        k(f"v_mfma_f32_32x32x16_bf16 v[{Sx}:{Sx+15}], v[{KF[0]}:{KF[0]+3}], v[{Qx}:{Qx+3}], 0")
        k(f"v_mfma_f32_32x32x16_bf16 v[{Sx}:{Sx+15}], v[{KF[0]+4}:{KF[0]+7}], v[{Qx+4}:{Qx+7}], v[{Sx}:{Sx+15}]")
    for (Sx, Mx) in ((SA, MA), (SB, MB)):
        for r in range(0, 16, 2): k(f"v_max3_f32 v{Mx}, v{Mx}, v{Sx+r}, v{Sx+r+1}")
    k("s_add_u32 s40, s40, 65536")
    k("s_add_u32 s44, s44, 1")
    k("s_cmp_lt_u32 s44, 32")
    k(f"s_cbranch_scc1 {lfl}")
    for Mx in (MA, MB):
        k(f"v_mov_b32 v{T0+4}, v{Mx}")
        k(f"v_permlane32_swap_b32 v{Mx}, v{T0+4}")
        k(f"v_max_f32 v{Mx}, v{Mx}, v{T0+4}")
    k("s_lshl_b32 s25, s20, 9")
    k(f"v_lshlrev_b32 v{T0+4}, 3, v1"); k(f"v_add_u32 v{T0+5}, s25, v{T0+4}")
    k(f"ds_write_b64 v{T0+5}, v[{MA}:{MB}]")
    k("s_xor_b32 s26, s20, 4"); k("s_lshl_b32 s25, s26, 9")
    k(f"v_add_u32 v{T0+5}, s25, v{T0+4}")
    k("s_waitcnt lgkmcnt(0)")
    k("s_barrier")
    k(f"ds_read_b64 v[{T0+6}:{T0+7}], v{T0+5}")
    k("s_waitcnt lgkmcnt(0)")
    k(f"v_max_f32 v{MA}, v{MA}, v{T0+6}")
    k(f"v_max_f32 v{MB}, v{MB}, v{T0+7}")
    for r in range(16):
        k(f"v_sub_f32 v{NA+r}, 0, v{MA}")
        k(f"v_sub_f32 v{NB+r}, 0, v{MB}")
    k("s_barrier")
    k(f"s_branch {lmain}")
    k(f"{lend}:")
    k.stamp("p2_epi")
    k("s_lshl_b32 s27, s22, 7"); k(f"s_add_u32 s27, s27, {WS_CNT + C3*128}")
    signal(k, 27, vt=(T0, T0 + 1))
    k.stamp("p2_sig")

SLOT4 = 30720; UOFF = 7168; BOFF4 = 14336
RMOFF = 75776; XMOFF = 83968; HKOFF = 147456
vPW = 202
vW5 = [240, 241]
NPF5 = int(os.environ.get("NPF5", "3"))
NS5 = int(os.environ.get("NS5", "5")); R3 = int(os.environ.get("R3", "4")); R5 = int(os.environ.get("R5", "6"))
def w4_piece_lane(k, vdst, vidx, t):
    k(f"v_mul_u32_u24 v{t}, 4682, v{vidx}"); k(f"v_lshrrev_b32 v{t}, 16, v{t}")
    k(f"v_mul_u32_u24 v{t+1}, 14, v{t}"); k(f"v_sub_u32 v{t+1}, v{vidx}, v{t+1}")
    k(f"v_and_b32 v{t+2}, 0x33, v{t}")
    k(f"v_bfe_u32 v{vidx}, v{t}, 2, 1"); k(f"v_lshl_add_u32 v{t+2}, v{vidx}, 3, v{t+2}")
    k(f"v_bfe_u32 v{vidx}, v{t}, 3, 1"); k(f"v_lshl_add_u32 v{t+2}, v{vidx}, 2, v{t+2}")
    k(f"v_mul_u32_u24 v{t+2}, 7168, v{t+2}")
    k(f"v_lshl_add_u32 v{vdst}, v{t+1}, 4, v{t+2}")
def coords4(k, stb, scb, st):
    k("s_and_b32 s21, s2, 7"); k("s_lshr_b32 s22, s2, 3")
    k(f"s_and_b32 s{stb}, s21, 1"); k(f"s_lshl_b32 s{stb}, s{stb}, 2"); k(f"s_and_b32 s{st}, s22, 3"); k(f"s_add_u32 s{stb}, s{stb}, s{st}")
    k(f"s_lshr_b32 s{scb}, s21, 1"); k(f"s_lshl_b32 s{scb}, s{scb}, 3"); k(f"s_lshr_b32 s{st}, s22, 2"); k(f"s_add_u32 s{scb}, s{scb}, s{st}")
def pf4_setup(k, t):
    coords4(k, 27, 29, 28)
    k("s_mul_i32 s40, s29, 224")
    k("s_min_u32 s27, s20, 6"); k("s_lshl_b32 s42, s27, 10"); k("s_lshl_b32 s27, s27, 6")
    k(f"v_add_u32 v{t+3}, s27, v1")
    w4_piece_lane(k, vPW, t + 3, t)
    srd(k, 52, pWG, D * DF * 2); srd(k, 56, pWU, D * DF * 2)
def pf4(tile):
    o = []
    for m in range(2):
        g = []
        if m == 0: g.append(f"s_add_u32 s41, s40, {tile*32*7168}")
        g += [f"s_add_u32 m0, s42, {tile*SLOT4 + m*UOFF}", f"buffer_load_dwordx4 v{vPW}, s[{52+4*m}:{55+4*m}], s41 offen lds"]
        o.append(g)
    return o

def phase35(k, kind):
    wo = kind == "wo"
    KD = D if wo else DF
    NT = KD // 128
    NS = 4 if wo else NS5
    R = R3 if wo else R5
    WSB = WS_O if wo else WS_HM
    T32B = KD * 64
    base = W3BASE if wo else 0
    vW = vW3 if wo else vW5
    WADV = W3ADV if wo else W5ADV
    SW = 8 if wo else SW5
    vA = [2, 3, 4, 5]; vBj = [6, 7]; vR = 10; vO = 11; vT = 12; vRM = 8; vHK = 9
    RES = 16; A = [24, 40]; ACC = 56; ACM = 88; RMF = [96, 100]; BR = 104
    MX = 15
    acc = lambda i, j: ACC + (j * 4 + i) * 4
    pre = "p3" if wo else "p5"
    coords35(k, 23, 24, 25)
    k("s_and_b32 s25, s20, 3")
    k("s_lshr_b32 s26, s20, 2")
    k("s_lshl_b32 s31, s23, 2"); k("s_add_u32 s31, s31, s25"); k(f"s_mul_i32 s31, s31, {T32B}")
    k("s_lshl_b32 s28, s26, 12"); k("s_add_u32 s31, s31, s28"); k(f"s_add_u32 s31, s31, {WSB}")
    k(f"v_lshrrev_b32 v{vT}, 4, v1"); k(f"v_and_b32 v{vT+1}, 15, v1")
    k(f"v_lshlrev_b32 v{vT+2}, 4, v{vT+1}"); k(f"v_lshl_add_u32 v{vT+2}, v{vT}, 9, v{vT+2}")
    k("s_lshl_b32 s28, s26, 8")
    k(f"v_add_u32 v{vBj[0]}, s28, v{vT+2}")
    k(f"v_xor_b32 v{vBj[1]}, 256, v{vBj[0]}")
    k(f"v_and_b32 v{vT+2}, 1, v{vT}"); k(f"v_lshlrev_b32 v{vT+2}, 1, v{vT+2}"); k(f"v_lshrrev_b32 v{vT+3}, 1, v{vT}")
    k(f"v_add_u32 v{vT+2}, v{vT+2}, v{vT+3}")
    rm = vR if wo else vO
    k(f"v_lshlrev_b32 v{rm}, 11, v{vT+1}"); k(f"v_lshl_add_u32 v{rm}, v{vT+2}, 4, v{rm}")
    k("s_lshl_b32 s33, s23, 2"); k("s_add_u32 s33, s33, s25"); k("s_lshl_b32 s33, s33, 1"); k("s_add_u32 s33, s33, s26")
    k("s_lshl_b32 s35, s33, 4")
    k("s_lshl_b32 s33, s33, 15"); k("s_lshl_b32 s28, s24, 7"); k("s_add_u32 s33, s33, s28")
    if wo:
        k(f"v_lshlrev_b32 v{vO}, 9, v{vT+2}"); k(f"v_lshl_add_u32 v{vO}, v{vT+1}, 4, v{vO}")
        k("s_lshl_b32 s34, s23, 2"); k("s_add_u32 s34, s34, s25"); k("s_lshl_b32 s34, s34, 16")
        k("s_lshl_b32 s28, s24, 12"); k("s_add_u32 s34, s34, s28"); k("s_lshl_b32 s28, s26, 8"); k("s_add_u32 s34, s34, s28")
        k(f"s_add_u32 s34, s34, {WS_H}")
        k("s_lshl_b32 s28, s20, 10"); k(f"s_add_u32 s28, s28, {RMOFF}")
        k(f"v_lshl_add_u32 v{vRM}, v{vT}, 4, s28")
    k("s_lshl_b32 s28, s20, 11"); k(f"s_add_u32 s28, s28, {HKOFF}")
    k(f"v_lshl_add_u32 v{vHK}, v1, 4, s28")
    k(f"v_bfe_u32 v{vT+1}, v1, 2, 2")
    k(f"v_lshrrev_b32 v{vT+2}, 1, v{vT}"); k(f"v_and_b32 v{vT+3}, 1, v{vT}")
    k(f"v_lshlrev_b32 v{vT+2}, 4, v{vT+2}"); k(f"v_lshl_add_u32 v{vT+2}, v{vT+3}, 2, v{vT+2}")
    k(f"v_add_u32 v{vT+2}, v{vT+2}, v{vT+1}"); k(f"v_lshlrev_b32 v{vT+2}, 7, v{vT+2}")
    k(f"v_lshrrev_b32 v{vT+1}, 1, v{vT+1}"); k(f"v_lshl_add_u32 v{vT+1}, v{vT+3}, 1, v{vT+1}")
    k(f"v_and_b32 v{vT+3}, 3, v1"); k(f"v_lshl_add_u32 v{vT+2}, v{vT+3}, 3, v{vT+2}")
    k("s_lshl_b32 s28, s26, 13")
    if base: k(f"s_add_u32 s28, s28, {base}")
    k(f"v_add_u32 v{vT+2}, s28, v{vT+2}")
    for i in range(4):
        k(f"v_xor_b32 v{vT+3}, {i}, v{vT+1}")
        k(f"v_lshl_add_u32 v{vA[i]}, v{vT+3}, 5, v{vT+2}")
    hiA = NS * 16384 > 65536
    vA2 = [204, 205, 206, 207]
    if hiA:
        for i in range(4): k(f"v_add_u32 v{vA2[i]}, 65536, v{vA[i]}")
    srd(k, 16, pX if wo else pOUT, MB4)
    if not wo and OT == 1:
        k(f"buffer_load_dword v{RES}, v{vO}, s[16:19], s33 offen")
    for r in range(ACC, ACC + (40 if wo else 32)): k(f"v_mov_b32 v{r}, 0")
    if wo:
        pf4_setup(k, vT)
        k(f"v_lshrrev_b32 v{vT}, 3, v1"); k(f"v_and_b32 v{vT+1}, 7, v1"); k(f"v_lshlrev_b32 v{vT+1}, 4, v{vT+1}")
        k(f"v_lshl_add_u32 v{vT+1}, v{vT}, 8, v{vT+1}"); k("s_lshl_b32 s28, s26, 7"); k(f"v_add_u32 v{vT+1}, s28, v{vT+1}")
        k(f"v_and_b32 v{vT+2}, 15, v1"); k(f"v_lshlrev_b32 v{vT+2}, 2, v{vT+2}")
    vm = VM()
    if not wo:
        for t in range(NPF5, NS):
            for d in w35_dma(vW, SW, t):
                for l in d: k(l)
            k(WADV); vm.issue(("W", t), 2)
    k("s_lshr_b32 s27, s23, 1"); k("s_lshl_b32 s27, s27, 7"); k(f"s_add_u32 s27, s27, {WS_CNT + (C3 if wo else C5)*128}")
    wait(k, 27, 32, vt=(RES, RES + 1), pr=A[1])
    k.stamp(pre + "_wait")
    NSTEP = 2 * NT
    def bld(s):
        b = BR + (s % R) * 8
        return [f"buffer_load_dwordx4 v[{b+4*j}:{b+4*j+3}], v{vBj[j]}, s[12:15], s31 offen{SC}" for j in range(2)]
    def badv(s): return f"s_add_u32 s31, s31, {2048 if s % 2 == 0 else 6144}"
    if wo:
        k("s_lshl_b32 s28, s20, 10"); k(f"s_add_u32 m0, s28, {RMOFF}")
        k(f"s_mov_b32 s28, {WS_RM}")
        k(f"buffer_load_dwordx4 v{vT+1}, s[12:15], s28 offen{SC} lds"); vm.issue("RM")
    for s in range(R):
        for l in bld(s): k(l); vm.issue(("B", s))
        k(badv(s))
    if wo:
        for p in range(2):
            k(f"buffer_load_dwordx4 v[{RES+4*p}:{RES+4*p+3}], v{vR}, s[16:19], s33 offen offset:{64*p}"); vm.issue("res")
        k("s_lshl_b32 s28, s35, 2"); k(f"s_add_u32 s28, s28, {WS_MX}")
        k(f"buffer_load_dword v{MX}, v{vT+2}, s[12:15], s28 offen{SC}"); vm.issue("res")
    def areads(s, buf):
        t = s // 2; sl = t % NS
        va = vA if sl < 4 else vA2
        o = [f"ds_read_b64_tr_b16 v[{A[buf]+4*i+2*tt}:{A[buf]+4*i+2*tt+1}], v{va[i]} offset:{(sl & 3)*16384 + (s&1)*4096 + tt*1024}"
             for i in range(4) for tt in range(2)]
        return o
    def rmread(s, buf): return f"ds_read_b128 v[{RMF[buf]}:{RMF[buf]+3}], v{vRM} offset:{(s >> 1)*128 + (s & 1)*64}"
    for l in areads(0, 0): k(l)
    if wo:
        k(f"s_waitcnt vmcnt({vm.cnt({'RM'})})")
        k(rmread(0, 0))
    k.stamp(pre + "_go")
    texts = []
    for per in range((NT + NS - 1) // NS):
        o = []
        for s in range(per * 2 * NS, min((per + 1) * 2 * NS, NSTEP)):
            t = s // 2; cur = s & 1; nxt = cur ^ 1
            need = {("B", s)}
            if s & 1 and t + 1 < NT: need.add(("W", t + 1))
            n = vm.cnt(need)
            o.append(f"s_waitcnt vmcnt({min(n, 63)}) lgkmcnt(0)")
            rd = []; dm = []
            if s & 1:
                if t + 1 < NT:
                    o.append("s_barrier"); rd = areads(s + 1, nxt)
                if t + NS < NT: dm = w35_dma(vW, SW, t % NS)
            else:
                rd = areads(s + 1, nxt)
            if wo and s + 1 < NSTEP: rd = rd + [rmread(s + 1, nxt)]
            mf = []
            b = BR + (s % R) * 8
            for i in range(4):
                for j in range(2):
                    a = acc(i, j)
                    mf.append(f"v_mfma_f32_16x16x32_bf16 v[{a}:{a+3}], v[{A[cur]+4*i}:{A[cur]+4*i+3}], v[{b+4*j}:{b+4*j+3}], v[{a}:{a+3}]")
            if wo:
                for j in range(2):
                    a = ACM + 4 * j
                    mf.append(f"v_mfma_f32_16x16x32_bf16 v[{a}:{a+3}], v[{RMF[cur]}:{RMF[cur]+3}], v[{b+4*j}:{b+4*j+3}], v[{a}:{a+3}]")
            gaps = [[] for _ in mf]
            for q, r in enumerate(rd): gaps[min(q, len(mf) - 1)].append(r)
            if dm:
                gaps[0].append(dm[0][0]); gaps[1].append(dm[0][1]); gaps[2].append(dm[1][0]); gaps[3].append(dm[1][1]); gaps[4].append(WADV)
                vm.issue(("W", t + NS), 2)
            if s + R < NSTEP:
                gaps[len(mf) - 1] += bld(s + R) + [badv(s + R)]
                vm.issue(("B", s + R), 2)
            if wo and s == NSTEP - R:
                q = 0
                for tl in range(3):
                    for g in pf4(tl):
                        gaps[min(q, len(mf) - 1)] += g; q += 1
                        vm.issue("PF")
            for g, mm in enumerate(mf):
                o.append(mm); o += gaps[g]
        texts.append(o)
    periods(k, pre + "loop", texts, 36)
    k.stamp(pre + "_loop")
    if wo:
        k("s_and_b32 s27, s20, 3"); k("s_lshl_b32 s27, s27, 12"); k(f"s_mul_i32 s28, s26, {SLOT4}"); k("s_add_u32 s27, s27, s28"); k(f"s_add_u32 s27, s27, {BOFF4}")
        k(f"v_lshlrev_b32 v{vT}, 4, v1"); k(f"v_add_u32 v{vT+1}, s27, v{vT}")
        k("s_and_b32 s27, s20, 3"); k("s_lshl_b32 s27, s27, 12"); k("s_xor_b32 s28, s26, 1"); k(f"s_mul_i32 s28, s28, {SLOT4}"); k("s_add_u32 s27, s27, s28"); k(f"s_add_u32 s27, s27, {BOFF4}")
        k(f"v_add_u32 v{vT+2}, s27, v{vT}")
        k("s_lshl_b32 s27, s20, 8"); k(f"s_add_u32 s27, s27, {XMOFF}")
        k(f"v_lshl_add_u32 v{vRM}, v1, 2, s27")
        k(f"ds_write_b32 v{vRM}, v{ACM+4}")
        k(f"v_xor_b32 v{vRM}, 1024, v{vRM}")
    else:
        XCH = 98304
        k("s_lshl_b32 s27, s20, 12"); k(f"s_add_u32 s27, s27, {XCH}")
        k(f"v_lshlrev_b32 v{vT}, 4, v1"); k(f"v_add_u32 v{vT+1}, s27, v{vT}")
        k("s_lshl_b32 s27, s20, 12"); k("s_xor_b32 s27, s27, 16384"); k(f"s_add_u32 s27, s27, {XCH}"); k(f"v_add_u32 v{vT+2}, s27, v{vT}")
    for i in range(4): k(f"ds_write_b128 v{vT+1}, v[{acc(i,1)}:{acc(i,1)+3}] offset:{1024*i}")
    k("s_waitcnt lgkmcnt(0)")
    k("s_barrier")
    for i in range(4): k(f"ds_read_b128 v[{acc(i,1)}:{acc(i,1)+3}], v{vT+2} offset:{1024*i}")
    if wo:
        k(f"ds_read_b32 v{ACM+4}, v{vRM}")
        for g in pf4(3):
            for l in g: k(l)
    else:
        for p in range(2): k(f"ds_read_b128 v[{RES+4*p}:{RES+4*p+3}], v{vHK} offset:{1024*p}")
    k("s_waitcnt lgkmcnt(0)")
    def padd(d, a, b, bc=False):
        if wo:
            k(f"v_add_f32 v{d}, v{a}, v{b}"); k(f"v_add_f32 v{d+1}, v{a+1}, v{b if bc else b+1}")
        else: k(f"v_pk_add_f32 v[{d}:{d+1}], v[{a}:{a+1}], v[{b}:{b+1}]")
    for i in range(4):
        for r in range(0, 4, 2): padd(acc(i,0)+r, acc(i,0)+r, acc(i,1)+r)
    for p in range(2):
        for r in range(4): k(f"v_permlane16_swap_b32 v{acc(2*p,0)+r}, v{acc(2*p+1,0)+r}")
    U = A[0]
    k(f"v_mov_b32 v{vT+3 if not wo else vT}, 0xffff0000")
    vMask = vT + 3 if not wo else vT
    if wo:
        k("s_waitcnt vmcnt(8)")
        k(f"v_add_f32 v{ACM}, v{ACM}, v{ACM+4}")
        k(f"v_add_f32 v{ACM}, v{ACM}, v{MX}")
        k(f"v_sub_f32 v{ACM}, 0, v{ACM}")
    for p in range(2):
        for q in range(4):
            a = acc(2 * p, 0) + 2 * q
            k(f"v_lshlrev_b32 v{U+2*q}, 16, v{RES+4*p+q}")
            k(f"v_and_b32 v{U+2*q+1}, v{vMask}, v{RES+4*p+q}")
        for q in range(4):
            a = acc(2 * p, 0) + 2 * q
            padd(a, a, U+2*q)
        for q in range(4):
            a = acc(2 * p, 0) + 2 * q
            k(f"v_cvt_pk_bf16_f32 v{RES+4*p+q}, v{a}, v{a+1}")
        if wo:
            k(f"ds_write_b128 v{vHK}, v[{RES+4*p}:{RES+4*p+3}] offset:{1024*p}")
            HC = U + 8 + 4 * p
            for q in range(4):
                a = acc(2 * p, 0) + 2 * q
                padd(a, a, ACM, True)
            for q in range(4):
                a = acc(2 * p, 0) + 2 * q
                k(f"v_cvt_pk_bf16_f32 v{HC+q}, v{a}, v{a+1}")
            k(f"buffer_store_dwordx4 v[{HC}:{HC+3}], v{vO}, s[12:15], s34 offen offset:{2048*p}{SC}")
        else:
            k(f"buffer_store_dwordx4 v[{RES+4*p}:{RES+4*p+3}], v{vO}, s[16:19], s33 offen offset:{64*p}{OUTSC}")
    if wo:
        s1 = U
        a0 = acc(0, 0)
        for r in range(4): k(f"v_mul_f32 v{s1+r}, v{a0+r}, v{a0+r}")
        for r in range(4, 16): k(f"v_fma_f32 v{s1+(r&3)}, v{a0+r}, v{a0+r}, v{s1+(r&3)}")
        k(f"v_add_f32 v{s1}, v{s1}, v{s1+1}"); k(f"v_add_f32 v{s1+2}, v{s1+2}, v{s1+3}"); k(f"v_add_f32 v{s1}, v{s1}, v{s1+2}")
        for sw in ("v_permlane16_swap_b32", "v_permlane32_swap_b32"):
            k(f"v_mov_b32 v{s1+2}, v{s1}"); k(f"{sw} v{s1}, v{s1+2}"); k(f"v_add_f32 v{s1}, v{s1}, v{s1+2}")
        k(f"v_and_b32 v{vT}, 15, v1"); k(f"v_lshlrev_b32 v{vT}, 2, v{vT}")
        k("s_lshl_b32 s27, s35, 2"); k("s_lshl_b32 s28, s24, 13"); k("s_add_u32 s27, s27, s28"); k(f"s_add_u32 s27, s27, {WS_ST}")
        k("s_mov_b64 exec, 0xffff")
        k(f"buffer_store_dword v{s1}, v{vT}, s[12:15], s27 offen{SC}")
        k("s_mov_b64 exec, -1")
        k.stamp(pre + "_epi")
        k("s_lshr_b32 s27, s23, 1"); k("s_lshl_b32 s27, s27, 7"); k(f"s_add_u32 s27, s27, {WS_CNT + C4*128}")
        k("s_waitcnt lgkmcnt(0)")
        signal(k, 27, vt=(RES, RES + 1))
        k.stamp(pre + "_sig")
    else:
        k.stamp(pre + "_epi")
OUTSC = os.environ.get("OUTSC", "")

KC = 2 * math.sqrt(2 / math.pi) * math.log2(math.e)
X4 = os.environ.get("X4", "drain").split(",")
T4 = int(os.environ.get("T4", "0")); T4S = int(os.environ.get("T4S", "29")); T4P = int(os.environ.get("T4P", "2"))
def phase4(k):
    NS = 4; SLOT = SLOT4; UOFF = 7168; BOFF = BOFF4; STATS = NS * SLOT
    vA = [2, 3]; vB = [4, 5]; vD = [6, 7, 8, 9, 10]; vL16 = 11; vT = 12
    A = [16, 48]; B = [80, 96]; ACC = 112; SV = 242
    acc = lambda fi, m, j: ACC + ((fi * 2 + m) * 4 + j) * 4
    w35_setup(k, vW5, 0, vT, DF if WT5 or WDT else 0)
    if not WDT: srd(k, 60, pWD, DF * D * 2)
    coords4(k, 23, 24, 25)
    k("s_and_b32 s25, s20, 3")
    k("s_lshr_b32 s26, s20, 2")
    k(f"v_lshlrev_b32 v{vL16}, 4, v1")
    k(f"v_lshrrev_b32 v{vT}, 4, v1")
    k(f"v_bfe_u32 v{vT+1}, v1, 2, 2")
    k(f"v_lshrrev_b32 v{vT+2}, 1, v{vT}"); k(f"v_and_b32 v{vT+3}, 1, v{vT}")
    k(f"v_lshlrev_b32 v{vT+2}, 4, v{vT+2}"); k(f"v_lshl_add_u32 v{vT+2}, v{vT+3}, 2, v{vT+2}"); k(f"v_add_u32 v{vT+2}, v{vT+2}, v{vT+1}")
    k(f"v_mul_u32_u24 v{vT+2}, 224, v{vT+2}")
    k(f"v_and_b32 v{vT+3}, 3, v1"); k(f"v_lshl_add_u32 v{vT+2}, v{vT+3}, 3, v{vT+2}")
    k("s_lshl_b32 s27, s26, 7")
    k(f"v_add_u32 v{vA[0]}, s27, v{vT+2}"); k(f"v_add_u32 v{vA[1]}, {2*SLOT}, v{vA[0]}")
    k(f"v_and_b32 v{vT+1}, 15, v1"); k(f"v_lshlrev_b32 v{vT+1}, 4, v{vT+1}"); k(f"v_lshl_add_u32 v{vT+1}, v{vT}, 9, v{vT+1}")
    k("s_lshl_b32 s27, s25, 12"); k(f"s_add_u32 s27, s27, {BOFF}")
    k(f"v_add_u32 v{vB[0]}, s27, v{vT+1}"); k(f"v_add_u32 v{vB[1]}, {2*SLOT}, v{vB[0]}")
    k("s_lshl_b32 s31, s23, 19"); k(f"s_add_u32 s31, s31, {WS_H}")
    k("s_mul_i32 s30, s24, 224"); k(f"s_add_u32 s30, s30, {NS*32*7168}")
    for r in range(ACC, ACC + 128): k(f"v_mov_b32 v{r}, 0")
    k(f"v_and_b32 v{vT}, 1, v0"); k(f"v_lshlrev_b32 v{vT}, 16, v{vT}")
    k(f"v_lshrrev_b32 v{vT+1}, 1, v0"); k(f"v_lshl_add_u32 v{SV+8}, v{vT+1}, 2, v{vT}")
    k(f"v_lshlrev_b32 v{SV+9}, 4, v{vT+1}"); k(f"v_add_u32 v{SV+9}, {STATS}, v{SV+9}")
    k("s_lshl_b32 s37, s23, 10"); k(f"s_add_u32 s37, s37, {WS_ST}")
    k("s_bitcmp1_b32 s25, 1")
    k(f"s_cselect_b32 s4, s{pWU}, s{pWG}"); k(f"s_cselect_b32 s5, s{pWU+1}, s{pWG+1}")
    srd(k, 8, 4, D * DF * 2)
    lsb = k.lab("p4setB"); lsd = k.lab("p4setD")
    k("s_cmp_eq_u32 s26, 0")
    k(f"s_cbranch_scc0 {lsb}")
    for n in range(3):
        k("s_mul_i32 s27, s20, 3"); k(f"s_add_u32 s27, s27, {n}")
        k("s_lshr_b32 s28, s27, 1"); k("s_lshl_b32 s28, s28, 16"); k("s_and_b32 s29, s27, 1"); k("s_lshl_b32 s29, s29, 10"); k("s_add_u32 s28, s28, s29")
        k(f"v_add_u32 v{vD[n]}, s28, v{vL16}")
    k(f"s_mul_i32 s32, s20, 3072"); k(f"s_add_u32 s32, s32, {BOFF}")
    k(f"s_branch {lsd}")
    k(f"{lsb}:")
    k("s_and_b32 s27, s25, 1"); k("s_lshl_b32 s27, s27, 8")
    for q in range(4):
        k(f"v_add_u32 v{vT+3}, {64*q}, v1"); k(f"v_add_u32 v{vT+3}, s27, v{vT+3}")
        w4_piece_lane(k, vD[q], vT + 3, vT)
    k("s_add_u32 s27, s25, 12")
    k("s_lshr_b32 s28, s27, 1"); k("s_lshl_b32 s28, s28, 16"); k("s_and_b32 s29, s27, 1"); k("s_lshl_b32 s29, s29, 10"); k("s_add_u32 s28, s28, s29")
    k(f"v_add_u32 v{vD[4]}, s28, v{vL16}")
    k("s_lshl_b32 s33, s27, 10"); k(f"s_add_u32 s33, s33, {BOFF}")
    k("s_lshr_b32 s32, s25, 1"); k(f"s_mul_i32 s32, s32, {UOFF}"); k("s_and_b32 s27, s25, 1"); k("s_lshl_b32 s27, s27, 12"); k("s_add_u32 s32, s32, s27")
    k(f"{lsd}:")
    k("s_lshl_b32 s27, s23, 3"); k("s_lshl_b32 s28, s25, 1"); k("s_add_u32 s27, s27, s28"); k("s_mul_i32 s27, s27, 448")
    k("s_mul_i32 s28, s24, 14"); k("s_add_u32 s27, s27, s28"); k("s_lshl_b32 s28, s26, 3"); k("s_add_u32 s27, s27, s28")
    k("s_lshl_b32 s27, s27, 9"); k(f"s_add_u32 s34, s27, {WS_HM}"); k(f"s_add_u32 s35, s34, {448*512}")
    if WDT:
        k(f"v_add_u32 v{vT+1}, {C3 - 1}, v1"); k(f"v_lshlrev_b32 v{vT+1}, 7, v{vT+1}")
        k("s_lshl_b32 s27, s23, 7"); k(f"s_add_u32 s27, s27, {C4*128}")
        k("s_nop 0")
        k(f"v_writelane_b32 v{vT+1}, s27, 0")
        k(f"s_mov_b32 s27, {WS_CNT}")
        wait_multi(k, 27, 32, 9, vt=(vT, vT + 1))
    else:
        k("s_lshl_b32 s27, s23, 7"); k(f"s_add_u32 s27, s27, {WS_CNT + C4*128}")
        wait(k, 27, 32, vt=(vT, vT + 1), pr=A[1])
    k.stamp("p4_wait")
    def dma_act(var, slot):
        if var == "A":
            return [[f"s_add_u32 m0, s32, {slot*SLOT + n*1024}", f"buffer_load_dwordx4 v{vD[n]}, s[12:15], s31 offen{SC} lds"] for n in range(3)]
        return [[f"s_add_u32 m0, s33, {slot*SLOT}", f"buffer_load_dwordx4 v{vD[4]}, s[12:15], s31 offen{SC} lds"]]
    def dma_w(var, slot):
        if var == "A": return []
        return [[f"s_add_u32 m0, s32, {slot*SLOT + q*1024}", f"buffer_load_dwordx4 v{vD[q]}, s[8:11], s30 offen lds"] for q in range(4 if var == "B0" else 3)]
    advA = "s_add_u32 s31, s31, 2048"; advW = f"s_add_u32 s30, s30, {32*7168}"
    def stats_calc():
        o = []
        for i in (0, 2, 4, 6): o.append(f"v_add_f32 v{SV+i}, v{SV+i}, v{SV+i+1}")
        o += [f"v_add_f32 v{SV}, v{SV}, v{SV+2}", f"v_add_f32 v{SV+4}, v{SV+4}, v{SV+6}", f"v_add_f32 v{SV}, v{SV}, v{SV+4}",
              "s_nop 1",
              f"v_add_f32_dpp v{SV}, v{SV}, v{SV} quad_perm:[1,0,3,2] row_mask:0xf bank_mask:0xf",
              f"v_mov_b32 v{SV+3}, 0x3a800000", f"v_mov_b32 v{SV+5}, 0x3727c5ac",
              f"v_fma_f32 v{SV+2}, v{SV}, v{SV+3}, v{SV+5}",
              f"v_rsq_f32 v{SV+4}, v{SV+2}",
              f"v_mov_b32 v{SV+3}, 0",
              f"v_mul_f32 v{SV+1}, {f2h(-KC)}, v{SV+4}",
              f"v_mul_f32 v{SV+5}, v{SV+4}, v{SV+4}",
              f"v_mul_f32 v{SV}, {f2h(0.044715)}, v{SV+1}",
              f"v_mul_f32 v{SV}, v{SV}, v{SV+5}",
              f"ds_write_b128 v{SV+9}, v[{SV}:{SV+3}]"]
        return o
    st_idx = {}
    def vstamp(nm):
        if nm in st_idx: k.stamp_at(st_idx[nm])
        else:
            st_idx[nm] = k.nst; k.stamp(nm)
    ljoin = k.lab("p4join")
    def body(var):
        nf = 4 if var == "A" else 3
        first = (var != "A") if T4 == 1 else (var == "A")
        vm = VM()
        for s in range(NS):
            for d in dma_act(var, s):
                for l in d: k(l)
                vm.issue(("D", s))
            k(advA)
        k("s_mov_b32 s28, s37")
        for i in range(8):
            k(f"buffer_load_dword v{SV+i}, v{SV+8}, s[12:15], s28 offen{SC}"); vm.issue("ST")
            if i < 7: k("s_add_u32 s28, s28, 8192")
        def reads(buf, slot):
            base = slot >> 1; so = (slot & 1) * SLOT
            o = []
            def rA(fi, m):
                i = fi * 2 + m
                return [f"ds_read_b64_tr_b16 v[{A[buf]+4*i+2*t}:{A[buf]+4*i+2*t+1}], v{vA[base]} offset:{so + m*UOFF + t*8*224 + fi*32}" for t in range(2)]
            o += rA(0, 0)
            for j in range(4): o.append(f"ds_read_b128 v[{B[buf]+4*j}:{B[buf]+4*j+3}], v{vB[base]} offset:{so + (j>>1)*2048 + (j&1)*256}")
            for i in range(1, 2 * nf): o += rA(i >> 1, i & 1)
            return o
        k(f"s_waitcnt vmcnt({vm.cnt({('D', 0)})})")
        k("s_barrier")
        vstamp("p4_go")
        for l in reads(0, 0): k(l)
        NT = 32
        texts = []
        pf5 = {3: {28: [0], 29: [1, 2]}, 1: {28: [0]}, 0: {}}[NPF5]
        for per in range(NT // NS):
            o = []
            for t in range(per * NS, (per + 1) * NS):
                slot = t % NS; cur = t & 1; nxt = cur ^ 1
                rd = []; dm = []; ex = []
                if T4 and t > T4S and t + 1 < NT:
                    o.append("s_waitcnt lgkmcnt(0)")
                    rd = reads(nxt, (t + 1) % NS)
                elif t + 1 < NT:
                    need = {("D", t + 1)}
                    if T4 and t == T4S: need |= {("D", x) for x in range(t + 1, NT)}
                    if t == 3: need.add("ST")
                    o.append(f"s_waitcnt vmcnt({vm.cnt(need)}) lgkmcnt(0)")
                    o.append("s_barrier")
                    if T4 and t == T4S and first: o.append(f"s_setprio {T4P}")
                    rd = reads(nxt, (t + 1) % NS)
                else:
                    o.append("s_waitcnt lgkmcnt(0)")
                tail = []
                if t + NS < NT:
                    dm = dma_w(var, slot) + dma_act(var, slot)
                    vm.issue(("D", t + NS), len(dm))
                    tail = [advA, advW]
                for tl in pf5.get(t, []):
                    if tl < NS5 and not T4:
                        dm += [list(x) for x in w35_dma(vW5, SW5, tl)]
                        dm[-1].append(W5ADV)
                        vm.issue("PF5", 2)
                    elif tl < NS5 and first:
                        tail = tail + [W5ADV]
                    elif tl < NS5:
                        assert WDT or WT5
                        sg = "add" if var == "A" else "sub"
                        own = [list(x) for x in w35_dma(vW5, SW5, tl)]
                        oth = [[x[0].replace("s51", "s7"), x[1].replace("s50", "s6")] for x in w35_dma(vW5, SW5, tl)]
                        oth[0] = [f"s_{sg}_u32 s6, s50, 8192", f"s_{sg}_u32 s7, s51, 8192"] + oth[0]
                        oth[0] = [oth[0][:3], oth[0][3]]
                        oth[-1].append(W5ADV)
                        dm += own + oth
                        vm.issue("PF5", 4)
                if t == 3: ex = stats_calc()
                mf = []
                for i in range(2 * nf):
                    for j in range(4):
                        a = acc(i >> 1, i & 1, j)
                        mf.append(f"v_mfma_f32_16x16x32_bf16 v[{a}:{a+3}], v[{A[cur]+4*i}:{A[cur]+4*i+3}], v[{B[cur]+4*j}:{B[cur]+4*j+3}], v[{a}:{a+3}]")
                n = len(mf)
                gaps = [[] for _ in mf]
                for q, r in enumerate(rd): gaps[q].append(r)
                if dm:
                    stp = (n - 3) // len(dm)
                    for q, d in enumerate(dm):
                        g = 1 + stp * q
                        if isinstance(d[0], list): gaps[g] += d[0]
                        else: gaps[g].append(d[0])
                        gaps[g + 1] += d[1:]
                    gaps[n - 1] += tail
                elif tail: gaps[n - 1] += tail
                for q, l in enumerate(ex): gaps[min(4 + q, n - 1)].append(l)
                for g, mm in enumerate(mf):
                    o.append(mm); o += gaps[g]
            texts.append(o)
        periods(k, f"p4{var}", texts, 36)
        vstamp("p4_loop")
        ST = 16; TT = 32
        k(f"v_and_b32 v{vT}, 15, v1"); k(f"v_lshlrev_b32 v{vT}, 4, v{vT}")
        k("s_lshl_b32 s27, s25, 10"); k(f"s_add_u32 s27, s27, {STATS}"); k(f"v_add_u32 v{vT}, s27, v{vT}")
        for j in range(4): k(f"ds_read_b128 v[{ST+4*j}:{ST+4*j+3}], v{vT} offset:{256*j}")
        k("s_waitcnt vmcnt(0) lgkmcnt(0)")
        if "drain" in X4: k("s_waitcnt vmcnt(0)"); k("s_barrier")
        if "drain0" in X4: k("s_waitcnt vmcnt(0)")
        if "bar" in X4: k("s_barrier")
        if "adrain" in X4 and var == "A": k("s_waitcnt vmcnt(0)")
        if "bdrain" in X4 and var != "A": k("s_waitcnt vmcnt(0)")
        nopk = ("anopk" in X4 and var == "A") or ("bnopk" in X4 and var != "A")
        def pk(op, d, a, b, c=None, sel=None):
            if not nopk:
                x = f"v_pk_{op}_f32 v[{d}:{d+1}], v[{a}:{a+1}], v[{b}:{b+1}]"
                if c is not None: x += f", v[{c}:{c+1}] " + sel
                k(x); return
            for h in range(2):
                if c is None: k(f"v_mul_f32 v{d+h}, v{a+h}, v{b+h}")
                elif sel.startswith("op_sel:[0,0,1]"): k(f"v_fma_f32 v{d+h}, v{a+h}, v{b}, v{b+1}")
                else: k(f"v_fma_f32 v{d+h}, v{a+h}, v{b}, v{b}")
        for fi in range(nf):
            for p in range(2):
                gi = fi * 2 + p
                PK = TT + 16 + 4 * (gi & 3)
                T = TT + 8 * (gi & 1)
                prs = [(2 * p + jj, h) for jj in range(2) for h in range(2)]
                P = lambda r: f"v[{r}:{r+1}]"
                for q, (j, h) in enumerate(prs):
                    g = acc(fi, 0, j) + 2 * h
                    pk("mul", T+2*q, g, g)
                for q, (j, h) in enumerate(prs):
                    c = ST + 4 * j
                    pk("fma", T+2*q, T+2*q, c, c, "op_sel:[0,0,1] op_sel_hi:[1,0,1]")
                for q, (j, h) in enumerate(prs):
                    g = acc(fi, 0, j) + 2 * h
                    pk("mul", T+2*q, T+2*q, g)
                for q, (j, h) in enumerate(prs):
                    g = acc(fi, 0, j) + 2 * h; u = acc(fi, 1, j) + 2 * h
                    k(f"v_exp_f32 v{T+2*q}, v{T+2*q}"); k(f"v_exp_f32 v{T+2*q+1}, v{T+2*q+1}")
                    pk("mul", u, u, g)
                for q, (j, h) in enumerate(prs):
                    c = ST + 4 * j + 2
                    pk("fma", T+2*q, T+2*q, c, c, "op_sel:[0,0,0] op_sel_hi:[1,0,0]")
                for q, (j, h) in enumerate(prs):
                    k(f"v_rcp_f32 v{T+2*q}, v{T+2*q}"); k(f"v_rcp_f32 v{T+2*q+1}, v{T+2*q+1}")
                for q, (j, h) in enumerate(prs):
                    u = acc(fi, 1, j) + 2 * h
                    pk("mul", u, u, T+2*q)
                for q, (j, h) in enumerate(prs):
                    u = acc(fi, 1, j) + 2 * h
                    k(f"v_cvt_pk_bf16_f32 v{PK+q}, v{u}, v{u+1}")
                k(f"v_permlane16_swap_b32 v{PK}, v{PK+2}")
                k(f"v_permlane16_swap_b32 v{PK+1}, v{PK+3}")
                k(f"buffer_store_dwordx4 v[{PK}:{PK+3}], v{vL16}, s[12:15], s{34+p} offen offset:{1024*fi}{SC}")
        if T4 and first: k("s_setprio 0")
        vstamp("p4_epi")
        if var != "B1": k(f"s_branch {ljoin}")
    lB = k.lab("p4B"); lB1 = k.lab("p4B1")
    k("s_cmp_eq_u32 s26, 0")
    k(f"s_cbranch_scc0 {lB}")
    body("A")
    k(f"{lB}:")
    k("s_bitcmp1_b32 s25, 0")
    k(f"s_cbranch_scc1 {lB1}")
    body("B0")
    k(f"{lB1}:")
    body("B1")
    k(f"{ljoin}:")
    k("s_lshl_b32 s27, s23, 7"); k(f"s_add_u32 s27, s27, {WS_CNT + C5*128}")
    signal(k, 27, vt=(vT, vT + 1))
    k.stamp("p4_sig")

CPF = int(os.environ.get("CPF", "0")); CPFW = int(os.environ.get("CPFW", "0"))
def mk():
    k = G(NAME, nvgpr=256, accum=256, total=256)
    lend = "L_end"
    k("s_cmp_ge_u32 s2, 256")
    k(f"s_cbranch_scc1 {lend}")
    if os.environ.get("SCR"):
        k("s_and_b32 s3, s2, 7"); k("s_lshl_b32 s3, s3, 5"); k("s_lshr_b32 s2, s2, 3"); k("s_or_b32 s2, s2, s3")
    k("s_load_dwordx16 s[64:79], s[0:1], 0")
    k("s_load_dwordx4 s[80:83], s[0:1], 64")
    k("v_and_b32 v1, 63, v0")
    k("v_lshrrev_b32 v2, 6, v0")
    k("s_nop 0")
    k("v_readfirstlane_b32 s20, v2")
    k.stamp("start")
    if CPF:
        k("s_getpc_b64 s[44:45]")
        k("L_cpf_pc:")
        k("s_mov_b32 s46, L_end-L_cpf_pc")
        k("s_mov_b32 s47, 0x20000")
        if CPF == 1:
            lc = k.lab("nocpf")
            k("s_lshr_b32 s3, s2, 3"); k("s_lshl_b32 s3, s3, 11")
            k(f"s_cmp_lg_u32 s20, {CPFW}"); k(f"s_cbranch_scc1 {lc}")
            k("v_lshlrev_b32 v210, 5, v1")
            k("buffer_load_dword v211, v210, s[44:47], s3 offen")
            k(f"{lc}:")
        elif CPF == 2:
            k("v_lshlrev_b32 v210, 6, v0"); k("s_mov_b32 s3, 32768")
            k("buffer_load_dword v211, v210, s[44:47], 0 offen")
            k("buffer_load_dword v212, v210, s[44:47], s3 offen")
        elif CPF == 3:
            k("s_lshr_b32 s3, s2, 3"); k("s_and_b32 s3, s3, 3"); k("s_lshl_b32 s3, s3, 14")
            k("v_lshlrev_b32 v210, 5, v0")
            k("buffer_load_dword v211, v210, s[44:47], s3 offen")
    ldone = "L_done"
    phs = [phase1, phase2, lambda k: phase35(k, "wo"), phase4, lambda k: phase35(k, "down")]
    for i, ph in enumerate(phs[:UPTO]): ph(k)
    if os.environ.get("ENDW"): k("s_waitcnt vmcnt(0)")
    k.stamp("end")
    k.stamp_out()
    k("s_waitcnt vmcnt(0)")
    k(f"{lend}:")
    k("s_endpgm")
    return k, ("mk", 256, 512, LDS_BYTES)

if __name__ == "__main__":
    import sys
    sys.path.insert(0, "gen")
    from build import header
    k, _ = mk()
    o = header()
    o.append(f"; @launch grid=(256,1,1) block=(512,1,1) lds={LDS_BYTES}")
    if STAMP: o.append("; stamps: " + " ".join(k.stnames))
    o.append('.amdgcn_target "amdgcn-amd-amdhsa--gfx950"')
    o.append('.text')
    o.append(k.text())
    o.append('.section .rodata,"a"')
    o.append(k.desc())
    open(sys.argv[1], "w").write("\n".join(o) + "\n")
    print("wrote", sys.argv[1], "instrs", sum(1 for l in k.lines if l.startswith("  ")))
```

```python
from asmlib import K, srd
from common import *
import os, struct, math
STAMP = bool(int(os.environ.get("STAMP", "0")))
UPTO = int(os.environ.get("UPTO", "5"))
NAME = "sequential_preLN__mha_block__glu_gated_geglu__prompt_kernel"
WS_TS = 0x2800000
SC = " sc1"
LDS_BYTES = 163840
pX, pWQKV, pWO, pBX, pWG, pWU, pWD, pOUT, pDBG, pWS = [64 + 2 * i for i in range(10)]
C2, C3, C4, C5 = 0, 16, 24, 32
SPIN_LIMIT = 0x40000
RAMP = int(os.environ.get("RAMP", "1"))
QKS = int(os.environ.get("QKS", "0"))
PFW = int(os.environ.get("PFW", "1")); PFI = int(os.environ.get("PFI", "0"))
JIT = int(os.environ.get("JIT", "0"))
def jit(label, sreg, vdst):
    return [f"s_mov_b32 s{sreg}, {label}-L_cb", f"buffer_load_dword v{vdst}, v252, s[80:83], s{sreg} offen"]
def f2h(x): return hex(struct.unpack('<I', struct.pack('<f', x))[0])

class G(K):
    def __init__(s, *a, **kw):
        super().__init__(*a, **kw); s.nl = 0; s.nst = 0; s.stnames = []
    def lab(s, base):
        s.nl += 1; return f"L_{base}_{s.nl}"
    def stamp(s, nm):
        if not STAMP: return
        i = s.nst; s.nst += 1; s.stnames.append(nm)
        s("s_memrealtime s[84:85]"); s("s_memtime s[86:87]"); s("s_waitcnt lgkmcnt(0)")
        s(f"v_writelane_b32 v255, s84, {i}"); s(f"v_writelane_b32 v254, s86, {i}")
    def stamp_at(s, i):
        if not STAMP: return
        s("s_memrealtime s[84:85]"); s("s_memtime s[86:87]"); s("s_waitcnt lgkmcnt(0)")
        s(f"v_writelane_b32 v255, s84, {i}"); s(f"v_writelane_b32 v254, s86, {i}")
    def stamp_out(s):
        if not STAMP: return
        s("s_lshl_b32 s84, s2, 3"); s("s_add_u32 s84, s84, s20"); s("s_lshl_b32 s84, s84, 9")
        s(f"s_add_u32 s84, s84, {WS_TS}")
        s("v_lshlrev_b32 v253, 2, v1")
        s("buffer_store_dword v255, v253, s[12:15], s84 offen")
        s("buffer_store_dword v254, v253, s[12:15], s84 offen offset:256")
        s("s_waitcnt vmcnt(0)")

class VM:
    def __init__(s): s.q = []; s.c = []
    def issue(s, tag, n=1, certain=True): s.q += [tag] * n; s.c += [certain] * n
    def cnt(s, tags):
        last = -1
        for i, t in enumerate(s.q):
            if t in tags: last = i
        return sum(1 for c in s.c[last + 1:] if c) if last >= 0 else None

def periods(k, name, texts, cnt_sgpr):
    i = 0; n = len(texts)
    while i < n:
        j = i
        while j + 1 < n and texts[j + 1] == texts[i]: j += 1
        rep = j - i + 1
        if rep > 1:
            l = k.lab(name)
            k(f"s_mov_b32 s{cnt_sgpr}, 0")
            k(f"{l}:")
            for x in texts[i]: k(x)
            k(f"s_add_u32 s{cnt_sgpr}, s{cnt_sgpr}, 1")
            k(f"s_cmp_lt_u32 s{cnt_sgpr}, {rep}")
            k(f"s_cbranch_scc1 {l}")
        else:
            for x in texts[i]: k(x)
        i = j + 1

def signal(k, sline, vt=(14, 15)):
    k("s_waitcnt vmcnt(0)")
    k("s_barrier")
    l = k.lab("nosig")
    k("s_cmp_lg_u32 s20, 0"); k(f"s_cbranch_scc1 {l}")
    k("s_mov_b64 exec, 1")
    k(f"v_mov_b32 v{vt[0]}, 1"); k(f"v_mov_b32 v{vt[1]}, 0")
    k(f"buffer_atomic_add v{vt[0]}, v{vt[1]}, s[12:15], s{sline} offen sc1")
    k("s_mov_b64 exec, -1")
    k(f"{l}:")

PD = int(os.environ.get("PD", "1")); PSL = int(os.environ.get("PSL", "6"))
def wait(k, sline, target, vt=(14, 15), pr=None):
    done = k.lab("wdone"); spin = k.lab("wspin")
    k("s_cmp_lg_u32 s20, 0"); k(f"s_cbranch_scc1 {done}")
    k(f"v_mov_b32 v{vt[1]}, 0")
    k("s_mov_b32 s28, 0")
    if PD == 1 or pr is None:
        k(f"{spin}:")
        k(f"buffer_load_dword v{vt[0]}, v{vt[1]}, s[12:15], s{sline} offen sc1")
        k("s_add_u32 s28, s28, 1")
        k("s_waitcnt vmcnt(0)")
        k(f"v_readfirstlane_b32 s29, v{vt[0]}")
        k(f"s_cmp_eq_u32 s29, {target}"); k(f"s_cbranch_scc1 {done}")
        k(f"s_cmp_gt_u32 s28, {SPIN_LIMIT}"); k(f"s_cbranch_scc1 {done}")
        k("s_sleep 1")
        k(f"s_branch {spin}")
    else:
        ld = lambda i: k(f"buffer_load_dword v{pr+i}, v{vt[1]}, s[12:15], s{sline} offen sc1")
        for i in range(PD):
            ld(i)
            if i < PD - 1: k(f"s_sleep {PSL}")
        k(f"{spin}:")
        for i in range(PD):
            k(f"s_waitcnt vmcnt({PD-1})")
            k(f"v_readfirstlane_b32 s29, v{pr+i}")
            k(f"s_cmp_eq_u32 s29, {target}"); k(f"s_cbranch_scc1 {done}")
            ld(i)
        k("s_add_u32 s28, s28, 1")
        k(f"s_cmp_gt_u32 s28, {SPIN_LIMIT}"); k(f"s_cbranch_scc0 {spin}")
    k(f"{done}:")
    k("s_barrier")

def wait_multi(k, sline, target, n, vt):
    done = k.lab("wdone"); spin = k.lab("wspin"); dx = k.lab("wdx")
    k("s_cmp_lg_u32 s20, 0"); k(f"s_cbranch_scc1 {done}")
    k(f"s_mov_b64 exec, {hex((1 << n) - 1)}")
    k("s_mov_b32 s28, 0")
    k(f"{spin}:")
    k(f"buffer_load_dword v{vt[0]}, v{vt[1]}, s[12:15], s{sline} offen sc1")
    k("s_add_u32 s28, s28, 1")
    k("s_waitcnt vmcnt(0)")
    k(f"v_cmp_ne_u32 vcc, {target}, v{vt[0]}")
    k("s_cmp_eq_u64 vcc, 0"); k(f"s_cbranch_scc1 {dx}")
    k(f"s_cmp_gt_u32 s28, {SPIN_LIMIT}"); k(f"s_cbranch_scc1 {dx}")
    k("s_sleep 1")
    k(f"s_branch {spin}")
    k(f"{dx}:")
    k("s_mov_b64 exec, -1")
    k(f"{done}:")
    k("s_barrier")

def wdma_lane(k, vdst, rowbytes, t):
    k(f"v_lshrrev_b32 v{t}, 3, v1"); k(f"v_and_b32 v{t+1}, 7, v1")
    k(f"v_lshrrev_b32 v{t+2}, 2, v{t}"); k(f"v_and_b32 v{t+3}, 3, v{t}")
    k(f"v_lshl_add_u32 v{t+2}, v{t+2}, 3, v{t+3}")
    k(f"v_mul_u32_u24 v{t+2}, {rowbytes}, v{t+2}")
    k(f"v_lshrrev_b32 v{t+3}, 1, v{t+1}"); k(f"v_lshrrev_b32 v{t}, 1, v{t}")
    k(f"v_xor_b32 v{t+3}, v{t+3}, v{t}")
    k(f"v_and_b32 v{t+1}, 1, v{t+1}")
    k(f"v_lshl_add_u32 v{t+3}, v{t+3}, 1, v{t+1}")
    k(f"v_lshl_add_u32 v{vdst}, v{t+3}, 4, v{t+2}")

def phase1(k):
    NS = 4; SLOT = 40960; BOFF = 24576
    ACC = 64
    vA = [2, 3]; vW = [10, 11, 12]; vX = [13, 4]; vL16 = 5; vZ = 6; vP = 7
    A = [16, 28]; B = [40, 112]
    VB = 128; DC = 144; D1 = 156; D2 = 160; ONE = 164; PL = 168
    RMR = 192
    acc = lambda m, j: ACC + (m * 4 + j) * 4
    k("s_and_b32 s21, s2, 7"); k("s_lshr_b32 s22, s2, 3")
    k("s_and_b32 s23, s21, 1"); k("s_lshl_b32 s23, s23, 3"); k("s_and_b32 s24, s22, 7"); k("s_add_u32 s23, s23, s24")
    k("s_lshr_b32 s24, s21, 1"); k("s_lshl_b32 s24, s24, 2"); k("s_lshr_b32 s25, s22, 3"); k("s_add_u32 s24, s24, s25")
    k("s_and_b32 s25, s20, 1")
    k("s_lshr_b32 s26, s20, 1")
    wdma_lane(k, vW[0], 6144, 14)
    if QKS:
        for m in (1, 2):
            k(f"s_add_u32 s27, s24, {m*QKS}"); k("s_and_b32 s27, s27, 15"); k("s_sub_u32 s27, s27, s24")
            k("s_lshl_b32 s27, s27, 7"); k(f"s_add_u32 s27, s27, {2048*m}")
            k(f"v_add_u32 v{vW[m]}, s27, v{vW[0]}")
    else:
        k(f"v_add_u32 v{vW[1]}, 2048, v{vW[0]}")
        k(f"v_add_u32 v{vW[2]}, 4096, v{vW[0]}")
    k("v_lshrrev_b32 v14, 3, v1"); k("v_and_b32 v15, 7, v1")
    k("v_lshrrev_b32 v17, 4, v1")
    k("v_xor_b32 v17, v17, v15")
    k("v_lshlrev_b32 v17, 4, v17")
    k(f"v_lshl_add_u32 v{vX[0]}, v14, 11, v17")
    k(f"v_xor_b32 v{vX[1]}, 64, v{vX[0]}")
    k(f"v_add_u32 v{vX[1]}, {16384 - 1024}, v{vX[1]}")
    k(f"v_lshlrev_b32 v{vL16}, 4, v1")
    k("s_lshr_b32 s27, s20, 2"); k("s_lshl_b32 s27, s27, 5")
    k("s_bfe_u32 s28, s20, 0x10001"); k("s_lshl_b32 s28, s28, 4"); k("s_add_u32 s27, s27, s28")
    k("s_lshl_b32 s28, s25, 2"); k("s_add_u32 s27, s27, s28")
    k("s_mul_i32 s48, s27, 6144"); k("s_lshl_b32 s28, s24, 7"); k("s_add_u32 s48, s48, s28")
    k(f"s_add_u32 s46, s48, {16*64*6144}")
    k("s_lshl_b32 s49, s23, 3"); k("s_add_u32 s49, s49, s20"); k("s_lshl_b32 s49, s49, 15")
    k("s_add_u32 s27, s23, s24"); k("s_and_b32 s27, s27, 15")
    k(f"s_mul_i32 s28, s27, {64*6144}"); k("s_add_u32 s30, s48, s28")
    k("s_lshl_b32 s28, s27, 7"); k("s_add_u32 s31, s49, s28")
    k("s_lshl_b32 s32, s20, 10")
    k("s_lshl_b32 s33, s20, 11"); k(f"s_add_u32 s33, s33, {BOFF}")
    k.stamp("p1_pre")
    k("s_waitcnt lgkmcnt(0)")
    k.stamp("p1_ka")
    srd(k, 8, pWQKV, D * 3 * D * 2)
    srd(k, 12, pWS, WS_SIZE)
    srd(k, 16, pX, MB4)
    def dma(slot):
        o = []
        for m in range(3):
            o.append([f"s_add_u32 m0, s32, {slot*SLOT + m*8192}", f"buffer_load_dwordx4 v{vW[m]}, s[8:11], s30 offen lds"])
        o.append([f"s_add_u32 m0, s33, {slot*SLOT}", f"buffer_load_dwordx4 v{vX[0]}, s[16:19], s31 offen lds"])
        o.append([f"buffer_load_dwordx4 v{vX[1]}, s[16:19], s31 offen offset:1024 lds"])
        return o
    adv = [f"s_add_u32 s30, s30, {64*6144}", "s_add_u32 s31, s31, 128", "s_cmp_eq_u32 s30, s46", "s_cselect_b32 s30, s48, s30", "s_cselect_b32 s31, s49, s31"]
    vm = VM()
    def issue_stage(st):
        for d in dma(st % NS):
            for l in d: k(l)
        for l in adv: k(l)
        vm.issue(("S", st), 5)
    NPRO = 2 if RAMP else NS
    issue_stage(0)
    if not RAMP:
        for st in range(1, NS): issue_stage(st)
    k.stamp("p1_dma")
    srd(k, 88, pWO, D * D * 2)
    k("v_lshlrev_b32 v197, 4, v0")
    k("v_mov_b32 v14, v197")
    l0 = k.lab("noinit")
    k("s_cmp_lg_u32 s2, 0"); k(f"s_cbranch_scc1 {l0}")
    for r in range(4): k(f"v_mov_b32 v{PL+r}, 0")
    k(f"s_mov_b32 s27, {WS_CNT}")
    k(f"buffer_store_dwordx4 v[{PL}:{PL+3}], v14, s[12:15], s27 offen{SC}")
    k(f"{l0}:")
    srd(k, 60, pDBG, 256)
    if JIT:
        k("s_getpc_b64 s[80:81]"); k("L_cb:"); k("s_mov_b32 s82, L_end-L_cb"); k("s_mov_b32 s83, 0x20000")
        k("s_lshr_b32 s27, s2, 3"); k("s_lshl_b32 s27, s27, 3"); k("s_add_u32 s27, s27, s20"); k("s_lshl_b32 s27, s27, 8")
        k("v_and_b32 v252, 3, v1"); k("v_lshlrev_b32 v252, 6, v252"); k("v_add_u32 v252, s27, v252")
    k("v_lshrrev_b32 v14, 4, v1")
    k("v_bfe_u32 v15, v1, 2, 2")
    k("v_lshrrev_b32 v16, 1, v14"); k("v_and_b32 v17, 1, v14")
    k("v_lshlrev_b32 v16, 4, v16"); k("v_lshl_add_u32 v16, v17, 2, v16"); k("v_add_u32 v16, v16, v15")
    k("v_lshlrev_b32 v16, 7, v16")
    k("v_lshrrev_b32 v18, 1, v15"); k("v_lshl_add_u32 v18, v17, 1, v18")
    k("v_xor_b32 v18, s26, v18")
    k("v_lshl_add_u32 v16, v18, 5, v16")
    k("v_and_b32 v18, 3, v1")
    k(f"v_lshl_add_u32 v{vA[0]}, v18, 3, v16")
    k(f"v_add_u32 v{vA[1]}, {2*SLOT}, v{vA[0]}")
    for i in range(1, 4): k(f"v_cmp_eq_u32 s[{48+2*i}:{49+2*i}], {i}, v18")
    if RAMP:
        k("s_barrier")
        issue_stage(1)
    k("v_cmp_eq_u32 s[56:57], v14, v15")
    k("v_and_b32 v15, 15, v1")
    k("v_cmp_eq_u32 s[58:59], 0, v15")
    k("v_lshrrev_b32 v16, 1, v15"); k("v_xor_b32 v16, v16, v14"); k("v_lshlrev_b32 v16, 4, v16")
    k("v_lshl_add_u32 v16, v15, 7, v16")
    k("s_cmp_eq_u32 s25, 0")
    k("s_cselect_b32 s58, s58, 0"); k("s_cselect_b32 s59, s59, 0")
    k("s_lshl_b32 s28, s25, 13"); k(f"s_add_u32 s28, s28, {BOFF}")
    for jj in range(4):
        k(f"s_xor_b32 s27, s26, {jj}"); k("s_lshl_b32 s27, s27, 11"); k("s_add_u32 s27, s27, s28")
        k(f"v_add_u32 v{VB+jj}, s27, v16")
        k(f"v_xor_b32 v{VB+4+jj}, 64, v{VB+jj}")
        k(f"v_add_u32 v{VB+8+jj}, {2*SLOT}, v{VB+jj}")
        k(f"v_add_u32 v{VB+12+jj}, {2*SLOT}, v{VB+4+jj}")
    k(f"v_mov_b32 v{vZ}, 0")
    k("v_lshlrev_b32 v8, 3, v15")
    k("s_lshl_b32 s42, s23, 3"); k("s_lshl_b32 s27, s25, 2"); k("s_add_u32 s42, s42, s27"); k("s_add_u32 s42, s42, s26")
    k("s_lshl_b32 s42, s42, 7"); k("s_lshl_b32 s27, s24, 14"); k("s_add_u32 s42, s42, s27"); k(f"s_add_u32 s42, s42, {WS_ST1}")
    k("v_lshlrev_b32 v9, 4, v14")
    k("s_lshl_b32 s43, s24, 4"); k("s_add_u32 s43, s43, s23"); k("s_mul_i32 s43, s43, 768")
    k("s_lshl_b32 s27, s26, 6"); k("s_add_u32 s43, s43, s27"); k(f"s_add_u32 s43, s43, {WS_CS1}")
    k("v_and_b32 v196, 1, v1"); k("v_lshlrev_b32 v196, 7, v196")
    for r in range(ACC, ACC + 48): k(f"v_mov_b32 v{r}, 0")
    for r in range(DC, DC + 20): k(f"v_mov_b32 v{r}, 0")
    for r in range(4): k(f"v_mov_b32 v{ONE+r}, 0x3f803f80")
    def reads(buf, slot, kb):
        o = []
        pr = slot >> 1; so = (slot & 1) * SLOT
        def rA(m):
            return [f"ds_read_b64_tr_b16 v[{A[buf]+4*m+2*t}:{A[buf]+4*m+2*t+1}], v{vA[pr]} offset:{so + m*8192 + kb*4096 + t*1024}" for t in range(2)]
        def rB(j):
            return [f"ds_read_b128 v[{B[buf]+4*j}:{B[buf]+4*j+3}], v{VB + pr*8 + kb*4 + j} offset:{so}"]
        o += rA(0)
        for j in range(4): o += rB(j)
        o += rA(1) + rA(2)
        return o
    def side(buf):
        o = []
        fb = f"v[{B[buf]}:{B[buf]+3}]"; on = f"v[{ONE}:{ONE+3}]"
        for m in range(3):
            o.append(f"v_mfma_f32_16x16x32_bf16 v[{DC+4*m}:{DC+4*m+3}], v[{A[buf]+4*m}:{A[buf]+4*m+3}], {on}, v[{DC+4*m}:{DC+4*m+3}]")
        o.append(f"v_mfma_f32_16x16x32_bf16 v[{D1}:{D1+3}], {on}, {fb}, v[{D1}:{D1+3}]")
        o.append(f"v_mfma_f32_16x16x32_bf16 v[{D2}:{D2+3}], {fb}, {fb}, v[{D2}:{D2+3}]")
        return o
    def once(lines):
        l = k.lab("once")
        k("s_cmp_lg_u32 s34, 0"); k(f"s_cbranch_scc1 {l}")
        for x in lines: k(x)
        k(f"{l}:")
    def publish():
        o = [f"v_cndmask_b32 v{D2}, v{D2}, v{D2+1}, s[50:51]", f"v_cndmask_b32 v{D2}, v{D2}, v{D2+2}, s[52:53]", f"v_cndmask_b32 v{D2}, v{D2}, v{D2+3}, s[54:55]",
             f"v_mov_b32 v{D1+1}, v{D2}",
             "s_mov_b64 exec, s[56:57]",
             f"buffer_store_dwordx2 v[{D1}:{D1+1}], v8, s[12:15], s42 offen{SC}",
             "s_mov_b64 exec, s[58:59]"]
        for m in range(3):
            o.append(f"buffer_store_dwordx4 v[{DC+4*m}:{DC+4*m+3}], v9, s[12:15], s43 offen offset:{256*m}{SC}")
        o.append("s_mov_b64 exec, -1")
        return o
    def sig1():
        l = k.lab("nosig1")
        return ["s_cmp_lg_u32 s20, 0", f"s_cbranch_scc1 {l}", "s_mov_b64 exec, 1", "v_mov_b32 v14, 1",
                "s_and_b32 s27, s2, 1", "s_lshl_b32 s27, s27, 7",
                f"buffer_atomic_add v14, v{vZ}, s[60:63], s27 offen sc1", "s_mov_b64 exec, -1", f"{l}:"]
    k.stamp("p1_set")
    k(f"s_waitcnt vmcnt({vm.cnt({('S', 0)})})")
    k.stamp("p1_w0")
    k("s_barrier")
    k.stamp("p1_go")
    for l in reads(0, 0, 0): k(l)
    NT = 16
    def sched(t, kb):
        if RAMP and t < 2: return [2, 3, 4, 5][2 * t + kb]
        if kb == 1 and t + NS < NT: return t + NS
        return None
    def step(o, t, kb, side_here=False, pre=None, post=None, extra_need=()):
        cur = kb; nxt = kb ^ 1; last = t == NT - 1
        if kb == 0:
            o.append("s_waitcnt lgkmcnt(0)")
            rd = reads(nxt, t % NS, 1)
        elif last:
            o.append("s_waitcnt lgkmcnt(0)"); rd = []
        else:
            o.append(f"s_waitcnt vmcnt({vm.cnt({('S', t + 1)} | set(extra_need))}) lgkmcnt(0)")
            o.append("s_barrier")
            rd = reads(nxt, (t + 1) % NS, 0)
        st = sched(t, kb)
        dm = dma(st % NS) if st is not None else []
        if pre: pre(o)
        if st is not None: vm.issue(("S", st), 5)
        mf = []
        for m in range(3):
            for j in range(4):
                a = acc(m, j); fa = f"v[{A[cur]+4*m}:{A[cur]+4*m+3}]"; fb = f"v[{B[cur]+4*j}:{B[cur]+4*j+3}]"
                if m == 2: fa, fb = fb, fa
                mf.append(f"v_mfma_f32_16x16x32_bf16 v[{a}:{a+3}], {fa}, {fb}, v[{a}:{a+3}]")
        gaps = [[] for _ in mf]
        for q, r in enumerate(rd): gaps[q].append(r)
        pos = [1, 3, 5, 7, 9]
        for q, d in enumerate(dm):
            if len(d) == 2:
                gaps[pos[q] - 1].append(d[0]); gaps[pos[q]].append(d[1])
            else:
                gaps[pos[q]].append(d[0])
        if dm: gaps[10] += adv
        for g, mm in enumerate(mf):
            o.append(mm); o += gaps[g]
        if side_here: o += side(cur)
        if post: post(o)
    texts = []
    for per in range(3):
        o = []
        for t in range(per * 4, per * 4 + 4):
            step(o, t, 0, side_here=(t == 0))
            if t == 1:
                o += publish(); vm.issue("PUB", 4, certain=False)
            step(o, t, 1, side_here=(t == 0), extra_need=("PUB",) if t == 3 else ())
            if t == 3: o += sig1(); vm.issue("SIG", 1, certain=False)
        texts.append(o)
    periods(k, "p1loop", texts, 34)
    def partial_loads():
        rdy = k.lab("p1rdy"); spin = k.lab("p1spin"); nocs = k.lab("p1nocs")
        k(f"v_cmp_eq_u32 vcc, 128, v{vP}")
        k("s_cmp_eq_u64 vcc, -1")
        k(f"s_cbranch_scc1 {rdy}")
        k("s_mov_b32 s28, 0")
        k(f"{spin}:")
        k("s_add_u32 s28, s28, 1")
        k(f"s_cmp_gt_u32 s28, {SPIN_LIMIT}")
        k(f"s_cbranch_scc1 {rdy}")
        k("s_sleep 2")
        k(f"buffer_load_dword v{vP}, v196, s[60:63], 0 offen sc1")
        k("s_waitcnt vmcnt(0)")
        k(f"v_cmp_eq_u32 vcc, 128, v{vP}")
        k("s_cmp_eq_u64 vcc, -1")
        k(f"s_cbranch_scc0 {spin}")
        k(f"{rdy}:")
        k("v_and_b32 v14, 3, v0"); k("v_lshlrev_b32 v14, 16, v14")
        k("v_lshrrev_b32 v15, 2, v0"); k("v_lshl_add_u32 v14, v15, 3, v14")
        k("s_lshl_b32 s27, s23, 10"); k(f"s_add_u32 s27, s27, {WS_ST1}")
        for i in range(4):
            k(f"buffer_load_dwordx2 v[{PL+2*i}:{PL+2*i+1}], v14, s[12:15], s27 offen{SC}")
            if i < 3: k("s_add_u32 s27, s27, 16384")
        k("s_cmp_ge_u32 s20, 3")
        k(f"s_cbranch_scc1 {nocs}")
        k("v_lshlrev_b32 v14, 2, v0")
        k(f"s_mul_i32 s27, s24, {16*768}"); k(f"s_add_u32 s27, s27, {WS_CS1}")
        for i in range(16):
            k(f"buffer_load_dword v{PL+8+i}, v14, s[12:15], s27 offen offset:{(i % 4) * 768}{SC}")
            if i % 4 == 3 and i < 15: k(f"s_add_u32 s27, s27, {4*768}")
        k(f"{nocs}:")
    class _O:
        def append(self, x): k(x)
        def __iadd__(self, xs):
            for x in xs: k(x)
            return self
    o = _O()
    for t in range(12, 16):
        step(o, t, 0)
        if t == 12:
            k(f"buffer_load_dword v{vP}, v196, s[60:63], 0 offen sc1"); vm.issue("VP")
            k("s_lshl_b32 s27, s2, 13")
            k(f"buffer_load_dwordx4 v[{RMR}:{RMR+3}], v197, s[88:91], s27 offen"); vm.issue("RMR")
            if JIT & 1:
                for l in jit("L_p1tail", 27, 211): k(l)
                vm.issue("CP")
        step(o, t, 1, pre=(lambda o: partial_loads()) if t == 14 else None, extra_need=("VP", "RMR") if t == 14 else ())
    if JIT & 1: k("L_p1tail:")
    k.stamp("p1_loop")
    k("v_mov_b32 v14, 0")
    for r in range(4): k(f"v_dot2c_f32_bf16 v14, v{RMR+r}, v{ONE}")
    for ro in (8, 4, 2, 1): k(f"v_add_f32_dpp v14, v14, v14 row_ror:{ro} row_mask:0xf bank_mask:0xf")
    for sw in ("v_permlane16_swap_b32", "v_permlane32_swap_b32"):
        k("v_mov_b32 v15, v14"); k(f"{sw} v14, v15"); k("v_add_f32 v14, v14, v15")
    k("s_lshl_b32 s27, s20, 2"); k("s_add_u32 s27, s27, 2048"); k("v_mov_b32 v15, s27")
    k("ds_write_b32 v15, v14")
    k("s_waitcnt vmcnt(0)")
    k(f"v_add_f32 v{PL}, v{PL}, v{PL+2}"); k(f"v_add_f32 v{PL+1}, v{PL+1}, v{PL+3}")
    k(f"v_add_f32 v{PL+4}, v{PL+4}, v{PL+6}"); k(f"v_add_f32 v{PL+5}, v{PL+5}, v{PL+7}")
    k(f"v_add_f32 v{PL}, v{PL}, v{PL+4}"); k(f"v_add_f32 v{PL+1}, v{PL+1}, v{PL+5}")
    for qp in ("[1,0,3,2]", "[2,3,0,1]"):
        k(f"v_add_f32_dpp v{PL}, v{PL}, v{PL} quad_perm:{qp} row_mask:0xf bank_mask:0xf")
        k(f"v_add_f32_dpp v{PL+1}, v{PL+1}, v{PL+1} quad_perm:{qp} row_mask:0xf bank_mask:0xf")
    k(f"v_mul_f32 v{PL}, 0x3a800000, v{PL}")
    k(f"v_mul_f32 v{PL+1}, 0x3a800000, v{PL+1}")
    k("v_lshrrev_b32 v16, 2, v0"); k("v_lshlrev_b32 v16, 2, v16")
    lm = k.lab("nomx")
    k("s_cmp_lg_u32 s24, 0"); k(f"s_cbranch_scc1 {lm}")
    k("s_lshl_b32 s27, s23, 9"); k(f"s_add_u32 s27, s27, {WS_MX}")
    k(f"buffer_store_dword v{PL}, v16, s[12:15], s27 offen{SC}")
    k(f"{lm}:")
    k(f"v_fma_f32 v{PL+1}, -v{PL}, v{PL}, v{PL+1}")
    k(f"v_max_f32 v{PL+1}, 0, v{PL+1}")
    k(f"v_add_f32 v{PL+1}, 0x3727c5ac, v{PL+1}")
    k(f"v_rsq_f32 v{PL+1}, v{PL+1}")
    k(f"v_mul_f32 v{PL+2}, v{PL}, v{PL+1}")
    k(f"v_sub_f32 v{PL+2}, 0, v{PL+2}")
    k(f"ds_write_b32 v16, v{PL+1}")
    k(f"ds_write_b32 v16, v{PL+2} offset:512")
    l2 = k.lab("nocs2")
    k("s_cmp_ge_u32 s20, 3")
    k(f"s_cbranch_scc1 {l2}")
    for st in (8, 4, 2, 1):
        for i in range(st): k(f"v_add_f32 v{PL+8+i}, v{PL+8+i}, v{PL+8+i+st}")
    k("v_lshlrev_b32 v16, 2, v0")
    k(f"ds_write_b32 v16, v{PL+8} offset:1024")
    k(f"{l2}:")
    k("v_and_b32 v15, 15, v1")
    k("s_lshl_b32 s27, s25, 8"); k("s_lshl_b32 s28, s26, 6"); k("s_add_u32 s28, s28, s27")
    k("v_lshlrev_b32 v16, 2, v15")
    k("v_add_u32 v17, s28, v16")
    k("v_lshrrev_b32 v14, 4, v1")
    k("v_lshlrev_b32 v19, 4, v14")
    k("v_add_u32 v20, s28, v19")
    k("s_lshl_b32 s29, s26, 6"); k("s_add_u32 s29, s29, 1024")
    k("v_add_u32 v19, s29, v19")
    k("v_add_u32 v18, s29, v16")
    for jj in range(1, 4):
        k(f"v_xor_b32 v{20+jj}, {jj<<6}, v20")
        k(f"v_xor_b32 v{23+jj}, {jj<<6}, v17")
    k("s_lshl_b32 s27, s23, 2"); k("s_lshl_b32 s28, s25, 1"); k("s_add_u32 s27, s27, s28")
    k("s_lshl_b32 s27, s27, 16")
    k("s_lshl_b32 s28, s24, 12"); k("s_add_u32 s27, s27, s28")
    k("s_lshl_b32 s28, s26, 10"); k("s_add_u32 s27, s27, s28")
    k("s_lshr_b32 s42, s26, 1")
    k("s_lshl_b32 s28, s42, 16"); k("s_add_u32 s35, s27, s28")
    k("s_xor_b32 s28, s28, 0x10000"); k("s_add_u32 s37, s27, s28")
    k(f"s_add_u32 s36, s35, {WS_K}"); k(f"s_add_u32 s38, s37, {WS_K}")
    k(f"s_add_u32 s35, s35, {WS_Q}"); k(f"s_add_u32 s37, s37, {WS_Q}")
    if QKS:
        k(f"s_add_u32 s27, s24, {QKS}"); k("s_and_b32 s27, s27, 15"); k("s_sub_u32 s27, s27, s24"); k("s_lshl_b32 s27, s27, 12")
        k("s_add_u32 s36, s36, s27"); k("s_add_u32 s38, s38, s27")
        k(f"s_add_u32 s27, s24, {2*QKS}"); k("s_and_b32 s27, s27, 15"); k("s_lshl_b32 s27, s27, 1")
    else:
        k("s_lshl_b32 s27, s24, 1")
    k("s_add_u32 s27, s27, s42")
    k("s_lshl_b32 s27, s27, 7")
    k("s_lshl_b32 s28, s23, 3"); k("s_add_u32 s27, s27, s28")
    k("s_lshl_b32 s28, s25, 2"); k("s_add_u32 s27, s27, s28")
    k("s_lshl_b32 s27, s27, 10")
    k("s_and_b32 s43, s26, 1")
    k("s_lshl_b32 s28, s43, 8"); k("s_add_u32 s27, s27, s28")
    k(f"s_add_u32 s27, s27, {WS_VT}")
    k("s_lshl_b32 s28, s42, 11"); k("s_add_u32 s39, s27, s28")
    k("s_xor_b32 s28, s28, 2048"); k("s_add_u32 s40, s27, s28")
    k("v_lshrrev_b32 v27, 5, v1"); k("v_xor_b32 v27, s43, v27"); k("v_lshlrev_b32 v27, 10, v27")
    k("v_bfe_u32 v28, v1, 4, 1"); k("v_lshl_add_u32 v27, v28, 9, v27")
    k("v_lshl_add_u32 v14, v15, 4, v27")
    k("s_lshl_b32 s28, s43, 8")
    k(f"v_xor_b32 v{vL16}, s28, v{vL16}")
    k("s_waitcnt lgkmcnt(0)")
    k("s_barrier")
    SQ = 28; CQ = 36
    k(f"ds_read2_b32 v[{SQ}:{SQ+1}], v17 offset0:0 offset1:128")
    for jj in range(1, 4): k(f"ds_read2_b32 v[{SQ+2*jj}:{SQ+2*jj+1}], v{23+jj} offset0:0 offset1:128")
    k(f"ds_read_b128 v[{CQ}:{CQ+3}], v19")
    k(f"ds_read_b128 v[{CQ+4}:{CQ+7}], v19 offset:256")
    k("ds_read_b32 v152, v18 offset:512")
    VS = [112, 120, 128, 136]
    for jj in range(4):
        k(f"ds_read_b128 v[{VS[jj]}:{VS[jj]+3}], v{20+jj}")
        k(f"ds_read_b128 v[{VS[jj]+4}:{VS[jj]+7}], v{20+jj} offset:512")
    l7 = k.lab("norm")
    k("s_cmp_lg_u32 s20, 7"); k(f"s_cbranch_scc1 {l7}")
    k(f"ds_read_b128 v[{PL}:{PL+3}], v{vZ} offset:2048")
    k(f"ds_read_b128 v[{PL+4}:{PL+7}], v{vZ} offset:2064")
    k("s_waitcnt lgkmcnt(0)")
    for r in range(4):
        k(f"v_add_f32 v{PL+2*r}, v{PL+2*r}, v{PL+2*r+1}")
        k(f"v_mul_f32 v{PL+2*r}, 0x3a800000, v{PL+2*r}")
    k(f"v_cvt_pk_bf16_f32 v{PL+8}, v{PL}, v{PL+2}")
    k(f"v_cvt_pk_bf16_f32 v{PL+9}, v{PL+4}, v{PL+6}")
    k("s_lshl_b32 s27, s2, 3"); k(f"s_add_u32 s27, s27, {WS_RM}")
    k("s_mov_b64 exec, 1")
    k(f"buffer_store_dwordx2 v[{PL+8}:{PL+9}], v{vZ}, s[12:15], s27 offen{SC}")
    k("s_mov_b64 exec, -1")
    k(f"{l7}:")
    k("s_mov_b32 s44, 0x3e8293ee")
    k("s_waitcnt lgkmcnt(9)")
    QS = 52
    for jj in range(4):
        k(f"v_mul_f32 v{QS+2*jj}, s44, v{SQ+2*jj}")
        k(f"v_mul_f32 v{QS+2*jj+1}, s44, v{SQ+2*jj+1}")
    TP = [16, 20, 24, 44, 48, 60]
    TM = 144
    ti = 0
    for m in range(3):
        if m == 2: k("s_waitcnt lgkmcnt(0)")
        for p in range(2):
            t = TP[ti]; ti += 1
            for jj2 in range(2):
                jj = 2 * p + jj2
                a = acc(m, jj)
                for h in range(2):
                    tm = TM + 2 * ((jj2 * 2 + h) & 3)
                    if m < 2:
                        st = (QS if m == 0 else SQ) + 2 * jj
                        cs = CQ + 4 * m + 2 * h
                        k(f"v_pk_mul_f32 v[{tm}:{tm+1}], v[{cs}:{cs+1}], v[{st}:{st+1}] op_sel:[0,1] op_sel_hi:[1,1]")
                        k(f"v_pk_fma_f32 v[{a+2*h}:{a+2*h+1}], v[{a+2*h}:{a+2*h+1}], v[{st}:{st+1}], v[{tm}:{tm+1}] op_sel:[0,0,0] op_sel_hi:[1,0,1]")
                    else:
                        rs = VS[jj] + 2 * h; nm = VS[jj] + 4 + 2 * h
                        k(f"v_pk_mul_f32 v[{tm}:{tm+1}], v[{nm}:{nm+1}], v[152:153] op_sel:[0,0] op_sel_hi:[1,0]")
                        k(f"v_pk_fma_f32 v[{a+2*h}:{a+2*h+1}], v[{a+2*h}:{a+2*h+1}], v[{rs}:{rs+1}], v[{tm}:{tm+1}]")
                k(f"v_cvt_pk_bf16_f32 v{t+2*jj2}, v{a}, v{a+1}")
                k(f"v_cvt_pk_bf16_f32 v{t+2*jj2+1}, v{a+2}, v{a+3}")
            sw = "v_permlane16_swap_b32" if m < 2 else "v_permlane32_swap_b32"
            k(f"{sw} v{t}, v{t+2}")
            k(f"{sw} v{t+1}, v{t+3}")
            so = [[35, 37], [36, 38], [39, 40]][m][p]
            k(f"buffer_store_dwordx4 v[{t}:{t+3}], v{vL16 if m < 2 else 14}, s[12:15], s{so} offen{SC}")
    k.stamp("p1_epi")
    k("s_lshl_b32 s27, s24, 7"); k(f"s_add_u32 s27, s27, {WS_CNT + C2*128}")
    signal(k, 27, vt=(30, 31))
    k.stamp("p1_sig")

W3BASE = 98304
vW3 = [200, 201]
C35 = int(os.environ.get("C35", "0"))
def coords35(k, stb, scb, st):
    k("s_and_b32 s21, s2, 7"); k("s_lshr_b32 s22, s2, 3")
    if C35 == 0:
        k(f"s_and_b32 s{stb}, s21, 3"); k(f"s_lshl_b32 s{stb}, s{stb}, 2"); k(f"s_and_b32 s{st}, s22, 3"); k(f"s_add_u32 s{stb}, s{stb}, s{st}")
        k(f"s_lshr_b32 s{scb}, s21, 2"); k(f"s_lshl_b32 s{scb}, s{scb}, 3"); k(f"s_lshr_b32 s{st}, s22, 2"); k(f"s_add_u32 s{scb}, s{scb}, s{st}")
    elif C35 == 2:
        k(f"s_lshl_b32 s{stb}, s21, 1"); k(f"s_lshr_b32 s{st}, s22, 4"); k(f"s_add_u32 s{stb}, s{stb}, s{st}")
        k(f"s_and_b32 s{scb}, s22, 15")
    elif C35 == 3:
        k(f"s_and_b32 s{stb}, s21, 1"); k(f"s_lshl_b32 s{stb}, s{stb}, 3"); k(f"s_lshr_b32 s{st}, s22, 2"); k(f"s_add_u32 s{stb}, s{stb}, s{st}")
        k(f"s_lshr_b32 s{scb}, s21, 1"); k(f"s_lshl_b32 s{scb}, s{scb}, 2"); k(f"s_and_b32 s{st}, s22, 3"); k(f"s_add_u32 s{scb}, s{scb}, s{st}")
    elif C35 == 4:
        k(f"s_and_b32 s{stb}, s21, 3"); k(f"s_lshl_b32 s{stb}, s{stb}, 2"); k(f"s_lshr_b32 s{st}, s22, 3"); k(f"s_add_u32 s{stb}, s{stb}, s{st}")
        k(f"s_lshr_b32 s{scb}, s21, 2"); k(f"s_and_b32 s{st}, s22, 7"); k(f"s_lshl_b32 s{st}, s{st}, 1"); k(f"s_add_u32 s{scb}, s{scb}, s{st}")
    else:
        k(f"s_and_b32 s{stb}, s21, 3"); k(f"s_lshl_b32 s{stb}, s{stb}, 2"); k(f"s_lshr_b32 s{st}, s22, 3"); k(f"s_add_u32 s{stb}, s{stb}, s{st}")
        k(f"s_lshr_b32 s{scb}, s21, 2"); k(f"s_lshl_b32 s{scb}, s{scb}, 3"); k(f"s_and_b32 s{st}, s22, 7"); k(f"s_add_u32 s{scb}, s{scb}, s{st}")
WT3 = int(os.environ.get("WT3", "0")); WT5 = int(os.environ.get("WT5", "0"))
WDT = int(os.environ.get("WDT", "3"))
WS_WDT = 0x3000000
WDA = int(os.environ.get("WDA", "3")); WDP = int(os.environ.get("WDP", "4"))
def w35_setup(k, vW, base, t, tiled=0):
    coords35(k, 27, 29, 28)
    rb = 128 if tiled else 2048
    wdma_lane(k, vW[0], rb, t)
    k(f"v_add_u32 v{vW[1]}, {4*rb}, v{vW[0]}")
    k("s_lshr_b32 s27, s20, 1"); k("s_lshl_b32 s27, s27, 5"); k("s_and_b32 s28, s20, 1"); k("s_lshl_b32 s28, s28, 4")
    k("s_add_u32 s27, s27, s28")
    if tiled:
        k("s_lshl_b32 s50, s27, 7"); k(f"s_mul_i32 s28, s29, {tiled*128}"); k("s_add_u32 s50, s50, s28")
        if WDT and base == 0: k(f"s_add_u32 s50, s50, {WS_WDT}")
    else:
        k("s_lshl_b32 s50, s27, 11"); k("s_lshl_b32 s28, s29, 7"); k("s_add_u32 s50, s50, s28")
        if os.environ.get("WOFF64") and base == 0: k("s_add_u32 s50, s50, 64")
    k("s_lshl_b32 s51, s20, 11")
    if base: k(f"s_add_u32 s51, s51, {base}")
def w35_dma(vW, srdw, slot):
    sc = SC if srdw == 12 else ""
    return [[f"s_add_u32 m0, s51, {slot*16384}", f"buffer_load_dwordx4 v{vW[0]}, s[{srdw}:{srdw+3}], s50 offen{sc} lds"],
            [f"s_add_u32 m0, s51, {slot*16384+1024}", f"buffer_load_dwordx4 v{vW[1]}, s[{srdw}:{srdw+3}], s50 offen{sc} lds"]]
W3ADV = f"s_add_u32 s50, s50, {128*(128 if WT3 else 2048)}"
W5ADV = f"s_add_u32 s50, s50, {128*(128 if WT5 or WDT else 2048)}"
SW5 = 12 if WDT else 60

WOPF = int(os.environ.get("WOPF", "0"))
OT = int(os.environ.get("OT", "0"))
def phase2(k):
    STG = 32768
    vL16, vCur, vNxt, vTmp = 2, 3, 4, 5
    QA, QB = 8, 16
    KF = [24, 32]; VF = [40, 48]
    SA, SB = 56, 72
    PA, PB = 88, 96
    OA, OB = 104, 120
    LA, LB = 136, 140
    NA, NB = 144, 160
    ONE = 176
    T0 = 180
    w35_setup(k, vW3, W3BASE, 180, D if WT3 else 0)
    srd(k, 8, pBX if WT3 else pWO, D * D * 2)
    k("s_and_b32 s21, s2, 7"); k("s_lshl_b32 s21, s21, 2"); k("s_lshr_b32 s22, s2, 6"); k("s_add_u32 s21, s21, s22")
    k("s_bfe_u32 s22, s2, 0x30003")
    k("s_and_b32 s23, s20, 3")
    k("s_lshr_b32 s24, s20, 2")
    k(f"v_lshlrev_b32 v{vL16}, 4, v1")
    k("s_lshl_b32 s30, s24, 5"); k("s_add_u32 s30, s30, s23"); k("s_lshl_b32 s30, s30, 16")
    k("s_lshl_b32 s25, s21, 11"); k("s_add_u32 s30, s30, s25"); k(f"s_add_u32 s30, s30, {WS_K}")
    k("s_lshl_b32 s31, s21, 7"); k("s_lshl_b32 s25, s24, 6"); k("s_add_u32 s31, s31, s25")
    k("s_lshl_b32 s25, s23, 1"); k("s_add_u32 s31, s31, s25"); k("s_lshl_b32 s31, s31, 10"); k(f"s_add_u32 s31, s31, {WS_VT}")
    k("s_lshl_b32 s32, s24, 14"); k("s_lshl_b32 s25, s23, 11"); k("s_add_u32 s32, s32, s25")
    k("s_lshl_b32 s33, s22, 3"); k("s_lshl_b32 s25, s23, 1"); k("s_add_u32 s33, s33, s25"); k("s_lshl_b32 s33, s33, 16")
    k("s_lshl_b32 s25, s21, 11"); k("s_add_u32 s33, s33, s25")
    k(f"s_add_u32 s45, s33, {WS_O}")
    k(f"s_add_u32 s33, s33, {WS_Q}")
    k("s_add_u32 s34, s33, 65536")
    k(f"v_lshrrev_b32 v{vTmp}, 2, v1"); k(f"v_lshrrev_b32 v{T0}, 4, v1"); k(f"v_xor_b32 v{vTmp}, v{vTmp}, v{T0}")
    k(f"v_and_b32 v{vTmp}, 1, v{vTmp}"); k(f"v_cmp_eq_u32 vcc, 0, v{vTmp}")
    k(f"v_mov_b32 v{T0}, 0x3f803f80")
    k(f"v_cndmask_b32 v{ONE}, 0, v{T0}, vcc")
    for r in range(1, 4): k(f"v_mov_b32 v{ONE+r}, v{ONE}")
    for r in range(32): k(f"v_mov_b32 v{NA+r}, 0")
    k("s_mov_b32 s46, 0")
    k("s_lshl_b32 s25, s24, 14")
    k(f"v_add_u32 v{vTmp}, s25, v{vL16}")
    if PFW:
        k("s_lshl_b32 s25, s2, 3"); k("s_add_u32 s25, s25, s20")
        k("s_mul_i32 s26, s25, 3584")
        k(f"v_lshlrev_b32 v198, 6, v1"); k("v_add_u32 v198, s26, v198")
        srd(k, 88, pWO, D * D * 2)
        k(f"s_mov_b64 s[92:93], s[{pWG}:{pWG+1}]"); k(f"s_mov_b64 s[94:95], s[{pWU}:{pWU+1}]"); k(f"s_mov_b64 s[96:97], s[{pWD}:{pWD+1}]")
    WDR, vWDS = 208, 224
    if JIT & 2: k("s_mov_b32 s52, L_p2tail-L_cb")
    if WDT:
        srd(k, 60, pWD, DF * D * 2)
        k(f"v_lshrrev_b32 v{vWDS}, 3, v1"); k(f"s_mov_b32 s26, {DF*128}"); k(f"v_mul_lo_u32 v{vWDS}, v{vWDS}, s26")
        k(f"v_and_b32 v{vWDS+1}, 7, v1"); k(f"v_lshl_add_u32 v{vWDS}, v{vWDS+1}, 4, v{vWDS}")
        k("s_mul_i32 s98, s2, 14"); k("s_lshl_b32 s26, s20, 1"); k("s_add_u32 s98, s98, s26"); k("s_lshl_b32 s98, s98, 7")
        k(f"s_add_u32 s98, s98, {WS_WDT - 256}"); k(f"s_add_u32 s99, s98, {8*DF*128}")
        k("s_mul_i32 s100, s2, 28672"); k("s_lshl_b32 s26, s20, 12"); k("s_add_u32 s100, s100, s26"); k("s_sub_u32 s100, s100, 4096")
        k("s_cmp_eq_u32 s20, 0"); k(f"s_cselect_b32 s101, 99, {WDA}")
        if WDT == 3: k(f"s_cselect_b32 s101, 99, {hex((-WDA - 1) & 0xffffffff)}")
        if WDT >= 2:
            assert WDA % 2 == 1
            k(f"s_sub_u32 s98, s98, {128 * ((WDA + 1) // 2)}"); k(f"s_mov_b32 s99, {8*DF*128}"); k(f"s_sub_u32 s100, s100, {1024*WDA}")
    if QKS:
        k(f"v_mul_u32_u24 v{T0+1}, {QKS}, v1"); k("s_lshr_b32 s27, s21, 1"); k(f"v_sub_u32 v{T0+1}, s27, v{T0+1}")
        k(f"v_and_b32 v{T0+1}, 15, v{T0+1}"); k(f"v_lshlrev_b32 v{T0+1}, 7, v{T0+1}")
        k(f"s_mov_b32 s27, {WS_CNT + C2*128}")
        wait_multi(k, 27, 16, 3, vt=(T0, T0 + 1))
    else:
        k("s_lshr_b32 s27, s21, 1"); k("s_lshl_b32 s27, s27, 7"); k(f"s_add_u32 s27, s27, {WS_CNT + C2*128}")
        wait(k, 27, 16, vt=(T0, T0 + 1), pr=KF[0])
    k.stamp("p2_wait")
    for kk in range(2):
        k(f"buffer_load_dwordx4 v[{QA+4*kk}:{QA+4*kk+3}], v{vL16}, s[12:15], s33 offen offset:{1024*kk}{SC}")
        k(f"buffer_load_dwordx4 v[{QB+4*kk}:{QB+4*kk+3}], v{vL16}, s[12:15], s34 offen offset:{1024*kk}{SC}")
    def dma_stage():
        k("s_add_u32 m0, s42, s32")
        k(f"buffer_load_dwordx4 v{vL16}, s[12:15], s40 offen{SC} lds")
        k(f"buffer_load_dwordx4 v{vL16}, s[12:15], s40 offen offset:1024{SC} lds")
        k("s_add_u32 m0, m0, 8192")
        k(f"buffer_load_dwordx4 v{vL16}, s[12:15], s41 offen{SC} lds")
        k(f"buffer_load_dwordx4 v{vL16}, s[12:15], s41 offen offset:1024{SC} lds")
        k(f"s_add_u32 s40, s40, {4*65536}")
        k("s_add_u32 s41, s41, 8192")
    lmain = k.lab("p2main"); lloop = k.lab("p2loop"); lfin = k.lab("p2fin"); lfb = k.lab("p2fb"); lend = k.lab("p2end")
    k(f"{lmain}:")
    k("s_mov_b32 s40, s30"); k("s_mov_b32 s41, s31")
    k("s_mov_b32 s42, 0"); dma_stage()
    k(f"s_mov_b32 s42, {STG}"); dma_stage()
    k(f"s_mov_b32 s42, {2*STG}")
    k(f"v_mov_b32 v{vCur}, v{vTmp}")
    k(f"v_add_u32 v{vNxt}, {STG}, v{vTmp}")
    k(f"s_mov_b32 s43, {STG}")
    for r in range(16): k(f"v_mov_b32 v{OA+r}, 0"); k(f"v_mov_b32 v{OB+r}, 0")
    for r in range(4): k(f"v_mov_b32 v{LA+r}, 0"); k(f"v_mov_b32 v{LB+r}, 0")
    for r in range(8): k(f"v_mov_b32 v{PB+r}, 0"); k(f"v_mov_b32 v{VF[1]+r}, 0")
    def wo_ring():
        lnp = k.lab("p2nopf")
        k("s_cmp_lg_u32 s46, 0"); k(f"s_cbranch_scc1 {lnp}")
        for t in range(4):
            for d in w35_dma(vW3, 8, t):
                for l in d: k(l)
            k(W3ADV)
        k(f"{lnp}:")
    if WOPF == 0:
        lnp = k.lab("p2nopf"); lj = k.lab("p2pfj")
        k("s_cmp_lg_u32 s46, 0"); k(f"s_cbranch_scc1 {lnp}")
        for t in range(4):
            for d in w35_dma(vW3, 8, t):
                for l in d: k(l)
            k(W3ADV)
        k("s_waitcnt vmcnt(12)")
        k(f"s_branch {lj}")
        k(f"{lnp}:")
        k("s_waitcnt vmcnt(4)")
        k(f"{lj}:")
    else:
        k("s_waitcnt vmcnt(4)")
    k("s_barrier")
    k.stamp("p2_go")
    if WOPF == 1: wo_ring()
    for kk in range(2):
        k(f"ds_read_b128 v[{KF[0]+4*kk}:{KF[0]+4*kk+3}], v{vCur} offset:{1024*kk}")
    k("s_waitcnt lgkmcnt(0)")
    def qk(Sx, Qx, Nx, kf):
        return [f"v_mfma_f32_32x32x16_bf16 v[{Sx}:{Sx+15}], v[{kf}:{kf+3}], v[{Qx}:{Qx+3}], v[{Nx}:{Nx+15}]",
                f"v_mfma_f32_32x32x16_bf16 v[{Sx}:{Sx+15}], v[{kf+4}:{kf+7}], v[{Qx+4}:{Qx+7}], v[{Sx}:{Sx+15}]"]
    def pv(Ox, Px, Lx, vf):
        return [f"v_mfma_f32_32x32x16_bf16 v[{Ox}:{Ox+15}], v[{vf}:{vf+3}], v[{Px}:{Px+3}], v[{Ox}:{Ox+15}]",
                f"v_mfma_f32_32x32x16_bf16 v[{Ox}:{Ox+15}], v[{vf+4}:{vf+7}], v[{Px+4}:{Px+7}], v[{Ox}:{Ox+15}]",
                f"v_mfma_f32_16x16x32_bf16 v[{Lx}:{Lx+3}], v[{ONE}:{ONE+3}], v[{Px}:{Px+3}], v[{Lx}:{Lx+3}]",
                f"v_mfma_f32_16x16x32_bf16 v[{Lx}:{Lx+3}], v[{ONE}:{ONE+3}], v[{Px+4}:{Px+7}], v[{Lx}:{Lx+3}]"]
    def expv(Sx, Px):
        o = []
        for g in range(4):
            o += [f"v_exp_f32 v{Sx+4*g+r}, v{Sx+4*g+r}" for r in range(4)]
            o += [f"v_cvt_pk_bf16_f32 v{Px+2*g}, v{Sx+4*g}, v{Sx+4*g+1}", f"v_cvt_pk_bf16_f32 v{Px+2*g+1}, v{Sx+4*g+2}, v{Sx+4*g+3}"]
        return o
    def phase(mf, va, extra):
        for i in range(6):
            k(mf[i])
            for (p, l) in extra:
                if p == i: k(l)
            for l in va[4*i:4*i+4]: k(l)
    for l in qk(SA, QA, NA, KF[0]): k(l)
    k("s_mov_b32 s44, 0")
    k(f"{lloop}:")
    for i in range(4):
        cb = i & 1; nb = cb ^ 1
        ex = []
        if i == 3:
            lnd = k.lab("nodma")
            k(f"s_waitcnt vmcnt({(1 if PFW and PFI < 3 else 0) + (1 if JIT & 2 else 0)})")
            k("s_barrier")
            k("s_cmp_ge_u32 s44, 6")
            k(f"s_cbranch_scc1 {lnd}")
            dma_stage()
            k(f"s_add_u32 s42, s42, {STG}")
            k(f"s_cmp_eq_u32 s42, {3*STG}")
            k("s_cselect_b32 s42, 0, s42")
            k(f"{lnd}:")
            if WDT == 1:
                lw = k.lab("nowd"); ls = k.lab("wdst")
                k("s_sub_u32 s27, s44, s101"); k("s_cmp_lt_u32 s27, 2"); k(f"s_cbranch_scc0 {lw}")
                k("s_cmp_eq_u32 s27, 1"); k(f"s_cbranch_scc1 {ls}")
                for q in range(4):
                    k(f"buffer_load_dwordx4 v[{WDR+4*q}:{WDR+4*q+3}], v{vL16}, s[60:63], s100 offen offset:{1024*q}")
                k(f"s_branch {lw}")
                k(f"{ls}:")
                for q in range(4):
                    k(f"buffer_store_dwordx4 v[{WDR+4*q}:{WDR+4*q+3}], v{vWDS}, s[12:15], s{98 + (q & 1)} offen offset:{128*(q>>1)}{SC}")
                k(f"{lw}:")
            if WDT == 2:
                k("s_sub_u32 s27, s44, s101"); k("s_sub_u32 s27, s27, 1")
                k("s_cmp_lt_u32 s27, 4"); k("s_cselect_b64 exec, -1, 0")
                k(f"buffer_store_dwordx4 v[{WDR}:{WDR+3}], v{vWDS}, s[12:15], s98 offen{SC}")
                k("s_add_u32 s27, s27, 1")
                k("s_cmp_lt_u32 s27, 4"); k("s_cselect_b64 exec, -1, 0")
                k(f"buffer_load_dwordx4 v[{WDR}:{WDR+3}], v{vL16}, s[60:63], s100 offen")
                k("s_mov_b64 exec, -1")
                k("s_add_u32 s98, s98, s99"); k("s_sub_u32 s99, 128, s99"); k("s_add_u32 s100, s100, 1024")
        if i == PFI and PFW:
            ex += [(4, "buffer_load_dword v199, v198, s[88:91], 0 offen"),
                   (5, "s_mov_b64 s[88:89], s[92:93]"), (5, "s_mov_b64 s[92:93], s[94:95]"), (5, "s_mov_b64 s[94:95], s[96:97]"),
                   (5, f"s_cmp_lt_u32 s44, {2 if WDT else 3}"), (5, f"s_cselect_b32 s90, {hex(D*DF*2)}, 0")]
        if i == 0 and JIT & 2:
            ex += [(5, "buffer_load_dword v231, v252, s[80:83], s52 offen")]
        for kk in range(2):
            if i < 3: ex.append((kk, f"ds_read_b128 v[{KF[nb]+4*kk}:{KF[nb]+4*kk+3}], v{vCur} offset:{(i+1)*2048 + 1024*kk}"))
            else:     ex.append((kk, f"ds_read_b128 v[{KF[nb]+4*kk}:{KF[nb]+4*kk+3}], v{vNxt} offset:{1024*kk}"))
        for mm in range(2):
            ex.append((2 + mm, f"ds_read_b128 v[{VF[cb]+4*mm}:{VF[cb]+4*mm+3}], v{vCur} offset:{8192 + i*2048 + 1024*mm}"))
        phase(qk(SB, QB, NB, KF[cb]) + pv(OB, PB, LB, VF[nb]), expv(SA, PA), ex)
        k("s_waitcnt lgkmcnt(0)")
        ex = []
        if i == 3:
            ex = [(0, f"v_mov_b32 v{vCur}, v{vNxt}"), (1, f"s_add_u32 s43, s43, {STG}"), (1, f"s_cmp_eq_u32 s43, {3*STG}"),
                  (2, "s_cselect_b32 s43, 0, s43"), (3, f"v_add_u32 v{vNxt}, s43, v{vTmp}")]
            if WDT == 3:
                p = WDP
                ex += [(p, x) for x in ("s_cmp_lt_u32 s101, 4", "s_cselect_b64 exec, -1, 0",
                       f"buffer_store_dwordx4 v[{WDR}:{WDR+3}], v{vWDS}, s[12:15], s98 offen{SC}",
                       "s_add_u32 s101, s101, 1", "s_cmp_lt_u32 s101, 4", "s_cselect_b64 exec, -1, 0",
                       f"buffer_load_dwordx4 v[{WDR}:{WDR+3}], v{vL16}, s[60:63], s100 offen", "s_mov_b64 exec, -1")]
                ex += [(5, x) for x in ("s_add_u32 s98, s98, s99", "s_sub_u32 s99, 128, s99", "s_add_u32 s100, s100, 1024")]
        phase(qk(SA, QA, NA, KF[nb]) + pv(OA, PA, LA, VF[cb]), expv(SB, PB), ex)
    k("s_add_u32 s44, s44, 1")
    k("s_cmp_lt_u32 s44, 8")
    k(f"s_cbranch_scc1 {lloop}")
    if JIT & 2: k("L_p2tail:")
    for l in pv(OB, PB, LB, VF[1]): k(l)
    k.stamp("p2_loop")
    if WOPF == 2: wo_ring()
    k("s_nop 7"); k("s_nop 3")
    lns = k.lab("nosw")
    k("s_cmp_eq_u32 s24, 0")
    k(f"s_cbranch_scc1 {lns}")
    for r in range(16): k(f"v_swap_b32 v{OA+r}, v{OB+r}")
    k(f"v_swap_b32 v{LA}, v{LB}")
    k(f"{lns}:")
    k("s_barrier")
    k("s_mul_i32 s25, s20, 5120")
    k(f"v_add_u32 v{T0}, s25, v{vL16}")
    k(f"v_lshlrev_b32 v{T0+1}, 2, v1"); k(f"v_add_u32 v{T0+1}, s25, v{T0+1}")
    for i in range(4): k(f"ds_write_b128 v{T0}, v[{OB+4*i}:{OB+4*i+3}] offset:{1024*i}")
    k(f"ds_write_b32 v{T0+1}, v{LB} offset:4096")
    k("s_xor_b32 s26, s20, 4"); k("s_mul_i32 s25, s26, 5120")
    k(f"v_add_u32 v{T0}, s25, v{vL16}")
    k(f"v_lshlrev_b32 v{T0+1}, 2, v1"); k(f"v_add_u32 v{T0+1}, s25, v{T0+1}")
    k("s_waitcnt lgkmcnt(0)")
    k("s_barrier")
    for i in range(4): k(f"ds_read_b128 v[{OB+4*i}:{OB+4*i+3}], v{T0} offset:{1024*i}")
    k(f"ds_read_b32 v{LB}, v{T0+1} offset:4096")
    k("s_waitcnt lgkmcnt(0)")
    k(f"v_add_f32 v{LA}, v{LA}, v{LB}")
    for r in range(16): k(f"v_add_f32 v{OA+r}, v{OA+r}, v{OB+r}")
    k("s_cmp_lg_u32 s46, 0")
    k(f"s_cbranch_scc1 {lfin}")
    k(f"v_mov_b32 v{T0+2}, v{LA}")
    for r in range(16): k(f"v_fma_f32 v{T0+2}, v{OA+r}, 0, v{T0+2}")
    k(f"v_mov_b32 v{T0+3}, 0x71800000")
    k(f"v_cmp_le_f32 vcc, 1.0, v{T0+2}")
    k(f"v_cmp_le_f32 s[48:49], v{T0+2}, v{T0+3}")
    k("s_and_b64 vcc, vcc, s[48:49]")
    k("s_cmp_eq_u64 vcc, -1")
    k("s_cselect_b32 s47, 0, 1")
    k(f"v_mov_b32 v{T0+2}, s47")
    k(f"s_lshl_b32 s25, s20, 2"); k(f"v_mov_b32 v{T0+3}, s25")
    k(f"ds_write_b32 v{T0+3}, v{T0+2} offset:45056")
    k("s_waitcnt lgkmcnt(0)")
    k("s_barrier")
    k(f"v_mov_b32 v{T0+3}, 0")
    k(f"ds_read_b128 v[{T0+4}:{T0+7}], v{T0+3} offset:45056")
    k(f"ds_read_b128 v[{T0+8}:{T0+11}], v{T0+3} offset:45072")
    k("s_waitcnt lgkmcnt(0)")
    k(f"v_or3_b32 v{T0+4}, v{T0+4}, v{T0+5}, v{T0+6}")
    k(f"v_or3_b32 v{T0+8}, v{T0+8}, v{T0+9}, v{T0+10}")
    k(f"v_or3_b32 v{T0+4}, v{T0+4}, v{T0+7}, v{T0+11}")
    k(f"v_or_b32 v{T0+4}, v{T0+4}, v{T0+8}")
    k(f"v_readfirstlane_b32 s47, v{T0+4}")
    k("s_cmp_lg_u32 s47, 0")
    k(f"s_cbranch_scc1 {lfb}")
    k(f"{lfin}:")
    k(f"v_rcp_f32 v{LA}, v{LA}")
    for g in range(4):
        for r in range(4): k(f"v_mul_f32 v{OA+4*g+r}, v{OA+4*g+r}, v{LA}")
        k(f"v_cvt_pk_bf16_f32 v{SA+2*g}, v{OA+4*g}, v{OA+4*g+1}")
        k(f"v_cvt_pk_bf16_f32 v{SA+2*g+1}, v{OA+4*g+2}, v{OA+4*g+3}")
    k("s_lshl_b32 s25, s24, 16"); k("s_add_u32 s45, s45, s25")
    for p in range(2):
        k(f"v_permlane32_swap_b32 v{SA+4*p}, v{SA+4*p+2}")
        k(f"v_permlane32_swap_b32 v{SA+4*p+1}, v{SA+4*p+3}")
        k(f"buffer_store_dwordx4 v[{SA+4*p}:{SA+4*p+3}], v{vL16}, s[12:15], s45 offen offset:{1024*p}{SC}")
    k(f"s_branch {lend}")
    k(f"{lfb}:")
    k("s_mov_b32 s46, 1")
    if WDT: k("s_mov_b32 s101, 99")
    k("s_barrier")
    MA, MB = T0 + 2, T0 + 3
    k(f"v_mov_b32 v{MA}, 0xff800000"); k(f"v_mov_b32 v{MB}, 0xff800000")
    k("s_lshl_b32 s40, s24, 21"); k("s_lshl_b32 s25, s21, 11"); k("s_add_u32 s40, s40, s25"); k(f"s_add_u32 s40, s40, {WS_K}")
    k("s_mov_b32 s44, 0")
    lfl = k.lab("p2fbl")
    k(f"{lfl}:")
    for kk in range(2):
        k(f"buffer_load_dwordx4 v[{KF[0]+4*kk}:{KF[0]+4*kk+3}], v{vL16}, s[12:15], s40 offen offset:{1024*kk}{SC}")
    k("s_waitcnt vmcnt(0)")
    for (Sx, Qx) in ((SA, QA), (SB, QB)):
        k(f"v_mfma_f32_32x32x16_bf16 v[{Sx}:{Sx+15}], v[{KF[0]}:{KF[0]+3}], v[{Qx}:{Qx+3}], 0")
        k(f"v_mfma_f32_32x32x16_bf16 v[{Sx}:{Sx+15}], v[{KF[0]+4}:{KF[0]+7}], v[{Qx+4}:{Qx+7}], v[{Sx}:{Sx+15}]")
    for (Sx, Mx) in ((SA, MA), (SB, MB)):
        for r in range(0, 16, 2): k(f"v_max3_f32 v{Mx}, v{Mx}, v{Sx+r}, v{Sx+r+1}")
    k("s_add_u32 s40, s40, 65536")
    k("s_add_u32 s44, s44, 1")
    k("s_cmp_lt_u32 s44, 32")
    k(f"s_cbranch_scc1 {lfl}")
    for Mx in (MA, MB):
        k(f"v_mov_b32 v{T0+4}, v{Mx}")
        k(f"v_permlane32_swap_b32 v{Mx}, v{T0+4}")
        k(f"v_max_f32 v{Mx}, v{Mx}, v{T0+4}")
    k("s_lshl_b32 s25, s20, 9")
    k(f"v_lshlrev_b32 v{T0+4}, 3, v1"); k(f"v_add_u32 v{T0+5}, s25, v{T0+4}")
    k(f"ds_write_b64 v{T0+5}, v[{MA}:{MB}]")
    k("s_xor_b32 s26, s20, 4"); k("s_lshl_b32 s25, s26, 9")
    k(f"v_add_u32 v{T0+5}, s25, v{T0+4}")
    k("s_waitcnt lgkmcnt(0)")
    k("s_barrier")
    k(f"ds_read_b64 v[{T0+6}:{T0+7}], v{T0+5}")
    k("s_waitcnt lgkmcnt(0)")
    k(f"v_max_f32 v{MA}, v{MA}, v{T0+6}")
    k(f"v_max_f32 v{MB}, v{MB}, v{T0+7}")
    for r in range(16):
        k(f"v_sub_f32 v{NA+r}, 0, v{MA}")
        k(f"v_sub_f32 v{NB+r}, 0, v{MB}")
    k("s_barrier")
    k(f"s_branch {lmain}")
    k(f"{lend}:")
    k.stamp("p2_epi")
    k("s_lshl_b32 s27, s22, 7"); k(f"s_add_u32 s27, s27, {WS_CNT + C3*128}")
    signal(k, 27, vt=(T0, T0 + 1))
    k.stamp("p2_sig")

SLOT4 = 30720; UOFF = 7168; BOFF4 = 14336
RMOFF = 75776; XMOFF = 83968; HKOFF = 147456
vPW = 202
vW5 = [240, 241]
NPF5 = int(os.environ.get("NPF5", "3"))
NS5 = int(os.environ.get("NS5", "5")); R3 = int(os.environ.get("R3", "4")); R5 = int(os.environ.get("R5", "6"))
def w4_piece_lane(k, vdst, vidx, t):
    k(f"v_mul_u32_u24 v{t}, 4682, v{vidx}"); k(f"v_lshrrev_b32 v{t}, 16, v{t}")
    k(f"v_mul_u32_u24 v{t+1}, 14, v{t}"); k(f"v_sub_u32 v{t+1}, v{vidx}, v{t+1}")
    k(f"v_and_b32 v{t+2}, 0x33, v{t}")
    k(f"v_bfe_u32 v{vidx}, v{t}, 2, 1"); k(f"v_lshl_add_u32 v{t+2}, v{vidx}, 3, v{t+2}")
    k(f"v_bfe_u32 v{vidx}, v{t}, 3, 1"); k(f"v_lshl_add_u32 v{t+2}, v{vidx}, 2, v{t+2}")
    k(f"v_mul_u32_u24 v{t+2}, 7168, v{t+2}")
    k(f"v_lshl_add_u32 v{vdst}, v{t+1}, 4, v{t+2}")
def coords4(k, stb, scb, st):
    k("s_and_b32 s21, s2, 7"); k("s_lshr_b32 s22, s2, 3")
    k(f"s_and_b32 s{stb}, s21, 1"); k(f"s_lshl_b32 s{stb}, s{stb}, 2"); k(f"s_and_b32 s{st}, s22, 3"); k(f"s_add_u32 s{stb}, s{stb}, s{st}")
    k(f"s_lshr_b32 s{scb}, s21, 1"); k(f"s_lshl_b32 s{scb}, s{scb}, 3"); k(f"s_lshr_b32 s{st}, s22, 2"); k(f"s_add_u32 s{scb}, s{scb}, s{st}")
def pf4_setup(k, t):
    coords4(k, 27, 29, 28)
    k("s_mul_i32 s40, s29, 224")
    k("s_min_u32 s27, s20, 6"); k("s_lshl_b32 s42, s27, 10"); k("s_lshl_b32 s27, s27, 6")
    k(f"v_add_u32 v{t+3}, s27, v1")
    w4_piece_lane(k, vPW, t + 3, t)
    srd(k, 52, pWG, D * DF * 2); srd(k, 56, pWU, D * DF * 2)
def pf4(tile):
    o = []
    for m in range(2):
        g = []
        if m == 0: g.append(f"s_add_u32 s41, s40, {tile*32*7168}")
        g += [f"s_add_u32 m0, s42, {tile*SLOT4 + m*UOFF}", f"buffer_load_dwordx4 v{vPW}, s[{52+4*m}:{55+4*m}], s41 offen lds"]
        o.append(g)
    return o

JS3 = int(os.environ.get("JS3", "2")); JT4 = int(os.environ.get("JT4", "28"))
def phase35(k, kind):
    wo = kind == "wo"
    KD = D if wo else DF
    NT = KD // 128
    NS = 4 if wo else NS5
    R = R3 if wo else R5
    WSB = WS_O if wo else WS_HM
    T32B = KD * 64
    base = W3BASE if wo else 0
    vW = vW3 if wo else vW5
    WADV = W3ADV if wo else W5ADV
    SW = 8 if wo else SW5
    vA = [2, 3, 4, 5]; vBj = [6, 7]; vR = 10; vO = 11; vT = 12; vRM = 8; vHK = 9
    RES = 16; A = [24, 40]; ACC = 56; ACM = 88; RMF = [96, 100]; BR = 104
    MX = 15
    acc = lambda i, j: ACC + (j * 4 + i) * 4
    pre = "p3" if wo else "p5"
    coords35(k, 23, 24, 25)
    k("s_and_b32 s25, s20, 3")
    k("s_lshr_b32 s26, s20, 2")
    k("s_lshl_b32 s31, s23, 2"); k("s_add_u32 s31, s31, s25"); k(f"s_mul_i32 s31, s31, {T32B}")
    k("s_lshl_b32 s28, s26, 12"); k("s_add_u32 s31, s31, s28"); k(f"s_add_u32 s31, s31, {WSB}")
    k(f"v_lshrrev_b32 v{vT}, 4, v1"); k(f"v_and_b32 v{vT+1}, 15, v1")
    k(f"v_lshlrev_b32 v{vT+2}, 4, v{vT+1}"); k(f"v_lshl_add_u32 v{vT+2}, v{vT}, 9, v{vT+2}")
    k("s_lshl_b32 s28, s26, 8")
    k(f"v_add_u32 v{vBj[0]}, s28, v{vT+2}")
    k(f"v_xor_b32 v{vBj[1]}, 256, v{vBj[0]}")
    k(f"v_and_b32 v{vT+2}, 1, v{vT}"); k(f"v_lshlrev_b32 v{vT+2}, 1, v{vT+2}"); k(f"v_lshrrev_b32 v{vT+3}, 1, v{vT}")
    k(f"v_add_u32 v{vT+2}, v{vT+2}, v{vT+3}")
    rm = vR if wo else vO
    k(f"v_lshlrev_b32 v{rm}, 11, v{vT+1}"); k(f"v_lshl_add_u32 v{rm}, v{vT+2}, 4, v{rm}")
    k("s_lshl_b32 s33, s23, 2"); k("s_add_u32 s33, s33, s25"); k("s_lshl_b32 s33, s33, 1"); k("s_add_u32 s33, s33, s26")
    k("s_lshl_b32 s35, s33, 4")
    k("s_lshl_b32 s33, s33, 15"); k("s_lshl_b32 s28, s24, 7"); k("s_add_u32 s33, s33, s28")
    if wo:
        k(f"v_lshlrev_b32 v{vO}, 9, v{vT+2}"); k(f"v_lshl_add_u32 v{vO}, v{vT+1}, 4, v{vO}")
        k("s_lshl_b32 s34, s23, 2"); k("s_add_u32 s34, s34, s25"); k("s_lshl_b32 s34, s34, 16")
        k("s_lshl_b32 s28, s24, 12"); k("s_add_u32 s34, s34, s28"); k("s_lshl_b32 s28, s26, 8"); k("s_add_u32 s34, s34, s28")
        k(f"s_add_u32 s34, s34, {WS_H}")
        k("s_lshl_b32 s28, s20, 10"); k(f"s_add_u32 s28, s28, {RMOFF}")
        k(f"v_lshl_add_u32 v{vRM}, v{vT}, 4, s28")
    k("s_lshl_b32 s28, s20, 11"); k(f"s_add_u32 s28, s28, {HKOFF}")
    k(f"v_lshl_add_u32 v{vHK}, v1, 4, s28")
    k(f"v_bfe_u32 v{vT+1}, v1, 2, 2")
    k(f"v_lshrrev_b32 v{vT+2}, 1, v{vT}"); k(f"v_and_b32 v{vT+3}, 1, v{vT}")
    k(f"v_lshlrev_b32 v{vT+2}, 4, v{vT+2}"); k(f"v_lshl_add_u32 v{vT+2}, v{vT+3}, 2, v{vT+2}")
    k(f"v_add_u32 v{vT+2}, v{vT+2}, v{vT+1}"); k(f"v_lshlrev_b32 v{vT+2}, 7, v{vT+2}")
    k(f"v_lshrrev_b32 v{vT+1}, 1, v{vT+1}"); k(f"v_lshl_add_u32 v{vT+1}, v{vT+3}, 1, v{vT+1}")
    k(f"v_and_b32 v{vT+3}, 3, v1"); k(f"v_lshl_add_u32 v{vT+2}, v{vT+3}, 3, v{vT+2}")
    k("s_lshl_b32 s28, s26, 13")
    if base: k(f"s_add_u32 s28, s28, {base}")
    k(f"v_add_u32 v{vT+2}, s28, v{vT+2}")
    for i in range(4):
        k(f"v_xor_b32 v{vT+3}, {i}, v{vT+1}")
        k(f"v_lshl_add_u32 v{vA[i]}, v{vT+3}, 5, v{vT+2}")
    hiA = NS * 16384 > 65536
    vA2 = [204, 205, 206, 207]
    if hiA:
        for i in range(4): k(f"v_add_u32 v{vA2[i]}, 65536, v{vA[i]}")
    srd(k, 16, pX if wo else pOUT, MB4)
    if not wo and OT == 1:
        k(f"buffer_load_dword v{RES}, v{vO}, s[16:19], s33 offen")
    for r in range(ACC, ACC + (40 if wo else 32)): k(f"v_mov_b32 v{r}, 0")
    if wo:
        pf4_setup(k, vT)
        k(f"v_lshrrev_b32 v{vT}, 3, v1"); k(f"v_and_b32 v{vT+1}, 7, v1"); k(f"v_lshlrev_b32 v{vT+1}, 4, v{vT+1}")
        k(f"v_lshl_add_u32 v{vT+1}, v{vT}, 8, v{vT+1}"); k("s_lshl_b32 s28, s26, 7"); k(f"v_add_u32 v{vT+1}, s28, v{vT+1}")
        k(f"v_and_b32 v{vT+2}, 15, v1"); k(f"v_lshlrev_b32 v{vT+2}, 2, v{vT+2}")
    vm = VM()
    if not wo:
        for t in range(NPF5, NS):
            for d in w35_dma(vW, SW, t):
                for l in d: k(l)
            k(WADV); vm.issue(("W", t), 2)
    k("s_lshr_b32 s27, s23, 1"); k("s_lshl_b32 s27, s27, 7"); k(f"s_add_u32 s27, s27, {WS_CNT + (C3 if wo else C5)*128}")
    wait(k, 27, 32, vt=(RES, RES + 1), pr=A[1])
    k.stamp(pre + "_wait")
    NSTEP = 2 * NT
    def bld(s):
        b = BR + (s % R) * 8
        return [f"buffer_load_dwordx4 v[{b+4*j}:{b+4*j+3}], v{vBj[j]}, s[12:15], s31 offen{SC}" for j in range(2)]
    def badv(s): return f"s_add_u32 s31, s31, {2048 if s % 2 == 0 else 6144}"
    if wo:
        k("s_lshl_b32 s28, s20, 10"); k(f"s_add_u32 m0, s28, {RMOFF}")
        k(f"s_mov_b32 s28, {WS_RM}")
        k(f"buffer_load_dwordx4 v{vT+1}, s[12:15], s28 offen{SC} lds"); vm.issue("RM")
    for s in range(R):
        for l in bld(s): k(l); vm.issue(("B", s))
        k(badv(s))
    if wo:
        for p in range(2):
            k(f"buffer_load_dwordx4 v[{RES+4*p}:{RES+4*p+3}], v{vR}, s[16:19], s33 offen offset:{64*p}"); vm.issue("res")
        k("s_lshl_b32 s28, s35, 2"); k(f"s_add_u32 s28, s28, {WS_MX}")
        k(f"buffer_load_dword v{MX}, v{vT+2}, s[12:15], s28 offen{SC}"); vm.issue("res")
    def areads(s, buf):
        t = s // 2; sl = t % NS
        va = vA if sl < 4 else vA2
        o = [f"ds_read_b64_tr_b16 v[{A[buf]+4*i+2*tt}:{A[buf]+4*i+2*tt+1}], v{va[i]} offset:{(sl & 3)*16384 + (s&1)*4096 + tt*1024}"
             for i in range(4) for tt in range(2)]
        return o
    def rmread(s, buf): return f"ds_read_b128 v[{RMF[buf]}:{RMF[buf]+3}], v{vRM} offset:{(s >> 1)*128 + (s & 1)*64}"
    for l in areads(0, 0): k(l)
    if wo:
        k(f"s_waitcnt vmcnt({vm.cnt({'RM'})})")
        k(rmread(0, 0))
    k.stamp(pre + "_go")
    texts = []
    for per in range((NT + NS - 1) // NS):
        o = []
        for s in range(per * 2 * NS, min((per + 1) * 2 * NS, NSTEP)):
            t = s // 2; cur = s & 1; nxt = cur ^ 1
            need = {("B", s)}
            if s & 1 and t + 1 < NT: need.add(("W", t + 1))
            n = vm.cnt(need)
            o.append(f"s_waitcnt vmcnt({min(n, 63)}) lgkmcnt(0)")
            rd = []; dm = []
            if s & 1:
                if t + 1 < NT:
                    o.append("s_barrier"); rd = areads(s + 1, nxt)
                if t + NS < NT: dm = w35_dma(vW, SW, t % NS)
            else:
                rd = areads(s + 1, nxt)
            if wo and s + 1 < NSTEP: rd = rd + [rmread(s + 1, nxt)]
            mf = []
            b = BR + (s % R) * 8
            for i in range(4):
                for j in range(2):
                    a = acc(i, j)
                    mf.append(f"v_mfma_f32_16x16x32_bf16 v[{a}:{a+3}], v[{A[cur]+4*i}:{A[cur]+4*i+3}], v[{b+4*j}:{b+4*j+3}], v[{a}:{a+3}]")
            if wo:
                for j in range(2):
                    a = ACM + 4 * j
                    mf.append(f"v_mfma_f32_16x16x32_bf16 v[{a}:{a+3}], v[{RMF[cur]}:{RMF[cur]+3}], v[{b+4*j}:{b+4*j+3}], v[{a}:{a+3}]")
            gaps = [[] for _ in mf]
            for q, r in enumerate(rd): gaps[min(q, len(mf) - 1)].append(r)
            if dm:
                gaps[0].append(dm[0][0]); gaps[1].append(dm[0][1]); gaps[2].append(dm[1][0]); gaps[3].append(dm[1][1]); gaps[4].append(WADV)
                vm.issue(("W", t + NS), 2)
            if wo and s == JS3 and JIT & 4:
                assert s % 2 == 0
                gaps[1] += jit("L_p3tail", 29, 203); vm.issue("CP")
            if s + R < NSTEP:
                gaps[len(mf) - 1] += bld(s + R) + [badv(s + R)]
                vm.issue(("B", s + R), 2)
            if wo and s == NSTEP - R:
                q = 0
                for tl in range(3):
                    for g in pf4(tl):
                        gaps[min(q, len(mf) - 1)] += g; q += 1
                        vm.issue("PF")
            for g, mm in enumerate(mf):
                o.append(mm); o += gaps[g]
        texts.append(o)
    periods(k, pre + "loop", texts, 36)
    if wo and JIT & 4: k("L_p3tail:")
    k.stamp(pre + "_loop")
    if wo:
        k("s_and_b32 s27, s20, 3"); k("s_lshl_b32 s27, s27, 12"); k(f"s_mul_i32 s28, s26, {SLOT4}"); k("s_add_u32 s27, s27, s28"); k(f"s_add_u32 s27, s27, {BOFF4}")
        k(f"v_lshlrev_b32 v{vT}, 4, v1"); k(f"v_add_u32 v{vT+1}, s27, v{vT}")
        k("s_and_b32 s27, s20, 3"); k("s_lshl_b32 s27, s27, 12"); k("s_xor_b32 s28, s26, 1"); k(f"s_mul_i32 s28, s28, {SLOT4}"); k("s_add_u32 s27, s27, s28"); k(f"s_add_u32 s27, s27, {BOFF4}")
        k(f"v_add_u32 v{vT+2}, s27, v{vT}")
        k("s_lshl_b32 s27, s20, 8"); k(f"s_add_u32 s27, s27, {XMOFF}")
        k(f"v_lshl_add_u32 v{vRM}, v1, 2, s27")
        k(f"ds_write_b32 v{vRM}, v{ACM+4}")
        k(f"v_xor_b32 v{vRM}, 1024, v{vRM}")
    else:
        XCH = 98304
        k("s_lshl_b32 s27, s20, 12"); k(f"s_add_u32 s27, s27, {XCH}")
        k(f"v_lshlrev_b32 v{vT}, 4, v1"); k(f"v_add_u32 v{vT+1}, s27, v{vT}")
        k("s_lshl_b32 s27, s20, 12"); k("s_xor_b32 s27, s27, 16384"); k(f"s_add_u32 s27, s27, {XCH}"); k(f"v_add_u32 v{vT+2}, s27, v{vT}")
    for i in range(4): k(f"ds_write_b128 v{vT+1}, v[{acc(i,1)}:{acc(i,1)+3}] offset:{1024*i}")
    k("s_waitcnt lgkmcnt(0)")
    k("s_barrier")
    for i in range(4): k(f"ds_read_b128 v[{acc(i,1)}:{acc(i,1)+3}], v{vT+2} offset:{1024*i}")
    if wo:
        k(f"ds_read_b32 v{ACM+4}, v{vRM}")
        for g in pf4(3):
            for l in g: k(l)
    else:
        for p in range(2): k(f"ds_read_b128 v[{RES+4*p}:{RES+4*p+3}], v{vHK} offset:{1024*p}")
    k("s_waitcnt lgkmcnt(0)")
    def padd(d, a, b, bc=False):
        if wo:
            k(f"v_add_f32 v{d}, v{a}, v{b}"); k(f"v_add_f32 v{d+1}, v{a+1}, v{b if bc else b+1}")
        else: k(f"v_pk_add_f32 v[{d}:{d+1}], v[{a}:{a+1}], v[{b}:{b+1}]")
    for i in range(4):
        for r in range(0, 4, 2): padd(acc(i,0)+r, acc(i,0)+r, acc(i,1)+r)
    for p in range(2):
        for r in range(4): k(f"v_permlane16_swap_b32 v{acc(2*p,0)+r}, v{acc(2*p+1,0)+r}")
    U = A[0]
    k(f"v_mov_b32 v{vT+3 if not wo else vT}, 0xffff0000")
    vMask = vT + 3 if not wo else vT
    if wo:
        k("s_waitcnt vmcnt(8)")
        k(f"v_add_f32 v{ACM}, v{ACM}, v{ACM+4}")
        k(f"v_add_f32 v{ACM}, v{ACM}, v{MX}")
        k(f"v_sub_f32 v{ACM}, 0, v{ACM}")
    for p in range(2):
        for q in range(4):
            a = acc(2 * p, 0) + 2 * q
            k(f"v_lshlrev_b32 v{U+2*q}, 16, v{RES+4*p+q}")
            k(f"v_and_b32 v{U+2*q+1}, v{vMask}, v{RES+4*p+q}")
        for q in range(4):
            a = acc(2 * p, 0) + 2 * q
            padd(a, a, U+2*q)
        for q in range(4):
            a = acc(2 * p, 0) + 2 * q
            k(f"v_cvt_pk_bf16_f32 v{RES+4*p+q}, v{a}, v{a+1}")
        if wo:
            k(f"ds_write_b128 v{vHK}, v[{RES+4*p}:{RES+4*p+3}] offset:{1024*p}")
            HC = U + 8 + 4 * p
            for q in range(4):
                a = acc(2 * p, 0) + 2 * q
                padd(a, a, ACM, True)
            for q in range(4):
                a = acc(2 * p, 0) + 2 * q
                k(f"v_cvt_pk_bf16_f32 v{HC+q}, v{a}, v{a+1}")
            k(f"buffer_store_dwordx4 v[{HC}:{HC+3}], v{vO}, s[12:15], s34 offen offset:{2048*p}{SC}")
        else:
            k(f"buffer_store_dwordx4 v[{RES+4*p}:{RES+4*p+3}], v{vO}, s[16:19], s33 offen offset:{64*p}{OUTSC}")
    if wo:
        s1 = U
        a0 = acc(0, 0)
        for r in range(4): k(f"v_mul_f32 v{s1+r}, v{a0+r}, v{a0+r}")
        for r in range(4, 16): k(f"v_fma_f32 v{s1+(r&3)}, v{a0+r}, v{a0+r}, v{s1+(r&3)}")
        k(f"v_add_f32 v{s1}, v{s1}, v{s1+1}"); k(f"v_add_f32 v{s1+2}, v{s1+2}, v{s1+3}"); k(f"v_add_f32 v{s1}, v{s1}, v{s1+2}")
        for sw in ("v_permlane16_swap_b32", "v_permlane32_swap_b32"):
            k(f"v_mov_b32 v{s1+2}, v{s1}"); k(f"{sw} v{s1}, v{s1+2}"); k(f"v_add_f32 v{s1}, v{s1}, v{s1+2}")
        k(f"v_and_b32 v{vT}, 15, v1"); k(f"v_lshlrev_b32 v{vT}, 2, v{vT}")
        k("s_lshl_b32 s27, s35, 2"); k("s_lshl_b32 s28, s24, 13"); k("s_add_u32 s27, s27, s28"); k(f"s_add_u32 s27, s27, {WS_ST}")
        k("s_mov_b64 exec, 0xffff")
        k(f"buffer_store_dword v{s1}, v{vT}, s[12:15], s27 offen{SC}")
        k("s_mov_b64 exec, -1")
        k.stamp(pre + "_epi")
        k("s_lshr_b32 s27, s23, 1"); k("s_lshl_b32 s27, s27, 7"); k(f"s_add_u32 s27, s27, {WS_CNT + C4*128}")
        k("s_waitcnt lgkmcnt(0)")
        signal(k, 27, vt=(RES, RES + 1))
        k.stamp(pre + "_sig")
    else:
        k.stamp(pre + "_epi")
OUTSC = os.environ.get("OUTSC", "")

KC = 2 * math.sqrt(2 / math.pi) * math.log2(math.e)
X4 = os.environ.get("X4", "drain").split(",")
T4 = int(os.environ.get("T4", "0")); T4S = int(os.environ.get("T4S", "29")); T4P = int(os.environ.get("T4P", "2"))
def phase4(k):
    NS = 4; SLOT = SLOT4; UOFF = 7168; BOFF = BOFF4; STATS = NS * SLOT
    vA = [2, 3]; vB = [4, 5]; vD = [6, 7, 8, 9, 10]; vL16 = 11; vT = 12
    A = [16, 48]; B = [80, 96]; ACC = 112; SV = 242
    acc = lambda fi, m, j: ACC + ((fi * 2 + m) * 4 + j) * 4
    w35_setup(k, vW5, 0, vT, DF if WT5 or WDT else 0)
    if not WDT: srd(k, 60, pWD, DF * D * 2)
    coords4(k, 23, 24, 25)
    k("s_and_b32 s25, s20, 3")
    k("s_lshr_b32 s26, s20, 2")
    k(f"v_lshlrev_b32 v{vL16}, 4, v1")
    k(f"v_lshrrev_b32 v{vT}, 4, v1")
    k(f"v_bfe_u32 v{vT+1}, v1, 2, 2")
    k(f"v_lshrrev_b32 v{vT+2}, 1, v{vT}"); k(f"v_and_b32 v{vT+3}, 1, v{vT}")
    k(f"v_lshlrev_b32 v{vT+2}, 4, v{vT+2}"); k(f"v_lshl_add_u32 v{vT+2}, v{vT+3}, 2, v{vT+2}"); k(f"v_add_u32 v{vT+2}, v{vT+2}, v{vT+1}")
    k(f"v_mul_u32_u24 v{vT+2}, 224, v{vT+2}")
    k(f"v_and_b32 v{vT+3}, 3, v1"); k(f"v_lshl_add_u32 v{vT+2}, v{vT+3}, 3, v{vT+2}")
    k("s_lshl_b32 s27, s26, 7")
    k(f"v_add_u32 v{vA[0]}, s27, v{vT+2}"); k(f"v_add_u32 v{vA[1]}, {2*SLOT}, v{vA[0]}")
    k(f"v_and_b32 v{vT+1}, 15, v1"); k(f"v_lshlrev_b32 v{vT+1}, 4, v{vT+1}"); k(f"v_lshl_add_u32 v{vT+1}, v{vT}, 9, v{vT+1}")
    k("s_lshl_b32 s27, s25, 12"); k(f"s_add_u32 s27, s27, {BOFF}")
    k(f"v_add_u32 v{vB[0]}, s27, v{vT+1}"); k(f"v_add_u32 v{vB[1]}, {2*SLOT}, v{vB[0]}")
    k("s_lshl_b32 s31, s23, 19"); k(f"s_add_u32 s31, s31, {WS_H}")
    k("s_mul_i32 s30, s24, 224"); k(f"s_add_u32 s30, s30, {NS*32*7168}")
    for r in range(ACC, ACC + 128): k(f"v_mov_b32 v{r}, 0")
    k(f"v_and_b32 v{vT}, 1, v0"); k(f"v_lshlrev_b32 v{vT}, 16, v{vT}")
    k(f"v_lshrrev_b32 v{vT+1}, 1, v0"); k(f"v_lshl_add_u32 v{SV+8}, v{vT+1}, 2, v{vT}")
    k(f"v_lshlrev_b32 v{SV+9}, 4, v{vT+1}"); k(f"v_add_u32 v{SV+9}, {STATS}, v{SV+9}")
    k("s_lshl_b32 s37, s23, 10"); k(f"s_add_u32 s37, s37, {WS_ST}")
    k("s_bitcmp1_b32 s25, 1")
    k(f"s_cselect_b32 s4, s{pWU}, s{pWG}"); k(f"s_cselect_b32 s5, s{pWU+1}, s{pWG+1}")
    srd(k, 8, 4, D * DF * 2)
    lsb = k.lab("p4setB"); lsd = k.lab("p4setD")
    k("s_cmp_eq_u32 s26, 0")
    k(f"s_cbranch_scc0 {lsb}")
    for n in range(3):
        k("s_mul_i32 s27, s20, 3"); k(f"s_add_u32 s27, s27, {n}")
        k("s_lshr_b32 s28, s27, 1"); k("s_lshl_b32 s28, s28, 16"); k("s_and_b32 s29, s27, 1"); k("s_lshl_b32 s29, s29, 10"); k("s_add_u32 s28, s28, s29")
        k(f"v_add_u32 v{vD[n]}, s28, v{vL16}")
    k(f"s_mul_i32 s32, s20, 3072"); k(f"s_add_u32 s32, s32, {BOFF}")
    k(f"s_branch {lsd}")
    k(f"{lsb}:")
    k("s_and_b32 s27, s25, 1"); k("s_lshl_b32 s27, s27, 8")
    for q in range(4):
        k(f"v_add_u32 v{vT+3}, {64*q}, v1"); k(f"v_add_u32 v{vT+3}, s27, v{vT+3}")
        w4_piece_lane(k, vD[q], vT + 3, vT)
    k("s_add_u32 s27, s25, 12")
    k("s_lshr_b32 s28, s27, 1"); k("s_lshl_b32 s28, s28, 16"); k("s_and_b32 s29, s27, 1"); k("s_lshl_b32 s29, s29, 10"); k("s_add_u32 s28, s28, s29")
    k(f"v_add_u32 v{vD[4]}, s28, v{vL16}")
    k("s_lshl_b32 s33, s27, 10"); k(f"s_add_u32 s33, s33, {BOFF}")
    k("s_lshr_b32 s32, s25, 1"); k(f"s_mul_i32 s32, s32, {UOFF}"); k("s_and_b32 s27, s25, 1"); k("s_lshl_b32 s27, s27, 12"); k("s_add_u32 s32, s32, s27")
    k(f"{lsd}:")
    k("s_lshl_b32 s27, s23, 3"); k("s_lshl_b32 s28, s25, 1"); k("s_add_u32 s27, s27, s28"); k("s_mul_i32 s27, s27, 448")
    k("s_mul_i32 s28, s24, 14"); k("s_add_u32 s27, s27, s28"); k("s_lshl_b32 s28, s26, 3"); k("s_add_u32 s27, s27, s28")
    k("s_lshl_b32 s27, s27, 9"); k(f"s_add_u32 s34, s27, {WS_HM}"); k(f"s_add_u32 s35, s34, {448*512}")
    if WDT:
        k(f"v_add_u32 v{vT+1}, {C3 - 1}, v1"); k(f"v_lshlrev_b32 v{vT+1}, 7, v{vT+1}")
        k("s_lshl_b32 s27, s23, 7"); k(f"s_add_u32 s27, s27, {C4*128}")
        k("s_nop 0")
        k(f"v_writelane_b32 v{vT+1}, s27, 0")
        k(f"s_mov_b32 s27, {WS_CNT}")
        wait_multi(k, 27, 32, 9, vt=(vT, vT + 1))
    else:
        k("s_lshl_b32 s27, s23, 7"); k(f"s_add_u32 s27, s27, {WS_CNT + C4*128}")
        wait(k, 27, 32, vt=(vT, vT + 1), pr=A[1])
    k.stamp("p4_wait")
    def dma_act(var, slot):
        if var == "A":
            return [[f"s_add_u32 m0, s32, {slot*SLOT + n*1024}", f"buffer_load_dwordx4 v{vD[n]}, s[12:15], s31 offen{SC} lds"] for n in range(3)]
        return [[f"s_add_u32 m0, s33, {slot*SLOT}", f"buffer_load_dwordx4 v{vD[4]}, s[12:15], s31 offen{SC} lds"]]
    def dma_w(var, slot):
        if var == "A": return []
        return [[f"s_add_u32 m0, s32, {slot*SLOT + q*1024}", f"buffer_load_dwordx4 v{vD[q]}, s[8:11], s30 offen lds"] for q in range(4 if var == "B0" else 3)]
    advA = "s_add_u32 s31, s31, 2048"; advW = f"s_add_u32 s30, s30, {32*7168}"
    def stats_calc():
        o = []
        for i in (0, 2, 4, 6): o.append(f"v_add_f32 v{SV+i}, v{SV+i}, v{SV+i+1}")
        o += [f"v_add_f32 v{SV}, v{SV}, v{SV+2}", f"v_add_f32 v{SV+4}, v{SV+4}, v{SV+6}", f"v_add_f32 v{SV}, v{SV}, v{SV+4}",
              "s_nop 1",
              f"v_add_f32_dpp v{SV}, v{SV}, v{SV} quad_perm:[1,0,3,2] row_mask:0xf bank_mask:0xf",
              f"v_mov_b32 v{SV+3}, 0x3a800000", f"v_mov_b32 v{SV+5}, 0x3727c5ac",
              f"v_fma_f32 v{SV+2}, v{SV}, v{SV+3}, v{SV+5}",
              f"v_rsq_f32 v{SV+4}, v{SV+2}",
              f"v_mov_b32 v{SV+3}, 0",
              f"v_mul_f32 v{SV+1}, {f2h(-KC)}, v{SV+4}",
              f"v_mul_f32 v{SV+5}, v{SV+4}, v{SV+4}",
              f"v_mul_f32 v{SV}, {f2h(0.044715)}, v{SV+1}",
              f"v_mul_f32 v{SV}, v{SV}, v{SV+5}",
              f"ds_write_b128 v{SV+9}, v[{SV}:{SV+3}]"]
        return o
    st_idx = {}
    def vstamp(nm):
        if nm in st_idx: k.stamp_at(st_idx[nm])
        else:
            st_idx[nm] = k.nst; k.stamp(nm)
    ljoin = k.lab("p4join")
    def body(var):
        nf = 4 if var == "A" else 3
        first = (var != "A") if T4 == 1 else (var == "A")
        vm = VM()
        for s in range(NS):
            for d in dma_act(var, s):
                for l in d: k(l)
                vm.issue(("D", s))
            k(advA)
        k("s_mov_b32 s28, s37")
        for i in range(8):
            k(f"buffer_load_dword v{SV+i}, v{SV+8}, s[12:15], s28 offen{SC}"); vm.issue("ST")
            if i < 7: k("s_add_u32 s28, s28, 8192")
        def reads(buf, slot):
            base = slot >> 1; so = (slot & 1) * SLOT
            o = []
            def rA(fi, m):
                i = fi * 2 + m
                return [f"ds_read_b64_tr_b16 v[{A[buf]+4*i+2*t}:{A[buf]+4*i+2*t+1}], v{vA[base]} offset:{so + m*UOFF + t*8*224 + fi*32}" for t in range(2)]
            o += rA(0, 0)
            for j in range(4): o.append(f"ds_read_b128 v[{B[buf]+4*j}:{B[buf]+4*j+3}], v{vB[base]} offset:{so + (j>>1)*2048 + (j&1)*256}")
            for i in range(1, 2 * nf): o += rA(i >> 1, i & 1)
            return o
        k(f"s_waitcnt vmcnt({vm.cnt({('D', 0)})})")
        k("s_barrier")
        vstamp("p4_go")
        for l in reads(0, 0): k(l)
        NT = 32
        texts = []
        pf5 = {3: {28: [0], 29: [1, 2]}, 1: {28: [0]}, 0: {}}[NPF5]
        for per in range(NT // NS):
            o = []
            for t in range(per * NS, (per + 1) * NS):
                slot = t % NS; cur = t & 1; nxt = cur ^ 1
                rd = []; dm = []; ex = []
                if T4 and t > T4S and t + 1 < NT:
                    o.append("s_waitcnt lgkmcnt(0)")
                    rd = reads(nxt, (t + 1) % NS)
                elif t + 1 < NT:
                    need = {("D", t + 1)}
                    if T4 and t == T4S: need |= {("D", x) for x in range(t + 1, NT)}
                    if t == 3: need.add("ST")
                    o.append(f"s_waitcnt vmcnt({vm.cnt(need)}) lgkmcnt(0)")
                    o.append("s_barrier")
                    if T4 and t == T4S and first: o.append(f"s_setprio {T4P}")
                    rd = reads(nxt, (t + 1) % NS)
                else:
                    o.append("s_waitcnt lgkmcnt(0)")
                tail = []
                if t + NS < NT:
                    dm = dma_w(var, slot) + dma_act(var, slot)
                    vm.issue(("D", t + NS), len(dm))
                    tail = [advA, advW]
                for tl in pf5.get(t, []):
                    if tl < NS5 and not T4:
                        dm += [list(x) for x in w35_dma(vW5, SW5, tl)]
                        dm[-1].append(W5ADV)
                        vm.issue("PF5", 2)
                    elif tl < NS5 and first:
                        tail = tail + [W5ADV]
                    elif tl < NS5:
                        assert WDT or WT5
                        sg = "add" if var == "A" else "sub"
                        own = [list(x) for x in w35_dma(vW5, SW5, tl)]
                        oth = [[x[0].replace("s51", "s7"), x[1].replace("s50", "s6")] for x in w35_dma(vW5, SW5, tl)]
                        oth[0] = [f"s_{sg}_u32 s6, s50, 8192", f"s_{sg}_u32 s7, s51, 8192"] + oth[0]
                        oth[0] = [oth[0][:3], oth[0][3]]
                        oth[-1].append(W5ADV)
                        dm += own + oth
                        vm.issue("PF5", 4)
                if t == 3: ex = stats_calc()
                if t == JT4 and JIT & 8:
                    ex = jit("L_p4tail", 27, 13); vm.issue("CP")
                mf = []
                for i in range(2 * nf):
                    for j in range(4):
                        a = acc(i >> 1, i & 1, j)
                        mf.append(f"v_mfma_f32_16x16x32_bf16 v[{a}:{a+3}], v[{A[cur]+4*i}:{A[cur]+4*i+3}], v[{B[cur]+4*j}:{B[cur]+4*j+3}], v[{a}:{a+3}]")
                n = len(mf)
                gaps = [[] for _ in mf]
                for q, r in enumerate(rd): gaps[q].append(r)
                if dm:
                    stp = (n - 3) // len(dm)
                    for q, d in enumerate(dm):
                        g = 1 + stp * q
                        if isinstance(d[0], list): gaps[g] += d[0]
                        else: gaps[g].append(d[0])
                        gaps[g + 1] += d[1:]
                    gaps[n - 1] += tail
                elif tail: gaps[n - 1] += tail
                for q, l in enumerate(ex): gaps[min(4 + q, n - 1)].append(l)
                for g, mm in enumerate(mf):
                    o.append(mm); o += gaps[g]
            texts.append(o)
        periods(k, f"p4{var}", texts, 36)
        if var == "A" and JIT & 8: k("L_p4tail:")
        vstamp("p4_loop")
        ST = 16; TT = 32
        k(f"v_and_b32 v{vT}, 15, v1"); k(f"v_lshlrev_b32 v{vT}, 4, v{vT}")
        k("s_lshl_b32 s27, s25, 10"); k(f"s_add_u32 s27, s27, {STATS}"); k(f"v_add_u32 v{vT}, s27, v{vT}")
        for j in range(4): k(f"ds_read_b128 v[{ST+4*j}:{ST+4*j+3}], v{vT} offset:{256*j}")
        k("s_waitcnt vmcnt(0) lgkmcnt(0)")
        if "drain" in X4: k("s_waitcnt vmcnt(0)"); k("s_barrier")
        if "drain0" in X4: k("s_waitcnt vmcnt(0)")
        if "bar" in X4: k("s_barrier")
        if "adrain" in X4 and var == "A": k("s_waitcnt vmcnt(0)")
        if "bdrain" in X4 and var != "A": k("s_waitcnt vmcnt(0)")
        nopk = ("anopk" in X4 and var == "A") or ("bnopk" in X4 and var != "A")
        def pk(op, d, a, b, c=None, sel=None):
            if not nopk:
                x = f"v_pk_{op}_f32 v[{d}:{d+1}], v[{a}:{a+1}], v[{b}:{b+1}]"
                if c is not None: x += f", v[{c}:{c+1}] " + sel
                k(x); return
            for h in range(2):
                if c is None: k(f"v_mul_f32 v{d+h}, v{a+h}, v{b+h}")
                elif sel.startswith("op_sel:[0,0,1]"): k(f"v_fma_f32 v{d+h}, v{a+h}, v{b}, v{b+1}")
                else: k(f"v_fma_f32 v{d+h}, v{a+h}, v{b}, v{b}")
        for fi in range(nf):
            for p in range(2):
                gi = fi * 2 + p
                PK = TT + 16 + 4 * (gi & 3)
                T = TT + 8 * (gi & 1)
                prs = [(2 * p + jj, h) for jj in range(2) for h in range(2)]
                P = lambda r: f"v[{r}:{r+1}]"
                for q, (j, h) in enumerate(prs):
                    g = acc(fi, 0, j) + 2 * h
                    pk("mul", T+2*q, g, g)
                for q, (j, h) in enumerate(prs):
                    c = ST + 4 * j
                    pk("fma", T+2*q, T+2*q, c, c, "op_sel:[0,0,1] op_sel_hi:[1,0,1]")
                for q, (j, h) in enumerate(prs):
                    g = acc(fi, 0, j) + 2 * h
                    pk("mul", T+2*q, T+2*q, g)
                for q, (j, h) in enumerate(prs):
                    g = acc(fi, 0, j) + 2 * h; u = acc(fi, 1, j) + 2 * h
                    k(f"v_exp_f32 v{T+2*q}, v{T+2*q}"); k(f"v_exp_f32 v{T+2*q+1}, v{T+2*q+1}")
                    pk("mul", u, u, g)
                for q, (j, h) in enumerate(prs):
                    c = ST + 4 * j + 2
                    pk("fma", T+2*q, T+2*q, c, c, "op_sel:[0,0,0] op_sel_hi:[1,0,0]")
                for q, (j, h) in enumerate(prs):
                    k(f"v_rcp_f32 v{T+2*q}, v{T+2*q}"); k(f"v_rcp_f32 v{T+2*q+1}, v{T+2*q+1}")
                for q, (j, h) in enumerate(prs):
                    u = acc(fi, 1, j) + 2 * h
                    pk("mul", u, u, T+2*q)
                for q, (j, h) in enumerate(prs):
                    u = acc(fi, 1, j) + 2 * h
                    k(f"v_cvt_pk_bf16_f32 v{PK+q}, v{u}, v{u+1}")
                k(f"v_permlane16_swap_b32 v{PK}, v{PK+2}")
                k(f"v_permlane16_swap_b32 v{PK+1}, v{PK+3}")
                k(f"buffer_store_dwordx4 v[{PK}:{PK+3}], v{vL16}, s[12:15], s{34+p} offen offset:{1024*fi}{SC}")
        if T4 and first: k("s_setprio 0")
        vstamp("p4_epi")
        if var != "B1": k(f"s_branch {ljoin}")
    lB = k.lab("p4B"); lB1 = k.lab("p4B1")
    k("s_cmp_eq_u32 s26, 0")
    k(f"s_cbranch_scc0 {lB}")
    body("A")
    k(f"{lB}:")
    k("s_bitcmp1_b32 s25, 0")
    k(f"s_cbranch_scc1 {lB1}")
    body("B0")
    k(f"{lB1}:")
    body("B1")
    k(f"{ljoin}:")
    k("s_lshl_b32 s27, s23, 7"); k(f"s_add_u32 s27, s27, {WS_CNT + C5*128}")
    signal(k, 27, vt=(vT, vT + 1))
    k.stamp("p4_sig")

CPF = int(os.environ.get("CPF", "1")); CPFW = int(os.environ.get("CPFW", "0"))
def mk():
    k = G(NAME, nvgpr=256, accum=256, total=256)
    lend = "L_end"
    k("s_cmp_ge_u32 s2, 256")
    k(f"s_cbranch_scc1 {lend}")
    if os.environ.get("SCR"):
        k("s_and_b32 s3, s2, 7"); k("s_lshl_b32 s3, s3, 5"); k("s_lshr_b32 s2, s2, 3"); k("s_or_b32 s2, s2, s3")
    k("s_load_dwordx16 s[64:79], s[0:1], 0")
    k("s_load_dwordx4 s[80:83], s[0:1], 64")
    k("v_and_b32 v1, 63, v0")
    k("v_lshrrev_b32 v2, 6, v0")
    k("s_nop 0")
    k("v_readfirstlane_b32 s20, v2")
    k.stamp("start")
    if CPF:
        k("s_getpc_b64 s[44:45]")
        k("L_cpf_pc:")
        k("s_mov_b32 s46, L_end-L_cpf_pc")
        k("s_mov_b32 s47, 0x20000")
        if CPF == 1:
            lc = k.lab("nocpf")
            k("s_lshr_b32 s3, s2, 3"); k("s_lshl_b32 s3, s3, 11")
            k(f"s_cmp_lg_u32 s20, {CPFW}"); k(f"s_cbranch_scc1 {lc}")
            k("v_lshlrev_b32 v210, 5, v1"); k("v_add_u32 v210, s3, v210")
            k("buffer_load_dword v211, v210, s[44:47], 0 offen")
            k(f"{lc}:")
        elif CPF == 2:
            k("v_lshlrev_b32 v210, 6, v0"); k("s_mov_b32 s3, 32768")
            k("buffer_load_dword v211, v210, s[44:47], 0 offen")
            k("buffer_load_dword v212, v210, s[44:47], s3 offen")
        elif CPF == 3:
            k("s_lshr_b32 s3, s2, 3"); k("s_and_b32 s3, s3, 3"); k("s_lshl_b32 s3, s3, 14")
            k("v_lshlrev_b32 v210, 5, v0")
            k("buffer_load_dword v211, v210, s[44:47], s3 offen")
    ldone = "L_done"
    phs = [phase1, phase2, lambda k: phase35(k, "wo"), phase4, lambda k: phase35(k, "down")]
    for i, ph in enumerate(phs[:UPTO]): ph(k)
    if os.environ.get("ENDW"): k("s_waitcnt vmcnt(0)")
    k.stamp("end")
    k.stamp_out()
    k("s_waitcnt vmcnt(0)")
    k(f"{lend}:")
    k("s_endpgm")
    return k, ("mk", 256, 512, LDS_BYTES)

if __name__ == "__main__":
    import sys
    sys.path.insert(0, "gen")
    from build import header
    k, _ = mk()
    o = header()
    o.append(f"; @launch grid=(256,1,1) block=(512,1,1) lds={LDS_BYTES}")
    if STAMP: o.append("; stamps: " + " ".join(k.stnames))
    o.append('.amdgcn_target "amdgcn-amd-amdhsa--gfx950"')
    o.append('.text')
    o.append(k.text())
    o.append('.section .rodata,"a"')
    o.append(k.desc())
    open(sys.argv[1], "w").write("\n".join(o) + "\n")
    print("wrote", sys.argv[1], "instrs", sum(1 for l in k.lines if l.startswith("  ")))
```

```python
from asmlib import K, srd
from common import *
import os, struct, math
STAMP = bool(int(os.environ.get("STAMP", "0")))
UPTO = int(os.environ.get("UPTO", "5"))
NAME = "sequential_preLN__mha_block__glu_gated_geglu__prompt_kernel"
WS_TS = 0x2800000
SC = " sc1"
LDS_BYTES = 163840
pX, pWQKV, pWO, pBX, pWG, pWU, pWD, pOUT, pDBG, pWS = [64 + 2 * i for i in range(10)]
C2, C3, C4, C5 = 0, 16, 24, 32
SPIN_LIMIT = 0x40000
RAMP = int(os.environ.get("RAMP", "1"))
QKS = int(os.environ.get("QKS", "0"))
PFW = int(os.environ.get("PFW", "1")); PFI = int(os.environ.get("PFI", "0"))
JIT = int(os.environ.get("JIT", "0"))
def jit(label, sreg, vdst):
    return [f"s_mov_b32 s{sreg}, {label}-L_cb", f"buffer_load_dword v{vdst}, v252, s[80:83], s{sreg} offen"]
def f2h(x): return hex(struct.unpack('<I', struct.pack('<f', x))[0])

class G(K):
    def __init__(s, *a, **kw):
        super().__init__(*a, **kw); s.nl = 0; s.nst = 0; s.stnames = []
    def lab(s, base):
        s.nl += 1; return f"L_{base}_{s.nl}"
    def stamp(s, nm):
        if not STAMP: return
        i = s.nst; s.nst += 1; s.stnames.append(nm)
        s("s_memrealtime s[84:85]"); s("s_memtime s[86:87]"); s("s_waitcnt lgkmcnt(0)")
        s(f"v_writelane_b32 v255, s84, {i}"); s(f"v_writelane_b32 v254, s86, {i}")
    def stamp_at(s, i):
        if not STAMP: return
        s("s_memrealtime s[84:85]"); s("s_memtime s[86:87]"); s("s_waitcnt lgkmcnt(0)")
        s(f"v_writelane_b32 v255, s84, {i}"); s(f"v_writelane_b32 v254, s86, {i}")
    def stamp_out(s):
        if not STAMP: return
        s("s_lshl_b32 s84, s2, 3"); s("s_add_u32 s84, s84, s20"); s("s_lshl_b32 s84, s84, 9")
        s(f"s_add_u32 s84, s84, {WS_TS}")
        s("v_lshlrev_b32 v253, 2, v1")
        s("buffer_store_dword v255, v253, s[12:15], s84 offen")
        s("buffer_store_dword v254, v253, s[12:15], s84 offen offset:256")
        s("s_waitcnt vmcnt(0)")

class VM:
    def __init__(s): s.q = []; s.c = []
    def issue(s, tag, n=1, certain=True): s.q += [tag] * n; s.c += [certain] * n
    def cnt(s, tags):
        last = -1
        for i, t in enumerate(s.q):
            if t in tags: last = i
        return sum(1 for c in s.c[last + 1:] if c) if last >= 0 else None

def periods(k, name, texts, cnt_sgpr):
    i = 0; n = len(texts)
    while i < n:
        j = i
        while j + 1 < n and texts[j + 1] == texts[i]: j += 1
        rep = j - i + 1
        if rep > 1:
            l = k.lab(name)
            k(f"s_mov_b32 s{cnt_sgpr}, 0")
            k(f"{l}:")
            for x in texts[i]: k(x)
            k(f"s_add_u32 s{cnt_sgpr}, s{cnt_sgpr}, 1")
            k(f"s_cmp_lt_u32 s{cnt_sgpr}, {rep}")
            k(f"s_cbranch_scc1 {l}")
        else:
            for x in texts[i]: k(x)
        i = j + 1

def signal(k, sline, vt=(14, 15)):
    k("s_waitcnt vmcnt(0)")
    k("s_barrier")
    l = k.lab("nosig")
    k("s_cmp_lg_u32 s20, 0"); k(f"s_cbranch_scc1 {l}")
    k("s_mov_b64 exec, 1")
    k(f"v_mov_b32 v{vt[0]}, 1"); k(f"v_mov_b32 v{vt[1]}, 0")
    k(f"buffer_atomic_add v{vt[0]}, v{vt[1]}, s[12:15], s{sline} offen sc1")
    k("s_mov_b64 exec, -1")
    k(f"{l}:")

PD = int(os.environ.get("PD", "1")); PSL = int(os.environ.get("PSL", "6"))
def wait(k, sline, target, vt=(14, 15), pr=None):
    done = k.lab("wdone"); spin = k.lab("wspin")
    k("s_cmp_lg_u32 s20, 0"); k(f"s_cbranch_scc1 {done}")
    k(f"v_mov_b32 v{vt[1]}, 0")
    k("s_mov_b32 s28, 0")
    if PD == 1 or pr is None:
        k(f"{spin}:")
        k(f"buffer_load_dword v{vt[0]}, v{vt[1]}, s[12:15], s{sline} offen sc1")
        k("s_add_u32 s28, s28, 1")
        k("s_waitcnt vmcnt(0)")
        k(f"v_readfirstlane_b32 s29, v{vt[0]}")
        k(f"s_cmp_eq_u32 s29, {target}"); k(f"s_cbranch_scc1 {done}")
        k(f"s_cmp_gt_u32 s28, {SPIN_LIMIT}"); k(f"s_cbranch_scc1 {done}")
        k("s_sleep 1")
        k(f"s_branch {spin}")
    else:
        ld = lambda i: k(f"buffer_load_dword v{pr+i}, v{vt[1]}, s[12:15], s{sline} offen sc1")
        for i in range(PD):
            ld(i)
            if i < PD - 1: k(f"s_sleep {PSL}")
        k(f"{spin}:")
        for i in range(PD):
            k(f"s_waitcnt vmcnt({PD-1})")
            k(f"v_readfirstlane_b32 s29, v{pr+i}")
            k(f"s_cmp_eq_u32 s29, {target}"); k(f"s_cbranch_scc1 {done}")
            ld(i)
        k("s_add_u32 s28, s28, 1")
        k(f"s_cmp_gt_u32 s28, {SPIN_LIMIT}"); k(f"s_cbranch_scc0 {spin}")
    k(f"{done}:")
    k("s_barrier")

def wait_multi(k, sline, target, n, vt):
    done = k.lab("wdone"); spin = k.lab("wspin"); dx = k.lab("wdx")
    k("s_cmp_lg_u32 s20, 0"); k(f"s_cbranch_scc1 {done}")
    k(f"s_mov_b64 exec, {hex((1 << n) - 1)}")
    k("s_mov_b32 s28, 0")
    k(f"{spin}:")
    k(f"buffer_load_dword v{vt[0]}, v{vt[1]}, s[12:15], s{sline} offen sc1")
    k("s_add_u32 s28, s28, 1")
    k("s_waitcnt vmcnt(0)")
    k(f"v_cmp_ne_u32 vcc, {target}, v{vt[0]}")
    k("s_cmp_eq_u64 vcc, 0"); k(f"s_cbranch_scc1 {dx}")
    k(f"s_cmp_gt_u32 s28, {SPIN_LIMIT}"); k(f"s_cbranch_scc1 {dx}")
    k("s_sleep 1")
    k(f"s_branch {spin}")
    k(f"{dx}:")
    k("s_mov_b64 exec, -1")
    k(f"{done}:")
    k("s_barrier")

def wdma_lane(k, vdst, rowbytes, t):
    k(f"v_lshrrev_b32 v{t}, 3, v1"); k(f"v_and_b32 v{t+1}, 7, v1")
    k(f"v_lshrrev_b32 v{t+2}, 2, v{t}"); k(f"v_and_b32 v{t+3}, 3, v{t}")
    k(f"v_lshl_add_u32 v{t+2}, v{t+2}, 3, v{t+3}")
    k(f"v_mul_u32_u24 v{t+2}, {rowbytes}, v{t+2}")
    k(f"v_lshrrev_b32 v{t+3}, 1, v{t+1}"); k(f"v_lshrrev_b32 v{t}, 1, v{t}")
    k(f"v_xor_b32 v{t+3}, v{t+3}, v{t}")
    k(f"v_and_b32 v{t+1}, 1, v{t+1}")
    k(f"v_lshl_add_u32 v{t+3}, v{t+3}, 1, v{t+1}")
    k(f"v_lshl_add_u32 v{vdst}, v{t+3}, 4, v{t+2}")

STL = int(os.environ.get("STL", "0"))
ESIG = int(os.environ.get("ESIG", "0"))
HOIST = int(os.environ.get("HOIST", "0")); TST = int(os.environ.get("TST", "0"))
def hoisted_tail(k, o, step, vm, R):
    PL, RMR, ONE, vP, vZ, vL16, SQ, CQ, QS, VS, vVO = [R[x] for x in ("PL", "RMR", "ONE", "vP", "vZ", "vL16", "SQ", "CQ", "QS", "VS", "vVO")]
    r0, r1 = 198, 199
    vSt = 200; vCs = 201; vTok = 203; vG = 202
    v17, v18, v19 = 209, 212, 204
    v20 = [205, 206, 207, 208]; v23 = [v17, 213, 214, 215]
    tA, tB = 216, 218
    ad = []
    ad += [f"v_lshrrev_b32 v{vSt}, 2, v0", f"v_lshlrev_b32 v{vSt}, 2, v{vSt}"]
    ad += [f"v_min_u32 v{vCs}, 191, v0", f"v_lshlrev_b32 v{vCs}, 2, v{vCs}"]
    ad += [f"v_and_b32 v{vTok}, 15, v1", "s_lshl_b32 s27, s25, 8", "s_lshl_b32 s28, s26, 6", "s_add_u32 s28, s28, s27",
           f"v_lshlrev_b32 v{tA}, 2, v{vTok}", f"v_add_u32 v{v17}, s28, v{tA}", f"v_lshrrev_b32 v{vG}, 4, v1", f"v_lshlrev_b32 v{v19}, 4, v{vG}",
           f"v_add_u32 v{v20[0]}, s28, v{v19}", "s_lshl_b32 s29, s26, 6", "s_add_u32 s29, s29, 1024",
           f"v_add_u32 v{v19}, s29, v{v19}", f"v_add_u32 v{v18}, s29, v{tA}"]
    for jj in range(1, 4):
        ad += [f"v_xor_b32 v{v20[jj]}, {jj<<6}, v{v20[0]}", f"v_xor_b32 v{v23[jj]}, {jj<<6}, v{v17}"]
    ad += ["s_lshl_b32 s27, s23, 2", "s_lshl_b32 s28, s25, 1", "s_add_u32 s27, s27, s28", "s_lshl_b32 s27, s27, 16",
           "s_lshl_b32 s28, s24, 12", "s_add_u32 s27, s27, s28", "s_lshl_b32 s28, s26, 10", "s_add_u32 s27, s27, s28",
           "s_lshr_b32 s42, s26, 1", "s_lshl_b32 s28, s42, 16", "s_add_u32 s35, s27, s28", "s_xor_b32 s28, s28, 0x10000", "s_add_u32 s37, s27, s28",
           f"s_add_u32 s36, s35, {WS_K}", f"s_add_u32 s38, s37, {WS_K}", f"s_add_u32 s35, s35, {WS_Q}", f"s_add_u32 s37, s37, {WS_Q}",
           "s_lshl_b32 s27, s24, 1", "s_add_u32 s27, s27, s42", "s_lshl_b32 s27, s27, 7",
           "s_lshl_b32 s28, s23, 3", "s_add_u32 s27, s27, s28", "s_lshl_b32 s28, s25, 2", "s_add_u32 s27, s27, s28", "s_lshl_b32 s27, s27, 10",
           "s_and_b32 s43, s26, 1", "s_lshl_b32 s28, s43, 8", "s_add_u32 s27, s27, s28", f"s_add_u32 s27, s27, {WS_VT}",
           "s_lshl_b32 s28, s42, 11", "s_add_u32 s39, s27, s28", "s_xor_b32 s28, s28, 2048", "s_add_u32 s40, s27, s28",
           f"v_lshrrev_b32 v{tA}, 5, v1", f"v_xor_b32 v{tA}, s43, v{tA}", f"v_lshlrev_b32 v{tA}, 10, v{tA}",
           f"v_bfe_u32 v{tB}, v1, 4, 1", f"v_lshl_add_u32 v{tA}, v{tB}, 9, v{tA}", f"v_lshl_add_u32 v{vVO}, v{vTok}, 4, v{tA}",
           "s_lshl_b32 s28, s43, 8", f"v_xor_b32 v{vL16}, s28, v{vL16}", "s_mov_b32 s44, 0x3e8293ee"]
    assert not QKS
    h = len(ad) // 2
    HV = int(os.environ.get("HV", "8")); HP = int(os.environ.get("HP", "11"))
    assert 8 <= HV < HP <= 13
    def chk(o_):
        rdy = k.lab("p1rdy"); spin = k.lab("p1spin")
        k(f"s_waitcnt vmcnt({vm.cnt({'VP', 'RMR'})})")
        k(f"v_cmp_eq_u32 vcc, 128, v{vP}")
        k("s_cmp_eq_u64 vcc, -1")
        k(f"s_cbranch_scc1 {rdy}")
        k("s_mov_b32 s28, 0")
        k(f"{spin}:")
        k("s_add_u32 s28, s28, 1")
        k(f"s_cmp_gt_u32 s28, {SPIN_LIMIT}")
        k(f"s_cbranch_scc1 {rdy}")
        k("s_sleep 2")
        k(f"buffer_load_dword v{vP}, v196, s[60:63], 0 offen sc1")
        k("s_waitcnt vmcnt(0)")
        k(f"v_cmp_eq_u32 vcc, 128, v{vP}")
        k("s_cmp_eq_u64 vcc, -1")
        k(f"s_cbranch_scc0 {spin}")
        k(f"{rdy}:")
    ld = []
    ld.append([f"v_and_b32 v{r0}, 3, v0", f"v_lshlrev_b32 v{r0}, 16, v{r0}", f"v_lshrrev_b32 v{r1}, 2, v0", f"v_lshl_add_u32 v{tB}, v{r1}, 3, v{r0}",
               "s_lshl_b32 s27, s23, 10", f"s_add_u32 s27, s27, {WS_ST1}"])
    for i in range(4):
        ld.append([f"buffer_load_dwordx2 v[{PL+2*i}:{PL+2*i+1}], v{tB}, s[12:15], s27 offen{SC}"] + (["s_add_u32 s27, s27, 16384"] if i < 3 else []))
    ld.append([f"s_mul_i32 s27, s24, {16*768}", f"s_add_u32 s27, s27, {WS_CS1}"])
    for i in range(16):
        ld.append([f"buffer_load_dword v{PL+8+i}, v{vCs}, s[12:15], s27 offen offset:{(i % 4) * 768}{SC}"] + ([f"s_add_u32 s27, s27, {4*768}"] if i % 4 == 3 and i < 15 else []))
    adq = [ad[:h], ad[h:]]
    for t in range(8, 14):
        if t == HV:
            k(f"buffer_load_dword v{vP}, v196, s[60:63], 0 offen sc1"); vm.issue("VP")
            k("s_lshl_b32 s27, s2, 13")
            k(f"buffer_load_dwordx4 v[{RMR}:{RMR+3}], v197, s[88:91], s27 offen"); vm.issue("RMR")
        if t == 12 and JIT & 1:
            for l in jit("L_p1tail", 27, 211): k(l)
            vm.issue("CP")
        if t == HP:
            step(o, t, 0, pre=chk, inj=ld, inj0=0)
            vm.issue("PART", 20)
        else:
            step(o, t, 0, inj=adq.pop(0) if adq and t >= HV else None, inj0=0)
        if TST and t == HP: k.stamp(f"t{t}_0")
        if t < 13: step(o, t, 1, inj=adq.pop(0) if adq and t >= HV else None, inj0=0)
        if TST and t < 13: k.stamp(f"t{t}")
    assert not adq
    rs = [f"v_mov_b32 v{r0}, 0"] + [f"v_dot2c_f32_bf16 v{r0}, v{RMR+r}, v{ONE}" for r in range(4)]
    rs += [f"v_add_f32_dpp v{r0}, v{r0}, v{r0} row_ror:{ro} row_mask:0xf bank_mask:0xf" for ro in (8, 4, 2, 1)]
    for sw in ("v_permlane16_swap_b32", "v_permlane32_swap_b32"):
        rs += [f"v_mov_b32 v{r1}, v{r0}", f"{sw} v{r0}, v{r1}", f"v_add_f32 v{r0}, v{r0}, v{r1}"]
    rs += ["s_lshl_b32 s27, s20, 2", "s_add_u32 s27, s27, 2048", f"v_mov_b32 v{r1}, s27", f"ds_write_b32 v{r1}, v{r0}"]
    step(o, 13, 1, inj=rs, inj0=0)
    if TST: k.stamp("t13")
    st = [f"v_add_f32 v{PL}, v{PL}, v{PL+2}", f"v_add_f32 v{PL+1}, v{PL+1}, v{PL+3}", f"v_add_f32 v{PL+4}, v{PL+4}, v{PL+6}", f"v_add_f32 v{PL+5}, v{PL+5}, v{PL+7}",
          f"v_add_f32 v{PL}, v{PL}, v{PL+4}", f"v_add_f32 v{PL+1}, v{PL+1}, v{PL+5}"]
    cs = [f"v_add_f32 v{PL+8+i}, v{PL+8+i}, v{PL+8+i+w}" for w in (8, 4, 2, 1) for i in range(w)]
    lm = k.lab("nomx")
    ch = []
    for qp in ("[1,0,3,2]", "[2,3,0,1]"):
        ch += [f"v_add_f32_dpp v{PL}, v{PL}, v{PL} quad_perm:{qp} row_mask:0xf bank_mask:0xf",
               f"v_add_f32_dpp v{PL+1}, v{PL+1}, v{PL+1} quad_perm:{qp} row_mask:0xf bank_mask:0xf"]
    ch += [f"v_mul_f32 v{PL}, 0x3a800000, v{PL}", f"v_mul_f32 v{PL+1}, 0x3a800000, v{PL+1}",
           ["s_cmp_lg_u32 s24, 0", f"s_cbranch_scc1 {lm}", "s_lshl_b32 s27, s23, 9", f"s_add_u32 s27, s27, {WS_MX}",
            f"buffer_store_dword v{PL}, v{vSt}, s[12:15], s27 offen{SC}", f"{lm}:"],
           f"v_fma_f32 v{PL+1}, -v{PL}, v{PL}, v{PL+1}", f"v_max_f32 v{PL+1}, 0, v{PL+1}", f"v_add_f32 v{PL+1}, 0x3727c5ac, v{PL+1}",
           f"v_rsq_f32 v{PL+1}, v{PL+1}", f"v_mul_f32 v{PL+2}, v{PL}, v{PL+1}", f"v_sub_f32 v{PL+2}, 0, v{PL+2}",
           f"ds_write_b32 v{vSt}, v{PL+1}", f"ds_write_b32 v{vSt}, v{PL+2} offset:512"]
    mix = list(st)
    ci = 0
    for x in ch:
        mix.append(x)
        if ci < len(cs): mix.append(cs[ci]); ci += 1
    mix += cs[ci:]
    mix.append(f"ds_write_b32 v{vCs}, v{PL+8} offset:1024")
    def wpart(o_): k(f"s_waitcnt vmcnt({vm.cnt({'PART'})})")
    step(o, 14, 0, pre=wpart, inj=mix, inj0=0)
    if TST: k.stamp("t14_0")
    vm.issue("MX", 1, certain=False)
    rd = [f"ds_read2_b32 v[{SQ+2*jj}:{SQ+2*jj+1}], v{v23[jj]} offset0:0 offset1:128" for jj in range(4)]
    rd += [f"ds_read_b128 v[{CQ}:{CQ+3}], v{v19}", f"ds_read_b128 v[{CQ+4}:{CQ+7}], v{v19} offset:256", f"ds_read_b32 v152, v{v18} offset:512"]
    for jj in range(4):
        rd += [f"ds_read_b128 v[{VS[jj]}:{VS[jj]+3}], v{v20[jj]}", f"ds_read_b128 v[{VS[jj]+4}:{VS[jj]+7}], v{v20[jj]} offset:512"]
    RW = 56
    rd += [f"ds_read_b128 v[{RW}:{RW+3}], v{vZ} offset:2048", f"ds_read_b128 v[{RW+4}:{RW+7}], v{vZ} offset:2064"]
    step(o, 14, 1, inj=rd, inj0=4)
    if TST: k.stamp("t14")
    q = []
    for jj in range(4):
        q += [f"v_mul_f32 v{QS+2*jj}, s44, v{SQ+2*jj}", f"v_mul_f32 v{QS+2*jj+1}, s44, v{SQ+2*jj+1}"]
    l7 = k.lab("norm")
    b7 = ["s_cmp_lg_u32 s20, 7", f"s_cbranch_scc1 {l7}"]
    for r in range(4):
        b7 += [f"v_add_f32 v{RW+2*r}, v{RW+2*r}, v{RW+2*r+1}"]
    for r in range(4):
        b7 += [f"v_mul_f32 v{RW+2*r}, 0x3a800000, v{RW+2*r}"]
    b7 += [f"v_cvt_pk_bf16_f32 v{r0}, v{RW}, v{RW+2}", f"v_cvt_pk_bf16_f32 v{r1}, v{RW+4}, v{RW+6}",
           "s_lshl_b32 s27, s2, 3", f"s_add_u32 s27, s27, {WS_RM}", "s_mov_b64 exec, 1",
           f"buffer_store_dwordx2 v[{r0}:{r1}], v{vZ}, s[12:15], s27 offen{SC}", "s_mov_b64 exec, -1", f"{l7}:"]
    step(o, 15, 0, inj=q + [b7], inj0=0)
    step(o, 15, 1)
    if JIT & 1: k("L_p1tail:")
    k.stamp("p1_loop")

def hoist_ad(R):
    vL16, vVO = R["vL16"], R["vVO"]
    vSt = 200; vCs = 201; vTok = 203; vG = 202
    v17, v18, v19 = 209, 212, 204
    v20 = [205, 206, 207, 208]; v23 = [v17, 213, 214, 215]
    tA, tB, vSa, vCg = 216, 198, 218, 219
    ad = []
    ad += [f"v_lshrrev_b32 v{vSt}, 2, v0", f"v_and_b32 v{tB}, 3, v0", f"v_min_u32 v{vCs}, 95, v{vSt}", f"v_lshlrev_b32 v{vCs}, 3, v{vCs}",
           f"v_mul_u32_u24 v{vCg}, 3072, v{tB}", f"v_add_u32 v{vCg}, v{vCg}, v{vCs}",
           f"v_lshlrev_b32 v{tB}, {12 if STL & 1 else 16}, v{tB}", f"v_lshl_add_u32 v{vSa}, v{vSt}, 3, v{tB}", f"v_lshlrev_b32 v{vSt}, 2, v{vSt}"]
    ad += [f"v_and_b32 v{vTok}, 15, v1", "s_lshl_b32 s27, s25, 8", "s_lshl_b32 s28, s26, 6", "s_add_u32 s28, s28, s27",
           f"v_lshlrev_b32 v{tA}, 2, v{vTok}", f"v_add_u32 v{v17}, s28, v{tA}", f"v_lshrrev_b32 v{vG}, 4, v1", f"v_lshlrev_b32 v{v19}, 4, v{vG}",
           f"v_add_u32 v{v20[0]}, s28, v{v19}", "s_lshl_b32 s29, s26, 6", "s_add_u32 s29, s29, 1024",
           f"v_add_u32 v{v19}, s29, v{v19}", f"v_add_u32 v{v18}, s29, v{tA}"]
    for jj in range(1, 4):
        ad += [f"v_xor_b32 v{v20[jj]}, {jj<<6}, v{v20[0]}", f"v_xor_b32 v{v23[jj]}, {jj<<6}, v{v17}"]
    ad += ["s_lshl_b32 s27, s23, 2", "s_lshl_b32 s28, s25, 1", "s_add_u32 s27, s27, s28", "s_lshl_b32 s27, s27, 16",
           "s_lshl_b32 s28, s24, 12", "s_add_u32 s27, s27, s28", "s_lshl_b32 s28, s26, 10", "s_add_u32 s27, s27, s28",
           "s_lshr_b32 s42, s26, 1", "s_lshl_b32 s28, s42, 16", "s_add_u32 s35, s27, s28", "s_xor_b32 s28, s28, 0x10000", "s_add_u32 s37, s27, s28",
           f"s_add_u32 s36, s35, {WS_K}", f"s_add_u32 s38, s37, {WS_K}", f"s_add_u32 s35, s35, {WS_Q}", f"s_add_u32 s37, s37, {WS_Q}",
           "s_lshl_b32 s27, s24, 1", "s_add_u32 s27, s27, s42", "s_lshl_b32 s27, s27, 7",
           "s_lshl_b32 s28, s23, 3", "s_add_u32 s27, s27, s28", "s_lshl_b32 s28, s25, 2", "s_add_u32 s27, s27, s28", "s_lshl_b32 s27, s27, 10",
           "s_and_b32 s43, s26, 1", "s_lshl_b32 s28, s43, 8", "s_add_u32 s27, s27, s28", f"s_add_u32 s27, s27, {WS_VT}",
           "s_lshl_b32 s28, s42, 11", "s_add_u32 s39, s27, s28", "s_xor_b32 s28, s28, 2048", "s_add_u32 s40, s27, s28",
           f"v_lshrrev_b32 v{tA}, 5, v1", f"v_xor_b32 v{tA}, s43, v{tA}", f"v_lshlrev_b32 v{tA}, 10, v{tA}",
           f"v_bfe_u32 v{tB}, v1, 4, 1", f"v_lshl_add_u32 v{tA}, v{tB}, 9, v{tA}", f"v_lshl_add_u32 v{vVO}, v{vTok}, 4, v{tA}",
           "s_lshl_b32 s28, s43, 8", f"v_xor_b32 v{vL16}, s28, v{vL16}", "s_mov_b32 s44, 0x3e8293ee",
           f"s_lshl_b32 s41, s23, {14 if STL & 1 else 10}", f"s_add_u32 s41, s41, {WS_ST1}", f"s_mul_i32 s45, s24, {16*768}", f"s_add_u32 s45, s45, {WS_CS1}"]
    return ad

def hoisted_tail2(k, o, step, vm, R):
    PL, RMR, ONE, vP, vZ, vL16, SQ, CQ, QS, VS, vVO = [R[x] for x in ("PL", "RMR", "ONE", "vP", "vZ", "vL16", "SQ", "CQ", "QS", "VS", "vVO")]
    r0, r1 = 198, 199
    vSt = 200; vCs = 201
    v17, v18, v19 = 209, 212, 204
    v20 = [205, 206, 207, 208]; v23 = [v17, 213, 214, 215]
    vSa, vCg = 218, 219
    HV = int(os.environ.get("HV", "9")); HP = int(os.environ.get("HP", "11")); HC = HP + 1
    assert 8 <= HV < HP <= 11
    st_ = lambda nm: k.stamp(nm) if TST else None
    def chk(o_):
        rdy = k.lab("p1rdy"); spin = k.lab("p1spin")
        k(f"s_waitcnt vmcnt({vm.cnt({'VP'})})")
        k(f"v_cmp_eq_u32 vcc, 128, v{vP}")
        k("s_cmp_eq_u64 vcc, -1")
        k(f"s_cbranch_scc1 {rdy}")
        k("s_mov_b32 s28, 0")
        k(f"{spin}:")
        k("s_add_u32 s28, s28, 1")
        k(f"s_cmp_gt_u32 s28, {SPIN_LIMIT}")
        k(f"s_cbranch_scc1 {rdy}")
        k("s_sleep 2")
        k(f"buffer_load_dword v{vP}, v196, s[60:63], 0 offen sc1")
        k("s_waitcnt vmcnt(0)")
        k(f"v_cmp_eq_u32 vcc, 128, v{vP}")
        k("s_cmp_eq_u64 vcc, -1")
        k(f"s_cbranch_scc0 {spin}")
        k(f"{rdy}:")
    vp = [f"buffer_load_dword v{vP}, v196, s[60:63], 0 offen sc1", "s_lshl_b32 s27, s2, 13",
          f"buffer_load_dwordx4 v[{RMR}:{RMR+3}], v197, s[88:91], s27 offen"]
    la = []
    for i in range(4):
        if STL & 1: la.append(f"buffer_load_dwordx2 v[{PL+2*i}:{PL+2*i+1}], v{vSa}, s[12:15], s41 offen offset:{1024*i}{SC}")
        else: la.append([f"buffer_load_dwordx2 v[{PL+2*i}:{PL+2*i+1}], v{vSa}, s[12:15], s41 offen{SC}"] + (["s_add_u32 s41, s41, 16384"] if i < 3 else []))
    lb = [f"buffer_load_dwordx2 v[{PL+8+2*i}:{PL+8+2*i+1}], v{vCg}, s[12:15], s45 offen offset:{768*i}{SC}" for i in range(4)]
    rs = [f"v_mov_b32 v{r0}, 0"] + [f"v_dot2c_f32_bf16 v{r0}, v{RMR+r}, v{ONE}" for r in range(4)]
    rs += [f"v_add_f32_dpp v{r0}, v{r0}, v{r0} row_ror:{ro} row_mask:0xf bank_mask:0xf" for ro in (8, 4, 2, 1)]
    for sw in ("v_permlane16_swap_b32", "v_permlane32_swap_b32"):
        rs += [f"v_mov_b32 v{r1}, v{r0}", f"{sw} v{r0}, v{r1}", f"v_add_f32 v{r0}, v{r0}, v{r1}"]
    rs += ["s_lshl_b32 s27, s20, 2", "s_add_u32 s27, s27, 2048", f"v_mov_b32 v{r1}, s27", f"ds_write_b32 v{r1}, v{r0}"]
    def red(b):
        x = [f"v_add_f32 v{b}, v{b}, v{b+2}", f"v_add_f32 v{b+1}, v{b+1}, v{b+3}", f"v_add_f32 v{b+4}, v{b+4}, v{b+6}", f"v_add_f32 v{b+5}, v{b+5}, v{b+7}",
             f"v_add_f32 v{b}, v{b}, v{b+4}", f"v_add_f32 v{b+1}, v{b+1}, v{b+5}"]
        for qp in ("[1,0,3,2]", "[2,3,0,1]"):
            x += [f"v_add_f32_dpp v{b}, v{b}, v{b} quad_perm:{qp} row_mask:0xf bank_mask:0xf",
                  f"v_add_f32_dpp v{b+1}, v{b+1}, v{b+1} quad_perm:{qp} row_mask:0xf bank_mask:0xf"]
        return x
    sa = red(PL) + [f"v_mul_f32 v{PL}, 0x3a800000, v{PL}", f"v_mul_f32 v{PL+1}, 0x3a800000, v{PL+1}",
          f"v_fma_f32 v{PL+1}, -v{PL}, v{PL}, v{PL+1}", f"v_max_f32 v{PL+1}, 0, v{PL+1}", f"v_add_f32 v{PL+1}, 0x3727c5ac, v{PL+1}",
          f"v_rsq_f32 v{PL+1}, v{PL+1}", f"v_mul_f32 v{PL+2}, v{PL}, v{PL+1}", f"v_sub_f32 v{PL+2}, 0, v{PL+2}",
          f"ds_write_b32 v{vSt}, v{PL+1}", f"ds_write_b32 v{vSt}, v{PL+2} offset:512"]
    lm = k.lab("nomx")
    sb = red(PL + 8) + [f"ds_write_b64 v{vCs}, v[{PL+8}:{PL+9}] offset:1024",
          ["s_cmp_lg_u32 s24, 0", f"s_cbranch_scc1 {lm}", "s_lshl_b32 s27, s23, 9", f"s_add_u32 s27, s27, {WS_MX}",
           f"buffer_store_dword v{PL}, v{vSt}, s[12:15], s27 offen{SC}", f"{lm}:"]]
    for t in range(8, 13):
        if t == HV:
            step(o, t, 0, inj=vp, inj0=2); vm.issue("VP"); vm.issue("RMR")
        elif t == HP:
            step(o, t, 0, pre=chk, inj=la, inj0=1); vm.issue("PA", 4)
        elif t == HC:
            step(o, t, 0, inj=lb, inj0=1); vm.issue("PB", 4)
        else:
            step(o, t, 0)
        st_(f"t{t}_0")
        step(o, t, 1)
        st_(f"t{t}")
    step(o, 13, 0, inj=rs, inj0=0)
    st_("t13_0")
    step(o, 13, 1, extra_need=("PA", "RMR"), inj=sa, inj0=0)
    st_("t13")
    def wpb(o_): k(f"s_waitcnt vmcnt({vm.cnt({'PB'})})")
    step(o, 14, 0, pre=wpb, inj=sb, inj0=0)
    vm.issue("MX", 1, certain=False)
    st_("t14_0")
    RW = 56
    rd = [f"ds_read2_b32 v[{SQ+2*jj}:{SQ+2*jj+1}], v{v23[jj]} offset0:0 offset1:128" for jj in range(4)]
    rd += [f"ds_read_b128 v[{RW}:{RW+3}], v{vZ} offset:2048", f"ds_read_b128 v[{RW+4}:{RW+7}], v{vZ} offset:2064"]
    step(o, 14, 1, inj=rd, inj0=6)
    st_("t14")
    q = []
    for jj in range(4):
        q += [f"v_mul_f32 v{QS+2*jj}, s44, v{SQ+2*jj}", f"v_mul_f32 v{QS+2*jj+1}, s44, v{SQ+2*jj+1}"]
    l7 = k.lab("norm")
    b7 = ["s_cmp_lg_u32 s20, 7", f"s_cbranch_scc1 {l7}"]
    for r in range(4):
        b7 += [f"v_add_f32 v{RW+2*r}, v{RW+2*r}, v{RW+2*r+1}"]
    for r in range(4):
        b7 += [f"v_mul_f32 v{RW+2*r}, 0x3a800000, v{RW+2*r}"]
    b7 += [f"v_cvt_pk_bf16_f32 v{r0}, v{RW}, v{RW+2}", f"v_cvt_pk_bf16_f32 v{r1}, v{RW+4}, v{RW+6}",
           "s_lshl_b32 s27, s2, 3", f"s_add_u32 s27, s27, {WS_RM}", "s_mov_b64 exec, 1",
           f"buffer_store_dwordx2 v[{r0}:{r1}], v{vZ}, s[12:15], s27 offen{SC}", "s_mov_b64 exec, -1", f"{l7}:"]
    cq = [f"ds_read_b128 v[{CQ}:{CQ+3}], v{v19}", f"ds_read_b128 v[{CQ+4}:{CQ+7}], v{v19} offset:256"]
    step(o, 15, 0, inj=q + cq + [b7], inj0=0)
    st_("t15_0")
    vr = [f"ds_read_b32 v152, v{v18} offset:512"]
    for jj in range(4):
        vr += [f"ds_read_b128 v[{VS[jj]}:{VS[jj]+3}], v{v20[jj]}", f"ds_read_b128 v[{VS[jj]+4}:{VS[jj]+7}], v{v20[jj]} offset:512"]
    step(o, 15, 1, inj=vr, inj0=0)
    k.stamp("p1_loop")

def phase1(k):
    NS = 4; SLOT = 40960; BOFF = 24576
    ACC = 64
    vA = [2, 3]; vW = [10, 11, 12]; vX = [13, 4]; vL16 = 5; vZ = 6; vP = 7
    A = [16, 28]; B = [40, 112]
    VB = 128; DC = 144; D1 = 156; D2 = 160; ONE = 164; PL = 168
    RMR = 192
    acc = lambda m, j: ACC + (m * 4 + j) * 4
    k("s_and_b32 s21, s2, 7"); k("s_lshr_b32 s22, s2, 3")
    k("s_and_b32 s23, s21, 1"); k("s_lshl_b32 s23, s23, 3"); k("s_and_b32 s24, s22, 7"); k("s_add_u32 s23, s23, s24")
    k("s_lshr_b32 s24, s21, 1"); k("s_lshl_b32 s24, s24, 2"); k("s_lshr_b32 s25, s22, 3"); k("s_add_u32 s24, s24, s25")
    k("s_and_b32 s25, s20, 1")
    k("s_lshr_b32 s26, s20, 1")
    wdma_lane(k, vW[0], 6144, 14)
    if QKS:
        for m in (1, 2):
            k(f"s_add_u32 s27, s24, {m*QKS}"); k("s_and_b32 s27, s27, 15"); k("s_sub_u32 s27, s27, s24")
            k("s_lshl_b32 s27, s27, 7"); k(f"s_add_u32 s27, s27, {2048*m}")
            k(f"v_add_u32 v{vW[m]}, s27, v{vW[0]}")
    else:
        k(f"v_add_u32 v{vW[1]}, 2048, v{vW[0]}")
        k(f"v_add_u32 v{vW[2]}, 4096, v{vW[0]}")
    k("v_lshrrev_b32 v14, 3, v1"); k("v_and_b32 v15, 7, v1")
    k("v_lshrrev_b32 v17, 4, v1")
    k("v_xor_b32 v17, v17, v15")
    k("v_lshlrev_b32 v17, 4, v17")
    k(f"v_lshl_add_u32 v{vX[0]}, v14, 11, v17")
    k(f"v_xor_b32 v{vX[1]}, 64, v{vX[0]}")
    k(f"v_add_u32 v{vX[1]}, {16384 - 1024}, v{vX[1]}")
    k(f"v_lshlrev_b32 v{vL16}, 4, v1")
    k("s_lshr_b32 s27, s20, 2"); k("s_lshl_b32 s27, s27, 5")
    k("s_bfe_u32 s28, s20, 0x10001"); k("s_lshl_b32 s28, s28, 4"); k("s_add_u32 s27, s27, s28")
    k("s_lshl_b32 s28, s25, 2"); k("s_add_u32 s27, s27, s28")
    k("s_mul_i32 s48, s27, 6144"); k("s_lshl_b32 s28, s24, 7"); k("s_add_u32 s48, s48, s28")
    k(f"s_add_u32 s46, s48, {16*64*6144}")
    k("s_lshl_b32 s49, s23, 3"); k("s_add_u32 s49, s49, s20"); k("s_lshl_b32 s49, s49, 15")
    k("s_add_u32 s27, s23, s24"); k("s_and_b32 s27, s27, 15")
    k(f"s_mul_i32 s28, s27, {64*6144}"); k("s_add_u32 s30, s48, s28")
    k("s_lshl_b32 s28, s27, 7"); k("s_add_u32 s31, s49, s28")
    k("s_lshl_b32 s32, s20, 10")
    k("s_lshl_b32 s33, s20, 11"); k(f"s_add_u32 s33, s33, {BOFF}")
    k.stamp("p1_pre")
    k("s_waitcnt lgkmcnt(0)")
    k.stamp("p1_ka")
    srd(k, 8, pWQKV, D * 3 * D * 2)
    srd(k, 12, pWS, WS_SIZE)
    srd(k, 16, pX, MB4)
    def dma(slot):
        o = []
        for m in range(3):
            o.append([f"s_add_u32 m0, s32, {slot*SLOT + m*8192}", f"buffer_load_dwordx4 v{vW[m]}, s[8:11], s30 offen lds"])
        o.append([f"s_add_u32 m0, s33, {slot*SLOT}", f"buffer_load_dwordx4 v{vX[0]}, s[16:19], s31 offen lds"])
        o.append([f"buffer_load_dwordx4 v{vX[1]}, s[16:19], s31 offen offset:1024 lds"])
        return o
    adv = [f"s_add_u32 s30, s30, {64*6144}", "s_add_u32 s31, s31, 128", "s_cmp_eq_u32 s30, s46", "s_cselect_b32 s30, s48, s30", "s_cselect_b32 s31, s49, s31"]
    vm = VM()
    def issue_stage(st):
        for d in dma(st % NS):
            for l in d: k(l)
        for l in adv: k(l)
        vm.issue(("S", st), 5)
    NPRO = 2 if RAMP else NS
    issue_stage(0)
    if not RAMP:
        for st in range(1, NS): issue_stage(st)
    k.stamp("p1_dma")
    srd(k, 88, pWO, D * D * 2)
    k("v_lshlrev_b32 v197, 4, v0")
    k("v_mov_b32 v14, v197")
    l0 = k.lab("noinit")
    k("s_cmp_lg_u32 s2, 0"); k(f"s_cbranch_scc1 {l0}")
    for r in range(4): k(f"v_mov_b32 v{PL+r}, 0")
    k(f"s_mov_b32 s27, {WS_CNT}")
    k(f"buffer_store_dwordx4 v[{PL}:{PL+3}], v14, s[12:15], s27 offen{SC}")
    k(f"{l0}:")
    srd(k, 60, pDBG, 256)
    if JIT:
        k("s_getpc_b64 s[80:81]"); k("L_cb:"); k("s_mov_b32 s82, L_end-L_cb"); k("s_mov_b32 s83, 0x20000")
        k("s_lshr_b32 s27, s2, 3"); k("s_lshl_b32 s27, s27, 3"); k("s_add_u32 s27, s27, s20"); k("s_lshl_b32 s27, s27, 8")
        k("v_and_b32 v252, 3, v1"); k("v_lshlrev_b32 v252, 6, v252"); k("v_add_u32 v252, s27, v252")
    k("v_lshrrev_b32 v14, 4, v1")
    k("v_bfe_u32 v15, v1, 2, 2")
    k("v_lshrrev_b32 v16, 1, v14"); k("v_and_b32 v17, 1, v14")
    k("v_lshlrev_b32 v16, 4, v16"); k("v_lshl_add_u32 v16, v17, 2, v16"); k("v_add_u32 v16, v16, v15")
    k("v_lshlrev_b32 v16, 7, v16")
    k("v_lshrrev_b32 v18, 1, v15"); k("v_lshl_add_u32 v18, v17, 1, v18")
    k("v_xor_b32 v18, s26, v18")
    k("v_lshl_add_u32 v16, v18, 5, v16")
    k("v_and_b32 v18, 3, v1")
    k(f"v_lshl_add_u32 v{vA[0]}, v18, 3, v16")
    k(f"v_add_u32 v{vA[1]}, {2*SLOT}, v{vA[0]}")
    for i in range(1, 4): k(f"v_cmp_eq_u32 s[{48+2*i}:{49+2*i}], {i}, v18")
    if RAMP:
        if os.environ.get("XST"): k.stamp("p1_b0")
        k("s_barrier")
        if os.environ.get("XST"): k.stamp("p1_b1")
        issue_stage(1)
        if os.environ.get("XST"): k.stamp("p1_s1")
    k("v_cmp_eq_u32 s[56:57], v14, v15")
    k("v_and_b32 v15, 15, v1")
    k("v_cmp_eq_u32 s[58:59], 0, v15")
    k("v_lshrrev_b32 v16, 1, v15"); k("v_xor_b32 v16, v16, v14"); k("v_lshlrev_b32 v16, 4, v16")
    k("v_lshl_add_u32 v16, v15, 7, v16")
    k("s_cmp_eq_u32 s25, 0")
    k("s_cselect_b32 s58, s58, 0"); k("s_cselect_b32 s59, s59, 0")
    k("s_lshl_b32 s28, s25, 13"); k(f"s_add_u32 s28, s28, {BOFF}")
    for jj in range(4):
        k(f"s_xor_b32 s27, s26, {jj}"); k("s_lshl_b32 s27, s27, 11"); k("s_add_u32 s27, s27, s28")
        k(f"v_add_u32 v{VB+jj}, s27, v16")
        k(f"v_xor_b32 v{VB+4+jj}, 64, v{VB+jj}")
        k(f"v_add_u32 v{VB+8+jj}, {2*SLOT}, v{VB+jj}")
        k(f"v_add_u32 v{VB+12+jj}, {2*SLOT}, v{VB+4+jj}")
    k(f"v_mov_b32 v{vZ}, 0")
    k("v_lshlrev_b32 v8, 3, v15")
    k("s_lshl_b32 s42, s23, 3"); k("s_lshl_b32 s27, s25, 2"); k("s_add_u32 s42, s42, s27"); k("s_add_u32 s42, s42, s26")
    if STL & 1:
        k("s_lshl_b32 s42, s25, 2"); k("s_add_u32 s42, s42, s26"); k("s_lshl_b32 s42, s42, 7")
        k("s_lshl_b32 s27, s23, 14"); k("s_add_u32 s42, s42, s27"); k("s_lshl_b32 s27, s24, 10"); k("s_add_u32 s42, s42, s27"); k(f"s_add_u32 s42, s42, {WS_ST1}")
    else:
        k("s_lshl_b32 s42, s42, 7"); k("s_lshl_b32 s27, s24, 14"); k("s_add_u32 s42, s42, s27"); k(f"s_add_u32 s42, s42, {WS_ST1}")
    k("v_lshlrev_b32 v9, 4, v14")
    k("s_lshl_b32 s43, s24, 4"); k("s_add_u32 s43, s43, s23"); k("s_mul_i32 s43, s43, 768")
    k("s_lshl_b32 s27, s26, 6"); k("s_add_u32 s43, s43, s27"); k(f"s_add_u32 s43, s43, {WS_CS1}")
    k("v_and_b32 v196, 1, v1"); k("v_lshlrev_b32 v196, 7, v196")
    for r in range(ACC, ACC + 48): k(f"v_mov_b32 v{r}, 0")
    for r in range(DC, DC + 20): k(f"v_mov_b32 v{r}, 0")
    for r in range(4): k(f"v_mov_b32 v{ONE+r}, 0x3f803f80")
    def reads(buf, slot, kb):
        o = []
        pr = slot >> 1; so = (slot & 1) * SLOT
        def rA(m):
            return [f"ds_read_b64_tr_b16 v[{A[buf]+4*m+2*t}:{A[buf]+4*m+2*t+1}], v{vA[pr]} offset:{so + m*8192 + kb*4096 + t*1024}" for t in range(2)]
        def rB(j):
            return [f"ds_read_b128 v[{B[buf]+4*j}:{B[buf]+4*j+3}], v{VB + pr*8 + kb*4 + j} offset:{so}"]
        o += rA(0)
        for j in range(4): o += rB(j)
        o += rA(1) + rA(2)
        return o
    def side(buf):
        o = []
        fb = f"v[{B[buf]}:{B[buf]+3}]"; on = f"v[{ONE}:{ONE+3}]"
        for m in range(3):
            o.append(f"v_mfma_f32_16x16x32_bf16 v[{DC+4*m}:{DC+4*m+3}], v[{A[buf]+4*m}:{A[buf]+4*m+3}], {on}, v[{DC+4*m}:{DC+4*m+3}]")
        o.append(f"v_mfma_f32_16x16x32_bf16 v[{D1}:{D1+3}], {on}, {fb}, v[{D1}:{D1+3}]")
        o.append(f"v_mfma_f32_16x16x32_bf16 v[{D2}:{D2+3}], {fb}, {fb}, v[{D2}:{D2+3}]")
        return o
    def once(lines):
        l = k.lab("once")
        k("s_cmp_lg_u32 s34, 0"); k(f"s_cbranch_scc1 {l}")
        for x in lines: k(x)
        k(f"{l}:")
    def publish():
        o = [f"v_cndmask_b32 v{D2}, v{D2}, v{D2+1}, s[50:51]", f"v_cndmask_b32 v{D2}, v{D2}, v{D2+2}, s[52:53]", f"v_cndmask_b32 v{D2}, v{D2}, v{D2+3}, s[54:55]",
             f"v_mov_b32 v{D1+1}, v{D2}",
             "s_mov_b64 exec, s[56:57]",
             f"buffer_store_dwordx2 v[{D1}:{D1+1}], v8, s[12:15], s42 offen{SC}",
             "s_mov_b64 exec, s[58:59]"]
        for m in range(3):
            o.append(f"buffer_store_dwordx4 v[{DC+4*m}:{DC+4*m+3}], v9, s[12:15], s43 offen offset:{256*m}{SC}")
        o.append("s_mov_b64 exec, -1")
        return o
    def sig1():
        l = k.lab("nosig1")
        return ["s_cmp_lg_u32 s20, 0", f"s_cbranch_scc1 {l}", "s_mov_b64 exec, 1", "v_mov_b32 v14, 1",
                "s_and_b32 s27, s2, 1", "s_lshl_b32 s27, s27, 7",
                f"buffer_atomic_add v14, v{vZ}, s[60:63], s27 offen sc1", "s_mov_b64 exec, -1", f"{l}:"]
    k.stamp("p1_set")
    k(f"s_waitcnt vmcnt({vm.cnt({('S', 0)})})")
    k.stamp("p1_w0")
    k("s_barrier")
    k.stamp("p1_go")
    for l in reads(0, 0, 0): k(l)
    NT = 16
    def sched(t, kb):
        if RAMP and t < 2: return [2, 3, 4, 5][2 * t + kb]
        if kb == 1 and t + NS < NT: return t + NS
        return None
    def step(o, t, kb, side_here=False, pre=None, post=None, extra_need=(), inj=None, inj0=0):
        cur = kb; nxt = kb ^ 1; last = t == NT - 1
        if kb == 0:
            o.append("s_waitcnt lgkmcnt(0)")
            rd = reads(nxt, t % NS, 1)
        elif last:
            o.append("s_waitcnt lgkmcnt(0)"); rd = []
        else:
            o.append(f"s_waitcnt vmcnt({vm.cnt({('S', t + 1)} | set(extra_need))}) lgkmcnt(0)")
            o.append("s_barrier")
            rd = reads(nxt, (t + 1) % NS, 0)
        st = sched(t, kb)
        dm = dma(st % NS) if st is not None else []
        if pre: pre(o)
        if st is not None: vm.issue(("S", st), 5)
        mf = []
        for m in range(3):
            for j in range(4):
                a = acc(m, j); fa = f"v[{A[cur]+4*m}:{A[cur]+4*m+3}]"; fb = f"v[{B[cur]+4*j}:{B[cur]+4*j+3}]"
                if m == 2: fa, fb = fb, fa
                mf.append(f"v_mfma_f32_16x16x32_bf16 v[{a}:{a+3}], {fa}, {fb}, v[{a}:{a+3}]")
        gaps = [[] for _ in mf]
        for q, r in enumerate(rd): gaps[q].append(r)
        pos = [1, 3, 5, 7, 9]
        for q, d in enumerate(dm):
            if len(d) == 2:
                gaps[pos[q] - 1].append(d[0]); gaps[pos[q]].append(d[1])
            else:
                gaps[pos[q]].append(d[0])
        if dm: gaps[10] += adv
        if inj:
            ng = len(mf) - inj0
            for q, it in enumerate(inj):
                gaps[inj0 + q * ng // len(inj)] += (it if isinstance(it, list) else [it])
        for g, mm in enumerate(mf):
            o.append(mm); o += gaps[g]
        if side_here: o += side(cur)
        if post: post(o)
    texts = []
    for per in range(2 if HOIST else 3):
        o = []
        for t in range(per * 4, per * 4 + 4):
            if HOIST == 2 and 4 <= t < 8:
                ad = hoist_ad(dict(vL16=vL16, vVO=217)); n4 = (len(ad) + 3) // 4
                step(o, t, 0, inj=ad[(t - 4) * n4:(t - 3) * n4], inj0=0)
            else:
                step(o, t, 0, side_here=(t == 0))
            if t == 1 and not ESIG:
                o += publish(); vm.issue("PUB", 4, certain=False)
            step(o, t, 1, side_here=(t == 0), extra_need=("PUB",) if t == 3 - ESIG else ())
            if t == 0 and ESIG:
                o += publish(); vm.issue("PUB", 4, certain=False)
            if t == 3 - ESIG: o += sig1(); vm.issue("SIG", 1, certain=False)
        texts.append(o)
    periods(k, "p1loop", texts, 34)
    if TST: k.stamp("t11" if not HOIST else "t7")
    def partial_loads():
        rdy = k.lab("p1rdy"); spin = k.lab("p1spin"); nocs = k.lab("p1nocs")
        k(f"v_cmp_eq_u32 vcc, 128, v{vP}")
        k("s_cmp_eq_u64 vcc, -1")
        k(f"s_cbranch_scc1 {rdy}")
        k("s_mov_b32 s28, 0")
        k(f"{spin}:")
        k("s_add_u32 s28, s28, 1")
        k(f"s_cmp_gt_u32 s28, {SPIN_LIMIT}")
        k(f"s_cbranch_scc1 {rdy}")
        k("s_sleep 2")
        k(f"buffer_load_dword v{vP}, v196, s[60:63], 0 offen sc1")
        k("s_waitcnt vmcnt(0)")
        k(f"v_cmp_eq_u32 vcc, 128, v{vP}")
        k("s_cmp_eq_u64 vcc, -1")
        k(f"s_cbranch_scc0 {spin}")
        k(f"{rdy}:")
        k("v_and_b32 v14, 3, v0"); k(f"v_lshlrev_b32 v14, {12 if STL & 1 else 16}, v14")
        k("v_lshrrev_b32 v15, 2, v0"); k("v_lshl_add_u32 v14, v15, 3, v14")
        k(f"s_lshl_b32 s27, s23, {14 if STL & 1 else 10}"); k(f"s_add_u32 s27, s27, {WS_ST1}")
        for i in range(4):
            if STL & 1:
                k(f"buffer_load_dwordx2 v[{PL+2*i}:{PL+2*i+1}], v14, s[12:15], s27 offen offset:{1024*i}{SC}")
                continue
            k(f"buffer_load_dwordx2 v[{PL+2*i}:{PL+2*i+1}], v14, s[12:15], s27 offen{SC}")
            if i < 3: k("s_add_u32 s27, s27, 16384")
        k("s_cmp_ge_u32 s20, 3")
        k(f"s_cbranch_scc1 {nocs}")
        k("v_lshlrev_b32 v14, 2, v0")
        k(f"s_mul_i32 s27, s24, {16*768}"); k(f"s_add_u32 s27, s27, {WS_CS1}")
        for i in range(16):
            k(f"buffer_load_dword v{PL+8+i}, v14, s[12:15], s27 offen offset:{(i % 4) * 768}{SC}")
            if i % 4 == 3 and i < 15: k(f"s_add_u32 s27, s27, {4*768}")
        k(f"{nocs}:")
    class _O:
        def append(self, x): k(x)
        def __iadd__(self, xs):
            for x in xs: k(x)
            return self
    o = _O()
    SQ = 28; CQ = 36; QS = 52; VS = [112, 120, 128, 136]; vVO = 14
    if HOIST:
        SQ = 220; CQ = 228; QS = 184; VS = [236, 244, 154, 176]; vVO = 217
        (hoisted_tail2 if HOIST == 2 else hoisted_tail)(k, o, step, vm, dict(PL=PL, RMR=RMR, ONE=ONE, vP=vP, vZ=vZ, vL16=vL16, SQ=SQ, CQ=CQ, QS=QS, VS=VS, vVO=vVO))
    else:
        o = _O()
        for t in range(12, 16):
            step(o, t, 0)
            if t == 12:
                k(f"buffer_load_dword v{vP}, v196, s[60:63], 0 offen sc1"); vm.issue("VP")
                k("s_lshl_b32 s27, s2, 13")
                k(f"buffer_load_dwordx4 v[{RMR}:{RMR+3}], v197, s[88:91], s27 offen"); vm.issue("RMR")
                if JIT & 1:
                    for l in jit("L_p1tail", 27, 211): k(l)
                    vm.issue("CP")
            step(o, t, 1, pre=(lambda o: partial_loads()) if t == 14 else None, extra_need=("VP", "RMR") if t == 14 else ())
            if TST and t < 15: k.stamp(f"t{t}")
        if JIT & 1: k("L_p1tail:")
        k.stamp("p1_loop")
        k("v_mov_b32 v14, 0")
        for r in range(4): k(f"v_dot2c_f32_bf16 v14, v{RMR+r}, v{ONE}")
        for ro in (8, 4, 2, 1): k(f"v_add_f32_dpp v14, v14, v14 row_ror:{ro} row_mask:0xf bank_mask:0xf")
        for sw in ("v_permlane16_swap_b32", "v_permlane32_swap_b32"):
            k("v_mov_b32 v15, v14"); k(f"{sw} v14, v15"); k("v_add_f32 v14, v14, v15")
        k("s_lshl_b32 s27, s20, 2"); k("s_add_u32 s27, s27, 2048"); k("v_mov_b32 v15, s27")
        k("ds_write_b32 v15, v14")
        k("s_waitcnt vmcnt(0)")
        k(f"v_add_f32 v{PL}, v{PL}, v{PL+2}"); k(f"v_add_f32 v{PL+1}, v{PL+1}, v{PL+3}")
        k(f"v_add_f32 v{PL+4}, v{PL+4}, v{PL+6}"); k(f"v_add_f32 v{PL+5}, v{PL+5}, v{PL+7}")
        k(f"v_add_f32 v{PL}, v{PL}, v{PL+4}"); k(f"v_add_f32 v{PL+1}, v{PL+1}, v{PL+5}")
        for qp in ("[1,0,3,2]", "[2,3,0,1]"):
            k(f"v_add_f32_dpp v{PL}, v{PL}, v{PL} quad_perm:{qp} row_mask:0xf bank_mask:0xf")
            k(f"v_add_f32_dpp v{PL+1}, v{PL+1}, v{PL+1} quad_perm:{qp} row_mask:0xf bank_mask:0xf")
        k(f"v_mul_f32 v{PL}, 0x3a800000, v{PL}")
        k(f"v_mul_f32 v{PL+1}, 0x3a800000, v{PL+1}")
        k("v_lshrrev_b32 v16, 2, v0"); k("v_lshlrev_b32 v16, 2, v16")
        lm = k.lab("nomx")
        k("s_cmp_lg_u32 s24, 0"); k(f"s_cbranch_scc1 {lm}")
        k("s_lshl_b32 s27, s23, 9"); k(f"s_add_u32 s27, s27, {WS_MX}")
        k(f"buffer_store_dword v{PL}, v16, s[12:15], s27 offen{SC}")
        k(f"{lm}:")
        k(f"v_fma_f32 v{PL+1}, -v{PL}, v{PL}, v{PL+1}")
        k(f"v_max_f32 v{PL+1}, 0, v{PL+1}")
        k(f"v_add_f32 v{PL+1}, 0x3727c5ac, v{PL+1}")
        k(f"v_rsq_f32 v{PL+1}, v{PL+1}")
        k(f"v_mul_f32 v{PL+2}, v{PL}, v{PL+1}")
        k(f"v_sub_f32 v{PL+2}, 0, v{PL+2}")
        k(f"ds_write_b32 v16, v{PL+1}")
        k(f"ds_write_b32 v16, v{PL+2} offset:512")
        l2 = k.lab("nocs2")
        k("s_cmp_ge_u32 s20, 3")
        k(f"s_cbranch_scc1 {l2}")
        for st in (8, 4, 2, 1):
            for i in range(st): k(f"v_add_f32 v{PL+8+i}, v{PL+8+i}, v{PL+8+i+st}")
        k("v_lshlrev_b32 v16, 2, v0")
        k(f"ds_write_b32 v16, v{PL+8} offset:1024")
        k(f"{l2}:")
        k("v_and_b32 v15, 15, v1")
        k("s_lshl_b32 s27, s25, 8"); k("s_lshl_b32 s28, s26, 6"); k("s_add_u32 s28, s28, s27")
        k("v_lshlrev_b32 v16, 2, v15")
        k("v_add_u32 v17, s28, v16")
        k("v_lshrrev_b32 v14, 4, v1")
        k("v_lshlrev_b32 v19, 4, v14")
        k("v_add_u32 v20, s28, v19")
        k("s_lshl_b32 s29, s26, 6"); k("s_add_u32 s29, s29, 1024")
        k("v_add_u32 v19, s29, v19")
        k("v_add_u32 v18, s29, v16")
        for jj in range(1, 4):
            k(f"v_xor_b32 v{20+jj}, {jj<<6}, v20")
            k(f"v_xor_b32 v{23+jj}, {jj<<6}, v17")
        k("s_lshl_b32 s27, s23, 2"); k("s_lshl_b32 s28, s25, 1"); k("s_add_u32 s27, s27, s28")
        k("s_lshl_b32 s27, s27, 16")
        k("s_lshl_b32 s28, s24, 12"); k("s_add_u32 s27, s27, s28")
        k("s_lshl_b32 s28, s26, 10"); k("s_add_u32 s27, s27, s28")
        k("s_lshr_b32 s42, s26, 1")
        k("s_lshl_b32 s28, s42, 16"); k("s_add_u32 s35, s27, s28")
        k("s_xor_b32 s28, s28, 0x10000"); k("s_add_u32 s37, s27, s28")
        k(f"s_add_u32 s36, s35, {WS_K}"); k(f"s_add_u32 s38, s37, {WS_K}")
        k(f"s_add_u32 s35, s35, {WS_Q}"); k(f"s_add_u32 s37, s37, {WS_Q}")
        if QKS:
            k(f"s_add_u32 s27, s24, {QKS}"); k("s_and_b32 s27, s27, 15"); k("s_sub_u32 s27, s27, s24"); k("s_lshl_b32 s27, s27, 12")
            k("s_add_u32 s36, s36, s27"); k("s_add_u32 s38, s38, s27")
            k(f"s_add_u32 s27, s24, {2*QKS}"); k("s_and_b32 s27, s27, 15"); k("s_lshl_b32 s27, s27, 1")
        else:
            k("s_lshl_b32 s27, s24, 1")
        k("s_add_u32 s27, s27, s42")
        k("s_lshl_b32 s27, s27, 7")
        k("s_lshl_b32 s28, s23, 3"); k("s_add_u32 s27, s27, s28")
        k("s_lshl_b32 s28, s25, 2"); k("s_add_u32 s27, s27, s28")
        k("s_lshl_b32 s27, s27, 10")
        k("s_and_b32 s43, s26, 1")
        k("s_lshl_b32 s28, s43, 8"); k("s_add_u32 s27, s27, s28")
        k(f"s_add_u32 s27, s27, {WS_VT}")
        k("s_lshl_b32 s28, s42, 11"); k("s_add_u32 s39, s27, s28")
        k("s_xor_b32 s28, s28, 2048"); k("s_add_u32 s40, s27, s28")
        k("v_lshrrev_b32 v27, 5, v1"); k("v_xor_b32 v27, s43, v27"); k("v_lshlrev_b32 v27, 10, v27")
        k("v_bfe_u32 v28, v1, 4, 1"); k("v_lshl_add_u32 v27, v28, 9, v27")
        k("v_lshl_add_u32 v14, v15, 4, v27")
        k("s_lshl_b32 s28, s43, 8")
        k(f"v_xor_b32 v{vL16}, s28, v{vL16}")
        k("s_waitcnt lgkmcnt(0)")
        k("s_barrier")
        SQ = 28; CQ = 36
        k(f"ds_read2_b32 v[{SQ}:{SQ+1}], v17 offset0:0 offset1:128")
        for jj in range(1, 4): k(f"ds_read2_b32 v[{SQ+2*jj}:{SQ+2*jj+1}], v{23+jj} offset0:0 offset1:128")
        k(f"ds_read_b128 v[{CQ}:{CQ+3}], v19")
        k(f"ds_read_b128 v[{CQ+4}:{CQ+7}], v19 offset:256")
        k("ds_read_b32 v152, v18 offset:512")
        VS = [112, 120, 128, 136]
        for jj in range(4):
            k(f"ds_read_b128 v[{VS[jj]}:{VS[jj]+3}], v{20+jj}")
            k(f"ds_read_b128 v[{VS[jj]+4}:{VS[jj]+7}], v{20+jj} offset:512")
        l7 = k.lab("norm")
        k("s_cmp_lg_u32 s20, 7"); k(f"s_cbranch_scc1 {l7}")
        k(f"ds_read_b128 v[{PL}:{PL+3}], v{vZ} offset:2048")
        k(f"ds_read_b128 v[{PL+4}:{PL+7}], v{vZ} offset:2064")
        k("s_waitcnt lgkmcnt(0)")
        for r in range(4):
            k(f"v_add_f32 v{PL+2*r}, v{PL+2*r}, v{PL+2*r+1}")
            k(f"v_mul_f32 v{PL+2*r}, 0x3a800000, v{PL+2*r}")
        k(f"v_cvt_pk_bf16_f32 v{PL+8}, v{PL}, v{PL+2}")
        k(f"v_cvt_pk_bf16_f32 v{PL+9}, v{PL+4}, v{PL+6}")
        k("s_lshl_b32 s27, s2, 3"); k(f"s_add_u32 s27, s27, {WS_RM}")
        k("s_mov_b64 exec, 1")
        k(f"buffer_store_dwordx2 v[{PL+8}:{PL+9}], v{vZ}, s[12:15], s27 offen{SC}")
        k("s_mov_b64 exec, -1")
        k(f"{l7}:")
    if not HOIST:
        k("s_mov_b32 s44, 0x3e8293ee")
        k("s_waitcnt lgkmcnt(9)")
        for jj in range(4):
            k(f"v_mul_f32 v{QS+2*jj}, s44, v{SQ+2*jj}")
            k(f"v_mul_f32 v{QS+2*jj+1}, s44, v{SQ+2*jj+1}")
    TP = [16, 20, 24, 44, 48, 60]
    TM = 144
    ti = 0
    HX = os.environ.get("HX", "swd") if HOIST else ""
    if HX in ("bar", "swbar"): k("s_barrier")
    elif HX == "nop7": k("s_nop 7")
    elif HX == "nop15": k("s_nop 15")
    elif HX == "nop31": k("s_nop 15"); k("s_nop 15")
    for m in range(3):
        if m == 2 and HOIST != 1: k("s_waitcnt lgkmcnt(0)")
        for p in range(2):
            t = TP[ti]; ti += 1
            for jj2 in range(2):
                jj = 2 * p + jj2
                a = acc(m, jj)
                for h in range(2):
                    tm = TM + 2 * ((jj2 * 2 + h) & 3)
                    if m < 2:
                        st = (QS if m == 0 else SQ) + 2 * jj
                        cs = CQ + 4 * m + 2 * h
                        first = m == 0 and jj == 0 and h == 0
                        if first and HX in ("v1", "v2", "v3", "v4", "v5", "v6", "v7", "v8", "v9", "v10"):
                            pm = f"v_pk_mul_f32 v[{tm}:{tm+1}], v[{cs}:{cs+1}], v[{st}:{st+1}] op_sel:[0,1] op_sel_hi:[1,1]"
                            pf = f"v_pk_fma_f32 v[{a}:{a+1}], v[{a}:{a+1}], v[{st}:{st+1}], v[{tm}:{tm+1}] op_sel:[0,0,0] op_sel_hi:[1,0,1]"
                            if HX == "v1":
                                for e in range(2): k(f"v_mul_f32 v{tm+e}, v{cs+e}, v{st+1}")
                                k(pf)
                            elif HX == "v2":
                                k(pm)
                                for e in range(2): k(f"v_fma_f32 v{a+e}, v{a+e}, v{st}, v{tm+e}")
                            elif HX == "v3":
                                k(f"v_pk_mul_f32 v[148:149], v[{cs}:{cs+1}], v[{st}:{st+1}] op_sel:[0,1] op_sel_hi:[1,1]"); k(pm); k(pf)
                            elif HX == "v4":
                                k(pm); k("s_nop 0"); k(pf)
                            elif HX == "v5":
                                k(pm); k("s_nop 3"); k(pf)
                            elif HX == "v7":
                                k(f"v_pk_mul_f32 v[{tm}:{tm+1}], v[{cs}:{cs+1}], v[{st}:{st+1}] op_sel:[0,0] op_sel_hi:[1,0]"); k(pf)
                            elif HX == "v8":
                                k(f"v_pk_mul_f32 v[{tm}:{tm+1}], v[{cs}:{cs+1}], v[{st}:{st+1}]"); k(pf)
                            elif HX == "v9":
                                k(f"v_pk_mul_f32 v[{tm}:{tm+1}], v[{cs}:{cs+1}], v[{st}:{st+1}] op_sel:[1,1] op_sel_hi:[1,1]"); k(pf)
                            elif HX == "v10":
                                k(f"v_mul_f32 v{tm+1}, v{cs}, v{st+1}"); k(f"v_mul_f32 v{tm}, v{cs+1}, v{st+1}")
                                k(f"v_pk_fma_f32 v[{a}:{a+1}], v[{a}:{a+1}], v[{st}:{st+1}], v[{tm}:{tm+1}] op_sel:[0,0,1] op_sel_hi:[1,0,0]")
                            elif HX == "v6":
                                k(f"v_pk_mul_f32 v[{tm}:{tm+1}], v[{st}:{st+1}], v[{cs}:{cs+1}] op_sel:[1,0] op_sel_hi:[1,1]"); k(pf)
                            continue
                        if HX.startswith("np") and (m * 4 + jj) * 2 + h < int(HX[2:]):
                            for e in range(2):
                                k(f"v_mul_f32 v{tm+e}, v{cs+e}, v{st+1}")
                            for e in range(2):
                                k(f"v_fma_f32 v{a+2*h+e}, v{a+2*h+e}, v{st}, v{tm+e}")
                            continue
                        if "sw" in HX:
                            if first and HX == "swd": k(f"v_pk_mul_f32 v[{TM+4}:{TM+5}], v[{cs}:{cs+1}], v[{cs}:{cs+1}]")
                            k(f"v_pk_mul_f32 v[{tm}:{tm+1}], v[{st}:{st+1}], v[{cs}:{cs+1}] op_sel:[1,0] op_sel_hi:[1,1]")
                        else:
                            k(f"v_pk_mul_f32 v[{tm}:{tm+1}], v[{cs}:{cs+1}], v[{st}:{st+1}] op_sel:[0,1] op_sel_hi:[1,1]")
                        k(f"v_pk_fma_f32 v[{a+2*h}:{a+2*h+1}], v[{a+2*h}:{a+2*h+1}], v[{st}:{st+1}], v[{tm}:{tm+1}] op_sel:[0,0,0] op_sel_hi:[1,0,1]")
                    else:
                        rs = VS[jj] + 2 * h; nm = VS[jj] + 4 + 2 * h
                        k(f"v_pk_mul_f32 v[{tm}:{tm+1}], v[{nm}:{nm+1}], v[152:153] op_sel:[0,0] op_sel_hi:[1,0]")
                        k(f"v_pk_fma_f32 v[{a+2*h}:{a+2*h+1}], v[{a+2*h}:{a+2*h+1}], v[{rs}:{rs+1}], v[{tm}:{tm+1}]")
                k(f"v_cvt_pk_bf16_f32 v{t+2*jj2}, v{a}, v{a+1}")
                k(f"v_cvt_pk_bf16_f32 v{t+2*jj2+1}, v{a+2}, v{a+3}")
            sw = "v_permlane16_swap_b32" if m < 2 else "v_permlane32_swap_b32"
            k(f"{sw} v{t}, v{t+2}")
            k(f"{sw} v{t+1}, v{t+3}")
            so = [[35, 37], [36, 38], [39, 40]][m][p]
            k(f"buffer_store_dwordx4 v[{t}:{t+3}], v{vL16 if m < 2 else vVO}, s[12:15], s{so} offen{SC}")
    k.stamp("p1_epi")
    k("s_lshl_b32 s27, s24, 7"); k(f"s_add_u32 s27, s27, {WS_CNT + C2*128}")
    signal(k, 27, vt=(30, 31))
    k.stamp("p1_sig")

W3BASE = 98304
vW3 = [200, 201]
C35 = int(os.environ.get("C35", "0"))
def coords35(k, stb, scb, st):
    k("s_and_b32 s21, s2, 7"); k("s_lshr_b32 s22, s2, 3")
    if C35 == 0:
        k(f"s_and_b32 s{stb}, s21, 3"); k(f"s_lshl_b32 s{stb}, s{stb}, 2"); k(f"s_and_b32 s{st}, s22, 3"); k(f"s_add_u32 s{stb}, s{stb}, s{st}")
        k(f"s_lshr_b32 s{scb}, s21, 2"); k(f"s_lshl_b32 s{scb}, s{scb}, 3"); k(f"s_lshr_b32 s{st}, s22, 2"); k(f"s_add_u32 s{scb}, s{scb}, s{st}")
    elif C35 == 2:
        k(f"s_lshl_b32 s{stb}, s21, 1"); k(f"s_lshr_b32 s{st}, s22, 4"); k(f"s_add_u32 s{stb}, s{stb}, s{st}")
        k(f"s_and_b32 s{scb}, s22, 15")
    elif C35 == 3:
        k(f"s_and_b32 s{stb}, s21, 1"); k(f"s_lshl_b32 s{stb}, s{stb}, 3"); k(f"s_lshr_b32 s{st}, s22, 2"); k(f"s_add_u32 s{stb}, s{stb}, s{st}")
        k(f"s_lshr_b32 s{scb}, s21, 1"); k(f"s_lshl_b32 s{scb}, s{scb}, 2"); k(f"s_and_b32 s{st}, s22, 3"); k(f"s_add_u32 s{scb}, s{scb}, s{st}")
    elif C35 == 4:
        k(f"s_and_b32 s{stb}, s21, 3"); k(f"s_lshl_b32 s{stb}, s{stb}, 2"); k(f"s_lshr_b32 s{st}, s22, 3"); k(f"s_add_u32 s{stb}, s{stb}, s{st}")
        k(f"s_lshr_b32 s{scb}, s21, 2"); k(f"s_and_b32 s{st}, s22, 7"); k(f"s_lshl_b32 s{st}, s{st}, 1"); k(f"s_add_u32 s{scb}, s{scb}, s{st}")
    else:
        k(f"s_and_b32 s{stb}, s21, 3"); k(f"s_lshl_b32 s{stb}, s{stb}, 2"); k(f"s_lshr_b32 s{st}, s22, 3"); k(f"s_add_u32 s{stb}, s{stb}, s{st}")
        k(f"s_lshr_b32 s{scb}, s21, 2"); k(f"s_lshl_b32 s{scb}, s{scb}, 3"); k(f"s_and_b32 s{st}, s22, 7"); k(f"s_add_u32 s{scb}, s{scb}, s{st}")
WT3 = int(os.environ.get("WT3", "0")); WT5 = int(os.environ.get("WT5", "0"))
WDT = int(os.environ.get("WDT", "3"))
WS_WDT = 0x3000000
WDA = int(os.environ.get("WDA", "3")); WDP = int(os.environ.get("WDP", "4"))
def w35_setup(k, vW, base, t, tiled=0):
    coords35(k, 27, 29, 28)
    rb = 128 if tiled else 2048
    wdma_lane(k, vW[0], rb, t)
    k(f"v_add_u32 v{vW[1]}, {4*rb}, v{vW[0]}")
    k("s_lshr_b32 s27, s20, 1"); k("s_lshl_b32 s27, s27, 5"); k("s_and_b32 s28, s20, 1"); k("s_lshl_b32 s28, s28, 4")
    k("s_add_u32 s27, s27, s28")
    if tiled:
        k("s_lshl_b32 s50, s27, 7"); k(f"s_mul_i32 s28, s29, {tiled*128}"); k("s_add_u32 s50, s50, s28")
        if WDT and base == 0: k(f"s_add_u32 s50, s50, {WS_WDT}")
    else:
        k("s_lshl_b32 s50, s27, 11"); k("s_lshl_b32 s28, s29, 7"); k("s_add_u32 s50, s50, s28")
        if os.environ.get("WOFF64") and base == 0: k("s_add_u32 s50, s50, 64")
    k("s_lshl_b32 s51, s20, 11")
    if base: k(f"s_add_u32 s51, s51, {base}")
def w35_dma(vW, srdw, slot):
    sc = SC if srdw == 12 else ""
    return [[f"s_add_u32 m0, s51, {slot*16384}", f"buffer_load_dwordx4 v{vW[0]}, s[{srdw}:{srdw+3}], s50 offen{sc} lds"],
            [f"s_add_u32 m0, s51, {slot*16384+1024}", f"buffer_load_dwordx4 v{vW[1]}, s[{srdw}:{srdw+3}], s50 offen{sc} lds"]]
W3ADV = f"s_add_u32 s50, s50, {128*(128 if WT3 else 2048)}"
W5ADV = f"s_add_u32 s50, s50, {128*(128 if WT5 or WDT else 2048)}"
SW5 = 12 if WDT else 60

WOPF = int(os.environ.get("WOPF", "0"))
OT = int(os.environ.get("OT", "0"))
def phase2(k):
    STG = 32768
    vL16, vCur, vNxt, vTmp = 2, 3, 4, 5
    QA, QB = 8, 16
    KF = [24, 32]; VF = [40, 48]
    SA, SB = 56, 72
    PA, PB = 88, 96
    OA, OB = 104, 120
    LA, LB = 136, 140
    NA, NB = 144, 160
    ONE = 176
    T0 = 180
    w35_setup(k, vW3, W3BASE, 180, D if WT3 else 0)
    srd(k, 8, pBX if WT3 else pWO, D * D * 2)
    k("s_and_b32 s21, s2, 7"); k("s_lshl_b32 s21, s21, 2"); k("s_lshr_b32 s22, s2, 6"); k("s_add_u32 s21, s21, s22")
    k("s_bfe_u32 s22, s2, 0x30003")
    k("s_and_b32 s23, s20, 3")
    k("s_lshr_b32 s24, s20, 2")
    k(f"v_lshlrev_b32 v{vL16}, 4, v1")
    k("s_lshl_b32 s30, s24, 5"); k("s_add_u32 s30, s30, s23"); k("s_lshl_b32 s30, s30, 16")
    k("s_lshl_b32 s25, s21, 11"); k("s_add_u32 s30, s30, s25"); k(f"s_add_u32 s30, s30, {WS_K}")
    k("s_lshl_b32 s31, s21, 7"); k("s_lshl_b32 s25, s24, 6"); k("s_add_u32 s31, s31, s25")
    k("s_lshl_b32 s25, s23, 1"); k("s_add_u32 s31, s31, s25"); k("s_lshl_b32 s31, s31, 10"); k(f"s_add_u32 s31, s31, {WS_VT}")
    k("s_lshl_b32 s32, s24, 14"); k("s_lshl_b32 s25, s23, 11"); k("s_add_u32 s32, s32, s25")
    k("s_lshl_b32 s33, s22, 3"); k("s_lshl_b32 s25, s23, 1"); k("s_add_u32 s33, s33, s25"); k("s_lshl_b32 s33, s33, 16")
    k("s_lshl_b32 s25, s21, 11"); k("s_add_u32 s33, s33, s25")
    k(f"s_add_u32 s45, s33, {WS_O}")
    k(f"s_add_u32 s33, s33, {WS_Q}")
    k("s_add_u32 s34, s33, 65536")
    k(f"v_lshrrev_b32 v{vTmp}, 2, v1"); k(f"v_lshrrev_b32 v{T0}, 4, v1"); k(f"v_xor_b32 v{vTmp}, v{vTmp}, v{T0}")
    k(f"v_and_b32 v{vTmp}, 1, v{vTmp}"); k(f"v_cmp_eq_u32 vcc, 0, v{vTmp}")
    k(f"v_mov_b32 v{T0}, 0x3f803f80")
    k(f"v_cndmask_b32 v{ONE}, 0, v{T0}, vcc")
    for r in range(1, 4): k(f"v_mov_b32 v{ONE+r}, v{ONE}")
    for r in range(32): k(f"v_mov_b32 v{NA+r}, 0")
    k("s_mov_b32 s46, 0")
    k("s_lshl_b32 s25, s24, 14")
    k(f"v_add_u32 v{vTmp}, s25, v{vL16}")
    if PFW:
        k("s_lshl_b32 s25, s2, 3"); k("s_add_u32 s25, s25, s20")
        k("s_mul_i32 s26, s25, 3584")
        k(f"v_lshlrev_b32 v198, 6, v1"); k("v_add_u32 v198, s26, v198")
        srd(k, 88, pWO, D * D * 2)
        k(f"s_mov_b64 s[92:93], s[{pWG}:{pWG+1}]"); k(f"s_mov_b64 s[94:95], s[{pWU}:{pWU+1}]"); k(f"s_mov_b64 s[96:97], s[{pWD}:{pWD+1}]")
    WDR, vWDS = 208, 224
    if JIT & 2: k("s_mov_b32 s52, L_p2tail-L_cb")
    if WDT:
        srd(k, 60, pWD, DF * D * 2)
        k(f"v_lshrrev_b32 v{vWDS}, 3, v1"); k(f"s_mov_b32 s26, {DF*128}"); k(f"v_mul_lo_u32 v{vWDS}, v{vWDS}, s26")
        k(f"v_and_b32 v{vWDS+1}, 7, v1"); k(f"v_lshl_add_u32 v{vWDS}, v{vWDS+1}, 4, v{vWDS}")
        k("s_mul_i32 s98, s2, 14"); k("s_lshl_b32 s26, s20, 1"); k("s_add_u32 s98, s98, s26"); k("s_lshl_b32 s98, s98, 7")
        k(f"s_add_u32 s98, s98, {WS_WDT - 256}"); k(f"s_add_u32 s99, s98, {8*DF*128}")
        k("s_mul_i32 s100, s2, 28672"); k("s_lshl_b32 s26, s20, 12"); k("s_add_u32 s100, s100, s26"); k("s_sub_u32 s100, s100, 4096")
        k("s_cmp_eq_u32 s20, 0"); k(f"s_cselect_b32 s101, 99, {WDA}")
        if WDT == 3: k(f"s_cselect_b32 s101, 99, {hex((-WDA - 1) & 0xffffffff)}")
        if WDT >= 2:
            assert WDA % 2 == 1
            k(f"s_sub_u32 s98, s98, {128 * ((WDA + 1) // 2)}"); k(f"s_mov_b32 s99, {8*DF*128}"); k(f"s_sub_u32 s100, s100, {1024*WDA}")
    if QKS:
        k(f"v_mul_u32_u24 v{T0+1}, {QKS}, v1"); k("s_lshr_b32 s27, s21, 1"); k(f"v_sub_u32 v{T0+1}, s27, v{T0+1}")
        k(f"v_and_b32 v{T0+1}, 15, v{T0+1}"); k(f"v_lshlrev_b32 v{T0+1}, 7, v{T0+1}")
        k(f"s_mov_b32 s27, {WS_CNT + C2*128}")
        wait_multi(k, 27, 16, 3, vt=(T0, T0 + 1))
    else:
        k("s_lshr_b32 s27, s21, 1"); k("s_lshl_b32 s27, s27, 7"); k(f"s_add_u32 s27, s27, {WS_CNT + C2*128}")
        wait(k, 27, 16, vt=(T0, T0 + 1), pr=KF[0])
    k.stamp("p2_wait")
    for kk in range(2):
        k(f"buffer_load_dwordx4 v[{QA+4*kk}:{QA+4*kk+3}], v{vL16}, s[12:15], s33 offen offset:{1024*kk}{SC}")
        k(f"buffer_load_dwordx4 v[{QB+4*kk}:{QB+4*kk+3}], v{vL16}, s[12:15], s34 offen offset:{1024*kk}{SC}")
    def dma_stage():
        k("s_add_u32 m0, s42, s32")
        k(f"buffer_load_dwordx4 v{vL16}, s[12:15], s40 offen{SC} lds")
        k(f"buffer_load_dwordx4 v{vL16}, s[12:15], s40 offen offset:1024{SC} lds")
        k("s_add_u32 m0, m0, 8192")
        k(f"buffer_load_dwordx4 v{vL16}, s[12:15], s41 offen{SC} lds")
        k(f"buffer_load_dwordx4 v{vL16}, s[12:15], s41 offen offset:1024{SC} lds")
        k(f"s_add_u32 s40, s40, {4*65536}")
        k("s_add_u32 s41, s41, 8192")
    lmain = k.lab("p2main"); lloop = k.lab("p2loop"); lfin = k.lab("p2fin"); lfb = k.lab("p2fb"); lend = k.lab("p2end")
    k(f"{lmain}:")
    k("s_mov_b32 s40, s30"); k("s_mov_b32 s41, s31")
    k("s_mov_b32 s42, 0"); dma_stage()
    k(f"s_mov_b32 s42, {STG}"); dma_stage()
    k(f"s_mov_b32 s42, {2*STG}")
    k(f"v_mov_b32 v{vCur}, v{vTmp}")
    k(f"v_add_u32 v{vNxt}, {STG}, v{vTmp}")
    k(f"s_mov_b32 s43, {STG}")
    for r in range(16): k(f"v_mov_b32 v{OA+r}, 0"); k(f"v_mov_b32 v{OB+r}, 0")
    for r in range(4): k(f"v_mov_b32 v{LA+r}, 0"); k(f"v_mov_b32 v{LB+r}, 0")
    for r in range(8): k(f"v_mov_b32 v{PB+r}, 0"); k(f"v_mov_b32 v{VF[1]+r}, 0")
    def wo_ring():
        lnp = k.lab("p2nopf")
        k("s_cmp_lg_u32 s46, 0"); k(f"s_cbranch_scc1 {lnp}")
        for t in range(4):
            for d in w35_dma(vW3, 8, t):
                for l in d: k(l)
            k(W3ADV)
        k(f"{lnp}:")
    if WOPF == 0:
        lnp = k.lab("p2nopf"); lj = k.lab("p2pfj")
        k("s_cmp_lg_u32 s46, 0"); k(f"s_cbranch_scc1 {lnp}")
        for t in range(4):
            for d in w35_dma(vW3, 8, t):
                for l in d: k(l)
            k(W3ADV)
        k("s_waitcnt vmcnt(12)")
        k(f"s_branch {lj}")
        k(f"{lnp}:")
        k("s_waitcnt vmcnt(4)")
        k(f"{lj}:")
    else:
        k("s_waitcnt vmcnt(4)")
    k("s_barrier")
    k.stamp("p2_go")
    if WOPF == 1: wo_ring()
    for kk in range(2):
        k(f"ds_read_b128 v[{KF[0]+4*kk}:{KF[0]+4*kk+3}], v{vCur} offset:{1024*kk}")
    k("s_waitcnt lgkmcnt(0)")
    def qk(Sx, Qx, Nx, kf):
        return [f"v_mfma_f32_32x32x16_bf16 v[{Sx}:{Sx+15}], v[{kf}:{kf+3}], v[{Qx}:{Qx+3}], v[{Nx}:{Nx+15}]",
                f"v_mfma_f32_32x32x16_bf16 v[{Sx}:{Sx+15}], v[{kf+4}:{kf+7}], v[{Qx+4}:{Qx+7}], v[{Sx}:{Sx+15}]"]
    def pv(Ox, Px, Lx, vf):
        return [f"v_mfma_f32_32x32x16_bf16 v[{Ox}:{Ox+15}], v[{vf}:{vf+3}], v[{Px}:{Px+3}], v[{Ox}:{Ox+15}]",
                f"v_mfma_f32_32x32x16_bf16 v[{Ox}:{Ox+15}], v[{vf+4}:{vf+7}], v[{Px+4}:{Px+7}], v[{Ox}:{Ox+15}]",
                f"v_mfma_f32_16x16x32_bf16 v[{Lx}:{Lx+3}], v[{ONE}:{ONE+3}], v[{Px}:{Px+3}], v[{Lx}:{Lx+3}]",
                f"v_mfma_f32_16x16x32_bf16 v[{Lx}:{Lx+3}], v[{ONE}:{ONE+3}], v[{Px+4}:{Px+7}], v[{Lx}:{Lx+3}]"]
    def expv(Sx, Px):
        o = []
        for g in range(4):
            o += [f"v_exp_f32 v{Sx+4*g+r}, v{Sx+4*g+r}" for r in range(4)]
            o += [f"v_cvt_pk_bf16_f32 v{Px+2*g}, v{Sx+4*g}, v{Sx+4*g+1}", f"v_cvt_pk_bf16_f32 v{Px+2*g+1}, v{Sx+4*g+2}, v{Sx+4*g+3}"]
        return o
    def phase(mf, va, extra):
        for i in range(6):
            k(mf[i])
            for (p, l) in extra:
                if p == i: k(l)
            for l in va[4*i:4*i+4]: k(l)
    for l in qk(SA, QA, NA, KF[0]): k(l)
    k("s_mov_b32 s44, 0")
    k(f"{lloop}:")
    for i in range(4):
        cb = i & 1; nb = cb ^ 1
        ex = []
        if i == 3:
            lnd = k.lab("nodma")
            k(f"s_waitcnt vmcnt({(1 if PFW and PFI < 3 else 0) + (1 if JIT & 2 else 0)})")
            k("s_barrier")
            k("s_cmp_ge_u32 s44, 6")
            k(f"s_cbranch_scc1 {lnd}")
            dma_stage()
            k(f"s_add_u32 s42, s42, {STG}")
            k(f"s_cmp_eq_u32 s42, {3*STG}")
            k("s_cselect_b32 s42, 0, s42")
            k(f"{lnd}:")
            if WDT == 1:
                lw = k.lab("nowd"); ls = k.lab("wdst")
                k("s_sub_u32 s27, s44, s101"); k("s_cmp_lt_u32 s27, 2"); k(f"s_cbranch_scc0 {lw}")
                k("s_cmp_eq_u32 s27, 1"); k(f"s_cbranch_scc1 {ls}")
                for q in range(4):
                    k(f"buffer_load_dwordx4 v[{WDR+4*q}:{WDR+4*q+3}], v{vL16}, s[60:63], s100 offen offset:{1024*q}")
                k(f"s_branch {lw}")
                k(f"{ls}:")
                for q in range(4):
                    k(f"buffer_store_dwordx4 v[{WDR+4*q}:{WDR+4*q+3}], v{vWDS}, s[12:15], s{98 + (q & 1)} offen offset:{128*(q>>1)}{SC}")
                k(f"{lw}:")
            if WDT == 2:
                k("s_sub_u32 s27, s44, s101"); k("s_sub_u32 s27, s27, 1")
                k("s_cmp_lt_u32 s27, 4"); k("s_cselect_b64 exec, -1, 0")
                k(f"buffer_store_dwordx4 v[{WDR}:{WDR+3}], v{vWDS}, s[12:15], s98 offen{SC}")
                k("s_add_u32 s27, s27, 1")
                k("s_cmp_lt_u32 s27, 4"); k("s_cselect_b64 exec, -1, 0")
                k(f"buffer_load_dwordx4 v[{WDR}:{WDR+3}], v{vL16}, s[60:63], s100 offen")
                k("s_mov_b64 exec, -1")
                k("s_add_u32 s98, s98, s99"); k("s_sub_u32 s99, 128, s99"); k("s_add_u32 s100, s100, 1024")
        if i == PFI and PFW:
            ex += [(4, "buffer_load_dword v199, v198, s[88:91], 0 offen"),
                   (5, "s_mov_b64 s[88:89], s[92:93]"), (5, "s_mov_b64 s[92:93], s[94:95]"), (5, "s_mov_b64 s[94:95], s[96:97]"),
                   (5, f"s_cmp_lt_u32 s44, {2 if WDT else 3}"), (5, f"s_cselect_b32 s90, {hex(D*DF*2)}, 0")]
        if i == 0 and JIT & 2:
            ex += [(5, "buffer_load_dword v231, v252, s[80:83], s52 offen")]
        for kk in range(2):
            if i < 3: ex.append((kk, f"ds_read_b128 v[{KF[nb]+4*kk}:{KF[nb]+4*kk+3}], v{vCur} offset:{(i+1)*2048 + 1024*kk}"))
            else:     ex.append((kk, f"ds_read_b128 v[{KF[nb]+4*kk}:{KF[nb]+4*kk+3}], v{vNxt} offset:{1024*kk}"))
        for mm in range(2):
            ex.append((2 + mm, f"ds_read_b128 v[{VF[cb]+4*mm}:{VF[cb]+4*mm+3}], v{vCur} offset:{8192 + i*2048 + 1024*mm}"))
        phase(qk(SB, QB, NB, KF[cb]) + pv(OB, PB, LB, VF[nb]), expv(SA, PA), ex)
        k("s_waitcnt lgkmcnt(0)")
        ex = []
        if i == 3:
            ex = [(0, f"v_mov_b32 v{vCur}, v{vNxt}"), (1, f"s_add_u32 s43, s43, {STG}"), (1, f"s_cmp_eq_u32 s43, {3*STG}"),
                  (2, "s_cselect_b32 s43, 0, s43"), (3, f"v_add_u32 v{vNxt}, s43, v{vTmp}")]
            if WDT == 3:
                p = WDP
                ex += [(p, x) for x in ("s_cmp_lt_u32 s101, 4", "s_cselect_b64 exec, -1, 0",
                       f"buffer_store_dwordx4 v[{WDR}:{WDR+3}], v{vWDS}, s[12:15], s98 offen{SC}",
                       "s_add_u32 s101, s101, 1", "s_cmp_lt_u32 s101, 4", "s_cselect_b64 exec, -1, 0",
                       f"buffer_load_dwordx4 v[{WDR}:{WDR+3}], v{vL16}, s[60:63], s100 offen", "s_mov_b64 exec, -1")]
                ex += [(5, x) for x in ("s_add_u32 s98, s98, s99", "s_sub_u32 s99, 128, s99", "s_add_u32 s100, s100, 1024")]
        phase(qk(SA, QA, NA, KF[nb]) + pv(OA, PA, LA, VF[cb]), expv(SB, PB), ex)
    k("s_add_u32 s44, s44, 1")
    k("s_cmp_lt_u32 s44, 8")
    k(f"s_cbranch_scc1 {lloop}")
    if JIT & 2: k("L_p2tail:")
    for l in pv(OB, PB, LB, VF[1]): k(l)
    k.stamp("p2_loop")
    if WOPF == 2: wo_ring()
    k("s_nop 7"); k("s_nop 3")
    lns = k.lab("nosw")
    k("s_cmp_eq_u32 s24, 0")
    k(f"s_cbranch_scc1 {lns}")
    for r in range(16): k(f"v_swap_b32 v{OA+r}, v{OB+r}")
    k(f"v_swap_b32 v{LA}, v{LB}")
    k(f"{lns}:")
    k("s_barrier")
    k("s_mul_i32 s25, s20, 5120")
    k(f"v_add_u32 v{T0}, s25, v{vL16}")
    k(f"v_lshlrev_b32 v{T0+1}, 2, v1"); k(f"v_add_u32 v{T0+1}, s25, v{T0+1}")
    for i in range(4): k(f"ds_write_b128 v{T0}, v[{OB+4*i}:{OB+4*i+3}] offset:{1024*i}")
    k(f"ds_write_b32 v{T0+1}, v{LB} offset:4096")
    k("s_xor_b32 s26, s20, 4"); k("s_mul_i32 s25, s26, 5120")
    k(f"v_add_u32 v{T0}, s25, v{vL16}")
    k(f"v_lshlrev_b32 v{T0+1}, 2, v1"); k(f"v_add_u32 v{T0+1}, s25, v{T0+1}")
    k("s_waitcnt lgkmcnt(0)")
    k("s_barrier")
    for i in range(4): k(f"ds_read_b128 v[{OB+4*i}:{OB+4*i+3}], v{T0} offset:{1024*i}")
    k(f"ds_read_b32 v{LB}, v{T0+1} offset:4096")
    k("s_waitcnt lgkmcnt(0)")
    k(f"v_add_f32 v{LA}, v{LA}, v{LB}")
    for r in range(16): k(f"v_add_f32 v{OA+r}, v{OA+r}, v{OB+r}")
    k("s_cmp_lg_u32 s46, 0")
    k(f"s_cbranch_scc1 {lfin}")
    k(f"v_mov_b32 v{T0+2}, v{LA}")
    for r in range(16): k(f"v_fma_f32 v{T0+2}, v{OA+r}, 0, v{T0+2}")
    k(f"v_mov_b32 v{T0+3}, 0x71800000")
    k(f"v_cmp_le_f32 vcc, 1.0, v{T0+2}")
    k(f"v_cmp_le_f32 s[48:49], v{T0+2}, v{T0+3}")
    k("s_and_b64 vcc, vcc, s[48:49]")
    k("s_cmp_eq_u64 vcc, -1")
    k("s_cselect_b32 s47, 0, 1")
    k(f"v_mov_b32 v{T0+2}, s47")
    k(f"s_lshl_b32 s25, s20, 2"); k(f"v_mov_b32 v{T0+3}, s25")
    k(f"ds_write_b32 v{T0+3}, v{T0+2} offset:45056")
    k("s_waitcnt lgkmcnt(0)")
    k("s_barrier")
    k(f"v_mov_b32 v{T0+3}, 0")
    k(f"ds_read_b128 v[{T0+4}:{T0+7}], v{T0+3} offset:45056")
    k(f"ds_read_b128 v[{T0+8}:{T0+11}], v{T0+3} offset:45072")
    k("s_waitcnt lgkmcnt(0)")
    k(f"v_or3_b32 v{T0+4}, v{T0+4}, v{T0+5}, v{T0+6}")
    k(f"v_or3_b32 v{T0+8}, v{T0+8}, v{T0+9}, v{T0+10}")
    k(f"v_or3_b32 v{T0+4}, v{T0+4}, v{T0+7}, v{T0+11}")
    k(f"v_or_b32 v{T0+4}, v{T0+4}, v{T0+8}")
    k(f"v_readfirstlane_b32 s47, v{T0+4}")
    k("s_cmp_lg_u32 s47, 0")
    k(f"s_cbranch_scc1 {lfb}")
    k(f"{lfin}:")
    k(f"v_rcp_f32 v{LA}, v{LA}")
    for g in range(4):
        for r in range(4): k(f"v_mul_f32 v{OA+4*g+r}, v{OA+4*g+r}, v{LA}")
        k(f"v_cvt_pk_bf16_f32 v{SA+2*g}, v{OA+4*g}, v{OA+4*g+1}")
        k(f"v_cvt_pk_bf16_f32 v{SA+2*g+1}, v{OA+4*g+2}, v{OA+4*g+3}")
    k("s_lshl_b32 s25, s24, 16"); k("s_add_u32 s45, s45, s25")
    for p in range(2):
        k(f"v_permlane32_swap_b32 v{SA+4*p}, v{SA+4*p+2}")
        k(f"v_permlane32_swap_b32 v{SA+4*p+1}, v{SA+4*p+3}")
        k(f"buffer_store_dwordx4 v[{SA+4*p}:{SA+4*p+3}], v{vL16}, s[12:15], s45 offen offset:{1024*p}{SC}")
    k(f"s_branch {lend}")
    k(f"{lfb}:")
    k("s_mov_b32 s46, 1")
    if WDT: k("s_mov_b32 s101, 99")
    k("s_barrier")
    MA, MB = T0 + 2, T0 + 3
    k(f"v_mov_b32 v{MA}, 0xff800000"); k(f"v_mov_b32 v{MB}, 0xff800000")
    k("s_lshl_b32 s40, s24, 21"); k("s_lshl_b32 s25, s21, 11"); k("s_add_u32 s40, s40, s25"); k(f"s_add_u32 s40, s40, {WS_K}")
    k("s_mov_b32 s44, 0")
    lfl = k.lab("p2fbl")
    k(f"{lfl}:")
    for kk in range(2):
        k(f"buffer_load_dwordx4 v[{KF[0]+4*kk}:{KF[0]+4*kk+3}], v{vL16}, s[12:15], s40 offen offset:{1024*kk}{SC}")
    k("s_waitcnt vmcnt(0)")
    for (Sx, Qx) in ((SA, QA), (SB, QB)):
        k(f"v_mfma_f32_32x32x16_bf16 v[{Sx}:{Sx+15}], v[{KF[0]}:{KF[0]+3}], v[{Qx}:{Qx+3}], 0")
        k(f"v_mfma_f32_32x32x16_bf16 v[{Sx}:{Sx+15}], v[{KF[0]+4}:{KF[0]+7}], v[{Qx+4}:{Qx+7}], v[{Sx}:{Sx+15}]")
    for (Sx, Mx) in ((SA, MA), (SB, MB)):
        for r in range(0, 16, 2): k(f"v_max3_f32 v{Mx}, v{Mx}, v{Sx+r}, v{Sx+r+1}")
    k("s_add_u32 s40, s40, 65536")
    k("s_add_u32 s44, s44, 1")
    k("s_cmp_lt_u32 s44, 32")
    k(f"s_cbranch_scc1 {lfl}")
    for Mx in (MA, MB):
        k(f"v_mov_b32 v{T0+4}, v{Mx}")
        k(f"v_permlane32_swap_b32 v{Mx}, v{T0+4}")
        k(f"v_max_f32 v{Mx}, v{Mx}, v{T0+4}")
    k("s_lshl_b32 s25, s20, 9")
    k(f"v_lshlrev_b32 v{T0+4}, 3, v1"); k(f"v_add_u32 v{T0+5}, s25, v{T0+4}")
    k(f"ds_write_b64 v{T0+5}, v[{MA}:{MB}]")
    k("s_xor_b32 s26, s20, 4"); k("s_lshl_b32 s25, s26, 9")
    k(f"v_add_u32 v{T0+5}, s25, v{T0+4}")
    k("s_waitcnt lgkmcnt(0)")
    k("s_barrier")
    k(f"ds_read_b64 v[{T0+6}:{T0+7}], v{T0+5}")
    k("s_waitcnt lgkmcnt(0)")
    k(f"v_max_f32 v{MA}, v{MA}, v{T0+6}")
    k(f"v_max_f32 v{MB}, v{MB}, v{T0+7}")
    for r in range(16):
        k(f"v_sub_f32 v{NA+r}, 0, v{MA}")
        k(f"v_sub_f32 v{NB+r}, 0, v{MB}")
    k("s_barrier")
    k(f"s_branch {lmain}")
    k(f"{lend}:")
    k.stamp("p2_epi")
    k("s_lshl_b32 s27, s22, 7"); k(f"s_add_u32 s27, s27, {WS_CNT + C3*128}")
    signal(k, 27, vt=(T0, T0 + 1))
    k.stamp("p2_sig")

SLOT4 = 30720; UOFF = 7168; BOFF4 = 14336
RMOFF = 75776; XMOFF = 83968; HKOFF = 147456
vPW = 202
vW5 = [240, 241]
NPF5 = int(os.environ.get("NPF5", "3"))
NS5 = int(os.environ.get("NS5", "5")); R3 = int(os.environ.get("R3", "4")); R5 = int(os.environ.get("R5", "6"))
def w4_piece_lane(k, vdst, vidx, t):
    k(f"v_mul_u32_u24 v{t}, 4682, v{vidx}"); k(f"v_lshrrev_b32 v{t}, 16, v{t}")
    k(f"v_mul_u32_u24 v{t+1}, 14, v{t}"); k(f"v_sub_u32 v{t+1}, v{vidx}, v{t+1}")
    k(f"v_and_b32 v{t+2}, 0x33, v{t}")
    k(f"v_bfe_u32 v{vidx}, v{t}, 2, 1"); k(f"v_lshl_add_u32 v{t+2}, v{vidx}, 3, v{t+2}")
    k(f"v_bfe_u32 v{vidx}, v{t}, 3, 1"); k(f"v_lshl_add_u32 v{t+2}, v{vidx}, 2, v{t+2}")
    k(f"v_mul_u32_u24 v{t+2}, 7168, v{t+2}")
    k(f"v_lshl_add_u32 v{vdst}, v{t+1}, 4, v{t+2}")
def coords4(k, stb, scb, st):
    k("s_and_b32 s21, s2, 7"); k("s_lshr_b32 s22, s2, 3")
    k(f"s_and_b32 s{stb}, s21, 1"); k(f"s_lshl_b32 s{stb}, s{stb}, 2"); k(f"s_and_b32 s{st}, s22, 3"); k(f"s_add_u32 s{stb}, s{stb}, s{st}")
    k(f"s_lshr_b32 s{scb}, s21, 1"); k(f"s_lshl_b32 s{scb}, s{scb}, 3"); k(f"s_lshr_b32 s{st}, s22, 2"); k(f"s_add_u32 s{scb}, s{scb}, s{st}")
def pf4_setup(k, t):
    coords4(k, 27, 29, 28)
    k("s_mul_i32 s40, s29, 224")
    k("s_min_u32 s27, s20, 6"); k("s_lshl_b32 s42, s27, 10"); k("s_lshl_b32 s27, s27, 6")
    k(f"v_add_u32 v{t+3}, s27, v1")
    w4_piece_lane(k, vPW, t + 3, t)
    srd(k, 52, pWG, D * DF * 2); srd(k, 56, pWU, D * DF * 2)
def pf4(tile):
    o = []
    for m in range(2):
        g = []
        if m == 0: g.append(f"s_add_u32 s41, s40, {tile*32*7168}")
        g += [f"s_add_u32 m0, s42, {tile*SLOT4 + m*UOFF}", f"buffer_load_dwordx4 v{vPW}, s[{52+4*m}:{55+4*m}], s41 offen lds"]
        o.append(g)
    return o

JS3 = int(os.environ.get("JS3", "2")); JT4 = int(os.environ.get("JT4", "28"))
def phase35(k, kind):
    wo = kind == "wo"
    KD = D if wo else DF
    NT = KD // 128
    NS = 4 if wo else NS5
    R = R3 if wo else R5
    WSB = WS_O if wo else WS_HM
    T32B = KD * 64
    base = W3BASE if wo else 0
    vW = vW3 if wo else vW5
    WADV = W3ADV if wo else W5ADV
    SW = 8 if wo else SW5
    vA = [2, 3, 4, 5]; vBj = [6, 7]; vR = 10; vO = 11; vT = 12; vRM = 8; vHK = 9
    RES = 16; A = [24, 40]; ACC = 56; ACM = 88; RMF = [96, 100]; BR = 104
    MX = 15
    acc = lambda i, j: ACC + (j * 4 + i) * 4
    pre = "p3" if wo else "p5"
    coords35(k, 23, 24, 25)
    k("s_and_b32 s25, s20, 3")
    k("s_lshr_b32 s26, s20, 2")
    k("s_lshl_b32 s31, s23, 2"); k("s_add_u32 s31, s31, s25"); k(f"s_mul_i32 s31, s31, {T32B}")
    k("s_lshl_b32 s28, s26, 12"); k("s_add_u32 s31, s31, s28"); k(f"s_add_u32 s31, s31, {WSB}")
    k(f"v_lshrrev_b32 v{vT}, 4, v1"); k(f"v_and_b32 v{vT+1}, 15, v1")
    k(f"v_lshlrev_b32 v{vT+2}, 4, v{vT+1}"); k(f"v_lshl_add_u32 v{vT+2}, v{vT}, 9, v{vT+2}")
    k("s_lshl_b32 s28, s26, 8")
    k(f"v_add_u32 v{vBj[0]}, s28, v{vT+2}")
    k(f"v_xor_b32 v{vBj[1]}, 256, v{vBj[0]}")
    k(f"v_and_b32 v{vT+2}, 1, v{vT}"); k(f"v_lshlrev_b32 v{vT+2}, 1, v{vT+2}"); k(f"v_lshrrev_b32 v{vT+3}, 1, v{vT}")
    k(f"v_add_u32 v{vT+2}, v{vT+2}, v{vT+3}")
    rm = vR if wo else vO
    k(f"v_lshlrev_b32 v{rm}, 11, v{vT+1}"); k(f"v_lshl_add_u32 v{rm}, v{vT+2}, 4, v{rm}")
    k("s_lshl_b32 s33, s23, 2"); k("s_add_u32 s33, s33, s25"); k("s_lshl_b32 s33, s33, 1"); k("s_add_u32 s33, s33, s26")
    k("s_lshl_b32 s35, s33, 4")
    k("s_lshl_b32 s33, s33, 15"); k("s_lshl_b32 s28, s24, 7"); k("s_add_u32 s33, s33, s28")
    if wo:
        k(f"v_lshlrev_b32 v{vO}, 9, v{vT+2}"); k(f"v_lshl_add_u32 v{vO}, v{vT+1}, 4, v{vO}")
        k("s_lshl_b32 s34, s23, 2"); k("s_add_u32 s34, s34, s25"); k("s_lshl_b32 s34, s34, 16")
        k("s_lshl_b32 s28, s24, 12"); k("s_add_u32 s34, s34, s28"); k("s_lshl_b32 s28, s26, 8"); k("s_add_u32 s34, s34, s28")
        k(f"s_add_u32 s34, s34, {WS_H}")
        k("s_lshl_b32 s28, s20, 10"); k(f"s_add_u32 s28, s28, {RMOFF}")
        k(f"v_lshl_add_u32 v{vRM}, v{vT}, 4, s28")
    k("s_lshl_b32 s28, s20, 11"); k(f"s_add_u32 s28, s28, {HKOFF}")
    k(f"v_lshl_add_u32 v{vHK}, v1, 4, s28")
    k(f"v_bfe_u32 v{vT+1}, v1, 2, 2")
    k(f"v_lshrrev_b32 v{vT+2}, 1, v{vT}"); k(f"v_and_b32 v{vT+3}, 1, v{vT}")
    k(f"v_lshlrev_b32 v{vT+2}, 4, v{vT+2}"); k(f"v_lshl_add_u32 v{vT+2}, v{vT+3}, 2, v{vT+2}")
    k(f"v_add_u32 v{vT+2}, v{vT+2}, v{vT+1}"); k(f"v_lshlrev_b32 v{vT+2}, 7, v{vT+2}")
    k(f"v_lshrrev_b32 v{vT+1}, 1, v{vT+1}"); k(f"v_lshl_add_u32 v{vT+1}, v{vT+3}, 1, v{vT+1}")
    k(f"v_and_b32 v{vT+3}, 3, v1"); k(f"v_lshl_add_u32 v{vT+2}, v{vT+3}, 3, v{vT+2}")
    k("s_lshl_b32 s28, s26, 13")
    if base: k(f"s_add_u32 s28, s28, {base}")
    k(f"v_add_u32 v{vT+2}, s28, v{vT+2}")
    for i in range(4):
        k(f"v_xor_b32 v{vT+3}, {i}, v{vT+1}")
        k(f"v_lshl_add_u32 v{vA[i]}, v{vT+3}, 5, v{vT+2}")
    hiA = NS * 16384 > 65536
    vA2 = [204, 205, 206, 207]
    if hiA:
        for i in range(4): k(f"v_add_u32 v{vA2[i]}, 65536, v{vA[i]}")
    srd(k, 16, pX if wo else pOUT, MB4)
    if not wo and OT == 1:
        k(f"buffer_load_dword v{RES}, v{vO}, s[16:19], s33 offen")
    for r in range(ACC, ACC + (40 if wo else 32)): k(f"v_mov_b32 v{r}, 0")
    if wo:
        pf4_setup(k, vT)
        k(f"v_lshrrev_b32 v{vT}, 3, v1"); k(f"v_and_b32 v{vT+1}, 7, v1"); k(f"v_lshlrev_b32 v{vT+1}, 4, v{vT+1}")
        k(f"v_lshl_add_u32 v{vT+1}, v{vT}, 8, v{vT+1}"); k("s_lshl_b32 s28, s26, 7"); k(f"v_add_u32 v{vT+1}, s28, v{vT+1}")
        k(f"v_and_b32 v{vT+2}, 15, v1"); k(f"v_lshlrev_b32 v{vT+2}, 2, v{vT+2}")
    vm = VM()
    if not wo:
        for t in range(NPF5, NS):
            for d in w35_dma(vW, SW, t):
                for l in d: k(l)
            k(WADV); vm.issue(("W", t), 2)
    k("s_lshr_b32 s27, s23, 1"); k("s_lshl_b32 s27, s27, 7"); k(f"s_add_u32 s27, s27, {WS_CNT + (C3 if wo else C5)*128}")
    wait(k, 27, 32, vt=(RES, RES + 1), pr=A[1])
    k.stamp(pre + "_wait")
    NSTEP = 2 * NT
    def bld(s):
        b = BR + (s % R) * 8
        return [f"buffer_load_dwordx4 v[{b+4*j}:{b+4*j+3}], v{vBj[j]}, s[12:15], s31 offen{SC}" for j in range(2)]
    def badv(s): return f"s_add_u32 s31, s31, {2048 if s % 2 == 0 else 6144}"
    if wo:
        k("s_lshl_b32 s28, s20, 10"); k(f"s_add_u32 m0, s28, {RMOFF}")
        k(f"s_mov_b32 s28, {WS_RM}")
        k(f"buffer_load_dwordx4 v{vT+1}, s[12:15], s28 offen{SC} lds"); vm.issue("RM")
    for s in range(R):
        for l in bld(s): k(l); vm.issue(("B", s))
        k(badv(s))
    if wo:
        for p in range(2):
            k(f"buffer_load_dwordx4 v[{RES+4*p}:{RES+4*p+3}], v{vR}, s[16:19], s33 offen offset:{64*p}"); vm.issue("res")
        k("s_lshl_b32 s28, s35, 2"); k(f"s_add_u32 s28, s28, {WS_MX}")
        k(f"buffer_load_dword v{MX}, v{vT+2}, s[12:15], s28 offen{SC}"); vm.issue("res")
    def areads(s, buf):
        t = s // 2; sl = t % NS
        va = vA if sl < 4 else vA2
        o = [f"ds_read_b64_tr_b16 v[{A[buf]+4*i+2*tt}:{A[buf]+4*i+2*tt+1}], v{va[i]} offset:{(sl & 3)*16384 + (s&1)*4096 + tt*1024}"
             for i in range(4) for tt in range(2)]
        return o
    def rmread(s, buf): return f"ds_read_b128 v[{RMF[buf]}:{RMF[buf]+3}], v{vRM} offset:{(s >> 1)*128 + (s & 1)*64}"
    for l in areads(0, 0): k(l)
    if wo:
        k(f"s_waitcnt vmcnt({vm.cnt({'RM'})})")
        k(rmread(0, 0))
    k.stamp(pre + "_go")
    texts = []
    for per in range((NT + NS - 1) // NS):
        o = []
        for s in range(per * 2 * NS, min((per + 1) * 2 * NS, NSTEP)):
            t = s // 2; cur = s & 1; nxt = cur ^ 1
            need = {("B", s)}
            if s & 1 and t + 1 < NT: need.add(("W", t + 1))
            n = vm.cnt(need)
            o.append(f"s_waitcnt vmcnt({min(n, 63)}) lgkmcnt(0)")
            rd = []; dm = []
            if s & 1:
                if t + 1 < NT:
                    o.append("s_barrier"); rd = areads(s + 1, nxt)
                if t + NS < NT: dm = w35_dma(vW, SW, t % NS)
            else:
                rd = areads(s + 1, nxt)
            if wo and s + 1 < NSTEP: rd = rd + [rmread(s + 1, nxt)]
            mf = []
            b = BR + (s % R) * 8
            for i in range(4):
                for j in range(2):
                    a = acc(i, j)
                    mf.append(f"v_mfma_f32_16x16x32_bf16 v[{a}:{a+3}], v[{A[cur]+4*i}:{A[cur]+4*i+3}], v[{b+4*j}:{b+4*j+3}], v[{a}:{a+3}]")
            if wo:
                for j in range(2):
                    a = ACM + 4 * j
                    mf.append(f"v_mfma_f32_16x16x32_bf16 v[{a}:{a+3}], v[{RMF[cur]}:{RMF[cur]+3}], v[{b+4*j}:{b+4*j+3}], v[{a}:{a+3}]")
            gaps = [[] for _ in mf]
            for q, r in enumerate(rd): gaps[min(q, len(mf) - 1)].append(r)
            if dm:
                gaps[0].append(dm[0][0]); gaps[1].append(dm[0][1]); gaps[2].append(dm[1][0]); gaps[3].append(dm[1][1]); gaps[4].append(WADV)
                vm.issue(("W", t + NS), 2)
            if wo and s == JS3 and JIT & 4:
                assert s % 2 == 0
                gaps[1] += jit("L_p3tail", 29, 203); vm.issue("CP")
            if s + R < NSTEP:
                gaps[len(mf) - 1] += bld(s + R) + [badv(s + R)]
                vm.issue(("B", s + R), 2)
            if wo and s == NSTEP - R:
                q = 0
                for tl in range(3):
                    for g in pf4(tl):
                        gaps[min(q, len(mf) - 1)] += g; q += 1
                        vm.issue("PF")
            for g, mm in enumerate(mf):
                o.append(mm); o += gaps[g]
        texts.append(o)
    periods(k, pre + "loop", texts, 36)
    if wo and JIT & 4: k("L_p3tail:")
    k.stamp(pre + "_loop")
    if wo:
        k("s_and_b32 s27, s20, 3"); k("s_lshl_b32 s27, s27, 12"); k(f"s_mul_i32 s28, s26, {SLOT4}"); k("s_add_u32 s27, s27, s28"); k(f"s_add_u32 s27, s27, {BOFF4}")
        k(f"v_lshlrev_b32 v{vT}, 4, v1"); k(f"v_add_u32 v{vT+1}, s27, v{vT}")
        k("s_and_b32 s27, s20, 3"); k("s_lshl_b32 s27, s27, 12"); k("s_xor_b32 s28, s26, 1"); k(f"s_mul_i32 s28, s28, {SLOT4}"); k("s_add_u32 s27, s27, s28"); k(f"s_add_u32 s27, s27, {BOFF4}")
        k(f"v_add_u32 v{vT+2}, s27, v{vT}")
        k("s_lshl_b32 s27, s20, 8"); k(f"s_add_u32 s27, s27, {XMOFF}")
        k(f"v_lshl_add_u32 v{vRM}, v1, 2, s27")
        k(f"ds_write_b32 v{vRM}, v{ACM+4}")
        k(f"v_xor_b32 v{vRM}, 1024, v{vRM}")
    else:
        XCH = 98304
        k("s_lshl_b32 s27, s20, 12"); k(f"s_add_u32 s27, s27, {XCH}")
        k(f"v_lshlrev_b32 v{vT}, 4, v1"); k(f"v_add_u32 v{vT+1}, s27, v{vT}")
        k("s_lshl_b32 s27, s20, 12"); k("s_xor_b32 s27, s27, 16384"); k(f"s_add_u32 s27, s27, {XCH}"); k(f"v_add_u32 v{vT+2}, s27, v{vT}")
    for i in range(4): k(f"ds_write_b128 v{vT+1}, v[{acc(i,1)}:{acc(i,1)+3}] offset:{1024*i}")
    k("s_waitcnt lgkmcnt(0)")
    k("s_barrier")
    for i in range(4): k(f"ds_read_b128 v[{acc(i,1)}:{acc(i,1)+3}], v{vT+2} offset:{1024*i}")
    if wo:
        k(f"ds_read_b32 v{ACM+4}, v{vRM}")
        for g in pf4(3):
            for l in g: k(l)
    else:
        for p in range(2): k(f"ds_read_b128 v[{RES+4*p}:{RES+4*p+3}], v{vHK} offset:{1024*p}")
    k("s_waitcnt lgkmcnt(0)")
    def padd(d, a, b, bc=False):
        if wo:
            k(f"v_add_f32 v{d}, v{a}, v{b}"); k(f"v_add_f32 v{d+1}, v{a+1}, v{b if bc else b+1}")
        else: k(f"v_pk_add_f32 v[{d}:{d+1}], v[{a}:{a+1}], v[{b}:{b+1}]")
    for i in range(4):
        for r in range(0, 4, 2): padd(acc(i,0)+r, acc(i,0)+r, acc(i,1)+r)
    for p in range(2):
        for r in range(4): k(f"v_permlane16_swap_b32 v{acc(2*p,0)+r}, v{acc(2*p+1,0)+r}")
    U = A[0]
    k(f"v_mov_b32 v{vT+3 if not wo else vT}, 0xffff0000")
    vMask = vT + 3 if not wo else vT
    if wo:
        k("s_waitcnt vmcnt(8)")
        k(f"v_add_f32 v{ACM}, v{ACM}, v{ACM+4}")
        k(f"v_add_f32 v{ACM}, v{ACM}, v{MX}")
        k(f"v_sub_f32 v{ACM}, 0, v{ACM}")
    for p in range(2):
        for q in range(4):
            a = acc(2 * p, 0) + 2 * q
            k(f"v_lshlrev_b32 v{U+2*q}, 16, v{RES+4*p+q}")
            k(f"v_and_b32 v{U+2*q+1}, v{vMask}, v{RES+4*p+q}")
        for q in range(4):
            a = acc(2 * p, 0) + 2 * q
            padd(a, a, U+2*q)
        for q in range(4):
            a = acc(2 * p, 0) + 2 * q
            k(f"v_cvt_pk_bf16_f32 v{RES+4*p+q}, v{a}, v{a+1}")
        if wo:
            k(f"ds_write_b128 v{vHK}, v[{RES+4*p}:{RES+4*p+3}] offset:{1024*p}")
            HC = U + 8 + 4 * p
            for q in range(4):
                a = acc(2 * p, 0) + 2 * q
                padd(a, a, ACM, True)
            for q in range(4):
                a = acc(2 * p, 0) + 2 * q
                k(f"v_cvt_pk_bf16_f32 v{HC+q}, v{a}, v{a+1}")
            k(f"buffer_store_dwordx4 v[{HC}:{HC+3}], v{vO}, s[12:15], s34 offen offset:{2048*p}{SC}")
        else:
            k(f"buffer_store_dwordx4 v[{RES+4*p}:{RES+4*p+3}], v{vO}, s[16:19], s33 offen offset:{64*p}{OUTSC}")
    if wo:
        s1 = U
        a0 = acc(0, 0)
        for r in range(4): k(f"v_mul_f32 v{s1+r}, v{a0+r}, v{a0+r}")
        for r in range(4, 16): k(f"v_fma_f32 v{s1+(r&3)}, v{a0+r}, v{a0+r}, v{s1+(r&3)}")
        k(f"v_add_f32 v{s1}, v{s1}, v{s1+1}"); k(f"v_add_f32 v{s1+2}, v{s1+2}, v{s1+3}"); k(f"v_add_f32 v{s1}, v{s1}, v{s1+2}")
        for sw in ("v_permlane16_swap_b32", "v_permlane32_swap_b32"):
            k(f"v_mov_b32 v{s1+2}, v{s1}"); k(f"{sw} v{s1}, v{s1+2}"); k(f"v_add_f32 v{s1}, v{s1}, v{s1+2}")
        k(f"v_and_b32 v{vT}, 15, v1"); k(f"v_lshlrev_b32 v{vT}, 2, v{vT}")
        if STL & 2:
            k("s_lshr_b32 s27, s35, 8"); k("s_lshl_b32 s27, s27, 14"); k("s_and_b32 s28, s35, 255"); k("s_lshl_b32 s28, s28, 2"); k("s_add_u32 s27, s27, s28")
            k("s_lshl_b32 s28, s24, 10"); k("s_add_u32 s27, s27, s28"); k(f"s_add_u32 s27, s27, {WS_ST}")
        else:
            k("s_lshl_b32 s27, s35, 2"); k("s_lshl_b32 s28, s24, 13"); k("s_add_u32 s27, s27, s28"); k(f"s_add_u32 s27, s27, {WS_ST}")
        k("s_mov_b64 exec, 0xffff")
        k(f"buffer_store_dword v{s1}, v{vT}, s[12:15], s27 offen{SC}")
        k("s_mov_b64 exec, -1")
        k.stamp(pre + "_epi")
        k("s_lshr_b32 s27, s23, 1"); k("s_lshl_b32 s27, s27, 7"); k(f"s_add_u32 s27, s27, {WS_CNT + C4*128}")
        k("s_waitcnt lgkmcnt(0)")
        signal(k, 27, vt=(RES, RES + 1))
        k.stamp(pre + "_sig")
    else:
        k.stamp(pre + "_epi")
OUTSC = os.environ.get("OUTSC", "")

KC = 2 * math.sqrt(2 / math.pi) * math.log2(math.e)
X4 = os.environ.get("X4", "drain").split(",")
T4 = int(os.environ.get("T4", "0")); T4S = int(os.environ.get("T4S", "29")); T4P = int(os.environ.get("T4P", "2"))
def phase4(k):
    NS = 4; SLOT = SLOT4; UOFF = 7168; BOFF = BOFF4; STATS = NS * SLOT
    vA = [2, 3]; vB = [4, 5]; vD = [6, 7, 8, 9, 10]; vL16 = 11; vT = 12
    A = [16, 48]; B = [80, 96]; ACC = 112; SV = 242
    acc = lambda fi, m, j: ACC + ((fi * 2 + m) * 4 + j) * 4
    w35_setup(k, vW5, 0, vT, DF if WT5 or WDT else 0)
    if not WDT: srd(k, 60, pWD, DF * D * 2)
    coords4(k, 23, 24, 25)
    k("s_and_b32 s25, s20, 3")
    k("s_lshr_b32 s26, s20, 2")
    k(f"v_lshlrev_b32 v{vL16}, 4, v1")
    k(f"v_lshrrev_b32 v{vT}, 4, v1")
    k(f"v_bfe_u32 v{vT+1}, v1, 2, 2")
    k(f"v_lshrrev_b32 v{vT+2}, 1, v{vT}"); k(f"v_and_b32 v{vT+3}, 1, v{vT}")
    k(f"v_lshlrev_b32 v{vT+2}, 4, v{vT+2}"); k(f"v_lshl_add_u32 v{vT+2}, v{vT+3}, 2, v{vT+2}"); k(f"v_add_u32 v{vT+2}, v{vT+2}, v{vT+1}")
    k(f"v_mul_u32_u24 v{vT+2}, 224, v{vT+2}")
    k(f"v_and_b32 v{vT+3}, 3, v1"); k(f"v_lshl_add_u32 v{vT+2}, v{vT+3}, 3, v{vT+2}")
    k("s_lshl_b32 s27, s26, 7")
    k(f"v_add_u32 v{vA[0]}, s27, v{vT+2}"); k(f"v_add_u32 v{vA[1]}, {2*SLOT}, v{vA[0]}")
    k(f"v_and_b32 v{vT+1}, 15, v1"); k(f"v_lshlrev_b32 v{vT+1}, 4, v{vT+1}"); k(f"v_lshl_add_u32 v{vT+1}, v{vT}, 9, v{vT+1}")
    k("s_lshl_b32 s27, s25, 12"); k(f"s_add_u32 s27, s27, {BOFF}")
    k(f"v_add_u32 v{vB[0]}, s27, v{vT+1}"); k(f"v_add_u32 v{vB[1]}, {2*SLOT}, v{vB[0]}")
    k("s_lshl_b32 s31, s23, 19"); k(f"s_add_u32 s31, s31, {WS_H}")
    k("s_mul_i32 s30, s24, 224"); k(f"s_add_u32 s30, s30, {NS*32*7168}")
    for r in range(ACC, ACC + 128): k(f"v_mov_b32 v{r}, 0")
    k(f"v_and_b32 v{vT}, 1, v0"); k(f"v_lshlrev_b32 v{vT}, {13 if STL & 2 else 16}, v{vT}")
    k(f"v_lshrrev_b32 v{vT+1}, 1, v0"); k(f"v_lshl_add_u32 v{SV+8}, v{vT+1}, 2, v{vT}")
    k(f"v_lshlrev_b32 v{SV+9}, 4, v{vT+1}"); k(f"v_add_u32 v{SV+9}, {STATS}, v{SV+9}")
    k(f"s_lshl_b32 s37, s23, {14 if STL & 2 else 10}"); k(f"s_add_u32 s37, s37, {WS_ST}")
    k("s_bitcmp1_b32 s25, 1")
    k(f"s_cselect_b32 s4, s{pWU}, s{pWG}"); k(f"s_cselect_b32 s5, s{pWU+1}, s{pWG+1}")
    srd(k, 8, 4, D * DF * 2)
    lsb = k.lab("p4setB"); lsd = k.lab("p4setD")
    k("s_cmp_eq_u32 s26, 0")
    k(f"s_cbranch_scc0 {lsb}")
    for n in range(3):
        k("s_mul_i32 s27, s20, 3"); k(f"s_add_u32 s27, s27, {n}")
        k("s_lshr_b32 s28, s27, 1"); k("s_lshl_b32 s28, s28, 16"); k("s_and_b32 s29, s27, 1"); k("s_lshl_b32 s29, s29, 10"); k("s_add_u32 s28, s28, s29")
        k(f"v_add_u32 v{vD[n]}, s28, v{vL16}")
    k(f"s_mul_i32 s32, s20, 3072"); k(f"s_add_u32 s32, s32, {BOFF}")
    k(f"s_branch {lsd}")
    k(f"{lsb}:")
    k("s_and_b32 s27, s25, 1"); k("s_lshl_b32 s27, s27, 8")
    for q in range(4):
        k(f"v_add_u32 v{vT+3}, {64*q}, v1"); k(f"v_add_u32 v{vT+3}, s27, v{vT+3}")
        w4_piece_lane(k, vD[q], vT + 3, vT)
    k("s_add_u32 s27, s25, 12")
    k("s_lshr_b32 s28, s27, 1"); k("s_lshl_b32 s28, s28, 16"); k("s_and_b32 s29, s27, 1"); k("s_lshl_b32 s29, s29, 10"); k("s_add_u32 s28, s28, s29")
    k(f"v_add_u32 v{vD[4]}, s28, v{vL16}")
    k("s_lshl_b32 s33, s27, 10"); k(f"s_add_u32 s33, s33, {BOFF}")
    k("s_lshr_b32 s32, s25, 1"); k(f"s_mul_i32 s32, s32, {UOFF}"); k("s_and_b32 s27, s25, 1"); k("s_lshl_b32 s27, s27, 12"); k("s_add_u32 s32, s32, s27")
    k(f"{lsd}:")
    k("s_lshl_b32 s27, s23, 3"); k("s_lshl_b32 s28, s25, 1"); k("s_add_u32 s27, s27, s28"); k("s_mul_i32 s27, s27, 448")
    k("s_mul_i32 s28, s24, 14"); k("s_add_u32 s27, s27, s28"); k("s_lshl_b32 s28, s26, 3"); k("s_add_u32 s27, s27, s28")
    k("s_lshl_b32 s27, s27, 9"); k(f"s_add_u32 s34, s27, {WS_HM}"); k(f"s_add_u32 s35, s34, {448*512}")
    if WDT:
        k(f"v_add_u32 v{vT+1}, {C3 - 1}, v1"); k(f"v_lshlrev_b32 v{vT+1}, 7, v{vT+1}")
        k("s_lshl_b32 s27, s23, 7"); k(f"s_add_u32 s27, s27, {C4*128}")
        k("s_nop 0")
        k(f"v_writelane_b32 v{vT+1}, s27, 0")
        k(f"s_mov_b32 s27, {WS_CNT}")
        wait_multi(k, 27, 32, 9, vt=(vT, vT + 1))
    else:
        k("s_lshl_b32 s27, s23, 7"); k(f"s_add_u32 s27, s27, {WS_CNT + C4*128}")
        wait(k, 27, 32, vt=(vT, vT + 1), pr=A[1])
    k.stamp("p4_wait")
    def dma_act(var, slot):
        if var == "A":
            return [[f"s_add_u32 m0, s32, {slot*SLOT + n*1024}", f"buffer_load_dwordx4 v{vD[n]}, s[12:15], s31 offen{SC} lds"] for n in range(3)]
        return [[f"s_add_u32 m0, s33, {slot*SLOT}", f"buffer_load_dwordx4 v{vD[4]}, s[12:15], s31 offen{SC} lds"]]
    def dma_w(var, slot):
        if var == "A": return []
        return [[f"s_add_u32 m0, s32, {slot*SLOT + q*1024}", f"buffer_load_dwordx4 v{vD[q]}, s[8:11], s30 offen lds"] for q in range(4 if var == "B0" else 3)]
    advA = "s_add_u32 s31, s31, 2048"; advW = f"s_add_u32 s30, s30, {32*7168}"
    def stats_calc():
        o = []
        for i in (0, 2, 4, 6): o.append(f"v_add_f32 v{SV+i}, v{SV+i}, v{SV+i+1}")
        o += [f"v_add_f32 v{SV}, v{SV}, v{SV+2}", f"v_add_f32 v{SV+4}, v{SV+4}, v{SV+6}", f"v_add_f32 v{SV}, v{SV}, v{SV+4}",
              "s_nop 1",
              f"v_add_f32_dpp v{SV}, v{SV}, v{SV} quad_perm:[1,0,3,2] row_mask:0xf bank_mask:0xf",
              f"v_mov_b32 v{SV+3}, 0x3a800000", f"v_mov_b32 v{SV+5}, 0x3727c5ac",
              f"v_fma_f32 v{SV+2}, v{SV}, v{SV+3}, v{SV+5}",
              f"v_rsq_f32 v{SV+4}, v{SV+2}",
              f"v_mov_b32 v{SV+3}, 0",
              f"v_mul_f32 v{SV+1}, {f2h(-KC)}, v{SV+4}",
              f"v_mul_f32 v{SV+5}, v{SV+4}, v{SV+4}",
              f"v_mul_f32 v{SV}, {f2h(0.044715)}, v{SV+1}",
              f"v_mul_f32 v{SV}, v{SV}, v{SV+5}",
              f"ds_write_b128 v{SV+9}, v[{SV}:{SV+3}]"]
        return o
    st_idx = {}
    def vstamp(nm):
        if nm in st_idx: k.stamp_at(st_idx[nm])
        else:
            st_idx[nm] = k.nst; k.stamp(nm)
    ljoin = k.lab("p4join")
    def body(var):
        nf = 4 if var == "A" else 3
        first = (var != "A") if T4 == 1 else (var == "A")
        vm = VM()
        for s in range(NS):
            for d in dma_act(var, s):
                for l in d: k(l)
                vm.issue(("D", s))
            k(advA)
        k("s_mov_b32 s28, s37")
        for i in range(8):
            if STL & 2:
                k(f"buffer_load_dword v{SV+i}, v{SV+8}, s[12:15], s28 offen offset:{1024*(i&3)}{SC}"); vm.issue("ST")
                if i == 3: k("s_add_u32 s28, s28, 4096")
                continue
            k(f"buffer_load_dword v{SV+i}, v{SV+8}, s[12:15], s28 offen{SC}"); vm.issue("ST")
            if i < 7: k("s_add_u32 s28, s28, 8192")
        def reads(buf, slot):
            base = slot >> 1; so = (slot & 1) * SLOT
            o = []
            def rA(fi, m):
                i = fi * 2 + m
                return [f"ds_read_b64_tr_b16 v[{A[buf]+4*i+2*t}:{A[buf]+4*i+2*t+1}], v{vA[base]} offset:{so + m*UOFF + t*8*224 + fi*32}" for t in range(2)]
            o += rA(0, 0)
            for j in range(4): o.append(f"ds_read_b128 v[{B[buf]+4*j}:{B[buf]+4*j+3}], v{vB[base]} offset:{so + (j>>1)*2048 + (j&1)*256}")
            for i in range(1, 2 * nf): o += rA(i >> 1, i & 1)
            return o
        k(f"s_waitcnt vmcnt({vm.cnt({('D', 0)})})")
        k("s_barrier")
        vstamp("p4_go")
        for l in reads(0, 0): k(l)
        NT = 32
        texts = []
        pf5 = {3: {28: [0], 29: [1, 2]}, 1: {28: [0]}, 0: {}}[NPF5]
        for per in range(NT // NS):
            o = []
            for t in range(per * NS, (per + 1) * NS):
                slot = t % NS; cur = t & 1; nxt = cur ^ 1
                rd = []; dm = []; ex = []
                if T4 and t > T4S and t + 1 < NT:
                    o.append("s_waitcnt lgkmcnt(0)")
                    rd = reads(nxt, (t + 1) % NS)
                elif t + 1 < NT:
                    need = {("D", t + 1)}
                    if T4 and t == T4S: need |= {("D", x) for x in range(t + 1, NT)}
                    if t == 3: need.add("ST")
                    o.append(f"s_waitcnt vmcnt({vm.cnt(need)}) lgkmcnt(0)")
                    o.append("s_barrier")
                    if T4 and t == T4S and first: o.append(f"s_setprio {T4P}")
                    rd = reads(nxt, (t + 1) % NS)
                else:
                    o.append("s_waitcnt lgkmcnt(0)")
                tail = []
                if t + NS < NT:
                    dm = dma_w(var, slot) + dma_act(var, slot)
                    vm.issue(("D", t + NS), len(dm))
                    tail = [advA, advW]
                for tl in pf5.get(t, []):
                    if tl < NS5 and not T4:
                        dm += [list(x) for x in w35_dma(vW5, SW5, tl)]
                        dm[-1].append(W5ADV)
                        vm.issue("PF5", 2)
                    elif tl < NS5 and first:
                        tail = tail + [W5ADV]
                    elif tl < NS5:
                        assert WDT or WT5
                        sg = "add" if var == "A" else "sub"
                        own = [list(x) for x in w35_dma(vW5, SW5, tl)]
                        oth = [[x[0].replace("s51", "s7"), x[1].replace("s50", "s6")] for x in w35_dma(vW5, SW5, tl)]
                        oth[0] = [f"s_{sg}_u32 s6, s50, 8192", f"s_{sg}_u32 s7, s51, 8192"] + oth[0]
                        oth[0] = [oth[0][:3], oth[0][3]]
                        oth[-1].append(W5ADV)
                        dm += own + oth
                        vm.issue("PF5", 4)
                if t == 3: ex = stats_calc()
                if t == JT4 and JIT & 8:
                    ex = jit("L_p4tail", 27, 13); vm.issue("CP")
                mf = []
                for i in range(2 * nf):
                    for j in range(4):
                        a = acc(i >> 1, i & 1, j)
                        mf.append(f"v_mfma_f32_16x16x32_bf16 v[{a}:{a+3}], v[{A[cur]+4*i}:{A[cur]+4*i+3}], v[{B[cur]+4*j}:{B[cur]+4*j+3}], v[{a}:{a+3}]")
                n = len(mf)
                gaps = [[] for _ in mf]
                for q, r in enumerate(rd): gaps[q].append(r)
                if dm:
                    stp = (n - 3) // len(dm)
                    for q, d in enumerate(dm):
                        g = 1 + stp * q
                        if isinstance(d[0], list): gaps[g] += d[0]
                        else: gaps[g].append(d[0])
                        gaps[g + 1] += d[1:]
                    gaps[n - 1] += tail
                elif tail: gaps[n - 1] += tail
                for q, l in enumerate(ex): gaps[min(4 + q, n - 1)].append(l)
                for g, mm in enumerate(mf):
                    o.append(mm); o += gaps[g]
            texts.append(o)
        periods(k, f"p4{var}", texts, 36)
        if var == "A" and JIT & 8: k("L_p4tail:")
        vstamp("p4_loop")
        ST = 16; TT = 32
        k(f"v_and_b32 v{vT}, 15, v1"); k(f"v_lshlrev_b32 v{vT}, 4, v{vT}")
        k("s_lshl_b32 s27, s25, 10"); k(f"s_add_u32 s27, s27, {STATS}"); k(f"v_add_u32 v{vT}, s27, v{vT}")
        for j in range(4): k(f"ds_read_b128 v[{ST+4*j}:{ST+4*j+3}], v{vT} offset:{256*j}")
        k("s_waitcnt vmcnt(0) lgkmcnt(0)")
        if "drain" in X4: k("s_waitcnt vmcnt(0)"); k("s_barrier")
        if "drain0" in X4: k("s_waitcnt vmcnt(0)")
        if "bar" in X4: k("s_barrier")
        if "adrain" in X4 and var == "A": k("s_waitcnt vmcnt(0)")
        if "bdrain" in X4 and var != "A": k("s_waitcnt vmcnt(0)")
        nopk = ("anopk" in X4 and var == "A") or ("bnopk" in X4 and var != "A")
        def pk(op, d, a, b, c=None, sel=None):
            if not nopk:
                x = f"v_pk_{op}_f32 v[{d}:{d+1}], v[{a}:{a+1}], v[{b}:{b+1}]"
                if c is not None: x += f", v[{c}:{c+1}] " + sel
                k(x); return
            for h in range(2):
                if c is None: k(f"v_mul_f32 v{d+h}, v{a+h}, v{b+h}")
                elif sel.startswith("op_sel:[0,0,1]"): k(f"v_fma_f32 v{d+h}, v{a+h}, v{b}, v{b+1}")
                else: k(f"v_fma_f32 v{d+h}, v{a+h}, v{b}, v{b}")
        for fi in range(nf):
            for p in range(2):
                gi = fi * 2 + p
                PK = TT + 16 + 4 * (gi & 3)
                T = TT + 8 * (gi & 1)
                prs = [(2 * p + jj, h) for jj in range(2) for h in range(2)]
                P = lambda r: f"v[{r}:{r+1}]"
                for q, (j, h) in enumerate(prs):
                    g = acc(fi, 0, j) + 2 * h
                    pk("mul", T+2*q, g, g)
                for q, (j, h) in enumerate(prs):
                    c = ST + 4 * j
                    pk("fma", T+2*q, T+2*q, c, c, "op_sel:[0,0,1] op_sel_hi:[1,0,1]")
                for q, (j, h) in enumerate(prs):
                    g = acc(fi, 0, j) + 2 * h
                    pk("mul", T+2*q, T+2*q, g)
                for q, (j, h) in enumerate(prs):
                    g = acc(fi, 0, j) + 2 * h; u = acc(fi, 1, j) + 2 * h
                    k(f"v_exp_f32 v{T+2*q}, v{T+2*q}"); k(f"v_exp_f32 v{T+2*q+1}, v{T+2*q+1}")
                    pk("mul", u, u, g)
                for q, (j, h) in enumerate(prs):
                    c = ST + 4 * j + 2
                    pk("fma", T+2*q, T+2*q, c, c, "op_sel:[0,0,0] op_sel_hi:[1,0,0]")
                for q, (j, h) in enumerate(prs):
                    k(f"v_rcp_f32 v{T+2*q}, v{T+2*q}"); k(f"v_rcp_f32 v{T+2*q+1}, v{T+2*q+1}")
                for q, (j, h) in enumerate(prs):
                    u = acc(fi, 1, j) + 2 * h
                    pk("mul", u, u, T+2*q)
                for q, (j, h) in enumerate(prs):
                    u = acc(fi, 1, j) + 2 * h
                    k(f"v_cvt_pk_bf16_f32 v{PK+q}, v{u}, v{u+1}")
                k(f"v_permlane16_swap_b32 v{PK}, v{PK+2}")
                k(f"v_permlane16_swap_b32 v{PK+1}, v{PK+3}")
                k(f"buffer_store_dwordx4 v[{PK}:{PK+3}], v{vL16}, s[12:15], s{34+p} offen offset:{1024*fi}{SC}")
        if T4 and first: k("s_setprio 0")
        vstamp("p4_epi")
        if var != "B1": k(f"s_branch {ljoin}")
    lB = k.lab("p4B"); lB1 = k.lab("p4B1")
    k("s_cmp_eq_u32 s26, 0")
    k(f"s_cbranch_scc0 {lB}")
    body("A")
    k(f"{lB}:")
    k("s_bitcmp1_b32 s25, 0")
    k(f"s_cbranch_scc1 {lB1}")
    body("B0")
    k(f"{lB1}:")
    body("B1")
    k(f"{ljoin}:")
    k("s_lshl_b32 s27, s23, 7"); k(f"s_add_u32 s27, s27, {WS_CNT + C5*128}")
    signal(k, 27, vt=(vT, vT + 1))
    k.stamp("p4_sig")

CPF = int(os.environ.get("CPF", "1")); CPFW = int(os.environ.get("CPFW", "0"))
def mk():
    k = G(NAME, nvgpr=256, accum=256, total=256)
    lend = "L_end"
    k("s_cmp_ge_u32 s2, 256")
    k(f"s_cbranch_scc1 {lend}")
    if os.environ.get("SCR"):
        k("s_and_b32 s3, s2, 7"); k("s_lshl_b32 s3, s3, 5"); k("s_lshr_b32 s2, s2, 3"); k("s_or_b32 s2, s2, s3")
    k("s_load_dwordx16 s[64:79], s[0:1], 0")
    k("s_load_dwordx4 s[80:83], s[0:1], 64")
    k("v_and_b32 v1, 63, v0")
    k("v_lshrrev_b32 v2, 6, v0")
    k("s_nop 0")
    k("v_readfirstlane_b32 s20, v2")
    k.stamp("start")
    if CPF:
        k("s_getpc_b64 s[44:45]")
        k("L_cpf_pc:")
        k("s_mov_b32 s46, L_end-L_cpf_pc")
        k("s_mov_b32 s47, 0x20000")
        if CPF == 1:
            lc = k.lab("nocpf")
            k("s_lshr_b32 s3, s2, 3"); k("s_lshl_b32 s3, s3, 11")
            k(f"s_cmp_lg_u32 s20, {CPFW}"); k(f"s_cbranch_scc1 {lc}")
            k("v_lshlrev_b32 v210, 5, v1"); k("v_add_u32 v210, s3, v210")
            k("buffer_load_dword v211, v210, s[44:47], 0 offen")
            k(f"{lc}:")
        elif CPF == 2:
            k("v_lshlrev_b32 v210, 6, v0"); k("s_mov_b32 s3, 32768")
            k("buffer_load_dword v211, v210, s[44:47], 0 offen")
            k("buffer_load_dword v212, v210, s[44:47], s3 offen")
        elif CPF == 3:
            k("s_lshr_b32 s3, s2, 3"); k("s_and_b32 s3, s3, 3"); k("s_lshl_b32 s3, s3, 14")
            k("v_lshlrev_b32 v210, 5, v0")
            k("buffer_load_dword v211, v210, s[44:47], s3 offen")
    ldone = "L_done"
    phs = [phase1, phase2, lambda k: phase35(k, "wo"), phase4, lambda k: phase35(k, "down")]
    for i, ph in enumerate(phs[:UPTO]): ph(k)
    if os.environ.get("ENDW"): k("s_waitcnt vmcnt(0)")
    k.stamp("end")
    k.stamp_out()
    k("s_waitcnt vmcnt(0)")
    k(f"{lend}:")
    k("s_endpgm")
    return k, ("mk", 256, 512, LDS_BYTES)

if __name__ == "__main__":
    import sys
    sys.path.insert(0, "gen")
    from build import header
    k, _ = mk()
    o = header()
    o.append(f"; @launch grid=(256,1,1) block=(512,1,1) lds={LDS_BYTES}")
    if STAMP: o.append("; stamps: " + " ".join(k.stnames))
    o.append('.amdgcn_target "amdgcn-amd-amdhsa--gfx950"')
    o.append('.text')
    o.append(k.text())
    o.append('.section .rodata,"a"')
    o.append(k.desc())
    open(sys.argv[1], "w").write("\n".join(o) + "\n")
    print("wrote", sys.argv[1], "instrs", sum(1 for l in k.lines if l.startswith("  ")))
```

```python
from asmlib import K, srd
from common import *
import os, struct, math
STAMP = bool(int(os.environ.get("STAMP", "0")))
UPTO = int(os.environ.get("UPTO", "5"))
NAME = "sequential_preLN__mha_block__glu_gated_geglu__prompt_kernel"
WS_TS = 0x2800000
SC = " sc1"
LDS_BYTES = 163840
pX, pWQKV, pWO, pBX, pWG, pWU, pWD, pOUT, pDBG, pWS = [64 + 2 * i for i in range(10)]
C2, C3, C4, C5 = 0, 16, 24, 32
SPIN_LIMIT = 0x40000
RAMP = int(os.environ.get("RAMP", "1"))
QKS = int(os.environ.get("QKS", "0"))
PFW = int(os.environ.get("PFW", "1")); PFI = int(os.environ.get("PFI", "0"))
JIT = int(os.environ.get("JIT", "0"))
def jit(label, sreg, vdst):
    return [f"s_mov_b32 s{sreg}, {label}-L_cb", f"buffer_load_dword v{vdst}, v252, s[80:83], s{sreg} offen"]
def f2h(x): return hex(struct.unpack('<I', struct.pack('<f', x))[0])

class G(K):
    def __init__(s, *a, **kw):
        super().__init__(*a, **kw); s.nl = 0; s.nst = 0; s.stnames = []
    def lab(s, base):
        s.nl += 1; return f"L_{base}_{s.nl}"
    def stamp(s, nm):
        if not STAMP: return
        i = s.nst; s.nst += 1; s.stnames.append(nm)
        s("s_memrealtime s[84:85]"); s("s_memtime s[86:87]"); s("s_waitcnt lgkmcnt(0)")
        s(f"v_writelane_b32 v255, s84, {i}"); s(f"v_writelane_b32 v254, s86, {i}")
    def stamp_at(s, i):
        if not STAMP: return
        s("s_memrealtime s[84:85]"); s("s_memtime s[86:87]"); s("s_waitcnt lgkmcnt(0)")
        s(f"v_writelane_b32 v255, s84, {i}"); s(f"v_writelane_b32 v254, s86, {i}")
    def stamp_out(s):
        if not STAMP: return
        s("s_lshl_b32 s84, s2, 3"); s("s_add_u32 s84, s84, s20"); s("s_lshl_b32 s84, s84, 9")
        s(f"s_add_u32 s84, s84, {WS_TS}")
        s("v_lshlrev_b32 v253, 2, v1")
        s("buffer_store_dword v255, v253, s[12:15], s84 offen")
        s("buffer_store_dword v254, v253, s[12:15], s84 offen offset:256")
        s("s_waitcnt vmcnt(0)")

class VM:
    def __init__(s): s.q = []; s.c = []
    def issue(s, tag, n=1, certain=True): s.q += [tag] * n; s.c += [certain] * n
    def cnt(s, tags):
        last = -1
        for i, t in enumerate(s.q):
            if t in tags: last = i
        return sum(1 for c in s.c[last + 1:] if c) if last >= 0 else None

def periods(k, name, texts, cnt_sgpr):
    i = 0; n = len(texts)
    while i < n:
        j = i
        while j + 1 < n and texts[j + 1] == texts[i]: j += 1
        rep = j - i + 1
        if rep > 1:
            l = k.lab(name)
            k(f"s_mov_b32 s{cnt_sgpr}, 0")
            k(f"{l}:")
            for x in texts[i]: k(x)
            k(f"s_add_u32 s{cnt_sgpr}, s{cnt_sgpr}, 1")
            k(f"s_cmp_lt_u32 s{cnt_sgpr}, {rep}")
            k(f"s_cbranch_scc1 {l}")
        else:
            for x in texts[i]: k(x)
        i = j + 1

def signal(k, sline, vt=(14, 15)):
    k("s_waitcnt vmcnt(0)")
    k("s_barrier")
    l = k.lab("nosig")
    k("s_cmp_lg_u32 s20, 0"); k(f"s_cbranch_scc1 {l}")
    k("s_mov_b64 exec, 1")
    k(f"v_mov_b32 v{vt[0]}, 1"); k(f"v_mov_b32 v{vt[1]}, 0")
    k(f"buffer_atomic_add v{vt[0]}, v{vt[1]}, s[12:15], s{sline} offen sc1")
    k("s_mov_b64 exec, -1")
    k(f"{l}:")

PD = int(os.environ.get("PD", "1")); PSL = int(os.environ.get("PSL", "6"))
def wait(k, sline, target, vt=(14, 15), pr=None):
    done = k.lab("wdone"); spin = k.lab("wspin")
    k("s_cmp_lg_u32 s20, 0"); k(f"s_cbranch_scc1 {done}")
    k(f"v_mov_b32 v{vt[1]}, 0")
    k("s_mov_b32 s28, 0")
    if PD == 1 or pr is None:
        k(f"{spin}:")
        k(f"buffer_load_dword v{vt[0]}, v{vt[1]}, s[12:15], s{sline} offen sc1")
        k("s_add_u32 s28, s28, 1")
        k("s_waitcnt vmcnt(0)")
        k(f"v_readfirstlane_b32 s29, v{vt[0]}")
        k(f"s_cmp_eq_u32 s29, {target}"); k(f"s_cbranch_scc1 {done}")
        k(f"s_cmp_gt_u32 s28, {SPIN_LIMIT}"); k(f"s_cbranch_scc1 {done}")
        k("s_sleep 1")
        k(f"s_branch {spin}")
    else:
        ld = lambda i: k(f"buffer_load_dword v{pr+i}, v{vt[1]}, s[12:15], s{sline} offen sc1")
        for i in range(PD):
            ld(i)
            if i < PD - 1: k(f"s_sleep {PSL}")
        k(f"{spin}:")
        for i in range(PD):
            k(f"s_waitcnt vmcnt({PD-1})")
            k(f"v_readfirstlane_b32 s29, v{pr+i}")
            k(f"s_cmp_eq_u32 s29, {target}"); k(f"s_cbranch_scc1 {done}")
            ld(i)
        k("s_add_u32 s28, s28, 1")
        k(f"s_cmp_gt_u32 s28, {SPIN_LIMIT}"); k(f"s_cbranch_scc0 {spin}")
    k(f"{done}:")
    k("s_barrier")

def wait_multi(k, sline, target, n, vt):
    done = k.lab("wdone"); spin = k.lab("wspin"); dx = k.lab("wdx")
    k("s_cmp_lg_u32 s20, 0"); k(f"s_cbranch_scc1 {done}")
    k(f"s_mov_b64 exec, {hex((1 << n) - 1)}")
    k("s_mov_b32 s28, 0")
    k(f"{spin}:")
    k(f"buffer_load_dword v{vt[0]}, v{vt[1]}, s[12:15], s{sline} offen sc1")
    k("s_add_u32 s28, s28, 1")
    k("s_waitcnt vmcnt(0)")
    k(f"v_cmp_ne_u32 vcc, {target}, v{vt[0]}")
    k("s_cmp_eq_u64 vcc, 0"); k(f"s_cbranch_scc1 {dx}")
    k(f"s_cmp_gt_u32 s28, {SPIN_LIMIT}"); k(f"s_cbranch_scc1 {dx}")
    k("s_sleep 1")
    k(f"s_branch {spin}")
    k(f"{dx}:")
    k("s_mov_b64 exec, -1")
    k(f"{done}:")
    k("s_barrier")

def wdma_lane(k, vdst, rowbytes, t):
    k(f"v_lshrrev_b32 v{t}, 3, v1"); k(f"v_and_b32 v{t+1}, 7, v1")
    k(f"v_lshrrev_b32 v{t+2}, 2, v{t}"); k(f"v_and_b32 v{t+3}, 3, v{t}")
    k(f"v_lshl_add_u32 v{t+2}, v{t+2}, 3, v{t+3}")
    k(f"v_mul_u32_u24 v{t+2}, {rowbytes}, v{t+2}")
    k(f"v_lshrrev_b32 v{t+3}, 1, v{t+1}"); k(f"v_lshrrev_b32 v{t}, 1, v{t}")
    k(f"v_xor_b32 v{t+3}, v{t+3}, v{t}")
    k(f"v_and_b32 v{t+1}, 1, v{t+1}")
    k(f"v_lshl_add_u32 v{t+3}, v{t+3}, 1, v{t+1}")
    k(f"v_lshl_add_u32 v{vdst}, v{t+3}, 4, v{t+2}")

STL = int(os.environ.get("STL", "0"))
ESIG = int(os.environ.get("ESIG", "0"))
COA = int(os.environ.get("COA", "0"))
HOIST = int(os.environ.get("HOIST", "0")); TST = int(os.environ.get("TST", "0"))
def hoisted_tail(k, o, step, vm, R):
    PL, RMR, ONE, vP, vZ, vL16, SQ, CQ, QS, VS, vVO = [R[x] for x in ("PL", "RMR", "ONE", "vP", "vZ", "vL16", "SQ", "CQ", "QS", "VS", "vVO")]
    r0, r1 = 198, 199
    vSt = 200; vCs = 201; vTok = 203; vG = 202
    v17, v18, v19 = 209, 212, 204
    v20 = [205, 206, 207, 208]; v23 = [v17, 213, 214, 215]
    tA, tB = 216, 218
    ad = []
    ad += [f"v_lshrrev_b32 v{vSt}, 2, v0", f"v_lshlrev_b32 v{vSt}, 2, v{vSt}"]
    ad += [f"v_min_u32 v{vCs}, 191, v0", f"v_lshlrev_b32 v{vCs}, 2, v{vCs}"]
    ad += [f"v_and_b32 v{vTok}, 15, v1", "s_lshl_b32 s27, s25, 8", "s_lshl_b32 s28, s26, 6", "s_add_u32 s28, s28, s27",
           f"v_lshlrev_b32 v{tA}, 2, v{vTok}", f"v_add_u32 v{v17}, s28, v{tA}", f"v_lshrrev_b32 v{vG}, 4, v1", f"v_lshlrev_b32 v{v19}, 4, v{vG}",
           f"v_add_u32 v{v20[0]}, s28, v{v19}", "s_lshl_b32 s29, s26, 6", "s_add_u32 s29, s29, 1024",
           f"v_add_u32 v{v19}, s29, v{v19}", f"v_add_u32 v{v18}, s29, v{tA}"]
    for jj in range(1, 4):
        ad += [f"v_xor_b32 v{v20[jj]}, {jj<<6}, v{v20[0]}", f"v_xor_b32 v{v23[jj]}, {jj<<6}, v{v17}"]
    ad += ["s_lshl_b32 s27, s23, 2", "s_lshl_b32 s28, s25, 1", "s_add_u32 s27, s27, s28", "s_lshl_b32 s27, s27, 16",
           "s_lshl_b32 s28, s24, 12", "s_add_u32 s27, s27, s28", "s_lshl_b32 s28, s26, 10", "s_add_u32 s27, s27, s28",
           "s_lshr_b32 s42, s26, 1", "s_lshl_b32 s28, s42, 16", "s_add_u32 s35, s27, s28", "s_xor_b32 s28, s28, 0x10000", "s_add_u32 s37, s27, s28",
           f"s_add_u32 s36, s35, {WS_K}", f"s_add_u32 s38, s37, {WS_K}", f"s_add_u32 s35, s35, {WS_Q}", f"s_add_u32 s37, s37, {WS_Q}",
           "s_lshl_b32 s27, s24, 1", "s_add_u32 s27, s27, s42", "s_lshl_b32 s27, s27, 7",
           "s_lshl_b32 s28, s23, 3", "s_add_u32 s27, s27, s28", "s_lshl_b32 s28, s25, 2", "s_add_u32 s27, s27, s28", "s_lshl_b32 s27, s27, 10",
           "s_and_b32 s43, s26, 1", "s_lshl_b32 s28, s43, 8", "s_add_u32 s27, s27, s28", f"s_add_u32 s27, s27, {WS_VT}",
           "s_lshl_b32 s28, s42, 11", "s_add_u32 s39, s27, s28", "s_xor_b32 s28, s28, 2048", "s_add_u32 s40, s27, s28",
           f"v_lshrrev_b32 v{tA}, 5, v1", f"v_xor_b32 v{tA}, s43, v{tA}", f"v_lshlrev_b32 v{tA}, 10, v{tA}",
           f"v_bfe_u32 v{tB}, v1, 4, 1", f"v_lshl_add_u32 v{tA}, v{tB}, 9, v{tA}", f"v_lshl_add_u32 v{vVO}, v{vTok}, 4, v{tA}",
           "s_lshl_b32 s28, s43, 8", f"v_xor_b32 v{vL16}, s28, v{vL16}", "s_mov_b32 s44, 0x3e8293ee"]
    assert not QKS
    h = len(ad) // 2
    HV = int(os.environ.get("HV", "8")); HP = int(os.environ.get("HP", "11"))
    assert 8 <= HV < HP <= 13
    def chk(o_):
        rdy = k.lab("p1rdy"); spin = k.lab("p1spin")
        k(f"s_waitcnt vmcnt({vm.cnt({'VP', 'RMR'})})")
        k(f"v_cmp_eq_u32 vcc, 128, v{vP}")
        k("s_cmp_eq_u64 vcc, -1")
        k(f"s_cbranch_scc1 {rdy}")
        k("s_mov_b32 s28, 0")
        k(f"{spin}:")
        k("s_add_u32 s28, s28, 1")
        k(f"s_cmp_gt_u32 s28, {SPIN_LIMIT}")
        k(f"s_cbranch_scc1 {rdy}")
        k("s_sleep 2")
        k(f"buffer_load_dword v{vP}, v196, s[60:63], 0 offen sc1")
        k("s_waitcnt vmcnt(0)")
        k(f"v_cmp_eq_u32 vcc, 128, v{vP}")
        k("s_cmp_eq_u64 vcc, -1")
        k(f"s_cbranch_scc0 {spin}")
        k(f"{rdy}:")
    ld = []
    ld.append([f"v_and_b32 v{r0}, 3, v0", f"v_lshlrev_b32 v{r0}, 16, v{r0}", f"v_lshrrev_b32 v{r1}, 2, v0", f"v_lshl_add_u32 v{tB}, v{r1}, 3, v{r0}",
               "s_lshl_b32 s27, s23, 10", f"s_add_u32 s27, s27, {WS_ST1}"])
    for i in range(4):
        ld.append([f"buffer_load_dwordx2 v[{PL+2*i}:{PL+2*i+1}], v{tB}, s[12:15], s27 offen{SC}"] + (["s_add_u32 s27, s27, 16384"] if i < 3 else []))
    ld.append([f"s_mul_i32 s27, s24, {16*768}", f"s_add_u32 s27, s27, {WS_CS1}"])
    for i in range(16):
        ld.append([f"buffer_load_dword v{PL+8+i}, v{vCs}, s[12:15], s27 offen offset:{(i % 4) * 768}{SC}"] + ([f"s_add_u32 s27, s27, {4*768}"] if i % 4 == 3 and i < 15 else []))
    adq = [ad[:h], ad[h:]]
    for t in range(8, 14):
        if t == HV:
            k(f"buffer_load_dword v{vP}, v196, s[60:63], 0 offen sc1"); vm.issue("VP")
            k("s_lshl_b32 s27, s2, 13")
            k(f"buffer_load_dwordx4 v[{RMR}:{RMR+3}], v197, s[88:91], s27 offen"); vm.issue("RMR")
        if t == 12 and JIT & 1:
            for l in jit("L_p1tail", 27, 211): k(l)
            vm.issue("CP")
        if t == HP:
            step(o, t, 0, pre=chk, inj=ld, inj0=0)
            vm.issue("PART", 20)
        else:
            step(o, t, 0, inj=adq.pop(0) if adq and t >= HV else None, inj0=0)
        if TST and t == HP: k.stamp(f"t{t}_0")
        if t < 13: step(o, t, 1, inj=adq.pop(0) if adq and t >= HV else None, inj0=0)
        if TST and t < 13: k.stamp(f"t{t}")
    assert not adq
    rs = [f"v_mov_b32 v{r0}, 0"] + [f"v_dot2c_f32_bf16 v{r0}, v{RMR+r}, v{ONE}" for r in range(4)]
    rs += [f"v_add_f32_dpp v{r0}, v{r0}, v{r0} row_ror:{ro} row_mask:0xf bank_mask:0xf" for ro in (8, 4, 2, 1)]
    for sw in ("v_permlane16_swap_b32", "v_permlane32_swap_b32"):
        rs += [f"v_mov_b32 v{r1}, v{r0}", f"{sw} v{r0}, v{r1}", f"v_add_f32 v{r0}, v{r0}, v{r1}"]
    rs += ["s_lshl_b32 s27, s20, 2", "s_add_u32 s27, s27, 2048", f"v_mov_b32 v{r1}, s27", f"ds_write_b32 v{r1}, v{r0}"]
    step(o, 13, 1, inj=rs, inj0=0)
    if TST: k.stamp("t13")
    st = [f"v_add_f32 v{PL}, v{PL}, v{PL+2}", f"v_add_f32 v{PL+1}, v{PL+1}, v{PL+3}", f"v_add_f32 v{PL+4}, v{PL+4}, v{PL+6}", f"v_add_f32 v{PL+5}, v{PL+5}, v{PL+7}",
          f"v_add_f32 v{PL}, v{PL}, v{PL+4}", f"v_add_f32 v{PL+1}, v{PL+1}, v{PL+5}"]
    cs = [f"v_add_f32 v{PL+8+i}, v{PL+8+i}, v{PL+8+i+w}" for w in (8, 4, 2, 1) for i in range(w)]
    lm = k.lab("nomx")
    ch = []
    for qp in ("[1,0,3,2]", "[2,3,0,1]"):
        ch += [f"v_add_f32_dpp v{PL}, v{PL}, v{PL} quad_perm:{qp} row_mask:0xf bank_mask:0xf",
               f"v_add_f32_dpp v{PL+1}, v{PL+1}, v{PL+1} quad_perm:{qp} row_mask:0xf bank_mask:0xf"]
    ch += [f"v_mul_f32 v{PL}, 0x3a800000, v{PL}", f"v_mul_f32 v{PL+1}, 0x3a800000, v{PL+1}",
           ["s_cmp_lg_u32 s24, 0", f"s_cbranch_scc1 {lm}", "s_lshl_b32 s27, s23, 9", f"s_add_u32 s27, s27, {WS_MX}",
            f"buffer_store_dword v{PL}, v{vSt}, s[12:15], s27 offen{SC}", f"{lm}:"],
           f"v_fma_f32 v{PL+1}, -v{PL}, v{PL}, v{PL+1}", f"v_max_f32 v{PL+1}, 0, v{PL+1}", f"v_add_f32 v{PL+1}, 0x3727c5ac, v{PL+1}",
           f"v_rsq_f32 v{PL+1}, v{PL+1}", f"v_mul_f32 v{PL+2}, v{PL}, v{PL+1}", f"v_sub_f32 v{PL+2}, 0, v{PL+2}",
           f"ds_write_b32 v{vSt}, v{PL+1}", f"ds_write_b32 v{vSt}, v{PL+2} offset:512"]
    mix = list(st)
    ci = 0
    for x in ch:
        mix.append(x)
        if ci < len(cs): mix.append(cs[ci]); ci += 1
    mix += cs[ci:]
    mix.append(f"ds_write_b32 v{vCs}, v{PL+8} offset:1024")
    def wpart(o_): k(f"s_waitcnt vmcnt({vm.cnt({'PART'})})")
    step(o, 14, 0, pre=wpart, inj=mix, inj0=0)
    if TST: k.stamp("t14_0")
    vm.issue("MX", 1, certain=False)
    rd = [f"ds_read2_b32 v[{SQ+2*jj}:{SQ+2*jj+1}], v{v23[jj]} offset0:0 offset1:128" for jj in range(4)]
    rd += [f"ds_read_b128 v[{CQ}:{CQ+3}], v{v19}", f"ds_read_b128 v[{CQ+4}:{CQ+7}], v{v19} offset:256", f"ds_read_b32 v152, v{v18} offset:512"]
    for jj in range(4):
        rd += [f"ds_read_b128 v[{VS[jj]}:{VS[jj]+3}], v{v20[jj]}", f"ds_read_b128 v[{VS[jj]+4}:{VS[jj]+7}], v{v20[jj]} offset:512"]
    RW = 56
    rd += [f"ds_read_b128 v[{RW}:{RW+3}], v{vZ} offset:2048", f"ds_read_b128 v[{RW+4}:{RW+7}], v{vZ} offset:2064"]
    step(o, 14, 1, inj=rd, inj0=4)
    if TST: k.stamp("t14")
    q = []
    for jj in range(4):
        q += [f"v_mul_f32 v{QS+2*jj}, s44, v{SQ+2*jj}", f"v_mul_f32 v{QS+2*jj+1}, s44, v{SQ+2*jj+1}"]
    l7 = k.lab("norm")
    b7 = ["s_cmp_lg_u32 s20, 7", f"s_cbranch_scc1 {l7}"]
    for r in range(4):
        b7 += [f"v_add_f32 v{RW+2*r}, v{RW+2*r}, v{RW+2*r+1}"]
    for r in range(4):
        b7 += [f"v_mul_f32 v{RW+2*r}, 0x3a800000, v{RW+2*r}"]
    b7 += [f"v_cvt_pk_bf16_f32 v{r0}, v{RW}, v{RW+2}", f"v_cvt_pk_bf16_f32 v{r1}, v{RW+4}, v{RW+6}",
           "s_lshl_b32 s27, s2, 3", f"s_add_u32 s27, s27, {WS_RM}", "s_mov_b64 exec, 1",
           f"buffer_store_dwordx2 v[{r0}:{r1}], v{vZ}, s[12:15], s27 offen{SC}", "s_mov_b64 exec, -1", f"{l7}:"]
    step(o, 15, 0, inj=q + [b7], inj0=0)
    step(o, 15, 1)
    if JIT & 1: k("L_p1tail:")
    k.stamp("p1_loop")

def hoist_ad(R):
    vL16, vVO = R["vL16"], R["vVO"]
    vSt = 200; vCs = 201; vTok = 203; vG = 202
    v17, v18, v19 = 209, 212, 204
    v20 = [205, 206, 207, 208]; v23 = [v17, 213, 214, 215]
    tA, tB, vSa, vCg = 216, 198, 218, 219
    ad = []
    ad += [f"v_lshrrev_b32 v{vSt}, 2, v0", f"v_and_b32 v{tB}, 3, v0", f"v_min_u32 v{vCs}, 95, v{vSt}", f"v_lshlrev_b32 v{vCs}, 3, v{vCs}",
           f"v_mul_u32_u24 v{vCg}, 3072, v{tB}", f"v_add_u32 v{vCg}, v{vCg}, v{vCs}",
           f"v_lshlrev_b32 v{tB}, {12 if STL & 1 else 16}, v{tB}", f"v_lshl_add_u32 v{vSa}, v{vSt}, 3, v{tB}", f"v_lshlrev_b32 v{vSt}, 2, v{vSt}"]
    ad += [f"v_and_b32 v{vTok}, 15, v1", "s_lshl_b32 s27, s25, 8", "s_lshl_b32 s28, s26, 6", "s_add_u32 s28, s28, s27",
           f"v_lshlrev_b32 v{tA}, 2, v{vTok}", f"v_add_u32 v{v17}, s28, v{tA}", f"v_lshrrev_b32 v{vG}, 4, v1", f"v_lshlrev_b32 v{v19}, 4, v{vG}",
           f"v_add_u32 v{v20[0]}, s28, v{v19}", "s_lshl_b32 s29, s26, 6", "s_add_u32 s29, s29, 1024",
           f"v_add_u32 v{v19}, s29, v{v19}", f"v_add_u32 v{v18}, s29, v{tA}"]
    for jj in range(1, 4):
        ad += [f"v_xor_b32 v{v20[jj]}, {jj<<6}, v{v20[0]}", f"v_xor_b32 v{v23[jj]}, {jj<<6}, v{v17}"]
    ad += ["s_lshl_b32 s27, s23, 2", "s_lshl_b32 s28, s25, 1", "s_add_u32 s27, s27, s28", "s_lshl_b32 s27, s27, 16",
           "s_lshl_b32 s28, s24, 12", "s_add_u32 s27, s27, s28", "s_lshl_b32 s28, s26, 10", "s_add_u32 s27, s27, s28",
           "s_lshr_b32 s42, s26, 1", "s_lshl_b32 s28, s42, 16", "s_add_u32 s35, s27, s28", "s_xor_b32 s28, s28, 0x10000", "s_add_u32 s37, s27, s28",
           f"s_add_u32 s36, s35, {WS_K}", f"s_add_u32 s38, s37, {WS_K}", f"s_add_u32 s35, s35, {WS_Q}", f"s_add_u32 s37, s37, {WS_Q}",
           "s_lshl_b32 s27, s24, 1", "s_add_u32 s27, s27, s42", "s_lshl_b32 s27, s27, 7",
           "s_lshl_b32 s28, s23, 3", "s_add_u32 s27, s27, s28", "s_lshl_b32 s28, s25, 2", "s_add_u32 s27, s27, s28", "s_lshl_b32 s27, s27, 10",
           "s_and_b32 s43, s26, 1", "s_lshl_b32 s28, s43, 8", "s_add_u32 s27, s27, s28", f"s_add_u32 s27, s27, {WS_VT}",
           "s_lshl_b32 s28, s42, 11", "s_add_u32 s39, s27, s28", "s_xor_b32 s28, s28, 2048", "s_add_u32 s40, s27, s28",
           f"v_lshrrev_b32 v{tA}, 5, v1", f"v_xor_b32 v{tA}, s43, v{tA}", f"v_lshlrev_b32 v{tA}, 10, v{tA}",
           f"v_bfe_u32 v{tB}, v1, 4, 1", f"v_lshl_add_u32 v{tA}, v{tB}, 9, v{tA}", f"v_lshl_add_u32 v{vVO}, v{vTok}, 4, v{tA}",
           "s_lshl_b32 s28, s43, 8", f"v_xor_b32 v{vL16}, s28, v{vL16}", "s_mov_b32 s44, 0x3e8293ee",
           f"s_lshl_b32 s41, s23, {14 if STL & 1 else 10}", f"s_add_u32 s41, s41, {WS_ST1}", f"s_mul_i32 s45, s24, {16*768}", f"s_add_u32 s45, s45, {WS_CS1}"]
    return ad

def hoisted_tail2(k, o, step, vm, R):
    PL, RMR, ONE, vP, vZ, vL16, SQ, CQ, QS, VS, vVO = [R[x] for x in ("PL", "RMR", "ONE", "vP", "vZ", "vL16", "SQ", "CQ", "QS", "VS", "vVO")]
    r0, r1 = 198, 199
    vSt = 200; vCs = 201
    v17, v18, v19 = 209, 212, 204
    v20 = [205, 206, 207, 208]; v23 = [v17, 213, 214, 215]
    vSa, vCg = 218, 219
    HV = int(os.environ.get("HV", "9")); HP = int(os.environ.get("HP", "11")); HC = HP + 1
    assert 8 <= HV < HP <= 11
    st_ = lambda nm: k.stamp(nm) if TST else None
    def chk(o_):
        rdy = k.lab("p1rdy"); spin = k.lab("p1spin")
        k(f"s_waitcnt vmcnt({vm.cnt({'VP'})})")
        k(f"v_cmp_eq_u32 vcc, 128, v{vP}")
        k("s_cmp_eq_u64 vcc, -1")
        k(f"s_cbranch_scc1 {rdy}")
        k("s_mov_b32 s28, 0")
        k(f"{spin}:")
        k("s_add_u32 s28, s28, 1")
        k(f"s_cmp_gt_u32 s28, {SPIN_LIMIT}")
        k(f"s_cbranch_scc1 {rdy}")
        k("s_sleep 2")
        k(f"buffer_load_dword v{vP}, v196, s[60:63], 0 offen sc1")
        k("s_waitcnt vmcnt(0)")
        k(f"v_cmp_eq_u32 vcc, 128, v{vP}")
        k("s_cmp_eq_u64 vcc, -1")
        k(f"s_cbranch_scc0 {spin}")
        k(f"{rdy}:")
    vp = [f"buffer_load_dword v{vP}, v196, s[60:63], 0 offen sc1", "s_lshl_b32 s27, s2, 13",
          f"buffer_load_dwordx4 v[{RMR}:{RMR+3}], v197, s[88:91], s27 offen"]
    la = []
    for i in range(4):
        if STL & 1: la.append(f"buffer_load_dwordx2 v[{PL+2*i}:{PL+2*i+1}], v{vSa}, s[12:15], s41 offen offset:{1024*i}{SC}")
        else: la.append([f"buffer_load_dwordx2 v[{PL+2*i}:{PL+2*i+1}], v{vSa}, s[12:15], s41 offen{SC}"] + (["s_add_u32 s41, s41, 16384"] if i < 3 else []))
    lb = [f"buffer_load_dwordx2 v[{PL+8+2*i}:{PL+8+2*i+1}], v{vCg}, s[12:15], s45 offen offset:{768*i}{SC}" for i in range(4)]
    rs = [f"v_mov_b32 v{r0}, 0"] + [f"v_dot2c_f32_bf16 v{r0}, v{RMR+r}, v{ONE}" for r in range(4)]
    rs += [f"v_add_f32_dpp v{r0}, v{r0}, v{r0} row_ror:{ro} row_mask:0xf bank_mask:0xf" for ro in (8, 4, 2, 1)]
    for sw in ("v_permlane16_swap_b32", "v_permlane32_swap_b32"):
        rs += [f"v_mov_b32 v{r1}, v{r0}", f"{sw} v{r0}, v{r1}", f"v_add_f32 v{r0}, v{r0}, v{r1}"]
    rs += ["s_lshl_b32 s27, s20, 2", "s_add_u32 s27, s27, 2048", f"v_mov_b32 v{r1}, s27", f"ds_write_b32 v{r1}, v{r0}"]
    def red(b):
        x = [f"v_add_f32 v{b}, v{b}, v{b+2}", f"v_add_f32 v{b+1}, v{b+1}, v{b+3}", f"v_add_f32 v{b+4}, v{b+4}, v{b+6}", f"v_add_f32 v{b+5}, v{b+5}, v{b+7}",
             f"v_add_f32 v{b}, v{b}, v{b+4}", f"v_add_f32 v{b+1}, v{b+1}, v{b+5}"]
        for qp in ("[1,0,3,2]", "[2,3,0,1]"):
            x += [f"v_add_f32_dpp v{b}, v{b}, v{b} quad_perm:{qp} row_mask:0xf bank_mask:0xf",
                  f"v_add_f32_dpp v{b+1}, v{b+1}, v{b+1} quad_perm:{qp} row_mask:0xf bank_mask:0xf"]
        return x
    sa = red(PL) + [f"v_mul_f32 v{PL}, 0x3a800000, v{PL}", f"v_mul_f32 v{PL+1}, 0x3a800000, v{PL+1}",
          f"v_fma_f32 v{PL+1}, -v{PL}, v{PL}, v{PL+1}", f"v_max_f32 v{PL+1}, 0, v{PL+1}", f"v_add_f32 v{PL+1}, 0x3727c5ac, v{PL+1}",
          f"v_rsq_f32 v{PL+1}, v{PL+1}", f"v_mul_f32 v{PL+2}, v{PL}, v{PL+1}", f"v_sub_f32 v{PL+2}, 0, v{PL+2}",
          f"ds_write_b32 v{vSt}, v{PL+1}", f"ds_write_b32 v{vSt}, v{PL+2} offset:512"]
    lm = k.lab("nomx")
    sb = red(PL + 8) + [f"ds_write_b64 v{vCs}, v[{PL+8}:{PL+9}] offset:1024",
          ["s_cmp_lg_u32 s24, 0", f"s_cbranch_scc1 {lm}", "s_lshl_b32 s27, s23, 9", f"s_add_u32 s27, s27, {WS_MX}",
           f"buffer_store_dword v{PL}, v{vSt}, s[12:15], s27 offen{SC}", f"{lm}:"]]
    for t in range(8, 13):
        if t == HV:
            step(o, t, 0, inj=vp, inj0=2); vm.issue("VP"); vm.issue("RMR")
        elif t == HP:
            step(o, t, 0, pre=chk, inj=la, inj0=1); vm.issue("PA", 4)
        elif t == HC:
            step(o, t, 0, inj=lb, inj0=1); vm.issue("PB", 4)
        else:
            step(o, t, 0)
        st_(f"t{t}_0")
        step(o, t, 1)
        st_(f"t{t}")
    step(o, 13, 0, inj=rs, inj0=0)
    st_("t13_0")
    step(o, 13, 1, extra_need=("PA", "RMR"), inj=sa, inj0=0)
    st_("t13")
    def wpb(o_): k(f"s_waitcnt vmcnt({vm.cnt({'PB'})})")
    step(o, 14, 0, pre=wpb, inj=sb, inj0=0)
    vm.issue("MX", 1, certain=False)
    st_("t14_0")
    RW = 56
    rd = [f"ds_read2_b32 v[{SQ+2*jj}:{SQ+2*jj+1}], v{v23[jj]} offset0:0 offset1:128" for jj in range(4)]
    rd += [f"ds_read_b128 v[{RW}:{RW+3}], v{vZ} offset:2048", f"ds_read_b128 v[{RW+4}:{RW+7}], v{vZ} offset:2064"]
    step(o, 14, 1, inj=rd, inj0=6)
    st_("t14")
    q = []
    for jj in range(4):
        q += [f"v_mul_f32 v{QS+2*jj}, s44, v{SQ+2*jj}", f"v_mul_f32 v{QS+2*jj+1}, s44, v{SQ+2*jj+1}"]
    l7 = k.lab("norm")
    b7 = ["s_cmp_lg_u32 s20, 7", f"s_cbranch_scc1 {l7}"]
    for r in range(4):
        b7 += [f"v_add_f32 v{RW+2*r}, v{RW+2*r}, v{RW+2*r+1}"]
    for r in range(4):
        b7 += [f"v_mul_f32 v{RW+2*r}, 0x3a800000, v{RW+2*r}"]
    b7 += [f"v_cvt_pk_bf16_f32 v{r0}, v{RW}, v{RW+2}", f"v_cvt_pk_bf16_f32 v{r1}, v{RW+4}, v{RW+6}",
           "s_lshl_b32 s27, s2, 3", f"s_add_u32 s27, s27, {WS_RM}", "s_mov_b64 exec, 1",
           f"buffer_store_dwordx2 v[{r0}:{r1}], v{vZ}, s[12:15], s27 offen{SC}", "s_mov_b64 exec, -1", f"{l7}:"]
    cq = [f"ds_read_b128 v[{CQ}:{CQ+3}], v{v19}", f"ds_read_b128 v[{CQ+4}:{CQ+7}], v{v19} offset:256"]
    step(o, 15, 0, inj=q + cq + [b7], inj0=0)
    st_("t15_0")
    vr = [f"ds_read_b32 v152, v{v18} offset:512"]
    for jj in range(4):
        vr += [f"ds_read_b128 v[{VS[jj]}:{VS[jj]+3}], v{v20[jj]}", f"ds_read_b128 v[{VS[jj]+4}:{VS[jj]+7}], v{v20[jj]} offset:512"]
    step(o, 15, 1, inj=vr, inj0=0)
    k.stamp("p1_loop")

def phase1(k):
    NS = 4; SLOT = 40960; BOFF = 24576
    ACC = 64
    vA = [2, 3]; vW = [10, 11, 12]; vX = [13, 4]; vL16 = 5; vZ = 6; vP = 7
    A = [16, 28]; B = [40, 112]
    VB = 128; DC = 144; D1 = 156; D2 = 160; ONE = 164; PL = 168
    RMR = 192
    acc = lambda m, j: ACC + (m * 4 + j) * 4
    k("s_and_b32 s21, s2, 7"); k("s_lshr_b32 s22, s2, 3")
    k("s_and_b32 s23, s21, 1"); k("s_lshl_b32 s23, s23, 3"); k("s_and_b32 s24, s22, 7"); k("s_add_u32 s23, s23, s24")
    k("s_lshr_b32 s24, s21, 1"); k("s_lshl_b32 s24, s24, 2"); k("s_lshr_b32 s25, s22, 3"); k("s_add_u32 s24, s24, s25")
    k("s_and_b32 s25, s20, 1")
    k("s_lshr_b32 s26, s20, 1")
    wdma_lane(k, vW[0], 6144, 14)
    if QKS:
        for m in (1, 2):
            k(f"s_add_u32 s27, s24, {m*QKS}"); k("s_and_b32 s27, s27, 15"); k("s_sub_u32 s27, s27, s24")
            k("s_lshl_b32 s27, s27, 7"); k(f"s_add_u32 s27, s27, {2048*m}")
            k(f"v_add_u32 v{vW[m]}, s27, v{vW[0]}")
    else:
        k(f"v_add_u32 v{vW[1]}, 2048, v{vW[0]}")
        k(f"v_add_u32 v{vW[2]}, 4096, v{vW[0]}")
    k("v_lshrrev_b32 v14, 3, v1"); k("v_and_b32 v15, 7, v1")
    k("v_lshrrev_b32 v17, 4, v1")
    k("v_xor_b32 v17, v17, v15")
    k("v_lshlrev_b32 v17, 4, v17")
    k(f"v_lshl_add_u32 v{vX[0]}, v14, 11, v17")
    k(f"v_xor_b32 v{vX[1]}, 64, v{vX[0]}")
    k(f"v_add_u32 v{vX[1]}, {16384 - 1024}, v{vX[1]}")
    k(f"v_lshlrev_b32 v{vL16}, 4, v1")
    k("s_lshr_b32 s27, s20, 2"); k("s_lshl_b32 s27, s27, 5")
    k("s_bfe_u32 s28, s20, 0x10001"); k("s_lshl_b32 s28, s28, 4"); k("s_add_u32 s27, s27, s28")
    k("s_lshl_b32 s28, s25, 2"); k("s_add_u32 s27, s27, s28")
    k("s_mul_i32 s48, s27, 6144"); k("s_lshl_b32 s28, s24, 7"); k("s_add_u32 s48, s48, s28")
    k(f"s_add_u32 s46, s48, {16*64*6144}")
    k("s_lshl_b32 s49, s23, 3"); k("s_add_u32 s49, s49, s20"); k("s_lshl_b32 s49, s49, 15")
    k("s_add_u32 s27, s23, s24"); k("s_and_b32 s27, s27, 15")
    k(f"s_mul_i32 s28, s27, {64*6144}"); k("s_add_u32 s30, s48, s28")
    k("s_lshl_b32 s28, s27, 7"); k("s_add_u32 s31, s49, s28")
    k("s_lshl_b32 s32, s20, 10")
    k("s_lshl_b32 s33, s20, 11"); k(f"s_add_u32 s33, s33, {BOFF}")
    k.stamp("p1_pre")
    k("s_waitcnt lgkmcnt(0)")
    k.stamp("p1_ka")
    srd(k, 8, pWQKV, D * 3 * D * 2)
    srd(k, 12, pWS, WS_SIZE)
    srd(k, 16, pX, MB4)
    def dma(slot):
        o = []
        for m in range(3):
            o.append([f"s_add_u32 m0, s32, {slot*SLOT + m*8192}", f"buffer_load_dwordx4 v{vW[m]}, s[8:11], s30 offen lds"])
        o.append([f"s_add_u32 m0, s33, {slot*SLOT}", f"buffer_load_dwordx4 v{vX[0]}, s[16:19], s31 offen lds"])
        o.append([f"buffer_load_dwordx4 v{vX[1]}, s[16:19], s31 offen offset:1024 lds"])
        return o
    adv = [f"s_add_u32 s30, s30, {64*6144}", "s_add_u32 s31, s31, 128", "s_cmp_eq_u32 s30, s46", "s_cselect_b32 s30, s48, s30", "s_cselect_b32 s31, s49, s31"]
    vm = VM()
    def issue_stage(st):
        for d in dma(st % NS):
            for l in d: k(l)
        for l in adv: k(l)
        vm.issue(("S", st), 5)
    NPRO = 2 if RAMP else NS
    issue_stage(0)
    if not RAMP:
        for st in range(1, NS): issue_stage(st)
    k.stamp("p1_dma")
    srd(k, 88, pWO, D * D * 2)
    k("v_lshlrev_b32 v197, 4, v0")
    k("v_mov_b32 v14, v197")
    l0 = k.lab("noinit")
    k("s_cmp_lg_u32 s2, 0"); k(f"s_cbranch_scc1 {l0}")
    for r in range(4): k(f"v_mov_b32 v{PL+r}, 0")
    k(f"s_mov_b32 s27, {WS_CNT}")
    k(f"buffer_store_dwordx4 v[{PL}:{PL+3}], v14, s[12:15], s27 offen{SC}")
    k(f"{l0}:")
    srd(k, 60, pDBG, 256)
    if JIT:
        k("s_getpc_b64 s[80:81]"); k("L_cb:"); k("s_mov_b32 s82, L_end-L_cb"); k("s_mov_b32 s83, 0x20000")
        k("s_lshr_b32 s27, s2, 3"); k("s_lshl_b32 s27, s27, 3"); k("s_add_u32 s27, s27, s20"); k("s_lshl_b32 s27, s27, 8")
        k("v_and_b32 v252, 3, v1"); k("v_lshlrev_b32 v252, 6, v252"); k("v_add_u32 v252, s27, v252")
    k("v_lshrrev_b32 v14, 4, v1")
    k("v_bfe_u32 v15, v1, 2, 2")
    k("v_lshrrev_b32 v16, 1, v14"); k("v_and_b32 v17, 1, v14")
    k("v_lshlrev_b32 v16, 4, v16"); k("v_lshl_add_u32 v16, v17, 2, v16"); k("v_add_u32 v16, v16, v15")
    k("v_lshlrev_b32 v16, 7, v16")
    k("v_lshrrev_b32 v18, 1, v15"); k("v_lshl_add_u32 v18, v17, 1, v18")
    k("v_xor_b32 v18, s26, v18")
    k("v_lshl_add_u32 v16, v18, 5, v16")
    k("v_and_b32 v18, 3, v1")
    k(f"v_lshl_add_u32 v{vA[0]}, v18, 3, v16")
    k(f"v_add_u32 v{vA[1]}, {2*SLOT}, v{vA[0]}")
    for i in range(1, 4): k(f"v_cmp_eq_u32 s[{48+2*i}:{49+2*i}], {i}, v18")
    if RAMP:
        if os.environ.get("XST"): k.stamp("p1_b0")
        k("s_barrier")
        if os.environ.get("XST"): k.stamp("p1_b1")
        issue_stage(1)
        if os.environ.get("XST"): k.stamp("p1_s1")
    k("v_cmp_eq_u32 s[56:57], v14, v15")
    k("v_and_b32 v15, 15, v1")
    k("v_cmp_eq_u32 s[58:59], 0, v15")
    k("v_lshrrev_b32 v16, 1, v15"); k("v_xor_b32 v16, v16, v14"); k("v_lshlrev_b32 v16, 4, v16")
    k("v_lshl_add_u32 v16, v15, 7, v16")
    k("s_cmp_eq_u32 s25, 0")
    k("s_cselect_b32 s58, s58, 0"); k("s_cselect_b32 s59, s59, 0")
    k("s_lshl_b32 s28, s25, 13"); k(f"s_add_u32 s28, s28, {BOFF}")
    for jj in range(4):
        k(f"s_xor_b32 s27, s26, {jj}"); k("s_lshl_b32 s27, s27, 11"); k("s_add_u32 s27, s27, s28")
        k(f"v_add_u32 v{VB+jj}, s27, v16")
        k(f"v_xor_b32 v{VB+4+jj}, 64, v{VB+jj}")
        k(f"v_add_u32 v{VB+8+jj}, {2*SLOT}, v{VB+jj}")
        k(f"v_add_u32 v{VB+12+jj}, {2*SLOT}, v{VB+4+jj}")
    k(f"v_mov_b32 v{vZ}, 0")
    k("v_lshlrev_b32 v8, 3, v15")
    k("s_lshl_b32 s42, s23, 3"); k("s_lshl_b32 s27, s25, 2"); k("s_add_u32 s42, s42, s27"); k("s_add_u32 s42, s42, s26")
    if STL & 1:
        k("s_lshl_b32 s42, s25, 2"); k("s_add_u32 s42, s42, s26"); k("s_lshl_b32 s42, s42, 7")
        k("s_lshl_b32 s27, s23, 14"); k("s_add_u32 s42, s42, s27"); k("s_lshl_b32 s27, s24, 10"); k("s_add_u32 s42, s42, s27"); k(f"s_add_u32 s42, s42, {WS_ST1}")
    else:
        k("s_lshl_b32 s42, s42, 7"); k("s_lshl_b32 s27, s24, 14"); k("s_add_u32 s42, s42, s27"); k(f"s_add_u32 s42, s42, {WS_ST1}")
    k("v_lshlrev_b32 v9, 4, v14")
    k("s_lshl_b32 s43, s24, 4"); k("s_add_u32 s43, s43, s23"); k("s_mul_i32 s43, s43, 768")
    k("s_lshl_b32 s27, s26, 6"); k("s_add_u32 s43, s43, s27"); k(f"s_add_u32 s43, s43, {WS_CS1}")
    k("v_and_b32 v196, 1, v1"); k("v_lshlrev_b32 v196, 7, v196")
    for r in range(ACC, ACC + 48): k(f"v_mov_b32 v{r}, 0")
    for r in range(DC, DC + 20): k(f"v_mov_b32 v{r}, 0")
    for r in range(4): k(f"v_mov_b32 v{ONE+r}, 0x3f803f80")
    def reads(buf, slot, kb):
        o = []
        pr = slot >> 1; so = (slot & 1) * SLOT
        def rA(m):
            return [f"ds_read_b64_tr_b16 v[{A[buf]+4*m+2*t}:{A[buf]+4*m+2*t+1}], v{vA[pr]} offset:{so + m*8192 + kb*4096 + t*1024}" for t in range(2)]
        def rB(j):
            return [f"ds_read_b128 v[{B[buf]+4*j}:{B[buf]+4*j+3}], v{VB + pr*8 + kb*4 + j} offset:{so}"]
        o += rA(0)
        for j in range(4): o += rB(j)
        o += rA(1) + rA(2)
        return o
    def side(buf):
        o = []
        fb = f"v[{B[buf]}:{B[buf]+3}]"; on = f"v[{ONE}:{ONE+3}]"
        for m in range(3):
            o.append(f"v_mfma_f32_16x16x32_bf16 v[{DC+4*m}:{DC+4*m+3}], v[{A[buf]+4*m}:{A[buf]+4*m+3}], {on}, v[{DC+4*m}:{DC+4*m+3}]")
        o.append(f"v_mfma_f32_16x16x32_bf16 v[{D1}:{D1+3}], {on}, {fb}, v[{D1}:{D1+3}]")
        o.append(f"v_mfma_f32_16x16x32_bf16 v[{D2}:{D2+3}], {fb}, {fb}, v[{D2}:{D2+3}]")
        return o
    def once(lines):
        l = k.lab("once")
        k("s_cmp_lg_u32 s34, 0"); k(f"s_cbranch_scc1 {l}")
        for x in lines: k(x)
        k(f"{l}:")
    def publish():
        o = [f"v_cndmask_b32 v{D2}, v{D2}, v{D2+1}, s[50:51]", f"v_cndmask_b32 v{D2}, v{D2}, v{D2+2}, s[52:53]", f"v_cndmask_b32 v{D2}, v{D2}, v{D2+3}, s[54:55]",
             f"v_mov_b32 v{D1+1}, v{D2}",
             "s_mov_b64 exec, s[56:57]",
             f"buffer_store_dwordx2 v[{D1}:{D1+1}], v8, s[12:15], s42 offen{SC}",
             "s_mov_b64 exec, s[58:59]"]
        for m in range(3):
            o.append(f"buffer_store_dwordx4 v[{DC+4*m}:{DC+4*m+3}], v9, s[12:15], s43 offen offset:{256*m}{SC}")
        o.append("s_mov_b64 exec, -1")
        return o
    def sig1():
        l = k.lab("nosig1")
        return ["s_cmp_lg_u32 s20, 0", f"s_cbranch_scc1 {l}", "s_mov_b64 exec, 1", "v_mov_b32 v14, 1",
                "s_and_b32 s27, s2, 1", "s_lshl_b32 s27, s27, 7",
                f"buffer_atomic_add v14, v{vZ}, s[60:63], s27 offen sc1", "s_mov_b64 exec, -1", f"{l}:"]
    k.stamp("p1_set")
    k(f"s_waitcnt vmcnt({vm.cnt({('S', 0)})})")
    k.stamp("p1_w0")
    k("s_barrier")
    k.stamp("p1_go")
    for l in reads(0, 0, 0): k(l)
    NT = 16
    def sched(t, kb):
        if RAMP and t < 2: return [2, 3, 4, 5][2 * t + kb]
        if kb == 1 and t + NS < NT: return t + NS
        return None
    def step(o, t, kb, side_here=False, pre=None, post=None, extra_need=(), inj=None, inj0=0):
        cur = kb; nxt = kb ^ 1; last = t == NT - 1
        if kb == 0:
            o.append("s_waitcnt lgkmcnt(0)")
            rd = reads(nxt, t % NS, 1)
        elif last:
            o.append("s_waitcnt lgkmcnt(0)"); rd = []
        else:
            o.append(f"s_waitcnt vmcnt({vm.cnt({('S', t + 1)} | set(extra_need))}) lgkmcnt(0)")
            o.append("s_barrier")
            rd = reads(nxt, (t + 1) % NS, 0)
        st = sched(t, kb)
        dm = dma(st % NS) if st is not None else []
        if pre: pre(o)
        if st is not None: vm.issue(("S", st), 5)
        mf = []
        for m in range(3):
            for j in range(4):
                a = acc(m, j); fa = f"v[{A[cur]+4*m}:{A[cur]+4*m+3}]"; fb = f"v[{B[cur]+4*j}:{B[cur]+4*j+3}]"
                if m == 2: fa, fb = fb, fa
                mf.append(f"v_mfma_f32_16x16x32_bf16 v[{a}:{a+3}], {fa}, {fb}, v[{a}:{a+3}]")
        gaps = [[] for _ in mf]
        for q, r in enumerate(rd): gaps[q].append(r)
        pos = [1, 3, 5, 7, 9]
        for q, d in enumerate(dm):
            if len(d) == 2:
                gaps[pos[q] - 1].append(d[0]); gaps[pos[q]].append(d[1])
            else:
                gaps[pos[q]].append(d[0])
        if dm: gaps[10] += adv
        if inj:
            ng = len(mf) - inj0
            for q, it in enumerate(inj):
                gaps[inj0 + q * ng // len(inj)] += (it if isinstance(it, list) else [it])
        for g, mm in enumerate(mf):
            o.append(mm); o += gaps[g]
        if side_here: o += side(cur)
        if post: post(o)
    texts = []
    for per in range(2 if HOIST else 3):
        o = []
        for t in range(per * 4, per * 4 + 4):
            if HOIST == 2 and 4 <= t < 8:
                ad = hoist_ad(dict(vL16=vL16, vVO=217)); n4 = (len(ad) + 3) // 4
                step(o, t, 0, inj=ad[(t - 4) * n4:(t - 3) * n4], inj0=0)
            else:
                step(o, t, 0, side_here=(t == 0))
            if t == 1 and not ESIG:
                o += publish(); vm.issue("PUB", 4, certain=False)
            step(o, t, 1, side_here=(t == 0), extra_need=("PUB",) if t == 3 - ESIG else ())
            if t == 0 and ESIG:
                o += publish(); vm.issue("PUB", 4, certain=False)
            if t == 3 - ESIG: o += sig1(); vm.issue("SIG", 1, certain=False)
        texts.append(o)
    periods(k, "p1loop", texts, 34)
    if TST: k.stamp("t11" if not HOIST else "t7")
    def partial_loads():
        rdy = k.lab("p1rdy"); spin = k.lab("p1spin"); nocs = k.lab("p1nocs")
        if TST == 2: k.stamp("t14_w")
        k(f"v_cmp_eq_u32 vcc, 128, v{vP}")
        k("s_cmp_eq_u64 vcc, -1")
        k(f"s_cbranch_scc1 {rdy}")
        k("s_mov_b32 s28, 0")
        k(f"{spin}:")
        k("s_add_u32 s28, s28, 1")
        k(f"s_cmp_gt_u32 s28, {SPIN_LIMIT}")
        k(f"s_cbranch_scc1 {rdy}")
        k("s_sleep 2")
        k(f"buffer_load_dword v{vP}, v196, s[60:63], 0 offen sc1")
        k("s_waitcnt vmcnt(0)")
        k(f"v_cmp_eq_u32 vcc, 128, v{vP}")
        k("s_cmp_eq_u64 vcc, -1")
        k(f"s_cbranch_scc0 {spin}")
        k(f"{rdy}:")
        if TST == 2: k.stamp("t14_c")
        if COA & 1:
            k("v_lshrrev_b32 v14, 4, v1"); k(f"v_lshlrev_b32 v14, {12 if STL & 1 else 16}, v14")
            k("v_and_b32 v15, 15, v1"); k("s_lshl_b32 s27, s20, 4"); k("v_add_u32 v15, s27, v15"); k("v_lshl_add_u32 v14, v15, 3, v14")
        else:
            k("v_and_b32 v14, 3, v0"); k(f"v_lshlrev_b32 v14, {12 if STL & 1 else 16}, v14")
            k("v_lshrrev_b32 v15, 2, v0"); k("v_lshl_add_u32 v14, v15, 3, v14")
        k(f"s_lshl_b32 s27, s23, {14 if STL & 1 else 10}"); k(f"s_add_u32 s27, s27, {WS_ST1}")
        for i in range(4):
            if STL & 1:
                k(f"buffer_load_dwordx2 v[{PL+2*i}:{PL+2*i+1}], v14, s[12:15], s27 offen offset:{1024*i}{SC}")
                continue
            k(f"buffer_load_dwordx2 v[{PL+2*i}:{PL+2*i+1}], v14, s[12:15], s27 offen{SC}")
            if i < 3: k("s_add_u32 s27, s27, 16384")
        if TST == 2: k.stamp("t14_s")
        k("s_cmp_ge_u32 s20, 3")
        k(f"s_cbranch_scc1 {nocs}")
        k("v_lshlrev_b32 v14, 2, v0")
        k(f"s_mul_i32 s27, s24, {16*768}"); k(f"s_add_u32 s27, s27, {WS_CS1}")
        for i in range(16):
            k(f"buffer_load_dword v{PL+8+i}, v14, s[12:15], s27 offen offset:{(i % 4) * 768}{SC}")
            if i % 4 == 3 and i < 15: k(f"s_add_u32 s27, s27, {4*768}")
        k(f"{nocs}:")
        if TST == 2: k.stamp("t14_l")
    class _O:
        def append(self, x): k(x)
        def __iadd__(self, xs):
            for x in xs: k(x)
            return self
    o = _O()
    SQ = 28; CQ = 36; QS = 52; VS = [112, 120, 128, 136]; vVO = 14
    if HOIST:
        SQ = 220; CQ = 228; QS = 184; VS = [236, 244, 154, 176]; vVO = 217
        (hoisted_tail2 if HOIST == 2 else hoisted_tail)(k, o, step, vm, dict(PL=PL, RMR=RMR, ONE=ONE, vP=vP, vZ=vZ, vL16=vL16, SQ=SQ, CQ=CQ, QS=QS, VS=VS, vVO=vVO))
    else:
        o = _O()
        for t in range(12, 16):
            step(o, t, 0)
            if TST == 2 and t >= 13: k.stamp(f"t{t}_0")
            if t == 12:
                k(f"buffer_load_dword v{vP}, v196, s[60:63], 0 offen sc1"); vm.issue("VP")
                k("s_lshl_b32 s27, s2, 13")
                k(f"buffer_load_dwordx4 v[{RMR}:{RMR+3}], v197, s[88:91], s27 offen"); vm.issue("RMR")
                if JIT & 1:
                    for l in jit("L_p1tail", 27, 211): k(l)
                    vm.issue("CP")
            step(o, t, 1, pre=(lambda o: partial_loads()) if t == 14 else None, extra_need=("VP", "RMR") if t == 14 else ())
            if TST and t < 15: k.stamp(f"t{t}")
        if JIT & 1: k("L_p1tail:")
        k.stamp("p1_loop")
        k("v_mov_b32 v14, 0")
        for r in range(4): k(f"v_dot2c_f32_bf16 v14, v{RMR+r}, v{ONE}")
        for ro in (8, 4, 2, 1): k(f"v_add_f32_dpp v14, v14, v14 row_ror:{ro} row_mask:0xf bank_mask:0xf")
        for sw in ("v_permlane16_swap_b32", "v_permlane32_swap_b32"):
            k("v_mov_b32 v15, v14"); k(f"{sw} v14, v15"); k("v_add_f32 v14, v14, v15")
        k("s_lshl_b32 s27, s20, 2"); k("s_add_u32 s27, s27, 2048"); k("v_mov_b32 v15, s27")
        k("ds_write_b32 v15, v14")
        k("s_waitcnt vmcnt(0)")
        k(f"v_add_f32 v{PL}, v{PL}, v{PL+2}"); k(f"v_add_f32 v{PL+1}, v{PL+1}, v{PL+3}")
        k(f"v_add_f32 v{PL+4}, v{PL+4}, v{PL+6}"); k(f"v_add_f32 v{PL+5}, v{PL+5}, v{PL+7}")
        k(f"v_add_f32 v{PL}, v{PL}, v{PL+4}"); k(f"v_add_f32 v{PL+1}, v{PL+1}, v{PL+5}")
        if COA & 1:
            k("v_and_b32 v16, 15, v1"); k("s_lshl_b32 s27, s20, 4"); k("v_add_u32 v16, s27, v16"); k("v_lshlrev_b32 v16, 2, v16")
            k(f"v_permlane16_swap_b32 v{PL}, v{PL+1}")
            k(f"v_add_f32 v{PL}, v{PL}, v{PL+1}"); k(f"v_mov_b32 v{PL+1}, v{PL}")
            k(f"v_permlane32_swap_b32 v{PL}, v{PL+1}")
            k(f"v_add_f32 v{PL}, v{PL}, v{PL+1}"); k(f"v_mov_b32 v{PL+1}, v{PL}")
            k(f"v_permlane16_swap_b32 v{PL}, v{PL+1}")
        else:
            for qp in ("[1,0,3,2]", "[2,3,0,1]"):
                k(f"v_add_f32_dpp v{PL}, v{PL}, v{PL} quad_perm:{qp} row_mask:0xf bank_mask:0xf")
                k(f"v_add_f32_dpp v{PL+1}, v{PL+1}, v{PL+1} quad_perm:{qp} row_mask:0xf bank_mask:0xf")
        k(f"v_mul_f32 v{PL}, 0x3a800000, v{PL}")
        k(f"v_mul_f32 v{PL+1}, 0x3a800000, v{PL+1}")
        if not COA & 1: k("v_lshrrev_b32 v16, 2, v0"); k("v_lshlrev_b32 v16, 2, v16")
        lm = k.lab("nomx")
        k("s_cmp_lg_u32 s24, 0"); k(f"s_cbranch_scc1 {lm}")
        k("s_lshl_b32 s27, s23, 9"); k(f"s_add_u32 s27, s27, {WS_MX}")
        k(f"buffer_store_dword v{PL}, v16, s[12:15], s27 offen{SC}")
        k(f"{lm}:")
        k(f"v_fma_f32 v{PL+1}, -v{PL}, v{PL}, v{PL+1}")
        k(f"v_max_f32 v{PL+1}, 0, v{PL+1}")
        k(f"v_add_f32 v{PL+1}, 0x3727c5ac, v{PL+1}")
        k(f"v_rsq_f32 v{PL+1}, v{PL+1}")
        k(f"v_mul_f32 v{PL+2}, v{PL}, v{PL+1}")
        k(f"v_sub_f32 v{PL+2}, 0, v{PL+2}")
        k(f"ds_write_b32 v16, v{PL+1}")
        k(f"ds_write_b32 v16, v{PL+2} offset:512")
        l2 = k.lab("nocs2")
        k("s_cmp_ge_u32 s20, 3")
        k(f"s_cbranch_scc1 {l2}")
        for st in (8, 4, 2, 1):
            for i in range(st): k(f"v_add_f32 v{PL+8+i}, v{PL+8+i}, v{PL+8+i+st}")
        k("v_lshlrev_b32 v16, 2, v0")
        k(f"ds_write_b32 v16, v{PL+8} offset:1024")
        k(f"{l2}:")
        k("v_and_b32 v15, 15, v1")
        k("s_lshl_b32 s27, s25, 8"); k("s_lshl_b32 s28, s26, 6"); k("s_add_u32 s28, s28, s27")
        k("v_lshlrev_b32 v16, 2, v15")
        k("v_add_u32 v17, s28, v16")
        k("v_lshrrev_b32 v14, 4, v1")
        k("v_lshlrev_b32 v19, 4, v14")
        k("v_add_u32 v20, s28, v19")
        k("s_lshl_b32 s29, s26, 6"); k("s_add_u32 s29, s29, 1024")
        k("v_add_u32 v19, s29, v19")
        k("v_add_u32 v18, s29, v16")
        for jj in range(1, 4):
            k(f"v_xor_b32 v{20+jj}, {jj<<6}, v20")
            k(f"v_xor_b32 v{23+jj}, {jj<<6}, v17")
        k("s_lshl_b32 s27, s23, 2"); k("s_lshl_b32 s28, s25, 1"); k("s_add_u32 s27, s27, s28")
        k("s_lshl_b32 s27, s27, 16")
        k("s_lshl_b32 s28, s24, 12"); k("s_add_u32 s27, s27, s28")
        k("s_lshl_b32 s28, s26, 10"); k("s_add_u32 s27, s27, s28")
        k("s_lshr_b32 s42, s26, 1")
        k("s_lshl_b32 s28, s42, 16"); k("s_add_u32 s35, s27, s28")
        k("s_xor_b32 s28, s28, 0x10000"); k("s_add_u32 s37, s27, s28")
        k(f"s_add_u32 s36, s35, {WS_K}"); k(f"s_add_u32 s38, s37, {WS_K}")
        k(f"s_add_u32 s35, s35, {WS_Q}"); k(f"s_add_u32 s37, s37, {WS_Q}")
        if QKS:
            k(f"s_add_u32 s27, s24, {QKS}"); k("s_and_b32 s27, s27, 15"); k("s_sub_u32 s27, s27, s24"); k("s_lshl_b32 s27, s27, 12")
            k("s_add_u32 s36, s36, s27"); k("s_add_u32 s38, s38, s27")
            k(f"s_add_u32 s27, s24, {2*QKS}"); k("s_and_b32 s27, s27, 15"); k("s_lshl_b32 s27, s27, 1")
        else:
            k("s_lshl_b32 s27, s24, 1")
        k("s_add_u32 s27, s27, s42")
        k("s_lshl_b32 s27, s27, 7")
        k("s_lshl_b32 s28, s23, 3"); k("s_add_u32 s27, s27, s28")
        k("s_lshl_b32 s28, s25, 2"); k("s_add_u32 s27, s27, s28")
        k("s_lshl_b32 s27, s27, 10")
        k("s_and_b32 s43, s26, 1")
        k("s_lshl_b32 s28, s43, 8"); k("s_add_u32 s27, s27, s28")
        k(f"s_add_u32 s27, s27, {WS_VT}")
        k("s_lshl_b32 s28, s42, 11"); k("s_add_u32 s39, s27, s28")
        k("s_xor_b32 s28, s28, 2048"); k("s_add_u32 s40, s27, s28")
        k("v_lshrrev_b32 v27, 5, v1"); k("v_xor_b32 v27, s43, v27"); k("v_lshlrev_b32 v27, 10, v27")
        k("v_bfe_u32 v28, v1, 4, 1"); k("v_lshl_add_u32 v27, v28, 9, v27")
        k("v_lshl_add_u32 v14, v15, 4, v27")
        k("s_lshl_b32 s28, s43, 8")
        k(f"v_xor_b32 v{vL16}, s28, v{vL16}")
        k("s_waitcnt lgkmcnt(0)")
        k("s_barrier")
        SQ = 28; CQ = 36
        k(f"ds_read2_b32 v[{SQ}:{SQ+1}], v17 offset0:0 offset1:128")
        for jj in range(1, 4): k(f"ds_read2_b32 v[{SQ+2*jj}:{SQ+2*jj+1}], v{23+jj} offset0:0 offset1:128")
        k(f"ds_read_b128 v[{CQ}:{CQ+3}], v19")
        k(f"ds_read_b128 v[{CQ+4}:{CQ+7}], v19 offset:256")
        k("ds_read_b32 v152, v18 offset:512")
        VS = [112, 120, 128, 136]
        for jj in range(4):
            k(f"ds_read_b128 v[{VS[jj]}:{VS[jj]+3}], v{20+jj}")
            k(f"ds_read_b128 v[{VS[jj]+4}:{VS[jj]+7}], v{20+jj} offset:512")
        l7 = k.lab("norm")
        k("s_cmp_lg_u32 s20, 7"); k(f"s_cbranch_scc1 {l7}")
        k(f"ds_read_b128 v[{PL}:{PL+3}], v{vZ} offset:2048")
        k(f"ds_read_b128 v[{PL+4}:{PL+7}], v{vZ} offset:2064")
        k("s_waitcnt lgkmcnt(0)")
        for r in range(4):
            k(f"v_add_f32 v{PL+2*r}, v{PL+2*r}, v{PL+2*r+1}")
            k(f"v_mul_f32 v{PL+2*r}, 0x3a800000, v{PL+2*r}")
        k(f"v_cvt_pk_bf16_f32 v{PL+8}, v{PL}, v{PL+2}")
        k(f"v_cvt_pk_bf16_f32 v{PL+9}, v{PL+4}, v{PL+6}")
        k("s_lshl_b32 s27, s2, 3"); k(f"s_add_u32 s27, s27, {WS_RM}")
        k("s_mov_b64 exec, 1")
        k(f"buffer_store_dwordx2 v[{PL+8}:{PL+9}], v{vZ}, s[12:15], s27 offen{SC}")
        k("s_mov_b64 exec, -1")
        k(f"{l7}:")
    if not HOIST:
        k("s_mov_b32 s44, 0x3e8293ee")
        k("s_waitcnt lgkmcnt(9)")
        for jj in range(4):
            k(f"v_mul_f32 v{QS+2*jj}, s44, v{SQ+2*jj}")
            k(f"v_mul_f32 v{QS+2*jj+1}, s44, v{SQ+2*jj+1}")
    TP = [16, 20, 24, 44, 48, 60]
    TM = 144
    ti = 0
    HX = os.environ.get("HX", "swd") if HOIST else ""
    if HX in ("bar", "swbar"): k("s_barrier")
    elif HX == "nop7": k("s_nop 7")
    elif HX == "nop15": k("s_nop 15")
    elif HX == "nop31": k("s_nop 15"); k("s_nop 15")
    for m in range(3):
        if m == 2 and HOIST != 1: k("s_waitcnt lgkmcnt(0)")
        for p in range(2):
            t = TP[ti]; ti += 1
            for jj2 in range(2):
                jj = 2 * p + jj2
                a = acc(m, jj)
                for h in range(2):
                    tm = TM + 2 * ((jj2 * 2 + h) & 3)
                    if m < 2:
                        st = (QS if m == 0 else SQ) + 2 * jj
                        cs = CQ + 4 * m + 2 * h
                        first = m == 0 and jj == 0 and h == 0
                        if first and HX in ("v1", "v2", "v3", "v4", "v5", "v6", "v7", "v8", "v9", "v10"):
                            pm = f"v_pk_mul_f32 v[{tm}:{tm+1}], v[{cs}:{cs+1}], v[{st}:{st+1}] op_sel:[0,1] op_sel_hi:[1,1]"
                            pf = f"v_pk_fma_f32 v[{a}:{a+1}], v[{a}:{a+1}], v[{st}:{st+1}], v[{tm}:{tm+1}] op_sel:[0,0,0] op_sel_hi:[1,0,1]"
                            if HX == "v1":
                                for e in range(2): k(f"v_mul_f32 v{tm+e}, v{cs+e}, v{st+1}")
                                k(pf)
                            elif HX == "v2":
                                k(pm)
                                for e in range(2): k(f"v_fma_f32 v{a+e}, v{a+e}, v{st}, v{tm+e}")
                            elif HX == "v3":
                                k(f"v_pk_mul_f32 v[148:149], v[{cs}:{cs+1}], v[{st}:{st+1}] op_sel:[0,1] op_sel_hi:[1,1]"); k(pm); k(pf)
                            elif HX == "v4":
                                k(pm); k("s_nop 0"); k(pf)
                            elif HX == "v5":
                                k(pm); k("s_nop 3"); k(pf)
                            elif HX == "v7":
                                k(f"v_pk_mul_f32 v[{tm}:{tm+1}], v[{cs}:{cs+1}], v[{st}:{st+1}] op_sel:[0,0] op_sel_hi:[1,0]"); k(pf)
                            elif HX == "v8":
                                k(f"v_pk_mul_f32 v[{tm}:{tm+1}], v[{cs}:{cs+1}], v[{st}:{st+1}]"); k(pf)
                            elif HX == "v9":
                                k(f"v_pk_mul_f32 v[{tm}:{tm+1}], v[{cs}:{cs+1}], v[{st}:{st+1}] op_sel:[1,1] op_sel_hi:[1,1]"); k(pf)
                            elif HX == "v10":
                                k(f"v_mul_f32 v{tm+1}, v{cs}, v{st+1}"); k(f"v_mul_f32 v{tm}, v{cs+1}, v{st+1}")
                                k(f"v_pk_fma_f32 v[{a}:{a+1}], v[{a}:{a+1}], v[{st}:{st+1}], v[{tm}:{tm+1}] op_sel:[0,0,1] op_sel_hi:[1,0,0]")
                            elif HX == "v6":
                                k(f"v_pk_mul_f32 v[{tm}:{tm+1}], v[{st}:{st+1}], v[{cs}:{cs+1}] op_sel:[1,0] op_sel_hi:[1,1]"); k(pf)
                            continue
                        if HX.startswith("np") and (m * 4 + jj) * 2 + h < int(HX[2:]):
                            for e in range(2):
                                k(f"v_mul_f32 v{tm+e}, v{cs+e}, v{st+1}")
                            for e in range(2):
                                k(f"v_fma_f32 v{a+2*h+e}, v{a+2*h+e}, v{st}, v{tm+e}")
                            continue
                        if "sw" in HX:
                            if first and HX == "swd": k(f"v_pk_mul_f32 v[{TM+4}:{TM+5}], v[{cs}:{cs+1}], v[{cs}:{cs+1}]")
                            k(f"v_pk_mul_f32 v[{tm}:{tm+1}], v[{st}:{st+1}], v[{cs}:{cs+1}] op_sel:[1,0] op_sel_hi:[1,1]")
                        else:
                            k(f"v_pk_mul_f32 v[{tm}:{tm+1}], v[{cs}:{cs+1}], v[{st}:{st+1}] op_sel:[0,1] op_sel_hi:[1,1]")
                        k(f"v_pk_fma_f32 v[{a+2*h}:{a+2*h+1}], v[{a+2*h}:{a+2*h+1}], v[{st}:{st+1}], v[{tm}:{tm+1}] op_sel:[0,0,0] op_sel_hi:[1,0,1]")
                    else:
                        rs = VS[jj] + 2 * h; nm = VS[jj] + 4 + 2 * h
                        k(f"v_pk_mul_f32 v[{tm}:{tm+1}], v[{nm}:{nm+1}], v[152:153] op_sel:[0,0] op_sel_hi:[1,0]")
                        k(f"v_pk_fma_f32 v[{a+2*h}:{a+2*h+1}], v[{a+2*h}:{a+2*h+1}], v[{rs}:{rs+1}], v[{tm}:{tm+1}]")
                k(f"v_cvt_pk_bf16_f32 v{t+2*jj2}, v{a}, v{a+1}")
                k(f"v_cvt_pk_bf16_f32 v{t+2*jj2+1}, v{a+2}, v{a+3}")
            sw = "v_permlane16_swap_b32" if m < 2 else "v_permlane32_swap_b32"
            k(f"{sw} v{t}, v{t+2}")
            k(f"{sw} v{t+1}, v{t+3}")
            so = [[35, 37], [36, 38], [39, 40]][m][p]
            k(f"buffer_store_dwordx4 v[{t}:{t+3}], v{vL16 if m < 2 else vVO}, s[12:15], s{so} offen{SC}")
    k.stamp("p1_epi")
    k("s_lshl_b32 s27, s24, 7"); k(f"s_add_u32 s27, s27, {WS_CNT + C2*128}")
    signal(k, 27, vt=(30, 31))
    k.stamp("p1_sig")

W3BASE = 98304
vW3 = [200, 201]
C35 = int(os.environ.get("C35", "0"))
def coords35(k, stb, scb, st):
    k("s_and_b32 s21, s2, 7"); k("s_lshr_b32 s22, s2, 3")
    if C35 == 0:
        k(f"s_and_b32 s{stb}, s21, 3"); k(f"s_lshl_b32 s{stb}, s{stb}, 2"); k(f"s_and_b32 s{st}, s22, 3"); k(f"s_add_u32 s{stb}, s{stb}, s{st}")
        k(f"s_lshr_b32 s{scb}, s21, 2"); k(f"s_lshl_b32 s{scb}, s{scb}, 3"); k(f"s_lshr_b32 s{st}, s22, 2"); k(f"s_add_u32 s{scb}, s{scb}, s{st}")
    elif C35 == 2:
        k(f"s_lshl_b32 s{stb}, s21, 1"); k(f"s_lshr_b32 s{st}, s22, 4"); k(f"s_add_u32 s{stb}, s{stb}, s{st}")
        k(f"s_and_b32 s{scb}, s22, 15")
    elif C35 == 3:
        k(f"s_and_b32 s{stb}, s21, 1"); k(f"s_lshl_b32 s{stb}, s{stb}, 3"); k(f"s_lshr_b32 s{st}, s22, 2"); k(f"s_add_u32 s{stb}, s{stb}, s{st}")
        k(f"s_lshr_b32 s{scb}, s21, 1"); k(f"s_lshl_b32 s{scb}, s{scb}, 2"); k(f"s_and_b32 s{st}, s22, 3"); k(f"s_add_u32 s{scb}, s{scb}, s{st}")
    elif C35 == 4:
        k(f"s_and_b32 s{stb}, s21, 3"); k(f"s_lshl_b32 s{stb}, s{stb}, 2"); k(f"s_lshr_b32 s{st}, s22, 3"); k(f"s_add_u32 s{stb}, s{stb}, s{st}")
        k(f"s_lshr_b32 s{scb}, s21, 2"); k(f"s_and_b32 s{st}, s22, 7"); k(f"s_lshl_b32 s{st}, s{st}, 1"); k(f"s_add_u32 s{scb}, s{scb}, s{st}")
    else:
        k(f"s_and_b32 s{stb}, s21, 3"); k(f"s_lshl_b32 s{stb}, s{stb}, 2"); k(f"s_lshr_b32 s{st}, s22, 3"); k(f"s_add_u32 s{stb}, s{stb}, s{st}")
        k(f"s_lshr_b32 s{scb}, s21, 2"); k(f"s_lshl_b32 s{scb}, s{scb}, 3"); k(f"s_and_b32 s{st}, s22, 7"); k(f"s_add_u32 s{scb}, s{scb}, s{st}")
WT3 = int(os.environ.get("WT3", "0")); WT5 = int(os.environ.get("WT5", "0"))
WDT = int(os.environ.get("WDT", "3"))
WS_WDT = 0x3000000
WDA = int(os.environ.get("WDA", "3")); WDP = int(os.environ.get("WDP", "4"))
def w35_setup(k, vW, base, t, tiled=0):
    coords35(k, 27, 29, 28)
    rb = 128 if tiled else 2048
    wdma_lane(k, vW[0], rb, t)
    k(f"v_add_u32 v{vW[1]}, {4*rb}, v{vW[0]}")
    k("s_lshr_b32 s27, s20, 1"); k("s_lshl_b32 s27, s27, 5"); k("s_and_b32 s28, s20, 1"); k("s_lshl_b32 s28, s28, 4")
    k("s_add_u32 s27, s27, s28")
    if tiled:
        k("s_lshl_b32 s50, s27, 7"); k(f"s_mul_i32 s28, s29, {tiled*128}"); k("s_add_u32 s50, s50, s28")
        if WDT and base == 0: k(f"s_add_u32 s50, s50, {WS_WDT}")
    else:
        k("s_lshl_b32 s50, s27, 11"); k("s_lshl_b32 s28, s29, 7"); k("s_add_u32 s50, s50, s28")
        if os.environ.get("WOFF64") and base == 0: k("s_add_u32 s50, s50, 64")
    k("s_lshl_b32 s51, s20, 11")
    if base: k(f"s_add_u32 s51, s51, {base}")
def w35_dma(vW, srdw, slot):
    sc = SC if srdw == 12 else ""
    return [[f"s_add_u32 m0, s51, {slot*16384}", f"buffer_load_dwordx4 v{vW[0]}, s[{srdw}:{srdw+3}], s50 offen{sc} lds"],
            [f"s_add_u32 m0, s51, {slot*16384+1024}", f"buffer_load_dwordx4 v{vW[1]}, s[{srdw}:{srdw+3}], s50 offen{sc} lds"]]
W3ADV = f"s_add_u32 s50, s50, {128*(128 if WT3 else 2048)}"
W5ADV = f"s_add_u32 s50, s50, {128*(128 if WT5 or WDT else 2048)}"
SW5 = 12 if WDT else 60

WOPF = int(os.environ.get("WOPF", "0"))
OT = int(os.environ.get("OT", "0"))
def phase2(k):
    STG = 32768
    vL16, vCur, vNxt, vTmp = 2, 3, 4, 5
    QA, QB = 8, 16
    KF = [24, 32]; VF = [40, 48]
    SA, SB = 56, 72
    PA, PB = 88, 96
    OA, OB = 104, 120
    LA, LB = 136, 140
    NA, NB = 144, 160
    ONE = 176
    T0 = 180
    w35_setup(k, vW3, W3BASE, 180, D if WT3 else 0)
    srd(k, 8, pBX if WT3 else pWO, D * D * 2)
    k("s_and_b32 s21, s2, 7"); k("s_lshl_b32 s21, s21, 2"); k("s_lshr_b32 s22, s2, 6"); k("s_add_u32 s21, s21, s22")
    k("s_bfe_u32 s22, s2, 0x30003")
    k("s_and_b32 s23, s20, 3")
    k("s_lshr_b32 s24, s20, 2")
    k(f"v_lshlrev_b32 v{vL16}, 4, v1")
    k("s_lshl_b32 s30, s24, 5"); k("s_add_u32 s30, s30, s23"); k("s_lshl_b32 s30, s30, 16")
    k("s_lshl_b32 s25, s21, 11"); k("s_add_u32 s30, s30, s25"); k(f"s_add_u32 s30, s30, {WS_K}")
    k("s_lshl_b32 s31, s21, 7"); k("s_lshl_b32 s25, s24, 6"); k("s_add_u32 s31, s31, s25")
    k("s_lshl_b32 s25, s23, 1"); k("s_add_u32 s31, s31, s25"); k("s_lshl_b32 s31, s31, 10"); k(f"s_add_u32 s31, s31, {WS_VT}")
    k("s_lshl_b32 s32, s24, 14"); k("s_lshl_b32 s25, s23, 11"); k("s_add_u32 s32, s32, s25")
    k("s_lshl_b32 s33, s22, 3"); k("s_lshl_b32 s25, s23, 1"); k("s_add_u32 s33, s33, s25"); k("s_lshl_b32 s33, s33, 16")
    k("s_lshl_b32 s25, s21, 11"); k("s_add_u32 s33, s33, s25")
    k(f"s_add_u32 s45, s33, {WS_O}")
    k(f"s_add_u32 s33, s33, {WS_Q}")
    k("s_add_u32 s34, s33, 65536")
    k(f"v_lshrrev_b32 v{vTmp}, 2, v1"); k(f"v_lshrrev_b32 v{T0}, 4, v1"); k(f"v_xor_b32 v{vTmp}, v{vTmp}, v{T0}")
    k(f"v_and_b32 v{vTmp}, 1, v{vTmp}"); k(f"v_cmp_eq_u32 vcc, 0, v{vTmp}")
    k(f"v_mov_b32 v{T0}, 0x3f803f80")
    k(f"v_cndmask_b32 v{ONE}, 0, v{T0}, vcc")
    for r in range(1, 4): k(f"v_mov_b32 v{ONE+r}, v{ONE}")
    for r in range(32): k(f"v_mov_b32 v{NA+r}, 0")
    k("s_mov_b32 s46, 0")
    k("s_lshl_b32 s25, s24, 14")
    k(f"v_add_u32 v{vTmp}, s25, v{vL16}")
    if PFW:
        k("s_lshl_b32 s25, s2, 3"); k("s_add_u32 s25, s25, s20")
        k("s_mul_i32 s26, s25, 3584")
        k(f"v_lshlrev_b32 v198, 6, v1"); k("v_add_u32 v198, s26, v198")
        srd(k, 88, pWO, D * D * 2)
        k(f"s_mov_b64 s[92:93], s[{pWG}:{pWG+1}]"); k(f"s_mov_b64 s[94:95], s[{pWU}:{pWU+1}]"); k(f"s_mov_b64 s[96:97], s[{pWD}:{pWD+1}]")
    WDR, vWDS = 208, 224
    if JIT & 2: k("s_mov_b32 s52, L_p2tail-L_cb")
    if WDT:
        srd(k, 60, pWD, DF * D * 2)
        k(f"v_lshrrev_b32 v{vWDS}, 3, v1"); k(f"s_mov_b32 s26, {DF*128}"); k(f"v_mul_lo_u32 v{vWDS}, v{vWDS}, s26")
        k(f"v_and_b32 v{vWDS+1}, 7, v1"); k(f"v_lshl_add_u32 v{vWDS}, v{vWDS+1}, 4, v{vWDS}")
        k("s_mul_i32 s98, s2, 14"); k("s_lshl_b32 s26, s20, 1"); k("s_add_u32 s98, s98, s26"); k("s_lshl_b32 s98, s98, 7")
        k(f"s_add_u32 s98, s98, {WS_WDT - 256}"); k(f"s_add_u32 s99, s98, {8*DF*128}")
        k("s_mul_i32 s100, s2, 28672"); k("s_lshl_b32 s26, s20, 12"); k("s_add_u32 s100, s100, s26"); k("s_sub_u32 s100, s100, 4096")
        k("s_cmp_eq_u32 s20, 0"); k(f"s_cselect_b32 s101, 99, {WDA}")
        if WDT == 3: k(f"s_cselect_b32 s101, 99, {hex((-WDA - 1) & 0xffffffff)}")
        if WDT >= 2:
            assert WDA % 2 == 1
            k(f"s_sub_u32 s98, s98, {128 * ((WDA + 1) // 2)}"); k(f"s_mov_b32 s99, {8*DF*128}"); k(f"s_sub_u32 s100, s100, {1024*WDA}")
    if QKS:
        k(f"v_mul_u32_u24 v{T0+1}, {QKS}, v1"); k("s_lshr_b32 s27, s21, 1"); k(f"v_sub_u32 v{T0+1}, s27, v{T0+1}")
        k(f"v_and_b32 v{T0+1}, 15, v{T0+1}"); k(f"v_lshlrev_b32 v{T0+1}, 7, v{T0+1}")
        k(f"s_mov_b32 s27, {WS_CNT + C2*128}")
        wait_multi(k, 27, 16, 3, vt=(T0, T0 + 1))
    else:
        k("s_lshr_b32 s27, s21, 1"); k("s_lshl_b32 s27, s27, 7"); k(f"s_add_u32 s27, s27, {WS_CNT + C2*128}")
        wait(k, 27, 16, vt=(T0, T0 + 1), pr=KF[0])
    k.stamp("p2_wait")
    for kk in range(2):
        k(f"buffer_load_dwordx4 v[{QA+4*kk}:{QA+4*kk+3}], v{vL16}, s[12:15], s33 offen offset:{1024*kk}{SC}")
        k(f"buffer_load_dwordx4 v[{QB+4*kk}:{QB+4*kk+3}], v{vL16}, s[12:15], s34 offen offset:{1024*kk}{SC}")
    def dma_stage():
        k("s_add_u32 m0, s42, s32")
        k(f"buffer_load_dwordx4 v{vL16}, s[12:15], s40 offen{SC} lds")
        k(f"buffer_load_dwordx4 v{vL16}, s[12:15], s40 offen offset:1024{SC} lds")
        k("s_add_u32 m0, m0, 8192")
        k(f"buffer_load_dwordx4 v{vL16}, s[12:15], s41 offen{SC} lds")
        k(f"buffer_load_dwordx4 v{vL16}, s[12:15], s41 offen offset:1024{SC} lds")
        k(f"s_add_u32 s40, s40, {4*65536}")
        k("s_add_u32 s41, s41, 8192")
    lmain = k.lab("p2main"); lloop = k.lab("p2loop"); lfin = k.lab("p2fin"); lfb = k.lab("p2fb"); lend = k.lab("p2end")
    k(f"{lmain}:")
    k("s_mov_b32 s40, s30"); k("s_mov_b32 s41, s31")
    k("s_mov_b32 s42, 0"); dma_stage()
    k(f"s_mov_b32 s42, {STG}"); dma_stage()
    k(f"s_mov_b32 s42, {2*STG}")
    k(f"v_mov_b32 v{vCur}, v{vTmp}")
    k(f"v_add_u32 v{vNxt}, {STG}, v{vTmp}")
    k(f"s_mov_b32 s43, {STG}")
    for r in range(16): k(f"v_mov_b32 v{OA+r}, 0"); k(f"v_mov_b32 v{OB+r}, 0")
    for r in range(4): k(f"v_mov_b32 v{LA+r}, 0"); k(f"v_mov_b32 v{LB+r}, 0")
    for r in range(8): k(f"v_mov_b32 v{PB+r}, 0"); k(f"v_mov_b32 v{VF[1]+r}, 0")
    def wo_ring():
        lnp = k.lab("p2nopf")
        k("s_cmp_lg_u32 s46, 0"); k(f"s_cbranch_scc1 {lnp}")
        for t in range(4):
            for d in w35_dma(vW3, 8, t):
                for l in d: k(l)
            k(W3ADV)
        k(f"{lnp}:")
    if WOPF == 0:
        lnp = k.lab("p2nopf"); lj = k.lab("p2pfj")
        k("s_cmp_lg_u32 s46, 0"); k(f"s_cbranch_scc1 {lnp}")
        for t in range(4):
            for d in w35_dma(vW3, 8, t):
                for l in d: k(l)
            k(W3ADV)
        k("s_waitcnt vmcnt(12)")
        k(f"s_branch {lj}")
        k(f"{lnp}:")
        k("s_waitcnt vmcnt(4)")
        k(f"{lj}:")
    else:
        k("s_waitcnt vmcnt(4)")
    k("s_barrier")
    k.stamp("p2_go")
    if WOPF == 1: wo_ring()
    for kk in range(2):
        k(f"ds_read_b128 v[{KF[0]+4*kk}:{KF[0]+4*kk+3}], v{vCur} offset:{1024*kk}")
    k("s_waitcnt lgkmcnt(0)")
    def qk(Sx, Qx, Nx, kf):
        return [f"v_mfma_f32_32x32x16_bf16 v[{Sx}:{Sx+15}], v[{kf}:{kf+3}], v[{Qx}:{Qx+3}], v[{Nx}:{Nx+15}]",
                f"v_mfma_f32_32x32x16_bf16 v[{Sx}:{Sx+15}], v[{kf+4}:{kf+7}], v[{Qx+4}:{Qx+7}], v[{Sx}:{Sx+15}]"]
    def pv(Ox, Px, Lx, vf):
        return [f"v_mfma_f32_32x32x16_bf16 v[{Ox}:{Ox+15}], v[{vf}:{vf+3}], v[{Px}:{Px+3}], v[{Ox}:{Ox+15}]",
                f"v_mfma_f32_32x32x16_bf16 v[{Ox}:{Ox+15}], v[{vf+4}:{vf+7}], v[{Px+4}:{Px+7}], v[{Ox}:{Ox+15}]",
                f"v_mfma_f32_16x16x32_bf16 v[{Lx}:{Lx+3}], v[{ONE}:{ONE+3}], v[{Px}:{Px+3}], v[{Lx}:{Lx+3}]",
                f"v_mfma_f32_16x16x32_bf16 v[{Lx}:{Lx+3}], v[{ONE}:{ONE+3}], v[{Px+4}:{Px+7}], v[{Lx}:{Lx+3}]"]
    def expv(Sx, Px):
        o = []
        for g in range(4):
            o += [f"v_exp_f32 v{Sx+4*g+r}, v{Sx+4*g+r}" for r in range(4)]
            o += [f"v_cvt_pk_bf16_f32 v{Px+2*g}, v{Sx+4*g}, v{Sx+4*g+1}", f"v_cvt_pk_bf16_f32 v{Px+2*g+1}, v{Sx+4*g+2}, v{Sx+4*g+3}"]
        return o
    def phase(mf, va, extra):
        for i in range(6):
            k(mf[i])
            for (p, l) in extra:
                if p == i: k(l)
            for l in va[4*i:4*i+4]: k(l)
    for l in qk(SA, QA, NA, KF[0]): k(l)
    k("s_mov_b32 s44, 0")
    k(f"{lloop}:")
    for i in range(4):
        cb = i & 1; nb = cb ^ 1
        ex = []
        if i == 3:
            lnd = k.lab("nodma")
            k(f"s_waitcnt vmcnt({(1 if PFW and PFI < 3 else 0) + (1 if JIT & 2 else 0)})")
            k("s_barrier")
            k("s_cmp_ge_u32 s44, 6")
            k(f"s_cbranch_scc1 {lnd}")
            dma_stage()
            k(f"s_add_u32 s42, s42, {STG}")
            k(f"s_cmp_eq_u32 s42, {3*STG}")
            k("s_cselect_b32 s42, 0, s42")
            k(f"{lnd}:")
            if WDT == 1:
                lw = k.lab("nowd"); ls = k.lab("wdst")
                k("s_sub_u32 s27, s44, s101"); k("s_cmp_lt_u32 s27, 2"); k(f"s_cbranch_scc0 {lw}")
                k("s_cmp_eq_u32 s27, 1"); k(f"s_cbranch_scc1 {ls}")
                for q in range(4):
                    k(f"buffer_load_dwordx4 v[{WDR+4*q}:{WDR+4*q+3}], v{vL16}, s[60:63], s100 offen offset:{1024*q}")
                k(f"s_branch {lw}")
                k(f"{ls}:")
                for q in range(4):
                    k(f"buffer_store_dwordx4 v[{WDR+4*q}:{WDR+4*q+3}], v{vWDS}, s[12:15], s{98 + (q & 1)} offen offset:{128*(q>>1)}{SC}")
                k(f"{lw}:")
            if WDT == 2:
                k("s_sub_u32 s27, s44, s101"); k("s_sub_u32 s27, s27, 1")
                k("s_cmp_lt_u32 s27, 4"); k("s_cselect_b64 exec, -1, 0")
                k(f"buffer_store_dwordx4 v[{WDR}:{WDR+3}], v{vWDS}, s[12:15], s98 offen{SC}")
                k("s_add_u32 s27, s27, 1")
                k("s_cmp_lt_u32 s27, 4"); k("s_cselect_b64 exec, -1, 0")
                k(f"buffer_load_dwordx4 v[{WDR}:{WDR+3}], v{vL16}, s[60:63], s100 offen")
                k("s_mov_b64 exec, -1")
                k("s_add_u32 s98, s98, s99"); k("s_sub_u32 s99, 128, s99"); k("s_add_u32 s100, s100, 1024")
        if i == PFI and PFW:
            ex += [(4, "buffer_load_dword v199, v198, s[88:91], 0 offen"),
                   (5, "s_mov_b64 s[88:89], s[92:93]"), (5, "s_mov_b64 s[92:93], s[94:95]"), (5, "s_mov_b64 s[94:95], s[96:97]"),
                   (5, f"s_cmp_lt_u32 s44, {2 if WDT else 3}"), (5, f"s_cselect_b32 s90, {hex(D*DF*2)}, 0")]
        if i == 0 and JIT & 2:
            ex += [(5, "buffer_load_dword v231, v252, s[80:83], s52 offen")]
        for kk in range(2):
            if i < 3: ex.append((kk, f"ds_read_b128 v[{KF[nb]+4*kk}:{KF[nb]+4*kk+3}], v{vCur} offset:{(i+1)*2048 + 1024*kk}"))
            else:     ex.append((kk, f"ds_read_b128 v[{KF[nb]+4*kk}:{KF[nb]+4*kk+3}], v{vNxt} offset:{1024*kk}"))
        for mm in range(2):
            ex.append((2 + mm, f"ds_read_b128 v[{VF[cb]+4*mm}:{VF[cb]+4*mm+3}], v{vCur} offset:{8192 + i*2048 + 1024*mm}"))
        phase(qk(SB, QB, NB, KF[cb]) + pv(OB, PB, LB, VF[nb]), expv(SA, PA), ex)
        k("s_waitcnt lgkmcnt(0)")
        ex = []
        if i == 3:
            ex = [(0, f"v_mov_b32 v{vCur}, v{vNxt}"), (1, f"s_add_u32 s43, s43, {STG}"), (1, f"s_cmp_eq_u32 s43, {3*STG}"),
                  (2, "s_cselect_b32 s43, 0, s43"), (3, f"v_add_u32 v{vNxt}, s43, v{vTmp}")]
            if WDT == 3:
                p = WDP
                ex += [(p, x) for x in ("s_cmp_lt_u32 s101, 4", "s_cselect_b64 exec, -1, 0",
                       f"buffer_store_dwordx4 v[{WDR}:{WDR+3}], v{vWDS}, s[12:15], s98 offen{SC}",
                       "s_add_u32 s101, s101, 1", "s_cmp_lt_u32 s101, 4", "s_cselect_b64 exec, -1, 0",
                       f"buffer_load_dwordx4 v[{WDR}:{WDR+3}], v{vL16}, s[60:63], s100 offen", "s_mov_b64 exec, -1")]
                ex += [(5, x) for x in ("s_add_u32 s98, s98, s99", "s_sub_u32 s99, 128, s99", "s_add_u32 s100, s100, 1024")]
        phase(qk(SA, QA, NA, KF[nb]) + pv(OA, PA, LA, VF[cb]), expv(SB, PB), ex)
    k("s_add_u32 s44, s44, 1")
    k("s_cmp_lt_u32 s44, 8")
    k(f"s_cbranch_scc1 {lloop}")
    if JIT & 2: k("L_p2tail:")
    for l in pv(OB, PB, LB, VF[1]): k(l)
    k.stamp("p2_loop")
    if WOPF == 2: wo_ring()
    k("s_nop 7"); k("s_nop 3")
    lns = k.lab("nosw")
    k("s_cmp_eq_u32 s24, 0")
    k(f"s_cbranch_scc1 {lns}")
    for r in range(16): k(f"v_swap_b32 v{OA+r}, v{OB+r}")
    k(f"v_swap_b32 v{LA}, v{LB}")
    k(f"{lns}:")
    k("s_barrier")
    k("s_mul_i32 s25, s20, 5120")
    k(f"v_add_u32 v{T0}, s25, v{vL16}")
    k(f"v_lshlrev_b32 v{T0+1}, 2, v1"); k(f"v_add_u32 v{T0+1}, s25, v{T0+1}")
    for i in range(4): k(f"ds_write_b128 v{T0}, v[{OB+4*i}:{OB+4*i+3}] offset:{1024*i}")
    k(f"ds_write_b32 v{T0+1}, v{LB} offset:4096")
    k("s_xor_b32 s26, s20, 4"); k("s_mul_i32 s25, s26, 5120")
    k(f"v_add_u32 v{T0}, s25, v{vL16}")
    k(f"v_lshlrev_b32 v{T0+1}, 2, v1"); k(f"v_add_u32 v{T0+1}, s25, v{T0+1}")
    k("s_waitcnt lgkmcnt(0)")
    k("s_barrier")
    for i in range(4): k(f"ds_read_b128 v[{OB+4*i}:{OB+4*i+3}], v{T0} offset:{1024*i}")
    k(f"ds_read_b32 v{LB}, v{T0+1} offset:4096")
    k("s_waitcnt lgkmcnt(0)")
    k(f"v_add_f32 v{LA}, v{LA}, v{LB}")
    for r in range(16): k(f"v_add_f32 v{OA+r}, v{OA+r}, v{OB+r}")
    k("s_cmp_lg_u32 s46, 0")
    k(f"s_cbranch_scc1 {lfin}")
    k(f"v_mov_b32 v{T0+2}, v{LA}")
    for r in range(16): k(f"v_fma_f32 v{T0+2}, v{OA+r}, 0, v{T0+2}")
    k(f"v_mov_b32 v{T0+3}, 0x71800000")
    k(f"v_cmp_le_f32 vcc, 1.0, v{T0+2}")
    k(f"v_cmp_le_f32 s[48:49], v{T0+2}, v{T0+3}")
    k("s_and_b64 vcc, vcc, s[48:49]")
    k("s_cmp_eq_u64 vcc, -1")
    k("s_cselect_b32 s47, 0, 1")
    k(f"v_mov_b32 v{T0+2}, s47")
    k(f"s_lshl_b32 s25, s20, 2"); k(f"v_mov_b32 v{T0+3}, s25")
    k(f"ds_write_b32 v{T0+3}, v{T0+2} offset:45056")
    k("s_waitcnt lgkmcnt(0)")
    k("s_barrier")
    k(f"v_mov_b32 v{T0+3}, 0")
    k(f"ds_read_b128 v[{T0+4}:{T0+7}], v{T0+3} offset:45056")
    k(f"ds_read_b128 v[{T0+8}:{T0+11}], v{T0+3} offset:45072")
    k("s_waitcnt lgkmcnt(0)")
    k(f"v_or3_b32 v{T0+4}, v{T0+4}, v{T0+5}, v{T0+6}")
    k(f"v_or3_b32 v{T0+8}, v{T0+8}, v{T0+9}, v{T0+10}")
    k(f"v_or3_b32 v{T0+4}, v{T0+4}, v{T0+7}, v{T0+11}")
    k(f"v_or_b32 v{T0+4}, v{T0+4}, v{T0+8}")
    k(f"v_readfirstlane_b32 s47, v{T0+4}")
    k("s_cmp_lg_u32 s47, 0")
    k(f"s_cbranch_scc1 {lfb}")
    k(f"{lfin}:")
    k(f"v_rcp_f32 v{LA}, v{LA}")
    for g in range(4):
        for r in range(4): k(f"v_mul_f32 v{OA+4*g+r}, v{OA+4*g+r}, v{LA}")
        k(f"v_cvt_pk_bf16_f32 v{SA+2*g}, v{OA+4*g}, v{OA+4*g+1}")
        k(f"v_cvt_pk_bf16_f32 v{SA+2*g+1}, v{OA+4*g+2}, v{OA+4*g+3}")
    k("s_lshl_b32 s25, s24, 16"); k("s_add_u32 s45, s45, s25")
    for p in range(2):
        k(f"v_permlane32_swap_b32 v{SA+4*p}, v{SA+4*p+2}")
        k(f"v_permlane32_swap_b32 v{SA+4*p+1}, v{SA+4*p+3}")
        k(f"buffer_store_dwordx4 v[{SA+4*p}:{SA+4*p+3}], v{vL16}, s[12:15], s45 offen offset:{1024*p}{SC}")
    k(f"s_branch {lend}")
    k(f"{lfb}:")
    k("s_mov_b32 s46, 1")
    if WDT: k("s_mov_b32 s101, 99")
    k("s_barrier")
    MA, MB = T0 + 2, T0 + 3
    k(f"v_mov_b32 v{MA}, 0xff800000"); k(f"v_mov_b32 v{MB}, 0xff800000")
    k("s_lshl_b32 s40, s24, 21"); k("s_lshl_b32 s25, s21, 11"); k("s_add_u32 s40, s40, s25"); k(f"s_add_u32 s40, s40, {WS_K}")
    k("s_mov_b32 s44, 0")
    lfl = k.lab("p2fbl")
    k(f"{lfl}:")
    for kk in range(2):
        k(f"buffer_load_dwordx4 v[{KF[0]+4*kk}:{KF[0]+4*kk+3}], v{vL16}, s[12:15], s40 offen offset:{1024*kk}{SC}")
    k("s_waitcnt vmcnt(0)")
    for (Sx, Qx) in ((SA, QA), (SB, QB)):
        k(f"v_mfma_f32_32x32x16_bf16 v[{Sx}:{Sx+15}], v[{KF[0]}:{KF[0]+3}], v[{Qx}:{Qx+3}], 0")
        k(f"v_mfma_f32_32x32x16_bf16 v[{Sx}:{Sx+15}], v[{KF[0]+4}:{KF[0]+7}], v[{Qx+4}:{Qx+7}], v[{Sx}:{Sx+15}]")
    for (Sx, Mx) in ((SA, MA), (SB, MB)):
        for r in range(0, 16, 2): k(f"v_max3_f32 v{Mx}, v{Mx}, v{Sx+r}, v{Sx+r+1}")
    k("s_add_u32 s40, s40, 65536")
    k("s_add_u32 s44, s44, 1")
    k("s_cmp_lt_u32 s44, 32")
    k(f"s_cbranch_scc1 {lfl}")
    for Mx in (MA, MB):
        k(f"v_mov_b32 v{T0+4}, v{Mx}")
        k(f"v_permlane32_swap_b32 v{Mx}, v{T0+4}")
        k(f"v_max_f32 v{Mx}, v{Mx}, v{T0+4}")
    k("s_lshl_b32 s25, s20, 9")
    k(f"v_lshlrev_b32 v{T0+4}, 3, v1"); k(f"v_add_u32 v{T0+5}, s25, v{T0+4}")
    k(f"ds_write_b64 v{T0+5}, v[{MA}:{MB}]")
    k("s_xor_b32 s26, s20, 4"); k("s_lshl_b32 s25, s26, 9")
    k(f"v_add_u32 v{T0+5}, s25, v{T0+4}")
    k("s_waitcnt lgkmcnt(0)")
    k("s_barrier")
    k(f"ds_read_b64 v[{T0+6}:{T0+7}], v{T0+5}")
    k("s_waitcnt lgkmcnt(0)")
    k(f"v_max_f32 v{MA}, v{MA}, v{T0+6}")
    k(f"v_max_f32 v{MB}, v{MB}, v{T0+7}")
    for r in range(16):
        k(f"v_sub_f32 v{NA+r}, 0, v{MA}")
        k(f"v_sub_f32 v{NB+r}, 0, v{MB}")
    k("s_barrier")
    k(f"s_branch {lmain}")
    k(f"{lend}:")
    k.stamp("p2_epi")
    k("s_lshl_b32 s27, s22, 7"); k(f"s_add_u32 s27, s27, {WS_CNT + C3*128}")
    signal(k, 27, vt=(T0, T0 + 1))
    k.stamp("p2_sig")

SLOT4 = 30720; UOFF = 7168; BOFF4 = 14336
RMOFF = 75776; XMOFF = 83968; HKOFF = 147456
vPW = 202
vW5 = [240, 241]
NPF5 = int(os.environ.get("NPF5", "3"))
NS5 = int(os.environ.get("NS5", "5")); R3 = int(os.environ.get("R3", "4")); R5 = int(os.environ.get("R5", "6"))
def w4_piece_lane(k, vdst, vidx, t):
    k(f"v_mul_u32_u24 v{t}, 4682, v{vidx}"); k(f"v_lshrrev_b32 v{t}, 16, v{t}")
    k(f"v_mul_u32_u24 v{t+1}, 14, v{t}"); k(f"v_sub_u32 v{t+1}, v{vidx}, v{t+1}")
    k(f"v_and_b32 v{t+2}, 0x33, v{t}")
    k(f"v_bfe_u32 v{vidx}, v{t}, 2, 1"); k(f"v_lshl_add_u32 v{t+2}, v{vidx}, 3, v{t+2}")
    k(f"v_bfe_u32 v{vidx}, v{t}, 3, 1"); k(f"v_lshl_add_u32 v{t+2}, v{vidx}, 2, v{t+2}")
    k(f"v_mul_u32_u24 v{t+2}, 7168, v{t+2}")
    k(f"v_lshl_add_u32 v{vdst}, v{t+1}, 4, v{t+2}")
def coords4(k, stb, scb, st):
    k("s_and_b32 s21, s2, 7"); k("s_lshr_b32 s22, s2, 3")
    k(f"s_and_b32 s{stb}, s21, 1"); k(f"s_lshl_b32 s{stb}, s{stb}, 2"); k(f"s_and_b32 s{st}, s22, 3"); k(f"s_add_u32 s{stb}, s{stb}, s{st}")
    k(f"s_lshr_b32 s{scb}, s21, 1"); k(f"s_lshl_b32 s{scb}, s{scb}, 3"); k(f"s_lshr_b32 s{st}, s22, 2"); k(f"s_add_u32 s{scb}, s{scb}, s{st}")
def pf4_setup(k, t):
    coords4(k, 27, 29, 28)
    k("s_mul_i32 s40, s29, 224")
    k("s_min_u32 s27, s20, 6"); k("s_lshl_b32 s42, s27, 10"); k("s_lshl_b32 s27, s27, 6")
    k(f"v_add_u32 v{t+3}, s27, v1")
    w4_piece_lane(k, vPW, t + 3, t)
    srd(k, 52, pWG, D * DF * 2); srd(k, 56, pWU, D * DF * 2)
def pf4(tile):
    o = []
    for m in range(2):
        g = []
        if m == 0: g.append(f"s_add_u32 s41, s40, {tile*32*7168}")
        g += [f"s_add_u32 m0, s42, {tile*SLOT4 + m*UOFF}", f"buffer_load_dwordx4 v{vPW}, s[{52+4*m}:{55+4*m}], s41 offen lds"]
        o.append(g)
    return o

JS3 = int(os.environ.get("JS3", "2")); JT4 = int(os.environ.get("JT4", "28"))
def phase35(k, kind):
    wo = kind == "wo"
    KD = D if wo else DF
    NT = KD // 128
    NS = 4 if wo else NS5
    R = R3 if wo else R5
    WSB = WS_O if wo else WS_HM
    T32B = KD * 64
    base = W3BASE if wo else 0
    vW = vW3 if wo else vW5
    WADV = W3ADV if wo else W5ADV
    SW = 8 if wo else SW5
    vA = [2, 3, 4, 5]; vBj = [6, 7]; vR = 10; vO = 11; vT = 12; vRM = 8; vHK = 9
    RES = 16; A = [24, 40]; ACC = 56; ACM = 88; RMF = [96, 100]; BR = 104
    MX = 15
    acc = lambda i, j: ACC + (j * 4 + i) * 4
    pre = "p3" if wo else "p5"
    coords35(k, 23, 24, 25)
    k("s_and_b32 s25, s20, 3")
    k("s_lshr_b32 s26, s20, 2")
    k("s_lshl_b32 s31, s23, 2"); k("s_add_u32 s31, s31, s25"); k(f"s_mul_i32 s31, s31, {T32B}")
    k("s_lshl_b32 s28, s26, 12"); k("s_add_u32 s31, s31, s28"); k(f"s_add_u32 s31, s31, {WSB}")
    k(f"v_lshrrev_b32 v{vT}, 4, v1"); k(f"v_and_b32 v{vT+1}, 15, v1")
    k(f"v_lshlrev_b32 v{vT+2}, 4, v{vT+1}"); k(f"v_lshl_add_u32 v{vT+2}, v{vT}, 9, v{vT+2}")
    k("s_lshl_b32 s28, s26, 8")
    k(f"v_add_u32 v{vBj[0]}, s28, v{vT+2}")
    k(f"v_xor_b32 v{vBj[1]}, 256, v{vBj[0]}")
    k(f"v_and_b32 v{vT+2}, 1, v{vT}"); k(f"v_lshlrev_b32 v{vT+2}, 1, v{vT+2}"); k(f"v_lshrrev_b32 v{vT+3}, 1, v{vT}")
    k(f"v_add_u32 v{vT+2}, v{vT+2}, v{vT+3}")
    rm = vR if wo else vO
    k(f"v_lshlrev_b32 v{rm}, 11, v{vT+1}"); k(f"v_lshl_add_u32 v{rm}, v{vT+2}, 4, v{rm}")
    k("s_lshl_b32 s33, s23, 2"); k("s_add_u32 s33, s33, s25"); k("s_lshl_b32 s33, s33, 1"); k("s_add_u32 s33, s33, s26")
    k("s_lshl_b32 s35, s33, 4")
    k("s_lshl_b32 s33, s33, 15"); k("s_lshl_b32 s28, s24, 7"); k("s_add_u32 s33, s33, s28")
    if wo:
        k(f"v_lshlrev_b32 v{vO}, 9, v{vT+2}"); k(f"v_lshl_add_u32 v{vO}, v{vT+1}, 4, v{vO}")
        k("s_lshl_b32 s34, s23, 2"); k("s_add_u32 s34, s34, s25"); k("s_lshl_b32 s34, s34, 16")
        k("s_lshl_b32 s28, s24, 12"); k("s_add_u32 s34, s34, s28"); k("s_lshl_b32 s28, s26, 8"); k("s_add_u32 s34, s34, s28")
        k(f"s_add_u32 s34, s34, {WS_H}")
        k("s_lshl_b32 s28, s20, 10"); k(f"s_add_u32 s28, s28, {RMOFF}")
        k(f"v_lshl_add_u32 v{vRM}, v{vT}, 4, s28")
    k("s_lshl_b32 s28, s20, 11"); k(f"s_add_u32 s28, s28, {HKOFF}")
    k(f"v_lshl_add_u32 v{vHK}, v1, 4, s28")
    k(f"v_bfe_u32 v{vT+1}, v1, 2, 2")
    k(f"v_lshrrev_b32 v{vT+2}, 1, v{vT}"); k(f"v_and_b32 v{vT+3}, 1, v{vT}")
    k(f"v_lshlrev_b32 v{vT+2}, 4, v{vT+2}"); k(f"v_lshl_add_u32 v{vT+2}, v{vT+3}, 2, v{vT+2}")
    k(f"v_add_u32 v{vT+2}, v{vT+2}, v{vT+1}"); k(f"v_lshlrev_b32 v{vT+2}, 7, v{vT+2}")
    k(f"v_lshrrev_b32 v{vT+1}, 1, v{vT+1}"); k(f"v_lshl_add_u32 v{vT+1}, v{vT+3}, 1, v{vT+1}")
    k(f"v_and_b32 v{vT+3}, 3, v1"); k(f"v_lshl_add_u32 v{vT+2}, v{vT+3}, 3, v{vT+2}")
    k("s_lshl_b32 s28, s26, 13")
    if base: k(f"s_add_u32 s28, s28, {base}")
    k(f"v_add_u32 v{vT+2}, s28, v{vT+2}")
    for i in range(4):
        k(f"v_xor_b32 v{vT+3}, {i}, v{vT+1}")
        k(f"v_lshl_add_u32 v{vA[i]}, v{vT+3}, 5, v{vT+2}")
    hiA = NS * 16384 > 65536
    vA2 = [204, 205, 206, 207]
    if hiA:
        for i in range(4): k(f"v_add_u32 v{vA2[i]}, 65536, v{vA[i]}")
    srd(k, 16, pX if wo else pOUT, MB4)
    if not wo and OT == 1:
        k(f"buffer_load_dword v{RES}, v{vO}, s[16:19], s33 offen")
    if wo and COA & 4:
        for p in range(2): k(f"buffer_load_dwordx4 v[{RES+4*p}:{RES+4*p+3}], v{vR}, s[16:19], s33 offen offset:{64*p}")
    if not wo and COA & 8:
        k(f"v_and_b32 v{vT}, 15, v1"); k(f"v_lshrrev_b32 v{vT+1}, 4, v1")
        k(f"v_and_b32 v{vT+2}, 1, v{vT+1}"); k(f"v_lshlrev_b32 v{vT+2}, 1, v{vT+2}"); k(f"v_lshrrev_b32 v{vT+1}, 1, v{vT+1}"); k(f"v_add_u32 v{vT+1}, v{vT+1}, v{vT+2}")
        k(f"v_xor_b32 v{vT+1}, v{vT+1}, v{vT}"); k(f"v_and_b32 v{vT+1}, 7, v{vT+1}"); k(f"v_lshlrev_b32 v{vT+1}, 4, v{vT+1}")
        k("s_lshl_b32 s28, s20, 12"); k("s_xor_b32 s28, s28, 16384"); k("s_add_u32 s28, s28, 98304")
        k(f"v_lshl_add_u32 v{vT+1}, v{vT}, 7, v{vT+1}"); k(f"v_add_u32 v88, s28, v{vT+1}"); k("v_xor_b32 v89, 64, v88")
        k(f"v_lshrrev_b32 v{vT}, 3, v1"); k(f"v_and_b32 v{vT+1}, 7, v1")
        k(f"v_lshlrev_b32 v{vO}, 11, v{vT}"); k(f"v_lshl_add_u32 v{vO}, v{vT+1}, 4, v{vO}")
        k(f"v_xor_b32 v{vT+1}, v{vT+1}, v{vT}"); k(f"v_lshlrev_b32 v{vT+1}, 4, v{vT+1}"); k(f"v_lshl_add_u32 v{vT+1}, v{vT}, 7, v{vT+1}")
        k(f"v_add_u32 v90, s28, v{vT+1}")
        k("s_add_u32 s34, s33, 16384")
    for r in range(ACC, ACC + (40 if wo else 32)): k(f"v_mov_b32 v{r}, 0")
    if wo:
        pf4_setup(k, vT)
        k(f"v_lshrrev_b32 v{vT}, 3, v1"); k(f"v_and_b32 v{vT+1}, 7, v1"); k(f"v_lshlrev_b32 v{vT+1}, 4, v{vT+1}")
        k(f"v_lshl_add_u32 v{vT+1}, v{vT}, 8, v{vT+1}"); k("s_lshl_b32 s28, s26, 7"); k(f"v_add_u32 v{vT+1}, s28, v{vT+1}")
        k(f"v_and_b32 v{vT+2}, 15, v1"); k(f"v_lshlrev_b32 v{vT+2}, 2, v{vT+2}")
    vm = VM()
    if not wo:
        for t in range(NPF5, NS):
            for d in w35_dma(vW, SW, t):
                for l in d: k(l)
            k(WADV); vm.issue(("W", t), 2)
    k("s_lshr_b32 s27, s23, 1"); k("s_lshl_b32 s27, s27, 7"); k(f"s_add_u32 s27, s27, {WS_CNT + (C3 if wo else C5)*128}")
    wait(k, 27, 32, vt=(A[0], A[0] + 1) if wo and COA & 4 else (RES, RES + 1), pr=A[1])
    k.stamp(pre + "_wait")
    NSTEP = 2 * NT
    def bld(s):
        b = BR + (s % R) * 8
        return [f"buffer_load_dwordx4 v[{b+4*j}:{b+4*j+3}], v{vBj[j]}, s[12:15], s31 offen{SC}" for j in range(2)]
    def badv(s): return f"s_add_u32 s31, s31, {2048 if s % 2 == 0 else 6144}"
    if wo:
        k("s_lshl_b32 s28, s20, 10"); k(f"s_add_u32 m0, s28, {RMOFF}")
        k(f"s_mov_b32 s28, {WS_RM}")
        k(f"buffer_load_dwordx4 v{vT+1}, s[12:15], s28 offen{SC} lds"); vm.issue("RM")
    for s in range(R):
        for l in bld(s): k(l); vm.issue(("B", s))
        k(badv(s))
    if wo:
        for p in range(2 if not COA & 4 else 0):
            k(f"buffer_load_dwordx4 v[{RES+4*p}:{RES+4*p+3}], v{vR}, s[16:19], s33 offen offset:{64*p}"); vm.issue("res")
        k("s_lshl_b32 s28, s35, 2"); k(f"s_add_u32 s28, s28, {WS_MX}")
        k(f"buffer_load_dword v{MX}, v{vT+2}, s[12:15], s28 offen{SC}"); vm.issue("res")
    def areads(s, buf):
        t = s // 2; sl = t % NS
        va = vA if sl < 4 else vA2
        o = [f"ds_read_b64_tr_b16 v[{A[buf]+4*i+2*tt}:{A[buf]+4*i+2*tt+1}], v{va[i]} offset:{(sl & 3)*16384 + (s&1)*4096 + tt*1024}"
             for i in range(4) for tt in range(2)]
        return o
    def rmread(s, buf): return f"ds_read_b128 v[{RMF[buf]}:{RMF[buf]+3}], v{vRM} offset:{(s >> 1)*128 + (s & 1)*64}"
    for l in areads(0, 0): k(l)
    if wo:
        k(f"s_waitcnt vmcnt({vm.cnt({'RM'})})")
        k(rmread(0, 0))
    k.stamp(pre + "_go")
    texts = []
    for per in range((NT + NS - 1) // NS):
        o = []
        for s in range(per * 2 * NS, min((per + 1) * 2 * NS, NSTEP)):
            t = s // 2; cur = s & 1; nxt = cur ^ 1
            need = {("B", s)}
            if s & 1 and t + 1 < NT: need.add(("W", t + 1))
            n = vm.cnt(need)
            o.append(f"s_waitcnt vmcnt({min(n, 63)}) lgkmcnt(0)")
            rd = []; dm = []
            if s & 1:
                if t + 1 < NT:
                    o.append("s_barrier"); rd = areads(s + 1, nxt)
                if t + NS < NT: dm = w35_dma(vW, SW, t % NS)
            else:
                rd = areads(s + 1, nxt)
            if wo and s + 1 < NSTEP: rd = rd + [rmread(s + 1, nxt)]
            mf = []
            b = BR + (s % R) * 8
            for i in range(4):
                for j in range(2):
                    a = acc(i, j)
                    mf.append(f"v_mfma_f32_16x16x32_bf16 v[{a}:{a+3}], v[{A[cur]+4*i}:{A[cur]+4*i+3}], v[{b+4*j}:{b+4*j+3}], v[{a}:{a+3}]")
            if wo:
                for j in range(2):
                    a = ACM + 4 * j
                    mf.append(f"v_mfma_f32_16x16x32_bf16 v[{a}:{a+3}], v[{RMF[cur]}:{RMF[cur]+3}], v[{b+4*j}:{b+4*j+3}], v[{a}:{a+3}]")
            gaps = [[] for _ in mf]
            for q, r in enumerate(rd): gaps[min(q, len(mf) - 1)].append(r)
            if dm:
                gaps[0].append(dm[0][0]); gaps[1].append(dm[0][1]); gaps[2].append(dm[1][0]); gaps[3].append(dm[1][1]); gaps[4].append(WADV)
                vm.issue(("W", t + NS), 2)
            if wo and s == JS3 and JIT & 4:
                assert s % 2 == 0
                gaps[1] += jit("L_p3tail", 29, 203); vm.issue("CP")
            if s + R < NSTEP:
                gaps[len(mf) - 1] += bld(s + R) + [badv(s + R)]
                vm.issue(("B", s + R), 2)
            if wo and s == NSTEP - R:
                q = 0
                for tl in range(3):
                    for g in pf4(tl):
                        gaps[min(q, len(mf) - 1)] += g; q += 1
                        vm.issue("PF")
            for g, mm in enumerate(mf):
                o.append(mm); o += gaps[g]
        texts.append(o)
    periods(k, pre + "loop", texts, 36)
    if wo and JIT & 4: k("L_p3tail:")
    k.stamp(pre + "_loop")
    if wo:
        k("s_and_b32 s27, s20, 3"); k("s_lshl_b32 s27, s27, 12"); k(f"s_mul_i32 s28, s26, {SLOT4}"); k("s_add_u32 s27, s27, s28"); k(f"s_add_u32 s27, s27, {BOFF4}")
        k(f"v_lshlrev_b32 v{vT}, 4, v1"); k(f"v_add_u32 v{vT+1}, s27, v{vT}")
        k("s_and_b32 s27, s20, 3"); k("s_lshl_b32 s27, s27, 12"); k("s_xor_b32 s28, s26, 1"); k(f"s_mul_i32 s28, s28, {SLOT4}"); k("s_add_u32 s27, s27, s28"); k(f"s_add_u32 s27, s27, {BOFF4}")
        k(f"v_add_u32 v{vT+2}, s27, v{vT}")
        k("s_lshl_b32 s27, s20, 8"); k(f"s_add_u32 s27, s27, {XMOFF}")
        k(f"v_lshl_add_u32 v{vRM}, v1, 2, s27")
        k(f"ds_write_b32 v{vRM}, v{ACM+4}")
        k(f"v_xor_b32 v{vRM}, 1024, v{vRM}")
    else:
        XCH = 98304
        k("s_lshl_b32 s27, s20, 12"); k(f"s_add_u32 s27, s27, {XCH}")
        k(f"v_lshlrev_b32 v{vT}, 4, v1"); k(f"v_add_u32 v{vT+1}, s27, v{vT}")
        k("s_lshl_b32 s27, s20, 12"); k("s_xor_b32 s27, s27, 16384"); k(f"s_add_u32 s27, s27, {XCH}"); k(f"v_add_u32 v{vT+2}, s27, v{vT}")
    for i in range(4): k(f"ds_write_b128 v{vT+1}, v[{acc(i,1)}:{acc(i,1)+3}] offset:{1024*i}")
    k("s_waitcnt lgkmcnt(0)")
    k("s_barrier")
    for i in range(4): k(f"ds_read_b128 v[{acc(i,1)}:{acc(i,1)+3}], v{vT+2} offset:{1024*i}")
    if wo:
        k(f"ds_read_b32 v{ACM+4}, v{vRM}")
        for g in pf4(3):
            for l in g: k(l)
    else:
        for p in range(2): k(f"ds_read_b128 v[{RES+4*p}:{RES+4*p+3}], v{vHK} offset:{1024*p}")
    k("s_waitcnt lgkmcnt(0)")
    def padd(d, a, b, bc=False):
        if wo:
            k(f"v_add_f32 v{d}, v{a}, v{b}"); k(f"v_add_f32 v{d+1}, v{a+1}, v{b if bc else b+1}")
        else: k(f"v_pk_add_f32 v[{d}:{d+1}], v[{a}:{a+1}], v[{b}:{b+1}]")
    for i in range(4):
        for r in range(0, 4, 2): padd(acc(i,0)+r, acc(i,0)+r, acc(i,1)+r)
    for p in range(2):
        for r in range(4): k(f"v_permlane16_swap_b32 v{acc(2*p,0)+r}, v{acc(2*p+1,0)+r}")
    U = A[0]
    k(f"v_mov_b32 v{vT+3 if not wo else vT}, 0xffff0000")
    vMask = vT + 3 if not wo else vT
    if wo:
        k("s_waitcnt vmcnt(8)")
        k(f"v_add_f32 v{ACM}, v{ACM}, v{ACM+4}")
        k(f"v_add_f32 v{ACM}, v{ACM}, v{MX}")
        k(f"v_sub_f32 v{ACM}, 0, v{ACM}")
    for p in range(2):
        for q in range(4):
            a = acc(2 * p, 0) + 2 * q
            k(f"v_lshlrev_b32 v{U+2*q}, 16, v{RES+4*p+q}")
            k(f"v_and_b32 v{U+2*q+1}, v{vMask}, v{RES+4*p+q}")
        for q in range(4):
            a = acc(2 * p, 0) + 2 * q
            padd(a, a, U+2*q)
        for q in range(4):
            a = acc(2 * p, 0) + 2 * q
            k(f"v_cvt_pk_bf16_f32 v{RES+4*p+q}, v{a}, v{a+1}")
        if wo:
            k(f"ds_write_b128 v{vHK}, v[{RES+4*p}:{RES+4*p+3}] offset:{1024*p}")
            HC = U + 8 + 4 * p
            for q in range(4):
                a = acc(2 * p, 0) + 2 * q
                padd(a, a, ACM, True)
            for q in range(4):
                a = acc(2 * p, 0) + 2 * q
                k(f"v_cvt_pk_bf16_f32 v{HC+q}, v{a}, v{a+1}")
            k(f"buffer_store_dwordx4 v[{HC}:{HC+3}], v{vO}, s[12:15], s34 offen offset:{2048*p}{SC}")
        elif COA & 8:
            k(f"ds_write_b128 v{88+p}, v[{RES+4*p}:{RES+4*p+3}]")
        else:
            k(f"buffer_store_dwordx4 v[{RES+4*p}:{RES+4*p+3}], v{vO}, s[16:19], s33 offen offset:{64*p}{OUTSC}")
    if not wo and COA & 8:
        for q in range(2): k(f"ds_read_b128 v[{RES+4*q}:{RES+4*q+3}], v90 offset:{1024*q}")
        for q in range(2):
            k(f"s_waitcnt lgkmcnt({1-q})")
            k(f"buffer_store_dwordx4 v[{RES+4*q}:{RES+4*q+3}], v{vO}, s[16:19], s{33+q} offen{OUTSC}")
    if wo:
        s1 = U
        a0 = acc(0, 0)
        for r in range(4): k(f"v_mul_f32 v{s1+r}, v{a0+r}, v{a0+r}")
        for r in range(4, 16): k(f"v_fma_f32 v{s1+(r&3)}, v{a0+r}, v{a0+r}, v{s1+(r&3)}")
        k(f"v_add_f32 v{s1}, v{s1}, v{s1+1}"); k(f"v_add_f32 v{s1+2}, v{s1+2}, v{s1+3}"); k(f"v_add_f32 v{s1}, v{s1}, v{s1+2}")
        for sw in ("v_permlane16_swap_b32", "v_permlane32_swap_b32"):
            k(f"v_mov_b32 v{s1+2}, v{s1}"); k(f"{sw} v{s1}, v{s1+2}"); k(f"v_add_f32 v{s1}, v{s1}, v{s1+2}")
        k(f"v_and_b32 v{vT}, 15, v1"); k(f"v_lshlrev_b32 v{vT}, 2, v{vT}")
        if STL & 2:
            k("s_lshr_b32 s27, s35, 8"); k("s_lshl_b32 s27, s27, 14"); k("s_and_b32 s28, s35, 255"); k("s_lshl_b32 s28, s28, 2"); k("s_add_u32 s27, s27, s28")
            k("s_lshl_b32 s28, s24, 10"); k("s_add_u32 s27, s27, s28"); k(f"s_add_u32 s27, s27, {WS_ST}")
        else:
            k("s_lshl_b32 s27, s35, 2"); k("s_lshl_b32 s28, s24, 13"); k("s_add_u32 s27, s27, s28"); k(f"s_add_u32 s27, s27, {WS_ST}")
        k("s_mov_b64 exec, 0xffff")
        k(f"buffer_store_dword v{s1}, v{vT}, s[12:15], s27 offen{SC}")
        k("s_mov_b64 exec, -1")
        k.stamp(pre + "_epi")
        k("s_lshr_b32 s27, s23, 1"); k("s_lshl_b32 s27, s27, 7"); k(f"s_add_u32 s27, s27, {WS_CNT + C4*128}")
        k("s_waitcnt lgkmcnt(0)")
        signal(k, 27, vt=(RES, RES + 1))
        k.stamp(pre + "_sig")
    else:
        k.stamp(pre + "_epi")
OUTSC = os.environ.get("OUTSC", "")

KC = 2 * math.sqrt(2 / math.pi) * math.log2(math.e)
X4 = os.environ.get("X4", "drain").split(",")
T4 = int(os.environ.get("T4", "0")); T4S = int(os.environ.get("T4S", "29")); T4P = int(os.environ.get("T4P", "2"))
def phase4(k):
    NS = 4; SLOT = SLOT4; UOFF = 7168; BOFF = BOFF4; STATS = NS * SLOT
    vA = [2, 3]; vB = [4, 5]; vD = [6, 7, 8, 9, 10]; vL16 = 11; vT = 12
    A = [16, 48]; B = [80, 96]; ACC = 112; SV = 242
    acc = lambda fi, m, j: ACC + ((fi * 2 + m) * 4 + j) * 4
    w35_setup(k, vW5, 0, vT, DF if WT5 or WDT else 0)
    if not WDT: srd(k, 60, pWD, DF * D * 2)
    coords4(k, 23, 24, 25)
    k("s_and_b32 s25, s20, 3")
    k("s_lshr_b32 s26, s20, 2")
    k(f"v_lshlrev_b32 v{vL16}, 4, v1")
    k(f"v_lshrrev_b32 v{vT}, 4, v1")
    k(f"v_bfe_u32 v{vT+1}, v1, 2, 2")
    k(f"v_lshrrev_b32 v{vT+2}, 1, v{vT}"); k(f"v_and_b32 v{vT+3}, 1, v{vT}")
    k(f"v_lshlrev_b32 v{vT+2}, 4, v{vT+2}"); k(f"v_lshl_add_u32 v{vT+2}, v{vT+3}, 2, v{vT+2}"); k(f"v_add_u32 v{vT+2}, v{vT+2}, v{vT+1}")
    k(f"v_mul_u32_u24 v{vT+2}, 224, v{vT+2}")
    k(f"v_and_b32 v{vT+3}, 3, v1"); k(f"v_lshl_add_u32 v{vT+2}, v{vT+3}, 3, v{vT+2}")
    k("s_lshl_b32 s27, s26, 7")
    k(f"v_add_u32 v{vA[0]}, s27, v{vT+2}"); k(f"v_add_u32 v{vA[1]}, {2*SLOT}, v{vA[0]}")
    k(f"v_and_b32 v{vT+1}, 15, v1"); k(f"v_lshlrev_b32 v{vT+1}, 4, v{vT+1}"); k(f"v_lshl_add_u32 v{vT+1}, v{vT}, 9, v{vT+1}")
    k("s_lshl_b32 s27, s25, 12"); k(f"s_add_u32 s27, s27, {BOFF}")
    k(f"v_add_u32 v{vB[0]}, s27, v{vT+1}"); k(f"v_add_u32 v{vB[1]}, {2*SLOT}, v{vB[0]}")
    k("s_lshl_b32 s31, s23, 19"); k(f"s_add_u32 s31, s31, {WS_H}")
    k("s_mul_i32 s30, s24, 224"); k(f"s_add_u32 s30, s30, {NS*32*7168}")
    for r in range(ACC, ACC + 128): k(f"v_mov_b32 v{r}, 0")
    if COA & 2:
        k(f"v_lshrrev_b32 v{vT}, 5, v1"); k(f"v_lshlrev_b32 v{vT}, {13 if STL & 2 else 16}, v{vT}")
        k(f"v_and_b32 v{vT+1}, 31, v1"); k("s_lshl_b32 s27, s20, 5"); k(f"v_add_u32 v{vT+1}, s27, v{vT+1}"); k(f"v_lshl_add_u32 v{SV+8}, v{vT+1}, 2, v{vT}")
    else:
        k(f"v_and_b32 v{vT}, 1, v0"); k(f"v_lshlrev_b32 v{vT}, {13 if STL & 2 else 16}, v{vT}")
        k(f"v_lshrrev_b32 v{vT+1}, 1, v0"); k(f"v_lshl_add_u32 v{SV+8}, v{vT+1}, 2, v{vT}")
    k(f"v_lshlrev_b32 v{SV+9}, 4, v{vT+1}"); k(f"v_add_u32 v{SV+9}, {STATS}, v{SV+9}")
    k(f"s_lshl_b32 s37, s23, {14 if STL & 2 else 10}"); k(f"s_add_u32 s37, s37, {WS_ST}")
    k("s_bitcmp1_b32 s25, 1")
    k(f"s_cselect_b32 s4, s{pWU}, s{pWG}"); k(f"s_cselect_b32 s5, s{pWU+1}, s{pWG+1}")
    srd(k, 8, 4, D * DF * 2)
    lsb = k.lab("p4setB"); lsd = k.lab("p4setD")
    k("s_cmp_eq_u32 s26, 0")
    k(f"s_cbranch_scc0 {lsb}")
    for n in range(3):
        k("s_mul_i32 s27, s20, 3"); k(f"s_add_u32 s27, s27, {n}")
        k("s_lshr_b32 s28, s27, 1"); k("s_lshl_b32 s28, s28, 16"); k("s_and_b32 s29, s27, 1"); k("s_lshl_b32 s29, s29, 10"); k("s_add_u32 s28, s28, s29")
        k(f"v_add_u32 v{vD[n]}, s28, v{vL16}")
    k(f"s_mul_i32 s32, s20, 3072"); k(f"s_add_u32 s32, s32, {BOFF}")
    k(f"s_branch {lsd}")
    k(f"{lsb}:")
    k("s_and_b32 s27, s25, 1"); k("s_lshl_b32 s27, s27, 8")
    for q in range(4):
        k(f"v_add_u32 v{vT+3}, {64*q}, v1"); k(f"v_add_u32 v{vT+3}, s27, v{vT+3}")
        w4_piece_lane(k, vD[q], vT + 3, vT)
    k("s_add_u32 s27, s25, 12")
    k("s_lshr_b32 s28, s27, 1"); k("s_lshl_b32 s28, s28, 16"); k("s_and_b32 s29, s27, 1"); k("s_lshl_b32 s29, s29, 10"); k("s_add_u32 s28, s28, s29")
    k(f"v_add_u32 v{vD[4]}, s28, v{vL16}")
    k("s_lshl_b32 s33, s27, 10"); k(f"s_add_u32 s33, s33, {BOFF}")
    k("s_lshr_b32 s32, s25, 1"); k(f"s_mul_i32 s32, s32, {UOFF}"); k("s_and_b32 s27, s25, 1"); k("s_lshl_b32 s27, s27, 12"); k("s_add_u32 s32, s32, s27")
    k(f"{lsd}:")
    k("s_lshl_b32 s27, s23, 3"); k("s_lshl_b32 s28, s25, 1"); k("s_add_u32 s27, s27, s28"); k("s_mul_i32 s27, s27, 448")
    k("s_mul_i32 s28, s24, 14"); k("s_add_u32 s27, s27, s28"); k("s_lshl_b32 s28, s26, 3"); k("s_add_u32 s27, s27, s28")
    k("s_lshl_b32 s27, s27, 9"); k(f"s_add_u32 s34, s27, {WS_HM}"); k(f"s_add_u32 s35, s34, {448*512}")
    if WDT:
        k(f"v_add_u32 v{vT+1}, {C3 - 1}, v1"); k(f"v_lshlrev_b32 v{vT+1}, 7, v{vT+1}")
        k("s_lshl_b32 s27, s23, 7"); k(f"s_add_u32 s27, s27, {C4*128}")
        k("s_nop 0")
        k(f"v_writelane_b32 v{vT+1}, s27, 0")
        k(f"s_mov_b32 s27, {WS_CNT}")
        wait_multi(k, 27, 32, 9, vt=(vT, vT + 1))
    else:
        k("s_lshl_b32 s27, s23, 7"); k(f"s_add_u32 s27, s27, {WS_CNT + C4*128}")
        wait(k, 27, 32, vt=(vT, vT + 1), pr=A[1])
    k.stamp("p4_wait")
    def dma_act(var, slot):
        if var == "A":
            return [[f"s_add_u32 m0, s32, {slot*SLOT + n*1024}", f"buffer_load_dwordx4 v{vD[n]}, s[12:15], s31 offen{SC} lds"] for n in range(3)]
        return [[f"s_add_u32 m0, s33, {slot*SLOT}", f"buffer_load_dwordx4 v{vD[4]}, s[12:15], s31 offen{SC} lds"]]
    def dma_w(var, slot):
        if var == "A": return []
        return [[f"s_add_u32 m0, s32, {slot*SLOT + q*1024}", f"buffer_load_dwordx4 v{vD[q]}, s[8:11], s30 offen lds"] for q in range(4 if var == "B0" else 3)]
    advA = "s_add_u32 s31, s31, 2048"; advW = f"s_add_u32 s30, s30, {32*7168}"
    def stats_calc():
        o = []
        for i in (0, 2, 4, 6): o.append(f"v_add_f32 v{SV+i}, v{SV+i}, v{SV+i+1}")
        o += [f"v_add_f32 v{SV}, v{SV}, v{SV+2}", f"v_add_f32 v{SV+4}, v{SV+4}, v{SV+6}", f"v_add_f32 v{SV}, v{SV}, v{SV+4}"]
        if COA & 2:
            o += [f"v_mov_b32 v{SV+1}, v{SV}", "s_nop 1", f"v_permlane32_swap_b32 v{SV}, v{SV+1}", f"v_add_f32 v{SV}, v{SV}, v{SV+1}"]
        else:
            o += ["s_nop 1", f"v_add_f32_dpp v{SV}, v{SV}, v{SV} quad_perm:[1,0,3,2] row_mask:0xf bank_mask:0xf"]
        o += [f"v_mov_b32 v{SV+3}, 0x3a800000", f"v_mov_b32 v{SV+5}, 0x3727c5ac",
              f"v_fma_f32 v{SV+2}, v{SV}, v{SV+3}, v{SV+5}",
              f"v_rsq_f32 v{SV+4}, v{SV+2}",
              f"v_mov_b32 v{SV+3}, 0",
              f"v_mul_f32 v{SV+1}, {f2h(-KC)}, v{SV+4}",
              f"v_mul_f32 v{SV+5}, v{SV+4}, v{SV+4}",
              f"v_mul_f32 v{SV}, {f2h(0.044715)}, v{SV+1}",
              f"v_mul_f32 v{SV}, v{SV}, v{SV+5}",
              f"ds_write_b128 v{SV+9}, v[{SV}:{SV+3}]"]
        return o
    st_idx = {}
    def vstamp(nm):
        if nm in st_idx: k.stamp_at(st_idx[nm])
        else:
            st_idx[nm] = k.nst; k.stamp(nm)
    ljoin = k.lab("p4join")
    def body(var):
        nf = 4 if var == "A" else 3
        first = (var != "A") if T4 == 1 else (var == "A")
        vm = VM()
        for s in range(NS):
            for d in dma_act(var, s):
                for l in d: k(l)
                vm.issue(("D", s))
            k(advA)
        k("s_mov_b32 s28, s37")
        for i in range(8):
            if STL & 2:
                k(f"buffer_load_dword v{SV+i}, v{SV+8}, s[12:15], s28 offen offset:{1024*(i&3)}{SC}"); vm.issue("ST")
                if i == 3: k("s_add_u32 s28, s28, 4096")
                continue
            k(f"buffer_load_dword v{SV+i}, v{SV+8}, s[12:15], s28 offen{SC}"); vm.issue("ST")
            if i < 7: k("s_add_u32 s28, s28, 8192")
        def reads(buf, slot):
            base = slot >> 1; so = (slot & 1) * SLOT
            o = []
            def rA(fi, m):
                i = fi * 2 + m
                return [f"ds_read_b64_tr_b16 v[{A[buf]+4*i+2*t}:{A[buf]+4*i+2*t+1}], v{vA[base]} offset:{so + m*UOFF + t*8*224 + fi*32}" for t in range(2)]
            o += rA(0, 0)
            for j in range(4): o.append(f"ds_read_b128 v[{B[buf]+4*j}:{B[buf]+4*j+3}], v{vB[base]} offset:{so + (j>>1)*2048 + (j&1)*256}")
            for i in range(1, 2 * nf): o += rA(i >> 1, i & 1)
            return o
        k(f"s_waitcnt vmcnt({vm.cnt({('D', 0)})})")
        k("s_barrier")
        vstamp("p4_go")
        for l in reads(0, 0): k(l)
        NT = 32
        texts = []
        pf5 = {3: {28: [0], 29: [1, 2]}, 1: {28: [0]}, 0: {}}[NPF5]
        for per in range(NT // NS):
            o = []
            for t in range(per * NS, (per + 1) * NS):
                slot = t % NS; cur = t & 1; nxt = cur ^ 1
                rd = []; dm = []; ex = []
                if T4 and t > T4S and t + 1 < NT:
                    o.append("s_waitcnt lgkmcnt(0)")
                    rd = reads(nxt, (t + 1) % NS)
                elif t + 1 < NT:
                    need = {("D", t + 1)}
                    if T4 and t == T4S: need |= {("D", x) for x in range(t + 1, NT)}
                    if t == 3: need.add("ST")
                    o.append(f"s_waitcnt vmcnt({vm.cnt(need)}) lgkmcnt(0)")
                    o.append("s_barrier")
                    if T4 and t == T4S and first: o.append(f"s_setprio {T4P}")
                    rd = reads(nxt, (t + 1) % NS)
                else:
                    o.append("s_waitcnt lgkmcnt(0)")
                tail = []
                if t + NS < NT:
                    dm = dma_w(var, slot) + dma_act(var, slot)
                    vm.issue(("D", t + NS), len(dm))
                    tail = [advA, advW]
                for tl in pf5.get(t, []):
                    if tl < NS5 and not T4:
                        dm += [list(x) for x in w35_dma(vW5, SW5, tl)]
                        dm[-1].append(W5ADV)
                        vm.issue("PF5", 2)
                    elif tl < NS5 and first:
                        tail = tail + [W5ADV]
                    elif tl < NS5:
                        assert WDT or WT5
                        sg = "add" if var == "A" else "sub"
                        own = [list(x) for x in w35_dma(vW5, SW5, tl)]
                        oth = [[x[0].replace("s51", "s7"), x[1].replace("s50", "s6")] for x in w35_dma(vW5, SW5, tl)]
                        oth[0] = [f"s_{sg}_u32 s6, s50, 8192", f"s_{sg}_u32 s7, s51, 8192"] + oth[0]
                        oth[0] = [oth[0][:3], oth[0][3]]
                        oth[-1].append(W5ADV)
                        dm += own + oth
                        vm.issue("PF5", 4)
                if t == 3: ex = stats_calc()
                if t == JT4 and JIT & 8:
                    ex = jit("L_p4tail", 27, 13); vm.issue("CP")
                mf = []
                for i in range(2 * nf):
                    for j in range(4):
                        a = acc(i >> 1, i & 1, j)
                        mf.append(f"v_mfma_f32_16x16x32_bf16 v[{a}:{a+3}], v[{A[cur]+4*i}:{A[cur]+4*i+3}], v[{B[cur]+4*j}:{B[cur]+4*j+3}], v[{a}:{a+3}]")
                n = len(mf)
                gaps = [[] for _ in mf]
                for q, r in enumerate(rd): gaps[q].append(r)
                if dm:
                    stp = (n - 3) // len(dm)
                    for q, d in enumerate(dm):
                        g = 1 + stp * q
                        if isinstance(d[0], list): gaps[g] += d[0]
                        else: gaps[g].append(d[0])
                        gaps[g + 1] += d[1:]
                    gaps[n - 1] += tail
                elif tail: gaps[n - 1] += tail
                for q, l in enumerate(ex): gaps[min(4 + q, n - 1)].append(l)
                for g, mm in enumerate(mf):
                    o.append(mm); o += gaps[g]
            texts.append(o)
        periods(k, f"p4{var}", texts, 36)
        if var == "A" and JIT & 8: k("L_p4tail:")
        vstamp("p4_loop")
        ST = 16; TT = 32
        k(f"v_and_b32 v{vT}, 15, v1"); k(f"v_lshlrev_b32 v{vT}, 4, v{vT}")
        k("s_lshl_b32 s27, s25, 10"); k(f"s_add_u32 s27, s27, {STATS}"); k(f"v_add_u32 v{vT}, s27, v{vT}")
        for j in range(4): k(f"ds_read_b128 v[{ST+4*j}:{ST+4*j+3}], v{vT} offset:{256*j}")
        k("s_waitcnt vmcnt(0) lgkmcnt(0)")
        if "drain" in X4: k("s_waitcnt vmcnt(0)"); k("s_barrier")
        if "drain0" in X4: k("s_waitcnt vmcnt(0)")
        if "bar" in X4: k("s_barrier")
        if "adrain" in X4 and var == "A": k("s_waitcnt vmcnt(0)")
        if "bdrain" in X4 and var != "A": k("s_waitcnt vmcnt(0)")
        nopk = ("anopk" in X4 and var == "A") or ("bnopk" in X4 and var != "A")
        def pk(op, d, a, b, c=None, sel=None):
            if not nopk:
                x = f"v_pk_{op}_f32 v[{d}:{d+1}], v[{a}:{a+1}], v[{b}:{b+1}]"
                if c is not None: x += f", v[{c}:{c+1}] " + sel
                k(x); return
            for h in range(2):
                if c is None: k(f"v_mul_f32 v{d+h}, v{a+h}, v{b+h}")
                elif sel.startswith("op_sel:[0,0,1]"): k(f"v_fma_f32 v{d+h}, v{a+h}, v{b}, v{b+1}")
                else: k(f"v_fma_f32 v{d+h}, v{a+h}, v{b}, v{b}")
        for fi in range(nf):
            for p in range(2):
                gi = fi * 2 + p
                PK = TT + 16 + 4 * (gi & 3)
                T = TT + 8 * (gi & 1)
                prs = [(2 * p + jj, h) for jj in range(2) for h in range(2)]
                P = lambda r: f"v[{r}:{r+1}]"
                for q, (j, h) in enumerate(prs):
                    g = acc(fi, 0, j) + 2 * h
                    pk("mul", T+2*q, g, g)
                for q, (j, h) in enumerate(prs):
                    c = ST + 4 * j
                    pk("fma", T+2*q, T+2*q, c, c, "op_sel:[0,0,1] op_sel_hi:[1,0,1]")
                for q, (j, h) in enumerate(prs):
                    g = acc(fi, 0, j) + 2 * h
                    pk("mul", T+2*q, T+2*q, g)
                for q, (j, h) in enumerate(prs):
                    g = acc(fi, 0, j) + 2 * h; u = acc(fi, 1, j) + 2 * h
                    k(f"v_exp_f32 v{T+2*q}, v{T+2*q}"); k(f"v_exp_f32 v{T+2*q+1}, v{T+2*q+1}")
                    pk("mul", u, u, g)
                for q, (j, h) in enumerate(prs):
                    c = ST + 4 * j + 2
                    pk("fma", T+2*q, T+2*q, c, c, "op_sel:[0,0,0] op_sel_hi:[1,0,0]")
                for q, (j, h) in enumerate(prs):
                    k(f"v_rcp_f32 v{T+2*q}, v{T+2*q}"); k(f"v_rcp_f32 v{T+2*q+1}, v{T+2*q+1}")
                for q, (j, h) in enumerate(prs):
                    u = acc(fi, 1, j) + 2 * h
                    pk("mul", u, u, T+2*q)
                for q, (j, h) in enumerate(prs):
                    u = acc(fi, 1, j) + 2 * h
                    k(f"v_cvt_pk_bf16_f32 v{PK+q}, v{u}, v{u+1}")
                k(f"v_permlane16_swap_b32 v{PK}, v{PK+2}")
                k(f"v_permlane16_swap_b32 v{PK+1}, v{PK+3}")
                k(f"buffer_store_dwordx4 v[{PK}:{PK+3}], v{vL16}, s[12:15], s{34+p} offen offset:{1024*fi}{SC}")
        if T4 and first: k("s_setprio 0")
        vstamp("p4_epi")
        if var != "B1": k(f"s_branch {ljoin}")
    lB = k.lab("p4B"); lB1 = k.lab("p4B1")
    k("s_cmp_eq_u32 s26, 0")
    k(f"s_cbranch_scc0 {lB}")
    body("A")
    k(f"{lB}:")
    k("s_bitcmp1_b32 s25, 0")
    k(f"s_cbranch_scc1 {lB1}")
    body("B0")
    k(f"{lB1}:")
    body("B1")
    k(f"{ljoin}:")
    k("s_lshl_b32 s27, s23, 7"); k(f"s_add_u32 s27, s27, {WS_CNT + C5*128}")
    signal(k, 27, vt=(vT, vT + 1))
    k.stamp("p4_sig")

CPF = int(os.environ.get("CPF", "1")); CPFW = int(os.environ.get("CPFW", "0"))
def mk():
    k = G(NAME, nvgpr=256, accum=256, total=256)
    lend = "L_end"
    k("s_cmp_ge_u32 s2, 256")
    k(f"s_cbranch_scc1 {lend}")
    if os.environ.get("SCR"):
        k("s_and_b32 s3, s2, 7"); k("s_lshl_b32 s3, s3, 5"); k("s_lshr_b32 s2, s2, 3"); k("s_or_b32 s2, s2, s3")
    k("s_load_dwordx16 s[64:79], s[0:1], 0")
    k("s_load_dwordx4 s[80:83], s[0:1], 64")
    k("v_and_b32 v1, 63, v0")
    k("v_lshrrev_b32 v2, 6, v0")
    k("s_nop 0")
    k("v_readfirstlane_b32 s20, v2")
    k.stamp("start")
    if CPF:
        k("s_getpc_b64 s[44:45]")
        k("L_cpf_pc:")
        k("s_mov_b32 s46, L_end-L_cpf_pc")
        k("s_mov_b32 s47, 0x20000")
        if CPF == 1:
            lc = k.lab("nocpf")
            k("s_lshr_b32 s3, s2, 3"); k("s_lshl_b32 s3, s3, 11")
            k(f"s_cmp_lg_u32 s20, {CPFW}"); k(f"s_cbranch_scc1 {lc}")
            k("v_lshlrev_b32 v210, 5, v1"); k("v_add_u32 v210, s3, v210")
            k("buffer_load_dword v211, v210, s[44:47], 0 offen")
            k(f"{lc}:")
        elif CPF == 2:
            k("v_lshlrev_b32 v210, 6, v0"); k("s_mov_b32 s3, 32768")
            k("buffer_load_dword v211, v210, s[44:47], 0 offen")
            k("buffer_load_dword v212, v210, s[44:47], s3 offen")
        elif CPF == 3:
            k("s_lshr_b32 s3, s2, 3"); k("s_and_b32 s3, s3, 3"); k("s_lshl_b32 s3, s3, 14")
            k("v_lshlrev_b32 v210, 5, v0")
            k("buffer_load_dword v211, v210, s[44:47], s3 offen")
    ldone = "L_done"
    phs = [phase1, phase2, lambda k: phase35(k, "wo"), phase4, lambda k: phase35(k, "down")]
    for i, ph in enumerate(phs[:UPTO]): ph(k)
    if os.environ.get("ENDW"): k("s_waitcnt vmcnt(0)")
    k.stamp("end")
    k.stamp_out()
    k("s_waitcnt vmcnt(0)")
    k(f"{lend}:")
    k("s_endpgm")
    return k, ("mk", 256, 512, LDS_BYTES)

if __name__ == "__main__":
    import sys
    sys.path.insert(0, "gen")
    from build import header
    k, _ = mk()
    o = header()
    o.append(f"; @launch grid=(256,1,1) block=(512,1,1) lds={LDS_BYTES}")
    if STAMP: o.append("; stamps: " + " ".join(k.stnames))
    o.append('.amdgcn_target "amdgcn-amd-amdhsa--gfx950"')
    o.append('.text')
    o.append(k.text())
    o.append('.section .rodata,"a"')
    o.append(k.desc())
    open(sys.argv[1], "w").write("\n".join(o) + "\n")
    print("wrote", sys.argv[1], "instrs", sum(1 for l in k.lines if l.startswith("  ")))
```

```python
from asmlib import K, srd
from common import *
import os, struct, math
STAMP = bool(int(os.environ.get("STAMP", "0")))
UPTO = int(os.environ.get("UPTO", "5"))
NAME = "sequential_preLN__mha_block__glu_gated_geglu__prompt_kernel"
WS_TS = 0x2800000
SC = " sc1"
LDS_BYTES = 163840
pX, pWQKV, pWO, pBX, pWG, pWU, pWD, pOUT, pDBG, pWS = [64 + 2 * i for i in range(10)]
C2, C3, C4, C5 = 0, 16, 24, 32
SPIN_LIMIT = 0x40000
RAMP = int(os.environ.get("RAMP", "1"))
QKS = int(os.environ.get("QKS", "0"))
PFW = int(os.environ.get("PFW", "1")); PFI = int(os.environ.get("PFI", "0"))
JIT = int(os.environ.get("JIT", "0"))
def jit(label, sreg, vdst):
    return [f"s_mov_b32 s{sreg}, {label}-L_cb", f"buffer_load_dword v{vdst}, v252, s[80:83], s{sreg} offen"]
def f2h(x): return hex(struct.unpack('<I', struct.pack('<f', x))[0])

class G(K):
    def __init__(s, *a, **kw):
        super().__init__(*a, **kw); s.nl = 0; s.nst = 0; s.stnames = []
    def lab(s, base):
        s.nl += 1; return f"L_{base}_{s.nl}"
    def stamp(s, nm):
        if not STAMP: return
        i = s.nst; s.nst += 1; s.stnames.append(nm)
        s("s_memrealtime s[84:85]"); s("s_memtime s[86:87]"); s("s_waitcnt lgkmcnt(0)")
        s(f"v_writelane_b32 v255, s84, {i}"); s(f"v_writelane_b32 v254, s86, {i}")
    def stamp_at(s, i):
        if not STAMP: return
        s("s_memrealtime s[84:85]"); s("s_memtime s[86:87]"); s("s_waitcnt lgkmcnt(0)")
        s(f"v_writelane_b32 v255, s84, {i}"); s(f"v_writelane_b32 v254, s86, {i}")
    def stamp_out(s):
        if not STAMP: return
        s("s_lshl_b32 s84, s2, 3"); s("s_add_u32 s84, s84, s20"); s("s_lshl_b32 s84, s84, 9")
        s(f"s_add_u32 s84, s84, {WS_TS}")
        s("v_lshlrev_b32 v253, 2, v1")
        s("buffer_store_dword v255, v253, s[12:15], s84 offen")
        s("buffer_store_dword v254, v253, s[12:15], s84 offen offset:256")
        s("s_waitcnt vmcnt(0)")

class VM:
    def __init__(s): s.q = []; s.c = []
    def issue(s, tag, n=1, certain=True): s.q += [tag] * n; s.c += [certain] * n
    def cnt(s, tags):
        last = -1
        for i, t in enumerate(s.q):
            if t in tags: last = i
        return sum(1 for c in s.c[last + 1:] if c) if last >= 0 else None

def periods(k, name, texts, cnt_sgpr):
    i = 0; n = len(texts)
    while i < n:
        j = i
        while j + 1 < n and texts[j + 1] == texts[i]: j += 1
        rep = j - i + 1
        if rep > 1:
            l = k.lab(name)
            k(f"s_mov_b32 s{cnt_sgpr}, 0")
            k(f"{l}:")
            for x in texts[i]: k(x)
            k(f"s_add_u32 s{cnt_sgpr}, s{cnt_sgpr}, 1")
            k(f"s_cmp_lt_u32 s{cnt_sgpr}, {rep}")
            k(f"s_cbranch_scc1 {l}")
        else:
            for x in texts[i]: k(x)
        i = j + 1

def signal(k, sline, vt=(14, 15)):
    k("s_waitcnt vmcnt(0)")
    k("s_barrier")
    l = k.lab("nosig")
    k("s_cmp_lg_u32 s20, 0"); k(f"s_cbranch_scc1 {l}")
    k("s_mov_b64 exec, 1")
    k(f"v_mov_b32 v{vt[0]}, 1"); k(f"v_mov_b32 v{vt[1]}, 0")
    k(f"buffer_atomic_add v{vt[0]}, v{vt[1]}, s[12:15], s{sline} offen sc1")
    k("s_mov_b64 exec, -1")
    k(f"{l}:")

PD = int(os.environ.get("PD", "1")); PSL = int(os.environ.get("PSL", "6"))
def wait(k, sline, target, vt=(14, 15), pr=None):
    done = k.lab("wdone"); spin = k.lab("wspin")
    k("s_cmp_lg_u32 s20, 0"); k(f"s_cbranch_scc1 {done}")
    k(f"v_mov_b32 v{vt[1]}, 0")
    k("s_mov_b32 s28, 0")
    if PD == 1 or pr is None:
        k(f"{spin}:")
        k(f"buffer_load_dword v{vt[0]}, v{vt[1]}, s[12:15], s{sline} offen sc1")
        k("s_add_u32 s28, s28, 1")
        k("s_waitcnt vmcnt(0)")
        k(f"v_readfirstlane_b32 s29, v{vt[0]}")
        k(f"s_cmp_eq_u32 s29, {target}"); k(f"s_cbranch_scc1 {done}")
        k(f"s_cmp_gt_u32 s28, {SPIN_LIMIT}"); k(f"s_cbranch_scc1 {done}")
        k("s_sleep 1")
        k(f"s_branch {spin}")
    else:
        ld = lambda i: k(f"buffer_load_dword v{pr+i}, v{vt[1]}, s[12:15], s{sline} offen sc1")
        for i in range(PD):
            ld(i)
            if i < PD - 1: k(f"s_sleep {PSL}")
        k(f"{spin}:")
        for i in range(PD):
            k(f"s_waitcnt vmcnt({PD-1})")
            k(f"v_readfirstlane_b32 s29, v{pr+i}")
            k(f"s_cmp_eq_u32 s29, {target}"); k(f"s_cbranch_scc1 {done}")
            ld(i)
        k("s_add_u32 s28, s28, 1")
        k(f"s_cmp_gt_u32 s28, {SPIN_LIMIT}"); k(f"s_cbranch_scc0 {spin}")
    k(f"{done}:")
    k("s_barrier")

def wait_multi(k, sline, target, n, vt):
    done = k.lab("wdone"); spin = k.lab("wspin"); dx = k.lab("wdx")
    k("s_cmp_lg_u32 s20, 0"); k(f"s_cbranch_scc1 {done}")
    k(f"s_mov_b64 exec, {hex((1 << n) - 1)}")
    k("s_mov_b32 s28, 0")
    k(f"{spin}:")
    k(f"buffer_load_dword v{vt[0]}, v{vt[1]}, s[12:15], s{sline} offen sc1")
    k("s_add_u32 s28, s28, 1")
    k("s_waitcnt vmcnt(0)")
    k(f"v_cmp_ne_u32 vcc, {target}, v{vt[0]}")
    k("s_cmp_eq_u64 vcc, 0"); k(f"s_cbranch_scc1 {dx}")
    k(f"s_cmp_gt_u32 s28, {SPIN_LIMIT}"); k(f"s_cbranch_scc1 {dx}")
    k("s_sleep 1")
    k(f"s_branch {spin}")
    k(f"{dx}:")
    k("s_mov_b64 exec, -1")
    k(f"{done}:")
    k("s_barrier")

def wdma_lane(k, vdst, rowbytes, t):
    k(f"v_lshrrev_b32 v{t}, 3, v1"); k(f"v_and_b32 v{t+1}, 7, v1")
    k(f"v_lshrrev_b32 v{t+2}, 2, v{t}"); k(f"v_and_b32 v{t+3}, 3, v{t}")
    k(f"v_lshl_add_u32 v{t+2}, v{t+2}, 3, v{t+3}")
    k(f"v_mul_u32_u24 v{t+2}, {rowbytes}, v{t+2}")
    k(f"v_lshrrev_b32 v{t+3}, 1, v{t+1}"); k(f"v_lshrrev_b32 v{t}, 1, v{t}")
    k(f"v_xor_b32 v{t+3}, v{t+3}, v{t}")
    k(f"v_and_b32 v{t+1}, 1, v{t+1}")
    k(f"v_lshl_add_u32 v{t+3}, v{t+3}, 1, v{t+1}")
    k(f"v_lshl_add_u32 v{vdst}, v{t+3}, 4, v{t+2}")

STL = int(os.environ.get("STL", "0"))
ESIG = int(os.environ.get("ESIG", "0"))
COA = int(os.environ.get("COA", "15"))
HOIST = int(os.environ.get("HOIST", "0")); TST = int(os.environ.get("TST", "0"))
def hoisted_tail(k, o, step, vm, R):
    PL, RMR, ONE, vP, vZ, vL16, SQ, CQ, QS, VS, vVO = [R[x] for x in ("PL", "RMR", "ONE", "vP", "vZ", "vL16", "SQ", "CQ", "QS", "VS", "vVO")]
    r0, r1 = 198, 199
    vSt = 200; vCs = 201; vTok = 203; vG = 202
    v17, v18, v19 = 209, 212, 204
    v20 = [205, 206, 207, 208]; v23 = [v17, 213, 214, 215]
    tA, tB = 216, 218
    ad = []
    ad += [f"v_lshrrev_b32 v{vSt}, 2, v0", f"v_lshlrev_b32 v{vSt}, 2, v{vSt}"]
    ad += [f"v_min_u32 v{vCs}, 191, v0", f"v_lshlrev_b32 v{vCs}, 2, v{vCs}"]
    ad += [f"v_and_b32 v{vTok}, 15, v1", "s_lshl_b32 s27, s25, 8", "s_lshl_b32 s28, s26, 6", "s_add_u32 s28, s28, s27",
           f"v_lshlrev_b32 v{tA}, 2, v{vTok}", f"v_add_u32 v{v17}, s28, v{tA}", f"v_lshrrev_b32 v{vG}, 4, v1", f"v_lshlrev_b32 v{v19}, 4, v{vG}",
           f"v_add_u32 v{v20[0]}, s28, v{v19}", "s_lshl_b32 s29, s26, 6", "s_add_u32 s29, s29, 1024",
           f"v_add_u32 v{v19}, s29, v{v19}", f"v_add_u32 v{v18}, s29, v{tA}"]
    for jj in range(1, 4):
        ad += [f"v_xor_b32 v{v20[jj]}, {jj<<6}, v{v20[0]}", f"v_xor_b32 v{v23[jj]}, {jj<<6}, v{v17}"]
    ad += ["s_lshl_b32 s27, s23, 2", "s_lshl_b32 s28, s25, 1", "s_add_u32 s27, s27, s28", "s_lshl_b32 s27, s27, 16",
           "s_lshl_b32 s28, s24, 12", "s_add_u32 s27, s27, s28", "s_lshl_b32 s28, s26, 10", "s_add_u32 s27, s27, s28",
           "s_lshr_b32 s42, s26, 1", "s_lshl_b32 s28, s42, 16", "s_add_u32 s35, s27, s28", "s_xor_b32 s28, s28, 0x10000", "s_add_u32 s37, s27, s28",
           f"s_add_u32 s36, s35, {WS_K}", f"s_add_u32 s38, s37, {WS_K}", f"s_add_u32 s35, s35, {WS_Q}", f"s_add_u32 s37, s37, {WS_Q}",
           "s_lshl_b32 s27, s24, 1", "s_add_u32 s27, s27, s42", "s_lshl_b32 s27, s27, 7",
           "s_lshl_b32 s28, s23, 3", "s_add_u32 s27, s27, s28", "s_lshl_b32 s28, s25, 2", "s_add_u32 s27, s27, s28", "s_lshl_b32 s27, s27, 10",
           "s_and_b32 s43, s26, 1", "s_lshl_b32 s28, s43, 8", "s_add_u32 s27, s27, s28", f"s_add_u32 s27, s27, {WS_VT}",
           "s_lshl_b32 s28, s42, 11", "s_add_u32 s39, s27, s28", "s_xor_b32 s28, s28, 2048", "s_add_u32 s40, s27, s28",
           f"v_lshrrev_b32 v{tA}, 5, v1", f"v_xor_b32 v{tA}, s43, v{tA}", f"v_lshlrev_b32 v{tA}, 10, v{tA}",
           f"v_bfe_u32 v{tB}, v1, 4, 1", f"v_lshl_add_u32 v{tA}, v{tB}, 9, v{tA}", f"v_lshl_add_u32 v{vVO}, v{vTok}, 4, v{tA}",
           "s_lshl_b32 s28, s43, 8", f"v_xor_b32 v{vL16}, s28, v{vL16}", "s_mov_b32 s44, 0x3e8293ee"]
    assert not QKS
    h = len(ad) // 2
    HV = int(os.environ.get("HV", "8")); HP = int(os.environ.get("HP", "11"))
    assert 8 <= HV < HP <= 13
    def chk(o_):
        rdy = k.lab("p1rdy"); spin = k.lab("p1spin")
        k(f"s_waitcnt vmcnt({vm.cnt({'VP', 'RMR'})})")
        k(f"v_cmp_eq_u32 vcc, 128, v{vP}")
        k("s_cmp_eq_u64 vcc, -1")
        k(f"s_cbranch_scc1 {rdy}")
        k("s_mov_b32 s28, 0")
        k(f"{spin}:")
        k("s_add_u32 s28, s28, 1")
        k(f"s_cmp_gt_u32 s28, {SPIN_LIMIT}")
        k(f"s_cbranch_scc1 {rdy}")
        k("s_sleep 2")
        k(f"buffer_load_dword v{vP}, v196, s[60:63], 0 offen sc1")
        k("s_waitcnt vmcnt(0)")
        k(f"v_cmp_eq_u32 vcc, 128, v{vP}")
        k("s_cmp_eq_u64 vcc, -1")
        k(f"s_cbranch_scc0 {spin}")
        k(f"{rdy}:")
    ld = []
    ld.append([f"v_and_b32 v{r0}, 3, v0", f"v_lshlrev_b32 v{r0}, 16, v{r0}", f"v_lshrrev_b32 v{r1}, 2, v0", f"v_lshl_add_u32 v{tB}, v{r1}, 3, v{r0}",
               "s_lshl_b32 s27, s23, 10", f"s_add_u32 s27, s27, {WS_ST1}"])
    for i in range(4):
        ld.append([f"buffer_load_dwordx2 v[{PL+2*i}:{PL+2*i+1}], v{tB}, s[12:15], s27 offen{SC}"] + (["s_add_u32 s27, s27, 16384"] if i < 3 else []))
    ld.append([f"s_mul_i32 s27, s24, {16*768}", f"s_add_u32 s27, s27, {WS_CS1}"])
    for i in range(16):
        ld.append([f"buffer_load_dword v{PL+8+i}, v{vCs}, s[12:15], s27 offen offset:{(i % 4) * 768}{SC}"] + ([f"s_add_u32 s27, s27, {4*768}"] if i % 4 == 3 and i < 15 else []))
    adq = [ad[:h], ad[h:]]
    for t in range(8, 14):
        if t == HV:
            k(f"buffer_load_dword v{vP}, v196, s[60:63], 0 offen sc1"); vm.issue("VP")
            k("s_lshl_b32 s27, s2, 13")
            k(f"buffer_load_dwordx4 v[{RMR}:{RMR+3}], v197, s[88:91], s27 offen"); vm.issue("RMR")
        if t == 12 and JIT & 1:
            for l in jit("L_p1tail", 27, 211): k(l)
            vm.issue("CP")
        if t == HP:
            step(o, t, 0, pre=chk, inj=ld, inj0=0)
            vm.issue("PART", 20)
        else:
            step(o, t, 0, inj=adq.pop(0) if adq and t >= HV else None, inj0=0)
        if TST and t == HP: k.stamp(f"t{t}_0")
        if t < 13: step(o, t, 1, inj=adq.pop(0) if adq and t >= HV else None, inj0=0)
        if TST and t < 13: k.stamp(f"t{t}")
    assert not adq
    rs = [f"v_mov_b32 v{r0}, 0"] + [f"v_dot2c_f32_bf16 v{r0}, v{RMR+r}, v{ONE}" for r in range(4)]
    rs += [f"v_add_f32_dpp v{r0}, v{r0}, v{r0} row_ror:{ro} row_mask:0xf bank_mask:0xf" for ro in (8, 4, 2, 1)]
    for sw in ("v_permlane16_swap_b32", "v_permlane32_swap_b32"):
        rs += [f"v_mov_b32 v{r1}, v{r0}", f"{sw} v{r0}, v{r1}", f"v_add_f32 v{r0}, v{r0}, v{r1}"]
    rs += ["s_lshl_b32 s27, s20, 2", "s_add_u32 s27, s27, 2048", f"v_mov_b32 v{r1}, s27", f"ds_write_b32 v{r1}, v{r0}"]
    step(o, 13, 1, inj=rs, inj0=0)
    if TST: k.stamp("t13")
    st = [f"v_add_f32 v{PL}, v{PL}, v{PL+2}", f"v_add_f32 v{PL+1}, v{PL+1}, v{PL+3}", f"v_add_f32 v{PL+4}, v{PL+4}, v{PL+6}", f"v_add_f32 v{PL+5}, v{PL+5}, v{PL+7}",
          f"v_add_f32 v{PL}, v{PL}, v{PL+4}", f"v_add_f32 v{PL+1}, v{PL+1}, v{PL+5}"]
    cs = [f"v_add_f32 v{PL+8+i}, v{PL+8+i}, v{PL+8+i+w}" for w in (8, 4, 2, 1) for i in range(w)]
    lm = k.lab("nomx")
    ch = []
    for qp in ("[1,0,3,2]", "[2,3,0,1]"):
        ch += [f"v_add_f32_dpp v{PL}, v{PL}, v{PL} quad_perm:{qp} row_mask:0xf bank_mask:0xf",
               f"v_add_f32_dpp v{PL+1}, v{PL+1}, v{PL+1} quad_perm:{qp} row_mask:0xf bank_mask:0xf"]
    ch += [f"v_mul_f32 v{PL}, 0x3a800000, v{PL}", f"v_mul_f32 v{PL+1}, 0x3a800000, v{PL+1}",
           ["s_cmp_lg_u32 s24, 0", f"s_cbranch_scc1 {lm}", "s_lshl_b32 s27, s23, 9", f"s_add_u32 s27, s27, {WS_MX}",
            f"buffer_store_dword v{PL}, v{vSt}, s[12:15], s27 offen{SC}", f"{lm}:"],
           f"v_fma_f32 v{PL+1}, -v{PL}, v{PL}, v{PL+1}", f"v_max_f32 v{PL+1}, 0, v{PL+1}", f"v_add_f32 v{PL+1}, 0x3727c5ac, v{PL+1}",
           f"v_rsq_f32 v{PL+1}, v{PL+1}", f"v_mul_f32 v{PL+2}, v{PL}, v{PL+1}", f"v_sub_f32 v{PL+2}, 0, v{PL+2}",
           f"ds_write_b32 v{vSt}, v{PL+1}", f"ds_write_b32 v{vSt}, v{PL+2} offset:512"]
    mix = list(st)
    ci = 0
    for x in ch:
        mix.append(x)
        if ci < len(cs): mix.append(cs[ci]); ci += 1
    mix += cs[ci:]
    mix.append(f"ds_write_b32 v{vCs}, v{PL+8} offset:1024")
    def wpart(o_): k(f"s_waitcnt vmcnt({vm.cnt({'PART'})})")
    step(o, 14, 0, pre=wpart, inj=mix, inj0=0)
    if TST: k.stamp("t14_0")
    vm.issue("MX", 1, certain=False)
    rd = [f"ds_read2_b32 v[{SQ+2*jj}:{SQ+2*jj+1}], v{v23[jj]} offset0:0 offset1:128" for jj in range(4)]
    rd += [f"ds_read_b128 v[{CQ}:{CQ+3}], v{v19}", f"ds_read_b128 v[{CQ+4}:{CQ+7}], v{v19} offset:256", f"ds_read_b32 v152, v{v18} offset:512"]
    for jj in range(4):
        rd += [f"ds_read_b128 v[{VS[jj]}:{VS[jj]+3}], v{v20[jj]}", f"ds_read_b128 v[{VS[jj]+4}:{VS[jj]+7}], v{v20[jj]} offset:512"]
    RW = 56
    rd += [f"ds_read_b128 v[{RW}:{RW+3}], v{vZ} offset:2048", f"ds_read_b128 v[{RW+4}:{RW+7}], v{vZ} offset:2064"]
    step(o, 14, 1, inj=rd, inj0=4)
    if TST: k.stamp("t14")
    q = []
    for jj in range(4):
        q += [f"v_mul_f32 v{QS+2*jj}, s44, v{SQ+2*jj}", f"v_mul_f32 v{QS+2*jj+1}, s44, v{SQ+2*jj+1}"]
    l7 = k.lab("norm")
    b7 = ["s_cmp_lg_u32 s20, 7", f"s_cbranch_scc1 {l7}"]
    for r in range(4):
        b7 += [f"v_add_f32 v{RW+2*r}, v{RW+2*r}, v{RW+2*r+1}"]
    for r in range(4):
        b7 += [f"v_mul_f32 v{RW+2*r}, 0x3a800000, v{RW+2*r}"]
    b7 += [f"v_cvt_pk_bf16_f32 v{r0}, v{RW}, v{RW+2}", f"v_cvt_pk_bf16_f32 v{r1}, v{RW+4}, v{RW+6}",
           "s_lshl_b32 s27, s2, 3", f"s_add_u32 s27, s27, {WS_RM}", "s_mov_b64 exec, 1",
           f"buffer_store_dwordx2 v[{r0}:{r1}], v{vZ}, s[12:15], s27 offen{SC}", "s_mov_b64 exec, -1", f"{l7}:"]
    step(o, 15, 0, inj=q + [b7], inj0=0)
    step(o, 15, 1)
    if JIT & 1: k("L_p1tail:")
    k.stamp("p1_loop")

def hoist_ad(R):
    vL16, vVO = R["vL16"], R["vVO"]
    vSt = 200; vCs = 201; vTok = 203; vG = 202
    v17, v18, v19 = 209, 212, 204
    v20 = [205, 206, 207, 208]; v23 = [v17, 213, 214, 215]
    tA, tB, vSa, vCg = 216, 198, 218, 219
    ad = []
    ad += [f"v_lshrrev_b32 v{vSt}, 2, v0", f"v_and_b32 v{tB}, 3, v0", f"v_min_u32 v{vCs}, 95, v{vSt}", f"v_lshlrev_b32 v{vCs}, 3, v{vCs}",
           f"v_mul_u32_u24 v{vCg}, 3072, v{tB}", f"v_add_u32 v{vCg}, v{vCg}, v{vCs}",
           f"v_lshlrev_b32 v{tB}, {12 if STL & 1 else 16}, v{tB}", f"v_lshl_add_u32 v{vSa}, v{vSt}, 3, v{tB}", f"v_lshlrev_b32 v{vSt}, 2, v{vSt}"]
    ad += [f"v_and_b32 v{vTok}, 15, v1", "s_lshl_b32 s27, s25, 8", "s_lshl_b32 s28, s26, 6", "s_add_u32 s28, s28, s27",
           f"v_lshlrev_b32 v{tA}, 2, v{vTok}", f"v_add_u32 v{v17}, s28, v{tA}", f"v_lshrrev_b32 v{vG}, 4, v1", f"v_lshlrev_b32 v{v19}, 4, v{vG}",
           f"v_add_u32 v{v20[0]}, s28, v{v19}", "s_lshl_b32 s29, s26, 6", "s_add_u32 s29, s29, 1024",
           f"v_add_u32 v{v19}, s29, v{v19}", f"v_add_u32 v{v18}, s29, v{tA}"]
    for jj in range(1, 4):
        ad += [f"v_xor_b32 v{v20[jj]}, {jj<<6}, v{v20[0]}", f"v_xor_b32 v{v23[jj]}, {jj<<6}, v{v17}"]
    ad += ["s_lshl_b32 s27, s23, 2", "s_lshl_b32 s28, s25, 1", "s_add_u32 s27, s27, s28", "s_lshl_b32 s27, s27, 16",
           "s_lshl_b32 s28, s24, 12", "s_add_u32 s27, s27, s28", "s_lshl_b32 s28, s26, 10", "s_add_u32 s27, s27, s28",
           "s_lshr_b32 s42, s26, 1", "s_lshl_b32 s28, s42, 16", "s_add_u32 s35, s27, s28", "s_xor_b32 s28, s28, 0x10000", "s_add_u32 s37, s27, s28",
           f"s_add_u32 s36, s35, {WS_K}", f"s_add_u32 s38, s37, {WS_K}", f"s_add_u32 s35, s35, {WS_Q}", f"s_add_u32 s37, s37, {WS_Q}",
           "s_lshl_b32 s27, s24, 1", "s_add_u32 s27, s27, s42", "s_lshl_b32 s27, s27, 7",
           "s_lshl_b32 s28, s23, 3", "s_add_u32 s27, s27, s28", "s_lshl_b32 s28, s25, 2", "s_add_u32 s27, s27, s28", "s_lshl_b32 s27, s27, 10",
           "s_and_b32 s43, s26, 1", "s_lshl_b32 s28, s43, 8", "s_add_u32 s27, s27, s28", f"s_add_u32 s27, s27, {WS_VT}",
           "s_lshl_b32 s28, s42, 11", "s_add_u32 s39, s27, s28", "s_xor_b32 s28, s28, 2048", "s_add_u32 s40, s27, s28",
           f"v_lshrrev_b32 v{tA}, 5, v1", f"v_xor_b32 v{tA}, s43, v{tA}", f"v_lshlrev_b32 v{tA}, 10, v{tA}",
           f"v_bfe_u32 v{tB}, v1, 4, 1", f"v_lshl_add_u32 v{tA}, v{tB}, 9, v{tA}", f"v_lshl_add_u32 v{vVO}, v{vTok}, 4, v{tA}",
           "s_lshl_b32 s28, s43, 8", f"v_xor_b32 v{vL16}, s28, v{vL16}", "s_mov_b32 s44, 0x3e8293ee",
           f"s_lshl_b32 s41, s23, {14 if STL & 1 else 10}", f"s_add_u32 s41, s41, {WS_ST1}", f"s_mul_i32 s45, s24, {16*768}", f"s_add_u32 s45, s45, {WS_CS1}"]
    return ad

def hoisted_tail2(k, o, step, vm, R):
    PL, RMR, ONE, vP, vZ, vL16, SQ, CQ, QS, VS, vVO = [R[x] for x in ("PL", "RMR", "ONE", "vP", "vZ", "vL16", "SQ", "CQ", "QS", "VS", "vVO")]
    r0, r1 = 198, 199
    vSt = 200; vCs = 201
    v17, v18, v19 = 209, 212, 204
    v20 = [205, 206, 207, 208]; v23 = [v17, 213, 214, 215]
    vSa, vCg = 218, 219
    HV = int(os.environ.get("HV", "9")); HP = int(os.environ.get("HP", "11")); HC = HP + 1
    assert 8 <= HV < HP <= 11
    st_ = lambda nm: k.stamp(nm) if TST else None
    def chk(o_):
        rdy = k.lab("p1rdy"); spin = k.lab("p1spin")
        k(f"s_waitcnt vmcnt({vm.cnt({'VP'})})")
        k(f"v_cmp_eq_u32 vcc, 128, v{vP}")
        k("s_cmp_eq_u64 vcc, -1")
        k(f"s_cbranch_scc1 {rdy}")
        k("s_mov_b32 s28, 0")
        k(f"{spin}:")
        k("s_add_u32 s28, s28, 1")
        k(f"s_cmp_gt_u32 s28, {SPIN_LIMIT}")
        k(f"s_cbranch_scc1 {rdy}")
        k("s_sleep 2")
        k(f"buffer_load_dword v{vP}, v196, s[60:63], 0 offen sc1")
        k("s_waitcnt vmcnt(0)")
        k(f"v_cmp_eq_u32 vcc, 128, v{vP}")
        k("s_cmp_eq_u64 vcc, -1")
        k(f"s_cbranch_scc0 {spin}")
        k(f"{rdy}:")
    vp = [f"buffer_load_dword v{vP}, v196, s[60:63], 0 offen sc1", "s_lshl_b32 s27, s2, 13",
          f"buffer_load_dwordx4 v[{RMR}:{RMR+3}], v197, s[88:91], s27 offen"]
    la = []
    for i in range(4):
        if STL & 1: la.append(f"buffer_load_dwordx2 v[{PL+2*i}:{PL+2*i+1}], v{vSa}, s[12:15], s41 offen offset:{1024*i}{SC}")
        else: la.append([f"buffer_load_dwordx2 v[{PL+2*i}:{PL+2*i+1}], v{vSa}, s[12:15], s41 offen{SC}"] + (["s_add_u32 s41, s41, 16384"] if i < 3 else []))
    lb = [f"buffer_load_dwordx2 v[{PL+8+2*i}:{PL+8+2*i+1}], v{vCg}, s[12:15], s45 offen offset:{768*i}{SC}" for i in range(4)]
    rs = [f"v_mov_b32 v{r0}, 0"] + [f"v_dot2c_f32_bf16 v{r0}, v{RMR+r}, v{ONE}" for r in range(4)]
    rs += [f"v_add_f32_dpp v{r0}, v{r0}, v{r0} row_ror:{ro} row_mask:0xf bank_mask:0xf" for ro in (8, 4, 2, 1)]
    for sw in ("v_permlane16_swap_b32", "v_permlane32_swap_b32"):
        rs += [f"v_mov_b32 v{r1}, v{r0}", f"{sw} v{r0}, v{r1}", f"v_add_f32 v{r0}, v{r0}, v{r1}"]
    rs += ["s_lshl_b32 s27, s20, 2", "s_add_u32 s27, s27, 2048", f"v_mov_b32 v{r1}, s27", f"ds_write_b32 v{r1}, v{r0}"]
    def red(b):
        x = [f"v_add_f32 v{b}, v{b}, v{b+2}", f"v_add_f32 v{b+1}, v{b+1}, v{b+3}", f"v_add_f32 v{b+4}, v{b+4}, v{b+6}", f"v_add_f32 v{b+5}, v{b+5}, v{b+7}",
             f"v_add_f32 v{b}, v{b}, v{b+4}", f"v_add_f32 v{b+1}, v{b+1}, v{b+5}"]
        for qp in ("[1,0,3,2]", "[2,3,0,1]"):
            x += [f"v_add_f32_dpp v{b}, v{b}, v{b} quad_perm:{qp} row_mask:0xf bank_mask:0xf",
                  f"v_add_f32_dpp v{b+1}, v{b+1}, v{b+1} quad_perm:{qp} row_mask:0xf bank_mask:0xf"]
        return x
    sa = red(PL) + [f"v_mul_f32 v{PL}, 0x3a800000, v{PL}", f"v_mul_f32 v{PL+1}, 0x3a800000, v{PL+1}",
          f"v_fma_f32 v{PL+1}, -v{PL}, v{PL}, v{PL+1}", f"v_max_f32 v{PL+1}, 0, v{PL+1}", f"v_add_f32 v{PL+1}, 0x3727c5ac, v{PL+1}",
          f"v_rsq_f32 v{PL+1}, v{PL+1}", f"v_mul_f32 v{PL+2}, v{PL}, v{PL+1}", f"v_sub_f32 v{PL+2}, 0, v{PL+2}",
          f"ds_write_b32 v{vSt}, v{PL+1}", f"ds_write_b32 v{vSt}, v{PL+2} offset:512"]
    lm = k.lab("nomx")
    sb = red(PL + 8) + [f"ds_write_b64 v{vCs}, v[{PL+8}:{PL+9}] offset:1024",
          ["s_cmp_lg_u32 s24, 0", f"s_cbranch_scc1 {lm}", "s_lshl_b32 s27, s23, 9", f"s_add_u32 s27, s27, {WS_MX}",
           f"buffer_store_dword v{PL}, v{vSt}, s[12:15], s27 offen{SC}", f"{lm}:"]]
    for t in range(8, 13):
        if t == HV:
            step(o, t, 0, inj=vp, inj0=2); vm.issue("VP"); vm.issue("RMR")
        elif t == HP:
            step(o, t, 0, pre=chk, inj=la, inj0=1); vm.issue("PA", 4)
        elif t == HC:
            step(o, t, 0, inj=lb, inj0=1); vm.issue("PB", 4)
        else:
            step(o, t, 0)
        st_(f"t{t}_0")
        step(o, t, 1)
        st_(f"t{t}")
    step(o, 13, 0, inj=rs, inj0=0)
    st_("t13_0")
    step(o, 13, 1, extra_need=("PA", "RMR"), inj=sa, inj0=0)
    st_("t13")
    def wpb(o_): k(f"s_waitcnt vmcnt({vm.cnt({'PB'})})")
    step(o, 14, 0, pre=wpb, inj=sb, inj0=0)
    vm.issue("MX", 1, certain=False)
    st_("t14_0")
    RW = 56
    rd = [f"ds_read2_b32 v[{SQ+2*jj}:{SQ+2*jj+1}], v{v23[jj]} offset0:0 offset1:128" for jj in range(4)]
    rd += [f"ds_read_b128 v[{RW}:{RW+3}], v{vZ} offset:2048", f"ds_read_b128 v[{RW+4}:{RW+7}], v{vZ} offset:2064"]
    step(o, 14, 1, inj=rd, inj0=6)
    st_("t14")
    q = []
    for jj in range(4):
        q += [f"v_mul_f32 v{QS+2*jj}, s44, v{SQ+2*jj}", f"v_mul_f32 v{QS+2*jj+1}, s44, v{SQ+2*jj+1}"]
    l7 = k.lab("norm")
    b7 = ["s_cmp_lg_u32 s20, 7", f"s_cbranch_scc1 {l7}"]
    for r in range(4):
        b7 += [f"v_add_f32 v{RW+2*r}, v{RW+2*r}, v{RW+2*r+1}"]
    for r in range(4):
        b7 += [f"v_mul_f32 v{RW+2*r}, 0x3a800000, v{RW+2*r}"]
    b7 += [f"v_cvt_pk_bf16_f32 v{r0}, v{RW}, v{RW+2}", f"v_cvt_pk_bf16_f32 v{r1}, v{RW+4}, v{RW+6}",
           "s_lshl_b32 s27, s2, 3", f"s_add_u32 s27, s27, {WS_RM}", "s_mov_b64 exec, 1",
           f"buffer_store_dwordx2 v[{r0}:{r1}], v{vZ}, s[12:15], s27 offen{SC}", "s_mov_b64 exec, -1", f"{l7}:"]
    cq = [f"ds_read_b128 v[{CQ}:{CQ+3}], v{v19}", f"ds_read_b128 v[{CQ+4}:{CQ+7}], v{v19} offset:256"]
    step(o, 15, 0, inj=q + cq + [b7], inj0=0)
    st_("t15_0")
    vr = [f"ds_read_b32 v152, v{v18} offset:512"]
    for jj in range(4):
        vr += [f"ds_read_b128 v[{VS[jj]}:{VS[jj]+3}], v{v20[jj]}", f"ds_read_b128 v[{VS[jj]+4}:{VS[jj]+7}], v{v20[jj]} offset:512"]
    step(o, 15, 1, inj=vr, inj0=0)
    k.stamp("p1_loop")

def phase1(k):
    NS = 4; SLOT = 40960; BOFF = 24576
    ACC = 64
    vA = [2, 3]; vW = [10, 11, 12]; vX = [13, 4]; vL16 = 5; vZ = 6; vP = 7
    A = [16, 28]; B = [40, 112]
    VB = 128; DC = 144; D1 = 156; D2 = 160; ONE = 164; PL = 168
    RMR = 192
    acc = lambda m, j: ACC + (m * 4 + j) * 4
    k("s_and_b32 s21, s2, 7"); k("s_lshr_b32 s22, s2, 3")
    k("s_and_b32 s23, s21, 1"); k("s_lshl_b32 s23, s23, 3"); k("s_and_b32 s24, s22, 7"); k("s_add_u32 s23, s23, s24")
    k("s_lshr_b32 s24, s21, 1"); k("s_lshl_b32 s24, s24, 2"); k("s_lshr_b32 s25, s22, 3"); k("s_add_u32 s24, s24, s25")
    k("s_and_b32 s25, s20, 1")
    k("s_lshr_b32 s26, s20, 1")
    wdma_lane(k, vW[0], 6144, 14)
    if QKS:
        for m in (1, 2):
            k(f"s_add_u32 s27, s24, {m*QKS}"); k("s_and_b32 s27, s27, 15"); k("s_sub_u32 s27, s27, s24")
            k("s_lshl_b32 s27, s27, 7"); k(f"s_add_u32 s27, s27, {2048*m}")
            k(f"v_add_u32 v{vW[m]}, s27, v{vW[0]}")
    else:
        k(f"v_add_u32 v{vW[1]}, 2048, v{vW[0]}")
        k(f"v_add_u32 v{vW[2]}, 4096, v{vW[0]}")
    k("v_lshrrev_b32 v14, 3, v1"); k("v_and_b32 v15, 7, v1")
    k("v_lshrrev_b32 v17, 4, v1")
    k("v_xor_b32 v17, v17, v15")
    k("v_lshlrev_b32 v17, 4, v17")
    k(f"v_lshl_add_u32 v{vX[0]}, v14, 11, v17")
    k(f"v_xor_b32 v{vX[1]}, 64, v{vX[0]}")
    k(f"v_add_u32 v{vX[1]}, {16384 - 1024}, v{vX[1]}")
    k(f"v_lshlrev_b32 v{vL16}, 4, v1")
    k("s_lshr_b32 s27, s20, 2"); k("s_lshl_b32 s27, s27, 5")
    k("s_bfe_u32 s28, s20, 0x10001"); k("s_lshl_b32 s28, s28, 4"); k("s_add_u32 s27, s27, s28")
    k("s_lshl_b32 s28, s25, 2"); k("s_add_u32 s27, s27, s28")
    k("s_mul_i32 s48, s27, 6144"); k("s_lshl_b32 s28, s24, 7"); k("s_add_u32 s48, s48, s28")
    k(f"s_add_u32 s46, s48, {16*64*6144}")
    k("s_lshl_b32 s49, s23, 3"); k("s_add_u32 s49, s49, s20"); k("s_lshl_b32 s49, s49, 15")
    k("s_add_u32 s27, s23, s24"); k("s_and_b32 s27, s27, 15")
    k(f"s_mul_i32 s28, s27, {64*6144}"); k("s_add_u32 s30, s48, s28")
    k("s_lshl_b32 s28, s27, 7"); k("s_add_u32 s31, s49, s28")
    k("s_lshl_b32 s32, s20, 10")
    k("s_lshl_b32 s33, s20, 11"); k(f"s_add_u32 s33, s33, {BOFF}")
    k.stamp("p1_pre")
    k("s_waitcnt lgkmcnt(0)")
    k.stamp("p1_ka")
    srd(k, 8, pWQKV, D * 3 * D * 2)
    srd(k, 12, pWS, WS_SIZE)
    srd(k, 16, pX, MB4)
    def dma(slot):
        o = []
        for m in range(3):
            o.append([f"s_add_u32 m0, s32, {slot*SLOT + m*8192}", f"buffer_load_dwordx4 v{vW[m]}, s[8:11], s30 offen lds"])
        o.append([f"s_add_u32 m0, s33, {slot*SLOT}", f"buffer_load_dwordx4 v{vX[0]}, s[16:19], s31 offen lds"])
        o.append([f"buffer_load_dwordx4 v{vX[1]}, s[16:19], s31 offen offset:1024 lds"])
        return o
    adv = [f"s_add_u32 s30, s30, {64*6144}", "s_add_u32 s31, s31, 128", "s_cmp_eq_u32 s30, s46", "s_cselect_b32 s30, s48, s30", "s_cselect_b32 s31, s49, s31"]
    vm = VM()
    def issue_stage(st):
        for d in dma(st % NS):
            for l in d: k(l)
        for l in adv: k(l)
        vm.issue(("S", st), 5)
    NPRO = 2 if RAMP else NS
    issue_stage(0)
    if not RAMP:
        for st in range(1, NS): issue_stage(st)
    k.stamp("p1_dma")
    srd(k, 88, pWO, D * D * 2)
    k("v_lshlrev_b32 v197, 4, v0")
    k("v_mov_b32 v14, v197")
    l0 = k.lab("noinit")
    k("s_cmp_lg_u32 s2, 0"); k(f"s_cbranch_scc1 {l0}")
    for r in range(4): k(f"v_mov_b32 v{PL+r}, 0")
    k(f"s_mov_b32 s27, {WS_CNT}")
    k(f"buffer_store_dwordx4 v[{PL}:{PL+3}], v14, s[12:15], s27 offen{SC}")
    k(f"{l0}:")
    srd(k, 60, pDBG, 256)
    if JIT:
        k("s_getpc_b64 s[80:81]"); k("L_cb:"); k("s_mov_b32 s82, L_end-L_cb"); k("s_mov_b32 s83, 0x20000")
        k("s_lshr_b32 s27, s2, 3"); k("s_lshl_b32 s27, s27, 3"); k("s_add_u32 s27, s27, s20"); k("s_lshl_b32 s27, s27, 8")
        k("v_and_b32 v252, 3, v1"); k("v_lshlrev_b32 v252, 6, v252"); k("v_add_u32 v252, s27, v252")
    k("v_lshrrev_b32 v14, 4, v1")
    k("v_bfe_u32 v15, v1, 2, 2")
    k("v_lshrrev_b32 v16, 1, v14"); k("v_and_b32 v17, 1, v14")
    k("v_lshlrev_b32 v16, 4, v16"); k("v_lshl_add_u32 v16, v17, 2, v16"); k("v_add_u32 v16, v16, v15")
    k("v_lshlrev_b32 v16, 7, v16")
    k("v_lshrrev_b32 v18, 1, v15"); k("v_lshl_add_u32 v18, v17, 1, v18")
    k("v_xor_b32 v18, s26, v18")
    k("v_lshl_add_u32 v16, v18, 5, v16")
    k("v_and_b32 v18, 3, v1")
    k(f"v_lshl_add_u32 v{vA[0]}, v18, 3, v16")
    k(f"v_add_u32 v{vA[1]}, {2*SLOT}, v{vA[0]}")
    for i in range(1, 4): k(f"v_cmp_eq_u32 s[{48+2*i}:{49+2*i}], {i}, v18")
    if RAMP:
        if os.environ.get("XST"): k.stamp("p1_b0")
        k("s_barrier")
        if os.environ.get("XST"): k.stamp("p1_b1")
        issue_stage(1)
        if os.environ.get("XST"): k.stamp("p1_s1")
    k("v_cmp_eq_u32 s[56:57], v14, v15")
    k("v_and_b32 v15, 15, v1")
    k("v_cmp_eq_u32 s[58:59], 0, v15")
    k("v_lshrrev_b32 v16, 1, v15"); k("v_xor_b32 v16, v16, v14"); k("v_lshlrev_b32 v16, 4, v16")
    k("v_lshl_add_u32 v16, v15, 7, v16")
    k("s_cmp_eq_u32 s25, 0")
    k("s_cselect_b32 s58, s58, 0"); k("s_cselect_b32 s59, s59, 0")
    k("s_lshl_b32 s28, s25, 13"); k(f"s_add_u32 s28, s28, {BOFF}")
    for jj in range(4):
        k(f"s_xor_b32 s27, s26, {jj}"); k("s_lshl_b32 s27, s27, 11"); k("s_add_u32 s27, s27, s28")
        k(f"v_add_u32 v{VB+jj}, s27, v16")
        k(f"v_xor_b32 v{VB+4+jj}, 64, v{VB+jj}")
        k(f"v_add_u32 v{VB+8+jj}, {2*SLOT}, v{VB+jj}")
        k(f"v_add_u32 v{VB+12+jj}, {2*SLOT}, v{VB+4+jj}")
    k(f"v_mov_b32 v{vZ}, 0")
    k("v_lshlrev_b32 v8, 3, v15")
    k("s_lshl_b32 s42, s23, 3"); k("s_lshl_b32 s27, s25, 2"); k("s_add_u32 s42, s42, s27"); k("s_add_u32 s42, s42, s26")
    if STL & 1:
        k("s_lshl_b32 s42, s25, 2"); k("s_add_u32 s42, s42, s26"); k("s_lshl_b32 s42, s42, 7")
        k("s_lshl_b32 s27, s23, 14"); k("s_add_u32 s42, s42, s27"); k("s_lshl_b32 s27, s24, 10"); k("s_add_u32 s42, s42, s27"); k(f"s_add_u32 s42, s42, {WS_ST1}")
    else:
        k("s_lshl_b32 s42, s42, 7"); k("s_lshl_b32 s27, s24, 14"); k("s_add_u32 s42, s42, s27"); k(f"s_add_u32 s42, s42, {WS_ST1}")
    k("v_lshlrev_b32 v9, 4, v14")
    k("s_lshl_b32 s43, s24, 4"); k("s_add_u32 s43, s43, s23"); k("s_mul_i32 s43, s43, 768")
    k("s_lshl_b32 s27, s26, 6"); k("s_add_u32 s43, s43, s27"); k(f"s_add_u32 s43, s43, {WS_CS1}")
    k("v_and_b32 v196, 1, v1"); k("v_lshlrev_b32 v196, 7, v196")
    for r in range(ACC, ACC + 48): k(f"v_mov_b32 v{r}, 0")
    for r in range(DC, DC + 20): k(f"v_mov_b32 v{r}, 0")
    for r in range(4): k(f"v_mov_b32 v{ONE+r}, 0x3f803f80")
    def reads(buf, slot, kb):
        o = []
        pr = slot >> 1; so = (slot & 1) * SLOT
        def rA(m):
            return [f"ds_read_b64_tr_b16 v[{A[buf]+4*m+2*t}:{A[buf]+4*m+2*t+1}], v{vA[pr]} offset:{so + m*8192 + kb*4096 + t*1024}" for t in range(2)]
        def rB(j):
            return [f"ds_read_b128 v[{B[buf]+4*j}:{B[buf]+4*j+3}], v{VB + pr*8 + kb*4 + j} offset:{so}"]
        o += rA(0)
        for j in range(4): o += rB(j)
        o += rA(1) + rA(2)
        return o
    def side(buf):
        o = []
        fb = f"v[{B[buf]}:{B[buf]+3}]"; on = f"v[{ONE}:{ONE+3}]"
        for m in range(3):
            o.append(f"v_mfma_f32_16x16x32_bf16 v[{DC+4*m}:{DC+4*m+3}], v[{A[buf]+4*m}:{A[buf]+4*m+3}], {on}, v[{DC+4*m}:{DC+4*m+3}]")
        o.append(f"v_mfma_f32_16x16x32_bf16 v[{D1}:{D1+3}], {on}, {fb}, v[{D1}:{D1+3}]")
        o.append(f"v_mfma_f32_16x16x32_bf16 v[{D2}:{D2+3}], {fb}, {fb}, v[{D2}:{D2+3}]")
        return o
    def once(lines):
        l = k.lab("once")
        k("s_cmp_lg_u32 s34, 0"); k(f"s_cbranch_scc1 {l}")
        for x in lines: k(x)
        k(f"{l}:")
    def publish():
        o = [f"v_cndmask_b32 v{D2}, v{D2}, v{D2+1}, s[50:51]", f"v_cndmask_b32 v{D2}, v{D2}, v{D2+2}, s[52:53]", f"v_cndmask_b32 v{D2}, v{D2}, v{D2+3}, s[54:55]",
             f"v_mov_b32 v{D1+1}, v{D2}",
             "s_mov_b64 exec, s[56:57]",
             f"buffer_store_dwordx2 v[{D1}:{D1+1}], v8, s[12:15], s42 offen{SC}",
             "s_mov_b64 exec, s[58:59]"]
        for m in range(3):
            o.append(f"buffer_store_dwordx4 v[{DC+4*m}:{DC+4*m+3}], v9, s[12:15], s43 offen offset:{256*m}{SC}")
        o.append("s_mov_b64 exec, -1")
        return o
    def sig1():
        l = k.lab("nosig1")
        return ["s_cmp_lg_u32 s20, 0", f"s_cbranch_scc1 {l}", "s_mov_b64 exec, 1", "v_mov_b32 v14, 1",
                "s_and_b32 s27, s2, 1", "s_lshl_b32 s27, s27, 7",
                f"buffer_atomic_add v14, v{vZ}, s[60:63], s27 offen sc1", "s_mov_b64 exec, -1", f"{l}:"]
    k.stamp("p1_set")
    k(f"s_waitcnt vmcnt({vm.cnt({('S', 0)})})")
    k.stamp("p1_w0")
    k("s_barrier")
    k.stamp("p1_go")
    for l in reads(0, 0, 0): k(l)
    NT = 16
    def sched(t, kb):
        if RAMP and t < 2: return [2, 3, 4, 5][2 * t + kb]
        if kb == 1 and t + NS < NT: return t + NS
        return None
    def step(o, t, kb, side_here=False, pre=None, post=None, extra_need=(), inj=None, inj0=0):
        cur = kb; nxt = kb ^ 1; last = t == NT - 1
        if kb == 0:
            o.append("s_waitcnt lgkmcnt(0)")
            rd = reads(nxt, t % NS, 1)
        elif last:
            o.append("s_waitcnt lgkmcnt(0)"); rd = []
        else:
            o.append(f"s_waitcnt vmcnt({vm.cnt({('S', t + 1)} | set(extra_need))}) lgkmcnt(0)")
            o.append("s_barrier")
            rd = reads(nxt, (t + 1) % NS, 0)
        st = sched(t, kb)
        dm = dma(st % NS) if st is not None else []
        if pre: pre(o)
        if st is not None: vm.issue(("S", st), 5)
        mf = []
        for m in range(3):
            for j in range(4):
                a = acc(m, j); fa = f"v[{A[cur]+4*m}:{A[cur]+4*m+3}]"; fb = f"v[{B[cur]+4*j}:{B[cur]+4*j+3}]"
                if m == 2: fa, fb = fb, fa
                mf.append(f"v_mfma_f32_16x16x32_bf16 v[{a}:{a+3}], {fa}, {fb}, v[{a}:{a+3}]")
        gaps = [[] for _ in mf]
        for q, r in enumerate(rd): gaps[q].append(r)
        pos = [1, 3, 5, 7, 9]
        for q, d in enumerate(dm):
            if len(d) == 2:
                gaps[pos[q] - 1].append(d[0]); gaps[pos[q]].append(d[1])
            else:
                gaps[pos[q]].append(d[0])
        if dm: gaps[10] += adv
        if inj:
            ng = len(mf) - inj0
            for q, it in enumerate(inj):
                gaps[inj0 + q * ng // len(inj)] += (it if isinstance(it, list) else [it])
        for g, mm in enumerate(mf):
            o.append(mm); o += gaps[g]
        if side_here: o += side(cur)
        if post: post(o)
    texts = []
    for per in range(2 if HOIST else 3):
        o = []
        for t in range(per * 4, per * 4 + 4):
            if HOIST == 2 and 4 <= t < 8:
                ad = hoist_ad(dict(vL16=vL16, vVO=217)); n4 = (len(ad) + 3) // 4
                step(o, t, 0, inj=ad[(t - 4) * n4:(t - 3) * n4], inj0=0)
            else:
                step(o, t, 0, side_here=(t == 0))
            if t == 1 and not ESIG:
                o += publish(); vm.issue("PUB", 4, certain=False)
            step(o, t, 1, side_here=(t == 0), extra_need=("PUB",) if t == 3 - ESIG else ())
            if t == 0 and ESIG:
                o += publish(); vm.issue("PUB", 4, certain=False)
            if t == 3 - ESIG: o += sig1(); vm.issue("SIG", 1, certain=False)
        texts.append(o)
    periods(k, "p1loop", texts, 34)
    if TST: k.stamp("t11" if not HOIST else "t7")
    def partial_loads():
        rdy = k.lab("p1rdy"); spin = k.lab("p1spin"); nocs = k.lab("p1nocs")
        if TST == 2: k.stamp("t14_w")
        k(f"v_cmp_eq_u32 vcc, 128, v{vP}")
        k("s_cmp_eq_u64 vcc, -1")
        k(f"s_cbranch_scc1 {rdy}")
        k("s_mov_b32 s28, 0")
        k(f"{spin}:")
        k("s_add_u32 s28, s28, 1")
        k(f"s_cmp_gt_u32 s28, {SPIN_LIMIT}")
        k(f"s_cbranch_scc1 {rdy}")
        k("s_sleep 2")
        k(f"buffer_load_dword v{vP}, v196, s[60:63], 0 offen sc1")
        k("s_waitcnt vmcnt(0)")
        k(f"v_cmp_eq_u32 vcc, 128, v{vP}")
        k("s_cmp_eq_u64 vcc, -1")
        k(f"s_cbranch_scc0 {spin}")
        k(f"{rdy}:")
        if TST == 2: k.stamp("t14_c")
        if COA & 1:
            k("v_lshrrev_b32 v14, 4, v1"); k(f"v_lshlrev_b32 v14, {12 if STL & 1 else 16}, v14")
            k("v_and_b32 v15, 15, v1"); k("s_lshl_b32 s27, s20, 4"); k("v_add_u32 v15, s27, v15"); k("v_lshl_add_u32 v14, v15, 3, v14")
        else:
            k("v_and_b32 v14, 3, v0"); k(f"v_lshlrev_b32 v14, {12 if STL & 1 else 16}, v14")
            k("v_lshrrev_b32 v15, 2, v0"); k("v_lshl_add_u32 v14, v15, 3, v14")
        k(f"s_lshl_b32 s27, s23, {14 if STL & 1 else 10}"); k(f"s_add_u32 s27, s27, {WS_ST1}")
        for i in range(4):
            if STL & 1:
                k(f"buffer_load_dwordx2 v[{PL+2*i}:{PL+2*i+1}], v14, s[12:15], s27 offen offset:{1024*i}{SC}")
                continue
            k(f"buffer_load_dwordx2 v[{PL+2*i}:{PL+2*i+1}], v14, s[12:15], s27 offen{SC}")
            if i < 3: k("s_add_u32 s27, s27, 16384")
        if TST == 2: k.stamp("t14_s")
        k("s_cmp_ge_u32 s20, 3")
        k(f"s_cbranch_scc1 {nocs}")
        k("v_lshlrev_b32 v14, 2, v0")
        k(f"s_mul_i32 s27, s24, {16*768}"); k(f"s_add_u32 s27, s27, {WS_CS1}")
        for i in range(16):
            k(f"buffer_load_dword v{PL+8+i}, v14, s[12:15], s27 offen offset:{(i % 4) * 768}{SC}")
            if i % 4 == 3 and i < 15: k(f"s_add_u32 s27, s27, {4*768}")
        k(f"{nocs}:")
        if TST == 2: k.stamp("t14_l")
    class _O:
        def append(self, x): k(x)
        def __iadd__(self, xs):
            for x in xs: k(x)
            return self
    o = _O()
    SQ = 28; CQ = 36; QS = 52; VS = [112, 120, 128, 136]; vVO = 14
    if HOIST:
        SQ = 220; CQ = 228; QS = 184; VS = [236, 244, 154, 176]; vVO = 217
        (hoisted_tail2 if HOIST == 2 else hoisted_tail)(k, o, step, vm, dict(PL=PL, RMR=RMR, ONE=ONE, vP=vP, vZ=vZ, vL16=vL16, SQ=SQ, CQ=CQ, QS=QS, VS=VS, vVO=vVO))
    else:
        o = _O()
        for t in range(12, 16):
            step(o, t, 0)
            if TST == 2 and t >= 13: k.stamp(f"t{t}_0")
            if t == 12:
                k(f"buffer_load_dword v{vP}, v196, s[60:63], 0 offen sc1"); vm.issue("VP")
                k("s_lshl_b32 s27, s2, 13")
                k(f"buffer_load_dwordx4 v[{RMR}:{RMR+3}], v197, s[88:91], s27 offen"); vm.issue("RMR")
                if JIT & 1:
                    for l in jit("L_p1tail", 27, 211): k(l)
                    vm.issue("CP")
            step(o, t, 1, pre=(lambda o: partial_loads()) if t == 14 else None, extra_need=("VP", "RMR") if t == 14 else ())
            if TST and t < 15: k.stamp(f"t{t}")
        if JIT & 1: k("L_p1tail:")
        k.stamp("p1_loop")
        k("v_mov_b32 v14, 0")
        for r in range(4): k(f"v_dot2c_f32_bf16 v14, v{RMR+r}, v{ONE}")
        for ro in (8, 4, 2, 1): k(f"v_add_f32_dpp v14, v14, v14 row_ror:{ro} row_mask:0xf bank_mask:0xf")
        for sw in ("v_permlane16_swap_b32", "v_permlane32_swap_b32"):
            k("v_mov_b32 v15, v14"); k(f"{sw} v14, v15"); k("v_add_f32 v14, v14, v15")
        k("s_lshl_b32 s27, s20, 2"); k("s_add_u32 s27, s27, 2048"); k("v_mov_b32 v15, s27")
        k("ds_write_b32 v15, v14")
        k("s_waitcnt vmcnt(0)")
        k(f"v_add_f32 v{PL}, v{PL}, v{PL+2}"); k(f"v_add_f32 v{PL+1}, v{PL+1}, v{PL+3}")
        k(f"v_add_f32 v{PL+4}, v{PL+4}, v{PL+6}"); k(f"v_add_f32 v{PL+5}, v{PL+5}, v{PL+7}")
        k(f"v_add_f32 v{PL}, v{PL}, v{PL+4}"); k(f"v_add_f32 v{PL+1}, v{PL+1}, v{PL+5}")
        if COA & 1:
            k("v_and_b32 v16, 15, v1"); k("s_lshl_b32 s27, s20, 4"); k("v_add_u32 v16, s27, v16"); k("v_lshlrev_b32 v16, 2, v16")
            k(f"v_permlane16_swap_b32 v{PL}, v{PL+1}")
            k(f"v_add_f32 v{PL}, v{PL}, v{PL+1}"); k(f"v_mov_b32 v{PL+1}, v{PL}")
            k(f"v_permlane32_swap_b32 v{PL}, v{PL+1}")
            k(f"v_add_f32 v{PL}, v{PL}, v{PL+1}"); k(f"v_mov_b32 v{PL+1}, v{PL}")
            k(f"v_permlane16_swap_b32 v{PL}, v{PL+1}")
        else:
            for qp in ("[1,0,3,2]", "[2,3,0,1]"):
                k(f"v_add_f32_dpp v{PL}, v{PL}, v{PL} quad_perm:{qp} row_mask:0xf bank_mask:0xf")
                k(f"v_add_f32_dpp v{PL+1}, v{PL+1}, v{PL+1} quad_perm:{qp} row_mask:0xf bank_mask:0xf")
        k(f"v_mul_f32 v{PL}, 0x3a800000, v{PL}")
        k(f"v_mul_f32 v{PL+1}, 0x3a800000, v{PL+1}")
        if not COA & 1: k("v_lshrrev_b32 v16, 2, v0"); k("v_lshlrev_b32 v16, 2, v16")
        lm = k.lab("nomx")
        k("s_cmp_lg_u32 s24, 0"); k(f"s_cbranch_scc1 {lm}")
        k("s_lshl_b32 s27, s23, 9"); k(f"s_add_u32 s27, s27, {WS_MX}")
        k(f"buffer_store_dword v{PL}, v16, s[12:15], s27 offen{SC}")
        k(f"{lm}:")
        k(f"v_fma_f32 v{PL+1}, -v{PL}, v{PL}, v{PL+1}")
        k(f"v_max_f32 v{PL+1}, 0, v{PL+1}")
        k(f"v_add_f32 v{PL+1}, 0x3727c5ac, v{PL+1}")
        k(f"v_rsq_f32 v{PL+1}, v{PL+1}")
        k(f"v_mul_f32 v{PL+2}, v{PL}, v{PL+1}")
        k(f"v_sub_f32 v{PL+2}, 0, v{PL+2}")
        k(f"ds_write_b32 v16, v{PL+1}")
        k(f"ds_write_b32 v16, v{PL+2} offset:512")
        l2 = k.lab("nocs2")
        k("s_cmp_ge_u32 s20, 3")
        k(f"s_cbranch_scc1 {l2}")
        for st in (8, 4, 2, 1):
            for i in range(st): k(f"v_add_f32 v{PL+8+i}, v{PL+8+i}, v{PL+8+i+st}")
        k("v_lshlrev_b32 v16, 2, v0")
        k(f"ds_write_b32 v16, v{PL+8} offset:1024")
        k(f"{l2}:")
        k("v_and_b32 v15, 15, v1")
        k("s_lshl_b32 s27, s25, 8"); k("s_lshl_b32 s28, s26, 6"); k("s_add_u32 s28, s28, s27")
        k("v_lshlrev_b32 v16, 2, v15")
        k("v_add_u32 v17, s28, v16")
        k("v_lshrrev_b32 v14, 4, v1")
        k("v_lshlrev_b32 v19, 4, v14")
        k("v_add_u32 v20, s28, v19")
        k("s_lshl_b32 s29, s26, 6"); k("s_add_u32 s29, s29, 1024")
        k("v_add_u32 v19, s29, v19")
        k("v_add_u32 v18, s29, v16")
        for jj in range(1, 4):
            k(f"v_xor_b32 v{20+jj}, {jj<<6}, v20")
            k(f"v_xor_b32 v{23+jj}, {jj<<6}, v17")
        k("s_lshl_b32 s27, s23, 2"); k("s_lshl_b32 s28, s25, 1"); k("s_add_u32 s27, s27, s28")
        k("s_lshl_b32 s27, s27, 16")
        k("s_lshl_b32 s28, s24, 12"); k("s_add_u32 s27, s27, s28")
        k("s_lshl_b32 s28, s26, 10"); k("s_add_u32 s27, s27, s28")
        k("s_lshr_b32 s42, s26, 1")
        k("s_lshl_b32 s28, s42, 16"); k("s_add_u32 s35, s27, s28")
        k("s_xor_b32 s28, s28, 0x10000"); k("s_add_u32 s37, s27, s28")
        k(f"s_add_u32 s36, s35, {WS_K}"); k(f"s_add_u32 s38, s37, {WS_K}")
        k(f"s_add_u32 s35, s35, {WS_Q}"); k(f"s_add_u32 s37, s37, {WS_Q}")
        if QKS:
            k(f"s_add_u32 s27, s24, {QKS}"); k("s_and_b32 s27, s27, 15"); k("s_sub_u32 s27, s27, s24"); k("s_lshl_b32 s27, s27, 12")
            k("s_add_u32 s36, s36, s27"); k("s_add_u32 s38, s38, s27")
            k(f"s_add_u32 s27, s24, {2*QKS}"); k("s_and_b32 s27, s27, 15"); k("s_lshl_b32 s27, s27, 1")
        else:
            k("s_lshl_b32 s27, s24, 1")
        k("s_add_u32 s27, s27, s42")
        k("s_lshl_b32 s27, s27, 7")
        k("s_lshl_b32 s28, s23, 3"); k("s_add_u32 s27, s27, s28")
        k("s_lshl_b32 s28, s25, 2"); k("s_add_u32 s27, s27, s28")
        k("s_lshl_b32 s27, s27, 10")
        k("s_and_b32 s43, s26, 1")
        k("s_lshl_b32 s28, s43, 8"); k("s_add_u32 s27, s27, s28")
        k(f"s_add_u32 s27, s27, {WS_VT}")
        k("s_lshl_b32 s28, s42, 11"); k("s_add_u32 s39, s27, s28")
        k("s_xor_b32 s28, s28, 2048"); k("s_add_u32 s40, s27, s28")
        k("v_lshrrev_b32 v27, 5, v1"); k("v_xor_b32 v27, s43, v27"); k("v_lshlrev_b32 v27, 10, v27")
        k("v_bfe_u32 v28, v1, 4, 1"); k("v_lshl_add_u32 v27, v28, 9, v27")
        k("v_lshl_add_u32 v14, v15, 4, v27")
        k("s_lshl_b32 s28, s43, 8")
        k(f"v_xor_b32 v{vL16}, s28, v{vL16}")
        k("s_waitcnt lgkmcnt(0)")
        k("s_barrier")
        SQ = 28; CQ = 36
        k(f"ds_read2_b32 v[{SQ}:{SQ+1}], v17 offset0:0 offset1:128")
        for jj in range(1, 4): k(f"ds_read2_b32 v[{SQ+2*jj}:{SQ+2*jj+1}], v{23+jj} offset0:0 offset1:128")
        k(f"ds_read_b128 v[{CQ}:{CQ+3}], v19")
        k(f"ds_read_b128 v[{CQ+4}:{CQ+7}], v19 offset:256")
        k("ds_read_b32 v152, v18 offset:512")
        VS = [112, 120, 128, 136]
        for jj in range(4):
            k(f"ds_read_b128 v[{VS[jj]}:{VS[jj]+3}], v{20+jj}")
            k(f"ds_read_b128 v[{VS[jj]+4}:{VS[jj]+7}], v{20+jj} offset:512")
        l7 = k.lab("norm")
        k("s_cmp_lg_u32 s20, 7"); k(f"s_cbranch_scc1 {l7}")
        k(f"ds_read_b128 v[{PL}:{PL+3}], v{vZ} offset:2048")
        k(f"ds_read_b128 v[{PL+4}:{PL+7}], v{vZ} offset:2064")
        k("s_waitcnt lgkmcnt(0)")
        for r in range(4):
            k(f"v_add_f32 v{PL+2*r}, v{PL+2*r}, v{PL+2*r+1}")
            k(f"v_mul_f32 v{PL+2*r}, 0x3a800000, v{PL+2*r}")
        k(f"v_cvt_pk_bf16_f32 v{PL+8}, v{PL}, v{PL+2}")
        k(f"v_cvt_pk_bf16_f32 v{PL+9}, v{PL+4}, v{PL+6}")
        k("s_lshl_b32 s27, s2, 3"); k(f"s_add_u32 s27, s27, {WS_RM}")
        k("s_mov_b64 exec, 1")
        k(f"buffer_store_dwordx2 v[{PL+8}:{PL+9}], v{vZ}, s[12:15], s27 offen{SC}")
        k("s_mov_b64 exec, -1")
        k(f"{l7}:")
    if not HOIST:
        k("s_mov_b32 s44, 0x3e8293ee")
        k("s_waitcnt lgkmcnt(9)")
        for jj in range(4):
            k(f"v_mul_f32 v{QS+2*jj}, s44, v{SQ+2*jj}")
            k(f"v_mul_f32 v{QS+2*jj+1}, s44, v{SQ+2*jj+1}")
    TP = [16, 20, 24, 44, 48, 60]
    TM = 144
    ti = 0
    HX = os.environ.get("HX", "swd") if HOIST else ""
    if HX in ("bar", "swbar"): k("s_barrier")
    elif HX == "nop7": k("s_nop 7")
    elif HX == "nop15": k("s_nop 15")
    elif HX == "nop31": k("s_nop 15"); k("s_nop 15")
    for m in range(3):
        if m == 2 and HOIST != 1: k("s_waitcnt lgkmcnt(0)")
        for p in range(2):
            t = TP[ti]; ti += 1
            for jj2 in range(2):
                jj = 2 * p + jj2
                a = acc(m, jj)
                for h in range(2):
                    tm = TM + 2 * ((jj2 * 2 + h) & 3)
                    if m < 2:
                        st = (QS if m == 0 else SQ) + 2 * jj
                        cs = CQ + 4 * m + 2 * h
                        first = m == 0 and jj == 0 and h == 0
                        if first and HX in ("v1", "v2", "v3", "v4", "v5", "v6", "v7", "v8", "v9", "v10"):
                            pm = f"v_pk_mul_f32 v[{tm}:{tm+1}], v[{cs}:{cs+1}], v[{st}:{st+1}] op_sel:[0,1] op_sel_hi:[1,1]"
                            pf = f"v_pk_fma_f32 v[{a}:{a+1}], v[{a}:{a+1}], v[{st}:{st+1}], v[{tm}:{tm+1}] op_sel:[0,0,0] op_sel_hi:[1,0,1]"
                            if HX == "v1":
                                for e in range(2): k(f"v_mul_f32 v{tm+e}, v{cs+e}, v{st+1}")
                                k(pf)
                            elif HX == "v2":
                                k(pm)
                                for e in range(2): k(f"v_fma_f32 v{a+e}, v{a+e}, v{st}, v{tm+e}")
                            elif HX == "v3":
                                k(f"v_pk_mul_f32 v[148:149], v[{cs}:{cs+1}], v[{st}:{st+1}] op_sel:[0,1] op_sel_hi:[1,1]"); k(pm); k(pf)
                            elif HX == "v4":
                                k(pm); k("s_nop 0"); k(pf)
                            elif HX == "v5":
                                k(pm); k("s_nop 3"); k(pf)
                            elif HX == "v7":
                                k(f"v_pk_mul_f32 v[{tm}:{tm+1}], v[{cs}:{cs+1}], v[{st}:{st+1}] op_sel:[0,0] op_sel_hi:[1,0]"); k(pf)
                            elif HX == "v8":
                                k(f"v_pk_mul_f32 v[{tm}:{tm+1}], v[{cs}:{cs+1}], v[{st}:{st+1}]"); k(pf)
                            elif HX == "v9":
                                k(f"v_pk_mul_f32 v[{tm}:{tm+1}], v[{cs}:{cs+1}], v[{st}:{st+1}] op_sel:[1,1] op_sel_hi:[1,1]"); k(pf)
                            elif HX == "v10":
                                k(f"v_mul_f32 v{tm+1}, v{cs}, v{st+1}"); k(f"v_mul_f32 v{tm}, v{cs+1}, v{st+1}")
                                k(f"v_pk_fma_f32 v[{a}:{a+1}], v[{a}:{a+1}], v[{st}:{st+1}], v[{tm}:{tm+1}] op_sel:[0,0,1] op_sel_hi:[1,0,0]")
                            elif HX == "v6":
                                k(f"v_pk_mul_f32 v[{tm}:{tm+1}], v[{st}:{st+1}], v[{cs}:{cs+1}] op_sel:[1,0] op_sel_hi:[1,1]"); k(pf)
                            continue
                        if HX.startswith("np") and (m * 4 + jj) * 2 + h < int(HX[2:]):
                            for e in range(2):
                                k(f"v_mul_f32 v{tm+e}, v{cs+e}, v{st+1}")
                            for e in range(2):
                                k(f"v_fma_f32 v{a+2*h+e}, v{a+2*h+e}, v{st}, v{tm+e}")
                            continue
                        if "sw" in HX:
                            if first and HX == "swd": k(f"v_pk_mul_f32 v[{TM+4}:{TM+5}], v[{cs}:{cs+1}], v[{cs}:{cs+1}]")
                            k(f"v_pk_mul_f32 v[{tm}:{tm+1}], v[{st}:{st+1}], v[{cs}:{cs+1}] op_sel:[1,0] op_sel_hi:[1,1]")
                        else:
                            k(f"v_pk_mul_f32 v[{tm}:{tm+1}], v[{cs}:{cs+1}], v[{st}:{st+1}] op_sel:[0,1] op_sel_hi:[1,1]")
                        k(f"v_pk_fma_f32 v[{a+2*h}:{a+2*h+1}], v[{a+2*h}:{a+2*h+1}], v[{st}:{st+1}], v[{tm}:{tm+1}] op_sel:[0,0,0] op_sel_hi:[1,0,1]")
                    else:
                        rs = VS[jj] + 2 * h; nm = VS[jj] + 4 + 2 * h
                        k(f"v_pk_mul_f32 v[{tm}:{tm+1}], v[{nm}:{nm+1}], v[152:153] op_sel:[0,0] op_sel_hi:[1,0]")
                        k(f"v_pk_fma_f32 v[{a+2*h}:{a+2*h+1}], v[{a+2*h}:{a+2*h+1}], v[{rs}:{rs+1}], v[{tm}:{tm+1}]")
                k(f"v_cvt_pk_bf16_f32 v{t+2*jj2}, v{a}, v{a+1}")
                k(f"v_cvt_pk_bf16_f32 v{t+2*jj2+1}, v{a+2}, v{a+3}")
            sw = "v_permlane16_swap_b32" if m < 2 else "v_permlane32_swap_b32"
            k(f"{sw} v{t}, v{t+2}")
            k(f"{sw} v{t+1}, v{t+3}")
            so = [[35, 37], [36, 38], [39, 40]][m][p]
            k(f"buffer_store_dwordx4 v[{t}:{t+3}], v{vL16 if m < 2 else vVO}, s[12:15], s{so} offen{SC}")
    k.stamp("p1_epi")
    k("s_lshl_b32 s27, s24, 7"); k(f"s_add_u32 s27, s27, {WS_CNT + C2*128}")
    signal(k, 27, vt=(30, 31))
    k.stamp("p1_sig")

W3BASE = 98304
vW3 = [200, 201]
C35 = int(os.environ.get("C35", "0"))
def coords35(k, stb, scb, st, x=21, y=22):
    k_ = k
    def k(l): k_(l.replace("s21", f"s{x}").replace("s22", f"s{y}"))
    k("s_and_b32 s21, s2, 7"); k("s_lshr_b32 s22, s2, 3")
    if C35 == 0:
        k(f"s_and_b32 s{stb}, s21, 3"); k(f"s_lshl_b32 s{stb}, s{stb}, 2"); k(f"s_and_b32 s{st}, s22, 3"); k(f"s_add_u32 s{stb}, s{stb}, s{st}")
        k(f"s_lshr_b32 s{scb}, s21, 2"); k(f"s_lshl_b32 s{scb}, s{scb}, 3"); k(f"s_lshr_b32 s{st}, s22, 2"); k(f"s_add_u32 s{scb}, s{scb}, s{st}")
    elif C35 == 2:
        k(f"s_lshl_b32 s{stb}, s21, 1"); k(f"s_lshr_b32 s{st}, s22, 4"); k(f"s_add_u32 s{stb}, s{stb}, s{st}")
        k(f"s_and_b32 s{scb}, s22, 15")
    elif C35 == 3:
        k(f"s_and_b32 s{stb}, s21, 1"); k(f"s_lshl_b32 s{stb}, s{stb}, 3"); k(f"s_lshr_b32 s{st}, s22, 2"); k(f"s_add_u32 s{stb}, s{stb}, s{st}")
        k(f"s_lshr_b32 s{scb}, s21, 1"); k(f"s_lshl_b32 s{scb}, s{scb}, 2"); k(f"s_and_b32 s{st}, s22, 3"); k(f"s_add_u32 s{scb}, s{scb}, s{st}")
    elif C35 == 4:
        k(f"s_and_b32 s{stb}, s21, 3"); k(f"s_lshl_b32 s{stb}, s{stb}, 2"); k(f"s_lshr_b32 s{st}, s22, 3"); k(f"s_add_u32 s{stb}, s{stb}, s{st}")
        k(f"s_lshr_b32 s{scb}, s21, 2"); k(f"s_and_b32 s{st}, s22, 7"); k(f"s_lshl_b32 s{st}, s{st}, 1"); k(f"s_add_u32 s{scb}, s{scb}, s{st}")
    else:
        k(f"s_and_b32 s{stb}, s21, 3"); k(f"s_lshl_b32 s{stb}, s{stb}, 2"); k(f"s_lshr_b32 s{st}, s22, 3"); k(f"s_add_u32 s{stb}, s{stb}, s{st}")
        k(f"s_lshr_b32 s{scb}, s21, 2"); k(f"s_lshl_b32 s{scb}, s{scb}, 3"); k(f"s_and_b32 s{st}, s22, 7"); k(f"s_add_u32 s{scb}, s{scb}, s{st}")
WT3 = int(os.environ.get("WT3", "0")); WT5 = int(os.environ.get("WT5", "0"))
WDT = int(os.environ.get("WDT", "3"))
WS_WDT = 0x3000000
SK5 = int(os.environ.get("SK5", "0"))
SKX = int(os.environ.get("SKX", "1"))
R5K = int(os.environ.get("R5K", "5"))
WS_XI = 0x3800000
WS_XID = 0x3C00000
SKF = int(os.environ.get("SKF", "0"))
SKA = int(os.environ.get("SKA", "0"))
SKT = int(os.environ.get("SKT", "25"))
SKO = int(os.environ.get("SKO", "0"))
SKG = int(os.environ.get("SKG", "4")); SKPA = int(os.environ.get("SKPA", "1"))
SKR = int(os.environ.get("SKR", "0"))
WDA = int(os.environ.get("WDA", "3")); WDP = int(os.environ.get("WDP", "4"))
def w35_setup(k, vW, base, t, tiled=0):
    coords35(k, 27, 29, 28)
    rb = 128 if tiled else 2048
    wdma_lane(k, vW[0], rb, t)
    k(f"v_add_u32 v{vW[1]}, {4*rb}, v{vW[0]}")
    k("s_lshr_b32 s27, s20, 1"); k("s_lshl_b32 s27, s27, 5"); k("s_and_b32 s28, s20, 1"); k("s_lshl_b32 s28, s28, 4")
    k("s_add_u32 s27, s27, s28")
    if tiled and SK5 and base == 0:
        k("s_and_b32 s27, s20, 3"); k("s_lshl_b32 s27, s27, 4"); k("s_and_b32 s28, s29, 1"); k(f"s_mul_i32 s28, s28, {DF//2}"); k("s_add_u32 s27, s27, s28")
        k("s_lshr_b32 s28, s20, 2"); k("s_xor_b32 s28, s28, 1"); k("s_xor_b32 s29, s29, s28")
    if tiled:
        k("s_lshl_b32 s50, s27, 7"); k(f"s_mul_i32 s28, s29, {tiled*128}"); k("s_add_u32 s50, s50, s28")
        if WDT and base == 0: k(f"s_add_u32 s50, s50, {WS_WDT}")
    else:
        k("s_lshl_b32 s50, s27, 11"); k("s_lshl_b32 s28, s29, 7"); k("s_add_u32 s50, s50, s28")
        if os.environ.get("WOFF64") and base == 0: k("s_add_u32 s50, s50, 64")
    k("s_lshl_b32 s51, s20, 11")
    if base: k(f"s_add_u32 s51, s51, {base}")
def w35_dma(vW, srdw, slot):
    sc = SC if srdw == 12 else ""
    return [[f"s_add_u32 m0, s51, {slot*16384}", f"buffer_load_dwordx4 v{vW[0]}, s[{srdw}:{srdw+3}], s50 offen{sc} lds"],
            [f"s_add_u32 m0, s51, {slot*16384+1024}", f"buffer_load_dwordx4 v{vW[1]}, s[{srdw}:{srdw+3}], s50 offen{sc} lds"]]
W3ADV = f"s_add_u32 s50, s50, {128*(128 if WT3 else 2048)}"
W5ADV = f"s_add_u32 s50, s50, {(64 if SK5 else 128)*(128 if WT5 or WDT else 2048)}"
SW5 = 12 if WDT else 60

WOPF = int(os.environ.get("WOPF", "0"))
OT = int(os.environ.get("OT", "0"))
def phase2(k):
    STG = 32768
    vL16, vCur, vNxt, vTmp = 2, 3, 4, 5
    QA, QB = 8, 16
    KF = [24, 32]; VF = [40, 48]
    SA, SB = 56, 72
    PA, PB = 88, 96
    OA, OB = 104, 120
    LA, LB = 136, 140
    NA, NB = 144, 160
    ONE = 176
    T0 = 180
    w35_setup(k, vW3, W3BASE, 180, D if WT3 else 0)
    srd(k, 8, pBX if WT3 else pWO, D * D * 2)
    k("s_and_b32 s21, s2, 7"); k("s_lshl_b32 s21, s21, 2"); k("s_lshr_b32 s22, s2, 6"); k("s_add_u32 s21, s21, s22")
    k("s_bfe_u32 s22, s2, 0x30003")
    k("s_and_b32 s23, s20, 3")
    k("s_lshr_b32 s24, s20, 2")
    k(f"v_lshlrev_b32 v{vL16}, 4, v1")
    k("s_lshl_b32 s30, s24, 5"); k("s_add_u32 s30, s30, s23"); k("s_lshl_b32 s30, s30, 16")
    k("s_lshl_b32 s25, s21, 11"); k("s_add_u32 s30, s30, s25"); k(f"s_add_u32 s30, s30, {WS_K}")
    k("s_lshl_b32 s31, s21, 7"); k("s_lshl_b32 s25, s24, 6"); k("s_add_u32 s31, s31, s25")
    k("s_lshl_b32 s25, s23, 1"); k("s_add_u32 s31, s31, s25"); k("s_lshl_b32 s31, s31, 10"); k(f"s_add_u32 s31, s31, {WS_VT}")
    k("s_lshl_b32 s32, s24, 14"); k("s_lshl_b32 s25, s23, 11"); k("s_add_u32 s32, s32, s25")
    k("s_lshl_b32 s33, s22, 3"); k("s_lshl_b32 s25, s23, 1"); k("s_add_u32 s33, s33, s25"); k("s_lshl_b32 s33, s33, 16")
    k("s_lshl_b32 s25, s21, 11"); k("s_add_u32 s33, s33, s25")
    k(f"s_add_u32 s45, s33, {WS_O}")
    k(f"s_add_u32 s33, s33, {WS_Q}")
    k("s_add_u32 s34, s33, 65536")
    k(f"v_lshrrev_b32 v{vTmp}, 2, v1"); k(f"v_lshrrev_b32 v{T0}, 4, v1"); k(f"v_xor_b32 v{vTmp}, v{vTmp}, v{T0}")
    k(f"v_and_b32 v{vTmp}, 1, v{vTmp}"); k(f"v_cmp_eq_u32 vcc, 0, v{vTmp}")
    k(f"v_mov_b32 v{T0}, 0x3f803f80")
    k(f"v_cndmask_b32 v{ONE}, 0, v{T0}, vcc")
    for r in range(1, 4): k(f"v_mov_b32 v{ONE+r}, v{ONE}")
    for r in range(32): k(f"v_mov_b32 v{NA+r}, 0")
    k("s_mov_b32 s46, 0")
    k("s_lshl_b32 s25, s24, 14")
    k(f"v_add_u32 v{vTmp}, s25, v{vL16}")
    if PFW:
        k("s_lshl_b32 s25, s2, 3"); k("s_add_u32 s25, s25, s20")
        k("s_mul_i32 s26, s25, 3584")
        k(f"v_lshlrev_b32 v198, 6, v1"); k("v_add_u32 v198, s26, v198")
        srd(k, 88, pWO, D * D * 2)
        k(f"s_mov_b64 s[92:93], s[{pWG}:{pWG+1}]"); k(f"s_mov_b64 s[94:95], s[{pWU}:{pWU+1}]"); k(f"s_mov_b64 s[96:97], s[{pWD}:{pWD+1}]")
    WDR, vWDS = 208, 224
    if JIT & 2: k("s_mov_b32 s52, L_p2tail-L_cb")
    if WDT:
        srd(k, 60, pWD, DF * D * 2)
        k(f"v_lshrrev_b32 v{vWDS}, 3, v1"); k(f"s_mov_b32 s26, {DF*128}"); k(f"v_mul_lo_u32 v{vWDS}, v{vWDS}, s26")
        k(f"v_and_b32 v{vWDS+1}, 7, v1"); k(f"v_lshl_add_u32 v{vWDS}, v{vWDS+1}, 4, v{vWDS}")
        k("s_mul_i32 s98, s2, 14"); k("s_lshl_b32 s26, s20, 1"); k("s_add_u32 s98, s98, s26"); k("s_lshl_b32 s98, s98, 7")
        k(f"s_add_u32 s98, s98, {WS_WDT - 256}"); k(f"s_add_u32 s99, s98, {8*DF*128}")
        k("s_mul_i32 s100, s2, 28672"); k("s_lshl_b32 s26, s20, 12"); k("s_add_u32 s100, s100, s26"); k("s_sub_u32 s100, s100, 4096")
        k("s_cmp_eq_u32 s20, 0"); k(f"s_cselect_b32 s101, 99, {WDA}")
        if WDT == 3: k(f"s_cselect_b32 s101, 99, {hex((-WDA - 1) & 0xffffffff)}")
        if WDT >= 2:
            assert WDA % 2 == 1
            k(f"s_sub_u32 s98, s98, {128 * ((WDA + 1) // 2)}"); k(f"s_mov_b32 s99, {8*DF*128}"); k(f"s_sub_u32 s100, s100, {1024*WDA}")
    if SK5 and SKX:
        lf = k.lab("nofill")
        k("s_cmp_lt_u32 s20, 4"); k(f"s_cbranch_scc1 {lf}")
        coords35(k, 27, 29, 28, 25, 26)
        k("s_lshl_b32 s27, s27, 4"); k("s_add_u32 s29, s27, s29")
        k("s_lshl_b32 s27, s29, 14"); k("s_and_b32 s28, s20, 3"); k("s_lshl_b32 s28, s28, 12"); k("s_add_u32 s27, s27, s28"); k(f"s_add_u32 s27, s27, {WS_XI}")
        for r in range(4): k(f"v_mov_b32 v{KF[1]+r}, -1")
        for q in range(4): k(f"buffer_store_dwordx4 v[{KF[1]}:{KF[1]+3}], v{vL16}, s[12:15], s27 offen offset:{1024*q}{SC}")
        if SKF:
            k("s_getreg_b32 s26, hwreg(HW_REG_XCC_ID, 0, 4)")
            k("s_lshl_b32 s27, s29, 10"); k("s_lshr_b32 s28, s28, 4"); k("s_add_u32 s27, s27, s28"); k(f"s_add_u32 s27, s27, {WS_XID}")
            k(f"v_mov_b32 v{KF[1]+4}, s26"); k(f"v_lshlrev_b32 v{KF[1]+5}, 2, v1")
            k(f"buffer_store_dword v{KF[1]+4}, v{KF[1]+5}, s[12:15], s27 offen{SC}")
        k(f"{lf}:")
    if QKS:
        k(f"v_mul_u32_u24 v{T0+1}, {QKS}, v1"); k("s_lshr_b32 s27, s21, 1"); k(f"v_sub_u32 v{T0+1}, s27, v{T0+1}")
        k(f"v_and_b32 v{T0+1}, 15, v{T0+1}"); k(f"v_lshlrev_b32 v{T0+1}, 7, v{T0+1}")
        k(f"s_mov_b32 s27, {WS_CNT + C2*128}")
        wait_multi(k, 27, 16, 3, vt=(T0, T0 + 1))
    else:
        k("s_lshr_b32 s27, s21, 1"); k("s_lshl_b32 s27, s27, 7"); k(f"s_add_u32 s27, s27, {WS_CNT + C2*128}")
        wait(k, 27, 16, vt=(T0, T0 + 1), pr=KF[0])
    k.stamp("p2_wait")
    for kk in range(2):
        k(f"buffer_load_dwordx4 v[{QA+4*kk}:{QA+4*kk+3}], v{vL16}, s[12:15], s33 offen offset:{1024*kk}{SC}")
        k(f"buffer_load_dwordx4 v[{QB+4*kk}:{QB+4*kk+3}], v{vL16}, s[12:15], s34 offen offset:{1024*kk}{SC}")
    def dma_stage():
        k("s_add_u32 m0, s42, s32")
        k(f"buffer_load_dwordx4 v{vL16}, s[12:15], s40 offen{SC} lds")
        k(f"buffer_load_dwordx4 v{vL16}, s[12:15], s40 offen offset:1024{SC} lds")
        k("s_add_u32 m0, m0, 8192")
        k(f"buffer_load_dwordx4 v{vL16}, s[12:15], s41 offen{SC} lds")
        k(f"buffer_load_dwordx4 v{vL16}, s[12:15], s41 offen offset:1024{SC} lds")
        k(f"s_add_u32 s40, s40, {4*65536}")
        k("s_add_u32 s41, s41, 8192")
    lmain = k.lab("p2main"); lloop = k.lab("p2loop"); lfin = k.lab("p2fin"); lfb = k.lab("p2fb"); lend = k.lab("p2end")
    k(f"{lmain}:")
    k("s_mov_b32 s40, s30"); k("s_mov_b32 s41, s31")
    k("s_mov_b32 s42, 0"); dma_stage()
    k(f"s_mov_b32 s42, {STG}"); dma_stage()
    k(f"s_mov_b32 s42, {2*STG}")
    k(f"v_mov_b32 v{vCur}, v{vTmp}")
    k(f"v_add_u32 v{vNxt}, {STG}, v{vTmp}")
    k(f"s_mov_b32 s43, {STG}")
    for r in range(16): k(f"v_mov_b32 v{OA+r}, 0"); k(f"v_mov_b32 v{OB+r}, 0")
    for r in range(4): k(f"v_mov_b32 v{LA+r}, 0"); k(f"v_mov_b32 v{LB+r}, 0")
    for r in range(8): k(f"v_mov_b32 v{PB+r}, 0"); k(f"v_mov_b32 v{VF[1]+r}, 0")
    def wo_ring():
        lnp = k.lab("p2nopf")
        k("s_cmp_lg_u32 s46, 0"); k(f"s_cbranch_scc1 {lnp}")
        for t in range(4):
            for d in w35_dma(vW3, 8, t):
                for l in d: k(l)
            k(W3ADV)
        k(f"{lnp}:")
    if WOPF == 0:
        lnp = k.lab("p2nopf"); lj = k.lab("p2pfj")
        k("s_cmp_lg_u32 s46, 0"); k(f"s_cbranch_scc1 {lnp}")
        for t in range(4):
            for d in w35_dma(vW3, 8, t):
                for l in d: k(l)
            k(W3ADV)
        k("s_waitcnt vmcnt(12)")
        k(f"s_branch {lj}")
        k(f"{lnp}:")
        k("s_waitcnt vmcnt(4)")
        k(f"{lj}:")
    else:
        k("s_waitcnt vmcnt(4)")
    k("s_barrier")
    k.stamp("p2_go")
    if WOPF == 1: wo_ring()
    for kk in range(2):
        k(f"ds_read_b128 v[{KF[0]+4*kk}:{KF[0]+4*kk+3}], v{vCur} offset:{1024*kk}")
    k("s_waitcnt lgkmcnt(0)")
    def qk(Sx, Qx, Nx, kf):
        return [f"v_mfma_f32_32x32x16_bf16 v[{Sx}:{Sx+15}], v[{kf}:{kf+3}], v[{Qx}:{Qx+3}], v[{Nx}:{Nx+15}]",
                f"v_mfma_f32_32x32x16_bf16 v[{Sx}:{Sx+15}], v[{kf+4}:{kf+7}], v[{Qx+4}:{Qx+7}], v[{Sx}:{Sx+15}]"]
    def pv(Ox, Px, Lx, vf):
        return [f"v_mfma_f32_32x32x16_bf16 v[{Ox}:{Ox+15}], v[{vf}:{vf+3}], v[{Px}:{Px+3}], v[{Ox}:{Ox+15}]",
                f"v_mfma_f32_32x32x16_bf16 v[{Ox}:{Ox+15}], v[{vf+4}:{vf+7}], v[{Px+4}:{Px+7}], v[{Ox}:{Ox+15}]",
                f"v_mfma_f32_16x16x32_bf16 v[{Lx}:{Lx+3}], v[{ONE}:{ONE+3}], v[{Px}:{Px+3}], v[{Lx}:{Lx+3}]",
                f"v_mfma_f32_16x16x32_bf16 v[{Lx}:{Lx+3}], v[{ONE}:{ONE+3}], v[{Px+4}:{Px+7}], v[{Lx}:{Lx+3}]"]
    def expv(Sx, Px):
        o = []
        for g in range(4):
            o += [f"v_exp_f32 v{Sx+4*g+r}, v{Sx+4*g+r}" for r in range(4)]
            o += [f"v_cvt_pk_bf16_f32 v{Px+2*g}, v{Sx+4*g}, v{Sx+4*g+1}", f"v_cvt_pk_bf16_f32 v{Px+2*g+1}, v{Sx+4*g+2}, v{Sx+4*g+3}"]
        return o
    def phase(mf, va, extra):
        for i in range(6):
            k(mf[i])
            for (p, l) in extra:
                if p == i: k(l)
            for l in va[4*i:4*i+4]: k(l)
    for l in qk(SA, QA, NA, KF[0]): k(l)
    k("s_mov_b32 s44, 0")
    k(f"{lloop}:")
    for i in range(4):
        cb = i & 1; nb = cb ^ 1
        ex = []
        if i == 3:
            lnd = k.lab("nodma")
            k(f"s_waitcnt vmcnt({(1 if PFW and PFI < 3 else 0) + (1 if JIT & 2 else 0)})")
            k("s_barrier")
            k("s_cmp_ge_u32 s44, 6")
            k(f"s_cbranch_scc1 {lnd}")
            dma_stage()
            k(f"s_add_u32 s42, s42, {STG}")
            k(f"s_cmp_eq_u32 s42, {3*STG}")
            k("s_cselect_b32 s42, 0, s42")
            k(f"{lnd}:")
            if WDT == 1:
                lw = k.lab("nowd"); ls = k.lab("wdst")
                k("s_sub_u32 s27, s44, s101"); k("s_cmp_lt_u32 s27, 2"); k(f"s_cbranch_scc0 {lw}")
                k("s_cmp_eq_u32 s27, 1"); k(f"s_cbranch_scc1 {ls}")
                for q in range(4):
                    k(f"buffer_load_dwordx4 v[{WDR+4*q}:{WDR+4*q+3}], v{vL16}, s[60:63], s100 offen offset:{1024*q}")
                k(f"s_branch {lw}")
                k(f"{ls}:")
                for q in range(4):
                    k(f"buffer_store_dwordx4 v[{WDR+4*q}:{WDR+4*q+3}], v{vWDS}, s[12:15], s{98 + (q & 1)} offen offset:{128*(q>>1)}{SC}")
                k(f"{lw}:")
            if WDT == 2:
                k("s_sub_u32 s27, s44, s101"); k("s_sub_u32 s27, s27, 1")
                k("s_cmp_lt_u32 s27, 4"); k("s_cselect_b64 exec, -1, 0")
                k(f"buffer_store_dwordx4 v[{WDR}:{WDR+3}], v{vWDS}, s[12:15], s98 offen{SC}")
                k("s_add_u32 s27, s27, 1")
                k("s_cmp_lt_u32 s27, 4"); k("s_cselect_b64 exec, -1, 0")
                k(f"buffer_load_dwordx4 v[{WDR}:{WDR+3}], v{vL16}, s[60:63], s100 offen")
                k("s_mov_b64 exec, -1")
                k("s_add_u32 s98, s98, s99"); k("s_sub_u32 s99, 128, s99"); k("s_add_u32 s100, s100, 1024")
        if i == PFI and PFW:
            ex += [(4, "buffer_load_dword v199, v198, s[88:91], 0 offen"),
                   (5, "s_mov_b64 s[88:89], s[92:93]"), (5, "s_mov_b64 s[92:93], s[94:95]"), (5, "s_mov_b64 s[94:95], s[96:97]"),
                   (5, f"s_cmp_lt_u32 s44, {2 if WDT else 3}"), (5, f"s_cselect_b32 s90, {hex(D*DF*2)}, 0")]
        if i == 0 and JIT & 2:
            ex += [(5, "buffer_load_dword v231, v252, s[80:83], s52 offen")]
        for kk in range(2):
            if i < 3: ex.append((kk, f"ds_read_b128 v[{KF[nb]+4*kk}:{KF[nb]+4*kk+3}], v{vCur} offset:{(i+1)*2048 + 1024*kk}"))
            else:     ex.append((kk, f"ds_read_b128 v[{KF[nb]+4*kk}:{KF[nb]+4*kk+3}], v{vNxt} offset:{1024*kk}"))
        for mm in range(2):
            ex.append((2 + mm, f"ds_read_b128 v[{VF[cb]+4*mm}:{VF[cb]+4*mm+3}], v{vCur} offset:{8192 + i*2048 + 1024*mm}"))
        phase(qk(SB, QB, NB, KF[cb]) + pv(OB, PB, LB, VF[nb]), expv(SA, PA), ex)
        k("s_waitcnt lgkmcnt(0)")
        ex = []
        if i == 3:
            ex = [(0, f"v_mov_b32 v{vCur}, v{vNxt}"), (1, f"s_add_u32 s43, s43, {STG}"), (1, f"s_cmp_eq_u32 s43, {3*STG}"),
                  (2, "s_cselect_b32 s43, 0, s43"), (3, f"v_add_u32 v{vNxt}, s43, v{vTmp}")]
            if WDT == 3:
                p = WDP
                ex += [(p, x) for x in ("s_cmp_lt_u32 s101, 4", "s_cselect_b64 exec, -1, 0",
                       f"buffer_store_dwordx4 v[{WDR}:{WDR+3}], v{vWDS}, s[12:15], s98 offen{SC}",
                       "s_add_u32 s101, s101, 1", "s_cmp_lt_u32 s101, 4", "s_cselect_b64 exec, -1, 0",
                       f"buffer_load_dwordx4 v[{WDR}:{WDR+3}], v{vL16}, s[60:63], s100 offen", "s_mov_b64 exec, -1")]
                ex += [(5, x) for x in ("s_add_u32 s98, s98, s99", "s_sub_u32 s99, 128, s99", "s_add_u32 s100, s100, 1024")]
        phase(qk(SA, QA, NA, KF[nb]) + pv(OA, PA, LA, VF[cb]), expv(SB, PB), ex)
    k("s_add_u32 s44, s44, 1")
    k("s_cmp_lt_u32 s44, 8")
    k(f"s_cbranch_scc1 {lloop}")
    if JIT & 2: k("L_p2tail:")
    for l in pv(OB, PB, LB, VF[1]): k(l)
    k.stamp("p2_loop")
    if WOPF == 2: wo_ring()
    k("s_nop 7"); k("s_nop 3")
    lns = k.lab("nosw")
    k("s_cmp_eq_u32 s24, 0")
    k(f"s_cbranch_scc1 {lns}")
    for r in range(16): k(f"v_swap_b32 v{OA+r}, v{OB+r}")
    k(f"v_swap_b32 v{LA}, v{LB}")
    k(f"{lns}:")
    k("s_barrier")
    k("s_mul_i32 s25, s20, 5120")
    k(f"v_add_u32 v{T0}, s25, v{vL16}")
    k(f"v_lshlrev_b32 v{T0+1}, 2, v1"); k(f"v_add_u32 v{T0+1}, s25, v{T0+1}")
    for i in range(4): k(f"ds_write_b128 v{T0}, v[{OB+4*i}:{OB+4*i+3}] offset:{1024*i}")
    k(f"ds_write_b32 v{T0+1}, v{LB} offset:4096")
    k("s_xor_b32 s26, s20, 4"); k("s_mul_i32 s25, s26, 5120")
    k(f"v_add_u32 v{T0}, s25, v{vL16}")
    k(f"v_lshlrev_b32 v{T0+1}, 2, v1"); k(f"v_add_u32 v{T0+1}, s25, v{T0+1}")
    k("s_waitcnt lgkmcnt(0)")
    k("s_barrier")
    for i in range(4): k(f"ds_read_b128 v[{OB+4*i}:{OB+4*i+3}], v{T0} offset:{1024*i}")
    k(f"ds_read_b32 v{LB}, v{T0+1} offset:4096")
    k("s_waitcnt lgkmcnt(0)")
    k(f"v_add_f32 v{LA}, v{LA}, v{LB}")
    for r in range(16): k(f"v_add_f32 v{OA+r}, v{OA+r}, v{OB+r}")
    k("s_cmp_lg_u32 s46, 0")
    k(f"s_cbranch_scc1 {lfin}")
    k(f"v_mov_b32 v{T0+2}, v{LA}")
    for r in range(16): k(f"v_fma_f32 v{T0+2}, v{OA+r}, 0, v{T0+2}")
    k(f"v_mov_b32 v{T0+3}, 0x71800000")
    k(f"v_cmp_le_f32 vcc, 1.0, v{T0+2}")
    k(f"v_cmp_le_f32 s[48:49], v{T0+2}, v{T0+3}")
    k("s_and_b64 vcc, vcc, s[48:49]")
    k("s_cmp_eq_u64 vcc, -1")
    k("s_cselect_b32 s47, 0, 1")
    k(f"v_mov_b32 v{T0+2}, s47")
    k(f"s_lshl_b32 s25, s20, 2"); k(f"v_mov_b32 v{T0+3}, s25")
    k(f"ds_write_b32 v{T0+3}, v{T0+2} offset:45056")
    k("s_waitcnt lgkmcnt(0)")
    k("s_barrier")
    k(f"v_mov_b32 v{T0+3}, 0")
    k(f"ds_read_b128 v[{T0+4}:{T0+7}], v{T0+3} offset:45056")
    k(f"ds_read_b128 v[{T0+8}:{T0+11}], v{T0+3} offset:45072")
    k("s_waitcnt lgkmcnt(0)")
    k(f"v_or3_b32 v{T0+4}, v{T0+4}, v{T0+5}, v{T0+6}")
    k(f"v_or3_b32 v{T0+8}, v{T0+8}, v{T0+9}, v{T0+10}")
    k(f"v_or3_b32 v{T0+4}, v{T0+4}, v{T0+7}, v{T0+11}")
    k(f"v_or_b32 v{T0+4}, v{T0+4}, v{T0+8}")
    k(f"v_readfirstlane_b32 s47, v{T0+4}")
    k("s_cmp_lg_u32 s47, 0")
    k(f"s_cbranch_scc1 {lfb}")
    k(f"{lfin}:")
    k(f"v_rcp_f32 v{LA}, v{LA}")
    for g in range(4):
        for r in range(4): k(f"v_mul_f32 v{OA+4*g+r}, v{OA+4*g+r}, v{LA}")
        k(f"v_cvt_pk_bf16_f32 v{SA+2*g}, v{OA+4*g}, v{OA+4*g+1}")
        k(f"v_cvt_pk_bf16_f32 v{SA+2*g+1}, v{OA+4*g+2}, v{OA+4*g+3}")
    k("s_lshl_b32 s25, s24, 16"); k("s_add_u32 s45, s45, s25")
    for p in range(2):
        k(f"v_permlane32_swap_b32 v{SA+4*p}, v{SA+4*p+2}")
        k(f"v_permlane32_swap_b32 v{SA+4*p+1}, v{SA+4*p+3}")
        k(f"buffer_store_dwordx4 v[{SA+4*p}:{SA+4*p+3}], v{vL16}, s[12:15], s45 offen offset:{1024*p}{SC}")
    k(f"s_branch {lend}")
    k(f"{lfb}:")
    k("s_mov_b32 s46, 1")
    if WDT: k("s_mov_b32 s101, 99")
    k("s_barrier")
    MA, MB = T0 + 2, T0 + 3
    k(f"v_mov_b32 v{MA}, 0xff800000"); k(f"v_mov_b32 v{MB}, 0xff800000")
    k("s_lshl_b32 s40, s24, 21"); k("s_lshl_b32 s25, s21, 11"); k("s_add_u32 s40, s40, s25"); k(f"s_add_u32 s40, s40, {WS_K}")
    k("s_mov_b32 s44, 0")
    lfl = k.lab("p2fbl")
    k(f"{lfl}:")
    for kk in range(2):
        k(f"buffer_load_dwordx4 v[{KF[0]+4*kk}:{KF[0]+4*kk+3}], v{vL16}, s[12:15], s40 offen offset:{1024*kk}{SC}")
    k("s_waitcnt vmcnt(0)")
    for (Sx, Qx) in ((SA, QA), (SB, QB)):
        k(f"v_mfma_f32_32x32x16_bf16 v[{Sx}:{Sx+15}], v[{KF[0]}:{KF[0]+3}], v[{Qx}:{Qx+3}], 0")
        k(f"v_mfma_f32_32x32x16_bf16 v[{Sx}:{Sx+15}], v[{KF[0]+4}:{KF[0]+7}], v[{Qx+4}:{Qx+7}], v[{Sx}:{Sx+15}]")
    for (Sx, Mx) in ((SA, MA), (SB, MB)):
        for r in range(0, 16, 2): k(f"v_max3_f32 v{Mx}, v{Mx}, v{Sx+r}, v{Sx+r+1}")
    k("s_add_u32 s40, s40, 65536")
    k("s_add_u32 s44, s44, 1")
    k("s_cmp_lt_u32 s44, 32")
    k(f"s_cbranch_scc1 {lfl}")
    for Mx in (MA, MB):
        k(f"v_mov_b32 v{T0+4}, v{Mx}")
        k(f"v_permlane32_swap_b32 v{Mx}, v{T0+4}")
        k(f"v_max_f32 v{Mx}, v{Mx}, v{T0+4}")
    k("s_lshl_b32 s25, s20, 9")
    k(f"v_lshlrev_b32 v{T0+4}, 3, v1"); k(f"v_add_u32 v{T0+5}, s25, v{T0+4}")
    k(f"ds_write_b64 v{T0+5}, v[{MA}:{MB}]")
    k("s_xor_b32 s26, s20, 4"); k("s_lshl_b32 s25, s26, 9")
    k(f"v_add_u32 v{T0+5}, s25, v{T0+4}")
    k("s_waitcnt lgkmcnt(0)")
    k("s_barrier")
    k(f"ds_read_b64 v[{T0+6}:{T0+7}], v{T0+5}")
    k("s_waitcnt lgkmcnt(0)")
    k(f"v_max_f32 v{MA}, v{MA}, v{T0+6}")
    k(f"v_max_f32 v{MB}, v{MB}, v{T0+7}")
    for r in range(16):
        k(f"v_sub_f32 v{NA+r}, 0, v{MA}")
        k(f"v_sub_f32 v{NB+r}, 0, v{MB}")
    k("s_barrier")
    k(f"s_branch {lmain}")
    k(f"{lend}:")
    k.stamp("p2_epi")
    k("s_lshl_b32 s27, s22, 7"); k(f"s_add_u32 s27, s27, {WS_CNT + C3*128}")
    signal(k, 27, vt=(T0, T0 + 1))
    k.stamp("p2_sig")

SLOT4 = 30720; UOFF = 7168; BOFF4 = 14336
RMOFF = 75776; XMOFF = 83968; HKOFF = 147456
vPW = 202
vW5 = [240, 241]
NPF5 = int(os.environ.get("NPF5", "3"))
NS5 = int(os.environ.get("NS5", "5")); R3 = int(os.environ.get("R3", "4")); R5 = int(os.environ.get("R5", "6"))
def w4_piece_lane(k, vdst, vidx, t):
    k(f"v_mul_u32_u24 v{t}, 4682, v{vidx}"); k(f"v_lshrrev_b32 v{t}, 16, v{t}")
    k(f"v_mul_u32_u24 v{t+1}, 14, v{t}"); k(f"v_sub_u32 v{t+1}, v{vidx}, v{t+1}")
    k(f"v_and_b32 v{t+2}, 0x33, v{t}")
    k(f"v_bfe_u32 v{vidx}, v{t}, 2, 1"); k(f"v_lshl_add_u32 v{t+2}, v{vidx}, 3, v{t+2}")
    k(f"v_bfe_u32 v{vidx}, v{t}, 3, 1"); k(f"v_lshl_add_u32 v{t+2}, v{vidx}, 2, v{t+2}")
    k(f"v_mul_u32_u24 v{t+2}, 7168, v{t+2}")
    k(f"v_lshl_add_u32 v{vdst}, v{t+1}, 4, v{t+2}")
def coords4(k, stb, scb, st):
    k("s_and_b32 s21, s2, 7"); k("s_lshr_b32 s22, s2, 3")
    k(f"s_and_b32 s{stb}, s21, 1"); k(f"s_lshl_b32 s{stb}, s{stb}, 2"); k(f"s_and_b32 s{st}, s22, 3"); k(f"s_add_u32 s{stb}, s{stb}, s{st}")
    k(f"s_lshr_b32 s{scb}, s21, 1"); k(f"s_lshl_b32 s{scb}, s{scb}, 3"); k(f"s_lshr_b32 s{st}, s22, 2"); k(f"s_add_u32 s{scb}, s{scb}, s{st}")
def pf4_setup(k, t):
    coords4(k, 27, 29, 28)
    k("s_mul_i32 s40, s29, 224")
    k("s_min_u32 s27, s20, 6"); k("s_lshl_b32 s42, s27, 10"); k("s_lshl_b32 s27, s27, 6")
    k(f"v_add_u32 v{t+3}, s27, v1")
    w4_piece_lane(k, vPW, t + 3, t)
    srd(k, 52, pWG, D * DF * 2); srd(k, 56, pWU, D * DF * 2)
def pf4(tile):
    o = []
    for m in range(2):
        g = []
        if m == 0: g.append(f"s_add_u32 s41, s40, {tile*32*7168}")
        g += [f"s_add_u32 m0, s42, {tile*SLOT4 + m*UOFF}", f"buffer_load_dwordx4 v{vPW}, s[{52+4*m}:{55+4*m}], s41 offen lds"]
        o.append(g)
    return o

JS3 = int(os.environ.get("JS3", "2")); JT4 = int(os.environ.get("JT4", "28"))
def phase35(k, kind):
    wo = kind == "wo"
    KD = D if wo else DF
    NT = KD // 128
    NS = 4 if wo else NS5
    R = R3 if wo else R5
    WSB = WS_O if wo else WS_HM
    T32B = KD * 64
    base = W3BASE if wo else 0
    vW = vW3 if wo else vW5
    WADV = W3ADV if wo else W5ADV
    SW = 8 if wo else SW5
    vA = [2, 3, 4, 5]; vBj = [6, 7]; vR = 10; vO = 11; vT = 12; vRM = 8; vHK = 9
    RES = 16; A = [24, 40]; ACC = 56; ACM = 88; RMF = [96, 100]; BR = 104
    MX = 15
    acc = lambda i, j: ACC + (j * 4 + i) * 4
    pre = "p3" if wo else "p5"
    coords35(k, 23, 24, 25)
    k("s_and_b32 s25, s20, 3")
    k("s_lshr_b32 s26, s20, 2")
    k("s_lshl_b32 s31, s23, 2"); k("s_add_u32 s31, s31, s25"); k(f"s_mul_i32 s31, s31, {T32B}")
    k("s_lshl_b32 s28, s26, 12"); k("s_add_u32 s31, s31, s28"); k(f"s_add_u32 s31, s31, {WSB}")
    k(f"v_lshrrev_b32 v{vT}, 4, v1"); k(f"v_and_b32 v{vT+1}, 15, v1")
    k(f"v_lshlrev_b32 v{vT+2}, 4, v{vT+1}"); k(f"v_lshl_add_u32 v{vT+2}, v{vT}, 9, v{vT+2}")
    k("s_lshl_b32 s28, s26, 8")
    k(f"v_add_u32 v{vBj[0]}, s28, v{vT+2}")
    k(f"v_xor_b32 v{vBj[1]}, 256, v{vBj[0]}")
    k(f"v_and_b32 v{vT+2}, 1, v{vT}"); k(f"v_lshlrev_b32 v{vT+2}, 1, v{vT+2}"); k(f"v_lshrrev_b32 v{vT+3}, 1, v{vT}")
    k(f"v_add_u32 v{vT+2}, v{vT+2}, v{vT+3}")
    rm = vR if wo else vO
    k(f"v_lshlrev_b32 v{rm}, 11, v{vT+1}"); k(f"v_lshl_add_u32 v{rm}, v{vT+2}, 4, v{rm}")
    k("s_lshl_b32 s33, s23, 2"); k("s_add_u32 s33, s33, s25"); k("s_lshl_b32 s33, s33, 1"); k("s_add_u32 s33, s33, s26")
    k("s_lshl_b32 s35, s33, 4")
    k("s_lshl_b32 s33, s33, 15"); k("s_lshl_b32 s28, s24, 7"); k("s_add_u32 s33, s33, s28")
    if wo:
        k(f"v_lshlrev_b32 v{vO}, 9, v{vT+2}"); k(f"v_lshl_add_u32 v{vO}, v{vT+1}, 4, v{vO}")
        k("s_lshl_b32 s34, s23, 2"); k("s_add_u32 s34, s34, s25"); k("s_lshl_b32 s34, s34, 16")
        k("s_lshl_b32 s28, s24, 12"); k("s_add_u32 s34, s34, s28"); k("s_lshl_b32 s28, s26, 8"); k("s_add_u32 s34, s34, s28")
        k(f"s_add_u32 s34, s34, {WS_H}")
        k("s_lshl_b32 s28, s20, 10"); k(f"s_add_u32 s28, s28, {RMOFF}")
        k(f"v_lshl_add_u32 v{vRM}, v{vT}, 4, s28")
    k("s_lshl_b32 s28, s20, 11"); k(f"s_add_u32 s28, s28, {HKOFF}")
    k(f"v_lshl_add_u32 v{vHK}, v1, 4, s28")
    k(f"v_bfe_u32 v{vT+1}, v1, 2, 2")
    k(f"v_lshrrev_b32 v{vT+2}, 1, v{vT}"); k(f"v_and_b32 v{vT+3}, 1, v{vT}")
    k(f"v_lshlrev_b32 v{vT+2}, 4, v{vT+2}"); k(f"v_lshl_add_u32 v{vT+2}, v{vT+3}, 2, v{vT+2}")
    k(f"v_add_u32 v{vT+2}, v{vT+2}, v{vT+1}"); k(f"v_lshlrev_b32 v{vT+2}, 7, v{vT+2}")
    k(f"v_lshrrev_b32 v{vT+1}, 1, v{vT+1}"); k(f"v_lshl_add_u32 v{vT+1}, v{vT+3}, 1, v{vT+1}")
    k(f"v_and_b32 v{vT+3}, 3, v1"); k(f"v_lshl_add_u32 v{vT+2}, v{vT+3}, 3, v{vT+2}")
    k("s_lshl_b32 s28, s26, 13")
    if base: k(f"s_add_u32 s28, s28, {base}")
    k(f"v_add_u32 v{vT+2}, s28, v{vT+2}")
    for i in range(4):
        k(f"v_xor_b32 v{vT+3}, {i}, v{vT+1}")
        k(f"v_lshl_add_u32 v{vA[i]}, v{vT+3}, 5, v{vT+2}")
    hiA = NS * 16384 > 65536
    vA2 = [204, 205, 206, 207]
    if hiA:
        for i in range(4): k(f"v_add_u32 v{vA2[i]}, 65536, v{vA[i]}")
    srd(k, 16, pX if wo else pOUT, MB4)
    if not wo and OT == 1:
        k(f"buffer_load_dword v{RES}, v{vO}, s[16:19], s33 offen")
    if wo and COA & 4:
        for p in range(2): k(f"buffer_load_dwordx4 v[{RES+4*p}:{RES+4*p+3}], v{vR}, s[16:19], s33 offen offset:{64*p}")
    if not wo and COA & 8:
        k(f"v_and_b32 v{vT}, 15, v1"); k(f"v_lshrrev_b32 v{vT+1}, 4, v1")
        k(f"v_and_b32 v{vT+2}, 1, v{vT+1}"); k(f"v_lshlrev_b32 v{vT+2}, 1, v{vT+2}"); k(f"v_lshrrev_b32 v{vT+1}, 1, v{vT+1}"); k(f"v_add_u32 v{vT+1}, v{vT+1}, v{vT+2}")
        k(f"v_xor_b32 v{vT+1}, v{vT+1}, v{vT}"); k(f"v_and_b32 v{vT+1}, 7, v{vT+1}"); k(f"v_lshlrev_b32 v{vT+1}, 4, v{vT+1}")
        k("s_lshl_b32 s28, s20, 12"); k("s_xor_b32 s28, s28, 16384"); k("s_add_u32 s28, s28, 98304")
        k(f"v_lshl_add_u32 v{vT+1}, v{vT}, 7, v{vT+1}"); k(f"v_add_u32 v88, s28, v{vT+1}"); k("v_xor_b32 v89, 64, v88")
        k(f"v_lshrrev_b32 v{vT}, 3, v1"); k(f"v_and_b32 v{vT+1}, 7, v1")
        k(f"v_lshlrev_b32 v{vO}, 11, v{vT}"); k(f"v_lshl_add_u32 v{vO}, v{vT+1}, 4, v{vO}")
        k(f"v_xor_b32 v{vT+1}, v{vT+1}, v{vT}"); k(f"v_lshlrev_b32 v{vT+1}, 4, v{vT+1}"); k(f"v_lshl_add_u32 v{vT+1}, v{vT}, 7, v{vT+1}")
        k(f"v_add_u32 v90, s28, v{vT+1}")
        k("s_add_u32 s34, s33, 16384")
    for r in range(ACC, ACC + (40 if wo else 32)): k(f"v_mov_b32 v{r}, 0")
    if wo:
        pf4_setup(k, vT)
        k(f"v_lshrrev_b32 v{vT}, 3, v1"); k(f"v_and_b32 v{vT+1}, 7, v1"); k(f"v_lshlrev_b32 v{vT+1}, 4, v{vT+1}")
        k(f"v_lshl_add_u32 v{vT+1}, v{vT}, 8, v{vT+1}"); k("s_lshl_b32 s28, s26, 7"); k(f"v_add_u32 v{vT+1}, s28, v{vT+1}")
        k(f"v_and_b32 v{vT+2}, 15, v1"); k(f"v_lshlrev_b32 v{vT+2}, 2, v{vT+2}")
    vm = VM()
    if not wo:
        for t in range(NPF5, NS):
            for d in w35_dma(vW, SW, t):
                for l in d: k(l)
            k(WADV); vm.issue(("W", t), 2)
    k("s_lshr_b32 s27, s23, 1"); k("s_lshl_b32 s27, s27, 7"); k(f"s_add_u32 s27, s27, {WS_CNT + (C3 if wo else C5)*128}")
    wait(k, 27, 32, vt=(A[0], A[0] + 1) if wo and COA & 4 else (RES, RES + 1), pr=A[1])
    k.stamp(pre + "_wait")
    NSTEP = 2 * NT
    def bld(s):
        b = BR + (s % R) * 8
        return [f"buffer_load_dwordx4 v[{b+4*j}:{b+4*j+3}], v{vBj[j]}, s[12:15], s31 offen{SC}" for j in range(2)]
    def badv(s): return f"s_add_u32 s31, s31, {2048 if s % 2 == 0 else 6144}"
    if wo:
        k("s_lshl_b32 s28, s20, 10"); k(f"s_add_u32 m0, s28, {RMOFF}")
        k(f"s_mov_b32 s28, {WS_RM}")
        k(f"buffer_load_dwordx4 v{vT+1}, s[12:15], s28 offen{SC} lds"); vm.issue("RM")
    for s in range(R):
        for l in bld(s): k(l); vm.issue(("B", s))
        k(badv(s))
    if wo:
        for p in range(2 if not COA & 4 else 0):
            k(f"buffer_load_dwordx4 v[{RES+4*p}:{RES+4*p+3}], v{vR}, s[16:19], s33 offen offset:{64*p}"); vm.issue("res")
        k("s_lshl_b32 s28, s35, 2"); k(f"s_add_u32 s28, s28, {WS_MX}")
        k(f"buffer_load_dword v{MX}, v{vT+2}, s[12:15], s28 offen{SC}"); vm.issue("res")
    def areads(s, buf):
        t = s // 2; sl = t % NS
        va = vA if sl < 4 else vA2
        o = [f"ds_read_b64_tr_b16 v[{A[buf]+4*i+2*tt}:{A[buf]+4*i+2*tt+1}], v{va[i]} offset:{(sl & 3)*16384 + (s&1)*4096 + tt*1024}"
             for i in range(4) for tt in range(2)]
        return o
    def rmread(s, buf): return f"ds_read_b128 v[{RMF[buf]}:{RMF[buf]+3}], v{vRM} offset:{(s >> 1)*128 + (s & 1)*64}"
    for l in areads(0, 0): k(l)
    if wo:
        k(f"s_waitcnt vmcnt({vm.cnt({'RM'})})")
        k(rmread(0, 0))
    k.stamp(pre + "_go")
    texts = []
    for per in range((NT + NS - 1) // NS):
        o = []
        for s in range(per * 2 * NS, min((per + 1) * 2 * NS, NSTEP)):
            t = s // 2; cur = s & 1; nxt = cur ^ 1
            need = {("B", s)}
            if s & 1 and t + 1 < NT: need.add(("W", t + 1))
            n = vm.cnt(need)
            o.append(f"s_waitcnt vmcnt({min(n, 63)}) lgkmcnt(0)")
            rd = []; dm = []
            if s & 1:
                if t + 1 < NT:
                    o.append("s_barrier"); rd = areads(s + 1, nxt)
                if t + NS < NT: dm = w35_dma(vW, SW, t % NS)
            else:
                rd = areads(s + 1, nxt)
            if wo and s + 1 < NSTEP: rd = rd + [rmread(s + 1, nxt)]
            mf = []
            b = BR + (s % R) * 8
            for i in range(4):
                for j in range(2):
                    a = acc(i, j)
                    mf.append(f"v_mfma_f32_16x16x32_bf16 v[{a}:{a+3}], v[{A[cur]+4*i}:{A[cur]+4*i+3}], v[{b+4*j}:{b+4*j+3}], v[{a}:{a+3}]")
            if wo:
                for j in range(2):
                    a = ACM + 4 * j
                    mf.append(f"v_mfma_f32_16x16x32_bf16 v[{a}:{a+3}], v[{RMF[cur]}:{RMF[cur]+3}], v[{b+4*j}:{b+4*j+3}], v[{a}:{a+3}]")
            gaps = [[] for _ in mf]
            for q, r in enumerate(rd): gaps[min(q, len(mf) - 1)].append(r)
            if dm:
                gaps[0].append(dm[0][0]); gaps[1].append(dm[0][1]); gaps[2].append(dm[1][0]); gaps[3].append(dm[1][1]); gaps[4].append(WADV)
                vm.issue(("W", t + NS), 2)
            if wo and s == JS3 and JIT & 4:
                assert s % 2 == 0
                gaps[1] += jit("L_p3tail", 29, 203); vm.issue("CP")
            if s + R < NSTEP:
                gaps[len(mf) - 1] += bld(s + R) + [badv(s + R)]
                vm.issue(("B", s + R), 2)
            if wo and s == NSTEP - R:
                q = 0
                for tl in range(3):
                    for g in pf4(tl):
                        gaps[min(q, len(mf) - 1)] += g; q += 1
                        vm.issue("PF")
            for g, mm in enumerate(mf):
                o.append(mm); o += gaps[g]
        texts.append(o)
    periods(k, pre + "loop", texts, 36)
    if wo and JIT & 4: k("L_p3tail:")
    k.stamp(pre + "_loop")
    if wo:
        k("s_and_b32 s27, s20, 3"); k("s_lshl_b32 s27, s27, 12"); k(f"s_mul_i32 s28, s26, {SLOT4}"); k("s_add_u32 s27, s27, s28"); k(f"s_add_u32 s27, s27, {BOFF4}")
        k(f"v_lshlrev_b32 v{vT}, 4, v1"); k(f"v_add_u32 v{vT+1}, s27, v{vT}")
        k("s_and_b32 s27, s20, 3"); k("s_lshl_b32 s27, s27, 12"); k("s_xor_b32 s28, s26, 1"); k(f"s_mul_i32 s28, s28, {SLOT4}"); k("s_add_u32 s27, s27, s28"); k(f"s_add_u32 s27, s27, {BOFF4}")
        k(f"v_add_u32 v{vT+2}, s27, v{vT}")
        k("s_lshl_b32 s27, s20, 8"); k(f"s_add_u32 s27, s27, {XMOFF}")
        k(f"v_lshl_add_u32 v{vRM}, v1, 2, s27")
        k(f"ds_write_b32 v{vRM}, v{ACM+4}")
        k(f"v_xor_b32 v{vRM}, 1024, v{vRM}")
    else:
        XCH = 98304
        k("s_lshl_b32 s27, s20, 12"); k(f"s_add_u32 s27, s27, {XCH}")
        k(f"v_lshlrev_b32 v{vT}, 4, v1"); k(f"v_add_u32 v{vT+1}, s27, v{vT}")
        k("s_lshl_b32 s27, s20, 12"); k("s_xor_b32 s27, s27, 16384"); k(f"s_add_u32 s27, s27, {XCH}"); k(f"v_add_u32 v{vT+2}, s27, v{vT}")
    for i in range(4): k(f"ds_write_b128 v{vT+1}, v[{acc(i,1)}:{acc(i,1)+3}] offset:{1024*i}")
    k("s_waitcnt lgkmcnt(0)")
    k("s_barrier")
    for i in range(4): k(f"ds_read_b128 v[{acc(i,1)}:{acc(i,1)+3}], v{vT+2} offset:{1024*i}")
    if wo:
        k(f"ds_read_b32 v{ACM+4}, v{vRM}")
        for g in pf4(3):
            for l in g: k(l)
    else:
        for p in range(2): k(f"ds_read_b128 v[{RES+4*p}:{RES+4*p+3}], v{vHK} offset:{1024*p}")
    k("s_waitcnt lgkmcnt(0)")
    def padd(d, a, b, bc=False):
        if wo:
            k(f"v_add_f32 v{d}, v{a}, v{b}"); k(f"v_add_f32 v{d+1}, v{a+1}, v{b if bc else b+1}")
        else: k(f"v_pk_add_f32 v[{d}:{d+1}], v[{a}:{a+1}], v[{b}:{b+1}]")
    for i in range(4):
        for r in range(0, 4, 2): padd(acc(i,0)+r, acc(i,0)+r, acc(i,1)+r)
    for p in range(2):
        for r in range(4): k(f"v_permlane16_swap_b32 v{acc(2*p,0)+r}, v{acc(2*p+1,0)+r}")
    U = A[0]
    k(f"v_mov_b32 v{vT+3 if not wo else vT}, 0xffff0000")
    vMask = vT + 3 if not wo else vT
    if wo:
        k("s_waitcnt vmcnt(8)")
        k(f"v_add_f32 v{ACM}, v{ACM}, v{ACM+4}")
        k(f"v_add_f32 v{ACM}, v{ACM}, v{MX}")
        k(f"v_sub_f32 v{ACM}, 0, v{ACM}")
    for p in range(2):
        for q in range(4):
            a = acc(2 * p, 0) + 2 * q
            k(f"v_lshlrev_b32 v{U+2*q}, 16, v{RES+4*p+q}")
            k(f"v_and_b32 v{U+2*q+1}, v{vMask}, v{RES+4*p+q}")
        for q in range(4):
            a = acc(2 * p, 0) + 2 * q
            padd(a, a, U+2*q)
        for q in range(4):
            a = acc(2 * p, 0) + 2 * q
            k(f"v_cvt_pk_bf16_f32 v{RES+4*p+q}, v{a}, v{a+1}")
        if wo:
            k(f"ds_write_b128 v{vHK}, v[{RES+4*p}:{RES+4*p+3}] offset:{1024*p}")
            HC = U + 8 + 4 * p
            for q in range(4):
                a = acc(2 * p, 0) + 2 * q
                padd(a, a, ACM, True)
            for q in range(4):
                a = acc(2 * p, 0) + 2 * q
                k(f"v_cvt_pk_bf16_f32 v{HC+q}, v{a}, v{a+1}")
            k(f"buffer_store_dwordx4 v[{HC}:{HC+3}], v{vO}, s[12:15], s34 offen offset:{2048*p}{SC}")
        elif COA & 8:
            k(f"ds_write_b128 v{88+p}, v[{RES+4*p}:{RES+4*p+3}]")
        else:
            k(f"buffer_store_dwordx4 v[{RES+4*p}:{RES+4*p+3}], v{vO}, s[16:19], s33 offen offset:{64*p}{OUTSC}")
    if not wo and COA & 8:
        for q in range(2): k(f"ds_read_b128 v[{RES+4*q}:{RES+4*q+3}], v90 offset:{1024*q}")
        for q in range(2):
            k(f"s_waitcnt lgkmcnt({1-q})")
            k(f"buffer_store_dwordx4 v[{RES+4*q}:{RES+4*q+3}], v{vO}, s[16:19], s{33+q} offen{OUTSC}")
    if wo:
        s1 = U
        a0 = acc(0, 0)
        for r in range(4): k(f"v_mul_f32 v{s1+r}, v{a0+r}, v{a0+r}")
        for r in range(4, 16): k(f"v_fma_f32 v{s1+(r&3)}, v{a0+r}, v{a0+r}, v{s1+(r&3)}")
        k(f"v_add_f32 v{s1}, v{s1}, v{s1+1}"); k(f"v_add_f32 v{s1+2}, v{s1+2}, v{s1+3}"); k(f"v_add_f32 v{s1}, v{s1}, v{s1+2}")
        for sw in ("v_permlane16_swap_b32", "v_permlane32_swap_b32"):
            k(f"v_mov_b32 v{s1+2}, v{s1}"); k(f"{sw} v{s1}, v{s1+2}"); k(f"v_add_f32 v{s1}, v{s1}, v{s1+2}")
        k(f"v_and_b32 v{vT}, 15, v1"); k(f"v_lshlrev_b32 v{vT}, 2, v{vT}")
        if STL & 2:
            k("s_lshr_b32 s27, s35, 8"); k("s_lshl_b32 s27, s27, 14"); k("s_and_b32 s28, s35, 255"); k("s_lshl_b32 s28, s28, 2"); k("s_add_u32 s27, s27, s28")
            k("s_lshl_b32 s28, s24, 10"); k("s_add_u32 s27, s27, s28"); k(f"s_add_u32 s27, s27, {WS_ST}")
        else:
            k("s_lshl_b32 s27, s35, 2"); k("s_lshl_b32 s28, s24, 13"); k("s_add_u32 s27, s27, s28"); k(f"s_add_u32 s27, s27, {WS_ST}")
        k("s_mov_b64 exec, 0xffff")
        k(f"buffer_store_dword v{s1}, v{vT}, s[12:15], s27 offen{SC}")
        k("s_mov_b64 exec, -1")
        k.stamp(pre + "_epi")
        k("s_lshr_b32 s27, s23, 1"); k("s_lshl_b32 s27, s27, 7"); k(f"s_add_u32 s27, s27, {WS_CNT + C4*128}")
        k("s_waitcnt lgkmcnt(0)")
        signal(k, 27, vt=(RES, RES + 1))
        k.stamp(pre + "_sig")
    else:
        k.stamp(pre + "_epi")
OUTSC = os.environ.get("OUTSC", "")

def phase5k(k):
    assert WDT and NS5 == 5 and COA & 8
    NT = DF // 128; NS = NS5; R = R5K
    vW = vW5; SW = SW5
    vA = [2, 3, 4, 5]; vBj = [6, 7]; vTW = [8, 10]; vHK = 9; vO = 11; vT = 12; vTR = 200; vL = 201
    RES = 16; A = [24, 40]; ACC = 56; BR = 120
    assert BR + 8 * R <= 200
    XCH = NS * 16384
    acc = lambda c, i, j: ACC + c * 32 + (j * 4 + i) * 4
    T32B = DF * 64
    coords35(k, 23, 24, 25)
    k("s_and_b32 s25, s20, 3")
    k("s_lshr_b32 s26, s20, 2")
    k("s_lshl_b32 s31, s23, 2"); k("s_add_u32 s31, s31, s25"); k(f"s_mul_i32 s31, s31, {T32B}")
    k("s_lshl_b32 s28, s26, 11"); k("s_add_u32 s31, s31, s28"); k(f"s_add_u32 s31, s31, {WS_HM}")
    k("s_and_b32 s28, s24, 1"); k(f"s_mul_i32 s28, s28, {T32B//2}"); k("s_add_u32 s31, s31, s28")
    k(f"v_lshrrev_b32 v{vT}, 4, v1"); k(f"v_and_b32 v{vT+1}, 15, v1")
    k(f"v_lshlrev_b32 v{vT+2}, 4, v{vT+1}"); k(f"v_lshl_add_u32 v{vT+2}, v{vT}, 9, v{vT+2}")
    k("s_lshl_b32 s28, s26, 8")
    k(f"v_add_u32 v{vBj[0]}, s28, v{vT+2}")
    k(f"v_xor_b32 v{vBj[1]}, 256, v{vBj[0]}")
    k("s_lshl_b32 s33, s23, 2"); k("s_add_u32 s33, s33, s25"); k("s_lshl_b32 s33, s33, 1"); k("s_add_u32 s33, s33, s26")
    k("s_lshl_b32 s33, s33, 15"); k("s_lshl_b32 s28, s24, 7"); k("s_add_u32 s33, s33, s28")
    k("s_add_u32 s34, s33, 16384")
    k("s_lshl_b32 s28, s20, 11"); k(f"s_add_u32 s28, s28, {HKOFF}")
    k(f"v_lshl_add_u32 v{vHK}, v1, 4, s28")
    k(f"v_lshlrev_b32 v{vL}, 4, v1")
    k("s_lshl_b32 s38, s23, 4"); k("s_add_u32 s38, s38, s24"); k("s_xor_b32 s39, s38, 1")
    k("s_lshl_b32 s28, s20, 11"); k(f"s_add_u32 s28, s28, {WS_XI}")
    if SKF:
        k("s_lshl_b32 s40, s39, 10"); k(f"s_add_u32 s40, s40, {WS_XID}"); k("v_mov_b32 v203, 0")
        k(f"buffer_load_dword v202, v203, s[12:15], s40 offen{SC}")
    for r in (38, 39): k(f"s_lshl_b32 s{r}, s{r}, 14"); k(f"s_add_u32 s{r}, s{r}, s28")
    k(f"v_bfe_u32 v{vT+1}, v1, 2, 2")
    k(f"v_lshrrev_b32 v{vT+2}, 1, v{vT}"); k(f"v_and_b32 v{vT+3}, 1, v{vT}")
    k(f"v_lshlrev_b32 v{vT+2}, 4, v{vT+2}"); k(f"v_lshl_add_u32 v{vT+2}, v{vT+3}, 2, v{vT+2}")
    k(f"v_add_u32 v{vT+2}, v{vT+2}, v{vT+1}"); k(f"v_lshlrev_b32 v{vT+2}, 7, v{vT+2}")
    k(f"v_lshrrev_b32 v{vT+1}, 1, v{vT+1}"); k(f"v_lshl_add_u32 v{vT+1}, v{vT+3}, 1, v{vT+1}")
    k(f"v_and_b32 v{vT+3}, 3, v1"); k(f"v_lshl_add_u32 v{vT+2}, v{vT+3}, 3, v{vT+2}")
    k("s_lshl_b32 s28, s26, 12")
    k(f"v_add_u32 v{vT+2}, s28, v{vT+2}")
    for i in range(4):
        k(f"v_xor_b32 v{vT+3}, {i}, v{vT+1}")
        k(f"v_lshl_add_u32 v{vA[i]}, v{vT+3}, 5, v{vT+2}")
    vA2 = [204, 205, 206, 207]
    for i in range(4): k(f"v_add_u32 v{vA2[i]}, 65536, v{vA[i]}")
    srd(k, 16, pOUT, MB4)
    k(f"v_and_b32 v{vT}, 15, v1"); k(f"v_lshrrev_b32 v{vT+1}, 4, v1")
    k(f"v_and_b32 v{vT+2}, 1, v{vT+1}"); k(f"v_lshlrev_b32 v{vT+2}, 1, v{vT+2}"); k(f"v_lshrrev_b32 v{vT+1}, 1, v{vT+1}"); k(f"v_add_u32 v{vT+1}, v{vT+1}, v{vT+2}")
    k(f"v_xor_b32 v{vT+1}, v{vT+1}, v{vT}"); k(f"v_and_b32 v{vT+1}, 7, v{vT+1}"); k(f"v_lshlrev_b32 v{vT+1}, 4, v{vT+1}")
    k("s_lshl_b32 s28, s20, 13"); k("s_xor_b32 s28, s28, 32768"); k(f"s_add_u32 s28, s28, {XCH}")
    k(f"v_lshl_add_u32 v{vT+1}, v{vT}, 7, v{vT+1}"); k(f"v_add_u32 v{vTW[0]}, s28, v{vT+1}"); k(f"v_xor_b32 v{vTW[1]}, 64, v{vTW[0]}")
    k(f"v_lshrrev_b32 v{vT}, 3, v1"); k(f"v_and_b32 v{vT+1}, 7, v1")
    k(f"v_lshlrev_b32 v{vO}, 11, v{vT}"); k(f"v_lshl_add_u32 v{vO}, v{vT+1}, 4, v{vO}")
    k(f"v_xor_b32 v{vT+1}, v{vT+1}, v{vT}"); k(f"v_lshlrev_b32 v{vT+1}, 4, v{vT+1}"); k(f"v_lshl_add_u32 v{vT+1}, v{vT}, 7, v{vT+1}")
    k(f"v_add_u32 v{vTR}, s28, v{vT+1}")
    vXW, vXR, vMask = vT + 1, vT + 2, vT + 3
    k("s_lshl_b32 s27, s20, 13"); k(f"s_add_u32 s27, s27, {XCH}")
    k(f"v_add_u32 v{vXW}, s27, v{vL}"); k(f"v_add_u32 v{vXR}, s28, v{vL}")
    k(f"v_mov_b32 v{vMask}, 0xffff0000")
    TCH = 208
    vTW4 = [216, 217, 218, 219]; vTR2 = 220
    if SKR:
        k(f"v_and_b32 v{vT}, 15, v1"); k(f"v_lshrrev_b32 v{TCH}, 5, v1"); k(f"v_lshrrev_b32 v{TCH+1}, 1, v{vT}")
        k(f"v_xor_b32 v{TCH}, v{TCH}, v{TCH+1}"); k(f"v_lshlrev_b32 v{TCH}, 4, v{TCH}"); k(f"v_lshl_add_u32 v{TCH}, v{vT}, 7, v{TCH}")
        k(f"v_bfe_u32 v{TCH+1}, v1, 4, 1"); k(f"v_lshl_add_u32 v{TCH}, v{TCH+1}, 3, v{TCH}"); k(f"v_add_u32 v{vTW4[0]}, s28, v{TCH}")
        for i in range(1, 4): k(f"v_xor_b32 v{vTW4[i]}, {32*i}, v{vTW4[0]}")
        k(f"v_and_b32 v{TCH}, 7, v1"); k(f"v_lshrrev_b32 v{TCH+1}, 4, v1"); k(f"v_xor_b32 v{TCH}, v{TCH}, v{TCH+1}"); k(f"v_lshlrev_b32 v{TCH}, 4, v{TCH}")
        k(f"v_lshrrev_b32 v{TCH+1}, 3, v1"); k(f"v_lshl_add_u32 v{TCH}, v{TCH+1}, 7, v{TCH}"); k(f"v_add_u32 v{vTR}, s28, v{TCH}")
        k(f"v_xor_b32 v{vTR2}, 64, v{vTR}")
        for p in range(2): k(f"ds_read_b128 v[{RES+4*p}:{RES+4*p+3}], v{vHK} offset:{1024*p}")
    for r in range(ACC, ACC + 64):
        if not (SKR and acc(1, 0, 0) <= r < acc(1, 0, 0) + 16): k(f"v_mov_b32 v{r}, 0")
    if SKR:
        k("s_waitcnt lgkmcnt(0)")
        for p in range(2):
            for q in range(4):
                a = acc(1, 2 * p, 0) + 2 * q
                k(f"v_lshlrev_b32 v{a}, 16, v{RES+4*p+q}"); k(f"v_and_b32 v{a+1}, v{vMask}, v{RES+4*p+q}")
        for p in range(2):
            for r in range(4): k(f"v_permlane16_swap_b32 v{acc(1,2*p,0)+r}, v{acc(1,2*p+1,0)+r}")
    vm = VM()
    for t in range(NPF5, NS):
        for d in w35_dma(vW, SW, t):
            for l in d: k(l)
        k(W5ADV); vm.issue(("W", t), 2)
    k("s_lshr_b32 s27, s23, 1"); k("s_lshl_b32 s27, s27, 7"); k(f"s_add_u32 s27, s27, {WS_CNT + C5*128}")
    wait(k, 27, 32, vt=(RES, RES + 1), pr=A[1])
    k.stamp("p5_wait")
    def bld(t):
        b = BR + (t % R) * 8
        return [f"buffer_load_dwordx4 v[{b+4*j}:{b+4*j+3}], v{vBj[j]}, s[12:15], s31 offen{SC}" for j in range(2)]
    badv = "s_add_u32 s31, s31, 4096"
    for t in range(R - 1):
        for l in bld(t): k(l); vm.issue(("B", t))
        k(badv)
    def areads(t, c, buf):
        sl = t % NS
        va = vA if sl < 4 else vA2
        return [f"ds_read_b64_tr_b16 v[{A[buf]+4*i+2*tt}:{A[buf]+4*i+2*tt+1}], v{va[i]} offset:{(sl & 3)*16384 + c*8192 + tt*1024}"
                for i in range(4) for tt in range(2)]
    for l in areads(0, 0, 0): k(l)
    k.stamp("p5_go")
    texts = []
    BG = [int(x) for x in os.environ.get("BG5", "2,5").split(",")]
    order = [(t, c) for t in range(NT) for c in range(2)]
    XS2, RMA = 224, 232
    if SKO:
        assert SKR and SKF and SKX and SKA and NT - SKO >= (NT - 1) // NS * NS
        order = order[:2 * (NT - SKO)] + [(t, 0) for t in range(NT - SKO, NT)] + [(t, 1) for t in range(NT - SKO, NT)]
    def send1(p, src):
        lfast = k.lab("p5fast"); lj = k.lab("p5sent")
        st = f"buffer_store_dwordx4 v[{src+4*p}:{src+4*p+3}], v{vL}, s[12:15], s39 offen offset:{1024*p}"
        if SKF == 1: return ["s_cmp_eq_u32 s40, s41", f"s_cbranch_scc1 {lfast}", st + SC, f"s_branch {lj}", f"{lfast}:", st, f"{lj}:"]
        return [st + SC] if SKF == 2 else [st]
    def fold0_triples():
        o = []
        for q in range(8):
            a = acc(0, 0, 0) + 2 * q; b = acc(0, 0, 1) + 2 * q
            o += [f"v_add_f32 v{a}, v{a}, v{b}", f"v_add_f32 v{a+1}, v{a+1}, v{b+1}", f"v_cvt_pk_bf16_f32 v{XS2+q}, v{a}, v{a+1}"]
        return o
    visible = {0}; bseen = set()
    texts = [[] for _ in range((NT + NS - 1) // NS)]
    for idx, (t, c) in enumerate(order):
                o = texts[t // NS]
                cur = idx & 1; nxt = cur ^ 1
                nx = order[idx + 1] if idx + 1 < len(order) else None
                tail = idx - (len(order) - SKO) if SKO and idx >= len(order) - SKO else -1
                need = set(); bar = False
                if t not in bseen: need.add(("B", t)); bseen.add(t)
                if nx and nx[0] not in visible: need.add(("W", nx[0])); visible.add(nx[0]); bar = True
                if tail == 1: bar = True
                n = vm.cnt(need) if need else None
                o.append(f"s_waitcnt vmcnt({min(n, 63)}) lgkmcnt(0)" if n is not None else "s_waitcnt lgkmcnt(0)")
                if bar: o.append("s_barrier")
                rd = areads(nx[0], nx[1], nxt) if nx else []; dm = []
                if c == 1 and t + NS < NT: dm = w35_dma(vW, SW, t % NS)
                mf = []
                b = BR + (t % R) * 8
                for i in range(4):
                    for j in range(2):
                        a = acc(c, i, j)
                        mf.append(f"v_mfma_f32_16x16x32_bf16 v[{a}:{a+3}], v[{A[cur]+4*i}:{A[cur]+4*i+3}], v[{b+4*j}:{b+4*j+3}], v[{a}:{a+3}]")
                gaps = [[] for _ in mf]
                if tail == 1:
                    for i in range(4): gaps[i].append(f"ds_read_b128 v[{acc(0,i,1)}:{acc(0,i,1)+3}], v{vXR} offset:{1024*i}")
                    gaps[0] += ["s_getreg_b32 s40, hwreg(HW_REG_XCC_ID, 0, 4)", "v_readfirstlane_b32 s41, v202"]
                for q, r in enumerate(rd): gaps[min(q, len(mf) - 1)].append(r)
                if dm:
                    gaps[0].append(dm[0][0]); gaps[1].append(dm[0][1]); gaps[2].append(dm[1][0]); gaps[3].append(dm[1][1]); gaps[4].append(W5ADV)
                    vm.issue(("W", t + NS), 2)
                if c == 0 and t + R - 1 < NT:
                    bl = bld(t + R - 1)
                    gaps[BG[0]].append(bl[0]); gaps[BG[1]].append(bl[1]); gaps[BG[1]].append(badv)
                    vm.issue(("B", t + R - 1), 2)
                if SKF and SKX and t == SKT and c == 0:
                    for p in range(2): gaps[3 + 2*p].append(f"buffer_load_dwordx4 v[{TCH+4*p}:{TCH+4*p+3}], v{vL}, s[12:15], s38 offen offset:{1024*p}{SC}")
                    vm.issue(("T", 0), 2)
                if (SKA and not SKO and t == NT - 1 and c == 1) or tail == 0:
                    for i in range(4): gaps[2 + i].append(f"ds_write_b128 v{vXW}, v[{acc(0,i,1)}:{acc(0,i,1)+3}] offset:{1024*i}")
                    if SKF and not SKO:
                        gaps[0] += ["s_getreg_b32 s40, hwreg(HW_REG_XCC_ID, 0, 4)", "v_readfirstlane_b32 s41, v202"]
                if tail == 2:
                    tr = fold0_triples()
                    for q, l in enumerate(tr):
                        g = min(q // SKG, len(mf) - 1)
                        gaps[g].append(l)
                        if q in (11, 23): gaps[g] += send1(q // 12, XS2)
                for g, mm in enumerate(mf):
                    o.append(mm); o += gaps[g]
    periods(k, "p5loop", texts, 36)
    k.stamp("p5_loop")
    def xw(c):
        for i in range(4): k(f"ds_write_b128 v{vXW}, v[{acc(c,i,1)}:{acc(c,i,1)+3}] offset:{4096*c + 1024*i}")
    def xr(c):
        for i in range(4): k(f"ds_read_b128 v[{acc(c,i,1)}:{acc(c,i,1)+3}], v{vXR} offset:{4096*c + 1024*i}")
    def rres():
        if SKR: return
        for p in range(2): k(f"ds_read_b128 v[{RES+4*p}:{RES+4*p+3}], v{vHK} offset:{1024*p}")
    def padd(d, a, b): k(f"v_pk_add_f32 v[{d}:{d+1}], v[{a}:{a+1}], v[{b}:{b+1}]")
    def fold(c):
        for i in range(4):
            for r in range(0, 4, 2): padd(acc(c,i,0)+r, acc(c,i,0)+r, acc(c,i,1)+r)
        for p in range(2):
            for r in range(4):
                if not SKR: k(f"v_permlane16_swap_b32 v{acc(c,2*p,0)+r}, v{acc(c,2*p+1,0)+r}")
    XS = A[0]; RM = A[0] + 8; U = A[1]
    def send():
        if not SKF:
            for p in range(2):
                for q in range(4):
                    a = acc(0, 2 * p, 0) + 2 * q
                    k(f"v_cvt_pk_bf16_f32 v{XS+4*p+q}, v{a}, v{a+1}")
                if SKX: k(f"buffer_store_dwordx4 v[{XS+4*p}:{XS+4*p+3}], v{vL}, s[12:15], s39 offen offset:{1024*p}{SC}")
            return
        for p in range(2):
            for q in range(4):
                a = acc(0, 2 * p, 0) + 2 * q
                k(f"v_cvt_pk_bf16_f32 v{XS+4*p+q}, v{a}, v{a+1}")
        if not SKX: return
        lfast = k.lab("p5fast"); lj = k.lab("p5sent")
        if SKF == 1: k("s_cmp_eq_u32 s40, s41"); k(f"s_cbranch_scc1 {lfast}")
        if SKF != 3:
            for p in range(2): k(f"buffer_store_dwordx4 v[{XS+4*p}:{XS+4*p+3}], v{vL}, s[12:15], s39 offen offset:{1024*p}{SC}")
        if SKF == 1: k(f"s_branch {lj}"); k(f"{lfast}:")
        if SKF != 2:
            for p in range(2): k(f"buffer_store_dwordx4 v[{XS+4*p}:{XS+4*p+3}], v{vL}, s[12:15], s39 offen offset:{1024*p}")
        if SKF == 1: k(f"{lj}:")
    early = None
    if SKO:
        SKP = int(os.environ.get("SKP", "0"))
        def poll(dst):
            for p in range(2): k(f"buffer_load_dwordx4 v[{dst+4*p}:{dst+4*p+3}], v{vL}, s[12:15], s38 offen offset:{1024*p}{SC}")
        def check(src, lbl):
            k(f"v_max3_u32 v{vT}, v{src}, v{src+1}, v{src+2}")
            k(f"v_max3_u32 v203, v{src+3}, v{src+4}, v{src+5}")
            k(f"v_max3_u32 v{vT}, v{vT}, v{src+6}, v{src+7}")
            k(f"v_max_u32 v{vT}, v{vT}, v203")
            k(f"v_cmp_eq_u32 vcc, -1, v{vT}")
            k("s_cmp_eq_u64 vcc, 0"); k(f"s_cbranch_scc1 {lbl}")
        def unpack(src):
            for q in range(8):
                k(f"v_lshlrev_b32 v{U+2*q}, 16, v{src+q}"); k(f"v_and_b32 v{U+2*q+1}, v{vMask}, v{src+q}")
        if SKO == 2:
            k("s_waitcnt lgkmcnt(0)")
            for q, l in enumerate(fold0_triples()):
                k(l)
                if q in (11, 23):
                    for x in send1(q // 12, XS2): k(x)
        if SKPA & 1: poll(RMA)
        xw(1)
        k("s_waitcnt lgkmcnt(0)")
        if SKP: k.stamp("p5_snd")
        k("s_barrier")
        if SKP: k.stamp("p5_b2")
        xr(1)
        if SKPA & 2: poll(TCH)
        elif not SKPA & 1: poll(RMA)
        k("s_waitcnt lgkmcnt(0)")
        fold(1)
        gA = k.lab("p5gotA"); gB = k.lab("p5gotB"); pl = k.lab("p5poll"); jn = k.lab("p5join")
        k("s_mov_b32 s28, 0")
        if SKPA == 3:
            k("s_waitcnt vmcnt(2)"); check(RMA, gA)
            k("s_mov_b32 s28, 1")
            k("s_waitcnt vmcnt(0)"); check(TCH, gB)
        elif SKPA == 2:
            k("s_waitcnt vmcnt(0)"); check(TCH, gB)
        else:
            k("s_waitcnt vmcnt(0)"); check(RMA, gA)
        k(f"{pl}:")
        poll(RMA)
        k("s_add_u32 s28, s28, 1")
        k("s_waitcnt vmcnt(0)"); check(RMA, gA)
        k(f"s_cmp_lt_u32 s28, {SPIN_LIMIT >> 2}"); k(f"s_cbranch_scc1 {pl}")
        if SKPA & 2:
            k(f"s_branch {gA}")
            k(f"{gB}:"); unpack(TCH); k(f"s_branch {jn}")
        k(f"{gA}:"); unpack(RMA)
        k(f"{jn}:")
        k.stamp("p5_got")
        if STAMP and SKP:
            i_ = k.nst; k.nst += 1; k.stnames.append("p5_npoll")
            k("s_add_u32 s86, s86, s28"); k(f"v_writelane_b32 v255, s84, {i_}"); k(f"v_writelane_b32 v254, s86, {i_}")
        for q in range(8): padd(acc(1, 0, 0) + 2 * q, acc(1, 0, 0) + 2 * q, U + 2 * q)
    elif SKA:
        SKP = int(os.environ.get("SKP", "0"))
        k("s_waitcnt lgkmcnt(0)")
        k("s_barrier")
        if SKP: k.stamp("p5_b1")
        xr(0); xw(1)
        k("s_waitcnt lgkmcnt(4)")
        fold(0); send()
        k("s_waitcnt lgkmcnt(0)")
        if SKP: k.stamp("p5_snd")
        k("s_barrier")
        if SKP: k.stamp("p5_b2")
        xr(1); rres()
        early = lambda: (k(f"s_waitcnt lgkmcnt({0 if SKR else 2})"), fold(1), k("s_waitcnt lgkmcnt(0)") if not SKR else None)
        if not (SKX and int(os.environ.get("SKE", "0")) == 2): early(); early = None
    else:
        if SKF: k("s_getreg_b32 s40, hwreg(HW_REG_XCC_ID, 0, 4)"); k("v_readfirstlane_b32 s41, v202")
        xw(0); xw(1)
        k("s_waitcnt lgkmcnt(0)")
        k("s_barrier")
        xr(0); xr(1); rres()
        k("s_waitcnt lgkmcnt(6)")
        fold(0); send()
        k("s_waitcnt lgkmcnt(2)")
        fold(1)
        k("s_waitcnt lgkmcnt(0)")
    def addbf(src):
        if SKR and src == RES: return
        for p in range(2):
            for q in range(4):
                k(f"v_lshlrev_b32 v{U+8*p+2*q}, 16, v{src+4*p+q}")
                k(f"v_and_b32 v{U+8*p+2*q+1}, v{vMask}, v{src+4*p+q}")
        for p in range(2):
            for q in range(4):
                a = acc(1, 2 * p, 0) + 2 * q
                padd(a, a, U + 8 * p + 2 * q)
    if SKO: pass
    elif SKX:
        pl = k.lab("p5poll"); dn = k.lab("p5got")
        if not int(os.environ.get("SKE", "0")): addbf(RES)
        if int(os.environ.get("SKP", "0")): k.stamp("p5_pre")
        k("s_mov_b32 s28, 0")
        k(f"{pl}:")
        for p in range(2): k(f"buffer_load_dwordx4 v[{RM+4*p}:{RM+4*p+3}], v{vL}, s[12:15], s38 offen offset:{1024*p}{SC}")
        if int(os.environ.get("SKE", "0")):
            l1 = k.lab("p5once"); k("s_cmp_lg_u32 s28, 0"); k(f"s_cbranch_scc1 {l1}")
            if early: early()
            addbf(RES); k(f"{l1}:")
        k("s_add_u32 s28, s28, 1")
        k("s_waitcnt vmcnt(0)")
        k(f"v_max3_u32 v{vT}, v{RM}, v{RM+1}, v{RM+2}")
        k(f"v_max3_u32 v203, v{RM+3}, v{RM+4}, v{RM+5}")
        k(f"v_max3_u32 v{vT}, v{vT}, v{RM+6}, v{RM+7}")
        k(f"v_max_u32 v{vT}, v{vT}, v203")
        k(f"v_cmp_eq_u32 vcc, -1, v{vT}")
        k("s_cmp_eq_u64 vcc, 0"); k(f"s_cbranch_scc1 {dn}")
        k(f"s_cmp_lt_u32 s28, {SPIN_LIMIT >> 2}"); k(f"s_cbranch_scc1 {pl}")
        k(f"{dn}:")
        k.stamp("p5_got")
        if STAMP and int(os.environ.get("SKP", "0")):
            i_ = k.nst; k.nst += 1; k.stnames.append("p5_npoll")
            k("s_add_u32 s86, s86, s28"); k(f"v_writelane_b32 v255, s84, {i_}"); k(f"v_writelane_b32 v254, s86, {i_}")
        addbf(RM)
    else:
        addbf(RES)
    for p in range(2):
        for q in range(4):
            a = acc(1, 2 * p, 0) + 2 * q
            k(f"v_cvt_pk_bf16_f32 v{RES+4*p+q}, v{a}, v{a+1}")
            if SKR and q & 1: k(f"ds_write_b64 v{vTW4[2*p + (q >> 1)]}, v[{RES+4*p+q-1}:{RES+4*p+q}]")
        if not SKR: k(f"ds_write_b128 v{vTW[p]}, v[{RES+4*p}:{RES+4*p+3}]")
    for q in range(2): k(f"ds_read_b128 v[{RES+4*q}:{RES+4*q+3}], v{vTR2 if SKR and q else vTR} offset:{1024*q}")
    for q in range(2):
        k(f"s_waitcnt lgkmcnt({1-q})")
        k(f"buffer_store_dwordx4 v[{RES+4*q}:{RES+4*q+3}], v{vO}, s[16:19], s{33+q} offen{OUTSC}")
    k.stamp("p5_epi")

KC = 2 * math.sqrt(2 / math.pi) * math.log2(math.e)
X4 = os.environ.get("X4", "drain").split(",")
T4 = int(os.environ.get("T4", "0")); T4S = int(os.environ.get("T4S", "29")); T4P = int(os.environ.get("T4P", "2"))
def phase4(k):
    NS = 4; SLOT = SLOT4; UOFF = 7168; BOFF = BOFF4; STATS = NS * SLOT
    vA = [2, 3]; vB = [4, 5]; vD = [6, 7, 8, 9, 10]; vL16 = 11; vT = 12
    A = [16, 48]; B = [80, 96]; ACC = 112; SV = 242
    acc = lambda fi, m, j: ACC + ((fi * 2 + m) * 4 + j) * 4
    w35_setup(k, vW5, 0, vT, DF if WT5 or WDT else 0)
    if not WDT: srd(k, 60, pWD, DF * D * 2)
    coords4(k, 23, 24, 25)
    k("s_and_b32 s25, s20, 3")
    k("s_lshr_b32 s26, s20, 2")
    k(f"v_lshlrev_b32 v{vL16}, 4, v1")
    k(f"v_lshrrev_b32 v{vT}, 4, v1")
    k(f"v_bfe_u32 v{vT+1}, v1, 2, 2")
    k(f"v_lshrrev_b32 v{vT+2}, 1, v{vT}"); k(f"v_and_b32 v{vT+3}, 1, v{vT}")
    k(f"v_lshlrev_b32 v{vT+2}, 4, v{vT+2}"); k(f"v_lshl_add_u32 v{vT+2}, v{vT+3}, 2, v{vT+2}"); k(f"v_add_u32 v{vT+2}, v{vT+2}, v{vT+1}")
    k(f"v_mul_u32_u24 v{vT+2}, 224, v{vT+2}")
    k(f"v_and_b32 v{vT+3}, 3, v1"); k(f"v_lshl_add_u32 v{vT+2}, v{vT+3}, 3, v{vT+2}")
    k("s_lshl_b32 s27, s26, 7")
    k(f"v_add_u32 v{vA[0]}, s27, v{vT+2}"); k(f"v_add_u32 v{vA[1]}, {2*SLOT}, v{vA[0]}")
    k(f"v_and_b32 v{vT+1}, 15, v1"); k(f"v_lshlrev_b32 v{vT+1}, 4, v{vT+1}"); k(f"v_lshl_add_u32 v{vT+1}, v{vT}, 9, v{vT+1}")
    k("s_lshl_b32 s27, s25, 12"); k(f"s_add_u32 s27, s27, {BOFF}")
    k(f"v_add_u32 v{vB[0]}, s27, v{vT+1}"); k(f"v_add_u32 v{vB[1]}, {2*SLOT}, v{vB[0]}")
    k("s_lshl_b32 s31, s23, 19"); k(f"s_add_u32 s31, s31, {WS_H}")
    k("s_mul_i32 s30, s24, 224"); k(f"s_add_u32 s30, s30, {NS*32*7168}")
    for r in range(ACC, ACC + 128): k(f"v_mov_b32 v{r}, 0")
    if COA & 2:
        k(f"v_lshrrev_b32 v{vT}, 5, v1"); k(f"v_lshlrev_b32 v{vT}, {13 if STL & 2 else 16}, v{vT}")
        k(f"v_and_b32 v{vT+1}, 31, v1"); k("s_lshl_b32 s27, s20, 5"); k(f"v_add_u32 v{vT+1}, s27, v{vT+1}"); k(f"v_lshl_add_u32 v{SV+8}, v{vT+1}, 2, v{vT}")
    else:
        k(f"v_and_b32 v{vT}, 1, v0"); k(f"v_lshlrev_b32 v{vT}, {13 if STL & 2 else 16}, v{vT}")
        k(f"v_lshrrev_b32 v{vT+1}, 1, v0"); k(f"v_lshl_add_u32 v{SV+8}, v{vT+1}, 2, v{vT}")
    k(f"v_lshlrev_b32 v{SV+9}, 4, v{vT+1}"); k(f"v_add_u32 v{SV+9}, {STATS}, v{SV+9}")
    k(f"s_lshl_b32 s37, s23, {14 if STL & 2 else 10}"); k(f"s_add_u32 s37, s37, {WS_ST}")
    k("s_bitcmp1_b32 s25, 1")
    k(f"s_cselect_b32 s4, s{pWU}, s{pWG}"); k(f"s_cselect_b32 s5, s{pWU+1}, s{pWG+1}")
    srd(k, 8, 4, D * DF * 2)
    lsb = k.lab("p4setB"); lsd = k.lab("p4setD")
    k("s_cmp_eq_u32 s26, 0")
    k(f"s_cbranch_scc0 {lsb}")
    for n in range(3):
        k("s_mul_i32 s27, s20, 3"); k(f"s_add_u32 s27, s27, {n}")
        k("s_lshr_b32 s28, s27, 1"); k("s_lshl_b32 s28, s28, 16"); k("s_and_b32 s29, s27, 1"); k("s_lshl_b32 s29, s29, 10"); k("s_add_u32 s28, s28, s29")
        k(f"v_add_u32 v{vD[n]}, s28, v{vL16}")
    k(f"s_mul_i32 s32, s20, 3072"); k(f"s_add_u32 s32, s32, {BOFF}")
    k(f"s_branch {lsd}")
    k(f"{lsb}:")
    k("s_and_b32 s27, s25, 1"); k("s_lshl_b32 s27, s27, 8")
    for q in range(4):
        k(f"v_add_u32 v{vT+3}, {64*q}, v1"); k(f"v_add_u32 v{vT+3}, s27, v{vT+3}")
        w4_piece_lane(k, vD[q], vT + 3, vT)
    k("s_add_u32 s27, s25, 12")
    k("s_lshr_b32 s28, s27, 1"); k("s_lshl_b32 s28, s28, 16"); k("s_and_b32 s29, s27, 1"); k("s_lshl_b32 s29, s29, 10"); k("s_add_u32 s28, s28, s29")
    k(f"v_add_u32 v{vD[4]}, s28, v{vL16}")
    k("s_lshl_b32 s33, s27, 10"); k(f"s_add_u32 s33, s33, {BOFF}")
    k("s_lshr_b32 s32, s25, 1"); k(f"s_mul_i32 s32, s32, {UOFF}"); k("s_and_b32 s27, s25, 1"); k("s_lshl_b32 s27, s27, 12"); k("s_add_u32 s32, s32, s27")
    k(f"{lsd}:")
    k("s_lshl_b32 s27, s23, 3"); k("s_lshl_b32 s28, s25, 1"); k("s_add_u32 s27, s27, s28"); k("s_mul_i32 s27, s27, 448")
    k("s_mul_i32 s28, s24, 14"); k("s_add_u32 s27, s27, s28"); k("s_lshl_b32 s28, s26, 3"); k("s_add_u32 s27, s27, s28")
    k("s_lshl_b32 s27, s27, 9"); k(f"s_add_u32 s34, s27, {WS_HM}"); k(f"s_add_u32 s35, s34, {448*512}")
    if WDT:
        k(f"v_add_u32 v{vT+1}, {C3 - 1}, v1"); k(f"v_lshlrev_b32 v{vT+1}, 7, v{vT+1}")
        k("s_lshl_b32 s27, s23, 7"); k(f"s_add_u32 s27, s27, {C4*128}")
        k("s_nop 0")
        k(f"v_writelane_b32 v{vT+1}, s27, 0")
        k(f"s_mov_b32 s27, {WS_CNT}")
        wait_multi(k, 27, 32, 9, vt=(vT, vT + 1))
    else:
        k("s_lshl_b32 s27, s23, 7"); k(f"s_add_u32 s27, s27, {WS_CNT + C4*128}")
        wait(k, 27, 32, vt=(vT, vT + 1), pr=A[1])
    k.stamp("p4_wait")
    def dma_act(var, slot):
        if var == "A":
            return [[f"s_add_u32 m0, s32, {slot*SLOT + n*1024}", f"buffer_load_dwordx4 v{vD[n]}, s[12:15], s31 offen{SC} lds"] for n in range(3)]
        return [[f"s_add_u32 m0, s33, {slot*SLOT}", f"buffer_load_dwordx4 v{vD[4]}, s[12:15], s31 offen{SC} lds"]]
    def dma_w(var, slot):
        if var == "A": return []
        return [[f"s_add_u32 m0, s32, {slot*SLOT + q*1024}", f"buffer_load_dwordx4 v{vD[q]}, s[8:11], s30 offen lds"] for q in range(4 if var == "B0" else 3)]
    advA = "s_add_u32 s31, s31, 2048"; advW = f"s_add_u32 s30, s30, {32*7168}"
    def stats_calc():
        o = []
        for i in (0, 2, 4, 6): o.append(f"v_add_f32 v{SV+i}, v{SV+i}, v{SV+i+1}")
        o += [f"v_add_f32 v{SV}, v{SV}, v{SV+2}", f"v_add_f32 v{SV+4}, v{SV+4}, v{SV+6}", f"v_add_f32 v{SV}, v{SV}, v{SV+4}"]
        if COA & 2:
            o += [f"v_mov_b32 v{SV+1}, v{SV}", "s_nop 1", f"v_permlane32_swap_b32 v{SV}, v{SV+1}", f"v_add_f32 v{SV}, v{SV}, v{SV+1}"]
        else:
            o += ["s_nop 1", f"v_add_f32_dpp v{SV}, v{SV}, v{SV} quad_perm:[1,0,3,2] row_mask:0xf bank_mask:0xf"]
        o += [f"v_mov_b32 v{SV+3}, 0x3a800000", f"v_mov_b32 v{SV+5}, 0x3727c5ac",
              f"v_fma_f32 v{SV+2}, v{SV}, v{SV+3}, v{SV+5}",
              f"v_rsq_f32 v{SV+4}, v{SV+2}",
              f"v_mov_b32 v{SV+3}, 0",
              f"v_mul_f32 v{SV+1}, {f2h(-KC)}, v{SV+4}",
              f"v_mul_f32 v{SV+5}, v{SV+4}, v{SV+4}",
              f"v_mul_f32 v{SV}, {f2h(0.044715)}, v{SV+1}",
              f"v_mul_f32 v{SV}, v{SV}, v{SV+5}",
              f"ds_write_b128 v{SV+9}, v[{SV}:{SV+3}]"]
        return o
    st_idx = {}
    def vstamp(nm):
        if nm in st_idx: k.stamp_at(st_idx[nm])
        else:
            st_idx[nm] = k.nst; k.stamp(nm)
    ljoin = k.lab("p4join")
    def body(var):
        nf = 4 if var == "A" else 3
        first = (var != "A") if T4 == 1 else (var == "A")
        vm = VM()
        for s in range(NS):
            for d in dma_act(var, s):
                for l in d: k(l)
                vm.issue(("D", s))
            k(advA)
        k("s_mov_b32 s28, s37")
        for i in range(8):
            if STL & 2:
                k(f"buffer_load_dword v{SV+i}, v{SV+8}, s[12:15], s28 offen offset:{1024*(i&3)}{SC}"); vm.issue("ST")
                if i == 3: k("s_add_u32 s28, s28, 4096")
                continue
            k(f"buffer_load_dword v{SV+i}, v{SV+8}, s[12:15], s28 offen{SC}"); vm.issue("ST")
            if i < 7: k("s_add_u32 s28, s28, 8192")
        def reads(buf, slot):
            base = slot >> 1; so = (slot & 1) * SLOT
            o = []
            def rA(fi, m):
                i = fi * 2 + m
                return [f"ds_read_b64_tr_b16 v[{A[buf]+4*i+2*t}:{A[buf]+4*i+2*t+1}], v{vA[base]} offset:{so + m*UOFF + t*8*224 + fi*32}" for t in range(2)]
            o += rA(0, 0)
            for j in range(4): o.append(f"ds_read_b128 v[{B[buf]+4*j}:{B[buf]+4*j+3}], v{vB[base]} offset:{so + (j>>1)*2048 + (j&1)*256}")
            for i in range(1, 2 * nf): o += rA(i >> 1, i & 1)
            return o
        k(f"s_waitcnt vmcnt({vm.cnt({('D', 0)})})")
        k("s_barrier")
        vstamp("p4_go")
        for l in reads(0, 0): k(l)
        NT = 32
        texts = []
        pf5 = {3: {28: [0], 29: [1, 2]}, 1: {28: [0]}, 0: {}}[NPF5]
        for per in range(NT // NS):
            o = []
            for t in range(per * NS, (per + 1) * NS):
                slot = t % NS; cur = t & 1; nxt = cur ^ 1
                rd = []; dm = []; ex = []
                if T4 and t > T4S and t + 1 < NT:
                    o.append("s_waitcnt lgkmcnt(0)")
                    rd = reads(nxt, (t + 1) % NS)
                elif t + 1 < NT:
                    need = {("D", t + 1)}
                    if T4 and t == T4S: need |= {("D", x) for x in range(t + 1, NT)}
                    if t == 3: need.add("ST")
                    o.append(f"s_waitcnt vmcnt({vm.cnt(need)}) lgkmcnt(0)")
                    o.append("s_barrier")
                    if T4 and t == T4S and first: o.append(f"s_setprio {T4P}")
                    rd = reads(nxt, (t + 1) % NS)
                else:
                    o.append("s_waitcnt lgkmcnt(0)")
                tail = []
                if t + NS < NT:
                    dm = dma_w(var, slot) + dma_act(var, slot)
                    vm.issue(("D", t + NS), len(dm))
                    tail = [advA, advW]
                for tl in pf5.get(t, []):
                    if tl < NS5 and not T4:
                        dm += [list(x) for x in w35_dma(vW5, SW5, tl)]
                        dm[-1].append(W5ADV)
                        vm.issue("PF5", 2)
                    elif tl < NS5 and first:
                        tail = tail + [W5ADV]
                    elif tl < NS5:
                        assert WDT or WT5
                        sg = "add" if var == "A" else "sub"
                        own = [list(x) for x in w35_dma(vW5, SW5, tl)]
                        oth = [[x[0].replace("s51", "s7"), x[1].replace("s50", "s6")] for x in w35_dma(vW5, SW5, tl)]
                        oth[0] = [f"s_{sg}_u32 s6, s50, 8192", f"s_{sg}_u32 s7, s51, 8192"] + oth[0]
                        oth[0] = [oth[0][:3], oth[0][3]]
                        oth[-1].append(W5ADV)
                        dm += own + oth
                        vm.issue("PF5", 4)
                if t == 3: ex = stats_calc()
                if t == JT4 and JIT & 8:
                    ex = jit("L_p4tail", 27, 13); vm.issue("CP")
                mf = []
                for i in range(2 * nf):
                    for j in range(4):
                        a = acc(i >> 1, i & 1, j)
                        mf.append(f"v_mfma_f32_16x16x32_bf16 v[{a}:{a+3}], v[{A[cur]+4*i}:{A[cur]+4*i+3}], v[{B[cur]+4*j}:{B[cur]+4*j+3}], v[{a}:{a+3}]")
                n = len(mf)
                gaps = [[] for _ in mf]
                for q, r in enumerate(rd): gaps[q].append(r)
                if dm:
                    stp = (n - 3) // len(dm)
                    for q, d in enumerate(dm):
                        g = 1 + stp * q
                        if isinstance(d[0], list): gaps[g] += d[0]
                        else: gaps[g].append(d[0])
                        gaps[g + 1] += d[1:]
                    gaps[n - 1] += tail
                elif tail: gaps[n - 1] += tail
                for q, l in enumerate(ex): gaps[min(4 + q, n - 1)].append(l)
                for g, mm in enumerate(mf):
                    o.append(mm); o += gaps[g]
            texts.append(o)
        periods(k, f"p4{var}", texts, 36)
        if var == "A" and JIT & 8: k("L_p4tail:")
        vstamp("p4_loop")
        ST = 16; TT = 32
        k(f"v_and_b32 v{vT}, 15, v1"); k(f"v_lshlrev_b32 v{vT}, 4, v{vT}")
        k("s_lshl_b32 s27, s25, 10"); k(f"s_add_u32 s27, s27, {STATS}"); k(f"v_add_u32 v{vT}, s27, v{vT}")
        for j in range(4): k(f"ds_read_b128 v[{ST+4*j}:{ST+4*j+3}], v{vT} offset:{256*j}")
        k("s_waitcnt vmcnt(0) lgkmcnt(0)")
        if "drain" in X4: k("s_waitcnt vmcnt(0)"); k("s_barrier")
        if "drain0" in X4: k("s_waitcnt vmcnt(0)")
        if "bar" in X4: k("s_barrier")
        if "adrain" in X4 and var == "A": k("s_waitcnt vmcnt(0)")
        if "bdrain" in X4 and var != "A": k("s_waitcnt vmcnt(0)")
        nopk = ("anopk" in X4 and var == "A") or ("bnopk" in X4 and var != "A")
        def pk(op, d, a, b, c=None, sel=None):
            if not nopk:
                x = f"v_pk_{op}_f32 v[{d}:{d+1}], v[{a}:{a+1}], v[{b}:{b+1}]"
                if c is not None: x += f", v[{c}:{c+1}] " + sel
                k(x); return
            for h in range(2):
                if c is None: k(f"v_mul_f32 v{d+h}, v{a+h}, v{b+h}")
                elif sel.startswith("op_sel:[0,0,1]"): k(f"v_fma_f32 v{d+h}, v{a+h}, v{b}, v{b+1}")
                else: k(f"v_fma_f32 v{d+h}, v{a+h}, v{b}, v{b}")
        for fi in range(nf):
            for p in range(2):
                gi = fi * 2 + p
                PK = TT + 16 + 4 * (gi & 3)
                T = TT + 8 * (gi & 1)
                prs = [(2 * p + jj, h) for jj in range(2) for h in range(2)]
                P = lambda r: f"v[{r}:{r+1}]"
                for q, (j, h) in enumerate(prs):
                    g = acc(fi, 0, j) + 2 * h
                    pk("mul", T+2*q, g, g)
                for q, (j, h) in enumerate(prs):
                    c = ST + 4 * j
                    pk("fma", T+2*q, T+2*q, c, c, "op_sel:[0,0,1] op_sel_hi:[1,0,1]")
                for q, (j, h) in enumerate(prs):
                    g = acc(fi, 0, j) + 2 * h
                    pk("mul", T+2*q, T+2*q, g)
                for q, (j, h) in enumerate(prs):
                    g = acc(fi, 0, j) + 2 * h; u = acc(fi, 1, j) + 2 * h
                    k(f"v_exp_f32 v{T+2*q}, v{T+2*q}"); k(f"v_exp_f32 v{T+2*q+1}, v{T+2*q+1}")
                    pk("mul", u, u, g)
                for q, (j, h) in enumerate(prs):
                    c = ST + 4 * j + 2
                    pk("fma", T+2*q, T+2*q, c, c, "op_sel:[0,0,0] op_sel_hi:[1,0,0]")
                for q, (j, h) in enumerate(prs):
                    k(f"v_rcp_f32 v{T+2*q}, v{T+2*q}"); k(f"v_rcp_f32 v{T+2*q+1}, v{T+2*q+1}")
                for q, (j, h) in enumerate(prs):
                    u = acc(fi, 1, j) + 2 * h
                    pk("mul", u, u, T+2*q)
                for q, (j, h) in enumerate(prs):
                    u = acc(fi, 1, j) + 2 * h
                    k(f"v_cvt_pk_bf16_f32 v{PK+q}, v{u}, v{u+1}")
                k(f"v_permlane16_swap_b32 v{PK}, v{PK+2}")
                k(f"v_permlane16_swap_b32 v{PK+1}, v{PK+3}")
                k(f"buffer_store_dwordx4 v[{PK}:{PK+3}], v{vL16}, s[12:15], s{34+p} offen offset:{1024*fi}{SC}")
        if T4 and first: k("s_setprio 0")
        vstamp("p4_epi")
        if var != "B1": k(f"s_branch {ljoin}")
    lB = k.lab("p4B"); lB1 = k.lab("p4B1")
    k("s_cmp_eq_u32 s26, 0")
    k(f"s_cbranch_scc0 {lB}")
    body("A")
    k(f"{lB}:")
    k("s_bitcmp1_b32 s25, 0")
    k(f"s_cbranch_scc1 {lB1}")
    body("B0")
    k(f"{lB1}:")
    body("B1")
    k(f"{ljoin}:")
    k("s_lshl_b32 s27, s23, 7"); k(f"s_add_u32 s27, s27, {WS_CNT + C5*128}")
    signal(k, 27, vt=(vT, vT + 1))
    k.stamp("p4_sig")

CPF = int(os.environ.get("CPF", "1")); CPFW = int(os.environ.get("CPFW", "0"))
def mk():
    k = G(NAME, nvgpr=256, accum=256, total=256)
    lend = "L_end"
    k("s_cmp_ge_u32 s2, 256")
    k(f"s_cbranch_scc1 {lend}")
    if os.environ.get("SCR"):
        k("s_and_b32 s3, s2, 7"); k("s_lshl_b32 s3, s3, 5"); k("s_lshr_b32 s2, s2, 3"); k("s_or_b32 s2, s2, s3")
    k("s_load_dwordx16 s[64:79], s[0:1], 0")
    k("s_load_dwordx4 s[80:83], s[0:1], 64")
    k("v_and_b32 v1, 63, v0")
    k("v_lshrrev_b32 v2, 6, v0")
    k("s_nop 0")
    k("v_readfirstlane_b32 s20, v2")
    k.stamp("start")
    if CPF:
        k("s_getpc_b64 s[44:45]")
        k("L_cpf_pc:")
        k("s_mov_b32 s46, L_end-L_cpf_pc")
        k("s_mov_b32 s47, 0x20000")
        if CPF == 1:
            lc = k.lab("nocpf")
            k("s_lshr_b32 s3, s2, 3"); k("s_lshl_b32 s3, s3, 11")
            k(f"s_cmp_lg_u32 s20, {CPFW}"); k(f"s_cbranch_scc1 {lc}")
            k("v_lshlrev_b32 v210, 5, v1"); k("v_add_u32 v210, s3, v210")
            k("buffer_load_dword v211, v210, s[44:47], 0 offen")
            k(f"{lc}:")
        elif CPF == 2:
            k("v_lshlrev_b32 v210, 6, v0"); k("s_mov_b32 s3, 32768")
            k("buffer_load_dword v211, v210, s[44:47], 0 offen")
            k("buffer_load_dword v212, v210, s[44:47], s3 offen")
        elif CPF == 3:
            k("s_lshr_b32 s3, s2, 3"); k("s_and_b32 s3, s3, 3"); k("s_lshl_b32 s3, s3, 14")
            k("v_lshlrev_b32 v210, 5, v0")
            k("buffer_load_dword v211, v210, s[44:47], s3 offen")
    ldone = "L_done"
    phs = [phase1, phase2, lambda k: phase35(k, "wo"), phase4, phase5k if SK5 else lambda k: phase35(k, "down")]
    for i, ph in enumerate(phs[:UPTO]): ph(k)
    if os.environ.get("ENDW"): k("s_waitcnt vmcnt(0)")
    k.stamp("end")
    k.stamp_out()
    k("s_waitcnt vmcnt(0)")
    k(f"{lend}:")
    k("s_endpgm")
    return k, ("mk", 256, 512, LDS_BYTES)

if __name__ == "__main__":
    import sys
    sys.path.insert(0, "gen")
    from build import header
    k, _ = mk()
    o = header()
    o.append(f"; @launch grid=(256,1,1) block=(512,1,1) lds={LDS_BYTES}")
    if STAMP: o.append("; stamps: " + " ".join(k.stnames))
    o.append('.amdgcn_target "amdgcn-amd-amdhsa--gfx950"')
    o.append('.text')
    o.append(k.text())
    o.append('.section .rodata,"a"')
    o.append(k.desc())
    open(sys.argv[1], "w").write("\n".join(o) + "\n")
    print("wrote", sys.argv[1], "instrs", sum(1 for l in k.lines if l.startswith("  ")))
```

```python
from asmlib import K, srd
from common import *
import os, struct, math
STAMP = bool(int(os.environ.get("STAMP", "0")))
UPTO = int(os.environ.get("UPTO", "5"))
NAME = "sequential_preLN__mha_block__glu_gated_geglu__prompt_kernel"
WS_TS = 0x2800000
SC = " sc1"
LDS_BYTES = 163840
pX, pWQKV, pWO, pBX, pWG, pWU, pWD, pOUT, pDBG, pWS = [64 + 2 * i for i in range(10)]
C2, C3, C4, C5 = 0, 16, 24, 32
SPIN_LIMIT = 0x40000
RAMP = int(os.environ.get("RAMP", "1"))
QKS = int(os.environ.get("QKS", "0"))
P1M = int(os.environ.get("P1M", "0"))
DL1 = int(os.environ.get("DL1", "0"))
DLS = int(os.environ.get("DLS", "3"))
assert not DL1 or (P1M and not QKS and not int(os.environ.get("HOIST", "0")))
DLT = int(os.environ.get("DLT", "12"))
SK3 = int(os.environ.get("SK3", "0"))
R3K = int(os.environ.get("R3K", "5")); S3O = 3; S3T = int(os.environ.get("S3T", "1"))
WS_XI3 = 0x4000000; WS_XM3 = 0x4400000
C2F = 48; WS_XID1 = 0x3C80000; FLAGOFF = 2112
XCCR = "hwreg(HW_REG_XCC_ID, 0, 4)"
PFW = int(os.environ.get("PFW", "1")); PFI = int(os.environ.get("PFI", "0"))
JIT = int(os.environ.get("JIT", "0"))
def jit(label, sreg, vdst):
    return [f"s_mov_b32 s{sreg}, {label}-L_cb", f"buffer_load_dword v{vdst}, v252, s[80:83], s{sreg} offen"]
def f2h(x): return hex(struct.unpack('<I', struct.pack('<f', x))[0])

class G(K):
    def __init__(s, *a, **kw):
        super().__init__(*a, **kw); s.nl = 0; s.nst = 0; s.stnames = []
    def lab(s, base):
        s.nl += 1; return f"L_{base}_{s.nl}"
    def prio(s, nm):
        ph = int(nm[1]) if nm[0] == "p" and nm[1].isdigit() else 0
        if not (PRIO >> ph) & 1: return
        if nm.endswith("_go"):
            l = s.lab("prio")
            s("s_cselect_b32 s96, 1, 0"); s("s_cmp_ge_u32 s20, 4"); s(f"s_cbranch_scc{PRH} {l}"); s("s_setprio 1"); s(f"{l}:"); s("s_cmp_lg_u32 s96, 0")
        elif nm.endswith("_loop"): s("s_setprio 0")
    def stamp(s, nm):
        s.prio(nm)
        if not STAMP: return
        i = s.nst; s.nst += 1; s.stnames.append(nm)
        s("s_memrealtime s[84:85]"); s("s_memtime s[86:87]"); s("s_waitcnt lgkmcnt(0)")
        s(f"v_writelane_b32 v255, s84, {i}"); s(f"v_writelane_b32 v254, s86, {i}")
    def stamp_at(s, i):
        if not STAMP: return
        s("s_memrealtime s[84:85]"); s("s_memtime s[86:87]"); s("s_waitcnt lgkmcnt(0)")
        s(f"v_writelane_b32 v255, s84, {i}"); s(f"v_writelane_b32 v254, s86, {i}")
    def stamp_out(s):
        if not STAMP: return
        s("s_lshl_b32 s84, s2, 3"); s("s_add_u32 s84, s84, s20"); s("s_lshl_b32 s84, s84, 9")
        s(f"s_add_u32 s84, s84, {WS_TS}")
        s("v_lshlrev_b32 v253, 2, v1")
        s("buffer_store_dword v255, v253, s[12:15], s84 offen")
        s("buffer_store_dword v254, v253, s[12:15], s84 offen offset:256")
        s("s_waitcnt vmcnt(0)")

PRIO = int(os.environ.get("PRIO", "0")); PRH = int(os.environ.get("PRH", "0"))
class VM:
    def __init__(s): s.q = []; s.c = []
    def issue(s, tag, n=1, certain=True): s.q += [tag] * n; s.c += [certain] * n
    def cnt(s, tags):
        last = -1
        for i, t in enumerate(s.q):
            if t in tags: last = i
        return sum(1 for c in s.c[last + 1:] if c) if last >= 0 else None

def periods(k, name, texts, cnt_sgpr):
    i = 0; n = len(texts)
    while i < n:
        j = i
        while j + 1 < n and texts[j + 1] == texts[i]: j += 1
        rep = j - i + 1
        if rep > 1:
            l = k.lab(name)
            k(f"s_mov_b32 s{cnt_sgpr}, 0")
            k(f"{l}:")
            for x in texts[i]: k(x)
            k(f"s_add_u32 s{cnt_sgpr}, s{cnt_sgpr}, 1")
            k(f"s_cmp_lt_u32 s{cnt_sgpr}, {rep}")
            k(f"s_cbranch_scc1 {l}")
        else:
            for x in texts[i]: k(x)
        i = j + 1

PROG = int(os.environ.get("PROG", "0"))
def signal(k, sline, vt=(14, 15), val="1"):
    k("s_waitcnt vmcnt(0)")
    k("s_barrier")
    l = k.lab("nosig")
    k("s_cmp_lg_u32 s20, 0"); k(f"s_cbranch_scc1 {l}")
    k("s_mov_b64 exec, 1")
    k(f"v_mov_b32 v{vt[0]}, {val}"); k(f"v_mov_b32 v{vt[1]}, 0")
    k(f"buffer_atomic_add v{vt[0]}, v{vt[1]}, s[12:15], s{sline} offen sc1")
    k("s_mov_b64 exec, -1")
    k(f"{l}:")

PD = int(os.environ.get("PD", "1")); PSL = int(os.environ.get("PSL", "6"))
def wait(k, sline, target, vt=(14, 15), pr=None, fld=None):
    done = k.lab("wdone"); spin = k.lab("wspin")
    k("s_cmp_lg_u32 s20, 0"); k(f"s_cbranch_scc1 {done}")
    k(f"v_mov_b32 v{vt[1]}, 0")
    k("s_mov_b32 s28, 0")
    if PD == 1 or pr is None:
        k(f"{spin}:")
        k(f"buffer_load_dword v{vt[0]}, v{vt[1]}, s[12:15], s{sline} offen sc1")
        k("s_add_u32 s28, s28, 1")
        k("s_waitcnt vmcnt(0)")
        k(f"v_readfirstlane_b32 s29, v{vt[0]}")
        if fld is not None: k(f"s_and_b32 s29, s29, s{fld}")
        k(f"s_cmp_eq_u32 s29, {target}"); k(f"s_cbranch_scc1 {done}")
        k(f"s_cmp_gt_u32 s28, {SPIN_LIMIT}"); k(f"s_cbranch_scc1 {done}")
        k("s_sleep 1")
        k(f"s_branch {spin}")
    else:
        ld = lambda i: k(f"buffer_load_dword v{pr+i}, v{vt[1]}, s[12:15], s{sline} offen sc1")
        for i in range(PD):
            ld(i)
            if i < PD - 1: k(f"s_sleep {PSL}")
        k(f"{spin}:")
        for i in range(PD):
            k(f"s_waitcnt vmcnt({PD-1})")
            k(f"v_readfirstlane_b32 s29, v{pr+i}")
            k(f"s_cmp_eq_u32 s29, {target}"); k(f"s_cbranch_scc1 {done}")
            ld(i)
        k("s_add_u32 s28, s28, 1")
        k(f"s_cmp_gt_u32 s28, {SPIN_LIMIT}"); k(f"s_cbranch_scc0 {spin}")
    k(f"{done}:")
    k("s_barrier")

def wait_multi(k, sline, target, n, vt):
    done = k.lab("wdone"); spin = k.lab("wspin"); dx = k.lab("wdx")
    k("s_cmp_lg_u32 s20, 0"); k(f"s_cbranch_scc1 {done}")
    k(f"s_mov_b64 exec, {hex((1 << n) - 1)}")
    k("s_mov_b32 s28, 0")
    k(f"{spin}:")
    k(f"buffer_load_dword v{vt[0]}, v{vt[1]}, s[12:15], s{sline} offen sc1")
    k("s_add_u32 s28, s28, 1")
    k("s_waitcnt vmcnt(0)")
    k(f"v_cmp_ne_u32 vcc, {target}, v{vt[0]}")
    k("s_cmp_eq_u64 vcc, 0"); k(f"s_cbranch_scc1 {dx}")
    k(f"s_cmp_gt_u32 s28, {SPIN_LIMIT}"); k(f"s_cbranch_scc1 {dx}")
    k("s_sleep 1")
    k(f"s_branch {spin}")
    k(f"{dx}:")
    k("s_mov_b64 exec, -1")
    k(f"{done}:")
    k("s_barrier")

def wdma_lane(k, vdst, rowbytes, t):
    k(f"v_lshrrev_b32 v{t}, 3, v1"); k(f"v_and_b32 v{t+1}, 7, v1")
    k(f"v_lshrrev_b32 v{t+2}, 2, v{t}"); k(f"v_and_b32 v{t+3}, 3, v{t}")
    k(f"v_lshl_add_u32 v{t+2}, v{t+2}, 3, v{t+3}")
    k(f"v_mul_u32_u24 v{t+2}, {rowbytes}, v{t+2}")
    k(f"v_lshrrev_b32 v{t+3}, 1, v{t+1}"); k(f"v_lshrrev_b32 v{t}, 1, v{t}")
    k(f"v_xor_b32 v{t+3}, v{t+3}, v{t}")
    k(f"v_and_b32 v{t+1}, 1, v{t+1}")
    k(f"v_lshl_add_u32 v{t+3}, v{t+3}, 1, v{t+1}")
    k(f"v_lshl_add_u32 v{vdst}, v{t+3}, 4, v{t+2}")

STL = int(os.environ.get("STL", "0"))
ESIG = int(os.environ.get("ESIG", "0"))
COA = int(os.environ.get("COA", "15"))
HOIST = int(os.environ.get("HOIST", "0")); TST = int(os.environ.get("TST", "0"))
def hoisted_tail(k, o, step, vm, R):
    PL, RMR, ONE, vP, vZ, vL16, SQ, CQ, QS, VS, vVO = [R[x] for x in ("PL", "RMR", "ONE", "vP", "vZ", "vL16", "SQ", "CQ", "QS", "VS", "vVO")]
    r0, r1 = 198, 199
    vSt = 200; vCs = 201; vTok = 203; vG = 202
    v17, v18, v19 = 209, 212, 204
    v20 = [205, 206, 207, 208]; v23 = [v17, 213, 214, 215]
    tA, tB = 216, 218
    ad = []
    ad += [f"v_lshrrev_b32 v{vSt}, 2, v0", f"v_lshlrev_b32 v{vSt}, 2, v{vSt}"]
    ad += [f"v_min_u32 v{vCs}, 191, v0", f"v_lshlrev_b32 v{vCs}, 2, v{vCs}"]
    ad += [f"v_and_b32 v{vTok}, 15, v1", "s_lshl_b32 s27, s25, 8", "s_lshl_b32 s28, s26, 6", "s_add_u32 s28, s28, s27",
           f"v_lshlrev_b32 v{tA}, 2, v{vTok}", f"v_add_u32 v{v17}, s28, v{tA}", f"v_lshrrev_b32 v{vG}, 4, v1", f"v_lshlrev_b32 v{v19}, 4, v{vG}",
           f"v_add_u32 v{v20[0]}, s28, v{v19}", "s_lshl_b32 s29, s26, 6", "s_add_u32 s29, s29, 1024",
           f"v_add_u32 v{v19}, s29, v{v19}", f"v_add_u32 v{v18}, s29, v{tA}"]
    for jj in range(1, 4):
        ad += [f"v_xor_b32 v{v20[jj]}, {jj<<6}, v{v20[0]}", f"v_xor_b32 v{v23[jj]}, {jj<<6}, v{v17}"]
    ad += ["s_lshl_b32 s27, s23, 2", "s_lshl_b32 s28, s25, 1", "s_add_u32 s27, s27, s28", "s_lshl_b32 s27, s27, 16",
           "s_lshl_b32 s28, s24, 12", "s_add_u32 s27, s27, s28", "s_lshl_b32 s28, s26, 10", "s_add_u32 s27, s27, s28",
           "s_lshr_b32 s42, s26, 1", "s_lshl_b32 s28, s42, 16", "s_add_u32 s35, s27, s28", "s_xor_b32 s28, s28, 0x10000", "s_add_u32 s37, s27, s28",
           f"s_add_u32 s36, s35, {WS_K}", f"s_add_u32 s38, s37, {WS_K}", f"s_add_u32 s35, s35, {WS_Q}", f"s_add_u32 s37, s37, {WS_Q}",
           "s_lshl_b32 s27, s24, 1", "s_add_u32 s27, s27, s42", "s_lshl_b32 s27, s27, 7",
           "s_lshl_b32 s28, s23, 3", "s_add_u32 s27, s27, s28", "s_lshl_b32 s28, s25, 2", "s_add_u32 s27, s27, s28", "s_lshl_b32 s27, s27, 10",
           "s_and_b32 s43, s26, 1", "s_lshl_b32 s28, s43, 8", "s_add_u32 s27, s27, s28", f"s_add_u32 s27, s27, {WS_VT}",
           "s_lshl_b32 s28, s42, 11", "s_add_u32 s39, s27, s28", "s_xor_b32 s28, s28, 2048", "s_add_u32 s40, s27, s28",
           f"v_lshrrev_b32 v{tA}, 5, v1", f"v_xor_b32 v{tA}, s43, v{tA}", f"v_lshlrev_b32 v{tA}, 10, v{tA}",
           f"v_bfe_u32 v{tB}, v1, 4, 1", f"v_lshl_add_u32 v{tA}, v{tB}, 9, v{tA}", f"v_lshl_add_u32 v{vVO}, v{vTok}, 4, v{tA}",
           "s_lshl_b32 s28, s43, 8", f"v_xor_b32 v{vL16}, s28, v{vL16}", "s_mov_b32 s44, 0x3e8293ee"]
    assert not QKS
    h = len(ad) // 2
    HV = int(os.environ.get("HV", "8")); HP = int(os.environ.get("HP", "11"))
    assert 8 <= HV < HP <= 13
    def chk(o_):
        rdy = k.lab("p1rdy"); spin = k.lab("p1spin")
        k(f"s_waitcnt vmcnt({vm.cnt({'VP', 'RMR'})})")
        k(f"v_cmp_eq_u32 vcc, 128, v{vP}")
        k("s_cmp_eq_u64 vcc, -1")
        k(f"s_cbranch_scc1 {rdy}")
        k("s_mov_b32 s28, 0")
        k(f"{spin}:")
        k("s_add_u32 s28, s28, 1")
        k(f"s_cmp_gt_u32 s28, {SPIN_LIMIT}")
        k(f"s_cbranch_scc1 {rdy}")
        k("s_sleep 2")
        k(f"buffer_load_dword v{vP}, v196, s[60:63], 0 offen sc1")
        k("s_waitcnt vmcnt(0)")
        k(f"v_cmp_eq_u32 vcc, 128, v{vP}")
        k("s_cmp_eq_u64 vcc, -1")
        k(f"s_cbranch_scc0 {spin}")
        k(f"{rdy}:")
    ld = []
    ld.append([f"v_and_b32 v{r0}, 3, v0", f"v_lshlrev_b32 v{r0}, 16, v{r0}", f"v_lshrrev_b32 v{r1}, 2, v0", f"v_lshl_add_u32 v{tB}, v{r1}, 3, v{r0}",
               "s_lshl_b32 s27, s23, 10", f"s_add_u32 s27, s27, {WS_ST1}"])
    for i in range(4):
        ld.append([f"buffer_load_dwordx2 v[{PL+2*i}:{PL+2*i+1}], v{tB}, s[12:15], s27 offen{SC}"] + (["s_add_u32 s27, s27, 16384"] if i < 3 else []))
    ld.append([f"s_mul_i32 s27, s24, {16*768}", f"s_add_u32 s27, s27, {WS_CS1}"])
    for i in range(16):
        ld.append([f"buffer_load_dword v{PL+8+i}, v{vCs}, s[12:15], s27 offen offset:{(i % 4) * 768}{SC}"] + ([f"s_add_u32 s27, s27, {4*768}"] if i % 4 == 3 and i < 15 else []))
    adq = [ad[:h], ad[h:]]
    for t in range(8, 14):
        if t == HV:
            k(f"buffer_load_dword v{vP}, v196, s[60:63], 0 offen sc1"); vm.issue("VP")
            k("s_lshl_b32 s27, s2, 13")
            k(f"buffer_load_dwordx4 v[{RMR}:{RMR+3}], v197, s[88:91], s27 offen"); vm.issue("RMR")
        if t == 12 and JIT & 1:
            for l in jit("L_p1tail", 27, 211): k(l)
            vm.issue("CP")
        if t == HP:
            step(o, t, 0, pre=chk, inj=ld, inj0=0)
            vm.issue("PART", 20)
        else:
            step(o, t, 0, inj=adq.pop(0) if adq and t >= HV else None, inj0=0)
        if TST and t == HP: k.stamp(f"t{t}_0")
        if t < 13: step(o, t, 1, inj=adq.pop(0) if adq and t >= HV else None, inj0=0)
        if TST and t < 13: k.stamp(f"t{t}")
    assert not adq
    rs = [f"v_mov_b32 v{r0}, 0"] + [f"v_dot2c_f32_bf16 v{r0}, v{RMR+r}, v{ONE}" for r in range(4)]
    rs += [f"v_add_f32_dpp v{r0}, v{r0}, v{r0} row_ror:{ro} row_mask:0xf bank_mask:0xf" for ro in (8, 4, 2, 1)]
    for sw in ("v_permlane16_swap_b32", "v_permlane32_swap_b32"):
        rs += [f"v_mov_b32 v{r1}, v{r0}", f"{sw} v{r0}, v{r1}", f"v_add_f32 v{r0}, v{r0}, v{r1}"]
    rs += ["s_lshl_b32 s27, s20, 2", "s_add_u32 s27, s27, 2048", f"v_mov_b32 v{r1}, s27", f"ds_write_b32 v{r1}, v{r0}"]
    step(o, 13, 1, inj=rs, inj0=0)
    if TST: k.stamp("t13")
    st = [f"v_add_f32 v{PL}, v{PL}, v{PL+2}", f"v_add_f32 v{PL+1}, v{PL+1}, v{PL+3}", f"v_add_f32 v{PL+4}, v{PL+4}, v{PL+6}", f"v_add_f32 v{PL+5}, v{PL+5}, v{PL+7}",
          f"v_add_f32 v{PL}, v{PL}, v{PL+4}", f"v_add_f32 v{PL+1}, v{PL+1}, v{PL+5}"]
    cs = [f"v_add_f32 v{PL+8+i}, v{PL+8+i}, v{PL+8+i+w}" for w in (8, 4, 2, 1) for i in range(w)]
    lm = k.lab("nomx")
    ch = []
    for qp in ("[1,0,3,2]", "[2,3,0,1]"):
        ch += [f"v_add_f32_dpp v{PL}, v{PL}, v{PL} quad_perm:{qp} row_mask:0xf bank_mask:0xf",
               f"v_add_f32_dpp v{PL+1}, v{PL+1}, v{PL+1} quad_perm:{qp} row_mask:0xf bank_mask:0xf"]
    ch += [f"v_mul_f32 v{PL}, 0x3a800000, v{PL}", f"v_mul_f32 v{PL+1}, 0x3a800000, v{PL+1}",
           ["s_cmp_lg_u32 s24, 0", f"s_cbranch_scc1 {lm}", "s_lshl_b32 s27, s23, 9", f"s_add_u32 s27, s27, {WS_MX}",
            f"buffer_store_dword v{PL}, v{vSt}, s[12:15], s27 offen{SC}", f"{lm}:"],
           f"v_fma_f32 v{PL+1}, -v{PL}, v{PL}, v{PL+1}", f"v_max_f32 v{PL+1}, 0, v{PL+1}", f"v_add_f32 v{PL+1}, 0x3727c5ac, v{PL+1}",
           f"v_rsq_f32 v{PL+1}, v{PL+1}", f"v_mul_f32 v{PL+2}, v{PL}, v{PL+1}", f"v_sub_f32 v{PL+2}, 0, v{PL+2}",
           f"ds_write_b32 v{vSt}, v{PL+1}", f"ds_write_b32 v{vSt}, v{PL+2} offset:512"]
    mix = list(st)
    ci = 0
    for x in ch:
        mix.append(x)
        if ci < len(cs): mix.append(cs[ci]); ci += 1
    mix += cs[ci:]
    mix.append(f"ds_write_b32 v{vCs}, v{PL+8} offset:1024")
    def wpart(o_): k(f"s_waitcnt vmcnt({vm.cnt({'PART'})})")
    step(o, 14, 0, pre=wpart, inj=mix, inj0=0)
    if TST: k.stamp("t14_0")
    vm.issue("MX", 1, certain=False)
    rd = [f"ds_read2_b32 v[{SQ+2*jj}:{SQ+2*jj+1}], v{v23[jj]} offset0:0 offset1:128" for jj in range(4)]
    rd += [f"ds_read_b128 v[{CQ}:{CQ+3}], v{v19}", f"ds_read_b128 v[{CQ+4}:{CQ+7}], v{v19} offset:256", f"ds_read_b32 v152, v{v18} offset:512"]
    for jj in range(4):
        rd += [f"ds_read_b128 v[{VS[jj]}:{VS[jj]+3}], v{v20[jj]}", f"ds_read_b128 v[{VS[jj]+4}:{VS[jj]+7}], v{v20[jj]} offset:512"]
    RW = 56
    rd += [f"ds_read_b128 v[{RW}:{RW+3}], v{vZ} offset:2048", f"ds_read_b128 v[{RW+4}:{RW+7}], v{vZ} offset:2064"]
    step(o, 14, 1, inj=rd, inj0=4)
    if TST: k.stamp("t14")
    q = []
    for jj in range(4):
        q += [f"v_mul_f32 v{QS+2*jj}, s44, v{SQ+2*jj}", f"v_mul_f32 v{QS+2*jj+1}, s44, v{SQ+2*jj+1}"]
    l7 = k.lab("norm")
    b7 = ["s_cmp_lg_u32 s20, 7", f"s_cbranch_scc1 {l7}"]
    for r in range(4):
        b7 += [f"v_add_f32 v{RW+2*r}, v{RW+2*r}, v{RW+2*r+1}"]
    for r in range(4):
        b7 += [f"v_mul_f32 v{RW+2*r}, 0x3a800000, v{RW+2*r}"]
    b7 += [f"v_cvt_pk_bf16_f32 v{r0}, v{RW}, v{RW+2}", f"v_cvt_pk_bf16_f32 v{r1}, v{RW+4}, v{RW+6}",
           "s_lshl_b32 s27, s2, 3", f"s_add_u32 s27, s27, {WS_RM}", "s_mov_b64 exec, 1",
           f"buffer_store_dwordx2 v[{r0}:{r1}], v{vZ}, s[12:15], s27 offen{SC}", "s_mov_b64 exec, -1", f"{l7}:"]
    step(o, 15, 0, inj=q + [b7], inj0=0)
    step(o, 15, 1)
    if JIT & 1: k("L_p1tail:")
    k.stamp("p1_loop")

def hoist_ad(R):
    vL16, vVO = R["vL16"], R["vVO"]
    vSt = 200; vCs = 201; vTok = 203; vG = 202
    v17, v18, v19 = 209, 212, 204
    v20 = [205, 206, 207, 208]; v23 = [v17, 213, 214, 215]
    tA, tB, vSa, vCg = 216, 198, 218, 219
    ad = []
    ad += [f"v_lshrrev_b32 v{vSt}, 2, v0", f"v_and_b32 v{tB}, 3, v0", f"v_min_u32 v{vCs}, 95, v{vSt}", f"v_lshlrev_b32 v{vCs}, 3, v{vCs}",
           f"v_mul_u32_u24 v{vCg}, 3072, v{tB}", f"v_add_u32 v{vCg}, v{vCg}, v{vCs}",
           f"v_lshlrev_b32 v{tB}, {12 if STL & 1 else 16}, v{tB}", f"v_lshl_add_u32 v{vSa}, v{vSt}, 3, v{tB}", f"v_lshlrev_b32 v{vSt}, 2, v{vSt}"]
    ad += [f"v_and_b32 v{vTok}, 15, v1", "s_lshl_b32 s27, s25, 8", "s_lshl_b32 s28, s26, 6", "s_add_u32 s28, s28, s27",
           f"v_lshlrev_b32 v{tA}, 2, v{vTok}", f"v_add_u32 v{v17}, s28, v{tA}", f"v_lshrrev_b32 v{vG}, 4, v1", f"v_lshlrev_b32 v{v19}, 4, v{vG}",
           f"v_add_u32 v{v20[0]}, s28, v{v19}", "s_lshl_b32 s29, s26, 6", "s_add_u32 s29, s29, 1024",
           f"v_add_u32 v{v19}, s29, v{v19}", f"v_add_u32 v{v18}, s29, v{tA}"]
    for jj in range(1, 4):
        ad += [f"v_xor_b32 v{v20[jj]}, {jj<<6}, v{v20[0]}", f"v_xor_b32 v{v23[jj]}, {jj<<6}, v{v17}"]
    ad += ["s_lshl_b32 s27, s23, 2", "s_lshl_b32 s28, s25, 1", "s_add_u32 s27, s27, s28", "s_lshl_b32 s27, s27, 16",
           "s_lshl_b32 s28, s24, 12", "s_add_u32 s27, s27, s28", "s_lshl_b32 s28, s26, 10", "s_add_u32 s27, s27, s28",
           "s_lshr_b32 s42, s26, 1", "s_lshl_b32 s28, s42, 16", "s_add_u32 s35, s27, s28", "s_xor_b32 s28, s28, 0x10000", "s_add_u32 s37, s27, s28",
           f"s_add_u32 s36, s35, {WS_K}", f"s_add_u32 s38, s37, {WS_K}", f"s_add_u32 s35, s35, {WS_Q}", f"s_add_u32 s37, s37, {WS_Q}",
           "s_lshl_b32 s27, s24, 1", "s_add_u32 s27, s27, s42", "s_lshl_b32 s27, s27, 7",
           "s_lshl_b32 s28, s23, 3", "s_add_u32 s27, s27, s28", "s_lshl_b32 s28, s25, 2", "s_add_u32 s27, s27, s28", "s_lshl_b32 s27, s27, 10",
           "s_and_b32 s43, s26, 1", "s_lshl_b32 s28, s43, 8", "s_add_u32 s27, s27, s28", f"s_add_u32 s27, s27, {WS_VT}",
           "s_lshl_b32 s28, s42, 11", "s_add_u32 s39, s27, s28", "s_xor_b32 s28, s28, 2048", "s_add_u32 s40, s27, s28",
           f"v_lshrrev_b32 v{tA}, 5, v1", f"v_xor_b32 v{tA}, s43, v{tA}", f"v_lshlrev_b32 v{tA}, 10, v{tA}",
           f"v_bfe_u32 v{tB}, v1, 4, 1", f"v_lshl_add_u32 v{tA}, v{tB}, 9, v{tA}", f"v_lshl_add_u32 v{vVO}, v{vTok}, 4, v{tA}",
           "s_lshl_b32 s28, s43, 8", f"v_xor_b32 v{vL16}, s28, v{vL16}", "s_mov_b32 s44, 0x3e8293ee",
           f"s_lshl_b32 s41, s23, {14 if STL & 1 else 10}", f"s_add_u32 s41, s41, {WS_ST1}", f"s_mul_i32 s45, s24, {16*768}", f"s_add_u32 s45, s45, {WS_CS1}"]
    return ad

def hoisted_tail2(k, o, step, vm, R):
    PL, RMR, ONE, vP, vZ, vL16, SQ, CQ, QS, VS, vVO = [R[x] for x in ("PL", "RMR", "ONE", "vP", "vZ", "vL16", "SQ", "CQ", "QS", "VS", "vVO")]
    r0, r1 = 198, 199
    vSt = 200; vCs = 201
    v17, v18, v19 = 209, 212, 204
    v20 = [205, 206, 207, 208]; v23 = [v17, 213, 214, 215]
    vSa, vCg = 218, 219
    HV = int(os.environ.get("HV", "9")); HP = int(os.environ.get("HP", "11")); HC = HP + 1
    assert 8 <= HV < HP <= 11
    st_ = lambda nm: k.stamp(nm) if TST else None
    def chk(o_):
        rdy = k.lab("p1rdy"); spin = k.lab("p1spin")
        k(f"s_waitcnt vmcnt({vm.cnt({'VP'})})")
        k(f"v_cmp_eq_u32 vcc, 128, v{vP}")
        k("s_cmp_eq_u64 vcc, -1")
        k(f"s_cbranch_scc1 {rdy}")
        k("s_mov_b32 s28, 0")
        k(f"{spin}:")
        k("s_add_u32 s28, s28, 1")
        k(f"s_cmp_gt_u32 s28, {SPIN_LIMIT}")
        k(f"s_cbranch_scc1 {rdy}")
        k("s_sleep 2")
        k(f"buffer_load_dword v{vP}, v196, s[60:63], 0 offen sc1")
        k("s_waitcnt vmcnt(0)")
        k(f"v_cmp_eq_u32 vcc, 128, v{vP}")
        k("s_cmp_eq_u64 vcc, -1")
        k(f"s_cbranch_scc0 {spin}")
        k(f"{rdy}:")
    vp = [f"buffer_load_dword v{vP}, v196, s[60:63], 0 offen sc1", "s_lshl_b32 s27, s2, 13",
          f"buffer_load_dwordx4 v[{RMR}:{RMR+3}], v197, s[88:91], s27 offen"]
    la = []
    for i in range(4):
        if STL & 1: la.append(f"buffer_load_dwordx2 v[{PL+2*i}:{PL+2*i+1}], v{vSa}, s[12:15], s41 offen offset:{1024*i}{SC}")
        else: la.append([f"buffer_load_dwordx2 v[{PL+2*i}:{PL+2*i+1}], v{vSa}, s[12:15], s41 offen{SC}"] + (["s_add_u32 s41, s41, 16384"] if i < 3 else []))
    lb = [f"buffer_load_dwordx2 v[{PL+8+2*i}:{PL+8+2*i+1}], v{vCg}, s[12:15], s45 offen offset:{768*i}{SC}" for i in range(4)]
    rs = [f"v_mov_b32 v{r0}, 0"] + [f"v_dot2c_f32_bf16 v{r0}, v{RMR+r}, v{ONE}" for r in range(4)]
    rs += [f"v_add_f32_dpp v{r0}, v{r0}, v{r0} row_ror:{ro} row_mask:0xf bank_mask:0xf" for ro in (8, 4, 2, 1)]
    for sw in ("v_permlane16_swap_b32", "v_permlane32_swap_b32"):
        rs += [f"v_mov_b32 v{r1}, v{r0}", f"{sw} v{r0}, v{r1}", f"v_add_f32 v{r0}, v{r0}, v{r1}"]
    rs += ["s_lshl_b32 s27, s20, 2", "s_add_u32 s27, s27, 2048", f"v_mov_b32 v{r1}, s27", f"ds_write_b32 v{r1}, v{r0}"]
    def red(b):
        x = [f"v_add_f32 v{b}, v{b}, v{b+2}", f"v_add_f32 v{b+1}, v{b+1}, v{b+3}", f"v_add_f32 v{b+4}, v{b+4}, v{b+6}", f"v_add_f32 v{b+5}, v{b+5}, v{b+7}",
             f"v_add_f32 v{b}, v{b}, v{b+4}", f"v_add_f32 v{b+1}, v{b+1}, v{b+5}"]
        for qp in ("[1,0,3,2]", "[2,3,0,1]"):
            x += [f"v_add_f32_dpp v{b}, v{b}, v{b} quad_perm:{qp} row_mask:0xf bank_mask:0xf",
                  f"v_add_f32_dpp v{b+1}, v{b+1}, v{b+1} quad_perm:{qp} row_mask:0xf bank_mask:0xf"]
        return x
    sa = red(PL) + [f"v_mul_f32 v{PL}, 0x3a800000, v{PL}", f"v_mul_f32 v{PL+1}, 0x3a800000, v{PL+1}",
          f"v_fma_f32 v{PL+1}, -v{PL}, v{PL}, v{PL+1}", f"v_max_f32 v{PL+1}, 0, v{PL+1}", f"v_add_f32 v{PL+1}, 0x3727c5ac, v{PL+1}",
          f"v_rsq_f32 v{PL+1}, v{PL+1}", f"v_mul_f32 v{PL+2}, v{PL}, v{PL+1}", f"v_sub_f32 v{PL+2}, 0, v{PL+2}",
          f"ds_write_b32 v{vSt}, v{PL+1}", f"ds_write_b32 v{vSt}, v{PL+2} offset:512"]
    lm = k.lab("nomx")
    sb = red(PL + 8) + [f"ds_write_b64 v{vCs}, v[{PL+8}:{PL+9}] offset:1024",
          ["s_cmp_lg_u32 s24, 0", f"s_cbranch_scc1 {lm}", "s_lshl_b32 s27, s23, 9", f"s_add_u32 s27, s27, {WS_MX}",
           f"buffer_store_dword v{PL}, v{vSt}, s[12:15], s27 offen{SC}", f"{lm}:"]]
    for t in range(8, 13):
        if t == HV:
            step(o, t, 0, inj=vp, inj0=2); vm.issue("VP"); vm.issue("RMR")
        elif t == HP:
            step(o, t, 0, pre=chk, inj=la, inj0=1); vm.issue("PA", 4)
        elif t == HC:
            step(o, t, 0, inj=lb, inj0=1); vm.issue("PB", 4)
        else:
            step(o, t, 0)
        st_(f"t{t}_0")
        step(o, t, 1)
        st_(f"t{t}")
    step(o, 13, 0, inj=rs, inj0=0)
    st_("t13_0")
    step(o, 13, 1, extra_need=("PA", "RMR"), inj=sa, inj0=0)
    st_("t13")
    def wpb(o_): k(f"s_waitcnt vmcnt({vm.cnt({'PB'})})")
    step(o, 14, 0, pre=wpb, inj=sb, inj0=0)
    vm.issue("MX", 1, certain=False)
    st_("t14_0")
    RW = 56
    rd = [f"ds_read2_b32 v[{SQ+2*jj}:{SQ+2*jj+1}], v{v23[jj]} offset0:0 offset1:128" for jj in range(4)]
    rd += [f"ds_read_b128 v[{RW}:{RW+3}], v{vZ} offset:2048", f"ds_read_b128 v[{RW+4}:{RW+7}], v{vZ} offset:2064"]
    step(o, 14, 1, inj=rd, inj0=6)
    st_("t14")
    q = []
    for jj in range(4):
        q += [f"v_mul_f32 v{QS+2*jj}, s44, v{SQ+2*jj}", f"v_mul_f32 v{QS+2*jj+1}, s44, v{SQ+2*jj+1}"]
    l7 = k.lab("norm")
    b7 = ["s_cmp_lg_u32 s20, 7", f"s_cbranch_scc1 {l7}"]
    for r in range(4):
        b7 += [f"v_add_f32 v{RW+2*r}, v{RW+2*r}, v{RW+2*r+1}"]
    for r in range(4):
        b7 += [f"v_mul_f32 v{RW+2*r}, 0x3a800000, v{RW+2*r}"]
    b7 += [f"v_cvt_pk_bf16_f32 v{r0}, v{RW}, v{RW+2}", f"v_cvt_pk_bf16_f32 v{r1}, v{RW+4}, v{RW+6}",
           "s_lshl_b32 s27, s2, 3", f"s_add_u32 s27, s27, {WS_RM}", "s_mov_b64 exec, 1",
           f"buffer_store_dwordx2 v[{r0}:{r1}], v{vZ}, s[12:15], s27 offen{SC}", "s_mov_b64 exec, -1", f"{l7}:"]
    cq = [f"ds_read_b128 v[{CQ}:{CQ+3}], v{v19}", f"ds_read_b128 v[{CQ+4}:{CQ+7}], v{v19} offset:256"]
    step(o, 15, 0, inj=q + cq + [b7], inj0=0)
    st_("t15_0")
    vr = [f"ds_read_b32 v152, v{v18} offset:512"]
    for jj in range(4):
        vr += [f"ds_read_b128 v[{VS[jj]}:{VS[jj]+3}], v{v20[jj]}", f"ds_read_b128 v[{VS[jj]+4}:{VS[jj]+7}], v{v20[jj]} offset:512"]
    step(o, 15, 1, inj=vr, inj0=0)
    k.stamp("p1_loop")

def phase1(k):
    NS = 4; SLOT = 40960; BOFF = 24576
    ACC = 64
    vA = [2, 3]; vW = [10, 11, 12]; vX = [13, 4]; vL16 = 5; vZ = 6; vP = 7
    A = [16, 28]; B = [40, 112]
    VB = 128; DC = 144; D1 = 156; D2 = 160; ONE = 164; PL = 168
    RMR = 192
    acc = lambda m, j: ACC + (m * 4 + j) * 4
    k("s_and_b32 s21, s2, 7"); k("s_lshr_b32 s22, s2, 3")
    if P1M == 0:
        k("s_and_b32 s23, s21, 1"); k("s_lshl_b32 s23, s23, 3"); k("s_and_b32 s24, s22, 7"); k("s_add_u32 s23, s23, s24")
        k("s_lshr_b32 s24, s21, 1"); k("s_lshl_b32 s24, s24, 2"); k("s_lshr_b32 s25, s22, 3"); k("s_add_u32 s24, s24, s25")
    elif P1M == 1:
        k("s_and_b32 s23, s22, 15"); k("s_lshl_b32 s24, s21, 1"); k("s_lshr_b32 s25, s22, 4"); k("s_add_u32 s24, s24, s25")
    else:
        k("s_lshr_b32 s23, s22, 1"); k("s_lshl_b32 s24, s21, 1"); k("s_and_b32 s25, s22, 1"); k("s_add_u32 s24, s24, s25")
    k("s_and_b32 s25, s20, 1")
    k("s_lshr_b32 s26, s20, 1")
    wdma_lane(k, vW[0], 6144, 14)
    if QKS:
        for m in (1, 2):
            k(f"s_add_u32 s27, s24, {m*QKS}"); k("s_and_b32 s27, s27, 15"); k("s_sub_u32 s27, s27, s24")
            k("s_lshl_b32 s27, s27, 7"); k(f"s_add_u32 s27, s27, {2048*m}")
            k(f"v_add_u32 v{vW[m]}, s27, v{vW[0]}")
    else:
        k(f"v_add_u32 v{vW[1]}, 2048, v{vW[0]}")
        k(f"v_add_u32 v{vW[2]}, 4096, v{vW[0]}")
    k("v_lshrrev_b32 v14, 3, v1"); k("v_and_b32 v15, 7, v1")
    k("v_lshrrev_b32 v17, 4, v1")
    k("v_xor_b32 v17, v17, v15")
    k("v_lshlrev_b32 v17, 4, v17")
    k(f"v_lshl_add_u32 v{vX[0]}, v14, 11, v17")
    k(f"v_xor_b32 v{vX[1]}, 64, v{vX[0]}")
    k(f"v_add_u32 v{vX[1]}, {16384 - 1024}, v{vX[1]}")
    k(f"v_lshlrev_b32 v{vL16}, 4, v1")
    k("s_lshr_b32 s27, s20, 2"); k("s_lshl_b32 s27, s27, 5")
    k("s_bfe_u32 s28, s20, 0x10001"); k("s_lshl_b32 s28, s28, 4"); k("s_add_u32 s27, s27, s28")
    k("s_lshl_b32 s28, s25, 2"); k("s_add_u32 s27, s27, s28")
    k("s_mul_i32 s48, s27, 6144"); k("s_lshl_b32 s28, s24, 7"); k("s_add_u32 s48, s48, s28")
    k(f"s_add_u32 s46, s48, {16*64*6144}")
    k("s_lshl_b32 s49, s23, 3"); k("s_add_u32 s49, s49, s20"); k("s_lshl_b32 s49, s49, 15")
    KT0 = int(os.environ.get("KT0", "0"))
    if KT0 == 0: k("s_add_u32 s27, s23, s24"); k("s_and_b32 s27, s27, 15")
    elif KT0 == 1: k("s_mov_b32 s27, s24")
    elif KT0 == 2: k("s_mov_b32 s27, s23")
    elif KT0 == 3: k("s_mov_b32 s27, 0")
    elif KT0 == 4: k("s_and_b32 s27, s2, 7"); k("s_lshl_b32 s27, s27, 1")
    elif KT0 == 5: k("s_and_b32 s27, s23, 1"); k("s_lshl_b32 s27, s27, 3"); k("s_add_u32 s27, s27, s24"); k("s_and_b32 s27, s27, 15")
    elif KT0 == 6: k("s_and_b32 s27, s23, 3"); k("s_lshl_b32 s27, s27, 2"); k("s_add_u32 s27, s27, s24"); k("s_and_b32 s27, s27, 15")
    k(f"s_mul_i32 s28, s27, {64*6144}"); k("s_add_u32 s30, s48, s28")
    k("s_lshl_b32 s28, s27, 7"); k("s_add_u32 s31, s49, s28")
    k("s_lshl_b32 s32, s20, 10")
    k("s_lshl_b32 s33, s20, 11"); k(f"s_add_u32 s33, s33, {BOFF}")
    k.stamp("p1_pre")
    k("s_waitcnt lgkmcnt(0)")
    k.stamp("p1_ka")
    srd(k, 8, pWQKV, D * 3 * D * 2)
    srd(k, 12, pWS, WS_SIZE)
    srd(k, 16, pX, MB4)
    def dma(slot):
        o = []
        for m in range(3):
            o.append([f"s_add_u32 m0, s32, {slot*SLOT + m*8192}", f"buffer_load_dwordx4 v{vW[m]}, s[8:11], s30 offen lds"])
        o.append([f"s_add_u32 m0, s33, {slot*SLOT}", f"buffer_load_dwordx4 v{vX[0]}, s[16:19], s31 offen lds"])
        o.append([f"buffer_load_dwordx4 v{vX[1]}, s[16:19], s31 offen offset:1024 lds"])
        return o
    adv = [f"s_add_u32 s30, s30, {64*6144}", "s_add_u32 s31, s31, 128", "s_cmp_eq_u32 s30, s46", "s_cselect_b32 s30, s48, s30", "s_cselect_b32 s31, s49, s31"]
    vm = VM()
    def issue_stage(st):
        for d in dma(st % NS):
            for l in d: k(l)
        for l in adv: k(l)
        vm.issue(("S", st), 5)
    NPRO = 2 if RAMP else NS
    issue_stage(0)
    if not RAMP:
        for st in range(1, NS): issue_stage(st)
    k.stamp("p1_dma")
    srd(k, 88, pWO, D * D * 2)
    k("v_lshlrev_b32 v197, 4, v0")
    k("v_mov_b32 v14, v197")
    l0 = k.lab("noinit")
    k("s_cmp_lg_u32 s2, 0"); k(f"s_cbranch_scc1 {l0}")
    for r in range(4): k(f"v_mov_b32 v{PL+r}, 0")
    k(f"s_mov_b32 s27, {WS_CNT}")
    k(f"buffer_store_dwordx4 v[{PL}:{PL+3}], v14, s[12:15], s27 offen{SC}")
    k(f"{l0}:")
    srd(k, 60, pDBG, 256)
    if JIT:
        k("s_getpc_b64 s[80:81]"); k("L_cb:"); k("s_mov_b32 s82, L_end-L_cb"); k("s_mov_b32 s83, 0x20000")
        k("s_lshr_b32 s27, s2, 3"); k("s_lshl_b32 s27, s27, 3"); k("s_add_u32 s27, s27, s20"); k("s_lshl_b32 s27, s27, 8")
        k("v_and_b32 v252, 3, v1"); k("v_lshlrev_b32 v252, 6, v252"); k("v_add_u32 v252, s27, v252")
    k("v_lshrrev_b32 v14, 4, v1")
    k("v_bfe_u32 v15, v1, 2, 2")
    k("v_lshrrev_b32 v16, 1, v14"); k("v_and_b32 v17, 1, v14")
    k("v_lshlrev_b32 v16, 4, v16"); k("v_lshl_add_u32 v16, v17, 2, v16"); k("v_add_u32 v16, v16, v15")
    k("v_lshlrev_b32 v16, 7, v16")
    k("v_lshrrev_b32 v18, 1, v15"); k("v_lshl_add_u32 v18, v17, 1, v18")
    k("v_xor_b32 v18, s26, v18")
    k("v_lshl_add_u32 v16, v18, 5, v16")
    k("v_and_b32 v18, 3, v1")
    k(f"v_lshl_add_u32 v{vA[0]}, v18, 3, v16")
    k(f"v_add_u32 v{vA[1]}, {2*SLOT}, v{vA[0]}")
    for i in range(1, 4): k(f"v_cmp_eq_u32 s[{48+2*i}:{49+2*i}], {i}, v18")
    if RAMP:
        if os.environ.get("XST"): k.stamp("p1_b0")
        k("s_barrier")
        if os.environ.get("XST"): k.stamp("p1_b1")
        issue_stage(1)
        if os.environ.get("XST"): k.stamp("p1_s1")
    k("v_cmp_eq_u32 s[56:57], v14, v15")
    k("v_and_b32 v15, 15, v1")
    k("v_cmp_eq_u32 s[58:59], 0, v15")
    k("v_lshrrev_b32 v16, 1, v15"); k("v_xor_b32 v16, v16, v14"); k("v_lshlrev_b32 v16, 4, v16")
    k("v_lshl_add_u32 v16, v15, 7, v16")
    k("s_cmp_eq_u32 s25, 0")
    k("s_cselect_b32 s58, s58, 0"); k("s_cselect_b32 s59, s59, 0")
    k("s_lshl_b32 s28, s25, 13"); k(f"s_add_u32 s28, s28, {BOFF}")
    for jj in range(4):
        k(f"s_xor_b32 s27, s26, {jj}"); k("s_lshl_b32 s27, s27, 11"); k("s_add_u32 s27, s27, s28")
        k(f"v_add_u32 v{VB+jj}, s27, v16")
        k(f"v_xor_b32 v{VB+4+jj}, 64, v{VB+jj}")
        k(f"v_add_u32 v{VB+8+jj}, {2*SLOT}, v{VB+jj}")
        k(f"v_add_u32 v{VB+12+jj}, {2*SLOT}, v{VB+4+jj}")
    k(f"v_mov_b32 v{vZ}, 0")
    k("v_lshlrev_b32 v8, 3, v15")
    k("s_lshl_b32 s42, s23, 3"); k("s_lshl_b32 s27, s25, 2"); k("s_add_u32 s42, s42, s27"); k("s_add_u32 s42, s42, s26")
    if STL & 1:
        k("s_lshl_b32 s42, s25, 2"); k("s_add_u32 s42, s42, s26"); k("s_lshl_b32 s42, s42, 7")
        k("s_lshl_b32 s27, s23, 14"); k("s_add_u32 s42, s42, s27"); k("s_lshl_b32 s27, s24, 10"); k("s_add_u32 s42, s42, s27"); k(f"s_add_u32 s42, s42, {WS_ST1}")
    else:
        k("s_lshl_b32 s42, s42, 7"); k("s_lshl_b32 s27, s24, 14"); k("s_add_u32 s42, s42, s27"); k(f"s_add_u32 s42, s42, {WS_ST1}")
    k("v_lshlrev_b32 v9, 4, v14")
    k("s_lshl_b32 s43, s24, 4"); k("s_add_u32 s43, s43, s23"); k("s_mul_i32 s43, s43, 768")
    k("s_lshl_b32 s27, s26, 6"); k("s_add_u32 s43, s43, s27"); k(f"s_add_u32 s43, s43, {WS_CS1}")
    k("v_and_b32 v196, 1, v1"); k("v_lshlrev_b32 v196, 7, v196")
    for r in range(ACC, ACC + 48): k(f"v_mov_b32 v{r}, 0")
    for r in range(DC, DC + 20): k(f"v_mov_b32 v{r}, 0")
    for r in range(4): k(f"v_mov_b32 v{ONE+r}, 0x3f803f80")
    def reads(buf, slot, kb):
        o = []
        pr = slot >> 1; so = (slot & 1) * SLOT
        def rA(m):
            return [f"ds_read_b64_tr_b16 v[{A[buf]+4*m+2*t}:{A[buf]+4*m+2*t+1}], v{vA[pr]} offset:{so + m*8192 + kb*4096 + t*1024}" for t in range(2)]
        def rB(j):
            return [f"ds_read_b128 v[{B[buf]+4*j}:{B[buf]+4*j+3}], v{VB + pr*8 + kb*4 + j} offset:{so}"]
        o += rA(0)
        for j in range(4): o += rB(j)
        o += rA(1) + rA(2)
        return o
    def side(buf):
        o = []
        fb = f"v[{B[buf]}:{B[buf]+3}]"; on = f"v[{ONE}:{ONE+3}]"
        for m in range(3):
            o.append(f"v_mfma_f32_16x16x32_bf16 v[{DC+4*m}:{DC+4*m+3}], v[{A[buf]+4*m}:{A[buf]+4*m+3}], {on}, v[{DC+4*m}:{DC+4*m+3}]")
        o.append(f"v_mfma_f32_16x16x32_bf16 v[{D1}:{D1+3}], {on}, {fb}, v[{D1}:{D1+3}]")
        o.append(f"v_mfma_f32_16x16x32_bf16 v[{D2}:{D2+3}], {fb}, {fb}, v[{D2}:{D2+3}]")
        return o
    def once(lines):
        l = k.lab("once")
        k("s_cmp_lg_u32 s34, 0"); k(f"s_cbranch_scc1 {l}")
        for x in lines: k(x)
        k(f"{l}:")
    def publish():
        o = [f"v_cndmask_b32 v{D2}, v{D2}, v{D2+1}, s[50:51]", f"v_cndmask_b32 v{D2}, v{D2}, v{D2+2}, s[52:53]", f"v_cndmask_b32 v{D2}, v{D2}, v{D2+3}, s[54:55]",
             f"v_mov_b32 v{D1+1}, v{D2}",
             "s_mov_b64 exec, s[56:57]",
             f"buffer_store_dwordx2 v[{D1}:{D1+1}], v8, s[12:15], s42 offen{SC}",
             "s_mov_b64 exec, s[58:59]"]
        for m in range(3):
            o.append(f"buffer_store_dwordx4 v[{DC+4*m}:{DC+4*m+3}], v9, s[12:15], s43 offen offset:{256*m}{SC}")
        if DL1 or SK3:
            o += [f"s_getreg_b32 s27, {XCCR}", "v_mov_b32 v14, s27", "s_lshl_b32 s27, s2, 7", f"s_add_u32 s27, s27, {WS_XID1}",
                  f"buffer_store_dword v14, v9, s[12:15], s27 offen{SC}"]
        if DL1:
            o += ["s_lshl_b32 s28, s24, 7", f"s_add_u32 s28, s28, {WS_CNT + C2F*128}", "s_add_u32 s27, s27, 64",
                  "s_cmp_eq_u32 s23, 0", "s_cselect_b32 s27, s28, s27",
                  f"buffer_store_dword v{vZ}, v9, s[12:15], s27 offen{SC}"]
        o.append("s_mov_b64 exec, -1")
        return o
    def sig1():
        l = k.lab("nosig1")
        return ["s_cmp_lg_u32 s20, 0", f"s_cbranch_scc1 {l}", "s_mov_b64 exec, 1", "v_mov_b32 v14, 1",
                "s_and_b32 s27, s2, 1", "s_lshl_b32 s27, s27, 7",
                f"buffer_atomic_add v14, v{vZ}, s[60:63], s27 offen sc1", "s_mov_b64 exec, -1", f"{l}:"]
    k.stamp("p1_set")
    k(f"s_waitcnt vmcnt({vm.cnt({('S', 0)})})")
    k.stamp("p1_w0")
    k("s_barrier")
    k.stamp("p1_go")
    for l in reads(0, 0, 0): k(l)
    NT = 16
    def sched(t, kb):
        if RAMP and t < 2: return [2, 3, 4, 5][2 * t + kb]
        if kb == 1 and t + NS < NT: return t + NS
        return None
    def step(o, t, kb, side_here=False, pre=None, post=None, extra_need=(), inj=None, inj0=0):
        cur = kb; nxt = kb ^ 1; last = t == NT - 1
        if kb == 0:
            o.append("s_waitcnt lgkmcnt(0)")
            rd = reads(nxt, t % NS, 1)
        elif last:
            o.append("s_waitcnt lgkmcnt(0)"); rd = []
        else:
            o.append(f"s_waitcnt vmcnt({vm.cnt({('S', t + 1)} | set(extra_need))}) lgkmcnt(0)")
            o.append("s_barrier")
            rd = reads(nxt, (t + 1) % NS, 0)
        st = sched(t, kb)
        dm = dma(st % NS) if st is not None else []
        if pre: pre(o)
        if st is not None: vm.issue(("S", st), 5)
        mf = []
        for m in range(3):
            for j in range(4):
                a = acc(m, j); fa = f"v[{A[cur]+4*m}:{A[cur]+4*m+3}]"; fb = f"v[{B[cur]+4*j}:{B[cur]+4*j+3}]"
                if m == 2: fa, fb = fb, fa
                mf.append(f"v_mfma_f32_16x16x32_bf16 v[{a}:{a+3}], {fa}, {fb}, v[{a}:{a+3}]")
        gaps = [[] for _ in mf]
        for q, r in enumerate(rd): gaps[q].append(r)
        pos = [1, 3, 5, 7, 9]
        for q, d in enumerate(dm):
            if len(d) == 2:
                gaps[pos[q] - 1].append(d[0]); gaps[pos[q]].append(d[1])
            else:
                gaps[pos[q]].append(d[0])
        if dm: gaps[10] += adv
        if inj:
            ng = len(mf) - inj0
            for q, it in enumerate(inj):
                gaps[inj0 + q * ng // len(inj)] += (it if isinstance(it, list) else [it])
        for g, mm in enumerate(mf):
            o.append(mm); o += gaps[g]
        if side_here: o += side(cur)
        if post: post(o)
    texts = []
    for per in range(2 if HOIST else 3):
        o = []
        for t in range(per * 4, per * 4 + 4):
            if HOIST == 2 and 4 <= t < 8:
                ad = hoist_ad(dict(vL16=vL16, vVO=217)); n4 = (len(ad) + 3) // 4
                step(o, t, 0, inj=ad[(t - 4) * n4:(t - 3) * n4], inj0=0)
            else:
                step(o, t, 0, side_here=(t == 0))
            if t == 1 and not ESIG:
                o += publish(); vm.issue("PUB", 6 if DL1 else 5 if SK3 else 4, certain=False)
            step(o, t, 1, side_here=(t == 0), extra_need=("PUB",) if t == 3 - ESIG else ())
            if t == 0 and ESIG:
                o += publish(); vm.issue("PUB", 6 if DL1 else 5 if SK3 else 4, certain=False)
            if t == 3 - ESIG: o += sig1(); vm.issue("SIG", 1, certain=False)
        texts.append(o)
    periods(k, "p1loop", texts, 34)
    if TST: k.stamp("t11" if not HOIST else "t7")
    def partial_loads():
        rdy = k.lab("p1rdy"); spin = k.lab("p1spin"); nocs = k.lab("p1nocs")
        if TST == 2: k.stamp("t14_w")
        k(f"v_cmp_eq_u32 vcc, 128, v{vP}")
        k("s_cmp_eq_u64 vcc, -1")
        k(f"s_cbranch_scc1 {rdy}")
        k("s_mov_b32 s28, 0")
        k(f"{spin}:")
        k("s_add_u32 s28, s28, 1")
        k(f"s_cmp_gt_u32 s28, {SPIN_LIMIT}")
        k(f"s_cbranch_scc1 {rdy}")
        k("s_sleep 2")
        k(f"buffer_load_dword v{vP}, v196, s[60:63], 0 offen sc1")
        k("s_waitcnt vmcnt(0)")
        k(f"v_cmp_eq_u32 vcc, 128, v{vP}")
        k("s_cmp_eq_u64 vcc, -1")
        k(f"s_cbranch_scc0 {spin}")
        k(f"{rdy}:")
        if TST == 2: k.stamp("t14_c")
        if COA & 1:
            k("v_lshrrev_b32 v14, 4, v1"); k(f"v_lshlrev_b32 v14, {12 if STL & 1 else 16}, v14")
            k("v_and_b32 v15, 15, v1"); k("s_lshl_b32 s27, s20, 4"); k("v_add_u32 v15, s27, v15"); k("v_lshl_add_u32 v14, v15, 3, v14")
        else:
            k("v_and_b32 v14, 3, v0"); k(f"v_lshlrev_b32 v14, {12 if STL & 1 else 16}, v14")
            k("v_lshrrev_b32 v15, 2, v0"); k("v_lshl_add_u32 v14, v15, 3, v14")
        k(f"s_lshl_b32 s27, s23, {14 if STL & 1 else 10}"); k(f"s_add_u32 s27, s27, {WS_ST1}")
        for i in range(4):
            if STL & 1:
                k(f"buffer_load_dwordx2 v[{PL+2*i}:{PL+2*i+1}], v14, s[12:15], s27 offen offset:{1024*i}{SC}")
                continue
            k(f"buffer_load_dwordx2 v[{PL+2*i}:{PL+2*i+1}], v14, s[12:15], s27 offen{SC}")
            if i < 3: k("s_add_u32 s27, s27, 16384")
        if TST == 2: k.stamp("t14_s")
        k("s_cmp_ge_u32 s20, 3")
        k(f"s_cbranch_scc1 {nocs}")
        k("v_lshlrev_b32 v14, 2, v0")
        k(f"s_mul_i32 s27, s24, {16*768}"); k(f"s_add_u32 s27, s27, {WS_CS1}")
        for i in range(16):
            k(f"buffer_load_dword v{PL+8+i}, v14, s[12:15], s27 offen offset:{(i % 4) * 768}{SC}")
            if i % 4 == 3 and i < 15: k(f"s_add_u32 s27, s27, {4*768}")
        k(f"{nocs}:")
        if DL1 == 1:
            lid = k.lab("p1noid")
            k("s_cmp_lg_u32 s20, 7"); k(f"s_cbranch_scc1 {lid}")
            k("v_and_b32 v14, 31, v1"); k("v_lshlrev_b32 v14, 10, v14")
            k("s_and_b32 s27, s2, 7"); k("s_lshl_b32 s27, s27, 7"); k(f"s_add_u32 s27, s27, {WS_XID1}")
            k(f"buffer_load_dword v{PL+8}, v14, s[12:15], s27 offen{SC}")
            k(f"{lid}:")
        if TST == 2: k.stamp("t14_l")
    class _O:
        def append(self, x): k(x)
        def __iadd__(self, xs):
            for x in xs: k(x)
            return self
    o = _O()
    SQ = 28; CQ = 36; QS = 52; VS = [112, 120, 128, 136]; vVO = 14
    if HOIST:
        SQ = 220; CQ = 228; QS = 184; VS = [236, 244, 154, 176]; vVO = 217
        (hoisted_tail2 if HOIST == 2 else hoisted_tail)(k, o, step, vm, dict(PL=PL, RMR=RMR, ONE=ONE, vP=vP, vZ=vZ, vL16=vL16, SQ=SQ, CQ=CQ, QS=QS, VS=VS, vVO=vVO))
    else:
        o = _O()
        for t in range(12, 16):
            step(o, t, 0)
            if TST == 2 and t >= 13: k.stamp(f"t{t}_0")
            if DL1 and t == DLT:
                k("v_lshrrev_b32 v198, 5, v1"); k("v_lshlrev_b32 v198, 16, v198"); k("v_and_b32 v199, 31, v1"); k("v_lshl_add_u32 v198, v199, 7, v198")
                k("v_lshlrev_b32 v199, 7, v1")
                k("s_and_b32 s28, s20, 1")
                k("s_lshl_b32 s27, s23, 1"); k("s_add_u32 s27, s27, s28"); k("s_lshl_b32 s27, s27, 17"); k("s_lshl_b32 s29, s24, 12"); k("s_add_u32 s27, s27, s29")
                k("s_cmp_lt_u32 s20, 2"); k(f"s_cselect_b32 s29, 0, {WS_K - WS_Q}"); k("s_add_u32 s27, s27, s29"); k(f"s_add_u32 s27, s27, {WS_Q}")
                k("s_lshl_b32 s29, s24, 1"); k("s_add_u32 s29, s29, s28"); k("s_lshl_b32 s29, s29, 17"); k("s_lshl_b32 s28, s23, 13"); k("s_add_u32 s29, s29, s28")
                k(f"s_add_u32 s29, s29, {WS_VT}")
                k("s_cmp_ge_u32 s20, 4"); k("s_cselect_b32 s27, s29, s27"); k("s_cselect_b64 vcc, -1, 0")
                k("v_cndmask_b32 v198, v198, v199, vcc")
                k(f"buffer_load_dword v199, v198, s[12:15], s27 offen{SC}"); vm.issue("PT")
            if t == 12:
                k(f"buffer_load_dword v{vP}, v196, s[60:63], 0 offen sc1"); vm.issue("VP")
                k("s_lshl_b32 s27, s2, 13")
                k(f"buffer_load_dwordx4 v[{RMR}:{RMR+3}], v197, s[88:91], s27 offen"); vm.issue("RMR")
                if JIT & 1:
                    for l in jit("L_p1tail", 27, 211): k(l)
                    vm.issue("CP")
            step(o, t, 1, pre=(lambda o: partial_loads()) if t == 14 else None, extra_need=("VP", "RMR") if t == 14 else ())
            if TST and t < 15: k.stamp(f"t{t}")
        if JIT & 1: k("L_p1tail:")
        k.stamp("p1_loop")
        k("v_mov_b32 v14, 0")
        for r in range(4): k(f"v_dot2c_f32_bf16 v14, v{RMR+r}, v{ONE}")
        for ro in (8, 4, 2, 1): k(f"v_add_f32_dpp v14, v14, v14 row_ror:{ro} row_mask:0xf bank_mask:0xf")
        for sw in ("v_permlane16_swap_b32", "v_permlane32_swap_b32"):
            k("v_mov_b32 v15, v14"); k(f"{sw} v14, v15"); k("v_add_f32 v14, v14, v15")
        k("s_lshl_b32 s27, s20, 2"); k("s_add_u32 s27, s27, 2048"); k("v_mov_b32 v15, s27")
        k("ds_write_b32 v15, v14")
        k("s_waitcnt vmcnt(0)")
        if DL1 == 1:
            lid = k.lab("p1noid")
            k("s_cmp_lg_u32 s20, 7"); k(f"s_cbranch_scc1 {lid}")
            k(f"s_getreg_b32 s27, {XCCR}"); k(f"v_cmp_ne_u32 vcc, s27, v{PL+8}")
            k("s_cmp_eq_u64 vcc, 0"); k("s_cselect_b32 s27, 1, 0"); k("v_mov_b32 v15, s27")
            k(f"ds_write_b32 v{vZ}, v15 offset:{FLAGOFF}")
            k(f"{lid}:")
        k(f"v_add_f32 v{PL}, v{PL}, v{PL+2}"); k(f"v_add_f32 v{PL+1}, v{PL+1}, v{PL+3}")
        k(f"v_add_f32 v{PL+4}, v{PL+4}, v{PL+6}"); k(f"v_add_f32 v{PL+5}, v{PL+5}, v{PL+7}")
        k(f"v_add_f32 v{PL}, v{PL}, v{PL+4}"); k(f"v_add_f32 v{PL+1}, v{PL+1}, v{PL+5}")
        if COA & 1:
            k("v_and_b32 v16, 15, v1"); k("s_lshl_b32 s27, s20, 4"); k("v_add_u32 v16, s27, v16"); k("v_lshlrev_b32 v16, 2, v16")
            k(f"v_permlane16_swap_b32 v{PL}, v{PL+1}")
            k(f"v_add_f32 v{PL}, v{PL}, v{PL+1}"); k(f"v_mov_b32 v{PL+1}, v{PL}")
            k(f"v_permlane32_swap_b32 v{PL}, v{PL+1}")
            k(f"v_add_f32 v{PL}, v{PL}, v{PL+1}"); k(f"v_mov_b32 v{PL+1}, v{PL}")
            k(f"v_permlane16_swap_b32 v{PL}, v{PL+1}")
        else:
            for qp in ("[1,0,3,2]", "[2,3,0,1]"):
                k(f"v_add_f32_dpp v{PL}, v{PL}, v{PL} quad_perm:{qp} row_mask:0xf bank_mask:0xf")
                k(f"v_add_f32_dpp v{PL+1}, v{PL+1}, v{PL+1} quad_perm:{qp} row_mask:0xf bank_mask:0xf")
        k(f"v_mul_f32 v{PL}, 0x3a800000, v{PL}")
        k(f"v_mul_f32 v{PL+1}, 0x3a800000, v{PL+1}")
        if not COA & 1: k("v_lshrrev_b32 v16, 2, v0"); k("v_lshlrev_b32 v16, 2, v16")
        lm = k.lab("nomx")
        k("s_cmp_lg_u32 s24, 0"); k(f"s_cbranch_scc1 {lm}")
        k("s_lshl_b32 s27, s23, 9"); k(f"s_add_u32 s27, s27, {WS_MX}")
        k(f"buffer_store_dword v{PL}, v16, s[12:15], s27 offen{SC}")
        k(f"{lm}:")
        k(f"v_fma_f32 v{PL+1}, -v{PL}, v{PL}, v{PL+1}")
        k(f"v_max_f32 v{PL+1}, 0, v{PL+1}")
        k(f"v_add_f32 v{PL+1}, 0x3727c5ac, v{PL+1}")
        k(f"v_rsq_f32 v{PL+1}, v{PL+1}")
        k(f"v_mul_f32 v{PL+2}, v{PL}, v{PL+1}")
        k(f"v_sub_f32 v{PL+2}, 0, v{PL+2}")
        k(f"ds_write_b32 v16, v{PL+1}")
        k(f"ds_write_b32 v16, v{PL+2} offset:512")
        l2 = k.lab("nocs2")
        k("s_cmp_ge_u32 s20, 3")
        k(f"s_cbranch_scc1 {l2}")
        for st in (8, 4, 2, 1):
            for i in range(st): k(f"v_add_f32 v{PL+8+i}, v{PL+8+i}, v{PL+8+i+st}")
        k("v_lshlrev_b32 v16, 2, v0")
        k(f"ds_write_b32 v16, v{PL+8} offset:1024")
        k(f"{l2}:")
        k("v_and_b32 v15, 15, v1")
        k("s_lshl_b32 s27, s25, 8"); k("s_lshl_b32 s28, s26, 6"); k("s_add_u32 s28, s28, s27")
        k("v_lshlrev_b32 v16, 2, v15")
        k("v_add_u32 v17, s28, v16")
        k("v_lshrrev_b32 v14, 4, v1")
        k("v_lshlrev_b32 v19, 4, v14")
        k("v_add_u32 v20, s28, v19")
        k("s_lshl_b32 s29, s26, 6"); k("s_add_u32 s29, s29, 1024")
        k("v_add_u32 v19, s29, v19")
        k("v_add_u32 v18, s29, v16")
        for jj in range(1, 4):
            k(f"v_xor_b32 v{20+jj}, {jj<<6}, v20")
            k(f"v_xor_b32 v{23+jj}, {jj<<6}, v17")
        k("s_lshl_b32 s27, s23, 2"); k("s_lshl_b32 s28, s25, 1"); k("s_add_u32 s27, s27, s28")
        k("s_lshl_b32 s27, s27, 16")
        k("s_lshl_b32 s28, s24, 12"); k("s_add_u32 s27, s27, s28")
        k("s_lshl_b32 s28, s26, 10"); k("s_add_u32 s27, s27, s28")
        k("s_lshr_b32 s42, s26, 1")
        k("s_lshl_b32 s28, s42, 16"); k("s_add_u32 s35, s27, s28")
        k("s_xor_b32 s28, s28, 0x10000"); k("s_add_u32 s37, s27, s28")
        k(f"s_add_u32 s36, s35, {WS_K}"); k(f"s_add_u32 s38, s37, {WS_K}")
        k(f"s_add_u32 s35, s35, {WS_Q}"); k(f"s_add_u32 s37, s37, {WS_Q}")
        if QKS:
            k(f"s_add_u32 s27, s24, {QKS}"); k("s_and_b32 s27, s27, 15"); k("s_sub_u32 s27, s27, s24"); k("s_lshl_b32 s27, s27, 12")
            k("s_add_u32 s36, s36, s27"); k("s_add_u32 s38, s38, s27")
            k(f"s_add_u32 s27, s24, {2*QKS}"); k("s_and_b32 s27, s27, 15"); k("s_lshl_b32 s27, s27, 1")
        else:
            k("s_lshl_b32 s27, s24, 1")
        k("s_add_u32 s27, s27, s42")
        k("s_lshl_b32 s27, s27, 7")
        k("s_lshl_b32 s28, s23, 3"); k("s_add_u32 s27, s27, s28")
        k("s_lshl_b32 s28, s25, 2"); k("s_add_u32 s27, s27, s28")
        k("s_lshl_b32 s27, s27, 10")
        k("s_and_b32 s43, s26, 1")
        k("s_lshl_b32 s28, s43, 8"); k("s_add_u32 s27, s27, s28")
        k(f"s_add_u32 s27, s27, {WS_VT}")
        k("s_lshl_b32 s28, s42, 11"); k("s_add_u32 s39, s27, s28")
        k("s_xor_b32 s28, s28, 2048"); k("s_add_u32 s40, s27, s28")
        k("v_lshrrev_b32 v27, 5, v1"); k("v_xor_b32 v27, s43, v27"); k("v_lshlrev_b32 v27, 10, v27")
        k("v_bfe_u32 v28, v1, 4, 1"); k("v_lshl_add_u32 v27, v28, 9, v27")
        k("v_lshl_add_u32 v14, v15, 4, v27")
        k("s_lshl_b32 s28, s43, 8")
        k(f"v_xor_b32 v{vL16}, s28, v{vL16}")
        k("s_waitcnt lgkmcnt(0)")
        k("s_barrier")
        SQ = 28; CQ = 36
        if DL1 == 1: k(f"ds_read_b32 v15, v{vZ} offset:{FLAGOFF}")
        k(f"ds_read2_b32 v[{SQ}:{SQ+1}], v17 offset0:0 offset1:128")
        for jj in range(1, 4): k(f"ds_read2_b32 v[{SQ+2*jj}:{SQ+2*jj+1}], v{23+jj} offset0:0 offset1:128")
        k(f"ds_read_b128 v[{CQ}:{CQ+3}], v19")
        k(f"ds_read_b128 v[{CQ+4}:{CQ+7}], v19 offset:256")
        k("ds_read_b32 v152, v18 offset:512")
        VS = [112, 120, 128, 136]
        for jj in range(4):
            k(f"ds_read_b128 v[{VS[jj]}:{VS[jj]+3}], v{20+jj}")
            k(f"ds_read_b128 v[{VS[jj]+4}:{VS[jj]+7}], v{20+jj} offset:512")
        l7 = k.lab("norm")
        k("s_cmp_lg_u32 s20, 7"); k(f"s_cbranch_scc1 {l7}")
        k(f"ds_read_b128 v[{PL}:{PL+3}], v{vZ} offset:2048")
        k(f"ds_read_b128 v[{PL+4}:{PL+7}], v{vZ} offset:2064")
        k("s_waitcnt lgkmcnt(0)")
        for r in range(4):
            k(f"v_add_f32 v{PL+2*r}, v{PL+2*r}, v{PL+2*r+1}")
            k(f"v_mul_f32 v{PL+2*r}, 0x3a800000, v{PL+2*r}")
        k(f"v_cvt_pk_bf16_f32 v{PL+8}, v{PL}, v{PL+2}")
        k(f"v_cvt_pk_bf16_f32 v{PL+9}, v{PL+4}, v{PL+6}")
        k("s_lshl_b32 s27, s2, 3"); k(f"s_add_u32 s27, s27, {WS_RM}")
        k("s_mov_b64 exec, 1")
        k(f"buffer_store_dwordx2 v[{PL+8}:{PL+9}], v{vZ}, s[12:15], s27 offen{SC}")
        k("s_mov_b64 exec, -1")
        k(f"{l7}:")
    if not HOIST:
        k("s_mov_b32 s44, 0x3e8293ee")
        k("s_waitcnt lgkmcnt(9)")
        if DL1 == 1: k("v_readfirstlane_b32 s47, v15")
        elif DL1: k(f"s_mov_b32 s47, {1 if DL1 == 3 else 0}")
        for jj in range(4):
            k(f"v_mul_f32 v{QS+2*jj}, s44, v{SQ+2*jj}")
            k(f"v_mul_f32 v{QS+2*jj+1}, s44, v{SQ+2*jj+1}")
    TP = [16, 20, 24, 44, 48, 60]
    TM = 144
    ti = 0
    HX = os.environ.get("HX", "swd") if HOIST else ""
    if HX in ("bar", "swbar"): k("s_barrier")
    elif HX == "nop7": k("s_nop 7")
    elif HX == "nop15": k("s_nop 15")
    elif HX == "nop31": k("s_nop 15"); k("s_nop 15")
    for m in range(3):
        if m == 2 and HOIST != 1: k("s_waitcnt lgkmcnt(0)")
        for p in range(2):
            t = TP[ti]; ti += 1
            for jj2 in range(2):
                jj = 2 * p + jj2
                a = acc(m, jj)
                for h in range(2):
                    tm = TM + 2 * ((jj2 * 2 + h) & 3)
                    if m < 2:
                        st = (QS if m == 0 else SQ) + 2 * jj
                        cs = CQ + 4 * m + 2 * h
                        first = m == 0 and jj == 0 and h == 0
                        if first and HX in ("v1", "v2", "v3", "v4", "v5", "v6", "v7", "v8", "v9", "v10"):
                            pm = f"v_pk_mul_f32 v[{tm}:{tm+1}], v[{cs}:{cs+1}], v[{st}:{st+1}] op_sel:[0,1] op_sel_hi:[1,1]"
                            pf = f"v_pk_fma_f32 v[{a}:{a+1}], v[{a}:{a+1}], v[{st}:{st+1}], v[{tm}:{tm+1}] op_sel:[0,0,0] op_sel_hi:[1,0,1]"
                            if HX == "v1":
                                for e in range(2): k(f"v_mul_f32 v{tm+e}, v{cs+e}, v{st+1}")
                                k(pf)
                            elif HX == "v2":
                                k(pm)
                                for e in range(2): k(f"v_fma_f32 v{a+e}, v{a+e}, v{st}, v{tm+e}")
                            elif HX == "v3":
                                k(f"v_pk_mul_f32 v[148:149], v[{cs}:{cs+1}], v[{st}:{st+1}] op_sel:[0,1] op_sel_hi:[1,1]"); k(pm); k(pf)
                            elif HX == "v4":
                                k(pm); k("s_nop 0"); k(pf)
                            elif HX == "v5":
                                k(pm); k("s_nop 3"); k(pf)
                            elif HX == "v7":
                                k(f"v_pk_mul_f32 v[{tm}:{tm+1}], v[{cs}:{cs+1}], v[{st}:{st+1}] op_sel:[0,0] op_sel_hi:[1,0]"); k(pf)
                            elif HX == "v8":
                                k(f"v_pk_mul_f32 v[{tm}:{tm+1}], v[{cs}:{cs+1}], v[{st}:{st+1}]"); k(pf)
                            elif HX == "v9":
                                k(f"v_pk_mul_f32 v[{tm}:{tm+1}], v[{cs}:{cs+1}], v[{st}:{st+1}] op_sel:[1,1] op_sel_hi:[1,1]"); k(pf)
                            elif HX == "v10":
                                k(f"v_mul_f32 v{tm+1}, v{cs}, v{st+1}"); k(f"v_mul_f32 v{tm}, v{cs+1}, v{st+1}")
                                k(f"v_pk_fma_f32 v[{a}:{a+1}], v[{a}:{a+1}], v[{st}:{st+1}], v[{tm}:{tm+1}] op_sel:[0,0,1] op_sel_hi:[1,0,0]")
                            elif HX == "v6":
                                k(f"v_pk_mul_f32 v[{tm}:{tm+1}], v[{st}:{st+1}], v[{cs}:{cs+1}] op_sel:[1,0] op_sel_hi:[1,1]"); k(pf)
                            continue
                        if HX.startswith("np") and (m * 4 + jj) * 2 + h < int(HX[2:]):
                            for e in range(2):
                                k(f"v_mul_f32 v{tm+e}, v{cs+e}, v{st+1}")
                            for e in range(2):
                                k(f"v_fma_f32 v{a+2*h+e}, v{a+2*h+e}, v{st}, v{tm+e}")
                            continue
                        if "sw" in HX:
                            if first and HX == "swd": k(f"v_pk_mul_f32 v[{TM+4}:{TM+5}], v[{cs}:{cs+1}], v[{cs}:{cs+1}]")
                            k(f"v_pk_mul_f32 v[{tm}:{tm+1}], v[{st}:{st+1}], v[{cs}:{cs+1}] op_sel:[1,0] op_sel_hi:[1,1]")
                        else:
                            k(f"v_pk_mul_f32 v[{tm}:{tm+1}], v[{cs}:{cs+1}], v[{st}:{st+1}] op_sel:[0,1] op_sel_hi:[1,1]")
                        k(f"v_pk_fma_f32 v[{a+2*h}:{a+2*h+1}], v[{a+2*h}:{a+2*h+1}], v[{st}:{st+1}], v[{tm}:{tm+1}] op_sel:[0,0,0] op_sel_hi:[1,0,1]")
                    else:
                        rs = VS[jj] + 2 * h; nm = VS[jj] + 4 + 2 * h
                        k(f"v_pk_mul_f32 v[{tm}:{tm+1}], v[{nm}:{nm+1}], v[152:153] op_sel:[0,0] op_sel_hi:[1,0]")
                        k(f"v_pk_fma_f32 v[{a+2*h}:{a+2*h+1}], v[{a+2*h}:{a+2*h+1}], v[{rs}:{rs+1}], v[{tm}:{tm+1}]")
                k(f"v_cvt_pk_bf16_f32 v{t+2*jj2}, v{a}, v{a+1}")
                k(f"v_cvt_pk_bf16_f32 v{t+2*jj2+1}, v{a+2}, v{a+3}")
            sw = "v_permlane16_swap_b32" if m < 2 else "v_permlane32_swap_b32"
            k(f"{sw} v{t}, v{t+2}")
            k(f"{sw} v{t+1}, v{t+3}")
            so = [[35, 37], [36, 38], [39, 40]][m][p]
            st = f"buffer_store_dwordx4 v[{t}:{t+3}], v{vL16 if m < 2 else vVO}, s[12:15], s{so} offen"
            if DL1 and DLS & 1:
                lsl = k.lab("p1st"); lj = k.lab("p1stj")
                k("s_cmp_eq_u32 s47, 0"); k(f"s_cbranch_scc1 {lsl}"); k(st); k(f"s_branch {lj}"); k(f"{lsl}:"); k(st + SC); k(f"{lj}:")
            else: k(st + SC)
    k.stamp("p1_epi")
    k("s_lshl_b32 s27, s24, 7"); k(f"s_add_u32 s27, s27, {WS_CNT + C2*128}")
    if DL1 and DLS & 2:
        k("s_waitcnt vmcnt(0)"); k("s_barrier")
        l = k.lab("nosig"); lsl = k.lab("sigsl"); lj = k.lab("sigj")
        k("s_cmp_lg_u32 s20, 0"); k(f"s_cbranch_scc1 {l}")
        k("s_mov_b64 exec, 1"); k("v_mov_b32 v30, 1"); k("v_mov_b32 v31, 0")
        k("s_cmp_eq_u32 s47, 0"); k(f"s_cbranch_scc1 {lsl}")
        k(f"s_add_u32 s27, s27, {(C2F - C2)*128}")
        k("buffer_atomic_add v30, v31, s[12:15], s27 offen"); k(f"s_branch {lj}")
        k(f"{lsl}:"); k("buffer_atomic_add v30, v31, s[12:15], s27 offen sc1")
        k(f"{lj}:"); k("s_mov_b64 exec, -1"); k(f"{l}:")
    elif PROG:
        k("s_bfe_u32 s28, s23, 0x20001"); k("s_lshl_b32 s28, s28, 2"); k("s_lshl_b32 s29, 1, s28")
        signal(k, 27, vt=(30, 31), val="s29")
    else: signal(k, 27, vt=(30, 31))
    k.stamp("p1_sig")

W3BASE = 98304
vW3 = [200, 201]
C35 = int(os.environ.get("C35", "0"))
def coords35(k, stb, scb, st, x=21, y=22):
    k_ = k
    def k(l): k_(l.replace("s21", f"s{x}").replace("s22", f"s{y}"))
    k("s_and_b32 s21, s2, 7"); k("s_lshr_b32 s22, s2, 3")
    if C35 == 0:
        k(f"s_and_b32 s{stb}, s21, 3"); k(f"s_lshl_b32 s{stb}, s{stb}, 2"); k(f"s_and_b32 s{st}, s22, 3"); k(f"s_add_u32 s{stb}, s{stb}, s{st}")
        k(f"s_lshr_b32 s{scb}, s21, 2"); k(f"s_lshl_b32 s{scb}, s{scb}, 3"); k(f"s_lshr_b32 s{st}, s22, 2"); k(f"s_add_u32 s{scb}, s{scb}, s{st}")
    elif C35 == 2:
        k(f"s_lshl_b32 s{stb}, s21, 1"); k(f"s_lshr_b32 s{st}, s22, 4"); k(f"s_add_u32 s{stb}, s{stb}, s{st}")
        k(f"s_and_b32 s{scb}, s22, 15")
    elif C35 == 3:
        k(f"s_and_b32 s{stb}, s21, 1"); k(f"s_lshl_b32 s{stb}, s{stb}, 3"); k(f"s_lshr_b32 s{st}, s22, 2"); k(f"s_add_u32 s{stb}, s{stb}, s{st}")
        k(f"s_lshr_b32 s{scb}, s21, 1"); k(f"s_lshl_b32 s{scb}, s{scb}, 2"); k(f"s_and_b32 s{st}, s22, 3"); k(f"s_add_u32 s{scb}, s{scb}, s{st}")
    elif C35 == 4:
        k(f"s_and_b32 s{stb}, s21, 3"); k(f"s_lshl_b32 s{stb}, s{stb}, 2"); k(f"s_lshr_b32 s{st}, s22, 3"); k(f"s_add_u32 s{stb}, s{stb}, s{st}")
        k(f"s_lshr_b32 s{scb}, s21, 2"); k(f"s_and_b32 s{st}, s22, 7"); k(f"s_lshl_b32 s{st}, s{st}, 1"); k(f"s_add_u32 s{scb}, s{scb}, s{st}")
    else:
        k(f"s_and_b32 s{stb}, s21, 3"); k(f"s_lshl_b32 s{stb}, s{stb}, 2"); k(f"s_lshr_b32 s{st}, s22, 3"); k(f"s_add_u32 s{stb}, s{stb}, s{st}")
        k(f"s_lshr_b32 s{scb}, s21, 2"); k(f"s_lshl_b32 s{scb}, s{scb}, 3"); k(f"s_and_b32 s{st}, s22, 7"); k(f"s_add_u32 s{scb}, s{scb}, s{st}")
WT3 = int(os.environ.get("WT3", "0")); WT5 = int(os.environ.get("WT5", "0"))
WDT = int(os.environ.get("WDT", "3"))
WS_WDT = 0x3000000
SK5 = int(os.environ.get("SK5", "1"))
SKX = int(os.environ.get("SKX", "1"))
R5K = int(os.environ.get("R5K", "5"))
WS_XI = 0x3800000
WS_XID = 0x3C00000
SKF = int(os.environ.get("SKF", "1"))
SKA = int(os.environ.get("SKA", "1"))
SKT = int(os.environ.get("SKT", "25"))
SKO = int(os.environ.get("SKO", "3"))
SKG = int(os.environ.get("SKG", "4")); SKPA = int(os.environ.get("SKPA", "3"))
L2P = int(os.environ.get("L2P", "0")); L2S = int(os.environ.get("L2S", "28")); L2T = int(os.environ.get("L2T", "5")); L2D = int(os.environ.get("L2D", "1")); L2G = [int(x) for x in os.environ.get("L2G", "6,2,6").split(",")]
SKR = int(os.environ.get("SKR", "1"))
WDA = int(os.environ.get("WDA", "3")); WDP = int(os.environ.get("WDP", "4"))
def w35_setup(k, vW, base, t, tiled=0):
    coords35(k, 27, 29, 28)
    rb = 128 if tiled else 2048
    wdma_lane(k, vW[0], rb, t)
    k(f"v_add_u32 v{vW[1]}, {4*rb}, v{vW[0]}")
    k("s_lshr_b32 s27, s20, 1"); k("s_lshl_b32 s27, s27, 5"); k("s_and_b32 s28, s20, 1"); k("s_lshl_b32 s28, s28, 4")
    k("s_add_u32 s27, s27, s28")
    if tiled and SK5 and base == 0:
        k("s_and_b32 s27, s20, 3"); k("s_lshl_b32 s27, s27, 4"); k("s_and_b32 s28, s29, 1"); k(f"s_mul_i32 s28, s28, {DF//2}"); k("s_add_u32 s27, s27, s28")
        k("s_lshr_b32 s28, s20, 2"); k("s_xor_b32 s28, s28, 1"); k("s_xor_b32 s29, s29, s28")
    if SK3 and base and not tiled:
        k("s_and_b32 s27, s20, 3"); k("s_lshl_b32 s27, s27, 4"); k("s_and_b32 s28, s29, 1"); k(f"s_mul_i32 s28, s28, {D//2}"); k("s_add_u32 s27, s27, s28")
        k("s_lshr_b32 s28, s20, 2"); k("s_xor_b32 s28, s28, 1"); k("s_xor_b32 s29, s29, s28")
    if tiled:
        k("s_lshl_b32 s50, s27, 7"); k(f"s_mul_i32 s28, s29, {tiled*128}"); k("s_add_u32 s50, s50, s28")
        if WDT and base == 0: k(f"s_add_u32 s50, s50, {WS_WDT}")
    else:
        k("s_lshl_b32 s50, s27, 11"); k("s_lshl_b32 s28, s29, 7"); k("s_add_u32 s50, s50, s28")
        if os.environ.get("WOFF64") and base == 0: k("s_add_u32 s50, s50, 64")
    k("s_lshl_b32 s51, s20, 11")
    if base: k(f"s_add_u32 s51, s51, {base}")
def w35_dma(vW, srdw, slot):
    sc = SC if srdw == 12 else ""
    return [[f"s_add_u32 m0, s51, {slot*16384}", f"buffer_load_dwordx4 v{vW[0]}, s[{srdw}:{srdw+3}], s50 offen{sc} lds"],
            [f"s_add_u32 m0, s51, {slot*16384+1024}", f"buffer_load_dwordx4 v{vW[1]}, s[{srdw}:{srdw+3}], s50 offen{sc} lds"]]
W3ADV = f"s_add_u32 s50, s50, {(64 if SK3 else 128)*(128 if WT3 else 2048)}"
W5ADV = f"s_add_u32 s50, s50, {(64 if SK5 else 128)*(128 if WT5 or WDT else 2048)}"
SW5 = 12 if WDT else 60

WOPF = int(os.environ.get("WOPF", "0"))
OT = int(os.environ.get("OT", "0"))
def phase2(k):
    S2 = [SC, "", " nt", " sc0"][int(os.environ.get("DLL", "0"))]
    STG = 32768
    vL16, vCur, vNxt, vTmp = 2, 3, 4, 5
    QA, QB = 8, 16
    KF = [24, 32]; VF = [40, 48]
    SA, SB = 56, 72
    PA, PB = 88, 96
    OA, OB = 104, 120
    LA, LB = 136, 140
    NA, NB = 144, 160
    ONE = 176
    T0 = 180
    w35_setup(k, vW3, W3BASE, 180, D if WT3 else 0)
    srd(k, 8, pBX if WT3 else pWO, D * D * 2)
    k("s_and_b32 s21, s2, 7"); k("s_lshl_b32 s21, s21, 2"); k("s_lshr_b32 s22, s2, 6"); k("s_add_u32 s21, s21, s22")
    k("s_bfe_u32 s22, s2, 0x30003")
    k("s_and_b32 s23, s20, 3")
    k("s_lshr_b32 s24, s20, 2")
    k(f"v_lshlrev_b32 v{vL16}, 4, v1")
    k("s_lshl_b32 s30, s24, 5"); k("s_add_u32 s30, s30, s23"); k("s_lshl_b32 s30, s30, 16")
    k("s_lshl_b32 s25, s21, 11"); k("s_add_u32 s30, s30, s25"); k(f"s_add_u32 s30, s30, {WS_K}")
    k("s_lshl_b32 s31, s21, 7"); k("s_lshl_b32 s25, s24, 6"); k("s_add_u32 s31, s31, s25")
    k("s_lshl_b32 s25, s23, 1"); k("s_add_u32 s31, s31, s25"); k("s_lshl_b32 s31, s31, 10"); k(f"s_add_u32 s31, s31, {WS_VT}")
    k("s_lshl_b32 s32, s24, 14"); k("s_lshl_b32 s25, s23, 11"); k("s_add_u32 s32, s32, s25")
    k("s_lshl_b32 s33, s22, 3"); k("s_lshl_b32 s25, s23, 1"); k("s_add_u32 s33, s33, s25"); k("s_lshl_b32 s33, s33, 16")
    k("s_lshl_b32 s25, s21, 11"); k("s_add_u32 s33, s33, s25")
    k(f"s_add_u32 s45, s33, {WS_O}")
    k(f"s_add_u32 s33, s33, {WS_Q}")
    k("s_add_u32 s34, s33, 65536")
    k(f"v_lshrrev_b32 v{vTmp}, 2, v1"); k(f"v_lshrrev_b32 v{T0}, 4, v1"); k(f"v_xor_b32 v{vTmp}, v{vTmp}, v{T0}")
    k(f"v_and_b32 v{vTmp}, 1, v{vTmp}"); k(f"v_cmp_eq_u32 vcc, 0, v{vTmp}")
    k(f"v_mov_b32 v{T0}, 0x3f803f80")
    k(f"v_cndmask_b32 v{ONE}, 0, v{T0}, vcc")
    for r in range(1, 4): k(f"v_mov_b32 v{ONE+r}, v{ONE}")
    for r in range(32): k(f"v_mov_b32 v{NA+r}, 0")
    k("s_mov_b32 s46, 0")
    k("s_lshl_b32 s25, s24, 14")
    k(f"v_add_u32 v{vTmp}, s25, v{vL16}")
    if PFW:
        k("s_lshl_b32 s25, s2, 3"); k("s_add_u32 s25, s25, s20")
        k("s_mul_i32 s26, s25, 3584")
        k(f"v_lshlrev_b32 v198, 6, v1"); k("v_add_u32 v198, s26, v198")
        srd(k, 88, pWO, D * D * 2)
        k(f"s_mov_b64 s[92:93], s[{pWG}:{pWG+1}]"); k(f"s_mov_b64 s[94:95], s[{pWU}:{pWU+1}]"); k(f"s_mov_b64 s[96:97], s[{pWD}:{pWD+1}]")
    WDR, vWDS = 208, 224
    if JIT & 2: k("s_mov_b32 s52, L_p2tail-L_cb")
    if WDT:
        srd(k, 60, pWD, DF * D * 2)
        k(f"v_lshrrev_b32 v{vWDS}, 3, v1"); k(f"s_mov_b32 s26, {DF*128}"); k(f"v_mul_lo_u32 v{vWDS}, v{vWDS}, s26")
        k(f"v_and_b32 v{vWDS+1}, 7, v1"); k(f"v_lshl_add_u32 v{vWDS}, v{vWDS+1}, 4, v{vWDS}")
        k("s_mul_i32 s98, s2, 14"); k("s_lshl_b32 s26, s20, 1"); k("s_add_u32 s98, s98, s26"); k("s_lshl_b32 s98, s98, 7")
        k(f"s_add_u32 s98, s98, {WS_WDT - 256}"); k(f"s_add_u32 s99, s98, {8*DF*128}")
        k("s_mul_i32 s100, s2, 28672"); k("s_lshl_b32 s26, s20, 12"); k("s_add_u32 s100, s100, s26"); k("s_sub_u32 s100, s100, 4096")
        k("s_cmp_eq_u32 s20, 0"); k(f"s_cselect_b32 s101, 99, {WDA}")
        if WDT == 3: k(f"s_cselect_b32 s101, 99, {hex((-WDA - 1) & 0xffffffff)}")
        if WDT >= 2:
            assert WDA % 2 == 1
            k(f"s_sub_u32 s98, s98, {128 * ((WDA + 1) // 2)}"); k(f"s_mov_b32 s99, {8*DF*128}"); k(f"s_sub_u32 s100, s100, {1024*WDA}")
    if SK5 and SKX:
        lf = k.lab("nofill")
        k("s_cmp_lt_u32 s20, 4"); k(f"s_cbranch_scc1 {lf}")
        coords35(k, 27, 29, 28, 25, 26)
        k("s_lshl_b32 s27, s27, 4"); k("s_add_u32 s29, s27, s29")
        k("s_lshl_b32 s27, s29, 14"); k("s_and_b32 s28, s20, 3"); k("s_lshl_b32 s28, s28, 12"); k("s_add_u32 s27, s27, s28"); k(f"s_add_u32 s27, s27, {WS_XI}")
        for r in range(4): k(f"v_mov_b32 v{KF[1]+r}, -1")
        for q in range(4): k(f"buffer_store_dwordx4 v[{KF[1]}:{KF[1]+3}], v{vL16}, s[12:15], s27 offen offset:{1024*q}{SC}")
        if SKF:
            k("s_getreg_b32 s26, hwreg(HW_REG_XCC_ID, 0, 4)")
            k("s_lshl_b32 s27, s29, 10"); k("s_lshr_b32 s28, s28, 4"); k("s_add_u32 s27, s27, s28"); k(f"s_add_u32 s27, s27, {WS_XID}")
            k(f"v_mov_b32 v{KF[1]+4}, s26"); k(f"v_lshlrev_b32 v{KF[1]+5}, 2, v1")
            k(f"buffer_store_dword v{KF[1]+4}, v{KF[1]+5}, s[12:15], s27 offen{SC}")
        if SK3:
            k("s_lshr_b32 s27, s21, 4"); k("s_lshl_b32 s29, s22, 1"); k("s_add_u32 s29, s29, s27"); k("s_lshl_b32 s29, s29, 4"); k("s_and_b32 s27, s21, 15"); k("s_add_u32 s29, s29, s27")
            k("s_and_b32 s28, s20, 3"); k("s_lshl_b32 s28, s28, 12"); k("s_lshl_b32 s27, s29, 14"); k("s_add_u32 s27, s27, s28"); k(f"s_add_u32 s27, s27, {WS_XI3}")
            for q in range(4): k(f"buffer_store_dwordx4 v[{KF[1]}:{KF[1]+3}], v{vL16}, s[12:15], s27 offen offset:{1024*q}{SC}")
            k("s_lshr_b32 s28, s28, 3"); k("s_lshl_b32 s27, s29, 11"); k("s_add_u32 s27, s27, s28"); k(f"s_add_u32 s27, s27, {WS_XM3}")
            k(f"v_lshlrev_b32 v{KF[1]+6}, 3, v1")
            k(f"buffer_store_dwordx2 v[{KF[1]}:{KF[1]+1}], v{KF[1]+6}, s[12:15], s27 offen{SC}")
        k(f"{lf}:")
    if QKS:
        k(f"v_mul_u32_u24 v{T0+1}, {QKS}, v1"); k("s_lshr_b32 s27, s21, 1"); k(f"v_sub_u32 v{T0+1}, s27, v{T0+1}")
        k(f"v_and_b32 v{T0+1}, 15, v{T0+1}"); k(f"v_lshlrev_b32 v{T0+1}, 7, v{T0+1}")
        k(f"s_mov_b32 s27, {WS_CNT + C2*128}")
        wait_multi(k, 27, 16, 3, vt=(T0, T0 + 1))
    else:
        k("s_lshr_b32 s27, s21, 1"); k("s_lshl_b32 s27, s27, 7"); k(f"s_add_u32 s27, s27, {WS_CNT + C2*128}")
        if DL1 and DLS & 2: k(f"s_mul_i32 s28, s47, {(C2F - C2)*128}"); k("s_add_u32 s27, s27, s28")
        if PROG:
            assert PD == 1 and not DL1 and not JIT
            k("s_mov_b32 s52, s27"); k("s_and_b32 s56, s22, 3")
            k("s_lshl_b32 s28, s56, 19"); k("s_add_u32 s53, s30, s28"); k("s_lshl_b32 s28, s56, 14"); k("s_add_u32 s54, s31, s28")
            k(f"s_add_u32 s55, s30, {8*4*65536}"); k("s_lshl_b32 s56, s56, 2"); k("s_lshl_b32 s56, 15, s56")
            if PROG == 2:
                k("s_mov_b32 s53, s30"); k("s_mov_b32 s54, s31"); k("s_or_b32 s56, s56, 15")
            if PROG == 3:
                k("s_and_b32 s57, s22, 2"); k("s_lshl_b32 s28, s57, 19"); k("s_add_u32 s53, s30, s28"); k("s_lshl_b32 s28, s57, 14"); k("s_add_u32 s54, s31, s28")
                k("s_lshl_b32 s57, s57, 2"); k("s_lshl_b32 s57, 15, s57"); k("s_or_b32 s56, s56, s57")
            k("s_and_b32 s57, s56, 0x4444")
            wait(k, 27, "s57", vt=(T0, T0 + 1), fld=56)
        else: wait(k, 27, 16, vt=(T0, T0 + 1), pr=KF[0])
    k.stamp("p2_wait")
    for kk in range(2):
        k(f"buffer_load_dwordx4 v[{QA+4*kk}:{QA+4*kk+3}], v{vL16}, s[12:15], s33 offen offset:{1024*kk}{S2}")
        k(f"buffer_load_dwordx4 v[{QB+4*kk}:{QB+4*kk+3}], v{vL16}, s[12:15], s34 offen offset:{1024*kk}{S2}")
    def dma_stage():
        k("s_add_u32 m0, s42, s32")
        k(f"buffer_load_dwordx4 v{vL16}, s[12:15], s40 offen{S2} lds")
        k(f"buffer_load_dwordx4 v{vL16}, s[12:15], s40 offen offset:1024{S2} lds")
        k("s_add_u32 m0, m0, 8192")
        k(f"buffer_load_dwordx4 v{vL16}, s[12:15], s41 offen{S2} lds")
        k(f"buffer_load_dwordx4 v{vL16}, s[12:15], s41 offen offset:1024{S2} lds")
        k(f"s_add_u32 s40, s40, {4*65536}")
        k("s_add_u32 s41, s41, 8192")
        if PROG: k("s_cmp_eq_u32 s40, s55"); k("s_cselect_b32 s40, s30, s40"); k("s_cselect_b32 s41, s31, s41")
    lmain = k.lab("p2main"); lloop = k.lab("p2loop"); lfin = k.lab("p2fin"); lfb = k.lab("p2fb"); lend = k.lab("p2end")
    k(f"{lmain}:")
    if PROG: k("s_mov_b32 s40, s53"); k("s_mov_b32 s41, s54")
    else: k("s_mov_b32 s40, s30"); k("s_mov_b32 s41, s31")
    k("s_mov_b32 s42, 0"); dma_stage()
    k(f"s_mov_b32 s42, {STG}"); dma_stage()
    k(f"s_mov_b32 s42, {2*STG}")
    k(f"v_mov_b32 v{vCur}, v{vTmp}")
    k(f"v_add_u32 v{vNxt}, {STG}, v{vTmp}")
    k(f"s_mov_b32 s43, {STG}")
    for r in range(16): k(f"v_mov_b32 v{OA+r}, 0"); k(f"v_mov_b32 v{OB+r}, 0")
    for r in range(4): k(f"v_mov_b32 v{LA+r}, 0"); k(f"v_mov_b32 v{LB+r}, 0")
    for r in range(8): k(f"v_mov_b32 v{PB+r}, 0"); k(f"v_mov_b32 v{VF[1]+r}, 0")
    def wo_ring():
        lnp = k.lab("p2nopf")
        k("s_cmp_lg_u32 s46, 0"); k(f"s_cbranch_scc1 {lnp}")
        for t in range(4):
            for d in w35_dma(vW3, 8, t):
                for l in d: k(l)
            k(W3ADV)
        k(f"{lnp}:")
    if WOPF == 0:
        lnp = k.lab("p2nopf"); lj = k.lab("p2pfj")
        k("s_cmp_lg_u32 s46, 0"); k(f"s_cbranch_scc1 {lnp}")
        for t in range(4):
            for d in w35_dma(vW3, 8, t):
                for l in d: k(l)
            k(W3ADV)
        k("s_waitcnt vmcnt(12)")
        k(f"s_branch {lj}")
        k(f"{lnp}:")
        k("s_waitcnt vmcnt(4)")
        k(f"{lj}:")
    else:
        k("s_waitcnt vmcnt(4)")
    k("s_barrier")
    k.stamp("p2_go")
    if WOPF == 1: wo_ring()
    if PROG: k(f"v_mov_b32 v{T0+1}, 0"); k(f"buffer_load_dword v{T0}, v{T0+1}, s[12:15], s52 offen sc1")
    for kk in range(2):
        k(f"ds_read_b128 v[{KF[0]+4*kk}:{KF[0]+4*kk+3}], v{vCur} offset:{1024*kk}")
    k("s_waitcnt lgkmcnt(0)")
    def qk(Sx, Qx, Nx, kf):
        return [f"v_mfma_f32_32x32x16_bf16 v[{Sx}:{Sx+15}], v[{kf}:{kf+3}], v[{Qx}:{Qx+3}], v[{Nx}:{Nx+15}]",
                f"v_mfma_f32_32x32x16_bf16 v[{Sx}:{Sx+15}], v[{kf+4}:{kf+7}], v[{Qx+4}:{Qx+7}], v[{Sx}:{Sx+15}]"]
    def pv(Ox, Px, Lx, vf):
        return [f"v_mfma_f32_32x32x16_bf16 v[{Ox}:{Ox+15}], v[{vf}:{vf+3}], v[{Px}:{Px+3}], v[{Ox}:{Ox+15}]",
                f"v_mfma_f32_32x32x16_bf16 v[{Ox}:{Ox+15}], v[{vf+4}:{vf+7}], v[{Px+4}:{Px+7}], v[{Ox}:{Ox+15}]",
                f"v_mfma_f32_16x16x32_bf16 v[{Lx}:{Lx+3}], v[{ONE}:{ONE+3}], v[{Px}:{Px+3}], v[{Lx}:{Lx+3}]",
                f"v_mfma_f32_16x16x32_bf16 v[{Lx}:{Lx+3}], v[{ONE}:{ONE+3}], v[{Px+4}:{Px+7}], v[{Lx}:{Lx+3}]"]
    def expv(Sx, Px):
        o = []
        for g in range(4):
            o += [f"v_exp_f32 v{Sx+4*g+r}, v{Sx+4*g+r}" for r in range(4)]
            o += [f"v_cvt_pk_bf16_f32 v{Px+2*g}, v{Sx+4*g}, v{Sx+4*g+1}", f"v_cvt_pk_bf16_f32 v{Px+2*g+1}, v{Sx+4*g+2}, v{Sx+4*g+3}"]
        return o
    def phase(mf, va, extra):
        for i in range(6):
            k(mf[i])
            for (p, l) in extra:
                if p == i: k(l)
            for l in va[4*i:4*i+4]: k(l)
    for l in qk(SA, QA, NA, KF[0]): k(l)
    k("s_mov_b32 s44, 0")
    k(f"{lloop}:")
    for i in range(4):
        cb = i & 1; nb = cb ^ 1
        ex = []
        if i == 3:
            lnd = k.lab("nodma")
            k(f"s_waitcnt vmcnt({(1 if PFW and PFI < 3 else 0) + (1 if JIT & 2 else 0)})")
            k("s_barrier")
            k("s_cmp_ge_u32 s44, 6")
            k(f"s_cbranch_scc1 {lnd}")
            if PROG:
                lok = k.lab("p2all"); lsp = k.lab("p2spin")
                k("s_cmp_lg_u32 s44, 0"); k(f"s_cbranch_scc1 {lok}")
                k("s_mov_b32 s28, 0")
                k(f"{lsp}:")
                k(f"v_readfirstlane_b32 s29, v{T0}")
                k("s_cmp_eq_u32 s29, 0x4444"); k(f"s_cbranch_scc1 {lok}")
                k("s_add_u32 s28, s28, 1")
                k(f"s_cmp_gt_u32 s28, {SPIN_LIMIT}"); k(f"s_cbranch_scc1 {lok}")
                k(f"buffer_load_dword v{T0}, v{T0+1}, s[12:15], s52 offen sc1")
                k("s_waitcnt vmcnt(0)")
                k(f"s_branch {lsp}")
                k(f"{lok}:")
            dma_stage()
            k(f"s_add_u32 s42, s42, {STG}")
            k(f"s_cmp_eq_u32 s42, {3*STG}")
            k("s_cselect_b32 s42, 0, s42")
            k(f"{lnd}:")
            if WDT == 1:
                lw = k.lab("nowd"); ls = k.lab("wdst")
                k("s_sub_u32 s27, s44, s101"); k("s_cmp_lt_u32 s27, 2"); k(f"s_cbranch_scc0 {lw}")
                k("s_cmp_eq_u32 s27, 1"); k(f"s_cbranch_scc1 {ls}")
                for q in range(4):
                    k(f"buffer_load_dwordx4 v[{WDR+4*q}:{WDR+4*q+3}], v{vL16}, s[60:63], s100 offen offset:{1024*q}")
                k(f"s_branch {lw}")
                k(f"{ls}:")
                for q in range(4):
                    k(f"buffer_store_dwordx4 v[{WDR+4*q}:{WDR+4*q+3}], v{vWDS}, s[12:15], s{98 + (q & 1)} offen offset:{128*(q>>1)}{SC}")
                k(f"{lw}:")
            if WDT == 2:
                k("s_sub_u32 s27, s44, s101"); k("s_sub_u32 s27, s27, 1")
                k("s_cmp_lt_u32 s27, 4"); k("s_cselect_b64 exec, -1, 0")
                k(f"buffer_store_dwordx4 v[{WDR}:{WDR+3}], v{vWDS}, s[12:15], s98 offen{SC}")
                k("s_add_u32 s27, s27, 1")
                k("s_cmp_lt_u32 s27, 4"); k("s_cselect_b64 exec, -1, 0")
                k(f"buffer_load_dwordx4 v[{WDR}:{WDR+3}], v{vL16}, s[60:63], s100 offen")
                k("s_mov_b64 exec, -1")
                k("s_add_u32 s98, s98, s99"); k("s_sub_u32 s99, 128, s99"); k("s_add_u32 s100, s100, 1024")
        if i == PFI and PFW:
            ex += [(4, "buffer_load_dword v199, v198, s[88:91], 0 offen"),
                   (5, "s_mov_b64 s[88:89], s[92:93]"), (5, "s_mov_b64 s[92:93], s[94:95]"), (5, "s_mov_b64 s[94:95], s[96:97]"),
                   (5, f"s_cmp_lt_u32 s44, {2 if WDT else 3}"), (5, f"s_cselect_b32 s90, {hex(D*DF*2)}, 0")]
        if i == 0 and JIT & 2:
            ex += [(5, "buffer_load_dword v231, v252, s[80:83], s52 offen")]
        for kk in range(2):
            if i < 3: ex.append((kk, f"ds_read_b128 v[{KF[nb]+4*kk}:{KF[nb]+4*kk+3}], v{vCur} offset:{(i+1)*2048 + 1024*kk}"))
            else:     ex.append((kk, f"ds_read_b128 v[{KF[nb]+4*kk}:{KF[nb]+4*kk+3}], v{vNxt} offset:{1024*kk}"))
        for mm in range(2):
            ex.append((2 + mm, f"ds_read_b128 v[{VF[cb]+4*mm}:{VF[cb]+4*mm+3}], v{vCur} offset:{8192 + i*2048 + 1024*mm}"))
        phase(qk(SB, QB, NB, KF[cb]) + pv(OB, PB, LB, VF[nb]), expv(SA, PA), ex)
        k("s_waitcnt lgkmcnt(0)")
        ex = []
        if i == 3:
            ex = [(0, f"v_mov_b32 v{vCur}, v{vNxt}"), (1, f"s_add_u32 s43, s43, {STG}"), (1, f"s_cmp_eq_u32 s43, {3*STG}"),
                  (2, "s_cselect_b32 s43, 0, s43"), (3, f"v_add_u32 v{vNxt}, s43, v{vTmp}")]
            if WDT == 3:
                p = WDP
                ex += [(p, x) for x in ("s_cmp_lt_u32 s101, 4", "s_cselect_b64 exec, -1, 0",
                       f"buffer_store_dwordx4 v[{WDR}:{WDR+3}], v{vWDS}, s[12:15], s98 offen{SC}",
                       "s_add_u32 s101, s101, 1", "s_cmp_lt_u32 s101, 4", "s_cselect_b64 exec, -1, 0",
                       f"buffer_load_dwordx4 v[{WDR}:{WDR+3}], v{vL16}, s[60:63], s100 offen", "s_mov_b64 exec, -1")]
                ex += [(5, x) for x in ("s_add_u32 s98, s98, s99", "s_sub_u32 s99, 128, s99", "s_add_u32 s100, s100, 1024")]
        phase(qk(SA, QA, NA, KF[nb]) + pv(OA, PA, LA, VF[cb]), expv(SB, PB), ex)
    k("s_add_u32 s44, s44, 1")
    k("s_cmp_lt_u32 s44, 8")
    k(f"s_cbranch_scc1 {lloop}")
    if JIT & 2: k("L_p2tail:")
    for l in pv(OB, PB, LB, VF[1]): k(l)
    k.stamp("p2_loop")
    if WOPF == 2: wo_ring()
    k("s_nop 7"); k("s_nop 3")
    lns = k.lab("nosw")
    k("s_cmp_eq_u32 s24, 0")
    k(f"s_cbranch_scc1 {lns}")
    for r in range(16): k(f"v_swap_b32 v{OA+r}, v{OB+r}")
    k(f"v_swap_b32 v{LA}, v{LB}")
    k(f"{lns}:")
    k("s_barrier")
    k("s_mul_i32 s25, s20, 5120")
    k(f"v_add_u32 v{T0}, s25, v{vL16}")
    k(f"v_lshlrev_b32 v{T0+1}, 2, v1"); k(f"v_add_u32 v{T0+1}, s25, v{T0+1}")
    for i in range(4): k(f"ds_write_b128 v{T0}, v[{OB+4*i}:{OB+4*i+3}] offset:{1024*i}")
    k(f"ds_write_b32 v{T0+1}, v{LB} offset:4096")
    k("s_xor_b32 s26, s20, 4"); k("s_mul_i32 s25, s26, 5120")
    k(f"v_add_u32 v{T0}, s25, v{vL16}")
    k(f"v_lshlrev_b32 v{T0+1}, 2, v1"); k(f"v_add_u32 v{T0+1}, s25, v{T0+1}")
    k("s_waitcnt lgkmcnt(0)")
    k("s_barrier")
    for i in range(4): k(f"ds_read_b128 v[{OB+4*i}:{OB+4*i+3}], v{T0} offset:{1024*i}")
    k(f"ds_read_b32 v{LB}, v{T0+1} offset:4096")
    k("s_waitcnt lgkmcnt(0)")
    k(f"v_add_f32 v{LA}, v{LA}, v{LB}")
    for r in range(16): k(f"v_add_f32 v{OA+r}, v{OA+r}, v{OB+r}")
    k("s_cmp_lg_u32 s46, 0")
    k(f"s_cbranch_scc1 {lfin}")
    k(f"v_mov_b32 v{T0+2}, v{LA}")
    for r in range(16): k(f"v_fma_f32 v{T0+2}, v{OA+r}, 0, v{T0+2}")
    k(f"v_mov_b32 v{T0+3}, 0x71800000")
    k(f"v_cmp_le_f32 vcc, 1.0, v{T0+2}")
    k(f"v_cmp_le_f32 s[48:49], v{T0+2}, v{T0+3}")
    k("s_and_b64 vcc, vcc, s[48:49]")
    k("s_cmp_eq_u64 vcc, -1")
    k("s_cselect_b32 s47, 0, 1")
    k(f"v_mov_b32 v{T0+2}, s47")
    k(f"s_lshl_b32 s25, s20, 2"); k(f"v_mov_b32 v{T0+3}, s25")
    k(f"ds_write_b32 v{T0+3}, v{T0+2} offset:45056")
    k("s_waitcnt lgkmcnt(0)")
    k("s_barrier")
    k(f"v_mov_b32 v{T0+3}, 0")
    k(f"ds_read_b128 v[{T0+4}:{T0+7}], v{T0+3} offset:45056")
    k(f"ds_read_b128 v[{T0+8}:{T0+11}], v{T0+3} offset:45072")
    k("s_waitcnt lgkmcnt(0)")
    k(f"v_or3_b32 v{T0+4}, v{T0+4}, v{T0+5}, v{T0+6}")
    k(f"v_or3_b32 v{T0+8}, v{T0+8}, v{T0+9}, v{T0+10}")
    k(f"v_or3_b32 v{T0+4}, v{T0+4}, v{T0+7}, v{T0+11}")
    k(f"v_or_b32 v{T0+4}, v{T0+4}, v{T0+8}")
    k(f"v_readfirstlane_b32 s47, v{T0+4}")
    k("s_cmp_lg_u32 s47, 0")
    k(f"s_cbranch_scc1 {lfb}")
    k(f"{lfin}:")
    k(f"v_rcp_f32 v{LA}, v{LA}")
    for g in range(4):
        for r in range(4): k(f"v_mul_f32 v{OA+4*g+r}, v{OA+4*g+r}, v{LA}")
        k(f"v_cvt_pk_bf16_f32 v{SA+2*g}, v{OA+4*g}, v{OA+4*g+1}")
        k(f"v_cvt_pk_bf16_f32 v{SA+2*g+1}, v{OA+4*g+2}, v{OA+4*g+3}")
    k("s_lshl_b32 s25, s24, 16"); k("s_add_u32 s45, s45, s25")
    for p in range(2):
        k(f"v_permlane32_swap_b32 v{SA+4*p}, v{SA+4*p+2}")
        k(f"v_permlane32_swap_b32 v{SA+4*p+1}, v{SA+4*p+3}")
        k(f"buffer_store_dwordx4 v[{SA+4*p}:{SA+4*p+3}], v{vL16}, s[12:15], s45 offen offset:{1024*p}{SC}")
    k(f"s_branch {lend}")
    k(f"{lfb}:")
    k("s_mov_b32 s46, 1")
    if WDT: k("s_mov_b32 s101, 99")
    k("s_barrier")
    MA, MB = T0 + 2, T0 + 3
    k(f"v_mov_b32 v{MA}, 0xff800000"); k(f"v_mov_b32 v{MB}, 0xff800000")
    k("s_lshl_b32 s40, s24, 21"); k("s_lshl_b32 s25, s21, 11"); k("s_add_u32 s40, s40, s25"); k(f"s_add_u32 s40, s40, {WS_K}")
    k("s_mov_b32 s44, 0")
    lfl = k.lab("p2fbl")
    k(f"{lfl}:")
    for kk in range(2):
        k(f"buffer_load_dwordx4 v[{KF[0]+4*kk}:{KF[0]+4*kk+3}], v{vL16}, s[12:15], s40 offen offset:{1024*kk}{SC}")
    k("s_waitcnt vmcnt(0)")
    for (Sx, Qx) in ((SA, QA), (SB, QB)):
        k(f"v_mfma_f32_32x32x16_bf16 v[{Sx}:{Sx+15}], v[{KF[0]}:{KF[0]+3}], v[{Qx}:{Qx+3}], 0")
        k(f"v_mfma_f32_32x32x16_bf16 v[{Sx}:{Sx+15}], v[{KF[0]+4}:{KF[0]+7}], v[{Qx+4}:{Qx+7}], v[{Sx}:{Sx+15}]")
    for (Sx, Mx) in ((SA, MA), (SB, MB)):
        for r in range(0, 16, 2): k(f"v_max3_f32 v{Mx}, v{Mx}, v{Sx+r}, v{Sx+r+1}")
    k("s_add_u32 s40, s40, 65536")
    k("s_add_u32 s44, s44, 1")
    k("s_cmp_lt_u32 s44, 32")
    k(f"s_cbranch_scc1 {lfl}")
    for Mx in (MA, MB):
        k(f"v_mov_b32 v{T0+4}, v{Mx}")
        k(f"v_permlane32_swap_b32 v{Mx}, v{T0+4}")
        k(f"v_max_f32 v{Mx}, v{Mx}, v{T0+4}")
    k("s_lshl_b32 s25, s20, 9")
    k(f"v_lshlrev_b32 v{T0+4}, 3, v1"); k(f"v_add_u32 v{T0+5}, s25, v{T0+4}")
    k(f"ds_write_b64 v{T0+5}, v[{MA}:{MB}]")
    k("s_xor_b32 s26, s20, 4"); k("s_lshl_b32 s25, s26, 9")
    k(f"v_add_u32 v{T0+5}, s25, v{T0+4}")
    k("s_waitcnt lgkmcnt(0)")
    k("s_barrier")
    k(f"ds_read_b64 v[{T0+6}:{T0+7}], v{T0+5}")
    k("s_waitcnt lgkmcnt(0)")
    k(f"v_max_f32 v{MA}, v{MA}, v{T0+6}")
    k(f"v_max_f32 v{MB}, v{MB}, v{T0+7}")
    for r in range(16):
        k(f"v_sub_f32 v{NA+r}, 0, v{MA}")
        k(f"v_sub_f32 v{NB+r}, 0, v{MB}")
    k("s_barrier")
    k(f"s_branch {lmain}")
    k(f"{lend}:")
    k.stamp("p2_epi")
    k("s_lshl_b32 s27, s22, 7"); k(f"s_add_u32 s27, s27, {WS_CNT + C3*128}")
    signal(k, 27, vt=(T0, T0 + 1))
    k.stamp("p2_sig")

SLOT4 = 30720; UOFF = 7168; BOFF4 = 14336
RMOFF = 75776; XMOFF = 83968; HKOFF = 147456
vPW = 202
vW5 = [240, 241]
NPF5 = int(os.environ.get("NPF5", "3"))
NS5 = int(os.environ.get("NS5", "5")); R3 = int(os.environ.get("R3", "4")); R5 = int(os.environ.get("R5", "6"))
def w4_piece_lane(k, vdst, vidx, t):
    k(f"v_mul_u32_u24 v{t}, 4682, v{vidx}"); k(f"v_lshrrev_b32 v{t}, 16, v{t}")
    k(f"v_mul_u32_u24 v{t+1}, 14, v{t}"); k(f"v_sub_u32 v{t+1}, v{vidx}, v{t+1}")
    k(f"v_and_b32 v{t+2}, 0x33, v{t}")
    k(f"v_bfe_u32 v{vidx}, v{t}, 2, 1"); k(f"v_lshl_add_u32 v{t+2}, v{vidx}, 3, v{t+2}")
    k(f"v_bfe_u32 v{vidx}, v{t}, 3, 1"); k(f"v_lshl_add_u32 v{t+2}, v{vidx}, 2, v{t+2}")
    k(f"v_mul_u32_u24 v{t+2}, 7168, v{t+2}")
    k(f"v_lshl_add_u32 v{vdst}, v{t+1}, 4, v{t+2}")
def coords4(k, stb, scb, st):
    k("s_and_b32 s21, s2, 7"); k("s_lshr_b32 s22, s2, 3")
    k(f"s_and_b32 s{stb}, s21, 1"); k(f"s_lshl_b32 s{stb}, s{stb}, 2"); k(f"s_and_b32 s{st}, s22, 3"); k(f"s_add_u32 s{stb}, s{stb}, s{st}")
    k(f"s_lshr_b32 s{scb}, s21, 1"); k(f"s_lshl_b32 s{scb}, s{scb}, 3"); k(f"s_lshr_b32 s{st}, s22, 2"); k(f"s_add_u32 s{scb}, s{scb}, s{st}")
def pf4_setup(k, t):
    coords4(k, 27, 29, 28)
    k("s_mul_i32 s40, s29, 224")
    k("s_min_u32 s27, s20, 6"); k("s_lshl_b32 s42, s27, 10"); k("s_lshl_b32 s27, s27, 6")
    k(f"v_add_u32 v{t+3}, s27, v1")
    w4_piece_lane(k, vPW, t + 3, t)
    srd(k, 52, pWG, D * DF * 2); srd(k, 56, pWU, D * DF * 2)
def pf4(tile):
    o = []
    for m in range(2):
        g = []
        if m == 0: g.append(f"s_add_u32 s41, s40, {tile*32*7168}")
        g += [f"s_add_u32 m0, s42, {tile*SLOT4 + m*UOFF}", f"buffer_load_dwordx4 v{vPW}, s[{52+4*m}:{55+4*m}], s41 offen lds"]
        o.append(g)
    return o

JS3 = int(os.environ.get("JS3", "2")); JT4 = int(os.environ.get("JT4", "28"))
def phase35(k, kind):
    wo = kind == "wo"
    KD = D if wo else DF
    NT = KD // 128
    NS = 4 if wo else NS5
    R = R3 if wo else R5
    WSB = WS_O if wo else WS_HM
    T32B = KD * 64
    base = W3BASE if wo else 0
    vW = vW3 if wo else vW5
    WADV = W3ADV if wo else W5ADV
    SW = 8 if wo else SW5
    vA = [2, 3, 4, 5]; vBj = [6, 7]; vR = 10; vO = 11; vT = 12; vRM = 8; vHK = 9
    RES = 16; A = [24, 40]; ACC = 56; ACM = 88; RMF = [96, 100]; BR = 104
    MX = 15
    acc = lambda i, j: ACC + (j * 4 + i) * 4
    pre = "p3" if wo else "p5"
    coords35(k, 23, 24, 25)
    k("s_and_b32 s25, s20, 3")
    k("s_lshr_b32 s26, s20, 2")
    k("s_lshl_b32 s31, s23, 2"); k("s_add_u32 s31, s31, s25"); k(f"s_mul_i32 s31, s31, {T32B}")
    k("s_lshl_b32 s28, s26, 12"); k("s_add_u32 s31, s31, s28"); k(f"s_add_u32 s31, s31, {WSB}")
    k(f"v_lshrrev_b32 v{vT}, 4, v1"); k(f"v_and_b32 v{vT+1}, 15, v1")
    k(f"v_lshlrev_b32 v{vT+2}, 4, v{vT+1}"); k(f"v_lshl_add_u32 v{vT+2}, v{vT}, 9, v{vT+2}")
    k("s_lshl_b32 s28, s26, 8")
    k(f"v_add_u32 v{vBj[0]}, s28, v{vT+2}")
    k(f"v_xor_b32 v{vBj[1]}, 256, v{vBj[0]}")
    k(f"v_and_b32 v{vT+2}, 1, v{vT}"); k(f"v_lshlrev_b32 v{vT+2}, 1, v{vT+2}"); k(f"v_lshrrev_b32 v{vT+3}, 1, v{vT}")
    k(f"v_add_u32 v{vT+2}, v{vT+2}, v{vT+3}")
    rm = vR if wo else vO
    k(f"v_lshlrev_b32 v{rm}, 11, v{vT+1}"); k(f"v_lshl_add_u32 v{rm}, v{vT+2}, 4, v{rm}")
    k("s_lshl_b32 s33, s23, 2"); k("s_add_u32 s33, s33, s25"); k("s_lshl_b32 s33, s33, 1"); k("s_add_u32 s33, s33, s26")
    k("s_lshl_b32 s35, s33, 4")
    k("s_lshl_b32 s33, s33, 15"); k("s_lshl_b32 s28, s24, 7"); k("s_add_u32 s33, s33, s28")
    if wo:
        k(f"v_lshlrev_b32 v{vO}, 9, v{vT+2}"); k(f"v_lshl_add_u32 v{vO}, v{vT+1}, 4, v{vO}")
        k("s_lshl_b32 s34, s23, 2"); k("s_add_u32 s34, s34, s25"); k("s_lshl_b32 s34, s34, 16")
        k("s_lshl_b32 s28, s24, 12"); k("s_add_u32 s34, s34, s28"); k("s_lshl_b32 s28, s26, 8"); k("s_add_u32 s34, s34, s28")
        k(f"s_add_u32 s34, s34, {WS_H}")
        k("s_lshl_b32 s28, s20, 10"); k(f"s_add_u32 s28, s28, {RMOFF}")
        k(f"v_lshl_add_u32 v{vRM}, v{vT}, 4, s28")
    k("s_lshl_b32 s28, s20, 11"); k(f"s_add_u32 s28, s28, {HKOFF}")
    k(f"v_lshl_add_u32 v{vHK}, v1, 4, s28")
    k(f"v_bfe_u32 v{vT+1}, v1, 2, 2")
    k(f"v_lshrrev_b32 v{vT+2}, 1, v{vT}"); k(f"v_and_b32 v{vT+3}, 1, v{vT}")
    k(f"v_lshlrev_b32 v{vT+2}, 4, v{vT+2}"); k(f"v_lshl_add_u32 v{vT+2}, v{vT+3}, 2, v{vT+2}")
    k(f"v_add_u32 v{vT+2}, v{vT+2}, v{vT+1}"); k(f"v_lshlrev_b32 v{vT+2}, 7, v{vT+2}")
    k(f"v_lshrrev_b32 v{vT+1}, 1, v{vT+1}"); k(f"v_lshl_add_u32 v{vT+1}, v{vT+3}, 1, v{vT+1}")
    k(f"v_and_b32 v{vT+3}, 3, v1"); k(f"v_lshl_add_u32 v{vT+2}, v{vT+3}, 3, v{vT+2}")
    k("s_lshl_b32 s28, s26, 13")
    if base: k(f"s_add_u32 s28, s28, {base}")
    k(f"v_add_u32 v{vT+2}, s28, v{vT+2}")
    for i in range(4):
        k(f"v_xor_b32 v{vT+3}, {i}, v{vT+1}")
        k(f"v_lshl_add_u32 v{vA[i]}, v{vT+3}, 5, v{vT+2}")
    hiA = NS * 16384 > 65536
    vA2 = [204, 205, 206, 207]
    if hiA:
        for i in range(4): k(f"v_add_u32 v{vA2[i]}, 65536, v{vA[i]}")
    srd(k, 16, pX if wo else pOUT, MB4)
    if not wo and OT == 1:
        k(f"buffer_load_dword v{RES}, v{vO}, s[16:19], s33 offen")
    if wo and COA & 4:
        for p in range(2): k(f"buffer_load_dwordx4 v[{RES+4*p}:{RES+4*p+3}], v{vR}, s[16:19], s33 offen offset:{64*p}")
    if not wo and COA & 8:
        k(f"v_and_b32 v{vT}, 15, v1"); k(f"v_lshrrev_b32 v{vT+1}, 4, v1")
        k(f"v_and_b32 v{vT+2}, 1, v{vT+1}"); k(f"v_lshlrev_b32 v{vT+2}, 1, v{vT+2}"); k(f"v_lshrrev_b32 v{vT+1}, 1, v{vT+1}"); k(f"v_add_u32 v{vT+1}, v{vT+1}, v{vT+2}")
        k(f"v_xor_b32 v{vT+1}, v{vT+1}, v{vT}"); k(f"v_and_b32 v{vT+1}, 7, v{vT+1}"); k(f"v_lshlrev_b32 v{vT+1}, 4, v{vT+1}")
        k("s_lshl_b32 s28, s20, 12"); k("s_xor_b32 s28, s28, 16384"); k("s_add_u32 s28, s28, 98304")
        k(f"v_lshl_add_u32 v{vT+1}, v{vT}, 7, v{vT+1}"); k(f"v_add_u32 v88, s28, v{vT+1}"); k("v_xor_b32 v89, 64, v88")
        k(f"v_lshrrev_b32 v{vT}, 3, v1"); k(f"v_and_b32 v{vT+1}, 7, v1")
        k(f"v_lshlrev_b32 v{vO}, 11, v{vT}"); k(f"v_lshl_add_u32 v{vO}, v{vT+1}, 4, v{vO}")
        k(f"v_xor_b32 v{vT+1}, v{vT+1}, v{vT}"); k(f"v_lshlrev_b32 v{vT+1}, 4, v{vT+1}"); k(f"v_lshl_add_u32 v{vT+1}, v{vT}, 7, v{vT+1}")
        k(f"v_add_u32 v90, s28, v{vT+1}")
        k("s_add_u32 s34, s33, 16384")
    for r in range(ACC, ACC + (40 if wo else 32)): k(f"v_mov_b32 v{r}, 0")
    if wo:
        pf4_setup(k, vT)
        k(f"v_lshrrev_b32 v{vT}, 3, v1"); k(f"v_and_b32 v{vT+1}, 7, v1"); k(f"v_lshlrev_b32 v{vT+1}, 4, v{vT+1}")
        k(f"v_lshl_add_u32 v{vT+1}, v{vT}, 8, v{vT+1}"); k("s_lshl_b32 s28, s26, 7"); k(f"v_add_u32 v{vT+1}, s28, v{vT+1}")
        k(f"v_and_b32 v{vT+2}, 15, v1"); k(f"v_lshlrev_b32 v{vT+2}, 2, v{vT+2}")
    vm = VM()
    if not wo:
        for t in range(NPF5, NS):
            for d in w35_dma(vW, SW, t):
                for l in d: k(l)
            k(WADV); vm.issue(("W", t), 2)
    k("s_lshr_b32 s27, s23, 1"); k("s_lshl_b32 s27, s27, 7"); k(f"s_add_u32 s27, s27, {WS_CNT + (C3 if wo else C5)*128}")
    wait(k, 27, 32, vt=(A[0], A[0] + 1) if wo and COA & 4 else (RES, RES + 1), pr=A[1])
    k.stamp(pre + "_wait")
    NSTEP = 2 * NT
    def bld(s):
        b = BR + (s % R) * 8
        return [f"buffer_load_dwordx4 v[{b+4*j}:{b+4*j+3}], v{vBj[j]}, s[12:15], s31 offen{SC}" for j in range(2)]
    def badv(s): return f"s_add_u32 s31, s31, {2048 if s % 2 == 0 else 6144}"
    if wo:
        k("s_lshl_b32 s28, s20, 10"); k(f"s_add_u32 m0, s28, {RMOFF}")
        k(f"s_mov_b32 s28, {WS_RM}")
        k(f"buffer_load_dwordx4 v{vT+1}, s[12:15], s28 offen{SC} lds"); vm.issue("RM")
    for s in range(R):
        for l in bld(s): k(l); vm.issue(("B", s))
        k(badv(s))
    if wo:
        for p in range(2 if not COA & 4 else 0):
            k(f"buffer_load_dwordx4 v[{RES+4*p}:{RES+4*p+3}], v{vR}, s[16:19], s33 offen offset:{64*p}"); vm.issue("res")
        k("s_lshl_b32 s28, s35, 2"); k(f"s_add_u32 s28, s28, {WS_MX}")
        k(f"buffer_load_dword v{MX}, v{vT+2}, s[12:15], s28 offen{SC}"); vm.issue("res")
    def areads(s, buf):
        t = s // 2; sl = t % NS
        va = vA if sl < 4 else vA2
        o = [f"ds_read_b64_tr_b16 v[{A[buf]+4*i+2*tt}:{A[buf]+4*i+2*tt+1}], v{va[i]} offset:{(sl & 3)*16384 + (s&1)*4096 + tt*1024}"
             for i in range(4) for tt in range(2)]
        return o
    def rmread(s, buf): return f"ds_read_b128 v[{RMF[buf]}:{RMF[buf]+3}], v{vRM} offset:{(s >> 1)*128 + (s & 1)*64}"
    for l in areads(0, 0): k(l)
    if wo:
        k(f"s_waitcnt vmcnt({vm.cnt({'RM'})})")
        k(rmread(0, 0))
    k.stamp(pre + "_go")
    texts = []
    for per in range((NT + NS - 1) // NS):
        o = []
        for s in range(per * 2 * NS, min((per + 1) * 2 * NS, NSTEP)):
            t = s // 2; cur = s & 1; nxt = cur ^ 1
            need = {("B", s)}
            if s & 1 and t + 1 < NT: need.add(("W", t + 1))
            n = vm.cnt(need)
            o.append(f"s_waitcnt vmcnt({min(n, 63)}) lgkmcnt(0)")
            rd = []; dm = []
            if s & 1:
                if t + 1 < NT:
                    o.append("s_barrier"); rd = areads(s + 1, nxt)
                if t + NS < NT: dm = w35_dma(vW, SW, t % NS)
            else:
                rd = areads(s + 1, nxt)
            if wo and s + 1 < NSTEP: rd = rd + [rmread(s + 1, nxt)]
            mf = []
            b = BR + (s % R) * 8
            for i in range(4):
                for j in range(2):
                    a = acc(i, j)
                    mf.append(f"v_mfma_f32_16x16x32_bf16 v[{a}:{a+3}], v[{A[cur]+4*i}:{A[cur]+4*i+3}], v[{b+4*j}:{b+4*j+3}], v[{a}:{a+3}]")
            if wo:
                for j in range(2):
                    a = ACM + 4 * j
                    mf.append(f"v_mfma_f32_16x16x32_bf16 v[{a}:{a+3}], v[{RMF[cur]}:{RMF[cur]+3}], v[{b+4*j}:{b+4*j+3}], v[{a}:{a+3}]")
            gaps = [[] for _ in mf]
            for q, r in enumerate(rd): gaps[min(q, len(mf) - 1)].append(r)
            if dm:
                gaps[0].append(dm[0][0]); gaps[1].append(dm[0][1]); gaps[2].append(dm[1][0]); gaps[3].append(dm[1][1]); gaps[4].append(WADV)
                vm.issue(("W", t + NS), 2)
            if wo and s == JS3 and JIT & 4:
                assert s % 2 == 0
                gaps[1] += jit("L_p3tail", 29, 203); vm.issue("CP")
            if s + R < NSTEP:
                gaps[len(mf) - 1] += bld(s + R) + [badv(s + R)]
                vm.issue(("B", s + R), 2)
            if wo and s == NSTEP - R:
                q = 0
                for tl in range(3):
                    for g in pf4(tl):
                        gaps[min(q, len(mf) - 1)] += g; q += 1
                        vm.issue("PF")
            for g, mm in enumerate(mf):
                o.append(mm); o += gaps[g]
        texts.append(o)
    periods(k, pre + "loop", texts, 36)
    if wo and JIT & 4: k("L_p3tail:")
    k.stamp(pre + "_loop")
    if wo:
        k("s_and_b32 s27, s20, 3"); k("s_lshl_b32 s27, s27, 12"); k(f"s_mul_i32 s28, s26, {SLOT4}"); k("s_add_u32 s27, s27, s28"); k(f"s_add_u32 s27, s27, {BOFF4}")
        k(f"v_lshlrev_b32 v{vT}, 4, v1"); k(f"v_add_u32 v{vT+1}, s27, v{vT}")
        k("s_and_b32 s27, s20, 3"); k("s_lshl_b32 s27, s27, 12"); k("s_xor_b32 s28, s26, 1"); k(f"s_mul_i32 s28, s28, {SLOT4}"); k("s_add_u32 s27, s27, s28"); k(f"s_add_u32 s27, s27, {BOFF4}")
        k(f"v_add_u32 v{vT+2}, s27, v{vT}")
        k("s_lshl_b32 s27, s20, 8"); k(f"s_add_u32 s27, s27, {XMOFF}")
        k(f"v_lshl_add_u32 v{vRM}, v1, 2, s27")
        k(f"ds_write_b32 v{vRM}, v{ACM+4}")
        k(f"v_xor_b32 v{vRM}, 1024, v{vRM}")
    else:
        XCH = 98304
        k("s_lshl_b32 s27, s20, 12"); k(f"s_add_u32 s27, s27, {XCH}")
        k(f"v_lshlrev_b32 v{vT}, 4, v1"); k(f"v_add_u32 v{vT+1}, s27, v{vT}")
        k("s_lshl_b32 s27, s20, 12"); k("s_xor_b32 s27, s27, 16384"); k(f"s_add_u32 s27, s27, {XCH}"); k(f"v_add_u32 v{vT+2}, s27, v{vT}")
    for i in range(4): k(f"ds_write_b128 v{vT+1}, v[{acc(i,1)}:{acc(i,1)+3}] offset:{1024*i}")
    k("s_waitcnt lgkmcnt(0)")
    k("s_barrier")
    for i in range(4): k(f"ds_read_b128 v[{acc(i,1)}:{acc(i,1)+3}], v{vT+2} offset:{1024*i}")
    if wo:
        k(f"ds_read_b32 v{ACM+4}, v{vRM}")
        for g in pf4(3):
            for l in g: k(l)
    else:
        for p in range(2): k(f"ds_read_b128 v[{RES+4*p}:{RES+4*p+3}], v{vHK} offset:{1024*p}")
    k("s_waitcnt lgkmcnt(0)")
    def padd(d, a, b, bc=False):
        if wo:
            k(f"v_add_f32 v{d}, v{a}, v{b}"); k(f"v_add_f32 v{d+1}, v{a+1}, v{b if bc else b+1}")
        else: k(f"v_pk_add_f32 v[{d}:{d+1}], v[{a}:{a+1}], v[{b}:{b+1}]")
    for i in range(4):
        for r in range(0, 4, 2): padd(acc(i,0)+r, acc(i,0)+r, acc(i,1)+r)
    for p in range(2):
        for r in range(4): k(f"v_permlane16_swap_b32 v{acc(2*p,0)+r}, v{acc(2*p+1,0)+r}")
    U = A[0]
    k(f"v_mov_b32 v{vT+3 if not wo else vT}, 0xffff0000")
    vMask = vT + 3 if not wo else vT
    if wo:
        k("s_waitcnt vmcnt(8)")
        k(f"v_add_f32 v{ACM}, v{ACM}, v{ACM+4}")
        k(f"v_add_f32 v{ACM}, v{ACM}, v{MX}")
        k(f"v_sub_f32 v{ACM}, 0, v{ACM}")
    for p in range(2):
        for q in range(4):
            a = acc(2 * p, 0) + 2 * q
            k(f"v_lshlrev_b32 v{U+2*q}, 16, v{RES+4*p+q}")
            k(f"v_and_b32 v{U+2*q+1}, v{vMask}, v{RES+4*p+q}")
        for q in range(4):
            a = acc(2 * p, 0) + 2 * q
            padd(a, a, U+2*q)
        for q in range(4):
            a = acc(2 * p, 0) + 2 * q
            k(f"v_cvt_pk_bf16_f32 v{RES+4*p+q}, v{a}, v{a+1}")
        if wo:
            k(f"ds_write_b128 v{vHK}, v[{RES+4*p}:{RES+4*p+3}] offset:{1024*p}")
            HC = U + 8 + 4 * p
            for q in range(4):
                a = acc(2 * p, 0) + 2 * q
                padd(a, a, ACM, True)
            for q in range(4):
                a = acc(2 * p, 0) + 2 * q
                k(f"v_cvt_pk_bf16_f32 v{HC+q}, v{a}, v{a+1}")
            k(f"buffer_store_dwordx4 v[{HC}:{HC+3}], v{vO}, s[12:15], s34 offen offset:{2048*p}{SC}")
        elif COA & 8:
            k(f"ds_write_b128 v{88+p}, v[{RES+4*p}:{RES+4*p+3}]")
        else:
            k(f"buffer_store_dwordx4 v[{RES+4*p}:{RES+4*p+3}], v{vO}, s[16:19], s33 offen offset:{64*p}{OUTSC}")
    if not wo and COA & 8:
        for q in range(2): k(f"ds_read_b128 v[{RES+4*q}:{RES+4*q+3}], v90 offset:{1024*q}")
        for q in range(2):
            k(f"s_waitcnt lgkmcnt({1-q})")
            k(f"buffer_store_dwordx4 v[{RES+4*q}:{RES+4*q+3}], v{vO}, s[16:19], s{33+q} offen{OUTSC}")
    if wo:
        s1 = U
        a0 = acc(0, 0)
        for r in range(4): k(f"v_mul_f32 v{s1+r}, v{a0+r}, v{a0+r}")
        for r in range(4, 16): k(f"v_fma_f32 v{s1+(r&3)}, v{a0+r}, v{a0+r}, v{s1+(r&3)}")
        k(f"v_add_f32 v{s1}, v{s1}, v{s1+1}"); k(f"v_add_f32 v{s1+2}, v{s1+2}, v{s1+3}"); k(f"v_add_f32 v{s1}, v{s1}, v{s1+2}")
        for sw in ("v_permlane16_swap_b32", "v_permlane32_swap_b32"):
            k(f"v_mov_b32 v{s1+2}, v{s1}"); k(f"{sw} v{s1}, v{s1+2}"); k(f"v_add_f32 v{s1}, v{s1}, v{s1+2}")
        k(f"v_and_b32 v{vT}, 15, v1"); k(f"v_lshlrev_b32 v{vT}, 2, v{vT}")
        if STL & 2:
            k("s_lshr_b32 s27, s35, 8"); k("s_lshl_b32 s27, s27, 14"); k("s_and_b32 s28, s35, 255"); k("s_lshl_b32 s28, s28, 2"); k("s_add_u32 s27, s27, s28")
            k("s_lshl_b32 s28, s24, 10"); k("s_add_u32 s27, s27, s28"); k(f"s_add_u32 s27, s27, {WS_ST}")
        else:
            k("s_lshl_b32 s27, s35, 2"); k("s_lshl_b32 s28, s24, 13"); k("s_add_u32 s27, s27, s28"); k(f"s_add_u32 s27, s27, {WS_ST}")
        k("s_mov_b64 exec, 0xffff")
        k(f"buffer_store_dword v{s1}, v{vT}, s[12:15], s27 offen{SC}")
        k("s_mov_b64 exec, -1")
        k.stamp(pre + "_epi")
        k("s_lshr_b32 s27, s23, 1"); k("s_lshl_b32 s27, s27, 7"); k(f"s_add_u32 s27, s27, {WS_CNT + C4*128}")
        k("s_waitcnt lgkmcnt(0)")
        signal(k, 27, vt=(RES, RES + 1))
        k.stamp(pre + "_sig")
    else:
        k.stamp(pre + "_epi")
OUTSC = os.environ.get("OUTSC", "")

def phase3k(k):
    assert COA & 4 and not WT3 and not STL & 2
    NT = D // 128; NS = 4; R = R3K; SO = S3O
    base = W3BASE; vW = vW3; SW = 8
    vA = [2, 3, 4, 5]; vBj = [6, 7]; vR = 10; vO = 11; vT = 12; vRM = 8; vHK = 9
    RES = 16; A = [24, 40]; ACC = 56; ACM = 120; RMF = [128, 132]; BR = 136; MX = 15
    assert BR + 8 * R <= 200 and R >= SO and NT - SO >= (NT - 1) // NS * NS and SO == 3
    vL, vL4, vXW, vXR, vZ, vXMw, vXMr, vID, vMask = 244, 245, 246, 247, 203, 204, 205, 206, 207
    TCH, TCM, XS2, RMA, RMM = 208, 216, 224, 232, 217
    acc = lambda c, i, j: ACC + c * 32 + (j * 4 + i) * 4
    T32B = D * 64
    coords35(k, 23, 24, 25)
    k("s_and_b32 s25, s20, 3")
    k("s_lshr_b32 s26, s20, 2")
    k("s_lshl_b32 s31, s23, 2"); k("s_add_u32 s31, s31, s25"); k(f"s_mul_i32 s31, s31, {T32B}")
    k("s_lshl_b32 s28, s26, 11"); k("s_add_u32 s31, s31, s28"); k(f"s_add_u32 s31, s31, {WS_O}")
    k("s_and_b32 s28, s24, 1"); k(f"s_mul_i32 s28, s28, {T32B//2}"); k("s_add_u32 s31, s31, s28")
    k(f"v_lshrrev_b32 v{vT}, 4, v1"); k(f"v_and_b32 v{vT+1}, 15, v1")
    k(f"v_lshlrev_b32 v{vT+2}, 4, v{vT+1}"); k(f"v_lshl_add_u32 v{vT+2}, v{vT}, 9, v{vT+2}")
    k("s_lshl_b32 s28, s26, 8")
    k(f"v_add_u32 v{vBj[0]}, s28, v{vT+2}")
    k(f"v_xor_b32 v{vBj[1]}, 256, v{vBj[0]}")
    k(f"v_and_b32 v{vT+2}, 1, v{vT}"); k(f"v_lshlrev_b32 v{vT+2}, 1, v{vT+2}"); k(f"v_lshrrev_b32 v{vT+3}, 1, v{vT}")
    k(f"v_add_u32 v{vT+2}, v{vT+2}, v{vT+3}")
    k(f"v_lshlrev_b32 v{vR}, 11, v{vT+1}"); k(f"v_lshl_add_u32 v{vR}, v{vT+2}, 4, v{vR}")
    k("s_lshl_b32 s33, s23, 2"); k("s_add_u32 s33, s33, s25"); k("s_lshl_b32 s33, s33, 1"); k("s_add_u32 s33, s33, s26")
    k("s_lshl_b32 s35, s33, 4")
    k("s_lshl_b32 s33, s33, 15"); k("s_lshl_b32 s28, s24, 7"); k("s_add_u32 s33, s33, s28")
    k(f"v_lshlrev_b32 v{vO}, 9, v{vT+2}"); k(f"v_lshl_add_u32 v{vO}, v{vT+1}, 4, v{vO}")
    k("s_lshl_b32 s34, s23, 2"); k("s_add_u32 s34, s34, s25"); k("s_lshl_b32 s34, s34, 16")
    k("s_lshl_b32 s28, s24, 12"); k("s_add_u32 s34, s34, s28"); k("s_lshl_b32 s28, s26, 8"); k("s_add_u32 s34, s34, s28")
    k(f"s_add_u32 s34, s34, {WS_H}")
    k("s_lshl_b32 s28, s20, 10"); k(f"s_add_u32 s28, s28, {RMOFF}")
    k(f"v_lshl_add_u32 v{vRM}, v{vT}, 4, s28")
    k("s_lshl_b32 s28, s20, 11"); k(f"s_add_u32 s28, s28, {HKOFF}")
    k(f"v_lshl_add_u32 v{vHK}, v1, 4, s28")
    k(f"v_bfe_u32 v{vT+1}, v1, 2, 2")
    k(f"v_lshrrev_b32 v{vT+2}, 1, v{vT}"); k(f"v_and_b32 v{vT+3}, 1, v{vT}")
    k(f"v_lshlrev_b32 v{vT+2}, 4, v{vT+2}"); k(f"v_lshl_add_u32 v{vT+2}, v{vT+3}, 2, v{vT+2}")
    k(f"v_add_u32 v{vT+2}, v{vT+2}, v{vT+1}"); k(f"v_lshlrev_b32 v{vT+2}, 7, v{vT+2}")
    k(f"v_lshrrev_b32 v{vT+1}, 1, v{vT+1}"); k(f"v_lshl_add_u32 v{vT+1}, v{vT+3}, 1, v{vT+1}")
    k(f"v_and_b32 v{vT+3}, 3, v1"); k(f"v_lshl_add_u32 v{vT+2}, v{vT+3}, 3, v{vT+2}")
    k("s_lshl_b32 s28, s26, 12"); k(f"s_add_u32 s28, s28, {base}")
    k(f"v_add_u32 v{vT+2}, s28, v{vT+2}")
    for i in range(4):
        k(f"v_xor_b32 v{vT+3}, {i}, v{vT+1}")
        k(f"v_lshl_add_u32 v{vA[i]}, v{vT+3}, 5, v{vT+2}")
    srd(k, 16, pX, MB4)
    for p in range(2): k(f"buffer_load_dwordx4 v[{RES+4*p}:{RES+4*p+3}], v{vR}, s[16:19], s33 offen offset:{64*p}")
    k(f"v_mov_b32 v{vZ}, 0"); k(f"s_xor_b32 s28, s2, {32 if C35 == 0 else 4}"); k("s_lshl_b32 s28, s28, 7"); k(f"s_add_u32 s28, s28, {WS_XID1}")
    k(f"buffer_load_dword v{vID}, v{vZ}, s[12:15], s28 offen{SC}")
    for r in range(ACC, ACC + 72): k(f"v_mov_b32 v{r}, 0")
    pf4_setup(k, vT)
    k(f"v_lshlrev_b32 v{vL}, 4, v1"); k(f"v_lshlrev_b32 v{vL4}, 2, v1"); k(f"v_mov_b32 v{vMask}, 0xffff0000")
    k("s_lshl_b32 s38, s23, 4"); k("s_add_u32 s38, s38, s24"); k("s_xor_b32 s39, s38, 1")
    k("s_lshl_b32 s28, s20, 8"); k(f"s_add_u32 s28, s28, {WS_XM3}")
    k("s_lshl_b32 s37, s38, 11"); k("s_add_u32 s37, s37, s28"); k("s_lshl_b32 s43, s39, 11"); k("s_add_u32 s43, s43, s28")
    k("s_lshl_b32 s28, s20, 11"); k(f"s_add_u32 s28, s28, {WS_XI3}")
    for r in (38, 39): k(f"s_lshl_b32 s{r}, s{r}, 14"); k(f"s_add_u32 s{r}, s{r}, s28")
    k("s_lshl_b32 s27, s25, 12"); k(f"s_add_u32 s27, s27, {BOFF4}")
    k(f"s_mul_i32 s28, s26, {SLOT4}"); k("s_add_u32 s28, s28, s27"); k(f"v_add_u32 v{vXW}, s28, v{vL}")
    k("s_xor_b32 s28, s26, 1"); k(f"s_mul_i32 s28, s28, {SLOT4}"); k("s_add_u32 s28, s28, s27"); k(f"v_add_u32 v{vXR}, s28, v{vL}")
    k("s_lshl_b32 s27, s20, 8"); k(f"s_add_u32 s27, s27, {XMOFF}"); k(f"v_add_u32 v{vXMw}, s27, v{vL4}"); k(f"v_xor_b32 v{vXMr}, 1024, v{vXMw}")
    k(f"v_bfe_u32 v{vT}, v1, 2, 3"); k(f"v_and_b32 v{vT+1}, 3, v1"); k(f"v_lshlrev_b32 v{vT+1}, 4, v{vT+1}")
    k(f"v_lshl_add_u32 v{vT+1}, v{vT}, 7, v{vT+1}"); k("s_lshl_b32 s28, s26, 6"); k("s_and_b32 s27, s24, 1"); k("s_lshl_b32 s27, s27, 10"); k("s_add_u32 s28, s28, s27")
    k(f"v_add_u32 v{vT+1}, s28, v{vT+1}")
    k(f"v_and_b32 v{vT+2}, 15, v1"); k(f"v_lshlrev_b32 v{vT+2}, 2, v{vT+2}")
    vm = VM()
    k("s_lshr_b32 s27, s23, 1"); k("s_lshl_b32 s27, s27, 7"); k(f"s_add_u32 s27, s27, {WS_CNT + C3*128}")
    wait(k, 27, 32, vt=(A[0], A[0] + 1), pr=A[1])
    k.stamp("p3_wait")
    def bld(t):
        b = BR + (t % R) * 8
        return [f"buffer_load_dwordx4 v[{b+4*j}:{b+4*j+3}], v{vBj[j]}, s[12:15], s31 offen{SC}" for j in range(2)]
    badv = "s_add_u32 s31, s31, 4096"
    k("s_lshl_b32 s28, s20, 10"); k(f"s_add_u32 m0, s28, {RMOFF}")
    k(f"s_mov_b32 s28, {WS_RM}")
    k(f"buffer_load_dwordx4 v{vT+1}, s[12:15], s28 offen{SC} lds"); vm.issue("RM")
    for t in range(R - 1):
        for l in bld(t): k(l); vm.issue(("B", t))
        k(badv)
    k("s_lshl_b32 s28, s35, 2"); k(f"s_add_u32 s28, s28, {WS_MX}")
    k(f"buffer_load_dword v{MX}, v{vT+2}, s[12:15], s28 offen{SC}"); vm.issue("res")
    def areads(t, c, buf):
        return [f"ds_read_b64_tr_b16 v[{A[buf]+4*i+2*tt}:{A[buf]+4*i+2*tt+1}], v{vA[i]} offset:{(t % NS)*16384 + c*8192 + tt*1024}"
                for i in range(4) for tt in range(2)]
    def rmread(t): return f"ds_read_b128 v[{RMF[t & 1]}:{RMF[t & 1]+3}], v{vRM} offset:{t*64}"
    for l in areads(0, 0, 0): k(l)
    k(f"s_waitcnt vmcnt({vm.cnt({'RM'})})")
    k(rmread(0))
    k.stamp("p3_go")
    BG = [int(x) for x in os.environ.get("BG3", "2,5").split(",")]
    order = [(t, c) for t in range(NT - SO) for c in range(2)] + [(t, 0) for t in range(NT - SO, NT)] + [(t, 1) for t in range(NT - SO, NT)]
    def send1(st):
        lfast = k.lab("p3fast"); lj = k.lab("p3sent")
        if SKF == 1: return ["s_cmp_eq_u32 s44, s45", f"s_cbranch_scc1 {lfast}", st + SC, f"s_branch {lj}", f"{lfast}:", st, f"{lj}:"]
        return [st + SC] if SKF == 2 else [st]
    def fold0_triples():
        o = []
        for q in range(8):
            a = acc(0, 0, 0) + 2 * q; b = acc(0, 0, 1) + 2 * q
            o += [f"v_add_f32 v{a}, v{a}, v{b}", f"v_add_f32 v{a+1}, v{a+1}, v{b+1}", f"v_cvt_pk_bf16_f32 v{XS2+q}, v{a}, v{a+1}"]
        return o
    visible = {0}; bseen = set()
    texts = [[] for _ in range(NT // NS)]
    for idx, (t, c) in enumerate(order):
        o = texts[t // NS]
        cur = idx & 1; nxt = cur ^ 1
        nx = order[idx + 1] if idx + 1 < len(order) else None
        tail = idx - (len(order) - SO) if idx >= len(order) - SO else -1
        need = set(); bar = False
        if t not in bseen: need.add(("B", t)); bseen.add(t)
        if nx and nx[0] not in visible: need.add(("W", nx[0])); visible.add(nx[0]); bar = True
        if tail in (1, 2): bar = True
        n = vm.cnt(need) if need else None
        o.append(f"s_waitcnt vmcnt({min(n, 63)}) lgkmcnt(0)" if n is not None else "s_waitcnt lgkmcnt(0)")
        if bar: o.append("s_barrier")
        rd = areads(nx[0], nx[1], nxt) if nx else []; dm = []
        if nx and nx[1] == 0: rd = rd + [rmread(nx[0])]
        if c == 1 and t + NS < NT: dm = w35_dma(vW, SW, t % NS)
        mf = []
        b = BR + (t % R) * 8
        for i in range(4):
            for j in range(2):
                a = acc(c, i, j)
                mf.append(f"v_mfma_f32_16x16x32_bf16 v[{a}:{a+3}], v[{A[cur]+4*i}:{A[cur]+4*i+3}], v[{b+4*j}:{b+4*j+3}], v[{a}:{a+3}]")
        if c == 0:
            for j in range(2):
                a = ACM + 4 * j
                mf.append(f"v_mfma_f32_16x16x32_bf16 v[{a}:{a+3}], v[{RMF[t & 1]}:{RMF[t & 1]+3}], v[{b+4*j}:{b+4*j+3}], v[{a}:{a+3}]")
        gaps = [[] for _ in mf]
        if tail == 1:
            for i in range(4): gaps[i].append(f"ds_read_b128 v[{acc(0,i,1)}:{acc(0,i,1)+3}], v{vXR} offset:{1024*i}")
            gaps[4].append(f"ds_read_b32 v{ACM+4}, v{vXMr}")
            gaps[0] += [f"s_getreg_b32 s44, {XCCR}", f"v_readfirstlane_b32 s45, v{vID}"]
        for q, r in enumerate(rd): gaps[min(q, len(mf) - 1)].append(r)
        if dm:
            gaps[0].append(dm[0][0]); gaps[1].append(dm[0][1]); gaps[2].append(dm[1][0]); gaps[3].append(dm[1][1]); gaps[4].append(W3ADV)
            vm.issue(("W", t + NS), 2)
        if c == 0 and t + R - 1 < NT:
            bl = bld(t + R - 1)
            gaps[BG[0]].append(bl[0]); gaps[BG[1]].append(bl[1]); gaps[BG[1]].append(badv)
            vm.issue(("B", t + R - 1), 2)
        if t == S3T and c == 0:
            for p in range(2): gaps[6 + p].append(f"buffer_load_dwordx4 v[{TCH+4*p}:{TCH+4*p+3}], v{vL}, s[12:15], s38 offen offset:{1024*p}{SC}")
            gaps[8].append(f"buffer_load_dword v{TCM}, v{vL4}, s[12:15], s37 offen{SC}")
            vm.issue(("T", 0), 3)
        if tail == 0:
            for i in range(4): gaps[2 + i].append(f"ds_write_b128 v{vXW}, v[{acc(0,i,1)}:{acc(0,i,1)+3}] offset:{1024*i}")
            gaps[6].append(f"ds_write_b32 v{vXMw}, v{ACM+4}")
        if tail == 2:
            gaps[0].append(f"v_add_f32 v{ACM}, v{ACM}, v{ACM+4}")
            gaps[1] += send1(f"buffer_store_dword v{ACM}, v{vL4}, s[12:15], s43 offen")
            for q, l in enumerate(fold0_triples()):
                g = min(q // SKG, len(mf) - 1)
                gaps[g].append(l)
                if q in (11, 23): gaps[g] += send1(f"buffer_store_dwordx4 v[{XS2+4*(q//12)}:{XS2+4*(q//12)+3}], v{vL}, s[12:15], s39 offen offset:{1024*(q//12)}")
        for g, mm in enumerate(mf):
            o.append(mm); o += gaps[g]
    periods(k, "p3loop", texts, 36)
    k.stamp("p3_loop")
    def poll(dst, dm_):
        for p in range(2): k(f"buffer_load_dwordx4 v[{dst+4*p}:{dst+4*p+3}], v{vL}, s[12:15], s38 offen offset:{1024*p}{SC}")
        k(f"buffer_load_dword v{dm_}, v{vL4}, s[12:15], s37 offen{SC}")
    def check(src, dm_, lbl):
        k(f"v_max3_u32 v{vT}, v{src}, v{src+1}, v{src+2}")
        k(f"v_max3_u32 v{vT+1}, v{src+3}, v{src+4}, v{src+5}")
        k(f"v_max3_u32 v{vT}, v{vT}, v{src+6}, v{src+7}")
        k(f"v_max3_u32 v{vT}, v{vT}, v{vT+1}, v{dm_}")
        k(f"v_cmp_eq_u32 vcc, -1, v{vT}")
        k("s_cmp_eq_u64 vcc, 0"); k(f"s_cbranch_scc1 {lbl}")
    U = A[1]
    def unpack(src, dm_):
        for q in range(8):
            k(f"v_lshlrev_b32 v{U+2*q}, 16, v{src+q}"); k(f"v_and_b32 v{U+2*q+1}, v{vMask}, v{src+q}")
        k(f"v_add_f32 v{ACM}, v{ACM}, v{dm_}")
    poll(RMA, RMM)
    for i in range(4): k(f"ds_write_b128 v{vXW}, v[{acc(1,i,1)}:{acc(1,i,1)+3}] offset:{1024*i}")
    k("s_waitcnt lgkmcnt(0)")
    k("s_barrier")
    for i in range(4): k(f"ds_read_b128 v[{acc(1,i,1)}:{acc(1,i,1)+3}], v{vXR} offset:{1024*i}")
    poll(TCH, TCM)
    k("s_waitcnt lgkmcnt(0)")
    for r in range(16): k(f"v_add_f32 v{acc(1,0,0)+r}, v{acc(1,0,0)+r}, v{acc(1,0,1)+r}")
    k(f"v_add_f32 v{ACM}, v{ACM}, v{MX}")
    gA = k.lab("p3gotA"); gB = k.lab("p3gotB"); pl = k.lab("p3poll"); jn = k.lab("p3join")
    k("s_mov_b32 s28, 1")
    k("s_waitcnt vmcnt(3)"); check(RMA, RMM, gA)
    k("s_waitcnt vmcnt(0)"); check(TCH, TCM, gB)
    k(f"{pl}:")
    poll(RMA, RMM)
    k("s_add_u32 s28, s28, 1")
    k("s_waitcnt vmcnt(0)"); check(RMA, RMM, gA)
    k(f"s_cmp_lt_u32 s28, {SPIN_LIMIT >> 2}"); k(f"s_cbranch_scc1 {pl}")
    k(f"s_branch {gA}")
    k(f"{gB}:"); unpack(TCH, TCM); k(f"s_branch {jn}")
    k(f"{gA}:"); unpack(RMA, RMM)
    k(f"{jn}:")
    k.stamp("p3_got")
    for tl in range(4):
        for g in pf4(tl):
            for l in g: k(l)
    for r in range(16): k(f"v_add_f32 v{acc(1,0,0)+r}, v{acc(1,0,0)+r}, v{U+r}")
    k(f"v_sub_f32 v{ACM}, 0, v{ACM}")
    for p in range(2):
        for r in range(4): k(f"v_permlane16_swap_b32 v{acc(1,2*p,0)+r}, v{acc(1,2*p+1,0)+r}")
    U = A[0]
    for p in range(2):
        for q in range(4):
            k(f"v_lshlrev_b32 v{U+2*q}, 16, v{RES+4*p+q}")
            k(f"v_and_b32 v{U+2*q+1}, v{vMask}, v{RES+4*p+q}")
        for q in range(8):
            a = acc(1, 2 * p, 0) + q
            k(f"v_add_f32 v{a}, v{a}, v{U+q}")
        for q in range(4):
            a = acc(1, 2 * p, 0) + 2 * q
            k(f"v_cvt_pk_bf16_f32 v{RES+4*p+q}, v{a}, v{a+1}")
        k(f"ds_write_b128 v{vHK}, v[{RES+4*p}:{RES+4*p+3}] offset:{1024*p}")
        HC = U + 8 + 4 * p
        for q in range(8):
            a = acc(1, 2 * p, 0) + q
            k(f"v_add_f32 v{a}, v{a}, v{ACM}")
        for q in range(4):
            a = acc(1, 2 * p, 0) + 2 * q
            k(f"v_cvt_pk_bf16_f32 v{HC+q}, v{a}, v{a+1}")
        k(f"buffer_store_dwordx4 v[{HC}:{HC+3}], v{vO}, s[12:15], s34 offen offset:{2048*p}{SC}")
    s1 = U
    a0 = acc(1, 0, 0)
    for r in range(4): k(f"v_mul_f32 v{s1+r}, v{a0+r}, v{a0+r}")
    for r in range(4, 16): k(f"v_fma_f32 v{s1+(r&3)}, v{a0+r}, v{a0+r}, v{s1+(r&3)}")
    k(f"v_add_f32 v{s1}, v{s1}, v{s1+1}"); k(f"v_add_f32 v{s1+2}, v{s1+2}, v{s1+3}"); k(f"v_add_f32 v{s1}, v{s1}, v{s1+2}")
    for sw in ("v_permlane16_swap_b32", "v_permlane32_swap_b32"):
        k(f"v_mov_b32 v{s1+2}, v{s1}"); k(f"{sw} v{s1}, v{s1+2}"); k(f"v_add_f32 v{s1}, v{s1}, v{s1+2}")
    k(f"v_and_b32 v{vT}, 15, v1"); k(f"v_lshlrev_b32 v{vT}, 2, v{vT}")
    k("s_lshl_b32 s27, s35, 2"); k("s_lshl_b32 s28, s24, 13"); k("s_add_u32 s27, s27, s28"); k(f"s_add_u32 s27, s27, {WS_ST}")
    k("s_mov_b64 exec, 0xffff")
    k(f"buffer_store_dword v{s1}, v{vT}, s[12:15], s27 offen{SC}")
    k("s_mov_b64 exec, -1")
    k.stamp("p3_epi")
    k("s_lshr_b32 s27, s23, 1"); k("s_lshl_b32 s27, s27, 7"); k(f"s_add_u32 s27, s27, {WS_CNT + C4*128}")
    k("s_waitcnt lgkmcnt(0)")
    signal(k, 27, vt=(RES, RES + 1))
    k.stamp("p3_sig")

def phase5k(k):
    assert WDT and NS5 == 5 and COA & 8
    NT = DF // 128; NS = NS5; R = R5K
    vW = vW5; SW = SW5
    vA = [2, 3, 4, 5]; vBj = [6, 7]; vTW = [8, 10]; vHK = 9; vO = 11; vT = 12; vTR = 200; vL = 201
    RES = 16; A = [24, 40]; ACC = 56; BR = 120
    assert BR + 8 * R <= 200
    XCH = NS * 16384
    acc = lambda c, i, j: ACC + c * 32 + (j * 4 + i) * 4
    T32B = DF * 64
    coords35(k, 23, 24, 25)
    k("s_and_b32 s25, s20, 3")
    k("s_lshr_b32 s26, s20, 2")
    k("s_lshl_b32 s31, s23, 2"); k("s_add_u32 s31, s31, s25"); k(f"s_mul_i32 s31, s31, {T32B}")
    k("s_lshl_b32 s28, s26, 11"); k("s_add_u32 s31, s31, s28"); k(f"s_add_u32 s31, s31, {WS_HM}")
    k("s_and_b32 s28, s24, 1"); k(f"s_mul_i32 s28, s28, {T32B//2}"); k("s_add_u32 s31, s31, s28")
    k(f"v_lshrrev_b32 v{vT}, 4, v1"); k(f"v_and_b32 v{vT+1}, 15, v1")
    k(f"v_lshlrev_b32 v{vT+2}, 4, v{vT+1}"); k(f"v_lshl_add_u32 v{vT+2}, v{vT}, 9, v{vT+2}")
    k("s_lshl_b32 s28, s26, 8")
    k(f"v_add_u32 v{vBj[0]}, s28, v{vT+2}")
    k(f"v_xor_b32 v{vBj[1]}, 256, v{vBj[0]}")
    k("s_lshl_b32 s33, s23, 2"); k("s_add_u32 s33, s33, s25"); k("s_lshl_b32 s33, s33, 1"); k("s_add_u32 s33, s33, s26")
    k("s_lshl_b32 s33, s33, 15"); k("s_lshl_b32 s28, s24, 7"); k("s_add_u32 s33, s33, s28")
    k("s_add_u32 s34, s33, 16384")
    k("s_lshl_b32 s28, s20, 11"); k(f"s_add_u32 s28, s28, {HKOFF}")
    k(f"v_lshl_add_u32 v{vHK}, v1, 4, s28")
    k(f"v_lshlrev_b32 v{vL}, 4, v1")
    k("s_lshl_b32 s38, s23, 4"); k("s_add_u32 s38, s38, s24"); k("s_xor_b32 s39, s38, 1")
    k("s_lshl_b32 s28, s20, 11"); k(f"s_add_u32 s28, s28, {WS_XI}")
    if SKF:
        k("s_lshl_b32 s40, s39, 10"); k(f"s_add_u32 s40, s40, {WS_XID}"); k("v_mov_b32 v203, 0")
        k(f"buffer_load_dword v202, v203, s[12:15], s40 offen{SC}")
    for r in (38, 39): k(f"s_lshl_b32 s{r}, s{r}, 14"); k(f"s_add_u32 s{r}, s{r}, s28")
    k(f"v_bfe_u32 v{vT+1}, v1, 2, 2")
    k(f"v_lshrrev_b32 v{vT+2}, 1, v{vT}"); k(f"v_and_b32 v{vT+3}, 1, v{vT}")
    k(f"v_lshlrev_b32 v{vT+2}, 4, v{vT+2}"); k(f"v_lshl_add_u32 v{vT+2}, v{vT+3}, 2, v{vT+2}")
    k(f"v_add_u32 v{vT+2}, v{vT+2}, v{vT+1}"); k(f"v_lshlrev_b32 v{vT+2}, 7, v{vT+2}")
    k(f"v_lshrrev_b32 v{vT+1}, 1, v{vT+1}"); k(f"v_lshl_add_u32 v{vT+1}, v{vT+3}, 1, v{vT+1}")
    k(f"v_and_b32 v{vT+3}, 3, v1"); k(f"v_lshl_add_u32 v{vT+2}, v{vT+3}, 3, v{vT+2}")
    k("s_lshl_b32 s28, s26, 12")
    k(f"v_add_u32 v{vT+2}, s28, v{vT+2}")
    for i in range(4):
        k(f"v_xor_b32 v{vT+3}, {i}, v{vT+1}")
        k(f"v_lshl_add_u32 v{vA[i]}, v{vT+3}, 5, v{vT+2}")
    vA2 = [204, 205, 206, 207]
    for i in range(4): k(f"v_add_u32 v{vA2[i]}, 65536, v{vA[i]}")
    srd(k, 16, pOUT, MB4)
    k(f"v_and_b32 v{vT}, 15, v1"); k(f"v_lshrrev_b32 v{vT+1}, 4, v1")
    k(f"v_and_b32 v{vT+2}, 1, v{vT+1}"); k(f"v_lshlrev_b32 v{vT+2}, 1, v{vT+2}"); k(f"v_lshrrev_b32 v{vT+1}, 1, v{vT+1}"); k(f"v_add_u32 v{vT+1}, v{vT+1}, v{vT+2}")
    k(f"v_xor_b32 v{vT+1}, v{vT+1}, v{vT}"); k(f"v_and_b32 v{vT+1}, 7, v{vT+1}"); k(f"v_lshlrev_b32 v{vT+1}, 4, v{vT+1}")
    k("s_lshl_b32 s28, s20, 13"); k("s_xor_b32 s28, s28, 32768"); k(f"s_add_u32 s28, s28, {XCH}")
    k(f"v_lshl_add_u32 v{vT+1}, v{vT}, 7, v{vT+1}"); k(f"v_add_u32 v{vTW[0]}, s28, v{vT+1}"); k(f"v_xor_b32 v{vTW[1]}, 64, v{vTW[0]}")
    k(f"v_lshrrev_b32 v{vT}, 3, v1"); k(f"v_and_b32 v{vT+1}, 7, v1")
    k(f"v_lshlrev_b32 v{vO}, 11, v{vT}"); k(f"v_lshl_add_u32 v{vO}, v{vT+1}, 4, v{vO}")
    k(f"v_xor_b32 v{vT+1}, v{vT+1}, v{vT}"); k(f"v_lshlrev_b32 v{vT+1}, 4, v{vT+1}"); k(f"v_lshl_add_u32 v{vT+1}, v{vT}, 7, v{vT+1}")
    k(f"v_add_u32 v{vTR}, s28, v{vT+1}")
    vXW, vXR, vMask = vT + 1, vT + 2, vT + 3
    k("s_lshl_b32 s27, s20, 13"); k(f"s_add_u32 s27, s27, {XCH}")
    k(f"v_add_u32 v{vXW}, s27, v{vL}"); k(f"v_add_u32 v{vXR}, s28, v{vL}")
    k(f"v_mov_b32 v{vMask}, 0xffff0000")
    TCH = 208
    vTW4 = [216, 217, 218, 219]; vTR2 = 220
    if SKR:
        k(f"v_and_b32 v{vT}, 15, v1"); k(f"v_lshrrev_b32 v{TCH}, 5, v1"); k(f"v_lshrrev_b32 v{TCH+1}, 1, v{vT}")
        k(f"v_xor_b32 v{TCH}, v{TCH}, v{TCH+1}"); k(f"v_lshlrev_b32 v{TCH}, 4, v{TCH}"); k(f"v_lshl_add_u32 v{TCH}, v{vT}, 7, v{TCH}")
        k(f"v_bfe_u32 v{TCH+1}, v1, 4, 1"); k(f"v_lshl_add_u32 v{TCH}, v{TCH+1}, 3, v{TCH}"); k(f"v_add_u32 v{vTW4[0]}, s28, v{TCH}")
        for i in range(1, 4): k(f"v_xor_b32 v{vTW4[i]}, {32*i}, v{vTW4[0]}")
        k(f"v_and_b32 v{TCH}, 7, v1"); k(f"v_lshrrev_b32 v{TCH+1}, 4, v1"); k(f"v_xor_b32 v{TCH}, v{TCH}, v{TCH+1}"); k(f"v_lshlrev_b32 v{TCH}, 4, v{TCH}")
        k(f"v_lshrrev_b32 v{TCH+1}, 3, v1"); k(f"v_lshl_add_u32 v{TCH}, v{TCH+1}, 7, v{TCH}"); k(f"v_add_u32 v{vTR}, s28, v{TCH}")
        k(f"v_xor_b32 v{vTR2}, 64, v{vTR}")
        for p in range(2): k(f"ds_read_b128 v[{RES+4*p}:{RES+4*p+3}], v{vHK} offset:{1024*p}")
    for r in range(ACC, ACC + 64):
        if not (SKR and acc(1, 0, 0) <= r < acc(1, 0, 0) + 16): k(f"v_mov_b32 v{r}, 0")
    if SKR:
        k("s_waitcnt lgkmcnt(0)")
        for p in range(2):
            for q in range(4):
                a = acc(1, 2 * p, 0) + 2 * q
                k(f"v_lshlrev_b32 v{a}, 16, v{RES+4*p+q}"); k(f"v_and_b32 v{a+1}, v{vMask}, v{RES+4*p+q}")
        for p in range(2):
            for r in range(4): k(f"v_permlane16_swap_b32 v{acc(1,2*p,0)+r}, v{acc(1,2*p+1,0)+r}")
    vm = VM()
    for t in range(NPF5, NS):
        for d in w35_dma(vW, SW, t):
            for l in d: k(l)
        k(W5ADV); vm.issue(("W", t), 2)
    k("s_lshr_b32 s27, s23, 1"); k("s_lshl_b32 s27, s27, 7"); k(f"s_add_u32 s27, s27, {WS_CNT + C5*128}")
    wait(k, 27, 32, vt=(RES, RES + 1), pr=A[1])
    k.stamp("p5_wait")
    def bld(t):
        b = BR + (t % R) * 8
        return [f"buffer_load_dwordx4 v[{b+4*j}:{b+4*j+3}], v{vBj[j]}, s[12:15], s31 offen{SC}" for j in range(2)]
    badv = "s_add_u32 s31, s31, 4096"
    for t in range(R - 1):
        for l in bld(t): k(l); vm.issue(("B", t))
        k(badv)
    def areads(t, c, buf):
        sl = t % NS
        va = vA if sl < 4 else vA2
        return [f"ds_read_b64_tr_b16 v[{A[buf]+4*i+2*tt}:{A[buf]+4*i+2*tt+1}], v{va[i]} offset:{(sl & 3)*16384 + c*8192 + tt*1024}"
                for i in range(4) for tt in range(2)]
    for l in areads(0, 0, 0): k(l)
    k.stamp("p5_go")
    texts = []
    BG = [int(x) for x in os.environ.get("BG5", "2,5").split(",")]
    order = [(t, c) for t in range(NT) for c in range(2)]
    XS2, RMA = 224, 232
    if SKO:
        assert SKR and SKF and SKX and SKA and NT - SKO >= (NT - 1) // NS * NS
        order = order[:2 * (NT - SKO)] + [(t, 0) for t in range(NT - SKO, NT)] + [(t, 1) for t in range(NT - SKO, NT)]
    def send1(p, src):
        lfast = k.lab("p5fast"); lj = k.lab("p5sent")
        st = f"buffer_store_dwordx4 v[{src+4*p}:{src+4*p+3}], v{vL}, s[12:15], s39 offen offset:{1024*p}"
        if SKF == 1: return ["s_cmp_eq_u32 s40, s41", f"s_cbranch_scc1 {lfast}", st + SC, f"s_branch {lj}", f"{lfast}:", st, f"{lj}:"]
        return [st + SC] if SKF == 2 else [st]
    def fold0_triples():
        o = []
        for q in range(8):
            a = acc(0, 0, 0) + 2 * q; b = acc(0, 0, 1) + 2 * q
            o += [f"v_add_f32 v{a}, v{a}, v{b}", f"v_add_f32 v{a+1}, v{a+1}, v{b+1}", f"v_cvt_pk_bf16_f32 v{XS2+q}, v{a}, v{a+1}"]
        return o
    visible = {0}; bseen = set()
    texts = [[] for _ in range((NT + NS - 1) // NS)]
    for idx, (t, c) in enumerate(order):
                o = texts[t // NS]
                cur = idx & 1; nxt = cur ^ 1
                nx = order[idx + 1] if idx + 1 < len(order) else None
                tail = idx - (len(order) - SKO) if SKO and idx >= len(order) - SKO else -1
                need = set(); bar = False
                if t not in bseen: need.add(("B", t)); bseen.add(t)
                if nx and nx[0] not in visible: need.add(("W", nx[0])); visible.add(nx[0]); bar = True
                if tail == 1: bar = True
                n = vm.cnt(need) if need else None
                o.append(f"s_waitcnt vmcnt({min(n, 63)}) lgkmcnt(0)" if n is not None else "s_waitcnt lgkmcnt(0)")
                if bar: o.append("s_barrier")
                rd = areads(nx[0], nx[1], nxt) if nx else []; dm = []
                if c == 1 and t + NS < NT: dm = w35_dma(vW, SW, t % NS)
                mf = []
                b = BR + (t % R) * 8
                for i in range(4):
                    for j in range(2):
                        a = acc(c, i, j)
                        mf.append(f"v_mfma_f32_16x16x32_bf16 v[{a}:{a+3}], v[{A[cur]+4*i}:{A[cur]+4*i+3}], v[{b+4*j}:{b+4*j+3}], v[{a}:{a+3}]")
                gaps = [[] for _ in mf]
                if tail == 1:
                    for i in range(4): gaps[i].append(f"ds_read_b128 v[{acc(0,i,1)}:{acc(0,i,1)+3}], v{vXR} offset:{1024*i}")
                    gaps[0] += ["s_getreg_b32 s40, hwreg(HW_REG_XCC_ID, 0, 4)", "v_readfirstlane_b32 s41, v202"]
                for q, r in enumerate(rd): gaps[min(q, len(mf) - 1)].append(r)
                if dm:
                    gaps[0].append(dm[0][0]); gaps[1].append(dm[0][1]); gaps[2].append(dm[1][0]); gaps[3].append(dm[1][1]); gaps[4].append(W5ADV)
                    vm.issue(("W", t + NS), 2)
                if c == 0 and t + R - 1 < NT:
                    bl = bld(t + R - 1)
                    gaps[BG[0]].append(bl[0]); gaps[BG[1]].append(bl[1]); gaps[BG[1]].append(badv)
                    vm.issue(("B", t + R - 1), 2)
                if SKF and SKX and t == SKT and c == 0:
                    for p in range(2): gaps[3 + 2*p].append(f"buffer_load_dwordx4 v[{TCH+4*p}:{TCH+4*p+3}], v{vL}, s[12:15], s38 offen offset:{1024*p}{SC}")
                    vm.issue(("T", 0), 2)
                if (SKA and not SKO and t == NT - 1 and c == 1) or tail == 0:
                    for i in range(4): gaps[2 + i].append(f"ds_write_b128 v{vXW}, v[{acc(0,i,1)}:{acc(0,i,1)+3}] offset:{1024*i}")
                    if SKF and not SKO:
                        gaps[0] += ["s_getreg_b32 s40, hwreg(HW_REG_XCC_ID, 0, 4)", "v_readfirstlane_b32 s41, v202"]
                if tail == 2:
                    tr = fold0_triples()
                    for q, l in enumerate(tr):
                        g = min(q // SKG, len(mf) - 1)
                        gaps[g].append(l)
                        if q in (11, 23): gaps[g] += send1(q // 12, XS2)
                for g, mm in enumerate(mf):
                    o.append(mm); o += gaps[g]
    periods(k, "p5loop", texts, 36)
    k.stamp("p5_loop")
    def xw(c):
        for i in range(4): k(f"ds_write_b128 v{vXW}, v[{acc(c,i,1)}:{acc(c,i,1)+3}] offset:{4096*c + 1024*i}")
    def xr(c):
        for i in range(4): k(f"ds_read_b128 v[{acc(c,i,1)}:{acc(c,i,1)+3}], v{vXR} offset:{4096*c + 1024*i}")
    def rres():
        if SKR: return
        for p in range(2): k(f"ds_read_b128 v[{RES+4*p}:{RES+4*p+3}], v{vHK} offset:{1024*p}")
    def padd(d, a, b): k(f"v_pk_add_f32 v[{d}:{d+1}], v[{a}:{a+1}], v[{b}:{b+1}]")
    def fold(c):
        for i in range(4):
            for r in range(0, 4, 2): padd(acc(c,i,0)+r, acc(c,i,0)+r, acc(c,i,1)+r)
        for p in range(2):
            for r in range(4):
                if not SKR: k(f"v_permlane16_swap_b32 v{acc(c,2*p,0)+r}, v{acc(c,2*p+1,0)+r}")
    XS = A[0]; RM = A[0] + 8; U = A[1]
    def send():
        if not SKF:
            for p in range(2):
                for q in range(4):
                    a = acc(0, 2 * p, 0) + 2 * q
                    k(f"v_cvt_pk_bf16_f32 v{XS+4*p+q}, v{a}, v{a+1}")
                if SKX: k(f"buffer_store_dwordx4 v[{XS+4*p}:{XS+4*p+3}], v{vL}, s[12:15], s39 offen offset:{1024*p}{SC}")
            return
        for p in range(2):
            for q in range(4):
                a = acc(0, 2 * p, 0) + 2 * q
                k(f"v_cvt_pk_bf16_f32 v{XS+4*p+q}, v{a}, v{a+1}")
        if not SKX: return
        lfast = k.lab("p5fast"); lj = k.lab("p5sent")
        if SKF == 1: k("s_cmp_eq_u32 s40, s41"); k(f"s_cbranch_scc1 {lfast}")
        if SKF != 3:
            for p in range(2): k(f"buffer_store_dwordx4 v[{XS+4*p}:{XS+4*p+3}], v{vL}, s[12:15], s39 offen offset:{1024*p}{SC}")
        if SKF == 1: k(f"s_branch {lj}"); k(f"{lfast}:")
        if SKF != 2:
            for p in range(2): k(f"buffer_store_dwordx4 v[{XS+4*p}:{XS+4*p+3}], v{vL}, s[12:15], s39 offen offset:{1024*p}")
        if SKF == 1: k(f"{lj}:")
    early = None
    if SKO:
        SKP = int(os.environ.get("SKP", "0"))
        def poll(dst):
            for p in range(2): k(f"buffer_load_dwordx4 v[{dst+4*p}:{dst+4*p+3}], v{vL}, s[12:15], s38 offen offset:{1024*p}{SC}")
        def check(src, lbl):
            k(f"v_max3_u32 v{vT}, v{src}, v{src+1}, v{src+2}")
            k(f"v_max3_u32 v203, v{src+3}, v{src+4}, v{src+5}")
            k(f"v_max3_u32 v{vT}, v{vT}, v{src+6}, v{src+7}")
            k(f"v_max_u32 v{vT}, v{vT}, v203")
            k(f"v_cmp_eq_u32 vcc, -1, v{vT}")
            k("s_cmp_eq_u64 vcc, 0"); k(f"s_cbranch_scc1 {lbl}")
        def unpack(src):
            for q in range(8):
                k(f"v_lshlrev_b32 v{U+2*q}, 16, v{src+q}"); k(f"v_and_b32 v{U+2*q+1}, v{vMask}, v{src+q}")
        if SKO == 2:
            k("s_waitcnt lgkmcnt(0)")
            for q, l in enumerate(fold0_triples()):
                k(l)
                if q in (11, 23):
                    for x in send1(q // 12, XS2): k(x)
        if SKPA & 1: poll(RMA)
        xw(1)
        k("s_waitcnt lgkmcnt(0)")
        if SKP: k.stamp("p5_snd")
        k("s_barrier")
        if SKP: k.stamp("p5_b2")
        xr(1)
        if SKPA & 2: poll(TCH)
        elif not SKPA & 1: poll(RMA)
        k("s_waitcnt lgkmcnt(0)")
        fold(1)
        gA = k.lab("p5gotA"); gB = k.lab("p5gotB"); pl = k.lab("p5poll"); jn = k.lab("p5join")
        k("s_mov_b32 s28, 0")
        if SKPA == 3:
            k("s_waitcnt vmcnt(2)"); check(RMA, gA)
            k("s_mov_b32 s28, 1")
            k("s_waitcnt vmcnt(0)"); check(TCH, gB)
        elif SKPA == 2:
            k("s_waitcnt vmcnt(0)"); check(TCH, gB)
        else:
            k("s_waitcnt vmcnt(0)"); check(RMA, gA)
        k(f"{pl}:")
        poll(RMA)
        k("s_add_u32 s28, s28, 1")
        k("s_waitcnt vmcnt(0)"); check(RMA, gA)
        k(f"s_cmp_lt_u32 s28, {SPIN_LIMIT >> 2}"); k(f"s_cbranch_scc1 {pl}")
        if SKPA & 2:
            k(f"s_branch {gA}")
            k(f"{gB}:"); unpack(TCH); k(f"s_branch {jn}")
        k(f"{gA}:"); unpack(RMA)
        k(f"{jn}:")
        k.stamp("p5_got")
        if STAMP and SKP:
            i_ = k.nst; k.nst += 1; k.stnames.append("p5_npoll")
            k("s_add_u32 s86, s86, s28"); k(f"v_writelane_b32 v255, s84, {i_}"); k(f"v_writelane_b32 v254, s86, {i_}")
        for q in range(8): padd(acc(1, 0, 0) + 2 * q, acc(1, 0, 0) + 2 * q, U + 2 * q)
    elif SKA:
        SKP = int(os.environ.get("SKP", "0"))
        k("s_waitcnt lgkmcnt(0)")
        k("s_barrier")
        if SKP: k.stamp("p5_b1")
        xr(0); xw(1)
        k("s_waitcnt lgkmcnt(4)")
        fold(0); send()
        k("s_waitcnt lgkmcnt(0)")
        if SKP: k.stamp("p5_snd")
        k("s_barrier")
        if SKP: k.stamp("p5_b2")
        xr(1); rres()
        early = lambda: (k(f"s_waitcnt lgkmcnt({0 if SKR else 2})"), fold(1), k("s_waitcnt lgkmcnt(0)") if not SKR else None)
        if not (SKX and int(os.environ.get("SKE", "0")) == 2): early(); early = None
    else:
        if SKF: k("s_getreg_b32 s40, hwreg(HW_REG_XCC_ID, 0, 4)"); k("v_readfirstlane_b32 s41, v202")
        xw(0); xw(1)
        k("s_waitcnt lgkmcnt(0)")
        k("s_barrier")
        xr(0); xr(1); rres()
        k("s_waitcnt lgkmcnt(6)")
        fold(0); send()
        k("s_waitcnt lgkmcnt(2)")
        fold(1)
        k("s_waitcnt lgkmcnt(0)")
    def addbf(src):
        if SKR and src == RES: return
        for p in range(2):
            for q in range(4):
                k(f"v_lshlrev_b32 v{U+8*p+2*q}, 16, v{src+4*p+q}")
                k(f"v_and_b32 v{U+8*p+2*q+1}, v{vMask}, v{src+4*p+q}")
        for p in range(2):
            for q in range(4):
                a = acc(1, 2 * p, 0) + 2 * q
                padd(a, a, U + 8 * p + 2 * q)
    if SKO: pass
    elif SKX:
        pl = k.lab("p5poll"); dn = k.lab("p5got")
        if not int(os.environ.get("SKE", "0")): addbf(RES)
        if int(os.environ.get("SKP", "0")): k.stamp("p5_pre")
        k("s_mov_b32 s28, 0")
        k(f"{pl}:")
        for p in range(2): k(f"buffer_load_dwordx4 v[{RM+4*p}:{RM+4*p+3}], v{vL}, s[12:15], s38 offen offset:{1024*p}{SC}")
        if int(os.environ.get("SKE", "0")):
            l1 = k.lab("p5once"); k("s_cmp_lg_u32 s28, 0"); k(f"s_cbranch_scc1 {l1}")
            if early: early()
            addbf(RES); k(f"{l1}:")
        k("s_add_u32 s28, s28, 1")
        k("s_waitcnt vmcnt(0)")
        k(f"v_max3_u32 v{vT}, v{RM}, v{RM+1}, v{RM+2}")
        k(f"v_max3_u32 v203, v{RM+3}, v{RM+4}, v{RM+5}")
        k(f"v_max3_u32 v{vT}, v{vT}, v{RM+6}, v{RM+7}")
        k(f"v_max_u32 v{vT}, v{vT}, v203")
        k(f"v_cmp_eq_u32 vcc, -1, v{vT}")
        k("s_cmp_eq_u64 vcc, 0"); k(f"s_cbranch_scc1 {dn}")
        k(f"s_cmp_lt_u32 s28, {SPIN_LIMIT >> 2}"); k(f"s_cbranch_scc1 {pl}")
        k(f"{dn}:")
        k.stamp("p5_got")
        if STAMP and int(os.environ.get("SKP", "0")):
            i_ = k.nst; k.nst += 1; k.stnames.append("p5_npoll")
            k("s_add_u32 s86, s86, s28"); k(f"v_writelane_b32 v255, s84, {i_}"); k(f"v_writelane_b32 v254, s86, {i_}")
        addbf(RM)
    else:
        addbf(RES)
    for p in range(2):
        for q in range(4):
            a = acc(1, 2 * p, 0) + 2 * q
            k(f"v_cvt_pk_bf16_f32 v{RES+4*p+q}, v{a}, v{a+1}")
            if SKR and q & 1: k(f"ds_write_b64 v{vTW4[2*p + (q >> 1)]}, v[{RES+4*p+q-1}:{RES+4*p+q}]")
        if not SKR: k(f"ds_write_b128 v{vTW[p]}, v[{RES+4*p}:{RES+4*p+3}]")
    for q in range(2): k(f"ds_read_b128 v[{RES+4*q}:{RES+4*q+3}], v{vTR2 if SKR and q else vTR} offset:{1024*q}")
    for q in range(2):
        k(f"s_waitcnt lgkmcnt({1-q})")
        k(f"buffer_store_dwordx4 v[{RES+4*q}:{RES+4*q+3}], v{vO}, s[16:19], s{33+q} offen{OUTSC}")
    k.stamp("p5_epi")

KC = 2 * math.sqrt(2 / math.pi) * math.log2(math.e)
X4 = os.environ.get("X4", "drain").split(",")
T4 = int(os.environ.get("T4", "0")); T4S = int(os.environ.get("T4S", "29")); T4P = int(os.environ.get("T4P", "2"))
def phase4(k):
    NS = 4; SLOT = SLOT4; UOFF = 7168; BOFF = BOFF4; STATS = NS * SLOT
    vA = [2, 3]; vB = [4, 5]; vD = [6, 7, 8, 9, 10]; vL16 = 11; vT = 12
    A = [16, 48]; B = [80, 96]; ACC = 112; SV = 242
    acc = lambda fi, m, j: ACC + ((fi * 2 + m) * 4 + j) * 4
    w35_setup(k, vW5, 0, vT, DF if WT5 or WDT else 0)
    if L2P:
        assert SK5 and WDT
        coords35(k, 27, 29, 28)
        k("s_and_b32 s27, s27, 3"); k("s_lshr_b32 s28, s20, 1"); k("s_lshl_b32 s28, s28, 2"); k("s_add_u32 s27, s27, s28"); k(f"s_add_u32 s27, s27, {L2T}")
        k("s_and_b32 s28, s29, 1"); k(f"s_mul_i32 s28, s28, {DF//128}"); k("s_add_u32 s27, s27, s28"); k("s_lshl_b32 s27, s27, 13")
        k("s_and_b32 s28, s20, 1"); k("s_xor_b32 s28, s28, s29"); k(f"s_mul_i32 s28, s28, {DF*128}"); k("s_add_u32 s27, s27, s28")
        k(f"s_add_u32 s46, s27, {WS_WDT}"); k("s_add_u32 s47, s46, 4096")
        k(f"v_lshlrev_b32 v252, {7 if L2P >= 3 else 6}, v1")
        if L2P == 6: k(f"s_mul_i32 s48, s20, {L2D}"); k(f"s_add_u32 s48, s48, {L2S - 4}")
        else: k("s_lshr_b32 s48, s20, 1")
    if not WDT: srd(k, 60, pWD, DF * D * 2)
    coords4(k, 23, 24, 25)
    k("s_and_b32 s25, s20, 3")
    k("s_lshr_b32 s26, s20, 2")
    k(f"v_lshlrev_b32 v{vL16}, 4, v1")
    k(f"v_lshrrev_b32 v{vT}, 4, v1")
    k(f"v_bfe_u32 v{vT+1}, v1, 2, 2")
    k(f"v_lshrrev_b32 v{vT+2}, 1, v{vT}"); k(f"v_and_b32 v{vT+3}, 1, v{vT}")
    k(f"v_lshlrev_b32 v{vT+2}, 4, v{vT+2}"); k(f"v_lshl_add_u32 v{vT+2}, v{vT+3}, 2, v{vT+2}"); k(f"v_add_u32 v{vT+2}, v{vT+2}, v{vT+1}")
    k(f"v_mul_u32_u24 v{vT+2}, 224, v{vT+2}")
    k(f"v_and_b32 v{vT+3}, 3, v1"); k(f"v_lshl_add_u32 v{vT+2}, v{vT+3}, 3, v{vT+2}")
    k("s_lshl_b32 s27, s26, 7")
    k(f"v_add_u32 v{vA[0]}, s27, v{vT+2}"); k(f"v_add_u32 v{vA[1]}, {2*SLOT}, v{vA[0]}")
    k(f"v_and_b32 v{vT+1}, 15, v1"); k(f"v_lshlrev_b32 v{vT+1}, 4, v{vT+1}"); k(f"v_lshl_add_u32 v{vT+1}, v{vT}, 9, v{vT+1}")
    k("s_lshl_b32 s27, s25, 12"); k(f"s_add_u32 s27, s27, {BOFF}")
    k(f"v_add_u32 v{vB[0]}, s27, v{vT+1}"); k(f"v_add_u32 v{vB[1]}, {2*SLOT}, v{vB[0]}")
    k("s_lshl_b32 s31, s23, 19"); k(f"s_add_u32 s31, s31, {WS_H}")
    k("s_mul_i32 s30, s24, 224"); k(f"s_add_u32 s30, s30, {NS*32*7168}")
    for r in range(ACC, ACC + 128): k(f"v_mov_b32 v{r}, 0")
    if COA & 2:
        k(f"v_lshrrev_b32 v{vT}, 5, v1"); k(f"v_lshlrev_b32 v{vT}, {13 if STL & 2 else 16}, v{vT}")
        k(f"v_and_b32 v{vT+1}, 31, v1"); k("s_lshl_b32 s27, s20, 5"); k(f"v_add_u32 v{vT+1}, s27, v{vT+1}"); k(f"v_lshl_add_u32 v{SV+8}, v{vT+1}, 2, v{vT}")
    else:
        k(f"v_and_b32 v{vT}, 1, v0"); k(f"v_lshlrev_b32 v{vT}, {13 if STL & 2 else 16}, v{vT}")
        k(f"v_lshrrev_b32 v{vT+1}, 1, v0"); k(f"v_lshl_add_u32 v{SV+8}, v{vT+1}, 2, v{vT}")
    k(f"v_lshlrev_b32 v{SV+9}, 4, v{vT+1}"); k(f"v_add_u32 v{SV+9}, {STATS}, v{SV+9}")
    k(f"s_lshl_b32 s37, s23, {14 if STL & 2 else 10}"); k(f"s_add_u32 s37, s37, {WS_ST}")
    k("s_bitcmp1_b32 s25, 1")
    k(f"s_cselect_b32 s4, s{pWU}, s{pWG}"); k(f"s_cselect_b32 s5, s{pWU+1}, s{pWG+1}")
    srd(k, 8, 4, D * DF * 2)
    lsb = k.lab("p4setB"); lsd = k.lab("p4setD")
    k("s_cmp_eq_u32 s26, 0")
    k(f"s_cbranch_scc0 {lsb}")
    for n in range(3):
        k("s_mul_i32 s27, s20, 3"); k(f"s_add_u32 s27, s27, {n}")
        k("s_lshr_b32 s28, s27, 1"); k("s_lshl_b32 s28, s28, 16"); k("s_and_b32 s29, s27, 1"); k("s_lshl_b32 s29, s29, 10"); k("s_add_u32 s28, s28, s29")
        k(f"v_add_u32 v{vD[n]}, s28, v{vL16}")
    k(f"s_mul_i32 s32, s20, 3072"); k(f"s_add_u32 s32, s32, {BOFF}")
    k(f"s_branch {lsd}")
    k(f"{lsb}:")
    k("s_and_b32 s27, s25, 1"); k("s_lshl_b32 s27, s27, 8")
    for q in range(4):
        k(f"v_add_u32 v{vT+3}, {64*q}, v1"); k(f"v_add_u32 v{vT+3}, s27, v{vT+3}")
        w4_piece_lane(k, vD[q], vT + 3, vT)
    k("s_add_u32 s27, s25, 12")
    k("s_lshr_b32 s28, s27, 1"); k("s_lshl_b32 s28, s28, 16"); k("s_and_b32 s29, s27, 1"); k("s_lshl_b32 s29, s29, 10"); k("s_add_u32 s28, s28, s29")
    k(f"v_add_u32 v{vD[4]}, s28, v{vL16}")
    k("s_lshl_b32 s33, s27, 10"); k(f"s_add_u32 s33, s33, {BOFF}")
    k("s_lshr_b32 s32, s25, 1"); k(f"s_mul_i32 s32, s32, {UOFF}"); k("s_and_b32 s27, s25, 1"); k("s_lshl_b32 s27, s27, 12"); k("s_add_u32 s32, s32, s27")
    k(f"{lsd}:")
    k("s_lshl_b32 s27, s23, 3"); k("s_lshl_b32 s28, s25, 1"); k("s_add_u32 s27, s27, s28"); k("s_mul_i32 s27, s27, 448")
    k("s_mul_i32 s28, s24, 14"); k("s_add_u32 s27, s27, s28"); k("s_lshl_b32 s28, s26, 3"); k("s_add_u32 s27, s27, s28")
    k("s_lshl_b32 s27, s27, 9"); k(f"s_add_u32 s34, s27, {WS_HM}"); k(f"s_add_u32 s35, s34, {448*512}")
    if WDT:
        k(f"v_add_u32 v{vT+1}, {C3 - 1}, v1"); k(f"v_lshlrev_b32 v{vT+1}, 7, v{vT+1}")
        k("s_lshl_b32 s27, s23, 7"); k(f"s_add_u32 s27, s27, {C4*128}")
        k("s_nop 0")
        k(f"v_writelane_b32 v{vT+1}, s27, 0")
        k(f"s_mov_b32 s27, {WS_CNT}")
        wait_multi(k, 27, 32, 9, vt=(vT, vT + 1))
    else:
        k("s_lshl_b32 s27, s23, 7"); k(f"s_add_u32 s27, s27, {WS_CNT + C4*128}")
        wait(k, 27, 32, vt=(vT, vT + 1), pr=A[1])
    k.stamp("p4_wait")
    def dma_act(var, slot):
        if var == "A":
            return [[f"s_add_u32 m0, s32, {slot*SLOT + n*1024}", f"buffer_load_dwordx4 v{vD[n]}, s[12:15], s31 offen{SC} lds"] for n in range(3)]
        return [[f"s_add_u32 m0, s33, {slot*SLOT}", f"buffer_load_dwordx4 v{vD[4]}, s[12:15], s31 offen{SC} lds"]]
    def dma_w(var, slot):
        if var == "A": return []
        return [[f"s_add_u32 m0, s32, {slot*SLOT + q*1024}", f"buffer_load_dwordx4 v{vD[q]}, s[8:11], s30 offen lds"] for q in range(4 if var == "B0" else 3)]
    advA = "s_add_u32 s31, s31, 2048"; advW = f"s_add_u32 s30, s30, {32*7168}"
    def stats_calc():
        o = []
        for i in (0, 2, 4, 6): o.append(f"v_add_f32 v{SV+i}, v{SV+i}, v{SV+i+1}")
        o += [f"v_add_f32 v{SV}, v{SV}, v{SV+2}", f"v_add_f32 v{SV+4}, v{SV+4}, v{SV+6}", f"v_add_f32 v{SV}, v{SV}, v{SV+4}"]
        if COA & 2:
            o += [f"v_mov_b32 v{SV+1}, v{SV}", "s_nop 1", f"v_permlane32_swap_b32 v{SV}, v{SV+1}", f"v_add_f32 v{SV}, v{SV}, v{SV+1}"]
        else:
            o += ["s_nop 1", f"v_add_f32_dpp v{SV}, v{SV}, v{SV} quad_perm:[1,0,3,2] row_mask:0xf bank_mask:0xf"]
        o += [f"v_mov_b32 v{SV+3}, 0x3a800000", f"v_mov_b32 v{SV+5}, 0x3727c5ac",
              f"v_fma_f32 v{SV+2}, v{SV}, v{SV+3}, v{SV+5}",
              f"v_rsq_f32 v{SV+4}, v{SV+2}",
              f"v_mov_b32 v{SV+3}, 0",
              f"v_mul_f32 v{SV+1}, {f2h(-KC)}, v{SV+4}",
              f"v_mul_f32 v{SV+5}, v{SV+4}, v{SV+4}",
              f"v_mul_f32 v{SV}, {f2h(0.044715)}, v{SV+1}",
              f"v_mul_f32 v{SV}, v{SV}, v{SV+5}",
              f"ds_write_b128 v{SV+9}, v[{SV}:{SV+3}]"]
        return o
    st_idx = {}
    def vstamp(nm):
        if nm in st_idx: k.prio(nm); k.stamp_at(st_idx[nm])
        else:
            st_idx[nm] = k.nst; k.stamp(nm)
    ljoin = k.lab("p4join")
    def body(var):
        nf = 4 if var == "A" else 3
        first = (var != "A") if T4 == 1 else (var == "A")
        vm = VM()
        for s in range(NS):
            for d in dma_act(var, s):
                for l in d: k(l)
                vm.issue(("D", s))
            k(advA)
        k("s_mov_b32 s28, s37")
        for i in range(8):
            if STL & 2:
                k(f"buffer_load_dword v{SV+i}, v{SV+8}, s[12:15], s28 offen offset:{1024*(i&3)}{SC}"); vm.issue("ST")
                if i == 3: k("s_add_u32 s28, s28, 4096")
                continue
            k(f"buffer_load_dword v{SV+i}, v{SV+8}, s[12:15], s28 offen{SC}"); vm.issue("ST")
            if i < 7: k("s_add_u32 s28, s28, 8192")
        def reads(buf, slot):
            base = slot >> 1; so = (slot & 1) * SLOT
            o = []
            def rA(fi, m):
                i = fi * 2 + m
                return [f"ds_read_b64_tr_b16 v[{A[buf]+4*i+2*t}:{A[buf]+4*i+2*t+1}], v{vA[base]} offset:{so + m*UOFF + t*8*224 + fi*32}" for t in range(2)]
            o += rA(0, 0)
            for j in range(4): o.append(f"ds_read_b128 v[{B[buf]+4*j}:{B[buf]+4*j+3}], v{vB[base]} offset:{so + (j>>1)*2048 + (j&1)*256}")
            for i in range(1, 2 * nf): o += rA(i >> 1, i & 1)
            return o
        k(f"s_waitcnt vmcnt({vm.cnt({('D', 0)})})")
        k("s_barrier")
        vstamp("p4_go")
        for l in reads(0, 0): k(l)
        NT = 32
        texts = []
        pf5 = {3: {28: [0], 29: [1, 2]}, 1: {28: [0]}, 0: {}}[NPF5]
        for per in range(NT // NS):
            o = []
            for t in range(per * NS, (per + 1) * NS):
                slot = t % NS; cur = t & 1; nxt = cur ^ 1
                rd = []; dm = []; ex = []
                if T4 and t > T4S and t + 1 < NT:
                    o.append("s_waitcnt lgkmcnt(0)")
                    rd = reads(nxt, (t + 1) % NS)
                elif t + 1 < NT:
                    need = {("D", t + 1)}
                    if T4 and t == T4S: need |= {("D", x) for x in range(t + 1, NT)}
                    if t == 3: need.add("ST")
                    o.append(f"s_waitcnt vmcnt({vm.cnt(need)}) lgkmcnt(0)")
                    o.append("s_barrier")
                    if T4 and t == T4S and first: o.append(f"s_setprio {T4P}")
                    rd = reads(nxt, (t + 1) % NS)
                else:
                    o.append("s_waitcnt lgkmcnt(0)")
                tail = []
                if t + NS < NT:
                    dm = dma_w(var, slot) + dma_act(var, slot)
                    vm.issue(("D", t + NS), len(dm))
                    tail = [advA, advW]
                for tl in pf5.get(t, []):
                    if tl < NS5 and not T4:
                        dm += [list(x) for x in w35_dma(vW5, SW5, tl)]
                        dm[-1].append(W5ADV)
                        vm.issue("PF5", 2)
                    elif tl < NS5 and first:
                        tail = tail + [W5ADV]
                    elif tl < NS5:
                        assert WDT or WT5
                        sg = "add" if var == "A" else "sub"
                        own = [list(x) for x in w35_dma(vW5, SW5, tl)]
                        oth = [[x[0].replace("s51", "s7"), x[1].replace("s50", "s6")] for x in w35_dma(vW5, SW5, tl)]
                        oth[0] = [f"s_{sg}_u32 s6, s50, 8192", f"s_{sg}_u32 s7, s51, 8192"] + oth[0]
                        oth[0] = [oth[0][:3], oth[0][3]]
                        oth[-1].append(W5ADV)
                        dm += own + oth
                        vm.issue("PF5", 4)
                if t == 3: ex = stats_calc()
                if L2P in (1, 4) and t == L2S:
                    nl = 2 if L2P == 1 else 1
                    ex = [f"buffer_load_dword v253, v252, s[12:15], s{46+h} offen{SC}" for h in range(nl)]; vm.issue("L2P", nl)
                if L2P in (2, 3) and L2S <= t < L2S + 4:
                    nl = 2 if L2P == 2 else 1
                    lsk = k.lab("nol2p")
                    ex = ["\n".join([f"s_cmp_lg_u32 s48, {t - L2S}", f"s_cbranch_scc1 {lsk}"] + [f"buffer_load_dword v253, v252, s[12:15], s{46+h} offen{SC}" for h in range(nl)] + [f"{lsk}:"])]
                    vm.issue("L2P", nl, certain=False)
                if t == JT4 and JIT & 8:
                    ex = jit("L_p4tail", 27, 13); vm.issue("CP")
                mf = []
                for i in range(2 * nf):
                    for j in range(4):
                        a = acc(i >> 1, i & 1, j)
                        mf.append(f"v_mfma_f32_16x16x32_bf16 v[{a}:{a+3}], v[{A[cur]+4*i}:{A[cur]+4*i+3}], v[{B[cur]+4*j}:{B[cur]+4*j+3}], v[{a}:{a+3}]")
                n = len(mf)
                gaps = [[] for _ in mf]
                for q, r in enumerate(rd): gaps[q].append(r)
                if dm:
                    stp = (n - 3) // len(dm)
                    for q, d in enumerate(dm):
                        g = 1 + stp * q
                        if isinstance(d[0], list): gaps[g] += d[0]
                        else: gaps[g].append(d[0])
                        gaps[g + 1] += d[1:]
                    gaps[n - 1] += tail
                elif tail: gaps[n - 1] += tail
                for q, l in enumerate(ex): gaps[min(4 + q, n - 1)].append(l)
                if L2P == 6 and 1 <= per < NT // NS - 1:
                    lsk = f"L_nol2p_{var}_{t % NS}"
                    gaps[L2G[0]] += [f"s_lshl2_add_u32 s49, s36, {t % NS}", "s_cmp_lg_u32 s49, s48", f"s_cbranch_scc1 {lsk}", f"buffer_load_dword v253, v252, s[12:15], s46 offen{SC}", f"{lsk}:"]
                    vm.issue("L2P", 1, certain=False)
                if L2P == 5:
                    assert NPF5 == 3 and not T4
                    for (g, cls) in {29: [(n - 1, 0)], 30: [(L2G[0], 1), (n - 1 - L2G[1], 2)], 31: [(L2G[2], 3)]}.get(t, []):
                        lsk = k.lab("nol2p")
                        gaps[g] += [f"s_cmp_lg_u32 s48, {cls}", f"s_cbranch_scc1 {lsk}", f"buffer_load_dword v253, v252, s[12:15], s46 offen{SC}", f"{lsk}:"]
                        vm.issue("L2P", 1, certain=False)
                for g, mm in enumerate(mf):
                    o.append(mm); o += gaps[g]
            texts.append(o)
        periods(k, f"p4{var}", texts, 36)
        if var == "A" and JIT & 8: k("L_p4tail:")
        vstamp("p4_loop")
        ST = 16; TT = 32
        k(f"v_and_b32 v{vT}, 15, v1"); k(f"v_lshlrev_b32 v{vT}, 4, v{vT}")
        k("s_lshl_b32 s27, s25, 10"); k(f"s_add_u32 s27, s27, {STATS}"); k(f"v_add_u32 v{vT}, s27, v{vT}")
        for j in range(4): k(f"ds_read_b128 v[{ST+4*j}:{ST+4*j+3}], v{vT} offset:{256*j}")
        nd = 1 if L2P == 5 else 0
        k(f"s_waitcnt vmcnt({nd}) lgkmcnt(0)")
        if "drain" in X4: k(f"s_waitcnt vmcnt({nd})"); k("s_barrier")
        if "drain0" in X4: k("s_waitcnt vmcnt(0)")
        if "bar" in X4: k("s_barrier")
        if "adrain" in X4 and var == "A": k("s_waitcnt vmcnt(0)")
        if "bdrain" in X4 and var != "A": k("s_waitcnt vmcnt(0)")
        nopk = ("anopk" in X4 and var == "A") or ("bnopk" in X4 and var != "A")
        def pk(op, d, a, b, c=None, sel=None):
            if not nopk:
                x = f"v_pk_{op}_f32 v[{d}:{d+1}], v[{a}:{a+1}], v[{b}:{b+1}]"
                if c is not None: x += f", v[{c}:{c+1}] " + sel
                k(x); return
            for h in range(2):
                if c is None: k(f"v_mul_f32 v{d+h}, v{a+h}, v{b+h}")
                elif sel.startswith("op_sel:[0,0,1]"): k(f"v_fma_f32 v{d+h}, v{a+h}, v{b}, v{b+1}")
                else: k(f"v_fma_f32 v{d+h}, v{a+h}, v{b}, v{b}")
        for fi in range(nf):
            for p in range(2):
                gi = fi * 2 + p
                PK = TT + 16 + 4 * (gi & 3)
                T = TT + 8 * (gi & 1)
                prs = [(2 * p + jj, h) for jj in range(2) for h in range(2)]
                P = lambda r: f"v[{r}:{r+1}]"
                for q, (j, h) in enumerate(prs):
                    g = acc(fi, 0, j) + 2 * h
                    pk("mul", T+2*q, g, g)
                for q, (j, h) in enumerate(prs):
                    c = ST + 4 * j
                    pk("fma", T+2*q, T+2*q, c, c, "op_sel:[0,0,1] op_sel_hi:[1,0,1]")
                for q, (j, h) in enumerate(prs):
                    g = acc(fi, 0, j) + 2 * h
                    pk("mul", T+2*q, T+2*q, g)
                for q, (j, h) in enumerate(prs):
                    g = acc(fi, 0, j) + 2 * h; u = acc(fi, 1, j) + 2 * h
                    k(f"v_exp_f32 v{T+2*q}, v{T+2*q}"); k(f"v_exp_f32 v{T+2*q+1}, v{T+2*q+1}")
                    pk("mul", u, u, g)
                for q, (j, h) in enumerate(prs):
                    c = ST + 4 * j + 2
                    pk("fma", T+2*q, T+2*q, c, c, "op_sel:[0,0,0] op_sel_hi:[1,0,0]")
                for q, (j, h) in enumerate(prs):
                    k(f"v_rcp_f32 v{T+2*q}, v{T+2*q}"); k(f"v_rcp_f32 v{T+2*q+1}, v{T+2*q+1}")
                for q, (j, h) in enumerate(prs):
                    u = acc(fi, 1, j) + 2 * h
                    pk("mul", u, u, T+2*q)
                for q, (j, h) in enumerate(prs):
                    u = acc(fi, 1, j) + 2 * h
                    k(f"v_cvt_pk_bf16_f32 v{PK+q}, v{u}, v{u+1}")
                k(f"v_permlane16_swap_b32 v{PK}, v{PK+2}")
                k(f"v_permlane16_swap_b32 v{PK+1}, v{PK+3}")
                k(f"buffer_store_dwordx4 v[{PK}:{PK+3}], v{vL16}, s[12:15], s{34+p} offen offset:{1024*fi}{SC}")
        if T4 and first: k("s_setprio 0")
        vstamp("p4_epi")
        if var != "B1": k(f"s_branch {ljoin}")
    lB = k.lab("p4B"); lB1 = k.lab("p4B1")
    k("s_cmp_eq_u32 s26, 0")
    k(f"s_cbranch_scc0 {lB}")
    body("A")
    k(f"{lB}:")
    k("s_bitcmp1_b32 s25, 0")
    k(f"s_cbranch_scc1 {lB1}")
    body("B0")
    k(f"{lB1}:")
    body("B1")
    k(f"{ljoin}:")
    k("s_lshl_b32 s27, s23, 7"); k(f"s_add_u32 s27, s27, {WS_CNT + C5*128}")
    signal(k, 27, vt=(vT, vT + 1))
    k.stamp("p4_sig")

CPF = int(os.environ.get("CPF", "1")); CPFW = int(os.environ.get("CPFW", "0"))
def mk():
    k = G(NAME, nvgpr=256, accum=256, total=256)
    lend = "L_end"
    k("s_cmp_ge_u32 s2, 256")
    k(f"s_cbranch_scc1 {lend}")
    if int(os.environ.get("PERM", "0")):
        k("s_and_b32 s3, s2, 31"); k("s_lshl_b32 s3, s3, 3"); k("s_lshr_b32 s2, s2, 5"); k("s_or_b32 s2, s2, s3")
    if os.environ.get("SCR"):
        k("s_and_b32 s3, s2, 7"); k("s_lshl_b32 s3, s3, 5"); k("s_lshr_b32 s2, s2, 3"); k("s_or_b32 s2, s2, s3")
    k("s_load_dwordx16 s[64:79], s[0:1], 0")
    k("s_load_dwordx4 s[80:83], s[0:1], 64")
    k("v_and_b32 v1, 63, v0")
    k("v_lshrrev_b32 v2, 6, v0")
    k("s_nop 0")
    k("v_readfirstlane_b32 s20, v2")
    k.stamp("start")
    if CPF:
        k("s_getpc_b64 s[44:45]")
        k("L_cpf_pc:")
        k("s_mov_b32 s46, L_end-L_cpf_pc")
        k("s_mov_b32 s47, 0x20000")
        if CPF == 1:
            lc = k.lab("nocpf")
            k("s_lshr_b32 s3, s2, 3"); k("s_lshl_b32 s3, s3, 11")
            k(f"s_cmp_lg_u32 s20, {CPFW}"); k(f"s_cbranch_scc1 {lc}")
            k("v_lshlrev_b32 v210, 5, v1"); k("v_add_u32 v210, s3, v210")
            k("buffer_load_dword v211, v210, s[44:47], 0 offen")
            k(f"{lc}:")
        elif CPF == 2:
            k("v_lshlrev_b32 v210, 6, v0"); k("s_mov_b32 s3, 32768")
            k("buffer_load_dword v211, v210, s[44:47], 0 offen")
            k("buffer_load_dword v212, v210, s[44:47], s3 offen")
        elif CPF == 3:
            k("s_lshr_b32 s3, s2, 3"); k("s_and_b32 s3, s3, 3"); k("s_lshl_b32 s3, s3, 14")
            k("v_lshlrev_b32 v210, 5, v0")
            k("buffer_load_dword v211, v210, s[44:47], s3 offen")
    ldone = "L_done"
    phs = [phase1, phase2, phase3k if SK3 else lambda k: phase35(k, "wo"), phase4, phase5k if SK5 else lambda k: phase35(k, "down")]
    for i, ph in enumerate(phs[:UPTO]): ph(k)
    if os.environ.get("ENDW"): k("s_waitcnt vmcnt(0)")
    k.stamp("end")
    k.stamp_out()
    k("s_waitcnt vmcnt(0)")
    k(f"{lend}:")
    k("s_endpgm")
    return k, ("mk", 256, 512, LDS_BYTES)

if __name__ == "__main__":
    import sys
    sys.path.insert(0, "gen")
    from build import header
    k, _ = mk()
    o = header()
    o.append(f"; @launch grid=(256,1,1) block=(512,1,1) lds={LDS_BYTES}")
    if STAMP: o.append("; stamps: " + " ".join(k.stnames))
    o.append('.amdgcn_target "amdgcn-amd-amdhsa--gfx950"')
    o.append('.text')
    o.append(k.text())
    o.append('.section .rodata,"a"')
    o.append(k.desc())
    open(sys.argv[1], "w").write("\n".join(o) + "\n")
    print("wrote", sys.argv[1], "instrs", sum(1 for l in k.lines if l.startswith("  ")))
```

```python
from asmlib import K, srd
from common import *
import os, struct, math
STAMP = bool(int(os.environ.get("STAMP", "0")))
UPTO = int(os.environ.get("UPTO", "5"))
NAME = "sequential_preLN__mha_block__glu_gated_geglu__prompt_kernel"
WS_TS = 0x2800000
SC = " sc1"
LDS_BYTES = 163840
pX, pWQKV, pWO, pBX, pWG, pWU, pWD, pOUT, pDBG, pWS = [64 + 2 * i for i in range(10)]
C2, C3, C4, C5 = 0, 16, 24, 32
SPIN_LIMIT = 0x40000
RAMP = int(os.environ.get("RAMP", "1"))
QKS = int(os.environ.get("QKS", "0"))
P1M = int(os.environ.get("P1M", "0"))
DL1 = int(os.environ.get("DL1", "0"))
DLS = int(os.environ.get("DLS", "3"))
assert not DL1 or (P1M and not QKS and not int(os.environ.get("HOIST", "0")))
DLT = int(os.environ.get("DLT", "12"))
SK3 = int(os.environ.get("SK3", "0"))
R3K = int(os.environ.get("R3K", "5")); S3O = 3; S3T = int(os.environ.get("S3T", "1"))
WS_XI3 = 0x4000000; WS_XM3 = 0x4400000
C2F = 48; WS_XID1 = 0x3C80000; FLAGOFF = 2112
XCCR = "hwreg(HW_REG_XCC_ID, 0, 4)"
PFW = int(os.environ.get("PFW", "1")); PFI = int(os.environ.get("PFI", "0"))
JIT = int(os.environ.get("JIT", "0"))
def jit(label, sreg, vdst):
    return [f"s_mov_b32 s{sreg}, {label}-L_cb", f"buffer_load_dword v{vdst}, v252, s[80:83], s{sreg} offen"]
def f2h(x): return hex(struct.unpack('<I', struct.pack('<f', x))[0])

class G(K):
    def __init__(s, *a, **kw):
        super().__init__(*a, **kw); s.nl = 0; s.nst = 0; s.stnames = []
    def lab(s, base):
        s.nl += 1; return f"L_{base}_{s.nl}"
    def prio(s, nm):
        ph = int(nm[1]) if nm[0] == "p" and nm[1].isdigit() else 0
        if not (PRIO >> ph) & 1: return
        if nm.endswith("_go"):
            l = s.lab("prio")
            s("s_cselect_b32 s96, 1, 0"); s("s_cmp_ge_u32 s20, 4"); s(f"s_cbranch_scc{PRH} {l}"); s("s_setprio 1"); s(f"{l}:"); s("s_cmp_lg_u32 s96, 0")
        elif nm.endswith("_loop"): s("s_setprio 0")
    def stamp(s, nm):
        s.prio(nm)
        if not STAMP: return
        i = s.nst; s.nst += 1; s.stnames.append(nm)
        s("s_memrealtime s[84:85]"); s("s_memtime s[86:87]"); s("s_waitcnt lgkmcnt(0)")
        s(f"v_writelane_b32 v255, s84, {i}"); s(f"v_writelane_b32 v254, s86, {i}")
    def stamp_at(s, i):
        if not STAMP: return
        s("s_memrealtime s[84:85]"); s("s_memtime s[86:87]"); s("s_waitcnt lgkmcnt(0)")
        s(f"v_writelane_b32 v255, s84, {i}"); s(f"v_writelane_b32 v254, s86, {i}")
    def stamp_out(s):
        if not STAMP: return
        s("s_lshl_b32 s84, s2, 3"); s("s_add_u32 s84, s84, s20"); s("s_lshl_b32 s84, s84, 9")
        s(f"s_add_u32 s84, s84, {WS_TS}")
        s("v_lshlrev_b32 v253, 2, v1")
        s("buffer_store_dword v255, v253, s[12:15], s84 offen")
        s("buffer_store_dword v254, v253, s[12:15], s84 offen offset:256")
        s("s_waitcnt vmcnt(0)")

PRIO = int(os.environ.get("PRIO", "0")); PRH = int(os.environ.get("PRH", "0"))
class VM:
    def __init__(s): s.q = []; s.c = []
    def issue(s, tag, n=1, certain=True): s.q += [tag] * n; s.c += [certain] * n
    def cnt(s, tags):
        last = -1
        for i, t in enumerate(s.q):
            if t in tags: last = i
        return sum(1 for c in s.c[last + 1:] if c) if last >= 0 else None

def periods(k, name, texts, cnt_sgpr):
    i = 0; n = len(texts)
    while i < n:
        j = i
        while j + 1 < n and texts[j + 1] == texts[i]: j += 1
        rep = j - i + 1
        if rep > 1:
            l = k.lab(name)
            k(f"s_mov_b32 s{cnt_sgpr}, 0")
            k(f"{l}:")
            for x in texts[i]: k(x)
            k(f"s_add_u32 s{cnt_sgpr}, s{cnt_sgpr}, 1")
            k(f"s_cmp_lt_u32 s{cnt_sgpr}, {rep}")
            k(f"s_cbranch_scc1 {l}")
        else:
            for x in texts[i]: k(x)
        i = j + 1

PROG = int(os.environ.get("PROG", "0"))
def signal(k, sline, vt=(14, 15), val="1"):
    k("s_waitcnt vmcnt(0)")
    k("s_barrier")
    l = k.lab("nosig")
    k("s_cmp_lg_u32 s20, 0"); k(f"s_cbranch_scc1 {l}")
    k("s_mov_b64 exec, 1")
    k(f"v_mov_b32 v{vt[0]}, {val}"); k(f"v_mov_b32 v{vt[1]}, 0")
    k(f"buffer_atomic_add v{vt[0]}, v{vt[1]}, s[12:15], s{sline} offen sc1")
    k("s_mov_b64 exec, -1")
    k(f"{l}:")

PD = int(os.environ.get("PD", "1")); PSL = int(os.environ.get("PSL", "6"))
def wait(k, sline, target, vt=(14, 15), pr=None, fld=None):
    done = k.lab("wdone"); spin = k.lab("wspin")
    k("s_cmp_lg_u32 s20, 0"); k(f"s_cbranch_scc1 {done}")
    k(f"v_mov_b32 v{vt[1]}, 0")
    k("s_mov_b32 s28, 0")
    if PD == 1 or pr is None:
        k(f"{spin}:")
        k(f"buffer_load_dword v{vt[0]}, v{vt[1]}, s[12:15], s{sline} offen sc1")
        k("s_add_u32 s28, s28, 1")
        k("s_waitcnt vmcnt(0)")
        k(f"v_readfirstlane_b32 s29, v{vt[0]}")
        if fld is not None: k(f"s_and_b32 s29, s29, s{fld}")
        k(f"s_cmp_eq_u32 s29, {target}"); k(f"s_cbranch_scc1 {done}")
        k(f"s_cmp_gt_u32 s28, {SPIN_LIMIT}"); k(f"s_cbranch_scc1 {done}")
        k("s_sleep 1")
        k(f"s_branch {spin}")
    else:
        ld = lambda i: k(f"buffer_load_dword v{pr+i}, v{vt[1]}, s[12:15], s{sline} offen sc1")
        for i in range(PD):
            ld(i)
            if i < PD - 1: k(f"s_sleep {PSL}")
        k(f"{spin}:")
        for i in range(PD):
            k(f"s_waitcnt vmcnt({PD-1})")
            k(f"v_readfirstlane_b32 s29, v{pr+i}")
            k(f"s_cmp_eq_u32 s29, {target}"); k(f"s_cbranch_scc1 {done}")
            ld(i)
        k("s_add_u32 s28, s28, 1")
        k(f"s_cmp_gt_u32 s28, {SPIN_LIMIT}"); k(f"s_cbranch_scc0 {spin}")
    k(f"{done}:")
    k("s_barrier")

def wait_multi(k, sline, target, n, vt):
    done = k.lab("wdone"); spin = k.lab("wspin"); dx = k.lab("wdx")
    k("s_cmp_lg_u32 s20, 0"); k(f"s_cbranch_scc1 {done}")
    k(f"s_mov_b64 exec, {hex((1 << n) - 1)}")
    k("s_mov_b32 s28, 0")
    k(f"{spin}:")
    k(f"buffer_load_dword v{vt[0]}, v{vt[1]}, s[12:15], s{sline} offen sc1")
    k("s_add_u32 s28, s28, 1")
    k("s_waitcnt vmcnt(0)")
    k(f"v_cmp_ne_u32 vcc, {target}, v{vt[0]}")
    k("s_cmp_eq_u64 vcc, 0"); k(f"s_cbranch_scc1 {dx}")
    k(f"s_cmp_gt_u32 s28, {SPIN_LIMIT}"); k(f"s_cbranch_scc1 {dx}")
    k("s_sleep 1")
    k(f"s_branch {spin}")
    k(f"{dx}:")
    k("s_mov_b64 exec, -1")
    k(f"{done}:")
    k("s_barrier")

def wdma_lane(k, vdst, rowbytes, t):
    k(f"v_lshrrev_b32 v{t}, 3, v1"); k(f"v_and_b32 v{t+1}, 7, v1")
    k(f"v_lshrrev_b32 v{t+2}, 2, v{t}"); k(f"v_and_b32 v{t+3}, 3, v{t}")
    k(f"v_lshl_add_u32 v{t+2}, v{t+2}, 3, v{t+3}")
    k(f"v_mul_u32_u24 v{t+2}, {rowbytes}, v{t+2}")
    k(f"v_lshrrev_b32 v{t+3}, 1, v{t+1}"); k(f"v_lshrrev_b32 v{t}, 1, v{t}")
    k(f"v_xor_b32 v{t+3}, v{t+3}, v{t}")
    k(f"v_and_b32 v{t+1}, 1, v{t+1}")
    k(f"v_lshl_add_u32 v{t+3}, v{t+3}, 1, v{t+1}")
    k(f"v_lshl_add_u32 v{vdst}, v{t+3}, 4, v{t+2}")

STL = int(os.environ.get("STL", "0"))
ESIG = int(os.environ.get("ESIG", "0"))
COA = int(os.environ.get("COA", "15"))
HOIST = int(os.environ.get("HOIST", "0")); TST = int(os.environ.get("TST", "0"))
def hoisted_tail(k, o, step, vm, R):
    PL, RMR, ONE, vP, vZ, vL16, SQ, CQ, QS, VS, vVO = [R[x] for x in ("PL", "RMR", "ONE", "vP", "vZ", "vL16", "SQ", "CQ", "QS", "VS", "vVO")]
    r0, r1 = 198, 199
    vSt = 200; vCs = 201; vTok = 203; vG = 202
    v17, v18, v19 = 209, 212, 204
    v20 = [205, 206, 207, 208]; v23 = [v17, 213, 214, 215]
    tA, tB = 216, 218
    ad = []
    ad += [f"v_lshrrev_b32 v{vSt}, 2, v0", f"v_lshlrev_b32 v{vSt}, 2, v{vSt}"]
    ad += [f"v_min_u32 v{vCs}, 191, v0", f"v_lshlrev_b32 v{vCs}, 2, v{vCs}"]
    ad += [f"v_and_b32 v{vTok}, 15, v1", "s_lshl_b32 s27, s25, 8", "s_lshl_b32 s28, s26, 6", "s_add_u32 s28, s28, s27",
           f"v_lshlrev_b32 v{tA}, 2, v{vTok}", f"v_add_u32 v{v17}, s28, v{tA}", f"v_lshrrev_b32 v{vG}, 4, v1", f"v_lshlrev_b32 v{v19}, 4, v{vG}",
           f"v_add_u32 v{v20[0]}, s28, v{v19}", "s_lshl_b32 s29, s26, 6", "s_add_u32 s29, s29, 1024",
           f"v_add_u32 v{v19}, s29, v{v19}", f"v_add_u32 v{v18}, s29, v{tA}"]
    for jj in range(1, 4):
        ad += [f"v_xor_b32 v{v20[jj]}, {jj<<6}, v{v20[0]}", f"v_xor_b32 v{v23[jj]}, {jj<<6}, v{v17}"]
    ad += ["s_lshl_b32 s27, s23, 2", "s_lshl_b32 s28, s25, 1", "s_add_u32 s27, s27, s28", "s_lshl_b32 s27, s27, 16",
           "s_lshl_b32 s28, s24, 12", "s_add_u32 s27, s27, s28", "s_lshl_b32 s28, s26, 10", "s_add_u32 s27, s27, s28",
           "s_lshr_b32 s42, s26, 1", "s_lshl_b32 s28, s42, 16", "s_add_u32 s35, s27, s28", "s_xor_b32 s28, s28, 0x10000", "s_add_u32 s37, s27, s28",
           f"s_add_u32 s36, s35, {WS_K}", f"s_add_u32 s38, s37, {WS_K}", f"s_add_u32 s35, s35, {WS_Q}", f"s_add_u32 s37, s37, {WS_Q}",
           "s_lshl_b32 s27, s24, 1", "s_add_u32 s27, s27, s42", "s_lshl_b32 s27, s27, 7",
           "s_lshl_b32 s28, s23, 3", "s_add_u32 s27, s27, s28", "s_lshl_b32 s28, s25, 2", "s_add_u32 s27, s27, s28", "s_lshl_b32 s27, s27, 10",
           "s_and_b32 s43, s26, 1", "s_lshl_b32 s28, s43, 8", "s_add_u32 s27, s27, s28", f"s_add_u32 s27, s27, {WS_VT}",
           "s_lshl_b32 s28, s42, 11", "s_add_u32 s39, s27, s28", "s_xor_b32 s28, s28, 2048", "s_add_u32 s40, s27, s28",
           f"v_lshrrev_b32 v{tA}, 5, v1", f"v_xor_b32 v{tA}, s43, v{tA}", f"v_lshlrev_b32 v{tA}, 10, v{tA}",
           f"v_bfe_u32 v{tB}, v1, 4, 1", f"v_lshl_add_u32 v{tA}, v{tB}, 9, v{tA}", f"v_lshl_add_u32 v{vVO}, v{vTok}, 4, v{tA}",
           "s_lshl_b32 s28, s43, 8", f"v_xor_b32 v{vL16}, s28, v{vL16}", "s_mov_b32 s44, 0x3e8293ee"]
    assert not QKS
    h = len(ad) // 2
    HV = int(os.environ.get("HV", "8")); HP = int(os.environ.get("HP", "11"))
    assert 8 <= HV < HP <= 13
    def chk(o_):
        rdy = k.lab("p1rdy"); spin = k.lab("p1spin")
        k(f"s_waitcnt vmcnt({vm.cnt({'VP', 'RMR'})})")
        k(f"v_cmp_eq_u32 vcc, 128, v{vP}")
        k("s_cmp_eq_u64 vcc, -1")
        k(f"s_cbranch_scc1 {rdy}")
        k("s_mov_b32 s28, 0")
        k(f"{spin}:")
        k("s_add_u32 s28, s28, 1")
        k(f"s_cmp_gt_u32 s28, {SPIN_LIMIT}")
        k(f"s_cbranch_scc1 {rdy}")
        k("s_sleep 2")
        k(f"buffer_load_dword v{vP}, v196, s[60:63], 0 offen sc1")
        k("s_waitcnt vmcnt(0)")
        k(f"v_cmp_eq_u32 vcc, 128, v{vP}")
        k("s_cmp_eq_u64 vcc, -1")
        k(f"s_cbranch_scc0 {spin}")
        k(f"{rdy}:")
    ld = []
    ld.append([f"v_and_b32 v{r0}, 3, v0", f"v_lshlrev_b32 v{r0}, 16, v{r0}", f"v_lshrrev_b32 v{r1}, 2, v0", f"v_lshl_add_u32 v{tB}, v{r1}, 3, v{r0}",
               "s_lshl_b32 s27, s23, 10", f"s_add_u32 s27, s27, {WS_ST1}"])
    for i in range(4):
        ld.append([f"buffer_load_dwordx2 v[{PL+2*i}:{PL+2*i+1}], v{tB}, s[12:15], s27 offen{SC}"] + (["s_add_u32 s27, s27, 16384"] if i < 3 else []))
    ld.append([f"s_mul_i32 s27, s24, {16*768}", f"s_add_u32 s27, s27, {WS_CS1}"])
    for i in range(16):
        ld.append([f"buffer_load_dword v{PL+8+i}, v{vCs}, s[12:15], s27 offen offset:{(i % 4) * 768}{SC}"] + ([f"s_add_u32 s27, s27, {4*768}"] if i % 4 == 3 and i < 15 else []))
    adq = [ad[:h], ad[h:]]
    for t in range(8, 14):
        if t == HV:
            k(f"buffer_load_dword v{vP}, v196, s[60:63], 0 offen sc1"); vm.issue("VP")
            k("s_lshl_b32 s27, s2, 13")
            k(f"buffer_load_dwordx4 v[{RMR}:{RMR+3}], v197, s[88:91], s27 offen"); vm.issue("RMR")
        if t == 12 and JIT & 1:
            for l in jit("L_p1tail", 27, 211): k(l)
            vm.issue("CP")
        if t == HP:
            step(o, t, 0, pre=chk, inj=ld, inj0=0)
            vm.issue("PART", 20)
        else:
            step(o, t, 0, inj=adq.pop(0) if adq and t >= HV else None, inj0=0)
        if TST and t == HP: k.stamp(f"t{t}_0")
        if t < 13: step(o, t, 1, inj=adq.pop(0) if adq and t >= HV else None, inj0=0)
        if TST and t < 13: k.stamp(f"t{t}")
    assert not adq
    rs = [f"v_mov_b32 v{r0}, 0"] + [f"v_dot2c_f32_bf16 v{r0}, v{RMR+r}, v{ONE}" for r in range(4)]
    rs += [f"v_add_f32_dpp v{r0}, v{r0}, v{r0} row_ror:{ro} row_mask:0xf bank_mask:0xf" for ro in (8, 4, 2, 1)]
    for sw in ("v_permlane16_swap_b32", "v_permlane32_swap_b32"):
        rs += [f"v_mov_b32 v{r1}, v{r0}", f"{sw} v{r0}, v{r1}", f"v_add_f32 v{r0}, v{r0}, v{r1}"]
    rs += ["s_lshl_b32 s27, s20, 2", "s_add_u32 s27, s27, 2048", f"v_mov_b32 v{r1}, s27", f"ds_write_b32 v{r1}, v{r0}"]
    step(o, 13, 1, inj=rs, inj0=0)
    if TST: k.stamp("t13")
    st = [f"v_add_f32 v{PL}, v{PL}, v{PL+2}", f"v_add_f32 v{PL+1}, v{PL+1}, v{PL+3}", f"v_add_f32 v{PL+4}, v{PL+4}, v{PL+6}", f"v_add_f32 v{PL+5}, v{PL+5}, v{PL+7}",
          f"v_add_f32 v{PL}, v{PL}, v{PL+4}", f"v_add_f32 v{PL+1}, v{PL+1}, v{PL+5}"]
    cs = [f"v_add_f32 v{PL+8+i}, v{PL+8+i}, v{PL+8+i+w}" for w in (8, 4, 2, 1) for i in range(w)]
    lm = k.lab("nomx")
    ch = []
    for qp in ("[1,0,3,2]", "[2,3,0,1]"):
        ch += [f"v_add_f32_dpp v{PL}, v{PL}, v{PL} quad_perm:{qp} row_mask:0xf bank_mask:0xf",
               f"v_add_f32_dpp v{PL+1}, v{PL+1}, v{PL+1} quad_perm:{qp} row_mask:0xf bank_mask:0xf"]
    ch += [f"v_mul_f32 v{PL}, 0x3a800000, v{PL}", f"v_mul_f32 v{PL+1}, 0x3a800000, v{PL+1}",
           ["s_cmp_lg_u32 s24, 0", f"s_cbranch_scc1 {lm}", "s_lshl_b32 s27, s23, 9", f"s_add_u32 s27, s27, {WS_MX}",
            f"buffer_store_dword v{PL}, v{vSt}, s[12:15], s27 offen{SC}", f"{lm}:"],
           f"v_fma_f32 v{PL+1}, -v{PL}, v{PL}, v{PL+1}", f"v_max_f32 v{PL+1}, 0, v{PL+1}", f"v_add_f32 v{PL+1}, 0x3727c5ac, v{PL+1}",
           f"v_rsq_f32 v{PL+1}, v{PL+1}", f"v_mul_f32 v{PL+2}, v{PL}, v{PL+1}", f"v_sub_f32 v{PL+2}, 0, v{PL+2}",
           f"ds_write_b32 v{vSt}, v{PL+1}", f"ds_write_b32 v{vSt}, v{PL+2} offset:512"]
    mix = list(st)
    ci = 0
    for x in ch:
        mix.append(x)
        if ci < len(cs): mix.append(cs[ci]); ci += 1
    mix += cs[ci:]
    mix.append(f"ds_write_b32 v{vCs}, v{PL+8} offset:1024")
    def wpart(o_): k(f"s_waitcnt vmcnt({vm.cnt({'PART'})})")
    step(o, 14, 0, pre=wpart, inj=mix, inj0=0)
    if TST: k.stamp("t14_0")
    vm.issue("MX", 1, certain=False)
    rd = [f"ds_read2_b32 v[{SQ+2*jj}:{SQ+2*jj+1}], v{v23[jj]} offset0:0 offset1:128" for jj in range(4)]
    rd += [f"ds_read_b128 v[{CQ}:{CQ+3}], v{v19}", f"ds_read_b128 v[{CQ+4}:{CQ+7}], v{v19} offset:256", f"ds_read_b32 v152, v{v18} offset:512"]
    for jj in range(4):
        rd += [f"ds_read_b128 v[{VS[jj]}:{VS[jj]+3}], v{v20[jj]}", f"ds_read_b128 v[{VS[jj]+4}:{VS[jj]+7}], v{v20[jj]} offset:512"]
    RW = 56
    rd += [f"ds_read_b128 v[{RW}:{RW+3}], v{vZ} offset:2048", f"ds_read_b128 v[{RW+4}:{RW+7}], v{vZ} offset:2064"]
    step(o, 14, 1, inj=rd, inj0=4)
    if TST: k.stamp("t14")
    q = []
    for jj in range(4):
        q += [f"v_mul_f32 v{QS+2*jj}, s44, v{SQ+2*jj}", f"v_mul_f32 v{QS+2*jj+1}, s44, v{SQ+2*jj+1}"]
    l7 = k.lab("norm")
    b7 = ["s_cmp_lg_u32 s20, 7", f"s_cbranch_scc1 {l7}"]
    for r in range(4):
        b7 += [f"v_add_f32 v{RW+2*r}, v{RW+2*r}, v{RW+2*r+1}"]
    for r in range(4):
        b7 += [f"v_mul_f32 v{RW+2*r}, 0x3a800000, v{RW+2*r}"]
    b7 += [f"v_cvt_pk_bf16_f32 v{r0}, v{RW}, v{RW+2}", f"v_cvt_pk_bf16_f32 v{r1}, v{RW+4}, v{RW+6}",
           "s_lshl_b32 s27, s2, 3", f"s_add_u32 s27, s27, {WS_RM}", "s_mov_b64 exec, 1",
           f"buffer_store_dwordx2 v[{r0}:{r1}], v{vZ}, s[12:15], s27 offen{SC}", "s_mov_b64 exec, -1", f"{l7}:"]
    step(o, 15, 0, inj=q + [b7], inj0=0)
    step(o, 15, 1)
    if JIT & 1: k("L_p1tail:")
    k.stamp("p1_loop")

def hoist_ad(R):
    vL16, vVO = R["vL16"], R["vVO"]
    vSt = 200; vCs = 201; vTok = 203; vG = 202
    v17, v18, v19 = 209, 212, 204
    v20 = [205, 206, 207, 208]; v23 = [v17, 213, 214, 215]
    tA, tB, vSa, vCg = 216, 198, 218, 219
    ad = []
    ad += [f"v_lshrrev_b32 v{vSt}, 2, v0", f"v_and_b32 v{tB}, 3, v0", f"v_min_u32 v{vCs}, 95, v{vSt}", f"v_lshlrev_b32 v{vCs}, 3, v{vCs}",
           f"v_mul_u32_u24 v{vCg}, 3072, v{tB}", f"v_add_u32 v{vCg}, v{vCg}, v{vCs}",
           f"v_lshlrev_b32 v{tB}, {12 if STL & 1 else 16}, v{tB}", f"v_lshl_add_u32 v{vSa}, v{vSt}, 3, v{tB}", f"v_lshlrev_b32 v{vSt}, 2, v{vSt}"]
    ad += [f"v_and_b32 v{vTok}, 15, v1", "s_lshl_b32 s27, s25, 8", "s_lshl_b32 s28, s26, 6", "s_add_u32 s28, s28, s27",
           f"v_lshlrev_b32 v{tA}, 2, v{vTok}", f"v_add_u32 v{v17}, s28, v{tA}", f"v_lshrrev_b32 v{vG}, 4, v1", f"v_lshlrev_b32 v{v19}, 4, v{vG}",
           f"v_add_u32 v{v20[0]}, s28, v{v19}", "s_lshl_b32 s29, s26, 6", "s_add_u32 s29, s29, 1024",
           f"v_add_u32 v{v19}, s29, v{v19}", f"v_add_u32 v{v18}, s29, v{tA}"]
    for jj in range(1, 4):
        ad += [f"v_xor_b32 v{v20[jj]}, {jj<<6}, v{v20[0]}", f"v_xor_b32 v{v23[jj]}, {jj<<6}, v{v17}"]
    ad += ["s_lshl_b32 s27, s23, 2", "s_lshl_b32 s28, s25, 1", "s_add_u32 s27, s27, s28", "s_lshl_b32 s27, s27, 16",
           "s_lshl_b32 s28, s24, 12", "s_add_u32 s27, s27, s28", "s_lshl_b32 s28, s26, 10", "s_add_u32 s27, s27, s28",
           "s_lshr_b32 s42, s26, 1", "s_lshl_b32 s28, s42, 16", "s_add_u32 s35, s27, s28", "s_xor_b32 s28, s28, 0x10000", "s_add_u32 s37, s27, s28",
           f"s_add_u32 s36, s35, {WS_K}", f"s_add_u32 s38, s37, {WS_K}", f"s_add_u32 s35, s35, {WS_Q}", f"s_add_u32 s37, s37, {WS_Q}",
           "s_lshl_b32 s27, s24, 1", "s_add_u32 s27, s27, s42", "s_lshl_b32 s27, s27, 7",
           "s_lshl_b32 s28, s23, 3", "s_add_u32 s27, s27, s28", "s_lshl_b32 s28, s25, 2", "s_add_u32 s27, s27, s28", "s_lshl_b32 s27, s27, 10",
           "s_and_b32 s43, s26, 1", "s_lshl_b32 s28, s43, 8", "s_add_u32 s27, s27, s28", f"s_add_u32 s27, s27, {WS_VT}",
           "s_lshl_b32 s28, s42, 11", "s_add_u32 s39, s27, s28", "s_xor_b32 s28, s28, 2048", "s_add_u32 s40, s27, s28",
           f"v_lshrrev_b32 v{tA}, 5, v1", f"v_xor_b32 v{tA}, s43, v{tA}", f"v_lshlrev_b32 v{tA}, 10, v{tA}",
           f"v_bfe_u32 v{tB}, v1, 4, 1", f"v_lshl_add_u32 v{tA}, v{tB}, 9, v{tA}", f"v_lshl_add_u32 v{vVO}, v{vTok}, 4, v{tA}",
           "s_lshl_b32 s28, s43, 8", f"v_xor_b32 v{vL16}, s28, v{vL16}", "s_mov_b32 s44, 0x3e8293ee",
           f"s_lshl_b32 s41, s23, {14 if STL & 1 else 10}", f"s_add_u32 s41, s41, {WS_ST1}", f"s_mul_i32 s45, s24, {16*768}", f"s_add_u32 s45, s45, {WS_CS1}"]
    return ad

def hoisted_tail2(k, o, step, vm, R):
    PL, RMR, ONE, vP, vZ, vL16, SQ, CQ, QS, VS, vVO = [R[x] for x in ("PL", "RMR", "ONE", "vP", "vZ", "vL16", "SQ", "CQ", "QS", "VS", "vVO")]
    r0, r1 = 198, 199
    vSt = 200; vCs = 201
    v17, v18, v19 = 209, 212, 204
    v20 = [205, 206, 207, 208]; v23 = [v17, 213, 214, 215]
    vSa, vCg = 218, 219
    HV = int(os.environ.get("HV", "9")); HP = int(os.environ.get("HP", "11")); HC = HP + 1
    assert 8 <= HV < HP <= 11
    st_ = lambda nm: k.stamp(nm) if TST else None
    def chk(o_):
        rdy = k.lab("p1rdy"); spin = k.lab("p1spin")
        k(f"s_waitcnt vmcnt({vm.cnt({'VP'})})")
        k(f"v_cmp_eq_u32 vcc, 128, v{vP}")
        k("s_cmp_eq_u64 vcc, -1")
        k(f"s_cbranch_scc1 {rdy}")
        k("s_mov_b32 s28, 0")
        k(f"{spin}:")
        k("s_add_u32 s28, s28, 1")
        k(f"s_cmp_gt_u32 s28, {SPIN_LIMIT}")
        k(f"s_cbranch_scc1 {rdy}")
        k("s_sleep 2")
        k(f"buffer_load_dword v{vP}, v196, s[60:63], 0 offen sc1")
        k("s_waitcnt vmcnt(0)")
        k(f"v_cmp_eq_u32 vcc, 128, v{vP}")
        k("s_cmp_eq_u64 vcc, -1")
        k(f"s_cbranch_scc0 {spin}")
        k(f"{rdy}:")
    vp = [f"buffer_load_dword v{vP}, v196, s[60:63], 0 offen sc1", "s_lshl_b32 s27, s2, 13",
          f"buffer_load_dwordx4 v[{RMR}:{RMR+3}], v197, s[88:91], s27 offen"]
    la = []
    for i in range(4):
        if STL & 1: la.append(f"buffer_load_dwordx2 v[{PL+2*i}:{PL+2*i+1}], v{vSa}, s[12:15], s41 offen offset:{1024*i}{SC}")
        else: la.append([f"buffer_load_dwordx2 v[{PL+2*i}:{PL+2*i+1}], v{vSa}, s[12:15], s41 offen{SC}"] + (["s_add_u32 s41, s41, 16384"] if i < 3 else []))
    lb = [f"buffer_load_dwordx2 v[{PL+8+2*i}:{PL+8+2*i+1}], v{vCg}, s[12:15], s45 offen offset:{768*i}{SC}" for i in range(4)]
    rs = [f"v_mov_b32 v{r0}, 0"] + [f"v_dot2c_f32_bf16 v{r0}, v{RMR+r}, v{ONE}" for r in range(4)]
    rs += [f"v_add_f32_dpp v{r0}, v{r0}, v{r0} row_ror:{ro} row_mask:0xf bank_mask:0xf" for ro in (8, 4, 2, 1)]
    for sw in ("v_permlane16_swap_b32", "v_permlane32_swap_b32"):
        rs += [f"v_mov_b32 v{r1}, v{r0}", f"{sw} v{r0}, v{r1}", f"v_add_f32 v{r0}, v{r0}, v{r1}"]
    rs += ["s_lshl_b32 s27, s20, 2", "s_add_u32 s27, s27, 2048", f"v_mov_b32 v{r1}, s27", f"ds_write_b32 v{r1}, v{r0}"]
    def red(b):
        x = [f"v_add_f32 v{b}, v{b}, v{b+2}", f"v_add_f32 v{b+1}, v{b+1}, v{b+3}", f"v_add_f32 v{b+4}, v{b+4}, v{b+6}", f"v_add_f32 v{b+5}, v{b+5}, v{b+7}",
             f"v_add_f32 v{b}, v{b}, v{b+4}", f"v_add_f32 v{b+1}, v{b+1}, v{b+5}"]
        for qp in ("[1,0,3,2]", "[2,3,0,1]"):
            x += [f"v_add_f32_dpp v{b}, v{b}, v{b} quad_perm:{qp} row_mask:0xf bank_mask:0xf",
                  f"v_add_f32_dpp v{b+1}, v{b+1}, v{b+1} quad_perm:{qp} row_mask:0xf bank_mask:0xf"]
        return x
    sa = red(PL) + [f"v_mul_f32 v{PL}, 0x3a800000, v{PL}", f"v_mul_f32 v{PL+1}, 0x3a800000, v{PL+1}",
          f"v_fma_f32 v{PL+1}, -v{PL}, v{PL}, v{PL+1}", f"v_max_f32 v{PL+1}, 0, v{PL+1}", f"v_add_f32 v{PL+1}, 0x3727c5ac, v{PL+1}",
          f"v_rsq_f32 v{PL+1}, v{PL+1}", f"v_mul_f32 v{PL+2}, v{PL}, v{PL+1}", f"v_sub_f32 v{PL+2}, 0, v{PL+2}",
          f"ds_write_b32 v{vSt}, v{PL+1}", f"ds_write_b32 v{vSt}, v{PL+2} offset:512"]
    lm = k.lab("nomx")
    sb = red(PL + 8) + [f"ds_write_b64 v{vCs}, v[{PL+8}:{PL+9}] offset:1024",
          ["s_cmp_lg_u32 s24, 0", f"s_cbranch_scc1 {lm}", "s_lshl_b32 s27, s23, 9", f"s_add_u32 s27, s27, {WS_MX}",
           f"buffer_store_dword v{PL}, v{vSt}, s[12:15], s27 offen{SC}", f"{lm}:"]]
    for t in range(8, 13):
        if t == HV:
            step(o, t, 0, inj=vp, inj0=2); vm.issue("VP"); vm.issue("RMR")
        elif t == HP:
            step(o, t, 0, pre=chk, inj=la, inj0=1); vm.issue("PA", 4)
        elif t == HC:
            step(o, t, 0, inj=lb, inj0=1); vm.issue("PB", 4)
        else:
            step(o, t, 0)
        st_(f"t{t}_0")
        step(o, t, 1)
        st_(f"t{t}")
    step(o, 13, 0, inj=rs, inj0=0)
    st_("t13_0")
    step(o, 13, 1, extra_need=("PA", "RMR"), inj=sa, inj0=0)
    st_("t13")
    def wpb(o_): k(f"s_waitcnt vmcnt({vm.cnt({'PB'})})")
    step(o, 14, 0, pre=wpb, inj=sb, inj0=0)
    vm.issue("MX", 1, certain=False)
    st_("t14_0")
    RW = 56
    rd = [f"ds_read2_b32 v[{SQ+2*jj}:{SQ+2*jj+1}], v{v23[jj]} offset0:0 offset1:128" for jj in range(4)]
    rd += [f"ds_read_b128 v[{RW}:{RW+3}], v{vZ} offset:2048", f"ds_read_b128 v[{RW+4}:{RW+7}], v{vZ} offset:2064"]
    step(o, 14, 1, inj=rd, inj0=6)
    st_("t14")
    q = []
    for jj in range(4):
        q += [f"v_mul_f32 v{QS+2*jj}, s44, v{SQ+2*jj}", f"v_mul_f32 v{QS+2*jj+1}, s44, v{SQ+2*jj+1}"]
    l7 = k.lab("norm")
    b7 = ["s_cmp_lg_u32 s20, 7", f"s_cbranch_scc1 {l7}"]
    for r in range(4):
        b7 += [f"v_add_f32 v{RW+2*r}, v{RW+2*r}, v{RW+2*r+1}"]
    for r in range(4):
        b7 += [f"v_mul_f32 v{RW+2*r}, 0x3a800000, v{RW+2*r}"]
    b7 += [f"v_cvt_pk_bf16_f32 v{r0}, v{RW}, v{RW+2}", f"v_cvt_pk_bf16_f32 v{r1}, v{RW+4}, v{RW+6}",
           "s_lshl_b32 s27, s2, 3", f"s_add_u32 s27, s27, {WS_RM}", "s_mov_b64 exec, 1",
           f"buffer_store_dwordx2 v[{r0}:{r1}], v{vZ}, s[12:15], s27 offen{SC}", "s_mov_b64 exec, -1", f"{l7}:"]
    cq = [f"ds_read_b128 v[{CQ}:{CQ+3}], v{v19}", f"ds_read_b128 v[{CQ+4}:{CQ+7}], v{v19} offset:256"]
    step(o, 15, 0, inj=q + cq + [b7], inj0=0)
    st_("t15_0")
    vr = [f"ds_read_b32 v152, v{v18} offset:512"]
    for jj in range(4):
        vr += [f"ds_read_b128 v[{VS[jj]}:{VS[jj]+3}], v{v20[jj]}", f"ds_read_b128 v[{VS[jj]+4}:{VS[jj]+7}], v{v20[jj]} offset:512"]
    step(o, 15, 1, inj=vr, inj0=0)
    k.stamp("p1_loop")

def phase1(k):
    NS = 4; SLOT = 40960; BOFF = 24576
    ACC = 64
    vA = [2, 3]; vW = [10, 11, 12]; vX = [13, 4]; vL16 = 5; vZ = 6; vP = 7
    A = [16, 28]; B = [40, 112]
    VB = 128; DC = 144; D1 = 156; D2 = 160; ONE = 164; PL = 168
    RMR = 192
    acc = lambda m, j: ACC + (m * 4 + j) * 4
    k("s_and_b32 s21, s2, 7"); k("s_lshr_b32 s22, s2, 3")
    if P1M == 0:
        k("s_and_b32 s23, s21, 1"); k("s_lshl_b32 s23, s23, 3"); k("s_and_b32 s24, s22, 7"); k("s_add_u32 s23, s23, s24")
        k("s_lshr_b32 s24, s21, 1"); k("s_lshl_b32 s24, s24, 2"); k("s_lshr_b32 s25, s22, 3"); k("s_add_u32 s24, s24, s25")
    elif P1M == 1:
        k("s_and_b32 s23, s22, 15"); k("s_lshl_b32 s24, s21, 1"); k("s_lshr_b32 s25, s22, 4"); k("s_add_u32 s24, s24, s25")
    else:
        k("s_lshr_b32 s23, s22, 1"); k("s_lshl_b32 s24, s21, 1"); k("s_and_b32 s25, s22, 1"); k("s_add_u32 s24, s24, s25")
    k("s_and_b32 s25, s20, 1")
    k("s_lshr_b32 s26, s20, 1")
    wdma_lane(k, vW[0], 6144, 14)
    if QKS:
        for m in (1, 2):
            k(f"s_add_u32 s27, s24, {m*QKS}"); k("s_and_b32 s27, s27, 15"); k("s_sub_u32 s27, s27, s24")
            k("s_lshl_b32 s27, s27, 7"); k(f"s_add_u32 s27, s27, {2048*m}")
            k(f"v_add_u32 v{vW[m]}, s27, v{vW[0]}")
    else:
        k(f"v_add_u32 v{vW[1]}, 2048, v{vW[0]}")
        k(f"v_add_u32 v{vW[2]}, 4096, v{vW[0]}")
    k("v_lshrrev_b32 v14, 3, v1"); k("v_and_b32 v15, 7, v1")
    k("v_lshrrev_b32 v17, 4, v1")
    k("v_xor_b32 v17, v17, v15")
    k("v_lshlrev_b32 v17, 4, v17")
    k(f"v_lshl_add_u32 v{vX[0]}, v14, 11, v17")
    k(f"v_xor_b32 v{vX[1]}, 64, v{vX[0]}")
    k(f"v_add_u32 v{vX[1]}, {16384 - 1024}, v{vX[1]}")
    k(f"v_lshlrev_b32 v{vL16}, 4, v1")
    k("s_lshr_b32 s27, s20, 2"); k("s_lshl_b32 s27, s27, 5")
    k("s_bfe_u32 s28, s20, 0x10001"); k("s_lshl_b32 s28, s28, 4"); k("s_add_u32 s27, s27, s28")
    k("s_lshl_b32 s28, s25, 2"); k("s_add_u32 s27, s27, s28")
    k("s_mul_i32 s48, s27, 6144"); k("s_lshl_b32 s28, s24, 7"); k("s_add_u32 s48, s48, s28")
    k(f"s_add_u32 s46, s48, {16*64*6144}")
    k("s_lshl_b32 s49, s23, 3"); k("s_add_u32 s49, s49, s20"); k("s_lshl_b32 s49, s49, 15")
    KT0 = int(os.environ.get("KT0", "0"))
    if KT0 == 0: k("s_add_u32 s27, s23, s24"); k("s_and_b32 s27, s27, 15")
    elif KT0 == 1: k("s_mov_b32 s27, s24")
    elif KT0 == 2: k("s_mov_b32 s27, s23")
    elif KT0 == 3: k("s_mov_b32 s27, 0")
    elif KT0 == 4: k("s_and_b32 s27, s2, 7"); k("s_lshl_b32 s27, s27, 1")
    elif KT0 == 5: k("s_and_b32 s27, s23, 1"); k("s_lshl_b32 s27, s27, 3"); k("s_add_u32 s27, s27, s24"); k("s_and_b32 s27, s27, 15")
    elif KT0 == 6: k("s_and_b32 s27, s23, 3"); k("s_lshl_b32 s27, s27, 2"); k("s_add_u32 s27, s27, s24"); k("s_and_b32 s27, s27, 15")
    k(f"s_mul_i32 s28, s27, {64*6144}"); k("s_add_u32 s30, s48, s28")
    k("s_lshl_b32 s28, s27, 7"); k("s_add_u32 s31, s49, s28")
    k("s_lshl_b32 s32, s20, 10")
    k("s_lshl_b32 s33, s20, 11"); k(f"s_add_u32 s33, s33, {BOFF}")
    k.stamp("p1_pre")
    k("s_waitcnt lgkmcnt(0)")
    k.stamp("p1_ka")
    srd(k, 8, pWQKV, D * 3 * D * 2)
    srd(k, 12, pWS, WS_SIZE)
    srd(k, 16, pX, MB4)
    def dma(slot):
        o = []
        for m in range(3):
            o.append([f"s_add_u32 m0, s32, {slot*SLOT + m*8192}", f"buffer_load_dwordx4 v{vW[m]}, s[8:11], s30 offen lds"])
        o.append([f"s_add_u32 m0, s33, {slot*SLOT}", f"buffer_load_dwordx4 v{vX[0]}, s[16:19], s31 offen lds"])
        o.append([f"buffer_load_dwordx4 v{vX[1]}, s[16:19], s31 offen offset:1024 lds"])
        return o
    adv = [f"s_add_u32 s30, s30, {64*6144}", "s_add_u32 s31, s31, 128", "s_cmp_eq_u32 s30, s46", "s_cselect_b32 s30, s48, s30", "s_cselect_b32 s31, s49, s31"]
    vm = VM()
    def issue_stage(st):
        for d in dma(st % NS):
            for l in d: k(l)
        for l in adv: k(l)
        vm.issue(("S", st), 5)
    NPRO = 2 if RAMP else NS
    issue_stage(0)
    if not RAMP:
        for st in range(1, NS): issue_stage(st)
    k.stamp("p1_dma")
    srd(k, 88, pWO, D * D * 2)
    k("v_lshlrev_b32 v197, 4, v0")
    k("v_mov_b32 v14, v197")
    l0 = k.lab("noinit")
    k("s_cmp_lg_u32 s2, 0"); k(f"s_cbranch_scc1 {l0}")
    for r in range(4): k(f"v_mov_b32 v{PL+r}, 0")
    k(f"s_mov_b32 s27, {WS_CNT}")
    k(f"buffer_store_dwordx4 v[{PL}:{PL+3}], v14, s[12:15], s27 offen{SC}")
    k(f"{l0}:")
    srd(k, 60, pDBG, 256)
    if JIT:
        k("s_getpc_b64 s[80:81]"); k("L_cb:"); k("s_mov_b32 s82, L_end-L_cb"); k("s_mov_b32 s83, 0x20000")
        k("s_lshr_b32 s27, s2, 3"); k("s_lshl_b32 s27, s27, 3"); k("s_add_u32 s27, s27, s20"); k("s_lshl_b32 s27, s27, 8")
        k("v_and_b32 v252, 3, v1"); k("v_lshlrev_b32 v252, 6, v252"); k("v_add_u32 v252, s27, v252")
    k("v_lshrrev_b32 v14, 4, v1")
    k("v_bfe_u32 v15, v1, 2, 2")
    k("v_lshrrev_b32 v16, 1, v14"); k("v_and_b32 v17, 1, v14")
    k("v_lshlrev_b32 v16, 4, v16"); k("v_lshl_add_u32 v16, v17, 2, v16"); k("v_add_u32 v16, v16, v15")
    k("v_lshlrev_b32 v16, 7, v16")
    k("v_lshrrev_b32 v18, 1, v15"); k("v_lshl_add_u32 v18, v17, 1, v18")
    k("v_xor_b32 v18, s26, v18")
    k("v_lshl_add_u32 v16, v18, 5, v16")
    k("v_and_b32 v18, 3, v1")
    k(f"v_lshl_add_u32 v{vA[0]}, v18, 3, v16")
    k(f"v_add_u32 v{vA[1]}, {2*SLOT}, v{vA[0]}")
    for i in range(1, 4): k(f"v_cmp_eq_u32 s[{48+2*i}:{49+2*i}], {i}, v18")
    if RAMP:
        if os.environ.get("XST"): k.stamp("p1_b0")
        k("s_barrier")
        if os.environ.get("XST"): k.stamp("p1_b1")
        if RAMP == 1: issue_stage(1)
        if os.environ.get("XST"): k.stamp("p1_s1")
    k("v_cmp_eq_u32 s[56:57], v14, v15")
    k("v_and_b32 v15, 15, v1")
    k("v_cmp_eq_u32 s[58:59], 0, v15")
    k("v_lshrrev_b32 v16, 1, v15"); k("v_xor_b32 v16, v16, v14"); k("v_lshlrev_b32 v16, 4, v16")
    k("v_lshl_add_u32 v16, v15, 7, v16")
    k("s_cmp_eq_u32 s25, 0")
    k("s_cselect_b32 s58, s58, 0"); k("s_cselect_b32 s59, s59, 0")
    k("s_lshl_b32 s28, s25, 13"); k(f"s_add_u32 s28, s28, {BOFF}")
    for jj in range(4):
        k(f"s_xor_b32 s27, s26, {jj}"); k("s_lshl_b32 s27, s27, 11"); k("s_add_u32 s27, s27, s28")
        k(f"v_add_u32 v{VB+jj}, s27, v16")
        k(f"v_xor_b32 v{VB+4+jj}, 64, v{VB+jj}")
        k(f"v_add_u32 v{VB+8+jj}, {2*SLOT}, v{VB+jj}")
        k(f"v_add_u32 v{VB+12+jj}, {2*SLOT}, v{VB+4+jj}")
    k(f"v_mov_b32 v{vZ}, 0")
    k("v_lshlrev_b32 v8, 3, v15")
    k("s_lshl_b32 s42, s23, 3"); k("s_lshl_b32 s27, s25, 2"); k("s_add_u32 s42, s42, s27"); k("s_add_u32 s42, s42, s26")
    if STL & 1:
        k("s_lshl_b32 s42, s25, 2"); k("s_add_u32 s42, s42, s26"); k("s_lshl_b32 s42, s42, 7")
        k("s_lshl_b32 s27, s23, 14"); k("s_add_u32 s42, s42, s27"); k("s_lshl_b32 s27, s24, 10"); k("s_add_u32 s42, s42, s27"); k(f"s_add_u32 s42, s42, {WS_ST1}")
    else:
        k("s_lshl_b32 s42, s42, 7"); k("s_lshl_b32 s27, s24, 14"); k("s_add_u32 s42, s42, s27"); k(f"s_add_u32 s42, s42, {WS_ST1}")
    k("v_lshlrev_b32 v9, 4, v14")
    k("s_lshl_b32 s43, s24, 4"); k("s_add_u32 s43, s43, s23"); k("s_mul_i32 s43, s43, 768")
    k("s_lshl_b32 s27, s26, 6"); k("s_add_u32 s43, s43, s27"); k(f"s_add_u32 s43, s43, {WS_CS1}")
    k("v_and_b32 v196, 1, v1"); k("v_lshlrev_b32 v196, 7, v196")
    for r in range(ACC, ACC + 48): k(f"v_mov_b32 v{r}, 0")
    for r in range(DC, DC + 20): k(f"v_mov_b32 v{r}, 0")
    for r in range(4): k(f"v_mov_b32 v{ONE+r}, 0x3f803f80")
    def reads(buf, slot, kb):
        o = []
        pr = slot >> 1; so = (slot & 1) * SLOT
        def rA(m):
            return [f"ds_read_b64_tr_b16 v[{A[buf]+4*m+2*t}:{A[buf]+4*m+2*t+1}], v{vA[pr]} offset:{so + m*8192 + kb*4096 + t*1024}" for t in range(2)]
        def rB(j):
            return [f"ds_read_b128 v[{B[buf]+4*j}:{B[buf]+4*j+3}], v{VB + pr*8 + kb*4 + j} offset:{so}"]
        o += rA(0)
        for j in range(4): o += rB(j)
        o += rA(1) + rA(2)
        return o
    def side(buf):
        o = []
        fb = f"v[{B[buf]}:{B[buf]+3}]"; on = f"v[{ONE}:{ONE+3}]"
        for m in range(3):
            o.append(f"v_mfma_f32_16x16x32_bf16 v[{DC+4*m}:{DC+4*m+3}], v[{A[buf]+4*m}:{A[buf]+4*m+3}], {on}, v[{DC+4*m}:{DC+4*m+3}]")
        o.append(f"v_mfma_f32_16x16x32_bf16 v[{D1}:{D1+3}], {on}, {fb}, v[{D1}:{D1+3}]")
        o.append(f"v_mfma_f32_16x16x32_bf16 v[{D2}:{D2+3}], {fb}, {fb}, v[{D2}:{D2+3}]")
        return o
    def once(lines):
        l = k.lab("once")
        k("s_cmp_lg_u32 s34, 0"); k(f"s_cbranch_scc1 {l}")
        for x in lines: k(x)
        k(f"{l}:")
    def publish():
        o = [f"v_cndmask_b32 v{D2}, v{D2}, v{D2+1}, s[50:51]", f"v_cndmask_b32 v{D2}, v{D2}, v{D2+2}, s[52:53]", f"v_cndmask_b32 v{D2}, v{D2}, v{D2+3}, s[54:55]",
             f"v_mov_b32 v{D1+1}, v{D2}",
             "s_mov_b64 exec, s[56:57]",
             f"buffer_store_dwordx2 v[{D1}:{D1+1}], v8, s[12:15], s42 offen{SC}",
             "s_mov_b64 exec, s[58:59]"]
        for m in range(3):
            o.append(f"buffer_store_dwordx4 v[{DC+4*m}:{DC+4*m+3}], v9, s[12:15], s43 offen offset:{256*m}{SC}")
        if DL1 or SK3:
            o += [f"s_getreg_b32 s27, {XCCR}", "v_mov_b32 v14, s27", "s_lshl_b32 s27, s2, 7", f"s_add_u32 s27, s27, {WS_XID1}",
                  f"buffer_store_dword v14, v9, s[12:15], s27 offen{SC}"]
        if DL1:
            o += ["s_lshl_b32 s28, s24, 7", f"s_add_u32 s28, s28, {WS_CNT + C2F*128}", "s_add_u32 s27, s27, 64",
                  "s_cmp_eq_u32 s23, 0", "s_cselect_b32 s27, s28, s27",
                  f"buffer_store_dword v{vZ}, v9, s[12:15], s27 offen{SC}"]
        o.append("s_mov_b64 exec, -1")
        return o
    def sig1():
        l = k.lab("nosig1")
        return ["s_cmp_lg_u32 s20, 0", f"s_cbranch_scc1 {l}", "s_mov_b64 exec, 1", "v_mov_b32 v14, 1",
                "s_and_b32 s27, s2, 1", "s_lshl_b32 s27, s27, 7",
                f"buffer_atomic_add v14, v{vZ}, s[60:63], s27 offen sc1", "s_mov_b64 exec, -1", f"{l}:"]
    k.stamp("p1_set")
    if RAMP == 3:
        k("s_waitcnt vmcnt(3)"); issue_stage(1)
    k(f"s_waitcnt vmcnt({vm.cnt({('S', 0)})})")
    if RAMP == 2: issue_stage(1)
    k.stamp("p1_w0")
    k("s_barrier")
    k.stamp("p1_go")
    for l in reads(0, 0, 0): k(l)
    NT = 16
    def sched(t, kb):
        if RAMP and t < 2: return [2, 3, 4, 5][2 * t + kb]
        if kb == 1 and t + NS < NT: return t + NS
        return None
    def step(o, t, kb, side_here=False, pre=None, post=None, extra_need=(), inj=None, inj0=0):
        cur = kb; nxt = kb ^ 1; last = t == NT - 1
        if kb == 0:
            o.append("s_waitcnt lgkmcnt(0)")
            rd = reads(nxt, t % NS, 1)
        elif last:
            o.append("s_waitcnt lgkmcnt(0)"); rd = []
        else:
            o.append(f"s_waitcnt vmcnt({vm.cnt({('S', t + 1)} | set(extra_need))}) lgkmcnt(0)")
            o.append("s_barrier")
            rd = reads(nxt, (t + 1) % NS, 0)
        st = sched(t, kb)
        dm = dma(st % NS) if st is not None else []
        if pre: pre(o)
        if st is not None: vm.issue(("S", st), 5)
        mf = []
        for m in range(3):
            for j in range(4):
                a = acc(m, j); fa = f"v[{A[cur]+4*m}:{A[cur]+4*m+3}]"; fb = f"v[{B[cur]+4*j}:{B[cur]+4*j+3}]"
                if m == 2: fa, fb = fb, fa
                mf.append(f"v_mfma_f32_16x16x32_bf16 v[{a}:{a+3}], {fa}, {fb}, v[{a}:{a+3}]")
        gaps = [[] for _ in mf]
        for q, r in enumerate(rd): gaps[q].append(r)
        pos = [1, 3, 5, 7, 9]
        for q, d in enumerate(dm):
            if len(d) == 2:
                gaps[pos[q] - 1].append(d[0]); gaps[pos[q]].append(d[1])
            else:
                gaps[pos[q]].append(d[0])
        if dm: gaps[10] += adv
        if inj:
            ng = len(mf) - inj0
            for q, it in enumerate(inj):
                gaps[inj0 + q * ng // len(inj)] += (it if isinstance(it, list) else [it])
        for g, mm in enumerate(mf):
            o.append(mm); o += gaps[g]
        if side_here: o += side(cur)
        if post: post(o)
    texts = []
    for per in range(2 if HOIST else 3):
        o = []
        for t in range(per * 4, per * 4 + 4):
            if HOIST == 2 and 4 <= t < 8:
                ad = hoist_ad(dict(vL16=vL16, vVO=217)); n4 = (len(ad) + 3) // 4
                step(o, t, 0, inj=ad[(t - 4) * n4:(t - 3) * n4], inj0=0)
            else:
                step(o, t, 0, side_here=(t == 0))
            if t == 1 and not ESIG:
                o += publish(); vm.issue("PUB", 6 if DL1 else 5 if SK3 else 4, certain=False)
            step(o, t, 1, side_here=(t == 0), extra_need=("PUB",) if t == 3 - ESIG else ())
            if t == 0 and ESIG:
                o += publish(); vm.issue("PUB", 6 if DL1 else 5 if SK3 else 4, certain=False)
            if t == 3 - ESIG: o += sig1(); vm.issue("SIG", 1, certain=False)
        texts.append(o)
    periods(k, "p1loop", texts, 34)
    if TST: k.stamp("t11" if not HOIST else "t7")
    def partial_loads():
        rdy = k.lab("p1rdy"); spin = k.lab("p1spin"); nocs = k.lab("p1nocs")
        if TST == 2: k.stamp("t14_w")
        k(f"v_cmp_eq_u32 vcc, 128, v{vP}")
        k("s_cmp_eq_u64 vcc, -1")
        k(f"s_cbranch_scc1 {rdy}")
        k("s_mov_b32 s28, 0")
        k(f"{spin}:")
        k("s_add_u32 s28, s28, 1")
        k(f"s_cmp_gt_u32 s28, {SPIN_LIMIT}")
        k(f"s_cbranch_scc1 {rdy}")
        k("s_sleep 2")
        k(f"buffer_load_dword v{vP}, v196, s[60:63], 0 offen sc1")
        k("s_waitcnt vmcnt(0)")
        k(f"v_cmp_eq_u32 vcc, 128, v{vP}")
        k("s_cmp_eq_u64 vcc, -1")
        k(f"s_cbranch_scc0 {spin}")
        k(f"{rdy}:")
        if TST == 2: k.stamp("t14_c")
        if COA & 1:
            k("v_lshrrev_b32 v14, 4, v1"); k(f"v_lshlrev_b32 v14, {12 if STL & 1 else 16}, v14")
            k("v_and_b32 v15, 15, v1"); k("s_lshl_b32 s27, s20, 4"); k("v_add_u32 v15, s27, v15"); k("v_lshl_add_u32 v14, v15, 3, v14")
        else:
            k("v_and_b32 v14, 3, v0"); k(f"v_lshlrev_b32 v14, {12 if STL & 1 else 16}, v14")
            k("v_lshrrev_b32 v15, 2, v0"); k("v_lshl_add_u32 v14, v15, 3, v14")
        k(f"s_lshl_b32 s27, s23, {14 if STL & 1 else 10}"); k(f"s_add_u32 s27, s27, {WS_ST1}")
        for i in range(4):
            if STL & 1:
                k(f"buffer_load_dwordx2 v[{PL+2*i}:{PL+2*i+1}], v14, s[12:15], s27 offen offset:{1024*i}{SC}")
                continue
            k(f"buffer_load_dwordx2 v[{PL+2*i}:{PL+2*i+1}], v14, s[12:15], s27 offen{SC}")
            if i < 3: k("s_add_u32 s27, s27, 16384")
        if TST == 2: k.stamp("t14_s")
        k("s_cmp_ge_u32 s20, 3")
        k(f"s_cbranch_scc1 {nocs}")
        k("v_lshlrev_b32 v14, 2, v0")
        k(f"s_mul_i32 s27, s24, {16*768}"); k(f"s_add_u32 s27, s27, {WS_CS1}")
        for i in range(16):
            k(f"buffer_load_dword v{PL+8+i}, v14, s[12:15], s27 offen offset:{(i % 4) * 768}{SC}")
            if i % 4 == 3 and i < 15: k(f"s_add_u32 s27, s27, {4*768}")
        k(f"{nocs}:")
        if DL1 == 1:
            lid = k.lab("p1noid")
            k("s_cmp_lg_u32 s20, 7"); k(f"s_cbranch_scc1 {lid}")
            k("v_and_b32 v14, 31, v1"); k("v_lshlrev_b32 v14, 10, v14")
            k("s_and_b32 s27, s2, 7"); k("s_lshl_b32 s27, s27, 7"); k(f"s_add_u32 s27, s27, {WS_XID1}")
            k(f"buffer_load_dword v{PL+8}, v14, s[12:15], s27 offen{SC}")
            k(f"{lid}:")
        if TST == 2: k.stamp("t14_l")
    class _O:
        def append(self, x): k(x)
        def __iadd__(self, xs):
            for x in xs: k(x)
            return self
    o = _O()
    SQ = 28; CQ = 36; QS = 52; VS = [112, 120, 128, 136]; vVO = 14
    if HOIST:
        SQ = 220; CQ = 228; QS = 184; VS = [236, 244, 154, 176]; vVO = 217
        (hoisted_tail2 if HOIST == 2 else hoisted_tail)(k, o, step, vm, dict(PL=PL, RMR=RMR, ONE=ONE, vP=vP, vZ=vZ, vL16=vL16, SQ=SQ, CQ=CQ, QS=QS, VS=VS, vVO=vVO))
    else:
        o = _O()
        for t in range(12, 16):
            step(o, t, 0)
            if TST == 2 and t >= 13: k.stamp(f"t{t}_0")
            if DL1 and t == DLT:
                k("v_lshrrev_b32 v198, 5, v1"); k("v_lshlrev_b32 v198, 16, v198"); k("v_and_b32 v199, 31, v1"); k("v_lshl_add_u32 v198, v199, 7, v198")
                k("v_lshlrev_b32 v199, 7, v1")
                k("s_and_b32 s28, s20, 1")
                k("s_lshl_b32 s27, s23, 1"); k("s_add_u32 s27, s27, s28"); k("s_lshl_b32 s27, s27, 17"); k("s_lshl_b32 s29, s24, 12"); k("s_add_u32 s27, s27, s29")
                k("s_cmp_lt_u32 s20, 2"); k(f"s_cselect_b32 s29, 0, {WS_K - WS_Q}"); k("s_add_u32 s27, s27, s29"); k(f"s_add_u32 s27, s27, {WS_Q}")
                k("s_lshl_b32 s29, s24, 1"); k("s_add_u32 s29, s29, s28"); k("s_lshl_b32 s29, s29, 17"); k("s_lshl_b32 s28, s23, 13"); k("s_add_u32 s29, s29, s28")
                k(f"s_add_u32 s29, s29, {WS_VT}")
                k("s_cmp_ge_u32 s20, 4"); k("s_cselect_b32 s27, s29, s27"); k("s_cselect_b64 vcc, -1, 0")
                k("v_cndmask_b32 v198, v198, v199, vcc")
                k(f"buffer_load_dword v199, v198, s[12:15], s27 offen{SC}"); vm.issue("PT")
            if t == 12:
                k(f"buffer_load_dword v{vP}, v196, s[60:63], 0 offen sc1"); vm.issue("VP")
                k("s_lshl_b32 s27, s2, 13")
                k(f"buffer_load_dwordx4 v[{RMR}:{RMR+3}], v197, s[88:91], s27 offen"); vm.issue("RMR")
                if JIT & 1:
                    for l in jit("L_p1tail", 27, 211): k(l)
                    vm.issue("CP")
            step(o, t, 1, pre=(lambda o: partial_loads()) if t == 14 else None, extra_need=("VP", "RMR") if t == 14 else ())
            if TST and t < 15: k.stamp(f"t{t}")
        if JIT & 1: k("L_p1tail:")
        k.stamp("p1_loop")
        k("v_mov_b32 v14, 0")
        for r in range(4): k(f"v_dot2c_f32_bf16 v14, v{RMR+r}, v{ONE}")
        for ro in (8, 4, 2, 1): k(f"v_add_f32_dpp v14, v14, v14 row_ror:{ro} row_mask:0xf bank_mask:0xf")
        for sw in ("v_permlane16_swap_b32", "v_permlane32_swap_b32"):
            k("v_mov_b32 v15, v14"); k(f"{sw} v14, v15"); k("v_add_f32 v14, v14, v15")
        k("s_lshl_b32 s27, s20, 2"); k("s_add_u32 s27, s27, 2048"); k("v_mov_b32 v15, s27")
        k("ds_write_b32 v15, v14")
        k("s_waitcnt vmcnt(0)")
        if DL1 == 1:
            lid = k.lab("p1noid")
            k("s_cmp_lg_u32 s20, 7"); k(f"s_cbranch_scc1 {lid}")
            k(f"s_getreg_b32 s27, {XCCR}"); k(f"v_cmp_ne_u32 vcc, s27, v{PL+8}")
            k("s_cmp_eq_u64 vcc, 0"); k("s_cselect_b32 s27, 1, 0"); k("v_mov_b32 v15, s27")
            k(f"ds_write_b32 v{vZ}, v15 offset:{FLAGOFF}")
            k(f"{lid}:")
        k(f"v_add_f32 v{PL}, v{PL}, v{PL+2}"); k(f"v_add_f32 v{PL+1}, v{PL+1}, v{PL+3}")
        k(f"v_add_f32 v{PL+4}, v{PL+4}, v{PL+6}"); k(f"v_add_f32 v{PL+5}, v{PL+5}, v{PL+7}")
        k(f"v_add_f32 v{PL}, v{PL}, v{PL+4}"); k(f"v_add_f32 v{PL+1}, v{PL+1}, v{PL+5}")
        if COA & 1:
            k("v_and_b32 v16, 15, v1"); k("s_lshl_b32 s27, s20, 4"); k("v_add_u32 v16, s27, v16"); k("v_lshlrev_b32 v16, 2, v16")
            k(f"v_permlane16_swap_b32 v{PL}, v{PL+1}")
            k(f"v_add_f32 v{PL}, v{PL}, v{PL+1}"); k(f"v_mov_b32 v{PL+1}, v{PL}")
            k(f"v_permlane32_swap_b32 v{PL}, v{PL+1}")
            k(f"v_add_f32 v{PL}, v{PL}, v{PL+1}"); k(f"v_mov_b32 v{PL+1}, v{PL}")
            k(f"v_permlane16_swap_b32 v{PL}, v{PL+1}")
        else:
            for qp in ("[1,0,3,2]", "[2,3,0,1]"):
                k(f"v_add_f32_dpp v{PL}, v{PL}, v{PL} quad_perm:{qp} row_mask:0xf bank_mask:0xf")
                k(f"v_add_f32_dpp v{PL+1}, v{PL+1}, v{PL+1} quad_perm:{qp} row_mask:0xf bank_mask:0xf")
        k(f"v_mul_f32 v{PL}, 0x3a800000, v{PL}")
        k(f"v_mul_f32 v{PL+1}, 0x3a800000, v{PL+1}")
        if not COA & 1: k("v_lshrrev_b32 v16, 2, v0"); k("v_lshlrev_b32 v16, 2, v16")
        lm = k.lab("nomx")
        k("s_cmp_lg_u32 s24, 0"); k(f"s_cbranch_scc1 {lm}")
        k("s_lshl_b32 s27, s23, 9"); k(f"s_add_u32 s27, s27, {WS_MX}")
        k(f"buffer_store_dword v{PL}, v16, s[12:15], s27 offen{SC}")
        k(f"{lm}:")
        k(f"v_fma_f32 v{PL+1}, -v{PL}, v{PL}, v{PL+1}")
        k(f"v_max_f32 v{PL+1}, 0, v{PL+1}")
        k(f"v_add_f32 v{PL+1}, 0x3727c5ac, v{PL+1}")
        k(f"v_rsq_f32 v{PL+1}, v{PL+1}")
        k(f"v_mul_f32 v{PL+2}, v{PL}, v{PL+1}")
        k(f"v_sub_f32 v{PL+2}, 0, v{PL+2}")
        k(f"ds_write_b32 v16, v{PL+1}")
        k(f"ds_write_b32 v16, v{PL+2} offset:512")
        l2 = k.lab("nocs2")
        k("s_cmp_ge_u32 s20, 3")
        k(f"s_cbranch_scc1 {l2}")
        for st in (8, 4, 2, 1):
            for i in range(st): k(f"v_add_f32 v{PL+8+i}, v{PL+8+i}, v{PL+8+i+st}")
        k("v_lshlrev_b32 v16, 2, v0")
        k(f"ds_write_b32 v16, v{PL+8} offset:1024")
        k(f"{l2}:")
        k("v_and_b32 v15, 15, v1")
        k("s_lshl_b32 s27, s25, 8"); k("s_lshl_b32 s28, s26, 6"); k("s_add_u32 s28, s28, s27")
        k("v_lshlrev_b32 v16, 2, v15")
        k("v_add_u32 v17, s28, v16")
        k("v_lshrrev_b32 v14, 4, v1")
        k("v_lshlrev_b32 v19, 4, v14")
        k("v_add_u32 v20, s28, v19")
        k("s_lshl_b32 s29, s26, 6"); k("s_add_u32 s29, s29, 1024")
        k("v_add_u32 v19, s29, v19")
        k("v_add_u32 v18, s29, v16")
        for jj in range(1, 4):
            k(f"v_xor_b32 v{20+jj}, {jj<<6}, v20")
            k(f"v_xor_b32 v{23+jj}, {jj<<6}, v17")
        k("s_lshl_b32 s27, s23, 2"); k("s_lshl_b32 s28, s25, 1"); k("s_add_u32 s27, s27, s28")
        k("s_lshl_b32 s27, s27, 16")
        k("s_lshl_b32 s28, s24, 12"); k("s_add_u32 s27, s27, s28")
        k("s_lshl_b32 s28, s26, 10"); k("s_add_u32 s27, s27, s28")
        k("s_lshr_b32 s42, s26, 1")
        k("s_lshl_b32 s28, s42, 16"); k("s_add_u32 s35, s27, s28")
        k("s_xor_b32 s28, s28, 0x10000"); k("s_add_u32 s37, s27, s28")
        k(f"s_add_u32 s36, s35, {WS_K}"); k(f"s_add_u32 s38, s37, {WS_K}")
        k(f"s_add_u32 s35, s35, {WS_Q}"); k(f"s_add_u32 s37, s37, {WS_Q}")
        if QKS:
            k(f"s_add_u32 s27, s24, {QKS}"); k("s_and_b32 s27, s27, 15"); k("s_sub_u32 s27, s27, s24"); k("s_lshl_b32 s27, s27, 12")
            k("s_add_u32 s36, s36, s27"); k("s_add_u32 s38, s38, s27")
            k(f"s_add_u32 s27, s24, {2*QKS}"); k("s_and_b32 s27, s27, 15"); k("s_lshl_b32 s27, s27, 1")
        else:
            k("s_lshl_b32 s27, s24, 1")
        k("s_add_u32 s27, s27, s42")
        k("s_lshl_b32 s27, s27, 7")
        k("s_lshl_b32 s28, s23, 3"); k("s_add_u32 s27, s27, s28")
        k("s_lshl_b32 s28, s25, 2"); k("s_add_u32 s27, s27, s28")
        k("s_lshl_b32 s27, s27, 10")
        k("s_and_b32 s43, s26, 1")
        k("s_lshl_b32 s28, s43, 8"); k("s_add_u32 s27, s27, s28")
        k(f"s_add_u32 s27, s27, {WS_VT}")
        k("s_lshl_b32 s28, s42, 11"); k("s_add_u32 s39, s27, s28")
        k("s_xor_b32 s28, s28, 2048"); k("s_add_u32 s40, s27, s28")
        k("v_lshrrev_b32 v27, 5, v1"); k("v_xor_b32 v27, s43, v27"); k("v_lshlrev_b32 v27, 10, v27")
        k("v_bfe_u32 v28, v1, 4, 1"); k("v_lshl_add_u32 v27, v28, 9, v27")
        k("v_lshl_add_u32 v14, v15, 4, v27")
        k("s_lshl_b32 s28, s43, 8")
        k(f"v_xor_b32 v{vL16}, s28, v{vL16}")
        k("s_waitcnt lgkmcnt(0)")
        k("s_barrier")
        SQ = 28; CQ = 36
        if DL1 == 1: k(f"ds_read_b32 v15, v{vZ} offset:{FLAGOFF}")
        k(f"ds_read2_b32 v[{SQ}:{SQ+1}], v17 offset0:0 offset1:128")
        for jj in range(1, 4): k(f"ds_read2_b32 v[{SQ+2*jj}:{SQ+2*jj+1}], v{23+jj} offset0:0 offset1:128")
        k(f"ds_read_b128 v[{CQ}:{CQ+3}], v19")
        k(f"ds_read_b128 v[{CQ+4}:{CQ+7}], v19 offset:256")
        k("ds_read_b32 v152, v18 offset:512")
        VS = [112, 120, 128, 136]
        for jj in range(4):
            k(f"ds_read_b128 v[{VS[jj]}:{VS[jj]+3}], v{20+jj}")
            k(f"ds_read_b128 v[{VS[jj]+4}:{VS[jj]+7}], v{20+jj} offset:512")
        l7 = k.lab("norm")
        k("s_cmp_lg_u32 s20, 7"); k(f"s_cbranch_scc1 {l7}")
        k(f"ds_read_b128 v[{PL}:{PL+3}], v{vZ} offset:2048")
        k(f"ds_read_b128 v[{PL+4}:{PL+7}], v{vZ} offset:2064")
        k("s_waitcnt lgkmcnt(0)")
        for r in range(4):
            k(f"v_add_f32 v{PL+2*r}, v{PL+2*r}, v{PL+2*r+1}")
            k(f"v_mul_f32 v{PL+2*r}, 0x3a800000, v{PL+2*r}")
        k(f"v_cvt_pk_bf16_f32 v{PL+8}, v{PL}, v{PL+2}")
        k(f"v_cvt_pk_bf16_f32 v{PL+9}, v{PL+4}, v{PL+6}")
        k("s_lshl_b32 s27, s2, 3"); k(f"s_add_u32 s27, s27, {WS_RM}")
        k("s_mov_b64 exec, 1")
        k(f"buffer_store_dwordx2 v[{PL+8}:{PL+9}], v{vZ}, s[12:15], s27 offen{SC}")
        k("s_mov_b64 exec, -1")
        k(f"{l7}:")
    if not HOIST:
        k("s_mov_b32 s44, 0x3e8293ee")
        k("s_waitcnt lgkmcnt(9)")
        if DL1 == 1: k("v_readfirstlane_b32 s47, v15")
        elif DL1: k(f"s_mov_b32 s47, {1 if DL1 == 3 else 0}")
        for jj in range(4):
            k(f"v_mul_f32 v{QS+2*jj}, s44, v{SQ+2*jj}")
            k(f"v_mul_f32 v{QS+2*jj+1}, s44, v{SQ+2*jj+1}")
    TP = [16, 20, 24, 44, 48, 60]
    TM = 144
    ti = 0
    HX = os.environ.get("HX", "swd") if HOIST else ""
    if HX in ("bar", "swbar"): k("s_barrier")
    elif HX == "nop7": k("s_nop 7")
    elif HX == "nop15": k("s_nop 15")
    elif HX == "nop31": k("s_nop 15"); k("s_nop 15")
    for m in range(3):
        if m == 2 and HOIST != 1: k("s_waitcnt lgkmcnt(0)")
        for p in range(2):
            t = TP[ti]; ti += 1
            for jj2 in range(2):
                jj = 2 * p + jj2
                a = acc(m, jj)
                for h in range(2):
                    tm = TM + 2 * ((jj2 * 2 + h) & 3)
                    if m < 2:
                        st = (QS if m == 0 else SQ) + 2 * jj
                        cs = CQ + 4 * m + 2 * h
                        first = m == 0 and jj == 0 and h == 0
                        if first and HX in ("v1", "v2", "v3", "v4", "v5", "v6", "v7", "v8", "v9", "v10"):
                            pm = f"v_pk_mul_f32 v[{tm}:{tm+1}], v[{cs}:{cs+1}], v[{st}:{st+1}] op_sel:[0,1] op_sel_hi:[1,1]"
                            pf = f"v_pk_fma_f32 v[{a}:{a+1}], v[{a}:{a+1}], v[{st}:{st+1}], v[{tm}:{tm+1}] op_sel:[0,0,0] op_sel_hi:[1,0,1]"
                            if HX == "v1":
                                for e in range(2): k(f"v_mul_f32 v{tm+e}, v{cs+e}, v{st+1}")
                                k(pf)
                            elif HX == "v2":
                                k(pm)
                                for e in range(2): k(f"v_fma_f32 v{a+e}, v{a+e}, v{st}, v{tm+e}")
                            elif HX == "v3":
                                k(f"v_pk_mul_f32 v[148:149], v[{cs}:{cs+1}], v[{st}:{st+1}] op_sel:[0,1] op_sel_hi:[1,1]"); k(pm); k(pf)
                            elif HX == "v4":
                                k(pm); k("s_nop 0"); k(pf)
                            elif HX == "v5":
                                k(pm); k("s_nop 3"); k(pf)
                            elif HX == "v7":
                                k(f"v_pk_mul_f32 v[{tm}:{tm+1}], v[{cs}:{cs+1}], v[{st}:{st+1}] op_sel:[0,0] op_sel_hi:[1,0]"); k(pf)
                            elif HX == "v8":
                                k(f"v_pk_mul_f32 v[{tm}:{tm+1}], v[{cs}:{cs+1}], v[{st}:{st+1}]"); k(pf)
                            elif HX == "v9":
                                k(f"v_pk_mul_f32 v[{tm}:{tm+1}], v[{cs}:{cs+1}], v[{st}:{st+1}] op_sel:[1,1] op_sel_hi:[1,1]"); k(pf)
                            elif HX == "v10":
                                k(f"v_mul_f32 v{tm+1}, v{cs}, v{st+1}"); k(f"v_mul_f32 v{tm}, v{cs+1}, v{st+1}")
                                k(f"v_pk_fma_f32 v[{a}:{a+1}], v[{a}:{a+1}], v[{st}:{st+1}], v[{tm}:{tm+1}] op_sel:[0,0,1] op_sel_hi:[1,0,0]")
                            elif HX == "v6":
                                k(f"v_pk_mul_f32 v[{tm}:{tm+1}], v[{st}:{st+1}], v[{cs}:{cs+1}] op_sel:[1,0] op_sel_hi:[1,1]"); k(pf)
                            continue
                        if HX.startswith("np") and (m * 4 + jj) * 2 + h < int(HX[2:]):
                            for e in range(2):
                                k(f"v_mul_f32 v{tm+e}, v{cs+e}, v{st+1}")
                            for e in range(2):
                                k(f"v_fma_f32 v{a+2*h+e}, v{a+2*h+e}, v{st}, v{tm+e}")
                            continue
                        if "sw" in HX:
                            if first and HX == "swd": k(f"v_pk_mul_f32 v[{TM+4}:{TM+5}], v[{cs}:{cs+1}], v[{cs}:{cs+1}]")
                            k(f"v_pk_mul_f32 v[{tm}:{tm+1}], v[{st}:{st+1}], v[{cs}:{cs+1}] op_sel:[1,0] op_sel_hi:[1,1]")
                        else:
                            k(f"v_pk_mul_f32 v[{tm}:{tm+1}], v[{cs}:{cs+1}], v[{st}:{st+1}] op_sel:[0,1] op_sel_hi:[1,1]")
                        k(f"v_pk_fma_f32 v[{a+2*h}:{a+2*h+1}], v[{a+2*h}:{a+2*h+1}], v[{st}:{st+1}], v[{tm}:{tm+1}] op_sel:[0,0,0] op_sel_hi:[1,0,1]")
                    else:
                        rs = VS[jj] + 2 * h; nm = VS[jj] + 4 + 2 * h
                        k(f"v_pk_mul_f32 v[{tm}:{tm+1}], v[{nm}:{nm+1}], v[152:153] op_sel:[0,0] op_sel_hi:[1,0]")
                        k(f"v_pk_fma_f32 v[{a+2*h}:{a+2*h+1}], v[{a+2*h}:{a+2*h+1}], v[{rs}:{rs+1}], v[{tm}:{tm+1}]")
                k(f"v_cvt_pk_bf16_f32 v{t+2*jj2}, v{a}, v{a+1}")
                k(f"v_cvt_pk_bf16_f32 v{t+2*jj2+1}, v{a+2}, v{a+3}")
            sw = "v_permlane16_swap_b32" if m < 2 else "v_permlane32_swap_b32"
            k(f"{sw} v{t}, v{t+2}")
            k(f"{sw} v{t+1}, v{t+3}")
            so = [[35, 37], [36, 38], [39, 40]][m][p]
            st = f"buffer_store_dwordx4 v[{t}:{t+3}], v{vL16 if m < 2 else vVO}, s[12:15], s{so} offen"
            if DL1 and DLS & 1:
                lsl = k.lab("p1st"); lj = k.lab("p1stj")
                k("s_cmp_eq_u32 s47, 0"); k(f"s_cbranch_scc1 {lsl}"); k(st); k(f"s_branch {lj}"); k(f"{lsl}:"); k(st + SC); k(f"{lj}:")
            else: k(st + SC)
    k.stamp("p1_epi")
    k("s_lshl_b32 s27, s24, 7"); k(f"s_add_u32 s27, s27, {WS_CNT + C2*128}")
    if DL1 and DLS & 2:
        k("s_waitcnt vmcnt(0)"); k("s_barrier")
        l = k.lab("nosig"); lsl = k.lab("sigsl"); lj = k.lab("sigj")
        k("s_cmp_lg_u32 s20, 0"); k(f"s_cbranch_scc1 {l}")
        k("s_mov_b64 exec, 1"); k("v_mov_b32 v30, 1"); k("v_mov_b32 v31, 0")
        k("s_cmp_eq_u32 s47, 0"); k(f"s_cbranch_scc1 {lsl}")
        k(f"s_add_u32 s27, s27, {(C2F - C2)*128}")
        k("buffer_atomic_add v30, v31, s[12:15], s27 offen"); k(f"s_branch {lj}")
        k(f"{lsl}:"); k("buffer_atomic_add v30, v31, s[12:15], s27 offen sc1")
        k(f"{lj}:"); k("s_mov_b64 exec, -1"); k(f"{l}:")
    elif PROG:
        k("s_bfe_u32 s28, s23, 0x20001"); k("s_lshl_b32 s28, s28, 2"); k("s_lshl_b32 s29, 1, s28")
        signal(k, 27, vt=(30, 31), val="s29")
    else: signal(k, 27, vt=(30, 31))
    k.stamp("p1_sig")

W3BASE = 98304
vW3 = [200, 201]
C35 = int(os.environ.get("C35", "0"))
def coords35(k, stb, scb, st, x=21, y=22):
    k_ = k
    def k(l): k_(l.replace("s21", f"s{x}").replace("s22", f"s{y}"))
    k("s_and_b32 s21, s2, 7"); k("s_lshr_b32 s22, s2, 3")
    if C35 == 0:
        k(f"s_and_b32 s{stb}, s21, 3"); k(f"s_lshl_b32 s{stb}, s{stb}, 2"); k(f"s_and_b32 s{st}, s22, 3"); k(f"s_add_u32 s{stb}, s{stb}, s{st}")
        k(f"s_lshr_b32 s{scb}, s21, 2"); k(f"s_lshl_b32 s{scb}, s{scb}, 3"); k(f"s_lshr_b32 s{st}, s22, 2"); k(f"s_add_u32 s{scb}, s{scb}, s{st}")
    elif C35 == 2:
        k(f"s_lshl_b32 s{stb}, s21, 1"); k(f"s_lshr_b32 s{st}, s22, 4"); k(f"s_add_u32 s{stb}, s{stb}, s{st}")
        k(f"s_and_b32 s{scb}, s22, 15")
    elif C35 == 3:
        k(f"s_and_b32 s{stb}, s21, 1"); k(f"s_lshl_b32 s{stb}, s{stb}, 3"); k(f"s_lshr_b32 s{st}, s22, 2"); k(f"s_add_u32 s{stb}, s{stb}, s{st}")
        k(f"s_lshr_b32 s{scb}, s21, 1"); k(f"s_lshl_b32 s{scb}, s{scb}, 2"); k(f"s_and_b32 s{st}, s22, 3"); k(f"s_add_u32 s{scb}, s{scb}, s{st}")
    elif C35 == 4:
        k(f"s_and_b32 s{stb}, s21, 3"); k(f"s_lshl_b32 s{stb}, s{stb}, 2"); k(f"s_lshr_b32 s{st}, s22, 3"); k(f"s_add_u32 s{stb}, s{stb}, s{st}")
        k(f"s_lshr_b32 s{scb}, s21, 2"); k(f"s_and_b32 s{st}, s22, 7"); k(f"s_lshl_b32 s{st}, s{st}, 1"); k(f"s_add_u32 s{scb}, s{scb}, s{st}")
    else:
        k(f"s_and_b32 s{stb}, s21, 3"); k(f"s_lshl_b32 s{stb}, s{stb}, 2"); k(f"s_lshr_b32 s{st}, s22, 3"); k(f"s_add_u32 s{stb}, s{stb}, s{st}")
        k(f"s_lshr_b32 s{scb}, s21, 2"); k(f"s_lshl_b32 s{scb}, s{scb}, 3"); k(f"s_and_b32 s{st}, s22, 7"); k(f"s_add_u32 s{scb}, s{scb}, s{st}")
WT3 = int(os.environ.get("WT3", "0")); WT5 = int(os.environ.get("WT5", "0"))
WDT = int(os.environ.get("WDT", "3"))
WS_WDT = 0x3000000
SK5 = int(os.environ.get("SK5", "1"))
SKX = int(os.environ.get("SKX", "1"))
R5K = int(os.environ.get("R5K", "5"))
WS_XI = 0x3800000
WS_XID = 0x3C00000
SKF = int(os.environ.get("SKF", "1"))
SKA = int(os.environ.get("SKA", "1"))
SKT = int(os.environ.get("SKT", "25"))
SKO = int(os.environ.get("SKO", "3"))
SKG = int(os.environ.get("SKG", "4")); SKPA = int(os.environ.get("SKPA", "3"))
L2P = int(os.environ.get("L2P", "0")); L2S = int(os.environ.get("L2S", "28")); L2T = int(os.environ.get("L2T", "5")); L2D = int(os.environ.get("L2D", "1")); L2G = [int(x) for x in os.environ.get("L2G", "6,2,6").split(",")]
SKR = int(os.environ.get("SKR", "1"))
WDA = int(os.environ.get("WDA", "3")); WDP = int(os.environ.get("WDP", "4"))
def w35_setup(k, vW, base, t, tiled=0):
    coords35(k, 27, 29, 28)
    rb = 128 if tiled else 2048
    wdma_lane(k, vW[0], rb, t)
    k(f"v_add_u32 v{vW[1]}, {4*rb}, v{vW[0]}")
    k("s_lshr_b32 s27, s20, 1"); k("s_lshl_b32 s27, s27, 5"); k("s_and_b32 s28, s20, 1"); k("s_lshl_b32 s28, s28, 4")
    k("s_add_u32 s27, s27, s28")
    if tiled and SK5 and base == 0:
        k("s_and_b32 s27, s20, 3"); k("s_lshl_b32 s27, s27, 4"); k("s_and_b32 s28, s29, 1"); k(f"s_mul_i32 s28, s28, {DF//2}"); k("s_add_u32 s27, s27, s28")
        k("s_lshr_b32 s28, s20, 2"); k("s_xor_b32 s28, s28, 1"); k("s_xor_b32 s29, s29, s28")
    if SK3 and base and not tiled:
        k("s_and_b32 s27, s20, 3"); k("s_lshl_b32 s27, s27, 4"); k("s_and_b32 s28, s29, 1"); k(f"s_mul_i32 s28, s28, {D//2}"); k("s_add_u32 s27, s27, s28")
        k("s_lshr_b32 s28, s20, 2"); k("s_xor_b32 s28, s28, 1"); k("s_xor_b32 s29, s29, s28")
    if tiled:
        k("s_lshl_b32 s50, s27, 7"); k(f"s_mul_i32 s28, s29, {tiled*128}"); k("s_add_u32 s50, s50, s28")
        if WDT and base == 0: k(f"s_add_u32 s50, s50, {WS_WDT}")
    else:
        k("s_lshl_b32 s50, s27, 11"); k("s_lshl_b32 s28, s29, 7"); k("s_add_u32 s50, s50, s28")
        if os.environ.get("WOFF64") and base == 0: k("s_add_u32 s50, s50, 64")
    k("s_lshl_b32 s51, s20, 11")
    if base: k(f"s_add_u32 s51, s51, {base}")
def w35_dma(vW, srdw, slot):
    sc = SC if srdw == 12 else ""
    return [[f"s_add_u32 m0, s51, {slot*16384}", f"buffer_load_dwordx4 v{vW[0]}, s[{srdw}:{srdw+3}], s50 offen{sc} lds"],
            [f"s_add_u32 m0, s51, {slot*16384+1024}", f"buffer_load_dwordx4 v{vW[1]}, s[{srdw}:{srdw+3}], s50 offen{sc} lds"]]
W3ADV = f"s_add_u32 s50, s50, {(64 if SK3 else 128)*(128 if WT3 else 2048)}"
W5ADV = f"s_add_u32 s50, s50, {(64 if SK5 else 128)*(128 if WT5 or WDT else 2048)}"
SW5 = 12 if WDT else 60

WOPF = int(os.environ.get("WOPF", "0"))
OT = int(os.environ.get("OT", "0"))
def phase2(k):
    S2 = [SC, "", " nt", " sc0"][int(os.environ.get("DLL", "0"))]
    STG = 32768
    vL16, vCur, vNxt, vTmp = 2, 3, 4, 5
    QA, QB = 8, 16
    KF = [24, 32]; VF = [40, 48]
    SA, SB = 56, 72
    PA, PB = 88, 96
    OA, OB = 104, 120
    LA, LB = 136, 140
    NA, NB = 144, 160
    ONE = 176
    T0 = 180
    w35_setup(k, vW3, W3BASE, 180, D if WT3 else 0)
    srd(k, 8, pBX if WT3 else pWO, D * D * 2)
    k("s_and_b32 s21, s2, 7"); k("s_lshl_b32 s21, s21, 2"); k("s_lshr_b32 s22, s2, 6"); k("s_add_u32 s21, s21, s22")
    k("s_bfe_u32 s22, s2, 0x30003")
    k("s_and_b32 s23, s20, 3")
    k("s_lshr_b32 s24, s20, 2")
    k(f"v_lshlrev_b32 v{vL16}, 4, v1")
    k("s_lshl_b32 s30, s24, 5"); k("s_add_u32 s30, s30, s23"); k("s_lshl_b32 s30, s30, 16")
    k("s_lshl_b32 s25, s21, 11"); k("s_add_u32 s30, s30, s25"); k(f"s_add_u32 s30, s30, {WS_K}")
    k("s_lshl_b32 s31, s21, 7"); k("s_lshl_b32 s25, s24, 6"); k("s_add_u32 s31, s31, s25")
    k("s_lshl_b32 s25, s23, 1"); k("s_add_u32 s31, s31, s25"); k("s_lshl_b32 s31, s31, 10"); k(f"s_add_u32 s31, s31, {WS_VT}")
    k("s_lshl_b32 s32, s24, 14"); k("s_lshl_b32 s25, s23, 11"); k("s_add_u32 s32, s32, s25")
    k("s_lshl_b32 s33, s22, 3"); k("s_lshl_b32 s25, s23, 1"); k("s_add_u32 s33, s33, s25"); k("s_lshl_b32 s33, s33, 16")
    k("s_lshl_b32 s25, s21, 11"); k("s_add_u32 s33, s33, s25")
    k(f"s_add_u32 s45, s33, {WS_O}")
    k(f"s_add_u32 s33, s33, {WS_Q}")
    k("s_add_u32 s34, s33, 65536")
    k(f"v_lshrrev_b32 v{vTmp}, 2, v1"); k(f"v_lshrrev_b32 v{T0}, 4, v1"); k(f"v_xor_b32 v{vTmp}, v{vTmp}, v{T0}")
    k(f"v_and_b32 v{vTmp}, 1, v{vTmp}"); k(f"v_cmp_eq_u32 vcc, 0, v{vTmp}")
    k(f"v_mov_b32 v{T0}, 0x3f803f80")
    k(f"v_cndmask_b32 v{ONE}, 0, v{T0}, vcc")
    for r in range(1, 4): k(f"v_mov_b32 v{ONE+r}, v{ONE}")
    for r in range(32): k(f"v_mov_b32 v{NA+r}, 0")
    k("s_mov_b32 s46, 0")
    k("s_lshl_b32 s25, s24, 14")
    k(f"v_add_u32 v{vTmp}, s25, v{vL16}")
    if PFW:
        k("s_lshl_b32 s25, s2, 3"); k("s_add_u32 s25, s25, s20")
        k("s_mul_i32 s26, s25, 3584")
        k(f"v_lshlrev_b32 v198, 6, v1"); k("v_add_u32 v198, s26, v198")
        srd(k, 88, pWO, D * D * 2)
        k(f"s_mov_b64 s[92:93], s[{pWG}:{pWG+1}]"); k(f"s_mov_b64 s[94:95], s[{pWU}:{pWU+1}]"); k(f"s_mov_b64 s[96:97], s[{pWD}:{pWD+1}]")
    WDR, vWDS = 208, 224
    if JIT & 2: k("s_mov_b32 s52, L_p2tail-L_cb")
    if WDT:
        srd(k, 60, pWD, DF * D * 2)
        k(f"v_lshrrev_b32 v{vWDS}, 3, v1"); k(f"s_mov_b32 s26, {DF*128}"); k(f"v_mul_lo_u32 v{vWDS}, v{vWDS}, s26")
        k(f"v_and_b32 v{vWDS+1}, 7, v1"); k(f"v_lshl_add_u32 v{vWDS}, v{vWDS+1}, 4, v{vWDS}")
        k("s_mul_i32 s98, s2, 14"); k("s_lshl_b32 s26, s20, 1"); k("s_add_u32 s98, s98, s26"); k("s_lshl_b32 s98, s98, 7")
        k(f"s_add_u32 s98, s98, {WS_WDT - 256}"); k(f"s_add_u32 s99, s98, {8*DF*128}")
        k("s_mul_i32 s100, s2, 28672"); k("s_lshl_b32 s26, s20, 12"); k("s_add_u32 s100, s100, s26"); k("s_sub_u32 s100, s100, 4096")
        k("s_cmp_eq_u32 s20, 0"); k(f"s_cselect_b32 s101, 99, {WDA}")
        if WDT == 3: k(f"s_cselect_b32 s101, 99, {hex((-WDA - 1) & 0xffffffff)}")
        if WDT >= 2:
            assert WDA % 2 == 1
            k(f"s_sub_u32 s98, s98, {128 * ((WDA + 1) // 2)}"); k(f"s_mov_b32 s99, {8*DF*128}"); k(f"s_sub_u32 s100, s100, {1024*WDA}")
    if SK5 and SKX:
        lf = k.lab("nofill")
        k("s_cmp_lt_u32 s20, 4"); k(f"s_cbranch_scc1 {lf}")
        coords35(k, 27, 29, 28, 25, 26)
        k("s_lshl_b32 s27, s27, 4"); k("s_add_u32 s29, s27, s29")
        k("s_lshl_b32 s27, s29, 14"); k("s_and_b32 s28, s20, 3"); k("s_lshl_b32 s28, s28, 12"); k("s_add_u32 s27, s27, s28"); k(f"s_add_u32 s27, s27, {WS_XI}")
        for r in range(4): k(f"v_mov_b32 v{KF[1]+r}, -1")
        for q in range(4): k(f"buffer_store_dwordx4 v[{KF[1]}:{KF[1]+3}], v{vL16}, s[12:15], s27 offen offset:{1024*q}{SC}")
        if SKF:
            k("s_getreg_b32 s26, hwreg(HW_REG_XCC_ID, 0, 4)")
            k("s_lshl_b32 s27, s29, 10"); k("s_lshr_b32 s28, s28, 4"); k("s_add_u32 s27, s27, s28"); k(f"s_add_u32 s27, s27, {WS_XID}")
            k(f"v_mov_b32 v{KF[1]+4}, s26"); k(f"v_lshlrev_b32 v{KF[1]+5}, 2, v1")
            k(f"buffer_store_dword v{KF[1]+4}, v{KF[1]+5}, s[12:15], s27 offen{SC}")
        if SK3:
            k("s_lshr_b32 s27, s21, 4"); k("s_lshl_b32 s29, s22, 1"); k("s_add_u32 s29, s29, s27"); k("s_lshl_b32 s29, s29, 4"); k("s_and_b32 s27, s21, 15"); k("s_add_u32 s29, s29, s27")
            k("s_and_b32 s28, s20, 3"); k("s_lshl_b32 s28, s28, 12"); k("s_lshl_b32 s27, s29, 14"); k("s_add_u32 s27, s27, s28"); k(f"s_add_u32 s27, s27, {WS_XI3}")
            for q in range(4): k(f"buffer_store_dwordx4 v[{KF[1]}:{KF[1]+3}], v{vL16}, s[12:15], s27 offen offset:{1024*q}{SC}")
            k("s_lshr_b32 s28, s28, 3"); k("s_lshl_b32 s27, s29, 11"); k("s_add_u32 s27, s27, s28"); k(f"s_add_u32 s27, s27, {WS_XM3}")
            k(f"v_lshlrev_b32 v{KF[1]+6}, 3, v1")
            k(f"buffer_store_dwordx2 v[{KF[1]}:{KF[1]+1}], v{KF[1]+6}, s[12:15], s27 offen{SC}")
        k(f"{lf}:")
    if QKS:
        k(f"v_mul_u32_u24 v{T0+1}, {QKS}, v1"); k("s_lshr_b32 s27, s21, 1"); k(f"v_sub_u32 v{T0+1}, s27, v{T0+1}")
        k(f"v_and_b32 v{T0+1}, 15, v{T0+1}"); k(f"v_lshlrev_b32 v{T0+1}, 7, v{T0+1}")
        k(f"s_mov_b32 s27, {WS_CNT + C2*128}")
        wait_multi(k, 27, 16, 3, vt=(T0, T0 + 1))
    else:
        k("s_lshr_b32 s27, s21, 1"); k("s_lshl_b32 s27, s27, 7"); k(f"s_add_u32 s27, s27, {WS_CNT + C2*128}")
        if DL1 and DLS & 2: k(f"s_mul_i32 s28, s47, {(C2F - C2)*128}"); k("s_add_u32 s27, s27, s28")
        if PROG:
            assert PD == 1 and not DL1 and not JIT
            k("s_mov_b32 s52, s27"); k("s_and_b32 s56, s22, 3")
            k("s_lshl_b32 s28, s56, 19"); k("s_add_u32 s53, s30, s28"); k("s_lshl_b32 s28, s56, 14"); k("s_add_u32 s54, s31, s28")
            k(f"s_add_u32 s55, s30, {8*4*65536}"); k("s_lshl_b32 s56, s56, 2"); k("s_lshl_b32 s56, 15, s56")
            if PROG == 2:
                k("s_mov_b32 s53, s30"); k("s_mov_b32 s54, s31"); k("s_or_b32 s56, s56, 15")
            if PROG == 3:
                k("s_and_b32 s57, s22, 2"); k("s_lshl_b32 s28, s57, 19"); k("s_add_u32 s53, s30, s28"); k("s_lshl_b32 s28, s57, 14"); k("s_add_u32 s54, s31, s28")
                k("s_lshl_b32 s57, s57, 2"); k("s_lshl_b32 s57, 15, s57"); k("s_or_b32 s56, s56, s57")
            k("s_and_b32 s57, s56, 0x4444")
            wait(k, 27, "s57", vt=(T0, T0 + 1), fld=56)
        else: wait(k, 27, 16, vt=(T0, T0 + 1), pr=KF[0])
    k.stamp("p2_wait")
    for kk in range(2):
        k(f"buffer_load_dwordx4 v[{QA+4*kk}:{QA+4*kk+3}], v{vL16}, s[12:15], s33 offen offset:{1024*kk}{S2}")
        k(f"buffer_load_dwordx4 v[{QB+4*kk}:{QB+4*kk+3}], v{vL16}, s[12:15], s34 offen offset:{1024*kk}{S2}")
    def dma_stage():
        k("s_add_u32 m0, s42, s32")
        k(f"buffer_load_dwordx4 v{vL16}, s[12:15], s40 offen{S2} lds")
        k(f"buffer_load_dwordx4 v{vL16}, s[12:15], s40 offen offset:1024{S2} lds")
        k("s_add_u32 m0, m0, 8192")
        k(f"buffer_load_dwordx4 v{vL16}, s[12:15], s41 offen{S2} lds")
        k(f"buffer_load_dwordx4 v{vL16}, s[12:15], s41 offen offset:1024{S2} lds")
        k(f"s_add_u32 s40, s40, {4*65536}")
        k("s_add_u32 s41, s41, 8192")
        if PROG: k("s_cmp_eq_u32 s40, s55"); k("s_cselect_b32 s40, s30, s40"); k("s_cselect_b32 s41, s31, s41")
    lmain = k.lab("p2main"); lloop = k.lab("p2loop"); lfin = k.lab("p2fin"); lfb = k.lab("p2fb"); lend = k.lab("p2end")
    k(f"{lmain}:")
    if PROG: k("s_mov_b32 s40, s53"); k("s_mov_b32 s41, s54")
    else: k("s_mov_b32 s40, s30"); k("s_mov_b32 s41, s31")
    k("s_mov_b32 s42, 0"); dma_stage()
    k(f"s_mov_b32 s42, {STG}"); dma_stage()
    k(f"s_mov_b32 s42, {2*STG}")
    k(f"v_mov_b32 v{vCur}, v{vTmp}")
    k(f"v_add_u32 v{vNxt}, {STG}, v{vTmp}")
    k(f"s_mov_b32 s43, {STG}")
    for r in range(16): k(f"v_mov_b32 v{OA+r}, 0"); k(f"v_mov_b32 v{OB+r}, 0")
    for r in range(4): k(f"v_mov_b32 v{LA+r}, 0"); k(f"v_mov_b32 v{LB+r}, 0")
    for r in range(8): k(f"v_mov_b32 v{PB+r}, 0"); k(f"v_mov_b32 v{VF[1]+r}, 0")
    def wo_ring():
        lnp = k.lab("p2nopf")
        k("s_cmp_lg_u32 s46, 0"); k(f"s_cbranch_scc1 {lnp}")
        for t in range(4):
            for d in w35_dma(vW3, 8, t):
                for l in d: k(l)
            k(W3ADV)
        k(f"{lnp}:")
    if WOPF == 0:
        lnp = k.lab("p2nopf"); lj = k.lab("p2pfj")
        k("s_cmp_lg_u32 s46, 0"); k(f"s_cbranch_scc1 {lnp}")
        for t in range(4):
            for d in w35_dma(vW3, 8, t):
                for l in d: k(l)
            k(W3ADV)
        k("s_waitcnt vmcnt(12)")
        k(f"s_branch {lj}")
        k(f"{lnp}:")
        k("s_waitcnt vmcnt(4)")
        k(f"{lj}:")
    else:
        k("s_waitcnt vmcnt(4)")
    k("s_barrier")
    k.stamp("p2_go")
    if WOPF == 1: wo_ring()
    if PROG: k(f"v_mov_b32 v{T0+1}, 0"); k(f"buffer_load_dword v{T0}, v{T0+1}, s[12:15], s52 offen sc1")
    for kk in range(2):
        k(f"ds_read_b128 v[{KF[0]+4*kk}:{KF[0]+4*kk+3}], v{vCur} offset:{1024*kk}")
    k("s_waitcnt lgkmcnt(0)")
    def qk(Sx, Qx, Nx, kf):
        return [f"v_mfma_f32_32x32x16_bf16 v[{Sx}:{Sx+15}], v[{kf}:{kf+3}], v[{Qx}:{Qx+3}], v[{Nx}:{Nx+15}]",
                f"v_mfma_f32_32x32x16_bf16 v[{Sx}:{Sx+15}], v[{kf+4}:{kf+7}], v[{Qx+4}:{Qx+7}], v[{Sx}:{Sx+15}]"]
    def pv(Ox, Px, Lx, vf):
        return [f"v_mfma_f32_32x32x16_bf16 v[{Ox}:{Ox+15}], v[{vf}:{vf+3}], v[{Px}:{Px+3}], v[{Ox}:{Ox+15}]",
                f"v_mfma_f32_32x32x16_bf16 v[{Ox}:{Ox+15}], v[{vf+4}:{vf+7}], v[{Px+4}:{Px+7}], v[{Ox}:{Ox+15}]",
                f"v_mfma_f32_16x16x32_bf16 v[{Lx}:{Lx+3}], v[{ONE}:{ONE+3}], v[{Px}:{Px+3}], v[{Lx}:{Lx+3}]",
                f"v_mfma_f32_16x16x32_bf16 v[{Lx}:{Lx+3}], v[{ONE}:{ONE+3}], v[{Px+4}:{Px+7}], v[{Lx}:{Lx+3}]"]
    def expv(Sx, Px):
        o = []
        for g in range(4):
            o += [f"v_exp_f32 v{Sx+4*g+r}, v{Sx+4*g+r}" for r in range(4)]
            o += [f"v_cvt_pk_bf16_f32 v{Px+2*g}, v{Sx+4*g}, v{Sx+4*g+1}", f"v_cvt_pk_bf16_f32 v{Px+2*g+1}, v{Sx+4*g+2}, v{Sx+4*g+3}"]
        return o
    def phase(mf, va, extra):
        for i in range(6):
            k(mf[i])
            for (p, l) in extra:
                if p == i: k(l)
            for l in va[4*i:4*i+4]: k(l)
    for l in qk(SA, QA, NA, KF[0]): k(l)
    k("s_mov_b32 s44, 0")
    k(f"{lloop}:")
    for i in range(4):
        cb = i & 1; nb = cb ^ 1
        ex = []
        if i == 3:
            lnd = k.lab("nodma")
            k(f"s_waitcnt vmcnt({(1 if PFW and PFI < 3 else 0) + (1 if JIT & 2 else 0)})")
            k("s_barrier")
            k("s_cmp_ge_u32 s44, 6")
            k(f"s_cbranch_scc1 {lnd}")
            if PROG:
                lok = k.lab("p2all"); lsp = k.lab("p2spin")
                k("s_cmp_lg_u32 s44, 0"); k(f"s_cbranch_scc1 {lok}")
                k("s_mov_b32 s28, 0")
                k(f"{lsp}:")
                k(f"v_readfirstlane_b32 s29, v{T0}")
                k("s_cmp_eq_u32 s29, 0x4444"); k(f"s_cbranch_scc1 {lok}")
                k("s_add_u32 s28, s28, 1")
                k(f"s_cmp_gt_u32 s28, {SPIN_LIMIT}"); k(f"s_cbranch_scc1 {lok}")
                k(f"buffer_load_dword v{T0}, v{T0+1}, s[12:15], s52 offen sc1")
                k("s_waitcnt vmcnt(0)")
                k(f"s_branch {lsp}")
                k(f"{lok}:")
            dma_stage()
            k(f"s_add_u32 s42, s42, {STG}")
            k(f"s_cmp_eq_u32 s42, {3*STG}")
            k("s_cselect_b32 s42, 0, s42")
            k(f"{lnd}:")
            if WDT == 1:
                lw = k.lab("nowd"); ls = k.lab("wdst")
                k("s_sub_u32 s27, s44, s101"); k("s_cmp_lt_u32 s27, 2"); k(f"s_cbranch_scc0 {lw}")
                k("s_cmp_eq_u32 s27, 1"); k(f"s_cbranch_scc1 {ls}")
                for q in range(4):
                    k(f"buffer_load_dwordx4 v[{WDR+4*q}:{WDR+4*q+3}], v{vL16}, s[60:63], s100 offen offset:{1024*q}")
                k(f"s_branch {lw}")
                k(f"{ls}:")
                for q in range(4):
                    k(f"buffer_store_dwordx4 v[{WDR+4*q}:{WDR+4*q+3}], v{vWDS}, s[12:15], s{98 + (q & 1)} offen offset:{128*(q>>1)}{SC}")
                k(f"{lw}:")
            if WDT == 2:
                k("s_sub_u32 s27, s44, s101"); k("s_sub_u32 s27, s27, 1")
                k("s_cmp_lt_u32 s27, 4"); k("s_cselect_b64 exec, -1, 0")
                k(f"buffer_store_dwordx4 v[{WDR}:{WDR+3}], v{vWDS}, s[12:15], s98 offen{SC}")
                k("s_add_u32 s27, s27, 1")
                k("s_cmp_lt_u32 s27, 4"); k("s_cselect_b64 exec, -1, 0")
                k(f"buffer_load_dwordx4 v[{WDR}:{WDR+3}], v{vL16}, s[60:63], s100 offen")
                k("s_mov_b64 exec, -1")
                k("s_add_u32 s98, s98, s99"); k("s_sub_u32 s99, 128, s99"); k("s_add_u32 s100, s100, 1024")
        if i == PFI and PFW:
            ex += [(4, "buffer_load_dword v199, v198, s[88:91], 0 offen"),
                   (5, "s_mov_b64 s[88:89], s[92:93]"), (5, "s_mov_b64 s[92:93], s[94:95]"), (5, "s_mov_b64 s[94:95], s[96:97]"),
                   (5, f"s_cmp_lt_u32 s44, {2 if WDT else 3}"), (5, f"s_cselect_b32 s90, {hex(D*DF*2)}, 0")]
        if i == 0 and JIT & 2:
            ex += [(5, "buffer_load_dword v231, v252, s[80:83], s52 offen")]
        for kk in range(2):
            if i < 3: ex.append((kk, f"ds_read_b128 v[{KF[nb]+4*kk}:{KF[nb]+4*kk+3}], v{vCur} offset:{(i+1)*2048 + 1024*kk}"))
            else:     ex.append((kk, f"ds_read_b128 v[{KF[nb]+4*kk}:{KF[nb]+4*kk+3}], v{vNxt} offset:{1024*kk}"))
        for mm in range(2):
            ex.append((2 + mm, f"ds_read_b128 v[{VF[cb]+4*mm}:{VF[cb]+4*mm+3}], v{vCur} offset:{8192 + i*2048 + 1024*mm}"))
        phase(qk(SB, QB, NB, KF[cb]) + pv(OB, PB, LB, VF[nb]), expv(SA, PA), ex)
        k("s_waitcnt lgkmcnt(0)")
        ex = []
        if i == 3:
            ex = [(0, f"v_mov_b32 v{vCur}, v{vNxt}"), (1, f"s_add_u32 s43, s43, {STG}"), (1, f"s_cmp_eq_u32 s43, {3*STG}"),
                  (2, "s_cselect_b32 s43, 0, s43"), (3, f"v_add_u32 v{vNxt}, s43, v{vTmp}")]
            if WDT == 3:
                p = WDP
                ex += [(p, x) for x in ("s_cmp_lt_u32 s101, 4", "s_cselect_b64 exec, -1, 0",
                       f"buffer_store_dwordx4 v[{WDR}:{WDR+3}], v{vWDS}, s[12:15], s98 offen{SC}",
                       "s_add_u32 s101, s101, 1", "s_cmp_lt_u32 s101, 4", "s_cselect_b64 exec, -1, 0",
                       f"buffer_load_dwordx4 v[{WDR}:{WDR+3}], v{vL16}, s[60:63], s100 offen", "s_mov_b64 exec, -1")]
                ex += [(5, x) for x in ("s_add_u32 s98, s98, s99", "s_sub_u32 s99, 128, s99", "s_add_u32 s100, s100, 1024")]
        phase(qk(SA, QA, NA, KF[nb]) + pv(OA, PA, LA, VF[cb]), expv(SB, PB), ex)
    k("s_add_u32 s44, s44, 1")
    k("s_cmp_lt_u32 s44, 8")
    k(f"s_cbranch_scc1 {lloop}")
    if JIT & 2: k("L_p2tail:")
    for l in pv(OB, PB, LB, VF[1]): k(l)
    k.stamp("p2_loop")
    if WOPF == 2: wo_ring()
    k("s_nop 7"); k("s_nop 3")
    lns = k.lab("nosw")
    k("s_cmp_eq_u32 s24, 0")
    k(f"s_cbranch_scc1 {lns}")
    for r in range(16): k(f"v_swap_b32 v{OA+r}, v{OB+r}")
    k(f"v_swap_b32 v{LA}, v{LB}")
    k(f"{lns}:")
    k("s_barrier")
    k("s_mul_i32 s25, s20, 5120")
    k(f"v_add_u32 v{T0}, s25, v{vL16}")
    k(f"v_lshlrev_b32 v{T0+1}, 2, v1"); k(f"v_add_u32 v{T0+1}, s25, v{T0+1}")
    for i in range(4): k(f"ds_write_b128 v{T0}, v[{OB+4*i}:{OB+4*i+3}] offset:{1024*i}")
    k(f"ds_write_b32 v{T0+1}, v{LB} offset:4096")
    k("s_xor_b32 s26, s20, 4"); k("s_mul_i32 s25, s26, 5120")
    k(f"v_add_u32 v{T0}, s25, v{vL16}")
    k(f"v_lshlrev_b32 v{T0+1}, 2, v1"); k(f"v_add_u32 v{T0+1}, s25, v{T0+1}")
    k("s_waitcnt lgkmcnt(0)")
    k("s_barrier")
    for i in range(4): k(f"ds_read_b128 v[{OB+4*i}:{OB+4*i+3}], v{T0} offset:{1024*i}")
    k(f"ds_read_b32 v{LB}, v{T0+1} offset:4096")
    k("s_waitcnt lgkmcnt(0)")
    k(f"v_add_f32 v{LA}, v{LA}, v{LB}")
    for r in range(16): k(f"v_add_f32 v{OA+r}, v{OA+r}, v{OB+r}")
    k("s_cmp_lg_u32 s46, 0")
    k(f"s_cbranch_scc1 {lfin}")
    k(f"v_mov_b32 v{T0+2}, v{LA}")
    for r in range(16): k(f"v_fma_f32 v{T0+2}, v{OA+r}, 0, v{T0+2}")
    k(f"v_mov_b32 v{T0+3}, 0x71800000")
    k(f"v_cmp_le_f32 vcc, 1.0, v{T0+2}")
    k(f"v_cmp_le_f32 s[48:49], v{T0+2}, v{T0+3}")
    k("s_and_b64 vcc, vcc, s[48:49]")
    k("s_cmp_eq_u64 vcc, -1")
    k("s_cselect_b32 s47, 0, 1")
    k(f"v_mov_b32 v{T0+2}, s47")
    k(f"s_lshl_b32 s25, s20, 2"); k(f"v_mov_b32 v{T0+3}, s25")
    k(f"ds_write_b32 v{T0+3}, v{T0+2} offset:45056")
    k("s_waitcnt lgkmcnt(0)")
    k("s_barrier")
    k(f"v_mov_b32 v{T0+3}, 0")
    k(f"ds_read_b128 v[{T0+4}:{T0+7}], v{T0+3} offset:45056")
    k(f"ds_read_b128 v[{T0+8}:{T0+11}], v{T0+3} offset:45072")
    k("s_waitcnt lgkmcnt(0)")
    k(f"v_or3_b32 v{T0+4}, v{T0+4}, v{T0+5}, v{T0+6}")
    k(f"v_or3_b32 v{T0+8}, v{T0+8}, v{T0+9}, v{T0+10}")
    k(f"v_or3_b32 v{T0+4}, v{T0+4}, v{T0+7}, v{T0+11}")
    k(f"v_or_b32 v{T0+4}, v{T0+4}, v{T0+8}")
    k(f"v_readfirstlane_b32 s47, v{T0+4}")
    k("s_cmp_lg_u32 s47, 0")
    k(f"s_cbranch_scc1 {lfb}")
    k(f"{lfin}:")
    k(f"v_rcp_f32 v{LA}, v{LA}")
    for g in range(4):
        for r in range(4): k(f"v_mul_f32 v{OA+4*g+r}, v{OA+4*g+r}, v{LA}")
        k(f"v_cvt_pk_bf16_f32 v{SA+2*g}, v{OA+4*g}, v{OA+4*g+1}")
        k(f"v_cvt_pk_bf16_f32 v{SA+2*g+1}, v{OA+4*g+2}, v{OA+4*g+3}")
    k("s_lshl_b32 s25, s24, 16"); k("s_add_u32 s45, s45, s25")
    for p in range(2):
        k(f"v_permlane32_swap_b32 v{SA+4*p}, v{SA+4*p+2}")
        k(f"v_permlane32_swap_b32 v{SA+4*p+1}, v{SA+4*p+3}")
        k(f"buffer_store_dwordx4 v[{SA+4*p}:{SA+4*p+3}], v{vL16}, s[12:15], s45 offen offset:{1024*p}{SC}")
    k(f"s_branch {lend}")
    k(f"{lfb}:")
    k("s_mov_b32 s46, 1")
    if WDT: k("s_mov_b32 s101, 99")
    k("s_barrier")
    MA, MB = T0 + 2, T0 + 3
    k(f"v_mov_b32 v{MA}, 0xff800000"); k(f"v_mov_b32 v{MB}, 0xff800000")
    k("s_lshl_b32 s40, s24, 21"); k("s_lshl_b32 s25, s21, 11"); k("s_add_u32 s40, s40, s25"); k(f"s_add_u32 s40, s40, {WS_K}")
    k("s_mov_b32 s44, 0")
    lfl = k.lab("p2fbl")
    k(f"{lfl}:")
    for kk in range(2):
        k(f"buffer_load_dwordx4 v[{KF[0]+4*kk}:{KF[0]+4*kk+3}], v{vL16}, s[12:15], s40 offen offset:{1024*kk}{SC}")
    k("s_waitcnt vmcnt(0)")
    for (Sx, Qx) in ((SA, QA), (SB, QB)):
        k(f"v_mfma_f32_32x32x16_bf16 v[{Sx}:{Sx+15}], v[{KF[0]}:{KF[0]+3}], v[{Qx}:{Qx+3}], 0")
        k(f"v_mfma_f32_32x32x16_bf16 v[{Sx}:{Sx+15}], v[{KF[0]+4}:{KF[0]+7}], v[{Qx+4}:{Qx+7}], v[{Sx}:{Sx+15}]")
    for (Sx, Mx) in ((SA, MA), (SB, MB)):
        for r in range(0, 16, 2): k(f"v_max3_f32 v{Mx}, v{Mx}, v{Sx+r}, v{Sx+r+1}")
    k("s_add_u32 s40, s40, 65536")
    k("s_add_u32 s44, s44, 1")
    k("s_cmp_lt_u32 s44, 32")
    k(f"s_cbranch_scc1 {lfl}")
    for Mx in (MA, MB):
        k(f"v_mov_b32 v{T0+4}, v{Mx}")
        k(f"v_permlane32_swap_b32 v{Mx}, v{T0+4}")
        k(f"v_max_f32 v{Mx}, v{Mx}, v{T0+4}")
    k("s_lshl_b32 s25, s20, 9")
    k(f"v_lshlrev_b32 v{T0+4}, 3, v1"); k(f"v_add_u32 v{T0+5}, s25, v{T0+4}")
    k(f"ds_write_b64 v{T0+5}, v[{MA}:{MB}]")
    k("s_xor_b32 s26, s20, 4"); k("s_lshl_b32 s25, s26, 9")
    k(f"v_add_u32 v{T0+5}, s25, v{T0+4}")
    k("s_waitcnt lgkmcnt(0)")
    k("s_barrier")
    k(f"ds_read_b64 v[{T0+6}:{T0+7}], v{T0+5}")
    k("s_waitcnt lgkmcnt(0)")
    k(f"v_max_f32 v{MA}, v{MA}, v{T0+6}")
    k(f"v_max_f32 v{MB}, v{MB}, v{T0+7}")
    for r in range(16):
        k(f"v_sub_f32 v{NA+r}, 0, v{MA}")
        k(f"v_sub_f32 v{NB+r}, 0, v{MB}")
    k("s_barrier")
    k(f"s_branch {lmain}")
    k(f"{lend}:")
    k.stamp("p2_epi")
    k("s_lshl_b32 s27, s22, 7"); k(f"s_add_u32 s27, s27, {WS_CNT + C3*128}")
    signal(k, 27, vt=(T0, T0 + 1))
    k.stamp("p2_sig")

SLOT4 = 30720; UOFF = 7168; BOFF4 = 14336
RMOFF = 75776; XMOFF = 83968; HKOFF = 147456
vPW = 202
vW5 = [240, 241]
NPF5 = int(os.environ.get("NPF5", "3"))
NS5 = int(os.environ.get("NS5", "5")); R3 = int(os.environ.get("R3", "4")); R5 = int(os.environ.get("R5", "6"))
def w4_piece_lane(k, vdst, vidx, t):
    k(f"v_mul_u32_u24 v{t}, 4682, v{vidx}"); k(f"v_lshrrev_b32 v{t}, 16, v{t}")
    k(f"v_mul_u32_u24 v{t+1}, 14, v{t}"); k(f"v_sub_u32 v{t+1}, v{vidx}, v{t+1}")
    k(f"v_and_b32 v{t+2}, 0x33, v{t}")
    k(f"v_bfe_u32 v{vidx}, v{t}, 2, 1"); k(f"v_lshl_add_u32 v{t+2}, v{vidx}, 3, v{t+2}")
    k(f"v_bfe_u32 v{vidx}, v{t}, 3, 1"); k(f"v_lshl_add_u32 v{t+2}, v{vidx}, 2, v{t+2}")
    k(f"v_mul_u32_u24 v{t+2}, 7168, v{t+2}")
    k(f"v_lshl_add_u32 v{vdst}, v{t+1}, 4, v{t+2}")
def coords4(k, stb, scb, st):
    k("s_and_b32 s21, s2, 7"); k("s_lshr_b32 s22, s2, 3")
    k(f"s_and_b32 s{stb}, s21, 1"); k(f"s_lshl_b32 s{stb}, s{stb}, 2"); k(f"s_and_b32 s{st}, s22, 3"); k(f"s_add_u32 s{stb}, s{stb}, s{st}")
    k(f"s_lshr_b32 s{scb}, s21, 1"); k(f"s_lshl_b32 s{scb}, s{scb}, 3"); k(f"s_lshr_b32 s{st}, s22, 2"); k(f"s_add_u32 s{scb}, s{scb}, s{st}")
def pf4_setup(k, t):
    coords4(k, 27, 29, 28)
    k("s_mul_i32 s40, s29, 224")
    k("s_min_u32 s27, s20, 6"); k("s_lshl_b32 s42, s27, 10"); k("s_lshl_b32 s27, s27, 6")
    k(f"v_add_u32 v{t+3}, s27, v1")
    w4_piece_lane(k, vPW, t + 3, t)
    srd(k, 52, pWG, D * DF * 2); srd(k, 56, pWU, D * DF * 2)
def pf4(tile):
    o = []
    for m in range(2):
        g = []
        if m == 0: g.append(f"s_add_u32 s41, s40, {tile*32*7168}")
        g += [f"s_add_u32 m0, s42, {tile*SLOT4 + m*UOFF}", f"buffer_load_dwordx4 v{vPW}, s[{52+4*m}:{55+4*m}], s41 offen lds"]
        o.append(g)
    return o

JS3 = int(os.environ.get("JS3", "2")); JT4 = int(os.environ.get("JT4", "28"))
def phase35(k, kind):
    wo = kind == "wo"
    KD = D if wo else DF
    NT = KD // 128
    NS = 4 if wo else NS5
    R = R3 if wo else R5
    WSB = WS_O if wo else WS_HM
    T32B = KD * 64
    base = W3BASE if wo else 0
    vW = vW3 if wo else vW5
    WADV = W3ADV if wo else W5ADV
    SW = 8 if wo else SW5
    vA = [2, 3, 4, 5]; vBj = [6, 7]; vR = 10; vO = 11; vT = 12; vRM = 8; vHK = 9
    RES = 16; A = [24, 40]; ACC = 56; ACM = 88; RMF = [96, 100]; BR = 104
    MX = 15
    acc = lambda i, j: ACC + (j * 4 + i) * 4
    pre = "p3" if wo else "p5"
    coords35(k, 23, 24, 25)
    k("s_and_b32 s25, s20, 3")
    k("s_lshr_b32 s26, s20, 2")
    k("s_lshl_b32 s31, s23, 2"); k("s_add_u32 s31, s31, s25"); k(f"s_mul_i32 s31, s31, {T32B}")
    k("s_lshl_b32 s28, s26, 12"); k("s_add_u32 s31, s31, s28"); k(f"s_add_u32 s31, s31, {WSB}")
    k(f"v_lshrrev_b32 v{vT}, 4, v1"); k(f"v_and_b32 v{vT+1}, 15, v1")
    k(f"v_lshlrev_b32 v{vT+2}, 4, v{vT+1}"); k(f"v_lshl_add_u32 v{vT+2}, v{vT}, 9, v{vT+2}")
    k("s_lshl_b32 s28, s26, 8")
    k(f"v_add_u32 v{vBj[0]}, s28, v{vT+2}")
    k(f"v_xor_b32 v{vBj[1]}, 256, v{vBj[0]}")
    k(f"v_and_b32 v{vT+2}, 1, v{vT}"); k(f"v_lshlrev_b32 v{vT+2}, 1, v{vT+2}"); k(f"v_lshrrev_b32 v{vT+3}, 1, v{vT}")
    k(f"v_add_u32 v{vT+2}, v{vT+2}, v{vT+3}")
    rm = vR if wo else vO
    k(f"v_lshlrev_b32 v{rm}, 11, v{vT+1}"); k(f"v_lshl_add_u32 v{rm}, v{vT+2}, 4, v{rm}")
    k("s_lshl_b32 s33, s23, 2"); k("s_add_u32 s33, s33, s25"); k("s_lshl_b32 s33, s33, 1"); k("s_add_u32 s33, s33, s26")
    k("s_lshl_b32 s35, s33, 4")
    k("s_lshl_b32 s33, s33, 15"); k("s_lshl_b32 s28, s24, 7"); k("s_add_u32 s33, s33, s28")
    if wo:
        k(f"v_lshlrev_b32 v{vO}, 9, v{vT+2}"); k(f"v_lshl_add_u32 v{vO}, v{vT+1}, 4, v{vO}")
        k("s_lshl_b32 s34, s23, 2"); k("s_add_u32 s34, s34, s25"); k("s_lshl_b32 s34, s34, 16")
        k("s_lshl_b32 s28, s24, 12"); k("s_add_u32 s34, s34, s28"); k("s_lshl_b32 s28, s26, 8"); k("s_add_u32 s34, s34, s28")
        k(f"s_add_u32 s34, s34, {WS_H}")
        k("s_lshl_b32 s28, s20, 10"); k(f"s_add_u32 s28, s28, {RMOFF}")
        k(f"v_lshl_add_u32 v{vRM}, v{vT}, 4, s28")
    k("s_lshl_b32 s28, s20, 11"); k(f"s_add_u32 s28, s28, {HKOFF}")
    k(f"v_lshl_add_u32 v{vHK}, v1, 4, s28")
    k(f"v_bfe_u32 v{vT+1}, v1, 2, 2")
    k(f"v_lshrrev_b32 v{vT+2}, 1, v{vT}"); k(f"v_and_b32 v{vT+3}, 1, v{vT}")
    k(f"v_lshlrev_b32 v{vT+2}, 4, v{vT+2}"); k(f"v_lshl_add_u32 v{vT+2}, v{vT+3}, 2, v{vT+2}")
    k(f"v_add_u32 v{vT+2}, v{vT+2}, v{vT+1}"); k(f"v_lshlrev_b32 v{vT+2}, 7, v{vT+2}")
    k(f"v_lshrrev_b32 v{vT+1}, 1, v{vT+1}"); k(f"v_lshl_add_u32 v{vT+1}, v{vT+3}, 1, v{vT+1}")
    k(f"v_and_b32 v{vT+3}, 3, v1"); k(f"v_lshl_add_u32 v{vT+2}, v{vT+3}, 3, v{vT+2}")
    k("s_lshl_b32 s28, s26, 13")
    if base: k(f"s_add_u32 s28, s28, {base}")
    k(f"v_add_u32 v{vT+2}, s28, v{vT+2}")
    for i in range(4):
        k(f"v_xor_b32 v{vT+3}, {i}, v{vT+1}")
        k(f"v_lshl_add_u32 v{vA[i]}, v{vT+3}, 5, v{vT+2}")
    hiA = NS * 16384 > 65536
    vA2 = [204, 205, 206, 207]
    if hiA:
        for i in range(4): k(f"v_add_u32 v{vA2[i]}, 65536, v{vA[i]}")
    srd(k, 16, pX if wo else pOUT, MB4)
    if not wo and OT == 1:
        k(f"buffer_load_dword v{RES}, v{vO}, s[16:19], s33 offen")
    if wo and COA & 4:
        for p in range(2): k(f"buffer_load_dwordx4 v[{RES+4*p}:{RES+4*p+3}], v{vR}, s[16:19], s33 offen offset:{64*p}")
    if not wo and COA & 8:
        k(f"v_and_b32 v{vT}, 15, v1"); k(f"v_lshrrev_b32 v{vT+1}, 4, v1")
        k(f"v_and_b32 v{vT+2}, 1, v{vT+1}"); k(f"v_lshlrev_b32 v{vT+2}, 1, v{vT+2}"); k(f"v_lshrrev_b32 v{vT+1}, 1, v{vT+1}"); k(f"v_add_u32 v{vT+1}, v{vT+1}, v{vT+2}")
        k(f"v_xor_b32 v{vT+1}, v{vT+1}, v{vT}"); k(f"v_and_b32 v{vT+1}, 7, v{vT+1}"); k(f"v_lshlrev_b32 v{vT+1}, 4, v{vT+1}")
        k("s_lshl_b32 s28, s20, 12"); k("s_xor_b32 s28, s28, 16384"); k("s_add_u32 s28, s28, 98304")
        k(f"v_lshl_add_u32 v{vT+1}, v{vT}, 7, v{vT+1}"); k(f"v_add_u32 v88, s28, v{vT+1}"); k("v_xor_b32 v89, 64, v88")
        k(f"v_lshrrev_b32 v{vT}, 3, v1"); k(f"v_and_b32 v{vT+1}, 7, v1")
        k(f"v_lshlrev_b32 v{vO}, 11, v{vT}"); k(f"v_lshl_add_u32 v{vO}, v{vT+1}, 4, v{vO}")
        k(f"v_xor_b32 v{vT+1}, v{vT+1}, v{vT}"); k(f"v_lshlrev_b32 v{vT+1}, 4, v{vT+1}"); k(f"v_lshl_add_u32 v{vT+1}, v{vT}, 7, v{vT+1}")
        k(f"v_add_u32 v90, s28, v{vT+1}")
        k("s_add_u32 s34, s33, 16384")
    for r in range(ACC, ACC + (40 if wo else 32)): k(f"v_mov_b32 v{r}, 0")
    if wo:
        pf4_setup(k, vT)
        k(f"v_lshrrev_b32 v{vT}, 3, v1"); k(f"v_and_b32 v{vT+1}, 7, v1"); k(f"v_lshlrev_b32 v{vT+1}, 4, v{vT+1}")
        k(f"v_lshl_add_u32 v{vT+1}, v{vT}, 8, v{vT+1}"); k("s_lshl_b32 s28, s26, 7"); k(f"v_add_u32 v{vT+1}, s28, v{vT+1}")
        k(f"v_and_b32 v{vT+2}, 15, v1"); k(f"v_lshlrev_b32 v{vT+2}, 2, v{vT+2}")
    vm = VM()
    if not wo:
        for t in range(NPF5, NS):
            for d in w35_dma(vW, SW, t):
                for l in d: k(l)
            k(WADV); vm.issue(("W", t), 2)
    k("s_lshr_b32 s27, s23, 1"); k("s_lshl_b32 s27, s27, 7"); k(f"s_add_u32 s27, s27, {WS_CNT + (C3 if wo else C5)*128}")
    wait(k, 27, 32, vt=(A[0], A[0] + 1) if wo and COA & 4 else (RES, RES + 1), pr=A[1])
    k.stamp(pre + "_wait")
    NSTEP = 2 * NT
    def bld(s):
        b = BR + (s % R) * 8
        return [f"buffer_load_dwordx4 v[{b+4*j}:{b+4*j+3}], v{vBj[j]}, s[12:15], s31 offen{SC}" for j in range(2)]
    def badv(s): return f"s_add_u32 s31, s31, {2048 if s % 2 == 0 else 6144}"
    if wo:
        k("s_lshl_b32 s28, s20, 10"); k(f"s_add_u32 m0, s28, {RMOFF}")
        k(f"s_mov_b32 s28, {WS_RM}")
        k(f"buffer_load_dwordx4 v{vT+1}, s[12:15], s28 offen{SC} lds"); vm.issue("RM")
    for s in range(R):
        for l in bld(s): k(l); vm.issue(("B", s))
        k(badv(s))
    if wo:
        for p in range(2 if not COA & 4 else 0):
            k(f"buffer_load_dwordx4 v[{RES+4*p}:{RES+4*p+3}], v{vR}, s[16:19], s33 offen offset:{64*p}"); vm.issue("res")
        k("s_lshl_b32 s28, s35, 2"); k(f"s_add_u32 s28, s28, {WS_MX}")
        k(f"buffer_load_dword v{MX}, v{vT+2}, s[12:15], s28 offen{SC}"); vm.issue("res")
    def areads(s, buf):
        t = s // 2; sl = t % NS
        va = vA if sl < 4 else vA2
        o = [f"ds_read_b64_tr_b16 v[{A[buf]+4*i+2*tt}:{A[buf]+4*i+2*tt+1}], v{va[i]} offset:{(sl & 3)*16384 + (s&1)*4096 + tt*1024}"
             for i in range(4) for tt in range(2)]
        return o
    def rmread(s, buf): return f"ds_read_b128 v[{RMF[buf]}:{RMF[buf]+3}], v{vRM} offset:{(s >> 1)*128 + (s & 1)*64}"
    for l in areads(0, 0): k(l)
    if wo:
        k(f"s_waitcnt vmcnt({vm.cnt({'RM'})})")
        k(rmread(0, 0))
    k.stamp(pre + "_go")
    texts = []
    for per in range((NT + NS - 1) // NS):
        o = []
        for s in range(per * 2 * NS, min((per + 1) * 2 * NS, NSTEP)):
            t = s // 2; cur = s & 1; nxt = cur ^ 1
            need = {("B", s)}
            if s & 1 and t + 1 < NT: need.add(("W", t + 1))
            n = vm.cnt(need)
            o.append(f"s_waitcnt vmcnt({min(n, 63)}) lgkmcnt(0)")
            rd = []; dm = []
            if s & 1:
                if t + 1 < NT:
                    o.append("s_barrier"); rd = areads(s + 1, nxt)
                if t + NS < NT: dm = w35_dma(vW, SW, t % NS)
            else:
                rd = areads(s + 1, nxt)
            if wo and s + 1 < NSTEP: rd = rd + [rmread(s + 1, nxt)]
            mf = []
            b = BR + (s % R) * 8
            for i in range(4):
                for j in range(2):
                    a = acc(i, j)
                    mf.append(f"v_mfma_f32_16x16x32_bf16 v[{a}:{a+3}], v[{A[cur]+4*i}:{A[cur]+4*i+3}], v[{b+4*j}:{b+4*j+3}], v[{a}:{a+3}]")
            if wo:
                for j in range(2):
                    a = ACM + 4 * j
                    mf.append(f"v_mfma_f32_16x16x32_bf16 v[{a}:{a+3}], v[{RMF[cur]}:{RMF[cur]+3}], v[{b+4*j}:{b+4*j+3}], v[{a}:{a+3}]")
            gaps = [[] for _ in mf]
            for q, r in enumerate(rd): gaps[min(q, len(mf) - 1)].append(r)
            if dm:
                gaps[0].append(dm[0][0]); gaps[1].append(dm[0][1]); gaps[2].append(dm[1][0]); gaps[3].append(dm[1][1]); gaps[4].append(WADV)
                vm.issue(("W", t + NS), 2)
            if wo and s == JS3 and JIT & 4:
                assert s % 2 == 0
                gaps[1] += jit("L_p3tail", 29, 203); vm.issue("CP")
            if s + R < NSTEP:
                gaps[len(mf) - 1] += bld(s + R) + [badv(s + R)]
                vm.issue(("B", s + R), 2)
            if wo and s == NSTEP - R:
                q = 0
                for tl in range(3):
                    for g in pf4(tl):
                        gaps[min(q, len(mf) - 1)] += g; q += 1
                        vm.issue("PF")
            for g, mm in enumerate(mf):
                o.append(mm); o += gaps[g]
        texts.append(o)
    periods(k, pre + "loop", texts, 36)
    if wo and JIT & 4: k("L_p3tail:")
    k.stamp(pre + "_loop")
    if wo:
        k("s_and_b32 s27, s20, 3"); k("s_lshl_b32 s27, s27, 12"); k(f"s_mul_i32 s28, s26, {SLOT4}"); k("s_add_u32 s27, s27, s28"); k(f"s_add_u32 s27, s27, {BOFF4}")
        k(f"v_lshlrev_b32 v{vT}, 4, v1"); k(f"v_add_u32 v{vT+1}, s27, v{vT}")
        k("s_and_b32 s27, s20, 3"); k("s_lshl_b32 s27, s27, 12"); k("s_xor_b32 s28, s26, 1"); k(f"s_mul_i32 s28, s28, {SLOT4}"); k("s_add_u32 s27, s27, s28"); k(f"s_add_u32 s27, s27, {BOFF4}")
        k(f"v_add_u32 v{vT+2}, s27, v{vT}")
        k("s_lshl_b32 s27, s20, 8"); k(f"s_add_u32 s27, s27, {XMOFF}")
        k(f"v_lshl_add_u32 v{vRM}, v1, 2, s27")
        k(f"ds_write_b32 v{vRM}, v{ACM+4}")
        k(f"v_xor_b32 v{vRM}, 1024, v{vRM}")
    else:
        XCH = 98304
        k("s_lshl_b32 s27, s20, 12"); k(f"s_add_u32 s27, s27, {XCH}")
        k(f"v_lshlrev_b32 v{vT}, 4, v1"); k(f"v_add_u32 v{vT+1}, s27, v{vT}")
        k("s_lshl_b32 s27, s20, 12"); k("s_xor_b32 s27, s27, 16384"); k(f"s_add_u32 s27, s27, {XCH}"); k(f"v_add_u32 v{vT+2}, s27, v{vT}")
    for i in range(4): k(f"ds_write_b128 v{vT+1}, v[{acc(i,1)}:{acc(i,1)+3}] offset:{1024*i}")
    k("s_waitcnt lgkmcnt(0)")
    k("s_barrier")
    for i in range(4): k(f"ds_read_b128 v[{acc(i,1)}:{acc(i,1)+3}], v{vT+2} offset:{1024*i}")
    if wo:
        k(f"ds_read_b32 v{ACM+4}, v{vRM}")
        for g in pf4(3):
            for l in g: k(l)
    else:
        for p in range(2): k(f"ds_read_b128 v[{RES+4*p}:{RES+4*p+3}], v{vHK} offset:{1024*p}")
    k("s_waitcnt lgkmcnt(0)")
    def padd(d, a, b, bc=False):
        if wo:
            k(f"v_add_f32 v{d}, v{a}, v{b}"); k(f"v_add_f32 v{d+1}, v{a+1}, v{b if bc else b+1}")
        else: k(f"v_pk_add_f32 v[{d}:{d+1}], v[{a}:{a+1}], v[{b}:{b+1}]")
    for i in range(4):
        for r in range(0, 4, 2): padd(acc(i,0)+r, acc(i,0)+r, acc(i,1)+r)
    for p in range(2):
        for r in range(4): k(f"v_permlane16_swap_b32 v{acc(2*p,0)+r}, v{acc(2*p+1,0)+r}")
    U = A[0]
    k(f"v_mov_b32 v{vT+3 if not wo else vT}, 0xffff0000")
    vMask = vT + 3 if not wo else vT
    if wo:
        k("s_waitcnt vmcnt(8)")
        k(f"v_add_f32 v{ACM}, v{ACM}, v{ACM+4}")
        k(f"v_add_f32 v{ACM}, v{ACM}, v{MX}")
        k(f"v_sub_f32 v{ACM}, 0, v{ACM}")
    for p in range(2):
        for q in range(4):
            a = acc(2 * p, 0) + 2 * q
            k(f"v_lshlrev_b32 v{U+2*q}, 16, v{RES+4*p+q}")
            k(f"v_and_b32 v{U+2*q+1}, v{vMask}, v{RES+4*p+q}")
        for q in range(4):
            a = acc(2 * p, 0) + 2 * q
            padd(a, a, U+2*q)
        for q in range(4):
            a = acc(2 * p, 0) + 2 * q
            k(f"v_cvt_pk_bf16_f32 v{RES+4*p+q}, v{a}, v{a+1}")
        if wo:
            k(f"ds_write_b128 v{vHK}, v[{RES+4*p}:{RES+4*p+3}] offset:{1024*p}")
            HC = U + 8 + 4 * p
            for q in range(4):
                a = acc(2 * p, 0) + 2 * q
                padd(a, a, ACM, True)
            for q in range(4):
                a = acc(2 * p, 0) + 2 * q
                k(f"v_cvt_pk_bf16_f32 v{HC+q}, v{a}, v{a+1}")
            k(f"buffer_store_dwordx4 v[{HC}:{HC+3}], v{vO}, s[12:15], s34 offen offset:{2048*p}{SC}")
        elif COA & 8:
            k(f"ds_write_b128 v{88+p}, v[{RES+4*p}:{RES+4*p+3}]")
        else:
            k(f"buffer_store_dwordx4 v[{RES+4*p}:{RES+4*p+3}], v{vO}, s[16:19], s33 offen offset:{64*p}{OUTSC}")
    if not wo and COA & 8:
        for q in range(2): k(f"ds_read_b128 v[{RES+4*q}:{RES+4*q+3}], v90 offset:{1024*q}")
        for q in range(2):
            k(f"s_waitcnt lgkmcnt({1-q})")
            k(f"buffer_store_dwordx4 v[{RES+4*q}:{RES+4*q+3}], v{vO}, s[16:19], s{33+q} offen{OUTSC}")
    if wo:
        s1 = U
        a0 = acc(0, 0)
        for r in range(4): k(f"v_mul_f32 v{s1+r}, v{a0+r}, v{a0+r}")
        for r in range(4, 16): k(f"v_fma_f32 v{s1+(r&3)}, v{a0+r}, v{a0+r}, v{s1+(r&3)}")
        k(f"v_add_f32 v{s1}, v{s1}, v{s1+1}"); k(f"v_add_f32 v{s1+2}, v{s1+2}, v{s1+3}"); k(f"v_add_f32 v{s1}, v{s1}, v{s1+2}")
        for sw in ("v_permlane16_swap_b32", "v_permlane32_swap_b32"):
            k(f"v_mov_b32 v{s1+2}, v{s1}"); k(f"{sw} v{s1}, v{s1+2}"); k(f"v_add_f32 v{s1}, v{s1}, v{s1+2}")
        k(f"v_and_b32 v{vT}, 15, v1"); k(f"v_lshlrev_b32 v{vT}, 2, v{vT}")
        if STL & 2:
            k("s_lshr_b32 s27, s35, 8"); k("s_lshl_b32 s27, s27, 14"); k("s_and_b32 s28, s35, 255"); k("s_lshl_b32 s28, s28, 2"); k("s_add_u32 s27, s27, s28")
            k("s_lshl_b32 s28, s24, 10"); k("s_add_u32 s27, s27, s28"); k(f"s_add_u32 s27, s27, {WS_ST}")
        else:
            k("s_lshl_b32 s27, s35, 2"); k("s_lshl_b32 s28, s24, 13"); k("s_add_u32 s27, s27, s28"); k(f"s_add_u32 s27, s27, {WS_ST}")
        k("s_mov_b64 exec, 0xffff")
        k(f"buffer_store_dword v{s1}, v{vT}, s[12:15], s27 offen{SC}")
        k("s_mov_b64 exec, -1")
        k.stamp(pre + "_epi")
        k("s_lshr_b32 s27, s23, 1"); k("s_lshl_b32 s27, s27, 7"); k(f"s_add_u32 s27, s27, {WS_CNT + C4*128}")
        k("s_waitcnt lgkmcnt(0)")
        signal(k, 27, vt=(RES, RES + 1))
        k.stamp(pre + "_sig")
    else:
        k.stamp(pre + "_epi")
OUTSC = os.environ.get("OUTSC", "")

def phase3k(k):
    assert COA & 4 and not WT3 and not STL & 2
    NT = D // 128; NS = 4; R = R3K; SO = S3O
    base = W3BASE; vW = vW3; SW = 8
    vA = [2, 3, 4, 5]; vBj = [6, 7]; vR = 10; vO = 11; vT = 12; vRM = 8; vHK = 9
    RES = 16; A = [24, 40]; ACC = 56; ACM = 120; RMF = [128, 132]; BR = 136; MX = 15
    assert BR + 8 * R <= 200 and R >= SO and NT - SO >= (NT - 1) // NS * NS and SO == 3
    vL, vL4, vXW, vXR, vZ, vXMw, vXMr, vID, vMask = 244, 245, 246, 247, 203, 204, 205, 206, 207
    TCH, TCM, XS2, RMA, RMM = 208, 216, 224, 232, 217
    acc = lambda c, i, j: ACC + c * 32 + (j * 4 + i) * 4
    T32B = D * 64
    coords35(k, 23, 24, 25)
    k("s_and_b32 s25, s20, 3")
    k("s_lshr_b32 s26, s20, 2")
    k("s_lshl_b32 s31, s23, 2"); k("s_add_u32 s31, s31, s25"); k(f"s_mul_i32 s31, s31, {T32B}")
    k("s_lshl_b32 s28, s26, 11"); k("s_add_u32 s31, s31, s28"); k(f"s_add_u32 s31, s31, {WS_O}")
    k("s_and_b32 s28, s24, 1"); k(f"s_mul_i32 s28, s28, {T32B//2}"); k("s_add_u32 s31, s31, s28")
    k(f"v_lshrrev_b32 v{vT}, 4, v1"); k(f"v_and_b32 v{vT+1}, 15, v1")
    k(f"v_lshlrev_b32 v{vT+2}, 4, v{vT+1}"); k(f"v_lshl_add_u32 v{vT+2}, v{vT}, 9, v{vT+2}")
    k("s_lshl_b32 s28, s26, 8")
    k(f"v_add_u32 v{vBj[0]}, s28, v{vT+2}")
    k(f"v_xor_b32 v{vBj[1]}, 256, v{vBj[0]}")
    k(f"v_and_b32 v{vT+2}, 1, v{vT}"); k(f"v_lshlrev_b32 v{vT+2}, 1, v{vT+2}"); k(f"v_lshrrev_b32 v{vT+3}, 1, v{vT}")
    k(f"v_add_u32 v{vT+2}, v{vT+2}, v{vT+3}")
    k(f"v_lshlrev_b32 v{vR}, 11, v{vT+1}"); k(f"v_lshl_add_u32 v{vR}, v{vT+2}, 4, v{vR}")
    k("s_lshl_b32 s33, s23, 2"); k("s_add_u32 s33, s33, s25"); k("s_lshl_b32 s33, s33, 1"); k("s_add_u32 s33, s33, s26")
    k("s_lshl_b32 s35, s33, 4")
    k("s_lshl_b32 s33, s33, 15"); k("s_lshl_b32 s28, s24, 7"); k("s_add_u32 s33, s33, s28")
    k(f"v_lshlrev_b32 v{vO}, 9, v{vT+2}"); k(f"v_lshl_add_u32 v{vO}, v{vT+1}, 4, v{vO}")
    k("s_lshl_b32 s34, s23, 2"); k("s_add_u32 s34, s34, s25"); k("s_lshl_b32 s34, s34, 16")
    k("s_lshl_b32 s28, s24, 12"); k("s_add_u32 s34, s34, s28"); k("s_lshl_b32 s28, s26, 8"); k("s_add_u32 s34, s34, s28")
    k(f"s_add_u32 s34, s34, {WS_H}")
    k("s_lshl_b32 s28, s20, 10"); k(f"s_add_u32 s28, s28, {RMOFF}")
    k(f"v_lshl_add_u32 v{vRM}, v{vT}, 4, s28")
    k("s_lshl_b32 s28, s20, 11"); k(f"s_add_u32 s28, s28, {HKOFF}")
    k(f"v_lshl_add_u32 v{vHK}, v1, 4, s28")
    k(f"v_bfe_u32 v{vT+1}, v1, 2, 2")
    k(f"v_lshrrev_b32 v{vT+2}, 1, v{vT}"); k(f"v_and_b32 v{vT+3}, 1, v{vT}")
    k(f"v_lshlrev_b32 v{vT+2}, 4, v{vT+2}"); k(f"v_lshl_add_u32 v{vT+2}, v{vT+3}, 2, v{vT+2}")
    k(f"v_add_u32 v{vT+2}, v{vT+2}, v{vT+1}"); k(f"v_lshlrev_b32 v{vT+2}, 7, v{vT+2}")
    k(f"v_lshrrev_b32 v{vT+1}, 1, v{vT+1}"); k(f"v_lshl_add_u32 v{vT+1}, v{vT+3}, 1, v{vT+1}")
    k(f"v_and_b32 v{vT+3}, 3, v1"); k(f"v_lshl_add_u32 v{vT+2}, v{vT+3}, 3, v{vT+2}")
    k("s_lshl_b32 s28, s26, 12"); k(f"s_add_u32 s28, s28, {base}")
    k(f"v_add_u32 v{vT+2}, s28, v{vT+2}")
    for i in range(4):
        k(f"v_xor_b32 v{vT+3}, {i}, v{vT+1}")
        k(f"v_lshl_add_u32 v{vA[i]}, v{vT+3}, 5, v{vT+2}")
    srd(k, 16, pX, MB4)
    for p in range(2): k(f"buffer_load_dwordx4 v[{RES+4*p}:{RES+4*p+3}], v{vR}, s[16:19], s33 offen offset:{64*p}")
    k(f"v_mov_b32 v{vZ}, 0"); k(f"s_xor_b32 s28, s2, {32 if C35 == 0 else 4}"); k("s_lshl_b32 s28, s28, 7"); k(f"s_add_u32 s28, s28, {WS_XID1}")
    k(f"buffer_load_dword v{vID}, v{vZ}, s[12:15], s28 offen{SC}")
    for r in range(ACC, ACC + 72): k(f"v_mov_b32 v{r}, 0")
    pf4_setup(k, vT)
    k(f"v_lshlrev_b32 v{vL}, 4, v1"); k(f"v_lshlrev_b32 v{vL4}, 2, v1"); k(f"v_mov_b32 v{vMask}, 0xffff0000")
    k("s_lshl_b32 s38, s23, 4"); k("s_add_u32 s38, s38, s24"); k("s_xor_b32 s39, s38, 1")
    k("s_lshl_b32 s28, s20, 8"); k(f"s_add_u32 s28, s28, {WS_XM3}")
    k("s_lshl_b32 s37, s38, 11"); k("s_add_u32 s37, s37, s28"); k("s_lshl_b32 s43, s39, 11"); k("s_add_u32 s43, s43, s28")
    k("s_lshl_b32 s28, s20, 11"); k(f"s_add_u32 s28, s28, {WS_XI3}")
    for r in (38, 39): k(f"s_lshl_b32 s{r}, s{r}, 14"); k(f"s_add_u32 s{r}, s{r}, s28")
    k("s_lshl_b32 s27, s25, 12"); k(f"s_add_u32 s27, s27, {BOFF4}")
    k(f"s_mul_i32 s28, s26, {SLOT4}"); k("s_add_u32 s28, s28, s27"); k(f"v_add_u32 v{vXW}, s28, v{vL}")
    k("s_xor_b32 s28, s26, 1"); k(f"s_mul_i32 s28, s28, {SLOT4}"); k("s_add_u32 s28, s28, s27"); k(f"v_add_u32 v{vXR}, s28, v{vL}")
    k("s_lshl_b32 s27, s20, 8"); k(f"s_add_u32 s27, s27, {XMOFF}"); k(f"v_add_u32 v{vXMw}, s27, v{vL4}"); k(f"v_xor_b32 v{vXMr}, 1024, v{vXMw}")
    k(f"v_bfe_u32 v{vT}, v1, 2, 3"); k(f"v_and_b32 v{vT+1}, 3, v1"); k(f"v_lshlrev_b32 v{vT+1}, 4, v{vT+1}")
    k(f"v_lshl_add_u32 v{vT+1}, v{vT}, 7, v{vT+1}"); k("s_lshl_b32 s28, s26, 6"); k("s_and_b32 s27, s24, 1"); k("s_lshl_b32 s27, s27, 10"); k("s_add_u32 s28, s28, s27")
    k(f"v_add_u32 v{vT+1}, s28, v{vT+1}")
    k(f"v_and_b32 v{vT+2}, 15, v1"); k(f"v_lshlrev_b32 v{vT+2}, 2, v{vT+2}")
    vm = VM()
    k("s_lshr_b32 s27, s23, 1"); k("s_lshl_b32 s27, s27, 7"); k(f"s_add_u32 s27, s27, {WS_CNT + C3*128}")
    wait(k, 27, 32, vt=(A[0], A[0] + 1), pr=A[1])
    k.stamp("p3_wait")
    def bld(t):
        b = BR + (t % R) * 8
        return [f"buffer_load_dwordx4 v[{b+4*j}:{b+4*j+3}], v{vBj[j]}, s[12:15], s31 offen{SC}" for j in range(2)]
    badv = "s_add_u32 s31, s31, 4096"
    k("s_lshl_b32 s28, s20, 10"); k(f"s_add_u32 m0, s28, {RMOFF}")
    k(f"s_mov_b32 s28, {WS_RM}")
    k(f"buffer_load_dwordx4 v{vT+1}, s[12:15], s28 offen{SC} lds"); vm.issue("RM")
    for t in range(R - 1):
        for l in bld(t): k(l); vm.issue(("B", t))
        k(badv)
    k("s_lshl_b32 s28, s35, 2"); k(f"s_add_u32 s28, s28, {WS_MX}")
    k(f"buffer_load_dword v{MX}, v{vT+2}, s[12:15], s28 offen{SC}"); vm.issue("res")
    def areads(t, c, buf):
        return [f"ds_read_b64_tr_b16 v[{A[buf]+4*i+2*tt}:{A[buf]+4*i+2*tt+1}], v{vA[i]} offset:{(t % NS)*16384 + c*8192 + tt*1024}"
                for i in range(4) for tt in range(2)]
    def rmread(t): return f"ds_read_b128 v[{RMF[t & 1]}:{RMF[t & 1]+3}], v{vRM} offset:{t*64}"
    for l in areads(0, 0, 0): k(l)
    k(f"s_waitcnt vmcnt({vm.cnt({'RM'})})")
    k(rmread(0))
    k.stamp("p3_go")
    BG = [int(x) for x in os.environ.get("BG3", "2,5").split(",")]
    order = [(t, c) for t in range(NT - SO) for c in range(2)] + [(t, 0) for t in range(NT - SO, NT)] + [(t, 1) for t in range(NT - SO, NT)]
    def send1(st):
        lfast = k.lab("p3fast"); lj = k.lab("p3sent")
        if SKF == 1: return ["s_cmp_eq_u32 s44, s45", f"s_cbranch_scc1 {lfast}", st + SC, f"s_branch {lj}", f"{lfast}:", st, f"{lj}:"]
        return [st + SC] if SKF == 2 else [st]
    def fold0_triples():
        o = []
        for q in range(8):
            a = acc(0, 0, 0) + 2 * q; b = acc(0, 0, 1) + 2 * q
            o += [f"v_add_f32 v{a}, v{a}, v{b}", f"v_add_f32 v{a+1}, v{a+1}, v{b+1}", f"v_cvt_pk_bf16_f32 v{XS2+q}, v{a}, v{a+1}"]
        return o
    visible = {0}; bseen = set()
    texts = [[] for _ in range(NT // NS)]
    for idx, (t, c) in enumerate(order):
        o = texts[t // NS]
        cur = idx & 1; nxt = cur ^ 1
        nx = order[idx + 1] if idx + 1 < len(order) else None
        tail = idx - (len(order) - SO) if idx >= len(order) - SO else -1
        need = set(); bar = False
        if t not in bseen: need.add(("B", t)); bseen.add(t)
        if nx and nx[0] not in visible: need.add(("W", nx[0])); visible.add(nx[0]); bar = True
        if tail in (1, 2): bar = True
        n = vm.cnt(need) if need else None
        o.append(f"s_waitcnt vmcnt({min(n, 63)}) lgkmcnt(0)" if n is not None else "s_waitcnt lgkmcnt(0)")
        if bar: o.append("s_barrier")
        rd = areads(nx[0], nx[1], nxt) if nx else []; dm = []
        if nx and nx[1] == 0: rd = rd + [rmread(nx[0])]
        if c == 1 and t + NS < NT: dm = w35_dma(vW, SW, t % NS)
        mf = []
        b = BR + (t % R) * 8
        for i in range(4):
            for j in range(2):
                a = acc(c, i, j)
                mf.append(f"v_mfma_f32_16x16x32_bf16 v[{a}:{a+3}], v[{A[cur]+4*i}:{A[cur]+4*i+3}], v[{b+4*j}:{b+4*j+3}], v[{a}:{a+3}]")
        if c == 0:
            for j in range(2):
                a = ACM + 4 * j
                mf.append(f"v_mfma_f32_16x16x32_bf16 v[{a}:{a+3}], v[{RMF[t & 1]}:{RMF[t & 1]+3}], v[{b+4*j}:{b+4*j+3}], v[{a}:{a+3}]")
        gaps = [[] for _ in mf]
        if tail == 1:
            for i in range(4): gaps[i].append(f"ds_read_b128 v[{acc(0,i,1)}:{acc(0,i,1)+3}], v{vXR} offset:{1024*i}")
            gaps[4].append(f"ds_read_b32 v{ACM+4}, v{vXMr}")
            gaps[0] += [f"s_getreg_b32 s44, {XCCR}", f"v_readfirstlane_b32 s45, v{vID}"]
        for q, r in enumerate(rd): gaps[min(q, len(mf) - 1)].append(r)
        if dm:
            gaps[0].append(dm[0][0]); gaps[1].append(dm[0][1]); gaps[2].append(dm[1][0]); gaps[3].append(dm[1][1]); gaps[4].append(W3ADV)
            vm.issue(("W", t + NS), 2)
        if c == 0 and t + R - 1 < NT:
            bl = bld(t + R - 1)
            gaps[BG[0]].append(bl[0]); gaps[BG[1]].append(bl[1]); gaps[BG[1]].append(badv)
            vm.issue(("B", t + R - 1), 2)
        if t == S3T and c == 0:
            for p in range(2): gaps[6 + p].append(f"buffer_load_dwordx4 v[{TCH+4*p}:{TCH+4*p+3}], v{vL}, s[12:15], s38 offen offset:{1024*p}{SC}")
            gaps[8].append(f"buffer_load_dword v{TCM}, v{vL4}, s[12:15], s37 offen{SC}")
            vm.issue(("T", 0), 3)
        if tail == 0:
            for i in range(4): gaps[2 + i].append(f"ds_write_b128 v{vXW}, v[{acc(0,i,1)}:{acc(0,i,1)+3}] offset:{1024*i}")
            gaps[6].append(f"ds_write_b32 v{vXMw}, v{ACM+4}")
        if tail == 2:
            gaps[0].append(f"v_add_f32 v{ACM}, v{ACM}, v{ACM+4}")
            gaps[1] += send1(f"buffer_store_dword v{ACM}, v{vL4}, s[12:15], s43 offen")
            for q, l in enumerate(fold0_triples()):
                g = min(q // SKG, len(mf) - 1)
                gaps[g].append(l)
                if q in (11, 23): gaps[g] += send1(f"buffer_store_dwordx4 v[{XS2+4*(q//12)}:{XS2+4*(q//12)+3}], v{vL}, s[12:15], s39 offen offset:{1024*(q//12)}")
        for g, mm in enumerate(mf):
            o.append(mm); o += gaps[g]
    periods(k, "p3loop", texts, 36)
    k.stamp("p3_loop")
    def poll(dst, dm_):
        for p in range(2): k(f"buffer_load_dwordx4 v[{dst+4*p}:{dst+4*p+3}], v{vL}, s[12:15], s38 offen offset:{1024*p}{SC}")
        k(f"buffer_load_dword v{dm_}, v{vL4}, s[12:15], s37 offen{SC}")
    def check(src, dm_, lbl):
        k(f"v_max3_u32 v{vT}, v{src}, v{src+1}, v{src+2}")
        k(f"v_max3_u32 v{vT+1}, v{src+3}, v{src+4}, v{src+5}")
        k(f"v_max3_u32 v{vT}, v{vT}, v{src+6}, v{src+7}")
        k(f"v_max3_u32 v{vT}, v{vT}, v{vT+1}, v{dm_}")
        k(f"v_cmp_eq_u32 vcc, -1, v{vT}")
        k("s_cmp_eq_u64 vcc, 0"); k(f"s_cbranch_scc1 {lbl}")
    U = A[1]
    def unpack(src, dm_):
        for q in range(8):
            k(f"v_lshlrev_b32 v{U+2*q}, 16, v{src+q}"); k(f"v_and_b32 v{U+2*q+1}, v{vMask}, v{src+q}")
        k(f"v_add_f32 v{ACM}, v{ACM}, v{dm_}")
    poll(RMA, RMM)
    for i in range(4): k(f"ds_write_b128 v{vXW}, v[{acc(1,i,1)}:{acc(1,i,1)+3}] offset:{1024*i}")
    k("s_waitcnt lgkmcnt(0)")
    k("s_barrier")
    for i in range(4): k(f"ds_read_b128 v[{acc(1,i,1)}:{acc(1,i,1)+3}], v{vXR} offset:{1024*i}")
    poll(TCH, TCM)
    k("s_waitcnt lgkmcnt(0)")
    for r in range(16): k(f"v_add_f32 v{acc(1,0,0)+r}, v{acc(1,0,0)+r}, v{acc(1,0,1)+r}")
    k(f"v_add_f32 v{ACM}, v{ACM}, v{MX}")
    gA = k.lab("p3gotA"); gB = k.lab("p3gotB"); pl = k.lab("p3poll"); jn = k.lab("p3join")
    k("s_mov_b32 s28, 1")
    k("s_waitcnt vmcnt(3)"); check(RMA, RMM, gA)
    k("s_waitcnt vmcnt(0)"); check(TCH, TCM, gB)
    k(f"{pl}:")
    poll(RMA, RMM)
    k("s_add_u32 s28, s28, 1")
    k("s_waitcnt vmcnt(0)"); check(RMA, RMM, gA)
    k(f"s_cmp_lt_u32 s28, {SPIN_LIMIT >> 2}"); k(f"s_cbranch_scc1 {pl}")
    k(f"s_branch {gA}")
    k(f"{gB}:"); unpack(TCH, TCM); k(f"s_branch {jn}")
    k(f"{gA}:"); unpack(RMA, RMM)
    k(f"{jn}:")
    k.stamp("p3_got")
    for tl in range(4):
        for g in pf4(tl):
            for l in g: k(l)
    for r in range(16): k(f"v_add_f32 v{acc(1,0,0)+r}, v{acc(1,0,0)+r}, v{U+r}")
    k(f"v_sub_f32 v{ACM}, 0, v{ACM}")
    for p in range(2):
        for r in range(4): k(f"v_permlane16_swap_b32 v{acc(1,2*p,0)+r}, v{acc(1,2*p+1,0)+r}")
    U = A[0]
    for p in range(2):
        for q in range(4):
            k(f"v_lshlrev_b32 v{U+2*q}, 16, v{RES+4*p+q}")
            k(f"v_and_b32 v{U+2*q+1}, v{vMask}, v{RES+4*p+q}")
        for q in range(8):
            a = acc(1, 2 * p, 0) + q
            k(f"v_add_f32 v{a}, v{a}, v{U+q}")
        for q in range(4):
            a = acc(1, 2 * p, 0) + 2 * q
            k(f"v_cvt_pk_bf16_f32 v{RES+4*p+q}, v{a}, v{a+1}")
        k(f"ds_write_b128 v{vHK}, v[{RES+4*p}:{RES+4*p+3}] offset:{1024*p}")
        HC = U + 8 + 4 * p
        for q in range(8):
            a = acc(1, 2 * p, 0) + q
            k(f"v_add_f32 v{a}, v{a}, v{ACM}")
        for q in range(4):
            a = acc(1, 2 * p, 0) + 2 * q
            k(f"v_cvt_pk_bf16_f32 v{HC+q}, v{a}, v{a+1}")
        k(f"buffer_store_dwordx4 v[{HC}:{HC+3}], v{vO}, s[12:15], s34 offen offset:{2048*p}{SC}")
    s1 = U
    a0 = acc(1, 0, 0)
    for r in range(4): k(f"v_mul_f32 v{s1+r}, v{a0+r}, v{a0+r}")
    for r in range(4, 16): k(f"v_fma_f32 v{s1+(r&3)}, v{a0+r}, v{a0+r}, v{s1+(r&3)}")
    k(f"v_add_f32 v{s1}, v{s1}, v{s1+1}"); k(f"v_add_f32 v{s1+2}, v{s1+2}, v{s1+3}"); k(f"v_add_f32 v{s1}, v{s1}, v{s1+2}")
    for sw in ("v_permlane16_swap_b32", "v_permlane32_swap_b32"):
        k(f"v_mov_b32 v{s1+2}, v{s1}"); k(f"{sw} v{s1}, v{s1+2}"); k(f"v_add_f32 v{s1}, v{s1}, v{s1+2}")
    k(f"v_and_b32 v{vT}, 15, v1"); k(f"v_lshlrev_b32 v{vT}, 2, v{vT}")
    k("s_lshl_b32 s27, s35, 2"); k("s_lshl_b32 s28, s24, 13"); k("s_add_u32 s27, s27, s28"); k(f"s_add_u32 s27, s27, {WS_ST}")
    k("s_mov_b64 exec, 0xffff")
    k(f"buffer_store_dword v{s1}, v{vT}, s[12:15], s27 offen{SC}")
    k("s_mov_b64 exec, -1")
    k.stamp("p3_epi")
    k("s_lshr_b32 s27, s23, 1"); k("s_lshl_b32 s27, s27, 7"); k(f"s_add_u32 s27, s27, {WS_CNT + C4*128}")
    k("s_waitcnt lgkmcnt(0)")
    signal(k, 27, vt=(RES, RES + 1))
    k.stamp("p3_sig")

def phase5k(k):
    assert WDT and NS5 == 5 and COA & 8
    NT = DF // 128; NS = NS5; R = R5K
    vW = vW5; SW = SW5
    vA = [2, 3, 4, 5]; vBj = [6, 7]; vTW = [8, 10]; vHK = 9; vO = 11; vT = 12; vTR = 200; vL = 201
    RES = 16; A = [24, 40]; ACC = 56; BR = 120
    assert BR + 8 * R <= 200
    XCH = NS * 16384
    acc = lambda c, i, j: ACC + c * 32 + (j * 4 + i) * 4
    T32B = DF * 64
    coords35(k, 23, 24, 25)
    k("s_and_b32 s25, s20, 3")
    k("s_lshr_b32 s26, s20, 2")
    k("s_lshl_b32 s31, s23, 2"); k("s_add_u32 s31, s31, s25"); k(f"s_mul_i32 s31, s31, {T32B}")
    k("s_lshl_b32 s28, s26, 11"); k("s_add_u32 s31, s31, s28"); k(f"s_add_u32 s31, s31, {WS_HM}")
    k("s_and_b32 s28, s24, 1"); k(f"s_mul_i32 s28, s28, {T32B//2}"); k("s_add_u32 s31, s31, s28")
    k(f"v_lshrrev_b32 v{vT}, 4, v1"); k(f"v_and_b32 v{vT+1}, 15, v1")
    k(f"v_lshlrev_b32 v{vT+2}, 4, v{vT+1}"); k(f"v_lshl_add_u32 v{vT+2}, v{vT}, 9, v{vT+2}")
    k("s_lshl_b32 s28, s26, 8")
    k(f"v_add_u32 v{vBj[0]}, s28, v{vT+2}")
    k(f"v_xor_b32 v{vBj[1]}, 256, v{vBj[0]}")
    k("s_lshl_b32 s33, s23, 2"); k("s_add_u32 s33, s33, s25"); k("s_lshl_b32 s33, s33, 1"); k("s_add_u32 s33, s33, s26")
    k("s_lshl_b32 s33, s33, 15"); k("s_lshl_b32 s28, s24, 7"); k("s_add_u32 s33, s33, s28")
    k("s_add_u32 s34, s33, 16384")
    k("s_lshl_b32 s28, s20, 11"); k(f"s_add_u32 s28, s28, {HKOFF}")
    k(f"v_lshl_add_u32 v{vHK}, v1, 4, s28")
    k(f"v_lshlrev_b32 v{vL}, 4, v1")
    k("s_lshl_b32 s38, s23, 4"); k("s_add_u32 s38, s38, s24"); k("s_xor_b32 s39, s38, 1")
    k("s_lshl_b32 s28, s20, 11"); k(f"s_add_u32 s28, s28, {WS_XI}")
    if SKF:
        k("s_lshl_b32 s40, s39, 10"); k(f"s_add_u32 s40, s40, {WS_XID}"); k("v_mov_b32 v203, 0")
        k(f"buffer_load_dword v202, v203, s[12:15], s40 offen{SC}")
    for r in (38, 39): k(f"s_lshl_b32 s{r}, s{r}, 14"); k(f"s_add_u32 s{r}, s{r}, s28")
    k(f"v_bfe_u32 v{vT+1}, v1, 2, 2")
    k(f"v_lshrrev_b32 v{vT+2}, 1, v{vT}"); k(f"v_and_b32 v{vT+3}, 1, v{vT}")
    k(f"v_lshlrev_b32 v{vT+2}, 4, v{vT+2}"); k(f"v_lshl_add_u32 v{vT+2}, v{vT+3}, 2, v{vT+2}")
    k(f"v_add_u32 v{vT+2}, v{vT+2}, v{vT+1}"); k(f"v_lshlrev_b32 v{vT+2}, 7, v{vT+2}")
    k(f"v_lshrrev_b32 v{vT+1}, 1, v{vT+1}"); k(f"v_lshl_add_u32 v{vT+1}, v{vT+3}, 1, v{vT+1}")
    k(f"v_and_b32 v{vT+3}, 3, v1"); k(f"v_lshl_add_u32 v{vT+2}, v{vT+3}, 3, v{vT+2}")
    k("s_lshl_b32 s28, s26, 12")
    k(f"v_add_u32 v{vT+2}, s28, v{vT+2}")
    for i in range(4):
        k(f"v_xor_b32 v{vT+3}, {i}, v{vT+1}")
        k(f"v_lshl_add_u32 v{vA[i]}, v{vT+3}, 5, v{vT+2}")
    vA2 = [204, 205, 206, 207]
    for i in range(4): k(f"v_add_u32 v{vA2[i]}, 65536, v{vA[i]}")
    srd(k, 16, pOUT, MB4)
    k(f"v_and_b32 v{vT}, 15, v1"); k(f"v_lshrrev_b32 v{vT+1}, 4, v1")
    k(f"v_and_b32 v{vT+2}, 1, v{vT+1}"); k(f"v_lshlrev_b32 v{vT+2}, 1, v{vT+2}"); k(f"v_lshrrev_b32 v{vT+1}, 1, v{vT+1}"); k(f"v_add_u32 v{vT+1}, v{vT+1}, v{vT+2}")
    k(f"v_xor_b32 v{vT+1}, v{vT+1}, v{vT}"); k(f"v_and_b32 v{vT+1}, 7, v{vT+1}"); k(f"v_lshlrev_b32 v{vT+1}, 4, v{vT+1}")
    k("s_lshl_b32 s28, s20, 13"); k("s_xor_b32 s28, s28, 32768"); k(f"s_add_u32 s28, s28, {XCH}")
    k(f"v_lshl_add_u32 v{vT+1}, v{vT}, 7, v{vT+1}"); k(f"v_add_u32 v{vTW[0]}, s28, v{vT+1}"); k(f"v_xor_b32 v{vTW[1]}, 64, v{vTW[0]}")
    k(f"v_lshrrev_b32 v{vT}, 3, v1"); k(f"v_and_b32 v{vT+1}, 7, v1")
    k(f"v_lshlrev_b32 v{vO}, 11, v{vT}"); k(f"v_lshl_add_u32 v{vO}, v{vT+1}, 4, v{vO}")
    k(f"v_xor_b32 v{vT+1}, v{vT+1}, v{vT}"); k(f"v_lshlrev_b32 v{vT+1}, 4, v{vT+1}"); k(f"v_lshl_add_u32 v{vT+1}, v{vT}, 7, v{vT+1}")
    k(f"v_add_u32 v{vTR}, s28, v{vT+1}")
    vXW, vXR, vMask = vT + 1, vT + 2, vT + 3
    k("s_lshl_b32 s27, s20, 13"); k(f"s_add_u32 s27, s27, {XCH}")
    k(f"v_add_u32 v{vXW}, s27, v{vL}"); k(f"v_add_u32 v{vXR}, s28, v{vL}")
    k(f"v_mov_b32 v{vMask}, 0xffff0000")
    TCH = 208
    vTW4 = [216, 217, 218, 219]; vTR2 = 220
    if SKR:
        k(f"v_and_b32 v{vT}, 15, v1"); k(f"v_lshrrev_b32 v{TCH}, 5, v1"); k(f"v_lshrrev_b32 v{TCH+1}, 1, v{vT}")
        k(f"v_xor_b32 v{TCH}, v{TCH}, v{TCH+1}"); k(f"v_lshlrev_b32 v{TCH}, 4, v{TCH}"); k(f"v_lshl_add_u32 v{TCH}, v{vT}, 7, v{TCH}")
        k(f"v_bfe_u32 v{TCH+1}, v1, 4, 1"); k(f"v_lshl_add_u32 v{TCH}, v{TCH+1}, 3, v{TCH}"); k(f"v_add_u32 v{vTW4[0]}, s28, v{TCH}")
        for i in range(1, 4): k(f"v_xor_b32 v{vTW4[i]}, {32*i}, v{vTW4[0]}")
        k(f"v_and_b32 v{TCH}, 7, v1"); k(f"v_lshrrev_b32 v{TCH+1}, 4, v1"); k(f"v_xor_b32 v{TCH}, v{TCH}, v{TCH+1}"); k(f"v_lshlrev_b32 v{TCH}, 4, v{TCH}")
        k(f"v_lshrrev_b32 v{TCH+1}, 3, v1"); k(f"v_lshl_add_u32 v{TCH}, v{TCH+1}, 7, v{TCH}"); k(f"v_add_u32 v{vTR}, s28, v{TCH}")
        k(f"v_xor_b32 v{vTR2}, 64, v{vTR}")
        for p in range(2): k(f"ds_read_b128 v[{RES+4*p}:{RES+4*p+3}], v{vHK} offset:{1024*p}")
    for r in range(ACC, ACC + 64):
        if not (SKR and acc(1, 0, 0) <= r < acc(1, 0, 0) + 16): k(f"v_mov_b32 v{r}, 0")
    if SKR:
        k("s_waitcnt lgkmcnt(0)")
        for p in range(2):
            for q in range(4):
                a = acc(1, 2 * p, 0) + 2 * q
                k(f"v_lshlrev_b32 v{a}, 16, v{RES+4*p+q}"); k(f"v_and_b32 v{a+1}, v{vMask}, v{RES+4*p+q}")
        for p in range(2):
            for r in range(4): k(f"v_permlane16_swap_b32 v{acc(1,2*p,0)+r}, v{acc(1,2*p+1,0)+r}")
    vm = VM()
    for t in range(NPF5, NS):
        for d in w35_dma(vW, SW, t):
            for l in d: k(l)
        k(W5ADV); vm.issue(("W", t), 2)
    k("s_lshr_b32 s27, s23, 1"); k("s_lshl_b32 s27, s27, 7"); k(f"s_add_u32 s27, s27, {WS_CNT + C5*128}")
    wait(k, 27, 32, vt=(RES, RES + 1), pr=A[1])
    k.stamp("p5_wait")
    def bld(t):
        b = BR + (t % R) * 8
        return [f"buffer_load_dwordx4 v[{b+4*j}:{b+4*j+3}], v{vBj[j]}, s[12:15], s31 offen{SC}" for j in range(2)]
    badv = "s_add_u32 s31, s31, 4096"
    for t in range(R - 1):
        for l in bld(t): k(l); vm.issue(("B", t))
        k(badv)
    def areads(t, c, buf):
        sl = t % NS
        va = vA if sl < 4 else vA2
        return [f"ds_read_b64_tr_b16 v[{A[buf]+4*i+2*tt}:{A[buf]+4*i+2*tt+1}], v{va[i]} offset:{(sl & 3)*16384 + c*8192 + tt*1024}"
                for i in range(4) for tt in range(2)]
    for l in areads(0, 0, 0): k(l)
    k.stamp("p5_go")
    texts = []
    BG = [int(x) for x in os.environ.get("BG5", "2,5").split(",")]
    order = [(t, c) for t in range(NT) for c in range(2)]
    XS2, RMA = 224, 232
    if SKO:
        assert SKR and SKF and SKX and SKA and NT - SKO >= (NT - 1) // NS * NS
        order = order[:2 * (NT - SKO)] + [(t, 0) for t in range(NT - SKO, NT)] + [(t, 1) for t in range(NT - SKO, NT)]
    def send1(p, src):
        lfast = k.lab("p5fast"); lj = k.lab("p5sent")
        st = f"buffer_store_dwordx4 v[{src+4*p}:{src+4*p+3}], v{vL}, s[12:15], s39 offen offset:{1024*p}"
        if SKF == 1: return ["s_cmp_eq_u32 s40, s41", f"s_cbranch_scc1 {lfast}", st + SC, f"s_branch {lj}", f"{lfast}:", st, f"{lj}:"]
        return [st + SC] if SKF == 2 else [st]
    def fold0_triples():
        o = []
        for q in range(8):
            a = acc(0, 0, 0) + 2 * q; b = acc(0, 0, 1) + 2 * q
            o += [f"v_add_f32 v{a}, v{a}, v{b}", f"v_add_f32 v{a+1}, v{a+1}, v{b+1}", f"v_cvt_pk_bf16_f32 v{XS2+q}, v{a}, v{a+1}"]
        return o
    visible = {0}; bseen = set()
    texts = [[] for _ in range((NT + NS - 1) // NS)]
    for idx, (t, c) in enumerate(order):
                o = texts[t // NS]
                cur = idx & 1; nxt = cur ^ 1
                nx = order[idx + 1] if idx + 1 < len(order) else None
                tail = idx - (len(order) - SKO) if SKO and idx >= len(order) - SKO else -1
                need = set(); bar = False
                if t not in bseen: need.add(("B", t)); bseen.add(t)
                if nx and nx[0] not in visible: need.add(("W", nx[0])); visible.add(nx[0]); bar = True
                if tail == 1: bar = True
                n = vm.cnt(need) if need else None
                o.append(f"s_waitcnt vmcnt({min(n, 63)}) lgkmcnt(0)" if n is not None else "s_waitcnt lgkmcnt(0)")
                if bar: o.append("s_barrier")
                rd = areads(nx[0], nx[1], nxt) if nx else []; dm = []
                if c == 1 and t + NS < NT: dm = w35_dma(vW, SW, t % NS)
                mf = []
                b = BR + (t % R) * 8
                for i in range(4):
                    for j in range(2):
                        a = acc(c, i, j)
                        mf.append(f"v_mfma_f32_16x16x32_bf16 v[{a}:{a+3}], v[{A[cur]+4*i}:{A[cur]+4*i+3}], v[{b+4*j}:{b+4*j+3}], v[{a}:{a+3}]")
                gaps = [[] for _ in mf]
                if tail == 1:
                    for i in range(4): gaps[i].append(f"ds_read_b128 v[{acc(0,i,1)}:{acc(0,i,1)+3}], v{vXR} offset:{1024*i}")
                    gaps[0] += ["s_getreg_b32 s40, hwreg(HW_REG_XCC_ID, 0, 4)", "v_readfirstlane_b32 s41, v202"]
                for q, r in enumerate(rd): gaps[min(q, len(mf) - 1)].append(r)
                if dm:
                    gaps[0].append(dm[0][0]); gaps[1].append(dm[0][1]); gaps[2].append(dm[1][0]); gaps[3].append(dm[1][1]); gaps[4].append(W5ADV)
                    vm.issue(("W", t + NS), 2)
                if c == 0 and t + R - 1 < NT:
                    bl = bld(t + R - 1)
                    gaps[BG[0]].append(bl[0]); gaps[BG[1]].append(bl[1]); gaps[BG[1]].append(badv)
                    vm.issue(("B", t + R - 1), 2)
                if SKF and SKX and t == SKT and c == 0:
                    for p in range(2): gaps[3 + 2*p].append(f"buffer_load_dwordx4 v[{TCH+4*p}:{TCH+4*p+3}], v{vL}, s[12:15], s38 offen offset:{1024*p}{SC}")
                    vm.issue(("T", 0), 2)
                if (SKA and not SKO and t == NT - 1 and c == 1) or tail == 0:
                    for i in range(4): gaps[2 + i].append(f"ds_write_b128 v{vXW}, v[{acc(0,i,1)}:{acc(0,i,1)+3}] offset:{1024*i}")
                    if SKF and not SKO:
                        gaps[0] += ["s_getreg_b32 s40, hwreg(HW_REG_XCC_ID, 0, 4)", "v_readfirstlane_b32 s41, v202"]
                if tail == 2:
                    tr = fold0_triples()
                    for q, l in enumerate(tr):
                        g = min(q // SKG, len(mf) - 1)
                        gaps[g].append(l)
                        if q in (11, 23): gaps[g] += send1(q // 12, XS2)
                for g, mm in enumerate(mf):
                    o.append(mm); o += gaps[g]
    periods(k, "p5loop", texts, 36)
    k.stamp("p5_loop")
    def xw(c):
        for i in range(4): k(f"ds_write_b128 v{vXW}, v[{acc(c,i,1)}:{acc(c,i,1)+3}] offset:{4096*c + 1024*i}")
    def xr(c):
        for i in range(4): k(f"ds_read_b128 v[{acc(c,i,1)}:{acc(c,i,1)+3}], v{vXR} offset:{4096*c + 1024*i}")
    def rres():
        if SKR: return
        for p in range(2): k(f"ds_read_b128 v[{RES+4*p}:{RES+4*p+3}], v{vHK} offset:{1024*p}")
    def padd(d, a, b): k(f"v_pk_add_f32 v[{d}:{d+1}], v[{a}:{a+1}], v[{b}:{b+1}]")
    def fold(c):
        for i in range(4):
            for r in range(0, 4, 2): padd(acc(c,i,0)+r, acc(c,i,0)+r, acc(c,i,1)+r)
        for p in range(2):
            for r in range(4):
                if not SKR: k(f"v_permlane16_swap_b32 v{acc(c,2*p,0)+r}, v{acc(c,2*p+1,0)+r}")
    XS = A[0]; RM = A[0] + 8; U = A[1]
    def send():
        if not SKF:
            for p in range(2):
                for q in range(4):
                    a = acc(0, 2 * p, 0) + 2 * q
                    k(f"v_cvt_pk_bf16_f32 v{XS+4*p+q}, v{a}, v{a+1}")
                if SKX: k(f"buffer_store_dwordx4 v[{XS+4*p}:{XS+4*p+3}], v{vL}, s[12:15], s39 offen offset:{1024*p}{SC}")
            return
        for p in range(2):
            for q in range(4):
                a = acc(0, 2 * p, 0) + 2 * q
                k(f"v_cvt_pk_bf16_f32 v{XS+4*p+q}, v{a}, v{a+1}")
        if not SKX: return
        lfast = k.lab("p5fast"); lj = k.lab("p5sent")
        if SKF == 1: k("s_cmp_eq_u32 s40, s41"); k(f"s_cbranch_scc1 {lfast}")
        if SKF != 3:
            for p in range(2): k(f"buffer_store_dwordx4 v[{XS+4*p}:{XS+4*p+3}], v{vL}, s[12:15], s39 offen offset:{1024*p}{SC}")
        if SKF == 1: k(f"s_branch {lj}"); k(f"{lfast}:")
        if SKF != 2:
            for p in range(2): k(f"buffer_store_dwordx4 v[{XS+4*p}:{XS+4*p+3}], v{vL}, s[12:15], s39 offen offset:{1024*p}")
        if SKF == 1: k(f"{lj}:")
    early = None
    if SKO:
        SKP = int(os.environ.get("SKP", "0"))
        def poll(dst):
            for p in range(2): k(f"buffer_load_dwordx4 v[{dst+4*p}:{dst+4*p+3}], v{vL}, s[12:15], s38 offen offset:{1024*p}{SC}")
        def check(src, lbl):
            k(f"v_max3_u32 v{vT}, v{src}, v{src+1}, v{src+2}")
            k(f"v_max3_u32 v203, v{src+3}, v{src+4}, v{src+5}")
            k(f"v_max3_u32 v{vT}, v{vT}, v{src+6}, v{src+7}")
            k(f"v_max_u32 v{vT}, v{vT}, v203")
            k(f"v_cmp_eq_u32 vcc, -1, v{vT}")
            k("s_cmp_eq_u64 vcc, 0"); k(f"s_cbranch_scc1 {lbl}")
        def unpack(src):
            for q in range(8):
                k(f"v_lshlrev_b32 v{U+2*q}, 16, v{src+q}"); k(f"v_and_b32 v{U+2*q+1}, v{vMask}, v{src+q}")
        if SKO == 2:
            k("s_waitcnt lgkmcnt(0)")
            for q, l in enumerate(fold0_triples()):
                k(l)
                if q in (11, 23):
                    for x in send1(q // 12, XS2): k(x)
        if SKPA & 1: poll(RMA)
        xw(1)
        k("s_waitcnt lgkmcnt(0)")
        if SKP: k.stamp("p5_snd")
        k("s_barrier")
        if SKP: k.stamp("p5_b2")
        xr(1)
        if SKPA & 2: poll(TCH)
        elif not SKPA & 1: poll(RMA)
        k("s_waitcnt lgkmcnt(0)")
        fold(1)
        gA = k.lab("p5gotA"); gB = k.lab("p5gotB"); pl = k.lab("p5poll"); jn = k.lab("p5join")
        k("s_mov_b32 s28, 0")
        if SKPA == 3:
            k("s_waitcnt vmcnt(2)"); check(RMA, gA)
            k("s_mov_b32 s28, 1")
            k("s_waitcnt vmcnt(0)"); check(TCH, gB)
        elif SKPA == 2:
            k("s_waitcnt vmcnt(0)"); check(TCH, gB)
        else:
            k("s_waitcnt vmcnt(0)"); check(RMA, gA)
        k(f"{pl}:")
        poll(RMA)
        k("s_add_u32 s28, s28, 1")
        k("s_waitcnt vmcnt(0)"); check(RMA, gA)
        k(f"s_cmp_lt_u32 s28, {SPIN_LIMIT >> 2}"); k(f"s_cbranch_scc1 {pl}")
        if SKPA & 2:
            k(f"s_branch {gA}")
            k(f"{gB}:"); unpack(TCH); k(f"s_branch {jn}")
        k(f"{gA}:"); unpack(RMA)
        k(f"{jn}:")
        k.stamp("p5_got")
        if STAMP and SKP:
            i_ = k.nst; k.nst += 1; k.stnames.append("p5_npoll")
            k("s_add_u32 s86, s86, s28"); k(f"v_writelane_b32 v255, s84, {i_}"); k(f"v_writelane_b32 v254, s86, {i_}")
        for q in range(8): padd(acc(1, 0, 0) + 2 * q, acc(1, 0, 0) + 2 * q, U + 2 * q)
    elif SKA:
        SKP = int(os.environ.get("SKP", "0"))
        k("s_waitcnt lgkmcnt(0)")
        k("s_barrier")
        if SKP: k.stamp("p5_b1")
        xr(0); xw(1)
        k("s_waitcnt lgkmcnt(4)")
        fold(0); send()
        k("s_waitcnt lgkmcnt(0)")
        if SKP: k.stamp("p5_snd")
        k("s_barrier")
        if SKP: k.stamp("p5_b2")
        xr(1); rres()
        early = lambda: (k(f"s_waitcnt lgkmcnt({0 if SKR else 2})"), fold(1), k("s_waitcnt lgkmcnt(0)") if not SKR else None)
        if not (SKX and int(os.environ.get("SKE", "0")) == 2): early(); early = None
    else:
        if SKF: k("s_getreg_b32 s40, hwreg(HW_REG_XCC_ID, 0, 4)"); k("v_readfirstlane_b32 s41, v202")
        xw(0); xw(1)
        k("s_waitcnt lgkmcnt(0)")
        k("s_barrier")
        xr(0); xr(1); rres()
        k("s_waitcnt lgkmcnt(6)")
        fold(0); send()
        k("s_waitcnt lgkmcnt(2)")
        fold(1)
        k("s_waitcnt lgkmcnt(0)")
    def addbf(src):
        if SKR and src == RES: return
        for p in range(2):
            for q in range(4):
                k(f"v_lshlrev_b32 v{U+8*p+2*q}, 16, v{src+4*p+q}")
                k(f"v_and_b32 v{U+8*p+2*q+1}, v{vMask}, v{src+4*p+q}")
        for p in range(2):
            for q in range(4):
                a = acc(1, 2 * p, 0) + 2 * q
                padd(a, a, U + 8 * p + 2 * q)
    if SKO: pass
    elif SKX:
        pl = k.lab("p5poll"); dn = k.lab("p5got")
        if not int(os.environ.get("SKE", "0")): addbf(RES)
        if int(os.environ.get("SKP", "0")): k.stamp("p5_pre")
        k("s_mov_b32 s28, 0")
        k(f"{pl}:")
        for p in range(2): k(f"buffer_load_dwordx4 v[{RM+4*p}:{RM+4*p+3}], v{vL}, s[12:15], s38 offen offset:{1024*p}{SC}")
        if int(os.environ.get("SKE", "0")):
            l1 = k.lab("p5once"); k("s_cmp_lg_u32 s28, 0"); k(f"s_cbranch_scc1 {l1}")
            if early: early()
            addbf(RES); k(f"{l1}:")
        k("s_add_u32 s28, s28, 1")
        k("s_waitcnt vmcnt(0)")
        k(f"v_max3_u32 v{vT}, v{RM}, v{RM+1}, v{RM+2}")
        k(f"v_max3_u32 v203, v{RM+3}, v{RM+4}, v{RM+5}")
        k(f"v_max3_u32 v{vT}, v{vT}, v{RM+6}, v{RM+7}")
        k(f"v_max_u32 v{vT}, v{vT}, v203")
        k(f"v_cmp_eq_u32 vcc, -1, v{vT}")
        k("s_cmp_eq_u64 vcc, 0"); k(f"s_cbranch_scc1 {dn}")
        k(f"s_cmp_lt_u32 s28, {SPIN_LIMIT >> 2}"); k(f"s_cbranch_scc1 {pl}")
        k(f"{dn}:")
        k.stamp("p5_got")
        if STAMP and int(os.environ.get("SKP", "0")):
            i_ = k.nst; k.nst += 1; k.stnames.append("p5_npoll")
            k("s_add_u32 s86, s86, s28"); k(f"v_writelane_b32 v255, s84, {i_}"); k(f"v_writelane_b32 v254, s86, {i_}")
        addbf(RM)
    else:
        addbf(RES)
    for p in range(2):
        for q in range(4):
            a = acc(1, 2 * p, 0) + 2 * q
            k(f"v_cvt_pk_bf16_f32 v{RES+4*p+q}, v{a}, v{a+1}")
            if SKR and q & 1: k(f"ds_write_b64 v{vTW4[2*p + (q >> 1)]}, v[{RES+4*p+q-1}:{RES+4*p+q}]")
        if not SKR: k(f"ds_write_b128 v{vTW[p]}, v[{RES+4*p}:{RES+4*p+3}]")
    for q in range(2): k(f"ds_read_b128 v[{RES+4*q}:{RES+4*q+3}], v{vTR2 if SKR and q else vTR} offset:{1024*q}")
    for q in range(2):
        k(f"s_waitcnt lgkmcnt({1-q})")
        k(f"buffer_store_dwordx4 v[{RES+4*q}:{RES+4*q+3}], v{vO}, s[16:19], s{33+q} offen{OUTSC}")
    k.stamp("p5_epi")

KC = 2 * math.sqrt(2 / math.pi) * math.log2(math.e)
X4 = os.environ.get("X4", "drain").split(",")
T4 = int(os.environ.get("T4", "0")); T4S = int(os.environ.get("T4S", "29")); T4P = int(os.environ.get("T4P", "2"))
def phase4(k):
    NS = 4; SLOT = SLOT4; UOFF = 7168; BOFF = BOFF4; STATS = NS * SLOT
    vA = [2, 3]; vB = [4, 5]; vD = [6, 7, 8, 9, 10]; vL16 = 11; vT = 12
    A = [16, 48]; B = [80, 96]; ACC = 112; SV = 242
    acc = lambda fi, m, j: ACC + ((fi * 2 + m) * 4 + j) * 4
    w35_setup(k, vW5, 0, vT, DF if WT5 or WDT else 0)
    if L2P:
        assert SK5 and WDT
        coords35(k, 27, 29, 28)
        k("s_and_b32 s27, s27, 3"); k("s_lshr_b32 s28, s20, 1"); k("s_lshl_b32 s28, s28, 2"); k("s_add_u32 s27, s27, s28"); k(f"s_add_u32 s27, s27, {L2T}")
        k("s_and_b32 s28, s29, 1"); k(f"s_mul_i32 s28, s28, {DF//128}"); k("s_add_u32 s27, s27, s28"); k("s_lshl_b32 s27, s27, 13")
        k("s_and_b32 s28, s20, 1"); k("s_xor_b32 s28, s28, s29"); k(f"s_mul_i32 s28, s28, {DF*128}"); k("s_add_u32 s27, s27, s28")
        k(f"s_add_u32 s46, s27, {WS_WDT}"); k("s_add_u32 s47, s46, 4096")
        k(f"v_lshlrev_b32 v252, {7 if L2P >= 3 else 6}, v1")
        if L2P == 6: k(f"s_mul_i32 s48, s20, {L2D}"); k(f"s_add_u32 s48, s48, {L2S - 4}")
        else: k("s_lshr_b32 s48, s20, 1")
    if not WDT: srd(k, 60, pWD, DF * D * 2)
    coords4(k, 23, 24, 25)
    k("s_and_b32 s25, s20, 3")
    k("s_lshr_b32 s26, s20, 2")
    k(f"v_lshlrev_b32 v{vL16}, 4, v1")
    k(f"v_lshrrev_b32 v{vT}, 4, v1")
    k(f"v_bfe_u32 v{vT+1}, v1, 2, 2")
    k(f"v_lshrrev_b32 v{vT+2}, 1, v{vT}"); k(f"v_and_b32 v{vT+3}, 1, v{vT}")
    k(f"v_lshlrev_b32 v{vT+2}, 4, v{vT+2}"); k(f"v_lshl_add_u32 v{vT+2}, v{vT+3}, 2, v{vT+2}"); k(f"v_add_u32 v{vT+2}, v{vT+2}, v{vT+1}")
    k(f"v_mul_u32_u24 v{vT+2}, 224, v{vT+2}")
    k(f"v_and_b32 v{vT+3}, 3, v1"); k(f"v_lshl_add_u32 v{vT+2}, v{vT+3}, 3, v{vT+2}")
    k("s_lshl_b32 s27, s26, 7")
    k(f"v_add_u32 v{vA[0]}, s27, v{vT+2}"); k(f"v_add_u32 v{vA[1]}, {2*SLOT}, v{vA[0]}")
    k(f"v_and_b32 v{vT+1}, 15, v1"); k(f"v_lshlrev_b32 v{vT+1}, 4, v{vT+1}"); k(f"v_lshl_add_u32 v{vT+1}, v{vT}, 9, v{vT+1}")
    k("s_lshl_b32 s27, s25, 12"); k(f"s_add_u32 s27, s27, {BOFF}")
    k(f"v_add_u32 v{vB[0]}, s27, v{vT+1}"); k(f"v_add_u32 v{vB[1]}, {2*SLOT}, v{vB[0]}")
    k("s_lshl_b32 s31, s23, 19"); k(f"s_add_u32 s31, s31, {WS_H}")
    k("s_mul_i32 s30, s24, 224"); k(f"s_add_u32 s30, s30, {NS*32*7168}")
    for r in range(ACC, ACC + 128): k(f"v_mov_b32 v{r}, 0")
    if COA & 2:
        k(f"v_lshrrev_b32 v{vT}, 5, v1"); k(f"v_lshlrev_b32 v{vT}, {13 if STL & 2 else 16}, v{vT}")
        k(f"v_and_b32 v{vT+1}, 31, v1"); k("s_lshl_b32 s27, s20, 5"); k(f"v_add_u32 v{vT+1}, s27, v{vT+1}"); k(f"v_lshl_add_u32 v{SV+8}, v{vT+1}, 2, v{vT}")
    else:
        k(f"v_and_b32 v{vT}, 1, v0"); k(f"v_lshlrev_b32 v{vT}, {13 if STL & 2 else 16}, v{vT}")
        k(f"v_lshrrev_b32 v{vT+1}, 1, v0"); k(f"v_lshl_add_u32 v{SV+8}, v{vT+1}, 2, v{vT}")
    k(f"v_lshlrev_b32 v{SV+9}, 4, v{vT+1}"); k(f"v_add_u32 v{SV+9}, {STATS}, v{SV+9}")
    k(f"s_lshl_b32 s37, s23, {14 if STL & 2 else 10}"); k(f"s_add_u32 s37, s37, {WS_ST}")
    k("s_bitcmp1_b32 s25, 1")
    k(f"s_cselect_b32 s4, s{pWU}, s{pWG}"); k(f"s_cselect_b32 s5, s{pWU+1}, s{pWG+1}")
    srd(k, 8, 4, D * DF * 2)
    lsb = k.lab("p4setB"); lsd = k.lab("p4setD")
    k("s_cmp_eq_u32 s26, 0")
    k(f"s_cbranch_scc0 {lsb}")
    for n in range(3):
        k("s_mul_i32 s27, s20, 3"); k(f"s_add_u32 s27, s27, {n}")
        k("s_lshr_b32 s28, s27, 1"); k("s_lshl_b32 s28, s28, 16"); k("s_and_b32 s29, s27, 1"); k("s_lshl_b32 s29, s29, 10"); k("s_add_u32 s28, s28, s29")
        k(f"v_add_u32 v{vD[n]}, s28, v{vL16}")
    k(f"s_mul_i32 s32, s20, 3072"); k(f"s_add_u32 s32, s32, {BOFF}")
    k(f"s_branch {lsd}")
    k(f"{lsb}:")
    k("s_and_b32 s27, s25, 1"); k("s_lshl_b32 s27, s27, 8")
    for q in range(4):
        k(f"v_add_u32 v{vT+3}, {64*q}, v1"); k(f"v_add_u32 v{vT+3}, s27, v{vT+3}")
        w4_piece_lane(k, vD[q], vT + 3, vT)
    k("s_add_u32 s27, s25, 12")
    k("s_lshr_b32 s28, s27, 1"); k("s_lshl_b32 s28, s28, 16"); k("s_and_b32 s29, s27, 1"); k("s_lshl_b32 s29, s29, 10"); k("s_add_u32 s28, s28, s29")
    k(f"v_add_u32 v{vD[4]}, s28, v{vL16}")
    k("s_lshl_b32 s33, s27, 10"); k(f"s_add_u32 s33, s33, {BOFF}")
    k("s_lshr_b32 s32, s25, 1"); k(f"s_mul_i32 s32, s32, {UOFF}"); k("s_and_b32 s27, s25, 1"); k("s_lshl_b32 s27, s27, 12"); k("s_add_u32 s32, s32, s27")
    k(f"{lsd}:")
    k("s_lshl_b32 s27, s23, 3"); k("s_lshl_b32 s28, s25, 1"); k("s_add_u32 s27, s27, s28"); k("s_mul_i32 s27, s27, 448")
    k("s_mul_i32 s28, s24, 14"); k("s_add_u32 s27, s27, s28"); k("s_lshl_b32 s28, s26, 3"); k("s_add_u32 s27, s27, s28")
    k("s_lshl_b32 s27, s27, 9"); k(f"s_add_u32 s34, s27, {WS_HM}"); k(f"s_add_u32 s35, s34, {448*512}")
    if WDT:
        k(f"v_add_u32 v{vT+1}, {C3 - 1}, v1"); k(f"v_lshlrev_b32 v{vT+1}, 7, v{vT+1}")
        k("s_lshl_b32 s27, s23, 7"); k(f"s_add_u32 s27, s27, {C4*128}")
        k("s_nop 0")
        k(f"v_writelane_b32 v{vT+1}, s27, 0")
        k(f"s_mov_b32 s27, {WS_CNT}")
        wait_multi(k, 27, 32, 9, vt=(vT, vT + 1))
    else:
        k("s_lshl_b32 s27, s23, 7"); k(f"s_add_u32 s27, s27, {WS_CNT + C4*128}")
        wait(k, 27, 32, vt=(vT, vT + 1), pr=A[1])
    k.stamp("p4_wait")
    def dma_act(var, slot):
        if var == "A":
            return [[f"s_add_u32 m0, s32, {slot*SLOT + n*1024}", f"buffer_load_dwordx4 v{vD[n]}, s[12:15], s31 offen{SC} lds"] for n in range(3)]
        return [[f"s_add_u32 m0, s33, {slot*SLOT}", f"buffer_load_dwordx4 v{vD[4]}, s[12:15], s31 offen{SC} lds"]]
    def dma_w(var, slot):
        if var == "A": return []
        return [[f"s_add_u32 m0, s32, {slot*SLOT + q*1024}", f"buffer_load_dwordx4 v{vD[q]}, s[8:11], s30 offen lds"] for q in range(4 if var == "B0" else 3)]
    advA = "s_add_u32 s31, s31, 2048"; advW = f"s_add_u32 s30, s30, {32*7168}"
    def stats_calc():
        o = []
        for i in (0, 2, 4, 6): o.append(f"v_add_f32 v{SV+i}, v{SV+i}, v{SV+i+1}")
        o += [f"v_add_f32 v{SV}, v{SV}, v{SV+2}", f"v_add_f32 v{SV+4}, v{SV+4}, v{SV+6}", f"v_add_f32 v{SV}, v{SV}, v{SV+4}"]
        if COA & 2:
            o += [f"v_mov_b32 v{SV+1}, v{SV}", "s_nop 1", f"v_permlane32_swap_b32 v{SV}, v{SV+1}", f"v_add_f32 v{SV}, v{SV}, v{SV+1}"]
        else:
            o += ["s_nop 1", f"v_add_f32_dpp v{SV}, v{SV}, v{SV} quad_perm:[1,0,3,2] row_mask:0xf bank_mask:0xf"]
        o += [f"v_mov_b32 v{SV+3}, 0x3a800000", f"v_mov_b32 v{SV+5}, 0x3727c5ac",
              f"v_fma_f32 v{SV+2}, v{SV}, v{SV+3}, v{SV+5}",
              f"v_rsq_f32 v{SV+4}, v{SV+2}",
              f"v_mov_b32 v{SV+3}, 0",
              f"v_mul_f32 v{SV+1}, {f2h(-KC)}, v{SV+4}",
              f"v_mul_f32 v{SV+5}, v{SV+4}, v{SV+4}",
              f"v_mul_f32 v{SV}, {f2h(0.044715)}, v{SV+1}",
              f"v_mul_f32 v{SV}, v{SV}, v{SV+5}",
              f"ds_write_b128 v{SV+9}, v[{SV}:{SV+3}]"]
        return o
    st_idx = {}
    def vstamp(nm):
        if nm in st_idx: k.prio(nm); k.stamp_at(st_idx[nm])
        else:
            st_idx[nm] = k.nst; k.stamp(nm)
    ljoin = k.lab("p4join")
    def body(var):
        nf = 4 if var == "A" else 3
        first = (var != "A") if T4 == 1 else (var == "A")
        vm = VM()
        for s in range(NS):
            for d in dma_act(var, s):
                for l in d: k(l)
                vm.issue(("D", s))
            k(advA)
        k("s_mov_b32 s28, s37")
        for i in range(8):
            if STL & 2:
                k(f"buffer_load_dword v{SV+i}, v{SV+8}, s[12:15], s28 offen offset:{1024*(i&3)}{SC}"); vm.issue("ST")
                if i == 3: k("s_add_u32 s28, s28, 4096")
                continue
            k(f"buffer_load_dword v{SV+i}, v{SV+8}, s[12:15], s28 offen{SC}"); vm.issue("ST")
            if i < 7: k("s_add_u32 s28, s28, 8192")
        def reads(buf, slot):
            base = slot >> 1; so = (slot & 1) * SLOT
            o = []
            def rA(fi, m):
                i = fi * 2 + m
                return [f"ds_read_b64_tr_b16 v[{A[buf]+4*i+2*t}:{A[buf]+4*i+2*t+1}], v{vA[base]} offset:{so + m*UOFF + t*8*224 + fi*32}" for t in range(2)]
            o += rA(0, 0)
            for j in range(4): o.append(f"ds_read_b128 v[{B[buf]+4*j}:{B[buf]+4*j+3}], v{vB[base]} offset:{so + (j>>1)*2048 + (j&1)*256}")
            for i in range(1, 2 * nf): o += rA(i >> 1, i & 1)
            return o
        k(f"s_waitcnt vmcnt({vm.cnt({('D', 0)})})")
        k("s_barrier")
        vstamp("p4_go")
        for l in reads(0, 0): k(l)
        NT = 32
        texts = []
        pf5 = {3: {28: [0], 29: [1, 2]}, 1: {28: [0]}, 0: {}}[NPF5]
        for per in range(NT // NS):
            o = []
            for t in range(per * NS, (per + 1) * NS):
                slot = t % NS; cur = t & 1; nxt = cur ^ 1
                rd = []; dm = []; ex = []
                if T4 and t > T4S and t + 1 < NT:
                    o.append("s_waitcnt lgkmcnt(0)")
                    rd = reads(nxt, (t + 1) % NS)
                elif t + 1 < NT:
                    need = {("D", t + 1)}
                    if T4 and t == T4S: need |= {("D", x) for x in range(t + 1, NT)}
                    if t == 3: need.add("ST")
                    o.append(f"s_waitcnt vmcnt({vm.cnt(need)}) lgkmcnt(0)")
                    o.append("s_barrier")
                    if T4 and t == T4S and first: o.append(f"s_setprio {T4P}")
                    rd = reads(nxt, (t + 1) % NS)
                else:
                    o.append("s_waitcnt lgkmcnt(0)")
                tail = []
                if t + NS < NT:
                    dm = dma_w(var, slot) + dma_act(var, slot)
                    vm.issue(("D", t + NS), len(dm))
                    tail = [advA, advW]
                for tl in pf5.get(t, []):
                    if tl < NS5 and not T4:
                        dm += [list(x) for x in w35_dma(vW5, SW5, tl)]
                        dm[-1].append(W5ADV)
                        vm.issue("PF5", 2)
                    elif tl < NS5 and first:
                        tail = tail + [W5ADV]
                    elif tl < NS5:
                        assert WDT or WT5
                        sg = "add" if var == "A" else "sub"
                        own = [list(x) for x in w35_dma(vW5, SW5, tl)]
                        oth = [[x[0].replace("s51", "s7"), x[1].replace("s50", "s6")] for x in w35_dma(vW5, SW5, tl)]
                        oth[0] = [f"s_{sg}_u32 s6, s50, 8192", f"s_{sg}_u32 s7, s51, 8192"] + oth[0]
                        oth[0] = [oth[0][:3], oth[0][3]]
                        oth[-1].append(W5ADV)
                        dm += own + oth
                        vm.issue("PF5", 4)
                if t == 3: ex = stats_calc()
                if L2P in (1, 4) and t == L2S:
                    nl = 2 if L2P == 1 else 1
                    ex = [f"buffer_load_dword v253, v252, s[12:15], s{46+h} offen{SC}" for h in range(nl)]; vm.issue("L2P", nl)
                if L2P in (2, 3) and L2S <= t < L2S + 4:
                    nl = 2 if L2P == 2 else 1
                    lsk = k.lab("nol2p")
                    ex = ["\n".join([f"s_cmp_lg_u32 s48, {t - L2S}", f"s_cbranch_scc1 {lsk}"] + [f"buffer_load_dword v253, v252, s[12:15], s{46+h} offen{SC}" for h in range(nl)] + [f"{lsk}:"])]
                    vm.issue("L2P", nl, certain=False)
                if t == JT4 and JIT & 8:
                    ex = jit("L_p4tail", 27, 13); vm.issue("CP")
                mf = []
                for i in range(2 * nf):
                    for j in range(4):
                        a = acc(i >> 1, i & 1, j)
                        mf.append(f"v_mfma_f32_16x16x32_bf16 v[{a}:{a+3}], v[{A[cur]+4*i}:{A[cur]+4*i+3}], v[{B[cur]+4*j}:{B[cur]+4*j+3}], v[{a}:{a+3}]")
                n = len(mf)
                gaps = [[] for _ in mf]
                for q, r in enumerate(rd): gaps[q].append(r)
                if dm:
                    stp = (n - 3) // len(dm)
                    for q, d in enumerate(dm):
                        g = 1 + stp * q
                        if isinstance(d[0], list): gaps[g] += d[0]
                        else: gaps[g].append(d[0])
                        gaps[g + 1] += d[1:]
                    gaps[n - 1] += tail
                elif tail: gaps[n - 1] += tail
                for q, l in enumerate(ex): gaps[min(4 + q, n - 1)].append(l)
                if L2P == 6 and 1 <= per < NT // NS - 1:
                    lsk = f"L_nol2p_{var}_{t % NS}"
                    gaps[L2G[0]] += [f"s_lshl2_add_u32 s49, s36, {t % NS}", "s_cmp_lg_u32 s49, s48", f"s_cbranch_scc1 {lsk}", f"buffer_load_dword v253, v252, s[12:15], s46 offen{SC}", f"{lsk}:"]
                    vm.issue("L2P", 1, certain=False)
                if L2P == 5:
                    assert NPF5 == 3 and not T4
                    for (g, cls) in {29: [(n - 1, 0)], 30: [(L2G[0], 1), (n - 1 - L2G[1], 2)], 31: [(L2G[2], 3)]}.get(t, []):
                        lsk = k.lab("nol2p")
                        gaps[g] += [f"s_cmp_lg_u32 s48, {cls}", f"s_cbranch_scc1 {lsk}", f"buffer_load_dword v253, v252, s[12:15], s46 offen{SC}", f"{lsk}:"]
                        vm.issue("L2P", 1, certain=False)
                for g, mm in enumerate(mf):
                    o.append(mm); o += gaps[g]
            texts.append(o)
        periods(k, f"p4{var}", texts, 36)
        if var == "A" and JIT & 8: k("L_p4tail:")
        vstamp("p4_loop")
        ST = 16; TT = 32
        k(f"v_and_b32 v{vT}, 15, v1"); k(f"v_lshlrev_b32 v{vT}, 4, v{vT}")
        k("s_lshl_b32 s27, s25, 10"); k(f"s_add_u32 s27, s27, {STATS}"); k(f"v_add_u32 v{vT}, s27, v{vT}")
        for j in range(4): k(f"ds_read_b128 v[{ST+4*j}:{ST+4*j+3}], v{vT} offset:{256*j}")
        nd = 1 if L2P == 5 else 0
        k(f"s_waitcnt vmcnt({nd}) lgkmcnt(0)")
        if "drain" in X4: k(f"s_waitcnt vmcnt({nd})"); k("s_barrier")
        if "drain0" in X4: k("s_waitcnt vmcnt(0)")
        if "bar" in X4: k("s_barrier")
        if "adrain" in X4 and var == "A": k("s_waitcnt vmcnt(0)")
        if "bdrain" in X4 and var != "A": k("s_waitcnt vmcnt(0)")
        nopk = ("anopk" in X4 and var == "A") or ("bnopk" in X4 and var != "A")
        def pk(op, d, a, b, c=None, sel=None):
            if not nopk:
                x = f"v_pk_{op}_f32 v[{d}:{d+1}], v[{a}:{a+1}], v[{b}:{b+1}]"
                if c is not None: x += f", v[{c}:{c+1}] " + sel
                k(x); return
            for h in range(2):
                if c is None: k(f"v_mul_f32 v{d+h}, v{a+h}, v{b+h}")
                elif sel.startswith("op_sel:[0,0,1]"): k(f"v_fma_f32 v{d+h}, v{a+h}, v{b}, v{b+1}")
                else: k(f"v_fma_f32 v{d+h}, v{a+h}, v{b}, v{b}")
        for fi in range(nf):
            for p in range(2):
                gi = fi * 2 + p
                PK = TT + 16 + 4 * (gi & 3)
                T = TT + 8 * (gi & 1)
                prs = [(2 * p + jj, h) for jj in range(2) for h in range(2)]
                P = lambda r: f"v[{r}:{r+1}]"
                for q, (j, h) in enumerate(prs):
                    g = acc(fi, 0, j) + 2 * h
                    pk("mul", T+2*q, g, g)
                for q, (j, h) in enumerate(prs):
                    c = ST + 4 * j
                    pk("fma", T+2*q, T+2*q, c, c, "op_sel:[0,0,1] op_sel_hi:[1,0,1]")
                for q, (j, h) in enumerate(prs):
                    g = acc(fi, 0, j) + 2 * h
                    pk("mul", T+2*q, T+2*q, g)
                for q, (j, h) in enumerate(prs):
                    g = acc(fi, 0, j) + 2 * h; u = acc(fi, 1, j) + 2 * h
                    k(f"v_exp_f32 v{T+2*q}, v{T+2*q}"); k(f"v_exp_f32 v{T+2*q+1}, v{T+2*q+1}")
                    pk("mul", u, u, g)
                for q, (j, h) in enumerate(prs):
                    c = ST + 4 * j + 2
                    pk("fma", T+2*q, T+2*q, c, c, "op_sel:[0,0,0] op_sel_hi:[1,0,0]")
                for q, (j, h) in enumerate(prs):
                    k(f"v_rcp_f32 v{T+2*q}, v{T+2*q}"); k(f"v_rcp_f32 v{T+2*q+1}, v{T+2*q+1}")
                for q, (j, h) in enumerate(prs):
                    u = acc(fi, 1, j) + 2 * h
                    pk("mul", u, u, T+2*q)
                for q, (j, h) in enumerate(prs):
                    u = acc(fi, 1, j) + 2 * h
                    k(f"v_cvt_pk_bf16_f32 v{PK+q}, v{u}, v{u+1}")
                k(f"v_permlane16_swap_b32 v{PK}, v{PK+2}")
                k(f"v_permlane16_swap_b32 v{PK+1}, v{PK+3}")
                k(f"buffer_store_dwordx4 v[{PK}:{PK+3}], v{vL16}, s[12:15], s{34+p} offen offset:{1024*fi}{SC}")
        if T4 and first: k("s_setprio 0")
        vstamp("p4_epi")
        if var != "B1": k(f"s_branch {ljoin}")
    lB = k.lab("p4B"); lB1 = k.lab("p4B1")
    k("s_cmp_eq_u32 s26, 0")
    k(f"s_cbranch_scc0 {lB}")
    body("A")
    k(f"{lB}:")
    k("s_bitcmp1_b32 s25, 0")
    k(f"s_cbranch_scc1 {lB1}")
    body("B0")
    k(f"{lB1}:")
    body("B1")
    k(f"{ljoin}:")
    k("s_lshl_b32 s27, s23, 7"); k(f"s_add_u32 s27, s27, {WS_CNT + C5*128}")
    signal(k, 27, vt=(vT, vT + 1))
    k.stamp("p4_sig")

CPF = int(os.environ.get("CPF", "1")); CPFW = int(os.environ.get("CPFW", "0"))
def mk():
    k = G(NAME, nvgpr=256, accum=256, total=256)
    lend = "L_end"
    k("s_cmp_ge_u32 s2, 256")
    k(f"s_cbranch_scc1 {lend}")
    if int(os.environ.get("PERM", "0")):
        k("s_and_b32 s3, s2, 31"); k("s_lshl_b32 s3, s3, 3"); k("s_lshr_b32 s2, s2, 5"); k("s_or_b32 s2, s2, s3")
    if os.environ.get("SCR"):
        k("s_and_b32 s3, s2, 7"); k("s_lshl_b32 s3, s3, 5"); k("s_lshr_b32 s2, s2, 3"); k("s_or_b32 s2, s2, s3")
    k("s_load_dwordx16 s[64:79], s[0:1], 0")
    k("s_load_dwordx4 s[80:83], s[0:1], 64")
    k("v_and_b32 v1, 63, v0")
    k("v_lshrrev_b32 v2, 6, v0")
    k("s_nop 0")
    k("v_readfirstlane_b32 s20, v2")
    k.stamp("start")
    if CPF:
        k("s_getpc_b64 s[44:45]")
        k("L_cpf_pc:")
        k("s_mov_b32 s46, L_end-L_cpf_pc")
        k("s_mov_b32 s47, 0x20000")
        if CPF == 1:
            lc = k.lab("nocpf")
            k("s_lshr_b32 s3, s2, 3"); k("s_lshl_b32 s3, s3, 11")
            k(f"s_cmp_lg_u32 s20, {CPFW}"); k(f"s_cbranch_scc1 {lc}")
            k("v_lshlrev_b32 v210, 5, v1"); k("v_add_u32 v210, s3, v210")
            k("buffer_load_dword v211, v210, s[44:47], 0 offen")
            k(f"{lc}:")
        elif CPF == 2:
            k("v_lshlrev_b32 v210, 6, v0"); k("s_mov_b32 s3, 32768")
            k("buffer_load_dword v211, v210, s[44:47], 0 offen")
            k("buffer_load_dword v212, v210, s[44:47], s3 offen")
        elif CPF == 3:
            k("s_lshr_b32 s3, s2, 3"); k("s_and_b32 s3, s3, 3"); k("s_lshl_b32 s3, s3, 14")
            k("v_lshlrev_b32 v210, 5, v0")
            k("buffer_load_dword v211, v210, s[44:47], s3 offen")
    ldone = "L_done"
    phs = [phase1, phase2, phase3k if SK3 else lambda k: phase35(k, "wo"), phase4, phase5k if SK5 else lambda k: phase35(k, "down")]
    for i, ph in enumerate(phs[:UPTO]): ph(k)
    if os.environ.get("ENDW"): k("s_waitcnt vmcnt(0)")
    k.stamp("end")
    k.stamp_out()
    k("s_waitcnt vmcnt(0)")
    k(f"{lend}:")
    k("s_endpgm")
    return k, ("mk", 256, 512, LDS_BYTES)

if __name__ == "__main__":
    import sys
    sys.path.insert(0, "gen")
    from build import header
    k, _ = mk()
    o = header()
    o.append(f"; @launch grid=(256,1,1) block=(512,1,1) lds={LDS_BYTES}")
    if STAMP: o.append("; stamps: " + " ".join(k.stnames))
    o.append('.amdgcn_target "amdgcn-amd-amdhsa--gfx950"')
    o.append('.text')
    o.append(k.text())
    o.append('.section .rodata,"a"')
    o.append(k.desc())
    open(sys.argv[1], "w").write("\n".join(o) + "\n")
    print("wrote", sys.argv[1], "instrs", sum(1 for l in k.lines if l.startswith("  ")))
```

```python
from asmlib import K, srd
from common import *
import os, struct, math
STAMP = bool(int(os.environ.get("STAMP", "0")))
UPTO = int(os.environ.get("UPTO", "5"))
NAME = "sequential_preLN__mha_block__glu_gated_geglu__prompt_kernel"
WS_TS = 0x2800000
SC = " sc1"
LDS_BYTES = 163840
pX, pWQKV, pWO, pBX, pWG, pWU, pWD, pOUT, pDBG, pWS = [64 + 2 * i for i in range(10)]
C2, C3, C4, C5 = 0, 16, 24, 32
SPIN_LIMIT = 0x40000
RAMP = int(os.environ.get("RAMP", "3"))
QKS = int(os.environ.get("QKS", "0"))
P1M = int(os.environ.get("P1M", "0"))
DL1 = int(os.environ.get("DL1", "0"))
DLS = int(os.environ.get("DLS", "3"))
assert not DL1 or (P1M and not QKS and not int(os.environ.get("HOIST", "0")))
DLT = int(os.environ.get("DLT", "12"))
SK3 = int(os.environ.get("SK3", "0"))
R3K = int(os.environ.get("R3K", "5")); S3O = 3; S3T = int(os.environ.get("S3T", "1"))
WS_XI3 = 0x4000000; WS_XM3 = 0x4400000
C2F = 48; WS_XID1 = 0x3C80000; FLAGOFF = 2112
XCCR = "hwreg(HW_REG_XCC_ID, 0, 4)"
PFW = int(os.environ.get("PFW", "1")); PFI = int(os.environ.get("PFI", "0"))
JIT = int(os.environ.get("JIT", "0"))
def jit(label, sreg, vdst):
    return [f"s_mov_b32 s{sreg}, {label}-L_cb", f"buffer_load_dword v{vdst}, v252, s[80:83], s{sreg} offen"]
def f2h(x): return hex(struct.unpack('<I', struct.pack('<f', x))[0])

class G(K):
    def __init__(s, *a, **kw):
        super().__init__(*a, **kw); s.nl = 0; s.nst = 0; s.stnames = []
    def lab(s, base):
        s.nl += 1; return f"L_{base}_{s.nl}"
    def prio(s, nm):
        ph = int(nm[1]) if nm[0] == "p" and nm[1].isdigit() else 0
        if not (PRIO >> ph) & 1: return
        if nm.endswith("_go"):
            l = s.lab("prio")
            s("s_cselect_b32 s96, 1, 0"); s("s_cmp_ge_u32 s20, 4"); s(f"s_cbranch_scc{PRH} {l}"); s("s_setprio 1"); s(f"{l}:"); s("s_cmp_lg_u32 s96, 0")
        elif nm.endswith("_loop"): s("s_setprio 0")
    def stamp(s, nm):
        s.prio(nm)
        if not STAMP: return
        i = s.nst; s.nst += 1; s.stnames.append(nm)
        s("s_memrealtime s[84:85]"); s("s_memtime s[86:87]"); s("s_waitcnt lgkmcnt(0)")
        s(f"v_writelane_b32 v255, s84, {i}"); s(f"v_writelane_b32 v254, s86, {i}")
    def stamp_at(s, i):
        if not STAMP: return
        s("s_memrealtime s[84:85]"); s("s_memtime s[86:87]"); s("s_waitcnt lgkmcnt(0)")
        s(f"v_writelane_b32 v255, s84, {i}"); s(f"v_writelane_b32 v254, s86, {i}")
    def stamp_out(s):
        if not STAMP: return
        s("s_lshl_b32 s84, s2, 3"); s("s_add_u32 s84, s84, s20"); s("s_lshl_b32 s84, s84, 9")
        s(f"s_add_u32 s84, s84, {WS_TS}")
        s("v_lshlrev_b32 v253, 2, v1")
        s("buffer_store_dword v255, v253, s[12:15], s84 offen")
        s("buffer_store_dword v254, v253, s[12:15], s84 offen offset:256")
        s("s_waitcnt vmcnt(0)")

PRIO = int(os.environ.get("PRIO", "0")); PRH = int(os.environ.get("PRH", "0"))
class VM:
    def __init__(s): s.q = []; s.c = []
    def issue(s, tag, n=1, certain=True): s.q += [tag] * n; s.c += [certain] * n
    def cnt(s, tags):
        last = -1
        for i, t in enumerate(s.q):
            if t in tags: last = i
        return sum(1 for c in s.c[last + 1:] if c) if last >= 0 else None

def periods(k, name, texts, cnt_sgpr):
    i = 0; n = len(texts)
    while i < n:
        j = i
        while j + 1 < n and texts[j + 1] == texts[i]: j += 1
        rep = j - i + 1
        if rep > 1:
            l = k.lab(name)
            k(f"s_mov_b32 s{cnt_sgpr}, 0")
            k(f"{l}:")
            for x in texts[i]: k(x)
            k(f"s_add_u32 s{cnt_sgpr}, s{cnt_sgpr}, 1")
            k(f"s_cmp_lt_u32 s{cnt_sgpr}, {rep}")
            k(f"s_cbranch_scc1 {l}")
        else:
            for x in texts[i]: k(x)
        i = j + 1

PROG = int(os.environ.get("PROG", "0"))
def signal(k, sline, vt=(14, 15), val="1"):
    k("s_waitcnt vmcnt(0)")
    k("s_barrier")
    l = k.lab("nosig")
    k("s_cmp_lg_u32 s20, 0"); k(f"s_cbranch_scc1 {l}")
    k("s_mov_b64 exec, 1")
    k(f"v_mov_b32 v{vt[0]}, {val}"); k(f"v_mov_b32 v{vt[1]}, 0")
    k(f"buffer_atomic_add v{vt[0]}, v{vt[1]}, s[12:15], s{sline} offen sc1")
    k("s_mov_b64 exec, -1")
    k(f"{l}:")

PD = int(os.environ.get("PD", "1")); PSL = int(os.environ.get("PSL", "6"))
def wait(k, sline, target, vt=(14, 15), pr=None, fld=None):
    done = k.lab("wdone"); spin = k.lab("wspin")
    k("s_cmp_lg_u32 s20, 0"); k(f"s_cbranch_scc1 {done}")
    k(f"v_mov_b32 v{vt[1]}, 0")
    k("s_mov_b32 s28, 0")
    if PD == 1 or pr is None:
        k(f"{spin}:")
        k(f"buffer_load_dword v{vt[0]}, v{vt[1]}, s[12:15], s{sline} offen sc1")
        k("s_add_u32 s28, s28, 1")
        k("s_waitcnt vmcnt(0)")
        k(f"v_readfirstlane_b32 s29, v{vt[0]}")
        if fld is not None: k(f"s_and_b32 s29, s29, s{fld}")
        k(f"s_cmp_eq_u32 s29, {target}"); k(f"s_cbranch_scc1 {done}")
        k(f"s_cmp_gt_u32 s28, {SPIN_LIMIT}"); k(f"s_cbranch_scc1 {done}")
        k("s_sleep 1")
        k(f"s_branch {spin}")
    else:
        ld = lambda i: k(f"buffer_load_dword v{pr+i}, v{vt[1]}, s[12:15], s{sline} offen sc1")
        for i in range(PD):
            ld(i)
            if i < PD - 1: k(f"s_sleep {PSL}")
        k(f"{spin}:")
        for i in range(PD):
            k(f"s_waitcnt vmcnt({PD-1})")
            k(f"v_readfirstlane_b32 s29, v{pr+i}")
            k(f"s_cmp_eq_u32 s29, {target}"); k(f"s_cbranch_scc1 {done}")
            ld(i)
        k("s_add_u32 s28, s28, 1")
        k(f"s_cmp_gt_u32 s28, {SPIN_LIMIT}"); k(f"s_cbranch_scc0 {spin}")
    k(f"{done}:")
    k("s_barrier")

def wait_multi(k, sline, target, n, vt):
    done = k.lab("wdone"); spin = k.lab("wspin"); dx = k.lab("wdx")
    k("s_cmp_lg_u32 s20, 0"); k(f"s_cbranch_scc1 {done}")
    k(f"s_mov_b64 exec, {hex((1 << n) - 1)}")
    k("s_mov_b32 s28, 0")
    k(f"{spin}:")
    k(f"buffer_load_dword v{vt[0]}, v{vt[1]}, s[12:15], s{sline} offen sc1")
    k("s_add_u32 s28, s28, 1")
    k("s_waitcnt vmcnt(0)")
    k(f"v_cmp_ne_u32 vcc, {target}, v{vt[0]}")
    k("s_cmp_eq_u64 vcc, 0"); k(f"s_cbranch_scc1 {dx}")
    k(f"s_cmp_gt_u32 s28, {SPIN_LIMIT}"); k(f"s_cbranch_scc1 {dx}")
    k("s_sleep 1")
    k(f"s_branch {spin}")
    k(f"{dx}:")
    k("s_mov_b64 exec, -1")
    k(f"{done}:")
    k("s_barrier")

def wdma_lane(k, vdst, rowbytes, t):
    k(f"v_lshrrev_b32 v{t}, 3, v1"); k(f"v_and_b32 v{t+1}, 7, v1")
    k(f"v_lshrrev_b32 v{t+2}, 2, v{t}"); k(f"v_and_b32 v{t+3}, 3, v{t}")
    k(f"v_lshl_add_u32 v{t+2}, v{t+2}, 3, v{t+3}")
    k(f"v_mul_u32_u24 v{t+2}, {rowbytes}, v{t+2}")
    k(f"v_lshrrev_b32 v{t+3}, 1, v{t+1}"); k(f"v_lshrrev_b32 v{t}, 1, v{t}")
    k(f"v_xor_b32 v{t+3}, v{t+3}, v{t}")
    k(f"v_and_b32 v{t+1}, 1, v{t+1}")
    k(f"v_lshl_add_u32 v{t+3}, v{t+3}, 1, v{t+1}")
    k(f"v_lshl_add_u32 v{vdst}, v{t+3}, 4, v{t+2}")

STL = int(os.environ.get("STL", "0"))
ESIG = int(os.environ.get("ESIG", "0"))
COA = int(os.environ.get("COA", "15"))
HOIST = int(os.environ.get("HOIST", "0")); TST = int(os.environ.get("TST", "0"))
def hoisted_tail(k, o, step, vm, R):
    PL, RMR, ONE, vP, vZ, vL16, SQ, CQ, QS, VS, vVO = [R[x] for x in ("PL", "RMR", "ONE", "vP", "vZ", "vL16", "SQ", "CQ", "QS", "VS", "vVO")]
    r0, r1 = 198, 199
    vSt = 200; vCs = 201; vTok = 203; vG = 202
    v17, v18, v19 = 209, 212, 204
    v20 = [205, 206, 207, 208]; v23 = [v17, 213, 214, 215]
    tA, tB = 216, 218
    ad = []
    ad += [f"v_lshrrev_b32 v{vSt}, 2, v0", f"v_lshlrev_b32 v{vSt}, 2, v{vSt}"]
    ad += [f"v_min_u32 v{vCs}, 191, v0", f"v_lshlrev_b32 v{vCs}, 2, v{vCs}"]
    ad += [f"v_and_b32 v{vTok}, 15, v1", "s_lshl_b32 s27, s25, 8", "s_lshl_b32 s28, s26, 6", "s_add_u32 s28, s28, s27",
           f"v_lshlrev_b32 v{tA}, 2, v{vTok}", f"v_add_u32 v{v17}, s28, v{tA}", f"v_lshrrev_b32 v{vG}, 4, v1", f"v_lshlrev_b32 v{v19}, 4, v{vG}",
           f"v_add_u32 v{v20[0]}, s28, v{v19}", "s_lshl_b32 s29, s26, 6", "s_add_u32 s29, s29, 1024",
           f"v_add_u32 v{v19}, s29, v{v19}", f"v_add_u32 v{v18}, s29, v{tA}"]
    for jj in range(1, 4):
        ad += [f"v_xor_b32 v{v20[jj]}, {jj<<6}, v{v20[0]}", f"v_xor_b32 v{v23[jj]}, {jj<<6}, v{v17}"]
    ad += ["s_lshl_b32 s27, s23, 2", "s_lshl_b32 s28, s25, 1", "s_add_u32 s27, s27, s28", "s_lshl_b32 s27, s27, 16",
           "s_lshl_b32 s28, s24, 12", "s_add_u32 s27, s27, s28", "s_lshl_b32 s28, s26, 10", "s_add_u32 s27, s27, s28",
           "s_lshr_b32 s42, s26, 1", "s_lshl_b32 s28, s42, 16", "s_add_u32 s35, s27, s28", "s_xor_b32 s28, s28, 0x10000", "s_add_u32 s37, s27, s28",
           f"s_add_u32 s36, s35, {WS_K}", f"s_add_u32 s38, s37, {WS_K}", f"s_add_u32 s35, s35, {WS_Q}", f"s_add_u32 s37, s37, {WS_Q}",
           "s_lshl_b32 s27, s24, 1", "s_add_u32 s27, s27, s42", "s_lshl_b32 s27, s27, 7",
           "s_lshl_b32 s28, s23, 3", "s_add_u32 s27, s27, s28", "s_lshl_b32 s28, s25, 2", "s_add_u32 s27, s27, s28", "s_lshl_b32 s27, s27, 10",
           "s_and_b32 s43, s26, 1", "s_lshl_b32 s28, s43, 8", "s_add_u32 s27, s27, s28", f"s_add_u32 s27, s27, {WS_VT}",
           "s_lshl_b32 s28, s42, 11", "s_add_u32 s39, s27, s28", "s_xor_b32 s28, s28, 2048", "s_add_u32 s40, s27, s28",
           f"v_lshrrev_b32 v{tA}, 5, v1", f"v_xor_b32 v{tA}, s43, v{tA}", f"v_lshlrev_b32 v{tA}, 10, v{tA}",
           f"v_bfe_u32 v{tB}, v1, 4, 1", f"v_lshl_add_u32 v{tA}, v{tB}, 9, v{tA}", f"v_lshl_add_u32 v{vVO}, v{vTok}, 4, v{tA}",
           "s_lshl_b32 s28, s43, 8", f"v_xor_b32 v{vL16}, s28, v{vL16}", "s_mov_b32 s44, 0x3e8293ee"]
    assert not QKS
    h = len(ad) // 2
    HV = int(os.environ.get("HV", "8")); HP = int(os.environ.get("HP", "11"))
    assert 8 <= HV < HP <= 13
    def chk(o_):
        rdy = k.lab("p1rdy"); spin = k.lab("p1spin")
        k(f"s_waitcnt vmcnt({vm.cnt({'VP', 'RMR'})})")
        k(f"v_cmp_eq_u32 vcc, 128, v{vP}")
        k("s_cmp_eq_u64 vcc, -1")
        k(f"s_cbranch_scc1 {rdy}")
        k("s_mov_b32 s28, 0")
        k(f"{spin}:")
        k("s_add_u32 s28, s28, 1")
        k(f"s_cmp_gt_u32 s28, {SPIN_LIMIT}")
        k(f"s_cbranch_scc1 {rdy}")
        k("s_sleep 2")
        k(f"buffer_load_dword v{vP}, v196, s[60:63], 0 offen sc1")
        k("s_waitcnt vmcnt(0)")
        k(f"v_cmp_eq_u32 vcc, 128, v{vP}")
        k("s_cmp_eq_u64 vcc, -1")
        k(f"s_cbranch_scc0 {spin}")
        k(f"{rdy}:")
    ld = []
    ld.append([f"v_and_b32 v{r0}, 3, v0", f"v_lshlrev_b32 v{r0}, 16, v{r0}", f"v_lshrrev_b32 v{r1}, 2, v0", f"v_lshl_add_u32 v{tB}, v{r1}, 3, v{r0}",
               "s_lshl_b32 s27, s23, 10", f"s_add_u32 s27, s27, {WS_ST1}"])
    for i in range(4):
        ld.append([f"buffer_load_dwordx2 v[{PL+2*i}:{PL+2*i+1}], v{tB}, s[12:15], s27 offen{SC}"] + (["s_add_u32 s27, s27, 16384"] if i < 3 else []))
    ld.append([f"s_mul_i32 s27, s24, {16*768}", f"s_add_u32 s27, s27, {WS_CS1}"])
    for i in range(16):
        ld.append([f"buffer_load_dword v{PL+8+i}, v{vCs}, s[12:15], s27 offen offset:{(i % 4) * 768}{SC}"] + ([f"s_add_u32 s27, s27, {4*768}"] if i % 4 == 3 and i < 15 else []))
    adq = [ad[:h], ad[h:]]
    for t in range(8, 14):
        if t == HV:
            k(f"buffer_load_dword v{vP}, v196, s[60:63], 0 offen sc1"); vm.issue("VP")
            k("s_lshl_b32 s27, s2, 13")
            k(f"buffer_load_dwordx4 v[{RMR}:{RMR+3}], v197, s[88:91], s27 offen"); vm.issue("RMR")
        if t == 12 and JIT & 1:
            for l in jit("L_p1tail", 27, 211): k(l)
            vm.issue("CP")
        if t == HP:
            step(o, t, 0, pre=chk, inj=ld, inj0=0)
            vm.issue("PART", 20)
        else:
            step(o, t, 0, inj=adq.pop(0) if adq and t >= HV else None, inj0=0)
        if TST and t == HP: k.stamp(f"t{t}_0")
        if t < 13: step(o, t, 1, inj=adq.pop(0) if adq and t >= HV else None, inj0=0)
        if TST and t < 13: k.stamp(f"t{t}")
    assert not adq
    rs = [f"v_mov_b32 v{r0}, 0"] + [f"v_dot2c_f32_bf16 v{r0}, v{RMR+r}, v{ONE}" for r in range(4)]
    rs += [f"v_add_f32_dpp v{r0}, v{r0}, v{r0} row_ror:{ro} row_mask:0xf bank_mask:0xf" for ro in (8, 4, 2, 1)]
    for sw in ("v_permlane16_swap_b32", "v_permlane32_swap_b32"):
        rs += [f"v_mov_b32 v{r1}, v{r0}", f"{sw} v{r0}, v{r1}", f"v_add_f32 v{r0}, v{r0}, v{r1}"]
    rs += ["s_lshl_b32 s27, s20, 2", "s_add_u32 s27, s27, 2048", f"v_mov_b32 v{r1}, s27", f"ds_write_b32 v{r1}, v{r0}"]
    step(o, 13, 1, inj=rs, inj0=0)
    if TST: k.stamp("t13")
    st = [f"v_add_f32 v{PL}, v{PL}, v{PL+2}", f"v_add_f32 v{PL+1}, v{PL+1}, v{PL+3}", f"v_add_f32 v{PL+4}, v{PL+4}, v{PL+6}", f"v_add_f32 v{PL+5}, v{PL+5}, v{PL+7}",
          f"v_add_f32 v{PL}, v{PL}, v{PL+4}", f"v_add_f32 v{PL+1}, v{PL+1}, v{PL+5}"]
    cs = [f"v_add_f32 v{PL+8+i}, v{PL+8+i}, v{PL+8+i+w}" for w in (8, 4, 2, 1) for i in range(w)]
    lm = k.lab("nomx")
    ch = []
    for qp in ("[1,0,3,2]", "[2,3,0,1]"):
        ch += [f"v_add_f32_dpp v{PL}, v{PL}, v{PL} quad_perm:{qp} row_mask:0xf bank_mask:0xf",
               f"v_add_f32_dpp v{PL+1}, v{PL+1}, v{PL+1} quad_perm:{qp} row_mask:0xf bank_mask:0xf"]
    ch += [f"v_mul_f32 v{PL}, 0x3a800000, v{PL}", f"v_mul_f32 v{PL+1}, 0x3a800000, v{PL+1}",
           ["s_cmp_lg_u32 s24, 0", f"s_cbranch_scc1 {lm}", "s_lshl_b32 s27, s23, 9", f"s_add_u32 s27, s27, {WS_MX}",
            f"buffer_store_dword v{PL}, v{vSt}, s[12:15], s27 offen{SC}", f"{lm}:"],
           f"v_fma_f32 v{PL+1}, -v{PL}, v{PL}, v{PL+1}", f"v_max_f32 v{PL+1}, 0, v{PL+1}", f"v_add_f32 v{PL+1}, 0x3727c5ac, v{PL+1}",
           f"v_rsq_f32 v{PL+1}, v{PL+1}", f"v_mul_f32 v{PL+2}, v{PL}, v{PL+1}", f"v_sub_f32 v{PL+2}, 0, v{PL+2}",
           f"ds_write_b32 v{vSt}, v{PL+1}", f"ds_write_b32 v{vSt}, v{PL+2} offset:512"]
    mix = list(st)
    ci = 0
    for x in ch:
        mix.append(x)
        if ci < len(cs): mix.append(cs[ci]); ci += 1
    mix += cs[ci:]
    mix.append(f"ds_write_b32 v{vCs}, v{PL+8} offset:1024")
    def wpart(o_): k(f"s_waitcnt vmcnt({vm.cnt({'PART'})})")
    step(o, 14, 0, pre=wpart, inj=mix, inj0=0)
    if TST: k.stamp("t14_0")
    vm.issue("MX", 1, certain=False)
    rd = [f"ds_read2_b32 v[{SQ+2*jj}:{SQ+2*jj+1}], v{v23[jj]} offset0:0 offset1:128" for jj in range(4)]
    rd += [f"ds_read_b128 v[{CQ}:{CQ+3}], v{v19}", f"ds_read_b128 v[{CQ+4}:{CQ+7}], v{v19} offset:256", f"ds_read_b32 v152, v{v18} offset:512"]
    for jj in range(4):
        rd += [f"ds_read_b128 v[{VS[jj]}:{VS[jj]+3}], v{v20[jj]}", f"ds_read_b128 v[{VS[jj]+4}:{VS[jj]+7}], v{v20[jj]} offset:512"]
    RW = 56
    rd += [f"ds_read_b128 v[{RW}:{RW+3}], v{vZ} offset:2048", f"ds_read_b128 v[{RW+4}:{RW+7}], v{vZ} offset:2064"]
    step(o, 14, 1, inj=rd, inj0=4)
    if TST: k.stamp("t14")
    q = []
    for jj in range(4):
        q += [f"v_mul_f32 v{QS+2*jj}, s44, v{SQ+2*jj}", f"v_mul_f32 v{QS+2*jj+1}, s44, v{SQ+2*jj+1}"]
    l7 = k.lab("norm")
    b7 = ["s_cmp_lg_u32 s20, 7", f"s_cbranch_scc1 {l7}"]
    for r in range(4):
        b7 += [f"v_add_f32 v{RW+2*r}, v{RW+2*r}, v{RW+2*r+1}"]
    for r in range(4):
        b7 += [f"v_mul_f32 v{RW+2*r}, 0x3a800000, v{RW+2*r}"]
    b7 += [f"v_cvt_pk_bf16_f32 v{r0}, v{RW}, v{RW+2}", f"v_cvt_pk_bf16_f32 v{r1}, v{RW+4}, v{RW+6}",
           "s_lshl_b32 s27, s2, 3", f"s_add_u32 s27, s27, {WS_RM}", "s_mov_b64 exec, 1",
           f"buffer_store_dwordx2 v[{r0}:{r1}], v{vZ}, s[12:15], s27 offen{SC}", "s_mov_b64 exec, -1", f"{l7}:"]
    step(o, 15, 0, inj=q + [b7], inj0=0)
    step(o, 15, 1)
    if JIT & 1: k("L_p1tail:")
    k.stamp("p1_loop")

def hoist_ad(R):
    vL16, vVO = R["vL16"], R["vVO"]
    vSt = 200; vCs = 201; vTok = 203; vG = 202
    v17, v18, v19 = 209, 212, 204
    v20 = [205, 206, 207, 208]; v23 = [v17, 213, 214, 215]
    tA, tB, vSa, vCg = 216, 198, 218, 219
    ad = []
    ad += [f"v_lshrrev_b32 v{vSt}, 2, v0", f"v_and_b32 v{tB}, 3, v0", f"v_min_u32 v{vCs}, 95, v{vSt}", f"v_lshlrev_b32 v{vCs}, 3, v{vCs}",
           f"v_mul_u32_u24 v{vCg}, 3072, v{tB}", f"v_add_u32 v{vCg}, v{vCg}, v{vCs}",
           f"v_lshlrev_b32 v{tB}, {12 if STL & 1 else 16}, v{tB}", f"v_lshl_add_u32 v{vSa}, v{vSt}, 3, v{tB}", f"v_lshlrev_b32 v{vSt}, 2, v{vSt}"]
    ad += [f"v_and_b32 v{vTok}, 15, v1", "s_lshl_b32 s27, s25, 8", "s_lshl_b32 s28, s26, 6", "s_add_u32 s28, s28, s27",
           f"v_lshlrev_b32 v{tA}, 2, v{vTok}", f"v_add_u32 v{v17}, s28, v{tA}", f"v_lshrrev_b32 v{vG}, 4, v1", f"v_lshlrev_b32 v{v19}, 4, v{vG}",
           f"v_add_u32 v{v20[0]}, s28, v{v19}", "s_lshl_b32 s29, s26, 6", "s_add_u32 s29, s29, 1024",
           f"v_add_u32 v{v19}, s29, v{v19}", f"v_add_u32 v{v18}, s29, v{tA}"]
    for jj in range(1, 4):
        ad += [f"v_xor_b32 v{v20[jj]}, {jj<<6}, v{v20[0]}", f"v_xor_b32 v{v23[jj]}, {jj<<6}, v{v17}"]
    ad += ["s_lshl_b32 s27, s23, 2", "s_lshl_b32 s28, s25, 1", "s_add_u32 s27, s27, s28", "s_lshl_b32 s27, s27, 16",
           "s_lshl_b32 s28, s24, 12", "s_add_u32 s27, s27, s28", "s_lshl_b32 s28, s26, 10", "s_add_u32 s27, s27, s28",
           "s_lshr_b32 s42, s26, 1", "s_lshl_b32 s28, s42, 16", "s_add_u32 s35, s27, s28", "s_xor_b32 s28, s28, 0x10000", "s_add_u32 s37, s27, s28",
           f"s_add_u32 s36, s35, {WS_K}", f"s_add_u32 s38, s37, {WS_K}", f"s_add_u32 s35, s35, {WS_Q}", f"s_add_u32 s37, s37, {WS_Q}",
           "s_lshl_b32 s27, s24, 1", "s_add_u32 s27, s27, s42", "s_lshl_b32 s27, s27, 7",
           "s_lshl_b32 s28, s23, 3", "s_add_u32 s27, s27, s28", "s_lshl_b32 s28, s25, 2", "s_add_u32 s27, s27, s28", "s_lshl_b32 s27, s27, 10",
           "s_and_b32 s43, s26, 1", "s_lshl_b32 s28, s43, 8", "s_add_u32 s27, s27, s28", f"s_add_u32 s27, s27, {WS_VT}",
           "s_lshl_b32 s28, s42, 11", "s_add_u32 s39, s27, s28", "s_xor_b32 s28, s28, 2048", "s_add_u32 s40, s27, s28",
           f"v_lshrrev_b32 v{tA}, 5, v1", f"v_xor_b32 v{tA}, s43, v{tA}", f"v_lshlrev_b32 v{tA}, 10, v{tA}",
           f"v_bfe_u32 v{tB}, v1, 4, 1", f"v_lshl_add_u32 v{tA}, v{tB}, 9, v{tA}", f"v_lshl_add_u32 v{vVO}, v{vTok}, 4, v{tA}",
           "s_lshl_b32 s28, s43, 8", f"v_xor_b32 v{vL16}, s28, v{vL16}", "s_mov_b32 s44, 0x3e8293ee",
           f"s_lshl_b32 s41, s23, {14 if STL & 1 else 10}", f"s_add_u32 s41, s41, {WS_ST1}", f"s_mul_i32 s45, s24, {16*768}", f"s_add_u32 s45, s45, {WS_CS1}"]
    return ad

def hoisted_tail2(k, o, step, vm, R):
    PL, RMR, ONE, vP, vZ, vL16, SQ, CQ, QS, VS, vVO = [R[x] for x in ("PL", "RMR", "ONE", "vP", "vZ", "vL16", "SQ", "CQ", "QS", "VS", "vVO")]
    r0, r1 = 198, 199
    vSt = 200; vCs = 201
    v17, v18, v19 = 209, 212, 204
    v20 = [205, 206, 207, 208]; v23 = [v17, 213, 214, 215]
    vSa, vCg = 218, 219
    HV = int(os.environ.get("HV", "9")); HP = int(os.environ.get("HP", "11")); HC = HP + 1
    assert 8 <= HV < HP <= 11
    st_ = lambda nm: k.stamp(nm) if TST else None
    def chk(o_):
        rdy = k.lab("p1rdy"); spin = k.lab("p1spin")
        k(f"s_waitcnt vmcnt({vm.cnt({'VP'})})")
        k(f"v_cmp_eq_u32 vcc, 128, v{vP}")
        k("s_cmp_eq_u64 vcc, -1")
        k(f"s_cbranch_scc1 {rdy}")
        k("s_mov_b32 s28, 0")
        k(f"{spin}:")
        k("s_add_u32 s28, s28, 1")
        k(f"s_cmp_gt_u32 s28, {SPIN_LIMIT}")
        k(f"s_cbranch_scc1 {rdy}")
        k("s_sleep 2")
        k(f"buffer_load_dword v{vP}, v196, s[60:63], 0 offen sc1")
        k("s_waitcnt vmcnt(0)")
        k(f"v_cmp_eq_u32 vcc, 128, v{vP}")
        k("s_cmp_eq_u64 vcc, -1")
        k(f"s_cbranch_scc0 {spin}")
        k(f"{rdy}:")
    vp = [f"buffer_load_dword v{vP}, v196, s[60:63], 0 offen sc1", "s_lshl_b32 s27, s2, 13",
          f"buffer_load_dwordx4 v[{RMR}:{RMR+3}], v197, s[88:91], s27 offen"]
    la = []
    for i in range(4):
        if STL & 1: la.append(f"buffer_load_dwordx2 v[{PL+2*i}:{PL+2*i+1}], v{vSa}, s[12:15], s41 offen offset:{1024*i}{SC}")
        else: la.append([f"buffer_load_dwordx2 v[{PL+2*i}:{PL+2*i+1}], v{vSa}, s[12:15], s41 offen{SC}"] + (["s_add_u32 s41, s41, 16384"] if i < 3 else []))
    lb = [f"buffer_load_dwordx2 v[{PL+8+2*i}:{PL+8+2*i+1}], v{vCg}, s[12:15], s45 offen offset:{768*i}{SC}" for i in range(4)]
    rs = [f"v_mov_b32 v{r0}, 0"] + [f"v_dot2c_f32_bf16 v{r0}, v{RMR+r}, v{ONE}" for r in range(4)]
    rs += [f"v_add_f32_dpp v{r0}, v{r0}, v{r0} row_ror:{ro} row_mask:0xf bank_mask:0xf" for ro in (8, 4, 2, 1)]
    for sw in ("v_permlane16_swap_b32", "v_permlane32_swap_b32"):
        rs += [f"v_mov_b32 v{r1}, v{r0}", f"{sw} v{r0}, v{r1}", f"v_add_f32 v{r0}, v{r0}, v{r1}"]
    rs += ["s_lshl_b32 s27, s20, 2", "s_add_u32 s27, s27, 2048", f"v_mov_b32 v{r1}, s27", f"ds_write_b32 v{r1}, v{r0}"]
    def red(b):
        x = [f"v_add_f32 v{b}, v{b}, v{b+2}", f"v_add_f32 v{b+1}, v{b+1}, v{b+3}", f"v_add_f32 v{b+4}, v{b+4}, v{b+6}", f"v_add_f32 v{b+5}, v{b+5}, v{b+7}",
             f"v_add_f32 v{b}, v{b}, v{b+4}", f"v_add_f32 v{b+1}, v{b+1}, v{b+5}"]
        for qp in ("[1,0,3,2]", "[2,3,0,1]"):
            x += [f"v_add_f32_dpp v{b}, v{b}, v{b} quad_perm:{qp} row_mask:0xf bank_mask:0xf",
                  f"v_add_f32_dpp v{b+1}, v{b+1}, v{b+1} quad_perm:{qp} row_mask:0xf bank_mask:0xf"]
        return x
    sa = red(PL) + [f"v_mul_f32 v{PL}, 0x3a800000, v{PL}", f"v_mul_f32 v{PL+1}, 0x3a800000, v{PL+1}",
          f"v_fma_f32 v{PL+1}, -v{PL}, v{PL}, v{PL+1}", f"v_max_f32 v{PL+1}, 0, v{PL+1}", f"v_add_f32 v{PL+1}, 0x3727c5ac, v{PL+1}",
          f"v_rsq_f32 v{PL+1}, v{PL+1}", f"v_mul_f32 v{PL+2}, v{PL}, v{PL+1}", f"v_sub_f32 v{PL+2}, 0, v{PL+2}",
          f"ds_write_b32 v{vSt}, v{PL+1}", f"ds_write_b32 v{vSt}, v{PL+2} offset:512"]
    lm = k.lab("nomx")
    sb = red(PL + 8) + [f"ds_write_b64 v{vCs}, v[{PL+8}:{PL+9}] offset:1024",
          ["s_cmp_lg_u32 s24, 0", f"s_cbranch_scc1 {lm}", "s_lshl_b32 s27, s23, 9", f"s_add_u32 s27, s27, {WS_MX}",
           f"buffer_store_dword v{PL}, v{vSt}, s[12:15], s27 offen{SC}", f"{lm}:"]]
    for t in range(8, 13):
        if t == HV:
            step(o, t, 0, inj=vp, inj0=2); vm.issue("VP"); vm.issue("RMR")
        elif t == HP:
            step(o, t, 0, pre=chk, inj=la, inj0=1); vm.issue("PA", 4)
        elif t == HC:
            step(o, t, 0, inj=lb, inj0=1); vm.issue("PB", 4)
        else:
            step(o, t, 0)
        st_(f"t{t}_0")
        step(o, t, 1)
        st_(f"t{t}")
    step(o, 13, 0, inj=rs, inj0=0)
    st_("t13_0")
    step(o, 13, 1, extra_need=("PA", "RMR"), inj=sa, inj0=0)
    st_("t13")
    def wpb(o_): k(f"s_waitcnt vmcnt({vm.cnt({'PB'})})")
    step(o, 14, 0, pre=wpb, inj=sb, inj0=0)
    vm.issue("MX", 1, certain=False)
    st_("t14_0")
    RW = 56
    rd = [f"ds_read2_b32 v[{SQ+2*jj}:{SQ+2*jj+1}], v{v23[jj]} offset0:0 offset1:128" for jj in range(4)]
    rd += [f"ds_read_b128 v[{RW}:{RW+3}], v{vZ} offset:2048", f"ds_read_b128 v[{RW+4}:{RW+7}], v{vZ} offset:2064"]
    step(o, 14, 1, inj=rd, inj0=6)
    st_("t14")
    q = []
    for jj in range(4):
        q += [f"v_mul_f32 v{QS+2*jj}, s44, v{SQ+2*jj}", f"v_mul_f32 v{QS+2*jj+1}, s44, v{SQ+2*jj+1}"]
    l7 = k.lab("norm")
    b7 = ["s_cmp_lg_u32 s20, 7", f"s_cbranch_scc1 {l7}"]
    for r in range(4):
        b7 += [f"v_add_f32 v{RW+2*r}, v{RW+2*r}, v{RW+2*r+1}"]
    for r in range(4):
        b7 += [f"v_mul_f32 v{RW+2*r}, 0x3a800000, v{RW+2*r}"]
    b7 += [f"v_cvt_pk_bf16_f32 v{r0}, v{RW}, v{RW+2}", f"v_cvt_pk_bf16_f32 v{r1}, v{RW+4}, v{RW+6}",
           "s_lshl_b32 s27, s2, 3", f"s_add_u32 s27, s27, {WS_RM}", "s_mov_b64 exec, 1",
           f"buffer_store_dwordx2 v[{r0}:{r1}], v{vZ}, s[12:15], s27 offen{SC}", "s_mov_b64 exec, -1", f"{l7}:"]
    cq = [f"ds_read_b128 v[{CQ}:{CQ+3}], v{v19}", f"ds_read_b128 v[{CQ+4}:{CQ+7}], v{v19} offset:256"]
    step(o, 15, 0, inj=q + cq + [b7], inj0=0)
    st_("t15_0")
    vr = [f"ds_read_b32 v152, v{v18} offset:512"]
    for jj in range(4):
        vr += [f"ds_read_b128 v[{VS[jj]}:{VS[jj]+3}], v{v20[jj]}", f"ds_read_b128 v[{VS[jj]+4}:{VS[jj]+7}], v{v20[jj]} offset:512"]
    step(o, 15, 1, inj=vr, inj0=0)
    k.stamp("p1_loop")

def phase1(k):
    NS = 4; SLOT = 40960; BOFF = 24576
    ACC = 64
    vA = [2, 3]; vW = [10, 11, 12]; vX = [13, 4]; vL16 = 5; vZ = 6; vP = 7
    A = [16, 28]; B = [40, 112]
    VB = 128; DC = 144; D1 = 156; D2 = 160; ONE = 164; PL = 168
    RMR = 192
    acc = lambda m, j: ACC + (m * 4 + j) * 4
    k("s_and_b32 s21, s2, 7"); k("s_lshr_b32 s22, s2, 3")
    if P1M == 0:
        k("s_and_b32 s23, s21, 1"); k("s_lshl_b32 s23, s23, 3"); k("s_and_b32 s24, s22, 7"); k("s_add_u32 s23, s23, s24")
        k("s_lshr_b32 s24, s21, 1"); k("s_lshl_b32 s24, s24, 2"); k("s_lshr_b32 s25, s22, 3"); k("s_add_u32 s24, s24, s25")
    elif P1M == 1:
        k("s_and_b32 s23, s22, 15"); k("s_lshl_b32 s24, s21, 1"); k("s_lshr_b32 s25, s22, 4"); k("s_add_u32 s24, s24, s25")
    else:
        k("s_lshr_b32 s23, s22, 1"); k("s_lshl_b32 s24, s21, 1"); k("s_and_b32 s25, s22, 1"); k("s_add_u32 s24, s24, s25")
    k("s_and_b32 s25, s20, 1")
    k("s_lshr_b32 s26, s20, 1")
    wdma_lane(k, vW[0], 6144, 14)
    if QKS:
        for m in (1, 2):
            k(f"s_add_u32 s27, s24, {m*QKS}"); k("s_and_b32 s27, s27, 15"); k("s_sub_u32 s27, s27, s24")
            k("s_lshl_b32 s27, s27, 7"); k(f"s_add_u32 s27, s27, {2048*m}")
            k(f"v_add_u32 v{vW[m]}, s27, v{vW[0]}")
    else:
        k(f"v_add_u32 v{vW[1]}, 2048, v{vW[0]}")
        k(f"v_add_u32 v{vW[2]}, 4096, v{vW[0]}")
    k("v_lshrrev_b32 v14, 3, v1"); k("v_and_b32 v15, 7, v1")
    k("v_lshrrev_b32 v17, 4, v1")
    k("v_xor_b32 v17, v17, v15")
    k("v_lshlrev_b32 v17, 4, v17")
    k(f"v_lshl_add_u32 v{vX[0]}, v14, 11, v17")
    k(f"v_xor_b32 v{vX[1]}, 64, v{vX[0]}")
    k(f"v_add_u32 v{vX[1]}, {16384 - 1024}, v{vX[1]}")
    k(f"v_lshlrev_b32 v{vL16}, 4, v1")
    k("s_lshr_b32 s27, s20, 2"); k("s_lshl_b32 s27, s27, 5")
    k("s_bfe_u32 s28, s20, 0x10001"); k("s_lshl_b32 s28, s28, 4"); k("s_add_u32 s27, s27, s28")
    k("s_lshl_b32 s28, s25, 2"); k("s_add_u32 s27, s27, s28")
    k("s_mul_i32 s48, s27, 6144"); k("s_lshl_b32 s28, s24, 7"); k("s_add_u32 s48, s48, s28")
    k(f"s_add_u32 s46, s48, {16*64*6144}")
    k("s_lshl_b32 s49, s23, 3"); k("s_add_u32 s49, s49, s20"); k("s_lshl_b32 s49, s49, 15")
    KT0 = int(os.environ.get("KT0", "0"))
    if KT0 == 0: k("s_add_u32 s27, s23, s24"); k("s_and_b32 s27, s27, 15")
    elif KT0 == 1: k("s_mov_b32 s27, s24")
    elif KT0 == 2: k("s_mov_b32 s27, s23")
    elif KT0 == 3: k("s_mov_b32 s27, 0")
    elif KT0 == 4: k("s_and_b32 s27, s2, 7"); k("s_lshl_b32 s27, s27, 1")
    elif KT0 == 5: k("s_and_b32 s27, s23, 1"); k("s_lshl_b32 s27, s27, 3"); k("s_add_u32 s27, s27, s24"); k("s_and_b32 s27, s27, 15")
    elif KT0 == 6: k("s_and_b32 s27, s23, 3"); k("s_lshl_b32 s27, s27, 2"); k("s_add_u32 s27, s27, s24"); k("s_and_b32 s27, s27, 15")
    k(f"s_mul_i32 s28, s27, {64*6144}"); k("s_add_u32 s30, s48, s28")
    k("s_lshl_b32 s28, s27, 7"); k("s_add_u32 s31, s49, s28")
    k("s_lshl_b32 s32, s20, 10")
    k("s_lshl_b32 s33, s20, 11"); k(f"s_add_u32 s33, s33, {BOFF}")
    k.stamp("p1_pre")
    k("s_waitcnt lgkmcnt(0)")
    k.stamp("p1_ka")
    srd(k, 8, pWQKV, D * 3 * D * 2)
    srd(k, 12, pWS, WS_SIZE)
    srd(k, 16, pX, MB4)
    def dma(slot):
        o = []
        for m in range(3):
            o.append([f"s_add_u32 m0, s32, {slot*SLOT + m*8192}", f"buffer_load_dwordx4 v{vW[m]}, s[8:11], s30 offen lds"])
        o.append([f"s_add_u32 m0, s33, {slot*SLOT}", f"buffer_load_dwordx4 v{vX[0]}, s[16:19], s31 offen lds"])
        o.append([f"buffer_load_dwordx4 v{vX[1]}, s[16:19], s31 offen offset:1024 lds"])
        return o
    adv = [f"s_add_u32 s30, s30, {64*6144}", "s_add_u32 s31, s31, 128", "s_cmp_eq_u32 s30, s46", "s_cselect_b32 s30, s48, s30", "s_cselect_b32 s31, s49, s31"]
    vm = VM()
    def issue_stage(st):
        dd = dma(st % NS)
        if st == 0 and int(os.environ.get("RXF", "0")): dd = dd[3:] + dd[:3]
        for d in dd:
            for l in d: k(l)
        for l in adv: k(l)
        vm.issue(("S", st), 5)
    NPRO = 2 if RAMP else NS
    issue_stage(0)
    if not RAMP:
        for st in range(1, NS): issue_stage(st)
    k.stamp("p1_dma")
    srd(k, 88, pWO, D * D * 2)
    k("v_lshlrev_b32 v197, 4, v0")
    k("v_mov_b32 v14, v197")
    l0 = k.lab("noinit")
    k("s_cmp_lg_u32 s2, 0"); k(f"s_cbranch_scc1 {l0}")
    for r in range(4): k(f"v_mov_b32 v{PL+r}, 0")
    k(f"s_mov_b32 s27, {WS_CNT}")
    k(f"buffer_store_dwordx4 v[{PL}:{PL+3}], v14, s[12:15], s27 offen{SC}")
    k(f"{l0}:")
    srd(k, 60, pDBG, 256)
    if JIT:
        k("s_getpc_b64 s[80:81]"); k("L_cb:"); k("s_mov_b32 s82, L_end-L_cb"); k("s_mov_b32 s83, 0x20000")
        k("s_lshr_b32 s27, s2, 3"); k("s_lshl_b32 s27, s27, 3"); k("s_add_u32 s27, s27, s20"); k("s_lshl_b32 s27, s27, 8")
        k("v_and_b32 v252, 3, v1"); k("v_lshlrev_b32 v252, 6, v252"); k("v_add_u32 v252, s27, v252")
    k("v_lshrrev_b32 v14, 4, v1")
    k("v_bfe_u32 v15, v1, 2, 2")
    k("v_lshrrev_b32 v16, 1, v14"); k("v_and_b32 v17, 1, v14")
    k("v_lshlrev_b32 v16, 4, v16"); k("v_lshl_add_u32 v16, v17, 2, v16"); k("v_add_u32 v16, v16, v15")
    k("v_lshlrev_b32 v16, 7, v16")
    k("v_lshrrev_b32 v18, 1, v15"); k("v_lshl_add_u32 v18, v17, 1, v18")
    k("v_xor_b32 v18, s26, v18")
    k("v_lshl_add_u32 v16, v18, 5, v16")
    k("v_and_b32 v18, 3, v1")
    k(f"v_lshl_add_u32 v{vA[0]}, v18, 3, v16")
    k(f"v_add_u32 v{vA[1]}, {2*SLOT}, v{vA[0]}")
    for i in range(1, 4): k(f"v_cmp_eq_u32 s[{48+2*i}:{49+2*i}], {i}, v18")
    if RAMP:
        if os.environ.get("XST"): k.stamp("p1_b0")
        if not int(os.environ.get("RNB", "0")): k("s_barrier")
        if os.environ.get("XST"): k.stamp("p1_b1")
        if RAMP == 1: issue_stage(1)
        if os.environ.get("XST"): k.stamp("p1_s1")
    k("v_cmp_eq_u32 s[56:57], v14, v15")
    k("v_and_b32 v15, 15, v1")
    k("v_cmp_eq_u32 s[58:59], 0, v15")
    k("v_lshrrev_b32 v16, 1, v15"); k("v_xor_b32 v16, v16, v14"); k("v_lshlrev_b32 v16, 4, v16")
    k("v_lshl_add_u32 v16, v15, 7, v16")
    k("s_cmp_eq_u32 s25, 0")
    k("s_cselect_b32 s58, s58, 0"); k("s_cselect_b32 s59, s59, 0")
    k("s_lshl_b32 s28, s25, 13"); k(f"s_add_u32 s28, s28, {BOFF}")
    for jj in range(4):
        k(f"s_xor_b32 s27, s26, {jj}"); k("s_lshl_b32 s27, s27, 11"); k("s_add_u32 s27, s27, s28")
        k(f"v_add_u32 v{VB+jj}, s27, v16")
        k(f"v_xor_b32 v{VB+4+jj}, 64, v{VB+jj}")
        k(f"v_add_u32 v{VB+8+jj}, {2*SLOT}, v{VB+jj}")
        k(f"v_add_u32 v{VB+12+jj}, {2*SLOT}, v{VB+4+jj}")
    k(f"v_mov_b32 v{vZ}, 0")
    k("v_lshlrev_b32 v8, 3, v15")
    k("s_lshl_b32 s42, s23, 3"); k("s_lshl_b32 s27, s25, 2"); k("s_add_u32 s42, s42, s27"); k("s_add_u32 s42, s42, s26")
    if STL & 1:
        k("s_lshl_b32 s42, s25, 2"); k("s_add_u32 s42, s42, s26"); k("s_lshl_b32 s42, s42, 7")
        k("s_lshl_b32 s27, s23, 14"); k("s_add_u32 s42, s42, s27"); k("s_lshl_b32 s27, s24, 10"); k("s_add_u32 s42, s42, s27"); k(f"s_add_u32 s42, s42, {WS_ST1}")
    else:
        k("s_lshl_b32 s42, s42, 7"); k("s_lshl_b32 s27, s24, 14"); k("s_add_u32 s42, s42, s27"); k(f"s_add_u32 s42, s42, {WS_ST1}")
    k("v_lshlrev_b32 v9, 4, v14")
    k("s_lshl_b32 s43, s24, 4"); k("s_add_u32 s43, s43, s23"); k("s_mul_i32 s43, s43, 768")
    k("s_lshl_b32 s27, s26, 6"); k("s_add_u32 s43, s43, s27"); k(f"s_add_u32 s43, s43, {WS_CS1}")
    k("v_and_b32 v196, 1, v1"); k("v_lshlrev_b32 v196, 7, v196")
    for r in range(ACC, ACC + 48): k(f"v_mov_b32 v{r}, 0")
    for r in range(DC, DC + 20): k(f"v_mov_b32 v{r}, 0")
    for r in range(4): k(f"v_mov_b32 v{ONE+r}, 0x3f803f80")
    def reads(buf, slot, kb):
        o = []
        pr = slot >> 1; so = (slot & 1) * SLOT
        def rA(m):
            return [f"ds_read_b64_tr_b16 v[{A[buf]+4*m+2*t}:{A[buf]+4*m+2*t+1}], v{vA[pr]} offset:{so + m*8192 + kb*4096 + t*1024}" for t in range(2)]
        def rB(j):
            return [f"ds_read_b128 v[{B[buf]+4*j}:{B[buf]+4*j+3}], v{VB + pr*8 + kb*4 + j} offset:{so}"]
        o += rA(0)
        for j in range(4): o += rB(j)
        o += rA(1) + rA(2)
        return o
    def side(buf):
        o = []
        fb = f"v[{B[buf]}:{B[buf]+3}]"; on = f"v[{ONE}:{ONE+3}]"
        for m in range(3):
            o.append(f"v_mfma_f32_16x16x32_bf16 v[{DC+4*m}:{DC+4*m+3}], v[{A[buf]+4*m}:{A[buf]+4*m+3}], {on}, v[{DC+4*m}:{DC+4*m+3}]")
        o.append(f"v_mfma_f32_16x16x32_bf16 v[{D1}:{D1+3}], {on}, {fb}, v[{D1}:{D1+3}]")
        o.append(f"v_mfma_f32_16x16x32_bf16 v[{D2}:{D2+3}], {fb}, {fb}, v[{D2}:{D2+3}]")
        return o
    def once(lines):
        l = k.lab("once")
        k("s_cmp_lg_u32 s34, 0"); k(f"s_cbranch_scc1 {l}")
        for x in lines: k(x)
        k(f"{l}:")
    def publish():
        o = [f"v_cndmask_b32 v{D2}, v{D2}, v{D2+1}, s[50:51]", f"v_cndmask_b32 v{D2}, v{D2}, v{D2+2}, s[52:53]", f"v_cndmask_b32 v{D2}, v{D2}, v{D2+3}, s[54:55]",
             f"v_mov_b32 v{D1+1}, v{D2}",
             "s_mov_b64 exec, s[56:57]",
             f"buffer_store_dwordx2 v[{D1}:{D1+1}], v8, s[12:15], s42 offen{SC}",
             "s_mov_b64 exec, s[58:59]"]
        for m in range(3):
            o.append(f"buffer_store_dwordx4 v[{DC+4*m}:{DC+4*m+3}], v9, s[12:15], s43 offen offset:{256*m}{SC}")
        if DL1 or SK3:
            o += [f"s_getreg_b32 s27, {XCCR}", "v_mov_b32 v14, s27", "s_lshl_b32 s27, s2, 7", f"s_add_u32 s27, s27, {WS_XID1}",
                  f"buffer_store_dword v14, v9, s[12:15], s27 offen{SC}"]
        if DL1:
            o += ["s_lshl_b32 s28, s24, 7", f"s_add_u32 s28, s28, {WS_CNT + C2F*128}", "s_add_u32 s27, s27, 64",
                  "s_cmp_eq_u32 s23, 0", "s_cselect_b32 s27, s28, s27",
                  f"buffer_store_dword v{vZ}, v9, s[12:15], s27 offen{SC}"]
        o.append("s_mov_b64 exec, -1")
        return o
    def sig1():
        l = k.lab("nosig1")
        return ["s_cmp_lg_u32 s20, 0", f"s_cbranch_scc1 {l}", "s_mov_b64 exec, 1", "v_mov_b32 v14, 1",
                "s_and_b32 s27, s2, 1", "s_lshl_b32 s27, s27, 7",
                f"buffer_atomic_add v14, v{vZ}, s[60:63], s27 offen sc1", "s_mov_b64 exec, -1", f"{l}:"]
    k.stamp("p1_set")
    if RAMP == 3:
        k(f"s_waitcnt vmcnt({os.environ.get('RV', '3')})"); issue_stage(1)
    k(f"s_waitcnt vmcnt({vm.cnt({('S', 0)})})")
    if RAMP == 2: issue_stage(1)
    k.stamp("p1_w0")
    k("s_barrier")
    k.stamp("p1_go")
    for l in reads(0, 0, 0): k(l)
    NT = 16
    def sched(t, kb):
        if RAMP and t < 2: return [2, 3, 4, 5][2 * t + kb]
        if kb == 1 and t + NS < NT: return t + NS
        return None
    def step(o, t, kb, side_here=False, pre=None, post=None, extra_need=(), inj=None, inj0=0):
        cur = kb; nxt = kb ^ 1; last = t == NT - 1
        if kb == 0:
            o.append("s_waitcnt lgkmcnt(0)")
            rd = reads(nxt, t % NS, 1)
        elif last:
            o.append("s_waitcnt lgkmcnt(0)"); rd = []
        else:
            o.append(f"s_waitcnt vmcnt({vm.cnt({('S', t + 1)} | set(extra_need))}) lgkmcnt(0)")
            o.append("s_barrier")
            rd = reads(nxt, (t + 1) % NS, 0)
        st = sched(t, kb)
        dm = dma(st % NS) if st is not None else []
        if pre: pre(o)
        if st is not None: vm.issue(("S", st), 5)
        mf = []
        for m in range(3):
            for j in range(4):
                a = acc(m, j); fa = f"v[{A[cur]+4*m}:{A[cur]+4*m+3}]"; fb = f"v[{B[cur]+4*j}:{B[cur]+4*j+3}]"
                if m == 2: fa, fb = fb, fa
                mf.append(f"v_mfma_f32_16x16x32_bf16 v[{a}:{a+3}], {fa}, {fb}, v[{a}:{a+3}]")
        gaps = [[] for _ in mf]
        for q, r in enumerate(rd): gaps[q].append(r)
        pos = [1, 3, 5, 7, 9]
        for q, d in enumerate(dm):
            if len(d) == 2:
                gaps[pos[q] - 1].append(d[0]); gaps[pos[q]].append(d[1])
            else:
                gaps[pos[q]].append(d[0])
        if dm: gaps[10] += adv
        if inj:
            ng = len(mf) - inj0
            for q, it in enumerate(inj):
                gaps[inj0 + q * ng // len(inj)] += (it if isinstance(it, list) else [it])
        for g, mm in enumerate(mf):
            o.append(mm); o += gaps[g]
        if side_here: o += side(cur)
        if post: post(o)
    texts = []
    for per in range(2 if HOIST else 3):
        o = []
        for t in range(per * 4, per * 4 + 4):
            if HOIST == 2 and 4 <= t < 8:
                ad = hoist_ad(dict(vL16=vL16, vVO=217)); n4 = (len(ad) + 3) // 4
                step(o, t, 0, inj=ad[(t - 4) * n4:(t - 3) * n4], inj0=0)
            else:
                step(o, t, 0, side_here=(t == 0))
            if t == 1 and not ESIG:
                o += publish(); vm.issue("PUB", 6 if DL1 else 5 if SK3 else 4, certain=False)
            step(o, t, 1, side_here=(t == 0), extra_need=("PUB",) if t == 3 - ESIG else ())
            if t == 0 and ESIG:
                o += publish(); vm.issue("PUB", 6 if DL1 else 5 if SK3 else 4, certain=False)
            if t == 3 - ESIG: o += sig1(); vm.issue("SIG", 1, certain=False)
        texts.append(o)
    periods(k, "p1loop", texts, 34)
    if TST: k.stamp("t11" if not HOIST else "t7")
    def partial_loads():
        rdy = k.lab("p1rdy"); spin = k.lab("p1spin"); nocs = k.lab("p1nocs")
        if TST == 2: k.stamp("t14_w")
        k(f"v_cmp_eq_u32 vcc, 128, v{vP}")
        k("s_cmp_eq_u64 vcc, -1")
        k(f"s_cbranch_scc1 {rdy}")
        k("s_mov_b32 s28, 0")
        k(f"{spin}:")
        k("s_add_u32 s28, s28, 1")
        k(f"s_cmp_gt_u32 s28, {SPIN_LIMIT}")
        k(f"s_cbranch_scc1 {rdy}")
        k("s_sleep 2")
        k(f"buffer_load_dword v{vP}, v196, s[60:63], 0 offen sc1")
        k("s_waitcnt vmcnt(0)")
        k(f"v_cmp_eq_u32 vcc, 128, v{vP}")
        k("s_cmp_eq_u64 vcc, -1")
        k(f"s_cbranch_scc0 {spin}")
        k(f"{rdy}:")
        if TST == 2: k.stamp("t14_c")
        if COA & 1:
            k("v_lshrrev_b32 v14, 4, v1"); k(f"v_lshlrev_b32 v14, {12 if STL & 1 else 16}, v14")
            k("v_and_b32 v15, 15, v1"); k("s_lshl_b32 s27, s20, 4"); k("v_add_u32 v15, s27, v15"); k("v_lshl_add_u32 v14, v15, 3, v14")
        else:
            k("v_and_b32 v14, 3, v0"); k(f"v_lshlrev_b32 v14, {12 if STL & 1 else 16}, v14")
            k("v_lshrrev_b32 v15, 2, v0"); k("v_lshl_add_u32 v14, v15, 3, v14")
        k(f"s_lshl_b32 s27, s23, {14 if STL & 1 else 10}"); k(f"s_add_u32 s27, s27, {WS_ST1}")
        for i in range(4):
            if STL & 1:
                k(f"buffer_load_dwordx2 v[{PL+2*i}:{PL+2*i+1}], v14, s[12:15], s27 offen offset:{1024*i}{SC}")
                continue
            k(f"buffer_load_dwordx2 v[{PL+2*i}:{PL+2*i+1}], v14, s[12:15], s27 offen{SC}")
            if i < 3: k("s_add_u32 s27, s27, 16384")
        if TST == 2: k.stamp("t14_s")
        k("s_cmp_ge_u32 s20, 3")
        k(f"s_cbranch_scc1 {nocs}")
        k("v_lshlrev_b32 v14, 2, v0")
        k(f"s_mul_i32 s27, s24, {16*768}"); k(f"s_add_u32 s27, s27, {WS_CS1}")
        for i in range(16):
            k(f"buffer_load_dword v{PL+8+i}, v14, s[12:15], s27 offen offset:{(i % 4) * 768}{SC}")
            if i % 4 == 3 and i < 15: k(f"s_add_u32 s27, s27, {4*768}")
        k(f"{nocs}:")
        if DL1 == 1:
            lid = k.lab("p1noid")
            k("s_cmp_lg_u32 s20, 7"); k(f"s_cbranch_scc1 {lid}")
            k("v_and_b32 v14, 31, v1"); k("v_lshlrev_b32 v14, 10, v14")
            k("s_and_b32 s27, s2, 7"); k("s_lshl_b32 s27, s27, 7"); k(f"s_add_u32 s27, s27, {WS_XID1}")
            k(f"buffer_load_dword v{PL+8}, v14, s[12:15], s27 offen{SC}")
            k(f"{lid}:")
        if TST == 2: k.stamp("t14_l")
    class _O:
        def append(self, x): k(x)
        def __iadd__(self, xs):
            for x in xs: k(x)
            return self
    o = _O()
    SQ = 28; CQ = 36; QS = 52; VS = [112, 120, 128, 136]; vVO = 14
    if HOIST:
        SQ = 220; CQ = 228; QS = 184; VS = [236, 244, 154, 176]; vVO = 217
        (hoisted_tail2 if HOIST == 2 else hoisted_tail)(k, o, step, vm, dict(PL=PL, RMR=RMR, ONE=ONE, vP=vP, vZ=vZ, vL16=vL16, SQ=SQ, CQ=CQ, QS=QS, VS=VS, vVO=vVO))
    else:
        o = _O()
        for t in range(12, 16):
            step(o, t, 0)
            if TST == 2 and t >= 13: k.stamp(f"t{t}_0")
            if DL1 and t == DLT:
                k("v_lshrrev_b32 v198, 5, v1"); k("v_lshlrev_b32 v198, 16, v198"); k("v_and_b32 v199, 31, v1"); k("v_lshl_add_u32 v198, v199, 7, v198")
                k("v_lshlrev_b32 v199, 7, v1")
                k("s_and_b32 s28, s20, 1")
                k("s_lshl_b32 s27, s23, 1"); k("s_add_u32 s27, s27, s28"); k("s_lshl_b32 s27, s27, 17"); k("s_lshl_b32 s29, s24, 12"); k("s_add_u32 s27, s27, s29")
                k("s_cmp_lt_u32 s20, 2"); k(f"s_cselect_b32 s29, 0, {WS_K - WS_Q}"); k("s_add_u32 s27, s27, s29"); k(f"s_add_u32 s27, s27, {WS_Q}")
                k("s_lshl_b32 s29, s24, 1"); k("s_add_u32 s29, s29, s28"); k("s_lshl_b32 s29, s29, 17"); k("s_lshl_b32 s28, s23, 13"); k("s_add_u32 s29, s29, s28")
                k(f"s_add_u32 s29, s29, {WS_VT}")
                k("s_cmp_ge_u32 s20, 4"); k("s_cselect_b32 s27, s29, s27"); k("s_cselect_b64 vcc, -1, 0")
                k("v_cndmask_b32 v198, v198, v199, vcc")
                k(f"buffer_load_dword v199, v198, s[12:15], s27 offen{SC}"); vm.issue("PT")
            if t == 12:
                k(f"buffer_load_dword v{vP}, v196, s[60:63], 0 offen sc1"); vm.issue("VP")
                k("s_lshl_b32 s27, s2, 13")
                k(f"buffer_load_dwordx4 v[{RMR}:{RMR+3}], v197, s[88:91], s27 offen"); vm.issue("RMR")
                if JIT & 1:
                    for l in jit("L_p1tail", 27, 211): k(l)
                    vm.issue("CP")
            step(o, t, 1, pre=(lambda o: partial_loads()) if t == 14 else None, extra_need=("VP", "RMR") if t == 14 else ())
            if TST and t < 15: k.stamp(f"t{t}")
        if JIT & 1: k("L_p1tail:")
        k.stamp("p1_loop")
        k("v_mov_b32 v14, 0")
        for r in range(4): k(f"v_dot2c_f32_bf16 v14, v{RMR+r}, v{ONE}")
        for ro in (8, 4, 2, 1): k(f"v_add_f32_dpp v14, v14, v14 row_ror:{ro} row_mask:0xf bank_mask:0xf")
        for sw in ("v_permlane16_swap_b32", "v_permlane32_swap_b32"):
            k("v_mov_b32 v15, v14"); k(f"{sw} v14, v15"); k("v_add_f32 v14, v14, v15")
        k("s_lshl_b32 s27, s20, 2"); k("s_add_u32 s27, s27, 2048"); k("v_mov_b32 v15, s27")
        k("ds_write_b32 v15, v14")
        k("s_waitcnt vmcnt(0)")
        if DL1 == 1:
            lid = k.lab("p1noid")
            k("s_cmp_lg_u32 s20, 7"); k(f"s_cbranch_scc1 {lid}")
            k(f"s_getreg_b32 s27, {XCCR}"); k(f"v_cmp_ne_u32 vcc, s27, v{PL+8}")
            k("s_cmp_eq_u64 vcc, 0"); k("s_cselect_b32 s27, 1, 0"); k("v_mov_b32 v15, s27")
            k(f"ds_write_b32 v{vZ}, v15 offset:{FLAGOFF}")
            k(f"{lid}:")
        k(f"v_add_f32 v{PL}, v{PL}, v{PL+2}"); k(f"v_add_f32 v{PL+1}, v{PL+1}, v{PL+3}")
        k(f"v_add_f32 v{PL+4}, v{PL+4}, v{PL+6}"); k(f"v_add_f32 v{PL+5}, v{PL+5}, v{PL+7}")
        k(f"v_add_f32 v{PL}, v{PL}, v{PL+4}"); k(f"v_add_f32 v{PL+1}, v{PL+1}, v{PL+5}")
        if COA & 1:
            k("v_and_b32 v16, 15, v1"); k("s_lshl_b32 s27, s20, 4"); k("v_add_u32 v16, s27, v16"); k("v_lshlrev_b32 v16, 2, v16")
            k(f"v_permlane16_swap_b32 v{PL}, v{PL+1}")
            k(f"v_add_f32 v{PL}, v{PL}, v{PL+1}"); k(f"v_mov_b32 v{PL+1}, v{PL}")
            k(f"v_permlane32_swap_b32 v{PL}, v{PL+1}")
            k(f"v_add_f32 v{PL}, v{PL}, v{PL+1}"); k(f"v_mov_b32 v{PL+1}, v{PL}")
            k(f"v_permlane16_swap_b32 v{PL}, v{PL+1}")
        else:
            for qp in ("[1,0,3,2]", "[2,3,0,1]"):
                k(f"v_add_f32_dpp v{PL}, v{PL}, v{PL} quad_perm:{qp} row_mask:0xf bank_mask:0xf")
                k(f"v_add_f32_dpp v{PL+1}, v{PL+1}, v{PL+1} quad_perm:{qp} row_mask:0xf bank_mask:0xf")
        k(f"v_mul_f32 v{PL}, 0x3a800000, v{PL}")
        k(f"v_mul_f32 v{PL+1}, 0x3a800000, v{PL+1}")
        if not COA & 1: k("v_lshrrev_b32 v16, 2, v0"); k("v_lshlrev_b32 v16, 2, v16")
        lm = k.lab("nomx")
        k("s_cmp_lg_u32 s24, 0"); k(f"s_cbranch_scc1 {lm}")
        k("s_lshl_b32 s27, s23, 9"); k(f"s_add_u32 s27, s27, {WS_MX}")
        k(f"buffer_store_dword v{PL}, v16, s[12:15], s27 offen{SC}")
        k(f"{lm}:")
        k(f"v_fma_f32 v{PL+1}, -v{PL}, v{PL}, v{PL+1}")
        k(f"v_max_f32 v{PL+1}, 0, v{PL+1}")
        k(f"v_add_f32 v{PL+1}, 0x3727c5ac, v{PL+1}")
        k(f"v_rsq_f32 v{PL+1}, v{PL+1}")
        k(f"v_mul_f32 v{PL+2}, v{PL}, v{PL+1}")
        k(f"v_sub_f32 v{PL+2}, 0, v{PL+2}")
        k(f"ds_write_b32 v16, v{PL+1}")
        k(f"ds_write_b32 v16, v{PL+2} offset:512")
        l2 = k.lab("nocs2")
        k("s_cmp_ge_u32 s20, 3")
        k(f"s_cbranch_scc1 {l2}")
        for st in (8, 4, 2, 1):
            for i in range(st): k(f"v_add_f32 v{PL+8+i}, v{PL+8+i}, v{PL+8+i+st}")
        k("v_lshlrev_b32 v16, 2, v0")
        k(f"ds_write_b32 v16, v{PL+8} offset:1024")
        k(f"{l2}:")
        k("v_and_b32 v15, 15, v1")
        k("s_lshl_b32 s27, s25, 8"); k("s_lshl_b32 s28, s26, 6"); k("s_add_u32 s28, s28, s27")
        k("v_lshlrev_b32 v16, 2, v15")
        k("v_add_u32 v17, s28, v16")
        k("v_lshrrev_b32 v14, 4, v1")
        k("v_lshlrev_b32 v19, 4, v14")
        k("v_add_u32 v20, s28, v19")
        k("s_lshl_b32 s29, s26, 6"); k("s_add_u32 s29, s29, 1024")
        k("v_add_u32 v19, s29, v19")
        k("v_add_u32 v18, s29, v16")
        for jj in range(1, 4):
            k(f"v_xor_b32 v{20+jj}, {jj<<6}, v20")
            k(f"v_xor_b32 v{23+jj}, {jj<<6}, v17")
        k("s_lshl_b32 s27, s23, 2"); k("s_lshl_b32 s28, s25, 1"); k("s_add_u32 s27, s27, s28")
        k("s_lshl_b32 s27, s27, 16")
        k("s_lshl_b32 s28, s24, 12"); k("s_add_u32 s27, s27, s28")
        k("s_lshl_b32 s28, s26, 10"); k("s_add_u32 s27, s27, s28")
        k("s_lshr_b32 s42, s26, 1")
        k("s_lshl_b32 s28, s42, 16"); k("s_add_u32 s35, s27, s28")
        k("s_xor_b32 s28, s28, 0x10000"); k("s_add_u32 s37, s27, s28")
        k(f"s_add_u32 s36, s35, {WS_K}"); k(f"s_add_u32 s38, s37, {WS_K}")
        k(f"s_add_u32 s35, s35, {WS_Q}"); k(f"s_add_u32 s37, s37, {WS_Q}")
        if QKS:
            k(f"s_add_u32 s27, s24, {QKS}"); k("s_and_b32 s27, s27, 15"); k("s_sub_u32 s27, s27, s24"); k("s_lshl_b32 s27, s27, 12")
            k("s_add_u32 s36, s36, s27"); k("s_add_u32 s38, s38, s27")
            k(f"s_add_u32 s27, s24, {2*QKS}"); k("s_and_b32 s27, s27, 15"); k("s_lshl_b32 s27, s27, 1")
        else:
            k("s_lshl_b32 s27, s24, 1")
        k("s_add_u32 s27, s27, s42")
        k("s_lshl_b32 s27, s27, 7")
        k("s_lshl_b32 s28, s23, 3"); k("s_add_u32 s27, s27, s28")
        k("s_lshl_b32 s28, s25, 2"); k("s_add_u32 s27, s27, s28")
        k("s_lshl_b32 s27, s27, 10")
        k("s_and_b32 s43, s26, 1")
        k("s_lshl_b32 s28, s43, 8"); k("s_add_u32 s27, s27, s28")
        k(f"s_add_u32 s27, s27, {WS_VT}")
        k("s_lshl_b32 s28, s42, 11"); k("s_add_u32 s39, s27, s28")
        k("s_xor_b32 s28, s28, 2048"); k("s_add_u32 s40, s27, s28")
        k("v_lshrrev_b32 v27, 5, v1"); k("v_xor_b32 v27, s43, v27"); k("v_lshlrev_b32 v27, 10, v27")
        k("v_bfe_u32 v28, v1, 4, 1"); k("v_lshl_add_u32 v27, v28, 9, v27")
        k("v_lshl_add_u32 v14, v15, 4, v27")
        k("s_lshl_b32 s28, s43, 8")
        k(f"v_xor_b32 v{vL16}, s28, v{vL16}")
        k("s_waitcnt lgkmcnt(0)")
        k("s_barrier")
        SQ = 28; CQ = 36
        if DL1 == 1: k(f"ds_read_b32 v15, v{vZ} offset:{FLAGOFF}")
        k(f"ds_read2_b32 v[{SQ}:{SQ+1}], v17 offset0:0 offset1:128")
        for jj in range(1, 4): k(f"ds_read2_b32 v[{SQ+2*jj}:{SQ+2*jj+1}], v{23+jj} offset0:0 offset1:128")
        k(f"ds_read_b128 v[{CQ}:{CQ+3}], v19")
        k(f"ds_read_b128 v[{CQ+4}:{CQ+7}], v19 offset:256")
        k("ds_read_b32 v152, v18 offset:512")
        VS = [112, 120, 128, 136]
        for jj in range(4):
            k(f"ds_read_b128 v[{VS[jj]}:{VS[jj]+3}], v{20+jj}")
            k(f"ds_read_b128 v[{VS[jj]+4}:{VS[jj]+7}], v{20+jj} offset:512")
        l7 = k.lab("norm")
        k("s_cmp_lg_u32 s20, 7"); k(f"s_cbranch_scc1 {l7}")
        k(f"ds_read_b128 v[{PL}:{PL+3}], v{vZ} offset:2048")
        k(f"ds_read_b128 v[{PL+4}:{PL+7}], v{vZ} offset:2064")
        k("s_waitcnt lgkmcnt(0)")
        for r in range(4):
            k(f"v_add_f32 v{PL+2*r}, v{PL+2*r}, v{PL+2*r+1}")
            k(f"v_mul_f32 v{PL+2*r}, 0x3a800000, v{PL+2*r}")
        k(f"v_cvt_pk_bf16_f32 v{PL+8}, v{PL}, v{PL+2}")
        k(f"v_cvt_pk_bf16_f32 v{PL+9}, v{PL+4}, v{PL+6}")
        k("s_lshl_b32 s27, s2, 3"); k(f"s_add_u32 s27, s27, {WS_RM}")
        k("s_mov_b64 exec, 1")
        k(f"buffer_store_dwordx2 v[{PL+8}:{PL+9}], v{vZ}, s[12:15], s27 offen{SC}")
        k("s_mov_b64 exec, -1")
        k(f"{l7}:")
    if not HOIST:
        k("s_mov_b32 s44, 0x3e8293ee")
        k("s_waitcnt lgkmcnt(9)")
        if DL1 == 1: k("v_readfirstlane_b32 s47, v15")
        elif DL1: k(f"s_mov_b32 s47, {1 if DL1 == 3 else 0}")
        for jj in range(4):
            k(f"v_mul_f32 v{QS+2*jj}, s44, v{SQ+2*jj}")
            k(f"v_mul_f32 v{QS+2*jj+1}, s44, v{SQ+2*jj+1}")
    TP = [16, 20, 24, 44, 48, 60]
    TM = 144
    ti = 0
    HX = os.environ.get("HX", "swd") if HOIST else ""
    if HX in ("bar", "swbar"): k("s_barrier")
    elif HX == "nop7": k("s_nop 7")
    elif HX == "nop15": k("s_nop 15")
    elif HX == "nop31": k("s_nop 15"); k("s_nop 15")
    for m in range(3):
        if m == 2 and HOIST != 1: k("s_waitcnt lgkmcnt(0)")
        for p in range(2):
            t = TP[ti]; ti += 1
            for jj2 in range(2):
                jj = 2 * p + jj2
                a = acc(m, jj)
                for h in range(2):
                    tm = TM + 2 * ((jj2 * 2 + h) & 3)
                    if m < 2:
                        st = (QS if m == 0 else SQ) + 2 * jj
                        cs = CQ + 4 * m + 2 * h
                        first = m == 0 and jj == 0 and h == 0
                        if first and HX in ("v1", "v2", "v3", "v4", "v5", "v6", "v7", "v8", "v9", "v10"):
                            pm = f"v_pk_mul_f32 v[{tm}:{tm+1}], v[{cs}:{cs+1}], v[{st}:{st+1}] op_sel:[0,1] op_sel_hi:[1,1]"
                            pf = f"v_pk_fma_f32 v[{a}:{a+1}], v[{a}:{a+1}], v[{st}:{st+1}], v[{tm}:{tm+1}] op_sel:[0,0,0] op_sel_hi:[1,0,1]"
                            if HX == "v1":
                                for e in range(2): k(f"v_mul_f32 v{tm+e}, v{cs+e}, v{st+1}")
                                k(pf)
                            elif HX == "v2":
                                k(pm)
                                for e in range(2): k(f"v_fma_f32 v{a+e}, v{a+e}, v{st}, v{tm+e}")
                            elif HX == "v3":
                                k(f"v_pk_mul_f32 v[148:149], v[{cs}:{cs+1}], v[{st}:{st+1}] op_sel:[0,1] op_sel_hi:[1,1]"); k(pm); k(pf)
                            elif HX == "v4":
                                k(pm); k("s_nop 0"); k(pf)
                            elif HX == "v5":
                                k(pm); k("s_nop 3"); k(pf)
                            elif HX == "v7":
                                k(f"v_pk_mul_f32 v[{tm}:{tm+1}], v[{cs}:{cs+1}], v[{st}:{st+1}] op_sel:[0,0] op_sel_hi:[1,0]"); k(pf)
                            elif HX == "v8":
                                k(f"v_pk_mul_f32 v[{tm}:{tm+1}], v[{cs}:{cs+1}], v[{st}:{st+1}]"); k(pf)
                            elif HX == "v9":
                                k(f"v_pk_mul_f32 v[{tm}:{tm+1}], v[{cs}:{cs+1}], v[{st}:{st+1}] op_sel:[1,1] op_sel_hi:[1,1]"); k(pf)
                            elif HX == "v10":
                                k(f"v_mul_f32 v{tm+1}, v{cs}, v{st+1}"); k(f"v_mul_f32 v{tm}, v{cs+1}, v{st+1}")
                                k(f"v_pk_fma_f32 v[{a}:{a+1}], v[{a}:{a+1}], v[{st}:{st+1}], v[{tm}:{tm+1}] op_sel:[0,0,1] op_sel_hi:[1,0,0]")
                            elif HX == "v6":
                                k(f"v_pk_mul_f32 v[{tm}:{tm+1}], v[{st}:{st+1}], v[{cs}:{cs+1}] op_sel:[1,0] op_sel_hi:[1,1]"); k(pf)
                            continue
                        if HX.startswith("np") and (m * 4 + jj) * 2 + h < int(HX[2:]):
                            for e in range(2):
                                k(f"v_mul_f32 v{tm+e}, v{cs+e}, v{st+1}")
                            for e in range(2):
                                k(f"v_fma_f32 v{a+2*h+e}, v{a+2*h+e}, v{st}, v{tm+e}")
                            continue
                        if "sw" in HX:
                            if first and HX == "swd": k(f"v_pk_mul_f32 v[{TM+4}:{TM+5}], v[{cs}:{cs+1}], v[{cs}:{cs+1}]")
                            k(f"v_pk_mul_f32 v[{tm}:{tm+1}], v[{st}:{st+1}], v[{cs}:{cs+1}] op_sel:[1,0] op_sel_hi:[1,1]")
                        else:
                            k(f"v_pk_mul_f32 v[{tm}:{tm+1}], v[{cs}:{cs+1}], v[{st}:{st+1}] op_sel:[0,1] op_sel_hi:[1,1]")
                        k(f"v_pk_fma_f32 v[{a+2*h}:{a+2*h+1}], v[{a+2*h}:{a+2*h+1}], v[{st}:{st+1}], v[{tm}:{tm+1}] op_sel:[0,0,0] op_sel_hi:[1,0,1]")
                    else:
                        rs = VS[jj] + 2 * h; nm = VS[jj] + 4 + 2 * h
                        k(f"v_pk_mul_f32 v[{tm}:{tm+1}], v[{nm}:{nm+1}], v[152:153] op_sel:[0,0] op_sel_hi:[1,0]")
                        k(f"v_pk_fma_f32 v[{a+2*h}:{a+2*h+1}], v[{a+2*h}:{a+2*h+1}], v[{rs}:{rs+1}], v[{tm}:{tm+1}]")
                k(f"v_cvt_pk_bf16_f32 v{t+2*jj2}, v{a}, v{a+1}")
                k(f"v_cvt_pk_bf16_f32 v{t+2*jj2+1}, v{a+2}, v{a+3}")
            sw = "v_permlane16_swap_b32" if m < 2 else "v_permlane32_swap_b32"
            k(f"{sw} v{t}, v{t+2}")
            k(f"{sw} v{t+1}, v{t+3}")
            so = [[35, 37], [36, 38], [39, 40]][m][p]
            st = f"buffer_store_dwordx4 v[{t}:{t+3}], v{vL16 if m < 2 else vVO}, s[12:15], s{so} offen"
            if DL1 and DLS & 1:
                lsl = k.lab("p1st"); lj = k.lab("p1stj")
                k("s_cmp_eq_u32 s47, 0"); k(f"s_cbranch_scc1 {lsl}"); k(st); k(f"s_branch {lj}"); k(f"{lsl}:"); k(st + SC); k(f"{lj}:")
            else: k(st + SC)
    k.stamp("p1_epi")
    k("s_lshl_b32 s27, s24, 7"); k(f"s_add_u32 s27, s27, {WS_CNT + C2*128}")
    if DL1 and DLS & 2:
        k("s_waitcnt vmcnt(0)"); k("s_barrier")
        l = k.lab("nosig"); lsl = k.lab("sigsl"); lj = k.lab("sigj")
        k("s_cmp_lg_u32 s20, 0"); k(f"s_cbranch_scc1 {l}")
        k("s_mov_b64 exec, 1"); k("v_mov_b32 v30, 1"); k("v_mov_b32 v31, 0")
        k("s_cmp_eq_u32 s47, 0"); k(f"s_cbranch_scc1 {lsl}")
        k(f"s_add_u32 s27, s27, {(C2F - C2)*128}")
        k("buffer_atomic_add v30, v31, s[12:15], s27 offen"); k(f"s_branch {lj}")
        k(f"{lsl}:"); k("buffer_atomic_add v30, v31, s[12:15], s27 offen sc1")
        k(f"{lj}:"); k("s_mov_b64 exec, -1"); k(f"{l}:")
    elif PROG:
        k("s_bfe_u32 s28, s23, 0x20001"); k("s_lshl_b32 s28, s28, 2"); k("s_lshl_b32 s29, 1, s28")
        signal(k, 27, vt=(30, 31), val="s29")
    else: signal(k, 27, vt=(30, 31))
    k.stamp("p1_sig")

W3BASE = 98304
vW3 = [200, 201]
C35 = int(os.environ.get("C35", "0"))
def coords35(k, stb, scb, st, x=21, y=22):
    k_ = k
    def k(l): k_(l.replace("s21", f"s{x}").replace("s22", f"s{y}"))
    k("s_and_b32 s21, s2, 7"); k("s_lshr_b32 s22, s2, 3")
    if C35 == 0:
        k(f"s_and_b32 s{stb}, s21, 3"); k(f"s_lshl_b32 s{stb}, s{stb}, 2"); k(f"s_and_b32 s{st}, s22, 3"); k(f"s_add_u32 s{stb}, s{stb}, s{st}")
        k(f"s_lshr_b32 s{scb}, s21, 2"); k(f"s_lshl_b32 s{scb}, s{scb}, 3"); k(f"s_lshr_b32 s{st}, s22, 2"); k(f"s_add_u32 s{scb}, s{scb}, s{st}")
    elif C35 == 2:
        k(f"s_lshl_b32 s{stb}, s21, 1"); k(f"s_lshr_b32 s{st}, s22, 4"); k(f"s_add_u32 s{stb}, s{stb}, s{st}")
        k(f"s_and_b32 s{scb}, s22, 15")
    elif C35 == 3:
        k(f"s_and_b32 s{stb}, s21, 1"); k(f"s_lshl_b32 s{stb}, s{stb}, 3"); k(f"s_lshr_b32 s{st}, s22, 2"); k(f"s_add_u32 s{stb}, s{stb}, s{st}")
        k(f"s_lshr_b32 s{scb}, s21, 1"); k(f"s_lshl_b32 s{scb}, s{scb}, 2"); k(f"s_and_b32 s{st}, s22, 3"); k(f"s_add_u32 s{scb}, s{scb}, s{st}")
    elif C35 == 4:
        k(f"s_and_b32 s{stb}, s21, 3"); k(f"s_lshl_b32 s{stb}, s{stb}, 2"); k(f"s_lshr_b32 s{st}, s22, 3"); k(f"s_add_u32 s{stb}, s{stb}, s{st}")
        k(f"s_lshr_b32 s{scb}, s21, 2"); k(f"s_and_b32 s{st}, s22, 7"); k(f"s_lshl_b32 s{st}, s{st}, 1"); k(f"s_add_u32 s{scb}, s{scb}, s{st}")
    else:
        k(f"s_and_b32 s{stb}, s21, 3"); k(f"s_lshl_b32 s{stb}, s{stb}, 2"); k(f"s_lshr_b32 s{st}, s22, 3"); k(f"s_add_u32 s{stb}, s{stb}, s{st}")
        k(f"s_lshr_b32 s{scb}, s21, 2"); k(f"s_lshl_b32 s{scb}, s{scb}, 3"); k(f"s_and_b32 s{st}, s22, 7"); k(f"s_add_u32 s{scb}, s{scb}, s{st}")
WT3 = int(os.environ.get("WT3", "0")); WT5 = int(os.environ.get("WT5", "0"))
WDT = int(os.environ.get("WDT", "3"))
WS_WDT = 0x3000000
SK5 = int(os.environ.get("SK5", "1"))
SKX = int(os.environ.get("SKX", "1"))
R5K = int(os.environ.get("R5K", "5"))
WS_XI = 0x3800000
WS_XID = 0x3C00000
SKF = int(os.environ.get("SKF", "1"))
SKA = int(os.environ.get("SKA", "1"))
SKT = int(os.environ.get("SKT", "25"))
SKO = int(os.environ.get("SKO", "3"))
SKG = int(os.environ.get("SKG", "4")); SKPA = int(os.environ.get("SKPA", "3"))
L2P = int(os.environ.get("L2P", "0")); L2S = int(os.environ.get("L2S", "28")); L2T = int(os.environ.get("L2T", "5")); L2D = int(os.environ.get("L2D", "1")); L2G = [int(x) for x in os.environ.get("L2G", "6,2,6").split(",")]
SKR = int(os.environ.get("SKR", "1"))
WDA = int(os.environ.get("WDA", "3")); WDP = int(os.environ.get("WDP", "4"))
def w35_setup(k, vW, base, t, tiled=0):
    coords35(k, 27, 29, 28)
    rb = 128 if tiled else 2048
    wdma_lane(k, vW[0], rb, t)
    k(f"v_add_u32 v{vW[1]}, {4*rb}, v{vW[0]}")
    k("s_lshr_b32 s27, s20, 1"); k("s_lshl_b32 s27, s27, 5"); k("s_and_b32 s28, s20, 1"); k("s_lshl_b32 s28, s28, 4")
    k("s_add_u32 s27, s27, s28")
    if tiled and SK5 and base == 0:
        k("s_and_b32 s27, s20, 3"); k("s_lshl_b32 s27, s27, 4"); k("s_and_b32 s28, s29, 1"); k(f"s_mul_i32 s28, s28, {DF//2}"); k("s_add_u32 s27, s27, s28")
        k("s_lshr_b32 s28, s20, 2"); k("s_xor_b32 s28, s28, 1"); k("s_xor_b32 s29, s29, s28")
    if SK3 and base and not tiled:
        k("s_and_b32 s27, s20, 3"); k("s_lshl_b32 s27, s27, 4"); k("s_and_b32 s28, s29, 1"); k(f"s_mul_i32 s28, s28, {D//2}"); k("s_add_u32 s27, s27, s28")
        k("s_lshr_b32 s28, s20, 2"); k("s_xor_b32 s28, s28, 1"); k("s_xor_b32 s29, s29, s28")
    if tiled:
        k("s_lshl_b32 s50, s27, 7"); k(f"s_mul_i32 s28, s29, {tiled*128}"); k("s_add_u32 s50, s50, s28")
        if WDT and base == 0: k(f"s_add_u32 s50, s50, {WS_WDT}")
    else:
        k("s_lshl_b32 s50, s27, 11"); k("s_lshl_b32 s28, s29, 7"); k("s_add_u32 s50, s50, s28")
        if os.environ.get("WOFF64") and base == 0: k("s_add_u32 s50, s50, 64")
    k("s_lshl_b32 s51, s20, 11")
    if base: k(f"s_add_u32 s51, s51, {base}")
def w35_dma(vW, srdw, slot):
    sc = SC if srdw == 12 else ""
    return [[f"s_add_u32 m0, s51, {slot*16384}", f"buffer_load_dwordx4 v{vW[0]}, s[{srdw}:{srdw+3}], s50 offen{sc} lds"],
            [f"s_add_u32 m0, s51, {slot*16384+1024}", f"buffer_load_dwordx4 v{vW[1]}, s[{srdw}:{srdw+3}], s50 offen{sc} lds"]]
W3ADV = f"s_add_u32 s50, s50, {(64 if SK3 else 128)*(128 if WT3 else 2048)}"
W5ADV = f"s_add_u32 s50, s50, {(64 if SK5 else 128)*(128 if WT5 or WDT else 2048)}"
SW5 = 12 if WDT else 60

WOPF = int(os.environ.get("WOPF", "0"))
OT = int(os.environ.get("OT", "0"))
def phase2(k):
    S2 = [SC, "", " nt", " sc0"][int(os.environ.get("DLL", "0"))]
    STG = 32768
    vL16, vCur, vNxt, vTmp = 2, 3, 4, 5
    QA, QB = 8, 16
    KF = [24, 32]; VF = [40, 48]
    SA, SB = 56, 72
    PA, PB = 88, 96
    OA, OB = 104, 120
    LA, LB = 136, 140
    NA, NB = 144, 160
    ONE = 176
    T0 = 180
    w35_setup(k, vW3, W3BASE, 180, D if WT3 else 0)
    srd(k, 8, pBX if WT3 else pWO, D * D * 2)
    k("s_and_b32 s21, s2, 7"); k("s_lshl_b32 s21, s21, 2"); k("s_lshr_b32 s22, s2, 6"); k("s_add_u32 s21, s21, s22")
    k("s_bfe_u32 s22, s2, 0x30003")
    k("s_and_b32 s23, s20, 3")
    k("s_lshr_b32 s24, s20, 2")
    k(f"v_lshlrev_b32 v{vL16}, 4, v1")
    k("s_lshl_b32 s30, s24, 5"); k("s_add_u32 s30, s30, s23"); k("s_lshl_b32 s30, s30, 16")
    k("s_lshl_b32 s25, s21, 11"); k("s_add_u32 s30, s30, s25"); k(f"s_add_u32 s30, s30, {WS_K}")
    k("s_lshl_b32 s31, s21, 7"); k("s_lshl_b32 s25, s24, 6"); k("s_add_u32 s31, s31, s25")
    k("s_lshl_b32 s25, s23, 1"); k("s_add_u32 s31, s31, s25"); k("s_lshl_b32 s31, s31, 10"); k(f"s_add_u32 s31, s31, {WS_VT}")
    k("s_lshl_b32 s32, s24, 14"); k("s_lshl_b32 s25, s23, 11"); k("s_add_u32 s32, s32, s25")
    k("s_lshl_b32 s33, s22, 3"); k("s_lshl_b32 s25, s23, 1"); k("s_add_u32 s33, s33, s25"); k("s_lshl_b32 s33, s33, 16")
    k("s_lshl_b32 s25, s21, 11"); k("s_add_u32 s33, s33, s25")
    k(f"s_add_u32 s45, s33, {WS_O}")
    k(f"s_add_u32 s33, s33, {WS_Q}")
    k("s_add_u32 s34, s33, 65536")
    k(f"v_lshrrev_b32 v{vTmp}, 2, v1"); k(f"v_lshrrev_b32 v{T0}, 4, v1"); k(f"v_xor_b32 v{vTmp}, v{vTmp}, v{T0}")
    k(f"v_and_b32 v{vTmp}, 1, v{vTmp}"); k(f"v_cmp_eq_u32 vcc, 0, v{vTmp}")
    k(f"v_mov_b32 v{T0}, 0x3f803f80")
    k(f"v_cndmask_b32 v{ONE}, 0, v{T0}, vcc")
    for r in range(1, 4): k(f"v_mov_b32 v{ONE+r}, v{ONE}")
    for r in range(32): k(f"v_mov_b32 v{NA+r}, 0")
    k("s_mov_b32 s46, 0")
    k("s_lshl_b32 s25, s24, 14")
    k(f"v_add_u32 v{vTmp}, s25, v{vL16}")
    if PFW:
        k("s_lshl_b32 s25, s2, 3"); k("s_add_u32 s25, s25, s20")
        k("s_mul_i32 s26, s25, 3584")
        k(f"v_lshlrev_b32 v198, 6, v1"); k("v_add_u32 v198, s26, v198")
        srd(k, 88, pWO, D * D * 2)
        k(f"s_mov_b64 s[92:93], s[{pWG}:{pWG+1}]"); k(f"s_mov_b64 s[94:95], s[{pWU}:{pWU+1}]"); k(f"s_mov_b64 s[96:97], s[{pWD}:{pWD+1}]")
    WDR, vWDS = 208, 224
    if JIT & 2: k("s_mov_b32 s52, L_p2tail-L_cb")
    if WDT:
        srd(k, 60, pWD, DF * D * 2)
        k(f"v_lshrrev_b32 v{vWDS}, 3, v1"); k(f"s_mov_b32 s26, {DF*128}"); k(f"v_mul_lo_u32 v{vWDS}, v{vWDS}, s26")
        k(f"v_and_b32 v{vWDS+1}, 7, v1"); k(f"v_lshl_add_u32 v{vWDS}, v{vWDS+1}, 4, v{vWDS}")
        k("s_mul_i32 s98, s2, 14"); k("s_lshl_b32 s26, s20, 1"); k("s_add_u32 s98, s98, s26"); k("s_lshl_b32 s98, s98, 7")
        k(f"s_add_u32 s98, s98, {WS_WDT - 256}"); k(f"s_add_u32 s99, s98, {8*DF*128}")
        k("s_mul_i32 s100, s2, 28672"); k("s_lshl_b32 s26, s20, 12"); k("s_add_u32 s100, s100, s26"); k("s_sub_u32 s100, s100, 4096")
        k("s_cmp_eq_u32 s20, 0"); k(f"s_cselect_b32 s101, 99, {WDA}")
        if WDT == 3: k(f"s_cselect_b32 s101, 99, {hex((-WDA - 1) & 0xffffffff)}")
        if WDT >= 2:
            assert WDA % 2 == 1
            k(f"s_sub_u32 s98, s98, {128 * ((WDA + 1) // 2)}"); k(f"s_mov_b32 s99, {8*DF*128}"); k(f"s_sub_u32 s100, s100, {1024*WDA}")
    if SK5 and SKX:
        lf = k.lab("nofill")
        k("s_cmp_lt_u32 s20, 4"); k(f"s_cbranch_scc1 {lf}")
        coords35(k, 27, 29, 28, 25, 26)
        k("s_lshl_b32 s27, s27, 4"); k("s_add_u32 s29, s27, s29")
        k("s_lshl_b32 s27, s29, 14"); k("s_and_b32 s28, s20, 3"); k("s_lshl_b32 s28, s28, 12"); k("s_add_u32 s27, s27, s28"); k(f"s_add_u32 s27, s27, {WS_XI}")
        for r in range(4): k(f"v_mov_b32 v{KF[1]+r}, -1")
        for q in range(4): k(f"buffer_store_dwordx4 v[{KF[1]}:{KF[1]+3}], v{vL16}, s[12:15], s27 offen offset:{1024*q}{SC}")
        if SKF:
            k("s_getreg_b32 s26, hwreg(HW_REG_XCC_ID, 0, 4)")
            k("s_lshl_b32 s27, s29, 10"); k("s_lshr_b32 s28, s28, 4"); k("s_add_u32 s27, s27, s28"); k(f"s_add_u32 s27, s27, {WS_XID}")
            k(f"v_mov_b32 v{KF[1]+4}, s26"); k(f"v_lshlrev_b32 v{KF[1]+5}, 2, v1")
            k(f"buffer_store_dword v{KF[1]+4}, v{KF[1]+5}, s[12:15], s27 offen{SC}")
        if SK3:
            k("s_lshr_b32 s27, s21, 4"); k("s_lshl_b32 s29, s22, 1"); k("s_add_u32 s29, s29, s27"); k("s_lshl_b32 s29, s29, 4"); k("s_and_b32 s27, s21, 15"); k("s_add_u32 s29, s29, s27")
            k("s_and_b32 s28, s20, 3"); k("s_lshl_b32 s28, s28, 12"); k("s_lshl_b32 s27, s29, 14"); k("s_add_u32 s27, s27, s28"); k(f"s_add_u32 s27, s27, {WS_XI3}")
            for q in range(4): k(f"buffer_store_dwordx4 v[{KF[1]}:{KF[1]+3}], v{vL16}, s[12:15], s27 offen offset:{1024*q}{SC}")
            k("s_lshr_b32 s28, s28, 3"); k("s_lshl_b32 s27, s29, 11"); k("s_add_u32 s27, s27, s28"); k(f"s_add_u32 s27, s27, {WS_XM3}")
            k(f"v_lshlrev_b32 v{KF[1]+6}, 3, v1")
            k(f"buffer_store_dwordx2 v[{KF[1]}:{KF[1]+1}], v{KF[1]+6}, s[12:15], s27 offen{SC}")
        k(f"{lf}:")
    if QKS:
        k(f"v_mul_u32_u24 v{T0+1}, {QKS}, v1"); k("s_lshr_b32 s27, s21, 1"); k(f"v_sub_u32 v{T0+1}, s27, v{T0+1}")
        k(f"v_and_b32 v{T0+1}, 15, v{T0+1}"); k(f"v_lshlrev_b32 v{T0+1}, 7, v{T0+1}")
        k(f"s_mov_b32 s27, {WS_CNT + C2*128}")
        wait_multi(k, 27, 16, 3, vt=(T0, T0 + 1))
    else:
        k("s_lshr_b32 s27, s21, 1"); k("s_lshl_b32 s27, s27, 7"); k(f"s_add_u32 s27, s27, {WS_CNT + C2*128}")
        if DL1 and DLS & 2: k(f"s_mul_i32 s28, s47, {(C2F - C2)*128}"); k("s_add_u32 s27, s27, s28")
        if PROG:
            assert PD == 1 and not DL1 and not JIT
            k("s_mov_b32 s52, s27"); k("s_and_b32 s56, s22, 3")
            k("s_lshl_b32 s28, s56, 19"); k("s_add_u32 s53, s30, s28"); k("s_lshl_b32 s28, s56, 14"); k("s_add_u32 s54, s31, s28")
            k(f"s_add_u32 s55, s30, {8*4*65536}"); k("s_lshl_b32 s56, s56, 2"); k("s_lshl_b32 s56, 15, s56")
            if PROG == 2:
                k("s_mov_b32 s53, s30"); k("s_mov_b32 s54, s31"); k("s_or_b32 s56, s56, 15")
            if PROG == 3:
                k("s_and_b32 s57, s22, 2"); k("s_lshl_b32 s28, s57, 19"); k("s_add_u32 s53, s30, s28"); k("s_lshl_b32 s28, s57, 14"); k("s_add_u32 s54, s31, s28")
                k("s_lshl_b32 s57, s57, 2"); k("s_lshl_b32 s57, 15, s57"); k("s_or_b32 s56, s56, s57")
            k("s_and_b32 s57, s56, 0x4444")
            wait(k, 27, "s57", vt=(T0, T0 + 1), fld=56)
        else: wait(k, 27, 16, vt=(T0, T0 + 1), pr=KF[0])
    k.stamp("p2_wait")
    for kk in range(2):
        k(f"buffer_load_dwordx4 v[{QA+4*kk}:{QA+4*kk+3}], v{vL16}, s[12:15], s33 offen offset:{1024*kk}{S2}")
        k(f"buffer_load_dwordx4 v[{QB+4*kk}:{QB+4*kk+3}], v{vL16}, s[12:15], s34 offen offset:{1024*kk}{S2}")
    def dma_stage():
        k("s_add_u32 m0, s42, s32")
        k(f"buffer_load_dwordx4 v{vL16}, s[12:15], s40 offen{S2} lds")
        k(f"buffer_load_dwordx4 v{vL16}, s[12:15], s40 offen offset:1024{S2} lds")
        k("s_add_u32 m0, m0, 8192")
        k(f"buffer_load_dwordx4 v{vL16}, s[12:15], s41 offen{S2} lds")
        k(f"buffer_load_dwordx4 v{vL16}, s[12:15], s41 offen offset:1024{S2} lds")
        k(f"s_add_u32 s40, s40, {4*65536}")
        k("s_add_u32 s41, s41, 8192")
        if PROG: k("s_cmp_eq_u32 s40, s55"); k("s_cselect_b32 s40, s30, s40"); k("s_cselect_b32 s41, s31, s41")
    lmain = k.lab("p2main"); lloop = k.lab("p2loop"); lfin = k.lab("p2fin"); lfb = k.lab("p2fb"); lend = k.lab("p2end")
    k(f"{lmain}:")
    if PROG: k("s_mov_b32 s40, s53"); k("s_mov_b32 s41, s54")
    else: k("s_mov_b32 s40, s30"); k("s_mov_b32 s41, s31")
    k("s_mov_b32 s42, 0"); dma_stage()
    k(f"s_mov_b32 s42, {STG}"); dma_stage()
    k(f"s_mov_b32 s42, {2*STG}")
    k(f"v_mov_b32 v{vCur}, v{vTmp}")
    k(f"v_add_u32 v{vNxt}, {STG}, v{vTmp}")
    k(f"s_mov_b32 s43, {STG}")
    for r in range(16): k(f"v_mov_b32 v{OA+r}, 0"); k(f"v_mov_b32 v{OB+r}, 0")
    for r in range(4): k(f"v_mov_b32 v{LA+r}, 0"); k(f"v_mov_b32 v{LB+r}, 0")
    for r in range(8): k(f"v_mov_b32 v{PB+r}, 0"); k(f"v_mov_b32 v{VF[1]+r}, 0")
    def wo_ring():
        lnp = k.lab("p2nopf")
        k("s_cmp_lg_u32 s46, 0"); k(f"s_cbranch_scc1 {lnp}")
        for t in range(4):
            for d in w35_dma(vW3, 8, t):
                for l in d: k(l)
            k(W3ADV)
        k(f"{lnp}:")
    if WOPF == 0:
        lnp = k.lab("p2nopf"); lj = k.lab("p2pfj")
        k("s_cmp_lg_u32 s46, 0"); k(f"s_cbranch_scc1 {lnp}")
        for t in range(4):
            for d in w35_dma(vW3, 8, t):
                for l in d: k(l)
            k(W3ADV)
        k("s_waitcnt vmcnt(12)")
        k(f"s_branch {lj}")
        k(f"{lnp}:")
        k("s_waitcnt vmcnt(4)")
        k(f"{lj}:")
    else:
        k("s_waitcnt vmcnt(4)")
    k("s_barrier")
    k.stamp("p2_go")
    if WOPF == 1: wo_ring()
    if PROG: k(f"v_mov_b32 v{T0+1}, 0"); k(f"buffer_load_dword v{T0}, v{T0+1}, s[12:15], s52 offen sc1")
    for kk in range(2):
        k(f"ds_read_b128 v[{KF[0]+4*kk}:{KF[0]+4*kk+3}], v{vCur} offset:{1024*kk}")
    k("s_waitcnt lgkmcnt(0)")
    def qk(Sx, Qx, Nx, kf):
        return [f"v_mfma_f32_32x32x16_bf16 v[{Sx}:{Sx+15}], v[{kf}:{kf+3}], v[{Qx}:{Qx+3}], v[{Nx}:{Nx+15}]",
                f"v_mfma_f32_32x32x16_bf16 v[{Sx}:{Sx+15}], v[{kf+4}:{kf+7}], v[{Qx+4}:{Qx+7}], v[{Sx}:{Sx+15}]"]
    def pv(Ox, Px, Lx, vf):
        return [f"v_mfma_f32_32x32x16_bf16 v[{Ox}:{Ox+15}], v[{vf}:{vf+3}], v[{Px}:{Px+3}], v[{Ox}:{Ox+15}]",
                f"v_mfma_f32_32x32x16_bf16 v[{Ox}:{Ox+15}], v[{vf+4}:{vf+7}], v[{Px+4}:{Px+7}], v[{Ox}:{Ox+15}]",
                f"v_mfma_f32_16x16x32_bf16 v[{Lx}:{Lx+3}], v[{ONE}:{ONE+3}], v[{Px}:{Px+3}], v[{Lx}:{Lx+3}]",
                f"v_mfma_f32_16x16x32_bf16 v[{Lx}:{Lx+3}], v[{ONE}:{ONE+3}], v[{Px+4}:{Px+7}], v[{Lx}:{Lx+3}]"]
    def expv(Sx, Px):
        o = []
        for g in range(4):
            o += [f"v_exp_f32 v{Sx+4*g+r}, v{Sx+4*g+r}" for r in range(4)]
            o += [f"v_cvt_pk_bf16_f32 v{Px+2*g}, v{Sx+4*g}, v{Sx+4*g+1}", f"v_cvt_pk_bf16_f32 v{Px+2*g+1}, v{Sx+4*g+2}, v{Sx+4*g+3}"]
        return o
    def phase(mf, va, extra):
        for i in range(6):
            k(mf[i])
            for (p, l) in extra:
                if p == i: k(l)
            for l in va[4*i:4*i+4]: k(l)
    for l in qk(SA, QA, NA, KF[0]): k(l)
    k("s_mov_b32 s44, 0")
    k(f"{lloop}:")
    for i in range(4):
        cb = i & 1; nb = cb ^ 1
        ex = []
        if i == 3:
            lnd = k.lab("nodma")
            k(f"s_waitcnt vmcnt({(1 if PFW and PFI < 3 else 0) + (1 if JIT & 2 else 0)})")
            k("s_barrier")
            k("s_cmp_ge_u32 s44, 6")
            k(f"s_cbranch_scc1 {lnd}")
            if PROG:
                lok = k.lab("p2all"); lsp = k.lab("p2spin")
                k("s_cmp_lg_u32 s44, 0"); k(f"s_cbranch_scc1 {lok}")
                k("s_mov_b32 s28, 0")
                k(f"{lsp}:")
                k(f"v_readfirstlane_b32 s29, v{T0}")
                k("s_cmp_eq_u32 s29, 0x4444"); k(f"s_cbranch_scc1 {lok}")
                k("s_add_u32 s28, s28, 1")
                k(f"s_cmp_gt_u32 s28, {SPIN_LIMIT}"); k(f"s_cbranch_scc1 {lok}")
                k(f"buffer_load_dword v{T0}, v{T0+1}, s[12:15], s52 offen sc1")
                k("s_waitcnt vmcnt(0)")
                k(f"s_branch {lsp}")
                k(f"{lok}:")
            dma_stage()
            k(f"s_add_u32 s42, s42, {STG}")
            k(f"s_cmp_eq_u32 s42, {3*STG}")
            k("s_cselect_b32 s42, 0, s42")
            k(f"{lnd}:")
            if WDT == 1:
                lw = k.lab("nowd"); ls = k.lab("wdst")
                k("s_sub_u32 s27, s44, s101"); k("s_cmp_lt_u32 s27, 2"); k(f"s_cbranch_scc0 {lw}")
                k("s_cmp_eq_u32 s27, 1"); k(f"s_cbranch_scc1 {ls}")
                for q in range(4):
                    k(f"buffer_load_dwordx4 v[{WDR+4*q}:{WDR+4*q+3}], v{vL16}, s[60:63], s100 offen offset:{1024*q}")
                k(f"s_branch {lw}")
                k(f"{ls}:")
                for q in range(4):
                    k(f"buffer_store_dwordx4 v[{WDR+4*q}:{WDR+4*q+3}], v{vWDS}, s[12:15], s{98 + (q & 1)} offen offset:{128*(q>>1)}{SC}")
                k(f"{lw}:")
            if WDT == 2:
                k("s_sub_u32 s27, s44, s101"); k("s_sub_u32 s27, s27, 1")
                k("s_cmp_lt_u32 s27, 4"); k("s_cselect_b64 exec, -1, 0")
                k(f"buffer_store_dwordx4 v[{WDR}:{WDR+3}], v{vWDS}, s[12:15], s98 offen{SC}")
                k("s_add_u32 s27, s27, 1")
                k("s_cmp_lt_u32 s27, 4"); k("s_cselect_b64 exec, -1, 0")
                k(f"buffer_load_dwordx4 v[{WDR}:{WDR+3}], v{vL16}, s[60:63], s100 offen")
                k("s_mov_b64 exec, -1")
                k("s_add_u32 s98, s98, s99"); k("s_sub_u32 s99, 128, s99"); k("s_add_u32 s100, s100, 1024")
        if i == PFI and PFW:
            ex += [(4, "buffer_load_dword v199, v198, s[88:91], 0 offen"),
                   (5, "s_mov_b64 s[88:89], s[92:93]"), (5, "s_mov_b64 s[92:93], s[94:95]"), (5, "s_mov_b64 s[94:95], s[96:97]"),
                   (5, f"s_cmp_lt_u32 s44, {2 if WDT else 3}"), (5, f"s_cselect_b32 s90, {hex(D*DF*2)}, 0")]
        if i == 0 and JIT & 2:
            ex += [(5, "buffer_load_dword v231, v252, s[80:83], s52 offen")]
        for kk in range(2):
            if i < 3: ex.append((kk, f"ds_read_b128 v[{KF[nb]+4*kk}:{KF[nb]+4*kk+3}], v{vCur} offset:{(i+1)*2048 + 1024*kk}"))
            else:     ex.append((kk, f"ds_read_b128 v[{KF[nb]+4*kk}:{KF[nb]+4*kk+3}], v{vNxt} offset:{1024*kk}"))
        for mm in range(2):
            ex.append((2 + mm, f"ds_read_b128 v[{VF[cb]+4*mm}:{VF[cb]+4*mm+3}], v{vCur} offset:{8192 + i*2048 + 1024*mm}"))
        phase(qk(SB, QB, NB, KF[cb]) + pv(OB, PB, LB, VF[nb]), expv(SA, PA), ex)
        k("s_waitcnt lgkmcnt(0)")
        ex = []
        if i == 3:
            ex = [(0, f"v_mov_b32 v{vCur}, v{vNxt}"), (1, f"s_add_u32 s43, s43, {STG}"), (1, f"s_cmp_eq_u32 s43, {3*STG}"),
                  (2, "s_cselect_b32 s43, 0, s43"), (3, f"v_add_u32 v{vNxt}, s43, v{vTmp}")]
            if WDT == 3:
                p = WDP
                ex += [(p, x) for x in ("s_cmp_lt_u32 s101, 4", "s_cselect_b64 exec, -1, 0",
                       f"buffer_store_dwordx4 v[{WDR}:{WDR+3}], v{vWDS}, s[12:15], s98 offen{SC}",
                       "s_add_u32 s101, s101, 1", "s_cmp_lt_u32 s101, 4", "s_cselect_b64 exec, -1, 0",
                       f"buffer_load_dwordx4 v[{WDR}:{WDR+3}], v{vL16}, s[60:63], s100 offen", "s_mov_b64 exec, -1")]
                ex += [(5, x) for x in ("s_add_u32 s98, s98, s99", "s_sub_u32 s99, 128, s99", "s_add_u32 s100, s100, 1024")]
        phase(qk(SA, QA, NA, KF[nb]) + pv(OA, PA, LA, VF[cb]), expv(SB, PB), ex)
    k("s_add_u32 s44, s44, 1")
    k("s_cmp_lt_u32 s44, 8")
    k(f"s_cbranch_scc1 {lloop}")
    if JIT & 2: k("L_p2tail:")
    for l in pv(OB, PB, LB, VF[1]): k(l)
    k.stamp("p2_loop")
    if WOPF == 2: wo_ring()
    k("s_nop 7"); k("s_nop 3")
    lns = k.lab("nosw")
    k("s_cmp_eq_u32 s24, 0")
    k(f"s_cbranch_scc1 {lns}")
    for r in range(16): k(f"v_swap_b32 v{OA+r}, v{OB+r}")
    k(f"v_swap_b32 v{LA}, v{LB}")
    k(f"{lns}:")
    k("s_barrier")
    k("s_mul_i32 s25, s20, 5120")
    k(f"v_add_u32 v{T0}, s25, v{vL16}")
    k(f"v_lshlrev_b32 v{T0+1}, 2, v1"); k(f"v_add_u32 v{T0+1}, s25, v{T0+1}")
    for i in range(4): k(f"ds_write_b128 v{T0}, v[{OB+4*i}:{OB+4*i+3}] offset:{1024*i}")
    k(f"ds_write_b32 v{T0+1}, v{LB} offset:4096")
    k("s_xor_b32 s26, s20, 4"); k("s_mul_i32 s25, s26, 5120")
    k(f"v_add_u32 v{T0}, s25, v{vL16}")
    k(f"v_lshlrev_b32 v{T0+1}, 2, v1"); k(f"v_add_u32 v{T0+1}, s25, v{T0+1}")
    k("s_waitcnt lgkmcnt(0)")
    k("s_barrier")
    for i in range(4): k(f"ds_read_b128 v[{OB+4*i}:{OB+4*i+3}], v{T0} offset:{1024*i}")
    k(f"ds_read_b32 v{LB}, v{T0+1} offset:4096")
    k("s_waitcnt lgkmcnt(0)")
    k(f"v_add_f32 v{LA}, v{LA}, v{LB}")
    for r in range(16): k(f"v_add_f32 v{OA+r}, v{OA+r}, v{OB+r}")
    k("s_cmp_lg_u32 s46, 0")
    k(f"s_cbranch_scc1 {lfin}")
    k(f"v_mov_b32 v{T0+2}, v{LA}")
    for r in range(16): k(f"v_fma_f32 v{T0+2}, v{OA+r}, 0, v{T0+2}")
    k(f"v_mov_b32 v{T0+3}, 0x71800000")
    k(f"v_cmp_le_f32 vcc, 1.0, v{T0+2}")
    k(f"v_cmp_le_f32 s[48:49], v{T0+2}, v{T0+3}")
    k("s_and_b64 vcc, vcc, s[48:49]")
    k("s_cmp_eq_u64 vcc, -1")
    k("s_cselect_b32 s47, 0, 1")
    k(f"v_mov_b32 v{T0+2}, s47")
    k(f"s_lshl_b32 s25, s20, 2"); k(f"v_mov_b32 v{T0+3}, s25")
    k(f"ds_write_b32 v{T0+3}, v{T0+2} offset:45056")
    k("s_waitcnt lgkmcnt(0)")
    k("s_barrier")
    k(f"v_mov_b32 v{T0+3}, 0")
    k(f"ds_read_b128 v[{T0+4}:{T0+7}], v{T0+3} offset:45056")
    k(f"ds_read_b128 v[{T0+8}:{T0+11}], v{T0+3} offset:45072")
    k("s_waitcnt lgkmcnt(0)")
    k(f"v_or3_b32 v{T0+4}, v{T0+4}, v{T0+5}, v{T0+6}")
    k(f"v_or3_b32 v{T0+8}, v{T0+8}, v{T0+9}, v{T0+10}")
    k(f"v_or3_b32 v{T0+4}, v{T0+4}, v{T0+7}, v{T0+11}")
    k(f"v_or_b32 v{T0+4}, v{T0+4}, v{T0+8}")
    k(f"v_readfirstlane_b32 s47, v{T0+4}")
    k("s_cmp_lg_u32 s47, 0")
    k(f"s_cbranch_scc1 {lfb}")
    k(f"{lfin}:")
    k(f"v_rcp_f32 v{LA}, v{LA}")
    for g in range(4):
        for r in range(4): k(f"v_mul_f32 v{OA+4*g+r}, v{OA+4*g+r}, v{LA}")
        k(f"v_cvt_pk_bf16_f32 v{SA+2*g}, v{OA+4*g}, v{OA+4*g+1}")
        k(f"v_cvt_pk_bf16_f32 v{SA+2*g+1}, v{OA+4*g+2}, v{OA+4*g+3}")
    k("s_lshl_b32 s25, s24, 16"); k("s_add_u32 s45, s45, s25")
    for p in range(2):
        k(f"v_permlane32_swap_b32 v{SA+4*p}, v{SA+4*p+2}")
        k(f"v_permlane32_swap_b32 v{SA+4*p+1}, v{SA+4*p+3}")
        k(f"buffer_store_dwordx4 v[{SA+4*p}:{SA+4*p+3}], v{vL16}, s[12:15], s45 offen offset:{1024*p}{SC}")
    k(f"s_branch {lend}")
    k(f"{lfb}:")
    k("s_mov_b32 s46, 1")
    if WDT: k("s_mov_b32 s101, 99")
    k("s_barrier")
    MA, MB = T0 + 2, T0 + 3
    k(f"v_mov_b32 v{MA}, 0xff800000"); k(f"v_mov_b32 v{MB}, 0xff800000")
    k("s_lshl_b32 s40, s24, 21"); k("s_lshl_b32 s25, s21, 11"); k("s_add_u32 s40, s40, s25"); k(f"s_add_u32 s40, s40, {WS_K}")
    k("s_mov_b32 s44, 0")
    lfl = k.lab("p2fbl")
    k(f"{lfl}:")
    for kk in range(2):
        k(f"buffer_load_dwordx4 v[{KF[0]+4*kk}:{KF[0]+4*kk+3}], v{vL16}, s[12:15], s40 offen offset:{1024*kk}{SC}")
    k("s_waitcnt vmcnt(0)")
    for (Sx, Qx) in ((SA, QA), (SB, QB)):
        k(f"v_mfma_f32_32x32x16_bf16 v[{Sx}:{Sx+15}], v[{KF[0]}:{KF[0]+3}], v[{Qx}:{Qx+3}], 0")
        k(f"v_mfma_f32_32x32x16_bf16 v[{Sx}:{Sx+15}], v[{KF[0]+4}:{KF[0]+7}], v[{Qx+4}:{Qx+7}], v[{Sx}:{Sx+15}]")
    for (Sx, Mx) in ((SA, MA), (SB, MB)):
        for r in range(0, 16, 2): k(f"v_max3_f32 v{Mx}, v{Mx}, v{Sx+r}, v{Sx+r+1}")
    k("s_add_u32 s40, s40, 65536")
    k("s_add_u32 s44, s44, 1")
    k("s_cmp_lt_u32 s44, 32")
    k(f"s_cbranch_scc1 {lfl}")
    for Mx in (MA, MB):
        k(f"v_mov_b32 v{T0+4}, v{Mx}")
        k(f"v_permlane32_swap_b32 v{Mx}, v{T0+4}")
        k(f"v_max_f32 v{Mx}, v{Mx}, v{T0+4}")
    k("s_lshl_b32 s25, s20, 9")
    k(f"v_lshlrev_b32 v{T0+4}, 3, v1"); k(f"v_add_u32 v{T0+5}, s25, v{T0+4}")
    k(f"ds_write_b64 v{T0+5}, v[{MA}:{MB}]")
    k("s_xor_b32 s26, s20, 4"); k("s_lshl_b32 s25, s26, 9")
    k(f"v_add_u32 v{T0+5}, s25, v{T0+4}")
    k("s_waitcnt lgkmcnt(0)")
    k("s_barrier")
    k(f"ds_read_b64 v[{T0+6}:{T0+7}], v{T0+5}")
    k("s_waitcnt lgkmcnt(0)")
    k(f"v_max_f32 v{MA}, v{MA}, v{T0+6}")
    k(f"v_max_f32 v{MB}, v{MB}, v{T0+7}")
    for r in range(16):
        k(f"v_sub_f32 v{NA+r}, 0, v{MA}")
        k(f"v_sub_f32 v{NB+r}, 0, v{MB}")
    k("s_barrier")
    k(f"s_branch {lmain}")
    k(f"{lend}:")
    k.stamp("p2_epi")
    k("s_lshl_b32 s27, s22, 7"); k(f"s_add_u32 s27, s27, {WS_CNT + C3*128}")
    signal(k, 27, vt=(T0, T0 + 1))
    k.stamp("p2_sig")

SLOT4 = 30720; UOFF = 7168; BOFF4 = 14336
RMOFF = 75776; XMOFF = 83968; HKOFF = 147456
vPW = 202
vW5 = [240, 241]
NPF5 = int(os.environ.get("NPF5", "3"))
NS5 = int(os.environ.get("NS5", "5")); R3 = int(os.environ.get("R3", "4")); R5 = int(os.environ.get("R5", "6"))
def w4_piece_lane(k, vdst, vidx, t):
    k(f"v_mul_u32_u24 v{t}, 4682, v{vidx}"); k(f"v_lshrrev_b32 v{t}, 16, v{t}")
    k(f"v_mul_u32_u24 v{t+1}, 14, v{t}"); k(f"v_sub_u32 v{t+1}, v{vidx}, v{t+1}")
    k(f"v_and_b32 v{t+2}, 0x33, v{t}")
    k(f"v_bfe_u32 v{vidx}, v{t}, 2, 1"); k(f"v_lshl_add_u32 v{t+2}, v{vidx}, 3, v{t+2}")
    k(f"v_bfe_u32 v{vidx}, v{t}, 3, 1"); k(f"v_lshl_add_u32 v{t+2}, v{vidx}, 2, v{t+2}")
    k(f"v_mul_u32_u24 v{t+2}, 7168, v{t+2}")
    k(f"v_lshl_add_u32 v{vdst}, v{t+1}, 4, v{t+2}")
def coords4(k, stb, scb, st):
    k("s_and_b32 s21, s2, 7"); k("s_lshr_b32 s22, s2, 3")
    k(f"s_and_b32 s{stb}, s21, 1"); k(f"s_lshl_b32 s{stb}, s{stb}, 2"); k(f"s_and_b32 s{st}, s22, 3"); k(f"s_add_u32 s{stb}, s{stb}, s{st}")
    k(f"s_lshr_b32 s{scb}, s21, 1"); k(f"s_lshl_b32 s{scb}, s{scb}, 3"); k(f"s_lshr_b32 s{st}, s22, 2"); k(f"s_add_u32 s{scb}, s{scb}, s{st}")
def pf4_setup(k, t):
    coords4(k, 27, 29, 28)
    k("s_mul_i32 s40, s29, 224")
    k("s_min_u32 s27, s20, 6"); k("s_lshl_b32 s42, s27, 10"); k("s_lshl_b32 s27, s27, 6")
    k(f"v_add_u32 v{t+3}, s27, v1")
    w4_piece_lane(k, vPW, t + 3, t)
    srd(k, 52, pWG, D * DF * 2); srd(k, 56, pWU, D * DF * 2)
def pf4(tile):
    o = []
    for m in range(2):
        g = []
        if m == 0: g.append(f"s_add_u32 s41, s40, {tile*32*7168}")
        g += [f"s_add_u32 m0, s42, {tile*SLOT4 + m*UOFF}", f"buffer_load_dwordx4 v{vPW}, s[{52+4*m}:{55+4*m}], s41 offen lds"]
        o.append(g)
    return o

JS3 = int(os.environ.get("JS3", "2")); JT4 = int(os.environ.get("JT4", "28"))
def phase35(k, kind):
    wo = kind == "wo"
    KD = D if wo else DF
    NT = KD // 128
    NS = 4 if wo else NS5
    R = R3 if wo else R5
    WSB = WS_O if wo else WS_HM
    T32B = KD * 64
    base = W3BASE if wo else 0
    vW = vW3 if wo else vW5
    WADV = W3ADV if wo else W5ADV
    SW = 8 if wo else SW5
    vA = [2, 3, 4, 5]; vBj = [6, 7]; vR = 10; vO = 11; vT = 12; vRM = 8; vHK = 9
    RES = 16; A = [24, 40]; ACC = 56; ACM = 88; RMF = [96, 100]; BR = 104
    MX = 15
    acc = lambda i, j: ACC + (j * 4 + i) * 4
    pre = "p3" if wo else "p5"
    coords35(k, 23, 24, 25)
    k("s_and_b32 s25, s20, 3")
    k("s_lshr_b32 s26, s20, 2")
    k("s_lshl_b32 s31, s23, 2"); k("s_add_u32 s31, s31, s25"); k(f"s_mul_i32 s31, s31, {T32B}")
    k("s_lshl_b32 s28, s26, 12"); k("s_add_u32 s31, s31, s28"); k(f"s_add_u32 s31, s31, {WSB}")
    k(f"v_lshrrev_b32 v{vT}, 4, v1"); k(f"v_and_b32 v{vT+1}, 15, v1")
    k(f"v_lshlrev_b32 v{vT+2}, 4, v{vT+1}"); k(f"v_lshl_add_u32 v{vT+2}, v{vT}, 9, v{vT+2}")
    k("s_lshl_b32 s28, s26, 8")
    k(f"v_add_u32 v{vBj[0]}, s28, v{vT+2}")
    k(f"v_xor_b32 v{vBj[1]}, 256, v{vBj[0]}")
    k(f"v_and_b32 v{vT+2}, 1, v{vT}"); k(f"v_lshlrev_b32 v{vT+2}, 1, v{vT+2}"); k(f"v_lshrrev_b32 v{vT+3}, 1, v{vT}")
    k(f"v_add_u32 v{vT+2}, v{vT+2}, v{vT+3}")
    rm = vR if wo else vO
    k(f"v_lshlrev_b32 v{rm}, 11, v{vT+1}"); k(f"v_lshl_add_u32 v{rm}, v{vT+2}, 4, v{rm}")
    k("s_lshl_b32 s33, s23, 2"); k("s_add_u32 s33, s33, s25"); k("s_lshl_b32 s33, s33, 1"); k("s_add_u32 s33, s33, s26")
    k("s_lshl_b32 s35, s33, 4")
    k("s_lshl_b32 s33, s33, 15"); k("s_lshl_b32 s28, s24, 7"); k("s_add_u32 s33, s33, s28")
    if wo:
        k(f"v_lshlrev_b32 v{vO}, 9, v{vT+2}"); k(f"v_lshl_add_u32 v{vO}, v{vT+1}, 4, v{vO}")
        k("s_lshl_b32 s34, s23, 2"); k("s_add_u32 s34, s34, s25"); k("s_lshl_b32 s34, s34, 16")
        k("s_lshl_b32 s28, s24, 12"); k("s_add_u32 s34, s34, s28"); k("s_lshl_b32 s28, s26, 8"); k("s_add_u32 s34, s34, s28")
        k(f"s_add_u32 s34, s34, {WS_H}")
        k("s_lshl_b32 s28, s20, 10"); k(f"s_add_u32 s28, s28, {RMOFF}")
        k(f"v_lshl_add_u32 v{vRM}, v{vT}, 4, s28")
    k("s_lshl_b32 s28, s20, 11"); k(f"s_add_u32 s28, s28, {HKOFF}")
    k(f"v_lshl_add_u32 v{vHK}, v1, 4, s28")
    k(f"v_bfe_u32 v{vT+1}, v1, 2, 2")
    k(f"v_lshrrev_b32 v{vT+2}, 1, v{vT}"); k(f"v_and_b32 v{vT+3}, 1, v{vT}")
    k(f"v_lshlrev_b32 v{vT+2}, 4, v{vT+2}"); k(f"v_lshl_add_u32 v{vT+2}, v{vT+3}, 2, v{vT+2}")
    k(f"v_add_u32 v{vT+2}, v{vT+2}, v{vT+1}"); k(f"v_lshlrev_b32 v{vT+2}, 7, v{vT+2}")
    k(f"v_lshrrev_b32 v{vT+1}, 1, v{vT+1}"); k(f"v_lshl_add_u32 v{vT+1}, v{vT+3}, 1, v{vT+1}")
    k(f"v_and_b32 v{vT+3}, 3, v1"); k(f"v_lshl_add_u32 v{vT+2}, v{vT+3}, 3, v{vT+2}")
    k("s_lshl_b32 s28, s26, 13")
    if base: k(f"s_add_u32 s28, s28, {base}")
    k(f"v_add_u32 v{vT+2}, s28, v{vT+2}")
    for i in range(4):
        k(f"v_xor_b32 v{vT+3}, {i}, v{vT+1}")
        k(f"v_lshl_add_u32 v{vA[i]}, v{vT+3}, 5, v{vT+2}")
    hiA = NS * 16384 > 65536
    vA2 = [204, 205, 206, 207]
    if hiA:
        for i in range(4): k(f"v_add_u32 v{vA2[i]}, 65536, v{vA[i]}")
    srd(k, 16, pX if wo else pOUT, MB4)
    if not wo and OT == 1:
        k(f"buffer_load_dword v{RES}, v{vO}, s[16:19], s33 offen")
    if wo and COA & 4:
        for p in range(2): k(f"buffer_load_dwordx4 v[{RES+4*p}:{RES+4*p+3}], v{vR}, s[16:19], s33 offen offset:{64*p}")
    if not wo and COA & 8:
        k(f"v_and_b32 v{vT}, 15, v1"); k(f"v_lshrrev_b32 v{vT+1}, 4, v1")
        k(f"v_and_b32 v{vT+2}, 1, v{vT+1}"); k(f"v_lshlrev_b32 v{vT+2}, 1, v{vT+2}"); k(f"v_lshrrev_b32 v{vT+1}, 1, v{vT+1}"); k(f"v_add_u32 v{vT+1}, v{vT+1}, v{vT+2}")
        k(f"v_xor_b32 v{vT+1}, v{vT+1}, v{vT}"); k(f"v_and_b32 v{vT+1}, 7, v{vT+1}"); k(f"v_lshlrev_b32 v{vT+1}, 4, v{vT+1}")
        k("s_lshl_b32 s28, s20, 12"); k("s_xor_b32 s28, s28, 16384"); k("s_add_u32 s28, s28, 98304")
        k(f"v_lshl_add_u32 v{vT+1}, v{vT}, 7, v{vT+1}"); k(f"v_add_u32 v88, s28, v{vT+1}"); k("v_xor_b32 v89, 64, v88")
        k(f"v_lshrrev_b32 v{vT}, 3, v1"); k(f"v_and_b32 v{vT+1}, 7, v1")
        k(f"v_lshlrev_b32 v{vO}, 11, v{vT}"); k(f"v_lshl_add_u32 v{vO}, v{vT+1}, 4, v{vO}")
        k(f"v_xor_b32 v{vT+1}, v{vT+1}, v{vT}"); k(f"v_lshlrev_b32 v{vT+1}, 4, v{vT+1}"); k(f"v_lshl_add_u32 v{vT+1}, v{vT}, 7, v{vT+1}")
        k(f"v_add_u32 v90, s28, v{vT+1}")
        k("s_add_u32 s34, s33, 16384")
    for r in range(ACC, ACC + (40 if wo else 32)): k(f"v_mov_b32 v{r}, 0")
    if wo:
        pf4_setup(k, vT)
        k(f"v_lshrrev_b32 v{vT}, 3, v1"); k(f"v_and_b32 v{vT+1}, 7, v1"); k(f"v_lshlrev_b32 v{vT+1}, 4, v{vT+1}")
        k(f"v_lshl_add_u32 v{vT+1}, v{vT}, 8, v{vT+1}"); k("s_lshl_b32 s28, s26, 7"); k(f"v_add_u32 v{vT+1}, s28, v{vT+1}")
        k(f"v_and_b32 v{vT+2}, 15, v1"); k(f"v_lshlrev_b32 v{vT+2}, 2, v{vT+2}")
    vm = VM()
    if not wo:
        for t in range(NPF5, NS):
            for d in w35_dma(vW, SW, t):
                for l in d: k(l)
            k(WADV); vm.issue(("W", t), 2)
    k("s_lshr_b32 s27, s23, 1"); k("s_lshl_b32 s27, s27, 7"); k(f"s_add_u32 s27, s27, {WS_CNT + (C3 if wo else C5)*128}")
    wait(k, 27, 32, vt=(A[0], A[0] + 1) if wo and COA & 4 else (RES, RES + 1), pr=A[1])
    k.stamp(pre + "_wait")
    NSTEP = 2 * NT
    def bld(s):
        b = BR + (s % R) * 8
        return [f"buffer_load_dwordx4 v[{b+4*j}:{b+4*j+3}], v{vBj[j]}, s[12:15], s31 offen{SC}" for j in range(2)]
    def badv(s): return f"s_add_u32 s31, s31, {2048 if s % 2 == 0 else 6144}"
    if wo:
        k("s_lshl_b32 s28, s20, 10"); k(f"s_add_u32 m0, s28, {RMOFF}")
        k(f"s_mov_b32 s28, {WS_RM}")
        k(f"buffer_load_dwordx4 v{vT+1}, s[12:15], s28 offen{SC} lds"); vm.issue("RM")
    for s in range(R):
        for l in bld(s): k(l); vm.issue(("B", s))
        k(badv(s))
    if wo:
        for p in range(2 if not COA & 4 else 0):
            k(f"buffer_load_dwordx4 v[{RES+4*p}:{RES+4*p+3}], v{vR}, s[16:19], s33 offen offset:{64*p}"); vm.issue("res")
        k("s_lshl_b32 s28, s35, 2"); k(f"s_add_u32 s28, s28, {WS_MX}")
        k(f"buffer_load_dword v{MX}, v{vT+2}, s[12:15], s28 offen{SC}"); vm.issue("res")
    def areads(s, buf):
        t = s // 2; sl = t % NS
        va = vA if sl < 4 else vA2
        o = [f"ds_read_b64_tr_b16 v[{A[buf]+4*i+2*tt}:{A[buf]+4*i+2*tt+1}], v{va[i]} offset:{(sl & 3)*16384 + (s&1)*4096 + tt*1024}"
             for i in range(4) for tt in range(2)]
        return o
    def rmread(s, buf): return f"ds_read_b128 v[{RMF[buf]}:{RMF[buf]+3}], v{vRM} offset:{(s >> 1)*128 + (s & 1)*64}"
    for l in areads(0, 0): k(l)
    if wo:
        k(f"s_waitcnt vmcnt({vm.cnt({'RM'})})")
        k(rmread(0, 0))
    k.stamp(pre + "_go")
    texts = []
    for per in range((NT + NS - 1) // NS):
        o = []
        for s in range(per * 2 * NS, min((per + 1) * 2 * NS, NSTEP)):
            t = s // 2; cur = s & 1; nxt = cur ^ 1
            need = {("B", s)}
            if s & 1 and t + 1 < NT: need.add(("W", t + 1))
            n = vm.cnt(need)
            o.append(f"s_waitcnt vmcnt({min(n, 63)}) lgkmcnt(0)")
            rd = []; dm = []
            if s & 1:
                if t + 1 < NT:
                    o.append("s_barrier"); rd = areads(s + 1, nxt)
                if t + NS < NT: dm = w35_dma(vW, SW, t % NS)
            else:
                rd = areads(s + 1, nxt)
            if wo and s + 1 < NSTEP: rd = rd + [rmread(s + 1, nxt)]
            mf = []
            b = BR + (s % R) * 8
            for i in range(4):
                for j in range(2):
                    a = acc(i, j)
                    mf.append(f"v_mfma_f32_16x16x32_bf16 v[{a}:{a+3}], v[{A[cur]+4*i}:{A[cur]+4*i+3}], v[{b+4*j}:{b+4*j+3}], v[{a}:{a+3}]")
            if wo:
                for j in range(2):
                    a = ACM + 4 * j
                    mf.append(f"v_mfma_f32_16x16x32_bf16 v[{a}:{a+3}], v[{RMF[cur]}:{RMF[cur]+3}], v[{b+4*j}:{b+4*j+3}], v[{a}:{a+3}]")
            gaps = [[] for _ in mf]
            for q, r in enumerate(rd): gaps[min(q, len(mf) - 1)].append(r)
            if dm:
                gaps[0].append(dm[0][0]); gaps[1].append(dm[0][1]); gaps[2].append(dm[1][0]); gaps[3].append(dm[1][1]); gaps[4].append(WADV)
                vm.issue(("W", t + NS), 2)
            if wo and s == JS3 and JIT & 4:
                assert s % 2 == 0
                gaps[1] += jit("L_p3tail", 29, 203); vm.issue("CP")
            if s + R < NSTEP:
                gaps[len(mf) - 1] += bld(s + R) + [badv(s + R)]
                vm.issue(("B", s + R), 2)
            if wo and s == NSTEP - R:
                q = 0
                for tl in range(3):
                    for g in pf4(tl):
                        gaps[min(q, len(mf) - 1)] += g; q += 1
                        vm.issue("PF")
            for g, mm in enumerate(mf):
                o.append(mm); o += gaps[g]
        texts.append(o)
    periods(k, pre + "loop", texts, 36)
    if wo and JIT & 4: k("L_p3tail:")
    k.stamp(pre + "_loop")
    if wo:
        k("s_and_b32 s27, s20, 3"); k("s_lshl_b32 s27, s27, 12"); k(f"s_mul_i32 s28, s26, {SLOT4}"); k("s_add_u32 s27, s27, s28"); k(f"s_add_u32 s27, s27, {BOFF4}")
        k(f"v_lshlrev_b32 v{vT}, 4, v1"); k(f"v_add_u32 v{vT+1}, s27, v{vT}")
        k("s_and_b32 s27, s20, 3"); k("s_lshl_b32 s27, s27, 12"); k("s_xor_b32 s28, s26, 1"); k(f"s_mul_i32 s28, s28, {SLOT4}"); k("s_add_u32 s27, s27, s28"); k(f"s_add_u32 s27, s27, {BOFF4}")
        k(f"v_add_u32 v{vT+2}, s27, v{vT}")
        k("s_lshl_b32 s27, s20, 8"); k(f"s_add_u32 s27, s27, {XMOFF}")
        k(f"v_lshl_add_u32 v{vRM}, v1, 2, s27")
        k(f"ds_write_b32 v{vRM}, v{ACM+4}")
        k(f"v_xor_b32 v{vRM}, 1024, v{vRM}")
    else:
        XCH = 98304
        k("s_lshl_b32 s27, s20, 12"); k(f"s_add_u32 s27, s27, {XCH}")
        k(f"v_lshlrev_b32 v{vT}, 4, v1"); k(f"v_add_u32 v{vT+1}, s27, v{vT}")
        k("s_lshl_b32 s27, s20, 12"); k("s_xor_b32 s27, s27, 16384"); k(f"s_add_u32 s27, s27, {XCH}"); k(f"v_add_u32 v{vT+2}, s27, v{vT}")
    for i in range(4): k(f"ds_write_b128 v{vT+1}, v[{acc(i,1)}:{acc(i,1)+3}] offset:{1024*i}")
    k("s_waitcnt lgkmcnt(0)")
    k("s_barrier")
    for i in range(4): k(f"ds_read_b128 v[{acc(i,1)}:{acc(i,1)+3}], v{vT+2} offset:{1024*i}")
    if wo:
        k(f"ds_read_b32 v{ACM+4}, v{vRM}")
        for g in pf4(3):
            for l in g: k(l)
    else:
        for p in range(2): k(f"ds_read_b128 v[{RES+4*p}:{RES+4*p+3}], v{vHK} offset:{1024*p}")
    k("s_waitcnt lgkmcnt(0)")
    def padd(d, a, b, bc=False):
        if wo:
            k(f"v_add_f32 v{d}, v{a}, v{b}"); k(f"v_add_f32 v{d+1}, v{a+1}, v{b if bc else b+1}")
        else: k(f"v_pk_add_f32 v[{d}:{d+1}], v[{a}:{a+1}], v[{b}:{b+1}]")
    for i in range(4):
        for r in range(0, 4, 2): padd(acc(i,0)+r, acc(i,0)+r, acc(i,1)+r)
    for p in range(2):
        for r in range(4): k(f"v_permlane16_swap_b32 v{acc(2*p,0)+r}, v{acc(2*p+1,0)+r}")
    U = A[0]
    k(f"v_mov_b32 v{vT+3 if not wo else vT}, 0xffff0000")
    vMask = vT + 3 if not wo else vT
    if wo:
        k("s_waitcnt vmcnt(8)")
        k(f"v_add_f32 v{ACM}, v{ACM}, v{ACM+4}")
        k(f"v_add_f32 v{ACM}, v{ACM}, v{MX}")
        k(f"v_sub_f32 v{ACM}, 0, v{ACM}")
    for p in range(2):
        for q in range(4):
            a = acc(2 * p, 0) + 2 * q
            k(f"v_lshlrev_b32 v{U+2*q}, 16, v{RES+4*p+q}")
            k(f"v_and_b32 v{U+2*q+1}, v{vMask}, v{RES+4*p+q}")
        for q in range(4):
            a = acc(2 * p, 0) + 2 * q
            padd(a, a, U+2*q)
        for q in range(4):
            a = acc(2 * p, 0) + 2 * q
            k(f"v_cvt_pk_bf16_f32 v{RES+4*p+q}, v{a}, v{a+1}")
        if wo:
            k(f"ds_write_b128 v{vHK}, v[{RES+4*p}:{RES+4*p+3}] offset:{1024*p}")
            HC = U + 8 + 4 * p
            for q in range(4):
                a = acc(2 * p, 0) + 2 * q
                padd(a, a, ACM, True)
            for q in range(4):
                a = acc(2 * p, 0) + 2 * q
                k(f"v_cvt_pk_bf16_f32 v{HC+q}, v{a}, v{a+1}")
            k(f"buffer_store_dwordx4 v[{HC}:{HC+3}], v{vO}, s[12:15], s34 offen offset:{2048*p}{SC}")
        elif COA & 8:
            k(f"ds_write_b128 v{88+p}, v[{RES+4*p}:{RES+4*p+3}]")
        else:
            k(f"buffer_store_dwordx4 v[{RES+4*p}:{RES+4*p+3}], v{vO}, s[16:19], s33 offen offset:{64*p}{OUTSC}")
    if not wo and COA & 8:
        for q in range(2): k(f"ds_read_b128 v[{RES+4*q}:{RES+4*q+3}], v90 offset:{1024*q}")
        for q in range(2):
            k(f"s_waitcnt lgkmcnt({1-q})")
            k(f"buffer_store_dwordx4 v[{RES+4*q}:{RES+4*q+3}], v{vO}, s[16:19], s{33+q} offen{OUTSC}")
    if wo:
        s1 = U
        a0 = acc(0, 0)
        for r in range(4): k(f"v_mul_f32 v{s1+r}, v{a0+r}, v{a0+r}")
        for r in range(4, 16): k(f"v_fma_f32 v{s1+(r&3)}, v{a0+r}, v{a0+r}, v{s1+(r&3)}")
        k(f"v_add_f32 v{s1}, v{s1}, v{s1+1}"); k(f"v_add_f32 v{s1+2}, v{s1+2}, v{s1+3}"); k(f"v_add_f32 v{s1}, v{s1}, v{s1+2}")
        for sw in ("v_permlane16_swap_b32", "v_permlane32_swap_b32"):
            k(f"v_mov_b32 v{s1+2}, v{s1}"); k(f"{sw} v{s1}, v{s1+2}"); k(f"v_add_f32 v{s1}, v{s1}, v{s1+2}")
        k(f"v_and_b32 v{vT}, 15, v1"); k(f"v_lshlrev_b32 v{vT}, 2, v{vT}")
        if STL & 2:
            k("s_lshr_b32 s27, s35, 8"); k("s_lshl_b32 s27, s27, 14"); k("s_and_b32 s28, s35, 255"); k("s_lshl_b32 s28, s28, 2"); k("s_add_u32 s27, s27, s28")
            k("s_lshl_b32 s28, s24, 10"); k("s_add_u32 s27, s27, s28"); k(f"s_add_u32 s27, s27, {WS_ST}")
        else:
            k("s_lshl_b32 s27, s35, 2"); k("s_lshl_b32 s28, s24, 13"); k("s_add_u32 s27, s27, s28"); k(f"s_add_u32 s27, s27, {WS_ST}")
        k("s_mov_b64 exec, 0xffff")
        k(f"buffer_store_dword v{s1}, v{vT}, s[12:15], s27 offen{SC}")
        k("s_mov_b64 exec, -1")
        k.stamp(pre + "_epi")
        k("s_lshr_b32 s27, s23, 1"); k("s_lshl_b32 s27, s27, 7"); k(f"s_add_u32 s27, s27, {WS_CNT + C4*128}")
        k("s_waitcnt lgkmcnt(0)")
        signal(k, 27, vt=(RES, RES + 1))
        k.stamp(pre + "_sig")
    else:
        k.stamp(pre + "_epi")
OUTSC = os.environ.get("OUTSC", "")

def phase3k(k):
    assert COA & 4 and not WT3 and not STL & 2
    NT = D // 128; NS = 4; R = R3K; SO = S3O
    base = W3BASE; vW = vW3; SW = 8
    vA = [2, 3, 4, 5]; vBj = [6, 7]; vR = 10; vO = 11; vT = 12; vRM = 8; vHK = 9
    RES = 16; A = [24, 40]; ACC = 56; ACM = 120; RMF = [128, 132]; BR = 136; MX = 15
    assert BR + 8 * R <= 200 and R >= SO and NT - SO >= (NT - 1) // NS * NS and SO == 3
    vL, vL4, vXW, vXR, vZ, vXMw, vXMr, vID, vMask = 244, 245, 246, 247, 203, 204, 205, 206, 207
    TCH, TCM, XS2, RMA, RMM = 208, 216, 224, 232, 217
    acc = lambda c, i, j: ACC + c * 32 + (j * 4 + i) * 4
    T32B = D * 64
    coords35(k, 23, 24, 25)
    k("s_and_b32 s25, s20, 3")
    k("s_lshr_b32 s26, s20, 2")
    k("s_lshl_b32 s31, s23, 2"); k("s_add_u32 s31, s31, s25"); k(f"s_mul_i32 s31, s31, {T32B}")
    k("s_lshl_b32 s28, s26, 11"); k("s_add_u32 s31, s31, s28"); k(f"s_add_u32 s31, s31, {WS_O}")
    k("s_and_b32 s28, s24, 1"); k(f"s_mul_i32 s28, s28, {T32B//2}"); k("s_add_u32 s31, s31, s28")
    k(f"v_lshrrev_b32 v{vT}, 4, v1"); k(f"v_and_b32 v{vT+1}, 15, v1")
    k(f"v_lshlrev_b32 v{vT+2}, 4, v{vT+1}"); k(f"v_lshl_add_u32 v{vT+2}, v{vT}, 9, v{vT+2}")
    k("s_lshl_b32 s28, s26, 8")
    k(f"v_add_u32 v{vBj[0]}, s28, v{vT+2}")
    k(f"v_xor_b32 v{vBj[1]}, 256, v{vBj[0]}")
    k(f"v_and_b32 v{vT+2}, 1, v{vT}"); k(f"v_lshlrev_b32 v{vT+2}, 1, v{vT+2}"); k(f"v_lshrrev_b32 v{vT+3}, 1, v{vT}")
    k(f"v_add_u32 v{vT+2}, v{vT+2}, v{vT+3}")
    k(f"v_lshlrev_b32 v{vR}, 11, v{vT+1}"); k(f"v_lshl_add_u32 v{vR}, v{vT+2}, 4, v{vR}")
    k("s_lshl_b32 s33, s23, 2"); k("s_add_u32 s33, s33, s25"); k("s_lshl_b32 s33, s33, 1"); k("s_add_u32 s33, s33, s26")
    k("s_lshl_b32 s35, s33, 4")
    k("s_lshl_b32 s33, s33, 15"); k("s_lshl_b32 s28, s24, 7"); k("s_add_u32 s33, s33, s28")
    k(f"v_lshlrev_b32 v{vO}, 9, v{vT+2}"); k(f"v_lshl_add_u32 v{vO}, v{vT+1}, 4, v{vO}")
    k("s_lshl_b32 s34, s23, 2"); k("s_add_u32 s34, s34, s25"); k("s_lshl_b32 s34, s34, 16")
    k("s_lshl_b32 s28, s24, 12"); k("s_add_u32 s34, s34, s28"); k("s_lshl_b32 s28, s26, 8"); k("s_add_u32 s34, s34, s28")
    k(f"s_add_u32 s34, s34, {WS_H}")
    k("s_lshl_b32 s28, s20, 10"); k(f"s_add_u32 s28, s28, {RMOFF}")
    k(f"v_lshl_add_u32 v{vRM}, v{vT}, 4, s28")
    k("s_lshl_b32 s28, s20, 11"); k(f"s_add_u32 s28, s28, {HKOFF}")
    k(f"v_lshl_add_u32 v{vHK}, v1, 4, s28")
    k(f"v_bfe_u32 v{vT+1}, v1, 2, 2")
    k(f"v_lshrrev_b32 v{vT+2}, 1, v{vT}"); k(f"v_and_b32 v{vT+3}, 1, v{vT}")
    k(f"v_lshlrev_b32 v{vT+2}, 4, v{vT+2}"); k(f"v_lshl_add_u32 v{vT+2}, v{vT+3}, 2, v{vT+2}")
    k(f"v_add_u32 v{vT+2}, v{vT+2}, v{vT+1}"); k(f"v_lshlrev_b32 v{vT+2}, 7, v{vT+2}")
    k(f"v_lshrrev_b32 v{vT+1}, 1, v{vT+1}"); k(f"v_lshl_add_u32 v{vT+1}, v{vT+3}, 1, v{vT+1}")
    k(f"v_and_b32 v{vT+3}, 3, v1"); k(f"v_lshl_add_u32 v{vT+2}, v{vT+3}, 3, v{vT+2}")
    k("s_lshl_b32 s28, s26, 12"); k(f"s_add_u32 s28, s28, {base}")
    k(f"v_add_u32 v{vT+2}, s28, v{vT+2}")
    for i in range(4):
        k(f"v_xor_b32 v{vT+3}, {i}, v{vT+1}")
        k(f"v_lshl_add_u32 v{vA[i]}, v{vT+3}, 5, v{vT+2}")
    srd(k, 16, pX, MB4)
    for p in range(2): k(f"buffer_load_dwordx4 v[{RES+4*p}:{RES+4*p+3}], v{vR}, s[16:19], s33 offen offset:{64*p}")
    k(f"v_mov_b32 v{vZ}, 0"); k(f"s_xor_b32 s28, s2, {32 if C35 == 0 else 4}"); k("s_lshl_b32 s28, s28, 7"); k(f"s_add_u32 s28, s28, {WS_XID1}")
    k(f"buffer_load_dword v{vID}, v{vZ}, s[12:15], s28 offen{SC}")
    for r in range(ACC, ACC + 72): k(f"v_mov_b32 v{r}, 0")
    pf4_setup(k, vT)
    k(f"v_lshlrev_b32 v{vL}, 4, v1"); k(f"v_lshlrev_b32 v{vL4}, 2, v1"); k(f"v_mov_b32 v{vMask}, 0xffff0000")
    k("s_lshl_b32 s38, s23, 4"); k("s_add_u32 s38, s38, s24"); k("s_xor_b32 s39, s38, 1")
    k("s_lshl_b32 s28, s20, 8"); k(f"s_add_u32 s28, s28, {WS_XM3}")
    k("s_lshl_b32 s37, s38, 11"); k("s_add_u32 s37, s37, s28"); k("s_lshl_b32 s43, s39, 11"); k("s_add_u32 s43, s43, s28")
    k("s_lshl_b32 s28, s20, 11"); k(f"s_add_u32 s28, s28, {WS_XI3}")
    for r in (38, 39): k(f"s_lshl_b32 s{r}, s{r}, 14"); k(f"s_add_u32 s{r}, s{r}, s28")
    k("s_lshl_b32 s27, s25, 12"); k(f"s_add_u32 s27, s27, {BOFF4}")
    k(f"s_mul_i32 s28, s26, {SLOT4}"); k("s_add_u32 s28, s28, s27"); k(f"v_add_u32 v{vXW}, s28, v{vL}")
    k("s_xor_b32 s28, s26, 1"); k(f"s_mul_i32 s28, s28, {SLOT4}"); k("s_add_u32 s28, s28, s27"); k(f"v_add_u32 v{vXR}, s28, v{vL}")
    k("s_lshl_b32 s27, s20, 8"); k(f"s_add_u32 s27, s27, {XMOFF}"); k(f"v_add_u32 v{vXMw}, s27, v{vL4}"); k(f"v_xor_b32 v{vXMr}, 1024, v{vXMw}")
    k(f"v_bfe_u32 v{vT}, v1, 2, 3"); k(f"v_and_b32 v{vT+1}, 3, v1"); k(f"v_lshlrev_b32 v{vT+1}, 4, v{vT+1}")
    k(f"v_lshl_add_u32 v{vT+1}, v{vT}, 7, v{vT+1}"); k("s_lshl_b32 s28, s26, 6"); k("s_and_b32 s27, s24, 1"); k("s_lshl_b32 s27, s27, 10"); k("s_add_u32 s28, s28, s27")
    k(f"v_add_u32 v{vT+1}, s28, v{vT+1}")
    k(f"v_and_b32 v{vT+2}, 15, v1"); k(f"v_lshlrev_b32 v{vT+2}, 2, v{vT+2}")
    vm = VM()
    k("s_lshr_b32 s27, s23, 1"); k("s_lshl_b32 s27, s27, 7"); k(f"s_add_u32 s27, s27, {WS_CNT + C3*128}")
    wait(k, 27, 32, vt=(A[0], A[0] + 1), pr=A[1])
    k.stamp("p3_wait")
    def bld(t):
        b = BR + (t % R) * 8
        return [f"buffer_load_dwordx4 v[{b+4*j}:{b+4*j+3}], v{vBj[j]}, s[12:15], s31 offen{SC}" for j in range(2)]
    badv = "s_add_u32 s31, s31, 4096"
    k("s_lshl_b32 s28, s20, 10"); k(f"s_add_u32 m0, s28, {RMOFF}")
    k(f"s_mov_b32 s28, {WS_RM}")
    k(f"buffer_load_dwordx4 v{vT+1}, s[12:15], s28 offen{SC} lds"); vm.issue("RM")
    for t in range(R - 1):
        for l in bld(t): k(l); vm.issue(("B", t))
        k(badv)
    k("s_lshl_b32 s28, s35, 2"); k(f"s_add_u32 s28, s28, {WS_MX}")
    k(f"buffer_load_dword v{MX}, v{vT+2}, s[12:15], s28 offen{SC}"); vm.issue("res")
    def areads(t, c, buf):
        return [f"ds_read_b64_tr_b16 v[{A[buf]+4*i+2*tt}:{A[buf]+4*i+2*tt+1}], v{vA[i]} offset:{(t % NS)*16384 + c*8192 + tt*1024}"
                for i in range(4) for tt in range(2)]
    def rmread(t): return f"ds_read_b128 v[{RMF[t & 1]}:{RMF[t & 1]+3}], v{vRM} offset:{t*64}"
    for l in areads(0, 0, 0): k(l)
    k(f"s_waitcnt vmcnt({vm.cnt({'RM'})})")
    k(rmread(0))
    k.stamp("p3_go")
    BG = [int(x) for x in os.environ.get("BG3", "2,5").split(",")]
    order = [(t, c) for t in range(NT - SO) for c in range(2)] + [(t, 0) for t in range(NT - SO, NT)] + [(t, 1) for t in range(NT - SO, NT)]
    def send1(st):
        lfast = k.lab("p3fast"); lj = k.lab("p3sent")
        if SKF == 1: return ["s_cmp_eq_u32 s44, s45", f"s_cbranch_scc1 {lfast}", st + SC, f"s_branch {lj}", f"{lfast}:", st, f"{lj}:"]
        return [st + SC] if SKF == 2 else [st]
    def fold0_triples():
        o = []
        for q in range(8):
            a = acc(0, 0, 0) + 2 * q; b = acc(0, 0, 1) + 2 * q
            o += [f"v_add_f32 v{a}, v{a}, v{b}", f"v_add_f32 v{a+1}, v{a+1}, v{b+1}", f"v_cvt_pk_bf16_f32 v{XS2+q}, v{a}, v{a+1}"]
        return o
    visible = {0}; bseen = set()
    texts = [[] for _ in range(NT // NS)]
    for idx, (t, c) in enumerate(order):
        o = texts[t // NS]
        cur = idx & 1; nxt = cur ^ 1
        nx = order[idx + 1] if idx + 1 < len(order) else None
        tail = idx - (len(order) - SO) if idx >= len(order) - SO else -1
        need = set(); bar = False
        if t not in bseen: need.add(("B", t)); bseen.add(t)
        if nx and nx[0] not in visible: need.add(("W", nx[0])); visible.add(nx[0]); bar = True
        if tail in (1, 2): bar = True
        n = vm.cnt(need) if need else None
        o.append(f"s_waitcnt vmcnt({min(n, 63)}) lgkmcnt(0)" if n is not None else "s_waitcnt lgkmcnt(0)")
        if bar: o.append("s_barrier")
        rd = areads(nx[0], nx[1], nxt) if nx else []; dm = []
        if nx and nx[1] == 0: rd = rd + [rmread(nx[0])]
        if c == 1 and t + NS < NT: dm = w35_dma(vW, SW, t % NS)
        mf = []
        b = BR + (t % R) * 8
        for i in range(4):
            for j in range(2):
                a = acc(c, i, j)
                mf.append(f"v_mfma_f32_16x16x32_bf16 v[{a}:{a+3}], v[{A[cur]+4*i}:{A[cur]+4*i+3}], v[{b+4*j}:{b+4*j+3}], v[{a}:{a+3}]")
        if c == 0:
            for j in range(2):
                a = ACM + 4 * j
                mf.append(f"v_mfma_f32_16x16x32_bf16 v[{a}:{a+3}], v[{RMF[t & 1]}:{RMF[t & 1]+3}], v[{b+4*j}:{b+4*j+3}], v[{a}:{a+3}]")
        gaps = [[] for _ in mf]
        if tail == 1:
            for i in range(4): gaps[i].append(f"ds_read_b128 v[{acc(0,i,1)}:{acc(0,i,1)+3}], v{vXR} offset:{1024*i}")
            gaps[4].append(f"ds_read_b32 v{ACM+4}, v{vXMr}")
            gaps[0] += [f"s_getreg_b32 s44, {XCCR}", f"v_readfirstlane_b32 s45, v{vID}"]
        for q, r in enumerate(rd): gaps[min(q, len(mf) - 1)].append(r)
        if dm:
            gaps[0].append(dm[0][0]); gaps[1].append(dm[0][1]); gaps[2].append(dm[1][0]); gaps[3].append(dm[1][1]); gaps[4].append(W3ADV)
            vm.issue(("W", t + NS), 2)
        if c == 0 and t + R - 1 < NT:
            bl = bld(t + R - 1)
            gaps[BG[0]].append(bl[0]); gaps[BG[1]].append(bl[1]); gaps[BG[1]].append(badv)
            vm.issue(("B", t + R - 1), 2)
        if t == S3T and c == 0:
            for p in range(2): gaps[6 + p].append(f"buffer_load_dwordx4 v[{TCH+4*p}:{TCH+4*p+3}], v{vL}, s[12:15], s38 offen offset:{1024*p}{SC}")
            gaps[8].append(f"buffer_load_dword v{TCM}, v{vL4}, s[12:15], s37 offen{SC}")
            vm.issue(("T", 0), 3)
        if tail == 0:
            for i in range(4): gaps[2 + i].append(f"ds_write_b128 v{vXW}, v[{acc(0,i,1)}:{acc(0,i,1)+3}] offset:{1024*i}")
            gaps[6].append(f"ds_write_b32 v{vXMw}, v{ACM+4}")
        if tail == 2:
            gaps[0].append(f"v_add_f32 v{ACM}, v{ACM}, v{ACM+4}")
            gaps[1] += send1(f"buffer_store_dword v{ACM}, v{vL4}, s[12:15], s43 offen")
            for q, l in enumerate(fold0_triples()):
                g = min(q // SKG, len(mf) - 1)
                gaps[g].append(l)
                if q in (11, 23): gaps[g] += send1(f"buffer_store_dwordx4 v[{XS2+4*(q//12)}:{XS2+4*(q//12)+3}], v{vL}, s[12:15], s39 offen offset:{1024*(q//12)}")
        for g, mm in enumerate(mf):
            o.append(mm); o += gaps[g]
    periods(k, "p3loop", texts, 36)
    k.stamp("p3_loop")
    def poll(dst, dm_):
        for p in range(2): k(f"buffer_load_dwordx4 v[{dst+4*p}:{dst+4*p+3}], v{vL}, s[12:15], s38 offen offset:{1024*p}{SC}")
        k(f"buffer_load_dword v{dm_}, v{vL4}, s[12:15], s37 offen{SC}")
    def check(src, dm_, lbl):
        k(f"v_max3_u32 v{vT}, v{src}, v{src+1}, v{src+2}")
        k(f"v_max3_u32 v{vT+1}, v{src+3}, v{src+4}, v{src+5}")
        k(f"v_max3_u32 v{vT}, v{vT}, v{src+6}, v{src+7}")
        k(f"v_max3_u32 v{vT}, v{vT}, v{vT+1}, v{dm_}")
        k(f"v_cmp_eq_u32 vcc, -1, v{vT}")
        k("s_cmp_eq_u64 vcc, 0"); k(f"s_cbranch_scc1 {lbl}")
    U = A[1]
    def unpack(src, dm_):
        for q in range(8):
            k(f"v_lshlrev_b32 v{U+2*q}, 16, v{src+q}"); k(f"v_and_b32 v{U+2*q+1}, v{vMask}, v{src+q}")
        k(f"v_add_f32 v{ACM}, v{ACM}, v{dm_}")
    poll(RMA, RMM)
    for i in range(4): k(f"ds_write_b128 v{vXW}, v[{acc(1,i,1)}:{acc(1,i,1)+3}] offset:{1024*i}")
    k("s_waitcnt lgkmcnt(0)")
    k("s_barrier")
    for i in range(4): k(f"ds_read_b128 v[{acc(1,i,1)}:{acc(1,i,1)+3}], v{vXR} offset:{1024*i}")
    poll(TCH, TCM)
    k("s_waitcnt lgkmcnt(0)")
    for r in range(16): k(f"v_add_f32 v{acc(1,0,0)+r}, v{acc(1,0,0)+r}, v{acc(1,0,1)+r}")
    k(f"v_add_f32 v{ACM}, v{ACM}, v{MX}")
    gA = k.lab("p3gotA"); gB = k.lab("p3gotB"); pl = k.lab("p3poll"); jn = k.lab("p3join")
    k("s_mov_b32 s28, 1")
    k("s_waitcnt vmcnt(3)"); check(RMA, RMM, gA)
    k("s_waitcnt vmcnt(0)"); check(TCH, TCM, gB)
    k(f"{pl}:")
    poll(RMA, RMM)
    k("s_add_u32 s28, s28, 1")
    k("s_waitcnt vmcnt(0)"); check(RMA, RMM, gA)
    k(f"s_cmp_lt_u32 s28, {SPIN_LIMIT >> 2}"); k(f"s_cbranch_scc1 {pl}")
    k(f"s_branch {gA}")
    k(f"{gB}:"); unpack(TCH, TCM); k(f"s_branch {jn}")
    k(f"{gA}:"); unpack(RMA, RMM)
    k(f"{jn}:")
    k.stamp("p3_got")
    for tl in range(4):
        for g in pf4(tl):
            for l in g: k(l)
    for r in range(16): k(f"v_add_f32 v{acc(1,0,0)+r}, v{acc(1,0,0)+r}, v{U+r}")
    k(f"v_sub_f32 v{ACM}, 0, v{ACM}")
    for p in range(2):
        for r in range(4): k(f"v_permlane16_swap_b32 v{acc(1,2*p,0)+r}, v{acc(1,2*p+1,0)+r}")
    U = A[0]
    for p in range(2):
        for q in range(4):
            k(f"v_lshlrev_b32 v{U+2*q}, 16, v{RES+4*p+q}")
            k(f"v_and_b32 v{U+2*q+1}, v{vMask}, v{RES+4*p+q}")
        for q in range(8):
            a = acc(1, 2 * p, 0) + q
            k(f"v_add_f32 v{a}, v{a}, v{U+q}")
        for q in range(4):
            a = acc(1, 2 * p, 0) + 2 * q
            k(f"v_cvt_pk_bf16_f32 v{RES+4*p+q}, v{a}, v{a+1}")
        k(f"ds_write_b128 v{vHK}, v[{RES+4*p}:{RES+4*p+3}] offset:{1024*p}")
        HC = U + 8 + 4 * p
        for q in range(8):
            a = acc(1, 2 * p, 0) + q
            k(f"v_add_f32 v{a}, v{a}, v{ACM}")
        for q in range(4):
            a = acc(1, 2 * p, 0) + 2 * q
            k(f"v_cvt_pk_bf16_f32 v{HC+q}, v{a}, v{a+1}")
        k(f"buffer_store_dwordx4 v[{HC}:{HC+3}], v{vO}, s[12:15], s34 offen offset:{2048*p}{SC}")
    s1 = U
    a0 = acc(1, 0, 0)
    for r in range(4): k(f"v_mul_f32 v{s1+r}, v{a0+r}, v{a0+r}")
    for r in range(4, 16): k(f"v_fma_f32 v{s1+(r&3)}, v{a0+r}, v{a0+r}, v{s1+(r&3)}")
    k(f"v_add_f32 v{s1}, v{s1}, v{s1+1}"); k(f"v_add_f32 v{s1+2}, v{s1+2}, v{s1+3}"); k(f"v_add_f32 v{s1}, v{s1}, v{s1+2}")
    for sw in ("v_permlane16_swap_b32", "v_permlane32_swap_b32"):
        k(f"v_mov_b32 v{s1+2}, v{s1}"); k(f"{sw} v{s1}, v{s1+2}"); k(f"v_add_f32 v{s1}, v{s1}, v{s1+2}")
    k(f"v_and_b32 v{vT}, 15, v1"); k(f"v_lshlrev_b32 v{vT}, 2, v{vT}")
    k("s_lshl_b32 s27, s35, 2"); k("s_lshl_b32 s28, s24, 13"); k("s_add_u32 s27, s27, s28"); k(f"s_add_u32 s27, s27, {WS_ST}")
    k("s_mov_b64 exec, 0xffff")
    k(f"buffer_store_dword v{s1}, v{vT}, s[12:15], s27 offen{SC}")
    k("s_mov_b64 exec, -1")
    k.stamp("p3_epi")
    k("s_lshr_b32 s27, s23, 1"); k("s_lshl_b32 s27, s27, 7"); k(f"s_add_u32 s27, s27, {WS_CNT + C4*128}")
    k("s_waitcnt lgkmcnt(0)")
    signal(k, 27, vt=(RES, RES + 1))
    k.stamp("p3_sig")

def phase5k(k):
    assert WDT and NS5 == 5 and COA & 8
    NT = DF // 128; NS = NS5; R = R5K
    vW = vW5; SW = SW5
    vA = [2, 3, 4, 5]; vBj = [6, 7]; vTW = [8, 10]; vHK = 9; vO = 11; vT = 12; vTR = 200; vL = 201
    RES = 16; A = [24, 40]; ACC = 56; BR = 120
    assert BR + 8 * R <= 200
    XCH = NS * 16384
    acc = lambda c, i, j: ACC + c * 32 + (j * 4 + i) * 4
    T32B = DF * 64
    coords35(k, 23, 24, 25)
    k("s_and_b32 s25, s20, 3")
    k("s_lshr_b32 s26, s20, 2")
    k("s_lshl_b32 s31, s23, 2"); k("s_add_u32 s31, s31, s25"); k(f"s_mul_i32 s31, s31, {T32B}")
    k("s_lshl_b32 s28, s26, 11"); k("s_add_u32 s31, s31, s28"); k(f"s_add_u32 s31, s31, {WS_HM}")
    k("s_and_b32 s28, s24, 1"); k(f"s_mul_i32 s28, s28, {T32B//2}"); k("s_add_u32 s31, s31, s28")
    k(f"v_lshrrev_b32 v{vT}, 4, v1"); k(f"v_and_b32 v{vT+1}, 15, v1")
    k(f"v_lshlrev_b32 v{vT+2}, 4, v{vT+1}"); k(f"v_lshl_add_u32 v{vT+2}, v{vT}, 9, v{vT+2}")
    k("s_lshl_b32 s28, s26, 8")
    k(f"v_add_u32 v{vBj[0]}, s28, v{vT+2}")
    k(f"v_xor_b32 v{vBj[1]}, 256, v{vBj[0]}")
    k("s_lshl_b32 s33, s23, 2"); k("s_add_u32 s33, s33, s25"); k("s_lshl_b32 s33, s33, 1"); k("s_add_u32 s33, s33, s26")
    k("s_lshl_b32 s33, s33, 15"); k("s_lshl_b32 s28, s24, 7"); k("s_add_u32 s33, s33, s28")
    k("s_add_u32 s34, s33, 16384")
    k("s_lshl_b32 s28, s20, 11"); k(f"s_add_u32 s28, s28, {HKOFF}")
    k(f"v_lshl_add_u32 v{vHK}, v1, 4, s28")
    k(f"v_lshlrev_b32 v{vL}, 4, v1")
    k("s_lshl_b32 s38, s23, 4"); k("s_add_u32 s38, s38, s24"); k("s_xor_b32 s39, s38, 1")
    k("s_lshl_b32 s28, s20, 11"); k(f"s_add_u32 s28, s28, {WS_XI}")
    if SKF:
        k("s_lshl_b32 s40, s39, 10"); k(f"s_add_u32 s40, s40, {WS_XID}"); k("v_mov_b32 v203, 0")
        k(f"buffer_load_dword v202, v203, s[12:15], s40 offen{SC}")
    for r in (38, 39): k(f"s_lshl_b32 s{r}, s{r}, 14"); k(f"s_add_u32 s{r}, s{r}, s28")
    k(f"v_bfe_u32 v{vT+1}, v1, 2, 2")
    k(f"v_lshrrev_b32 v{vT+2}, 1, v{vT}"); k(f"v_and_b32 v{vT+3}, 1, v{vT}")
    k(f"v_lshlrev_b32 v{vT+2}, 4, v{vT+2}"); k(f"v_lshl_add_u32 v{vT+2}, v{vT+3}, 2, v{vT+2}")
    k(f"v_add_u32 v{vT+2}, v{vT+2}, v{vT+1}"); k(f"v_lshlrev_b32 v{vT+2}, 7, v{vT+2}")
    k(f"v_lshrrev_b32 v{vT+1}, 1, v{vT+1}"); k(f"v_lshl_add_u32 v{vT+1}, v{vT+3}, 1, v{vT+1}")
    k(f"v_and_b32 v{vT+3}, 3, v1"); k(f"v_lshl_add_u32 v{vT+2}, v{vT+3}, 3, v{vT+2}")
    k("s_lshl_b32 s28, s26, 12")
    k(f"v_add_u32 v{vT+2}, s28, v{vT+2}")
    for i in range(4):
        k(f"v_xor_b32 v{vT+3}, {i}, v{vT+1}")
        k(f"v_lshl_add_u32 v{vA[i]}, v{vT+3}, 5, v{vT+2}")
    vA2 = [204, 205, 206, 207]
    for i in range(4): k(f"v_add_u32 v{vA2[i]}, 65536, v{vA[i]}")
    srd(k, 16, pOUT, MB4)
    k(f"v_and_b32 v{vT}, 15, v1"); k(f"v_lshrrev_b32 v{vT+1}, 4, v1")
    k(f"v_and_b32 v{vT+2}, 1, v{vT+1}"); k(f"v_lshlrev_b32 v{vT+2}, 1, v{vT+2}"); k(f"v_lshrrev_b32 v{vT+1}, 1, v{vT+1}"); k(f"v_add_u32 v{vT+1}, v{vT+1}, v{vT+2}")
    k(f"v_xor_b32 v{vT+1}, v{vT+1}, v{vT}"); k(f"v_and_b32 v{vT+1}, 7, v{vT+1}"); k(f"v_lshlrev_b32 v{vT+1}, 4, v{vT+1}")
    k("s_lshl_b32 s28, s20, 13"); k("s_xor_b32 s28, s28, 32768"); k(f"s_add_u32 s28, s28, {XCH}")
    k(f"v_lshl_add_u32 v{vT+1}, v{vT}, 7, v{vT+1}"); k(f"v_add_u32 v{vTW[0]}, s28, v{vT+1}"); k(f"v_xor_b32 v{vTW[1]}, 64, v{vTW[0]}")
    k(f"v_lshrrev_b32 v{vT}, 3, v1"); k(f"v_and_b32 v{vT+1}, 7, v1")
    k(f"v_lshlrev_b32 v{vO}, 11, v{vT}"); k(f"v_lshl_add_u32 v{vO}, v{vT+1}, 4, v{vO}")
    k(f"v_xor_b32 v{vT+1}, v{vT+1}, v{vT}"); k(f"v_lshlrev_b32 v{vT+1}, 4, v{vT+1}"); k(f"v_lshl_add_u32 v{vT+1}, v{vT}, 7, v{vT+1}")
    k(f"v_add_u32 v{vTR}, s28, v{vT+1}")
    vXW, vXR, vMask = vT + 1, vT + 2, vT + 3
    k("s_lshl_b32 s27, s20, 13"); k(f"s_add_u32 s27, s27, {XCH}")
    k(f"v_add_u32 v{vXW}, s27, v{vL}"); k(f"v_add_u32 v{vXR}, s28, v{vL}")
    k(f"v_mov_b32 v{vMask}, 0xffff0000")
    TCH = 208
    vTW4 = [216, 217, 218, 219]; vTR2 = 220
    if SKR:
        k(f"v_and_b32 v{vT}, 15, v1"); k(f"v_lshrrev_b32 v{TCH}, 5, v1"); k(f"v_lshrrev_b32 v{TCH+1}, 1, v{vT}")
        k(f"v_xor_b32 v{TCH}, v{TCH}, v{TCH+1}"); k(f"v_lshlrev_b32 v{TCH}, 4, v{TCH}"); k(f"v_lshl_add_u32 v{TCH}, v{vT}, 7, v{TCH}")
        k(f"v_bfe_u32 v{TCH+1}, v1, 4, 1"); k(f"v_lshl_add_u32 v{TCH}, v{TCH+1}, 3, v{TCH}"); k(f"v_add_u32 v{vTW4[0]}, s28, v{TCH}")
        for i in range(1, 4): k(f"v_xor_b32 v{vTW4[i]}, {32*i}, v{vTW4[0]}")
        k(f"v_and_b32 v{TCH}, 7, v1"); k(f"v_lshrrev_b32 v{TCH+1}, 4, v1"); k(f"v_xor_b32 v{TCH}, v{TCH}, v{TCH+1}"); k(f"v_lshlrev_b32 v{TCH}, 4, v{TCH}")
        k(f"v_lshrrev_b32 v{TCH+1}, 3, v1"); k(f"v_lshl_add_u32 v{TCH}, v{TCH+1}, 7, v{TCH}"); k(f"v_add_u32 v{vTR}, s28, v{TCH}")
        k(f"v_xor_b32 v{vTR2}, 64, v{vTR}")
        for p in range(2): k(f"ds_read_b128 v[{RES+4*p}:{RES+4*p+3}], v{vHK} offset:{1024*p}")
    for r in range(ACC, ACC + 64):
        if not (SKR and acc(1, 0, 0) <= r < acc(1, 0, 0) + 16): k(f"v_mov_b32 v{r}, 0")
    if SKR:
        k("s_waitcnt lgkmcnt(0)")
        for p in range(2):
            for q in range(4):
                a = acc(1, 2 * p, 0) + 2 * q
                k(f"v_lshlrev_b32 v{a}, 16, v{RES+4*p+q}"); k(f"v_and_b32 v{a+1}, v{vMask}, v{RES+4*p+q}")
        for p in range(2):
            for r in range(4): k(f"v_permlane16_swap_b32 v{acc(1,2*p,0)+r}, v{acc(1,2*p+1,0)+r}")
    vm = VM()
    for t in range(NPF5, NS):
        for d in w35_dma(vW, SW, t):
            for l in d: k(l)
        k(W5ADV); vm.issue(("W", t), 2)
    k("s_lshr_b32 s27, s23, 1"); k("s_lshl_b32 s27, s27, 7"); k(f"s_add_u32 s27, s27, {WS_CNT + C5*128}")
    wait(k, 27, 32, vt=(RES, RES + 1), pr=A[1])
    k.stamp("p5_wait")
    def bld(t):
        b = BR + (t % R) * 8
        return [f"buffer_load_dwordx4 v[{b+4*j}:{b+4*j+3}], v{vBj[j]}, s[12:15], s31 offen{SC}" for j in range(2)]
    badv = "s_add_u32 s31, s31, 4096"
    for t in range(R - 1):
        for l in bld(t): k(l); vm.issue(("B", t))
        k(badv)
    def areads(t, c, buf):
        sl = t % NS
        va = vA if sl < 4 else vA2
        return [f"ds_read_b64_tr_b16 v[{A[buf]+4*i+2*tt}:{A[buf]+4*i+2*tt+1}], v{va[i]} offset:{(sl & 3)*16384 + c*8192 + tt*1024}"
                for i in range(4) for tt in range(2)]
    for l in areads(0, 0, 0): k(l)
    k.stamp("p5_go")
    texts = []
    BG = [int(x) for x in os.environ.get("BG5", "2,5").split(",")]
    order = [(t, c) for t in range(NT) for c in range(2)]
    XS2, RMA = 224, 232
    if SKO:
        assert SKR and SKF and SKX and SKA and NT - SKO >= (NT - 1) // NS * NS
        order = order[:2 * (NT - SKO)] + [(t, 0) for t in range(NT - SKO, NT)] + [(t, 1) for t in range(NT - SKO, NT)]
    def send1(p, src):
        lfast = k.lab("p5fast"); lj = k.lab("p5sent")
        st = f"buffer_store_dwordx4 v[{src+4*p}:{src+4*p+3}], v{vL}, s[12:15], s39 offen offset:{1024*p}"
        if SKF == 1: return ["s_cmp_eq_u32 s40, s41", f"s_cbranch_scc1 {lfast}", st + SC, f"s_branch {lj}", f"{lfast}:", st, f"{lj}:"]
        return [st + SC] if SKF == 2 else [st]
    def fold0_triples():
        o = []
        for q in range(8):
            a = acc(0, 0, 0) + 2 * q; b = acc(0, 0, 1) + 2 * q
            o += [f"v_add_f32 v{a}, v{a}, v{b}", f"v_add_f32 v{a+1}, v{a+1}, v{b+1}", f"v_cvt_pk_bf16_f32 v{XS2+q}, v{a}, v{a+1}"]
        return o
    visible = {0}; bseen = set()
    texts = [[] for _ in range((NT + NS - 1) // NS)]
    for idx, (t, c) in enumerate(order):
                o = texts[t // NS]
                cur = idx & 1; nxt = cur ^ 1
                nx = order[idx + 1] if idx + 1 < len(order) else None
                tail = idx - (len(order) - SKO) if SKO and idx >= len(order) - SKO else -1
                need = set(); bar = False
                if t not in bseen: need.add(("B", t)); bseen.add(t)
                if nx and nx[0] not in visible: need.add(("W", nx[0])); visible.add(nx[0]); bar = True
                if tail == 1: bar = True
                n = vm.cnt(need) if need else None
                o.append(f"s_waitcnt vmcnt({min(n, 63)}) lgkmcnt(0)" if n is not None else "s_waitcnt lgkmcnt(0)")
                if bar: o.append("s_barrier")
                rd = areads(nx[0], nx[1], nxt) if nx else []; dm = []
                if c == 1 and t + NS < NT: dm = w35_dma(vW, SW, t % NS)
                mf = []
                b = BR + (t % R) * 8
                for i in range(4):
                    for j in range(2):
                        a = acc(c, i, j)
                        mf.append(f"v_mfma_f32_16x16x32_bf16 v[{a}:{a+3}], v[{A[cur]+4*i}:{A[cur]+4*i+3}], v[{b+4*j}:{b+4*j+3}], v[{a}:{a+3}]")
                gaps = [[] for _ in mf]
                if tail == 1:
                    for i in range(4): gaps[i].append(f"ds_read_b128 v[{acc(0,i,1)}:{acc(0,i,1)+3}], v{vXR} offset:{1024*i}")
                    gaps[0] += ["s_getreg_b32 s40, hwreg(HW_REG_XCC_ID, 0, 4)", "v_readfirstlane_b32 s41, v202"]
                for q, r in enumerate(rd): gaps[min(q, len(mf) - 1)].append(r)
                if dm:
                    gaps[0].append(dm[0][0]); gaps[1].append(dm[0][1]); gaps[2].append(dm[1][0]); gaps[3].append(dm[1][1]); gaps[4].append(W5ADV)
                    vm.issue(("W", t + NS), 2)
                if c == 0 and t + R - 1 < NT:
                    bl = bld(t + R - 1)
                    gaps[BG[0]].append(bl[0]); gaps[BG[1]].append(bl[1]); gaps[BG[1]].append(badv)
                    vm.issue(("B", t + R - 1), 2)
                if SKF and SKX and t == SKT and c == 0:
                    for p in range(2): gaps[3 + 2*p].append(f"buffer_load_dwordx4 v[{TCH+4*p}:{TCH+4*p+3}], v{vL}, s[12:15], s38 offen offset:{1024*p}{SC}")
                    vm.issue(("T", 0), 2)
                if (SKA and not SKO and t == NT - 1 and c == 1) or tail == 0:
                    for i in range(4): gaps[2 + i].append(f"ds_write_b128 v{vXW}, v[{acc(0,i,1)}:{acc(0,i,1)+3}] offset:{1024*i}")
                    if SKF and not SKO:
                        gaps[0] += ["s_getreg_b32 s40, hwreg(HW_REG_XCC_ID, 0, 4)", "v_readfirstlane_b32 s41, v202"]
                if tail == 2:
                    tr = fold0_triples()
                    for q, l in enumerate(tr):
                        g = min(q // SKG, len(mf) - 1)
                        gaps[g].append(l)
                        if q in (11, 23): gaps[g] += send1(q // 12, XS2)
                for g, mm in enumerate(mf):
                    o.append(mm); o += gaps[g]
    periods(k, "p5loop", texts, 36)
    k.stamp("p5_loop")
    def xw(c):
        for i in range(4): k(f"ds_write_b128 v{vXW}, v[{acc(c,i,1)}:{acc(c,i,1)+3}] offset:{4096*c + 1024*i}")
    def xr(c):
        for i in range(4): k(f"ds_read_b128 v[{acc(c,i,1)}:{acc(c,i,1)+3}], v{vXR} offset:{4096*c + 1024*i}")
    def rres():
        if SKR: return
        for p in range(2): k(f"ds_read_b128 v[{RES+4*p}:{RES+4*p+3}], v{vHK} offset:{1024*p}")
    def padd(d, a, b): k(f"v_pk_add_f32 v[{d}:{d+1}], v[{a}:{a+1}], v[{b}:{b+1}]")
    def fold(c):
        for i in range(4):
            for r in range(0, 4, 2): padd(acc(c,i,0)+r, acc(c,i,0)+r, acc(c,i,1)+r)
        for p in range(2):
            for r in range(4):
                if not SKR: k(f"v_permlane16_swap_b32 v{acc(c,2*p,0)+r}, v{acc(c,2*p+1,0)+r}")
    XS = A[0]; RM = A[0] + 8; U = A[1]
    def send():
        if not SKF:
            for p in range(2):
                for q in range(4):
                    a = acc(0, 2 * p, 0) + 2 * q
                    k(f"v_cvt_pk_bf16_f32 v{XS+4*p+q}, v{a}, v{a+1}")
                if SKX: k(f"buffer_store_dwordx4 v[{XS+4*p}:{XS+4*p+3}], v{vL}, s[12:15], s39 offen offset:{1024*p}{SC}")
            return
        for p in range(2):
            for q in range(4):
                a = acc(0, 2 * p, 0) + 2 * q
                k(f"v_cvt_pk_bf16_f32 v{XS+4*p+q}, v{a}, v{a+1}")
        if not SKX: return
        lfast = k.lab("p5fast"); lj = k.lab("p5sent")
        if SKF == 1: k("s_cmp_eq_u32 s40, s41"); k(f"s_cbranch_scc1 {lfast}")
        if SKF != 3:
            for p in range(2): k(f"buffer_store_dwordx4 v[{XS+4*p}:{XS+4*p+3}], v{vL}, s[12:15], s39 offen offset:{1024*p}{SC}")
        if SKF == 1: k(f"s_branch {lj}"); k(f"{lfast}:")
        if SKF != 2:
            for p in range(2): k(f"buffer_store_dwordx4 v[{XS+4*p}:{XS+4*p+3}], v{vL}, s[12:15], s39 offen offset:{1024*p}")
        if SKF == 1: k(f"{lj}:")
    early = None
    if SKO:
        SKP = int(os.environ.get("SKP", "0"))
        def poll(dst):
            for p in range(2): k(f"buffer_load_dwordx4 v[{dst+4*p}:{dst+4*p+3}], v{vL}, s[12:15], s38 offen offset:{1024*p}{SC}")
        def check(src, lbl):
            k(f"v_max3_u32 v{vT}, v{src}, v{src+1}, v{src+2}")
            k(f"v_max3_u32 v203, v{src+3}, v{src+4}, v{src+5}")
            k(f"v_max3_u32 v{vT}, v{vT}, v{src+6}, v{src+7}")
            k(f"v_max_u32 v{vT}, v{vT}, v203")
            k(f"v_cmp_eq_u32 vcc, -1, v{vT}")
            k("s_cmp_eq_u64 vcc, 0"); k(f"s_cbranch_scc1 {lbl}")
        def unpack(src):
            for q in range(8):
                k(f"v_lshlrev_b32 v{U+2*q}, 16, v{src+q}"); k(f"v_and_b32 v{U+2*q+1}, v{vMask}, v{src+q}")
        if SKO == 2:
            k("s_waitcnt lgkmcnt(0)")
            for q, l in enumerate(fold0_triples()):
                k(l)
                if q in (11, 23):
                    for x in send1(q // 12, XS2): k(x)
        if SKPA & 1: poll(RMA)
        xw(1)
        k("s_waitcnt lgkmcnt(0)")
        if SKP: k.stamp("p5_snd")
        k("s_barrier")
        if SKP: k.stamp("p5_b2")
        xr(1)
        if SKPA & 2: poll(TCH)
        elif not SKPA & 1: poll(RMA)
        k("s_waitcnt lgkmcnt(0)")
        fold(1)
        gA = k.lab("p5gotA"); gB = k.lab("p5gotB"); pl = k.lab("p5poll"); jn = k.lab("p5join")
        k("s_mov_b32 s28, 0")
        if SKPA == 3:
            k("s_waitcnt vmcnt(2)"); check(RMA, gA)
            k("s_mov_b32 s28, 1")
            k("s_waitcnt vmcnt(0)"); check(TCH, gB)
        elif SKPA == 2:
            k("s_waitcnt vmcnt(0)"); check(TCH, gB)
        else:
            k("s_waitcnt vmcnt(0)"); check(RMA, gA)
        k(f"{pl}:")
        poll(RMA)
        k("s_add_u32 s28, s28, 1")
        k("s_waitcnt vmcnt(0)"); check(RMA, gA)
        k(f"s_cmp_lt_u32 s28, {SPIN_LIMIT >> 2}"); k(f"s_cbranch_scc1 {pl}")
        if SKPA & 2:
            k(f"s_branch {gA}")
            k(f"{gB}:"); unpack(TCH); k(f"s_branch {jn}")
        k(f"{gA}:"); unpack(RMA)
        k(f"{jn}:")
        k.stamp("p5_got")
        if STAMP and SKP:
            i_ = k.nst; k.nst += 1; k.stnames.append("p5_npoll")
            k("s_add_u32 s86, s86, s28"); k(f"v_writelane_b32 v255, s84, {i_}"); k(f"v_writelane_b32 v254, s86, {i_}")
        for q in range(8): padd(acc(1, 0, 0) + 2 * q, acc(1, 0, 0) + 2 * q, U + 2 * q)
    elif SKA:
        SKP = int(os.environ.get("SKP", "0"))
        k("s_waitcnt lgkmcnt(0)")
        k("s_barrier")
        if SKP: k.stamp("p5_b1")
        xr(0); xw(1)
        k("s_waitcnt lgkmcnt(4)")
        fold(0); send()
        k("s_waitcnt lgkmcnt(0)")
        if SKP: k.stamp("p5_snd")
        k("s_barrier")
        if SKP: k.stamp("p5_b2")
        xr(1); rres()
        early = lambda: (k(f"s_waitcnt lgkmcnt({0 if SKR else 2})"), fold(1), k("s_waitcnt lgkmcnt(0)") if not SKR else None)
        if not (SKX and int(os.environ.get("SKE", "0")) == 2): early(); early = None
    else:
        if SKF: k("s_getreg_b32 s40, hwreg(HW_REG_XCC_ID, 0, 4)"); k("v_readfirstlane_b32 s41, v202")
        xw(0); xw(1)
        k("s_waitcnt lgkmcnt(0)")
        k("s_barrier")
        xr(0); xr(1); rres()
        k("s_waitcnt lgkmcnt(6)")
        fold(0); send()
        k("s_waitcnt lgkmcnt(2)")
        fold(1)
        k("s_waitcnt lgkmcnt(0)")
    def addbf(src):
        if SKR and src == RES: return
        for p in range(2):
            for q in range(4):
                k(f"v_lshlrev_b32 v{U+8*p+2*q}, 16, v{src+4*p+q}")
                k(f"v_and_b32 v{U+8*p+2*q+1}, v{vMask}, v{src+4*p+q}")
        for p in range(2):
            for q in range(4):
                a = acc(1, 2 * p, 0) + 2 * q
                padd(a, a, U + 8 * p + 2 * q)
    if SKO: pass
    elif SKX:
        pl = k.lab("p5poll"); dn = k.lab("p5got")
        if not int(os.environ.get("SKE", "0")): addbf(RES)
        if int(os.environ.get("SKP", "0")): k.stamp("p5_pre")
        k("s_mov_b32 s28, 0")
        k(f"{pl}:")
        for p in range(2): k(f"buffer_load_dwordx4 v[{RM+4*p}:{RM+4*p+3}], v{vL}, s[12:15], s38 offen offset:{1024*p}{SC}")
        if int(os.environ.get("SKE", "0")):
            l1 = k.lab("p5once"); k("s_cmp_lg_u32 s28, 0"); k(f"s_cbranch_scc1 {l1}")
            if early: early()
            addbf(RES); k(f"{l1}:")
        k("s_add_u32 s28, s28, 1")
        k("s_waitcnt vmcnt(0)")
        k(f"v_max3_u32 v{vT}, v{RM}, v{RM+1}, v{RM+2}")
        k(f"v_max3_u32 v203, v{RM+3}, v{RM+4}, v{RM+5}")
        k(f"v_max3_u32 v{vT}, v{vT}, v{RM+6}, v{RM+7}")
        k(f"v_max_u32 v{vT}, v{vT}, v203")
        k(f"v_cmp_eq_u32 vcc, -1, v{vT}")
        k("s_cmp_eq_u64 vcc, 0"); k(f"s_cbranch_scc1 {dn}")
        k(f"s_cmp_lt_u32 s28, {SPIN_LIMIT >> 2}"); k(f"s_cbranch_scc1 {pl}")
        k(f"{dn}:")
        k.stamp("p5_got")
        if STAMP and int(os.environ.get("SKP", "0")):
            i_ = k.nst; k.nst += 1; k.stnames.append("p5_npoll")
            k("s_add_u32 s86, s86, s28"); k(f"v_writelane_b32 v255, s84, {i_}"); k(f"v_writelane_b32 v254, s86, {i_}")
        addbf(RM)
    else:
        addbf(RES)
    for p in range(2):
        for q in range(4):
            a = acc(1, 2 * p, 0) + 2 * q
            k(f"v_cvt_pk_bf16_f32 v{RES+4*p+q}, v{a}, v{a+1}")
            if SKR and q & 1: k(f"ds_write_b64 v{vTW4[2*p + (q >> 1)]}, v[{RES+4*p+q-1}:{RES+4*p+q}]")
        if not SKR: k(f"ds_write_b128 v{vTW[p]}, v[{RES+4*p}:{RES+4*p+3}]")
    for q in range(2): k(f"ds_read_b128 v[{RES+4*q}:{RES+4*q+3}], v{vTR2 if SKR and q else vTR} offset:{1024*q}")
    for q in range(2):
        k(f"s_waitcnt lgkmcnt({1-q})")
        k(f"buffer_store_dwordx4 v[{RES+4*q}:{RES+4*q+3}], v{vO}, s[16:19], s{33+q} offen{OUTSC}")
    k.stamp("p5_epi")

KC = 2 * math.sqrt(2 / math.pi) * math.log2(math.e)
X4 = os.environ.get("X4", "drain").split(",")
T4 = int(os.environ.get("T4", "0")); T4S = int(os.environ.get("T4S", "29")); T4P = int(os.environ.get("T4P", "2"))
def phase4(k):
    NS = 4; SLOT = SLOT4; UOFF = 7168; BOFF = BOFF4; STATS = NS * SLOT
    vA = [2, 3]; vB = [4, 5]; vD = [6, 7, 8, 9, 10]; vL16 = 11; vT = 12
    A = [16, 48]; B = [80, 96]; ACC = 112; SV = 242
    acc = lambda fi, m, j: ACC + ((fi * 2 + m) * 4 + j) * 4
    w35_setup(k, vW5, 0, vT, DF if WT5 or WDT else 0)
    if L2P:
        assert SK5 and WDT
        coords35(k, 27, 29, 28)
        k("s_and_b32 s27, s27, 3"); k("s_lshr_b32 s28, s20, 1"); k("s_lshl_b32 s28, s28, 2"); k("s_add_u32 s27, s27, s28"); k(f"s_add_u32 s27, s27, {L2T}")
        k("s_and_b32 s28, s29, 1"); k(f"s_mul_i32 s28, s28, {DF//128}"); k("s_add_u32 s27, s27, s28"); k("s_lshl_b32 s27, s27, 13")
        k("s_and_b32 s28, s20, 1"); k("s_xor_b32 s28, s28, s29"); k(f"s_mul_i32 s28, s28, {DF*128}"); k("s_add_u32 s27, s27, s28")
        k(f"s_add_u32 s46, s27, {WS_WDT}"); k("s_add_u32 s47, s46, 4096")
        k(f"v_lshlrev_b32 v252, {7 if L2P >= 3 else 6}, v1")
        if L2P == 6: k(f"s_mul_i32 s48, s20, {L2D}"); k(f"s_add_u32 s48, s48, {L2S - 4}")
        else: k("s_lshr_b32 s48, s20, 1")
    if not WDT: srd(k, 60, pWD, DF * D * 2)
    coords4(k, 23, 24, 25)
    k("s_and_b32 s25, s20, 3")
    k("s_lshr_b32 s26, s20, 2")
    k(f"v_lshlrev_b32 v{vL16}, 4, v1")
    k(f"v_lshrrev_b32 v{vT}, 4, v1")
    k(f"v_bfe_u32 v{vT+1}, v1, 2, 2")
    k(f"v_lshrrev_b32 v{vT+2}, 1, v{vT}"); k(f"v_and_b32 v{vT+3}, 1, v{vT}")
    k(f"v_lshlrev_b32 v{vT+2}, 4, v{vT+2}"); k(f"v_lshl_add_u32 v{vT+2}, v{vT+3}, 2, v{vT+2}"); k(f"v_add_u32 v{vT+2}, v{vT+2}, v{vT+1}")
    k(f"v_mul_u32_u24 v{vT+2}, 224, v{vT+2}")
    k(f"v_and_b32 v{vT+3}, 3, v1"); k(f"v_lshl_add_u32 v{vT+2}, v{vT+3}, 3, v{vT+2}")
    k("s_lshl_b32 s27, s26, 7")
    k(f"v_add_u32 v{vA[0]}, s27, v{vT+2}"); k(f"v_add_u32 v{vA[1]}, {2*SLOT}, v{vA[0]}")
    k(f"v_and_b32 v{vT+1}, 15, v1"); k(f"v_lshlrev_b32 v{vT+1}, 4, v{vT+1}"); k(f"v_lshl_add_u32 v{vT+1}, v{vT}, 9, v{vT+1}")
    k("s_lshl_b32 s27, s25, 12"); k(f"s_add_u32 s27, s27, {BOFF}")
    k(f"v_add_u32 v{vB[0]}, s27, v{vT+1}"); k(f"v_add_u32 v{vB[1]}, {2*SLOT}, v{vB[0]}")
    k("s_lshl_b32 s31, s23, 19"); k(f"s_add_u32 s31, s31, {WS_H}")
    k("s_mul_i32 s30, s24, 224"); k(f"s_add_u32 s30, s30, {NS*32*7168}")
    for r in range(ACC, ACC + 128): k(f"v_mov_b32 v{r}, 0")
    if COA & 2:
        k(f"v_lshrrev_b32 v{vT}, 5, v1"); k(f"v_lshlrev_b32 v{vT}, {13 if STL & 2 else 16}, v{vT}")
        k(f"v_and_b32 v{vT+1}, 31, v1"); k("s_lshl_b32 s27, s20, 5"); k(f"v_add_u32 v{vT+1}, s27, v{vT+1}"); k(f"v_lshl_add_u32 v{SV+8}, v{vT+1}, 2, v{vT}")
    else:
        k(f"v_and_b32 v{vT}, 1, v0"); k(f"v_lshlrev_b32 v{vT}, {13 if STL & 2 else 16}, v{vT}")
        k(f"v_lshrrev_b32 v{vT+1}, 1, v0"); k(f"v_lshl_add_u32 v{SV+8}, v{vT+1}, 2, v{vT}")
    k(f"v_lshlrev_b32 v{SV+9}, 4, v{vT+1}"); k(f"v_add_u32 v{SV+9}, {STATS}, v{SV+9}")
    k(f"s_lshl_b32 s37, s23, {14 if STL & 2 else 10}"); k(f"s_add_u32 s37, s37, {WS_ST}")
    k("s_bitcmp1_b32 s25, 1")
    k(f"s_cselect_b32 s4, s{pWU}, s{pWG}"); k(f"s_cselect_b32 s5, s{pWU+1}, s{pWG+1}")
    srd(k, 8, 4, D * DF * 2)
    lsb = k.lab("p4setB"); lsd = k.lab("p4setD")
    k("s_cmp_eq_u32 s26, 0")
    k(f"s_cbranch_scc0 {lsb}")
    for n in range(3):
        k("s_mul_i32 s27, s20, 3"); k(f"s_add_u32 s27, s27, {n}")
        k("s_lshr_b32 s28, s27, 1"); k("s_lshl_b32 s28, s28, 16"); k("s_and_b32 s29, s27, 1"); k("s_lshl_b32 s29, s29, 10"); k("s_add_u32 s28, s28, s29")
        k(f"v_add_u32 v{vD[n]}, s28, v{vL16}")
    k(f"s_mul_i32 s32, s20, 3072"); k(f"s_add_u32 s32, s32, {BOFF}")
    k(f"s_branch {lsd}")
    k(f"{lsb}:")
    k("s_and_b32 s27, s25, 1"); k("s_lshl_b32 s27, s27, 8")
    for q in range(4):
        k(f"v_add_u32 v{vT+3}, {64*q}, v1"); k(f"v_add_u32 v{vT+3}, s27, v{vT+3}")
        w4_piece_lane(k, vD[q], vT + 3, vT)
    k("s_add_u32 s27, s25, 12")
    k("s_lshr_b32 s28, s27, 1"); k("s_lshl_b32 s28, s28, 16"); k("s_and_b32 s29, s27, 1"); k("s_lshl_b32 s29, s29, 10"); k("s_add_u32 s28, s28, s29")
    k(f"v_add_u32 v{vD[4]}, s28, v{vL16}")
    k("s_lshl_b32 s33, s27, 10"); k(f"s_add_u32 s33, s33, {BOFF}")
    k("s_lshr_b32 s32, s25, 1"); k(f"s_mul_i32 s32, s32, {UOFF}"); k("s_and_b32 s27, s25, 1"); k("s_lshl_b32 s27, s27, 12"); k("s_add_u32 s32, s32, s27")
    k(f"{lsd}:")
    k("s_lshl_b32 s27, s23, 3"); k("s_lshl_b32 s28, s25, 1"); k("s_add_u32 s27, s27, s28"); k("s_mul_i32 s27, s27, 448")
    k("s_mul_i32 s28, s24, 14"); k("s_add_u32 s27, s27, s28"); k("s_lshl_b32 s28, s26, 3"); k("s_add_u32 s27, s27, s28")
    k("s_lshl_b32 s27, s27, 9"); k(f"s_add_u32 s34, s27, {WS_HM}"); k(f"s_add_u32 s35, s34, {448*512}")
    if WDT:
        k(f"v_add_u32 v{vT+1}, {C3 - 1}, v1"); k(f"v_lshlrev_b32 v{vT+1}, 7, v{vT+1}")
        k("s_lshl_b32 s27, s23, 7"); k(f"s_add_u32 s27, s27, {C4*128}")
        k("s_nop 0")
        k(f"v_writelane_b32 v{vT+1}, s27, 0")
        k(f"s_mov_b32 s27, {WS_CNT}")
        wait_multi(k, 27, 32, 9, vt=(vT, vT + 1))
    else:
        k("s_lshl_b32 s27, s23, 7"); k(f"s_add_u32 s27, s27, {WS_CNT + C4*128}")
        wait(k, 27, 32, vt=(vT, vT + 1), pr=A[1])
    k.stamp("p4_wait")
    def dma_act(var, slot):
        if var == "A":
            return [[f"s_add_u32 m0, s32, {slot*SLOT + n*1024}", f"buffer_load_dwordx4 v{vD[n]}, s[12:15], s31 offen{SC} lds"] for n in range(3)]
        return [[f"s_add_u32 m0, s33, {slot*SLOT}", f"buffer_load_dwordx4 v{vD[4]}, s[12:15], s31 offen{SC} lds"]]
    def dma_w(var, slot):
        if var == "A": return []
        return [[f"s_add_u32 m0, s32, {slot*SLOT + q*1024}", f"buffer_load_dwordx4 v{vD[q]}, s[8:11], s30 offen lds"] for q in range(4 if var == "B0" else 3)]
    advA = "s_add_u32 s31, s31, 2048"; advW = f"s_add_u32 s30, s30, {32*7168}"
    def stats_calc():
        o = []
        for i in (0, 2, 4, 6): o.append(f"v_add_f32 v{SV+i}, v{SV+i}, v{SV+i+1}")
        o += [f"v_add_f32 v{SV}, v{SV}, v{SV+2}", f"v_add_f32 v{SV+4}, v{SV+4}, v{SV+6}", f"v_add_f32 v{SV}, v{SV}, v{SV+4}"]
        if COA & 2:
            o += [f"v_mov_b32 v{SV+1}, v{SV}", "s_nop 1", f"v_permlane32_swap_b32 v{SV}, v{SV+1}", f"v_add_f32 v{SV}, v{SV}, v{SV+1}"]
        else:
            o += ["s_nop 1", f"v_add_f32_dpp v{SV}, v{SV}, v{SV} quad_perm:[1,0,3,2] row_mask:0xf bank_mask:0xf"]
        o += [f"v_mov_b32 v{SV+3}, 0x3a800000", f"v_mov_b32 v{SV+5}, 0x3727c5ac",
              f"v_fma_f32 v{SV+2}, v{SV}, v{SV+3}, v{SV+5}",
              f"v_rsq_f32 v{SV+4}, v{SV+2}",
              f"v_mov_b32 v{SV+3}, 0",
              f"v_mul_f32 v{SV+1}, {f2h(-KC)}, v{SV+4}",
              f"v_mul_f32 v{SV+5}, v{SV+4}, v{SV+4}",
              f"v_mul_f32 v{SV}, {f2h(0.044715)}, v{SV+1}",
              f"v_mul_f32 v{SV}, v{SV}, v{SV+5}",
              f"ds_write_b128 v{SV+9}, v[{SV}:{SV+3}]"]
        return o
    st_idx = {}
    def vstamp(nm):
        if nm in st_idx: k.prio(nm); k.stamp_at(st_idx[nm])
        else:
            st_idx[nm] = k.nst; k.stamp(nm)
    ljoin = k.lab("p4join")
    def body(var):
        nf = 4 if var == "A" else 3
        first = (var != "A") if T4 == 1 else (var == "A")
        vm = VM()
        for s in range(NS):
            for d in dma_act(var, s):
                for l in d: k(l)
                vm.issue(("D", s))
            k(advA)
        k("s_mov_b32 s28, s37")
        for i in range(8):
            if STL & 2:
                k(f"buffer_load_dword v{SV+i}, v{SV+8}, s[12:15], s28 offen offset:{1024*(i&3)}{SC}"); vm.issue("ST")
                if i == 3: k("s_add_u32 s28, s28, 4096")
                continue
            k(f"buffer_load_dword v{SV+i}, v{SV+8}, s[12:15], s28 offen{SC}"); vm.issue("ST")
            if i < 7: k("s_add_u32 s28, s28, 8192")
        def reads(buf, slot):
            base = slot >> 1; so = (slot & 1) * SLOT
            o = []
            def rA(fi, m):
                i = fi * 2 + m
                return [f"ds_read_b64_tr_b16 v[{A[buf]+4*i+2*t}:{A[buf]+4*i+2*t+1}], v{vA[base]} offset:{so + m*UOFF + t*8*224 + fi*32}" for t in range(2)]
            o += rA(0, 0)
            for j in range(4): o.append(f"ds_read_b128 v[{B[buf]+4*j}:{B[buf]+4*j+3}], v{vB[base]} offset:{so + (j>>1)*2048 + (j&1)*256}")
            for i in range(1, 2 * nf): o += rA(i >> 1, i & 1)
            return o
        k(f"s_waitcnt vmcnt({vm.cnt({('D', 0)})})")
        k("s_barrier")
        vstamp("p4_go")
        for l in reads(0, 0): k(l)
        NT = 32
        texts = []
        pf5 = {3: {28: [0], 29: [1, 2]}, 1: {28: [0]}, 0: {}}[NPF5]
        for per in range(NT // NS):
            o = []
            for t in range(per * NS, (per + 1) * NS):
                slot = t % NS; cur = t & 1; nxt = cur ^ 1
                rd = []; dm = []; ex = []
                if T4 and t > T4S and t + 1 < NT:
                    o.append("s_waitcnt lgkmcnt(0)")
                    rd = reads(nxt, (t + 1) % NS)
                elif t + 1 < NT:
                    need = {("D", t + 1)}
                    if T4 and t == T4S: need |= {("D", x) for x in range(t + 1, NT)}
                    if t == 3: need.add("ST")
                    o.append(f"s_waitcnt vmcnt({vm.cnt(need)}) lgkmcnt(0)")
                    o.append("s_barrier")
                    if T4 and t == T4S and first: o.append(f"s_setprio {T4P}")
                    rd = reads(nxt, (t + 1) % NS)
                else:
                    o.append("s_waitcnt lgkmcnt(0)")
                tail = []
                if t + NS < NT:
                    dm = dma_w(var, slot) + dma_act(var, slot)
                    vm.issue(("D", t + NS), len(dm))
                    tail = [advA, advW]
                for tl in pf5.get(t, []):
                    if tl < NS5 and not T4:
                        dm += [list(x) for x in w35_dma(vW5, SW5, tl)]
                        dm[-1].append(W5ADV)
                        vm.issue("PF5", 2)
                    elif tl < NS5 and first:
                        tail = tail + [W5ADV]
                    elif tl < NS5:
                        assert WDT or WT5
                        sg = "add" if var == "A" else "sub"
                        own = [list(x) for x in w35_dma(vW5, SW5, tl)]
                        oth = [[x[0].replace("s51", "s7"), x[1].replace("s50", "s6")] for x in w35_dma(vW5, SW5, tl)]
                        oth[0] = [f"s_{sg}_u32 s6, s50, 8192", f"s_{sg}_u32 s7, s51, 8192"] + oth[0]
                        oth[0] = [oth[0][:3], oth[0][3]]
                        oth[-1].append(W5ADV)
                        dm += own + oth
                        vm.issue("PF5", 4)
                if t == 3: ex = stats_calc()
                if L2P in (1, 4) and t == L2S:
                    nl = 2 if L2P == 1 else 1
                    ex = [f"buffer_load_dword v253, v252, s[12:15], s{46+h} offen{SC}" for h in range(nl)]; vm.issue("L2P", nl)
                if L2P in (2, 3) and L2S <= t < L2S + 4:
                    nl = 2 if L2P == 2 else 1
                    lsk = k.lab("nol2p")
                    ex = ["\n".join([f"s_cmp_lg_u32 s48, {t - L2S}", f"s_cbranch_scc1 {lsk}"] + [f"buffer_load_dword v253, v252, s[12:15], s{46+h} offen{SC}" for h in range(nl)] + [f"{lsk}:"])]
                    vm.issue("L2P", nl, certain=False)
                if t == JT4 and JIT & 8:
                    ex = jit("L_p4tail", 27, 13); vm.issue("CP")
                mf = []
                for i in range(2 * nf):
                    for j in range(4):
                        a = acc(i >> 1, i & 1, j)
                        mf.append(f"v_mfma_f32_16x16x32_bf16 v[{a}:{a+3}], v[{A[cur]+4*i}:{A[cur]+4*i+3}], v[{B[cur]+4*j}:{B[cur]+4*j+3}], v[{a}:{a+3}]")
                n = len(mf)
                gaps = [[] for _ in mf]
                for q, r in enumerate(rd): gaps[q].append(r)
                if dm:
                    stp = (n - 3) // len(dm)
                    for q, d in enumerate(dm):
                        g = 1 + stp * q
                        if isinstance(d[0], list): gaps[g] += d[0]
                        else: gaps[g].append(d[0])
                        gaps[g + 1] += d[1:]
                    gaps[n - 1] += tail
                elif tail: gaps[n - 1] += tail
                for q, l in enumerate(ex): gaps[min(4 + q, n - 1)].append(l)
                if L2P == 6 and 1 <= per < NT // NS - 1:
                    lsk = f"L_nol2p_{var}_{t % NS}"
                    gaps[L2G[0]] += [f"s_lshl2_add_u32 s49, s36, {t % NS}", "s_cmp_lg_u32 s49, s48", f"s_cbranch_scc1 {lsk}", f"buffer_load_dword v253, v252, s[12:15], s46 offen{SC}", f"{lsk}:"]
                    vm.issue("L2P", 1, certain=False)
                if L2P == 5:
                    assert NPF5 == 3 and not T4
                    for (g, cls) in {29: [(n - 1, 0)], 30: [(L2G[0], 1), (n - 1 - L2G[1], 2)], 31: [(L2G[2], 3)]}.get(t, []):
                        lsk = k.lab("nol2p")
                        gaps[g] += [f"s_cmp_lg_u32 s48, {cls}", f"s_cbranch_scc1 {lsk}", f"buffer_load_dword v253, v252, s[12:15], s46 offen{SC}", f"{lsk}:"]
                        vm.issue("L2P", 1, certain=False)
                for g, mm in enumerate(mf):
                    o.append(mm); o += gaps[g]
            texts.append(o)
        periods(k, f"p4{var}", texts, 36)
        if var == "A" and JIT & 8: k("L_p4tail:")
        vstamp("p4_loop")
        ST = 16; TT = 32
        k(f"v_and_b32 v{vT}, 15, v1"); k(f"v_lshlrev_b32 v{vT}, 4, v{vT}")
        k("s_lshl_b32 s27, s25, 10"); k(f"s_add_u32 s27, s27, {STATS}"); k(f"v_add_u32 v{vT}, s27, v{vT}")
        for j in range(4): k(f"ds_read_b128 v[{ST+4*j}:{ST+4*j+3}], v{vT} offset:{256*j}")
        nd = 1 if L2P == 5 else 0
        k(f"s_waitcnt vmcnt({nd}) lgkmcnt(0)")
        if "drain" in X4: k(f"s_waitcnt vmcnt({nd})"); k("s_barrier")
        if "drain0" in X4: k("s_waitcnt vmcnt(0)")
        if "bar" in X4: k("s_barrier")
        if "adrain" in X4 and var == "A": k("s_waitcnt vmcnt(0)")
        if "bdrain" in X4 and var != "A": k("s_waitcnt vmcnt(0)")
        nopk = ("anopk" in X4 and var == "A") or ("bnopk" in X4 and var != "A")
        def pk(op, d, a, b, c=None, sel=None):
            if not nopk:
                x = f"v_pk_{op}_f32 v[{d}:{d+1}], v[{a}:{a+1}], v[{b}:{b+1}]"
                if c is not None: x += f", v[{c}:{c+1}] " + sel
                k(x); return
            for h in range(2):
                if c is None: k(f"v_mul_f32 v{d+h}, v{a+h}, v{b+h}")
                elif sel.startswith("op_sel:[0,0,1]"): k(f"v_fma_f32 v{d+h}, v{a+h}, v{b}, v{b+1}")
                else: k(f"v_fma_f32 v{d+h}, v{a+h}, v{b}, v{b}")
        for fi in range(nf):
            for p in range(2):
                gi = fi * 2 + p
                PK = TT + 16 + 4 * (gi & 3)
                T = TT + 8 * (gi & 1)
                prs = [(2 * p + jj, h) for jj in range(2) for h in range(2)]
                P = lambda r: f"v[{r}:{r+1}]"
                for q, (j, h) in enumerate(prs):
                    g = acc(fi, 0, j) + 2 * h
                    pk("mul", T+2*q, g, g)
                for q, (j, h) in enumerate(prs):
                    c = ST + 4 * j
                    pk("fma", T+2*q, T+2*q, c, c, "op_sel:[0,0,1] op_sel_hi:[1,0,1]")
                for q, (j, h) in enumerate(prs):
                    g = acc(fi, 0, j) + 2 * h
                    pk("mul", T+2*q, T+2*q, g)
                for q, (j, h) in enumerate(prs):
                    g = acc(fi, 0, j) + 2 * h; u = acc(fi, 1, j) + 2 * h
                    k(f"v_exp_f32 v{T+2*q}, v{T+2*q}"); k(f"v_exp_f32 v{T+2*q+1}, v{T+2*q+1}")
                    pk("mul", u, u, g)
                for q, (j, h) in enumerate(prs):
                    c = ST + 4 * j + 2
                    pk("fma", T+2*q, T+2*q, c, c, "op_sel:[0,0,0] op_sel_hi:[1,0,0]")
                for q, (j, h) in enumerate(prs):
                    k(f"v_rcp_f32 v{T+2*q}, v{T+2*q}"); k(f"v_rcp_f32 v{T+2*q+1}, v{T+2*q+1}")
                for q, (j, h) in enumerate(prs):
                    u = acc(fi, 1, j) + 2 * h
                    pk("mul", u, u, T+2*q)
                for q, (j, h) in enumerate(prs):
                    u = acc(fi, 1, j) + 2 * h
                    k(f"v_cvt_pk_bf16_f32 v{PK+q}, v{u}, v{u+1}")
                k(f"v_permlane16_swap_b32 v{PK}, v{PK+2}")
                k(f"v_permlane16_swap_b32 v{PK+1}, v{PK+3}")
                k(f"buffer_store_dwordx4 v[{PK}:{PK+3}], v{vL16}, s[12:15], s{34+p} offen offset:{1024*fi}{SC}")
        if T4 and first: k("s_setprio 0")
        vstamp("p4_epi")
        if var != "B1": k(f"s_branch {ljoin}")
    lB = k.lab("p4B"); lB1 = k.lab("p4B1")
    k("s_cmp_eq_u32 s26, 0")
    k(f"s_cbranch_scc0 {lB}")
    body("A")
    k(f"{lB}:")
    k("s_bitcmp1_b32 s25, 0")
    k(f"s_cbranch_scc1 {lB1}")
    body("B0")
    k(f"{lB1}:")
    body("B1")
    k(f"{ljoin}:")
    k("s_lshl_b32 s27, s23, 7"); k(f"s_add_u32 s27, s27, {WS_CNT + C5*128}")
    signal(k, 27, vt=(vT, vT + 1))
    k.stamp("p4_sig")

CPF = int(os.environ.get("CPF", "1")); CPFW = int(os.environ.get("CPFW", "0"))
def mk():
    k = G(NAME, nvgpr=256, accum=256, total=256)
    lend = "L_end"
    k("s_cmp_ge_u32 s2, 256")
    k(f"s_cbranch_scc1 {lend}")
    if int(os.environ.get("PERM", "0")):
        k("s_and_b32 s3, s2, 31"); k("s_lshl_b32 s3, s3, 3"); k("s_lshr_b32 s2, s2, 5"); k("s_or_b32 s2, s2, s3")
    if os.environ.get("SCR"):
        k("s_and_b32 s3, s2, 7"); k("s_lshl_b32 s3, s3, 5"); k("s_lshr_b32 s2, s2, 3"); k("s_or_b32 s2, s2, s3")
    k("s_load_dwordx16 s[64:79], s[0:1], 0")
    k("s_load_dwordx4 s[80:83], s[0:1], 64")
    k("v_and_b32 v1, 63, v0")
    k("v_lshrrev_b32 v2, 6, v0")
    k("s_nop 0")
    k("v_readfirstlane_b32 s20, v2")
    k.stamp("start")
    if CPF:
        k("s_getpc_b64 s[44:45]")
        k("L_cpf_pc:")
        k("s_mov_b32 s46, L_end-L_cpf_pc")
        k("s_mov_b32 s47, 0x20000")
        if CPF == 1:
            lc = k.lab("nocpf")
            k("s_lshr_b32 s3, s2, 3"); k("s_lshl_b32 s3, s3, 11")
            k(f"s_cmp_lg_u32 s20, {CPFW}"); k(f"s_cbranch_scc1 {lc}")
            k("v_lshlrev_b32 v210, 5, v1"); k("v_add_u32 v210, s3, v210")
            k("buffer_load_dword v211, v210, s[44:47], 0 offen")
            k(f"{lc}:")
        elif CPF == 2:
            k("v_lshlrev_b32 v210, 6, v0"); k("s_mov_b32 s3, 32768")
            k("buffer_load_dword v211, v210, s[44:47], 0 offen")
            k("buffer_load_dword v212, v210, s[44:47], s3 offen")
        elif CPF == 3:
            k("s_lshr_b32 s3, s2, 3"); k("s_and_b32 s3, s3, 3"); k("s_lshl_b32 s3, s3, 14")
            k("v_lshlrev_b32 v210, 5, v0")
            k("buffer_load_dword v211, v210, s[44:47], s3 offen")
    ldone = "L_done"
    phs = [phase1, phase2, phase3k if SK3 else lambda k: phase35(k, "wo"), phase4, phase5k if SK5 else lambda k: phase35(k, "down")]
    for i, ph in enumerate(phs[:UPTO]): ph(k)
    if os.environ.get("ENDW"): k("s_waitcnt vmcnt(0)")
    k.stamp("end")
    k.stamp_out()
    k("s_waitcnt vmcnt(0)")
    k(f"{lend}:")
    k("s_endpgm")
    return k, ("mk", 256, 512, LDS_BYTES)

if __name__ == "__main__":
    import sys
    sys.path.insert(0, "gen")
    from build import header
    k, _ = mk()
    o = header()
    o.append(f"; @launch grid=(256,1,1) block=(512,1,1) lds={LDS_BYTES}")
    if STAMP: o.append("; stamps: " + " ".join(k.stnames))
    o.append('.amdgcn_target "amdgcn-amd-amdhsa--gfx950"')
    o.append('.text')
    o.append(k.text())
    o.append('.section .rodata,"a"')
    o.append(k.desc())
    open(sys.argv[1], "w").write("\n".join(o) + "\n")
    print("wrote", sys.argv[1], "instrs", sum(1 for l in k.lines if l.startswith("  ")))
```

```python
from asmlib import K, srd
from common import *
import os, struct, math
STAMP = bool(int(os.environ.get("STAMP", "0")))
UPTO = int(os.environ.get("UPTO", "5"))
NAME = "sequential_preLN__mha_block__glu_gated_geglu__prompt_kernel"
WS_TS = 0x2800000
SC = " sc1"
LDS_BYTES = 163840
pX, pWQKV, pWO, pBX, pWG, pWU, pWD, pOUT, pDBG, pWS = [64 + 2 * i for i in range(10)]
C2, C3, C4, C5 = 0, 16, 24, 32
SPIN_LIMIT = 0x40000
RAMP = int(os.environ.get("RAMP", "3"))
QKS = int(os.environ.get("QKS", "0"))
P1M = int(os.environ.get("P1M", "0"))
DL1 = int(os.environ.get("DL1", "0"))
DLS = int(os.environ.get("DLS", "3"))
assert not DL1 or (P1M and not QKS and not int(os.environ.get("HOIST", "0")))
DLT = int(os.environ.get("DLT", "12"))
SK3 = int(os.environ.get("SK3", "0"))
R3K = int(os.environ.get("R3K", "5")); S3O = 3; S3T = int(os.environ.get("S3T", "1"))
WS_XI3 = 0x4000000; WS_XM3 = 0x4400000
C2F = 48; WS_XID1 = 0x3C80000; FLAGOFF = 2112
XCCR = "hwreg(HW_REG_XCC_ID, 0, 4)"
PFW = int(os.environ.get("PFW", "1")); PFI = int(os.environ.get("PFI", "0"))
JIT = int(os.environ.get("JIT", "0"))
def jit(label, sreg, vdst):
    return [f"s_mov_b32 s{sreg}, {label}-L_cb", f"buffer_load_dword v{vdst}, v252, s[80:83], s{sreg} offen"]
def f2h(x): return hex(struct.unpack('<I', struct.pack('<f', x))[0])

class G(K):
    def __init__(s, *a, **kw):
        super().__init__(*a, **kw); s.nl = 0; s.nst = 0; s.stnames = []
    def lab(s, base):
        s.nl += 1; return f"L_{base}_{s.nl}"
    def prio(s, nm):
        ph = int(nm[1]) if nm[0] == "p" and nm[1].isdigit() else 0
        if not (PRIO >> ph) & 1: return
        if nm.endswith("_go"):
            l = s.lab("prio")
            s("s_cselect_b32 s96, 1, 0"); s("s_cmp_ge_u32 s20, 4"); s(f"s_cbranch_scc{PRH} {l}"); s("s_setprio 1"); s(f"{l}:"); s("s_cmp_lg_u32 s96, 0")
        elif nm.endswith("_loop"): s("s_setprio 0")
    def stamp(s, nm):
        s.prio(nm)
        if not STAMP: return
        i = s.nst; s.nst += 1; s.stnames.append(nm)
        s("s_memrealtime s[84:85]"); s("s_memtime s[86:87]"); s("s_waitcnt lgkmcnt(0)")
        s(f"v_writelane_b32 v255, s84, {i}"); s(f"v_writelane_b32 v254, s86, {i}")
    def stamp_at(s, i):
        if not STAMP: return
        s("s_memrealtime s[84:85]"); s("s_memtime s[86:87]"); s("s_waitcnt lgkmcnt(0)")
        s(f"v_writelane_b32 v255, s84, {i}"); s(f"v_writelane_b32 v254, s86, {i}")
    def stamp_out(s):
        if not STAMP: return
        s("s_lshl_b32 s84, s2, 3"); s("s_add_u32 s84, s84, s20"); s("s_lshl_b32 s84, s84, 9")
        s(f"s_add_u32 s84, s84, {WS_TS}")
        s("v_lshlrev_b32 v253, 2, v1")
        s("buffer_store_dword v255, v253, s[12:15], s84 offen")
        s("buffer_store_dword v254, v253, s[12:15], s84 offen offset:256")
        s("s_waitcnt vmcnt(0)")

PRIO = int(os.environ.get("PRIO", "0")); PRH = int(os.environ.get("PRH", "0"))
class VM:
    def __init__(s): s.q = []; s.c = []
    def issue(s, tag, n=1, certain=True): s.q += [tag] * n; s.c += [certain] * n
    def cnt(s, tags):
        last = -1
        for i, t in enumerate(s.q):
            if t in tags: last = i
        return sum(1 for c in s.c[last + 1:] if c) if last >= 0 else None

def periods(k, name, texts, cnt_sgpr):
    i = 0; n = len(texts)
    while i < n:
        j = i
        while j + 1 < n and texts[j + 1] == texts[i]: j += 1
        rep = j - i + 1
        if rep > 1:
            l = k.lab(name)
            k(f"s_mov_b32 s{cnt_sgpr}, 0")
            k(f"{l}:")
            for x in texts[i]: k(x)
            k(f"s_add_u32 s{cnt_sgpr}, s{cnt_sgpr}, 1")
            k(f"s_cmp_lt_u32 s{cnt_sgpr}, {rep}")
            k(f"s_cbranch_scc1 {l}")
        else:
            for x in texts[i]: k(x)
        i = j + 1

PROG = int(os.environ.get("PROG", "0"))
def signal(k, sline, vt=(14, 15), val="1"):
    k("s_waitcnt vmcnt(0)")
    k("s_barrier")
    l = k.lab("nosig")
    k("s_cmp_lg_u32 s20, 0"); k(f"s_cbranch_scc1 {l}")
    k("s_mov_b64 exec, 1")
    k(f"v_mov_b32 v{vt[0]}, {val}"); k(f"v_mov_b32 v{vt[1]}, 0")
    k(f"buffer_atomic_add v{vt[0]}, v{vt[1]}, s[12:15], s{sline} offen sc1")
    k("s_mov_b64 exec, -1")
    k(f"{l}:")

PD = int(os.environ.get("PD", "1")); PSL = int(os.environ.get("PSL", "6"))
def wait(k, sline, target, vt=(14, 15), pr=None, fld=None):
    done = k.lab("wdone"); spin = k.lab("wspin")
    k("s_cmp_lg_u32 s20, 0"); k(f"s_cbranch_scc1 {done}")
    k(f"v_mov_b32 v{vt[1]}, 0")
    k("s_mov_b32 s28, 0")
    if PD == 1 or pr is None:
        k(f"{spin}:")
        k(f"buffer_load_dword v{vt[0]}, v{vt[1]}, s[12:15], s{sline} offen sc1")
        k("s_add_u32 s28, s28, 1")
        k("s_waitcnt vmcnt(0)")
        k(f"v_readfirstlane_b32 s29, v{vt[0]}")
        if fld is not None: k(f"s_and_b32 s29, s29, s{fld}")
        k(f"s_cmp_eq_u32 s29, {target}"); k(f"s_cbranch_scc1 {done}")
        k(f"s_cmp_gt_u32 s28, {SPIN_LIMIT}"); k(f"s_cbranch_scc1 {done}")
        k("s_sleep 1")
        k(f"s_branch {spin}")
    else:
        ld = lambda i: k(f"buffer_load_dword v{pr+i}, v{vt[1]}, s[12:15], s{sline} offen sc1")
        for i in range(PD):
            ld(i)
            if i < PD - 1: k(f"s_sleep {PSL}")
        k(f"{spin}:")
        for i in range(PD):
            k(f"s_waitcnt vmcnt({PD-1})")
            k(f"v_readfirstlane_b32 s29, v{pr+i}")
            k(f"s_cmp_eq_u32 s29, {target}"); k(f"s_cbranch_scc1 {done}")
            ld(i)
        k("s_add_u32 s28, s28, 1")
        k(f"s_cmp_gt_u32 s28, {SPIN_LIMIT}"); k(f"s_cbranch_scc0 {spin}")
    k(f"{done}:")
    k("s_barrier")

def wait_multi(k, sline, target, n, vt):
    done = k.lab("wdone"); spin = k.lab("wspin"); dx = k.lab("wdx")
    k("s_cmp_lg_u32 s20, 0"); k(f"s_cbranch_scc1 {done}")
    k(f"s_mov_b64 exec, {hex((1 << n) - 1)}")
    k("s_mov_b32 s28, 0")
    k(f"{spin}:")
    k(f"buffer_load_dword v{vt[0]}, v{vt[1]}, s[12:15], s{sline} offen sc1")
    k("s_add_u32 s28, s28, 1")
    k("s_waitcnt vmcnt(0)")
    k(f"v_cmp_ne_u32 vcc, {target}, v{vt[0]}")
    k("s_cmp_eq_u64 vcc, 0"); k(f"s_cbranch_scc1 {dx}")
    k(f"s_cmp_gt_u32 s28, {SPIN_LIMIT}"); k(f"s_cbranch_scc1 {dx}")
    k("s_sleep 1")
    k(f"s_branch {spin}")
    k(f"{dx}:")
    k("s_mov_b64 exec, -1")
    k(f"{done}:")
    k("s_barrier")

def wdma_lane(k, vdst, rowbytes, t):
    k(f"v_lshrrev_b32 v{t}, 3, v1"); k(f"v_and_b32 v{t+1}, 7, v1")
    k(f"v_lshrrev_b32 v{t+2}, 2, v{t}"); k(f"v_and_b32 v{t+3}, 3, v{t}")
    k(f"v_lshl_add_u32 v{t+2}, v{t+2}, 3, v{t+3}")
    k(f"v_mul_u32_u24 v{t+2}, {rowbytes}, v{t+2}")
    k(f"v_lshrrev_b32 v{t+3}, 1, v{t+1}"); k(f"v_lshrrev_b32 v{t}, 1, v{t}")
    k(f"v_xor_b32 v{t+3}, v{t+3}, v{t}")
    k(f"v_and_b32 v{t+1}, 1, v{t+1}")
    k(f"v_lshl_add_u32 v{t+3}, v{t+3}, 1, v{t+1}")
    k(f"v_lshl_add_u32 v{vdst}, v{t+3}, 4, v{t+2}")

STL = int(os.environ.get("STL", "0"))
ESIG = int(os.environ.get("ESIG", "0"))
COA = int(os.environ.get("COA", "15"))
HOIST = int(os.environ.get("HOIST", "0")); TST = int(os.environ.get("TST", "0"))
def hoisted_tail(k, o, step, vm, R):
    PL, RMR, ONE, vP, vZ, vL16, SQ, CQ, QS, VS, vVO = [R[x] for x in ("PL", "RMR", "ONE", "vP", "vZ", "vL16", "SQ", "CQ", "QS", "VS", "vVO")]
    r0, r1 = 198, 199
    vSt = 200; vCs = 201; vTok = 203; vG = 202
    v17, v18, v19 = 209, 212, 204
    v20 = [205, 206, 207, 208]; v23 = [v17, 213, 214, 215]
    tA, tB = 216, 218
    ad = []
    ad += [f"v_lshrrev_b32 v{vSt}, 2, v0", f"v_lshlrev_b32 v{vSt}, 2, v{vSt}"]
    ad += [f"v_min_u32 v{vCs}, 191, v0", f"v_lshlrev_b32 v{vCs}, 2, v{vCs}"]
    ad += [f"v_and_b32 v{vTok}, 15, v1", "s_lshl_b32 s27, s25, 8", "s_lshl_b32 s28, s26, 6", "s_add_u32 s28, s28, s27",
           f"v_lshlrev_b32 v{tA}, 2, v{vTok}", f"v_add_u32 v{v17}, s28, v{tA}", f"v_lshrrev_b32 v{vG}, 4, v1", f"v_lshlrev_b32 v{v19}, 4, v{vG}",
           f"v_add_u32 v{v20[0]}, s28, v{v19}", "s_lshl_b32 s29, s26, 6", "s_add_u32 s29, s29, 1024",
           f"v_add_u32 v{v19}, s29, v{v19}", f"v_add_u32 v{v18}, s29, v{tA}"]
    for jj in range(1, 4):
        ad += [f"v_xor_b32 v{v20[jj]}, {jj<<6}, v{v20[0]}", f"v_xor_b32 v{v23[jj]}, {jj<<6}, v{v17}"]
    ad += ["s_lshl_b32 s27, s23, 2", "s_lshl_b32 s28, s25, 1", "s_add_u32 s27, s27, s28", "s_lshl_b32 s27, s27, 16",
           "s_lshl_b32 s28, s24, 12", "s_add_u32 s27, s27, s28", "s_lshl_b32 s28, s26, 10", "s_add_u32 s27, s27, s28",
           "s_lshr_b32 s42, s26, 1", "s_lshl_b32 s28, s42, 16", "s_add_u32 s35, s27, s28", "s_xor_b32 s28, s28, 0x10000", "s_add_u32 s37, s27, s28",
           f"s_add_u32 s36, s35, {WS_K}", f"s_add_u32 s38, s37, {WS_K}", f"s_add_u32 s35, s35, {WS_Q}", f"s_add_u32 s37, s37, {WS_Q}",
           "s_lshl_b32 s27, s24, 1", "s_add_u32 s27, s27, s42", "s_lshl_b32 s27, s27, 7",
           "s_lshl_b32 s28, s23, 3", "s_add_u32 s27, s27, s28", "s_lshl_b32 s28, s25, 2", "s_add_u32 s27, s27, s28", "s_lshl_b32 s27, s27, 10",
           "s_and_b32 s43, s26, 1", "s_lshl_b32 s28, s43, 8", "s_add_u32 s27, s27, s28", f"s_add_u32 s27, s27, {WS_VT}",
           "s_lshl_b32 s28, s42, 11", "s_add_u32 s39, s27, s28", "s_xor_b32 s28, s28, 2048", "s_add_u32 s40, s27, s28",
           f"v_lshrrev_b32 v{tA}, 5, v1", f"v_xor_b32 v{tA}, s43, v{tA}", f"v_lshlrev_b32 v{tA}, 10, v{tA}",
           f"v_bfe_u32 v{tB}, v1, 4, 1", f"v_lshl_add_u32 v{tA}, v{tB}, 9, v{tA}", f"v_lshl_add_u32 v{vVO}, v{vTok}, 4, v{tA}",
           "s_lshl_b32 s28, s43, 8", f"v_xor_b32 v{vL16}, s28, v{vL16}", "s_mov_b32 s44, 0x3e8293ee"]
    assert not QKS
    h = len(ad) // 2
    HV = int(os.environ.get("HV", "8")); HP = int(os.environ.get("HP", "11"))
    assert 8 <= HV < HP <= 13
    def chk(o_):
        rdy = k.lab("p1rdy"); spin = k.lab("p1spin")
        k(f"s_waitcnt vmcnt({vm.cnt({'VP', 'RMR'})})")
        k(f"v_cmp_eq_u32 vcc, 128, v{vP}")
        k("s_cmp_eq_u64 vcc, -1")
        k(f"s_cbranch_scc1 {rdy}")
        k("s_mov_b32 s28, 0")
        k(f"{spin}:")
        k("s_add_u32 s28, s28, 1")
        k(f"s_cmp_gt_u32 s28, {SPIN_LIMIT}")
        k(f"s_cbranch_scc1 {rdy}")
        k("s_sleep 2")
        k(f"buffer_load_dword v{vP}, v196, s[60:63], 0 offen sc1")
        k("s_waitcnt vmcnt(0)")
        k(f"v_cmp_eq_u32 vcc, 128, v{vP}")
        k("s_cmp_eq_u64 vcc, -1")
        k(f"s_cbranch_scc0 {spin}")
        k(f"{rdy}:")
    ld = []
    ld.append([f"v_and_b32 v{r0}, 3, v0", f"v_lshlrev_b32 v{r0}, 16, v{r0}", f"v_lshrrev_b32 v{r1}, 2, v0", f"v_lshl_add_u32 v{tB}, v{r1}, 3, v{r0}",
               "s_lshl_b32 s27, s23, 10", f"s_add_u32 s27, s27, {WS_ST1}"])
    for i in range(4):
        ld.append([f"buffer_load_dwordx2 v[{PL+2*i}:{PL+2*i+1}], v{tB}, s[12:15], s27 offen{SC}"] + (["s_add_u32 s27, s27, 16384"] if i < 3 else []))
    ld.append([f"s_mul_i32 s27, s24, {16*768}", f"s_add_u32 s27, s27, {WS_CS1}"])
    for i in range(16):
        ld.append([f"buffer_load_dword v{PL+8+i}, v{vCs}, s[12:15], s27 offen offset:{(i % 4) * 768}{SC}"] + ([f"s_add_u32 s27, s27, {4*768}"] if i % 4 == 3 and i < 15 else []))
    adq = [ad[:h], ad[h:]]
    for t in range(8, 14):
        if t == HV:
            k(f"buffer_load_dword v{vP}, v196, s[60:63], 0 offen sc1"); vm.issue("VP")
            k("s_lshl_b32 s27, s2, 13")
            k(f"buffer_load_dwordx4 v[{RMR}:{RMR+3}], v197, s[88:91], s27 offen"); vm.issue("RMR")
        if t == 12 and JIT & 1:
            for l in jit("L_p1tail", 27, 211): k(l)
            vm.issue("CP")
        if t == HP:
            step(o, t, 0, pre=chk, inj=ld, inj0=0)
            vm.issue("PART", 20)
        else:
            step(o, t, 0, inj=adq.pop(0) if adq and t >= HV else None, inj0=0)
        if TST and t == HP: k.stamp(f"t{t}_0")
        if t < 13: step(o, t, 1, inj=adq.pop(0) if adq and t >= HV else None, inj0=0)
        if TST and t < 13: k.stamp(f"t{t}")
    assert not adq
    rs = [f"v_mov_b32 v{r0}, 0"] + [f"v_dot2c_f32_bf16 v{r0}, v{RMR+r}, v{ONE}" for r in range(4)]
    rs += [f"v_add_f32_dpp v{r0}, v{r0}, v{r0} row_ror:{ro} row_mask:0xf bank_mask:0xf" for ro in (8, 4, 2, 1)]
    for sw in ("v_permlane16_swap_b32", "v_permlane32_swap_b32"):
        rs += [f"v_mov_b32 v{r1}, v{r0}", f"{sw} v{r0}, v{r1}", f"v_add_f32 v{r0}, v{r0}, v{r1}"]
    rs += ["s_lshl_b32 s27, s20, 2", "s_add_u32 s27, s27, 2048", f"v_mov_b32 v{r1}, s27", f"ds_write_b32 v{r1}, v{r0}"]
    step(o, 13, 1, inj=rs, inj0=0)
    if TST: k.stamp("t13")
    st = [f"v_add_f32 v{PL}, v{PL}, v{PL+2}", f"v_add_f32 v{PL+1}, v{PL+1}, v{PL+3}", f"v_add_f32 v{PL+4}, v{PL+4}, v{PL+6}", f"v_add_f32 v{PL+5}, v{PL+5}, v{PL+7}",
          f"v_add_f32 v{PL}, v{PL}, v{PL+4}", f"v_add_f32 v{PL+1}, v{PL+1}, v{PL+5}"]
    cs = [f"v_add_f32 v{PL+8+i}, v{PL+8+i}, v{PL+8+i+w}" for w in (8, 4, 2, 1) for i in range(w)]
    lm = k.lab("nomx")
    ch = []
    for qp in ("[1,0,3,2]", "[2,3,0,1]"):
        ch += [f"v_add_f32_dpp v{PL}, v{PL}, v{PL} quad_perm:{qp} row_mask:0xf bank_mask:0xf",
               f"v_add_f32_dpp v{PL+1}, v{PL+1}, v{PL+1} quad_perm:{qp} row_mask:0xf bank_mask:0xf"]
    ch += [f"v_mul_f32 v{PL}, 0x3a800000, v{PL}", f"v_mul_f32 v{PL+1}, 0x3a800000, v{PL+1}",
           ["s_cmp_lg_u32 s24, 0", f"s_cbranch_scc1 {lm}", "s_lshl_b32 s27, s23, 9", f"s_add_u32 s27, s27, {WS_MX}",
            f"buffer_store_dword v{PL}, v{vSt}, s[12:15], s27 offen{SC}", f"{lm}:"],
           f"v_fma_f32 v{PL+1}, -v{PL}, v{PL}, v{PL+1}", f"v_max_f32 v{PL+1}, 0, v{PL+1}", f"v_add_f32 v{PL+1}, 0x3727c5ac, v{PL+1}",
           f"v_rsq_f32 v{PL+1}, v{PL+1}", f"v_mul_f32 v{PL+2}, v{PL}, v{PL+1}", f"v_sub_f32 v{PL+2}, 0, v{PL+2}",
           f"ds_write_b32 v{vSt}, v{PL+1}", f"ds_write_b32 v{vSt}, v{PL+2} offset:512"]
    mix = list(st)
    ci = 0
    for x in ch:
        mix.append(x)
        if ci < len(cs): mix.append(cs[ci]); ci += 1
    mix += cs[ci:]
    mix.append(f"ds_write_b32 v{vCs}, v{PL+8} offset:1024")
    def wpart(o_): k(f"s_waitcnt vmcnt({vm.cnt({'PART'})})")
    step(o, 14, 0, pre=wpart, inj=mix, inj0=0)
    if TST: k.stamp("t14_0")
    vm.issue("MX", 1, certain=False)
    rd = [f"ds_read2_b32 v[{SQ+2*jj}:{SQ+2*jj+1}], v{v23[jj]} offset0:0 offset1:128" for jj in range(4)]
    rd += [f"ds_read_b128 v[{CQ}:{CQ+3}], v{v19}", f"ds_read_b128 v[{CQ+4}:{CQ+7}], v{v19} offset:256", f"ds_read_b32 v152, v{v18} offset:512"]
    for jj in range(4):
        rd += [f"ds_read_b128 v[{VS[jj]}:{VS[jj]+3}], v{v20[jj]}", f"ds_read_b128 v[{VS[jj]+4}:{VS[jj]+7}], v{v20[jj]} offset:512"]
    RW = 56
    rd += [f"ds_read_b128 v[{RW}:{RW+3}], v{vZ} offset:2048", f"ds_read_b128 v[{RW+4}:{RW+7}], v{vZ} offset:2064"]
    step(o, 14, 1, inj=rd, inj0=4)
    if TST: k.stamp("t14")
    q = []
    for jj in range(4):
        q += [f"v_mul_f32 v{QS+2*jj}, s44, v{SQ+2*jj}", f"v_mul_f32 v{QS+2*jj+1}, s44, v{SQ+2*jj+1}"]
    l7 = k.lab("norm")
    b7 = ["s_cmp_lg_u32 s20, 7", f"s_cbranch_scc1 {l7}"]
    for r in range(4):
        b7 += [f"v_add_f32 v{RW+2*r}, v{RW+2*r}, v{RW+2*r+1}"]
    for r in range(4):
        b7 += [f"v_mul_f32 v{RW+2*r}, 0x3a800000, v{RW+2*r}"]
    b7 += [f"v_cvt_pk_bf16_f32 v{r0}, v{RW}, v{RW+2}", f"v_cvt_pk_bf16_f32 v{r1}, v{RW+4}, v{RW+6}",
           "s_lshl_b32 s27, s2, 3", f"s_add_u32 s27, s27, {WS_RM}", "s_mov_b64 exec, 1",
           f"buffer_store_dwordx2 v[{r0}:{r1}], v{vZ}, s[12:15], s27 offen{SC}", "s_mov_b64 exec, -1", f"{l7}:"]
    step(o, 15, 0, inj=q + [b7], inj0=0)
    step(o, 15, 1)
    if JIT & 1: k("L_p1tail:")
    k.stamp("p1_loop")

def hoist_ad(R):
    vL16, vVO = R["vL16"], R["vVO"]
    vSt = 200; vCs = 201; vTok = 203; vG = 202
    v17, v18, v19 = 209, 212, 204
    v20 = [205, 206, 207, 208]; v23 = [v17, 213, 214, 215]
    tA, tB, vSa, vCg = 216, 198, 218, 219
    ad = []
    ad += [f"v_lshrrev_b32 v{vSt}, 2, v0", f"v_and_b32 v{tB}, 3, v0", f"v_min_u32 v{vCs}, 95, v{vSt}", f"v_lshlrev_b32 v{vCs}, 3, v{vCs}",
           f"v_mul_u32_u24 v{vCg}, 3072, v{tB}", f"v_add_u32 v{vCg}, v{vCg}, v{vCs}",
           f"v_lshlrev_b32 v{tB}, {12 if STL & 1 else 16}, v{tB}", f"v_lshl_add_u32 v{vSa}, v{vSt}, 3, v{tB}", f"v_lshlrev_b32 v{vSt}, 2, v{vSt}"]
    ad += [f"v_and_b32 v{vTok}, 15, v1", "s_lshl_b32 s27, s25, 8", "s_lshl_b32 s28, s26, 6", "s_add_u32 s28, s28, s27",
           f"v_lshlrev_b32 v{tA}, 2, v{vTok}", f"v_add_u32 v{v17}, s28, v{tA}", f"v_lshrrev_b32 v{vG}, 4, v1", f"v_lshlrev_b32 v{v19}, 4, v{vG}",
           f"v_add_u32 v{v20[0]}, s28, v{v19}", "s_lshl_b32 s29, s26, 6", "s_add_u32 s29, s29, 1024",
           f"v_add_u32 v{v19}, s29, v{v19}", f"v_add_u32 v{v18}, s29, v{tA}"]
    for jj in range(1, 4):
        ad += [f"v_xor_b32 v{v20[jj]}, {jj<<6}, v{v20[0]}", f"v_xor_b32 v{v23[jj]}, {jj<<6}, v{v17}"]
    ad += ["s_lshl_b32 s27, s23, 2", "s_lshl_b32 s28, s25, 1", "s_add_u32 s27, s27, s28", "s_lshl_b32 s27, s27, 16",
           "s_lshl_b32 s28, s24, 12", "s_add_u32 s27, s27, s28", "s_lshl_b32 s28, s26, 10", "s_add_u32 s27, s27, s28",
           "s_lshr_b32 s42, s26, 1", "s_lshl_b32 s28, s42, 16", "s_add_u32 s35, s27, s28", "s_xor_b32 s28, s28, 0x10000", "s_add_u32 s37, s27, s28",
           f"s_add_u32 s36, s35, {WS_K}", f"s_add_u32 s38, s37, {WS_K}", f"s_add_u32 s35, s35, {WS_Q}", f"s_add_u32 s37, s37, {WS_Q}",
           "s_lshl_b32 s27, s24, 1", "s_add_u32 s27, s27, s42", "s_lshl_b32 s27, s27, 7",
           "s_lshl_b32 s28, s23, 3", "s_add_u32 s27, s27, s28", "s_lshl_b32 s28, s25, 2", "s_add_u32 s27, s27, s28", "s_lshl_b32 s27, s27, 10",
           "s_and_b32 s43, s26, 1", "s_lshl_b32 s28, s43, 8", "s_add_u32 s27, s27, s28", f"s_add_u32 s27, s27, {WS_VT}",
           "s_lshl_b32 s28, s42, 11", "s_add_u32 s39, s27, s28", "s_xor_b32 s28, s28, 2048", "s_add_u32 s40, s27, s28",
           f"v_lshrrev_b32 v{tA}, 5, v1", f"v_xor_b32 v{tA}, s43, v{tA}", f"v_lshlrev_b32 v{tA}, 10, v{tA}",
           f"v_bfe_u32 v{tB}, v1, 4, 1", f"v_lshl_add_u32 v{tA}, v{tB}, 9, v{tA}", f"v_lshl_add_u32 v{vVO}, v{vTok}, 4, v{tA}",
           "s_lshl_b32 s28, s43, 8", f"v_xor_b32 v{vL16}, s28, v{vL16}", "s_mov_b32 s44, 0x3e8293ee",
           f"s_lshl_b32 s41, s23, {14 if STL & 1 else 10}", f"s_add_u32 s41, s41, {WS_ST1}", f"s_mul_i32 s45, s24, {16*768}", f"s_add_u32 s45, s45, {WS_CS1}"]
    return ad

def hoisted_tail2(k, o, step, vm, R):
    PL, RMR, ONE, vP, vZ, vL16, SQ, CQ, QS, VS, vVO = [R[x] for x in ("PL", "RMR", "ONE", "vP", "vZ", "vL16", "SQ", "CQ", "QS", "VS", "vVO")]
    r0, r1 = 198, 199
    vSt = 200; vCs = 201
    v17, v18, v19 = 209, 212, 204
    v20 = [205, 206, 207, 208]; v23 = [v17, 213, 214, 215]
    vSa, vCg = 218, 219
    HV = int(os.environ.get("HV", "9")); HP = int(os.environ.get("HP", "11")); HC = HP + 1
    assert 8 <= HV < HP <= 11
    st_ = lambda nm: k.stamp(nm) if TST else None
    def chk(o_):
        rdy = k.lab("p1rdy"); spin = k.lab("p1spin")
        k(f"s_waitcnt vmcnt({vm.cnt({'VP'})})")
        k(f"v_cmp_eq_u32 vcc, 128, v{vP}")
        k("s_cmp_eq_u64 vcc, -1")
        k(f"s_cbranch_scc1 {rdy}")
        k("s_mov_b32 s28, 0")
        k(f"{spin}:")
        k("s_add_u32 s28, s28, 1")
        k(f"s_cmp_gt_u32 s28, {SPIN_LIMIT}")
        k(f"s_cbranch_scc1 {rdy}")
        k("s_sleep 2")
        k(f"buffer_load_dword v{vP}, v196, s[60:63], 0 offen sc1")
        k("s_waitcnt vmcnt(0)")
        k(f"v_cmp_eq_u32 vcc, 128, v{vP}")
        k("s_cmp_eq_u64 vcc, -1")
        k(f"s_cbranch_scc0 {spin}")
        k(f"{rdy}:")
    vp = [f"buffer_load_dword v{vP}, v196, s[60:63], 0 offen sc1", "s_lshl_b32 s27, s2, 13",
          f"buffer_load_dwordx4 v[{RMR}:{RMR+3}], v197, s[88:91], s27 offen"]
    la = []
    for i in range(4):
        if STL & 1: la.append(f"buffer_load_dwordx2 v[{PL+2*i}:{PL+2*i+1}], v{vSa}, s[12:15], s41 offen offset:{1024*i}{SC}")
        else: la.append([f"buffer_load_dwordx2 v[{PL+2*i}:{PL+2*i+1}], v{vSa}, s[12:15], s41 offen{SC}"] + (["s_add_u32 s41, s41, 16384"] if i < 3 else []))
    lb = [f"buffer_load_dwordx2 v[{PL+8+2*i}:{PL+8+2*i+1}], v{vCg}, s[12:15], s45 offen offset:{768*i}{SC}" for i in range(4)]
    rs = [f"v_mov_b32 v{r0}, 0"] + [f"v_dot2c_f32_bf16 v{r0}, v{RMR+r}, v{ONE}" for r in range(4)]
    rs += [f"v_add_f32_dpp v{r0}, v{r0}, v{r0} row_ror:{ro} row_mask:0xf bank_mask:0xf" for ro in (8, 4, 2, 1)]
    for sw in ("v_permlane16_swap_b32", "v_permlane32_swap_b32"):
        rs += [f"v_mov_b32 v{r1}, v{r0}", f"{sw} v{r0}, v{r1}", f"v_add_f32 v{r0}, v{r0}, v{r1}"]
    rs += ["s_lshl_b32 s27, s20, 2", "s_add_u32 s27, s27, 2048", f"v_mov_b32 v{r1}, s27", f"ds_write_b32 v{r1}, v{r0}"]
    def red(b):
        x = [f"v_add_f32 v{b}, v{b}, v{b+2}", f"v_add_f32 v{b+1}, v{b+1}, v{b+3}", f"v_add_f32 v{b+4}, v{b+4}, v{b+6}", f"v_add_f32 v{b+5}, v{b+5}, v{b+7}",
             f"v_add_f32 v{b}, v{b}, v{b+4}", f"v_add_f32 v{b+1}, v{b+1}, v{b+5}"]
        for qp in ("[1,0,3,2]", "[2,3,0,1]"):
            x += [f"v_add_f32_dpp v{b}, v{b}, v{b} quad_perm:{qp} row_mask:0xf bank_mask:0xf",
                  f"v_add_f32_dpp v{b+1}, v{b+1}, v{b+1} quad_perm:{qp} row_mask:0xf bank_mask:0xf"]
        return x
    sa = red(PL) + [f"v_mul_f32 v{PL}, 0x3a800000, v{PL}", f"v_mul_f32 v{PL+1}, 0x3a800000, v{PL+1}",
          f"v_fma_f32 v{PL+1}, -v{PL}, v{PL}, v{PL+1}", f"v_max_f32 v{PL+1}, 0, v{PL+1}", f"v_add_f32 v{PL+1}, 0x3727c5ac, v{PL+1}",
          f"v_rsq_f32 v{PL+1}, v{PL+1}", f"v_mul_f32 v{PL+2}, v{PL}, v{PL+1}", f"v_sub_f32 v{PL+2}, 0, v{PL+2}",
          f"ds_write_b32 v{vSt}, v{PL+1}", f"ds_write_b32 v{vSt}, v{PL+2} offset:512"]
    lm = k.lab("nomx")
    sb = red(PL + 8) + [f"ds_write_b64 v{vCs}, v[{PL+8}:{PL+9}] offset:1024",
          ["s_cmp_lg_u32 s24, 0", f"s_cbranch_scc1 {lm}", "s_lshl_b32 s27, s23, 9", f"s_add_u32 s27, s27, {WS_MX}",
           f"buffer_store_dword v{PL}, v{vSt}, s[12:15], s27 offen{SC}", f"{lm}:"]]
    for t in range(8, 13):
        if t == HV:
            step(o, t, 0, inj=vp, inj0=2); vm.issue("VP"); vm.issue("RMR")
        elif t == HP:
            step(o, t, 0, pre=chk, inj=la, inj0=1); vm.issue("PA", 4)
        elif t == HC:
            step(o, t, 0, inj=lb, inj0=1); vm.issue("PB", 4)
        else:
            step(o, t, 0)
        st_(f"t{t}_0")
        step(o, t, 1)
        st_(f"t{t}")
    step(o, 13, 0, inj=rs, inj0=0)
    st_("t13_0")
    step(o, 13, 1, extra_need=("PA", "RMR"), inj=sa, inj0=0)
    st_("t13")
    def wpb(o_): k(f"s_waitcnt vmcnt({vm.cnt({'PB'})})")
    step(o, 14, 0, pre=wpb, inj=sb, inj0=0)
    vm.issue("MX", 1, certain=False)
    st_("t14_0")
    RW = 56
    rd = [f"ds_read2_b32 v[{SQ+2*jj}:{SQ+2*jj+1}], v{v23[jj]} offset0:0 offset1:128" for jj in range(4)]
    rd += [f"ds_read_b128 v[{RW}:{RW+3}], v{vZ} offset:2048", f"ds_read_b128 v[{RW+4}:{RW+7}], v{vZ} offset:2064"]
    step(o, 14, 1, inj=rd, inj0=6)
    st_("t14")
    q = []
    for jj in range(4):
        q += [f"v_mul_f32 v{QS+2*jj}, s44, v{SQ+2*jj}", f"v_mul_f32 v{QS+2*jj+1}, s44, v{SQ+2*jj+1}"]
    l7 = k.lab("norm")
    b7 = ["s_cmp_lg_u32 s20, 7", f"s_cbranch_scc1 {l7}"]
    for r in range(4):
        b7 += [f"v_add_f32 v{RW+2*r}, v{RW+2*r}, v{RW+2*r+1}"]
    for r in range(4):
        b7 += [f"v_mul_f32 v{RW+2*r}, 0x3a800000, v{RW+2*r}"]
    b7 += [f"v_cvt_pk_bf16_f32 v{r0}, v{RW}, v{RW+2}", f"v_cvt_pk_bf16_f32 v{r1}, v{RW+4}, v{RW+6}",
           "s_lshl_b32 s27, s2, 3", f"s_add_u32 s27, s27, {WS_RM}", "s_mov_b64 exec, 1",
           f"buffer_store_dwordx2 v[{r0}:{r1}], v{vZ}, s[12:15], s27 offen{SC}", "s_mov_b64 exec, -1", f"{l7}:"]
    cq = [f"ds_read_b128 v[{CQ}:{CQ+3}], v{v19}", f"ds_read_b128 v[{CQ+4}:{CQ+7}], v{v19} offset:256"]
    step(o, 15, 0, inj=q + cq + [b7], inj0=0)
    st_("t15_0")
    vr = [f"ds_read_b32 v152, v{v18} offset:512"]
    for jj in range(4):
        vr += [f"ds_read_b128 v[{VS[jj]}:{VS[jj]+3}], v{v20[jj]}", f"ds_read_b128 v[{VS[jj]+4}:{VS[jj]+7}], v{v20[jj]} offset:512"]
    step(o, 15, 1, inj=vr, inj0=0)
    k.stamp("p1_loop")

def phase1(k):
    NS = 4; SLOT = 40960; BOFF = 24576
    ACC = 64
    vA = [2, 3]; vW = [10, 11, 12]; vX = [13, 4]; vL16 = 5; vZ = 6; vP = 7
    A = [16, 28]; B = [40, 112]
    VB = 128; DC = 144; D1 = 156; D2 = 160; ONE = 164; PL = 168
    RMR = 192
    acc = lambda m, j: ACC + (m * 4 + j) * 4
    k("s_and_b32 s21, s2, 7"); k("s_lshr_b32 s22, s2, 3")
    if P1M == 0:
        k("s_and_b32 s23, s21, 1"); k("s_lshl_b32 s23, s23, 3"); k("s_and_b32 s24, s22, 7"); k("s_add_u32 s23, s23, s24")
        k("s_lshr_b32 s24, s21, 1"); k("s_lshl_b32 s24, s24, 2"); k("s_lshr_b32 s25, s22, 3"); k("s_add_u32 s24, s24, s25")
    elif P1M == 1:
        k("s_and_b32 s23, s22, 15"); k("s_lshl_b32 s24, s21, 1"); k("s_lshr_b32 s25, s22, 4"); k("s_add_u32 s24, s24, s25")
    else:
        k("s_lshr_b32 s23, s22, 1"); k("s_lshl_b32 s24, s21, 1"); k("s_and_b32 s25, s22, 1"); k("s_add_u32 s24, s24, s25")
    k("s_and_b32 s25, s20, 1")
    k("s_lshr_b32 s26, s20, 1")
    wdma_lane(k, vW[0], 6144, 14)
    if QKS:
        for m in (1, 2):
            k(f"s_add_u32 s27, s24, {m*QKS}"); k("s_and_b32 s27, s27, 15"); k("s_sub_u32 s27, s27, s24")
            k("s_lshl_b32 s27, s27, 7"); k(f"s_add_u32 s27, s27, {2048*m}")
            k(f"v_add_u32 v{vW[m]}, s27, v{vW[0]}")
    else:
        k(f"v_add_u32 v{vW[1]}, 2048, v{vW[0]}")
        k(f"v_add_u32 v{vW[2]}, 4096, v{vW[0]}")
    k("v_lshrrev_b32 v14, 3, v1"); k("v_and_b32 v15, 7, v1")
    k("v_lshrrev_b32 v17, 4, v1")
    k("v_xor_b32 v17, v17, v15")
    k("v_lshlrev_b32 v17, 4, v17")
    k(f"v_lshl_add_u32 v{vX[0]}, v14, 11, v17")
    k(f"v_xor_b32 v{vX[1]}, 64, v{vX[0]}")
    k(f"v_add_u32 v{vX[1]}, {16384 - 1024}, v{vX[1]}")
    k(f"v_lshlrev_b32 v{vL16}, 4, v1")
    k("s_lshr_b32 s27, s20, 2"); k("s_lshl_b32 s27, s27, 5")
    k("s_bfe_u32 s28, s20, 0x10001"); k("s_lshl_b32 s28, s28, 4"); k("s_add_u32 s27, s27, s28")
    k("s_lshl_b32 s28, s25, 2"); k("s_add_u32 s27, s27, s28")
    k("s_mul_i32 s48, s27, 6144"); k("s_lshl_b32 s28, s24, 7"); k("s_add_u32 s48, s48, s28")
    k(f"s_add_u32 s46, s48, {16*64*6144}")
    k("s_lshl_b32 s49, s23, 3"); k("s_add_u32 s49, s49, s20"); k("s_lshl_b32 s49, s49, 15")
    KT0 = int(os.environ.get("KT0", "0"))
    if KT0 == 0: k("s_add_u32 s27, s23, s24"); k("s_and_b32 s27, s27, 15")
    elif KT0 == 1: k("s_mov_b32 s27, s24")
    elif KT0 == 2: k("s_mov_b32 s27, s23")
    elif KT0 == 3: k("s_mov_b32 s27, 0")
    elif KT0 == 4: k("s_and_b32 s27, s2, 7"); k("s_lshl_b32 s27, s27, 1")
    elif KT0 == 5: k("s_and_b32 s27, s23, 1"); k("s_lshl_b32 s27, s27, 3"); k("s_add_u32 s27, s27, s24"); k("s_and_b32 s27, s27, 15")
    elif KT0 == 6: k("s_and_b32 s27, s23, 3"); k("s_lshl_b32 s27, s27, 2"); k("s_add_u32 s27, s27, s24"); k("s_and_b32 s27, s27, 15")
    k(f"s_mul_i32 s28, s27, {64*6144}"); k("s_add_u32 s30, s48, s28")
    k("s_lshl_b32 s28, s27, 7"); k("s_add_u32 s31, s49, s28")
    k("s_lshl_b32 s32, s20, 10")
    k("s_lshl_b32 s33, s20, 11"); k(f"s_add_u32 s33, s33, {BOFF}")
    k.stamp("p1_pre")
    k("s_waitcnt lgkmcnt(0)")
    k.stamp("p1_ka")
    srd(k, 8, pWQKV, D * 3 * D * 2)
    srd(k, 12, pWS, WS_SIZE)
    srd(k, 16, pX, MB4)
    def dma(slot):
        o = []
        for m in range(3):
            o.append([f"s_add_u32 m0, s32, {slot*SLOT + m*8192}", f"buffer_load_dwordx4 v{vW[m]}, s[8:11], s30 offen lds"])
        o.append([f"s_add_u32 m0, s33, {slot*SLOT}", f"buffer_load_dwordx4 v{vX[0]}, s[16:19], s31 offen lds"])
        o.append([f"buffer_load_dwordx4 v{vX[1]}, s[16:19], s31 offen offset:1024 lds"])
        return o
    adv = [f"s_add_u32 s30, s30, {64*6144}", "s_add_u32 s31, s31, 128", "s_cmp_eq_u32 s30, s46", "s_cselect_b32 s30, s48, s30", "s_cselect_b32 s31, s49, s31"]
    vm = VM()
    def issue_stage(st):
        dd = dma(st % NS)
        if st == 0 and int(os.environ.get("RXF", "0")): dd = dd[3:] + dd[:3]
        for d in dd:
            for l in d: k(l)
        for l in adv: k(l)
        vm.issue(("S", st), 5)
    NPRO = 2 if RAMP else NS
    issue_stage(0)
    if not RAMP:
        for st in range(1, NS): issue_stage(st)
    k.stamp("p1_dma")
    srd(k, 88, pWO, D * D * 2)
    k("v_lshlrev_b32 v197, 4, v0")
    k("v_mov_b32 v14, v197")
    l0 = k.lab("noinit")
    k("s_cmp_lg_u32 s2, 0"); k(f"s_cbranch_scc1 {l0}")
    for r in range(4): k(f"v_mov_b32 v{PL+r}, 0")
    k(f"s_mov_b32 s27, {WS_CNT}")
    k(f"buffer_store_dwordx4 v[{PL}:{PL+3}], v14, s[12:15], s27 offen{SC}")
    k(f"{l0}:")
    srd(k, 60, pDBG, 256)
    if JIT:
        k("s_getpc_b64 s[80:81]"); k("L_cb:"); k("s_mov_b32 s82, L_end-L_cb"); k("s_mov_b32 s83, 0x20000")
        k("s_lshr_b32 s27, s2, 3"); k("s_lshl_b32 s27, s27, 3"); k("s_add_u32 s27, s27, s20"); k("s_lshl_b32 s27, s27, 8")
        k("v_and_b32 v252, 3, v1"); k("v_lshlrev_b32 v252, 6, v252"); k("v_add_u32 v252, s27, v252")
    k("v_lshrrev_b32 v14, 4, v1")
    k("v_bfe_u32 v15, v1, 2, 2")
    k("v_lshrrev_b32 v16, 1, v14"); k("v_and_b32 v17, 1, v14")
    k("v_lshlrev_b32 v16, 4, v16"); k("v_lshl_add_u32 v16, v17, 2, v16"); k("v_add_u32 v16, v16, v15")
    k("v_lshlrev_b32 v16, 7, v16")
    k("v_lshrrev_b32 v18, 1, v15"); k("v_lshl_add_u32 v18, v17, 1, v18")
    k("v_xor_b32 v18, s26, v18")
    k("v_lshl_add_u32 v16, v18, 5, v16")
    k("v_and_b32 v18, 3, v1")
    k(f"v_lshl_add_u32 v{vA[0]}, v18, 3, v16")
    k(f"v_add_u32 v{vA[1]}, {2*SLOT}, v{vA[0]}")
    for i in range(1, 4): k(f"v_cmp_eq_u32 s[{48+2*i}:{49+2*i}], {i}, v18")
    if RAMP:
        if os.environ.get("XST"): k.stamp("p1_b0")
        if not int(os.environ.get("RNB", "0")): k("s_barrier")
        if os.environ.get("XST"): k.stamp("p1_b1")
        if RAMP == 1: issue_stage(1)
        if os.environ.get("XST"): k.stamp("p1_s1")
    k("v_cmp_eq_u32 s[56:57], v14, v15")
    k("v_and_b32 v15, 15, v1")
    k("v_cmp_eq_u32 s[58:59], 0, v15")
    k("v_lshrrev_b32 v16, 1, v15"); k("v_xor_b32 v16, v16, v14"); k("v_lshlrev_b32 v16, 4, v16")
    k("v_lshl_add_u32 v16, v15, 7, v16")
    k("s_cmp_eq_u32 s25, 0")
    k("s_cselect_b32 s58, s58, 0"); k("s_cselect_b32 s59, s59, 0")
    k("s_lshl_b32 s28, s25, 13"); k(f"s_add_u32 s28, s28, {BOFF}")
    for jj in range(4):
        k(f"s_xor_b32 s27, s26, {jj}"); k("s_lshl_b32 s27, s27, 11"); k("s_add_u32 s27, s27, s28")
        k(f"v_add_u32 v{VB+jj}, s27, v16")
        k(f"v_xor_b32 v{VB+4+jj}, 64, v{VB+jj}")
        k(f"v_add_u32 v{VB+8+jj}, {2*SLOT}, v{VB+jj}")
        k(f"v_add_u32 v{VB+12+jj}, {2*SLOT}, v{VB+4+jj}")
    k(f"v_mov_b32 v{vZ}, 0")
    k("v_lshlrev_b32 v8, 3, v15")
    k("s_lshl_b32 s42, s23, 3"); k("s_lshl_b32 s27, s25, 2"); k("s_add_u32 s42, s42, s27"); k("s_add_u32 s42, s42, s26")
    if STL & 1:
        k("s_lshl_b32 s42, s25, 2"); k("s_add_u32 s42, s42, s26"); k("s_lshl_b32 s42, s42, 7")
        k("s_lshl_b32 s27, s23, 14"); k("s_add_u32 s42, s42, s27"); k("s_lshl_b32 s27, s24, 10"); k("s_add_u32 s42, s42, s27"); k(f"s_add_u32 s42, s42, {WS_ST1}")
    else:
        k("s_lshl_b32 s42, s42, 7"); k("s_lshl_b32 s27, s24, 14"); k("s_add_u32 s42, s42, s27"); k(f"s_add_u32 s42, s42, {WS_ST1}")
    k("v_lshlrev_b32 v9, 4, v14")
    k("s_lshl_b32 s43, s24, 4"); k("s_add_u32 s43, s43, s23"); k("s_mul_i32 s43, s43, 768")
    k("s_lshl_b32 s27, s26, 6"); k("s_add_u32 s43, s43, s27"); k(f"s_add_u32 s43, s43, {WS_CS1}")
    k("v_and_b32 v196, 1, v1"); k("v_lshlrev_b32 v196, 7, v196")
    for r in range(ACC, ACC + 48): k(f"v_mov_b32 v{r}, 0")
    for r in range(DC, DC + 20): k(f"v_mov_b32 v{r}, 0")
    for r in range(4): k(f"v_mov_b32 v{ONE+r}, 0x3f803f80")
    def reads(buf, slot, kb):
        o = []
        pr = slot >> 1; so = (slot & 1) * SLOT
        def rA(m):
            return [f"ds_read_b64_tr_b16 v[{A[buf]+4*m+2*t}:{A[buf]+4*m+2*t+1}], v{vA[pr]} offset:{so + m*8192 + kb*4096 + t*1024}" for t in range(2)]
        def rB(j):
            return [f"ds_read_b128 v[{B[buf]+4*j}:{B[buf]+4*j+3}], v{VB + pr*8 + kb*4 + j} offset:{so}"]
        o += rA(0)
        for j in range(4): o += rB(j)
        o += rA(1) + rA(2)
        return o
    def side(buf):
        o = []
        fb = f"v[{B[buf]}:{B[buf]+3}]"; on = f"v[{ONE}:{ONE+3}]"
        for m in range(3):
            o.append(f"v_mfma_f32_16x16x32_bf16 v[{DC+4*m}:{DC+4*m+3}], v[{A[buf]+4*m}:{A[buf]+4*m+3}], {on}, v[{DC+4*m}:{DC+4*m+3}]")
        o.append(f"v_mfma_f32_16x16x32_bf16 v[{D1}:{D1+3}], {on}, {fb}, v[{D1}:{D1+3}]")
        o.append(f"v_mfma_f32_16x16x32_bf16 v[{D2}:{D2+3}], {fb}, {fb}, v[{D2}:{D2+3}]")
        return o
    def once(lines):
        l = k.lab("once")
        k("s_cmp_lg_u32 s34, 0"); k(f"s_cbranch_scc1 {l}")
        for x in lines: k(x)
        k(f"{l}:")
    def publish():
        o = [f"v_cndmask_b32 v{D2}, v{D2}, v{D2+1}, s[50:51]", f"v_cndmask_b32 v{D2}, v{D2}, v{D2+2}, s[52:53]", f"v_cndmask_b32 v{D2}, v{D2}, v{D2+3}, s[54:55]",
             f"v_mov_b32 v{D1+1}, v{D2}",
             "s_mov_b64 exec, s[56:57]",
             f"buffer_store_dwordx2 v[{D1}:{D1+1}], v8, s[12:15], s42 offen{SC}",
             "s_mov_b64 exec, s[58:59]"]
        for m in range(3):
            o.append(f"buffer_store_dwordx4 v[{DC+4*m}:{DC+4*m+3}], v9, s[12:15], s43 offen offset:{256*m}{SC}")
        if DL1 or SK3:
            o += [f"s_getreg_b32 s27, {XCCR}", "v_mov_b32 v14, s27", "s_lshl_b32 s27, s2, 7", f"s_add_u32 s27, s27, {WS_XID1}",
                  f"buffer_store_dword v14, v9, s[12:15], s27 offen{SC}"]
        if DL1:
            o += ["s_lshl_b32 s28, s24, 7", f"s_add_u32 s28, s28, {WS_CNT + C2F*128}", "s_add_u32 s27, s27, 64",
                  "s_cmp_eq_u32 s23, 0", "s_cselect_b32 s27, s28, s27",
                  f"buffer_store_dword v{vZ}, v9, s[12:15], s27 offen{SC}"]
        o.append("s_mov_b64 exec, -1")
        return o
    def sig1():
        l = k.lab("nosig1")
        return ["s_cmp_lg_u32 s20, 0", f"s_cbranch_scc1 {l}", "s_mov_b64 exec, 1", "v_mov_b32 v14, 1",
                "s_and_b32 s27, s2, 1", "s_lshl_b32 s27, s27, 7",
                f"buffer_atomic_add v14, v{vZ}, s[60:63], s27 offen sc1", "s_mov_b64 exec, -1", f"{l}:"]
    k.stamp("p1_set")
    if RAMP == 3:
        k(f"s_waitcnt vmcnt({os.environ.get('RV', '3')})"); issue_stage(1)
    k(f"s_waitcnt vmcnt({vm.cnt({('S', 0)})})")
    if RAMP == 2: issue_stage(1)
    k.stamp("p1_w0")
    k("s_barrier")
    k.stamp("p1_go")
    for l in reads(0, 0, 0): k(l)
    NT = 16
    def sched(t, kb):
        if RAMP and t < 2: return [2, 3, 4, 5][2 * t + kb]
        if kb == 1 and t + NS < NT: return t + NS
        return None
    def step(o, t, kb, side_here=False, pre=None, post=None, extra_need=(), inj=None, inj0=0):
        cur = kb; nxt = kb ^ 1; last = t == NT - 1
        if kb == 0:
            o.append("s_waitcnt lgkmcnt(0)")
            rd = reads(nxt, t % NS, 1)
        elif last:
            o.append("s_waitcnt lgkmcnt(0)"); rd = []
        else:
            o.append(f"s_waitcnt vmcnt({vm.cnt({('S', t + 1)} | set(extra_need))}) lgkmcnt(0)")
            o.append("s_barrier")
            rd = reads(nxt, (t + 1) % NS, 0)
        st = sched(t, kb)
        dm = dma(st % NS) if st is not None else []
        if pre: pre(o)
        if st is not None: vm.issue(("S", st), 5)
        mf = []
        for m in range(3):
            for j in range(4):
                a = acc(m, j); fa = f"v[{A[cur]+4*m}:{A[cur]+4*m+3}]"; fb = f"v[{B[cur]+4*j}:{B[cur]+4*j+3}]"
                if m == 2: fa, fb = fb, fa
                mf.append(f"v_mfma_f32_16x16x32_bf16 v[{a}:{a+3}], {fa}, {fb}, v[{a}:{a+3}]")
        gaps = [[] for _ in mf]
        for q, r in enumerate(rd): gaps[q].append(r)
        pos = [1, 3, 5, 7, 9]
        for q, d in enumerate(dm):
            if len(d) == 2:
                gaps[pos[q] - 1].append(d[0]); gaps[pos[q]].append(d[1])
            else:
                gaps[pos[q]].append(d[0])
        if dm: gaps[10] += adv
        if inj:
            ng = len(mf) - inj0
            for q, it in enumerate(inj):
                gaps[inj0 + q * ng // len(inj)] += (it if isinstance(it, list) else [it])
        for g, mm in enumerate(mf):
            o.append(mm); o += gaps[g]
        if side_here: o += side(cur)
        if post: post(o)
    texts = []
    for per in range(2 if HOIST else 3):
        o = []
        for t in range(per * 4, per * 4 + 4):
            if HOIST == 2 and 4 <= t < 8:
                ad = hoist_ad(dict(vL16=vL16, vVO=217)); n4 = (len(ad) + 3) // 4
                step(o, t, 0, inj=ad[(t - 4) * n4:(t - 3) * n4], inj0=0)
            else:
                step(o, t, 0, side_here=(t == 0))
            if t == 1 and not ESIG:
                o += publish(); vm.issue("PUB", 6 if DL1 else 5 if SK3 else 4, certain=False)
            step(o, t, 1, side_here=(t == 0), extra_need=("PUB",) if t == 3 - ESIG else ())
            if t == 0 and ESIG:
                o += publish(); vm.issue("PUB", 6 if DL1 else 5 if SK3 else 4, certain=False)
            if t == 3 - ESIG: o += sig1(); vm.issue("SIG", 1, certain=False)
        texts.append(o)
    periods(k, "p1loop", texts, 34)
    if TST: k.stamp("t11" if not HOIST else "t7")
    def partial_loads():
        rdy = k.lab("p1rdy"); spin = k.lab("p1spin"); nocs = k.lab("p1nocs")
        if TST == 2: k.stamp("t14_w")
        k(f"v_cmp_eq_u32 vcc, 128, v{vP}")
        k("s_cmp_eq_u64 vcc, -1")
        k(f"s_cbranch_scc1 {rdy}")
        k("s_mov_b32 s28, 0")
        k(f"{spin}:")
        k("s_add_u32 s28, s28, 1")
        k(f"s_cmp_gt_u32 s28, {SPIN_LIMIT}")
        k(f"s_cbranch_scc1 {rdy}")
        k("s_sleep 2")
        k(f"buffer_load_dword v{vP}, v196, s[60:63], 0 offen sc1")
        k("s_waitcnt vmcnt(0)")
        k(f"v_cmp_eq_u32 vcc, 128, v{vP}")
        k("s_cmp_eq_u64 vcc, -1")
        k(f"s_cbranch_scc0 {spin}")
        k(f"{rdy}:")
        if TST == 2: k.stamp("t14_c")
        if COA & 1:
            k("v_lshrrev_b32 v14, 4, v1"); k(f"v_lshlrev_b32 v14, {12 if STL & 1 else 16}, v14")
            k("v_and_b32 v15, 15, v1"); k("s_lshl_b32 s27, s20, 4"); k("v_add_u32 v15, s27, v15"); k("v_lshl_add_u32 v14, v15, 3, v14")
        else:
            k("v_and_b32 v14, 3, v0"); k(f"v_lshlrev_b32 v14, {12 if STL & 1 else 16}, v14")
            k("v_lshrrev_b32 v15, 2, v0"); k("v_lshl_add_u32 v14, v15, 3, v14")
        k(f"s_lshl_b32 s27, s23, {14 if STL & 1 else 10}"); k(f"s_add_u32 s27, s27, {WS_ST1}")
        for i in range(4):
            if STL & 1:
                k(f"buffer_load_dwordx2 v[{PL+2*i}:{PL+2*i+1}], v14, s[12:15], s27 offen offset:{1024*i}{SC}")
                continue
            k(f"buffer_load_dwordx2 v[{PL+2*i}:{PL+2*i+1}], v14, s[12:15], s27 offen{SC}")
            if i < 3: k("s_add_u32 s27, s27, 16384")
        if TST == 2: k.stamp("t14_s")
        k("s_cmp_ge_u32 s20, 3")
        k(f"s_cbranch_scc1 {nocs}")
        k("v_lshlrev_b32 v14, 2, v0")
        k(f"s_mul_i32 s27, s24, {16*768}"); k(f"s_add_u32 s27, s27, {WS_CS1}")
        for i in range(16):
            k(f"buffer_load_dword v{PL+8+i}, v14, s[12:15], s27 offen offset:{(i % 4) * 768}{SC}")
            if i % 4 == 3 and i < 15: k(f"s_add_u32 s27, s27, {4*768}")
        k(f"{nocs}:")
        if DL1 == 1:
            lid = k.lab("p1noid")
            k("s_cmp_lg_u32 s20, 7"); k(f"s_cbranch_scc1 {lid}")
            k("v_and_b32 v14, 31, v1"); k("v_lshlrev_b32 v14, 10, v14")
            k("s_and_b32 s27, s2, 7"); k("s_lshl_b32 s27, s27, 7"); k(f"s_add_u32 s27, s27, {WS_XID1}")
            k(f"buffer_load_dword v{PL+8}, v14, s[12:15], s27 offen{SC}")
            k(f"{lid}:")
        if TST == 2: k.stamp("t14_l")
    class _O:
        def append(self, x): k(x)
        def __iadd__(self, xs):
            for x in xs: k(x)
            return self
    o = _O()
    SQ = 28; CQ = 36; QS = 52; VS = [112, 120, 128, 136]; vVO = 14
    if HOIST:
        SQ = 220; CQ = 228; QS = 184; VS = [236, 244, 154, 176]; vVO = 217
        (hoisted_tail2 if HOIST == 2 else hoisted_tail)(k, o, step, vm, dict(PL=PL, RMR=RMR, ONE=ONE, vP=vP, vZ=vZ, vL16=vL16, SQ=SQ, CQ=CQ, QS=QS, VS=VS, vVO=vVO))
    else:
        o = _O()
        for t in range(12, 16):
            step(o, t, 0)
            if TST == 2 and t >= 13: k.stamp(f"t{t}_0")
            if DL1 and t == DLT:
                k("v_lshrrev_b32 v198, 5, v1"); k("v_lshlrev_b32 v198, 16, v198"); k("v_and_b32 v199, 31, v1"); k("v_lshl_add_u32 v198, v199, 7, v198")
                k("v_lshlrev_b32 v199, 7, v1")
                k("s_and_b32 s28, s20, 1")
                k("s_lshl_b32 s27, s23, 1"); k("s_add_u32 s27, s27, s28"); k("s_lshl_b32 s27, s27, 17"); k("s_lshl_b32 s29, s24, 12"); k("s_add_u32 s27, s27, s29")
                k("s_cmp_lt_u32 s20, 2"); k(f"s_cselect_b32 s29, 0, {WS_K - WS_Q}"); k("s_add_u32 s27, s27, s29"); k(f"s_add_u32 s27, s27, {WS_Q}")
                k("s_lshl_b32 s29, s24, 1"); k("s_add_u32 s29, s29, s28"); k("s_lshl_b32 s29, s29, 17"); k("s_lshl_b32 s28, s23, 13"); k("s_add_u32 s29, s29, s28")
                k(f"s_add_u32 s29, s29, {WS_VT}")
                k("s_cmp_ge_u32 s20, 4"); k("s_cselect_b32 s27, s29, s27"); k("s_cselect_b64 vcc, -1, 0")
                k("v_cndmask_b32 v198, v198, v199, vcc")
                k(f"buffer_load_dword v199, v198, s[12:15], s27 offen{SC}"); vm.issue("PT")
            if t == 12:
                k(f"buffer_load_dword v{vP}, v196, s[60:63], 0 offen sc1"); vm.issue("VP")
                k("s_lshl_b32 s27, s2, 13")
                k(f"buffer_load_dwordx4 v[{RMR}:{RMR+3}], v197, s[88:91], s27 offen"); vm.issue("RMR")
                if JIT & 1:
                    for l in jit("L_p1tail", 27, 211): k(l)
                    vm.issue("CP")
            step(o, t, 1, pre=(lambda o: partial_loads()) if t == 14 else None, extra_need=("VP", "RMR") if t == 14 else ())
            if TST and t < 15: k.stamp(f"t{t}")
        if JIT & 1: k("L_p1tail:")
        k.stamp("p1_loop")
        k("v_mov_b32 v14, 0")
        for r in range(4): k(f"v_dot2c_f32_bf16 v14, v{RMR+r}, v{ONE}")
        for ro in (8, 4, 2, 1): k(f"v_add_f32_dpp v14, v14, v14 row_ror:{ro} row_mask:0xf bank_mask:0xf")
        for sw in ("v_permlane16_swap_b32", "v_permlane32_swap_b32"):
            k("v_mov_b32 v15, v14"); k(f"{sw} v14, v15"); k("v_add_f32 v14, v14, v15")
        k("s_lshl_b32 s27, s20, 2"); k("s_add_u32 s27, s27, 2048"); k("v_mov_b32 v15, s27")
        k("ds_write_b32 v15, v14")
        k("s_waitcnt vmcnt(0)")
        if DL1 == 1:
            lid = k.lab("p1noid")
            k("s_cmp_lg_u32 s20, 7"); k(f"s_cbranch_scc1 {lid}")
            k(f"s_getreg_b32 s27, {XCCR}"); k(f"v_cmp_ne_u32 vcc, s27, v{PL+8}")
            k("s_cmp_eq_u64 vcc, 0"); k("s_cselect_b32 s27, 1, 0"); k("v_mov_b32 v15, s27")
            k(f"ds_write_b32 v{vZ}, v15 offset:{FLAGOFF}")
            k(f"{lid}:")
        k(f"v_add_f32 v{PL}, v{PL}, v{PL+2}"); k(f"v_add_f32 v{PL+1}, v{PL+1}, v{PL+3}")
        k(f"v_add_f32 v{PL+4}, v{PL+4}, v{PL+6}"); k(f"v_add_f32 v{PL+5}, v{PL+5}, v{PL+7}")
        k(f"v_add_f32 v{PL}, v{PL}, v{PL+4}"); k(f"v_add_f32 v{PL+1}, v{PL+1}, v{PL+5}")
        if COA & 1:
            k("v_and_b32 v16, 15, v1"); k("s_lshl_b32 s27, s20, 4"); k("v_add_u32 v16, s27, v16"); k("v_lshlrev_b32 v16, 2, v16")
            k(f"v_permlane16_swap_b32 v{PL}, v{PL+1}")
            k(f"v_add_f32 v{PL}, v{PL}, v{PL+1}"); k(f"v_mov_b32 v{PL+1}, v{PL}")
            k(f"v_permlane32_swap_b32 v{PL}, v{PL+1}")
            k(f"v_add_f32 v{PL}, v{PL}, v{PL+1}"); k(f"v_mov_b32 v{PL+1}, v{PL}")
            k(f"v_permlane16_swap_b32 v{PL}, v{PL+1}")
        else:
            for qp in ("[1,0,3,2]", "[2,3,0,1]"):
                k(f"v_add_f32_dpp v{PL}, v{PL}, v{PL} quad_perm:{qp} row_mask:0xf bank_mask:0xf")
                k(f"v_add_f32_dpp v{PL+1}, v{PL+1}, v{PL+1} quad_perm:{qp} row_mask:0xf bank_mask:0xf")
        k(f"v_mul_f32 v{PL}, 0x3a800000, v{PL}")
        k(f"v_mul_f32 v{PL+1}, 0x3a800000, v{PL+1}")
        if not COA & 1: k("v_lshrrev_b32 v16, 2, v0"); k("v_lshlrev_b32 v16, 2, v16")
        lm = k.lab("nomx")
        k("s_cmp_lg_u32 s24, 0"); k(f"s_cbranch_scc1 {lm}")
        k("s_lshl_b32 s27, s23, 9"); k(f"s_add_u32 s27, s27, {WS_MX}")
        k(f"buffer_store_dword v{PL}, v16, s[12:15], s27 offen{SC}")
        k(f"{lm}:")
        k(f"v_fma_f32 v{PL+1}, -v{PL}, v{PL}, v{PL+1}")
        k(f"v_max_f32 v{PL+1}, 0, v{PL+1}")
        k(f"v_add_f32 v{PL+1}, 0x3727c5ac, v{PL+1}")
        k(f"v_rsq_f32 v{PL+1}, v{PL+1}")
        k(f"v_mul_f32 v{PL+2}, v{PL}, v{PL+1}")
        k(f"v_sub_f32 v{PL+2}, 0, v{PL+2}")
        k(f"ds_write_b32 v16, v{PL+1}")
        k(f"ds_write_b32 v16, v{PL+2} offset:512")
        l2 = k.lab("nocs2")
        k("s_cmp_ge_u32 s20, 3")
        k(f"s_cbranch_scc1 {l2}")
        for st in (8, 4, 2, 1):
            for i in range(st): k(f"v_add_f32 v{PL+8+i}, v{PL+8+i}, v{PL+8+i+st}")
        k("v_lshlrev_b32 v16, 2, v0")
        k(f"ds_write_b32 v16, v{PL+8} offset:1024")
        k(f"{l2}:")
        k("v_and_b32 v15, 15, v1")
        k("s_lshl_b32 s27, s25, 8"); k("s_lshl_b32 s28, s26, 6"); k("s_add_u32 s28, s28, s27")
        k("v_lshlrev_b32 v16, 2, v15")
        k("v_add_u32 v17, s28, v16")
        k("v_lshrrev_b32 v14, 4, v1")
        k("v_lshlrev_b32 v19, 4, v14")
        k("v_add_u32 v20, s28, v19")
        k("s_lshl_b32 s29, s26, 6"); k("s_add_u32 s29, s29, 1024")
        k("v_add_u32 v19, s29, v19")
        k("v_add_u32 v18, s29, v16")
        for jj in range(1, 4):
            k(f"v_xor_b32 v{20+jj}, {jj<<6}, v20")
            k(f"v_xor_b32 v{23+jj}, {jj<<6}, v17")
        k("s_lshl_b32 s27, s23, 2"); k("s_lshl_b32 s28, s25, 1"); k("s_add_u32 s27, s27, s28")
        k("s_lshl_b32 s27, s27, 16")
        k("s_lshl_b32 s28, s24, 12"); k("s_add_u32 s27, s27, s28")
        k("s_lshl_b32 s28, s26, 10"); k("s_add_u32 s27, s27, s28")
        k("s_lshr_b32 s42, s26, 1")
        k("s_lshl_b32 s28, s42, 16"); k("s_add_u32 s35, s27, s28")
        k("s_xor_b32 s28, s28, 0x10000"); k("s_add_u32 s37, s27, s28")
        k(f"s_add_u32 s36, s35, {WS_K}"); k(f"s_add_u32 s38, s37, {WS_K}")
        k(f"s_add_u32 s35, s35, {WS_Q}"); k(f"s_add_u32 s37, s37, {WS_Q}")
        if QKS:
            k(f"s_add_u32 s27, s24, {QKS}"); k("s_and_b32 s27, s27, 15"); k("s_sub_u32 s27, s27, s24"); k("s_lshl_b32 s27, s27, 12")
            k("s_add_u32 s36, s36, s27"); k("s_add_u32 s38, s38, s27")
            k(f"s_add_u32 s27, s24, {2*QKS}"); k("s_and_b32 s27, s27, 15"); k("s_lshl_b32 s27, s27, 1")
        else:
            k("s_lshl_b32 s27, s24, 1")
        k("s_add_u32 s27, s27, s42")
        k("s_lshl_b32 s27, s27, 7")
        k("s_lshl_b32 s28, s23, 3"); k("s_add_u32 s27, s27, s28")
        k("s_lshl_b32 s28, s25, 2"); k("s_add_u32 s27, s27, s28")
        k("s_lshl_b32 s27, s27, 10")
        k("s_and_b32 s43, s26, 1")
        k("s_lshl_b32 s28, s43, 8"); k("s_add_u32 s27, s27, s28")
        k(f"s_add_u32 s27, s27, {WS_VT}")
        k("s_lshl_b32 s28, s42, 11"); k("s_add_u32 s39, s27, s28")
        k("s_xor_b32 s28, s28, 2048"); k("s_add_u32 s40, s27, s28")
        k("v_lshrrev_b32 v27, 5, v1"); k("v_xor_b32 v27, s43, v27"); k("v_lshlrev_b32 v27, 10, v27")
        k("v_bfe_u32 v28, v1, 4, 1"); k("v_lshl_add_u32 v27, v28, 9, v27")
        k("v_lshl_add_u32 v14, v15, 4, v27")
        k("s_lshl_b32 s28, s43, 8")
        k(f"v_xor_b32 v{vL16}, s28, v{vL16}")
        k("s_waitcnt lgkmcnt(0)")
        k("s_barrier")
        SQ = 28; CQ = 36
        if DL1 == 1: k(f"ds_read_b32 v15, v{vZ} offset:{FLAGOFF}")
        k(f"ds_read2_b32 v[{SQ}:{SQ+1}], v17 offset0:0 offset1:128")
        for jj in range(1, 4): k(f"ds_read2_b32 v[{SQ+2*jj}:{SQ+2*jj+1}], v{23+jj} offset0:0 offset1:128")
        k(f"ds_read_b128 v[{CQ}:{CQ+3}], v19")
        k(f"ds_read_b128 v[{CQ+4}:{CQ+7}], v19 offset:256")
        k("ds_read_b32 v152, v18 offset:512")
        VS = [112, 120, 128, 136]
        for jj in range(4):
            k(f"ds_read_b128 v[{VS[jj]}:{VS[jj]+3}], v{20+jj}")
            k(f"ds_read_b128 v[{VS[jj]+4}:{VS[jj]+7}], v{20+jj} offset:512")
        l7 = k.lab("norm")
        k("s_cmp_lg_u32 s20, 7"); k(f"s_cbranch_scc1 {l7}")
        k(f"ds_read_b128 v[{PL}:{PL+3}], v{vZ} offset:2048")
        k(f"ds_read_b128 v[{PL+4}:{PL+7}], v{vZ} offset:2064")
        k("s_waitcnt lgkmcnt(0)")
        for r in range(4):
            k(f"v_add_f32 v{PL+2*r}, v{PL+2*r}, v{PL+2*r+1}")
            k(f"v_mul_f32 v{PL+2*r}, 0x3a800000, v{PL+2*r}")
        k(f"v_cvt_pk_bf16_f32 v{PL+8}, v{PL}, v{PL+2}")
        k(f"v_cvt_pk_bf16_f32 v{PL+9}, v{PL+4}, v{PL+6}")
        k("s_lshl_b32 s27, s2, 3"); k(f"s_add_u32 s27, s27, {WS_RM}")
        k("s_mov_b64 exec, 1")
        k(f"buffer_store_dwordx2 v[{PL+8}:{PL+9}], v{vZ}, s[12:15], s27 offen{SC}")
        k("s_mov_b64 exec, -1")
        k(f"{l7}:")
    if not HOIST:
        k("s_mov_b32 s44, 0x3e8293ee")
        k("s_waitcnt lgkmcnt(9)")
        if DL1 == 1: k("v_readfirstlane_b32 s47, v15")
        elif DL1: k(f"s_mov_b32 s47, {1 if DL1 == 3 else 0}")
        for jj in range(4):
            k(f"v_mul_f32 v{QS+2*jj}, s44, v{SQ+2*jj}")
            k(f"v_mul_f32 v{QS+2*jj+1}, s44, v{SQ+2*jj+1}")
    TP = [16, 20, 24, 44, 48, 60]
    TM = 144
    ti = 0
    HX = os.environ.get("HX", "swd") if HOIST else ""
    if HX in ("bar", "swbar"): k("s_barrier")
    elif HX == "nop7": k("s_nop 7")
    elif HX == "nop15": k("s_nop 15")
    elif HX == "nop31": k("s_nop 15"); k("s_nop 15")
    for m in range(3):
        if m == 2 and HOIST != 1: k("s_waitcnt lgkmcnt(0)")
        for p in range(2):
            t = TP[ti]; ti += 1
            for jj2 in range(2):
                jj = 2 * p + jj2
                a = acc(m, jj)
                for h in range(2):
                    tm = TM + 2 * ((jj2 * 2 + h) & 3)
                    if m < 2:
                        st = (QS if m == 0 else SQ) + 2 * jj
                        cs = CQ + 4 * m + 2 * h
                        first = m == 0 and jj == 0 and h == 0
                        if first and HX in ("v1", "v2", "v3", "v4", "v5", "v6", "v7", "v8", "v9", "v10"):
                            pm = f"v_pk_mul_f32 v[{tm}:{tm+1}], v[{cs}:{cs+1}], v[{st}:{st+1}] op_sel:[0,1] op_sel_hi:[1,1]"
                            pf = f"v_pk_fma_f32 v[{a}:{a+1}], v[{a}:{a+1}], v[{st}:{st+1}], v[{tm}:{tm+1}] op_sel:[0,0,0] op_sel_hi:[1,0,1]"
                            if HX == "v1":
                                for e in range(2): k(f"v_mul_f32 v{tm+e}, v{cs+e}, v{st+1}")
                                k(pf)
                            elif HX == "v2":
                                k(pm)
                                for e in range(2): k(f"v_fma_f32 v{a+e}, v{a+e}, v{st}, v{tm+e}")
                            elif HX == "v3":
                                k(f"v_pk_mul_f32 v[148:149], v[{cs}:{cs+1}], v[{st}:{st+1}] op_sel:[0,1] op_sel_hi:[1,1]"); k(pm); k(pf)
                            elif HX == "v4":
                                k(pm); k("s_nop 0"); k(pf)
                            elif HX == "v5":
                                k(pm); k("s_nop 3"); k(pf)
                            elif HX == "v7":
                                k(f"v_pk_mul_f32 v[{tm}:{tm+1}], v[{cs}:{cs+1}], v[{st}:{st+1}] op_sel:[0,0] op_sel_hi:[1,0]"); k(pf)
                            elif HX == "v8":
                                k(f"v_pk_mul_f32 v[{tm}:{tm+1}], v[{cs}:{cs+1}], v[{st}:{st+1}]"); k(pf)
                            elif HX == "v9":
                                k(f"v_pk_mul_f32 v[{tm}:{tm+1}], v[{cs}:{cs+1}], v[{st}:{st+1}] op_sel:[1,1] op_sel_hi:[1,1]"); k(pf)
                            elif HX == "v10":
                                k(f"v_mul_f32 v{tm+1}, v{cs}, v{st+1}"); k(f"v_mul_f32 v{tm}, v{cs+1}, v{st+1}")
                                k(f"v_pk_fma_f32 v[{a}:{a+1}], v[{a}:{a+1}], v[{st}:{st+1}], v[{tm}:{tm+1}] op_sel:[0,0,1] op_sel_hi:[1,0,0]")
                            elif HX == "v6":
                                k(f"v_pk_mul_f32 v[{tm}:{tm+1}], v[{st}:{st+1}], v[{cs}:{cs+1}] op_sel:[1,0] op_sel_hi:[1,1]"); k(pf)
                            continue
                        if HX.startswith("np") and (m * 4 + jj) * 2 + h < int(HX[2:]):
                            for e in range(2):
                                k(f"v_mul_f32 v{tm+e}, v{cs+e}, v{st+1}")
                            for e in range(2):
                                k(f"v_fma_f32 v{a+2*h+e}, v{a+2*h+e}, v{st}, v{tm+e}")
                            continue
                        if "sw" in HX:
                            if first and HX == "swd": k(f"v_pk_mul_f32 v[{TM+4}:{TM+5}], v[{cs}:{cs+1}], v[{cs}:{cs+1}]")
                            k(f"v_pk_mul_f32 v[{tm}:{tm+1}], v[{st}:{st+1}], v[{cs}:{cs+1}] op_sel:[1,0] op_sel_hi:[1,1]")
                        else:
                            k(f"v_pk_mul_f32 v[{tm}:{tm+1}], v[{cs}:{cs+1}], v[{st}:{st+1}] op_sel:[0,1] op_sel_hi:[1,1]")
                        k(f"v_pk_fma_f32 v[{a+2*h}:{a+2*h+1}], v[{a+2*h}:{a+2*h+1}], v[{st}:{st+1}], v[{tm}:{tm+1}] op_sel:[0,0,0] op_sel_hi:[1,0,1]")
                    else:
                        rs = VS[jj] + 2 * h; nm = VS[jj] + 4 + 2 * h
                        k(f"v_pk_mul_f32 v[{tm}:{tm+1}], v[{nm}:{nm+1}], v[152:153] op_sel:[0,0] op_sel_hi:[1,0]")
                        k(f"v_pk_fma_f32 v[{a+2*h}:{a+2*h+1}], v[{a+2*h}:{a+2*h+1}], v[{rs}:{rs+1}], v[{tm}:{tm+1}]")
                k(f"v_cvt_pk_bf16_f32 v{t+2*jj2}, v{a}, v{a+1}")
                k(f"v_cvt_pk_bf16_f32 v{t+2*jj2+1}, v{a+2}, v{a+3}")
            sw = "v_permlane16_swap_b32" if m < 2 else "v_permlane32_swap_b32"
            k(f"{sw} v{t}, v{t+2}")
            k(f"{sw} v{t+1}, v{t+3}")
            so = [[35, 37], [36, 38], [39, 40]][m][p]
            st = f"buffer_store_dwordx4 v[{t}:{t+3}], v{vL16 if m < 2 else vVO}, s[12:15], s{so} offen"
            if DL1 and DLS & 1:
                lsl = k.lab("p1st"); lj = k.lab("p1stj")
                k("s_cmp_eq_u32 s47, 0"); k(f"s_cbranch_scc1 {lsl}"); k(st); k(f"s_branch {lj}"); k(f"{lsl}:"); k(st + SC); k(f"{lj}:")
            else: k(st + SC)
    k.stamp("p1_epi")
    k("s_lshl_b32 s27, s24, 7"); k(f"s_add_u32 s27, s27, {WS_CNT + C2*128}")
    if DL1 and DLS & 2:
        k("s_waitcnt vmcnt(0)"); k("s_barrier")
        l = k.lab("nosig"); lsl = k.lab("sigsl"); lj = k.lab("sigj")
        k("s_cmp_lg_u32 s20, 0"); k(f"s_cbranch_scc1 {l}")
        k("s_mov_b64 exec, 1"); k("v_mov_b32 v30, 1"); k("v_mov_b32 v31, 0")
        k("s_cmp_eq_u32 s47, 0"); k(f"s_cbranch_scc1 {lsl}")
        k(f"s_add_u32 s27, s27, {(C2F - C2)*128}")
        k("buffer_atomic_add v30, v31, s[12:15], s27 offen"); k(f"s_branch {lj}")
        k(f"{lsl}:"); k("buffer_atomic_add v30, v31, s[12:15], s27 offen sc1")
        k(f"{lj}:"); k("s_mov_b64 exec, -1"); k(f"{l}:")
    elif PROG:
        k("s_bfe_u32 s28, s23, 0x20001"); k("s_lshl_b32 s28, s28, 2"); k("s_lshl_b32 s29, 1, s28")
        signal(k, 27, vt=(30, 31), val="s29")
    else: signal(k, 27, vt=(30, 31))
    k.stamp("p1_sig")

W3BASE = 98304
vW3 = [200, 201]
C35 = int(os.environ.get("C35", "0"))
def coords35(k, stb, scb, st, x=21, y=22):
    k_ = k
    def k(l): k_(l.replace("s21", f"s{x}").replace("s22", f"s{y}"))
    k("s_and_b32 s21, s2, 7"); k("s_lshr_b32 s22, s2, 3")
    if C35 == 0:
        k(f"s_and_b32 s{stb}, s21, 3"); k(f"s_lshl_b32 s{stb}, s{stb}, 2"); k(f"s_and_b32 s{st}, s22, 3"); k(f"s_add_u32 s{stb}, s{stb}, s{st}")
        k(f"s_lshr_b32 s{scb}, s21, 2"); k(f"s_lshl_b32 s{scb}, s{scb}, 3"); k(f"s_lshr_b32 s{st}, s22, 2"); k(f"s_add_u32 s{scb}, s{scb}, s{st}")
    elif C35 == 2:
        k(f"s_lshl_b32 s{stb}, s21, 1"); k(f"s_lshr_b32 s{st}, s22, 4"); k(f"s_add_u32 s{stb}, s{stb}, s{st}")
        k(f"s_and_b32 s{scb}, s22, 15")
    elif C35 == 3:
        k(f"s_and_b32 s{stb}, s21, 1"); k(f"s_lshl_b32 s{stb}, s{stb}, 3"); k(f"s_lshr_b32 s{st}, s22, 2"); k(f"s_add_u32 s{stb}, s{stb}, s{st}")
        k(f"s_lshr_b32 s{scb}, s21, 1"); k(f"s_lshl_b32 s{scb}, s{scb}, 2"); k(f"s_and_b32 s{st}, s22, 3"); k(f"s_add_u32 s{scb}, s{scb}, s{st}")
    elif C35 == 4:
        k(f"s_and_b32 s{stb}, s21, 3"); k(f"s_lshl_b32 s{stb}, s{stb}, 2"); k(f"s_lshr_b32 s{st}, s22, 3"); k(f"s_add_u32 s{stb}, s{stb}, s{st}")
        k(f"s_lshr_b32 s{scb}, s21, 2"); k(f"s_and_b32 s{st}, s22, 7"); k(f"s_lshl_b32 s{st}, s{st}, 1"); k(f"s_add_u32 s{scb}, s{scb}, s{st}")
    else:
        k(f"s_and_b32 s{stb}, s21, 3"); k(f"s_lshl_b32 s{stb}, s{stb}, 2"); k(f"s_lshr_b32 s{st}, s22, 3"); k(f"s_add_u32 s{stb}, s{stb}, s{st}")
        k(f"s_lshr_b32 s{scb}, s21, 2"); k(f"s_lshl_b32 s{scb}, s{scb}, 3"); k(f"s_and_b32 s{st}, s22, 7"); k(f"s_add_u32 s{scb}, s{scb}, s{st}")
WT3 = int(os.environ.get("WT3", "0")); WT5 = int(os.environ.get("WT5", "0"))
WDT = int(os.environ.get("WDT", "3"))
WS_WDT = 0x3000000
SK5 = int(os.environ.get("SK5", "1"))
SKX = int(os.environ.get("SKX", "1"))
R5K = int(os.environ.get("R5K", "5"))
WS_XI = 0x3800000
WS_XID = 0x3C00000
SKF = int(os.environ.get("SKF", "1"))
SKA = int(os.environ.get("SKA", "1"))
SKT = int(os.environ.get("SKT", "25"))
SKO = int(os.environ.get("SKO", "3"))
SKG = int(os.environ.get("SKG", "4")); SKPA = int(os.environ.get("SKPA", "3"))
L2P = int(os.environ.get("L2P", "0")); L2S = int(os.environ.get("L2S", "28")); L2T = int(os.environ.get("L2T", "5")); L2D = int(os.environ.get("L2D", "1")); L2G = [int(x) for x in os.environ.get("L2G", "6,2,6").split(",")]
SKR = int(os.environ.get("SKR", "1"))
WDA = int(os.environ.get("WDA", "3")); WDP = int(os.environ.get("WDP", "4"))
def w35_setup(k, vW, base, t, tiled=0):
    coords35(k, 27, 29, 28)
    rb = 128 if tiled else 2048
    wdma_lane(k, vW[0], rb, t)
    k(f"v_add_u32 v{vW[1]}, {4*rb}, v{vW[0]}")
    k("s_lshr_b32 s27, s20, 1"); k("s_lshl_b32 s27, s27, 5"); k("s_and_b32 s28, s20, 1"); k("s_lshl_b32 s28, s28, 4")
    k("s_add_u32 s27, s27, s28")
    if tiled and SK5 and base == 0:
        k("s_and_b32 s27, s20, 3"); k("s_lshl_b32 s27, s27, 4"); k("s_and_b32 s28, s29, 1"); k(f"s_mul_i32 s28, s28, {DF//2}"); k("s_add_u32 s27, s27, s28")
        k("s_lshr_b32 s28, s20, 2"); k("s_xor_b32 s28, s28, 1"); k("s_xor_b32 s29, s29, s28")
    if SK3 and base and not tiled:
        k("s_and_b32 s27, s20, 3"); k("s_lshl_b32 s27, s27, 4"); k("s_and_b32 s28, s29, 1"); k(f"s_mul_i32 s28, s28, {D//2}"); k("s_add_u32 s27, s27, s28")
        k("s_lshr_b32 s28, s20, 2"); k("s_xor_b32 s28, s28, 1"); k("s_xor_b32 s29, s29, s28")
    if tiled:
        k("s_lshl_b32 s50, s27, 7"); k(f"s_mul_i32 s28, s29, {tiled*128}"); k("s_add_u32 s50, s50, s28")
        if WDT and base == 0: k(f"s_add_u32 s50, s50, {WS_WDT}")
    else:
        k("s_lshl_b32 s50, s27, 11"); k("s_lshl_b32 s28, s29, 7"); k("s_add_u32 s50, s50, s28")
        if os.environ.get("WOFF64") and base == 0: k("s_add_u32 s50, s50, 64")
    k("s_lshl_b32 s51, s20, 11")
    if base: k(f"s_add_u32 s51, s51, {base}")
def w35_dma(vW, srdw, slot):
    sc = SC if srdw == 12 else ""
    return [[f"s_add_u32 m0, s51, {slot*16384}", f"buffer_load_dwordx4 v{vW[0]}, s[{srdw}:{srdw+3}], s50 offen{sc} lds"],
            [f"s_add_u32 m0, s51, {slot*16384+1024}", f"buffer_load_dwordx4 v{vW[1]}, s[{srdw}:{srdw+3}], s50 offen{sc} lds"]]
W3ADV = f"s_add_u32 s50, s50, {(64 if SK3 else 128)*(128 if WT3 else 2048)}"
W5ADV = f"s_add_u32 s50, s50, {(64 if SK5 else 128)*(128 if WT5 or WDT else 2048)}"
SW5 = 12 if WDT else 60

WOPF = int(os.environ.get("WOPF", "1"))
OT = int(os.environ.get("OT", "0"))
def phase2(k):
    S2 = [SC, "", " nt", " sc0"][int(os.environ.get("DLL", "0"))]
    STG = 32768
    vL16, vCur, vNxt, vTmp = 2, 3, 4, 5
    QA, QB = 8, 16
    KF = [24, 32]; VF = [40, 48]
    SA, SB = 56, 72
    PA, PB = 88, 96
    OA, OB = 104, 120
    LA, LB = 136, 140
    NA, NB = 144, 160
    ONE = 176
    T0 = 180
    w35_setup(k, vW3, W3BASE, 180, D if WT3 else 0)
    srd(k, 8, pBX if WT3 else pWO, D * D * 2)
    k("s_and_b32 s21, s2, 7"); k("s_lshl_b32 s21, s21, 2"); k("s_lshr_b32 s22, s2, 6"); k("s_add_u32 s21, s21, s22")
    k("s_bfe_u32 s22, s2, 0x30003")
    k("s_and_b32 s23, s20, 3")
    k("s_lshr_b32 s24, s20, 2")
    k(f"v_lshlrev_b32 v{vL16}, 4, v1")
    k("s_lshl_b32 s30, s24, 5"); k("s_add_u32 s30, s30, s23"); k("s_lshl_b32 s30, s30, 16")
    k("s_lshl_b32 s25, s21, 11"); k("s_add_u32 s30, s30, s25"); k(f"s_add_u32 s30, s30, {WS_K}")
    k("s_lshl_b32 s31, s21, 7"); k("s_lshl_b32 s25, s24, 6"); k("s_add_u32 s31, s31, s25")
    k("s_lshl_b32 s25, s23, 1"); k("s_add_u32 s31, s31, s25"); k("s_lshl_b32 s31, s31, 10"); k(f"s_add_u32 s31, s31, {WS_VT}")
    k("s_lshl_b32 s32, s24, 14"); k("s_lshl_b32 s25, s23, 11"); k("s_add_u32 s32, s32, s25")
    k("s_lshl_b32 s33, s22, 3"); k("s_lshl_b32 s25, s23, 1"); k("s_add_u32 s33, s33, s25"); k("s_lshl_b32 s33, s33, 16")
    k("s_lshl_b32 s25, s21, 11"); k("s_add_u32 s33, s33, s25")
    k(f"s_add_u32 s45, s33, {WS_O}")
    k(f"s_add_u32 s33, s33, {WS_Q}")
    k("s_add_u32 s34, s33, 65536")
    k(f"v_lshrrev_b32 v{vTmp}, 2, v1"); k(f"v_lshrrev_b32 v{T0}, 4, v1"); k(f"v_xor_b32 v{vTmp}, v{vTmp}, v{T0}")
    k(f"v_and_b32 v{vTmp}, 1, v{vTmp}"); k(f"v_cmp_eq_u32 vcc, 0, v{vTmp}")
    k(f"v_mov_b32 v{T0}, 0x3f803f80")
    k(f"v_cndmask_b32 v{ONE}, 0, v{T0}, vcc")
    for r in range(1, 4): k(f"v_mov_b32 v{ONE+r}, v{ONE}")
    for r in range(32): k(f"v_mov_b32 v{NA+r}, 0")
    k("s_mov_b32 s46, 0")
    k("s_lshl_b32 s25, s24, 14")
    k(f"v_add_u32 v{vTmp}, s25, v{vL16}")
    if PFW:
        k("s_lshl_b32 s25, s2, 3"); k("s_add_u32 s25, s25, s20")
        k("s_mul_i32 s26, s25, 3584")
        k(f"v_lshlrev_b32 v198, 6, v1"); k("v_add_u32 v198, s26, v198")
        srd(k, 88, pWO, D * D * 2)
        k(f"s_mov_b64 s[92:93], s[{pWG}:{pWG+1}]"); k(f"s_mov_b64 s[94:95], s[{pWU}:{pWU+1}]"); k(f"s_mov_b64 s[96:97], s[{pWD}:{pWD+1}]")
    WDR, vWDS = 208, 224
    if JIT & 2: k("s_mov_b32 s52, L_p2tail-L_cb")
    if WDT:
        srd(k, 60, pWD, DF * D * 2)
        k(f"v_lshrrev_b32 v{vWDS}, 3, v1"); k(f"s_mov_b32 s26, {DF*128}"); k(f"v_mul_lo_u32 v{vWDS}, v{vWDS}, s26")
        k(f"v_and_b32 v{vWDS+1}, 7, v1"); k(f"v_lshl_add_u32 v{vWDS}, v{vWDS+1}, 4, v{vWDS}")
        k("s_mul_i32 s98, s2, 14"); k("s_lshl_b32 s26, s20, 1"); k("s_add_u32 s98, s98, s26"); k("s_lshl_b32 s98, s98, 7")
        k(f"s_add_u32 s98, s98, {WS_WDT - 256}"); k(f"s_add_u32 s99, s98, {8*DF*128}")
        k("s_mul_i32 s100, s2, 28672"); k("s_lshl_b32 s26, s20, 12"); k("s_add_u32 s100, s100, s26"); k("s_sub_u32 s100, s100, 4096")
        k("s_cmp_eq_u32 s20, 0"); k(f"s_cselect_b32 s101, 99, {WDA}")
        if WDT == 3: k(f"s_cselect_b32 s101, 99, {hex((-WDA - 1) & 0xffffffff)}")
        if WDT >= 2:
            assert WDA % 2 == 1
            k(f"s_sub_u32 s98, s98, {128 * ((WDA + 1) // 2)}"); k(f"s_mov_b32 s99, {8*DF*128}"); k(f"s_sub_u32 s100, s100, {1024*WDA}")
    if SK5 and SKX:
        lf = k.lab("nofill")
        k("s_cmp_lt_u32 s20, 4"); k(f"s_cbranch_scc1 {lf}")
        coords35(k, 27, 29, 28, 25, 26)
        k("s_lshl_b32 s27, s27, 4"); k("s_add_u32 s29, s27, s29")
        k("s_lshl_b32 s27, s29, 14"); k("s_and_b32 s28, s20, 3"); k("s_lshl_b32 s28, s28, 12"); k("s_add_u32 s27, s27, s28"); k(f"s_add_u32 s27, s27, {WS_XI}")
        for r in range(4): k(f"v_mov_b32 v{KF[1]+r}, -1")
        for q in range(4): k(f"buffer_store_dwordx4 v[{KF[1]}:{KF[1]+3}], v{vL16}, s[12:15], s27 offen offset:{1024*q}{SC}")
        if SKF:
            k("s_getreg_b32 s26, hwreg(HW_REG_XCC_ID, 0, 4)")
            k("s_lshl_b32 s27, s29, 10"); k("s_lshr_b32 s28, s28, 4"); k("s_add_u32 s27, s27, s28"); k(f"s_add_u32 s27, s27, {WS_XID}")
            k(f"v_mov_b32 v{KF[1]+4}, s26"); k(f"v_lshlrev_b32 v{KF[1]+5}, 2, v1")
            k(f"buffer_store_dword v{KF[1]+4}, v{KF[1]+5}, s[12:15], s27 offen{SC}")
        if SK3:
            k("s_lshr_b32 s27, s21, 4"); k("s_lshl_b32 s29, s22, 1"); k("s_add_u32 s29, s29, s27"); k("s_lshl_b32 s29, s29, 4"); k("s_and_b32 s27, s21, 15"); k("s_add_u32 s29, s29, s27")
            k("s_and_b32 s28, s20, 3"); k("s_lshl_b32 s28, s28, 12"); k("s_lshl_b32 s27, s29, 14"); k("s_add_u32 s27, s27, s28"); k(f"s_add_u32 s27, s27, {WS_XI3}")
            for q in range(4): k(f"buffer_store_dwordx4 v[{KF[1]}:{KF[1]+3}], v{vL16}, s[12:15], s27 offen offset:{1024*q}{SC}")
            k("s_lshr_b32 s28, s28, 3"); k("s_lshl_b32 s27, s29, 11"); k("s_add_u32 s27, s27, s28"); k(f"s_add_u32 s27, s27, {WS_XM3}")
            k(f"v_lshlrev_b32 v{KF[1]+6}, 3, v1")
            k(f"buffer_store_dwordx2 v[{KF[1]}:{KF[1]+1}], v{KF[1]+6}, s[12:15], s27 offen{SC}")
        k(f"{lf}:")
    if QKS:
        k(f"v_mul_u32_u24 v{T0+1}, {QKS}, v1"); k("s_lshr_b32 s27, s21, 1"); k(f"v_sub_u32 v{T0+1}, s27, v{T0+1}")
        k(f"v_and_b32 v{T0+1}, 15, v{T0+1}"); k(f"v_lshlrev_b32 v{T0+1}, 7, v{T0+1}")
        k(f"s_mov_b32 s27, {WS_CNT + C2*128}")
        wait_multi(k, 27, 16, 3, vt=(T0, T0 + 1))
    else:
        k("s_lshr_b32 s27, s21, 1"); k("s_lshl_b32 s27, s27, 7"); k(f"s_add_u32 s27, s27, {WS_CNT + C2*128}")
        if DL1 and DLS & 2: k(f"s_mul_i32 s28, s47, {(C2F - C2)*128}"); k("s_add_u32 s27, s27, s28")
        if PROG:
            assert PD == 1 and not DL1 and not JIT
            k("s_mov_b32 s52, s27"); k("s_and_b32 s56, s22, 3")
            k("s_lshl_b32 s28, s56, 19"); k("s_add_u32 s53, s30, s28"); k("s_lshl_b32 s28, s56, 14"); k("s_add_u32 s54, s31, s28")
            k(f"s_add_u32 s55, s30, {8*4*65536}"); k("s_lshl_b32 s56, s56, 2"); k("s_lshl_b32 s56, 15, s56")
            if PROG == 2:
                k("s_mov_b32 s53, s30"); k("s_mov_b32 s54, s31"); k("s_or_b32 s56, s56, 15")
            if PROG == 3:
                k("s_and_b32 s57, s22, 2"); k("s_lshl_b32 s28, s57, 19"); k("s_add_u32 s53, s30, s28"); k("s_lshl_b32 s28, s57, 14"); k("s_add_u32 s54, s31, s28")
                k("s_lshl_b32 s57, s57, 2"); k("s_lshl_b32 s57, 15, s57"); k("s_or_b32 s56, s56, s57")
            k("s_and_b32 s57, s56, 0x4444")
            wait(k, 27, "s57", vt=(T0, T0 + 1), fld=56)
        else: wait(k, 27, 16, vt=(T0, T0 + 1), pr=KF[0])
    k.stamp("p2_wait")
    for kk in range(2):
        k(f"buffer_load_dwordx4 v[{QA+4*kk}:{QA+4*kk+3}], v{vL16}, s[12:15], s33 offen offset:{1024*kk}{S2}")
        k(f"buffer_load_dwordx4 v[{QB+4*kk}:{QB+4*kk+3}], v{vL16}, s[12:15], s34 offen offset:{1024*kk}{S2}")
    def dma_stage():
        k("s_add_u32 m0, s42, s32")
        k(f"buffer_load_dwordx4 v{vL16}, s[12:15], s40 offen{S2} lds")
        k(f"buffer_load_dwordx4 v{vL16}, s[12:15], s40 offen offset:1024{S2} lds")
        k("s_add_u32 m0, m0, 8192")
        k(f"buffer_load_dwordx4 v{vL16}, s[12:15], s41 offen{S2} lds")
        k(f"buffer_load_dwordx4 v{vL16}, s[12:15], s41 offen offset:1024{S2} lds")
        k(f"s_add_u32 s40, s40, {4*65536}")
        k("s_add_u32 s41, s41, 8192")
        if PROG: k("s_cmp_eq_u32 s40, s55"); k("s_cselect_b32 s40, s30, s40"); k("s_cselect_b32 s41, s31, s41")
    lmain = k.lab("p2main"); lloop = k.lab("p2loop"); lfin = k.lab("p2fin"); lfb = k.lab("p2fb"); lend = k.lab("p2end")
    k(f"{lmain}:")
    if PROG: k("s_mov_b32 s40, s53"); k("s_mov_b32 s41, s54")
    else: k("s_mov_b32 s40, s30"); k("s_mov_b32 s41, s31")
    k("s_mov_b32 s42, 0"); dma_stage()
    k(f"s_mov_b32 s42, {STG}"); dma_stage()
    k(f"s_mov_b32 s42, {2*STG}")
    k(f"v_mov_b32 v{vCur}, v{vTmp}")
    k(f"v_add_u32 v{vNxt}, {STG}, v{vTmp}")
    k(f"s_mov_b32 s43, {STG}")
    for r in range(16): k(f"v_mov_b32 v{OA+r}, 0"); k(f"v_mov_b32 v{OB+r}, 0")
    for r in range(4): k(f"v_mov_b32 v{LA+r}, 0"); k(f"v_mov_b32 v{LB+r}, 0")
    for r in range(8): k(f"v_mov_b32 v{PB+r}, 0"); k(f"v_mov_b32 v{VF[1]+r}, 0")
    def wo_ring():
        lnp = k.lab("p2nopf")
        k("s_cmp_lg_u32 s46, 0"); k(f"s_cbranch_scc1 {lnp}")
        for t in range(4):
            for d in w35_dma(vW3, 8, t):
                for l in d: k(l)
            k(W3ADV)
        k(f"{lnp}:")
    if WOPF == 0:
        lnp = k.lab("p2nopf"); lj = k.lab("p2pfj")
        k("s_cmp_lg_u32 s46, 0"); k(f"s_cbranch_scc1 {lnp}")
        for t in range(4):
            for d in w35_dma(vW3, 8, t):
                for l in d: k(l)
            k(W3ADV)
        k("s_waitcnt vmcnt(12)")
        k(f"s_branch {lj}")
        k(f"{lnp}:")
        k("s_waitcnt vmcnt(4)")
        k(f"{lj}:")
    else:
        k("s_waitcnt vmcnt(4)")
    k("s_barrier")
    k.stamp("p2_go")
    if WOPF == 1: wo_ring()
    if PROG: k(f"v_mov_b32 v{T0+1}, 0"); k(f"buffer_load_dword v{T0}, v{T0+1}, s[12:15], s52 offen sc1")
    for kk in range(2):
        k(f"ds_read_b128 v[{KF[0]+4*kk}:{KF[0]+4*kk+3}], v{vCur} offset:{1024*kk}")
    k("s_waitcnt lgkmcnt(0)")
    def qk(Sx, Qx, Nx, kf):
        return [f"v_mfma_f32_32x32x16_bf16 v[{Sx}:{Sx+15}], v[{kf}:{kf+3}], v[{Qx}:{Qx+3}], v[{Nx}:{Nx+15}]",
                f"v_mfma_f32_32x32x16_bf16 v[{Sx}:{Sx+15}], v[{kf+4}:{kf+7}], v[{Qx+4}:{Qx+7}], v[{Sx}:{Sx+15}]"]
    def pv(Ox, Px, Lx, vf):
        return [f"v_mfma_f32_32x32x16_bf16 v[{Ox}:{Ox+15}], v[{vf}:{vf+3}], v[{Px}:{Px+3}], v[{Ox}:{Ox+15}]",
                f"v_mfma_f32_32x32x16_bf16 v[{Ox}:{Ox+15}], v[{vf+4}:{vf+7}], v[{Px+4}:{Px+7}], v[{Ox}:{Ox+15}]",
                f"v_mfma_f32_16x16x32_bf16 v[{Lx}:{Lx+3}], v[{ONE}:{ONE+3}], v[{Px}:{Px+3}], v[{Lx}:{Lx+3}]",
                f"v_mfma_f32_16x16x32_bf16 v[{Lx}:{Lx+3}], v[{ONE}:{ONE+3}], v[{Px+4}:{Px+7}], v[{Lx}:{Lx+3}]"]
    def expv(Sx, Px):
        o = []
        for g in range(4):
            o += [f"v_exp_f32 v{Sx+4*g+r}, v{Sx+4*g+r}" for r in range(4)]
            o += [f"v_cvt_pk_bf16_f32 v{Px+2*g}, v{Sx+4*g}, v{Sx+4*g+1}", f"v_cvt_pk_bf16_f32 v{Px+2*g+1}, v{Sx+4*g+2}, v{Sx+4*g+3}"]
        return o
    def phase(mf, va, extra):
        for i in range(6):
            k(mf[i])
            for (p, l) in extra:
                if p == i: k(l)
            for l in va[4*i:4*i+4]: k(l)
    for l in qk(SA, QA, NA, KF[0]): k(l)
    k("s_mov_b32 s44, 0")
    k(f"{lloop}:")
    for i in range(4):
        cb = i & 1; nb = cb ^ 1
        ex = []
        if i == 3:
            lnd = k.lab("nodma")
            k(f"s_waitcnt vmcnt({(1 if PFW and PFI < 3 else 0) + (1 if JIT & 2 else 0)})")
            k("s_barrier")
            k("s_cmp_ge_u32 s44, 6")
            k(f"s_cbranch_scc1 {lnd}")
            if PROG:
                lok = k.lab("p2all"); lsp = k.lab("p2spin")
                k("s_cmp_lg_u32 s44, 0"); k(f"s_cbranch_scc1 {lok}")
                k("s_mov_b32 s28, 0")
                k(f"{lsp}:")
                k(f"v_readfirstlane_b32 s29, v{T0}")
                k("s_cmp_eq_u32 s29, 0x4444"); k(f"s_cbranch_scc1 {lok}")
                k("s_add_u32 s28, s28, 1")
                k(f"s_cmp_gt_u32 s28, {SPIN_LIMIT}"); k(f"s_cbranch_scc1 {lok}")
                k(f"buffer_load_dword v{T0}, v{T0+1}, s[12:15], s52 offen sc1")
                k("s_waitcnt vmcnt(0)")
                k(f"s_branch {lsp}")
                k(f"{lok}:")
            dma_stage()
            k(f"s_add_u32 s42, s42, {STG}")
            k(f"s_cmp_eq_u32 s42, {3*STG}")
            k("s_cselect_b32 s42, 0, s42")
            if WOPF == 3:
                lws = k.lab("wosk")
                k(f"s_cmp_lg_u32 s44, {int(os.environ.get('WOI', '0'))}"); k(f"s_cbranch_scc1 {lws}")
                wo_ring()
                k(f"{lws}:")
            k(f"{lnd}:")
            if WDT == 1:
                lw = k.lab("nowd"); ls = k.lab("wdst")
                k("s_sub_u32 s27, s44, s101"); k("s_cmp_lt_u32 s27, 2"); k(f"s_cbranch_scc0 {lw}")
                k("s_cmp_eq_u32 s27, 1"); k(f"s_cbranch_scc1 {ls}")
                for q in range(4):
                    k(f"buffer_load_dwordx4 v[{WDR+4*q}:{WDR+4*q+3}], v{vL16}, s[60:63], s100 offen offset:{1024*q}")
                k(f"s_branch {lw}")
                k(f"{ls}:")
                for q in range(4):
                    k(f"buffer_store_dwordx4 v[{WDR+4*q}:{WDR+4*q+3}], v{vWDS}, s[12:15], s{98 + (q & 1)} offen offset:{128*(q>>1)}{SC}")
                k(f"{lw}:")
            if WDT == 2:
                k("s_sub_u32 s27, s44, s101"); k("s_sub_u32 s27, s27, 1")
                k("s_cmp_lt_u32 s27, 4"); k("s_cselect_b64 exec, -1, 0")
                k(f"buffer_store_dwordx4 v[{WDR}:{WDR+3}], v{vWDS}, s[12:15], s98 offen{SC}")
                k("s_add_u32 s27, s27, 1")
                k("s_cmp_lt_u32 s27, 4"); k("s_cselect_b64 exec, -1, 0")
                k(f"buffer_load_dwordx4 v[{WDR}:{WDR+3}], v{vL16}, s[60:63], s100 offen")
                k("s_mov_b64 exec, -1")
                k("s_add_u32 s98, s98, s99"); k("s_sub_u32 s99, 128, s99"); k("s_add_u32 s100, s100, 1024")
        if i == PFI and PFW:
            ex += [(4, "buffer_load_dword v199, v198, s[88:91], 0 offen"),
                   (5, "s_mov_b64 s[88:89], s[92:93]"), (5, "s_mov_b64 s[92:93], s[94:95]"), (5, "s_mov_b64 s[94:95], s[96:97]"),
                   (5, f"s_cmp_lt_u32 s44, {2 if WDT else 3}"), (5, f"s_cselect_b32 s90, {hex(D*DF*2)}, 0")]
        if i == 0 and JIT & 2:
            ex += [(5, "buffer_load_dword v231, v252, s[80:83], s52 offen")]
        for kk in range(2):
            if i < 3: ex.append((kk, f"ds_read_b128 v[{KF[nb]+4*kk}:{KF[nb]+4*kk+3}], v{vCur} offset:{(i+1)*2048 + 1024*kk}"))
            else:     ex.append((kk, f"ds_read_b128 v[{KF[nb]+4*kk}:{KF[nb]+4*kk+3}], v{vNxt} offset:{1024*kk}"))
        for mm in range(2):
            ex.append((2 + mm, f"ds_read_b128 v[{VF[cb]+4*mm}:{VF[cb]+4*mm+3}], v{vCur} offset:{8192 + i*2048 + 1024*mm}"))
        phase(qk(SB, QB, NB, KF[cb]) + pv(OB, PB, LB, VF[nb]), expv(SA, PA), ex)
        k("s_waitcnt lgkmcnt(0)")
        ex = []
        if i == 3:
            ex = [(0, f"v_mov_b32 v{vCur}, v{vNxt}"), (1, f"s_add_u32 s43, s43, {STG}"), (1, f"s_cmp_eq_u32 s43, {3*STG}"),
                  (2, "s_cselect_b32 s43, 0, s43"), (3, f"v_add_u32 v{vNxt}, s43, v{vTmp}")]
            if WDT == 3:
                p = WDP
                ex += [(p, x) for x in ("s_cmp_lt_u32 s101, 4", "s_cselect_b64 exec, -1, 0",
                       f"buffer_store_dwordx4 v[{WDR}:{WDR+3}], v{vWDS}, s[12:15], s98 offen{SC}",
                       "s_add_u32 s101, s101, 1", "s_cmp_lt_u32 s101, 4", "s_cselect_b64 exec, -1, 0",
                       f"buffer_load_dwordx4 v[{WDR}:{WDR+3}], v{vL16}, s[60:63], s100 offen", "s_mov_b64 exec, -1")]
                ex += [(5, x) for x in ("s_add_u32 s98, s98, s99", "s_sub_u32 s99, 128, s99", "s_add_u32 s100, s100, 1024")]
        phase(qk(SA, QA, NA, KF[nb]) + pv(OA, PA, LA, VF[cb]), expv(SB, PB), ex)
    k("s_add_u32 s44, s44, 1")
    k("s_cmp_lt_u32 s44, 8")
    k(f"s_cbranch_scc1 {lloop}")
    if JIT & 2: k("L_p2tail:")
    for l in pv(OB, PB, LB, VF[1]): k(l)
    k.stamp("p2_loop")
    if WOPF == 2: wo_ring()
    k("s_nop 7"); k("s_nop 3")
    lns = k.lab("nosw")
    k("s_cmp_eq_u32 s24, 0")
    k(f"s_cbranch_scc1 {lns}")
    for r in range(16): k(f"v_swap_b32 v{OA+r}, v{OB+r}")
    k(f"v_swap_b32 v{LA}, v{LB}")
    k(f"{lns}:")
    k("s_barrier")
    k("s_mul_i32 s25, s20, 5120")
    k(f"v_add_u32 v{T0}, s25, v{vL16}")
    k(f"v_lshlrev_b32 v{T0+1}, 2, v1"); k(f"v_add_u32 v{T0+1}, s25, v{T0+1}")
    for i in range(4): k(f"ds_write_b128 v{T0}, v[{OB+4*i}:{OB+4*i+3}] offset:{1024*i}")
    k(f"ds_write_b32 v{T0+1}, v{LB} offset:4096")
    k("s_xor_b32 s26, s20, 4"); k("s_mul_i32 s25, s26, 5120")
    k(f"v_add_u32 v{T0}, s25, v{vL16}")
    k(f"v_lshlrev_b32 v{T0+1}, 2, v1"); k(f"v_add_u32 v{T0+1}, s25, v{T0+1}")
    k("s_waitcnt lgkmcnt(0)")
    k("s_barrier")
    for i in range(4): k(f"ds_read_b128 v[{OB+4*i}:{OB+4*i+3}], v{T0} offset:{1024*i}")
    k(f"ds_read_b32 v{LB}, v{T0+1} offset:4096")
    k("s_waitcnt lgkmcnt(0)")
    k(f"v_add_f32 v{LA}, v{LA}, v{LB}")
    for r in range(16): k(f"v_add_f32 v{OA+r}, v{OA+r}, v{OB+r}")
    k("s_cmp_lg_u32 s46, 0")
    k(f"s_cbranch_scc1 {lfin}")
    k(f"v_mov_b32 v{T0+2}, v{LA}")
    for r in range(16): k(f"v_fma_f32 v{T0+2}, v{OA+r}, 0, v{T0+2}")
    k(f"v_mov_b32 v{T0+3}, 0x71800000")
    k(f"v_cmp_le_f32 vcc, 1.0, v{T0+2}")
    k(f"v_cmp_le_f32 s[48:49], v{T0+2}, v{T0+3}")
    k("s_and_b64 vcc, vcc, s[48:49]")
    k("s_cmp_eq_u64 vcc, -1")
    k("s_cselect_b32 s47, 0, 1")
    k(f"v_mov_b32 v{T0+2}, s47")
    k(f"s_lshl_b32 s25, s20, 2"); k(f"v_mov_b32 v{T0+3}, s25")
    k(f"ds_write_b32 v{T0+3}, v{T0+2} offset:45056")
    k("s_waitcnt lgkmcnt(0)")
    k("s_barrier")
    k(f"v_mov_b32 v{T0+3}, 0")
    k(f"ds_read_b128 v[{T0+4}:{T0+7}], v{T0+3} offset:45056")
    k(f"ds_read_b128 v[{T0+8}:{T0+11}], v{T0+3} offset:45072")
    k("s_waitcnt lgkmcnt(0)")
    k(f"v_or3_b32 v{T0+4}, v{T0+4}, v{T0+5}, v{T0+6}")
    k(f"v_or3_b32 v{T0+8}, v{T0+8}, v{T0+9}, v{T0+10}")
    k(f"v_or3_b32 v{T0+4}, v{T0+4}, v{T0+7}, v{T0+11}")
    k(f"v_or_b32 v{T0+4}, v{T0+4}, v{T0+8}")
    k(f"v_readfirstlane_b32 s47, v{T0+4}")
    k("s_cmp_lg_u32 s47, 0")
    k(f"s_cbranch_scc1 {lfb}")
    k(f"{lfin}:")
    k(f"v_rcp_f32 v{LA}, v{LA}")
    for g in range(4):
        for r in range(4): k(f"v_mul_f32 v{OA+4*g+r}, v{OA+4*g+r}, v{LA}")
        k(f"v_cvt_pk_bf16_f32 v{SA+2*g}, v{OA+4*g}, v{OA+4*g+1}")
        k(f"v_cvt_pk_bf16_f32 v{SA+2*g+1}, v{OA+4*g+2}, v{OA+4*g+3}")
    k("s_lshl_b32 s25, s24, 16"); k("s_add_u32 s45, s45, s25")
    for p in range(2):
        k(f"v_permlane32_swap_b32 v{SA+4*p}, v{SA+4*p+2}")
        k(f"v_permlane32_swap_b32 v{SA+4*p+1}, v{SA+4*p+3}")
        k(f"buffer_store_dwordx4 v[{SA+4*p}:{SA+4*p+3}], v{vL16}, s[12:15], s45 offen offset:{1024*p}{SC}")
    k(f"s_branch {lend}")
    k(f"{lfb}:")
    k("s_mov_b32 s46, 1")
    if WDT: k("s_mov_b32 s101, 99")
    k("s_barrier")
    MA, MB = T0 + 2, T0 + 3
    k(f"v_mov_b32 v{MA}, 0xff800000"); k(f"v_mov_b32 v{MB}, 0xff800000")
    k("s_lshl_b32 s40, s24, 21"); k("s_lshl_b32 s25, s21, 11"); k("s_add_u32 s40, s40, s25"); k(f"s_add_u32 s40, s40, {WS_K}")
    k("s_mov_b32 s44, 0")
    lfl = k.lab("p2fbl")
    k(f"{lfl}:")
    for kk in range(2):
        k(f"buffer_load_dwordx4 v[{KF[0]+4*kk}:{KF[0]+4*kk+3}], v{vL16}, s[12:15], s40 offen offset:{1024*kk}{SC}")
    k("s_waitcnt vmcnt(0)")
    for (Sx, Qx) in ((SA, QA), (SB, QB)):
        k(f"v_mfma_f32_32x32x16_bf16 v[{Sx}:{Sx+15}], v[{KF[0]}:{KF[0]+3}], v[{Qx}:{Qx+3}], 0")
        k(f"v_mfma_f32_32x32x16_bf16 v[{Sx}:{Sx+15}], v[{KF[0]+4}:{KF[0]+7}], v[{Qx+4}:{Qx+7}], v[{Sx}:{Sx+15}]")
    for (Sx, Mx) in ((SA, MA), (SB, MB)):
        for r in range(0, 16, 2): k(f"v_max3_f32 v{Mx}, v{Mx}, v{Sx+r}, v{Sx+r+1}")
    k("s_add_u32 s40, s40, 65536")
    k("s_add_u32 s44, s44, 1")
    k("s_cmp_lt_u32 s44, 32")
    k(f"s_cbranch_scc1 {lfl}")
    for Mx in (MA, MB):
        k(f"v_mov_b32 v{T0+4}, v{Mx}")
        k(f"v_permlane32_swap_b32 v{Mx}, v{T0+4}")
        k(f"v_max_f32 v{Mx}, v{Mx}, v{T0+4}")
    k("s_lshl_b32 s25, s20, 9")
    k(f"v_lshlrev_b32 v{T0+4}, 3, v1"); k(f"v_add_u32 v{T0+5}, s25, v{T0+4}")
    k(f"ds_write_b64 v{T0+5}, v[{MA}:{MB}]")
    k("s_xor_b32 s26, s20, 4"); k("s_lshl_b32 s25, s26, 9")
    k(f"v_add_u32 v{T0+5}, s25, v{T0+4}")
    k("s_waitcnt lgkmcnt(0)")
    k("s_barrier")
    k(f"ds_read_b64 v[{T0+6}:{T0+7}], v{T0+5}")
    k("s_waitcnt lgkmcnt(0)")
    k(f"v_max_f32 v{MA}, v{MA}, v{T0+6}")
    k(f"v_max_f32 v{MB}, v{MB}, v{T0+7}")
    for r in range(16):
        k(f"v_sub_f32 v{NA+r}, 0, v{MA}")
        k(f"v_sub_f32 v{NB+r}, 0, v{MB}")
    k("s_barrier")
    k(f"s_branch {lmain}")
    k(f"{lend}:")
    k.stamp("p2_epi")
    k("s_lshl_b32 s27, s22, 7"); k(f"s_add_u32 s27, s27, {WS_CNT + C3*128}")
    signal(k, 27, vt=(T0, T0 + 1))
    k.stamp("p2_sig")

SLOT4 = 30720; UOFF = 7168; BOFF4 = 14336
RMOFF = 75776; XMOFF = 83968; HKOFF = 147456
vPW = 202
vW5 = [240, 241]
NPF5 = int(os.environ.get("NPF5", "3"))
NS5 = int(os.environ.get("NS5", "5")); R3 = int(os.environ.get("R3", "4")); R5 = int(os.environ.get("R5", "6"))
def w4_piece_lane(k, vdst, vidx, t):
    k(f"v_mul_u32_u24 v{t}, 4682, v{vidx}"); k(f"v_lshrrev_b32 v{t}, 16, v{t}")
    k(f"v_mul_u32_u24 v{t+1}, 14, v{t}"); k(f"v_sub_u32 v{t+1}, v{vidx}, v{t+1}")
    k(f"v_and_b32 v{t+2}, 0x33, v{t}")
    k(f"v_bfe_u32 v{vidx}, v{t}, 2, 1"); k(f"v_lshl_add_u32 v{t+2}, v{vidx}, 3, v{t+2}")
    k(f"v_bfe_u32 v{vidx}, v{t}, 3, 1"); k(f"v_lshl_add_u32 v{t+2}, v{vidx}, 2, v{t+2}")
    k(f"v_mul_u32_u24 v{t+2}, 7168, v{t+2}")
    k(f"v_lshl_add_u32 v{vdst}, v{t+1}, 4, v{t+2}")
def coords4(k, stb, scb, st):
    k("s_and_b32 s21, s2, 7"); k("s_lshr_b32 s22, s2, 3")
    k(f"s_and_b32 s{stb}, s21, 1"); k(f"s_lshl_b32 s{stb}, s{stb}, 2"); k(f"s_and_b32 s{st}, s22, 3"); k(f"s_add_u32 s{stb}, s{stb}, s{st}")
    k(f"s_lshr_b32 s{scb}, s21, 1"); k(f"s_lshl_b32 s{scb}, s{scb}, 3"); k(f"s_lshr_b32 s{st}, s22, 2"); k(f"s_add_u32 s{scb}, s{scb}, s{st}")
def pf4_setup(k, t):
    coords4(k, 27, 29, 28)
    k("s_mul_i32 s40, s29, 224")
    k("s_min_u32 s27, s20, 6"); k("s_lshl_b32 s42, s27, 10"); k("s_lshl_b32 s27, s27, 6")
    k(f"v_add_u32 v{t+3}, s27, v1")
    w4_piece_lane(k, vPW, t + 3, t)
    srd(k, 52, pWG, D * DF * 2); srd(k, 56, pWU, D * DF * 2)
def pf4(tile):
    o = []
    for m in range(2):
        g = []
        if m == 0: g.append(f"s_add_u32 s41, s40, {tile*32*7168}")
        g += [f"s_add_u32 m0, s42, {tile*SLOT4 + m*UOFF}", f"buffer_load_dwordx4 v{vPW}, s[{52+4*m}:{55+4*m}], s41 offen lds"]
        o.append(g)
    return o

JS3 = int(os.environ.get("JS3", "2")); JT4 = int(os.environ.get("JT4", "28"))
def phase35(k, kind):
    wo = kind == "wo"
    KD = D if wo else DF
    NT = KD // 128
    NS = 4 if wo else NS5
    R = R3 if wo else R5
    WSB = WS_O if wo else WS_HM
    T32B = KD * 64
    base = W3BASE if wo else 0
    vW = vW3 if wo else vW5
    WADV = W3ADV if wo else W5ADV
    SW = 8 if wo else SW5
    vA = [2, 3, 4, 5]; vBj = [6, 7]; vR = 10; vO = 11; vT = 12; vRM = 8; vHK = 9
    RES = 16; A = [24, 40]; ACC = 56; ACM = 88; RMF = [96, 100]; BR = 104
    MX = 15
    acc = lambda i, j: ACC + (j * 4 + i) * 4
    pre = "p3" if wo else "p5"
    coords35(k, 23, 24, 25)
    k("s_and_b32 s25, s20, 3")
    k("s_lshr_b32 s26, s20, 2")
    k("s_lshl_b32 s31, s23, 2"); k("s_add_u32 s31, s31, s25"); k(f"s_mul_i32 s31, s31, {T32B}")
    k("s_lshl_b32 s28, s26, 12"); k("s_add_u32 s31, s31, s28"); k(f"s_add_u32 s31, s31, {WSB}")
    k(f"v_lshrrev_b32 v{vT}, 4, v1"); k(f"v_and_b32 v{vT+1}, 15, v1")
    k(f"v_lshlrev_b32 v{vT+2}, 4, v{vT+1}"); k(f"v_lshl_add_u32 v{vT+2}, v{vT}, 9, v{vT+2}")
    k("s_lshl_b32 s28, s26, 8")
    k(f"v_add_u32 v{vBj[0]}, s28, v{vT+2}")
    k(f"v_xor_b32 v{vBj[1]}, 256, v{vBj[0]}")
    k(f"v_and_b32 v{vT+2}, 1, v{vT}"); k(f"v_lshlrev_b32 v{vT+2}, 1, v{vT+2}"); k(f"v_lshrrev_b32 v{vT+3}, 1, v{vT}")
    k(f"v_add_u32 v{vT+2}, v{vT+2}, v{vT+3}")
    rm = vR if wo else vO
    k(f"v_lshlrev_b32 v{rm}, 11, v{vT+1}"); k(f"v_lshl_add_u32 v{rm}, v{vT+2}, 4, v{rm}")
    k("s_lshl_b32 s33, s23, 2"); k("s_add_u32 s33, s33, s25"); k("s_lshl_b32 s33, s33, 1"); k("s_add_u32 s33, s33, s26")
    k("s_lshl_b32 s35, s33, 4")
    k("s_lshl_b32 s33, s33, 15"); k("s_lshl_b32 s28, s24, 7"); k("s_add_u32 s33, s33, s28")
    if wo:
        k(f"v_lshlrev_b32 v{vO}, 9, v{vT+2}"); k(f"v_lshl_add_u32 v{vO}, v{vT+1}, 4, v{vO}")
        k("s_lshl_b32 s34, s23, 2"); k("s_add_u32 s34, s34, s25"); k("s_lshl_b32 s34, s34, 16")
        k("s_lshl_b32 s28, s24, 12"); k("s_add_u32 s34, s34, s28"); k("s_lshl_b32 s28, s26, 8"); k("s_add_u32 s34, s34, s28")
        k(f"s_add_u32 s34, s34, {WS_H}")
        k("s_lshl_b32 s28, s20, 10"); k(f"s_add_u32 s28, s28, {RMOFF}")
        k(f"v_lshl_add_u32 v{vRM}, v{vT}, 4, s28")
    k("s_lshl_b32 s28, s20, 11"); k(f"s_add_u32 s28, s28, {HKOFF}")
    k(f"v_lshl_add_u32 v{vHK}, v1, 4, s28")
    k(f"v_bfe_u32 v{vT+1}, v1, 2, 2")
    k(f"v_lshrrev_b32 v{vT+2}, 1, v{vT}"); k(f"v_and_b32 v{vT+3}, 1, v{vT}")
    k(f"v_lshlrev_b32 v{vT+2}, 4, v{vT+2}"); k(f"v_lshl_add_u32 v{vT+2}, v{vT+3}, 2, v{vT+2}")
    k(f"v_add_u32 v{vT+2}, v{vT+2}, v{vT+1}"); k(f"v_lshlrev_b32 v{vT+2}, 7, v{vT+2}")
    k(f"v_lshrrev_b32 v{vT+1}, 1, v{vT+1}"); k(f"v_lshl_add_u32 v{vT+1}, v{vT+3}, 1, v{vT+1}")
    k(f"v_and_b32 v{vT+3}, 3, v1"); k(f"v_lshl_add_u32 v{vT+2}, v{vT+3}, 3, v{vT+2}")
    k("s_lshl_b32 s28, s26, 13")
    if base: k(f"s_add_u32 s28, s28, {base}")
    k(f"v_add_u32 v{vT+2}, s28, v{vT+2}")
    for i in range(4):
        k(f"v_xor_b32 v{vT+3}, {i}, v{vT+1}")
        k(f"v_lshl_add_u32 v{vA[i]}, v{vT+3}, 5, v{vT+2}")
    hiA = NS * 16384 > 65536
    vA2 = [204, 205, 206, 207]
    if hiA:
        for i in range(4): k(f"v_add_u32 v{vA2[i]}, 65536, v{vA[i]}")
    srd(k, 16, pX if wo else pOUT, MB4)
    if not wo and OT == 1:
        k(f"buffer_load_dword v{RES}, v{vO}, s[16:19], s33 offen")
    if wo and COA & 4:
        for p in range(2): k(f"buffer_load_dwordx4 v[{RES+4*p}:{RES+4*p+3}], v{vR}, s[16:19], s33 offen offset:{64*p}")
    if not wo and COA & 8:
        k(f"v_and_b32 v{vT}, 15, v1"); k(f"v_lshrrev_b32 v{vT+1}, 4, v1")
        k(f"v_and_b32 v{vT+2}, 1, v{vT+1}"); k(f"v_lshlrev_b32 v{vT+2}, 1, v{vT+2}"); k(f"v_lshrrev_b32 v{vT+1}, 1, v{vT+1}"); k(f"v_add_u32 v{vT+1}, v{vT+1}, v{vT+2}")
        k(f"v_xor_b32 v{vT+1}, v{vT+1}, v{vT}"); k(f"v_and_b32 v{vT+1}, 7, v{vT+1}"); k(f"v_lshlrev_b32 v{vT+1}, 4, v{vT+1}")
        k("s_lshl_b32 s28, s20, 12"); k("s_xor_b32 s28, s28, 16384"); k("s_add_u32 s28, s28, 98304")
        k(f"v_lshl_add_u32 v{vT+1}, v{vT}, 7, v{vT+1}"); k(f"v_add_u32 v88, s28, v{vT+1}"); k("v_xor_b32 v89, 64, v88")
        k(f"v_lshrrev_b32 v{vT}, 3, v1"); k(f"v_and_b32 v{vT+1}, 7, v1")
        k(f"v_lshlrev_b32 v{vO}, 11, v{vT}"); k(f"v_lshl_add_u32 v{vO}, v{vT+1}, 4, v{vO}")
        k(f"v_xor_b32 v{vT+1}, v{vT+1}, v{vT}"); k(f"v_lshlrev_b32 v{vT+1}, 4, v{vT+1}"); k(f"v_lshl_add_u32 v{vT+1}, v{vT}, 7, v{vT+1}")
        k(f"v_add_u32 v90, s28, v{vT+1}")
        k("s_add_u32 s34, s33, 16384")
    for r in range(ACC, ACC + (40 if wo else 32)): k(f"v_mov_b32 v{r}, 0")
    if wo:
        pf4_setup(k, vT)
        k(f"v_lshrrev_b32 v{vT}, 3, v1"); k(f"v_and_b32 v{vT+1}, 7, v1"); k(f"v_lshlrev_b32 v{vT+1}, 4, v{vT+1}")
        k(f"v_lshl_add_u32 v{vT+1}, v{vT}, 8, v{vT+1}"); k("s_lshl_b32 s28, s26, 7"); k(f"v_add_u32 v{vT+1}, s28, v{vT+1}")
        k(f"v_and_b32 v{vT+2}, 15, v1"); k(f"v_lshlrev_b32 v{vT+2}, 2, v{vT+2}")
    vm = VM()
    if not wo:
        for t in range(NPF5, NS):
            for d in w35_dma(vW, SW, t):
                for l in d: k(l)
            k(WADV); vm.issue(("W", t), 2)
    k("s_lshr_b32 s27, s23, 1"); k("s_lshl_b32 s27, s27, 7"); k(f"s_add_u32 s27, s27, {WS_CNT + (C3 if wo else C5)*128}")
    wait(k, 27, 32, vt=(A[0], A[0] + 1) if wo and COA & 4 else (RES, RES + 1), pr=A[1])
    k.stamp(pre + "_wait")
    NSTEP = 2 * NT
    def bld(s):
        b = BR + (s % R) * 8
        return [f"buffer_load_dwordx4 v[{b+4*j}:{b+4*j+3}], v{vBj[j]}, s[12:15], s31 offen{SC}" for j in range(2)]
    def badv(s): return f"s_add_u32 s31, s31, {2048 if s % 2 == 0 else 6144}"
    if wo:
        k("s_lshl_b32 s28, s20, 10"); k(f"s_add_u32 m0, s28, {RMOFF}")
        k(f"s_mov_b32 s28, {WS_RM}")
        k(f"buffer_load_dwordx4 v{vT+1}, s[12:15], s28 offen{SC} lds"); vm.issue("RM")
    for s in range(R):
        for l in bld(s): k(l); vm.issue(("B", s))
        k(badv(s))
    if wo:
        for p in range(2 if not COA & 4 else 0):
            k(f"buffer_load_dwordx4 v[{RES+4*p}:{RES+4*p+3}], v{vR}, s[16:19], s33 offen offset:{64*p}"); vm.issue("res")
        k("s_lshl_b32 s28, s35, 2"); k(f"s_add_u32 s28, s28, {WS_MX}")
        k(f"buffer_load_dword v{MX}, v{vT+2}, s[12:15], s28 offen{SC}"); vm.issue("res")
    def areads(s, buf):
        t = s // 2; sl = t % NS
        va = vA if sl < 4 else vA2
        o = [f"ds_read_b64_tr_b16 v[{A[buf]+4*i+2*tt}:{A[buf]+4*i+2*tt+1}], v{va[i]} offset:{(sl & 3)*16384 + (s&1)*4096 + tt*1024}"
             for i in range(4) for tt in range(2)]
        return o
    def rmread(s, buf): return f"ds_read_b128 v[{RMF[buf]}:{RMF[buf]+3}], v{vRM} offset:{(s >> 1)*128 + (s & 1)*64}"
    for l in areads(0, 0): k(l)
    if wo:
        k(f"s_waitcnt vmcnt({vm.cnt({'RM'})})")
        k(rmread(0, 0))
    k.stamp(pre + "_go")
    texts = []
    for per in range((NT + NS - 1) // NS):
        o = []
        for s in range(per * 2 * NS, min((per + 1) * 2 * NS, NSTEP)):
            t = s // 2; cur = s & 1; nxt = cur ^ 1
            need = {("B", s)}
            if s & 1 and t + 1 < NT: need.add(("W", t + 1))
            n = vm.cnt(need)
            o.append(f"s_waitcnt vmcnt({min(n, 63)}) lgkmcnt(0)")
            rd = []; dm = []
            if s & 1:
                if t + 1 < NT:
                    o.append("s_barrier"); rd = areads(s + 1, nxt)
                if t + NS < NT: dm = w35_dma(vW, SW, t % NS)
            else:
                rd = areads(s + 1, nxt)
            if wo and s + 1 < NSTEP: rd = rd + [rmread(s + 1, nxt)]
            mf = []
            b = BR + (s % R) * 8
            for i in range(4):
                for j in range(2):
                    a = acc(i, j)
                    mf.append(f"v_mfma_f32_16x16x32_bf16 v[{a}:{a+3}], v[{A[cur]+4*i}:{A[cur]+4*i+3}], v[{b+4*j}:{b+4*j+3}], v[{a}:{a+3}]")
            if wo:
                for j in range(2):
                    a = ACM + 4 * j
                    mf.append(f"v_mfma_f32_16x16x32_bf16 v[{a}:{a+3}], v[{RMF[cur]}:{RMF[cur]+3}], v[{b+4*j}:{b+4*j+3}], v[{a}:{a+3}]")
            gaps = [[] for _ in mf]
            for q, r in enumerate(rd): gaps[min(q, len(mf) - 1)].append(r)
            if dm:
                gaps[0].append(dm[0][0]); gaps[1].append(dm[0][1]); gaps[2].append(dm[1][0]); gaps[3].append(dm[1][1]); gaps[4].append(WADV)
                vm.issue(("W", t + NS), 2)
            if wo and s == JS3 and JIT & 4:
                assert s % 2 == 0
                gaps[1] += jit("L_p3tail", 29, 203); vm.issue("CP")
            if s + R < NSTEP:
                gaps[len(mf) - 1] += bld(s + R) + [badv(s + R)]
                vm.issue(("B", s + R), 2)
            if wo and s == NSTEP - R:
                q = 0
                for tl in range(3):
                    for g in pf4(tl):
                        gaps[min(q, len(mf) - 1)] += g; q += 1
                        vm.issue("PF")
            for g, mm in enumerate(mf):
                o.append(mm); o += gaps[g]
        texts.append(o)
    periods(k, pre + "loop", texts, 36)
    if wo and JIT & 4: k("L_p3tail:")
    k.stamp(pre + "_loop")
    if wo:
        k("s_and_b32 s27, s20, 3"); k("s_lshl_b32 s27, s27, 12"); k(f"s_mul_i32 s28, s26, {SLOT4}"); k("s_add_u32 s27, s27, s28"); k(f"s_add_u32 s27, s27, {BOFF4}")
        k(f"v_lshlrev_b32 v{vT}, 4, v1"); k(f"v_add_u32 v{vT+1}, s27, v{vT}")
        k("s_and_b32 s27, s20, 3"); k("s_lshl_b32 s27, s27, 12"); k("s_xor_b32 s28, s26, 1"); k(f"s_mul_i32 s28, s28, {SLOT4}"); k("s_add_u32 s27, s27, s28"); k(f"s_add_u32 s27, s27, {BOFF4}")
        k(f"v_add_u32 v{vT+2}, s27, v{vT}")
        k("s_lshl_b32 s27, s20, 8"); k(f"s_add_u32 s27, s27, {XMOFF}")
        k(f"v_lshl_add_u32 v{vRM}, v1, 2, s27")
        k(f"ds_write_b32 v{vRM}, v{ACM+4}")
        k(f"v_xor_b32 v{vRM}, 1024, v{vRM}")
    else:
        XCH = 98304
        k("s_lshl_b32 s27, s20, 12"); k(f"s_add_u32 s27, s27, {XCH}")
        k(f"v_lshlrev_b32 v{vT}, 4, v1"); k(f"v_add_u32 v{vT+1}, s27, v{vT}")
        k("s_lshl_b32 s27, s20, 12"); k("s_xor_b32 s27, s27, 16384"); k(f"s_add_u32 s27, s27, {XCH}"); k(f"v_add_u32 v{vT+2}, s27, v{vT}")
    for i in range(4): k(f"ds_write_b128 v{vT+1}, v[{acc(i,1)}:{acc(i,1)+3}] offset:{1024*i}")
    k("s_waitcnt lgkmcnt(0)")
    k("s_barrier")
    for i in range(4): k(f"ds_read_b128 v[{acc(i,1)}:{acc(i,1)+3}], v{vT+2} offset:{1024*i}")
    if wo:
        k(f"ds_read_b32 v{ACM+4}, v{vRM}")
        for g in pf4(3):
            for l in g: k(l)
    else:
        for p in range(2): k(f"ds_read_b128 v[{RES+4*p}:{RES+4*p+3}], v{vHK} offset:{1024*p}")
    k("s_waitcnt lgkmcnt(0)")
    def padd(d, a, b, bc=False):
        if wo:
            k(f"v_add_f32 v{d}, v{a}, v{b}"); k(f"v_add_f32 v{d+1}, v{a+1}, v{b if bc else b+1}")
        else: k(f"v_pk_add_f32 v[{d}:{d+1}], v[{a}:{a+1}], v[{b}:{b+1}]")
    for i in range(4):
        for r in range(0, 4, 2): padd(acc(i,0)+r, acc(i,0)+r, acc(i,1)+r)
    for p in range(2):
        for r in range(4): k(f"v_permlane16_swap_b32 v{acc(2*p,0)+r}, v{acc(2*p+1,0)+r}")
    U = A[0]
    k(f"v_mov_b32 v{vT+3 if not wo else vT}, 0xffff0000")
    vMask = vT + 3 if not wo else vT
    if wo:
        k("s_waitcnt vmcnt(8)")
        k(f"v_add_f32 v{ACM}, v{ACM}, v{ACM+4}")
        k(f"v_add_f32 v{ACM}, v{ACM}, v{MX}")
        k(f"v_sub_f32 v{ACM}, 0, v{ACM}")
    for p in range(2):
        for q in range(4):
            a = acc(2 * p, 0) + 2 * q
            k(f"v_lshlrev_b32 v{U+2*q}, 16, v{RES+4*p+q}")
            k(f"v_and_b32 v{U+2*q+1}, v{vMask}, v{RES+4*p+q}")
        for q in range(4):
            a = acc(2 * p, 0) + 2 * q
            padd(a, a, U+2*q)
        for q in range(4):
            a = acc(2 * p, 0) + 2 * q
            k(f"v_cvt_pk_bf16_f32 v{RES+4*p+q}, v{a}, v{a+1}")
        if wo:
            k(f"ds_write_b128 v{vHK}, v[{RES+4*p}:{RES+4*p+3}] offset:{1024*p}")
            HC = U + 8 + 4 * p
            for q in range(4):
                a = acc(2 * p, 0) + 2 * q
                padd(a, a, ACM, True)
            for q in range(4):
                a = acc(2 * p, 0) + 2 * q
                k(f"v_cvt_pk_bf16_f32 v{HC+q}, v{a}, v{a+1}")
            k(f"buffer_store_dwordx4 v[{HC}:{HC+3}], v{vO}, s[12:15], s34 offen offset:{2048*p}{SC}")
        elif COA & 8:
            k(f"ds_write_b128 v{88+p}, v[{RES+4*p}:{RES+4*p+3}]")
        else:
            k(f"buffer_store_dwordx4 v[{RES+4*p}:{RES+4*p+3}], v{vO}, s[16:19], s33 offen offset:{64*p}{OUTSC}")
    if not wo and COA & 8:
        for q in range(2): k(f"ds_read_b128 v[{RES+4*q}:{RES+4*q+3}], v90 offset:{1024*q}")
        for q in range(2):
            k(f"s_waitcnt lgkmcnt({1-q})")
            k(f"buffer_store_dwordx4 v[{RES+4*q}:{RES+4*q+3}], v{vO}, s[16:19], s{33+q} offen{OUTSC}")
    if wo:
        s1 = U
        a0 = acc(0, 0)
        for r in range(4): k(f"v_mul_f32 v{s1+r}, v{a0+r}, v{a0+r}")
        for r in range(4, 16): k(f"v_fma_f32 v{s1+(r&3)}, v{a0+r}, v{a0+r}, v{s1+(r&3)}")
        k(f"v_add_f32 v{s1}, v{s1}, v{s1+1}"); k(f"v_add_f32 v{s1+2}, v{s1+2}, v{s1+3}"); k(f"v_add_f32 v{s1}, v{s1}, v{s1+2}")
        for sw in ("v_permlane16_swap_b32", "v_permlane32_swap_b32"):
            k(f"v_mov_b32 v{s1+2}, v{s1}"); k(f"{sw} v{s1}, v{s1+2}"); k(f"v_add_f32 v{s1}, v{s1}, v{s1+2}")
        k(f"v_and_b32 v{vT}, 15, v1"); k(f"v_lshlrev_b32 v{vT}, 2, v{vT}")
        if STL & 2:
            k("s_lshr_b32 s27, s35, 8"); k("s_lshl_b32 s27, s27, 14"); k("s_and_b32 s28, s35, 255"); k("s_lshl_b32 s28, s28, 2"); k("s_add_u32 s27, s27, s28")
            k("s_lshl_b32 s28, s24, 10"); k("s_add_u32 s27, s27, s28"); k(f"s_add_u32 s27, s27, {WS_ST}")
        else:
            k("s_lshl_b32 s27, s35, 2"); k("s_lshl_b32 s28, s24, 13"); k("s_add_u32 s27, s27, s28"); k(f"s_add_u32 s27, s27, {WS_ST}")
        k("s_mov_b64 exec, 0xffff")
        k(f"buffer_store_dword v{s1}, v{vT}, s[12:15], s27 offen{SC}")
        k("s_mov_b64 exec, -1")
        k.stamp(pre + "_epi")
        k("s_lshr_b32 s27, s23, 1"); k("s_lshl_b32 s27, s27, 7"); k(f"s_add_u32 s27, s27, {WS_CNT + C4*128}")
        k("s_waitcnt lgkmcnt(0)")
        signal(k, 27, vt=(RES, RES + 1))
        k.stamp(pre + "_sig")
    else:
        k.stamp(pre + "_epi")
OUTSC = os.environ.get("OUTSC", "")

def phase3k(k):
    assert COA & 4 and not WT3 and not STL & 2
    NT = D // 128; NS = 4; R = R3K; SO = S3O
    base = W3BASE; vW = vW3; SW = 8
    vA = [2, 3, 4, 5]; vBj = [6, 7]; vR = 10; vO = 11; vT = 12; vRM = 8; vHK = 9
    RES = 16; A = [24, 40]; ACC = 56; ACM = 120; RMF = [128, 132]; BR = 136; MX = 15
    assert BR + 8 * R <= 200 and R >= SO and NT - SO >= (NT - 1) // NS * NS and SO == 3
    vL, vL4, vXW, vXR, vZ, vXMw, vXMr, vID, vMask = 244, 245, 246, 247, 203, 204, 205, 206, 207
    TCH, TCM, XS2, RMA, RMM = 208, 216, 224, 232, 217
    acc = lambda c, i, j: ACC + c * 32 + (j * 4 + i) * 4
    T32B = D * 64
    coords35(k, 23, 24, 25)
    k("s_and_b32 s25, s20, 3")
    k("s_lshr_b32 s26, s20, 2")
    k("s_lshl_b32 s31, s23, 2"); k("s_add_u32 s31, s31, s25"); k(f"s_mul_i32 s31, s31, {T32B}")
    k("s_lshl_b32 s28, s26, 11"); k("s_add_u32 s31, s31, s28"); k(f"s_add_u32 s31, s31, {WS_O}")
    k("s_and_b32 s28, s24, 1"); k(f"s_mul_i32 s28, s28, {T32B//2}"); k("s_add_u32 s31, s31, s28")
    k(f"v_lshrrev_b32 v{vT}, 4, v1"); k(f"v_and_b32 v{vT+1}, 15, v1")
    k(f"v_lshlrev_b32 v{vT+2}, 4, v{vT+1}"); k(f"v_lshl_add_u32 v{vT+2}, v{vT}, 9, v{vT+2}")
    k("s_lshl_b32 s28, s26, 8")
    k(f"v_add_u32 v{vBj[0]}, s28, v{vT+2}")
    k(f"v_xor_b32 v{vBj[1]}, 256, v{vBj[0]}")
    k(f"v_and_b32 v{vT+2}, 1, v{vT}"); k(f"v_lshlrev_b32 v{vT+2}, 1, v{vT+2}"); k(f"v_lshrrev_b32 v{vT+3}, 1, v{vT}")
    k(f"v_add_u32 v{vT+2}, v{vT+2}, v{vT+3}")
    k(f"v_lshlrev_b32 v{vR}, 11, v{vT+1}"); k(f"v_lshl_add_u32 v{vR}, v{vT+2}, 4, v{vR}")
    k("s_lshl_b32 s33, s23, 2"); k("s_add_u32 s33, s33, s25"); k("s_lshl_b32 s33, s33, 1"); k("s_add_u32 s33, s33, s26")
    k("s_lshl_b32 s35, s33, 4")
    k("s_lshl_b32 s33, s33, 15"); k("s_lshl_b32 s28, s24, 7"); k("s_add_u32 s33, s33, s28")
    k(f"v_lshlrev_b32 v{vO}, 9, v{vT+2}"); k(f"v_lshl_add_u32 v{vO}, v{vT+1}, 4, v{vO}")
    k("s_lshl_b32 s34, s23, 2"); k("s_add_u32 s34, s34, s25"); k("s_lshl_b32 s34, s34, 16")
    k("s_lshl_b32 s28, s24, 12"); k("s_add_u32 s34, s34, s28"); k("s_lshl_b32 s28, s26, 8"); k("s_add_u32 s34, s34, s28")
    k(f"s_add_u32 s34, s34, {WS_H}")
    k("s_lshl_b32 s28, s20, 10"); k(f"s_add_u32 s28, s28, {RMOFF}")
    k(f"v_lshl_add_u32 v{vRM}, v{vT}, 4, s28")
    k("s_lshl_b32 s28, s20, 11"); k(f"s_add_u32 s28, s28, {HKOFF}")
    k(f"v_lshl_add_u32 v{vHK}, v1, 4, s28")
    k(f"v_bfe_u32 v{vT+1}, v1, 2, 2")
    k(f"v_lshrrev_b32 v{vT+2}, 1, v{vT}"); k(f"v_and_b32 v{vT+3}, 1, v{vT}")
    k(f"v_lshlrev_b32 v{vT+2}, 4, v{vT+2}"); k(f"v_lshl_add_u32 v{vT+2}, v{vT+3}, 2, v{vT+2}")
    k(f"v_add_u32 v{vT+2}, v{vT+2}, v{vT+1}"); k(f"v_lshlrev_b32 v{vT+2}, 7, v{vT+2}")
    k(f"v_lshrrev_b32 v{vT+1}, 1, v{vT+1}"); k(f"v_lshl_add_u32 v{vT+1}, v{vT+3}, 1, v{vT+1}")
    k(f"v_and_b32 v{vT+3}, 3, v1"); k(f"v_lshl_add_u32 v{vT+2}, v{vT+3}, 3, v{vT+2}")
    k("s_lshl_b32 s28, s26, 12"); k(f"s_add_u32 s28, s28, {base}")
    k(f"v_add_u32 v{vT+2}, s28, v{vT+2}")
    for i in range(4):
        k(f"v_xor_b32 v{vT+3}, {i}, v{vT+1}")
        k(f"v_lshl_add_u32 v{vA[i]}, v{vT+3}, 5, v{vT+2}")
    srd(k, 16, pX, MB4)
    for p in range(2): k(f"buffer_load_dwordx4 v[{RES+4*p}:{RES+4*p+3}], v{vR}, s[16:19], s33 offen offset:{64*p}")
    k(f"v_mov_b32 v{vZ}, 0"); k(f"s_xor_b32 s28, s2, {32 if C35 == 0 else 4}"); k("s_lshl_b32 s28, s28, 7"); k(f"s_add_u32 s28, s28, {WS_XID1}")
    k(f"buffer_load_dword v{vID}, v{vZ}, s[12:15], s28 offen{SC}")
    for r in range(ACC, ACC + 72): k(f"v_mov_b32 v{r}, 0")
    pf4_setup(k, vT)
    k(f"v_lshlrev_b32 v{vL}, 4, v1"); k(f"v_lshlrev_b32 v{vL4}, 2, v1"); k(f"v_mov_b32 v{vMask}, 0xffff0000")
    k("s_lshl_b32 s38, s23, 4"); k("s_add_u32 s38, s38, s24"); k("s_xor_b32 s39, s38, 1")
    k("s_lshl_b32 s28, s20, 8"); k(f"s_add_u32 s28, s28, {WS_XM3}")
    k("s_lshl_b32 s37, s38, 11"); k("s_add_u32 s37, s37, s28"); k("s_lshl_b32 s43, s39, 11"); k("s_add_u32 s43, s43, s28")
    k("s_lshl_b32 s28, s20, 11"); k(f"s_add_u32 s28, s28, {WS_XI3}")
    for r in (38, 39): k(f"s_lshl_b32 s{r}, s{r}, 14"); k(f"s_add_u32 s{r}, s{r}, s28")
    k("s_lshl_b32 s27, s25, 12"); k(f"s_add_u32 s27, s27, {BOFF4}")
    k(f"s_mul_i32 s28, s26, {SLOT4}"); k("s_add_u32 s28, s28, s27"); k(f"v_add_u32 v{vXW}, s28, v{vL}")
    k("s_xor_b32 s28, s26, 1"); k(f"s_mul_i32 s28, s28, {SLOT4}"); k("s_add_u32 s28, s28, s27"); k(f"v_add_u32 v{vXR}, s28, v{vL}")
    k("s_lshl_b32 s27, s20, 8"); k(f"s_add_u32 s27, s27, {XMOFF}"); k(f"v_add_u32 v{vXMw}, s27, v{vL4}"); k(f"v_xor_b32 v{vXMr}, 1024, v{vXMw}")
    k(f"v_bfe_u32 v{vT}, v1, 2, 3"); k(f"v_and_b32 v{vT+1}, 3, v1"); k(f"v_lshlrev_b32 v{vT+1}, 4, v{vT+1}")
    k(f"v_lshl_add_u32 v{vT+1}, v{vT}, 7, v{vT+1}"); k("s_lshl_b32 s28, s26, 6"); k("s_and_b32 s27, s24, 1"); k("s_lshl_b32 s27, s27, 10"); k("s_add_u32 s28, s28, s27")
    k(f"v_add_u32 v{vT+1}, s28, v{vT+1}")
    k(f"v_and_b32 v{vT+2}, 15, v1"); k(f"v_lshlrev_b32 v{vT+2}, 2, v{vT+2}")
    vm = VM()
    k("s_lshr_b32 s27, s23, 1"); k("s_lshl_b32 s27, s27, 7"); k(f"s_add_u32 s27, s27, {WS_CNT + C3*128}")
    wait(k, 27, 32, vt=(A[0], A[0] + 1), pr=A[1])
    k.stamp("p3_wait")
    def bld(t):
        b = BR + (t % R) * 8
        return [f"buffer_load_dwordx4 v[{b+4*j}:{b+4*j+3}], v{vBj[j]}, s[12:15], s31 offen{SC}" for j in range(2)]
    badv = "s_add_u32 s31, s31, 4096"
    k("s_lshl_b32 s28, s20, 10"); k(f"s_add_u32 m0, s28, {RMOFF}")
    k(f"s_mov_b32 s28, {WS_RM}")
    k(f"buffer_load_dwordx4 v{vT+1}, s[12:15], s28 offen{SC} lds"); vm.issue("RM")
    for t in range(R - 1):
        for l in bld(t): k(l); vm.issue(("B", t))
        k(badv)
    k("s_lshl_b32 s28, s35, 2"); k(f"s_add_u32 s28, s28, {WS_MX}")
    k(f"buffer_load_dword v{MX}, v{vT+2}, s[12:15], s28 offen{SC}"); vm.issue("res")
    def areads(t, c, buf):
        return [f"ds_read_b64_tr_b16 v[{A[buf]+4*i+2*tt}:{A[buf]+4*i+2*tt+1}], v{vA[i]} offset:{(t % NS)*16384 + c*8192 + tt*1024}"
                for i in range(4) for tt in range(2)]
    def rmread(t): return f"ds_read_b128 v[{RMF[t & 1]}:{RMF[t & 1]+3}], v{vRM} offset:{t*64}"
    for l in areads(0, 0, 0): k(l)
    k(f"s_waitcnt vmcnt({vm.cnt({'RM'})})")
    k(rmread(0))
    k.stamp("p3_go")
    BG = [int(x) for x in os.environ.get("BG3", "2,5").split(",")]
    order = [(t, c) for t in range(NT - SO) for c in range(2)] + [(t, 0) for t in range(NT - SO, NT)] + [(t, 1) for t in range(NT - SO, NT)]
    def send1(st):
        lfast = k.lab("p3fast"); lj = k.lab("p3sent")
        if SKF == 1: return ["s_cmp_eq_u32 s44, s45", f"s_cbranch_scc1 {lfast}", st + SC, f"s_branch {lj}", f"{lfast}:", st, f"{lj}:"]
        return [st + SC] if SKF == 2 else [st]
    def fold0_triples():
        o = []
        for q in range(8):
            a = acc(0, 0, 0) + 2 * q; b = acc(0, 0, 1) + 2 * q
            o += [f"v_add_f32 v{a}, v{a}, v{b}", f"v_add_f32 v{a+1}, v{a+1}, v{b+1}", f"v_cvt_pk_bf16_f32 v{XS2+q}, v{a}, v{a+1}"]
        return o
    visible = {0}; bseen = set()
    texts = [[] for _ in range(NT // NS)]
    for idx, (t, c) in enumerate(order):
        o = texts[t // NS]
        cur = idx & 1; nxt = cur ^ 1
        nx = order[idx + 1] if idx + 1 < len(order) else None
        tail = idx - (len(order) - SO) if idx >= len(order) - SO else -1
        need = set(); bar = False
        if t not in bseen: need.add(("B", t)); bseen.add(t)
        if nx and nx[0] not in visible: need.add(("W", nx[0])); visible.add(nx[0]); bar = True
        if tail in (1, 2): bar = True
        n = vm.cnt(need) if need else None
        o.append(f"s_waitcnt vmcnt({min(n, 63)}) lgkmcnt(0)" if n is not None else "s_waitcnt lgkmcnt(0)")
        if bar: o.append("s_barrier")
        rd = areads(nx[0], nx[1], nxt) if nx else []; dm = []
        if nx and nx[1] == 0: rd = rd + [rmread(nx[0])]
        if c == 1 and t + NS < NT: dm = w35_dma(vW, SW, t % NS)
        mf = []
        b = BR + (t % R) * 8
        for i in range(4):
            for j in range(2):
                a = acc(c, i, j)
                mf.append(f"v_mfma_f32_16x16x32_bf16 v[{a}:{a+3}], v[{A[cur]+4*i}:{A[cur]+4*i+3}], v[{b+4*j}:{b+4*j+3}], v[{a}:{a+3}]")
        if c == 0:
            for j in range(2):
                a = ACM + 4 * j
                mf.append(f"v_mfma_f32_16x16x32_bf16 v[{a}:{a+3}], v[{RMF[t & 1]}:{RMF[t & 1]+3}], v[{b+4*j}:{b+4*j+3}], v[{a}:{a+3}]")
        gaps = [[] for _ in mf]
        if tail == 1:
            for i in range(4): gaps[i].append(f"ds_read_b128 v[{acc(0,i,1)}:{acc(0,i,1)+3}], v{vXR} offset:{1024*i}")
            gaps[4].append(f"ds_read_b32 v{ACM+4}, v{vXMr}")
            gaps[0] += [f"s_getreg_b32 s44, {XCCR}", f"v_readfirstlane_b32 s45, v{vID}"]
        for q, r in enumerate(rd): gaps[min(q, len(mf) - 1)].append(r)
        if dm:
            gaps[0].append(dm[0][0]); gaps[1].append(dm[0][1]); gaps[2].append(dm[1][0]); gaps[3].append(dm[1][1]); gaps[4].append(W3ADV)
            vm.issue(("W", t + NS), 2)
        if c == 0 and t + R - 1 < NT:
            bl = bld(t + R - 1)
            gaps[BG[0]].append(bl[0]); gaps[BG[1]].append(bl[1]); gaps[BG[1]].append(badv)
            vm.issue(("B", t + R - 1), 2)
        if t == S3T and c == 0:
            for p in range(2): gaps[6 + p].append(f"buffer_load_dwordx4 v[{TCH+4*p}:{TCH+4*p+3}], v{vL}, s[12:15], s38 offen offset:{1024*p}{SC}")
            gaps[8].append(f"buffer_load_dword v{TCM}, v{vL4}, s[12:15], s37 offen{SC}")
            vm.issue(("T", 0), 3)
        if tail == 0:
            for i in range(4): gaps[2 + i].append(f"ds_write_b128 v{vXW}, v[{acc(0,i,1)}:{acc(0,i,1)+3}] offset:{1024*i}")
            gaps[6].append(f"ds_write_b32 v{vXMw}, v{ACM+4}")
        if tail == 2:
            gaps[0].append(f"v_add_f32 v{ACM}, v{ACM}, v{ACM+4}")
            gaps[1] += send1(f"buffer_store_dword v{ACM}, v{vL4}, s[12:15], s43 offen")
            for q, l in enumerate(fold0_triples()):
                g = min(q // SKG, len(mf) - 1)
                gaps[g].append(l)
                if q in (11, 23): gaps[g] += send1(f"buffer_store_dwordx4 v[{XS2+4*(q//12)}:{XS2+4*(q//12)+3}], v{vL}, s[12:15], s39 offen offset:{1024*(q//12)}")
        for g, mm in enumerate(mf):
            o.append(mm); o += gaps[g]
    periods(k, "p3loop", texts, 36)
    k.stamp("p3_loop")
    def poll(dst, dm_):
        for p in range(2): k(f"buffer_load_dwordx4 v[{dst+4*p}:{dst+4*p+3}], v{vL}, s[12:15], s38 offen offset:{1024*p}{SC}")
        k(f"buffer_load_dword v{dm_}, v{vL4}, s[12:15], s37 offen{SC}")
    def check(src, dm_, lbl):
        k(f"v_max3_u32 v{vT}, v{src}, v{src+1}, v{src+2}")
        k(f"v_max3_u32 v{vT+1}, v{src+3}, v{src+4}, v{src+5}")
        k(f"v_max3_u32 v{vT}, v{vT}, v{src+6}, v{src+7}")
        k(f"v_max3_u32 v{vT}, v{vT}, v{vT+1}, v{dm_}")
        k(f"v_cmp_eq_u32 vcc, -1, v{vT}")
        k("s_cmp_eq_u64 vcc, 0"); k(f"s_cbranch_scc1 {lbl}")
    U = A[1]
    def unpack(src, dm_):
        for q in range(8):
            k(f"v_lshlrev_b32 v{U+2*q}, 16, v{src+q}"); k(f"v_and_b32 v{U+2*q+1}, v{vMask}, v{src+q}")
        k(f"v_add_f32 v{ACM}, v{ACM}, v{dm_}")
    poll(RMA, RMM)
    for i in range(4): k(f"ds_write_b128 v{vXW}, v[{acc(1,i,1)}:{acc(1,i,1)+3}] offset:{1024*i}")
    k("s_waitcnt lgkmcnt(0)")
    k("s_barrier")
    for i in range(4): k(f"ds_read_b128 v[{acc(1,i,1)}:{acc(1,i,1)+3}], v{vXR} offset:{1024*i}")
    poll(TCH, TCM)
    k("s_waitcnt lgkmcnt(0)")
    for r in range(16): k(f"v_add_f32 v{acc(1,0,0)+r}, v{acc(1,0,0)+r}, v{acc(1,0,1)+r}")
    k(f"v_add_f32 v{ACM}, v{ACM}, v{MX}")
    gA = k.lab("p3gotA"); gB = k.lab("p3gotB"); pl = k.lab("p3poll"); jn = k.lab("p3join")
    k("s_mov_b32 s28, 1")
    k("s_waitcnt vmcnt(3)"); check(RMA, RMM, gA)
    k("s_waitcnt vmcnt(0)"); check(TCH, TCM, gB)
    k(f"{pl}:")
    poll(RMA, RMM)
    k("s_add_u32 s28, s28, 1")
    k("s_waitcnt vmcnt(0)"); check(RMA, RMM, gA)
    k(f"s_cmp_lt_u32 s28, {SPIN_LIMIT >> 2}"); k(f"s_cbranch_scc1 {pl}")
    k(f"s_branch {gA}")
    k(f"{gB}:"); unpack(TCH, TCM); k(f"s_branch {jn}")
    k(f"{gA}:"); unpack(RMA, RMM)
    k(f"{jn}:")
    k.stamp("p3_got")
    for tl in range(4):
        for g in pf4(tl):
            for l in g: k(l)
    for r in range(16): k(f"v_add_f32 v{acc(1,0,0)+r}, v{acc(1,0,0)+r}, v{U+r}")
    k(f"v_sub_f32 v{ACM}, 0, v{ACM}")
    for p in range(2):
        for r in range(4): k(f"v_permlane16_swap_b32 v{acc(1,2*p,0)+r}, v{acc(1,2*p+1,0)+r}")
    U = A[0]
    for p in range(2):
        for q in range(4):
            k(f"v_lshlrev_b32 v{U+2*q}, 16, v{RES+4*p+q}")
            k(f"v_and_b32 v{U+2*q+1}, v{vMask}, v{RES+4*p+q}")
        for q in range(8):
            a = acc(1, 2 * p, 0) + q
            k(f"v_add_f32 v{a}, v{a}, v{U+q}")
        for q in range(4):
            a = acc(1, 2 * p, 0) + 2 * q
            k(f"v_cvt_pk_bf16_f32 v{RES+4*p+q}, v{a}, v{a+1}")
        k(f"ds_write_b128 v{vHK}, v[{RES+4*p}:{RES+4*p+3}] offset:{1024*p}")
        HC = U + 8 + 4 * p
        for q in range(8):
            a = acc(1, 2 * p, 0) + q
            k(f"v_add_f32 v{a}, v{a}, v{ACM}")
        for q in range(4):
            a = acc(1, 2 * p, 0) + 2 * q
            k(f"v_cvt_pk_bf16_f32 v{HC+q}, v{a}, v{a+1}")
        k(f"buffer_store_dwordx4 v[{HC}:{HC+3}], v{vO}, s[12:15], s34 offen offset:{2048*p}{SC}")
    s1 = U
    a0 = acc(1, 0, 0)
    for r in range(4): k(f"v_mul_f32 v{s1+r}, v{a0+r}, v{a0+r}")
    for r in range(4, 16): k(f"v_fma_f32 v{s1+(r&3)}, v{a0+r}, v{a0+r}, v{s1+(r&3)}")
    k(f"v_add_f32 v{s1}, v{s1}, v{s1+1}"); k(f"v_add_f32 v{s1+2}, v{s1+2}, v{s1+3}"); k(f"v_add_f32 v{s1}, v{s1}, v{s1+2}")
    for sw in ("v_permlane16_swap_b32", "v_permlane32_swap_b32"):
        k(f"v_mov_b32 v{s1+2}, v{s1}"); k(f"{sw} v{s1}, v{s1+2}"); k(f"v_add_f32 v{s1}, v{s1}, v{s1+2}")
    k(f"v_and_b32 v{vT}, 15, v1"); k(f"v_lshlrev_b32 v{vT}, 2, v{vT}")
    k("s_lshl_b32 s27, s35, 2"); k("s_lshl_b32 s28, s24, 13"); k("s_add_u32 s27, s27, s28"); k(f"s_add_u32 s27, s27, {WS_ST}")
    k("s_mov_b64 exec, 0xffff")
    k(f"buffer_store_dword v{s1}, v{vT}, s[12:15], s27 offen{SC}")
    k("s_mov_b64 exec, -1")
    k.stamp("p3_epi")
    k("s_lshr_b32 s27, s23, 1"); k("s_lshl_b32 s27, s27, 7"); k(f"s_add_u32 s27, s27, {WS_CNT + C4*128}")
    k("s_waitcnt lgkmcnt(0)")
    signal(k, 27, vt=(RES, RES + 1))
    k.stamp("p3_sig")

def phase5k(k):
    assert WDT and NS5 == 5 and COA & 8
    NT = DF // 128; NS = NS5; R = R5K
    vW = vW5; SW = SW5
    vA = [2, 3, 4, 5]; vBj = [6, 7]; vTW = [8, 10]; vHK = 9; vO = 11; vT = 12; vTR = 200; vL = 201
    RES = 16; A = [24, 40]; ACC = 56; BR = 120
    assert BR + 8 * R <= 200
    XCH = NS * 16384
    acc = lambda c, i, j: ACC + c * 32 + (j * 4 + i) * 4
    T32B = DF * 64
    coords35(k, 23, 24, 25)
    k("s_and_b32 s25, s20, 3")
    k("s_lshr_b32 s26, s20, 2")
    k("s_lshl_b32 s31, s23, 2"); k("s_add_u32 s31, s31, s25"); k(f"s_mul_i32 s31, s31, {T32B}")
    k("s_lshl_b32 s28, s26, 11"); k("s_add_u32 s31, s31, s28"); k(f"s_add_u32 s31, s31, {WS_HM}")
    k("s_and_b32 s28, s24, 1"); k(f"s_mul_i32 s28, s28, {T32B//2}"); k("s_add_u32 s31, s31, s28")
    k(f"v_lshrrev_b32 v{vT}, 4, v1"); k(f"v_and_b32 v{vT+1}, 15, v1")
    k(f"v_lshlrev_b32 v{vT+2}, 4, v{vT+1}"); k(f"v_lshl_add_u32 v{vT+2}, v{vT}, 9, v{vT+2}")
    k("s_lshl_b32 s28, s26, 8")
    k(f"v_add_u32 v{vBj[0]}, s28, v{vT+2}")
    k(f"v_xor_b32 v{vBj[1]}, 256, v{vBj[0]}")
    k("s_lshl_b32 s33, s23, 2"); k("s_add_u32 s33, s33, s25"); k("s_lshl_b32 s33, s33, 1"); k("s_add_u32 s33, s33, s26")
    k("s_lshl_b32 s33, s33, 15"); k("s_lshl_b32 s28, s24, 7"); k("s_add_u32 s33, s33, s28")
    k("s_add_u32 s34, s33, 16384")
    k("s_lshl_b32 s28, s20, 11"); k(f"s_add_u32 s28, s28, {HKOFF}")
    k(f"v_lshl_add_u32 v{vHK}, v1, 4, s28")
    k(f"v_lshlrev_b32 v{vL}, 4, v1")
    k("s_lshl_b32 s38, s23, 4"); k("s_add_u32 s38, s38, s24"); k("s_xor_b32 s39, s38, 1")
    k("s_lshl_b32 s28, s20, 11"); k(f"s_add_u32 s28, s28, {WS_XI}")
    if SKF:
        k("s_lshl_b32 s40, s39, 10"); k(f"s_add_u32 s40, s40, {WS_XID}"); k("v_mov_b32 v203, 0")
        k(f"buffer_load_dword v202, v203, s[12:15], s40 offen{SC}")
    for r in (38, 39): k(f"s_lshl_b32 s{r}, s{r}, 14"); k(f"s_add_u32 s{r}, s{r}, s28")
    k(f"v_bfe_u32 v{vT+1}, v1, 2, 2")
    k(f"v_lshrrev_b32 v{vT+2}, 1, v{vT}"); k(f"v_and_b32 v{vT+3}, 1, v{vT}")
    k(f"v_lshlrev_b32 v{vT+2}, 4, v{vT+2}"); k(f"v_lshl_add_u32 v{vT+2}, v{vT+3}, 2, v{vT+2}")
    k(f"v_add_u32 v{vT+2}, v{vT+2}, v{vT+1}"); k(f"v_lshlrev_b32 v{vT+2}, 7, v{vT+2}")
    k(f"v_lshrrev_b32 v{vT+1}, 1, v{vT+1}"); k(f"v_lshl_add_u32 v{vT+1}, v{vT+3}, 1, v{vT+1}")
    k(f"v_and_b32 v{vT+3}, 3, v1"); k(f"v_lshl_add_u32 v{vT+2}, v{vT+3}, 3, v{vT+2}")
    k("s_lshl_b32 s28, s26, 12")
    k(f"v_add_u32 v{vT+2}, s28, v{vT+2}")
    for i in range(4):
        k(f"v_xor_b32 v{vT+3}, {i}, v{vT+1}")
        k(f"v_lshl_add_u32 v{vA[i]}, v{vT+3}, 5, v{vT+2}")
    vA2 = [204, 205, 206, 207]
    for i in range(4): k(f"v_add_u32 v{vA2[i]}, 65536, v{vA[i]}")
    srd(k, 16, pOUT, MB4)
    k(f"v_and_b32 v{vT}, 15, v1"); k(f"v_lshrrev_b32 v{vT+1}, 4, v1")
    k(f"v_and_b32 v{vT+2}, 1, v{vT+1}"); k(f"v_lshlrev_b32 v{vT+2}, 1, v{vT+2}"); k(f"v_lshrrev_b32 v{vT+1}, 1, v{vT+1}"); k(f"v_add_u32 v{vT+1}, v{vT+1}, v{vT+2}")
    k(f"v_xor_b32 v{vT+1}, v{vT+1}, v{vT}"); k(f"v_and_b32 v{vT+1}, 7, v{vT+1}"); k(f"v_lshlrev_b32 v{vT+1}, 4, v{vT+1}")
    k("s_lshl_b32 s28, s20, 13"); k("s_xor_b32 s28, s28, 32768"); k(f"s_add_u32 s28, s28, {XCH}")
    k(f"v_lshl_add_u32 v{vT+1}, v{vT}, 7, v{vT+1}"); k(f"v_add_u32 v{vTW[0]}, s28, v{vT+1}"); k(f"v_xor_b32 v{vTW[1]}, 64, v{vTW[0]}")
    k(f"v_lshrrev_b32 v{vT}, 3, v1"); k(f"v_and_b32 v{vT+1}, 7, v1")
    k(f"v_lshlrev_b32 v{vO}, 11, v{vT}"); k(f"v_lshl_add_u32 v{vO}, v{vT+1}, 4, v{vO}")
    k(f"v_xor_b32 v{vT+1}, v{vT+1}, v{vT}"); k(f"v_lshlrev_b32 v{vT+1}, 4, v{vT+1}"); k(f"v_lshl_add_u32 v{vT+1}, v{vT}, 7, v{vT+1}")
    k(f"v_add_u32 v{vTR}, s28, v{vT+1}")
    vXW, vXR, vMask = vT + 1, vT + 2, vT + 3
    k("s_lshl_b32 s27, s20, 13"); k(f"s_add_u32 s27, s27, {XCH}")
    k(f"v_add_u32 v{vXW}, s27, v{vL}"); k(f"v_add_u32 v{vXR}, s28, v{vL}")
    k(f"v_mov_b32 v{vMask}, 0xffff0000")
    TCH = 208
    vTW4 = [216, 217, 218, 219]; vTR2 = 220
    if SKR:
        k(f"v_and_b32 v{vT}, 15, v1"); k(f"v_lshrrev_b32 v{TCH}, 5, v1"); k(f"v_lshrrev_b32 v{TCH+1}, 1, v{vT}")
        k(f"v_xor_b32 v{TCH}, v{TCH}, v{TCH+1}"); k(f"v_lshlrev_b32 v{TCH}, 4, v{TCH}"); k(f"v_lshl_add_u32 v{TCH}, v{vT}, 7, v{TCH}")
        k(f"v_bfe_u32 v{TCH+1}, v1, 4, 1"); k(f"v_lshl_add_u32 v{TCH}, v{TCH+1}, 3, v{TCH}"); k(f"v_add_u32 v{vTW4[0]}, s28, v{TCH}")
        for i in range(1, 4): k(f"v_xor_b32 v{vTW4[i]}, {32*i}, v{vTW4[0]}")
        k(f"v_and_b32 v{TCH}, 7, v1"); k(f"v_lshrrev_b32 v{TCH+1}, 4, v1"); k(f"v_xor_b32 v{TCH}, v{TCH}, v{TCH+1}"); k(f"v_lshlrev_b32 v{TCH}, 4, v{TCH}")
        k(f"v_lshrrev_b32 v{TCH+1}, 3, v1"); k(f"v_lshl_add_u32 v{TCH}, v{TCH+1}, 7, v{TCH}"); k(f"v_add_u32 v{vTR}, s28, v{TCH}")
        k(f"v_xor_b32 v{vTR2}, 64, v{vTR}")
        for p in range(2): k(f"ds_read_b128 v[{RES+4*p}:{RES+4*p+3}], v{vHK} offset:{1024*p}")
    for r in range(ACC, ACC + 64):
        if not (SKR and acc(1, 0, 0) <= r < acc(1, 0, 0) + 16): k(f"v_mov_b32 v{r}, 0")
    if SKR:
        k("s_waitcnt lgkmcnt(0)")
        for p in range(2):
            for q in range(4):
                a = acc(1, 2 * p, 0) + 2 * q
                k(f"v_lshlrev_b32 v{a}, 16, v{RES+4*p+q}"); k(f"v_and_b32 v{a+1}, v{vMask}, v{RES+4*p+q}")
        for p in range(2):
            for r in range(4): k(f"v_permlane16_swap_b32 v{acc(1,2*p,0)+r}, v{acc(1,2*p+1,0)+r}")
    vm = VM()
    for t in range(NPF5, NS):
        for d in w35_dma(vW, SW, t):
            for l in d: k(l)
        k(W5ADV); vm.issue(("W", t), 2)
    k("s_lshr_b32 s27, s23, 1"); k("s_lshl_b32 s27, s27, 7"); k(f"s_add_u32 s27, s27, {WS_CNT + C5*128}")
    wait(k, 27, 32, vt=(RES, RES + 1), pr=A[1])
    k.stamp("p5_wait")
    def bld(t):
        b = BR + (t % R) * 8
        return [f"buffer_load_dwordx4 v[{b+4*j}:{b+4*j+3}], v{vBj[j]}, s[12:15], s31 offen{SC}" for j in range(2)]
    badv = "s_add_u32 s31, s31, 4096"
    for t in range(R - 1):
        for l in bld(t): k(l); vm.issue(("B", t))
        k(badv)
    def areads(t, c, buf):
        sl = t % NS
        va = vA if sl < 4 else vA2
        return [f"ds_read_b64_tr_b16 v[{A[buf]+4*i+2*tt}:{A[buf]+4*i+2*tt+1}], v{va[i]} offset:{(sl & 3)*16384 + c*8192 + tt*1024}"
                for i in range(4) for tt in range(2)]
    for l in areads(0, 0, 0): k(l)
    k.stamp("p5_go")
    texts = []
    BG = [int(x) for x in os.environ.get("BG5", "2,5").split(",")]
    order = [(t, c) for t in range(NT) for c in range(2)]
    XS2, RMA = 224, 232
    if SKO:
        assert SKR and SKF and SKX and SKA and NT - SKO >= (NT - 1) // NS * NS
        order = order[:2 * (NT - SKO)] + [(t, 0) for t in range(NT - SKO, NT)] + [(t, 1) for t in range(NT - SKO, NT)]
    def send1(p, src):
        lfast = k.lab("p5fast"); lj = k.lab("p5sent")
        st = f"buffer_store_dwordx4 v[{src+4*p}:{src+4*p+3}], v{vL}, s[12:15], s39 offen offset:{1024*p}"
        if SKF == 1: return ["s_cmp_eq_u32 s40, s41", f"s_cbranch_scc1 {lfast}", st + SC, f"s_branch {lj}", f"{lfast}:", st, f"{lj}:"]
        return [st + SC] if SKF == 2 else [st]
    def fold0_triples():
        o = []
        for q in range(8):
            a = acc(0, 0, 0) + 2 * q; b = acc(0, 0, 1) + 2 * q
            o += [f"v_add_f32 v{a}, v{a}, v{b}", f"v_add_f32 v{a+1}, v{a+1}, v{b+1}", f"v_cvt_pk_bf16_f32 v{XS2+q}, v{a}, v{a+1}"]
        return o
    visible = {0}; bseen = set()
    texts = [[] for _ in range((NT + NS - 1) // NS)]
    for idx, (t, c) in enumerate(order):
                o = texts[t // NS]
                cur = idx & 1; nxt = cur ^ 1
                nx = order[idx + 1] if idx + 1 < len(order) else None
                tail = idx - (len(order) - SKO) if SKO and idx >= len(order) - SKO else -1
                need = set(); bar = False
                if t not in bseen: need.add(("B", t)); bseen.add(t)
                if nx and nx[0] not in visible: need.add(("W", nx[0])); visible.add(nx[0]); bar = True
                if tail == 1: bar = True
                n = vm.cnt(need) if need else None
                o.append(f"s_waitcnt vmcnt({min(n, 63)}) lgkmcnt(0)" if n is not None else "s_waitcnt lgkmcnt(0)")
                if bar: o.append("s_barrier")
                rd = areads(nx[0], nx[1], nxt) if nx else []; dm = []
                if c == 1 and t + NS < NT: dm = w35_dma(vW, SW, t % NS)
                mf = []
                b = BR + (t % R) * 8
                for i in range(4):
                    for j in range(2):
                        a = acc(c, i, j)
                        mf.append(f"v_mfma_f32_16x16x32_bf16 v[{a}:{a+3}], v[{A[cur]+4*i}:{A[cur]+4*i+3}], v[{b+4*j}:{b+4*j+3}], v[{a}:{a+3}]")
                gaps = [[] for _ in mf]
                if tail == 1:
                    for i in range(4): gaps[i].append(f"ds_read_b128 v[{acc(0,i,1)}:{acc(0,i,1)+3}], v{vXR} offset:{1024*i}")
                    gaps[0] += ["s_getreg_b32 s40, hwreg(HW_REG_XCC_ID, 0, 4)", "v_readfirstlane_b32 s41, v202"]
                for q, r in enumerate(rd): gaps[min(q, len(mf) - 1)].append(r)
                if dm:
                    gaps[0].append(dm[0][0]); gaps[1].append(dm[0][1]); gaps[2].append(dm[1][0]); gaps[3].append(dm[1][1]); gaps[4].append(W5ADV)
                    vm.issue(("W", t + NS), 2)
                if c == 0 and t + R - 1 < NT:
                    bl = bld(t + R - 1)
                    gaps[BG[0]].append(bl[0]); gaps[BG[1]].append(bl[1]); gaps[BG[1]].append(badv)
                    vm.issue(("B", t + R - 1), 2)
                if SKF and SKX and t == SKT and c == 0:
                    for p in range(2): gaps[3 + 2*p].append(f"buffer_load_dwordx4 v[{TCH+4*p}:{TCH+4*p+3}], v{vL}, s[12:15], s38 offen offset:{1024*p}{SC}")
                    vm.issue(("T", 0), 2)
                if (SKA and not SKO and t == NT - 1 and c == 1) or tail == 0:
                    for i in range(4): gaps[2 + i].append(f"ds_write_b128 v{vXW}, v[{acc(0,i,1)}:{acc(0,i,1)+3}] offset:{1024*i}")
                    if SKF and not SKO:
                        gaps[0] += ["s_getreg_b32 s40, hwreg(HW_REG_XCC_ID, 0, 4)", "v_readfirstlane_b32 s41, v202"]
                if tail == 2:
                    tr = fold0_triples()
                    for q, l in enumerate(tr):
                        g = min(q // SKG, len(mf) - 1)
                        gaps[g].append(l)
                        if q in (11, 23): gaps[g] += send1(q // 12, XS2)
                for g, mm in enumerate(mf):
                    o.append(mm); o += gaps[g]
    periods(k, "p5loop", texts, 36)
    k.stamp("p5_loop")
    def xw(c):
        for i in range(4): k(f"ds_write_b128 v{vXW}, v[{acc(c,i,1)}:{acc(c,i,1)+3}] offset:{4096*c + 1024*i}")
    def xr(c):
        for i in range(4): k(f"ds_read_b128 v[{acc(c,i,1)}:{acc(c,i,1)+3}], v{vXR} offset:{4096*c + 1024*i}")
    def rres():
        if SKR: return
        for p in range(2): k(f"ds_read_b128 v[{RES+4*p}:{RES+4*p+3}], v{vHK} offset:{1024*p}")
    def padd(d, a, b): k(f"v_pk_add_f32 v[{d}:{d+1}], v[{a}:{a+1}], v[{b}:{b+1}]")
    def fold(c):
        for i in range(4):
            for r in range(0, 4, 2): padd(acc(c,i,0)+r, acc(c,i,0)+r, acc(c,i,1)+r)
        for p in range(2):
            for r in range(4):
                if not SKR: k(f"v_permlane16_swap_b32 v{acc(c,2*p,0)+r}, v{acc(c,2*p+1,0)+r}")
    XS = A[0]; RM = A[0] + 8; U = A[1]
    def send():
        if not SKF:
            for p in range(2):
                for q in range(4):
                    a = acc(0, 2 * p, 0) + 2 * q
                    k(f"v_cvt_pk_bf16_f32 v{XS+4*p+q}, v{a}, v{a+1}")
                if SKX: k(f"buffer_store_dwordx4 v[{XS+4*p}:{XS+4*p+3}], v{vL}, s[12:15], s39 offen offset:{1024*p}{SC}")
            return
        for p in range(2):
            for q in range(4):
                a = acc(0, 2 * p, 0) + 2 * q
                k(f"v_cvt_pk_bf16_f32 v{XS+4*p+q}, v{a}, v{a+1}")
        if not SKX: return
        lfast = k.lab("p5fast"); lj = k.lab("p5sent")
        if SKF == 1: k("s_cmp_eq_u32 s40, s41"); k(f"s_cbranch_scc1 {lfast}")
        if SKF != 3:
            for p in range(2): k(f"buffer_store_dwordx4 v[{XS+4*p}:{XS+4*p+3}], v{vL}, s[12:15], s39 offen offset:{1024*p}{SC}")
        if SKF == 1: k(f"s_branch {lj}"); k(f"{lfast}:")
        if SKF != 2:
            for p in range(2): k(f"buffer_store_dwordx4 v[{XS+4*p}:{XS+4*p+3}], v{vL}, s[12:15], s39 offen offset:{1024*p}")
        if SKF == 1: k(f"{lj}:")
    early = None
    if SKO:
        SKP = int(os.environ.get("SKP", "0"))
        def poll(dst):
            for p in range(2): k(f"buffer_load_dwordx4 v[{dst+4*p}:{dst+4*p+3}], v{vL}, s[12:15], s38 offen offset:{1024*p}{SC}")
        def check(src, lbl):
            k(f"v_max3_u32 v{vT}, v{src}, v{src+1}, v{src+2}")
            k(f"v_max3_u32 v203, v{src+3}, v{src+4}, v{src+5}")
            k(f"v_max3_u32 v{vT}, v{vT}, v{src+6}, v{src+7}")
            k(f"v_max_u32 v{vT}, v{vT}, v203")
            k(f"v_cmp_eq_u32 vcc, -1, v{vT}")
            k("s_cmp_eq_u64 vcc, 0"); k(f"s_cbranch_scc1 {lbl}")
        def unpack(src):
            for q in range(8):
                k(f"v_lshlrev_b32 v{U+2*q}, 16, v{src+q}"); k(f"v_and_b32 v{U+2*q+1}, v{vMask}, v{src+q}")
        if SKO == 2:
            k("s_waitcnt lgkmcnt(0)")
            for q, l in enumerate(fold0_triples()):
                k(l)
                if q in (11, 23):
                    for x in send1(q // 12, XS2): k(x)
        if SKPA & 1: poll(RMA)
        xw(1)
        k("s_waitcnt lgkmcnt(0)")
        if SKP: k.stamp("p5_snd")
        k("s_barrier")
        if SKP: k.stamp("p5_b2")
        xr(1)
        if SKPA & 2: poll(TCH)
        elif not SKPA & 1: poll(RMA)
        k("s_waitcnt lgkmcnt(0)")
        fold(1)
        gA = k.lab("p5gotA"); gB = k.lab("p5gotB"); pl = k.lab("p5poll"); jn = k.lab("p5join")
        k("s_mov_b32 s28, 0")
        if SKPA == 3:
            k("s_waitcnt vmcnt(2)"); check(RMA, gA)
            k("s_mov_b32 s28, 1")
            k("s_waitcnt vmcnt(0)"); check(TCH, gB)
        elif SKPA == 2:
            k("s_waitcnt vmcnt(0)"); check(TCH, gB)
        else:
            k("s_waitcnt vmcnt(0)"); check(RMA, gA)
        k(f"{pl}:")
        poll(RMA)
        k("s_add_u32 s28, s28, 1")
        k("s_waitcnt vmcnt(0)"); check(RMA, gA)
        k(f"s_cmp_lt_u32 s28, {SPIN_LIMIT >> 2}"); k(f"s_cbranch_scc1 {pl}")
        if SKPA & 2:
            k(f"s_branch {gA}")
            k(f"{gB}:"); unpack(TCH); k(f"s_branch {jn}")
        k(f"{gA}:"); unpack(RMA)
        k(f"{jn}:")
        k.stamp("p5_got")
        if STAMP and SKP:
            i_ = k.nst; k.nst += 1; k.stnames.append("p5_npoll")
            k("s_add_u32 s86, s86, s28"); k(f"v_writelane_b32 v255, s84, {i_}"); k(f"v_writelane_b32 v254, s86, {i_}")
        for q in range(8): padd(acc(1, 0, 0) + 2 * q, acc(1, 0, 0) + 2 * q, U + 2 * q)
    elif SKA:
        SKP = int(os.environ.get("SKP", "0"))
        k("s_waitcnt lgkmcnt(0)")
        k("s_barrier")
        if SKP: k.stamp("p5_b1")
        xr(0); xw(1)
        k("s_waitcnt lgkmcnt(4)")
        fold(0); send()
        k("s_waitcnt lgkmcnt(0)")
        if SKP: k.stamp("p5_snd")
        k("s_barrier")
        if SKP: k.stamp("p5_b2")
        xr(1); rres()
        early = lambda: (k(f"s_waitcnt lgkmcnt({0 if SKR else 2})"), fold(1), k("s_waitcnt lgkmcnt(0)") if not SKR else None)
        if not (SKX and int(os.environ.get("SKE", "0")) == 2): early(); early = None
    else:
        if SKF: k("s_getreg_b32 s40, hwreg(HW_REG_XCC_ID, 0, 4)"); k("v_readfirstlane_b32 s41, v202")
        xw(0); xw(1)
        k("s_waitcnt lgkmcnt(0)")
        k("s_barrier")
        xr(0); xr(1); rres()
        k("s_waitcnt lgkmcnt(6)")
        fold(0); send()
        k("s_waitcnt lgkmcnt(2)")
        fold(1)
        k("s_waitcnt lgkmcnt(0)")
    def addbf(src):
        if SKR and src == RES: return
        for p in range(2):
            for q in range(4):
                k(f"v_lshlrev_b32 v{U+8*p+2*q}, 16, v{src+4*p+q}")
                k(f"v_and_b32 v{U+8*p+2*q+1}, v{vMask}, v{src+4*p+q}")
        for p in range(2):
            for q in range(4):
                a = acc(1, 2 * p, 0) + 2 * q
                padd(a, a, U + 8 * p + 2 * q)
    if SKO: pass
    elif SKX:
        pl = k.lab("p5poll"); dn = k.lab("p5got")
        if not int(os.environ.get("SKE", "0")): addbf(RES)
        if int(os.environ.get("SKP", "0")): k.stamp("p5_pre")
        k("s_mov_b32 s28, 0")
        k(f"{pl}:")
        for p in range(2): k(f"buffer_load_dwordx4 v[{RM+4*p}:{RM+4*p+3}], v{vL}, s[12:15], s38 offen offset:{1024*p}{SC}")
        if int(os.environ.get("SKE", "0")):
            l1 = k.lab("p5once"); k("s_cmp_lg_u32 s28, 0"); k(f"s_cbranch_scc1 {l1}")
            if early: early()
            addbf(RES); k(f"{l1}:")
        k("s_add_u32 s28, s28, 1")
        k("s_waitcnt vmcnt(0)")
        k(f"v_max3_u32 v{vT}, v{RM}, v{RM+1}, v{RM+2}")
        k(f"v_max3_u32 v203, v{RM+3}, v{RM+4}, v{RM+5}")
        k(f"v_max3_u32 v{vT}, v{vT}, v{RM+6}, v{RM+7}")
        k(f"v_max_u32 v{vT}, v{vT}, v203")
        k(f"v_cmp_eq_u32 vcc, -1, v{vT}")
        k("s_cmp_eq_u64 vcc, 0"); k(f"s_cbranch_scc1 {dn}")
        k(f"s_cmp_lt_u32 s28, {SPIN_LIMIT >> 2}"); k(f"s_cbranch_scc1 {pl}")
        k(f"{dn}:")
        k.stamp("p5_got")
        if STAMP and int(os.environ.get("SKP", "0")):
            i_ = k.nst; k.nst += 1; k.stnames.append("p5_npoll")
            k("s_add_u32 s86, s86, s28"); k(f"v_writelane_b32 v255, s84, {i_}"); k(f"v_writelane_b32 v254, s86, {i_}")
        addbf(RM)
    else:
        addbf(RES)
    for p in range(2):
        for q in range(4):
            a = acc(1, 2 * p, 0) + 2 * q
            k(f"v_cvt_pk_bf16_f32 v{RES+4*p+q}, v{a}, v{a+1}")
            if SKR and q & 1: k(f"ds_write_b64 v{vTW4[2*p + (q >> 1)]}, v[{RES+4*p+q-1}:{RES+4*p+q}]")
        if not SKR: k(f"ds_write_b128 v{vTW[p]}, v[{RES+4*p}:{RES+4*p+3}]")
    for q in range(2): k(f"ds_read_b128 v[{RES+4*q}:{RES+4*q+3}], v{vTR2 if SKR and q else vTR} offset:{1024*q}")
    for q in range(2):
        k(f"s_waitcnt lgkmcnt({1-q})")
        k(f"buffer_store_dwordx4 v[{RES+4*q}:{RES+4*q+3}], v{vO}, s[16:19], s{33+q} offen{OUTSC}")
    k.stamp("p5_epi")

KC = 2 * math.sqrt(2 / math.pi) * math.log2(math.e)
X4 = os.environ.get("X4", "drain").split(",")
T4 = int(os.environ.get("T4", "0")); T4S = int(os.environ.get("T4S", "29")); T4P = int(os.environ.get("T4P", "2"))
def phase4(k):
    NS = 4; SLOT = SLOT4; UOFF = 7168; BOFF = BOFF4; STATS = NS * SLOT
    vA = [2, 3]; vB = [4, 5]; vD = [6, 7, 8, 9, 10]; vL16 = 11; vT = 12
    A = [16, 48]; B = [80, 96]; ACC = 112; SV = 242
    acc = lambda fi, m, j: ACC + ((fi * 2 + m) * 4 + j) * 4
    w35_setup(k, vW5, 0, vT, DF if WT5 or WDT else 0)
    if L2P:
        assert SK5 and WDT
        coords35(k, 27, 29, 28)
        k("s_and_b32 s27, s27, 3"); k("s_lshr_b32 s28, s20, 1"); k("s_lshl_b32 s28, s28, 2"); k("s_add_u32 s27, s27, s28"); k(f"s_add_u32 s27, s27, {L2T}")
        k("s_and_b32 s28, s29, 1"); k(f"s_mul_i32 s28, s28, {DF//128}"); k("s_add_u32 s27, s27, s28"); k("s_lshl_b32 s27, s27, 13")
        k("s_and_b32 s28, s20, 1"); k("s_xor_b32 s28, s28, s29"); k(f"s_mul_i32 s28, s28, {DF*128}"); k("s_add_u32 s27, s27, s28")
        k(f"s_add_u32 s46, s27, {WS_WDT}"); k("s_add_u32 s47, s46, 4096")
        k(f"v_lshlrev_b32 v252, {7 if L2P >= 3 else 6}, v1")
        if L2P == 6: k(f"s_mul_i32 s48, s20, {L2D}"); k(f"s_add_u32 s48, s48, {L2S - 4}")
        else: k("s_lshr_b32 s48, s20, 1")
    if not WDT: srd(k, 60, pWD, DF * D * 2)
    coords4(k, 23, 24, 25)
    k("s_and_b32 s25, s20, 3")
    k("s_lshr_b32 s26, s20, 2")
    k(f"v_lshlrev_b32 v{vL16}, 4, v1")
    k(f"v_lshrrev_b32 v{vT}, 4, v1")
    k(f"v_bfe_u32 v{vT+1}, v1, 2, 2")
    k(f"v_lshrrev_b32 v{vT+2}, 1, v{vT}"); k(f"v_and_b32 v{vT+3}, 1, v{vT}")
    k(f"v_lshlrev_b32 v{vT+2}, 4, v{vT+2}"); k(f"v_lshl_add_u32 v{vT+2}, v{vT+3}, 2, v{vT+2}"); k(f"v_add_u32 v{vT+2}, v{vT+2}, v{vT+1}")
    k(f"v_mul_u32_u24 v{vT+2}, 224, v{vT+2}")
    k(f"v_and_b32 v{vT+3}, 3, v1"); k(f"v_lshl_add_u32 v{vT+2}, v{vT+3}, 3, v{vT+2}")
    k("s_lshl_b32 s27, s26, 7")
    k(f"v_add_u32 v{vA[0]}, s27, v{vT+2}"); k(f"v_add_u32 v{vA[1]}, {2*SLOT}, v{vA[0]}")
    k(f"v_and_b32 v{vT+1}, 15, v1"); k(f"v_lshlrev_b32 v{vT+1}, 4, v{vT+1}"); k(f"v_lshl_add_u32 v{vT+1}, v{vT}, 9, v{vT+1}")
    k("s_lshl_b32 s27, s25, 12"); k(f"s_add_u32 s27, s27, {BOFF}")
    k(f"v_add_u32 v{vB[0]}, s27, v{vT+1}"); k(f"v_add_u32 v{vB[1]}, {2*SLOT}, v{vB[0]}")
    k("s_lshl_b32 s31, s23, 19"); k(f"s_add_u32 s31, s31, {WS_H}")
    k("s_mul_i32 s30, s24, 224"); k(f"s_add_u32 s30, s30, {NS*32*7168}")
    for r in range(ACC, ACC + 128): k(f"v_mov_b32 v{r}, 0")
    if COA & 2:
        k(f"v_lshrrev_b32 v{vT}, 5, v1"); k(f"v_lshlrev_b32 v{vT}, {13 if STL & 2 else 16}, v{vT}")
        k(f"v_and_b32 v{vT+1}, 31, v1"); k("s_lshl_b32 s27, s20, 5"); k(f"v_add_u32 v{vT+1}, s27, v{vT+1}"); k(f"v_lshl_add_u32 v{SV+8}, v{vT+1}, 2, v{vT}")
    else:
        k(f"v_and_b32 v{vT}, 1, v0"); k(f"v_lshlrev_b32 v{vT}, {13 if STL & 2 else 16}, v{vT}")
        k(f"v_lshrrev_b32 v{vT+1}, 1, v0"); k(f"v_lshl_add_u32 v{SV+8}, v{vT+1}, 2, v{vT}")
    k(f"v_lshlrev_b32 v{SV+9}, 4, v{vT+1}"); k(f"v_add_u32 v{SV+9}, {STATS}, v{SV+9}")
    k(f"s_lshl_b32 s37, s23, {14 if STL & 2 else 10}"); k(f"s_add_u32 s37, s37, {WS_ST}")
    k("s_bitcmp1_b32 s25, 1")
    k(f"s_cselect_b32 s4, s{pWU}, s{pWG}"); k(f"s_cselect_b32 s5, s{pWU+1}, s{pWG+1}")
    srd(k, 8, 4, D * DF * 2)
    lsb = k.lab("p4setB"); lsd = k.lab("p4setD")
    k("s_cmp_eq_u32 s26, 0")
    k(f"s_cbranch_scc0 {lsb}")
    for n in range(3):
        k("s_mul_i32 s27, s20, 3"); k(f"s_add_u32 s27, s27, {n}")
        k("s_lshr_b32 s28, s27, 1"); k("s_lshl_b32 s28, s28, 16"); k("s_and_b32 s29, s27, 1"); k("s_lshl_b32 s29, s29, 10"); k("s_add_u32 s28, s28, s29")
        k(f"v_add_u32 v{vD[n]}, s28, v{vL16}")
    k(f"s_mul_i32 s32, s20, 3072"); k(f"s_add_u32 s32, s32, {BOFF}")
    k(f"s_branch {lsd}")
    k(f"{lsb}:")
    k("s_and_b32 s27, s25, 1"); k("s_lshl_b32 s27, s27, 8")
    for q in range(4):
        k(f"v_add_u32 v{vT+3}, {64*q}, v1"); k(f"v_add_u32 v{vT+3}, s27, v{vT+3}")
        w4_piece_lane(k, vD[q], vT + 3, vT)
    k("s_add_u32 s27, s25, 12")
    k("s_lshr_b32 s28, s27, 1"); k("s_lshl_b32 s28, s28, 16"); k("s_and_b32 s29, s27, 1"); k("s_lshl_b32 s29, s29, 10"); k("s_add_u32 s28, s28, s29")
    k(f"v_add_u32 v{vD[4]}, s28, v{vL16}")
    k("s_lshl_b32 s33, s27, 10"); k(f"s_add_u32 s33, s33, {BOFF}")
    k("s_lshr_b32 s32, s25, 1"); k(f"s_mul_i32 s32, s32, {UOFF}"); k("s_and_b32 s27, s25, 1"); k("s_lshl_b32 s27, s27, 12"); k("s_add_u32 s32, s32, s27")
    k(f"{lsd}:")
    k("s_lshl_b32 s27, s23, 3"); k("s_lshl_b32 s28, s25, 1"); k("s_add_u32 s27, s27, s28"); k("s_mul_i32 s27, s27, 448")
    k("s_mul_i32 s28, s24, 14"); k("s_add_u32 s27, s27, s28"); k("s_lshl_b32 s28, s26, 3"); k("s_add_u32 s27, s27, s28")
    k("s_lshl_b32 s27, s27, 9"); k(f"s_add_u32 s34, s27, {WS_HM}"); k(f"s_add_u32 s35, s34, {448*512}")
    if WDT:
        k(f"v_add_u32 v{vT+1}, {C3 - 1}, v1"); k(f"v_lshlrev_b32 v{vT+1}, 7, v{vT+1}")
        k("s_lshl_b32 s27, s23, 7"); k(f"s_add_u32 s27, s27, {C4*128}")
        k("s_nop 0")
        k(f"v_writelane_b32 v{vT+1}, s27, 0")
        k(f"s_mov_b32 s27, {WS_CNT}")
        wait_multi(k, 27, 32, 9, vt=(vT, vT + 1))
    else:
        k("s_lshl_b32 s27, s23, 7"); k(f"s_add_u32 s27, s27, {WS_CNT + C4*128}")
        wait(k, 27, 32, vt=(vT, vT + 1), pr=A[1])
    k.stamp("p4_wait")
    def dma_act(var, slot):
        if var == "A":
            return [[f"s_add_u32 m0, s32, {slot*SLOT + n*1024}", f"buffer_load_dwordx4 v{vD[n]}, s[12:15], s31 offen{SC} lds"] for n in range(3)]
        return [[f"s_add_u32 m0, s33, {slot*SLOT}", f"buffer_load_dwordx4 v{vD[4]}, s[12:15], s31 offen{SC} lds"]]
    def dma_w(var, slot):
        if var == "A": return []
        return [[f"s_add_u32 m0, s32, {slot*SLOT + q*1024}", f"buffer_load_dwordx4 v{vD[q]}, s[8:11], s30 offen lds"] for q in range(4 if var == "B0" else 3)]
    advA = "s_add_u32 s31, s31, 2048"; advW = f"s_add_u32 s30, s30, {32*7168}"
    def stats_calc():
        o = []
        for i in (0, 2, 4, 6): o.append(f"v_add_f32 v{SV+i}, v{SV+i}, v{SV+i+1}")
        o += [f"v_add_f32 v{SV}, v{SV}, v{SV+2}", f"v_add_f32 v{SV+4}, v{SV+4}, v{SV+6}", f"v_add_f32 v{SV}, v{SV}, v{SV+4}"]
        if COA & 2:
            o += [f"v_mov_b32 v{SV+1}, v{SV}", "s_nop 1", f"v_permlane32_swap_b32 v{SV}, v{SV+1}", f"v_add_f32 v{SV}, v{SV}, v{SV+1}"]
        else:
            o += ["s_nop 1", f"v_add_f32_dpp v{SV}, v{SV}, v{SV} quad_perm:[1,0,3,2] row_mask:0xf bank_mask:0xf"]
        o += [f"v_mov_b32 v{SV+3}, 0x3a800000", f"v_mov_b32 v{SV+5}, 0x3727c5ac",
              f"v_fma_f32 v{SV+2}, v{SV}, v{SV+3}, v{SV+5}",
              f"v_rsq_f32 v{SV+4}, v{SV+2}",
              f"v_mov_b32 v{SV+3}, 0",
              f"v_mul_f32 v{SV+1}, {f2h(-KC)}, v{SV+4}",
              f"v_mul_f32 v{SV+5}, v{SV+4}, v{SV+4}",
              f"v_mul_f32 v{SV}, {f2h(0.044715)}, v{SV+1}",
              f"v_mul_f32 v{SV}, v{SV}, v{SV+5}",
              f"ds_write_b128 v{SV+9}, v[{SV}:{SV+3}]"]
        return o
    st_idx = {}
    def vstamp(nm):
        if nm in st_idx: k.prio(nm); k.stamp_at(st_idx[nm])
        else:
            st_idx[nm] = k.nst; k.stamp(nm)
    ljoin = k.lab("p4join")
    def body(var):
        nf = 4 if var == "A" else 3
        first = (var != "A") if T4 == 1 else (var == "A")
        vm = VM()
        for s in range(NS):
            for d in dma_act(var, s):
                for l in d: k(l)
                vm.issue(("D", s))
            k(advA)
        k("s_mov_b32 s28, s37")
        for i in range(8):
            if STL & 2:
                k(f"buffer_load_dword v{SV+i}, v{SV+8}, s[12:15], s28 offen offset:{1024*(i&3)}{SC}"); vm.issue("ST")
                if i == 3: k("s_add_u32 s28, s28, 4096")
                continue
            k(f"buffer_load_dword v{SV+i}, v{SV+8}, s[12:15], s28 offen{SC}"); vm.issue("ST")
            if i < 7: k("s_add_u32 s28, s28, 8192")
        def reads(buf, slot):
            base = slot >> 1; so = (slot & 1) * SLOT
            o = []
            def rA(fi, m):
                i = fi * 2 + m
                return [f"ds_read_b64_tr_b16 v[{A[buf]+4*i+2*t}:{A[buf]+4*i+2*t+1}], v{vA[base]} offset:{so + m*UOFF + t*8*224 + fi*32}" for t in range(2)]
            o += rA(0, 0)
            for j in range(4): o.append(f"ds_read_b128 v[{B[buf]+4*j}:{B[buf]+4*j+3}], v{vB[base]} offset:{so + (j>>1)*2048 + (j&1)*256}")
            for i in range(1, 2 * nf): o += rA(i >> 1, i & 1)
            return o
        k(f"s_waitcnt vmcnt({vm.cnt({('D', 0)})})")
        k("s_barrier")
        vstamp("p4_go")
        for l in reads(0, 0): k(l)
        NT = 32
        texts = []
        pf5 = {3: {28: [0], 29: [1, 2]}, 1: {28: [0]}, 0: {}}[NPF5]
        for per in range(NT // NS):
            o = []
            for t in range(per * NS, (per + 1) * NS):
                slot = t % NS; cur = t & 1; nxt = cur ^ 1
                rd = []; dm = []; ex = []
                if T4 and t > T4S and t + 1 < NT:
                    o.append("s_waitcnt lgkmcnt(0)")
                    rd = reads(nxt, (t + 1) % NS)
                elif t + 1 < NT:
                    need = {("D", t + 1)}
                    if T4 and t == T4S: need |= {("D", x) for x in range(t + 1, NT)}
                    if t == 3: need.add("ST")
                    o.append(f"s_waitcnt vmcnt({vm.cnt(need)}) lgkmcnt(0)")
                    o.append("s_barrier")
                    if T4 and t == T4S and first: o.append(f"s_setprio {T4P}")
                    rd = reads(nxt, (t + 1) % NS)
                else:
                    o.append("s_waitcnt lgkmcnt(0)")
                tail = []
                if t + NS < NT:
                    dm = dma_w(var, slot) + dma_act(var, slot)
                    vm.issue(("D", t + NS), len(dm))
                    tail = [advA, advW]
                for tl in pf5.get(t, []):
                    if tl < NS5 and not T4:
                        dm += [list(x) for x in w35_dma(vW5, SW5, tl)]
                        dm[-1].append(W5ADV)
                        vm.issue("PF5", 2)
                    elif tl < NS5 and first:
                        tail = tail + [W5ADV]
                    elif tl < NS5:
                        assert WDT or WT5
                        sg = "add" if var == "A" else "sub"
                        own = [list(x) for x in w35_dma(vW5, SW5, tl)]
                        oth = [[x[0].replace("s51", "s7"), x[1].replace("s50", "s6")] for x in w35_dma(vW5, SW5, tl)]
                        oth[0] = [f"s_{sg}_u32 s6, s50, 8192", f"s_{sg}_u32 s7, s51, 8192"] + oth[0]
                        oth[0] = [oth[0][:3], oth[0][3]]
                        oth[-1].append(W5ADV)
                        dm += own + oth
                        vm.issue("PF5", 4)
                if t == 3: ex = stats_calc()
                if L2P in (1, 4) and t == L2S:
                    nl = 2 if L2P == 1 else 1
                    ex = [f"buffer_load_dword v253, v252, s[12:15], s{46+h} offen{SC}" for h in range(nl)]; vm.issue("L2P", nl)
                if L2P in (2, 3) and L2S <= t < L2S + 4:
                    nl = 2 if L2P == 2 else 1
                    lsk = k.lab("nol2p")
                    ex = ["\n".join([f"s_cmp_lg_u32 s48, {t - L2S}", f"s_cbranch_scc1 {lsk}"] + [f"buffer_load_dword v253, v252, s[12:15], s{46+h} offen{SC}" for h in range(nl)] + [f"{lsk}:"])]
                    vm.issue("L2P", nl, certain=False)
                if t == JT4 and JIT & 8:
                    ex = jit("L_p4tail", 27, 13); vm.issue("CP")
                mf = []
                for i in range(2 * nf):
                    for j in range(4):
                        a = acc(i >> 1, i & 1, j)
                        mf.append(f"v_mfma_f32_16x16x32_bf16 v[{a}:{a+3}], v[{A[cur]+4*i}:{A[cur]+4*i+3}], v[{B[cur]+4*j}:{B[cur]+4*j+3}], v[{a}:{a+3}]")
                n = len(mf)
                gaps = [[] for _ in mf]
                for q, r in enumerate(rd): gaps[q].append(r)
                if dm:
                    stp = (n - 3) // len(dm)
                    for q, d in enumerate(dm):
                        g = 1 + stp * q
                        if isinstance(d[0], list): gaps[g] += d[0]
                        else: gaps[g].append(d[0])
                        gaps[g + 1] += d[1:]
                    gaps[n - 1] += tail
                elif tail: gaps[n - 1] += tail
                for q, l in enumerate(ex): gaps[min(4 + q, n - 1)].append(l)
                if L2P == 6 and 1 <= per < NT // NS - 1:
                    lsk = f"L_nol2p_{var}_{t % NS}"
                    gaps[L2G[0]] += [f"s_lshl2_add_u32 s49, s36, {t % NS}", "s_cmp_lg_u32 s49, s48", f"s_cbranch_scc1 {lsk}", f"buffer_load_dword v253, v252, s[12:15], s46 offen{SC}", f"{lsk}:"]
                    vm.issue("L2P", 1, certain=False)
                if L2P == 5:
                    assert NPF5 == 3 and not T4
                    for (g, cls) in {29: [(n - 1, 0)], 30: [(L2G[0], 1), (n - 1 - L2G[1], 2)], 31: [(L2G[2], 3)]}.get(t, []):
                        lsk = k.lab("nol2p")
                        gaps[g] += [f"s_cmp_lg_u32 s48, {cls}", f"s_cbranch_scc1 {lsk}", f"buffer_load_dword v253, v252, s[12:15], s46 offen{SC}", f"{lsk}:"]
                        vm.issue("L2P", 1, certain=False)
                for g, mm in enumerate(mf):
                    o.append(mm); o += gaps[g]
            texts.append(o)
        periods(k, f"p4{var}", texts, 36)
        if var == "A" and JIT & 8: k("L_p4tail:")
        vstamp("p4_loop")
        ST = 16; TT = 32
        k(f"v_and_b32 v{vT}, 15, v1"); k(f"v_lshlrev_b32 v{vT}, 4, v{vT}")
        k("s_lshl_b32 s27, s25, 10"); k(f"s_add_u32 s27, s27, {STATS}"); k(f"v_add_u32 v{vT}, s27, v{vT}")
        for j in range(4): k(f"ds_read_b128 v[{ST+4*j}:{ST+4*j+3}], v{vT} offset:{256*j}")
        nd = 1 if L2P == 5 else 0
        k(f"s_waitcnt vmcnt({nd}) lgkmcnt(0)")
        if "drain" in X4: k(f"s_waitcnt vmcnt({nd})"); k("s_barrier")
        if "drain0" in X4: k("s_waitcnt vmcnt(0)")
        if "bar" in X4: k("s_barrier")
        if "adrain" in X4 and var == "A": k("s_waitcnt vmcnt(0)")
        if "bdrain" in X4 and var != "A": k("s_waitcnt vmcnt(0)")
        nopk = ("anopk" in X4 and var == "A") or ("bnopk" in X4 and var != "A")
        def pk(op, d, a, b, c=None, sel=None):
            if not nopk:
                x = f"v_pk_{op}_f32 v[{d}:{d+1}], v[{a}:{a+1}], v[{b}:{b+1}]"
                if c is not None: x += f", v[{c}:{c+1}] " + sel
                k(x); return
            for h in range(2):
                if c is None: k(f"v_mul_f32 v{d+h}, v{a+h}, v{b+h}")
                elif sel.startswith("op_sel:[0,0,1]"): k(f"v_fma_f32 v{d+h}, v{a+h}, v{b}, v{b+1}")
                else: k(f"v_fma_f32 v{d+h}, v{a+h}, v{b}, v{b}")
        for fi in range(nf):
            for p in range(2):
                gi = fi * 2 + p
                PK = TT + 16 + 4 * (gi & 3)
                T = TT + 8 * (gi & 1)
                prs = [(2 * p + jj, h) for jj in range(2) for h in range(2)]
                P = lambda r: f"v[{r}:{r+1}]"
                for q, (j, h) in enumerate(prs):
                    g = acc(fi, 0, j) + 2 * h
                    pk("mul", T+2*q, g, g)
                for q, (j, h) in enumerate(prs):
                    c = ST + 4 * j
                    pk("fma", T+2*q, T+2*q, c, c, "op_sel:[0,0,1] op_sel_hi:[1,0,1]")
                for q, (j, h) in enumerate(prs):
                    g = acc(fi, 0, j) + 2 * h
                    pk("mul", T+2*q, T+2*q, g)
                for q, (j, h) in enumerate(prs):
                    g = acc(fi, 0, j) + 2 * h; u = acc(fi, 1, j) + 2 * h
                    k(f"v_exp_f32 v{T+2*q}, v{T+2*q}"); k(f"v_exp_f32 v{T+2*q+1}, v{T+2*q+1}")
                    pk("mul", u, u, g)
                for q, (j, h) in enumerate(prs):
                    c = ST + 4 * j + 2
                    pk("fma", T+2*q, T+2*q, c, c, "op_sel:[0,0,0] op_sel_hi:[1,0,0]")
                for q, (j, h) in enumerate(prs):
                    k(f"v_rcp_f32 v{T+2*q}, v{T+2*q}"); k(f"v_rcp_f32 v{T+2*q+1}, v{T+2*q+1}")
                for q, (j, h) in enumerate(prs):
                    u = acc(fi, 1, j) + 2 * h
                    pk("mul", u, u, T+2*q)
                for q, (j, h) in enumerate(prs):
                    u = acc(fi, 1, j) + 2 * h
                    k(f"v_cvt_pk_bf16_f32 v{PK+q}, v{u}, v{u+1}")
                k(f"v_permlane16_swap_b32 v{PK}, v{PK+2}")
                k(f"v_permlane16_swap_b32 v{PK+1}, v{PK+3}")
                k(f"buffer_store_dwordx4 v[{PK}:{PK+3}], v{vL16}, s[12:15], s{34+p} offen offset:{1024*fi}{SC}")
        if T4 and first: k("s_setprio 0")
        vstamp("p4_epi")
        if var != "B1": k(f"s_branch {ljoin}")
    lB = k.lab("p4B"); lB1 = k.lab("p4B1")
    k("s_cmp_eq_u32 s26, 0")
    k(f"s_cbranch_scc0 {lB}")
    body("A")
    k(f"{lB}:")
    k("s_bitcmp1_b32 s25, 0")
    k(f"s_cbranch_scc1 {lB1}")
    body("B0")
    k(f"{lB1}:")
    body("B1")
    k(f"{ljoin}:")
    k("s_lshl_b32 s27, s23, 7"); k(f"s_add_u32 s27, s27, {WS_CNT + C5*128}")
    signal(k, 27, vt=(vT, vT + 1))
    k.stamp("p4_sig")

CPF = int(os.environ.get("CPF", "1")); CPFW = int(os.environ.get("CPFW", "0"))
def mk():
    k = G(NAME, nvgpr=256, accum=256, total=256)
    lend = "L_end"
    k("s_cmp_ge_u32 s2, 256")
    k(f"s_cbranch_scc1 {lend}")
    if int(os.environ.get("PERM", "0")):
        k("s_and_b32 s3, s2, 31"); k("s_lshl_b32 s3, s3, 3"); k("s_lshr_b32 s2, s2, 5"); k("s_or_b32 s2, s2, s3")
    if os.environ.get("SCR"):
        k("s_and_b32 s3, s2, 7"); k("s_lshl_b32 s3, s3, 5"); k("s_lshr_b32 s2, s2, 3"); k("s_or_b32 s2, s2, s3")
    k("s_load_dwordx16 s[64:79], s[0:1], 0")
    k("s_load_dwordx4 s[80:83], s[0:1], 64")
    k("v_and_b32 v1, 63, v0")
    k("v_lshrrev_b32 v2, 6, v0")
    k("s_nop 0")
    k("v_readfirstlane_b32 s20, v2")
    k.stamp("start")
    if CPF:
        k("s_getpc_b64 s[44:45]")
        k("L_cpf_pc:")
        k("s_mov_b32 s46, L_end-L_cpf_pc")
        k("s_mov_b32 s47, 0x20000")
        if CPF == 1:
            lc = k.lab("nocpf")
            k("s_lshr_b32 s3, s2, 3"); k("s_lshl_b32 s3, s3, 11")
            k(f"s_cmp_lg_u32 s20, {CPFW}"); k(f"s_cbranch_scc1 {lc}")
            k("v_lshlrev_b32 v210, 5, v1"); k("v_add_u32 v210, s3, v210")
            k("buffer_load_dword v211, v210, s[44:47], 0 offen")
            k(f"{lc}:")
        elif CPF == 2:
            k("v_lshlrev_b32 v210, 6, v0"); k("s_mov_b32 s3, 32768")
            k("buffer_load_dword v211, v210, s[44:47], 0 offen")
            k("buffer_load_dword v212, v210, s[44:47], s3 offen")
        elif CPF == 3:
            k("s_lshr_b32 s3, s2, 3"); k("s_and_b32 s3, s3, 3"); k("s_lshl_b32 s3, s3, 14")
            k("v_lshlrev_b32 v210, 5, v0")
            k("buffer_load_dword v211, v210, s[44:47], s3 offen")
    ldone = "L_done"
    phs = [phase1, phase2, phase3k if SK3 else lambda k: phase35(k, "wo"), phase4, phase5k if SK5 else lambda k: phase35(k, "down")]
    for i, ph in enumerate(phs[:UPTO]): ph(k)
    if os.environ.get("ENDW"): k("s_waitcnt vmcnt(0)")
    k.stamp("end")
    k.stamp_out()
    k("s_waitcnt vmcnt(0)")
    k(f"{lend}:")
    k("s_endpgm")
    return k, ("mk", 256, 512, LDS_BYTES)

if __name__ == "__main__":
    import sys
    sys.path.insert(0, "gen")
    from build import header
    k, _ = mk()
    o = header()
    o.append(f"; @launch grid=(256,1,1) block=(512,1,1) lds={LDS_BYTES}")
    if STAMP: o.append("; stamps: " + " ".join(k.stnames))
    o.append('.amdgcn_target "amdgcn-amd-amdhsa--gfx950"')
    o.append('.text')
    o.append(k.text())
    o.append('.section .rodata,"a"')
    o.append(k.desc())
    open(sys.argv[1], "w").write("\n".join(o) + "\n")
    print("wrote", sys.argv[1], "instrs", sum(1 for l in k.lines if l.startswith("  ")))
```
